```python
import torch

def _softmax(x, axis=-1):
    return torch.softmax(x, dim=axis)
def _gelu(x):
    return torch.nn.functional.gelu(x, approximate="tanh")
def _silu(x):
    return torch.nn.functional.silu(x)
def _sigmoid(x):
    return torch.sigmoid(x)
def _layernorm(x, axis=-1, eps=1e-5):
    m = x.mean(dim=axis, keepdim=True)
    v = x.var(dim=axis, keepdim=True, unbiased=False)
    return (x - m) / torch.sqrt(v + eps)
def _scatter_add(tgt, idx, src, axis=0):
    return tgt.clone().index_add_(axis, idx, src)
def _segment_sum(src, seg, n):
    out = torch.zeros((n,) + src.shape[1:], dtype=src.dtype)
    return out.index_add_(0, seg, src)
def _pad(x, pw):
    flat = tuple(v for pair in reversed(pw) for v in pair)
    return torch.nn.functional.pad(x, flat)

kernel_name = 'concat_heads__mha_block_cached__mha_block_cached__near_ridge'

def setup_inputs():

    _w = (lambda a: (lambda t: t.to(torch.bfloat16) if t.is_floating_point() else t)(torch.as_tensor(a)))
    def _A_setup():
        B, Sq, D = 8, 240, 576
        H, Sk, Dh = 32, 1024, 128
        return {
            "x": _w((lambda *s: torch.randn(*s, dtype=torch.bfloat16) * 0.8)(B, Sq, D)),
            "k_cache": _w((lambda *s: torch.randn(*s, dtype=torch.bfloat16) * 0.8)(B, H, Sk, Dh)),
            "v_cache": _w((lambda *s: torch.randn(*s, dtype=torch.bfloat16) * 0.05)(B, H, Sk, Dh)),
            "wq": _w((lambda *s: torch.randn(*s, dtype=torch.bfloat16) * 0.8)(D, H * Dh) * (D ** -0.5)),
            "wo": _w((lambda *s: torch.randn(*s, dtype=torch.bfloat16) * 0.05)(H * Dh, D) * ((H * Dh) ** -0.5)),
        }
    _A_in = _A_setup()

    def _B_setup():
        B, Sq, D = 8, 240, 576
        H, Sk, Dh = 32, 1024, 128
        return {
            "x": _w((lambda *s: torch.randn(*s, dtype=torch.bfloat16) * 0.8)(B, Sq, D)),
            "k_cache": _w((lambda *s: torch.randn(*s, dtype=torch.bfloat16) * 0.8)(B, H, Sk, Dh)),
            "v_cache": _w((lambda *s: torch.randn(*s, dtype=torch.bfloat16) * 0.05)(B, H, Sk, Dh)),
            "wq": _w((lambda *s: torch.randn(*s, dtype=torch.bfloat16) * 0.8)(D, H * Dh) * (D ** -0.5)),
            "wo": _w((lambda *s: torch.randn(*s, dtype=torch.bfloat16) * 0.05)(H * Dh, D) * ((H * Dh) ** -0.5)),
        }
    _B_in = _B_setup()

    return {
        "A_x": _A_in["x"],
        "A_k_cache": _A_in["k_cache"],
        "A_v_cache": _A_in["v_cache"],
        "A_wq": _A_in["wq"],
        "A_wo": _A_in["wo"],
        "B_x": _B_in["x"],
        "B_k_cache": _B_in["k_cache"],
        "B_v_cache": _B_in["v_cache"],
        "B_wq": _B_in["wq"],
        "B_wo": _B_in["wo"],
    }

def reference(A_x, A_k_cache, A_v_cache, A_wq, A_wo, B_x, B_k_cache, B_v_cache, B_wq, B_wo):
    def _A_ref(x, k_cache, v_cache, wq, wo):
        B, Sq, D = x.shape
        H, Dh = 32, 128
        q = (lambda x, *d: x.permute(*d))((x @ wq).reshape(B, Sq, H, Dh), 0, 2, 1, 3)
        scores = torch.einsum("bhqd,bhkd->bhqk", q, k_cache) * (Dh ** -0.5)
        p = _softmax(scores, axis=-1)
        o = torch.einsum("bhqk,bhkd->bhqd", p, v_cache)
        return (lambda x, *d: x.permute(*d))(o, 0, 2, 1, 3).reshape(B, Sq, H * Dh) @ wo

    def _B_ref(x, k_cache, v_cache, wq, wo):
        B, Sq, D = x.shape
        H, Dh = 32, 128
        q = (lambda x, *d: x.permute(*d))((x @ wq).reshape(B, Sq, H, Dh), 0, 2, 1, 3)
        scores = torch.einsum("bhqd,bhkd->bhqk", q, k_cache) * (Dh ** -0.5)
        p = _softmax(scores, axis=-1)
        o = torch.einsum("bhqk,bhkd->bhqd", p, v_cache)
        return (lambda x, *d: x.permute(*d))(o, 0, 2, 1, 3).reshape(B, Sq, H * Dh) @ wo

    a = _A_ref(A_x, A_k_cache, A_v_cache, A_wq, A_wo)
    b = _B_ref(B_x, B_k_cache, B_v_cache, B_wq, B_wo)
    return torch.concatenate([a, b], axis=-1)
```

```python
import re

REG_RE = re.compile(r'\b([vas])(?:(\d+)|\[(\d+):(\d+)\])')

def regs_of(tok):
    out = []
    for m in REG_RE.finditer(tok):
        k = m.group(1)
        if m.group(2) is not None:
            out.append((k, int(m.group(2))))
        else:
            for i in range(int(m.group(3)), int(m.group(4)) + 1):
                out.append((k, i))
    return out

TRANS = ('v_exp_f32', 'v_log_f32', 'v_rcp_f32', 'v_rsq_f32', 'v_sqrt_f32')

class Ins:
    __slots__ = ('text', 'op', 'ops', 'kind', 'wr', 'rd', 'srcc', 'passes')
    def __init__(self, text):
        self.text = text
        t = text.split(';')[0].strip()
        self.op = t.split()[0] if t else ''
        rest = t[len(self.op):].strip()
        self.ops = [x.strip() for x in rest.split(',')] if rest else []
        op = self.op
        self.wr = set(); self.rd = set(); self.srcc = set(); self.passes = 0
        if t.endswith(':') or op.startswith('.') or not t:
            self.kind = 'label'
        elif op.startswith('v_mfma'):
            self.kind = 'mfma'
            self.passes = 4 if '16x16x32' in op else 8
            self.wr = set(regs_of(self.ops[0]))
            self.rd = set(regs_of(self.ops[1]) + regs_of(self.ops[2]))
            self.srcc = set(regs_of(self.ops[3]))
        elif op.startswith('v_'):
            self.kind = 'valu'
            if op.startswith('v_cmp'):
                self.wr = set(regs_of(self.ops[0])) | ({('s', 'vcc')} if self.ops[0] == 'vcc' else set())
                self.rd = set(sum([regs_of(x) for x in self.ops[1:]], []))
            elif op.startswith('v_permlane'):
                self.wr = set(regs_of(self.ops[0]) + regs_of(self.ops[1])); self.rd = set(self.wr)
            else:
                self.wr = set(regs_of(self.ops[0]))
                self.rd = set(sum([regs_of(x) for x in self.ops[1:]], []))
                if op.startswith('v_fmac') or op.startswith('v_writelane'):
                    self.rd |= self.wr
                if 'vcc' in self.ops[1:]:
                    self.rd.add(('s', 'vcc'))
        elif op.startswith('ds_read'):
            self.kind = 'dsr'
            self.wr = set(regs_of(self.ops[0])); self.rd = set(regs_of(self.ops[1]))
        elif op.startswith('ds_write'):
            self.kind = 'dsw'
            self.rd = set(sum([regs_of(x) for x in self.ops], []))
        elif op.startswith('buffer_load') or op.startswith('global_load'):
            if ' lds' in t:
                self.kind = 'dma'
                self.rd = set(sum([regs_of(x) for x in self.ops], []))
            else:
                self.kind = 'vload'
                self.wr = set(regs_of(self.ops[0])); self.rd = set(sum([regs_of(x) for x in self.ops[1:]], []))
        elif op.startswith('buffer_store') or op.startswith('global_store'):
            self.kind = 'vstore'
            self.rd = set(sum([regs_of(x) for x in self.ops], []))
        elif op.startswith('s_'):
            self.kind = 'salu'
            if op in ('s_waitcnt', 's_barrier', 's_nop', 's_endpgm', 's_branch', 's_setprio') or op.startswith('s_cbranch') or op.startswith('s_cmp'):
                if op.startswith('s_cmp'):
                    self.rd = set(sum([regs_of(x) for x in self.ops], []))
            else:
                self.wr = set(regs_of(self.ops[0]))
                if self.ops[0] == 'm0': self.wr = {('s', 'm0')}
                if self.ops[0].startswith('exec'): self.wr = {('s', 'exec')}
                self.rd = set(sum([regs_of(x) for x in self.ops[1:]], []))
                if any(o.startswith('vcc') for o in self.ops[1:]): self.rd.add(('s', 'vcc'))
        else:
            raise ValueError("unknown instr: " + text)
    def states(self):
        if self.kind == 'label': return 0
        if self.op == 's_nop': return int(self.ops[0], 0) + 1
        return 1

def need(p, c):
    n = 0
    if p.kind == 'mfma':
        big = {4: 8, 8: 12}[p.passes]
        if c.kind == 'mfma':
            if p.wr & c.rd: n = max(n, big)
            if p.wr & c.srcc:
                if not (p.wr == c.srcc and p.passes == c.passes): n = max(n, big - 2)
            elif p.wr & c.wr: n = max(n, 0)
        elif c.kind in ('valu', 'dsr', 'dsw', 'vload', 'vstore', 'dma'):
            if p.wr & (c.rd | c.wr): n = max(n, big)
            if c.kind == 'valu' and (p.srcc & c.wr): n = max(n, {4: 3, 8: 7}[p.passes])
    elif p.kind == 'valu':
        vw = {r for r in p.wr if r[0] in 'va'}
        sw = {r for r in p.wr if r[0] == 's'}
        if c.kind == 'mfma' and vw & (c.rd | c.srcc): n = max(n, 2)
        if c.kind == 'valu':
            if p.op.startswith(TRANS) and (vw & c.rd) : n = max(n, 1)
            if c.op.startswith('v_permlane') and vw & c.rd: n = max(n, 2)
            if (c.op.startswith('v_readfirstlane') or c.op.startswith('v_readlane')) and vw & c.rd: n = max(n, 1)
            if sw & c.rd: n = max(n, 2)
        if c.kind in ('dma', 'vload', 'vstore') and sw & c.rd: n = max(n, 5)
        if c.kind == 'salu' and sw & c.rd: n = max(n, 4)
        if c.kind in ('vstore','dsw') and p.op.startswith(TRANS) and vw & c.rd: n = max(n, 1)
    elif p.kind == 'salu':
        if ('s', 'm0') in p.wr and c.kind == 'dma': n = max(n, 1)
    elif p.kind in ('vstore',):
        if c.kind == 'valu' and ('x4' in p.op or 'x3' in p.op) and (set(regs_of(p.ops[0])) & c.wr): n = max(n, 2)
        if c.kind in ('dsr','vload') and ('x4' in p.op or 'x3' in p.op) and (set(regs_of(p.ops[0])) & c.wr): n = max(n, 1)
    return n

MAXD = 14

def fix_hazards(lines, verbose=False):
    ins = [Ins(l) for l in lines]
    out = []
    nn = 0
    for c in ins:
        if c.kind != 'label':
            d = 0; req = 0
            for p in reversed(out):
                if p.kind == 'label': continue
                if p.op in ('s_branch', 's_endpgm'): break
                r = need(p, c)
                if r - d > req: req = r - d
                d += p.states()
                if d >= MAXD: break
            if req > 0:
                out.append(Ins(f"s_nop {req-1}")); nn += 1
                if verbose: print("pad", req, "before", c.text)
        out.append(c)
    labels = {}
    for i, c in enumerate(out):
        t = c.text.split(';')[0].strip()
        if c.kind == 'label' and t.endswith(':'): labels[t[:-1]] = i
    problems = []
    for i, b in enumerate(out):
        if b.op == 's_branch' or b.op.startswith('s_cbranch'):
            tgt = labels.get(b.ops[0])
            if tgt is None: continue
            tail = []; d = 0
            j = i
            while j >= 0 and d < MAXD:
                if out[j].kind != 'label':
                    tail.append((out[j], d)); d += out[j].states()
                j -= 1
            e = 0; j = tgt
            while j < len(out) and e < MAXD:
                c = out[j]
                if c.kind != 'label':
                    for p, dp in tail:
                        dist = dp + e - (0)
                        r = need(p, c)
                        if r > dist:
                            problems.append((p.text, c.text, r, dist))
                    e += c.states()
                    if c.op in ('s_branch', 's_endpgm'): break
                j += 1
    return [c.text for c in out], nn, problems
```

```python
import sys, re
from asmlib import fix_hazards, Ins

NAME = "concat_heads__mha_block_cached__mha_block_cached__near_ridge"
MF = "v_mfma_f32_16x16x32_bf16"
CSCALE = 0x3e0293ee
LTHR = 0x4e800000

O_BLK = 128 * 122880
WOT_OFF = 2 * O_BLK
WOT_BLK = 128 * 36864

class B:
    def __init__(self): self.L = []
    def __call__(self, s):
        for x in s.split("\n"):
            x = x.strip()
            if x: self.L.append(x)
    def ext(self, l): self.L.extend(l)

def vr(b, n): return f"v[{b}:{b+n-1}]"
def ar(b, n): return f"a[{b}:{b+n-1}]"

def emit_slots(b, slots, gaps):
    for i, s in enumerate(slots):
        if s: b(s)
        nv = [x for x in gaps[i] if not x.startswith('v_')]
        v = [x for x in gaps[i] if x.startswith('v_')]
        for x in nv + v: b(x)

S_ = 16; P_ = 48; CI = 64; LS = 80
KA = 84
VA = 88
DK0 = 96; DK1 = 97; DV0 = 98; DV1 = 99
VO = 100
VWO = 101
VWX = 102
VLN = 103
T0 = 108
O_ = 128
XA = 16; WA = 18; DX = 20; DW = 24
AQ = 0; AQ2 = 64; AK = 128; AV = 160; ASP = 192
AX = 0; AW = 64
SX = 4; SW = 8; SK = 12; SV = 16; SO = 20; SWO = 24; SWT = 28
sWAVE = 32; sWB = 33; sKV = 34; sCNT = 35; sHEAD = 36; sSAFE = 37; sFLAG = 38
sXO = 39; sXO2 = 40; sWOFF = 41; sXB = 42; sOO = 43; sC = 44
sT = 46
sH0 = 68; sWOS = 69; sWTS = 70; sSTAMP = 72

OPT = dict(nt_kv=1, nt_w=0, nt_x=0, nt_wo=1, stamps=0, warm=1)

def fl(k): return " nt" if OPT[k] else ""

def dma(voff, srd, soff, off, flag, tag):
    return f"buffer_load_dwordx4 v{voff}, s[{srd}:{srd+3}], {soff} offen offset:{off}{flag} lds ; tag={tag}"

def kv_dma(tile):
    return [dma(DK0, SK, f"s{sKV}", 0, fl('nt_kv'), f"KV{tile}"),
            dma(DK1, SK, f"s{sKV}", 1024, fl('nt_kv'), f"KV{tile}"),
            dma(DV0, SV, f"s{sKV}", 2048, fl('nt_kv'), f"KV{tile}"),
            dma(DV1, SV, f"s{sKV}", 3072, fl('nt_kv'), f"KV{tile}")]

def x_dma(m, nq):
    slot = 32768 if m % 2 else 65536
    out = []
    out.append(f"s_add_u32 m0, s{sXB}, {slot}")
    for j in range(4): out.append(dma(DX + j, SX, f"s{sXO}", 1024 * j, fl('nt_x'), f"X{m}"))
    out.append(f"s_add_u32 m0, s{sXB}, {slot + 4096}")
    for j in range(4 if nq == 4 else 2): out.append(dma(DX + j, SX, f"s{sXO2}", 1024 * j, fl('nt_x'), f"X{m}"))
    out.append(f"s_add_u32 s{sXO}, s{sXO}, 128")
    out.append(f"s_add_u32 s{sXO2}, s{sXO2}, 128")
    return out

def w_dma(n):
    out = [f"s_add_u32 m0, s{sWB}, {98304 + (n % 4) * 16384}"]
    for j in range(4): out.append(dma(DW + j, SW, f"s{sWOFF}", 1024 * j, fl('nt_w'), f"W{n}"))
    if n % 2 == 0: out.append(f"s_add_u32 s{sWOFF}, s{sWOFF}, 256")
    else: out.append(f"s_add_u32 s{sWOFF}, s{sWOFF}, {524288 - 256}")
    return out

def w_reads(n, T):
    sp_, a = T // 2, T % 2
    hl, sp = sp_ // 2, sp_ % 2
    out = []
    for s in range(2):
        for a2 in range(2):
            d = AW + 8 * (T % 4) + 4 * s + 2 * a2
            off = (n % 4) * 16384 + hl * 8192 + (32 * s + 4 * a2) * 128 + 8 * a
            out.append(f"ds_read_b64_tr_b16 {ar(d,2)}, v{WA+sp} offset:{off} ; need=W{n}")
    return out

def x_reads(m, nq):
    out = []
    for q in range(nq):
        for s in range(2):
            d = AX + 32 * (m % 2) + 8 * q + 4 * s
            off = (0 if m % 2 else 32768) + q * 2048
            out.append(f"ds_read_b128 {ar(d,4)}, v{XA+s} offset:{off} ; need=X{m}")
    return out

def qacc(hd, q, T):
    r = 128 + 32 * q + 4 * T
    return vr(r, 4) if hd == 0 else ar(r, 4)

def qproj_stage(b, n, nq):
    hd, m = n % 2, n // 2
    nx = 8 if nq == 4 else 6
    slots = []; gaps = [[] for _ in range(64)]
    for T in range(8):
        for q in range(4):
            for s in range(2):
                if q >= nq: slots.append(None); continue
                acc = qacc(hd, q, T)
                c = "0" if (m == 0 and s == 0) else acc
                slots.append(f"{MF} {acc}, {ar(AW+8*(T%4)+4*s,4)}, {ar(AX+32*(m%2)+8*q+4*s,4)}, {c}")
    start = {3: 5, 4: 12, 5: 19, 6: 26, 7: 33}
    rd = w_reads(n, 2); gaps[0].append(rd[3])
    for T, g in start.items():
        for i, x in enumerate(w_reads(n, T)): gaps[g + i].append(x)
    if n < 17:
        for T, g in ((0, 45), (1, 53)):
            for i, x in enumerate(w_reads(n + 1, T)): gaps[g + i].append(x)
        for i, x in enumerate(w_reads(n + 1, 2)[:3]): gaps[61 + i].append(x)
    xr = []
    if n % 2 == 1 and m + 1 <= 8:
        xr = x_reads(m + 1, nq)
        for x, g in zip(xr, (9, 10, 16, 17, 23, 24, 30, 31)): gaps[g].append(x)
    for T in range(1, 8): gaps[8 * T - 1].append(f"WAITL W{n}.{T}")
    if n < 17: gaps[63].append(f"WAITL W{n+1}.0")
    if n <= 14: N = 8 + nx if n != 14 else 16
    elif n == 15: N = 12
    else: N = 16
    if n == 13: N = 8 + nx
    gaps[43].append(f"s_waitcnt vmcnt({N}) lgkmcnt(0)")
    req = []
    if n + 1 <= 17: req.append(f"W{n+1}")
    if n % 2 == 0 and m + 1 <= 8: req.append(f"X{m+1}")
    if n == 17: req += ["KV0", "KV1"]
    gaps[44].append("s_barrier ; pub=" + ",".join(req))
    if n % 2 == 0 and m + 2 <= 8:
        xd = x_dma(m + 2, nq)
        pos = [0, 1, 2, 3, 4, 8, 9, 10, 11, 16, 17, 18]
        if nq == 3: pos = [0, 1, 2, 3, 4, 8, 9, 10, 17, 18]
        for x, g in zip(xd, pos): gaps[g].append(x)
    if n in (14, 16):
        t0 = 2 if n == 14 else 4
        seq = []
        for t in (t0, t0 + 1):
            seq.append(f"s_add_u32 m0, s{sWB}, {t * 16384}")
            seq += kv_dma(t)
            seq.append(f"s_add_u32 s{sKV}, s{sKV}, 8192")
        for x, g in zip(seq, [0, 1, 2, 3, 4, 5, 8, 9, 10, 11, 16, 17]): gaps[g].append(x)
    if n + 4 <= 17:
        for x, g in zip(w_dma(n + 4), [48, 49, 51, 57, 59, 60]): gaps[g].append(x)
    emit_slots(b, slots, gaps)

def k_reads(unit, tile):
    out = []
    for kt in range(2):
        for s in range(4):
            f = 4 * kt + s
            off = (unit % 4) * 16384 + (2 * (s // 2) + kt) * 4096
            out.append(f"ds_read_b128 {ar(AK+4*f,4)}, v{KA + (s%2) + 2*(unit//4)} offset:{off} ; need=KV{tile}")
    return out

def v_reads(unit, tile):
    out = []
    for T in range(8):
        th, tl = T // 4, T % 4
        for a in range(2):
            off = (unit % 4) * 16384 + (2 * th + a) * 4096 + 2048
            out.append(f"ds_read_b64_tr_b16 {ar(AV+4*T+2*a,2)}, v{VA + tl + 4*(unit//4)} offset:{off} ; need=KV{tile}")
    return out

def softmax_fill(gaps, half, g0, nq, N, lo=None, hi=None):
    for j in range(16):
        q = 2 * half + j // 8; e = j % 8
        if q >= nq: continue
        s = S_ + 8 * q + e
        g = g0 + 2 * j
        items = [(g, f"v_exp_f32 v{s}, v{s}"), (g + 1, f"v_add_f32 v{LS+q}, v{LS+q}, v{s}")]
        if e % 2 == 1: items.append((g + 1, f"v_cvt_pk_bf16_f32 v{P_+4*q+e//2}, v{s-1}, v{s}"))
        for gg, t in items:
            if lo <= gg < hi: gaps[gg % N].append(t)

def qk(q, kt, s, czero=False):
    d = vr(S_ + 8 * q + 4 * kt, 4)
    c = d if s else ("0" if czero else vr(CI + 4 * q, 4))
    return f"{MF} {d}, {ar(AK+4*(4*kt+s),4)}, {ar(AQ+16*q+4*s,4)}, {c}"

def pv(q, T, czero=False):
    d = vr(O_ + 32 * q + 4 * T, 4)
    return f"{MF} {d}, {ar(AV+4*T,4)}, {vr(P_+4*q,4)}, {'0' if czero else d}"

def attn_stage(b, k, nq, extra=None):
    kk = k % 32; u = k % 8
    slots = []; gaps = [[] for _ in range(64)]
    for q in (0, 1):
        for kt in range(2):
            for s in range(4): slots.append(qk(q, kt, s))
    for q in (2, 3):
        for T in range(8): slots.append(pv(q, T, kk == 1) if (q < nq and kk > 0) else None)
    for q in (2, 3):
        for kt in range(2):
            for s in range(4): slots.append(qk(q, kt, s) if q < nq else None)
    for q in (0, 1):
        for T in range(8): slots.append(pv(q, T, kk == 0))
    softmax_fill(gaps, 0, 8, nq, 64, 0, 64)
    softmax_fill(gaps, 1, 40, nq, 64, 0, 64)
    if kk > 0: softmax_fill(gaps, 1, 40, nq, 64, 64, 128)
    for i, x in enumerate(v_reads(u, k)): gaps[26 + i].append(x)
    if k % 2 == 1:
        gaps[46].append("s_waitcnt vmcnt(16) lgkmcnt(0)")
        gaps[47].append(f"s_barrier ; pub=KV{k+1},KV{k+2}")
    else:
        gaps[47].append("s_waitcnt lgkmcnt(0)")
    for i, x in enumerate(k_reads((u + 1) % 8, k + 1)): gaps[48 + i].append(x)
    gaps[63].append("s_waitcnt lgkmcnt(0)")
    gaps[0].append(f"s_add_u32 m0, s{sWB}, {((k + 6) % 8) * 16384}")
    for x, g in zip(kv_dma(k + 6), (1, 5, 9, 13)): gaps[g].append(x)
    gaps[16].append(f"s_add_u32 s{sKV}, s{sKV}, 8192")
    if extra:
        for g, x in extra: gaps[g].append(x)
    emit_slots(b, slots, gaps)

def xlane_reduce(b, reg, tmp, op):
    b(f"v_mov_b32 v{tmp}, v{reg}")
    b(f"v_permlane32_swap_b32 v{reg}, v{tmp}")
    b(f"{op} v{reg}, v{reg}, v{tmp}")
    b(f"v_mov_b32 v{tmp}, v{reg}")
    b(f"v_permlane16_swap_b32 v{reg}, v{tmp}")
    b(f"{op} v{reg}, v{reg}, v{tmp}")

def xlane_reduce_multi(b, regs, tmps, op):
    for sw in ("v_permlane32_swap_b32", "v_permlane16_swap_b32"):
        for r, t in zip(regs, tmps): b(f"v_mov_b32 v{t}, v{r}")
        for r, t in zip(regs, tmps): b(f"{sw} v{r}, v{t}")
        for r, t in zip(regs, tmps): b(f"{op} v{r}, v{r}, v{t}")

def stamp(b, idx):
    if not OPT['stamps']: return
    b(f"s_memtime s[{sSTAMP+2*idx}:{sSTAMP+2*idx+1}]")

def wave_code(b, nq, sfx):
    nx = 8 if nq == 4 else 6
    b(f"L_begin{sfx}:")
    lane = T0; t1 = T0 + 1; t2 = T0 + 2; t3 = T0 + 3; g_ = T0 + 4; ihi = T0 + 5; i8 = T0 + 6
    b(f"""v_and_b32 v{lane}, 63, v0
    v_lshrrev_b32 v{g_}, 4, v{lane}
    v_lshrrev_b32 v{ihi}, 3, v{lane}
    v_and_b32 v{i8}, 7, v{lane}""")
    b(f"s_lshl_b32 s{sT}, s{sWAVE}, 6")
    b(f"v_add_u32 v{t1}, s{sT}, v{ihi}")
    b(f"v_mul_u32_u24 v{t1}, 1152, v{t1}")
    for j in range(4):
        b(f"v_xor_b32 v{t2}, {4*(j%2)}, v{g_}")
        b(f"v_xor_b32 v{t2}, v{t2}, v{i8}")
        b(f"v_lshl_add_u32 v{t2}, v{t2}, 4, v{t1}")
        b(f"v_add_u32 v{DX+j}, {8*j*1152 - 1024*j}, v{t2}")
    b(f"""s_and_b32 s{sT}, s{sWAVE}, 1
    s_lshl_b32 s{sT}, s{sT}, 18
    s_lshr_b32 s{sT+1}, s{sWAVE}, 1
    s_lshl_b32 s{sT+1}, s{sT+1}, 7
    s_add_u32 s{sT}, s{sT}, s{sT+1}
    v_lshlrev_b32 v{t1}, 13, v{ihi}
    v_add_u32 v{t1}, s{sT}, v{t1}
    v_lshrrev_b32 v{t2}, 2, v{i8}
    v_xor_b32 v{t2}, v{t2}, v{g_}
    v_and_b32 v{t2}, 1, v{t2}
    v_lshl_add_u32 v{t1}, v{t2}, 6, v{t1}
    v_and_b32 v{t2}, 3, v{i8}
    v_lshl_add_u32 v{t1}, v{t2}, 4, v{t1}""")
    for j in range(4): b(f"v_add_u32 v{DW+j}, {8*j*8192 - 1024*j}, v{t1}")
    b(f"""s_mov_b32 s{sXO}, 0
    s_mov_b32 s{sXO2}, 36864
    s_mov_b32 s{sWOFF}, 0
    s_mov_b32 s{sKV}, 0
    s_mov_b32 s{sHEAD}, 0""")
    b.ext(x_dma(0, nq)); b.ext(w_dma(0)); b.ext(w_dma(1)); b.ext(x_dma(1, nq)); b.ext(w_dma(2)); b.ext(w_dma(3))
    for t in (0, 1):
        b(f"s_add_u32 m0, s{sWB}, {t*16384}"); b.ext(kv_dma(t)); b(f"s_add_u32 s{sKV}, s{sKV}, 8192")
    i16 = T0 + 7; r_ = T0 + 8; c4 = T0 + 9
    b(f"""v_and_b32 v{i16}, 15, v{lane}
    v_lshrrev_b32 v{r_}, 2, v{i16}
    v_and_b32 v{c4}, 3, v{lane}
    v_lshlrev_b32 v{t1}, 7, v{i16}
    v_add_u32 v{t1}, s{sXB}, v{t1}
    v_add_u32 v{t1}, 32768, v{t1}
    v_lshrrev_b32 v{t3}, 1, v{i16}""")
    for s in range(2):
        b(f"v_xor_b32 v{t2}, {4*s}, v{g_}")
        b(f"v_xor_b32 v{t2}, v{t2}, v{t3}")
        b(f"v_lshl_add_u32 v{XA+s}, v{t2}, 4, v{t1}")
    b(f"""v_lshl_add_u32 v{t1}, v{g_}, 3, v{r_}
    v_lshlrev_b32 v{t1}, 7, v{t1}
    v_lshl_add_u32 v{t1}, v{c4}, 4, v{t1}
    v_add_u32 v{t1}, 98304, v{t1}
    v_lshrrev_b32 v{t3}, 1, v{r_}""")
    for sp in range(2):
        b(f"v_xor_b32 v{t2}, {sp}, v{t3}")
        b(f"v_lshl_add_u32 v{WA+sp}, v{t2}, 6, v{t1}")
    stamp(b, 0)
    b(f"s_waitcnt vmcnt({4 + nx + 4 + 4 + 8})")
    b("s_barrier ; pub=X0,W0")
    b.ext(x_reads(0, nq))
    for T in (0, 1): b.ext(w_reads(0, T))
    b.ext(w_reads(0, 2)[:3])
    b("WAITL W0.0")
    stamp(b, 1)
    for n in range(0, 4): qproj_stage(b, n, nq)
    b(f"s_mov_b32 s{sCNT}, 0")
    b(f".p2align 3\nL_qp{sfx}:")
    b("LOOPBEGIN qp 2 4")
    for n in range(4, 8): qproj_stage(b, n, nq)
    b(f"s_add_u32 s{sCNT}, s{sCNT}, 1\ns_cmp_lt_u32 s{sCNT}, 2\ns_cbranch_scc1 L_qp{sfx}")
    b("LOOPEND qp")
    for n in range(12, 18): qproj_stage(b, n, nq)
    stamp(b, 2)
    def conv(hd, q, sp):
        for a in range(2):
            T = 2 * sp + a
            for h in range(2):
                r = 128 + 32 * q + 4 * T + 2 * h
                tmp = T0 + 4 * ((2 * a + h) % 4)
                if hd == 1:
                    b(f"v_accvgpr_read_b32 v{tmp}, a{r}\nv_accvgpr_read_b32 v{tmp+1}, a{r+1}")
                    src = tmp
                else: src = r
                b(f"v_pk_mul_f32 v[{tmp}:{tmp+1}], v[{src}:{src+1}], s[{sC}:{sC+1}]")
                b(f"v_cvt_pk_bf16_f32 v{tmp+2}, v{tmp}, v{tmp+1}")
                b(f"v_accvgpr_write_b32 a{64*hd + 16*q + 4*sp + 2*a + h}, v{tmp+2}")
    for sp in range(4): conv(1, 0, sp)
    b.ext(k_reads(0, 0))
    for q in range(1, nq):
        for sp in range(4): conv(1, q, sp)
    for q in range(nq):
        for sp in range(4): conv(0, q, sp)
    b("s_waitcnt lgkmcnt(0)")
    stamp(b, 3)
    b(f".p2align 3\nL_head{sfx}:")
    b("LOOPBEGIN head 2 32")
    b(f"s_cmp_lg_u32 s{sSAFE}, 0\ns_cbranch_scc1 L_maxpass{sfx}")
    for q in range(nq):
        for s in range(4): b(qk(q, 0, s, czero=True))
    ms = [S_ + 8 * q for q in range(nq)]
    for q in range(nq):
        s = S_ + 8 * q
        b(f"v_max3_f32 v{s}, v{s}, v{s+1}, v{s+2}\nv_max_f32 v{s}, v{s}, v{s+3}")
    b(f"L_maxdone{sfx}:")
    xlane_reduce_multi(b, ms, [T0 + q for q in range(nq)], "v_max_f32")
    for q in range(nq):
        for r in range(4): b(f"v_sub_f32 v{CI+4*q+r}, 0, v{S_+8*q}")
        b(f"v_mov_b32 v{LS+q}, 0")
    b(f"s_add_u32 m0, s{sXB}, 131072")
    for j in range(4):
        b(f"s_add_u32 s{sT}, s{sWOS}, {8192*j}")
        b(dma(VWO, SWO, f"s{sT}", 1024 * j, fl('nt_wo'), "WO"))
    b(f"s_cmp_lg_u32 s{sHEAD}, 0\ns_cbranch_scc1 L_nox{sfx}")
    b(f"s_add_u32 m0, s{sXB}, {131072 + 4096}")
    b(dma(VWX, SWO, "0", 0, fl('nt_wo'), "WO"))
    b(f"L_nox{sfx}:")
    attn_stage(b, 0, nq)
    attn_stage(b, 1, nq)
    b(f"s_mov_b32 s{sCNT}, 0")
    b(f".p2align 3\nL_at{sfx}:")
    b("LOOPBEGIN at 4 8")
    for k in range(2, 8):
        ex = None
        if k == 7: ex = [(60, f"s_add_u32 s{sCNT}, s{sCNT}, 1"), (62, f"s_cmp_eq_u32 s{sCNT}, 4")]
        attn_stage(b, k, nq, ex)
    b(f"s_cbranch_scc1 L_atx{sfx}")
    b("LOOPEXIT at")
    for k in range(8, 10): attn_stage(b, k, nq)
    b(f"s_branch L_at{sfx}")
    b("LOOPEND at")
    b(f"L_atx{sfx}:")
    slots = []; gaps = [[] for _ in range(64)]
    for q in (2, 3):
        for T in range(8): slots.append(pv(q, T) if q < nq else None)
    softmax_fill(gaps, 1, 40, nq, 64, 64, 128)
    emit_slots(b, slots, gaps)
    stamp(b, 4)
    ls = [LS + q for q in range(nq)]
    xlane_reduce_multi(b, ls, [T0 + q for q in range(nq)], "v_add_f32")
    b(f"v_mov_b32 v{T0+8}, {LTHR}")
    for q in range(nq):
        b(f"v_cmp_nlt_f32 vcc, v{LS+q}, v{T0+8}")
        b(f"s_or_b32 s{sFLAG}, s{sFLAG}, vcc_lo\ns_or_b32 s{sFLAG}, s{sFLAG}, vcc_hi")
        b(f"v_rcp_f32 v{LS+q}, v{LS+q}")
    b(f"s_add_u32 s{sT}, s{sXB}, 65536")
    for tl in range(4):
        b(f"v_add_u32 v{T0+12+tl}, s{sT}, v{VA+4+tl}")
    b("s_waitcnt vmcnt(16) ; needtag=WO")
    for tl in range(4):
        for a in range(2):
            b(f"ds_read_b64_tr_b16 v[{S_+4*tl+2*a}:{S_+4*tl+2*a+1}], v{T0+12+tl} offset:{2048*a}")
    cnt = 0
    for q in range(nq):
        for sp in range(4):
            d = P_ + 4 * (cnt % 4); cnt += 1
            for a in range(2):
                for h in range(2):
                    r = O_ + 32 * q + 4 * (2 * sp + a) + 2 * h
                    b(f"v_mul_f32 v{r}, v{r}, v{LS+q}\nv_mul_f32 v{r+1}, v{r+1}, v{LS+q}")
                    b(f"v_cvt_pk_bf16_f32 v{d+2*a+h}, v{r}, v{r+1}")
            b(f"s_add_u32 s{sT}, s{sOO}, {sp*122880}")
            b(f"buffer_store_dwordx4 {vr(d,4)}, v{VO}, s[{SO}:{SO+3}], s{sT} offen offset:{1024*q}")
    b("s_waitcnt lgkmcnt(0)")
    for tl in range(4):
        b(f"buffer_store_dwordx4 {vr(S_+4*tl,4)}, v{VLN}, s[{SWT}:{SWT+3}], s{sWTS} offen offset:{1024*tl}")
    b(f"s_cmp_lg_u32 s{sHEAD}, 0\ns_cbranch_scc1 L_fin{sfx}")
    b(f"""v_and_b32 v{T0}, 63, v0
    v_lshlrev_b32 v{T0}, 3, v{T0}
    v_add_u32 v{T0}, s{sXB}, v{T0}
    v_add_u32 v{T0}, {131072+4096}, v{T0}
    ds_read_b64_tr_b16 v[{S_+16}:{S_+17}], v{T0} offset:0
    ds_read_b64_tr_b16 v[{S_+18}:{S_+19}], v{T0} offset:512
    s_lshl_b32 s{sT}, s{sWAVE}, 10
    s_add_u32 s{sT}, s{sT}, 32768""")
    for i in range(16 * nq): b(f"v_accvgpr_mov_b32 a{AQ+i}, a{AQ2+i}")
    b(f"""s_waitcnt lgkmcnt(0)
    buffer_store_dwordx4 {vr(S_+16,4)}, v{VLN}, s[{SWT}:{SWT+3}], s{sT} offen
    s_add_u32 s{sOO}, s{sOO}, {4*122880}
    s_add_u32 s{sWOS}, s{sWOS}, 512
    s_add_u32 s{sWTS}, s{sWTS}, 16384
    s_mov_b32 s{sHEAD}, 1
    s_branch L_head{sfx}""")
    b("LOOPEND head")
    b(f"L_fin{sfx}:")
    b(f"s_branch L_vote")
    b(f"L_maxpass{sfx}:")
    for q in range(nq): b(f"v_mov_b32 v{T0+8+q}, 0xff800000")
    for s2 in range(2): b(f"v_add_u32 v{T0+12+s2}, 65536, v{KA+2+s2}")
    b(f"s_lshl_b32 s{sT}, s{sHEAD}, 18\ns_mov_b32 s{sCNT}, 0")
    b(f"L_mp{sfx}:")
    b(f"s_barrier\ns_add_u32 m0, s{sWB}, 131072")
    b(dma(DK0, SK, f"s{sT}", 0, "", "MP")); b(dma(DK1, SK, f"s{sT}", 1024, "", "MP"))
    b("s_waitcnt vmcnt(0)\ns_barrier")
    for kt in range(2):
        for s in range(4):
            b(f"ds_read_b128 {ar(ASP+4*(4*kt+s),4)}, v{T0+12+s%2} offset:{(2*(s//2)+kt)*4096}")
    b("s_waitcnt lgkmcnt(0)")
    for q in range(nq):
        for kt in range(2):
            for s in range(4):
                d = vr(S_ + 8 * q + 4 * kt, 4)
                b(f"{MF} {d}, {ar(ASP+4*(4*kt+s),4)}, {ar(AQ+16*q+4*s,4)}, {d if s else '0'}")
    for q in range(nq):
        for e in range(0, 8, 2): b(f"v_max3_f32 v{T0+8+q}, v{T0+8+q}, v{S_+8*q+e}, v{S_+8*q+e+1}")
    b(f"s_add_u32 s{sT}, s{sT}, 8192\ns_add_u32 s{sCNT}, s{sCNT}, 1\ns_cmp_lt_u32 s{sCNT}, 32\ns_cbranch_scc1 L_mp{sfx}")
    b("s_barrier")
    for q in range(nq): b(f"v_mov_b32 v{S_+8*q}, v{T0+8+q}")
    b(f"s_branch L_maxdone{sfx}")

def kernel1():
    b = B()
    b("attn_kernel:")
    b("s_cmp_ge_u32 s2, 256\ns_cbranch_scc1 L_end1")
    b("s_load_dwordx16 s[48:63], s[0:1], 0\ns_load_dwordx4 s[64:67], s[0:1], 64\ns_load_dwordx2 s[46:47], s[0:1], 96")
    b(f"""s_mov_b32 s97, s2
    s_and_b32 s3, s2, 7
    s_lshr_b32 s2, s2, 3
    v_lshrrev_b32 v1, 6, v0
    s_and_b32 s68, s3, 1
    s_lshl_b32 s68, s68, 2
    s_and_b32 s69, s2, 3
    s_add_u32 s68, s68, s69        ; b
    v_readfirstlane_b32 s{sWAVE}, v1
    s_bfe_u32 s69, s3, 0x10001
    s_lshl_b32 s69, s69, 3
    s_lshr_b32 s70, s2, 2
    s_add_u32 s69, s69, s70        ; hp
    s_lshr_b32 s3, s3, 2           ; blk
    s_lshl_b32 s{sWB}, s{sWAVE}, 12
    s_lshl_b32 s{sXB}, s{sWAVE}, 13
    s_mov_b32 s{sC}, {CSCALE}
    s_mov_b32 s{sC+1}, {CSCALE}
    s_mov_b32 s{sSAFE}, 0
    s_mov_b32 s{sFLAG}, 0
    s_cmp_eq_u32 s3, 0
    s_waitcnt lgkmcnt(0)
    s_cselect_b64 s[48:49], s[48:49], s[58:59]
    s_cselect_b64 s[50:51], s[50:51], s[60:61]
    s_cselect_b64 s[52:53], s[52:53], s[62:63]
    s_cselect_b64 s[54:55], s[54:55], s[64:65]
    s_cselect_b64 s[56:57], s[56:57], s[66:67]""")
    b(f"""s_mul_i32 s71, s68, 276480
    s_add_u32 s{SX}, s48, s71
    s_addc_u32 s{SX+1}, s49, 0
    s_mov_b32 s{SX+2}, 276480
    s_mov_b32 s{SX+3}, 0x20000
    s_lshl_b32 s71, s69, 9
    s_add_u32 s{SW}, s54, s71
    s_addc_u32 s{SW+1}, s55, 0
    s_sub_u32 s{SW+2}, 4718592, s71
    s_mov_b32 s{SW+3}, 0x20000
    s_lshl_b32 s71, s68, 4
    s_add_u32 s71, s71, s69
    s_lshl_b32 s70, s71, 19
    s_add_u32 s{SK}, s50, s70
    s_addc_u32 s{SK+1}, s51, 0
    s_mov_b32 s{SK+2}, 524288
    s_mov_b32 s{SK+3}, 0x20000
    s_add_u32 s{SV}, s52, s70
    s_addc_u32 s{SV+1}, s53, 0
    s_sub_u32 s{SV}, s{SV}, 2048
    s_subb_u32 s{SV+1}, s{SV+1}, 0
    s_mov_b32 s{SV+2}, {524288+2048}
    s_mov_b32 s{SV+3}, 0x20000
    s_mul_i32 s70, s3, {O_BLK}
    s_add_u32 s{SO}, s46, s70
    s_addc_u32 s{SO+1}, s47, 0
    s_mov_b32 s{SO+2}, {O_BLK}
    s_mov_b32 s{SO+3}, 0x20000
    s_mul_i32 s70, s71, 36864
    s_add_u32 s{SWO}, s56, s70
    s_addc_u32 s{SWO+1}, s57, 0
    s_mov_b32 s{SWO+2}, 36864
    s_mov_b32 s{SWO+3}, 0x20000
    s_mul_i32 s71, s3, {WOT_BLK}
    s_add_u32 s70, s70, s71
    s_add_u32 s70, s70, {WOT_OFF}
    s_add_u32 s{SWT}, s46, s70
    s_addc_u32 s{SWT+1}, s47, 0
    s_mov_b32 s{SWT+2}, 36864
    s_mov_b32 s{SWT+3}, 0x20000
    s_mul_i32 s62, s69, {8*122880}
    s_mul_i32 s63, s68, 15360        ; b*15*1024""")
    lane = T0; t1 = T0 + 1; t2 = T0 + 2; t3 = T0 + 3; g_ = T0 + 4; ihi = T0 + 5; i8 = T0 + 6; i16 = T0 + 7; r_ = T0 + 8; c4 = T0 + 9
    b(f"""v_and_b32 v{lane}, 63, v0
    v_lshrrev_b32 v{g_}, 4, v{lane}
    v_lshrrev_b32 v{ihi}, 3, v{lane}
    v_and_b32 v{i8}, 7, v{lane}
    v_and_b32 v{i16}, 15, v{lane}
    v_lshrrev_b32 v{r_}, 2, v{i16}
    v_and_b32 v{c4}, 3, v{lane}
    v_lshlrev_b32 v{VLN}, 4, v{lane}
    s_add_u32 s63, s63, s{sWB}
    v_add_u32 v{VO}, s63, v{VLN}""")
    b(f"""s_and_b32 s70, s{sWAVE}, 1
    s_lshl_b32 s70, s70, 12
    s_lshr_b32 s71, s{sWAVE}, 1
    s_lshl_b32 s71, s71, 7
    s_add_u32 s70, s70, s71
    v_lshlrev_b32 v{t1}, 8, v{ihi}
    v_add_u32 v{t1}, s70, v{t1}
    v_xor_b32 v{t2}, v{i8}, v{g_}
    v_lshl_add_u32 v{DK0}, v{t2}, 4, v{t1}
    v_xor_b32 v{t2}, 4, v{t2}
    v_lshl_add_u32 v{DK1}, v{t2}, 4, v{t1}
    v_add_u32 v{DK1}, 1024, v{DK1}
    v_lshlrev_b32 v{t2}, 1, v{g_}
    v_xor_b32 v{t2}, v{t2}, v{i8}
    v_lshl_add_u32 v{DV0}, v{t2}, 4, v{t1}
    v_add_u32 v{DV1}, 1024, v{DV0}""")
    b(f"""v_mul_u32_u24 v{t1}, 1152, v{ihi}
    v_lshl_add_u32 v{t1}, v{t2}, 4, v{t1}
    s_lshl_b32 s70, s{sWAVE}, 7
    v_add_u32 v{VWO}, s70, v{t1}
    v_lshrrev_b32 v{t1}, 1, v{lane}
    v_mul_u32_u24 v{t1}, 1152, v{t1}
    v_and_b32 v{t2}, 1, v{lane}
    v_lshl_add_u32 v{t1}, v{t2}, 4, v{t1}
    s_lshl_b32 s70, s{sWAVE}, 5
    s_add_u32 s70, s70, 1024
    v_add_u32 v{VWX}, s70, v{t1}""")
    b(f"""v_lshrrev_b32 v{t1}, 3, v{i16}
    v_lshlrev_b32 v{t1}, 10, v{t1}
    v_lshl_add_u32 v{t1}, v{i8}, 7, v{t1}
    v_lshrrev_b32 v{t3}, 1, v{i16}""")
    for s2 in range(2):
        b(f"v_xor_b32 v{t2}, {4*s2}, v{g_}\nv_xor_b32 v{t2}, v{t2}, v{t3}\nv_lshl_add_u32 v{KA+s2}, v{t2}, 4, v{t1}\nv_add_u32 v{KA+2+s2}, 0x10000, v{KA+s2}")
    b(f"""v_lshrrev_b32 v{t1}, 1, v{g_}
    v_lshlrev_b32 v{t1}, 10, v{t1}
    v_and_b32 v{t2}, 1, v{g_}
    v_lshl_add_u32 v{t2}, v{t2}, 2, v{r_}
    v_lshl_add_u32 v{t1}, v{t2}, 7, v{t1}
    v_lshl_add_u32 v{t1}, v{c4}, 3, v{t1}
    v_lshrrev_b32 v{t3}, 1, v{t2}""")
    for tl in range(4):
        b(f"v_xor_b32 v{t2}, {tl}, v{t3}\nv_lshl_add_u32 v{VA+tl}, v{t2}, 5, v{t1}\nv_add_u32 v{VA+4+tl}, 0x10000, v{VA+tl}")
    b("L_restart:")
    b(f"""s_mov_b32 s{sOO}, s62
    s_mov_b32 s{sWOS}, 0
    s_mov_b32 s{sWTS}, s{sWB}
    s_cmp_eq_u32 s{sWAVE}, 3
    s_cbranch_scc1 L_begin3""")
    wave_code(b, 4, "4")
    b(".p2align 6")
    wave_code(b, 3, "3")
    b("L_vote:")
    if OPT['stamps']:
        b(f"s_memtime s[{sSTAMP+10}:{sSTAMP+11}]\ns_memrealtime s[{sSTAMP+12}:{sSTAMP+13}]")
    b(f"""s_cmp_lg_u32 s{sSAFE}, 0
    s_cbranch_scc1 L_done1
    v_mov_b32 v{T0}, s{sFLAG}
    s_lshl_b32 s{sT}, s{sWAVE}, 2
    s_add_u32 s{sT}, s{sT}, {131072+7168}
    v_mov_b32 v{T0+1}, s{sT}
    ds_write_b32 v{T0+1}, v{T0}
    v_mov_b32 v{T0+1}, {131072+7168}
    s_waitcnt lgkmcnt(0)
    s_barrier
    ds_read_b128 v[{T0+4}:{T0+7}], v{T0+1}
    s_waitcnt lgkmcnt(0)
    v_or_b32 v{T0+4}, v{T0+4}, v{T0+5}
    v_or3_b32 v{T0+4}, v{T0+4}, v{T0+6}, v{T0+7}
    v_readfirstlane_b32 s{sT}, v{T0+4}
    s_cmp_eq_u32 s{sT}, 0
    s_cbranch_scc1 L_done1
    s_mov_b32 s{sSAFE}, 1
    s_waitcnt vmcnt(0)
    s_barrier
    s_branch L_restart""")
    b("L_done1:")
    if OPT['stamps']:
        b(f"s_waitcnt vmcnt(0) lgkmcnt(0)\ns_memtime s[{sSTAMP+14}:{sSTAMP+15}]\ns_waitcnt lgkmcnt(0)")
        b("s_load_dwordx2 s[46:47], s[0:1], 96\ns_waitcnt lgkmcnt(0)")
        b(f"s_add_u32 s{SX}, s46, {48*1024*1024}\ns_addc_u32 s{SX+1}, s47, 0\ns_mov_b32 s{SX+2}, 0x100000")
        for i in range(16): b(f"v_mov_b32 v{16+i}, s{sSTAMP+i}")
        b(f"s_lshl_b32 s46, s97, 2\ns_add_u32 s46, s46, s{sWAVE}\ns_lshl_b32 s46, s46, 6\nv_mov_b32 v1, s46")
        b(f"v_cmp_eq_u32 vcc, 0, v{VLN}\ns_and_saveexec_b64 s[48:49], vcc")
        for i in range(4): b(f"buffer_store_dwordx4 v[{16+4*i}:{19+4*i}], v1, s[{SX}:{SX+3}], 0 offen offset:{16*i}")
    b("L_end1:\ns_endpgm")
    return b.L

def resolve_waits(L):
    out = []
    for i, x in enumerate(L):
        if x.startswith("WAITL"):
            tag = x.split()[1]
            n, T = tag[1:].split('.'); T = int(T)
            dst = set(range(AW + 8 * (T % 4), AW + 8 * (T % 4) + 8))
            cnt = 0; found = False
            for y in reversed(out):
                if y.startswith("s_waitcnt") and "lgkmcnt(0)" in y:
                    found = True; cnt = None; break
                if y.startswith("ds_"):
                    I = Ins(y)
                    if any(k == 'a' and r in dst for k, r in I.wr) or (T == 0 and 'need=X' in y):
                        found = True; break
                    cnt += 1
            assert found, x
            if cnt is not None:
                assert cnt <= 15
                out.append(f"s_waitcnt lgkmcnt({cnt})")
        else: out.append(x)
    return out

def expand_trace(L):
    def shift(line, name, it, step):
        if it == 0: return line
        def rep(m):
            k, n = m.group(1), int(m.group(2))
            if name == 'qp':
                if k == 'W': return f"W{n + step*it}"
                if k == 'X': return f"X{n + step*it//2}"
                return m.group(0)
            if k == 'KV': return f"KV{n + step*it}"
            return m.group(0)
        if ';' not in line: return line
        a, c = line.split(';', 1)
        return a + ';' + re.sub(r'\b(KV|W|X)(\d+)\b', rep, c)
    def go(i, stop):
        res = []
        while i < len(L):
            x = L[i]
            if x.startswith("LOOPBEGIN"):
                _, name, cnt, step = x.split(); cnt = int(cnt); step = int(step)
                body, j = go(i + 1, name)
                for it in range(cnt):
                    for y in body:
                        if y == f"LOOPEXIT {name}":
                            if it == cnt - 1: break
                            continue
                        res.append(shift(y, name, it, step))
                i = j + 1; continue
            if x.startswith("LOOPEND") and x.split()[1] == stop: return res, i
            res.append(x); i += 1
        return res, i
    return go(0, None)[0]

def check_protocol(L, label):
    tr = expand_trace(L)
    q = []; done = set(); issued = {}; pub = set(); errs = 0
    for x in tr:
        if x.startswith("L_maxpass"): break
        c = x.split(';', 1)[1] if ';' in x else ''
        if x.startswith("buffer_"):
            m = re.search(r'tag=(\w+)', c); q.append(m.group(1) if m else 'other')
        elif x.startswith("s_waitcnt"):
            m = re.search(r'vmcnt\((\d+)\)', x)
            if m:
                n = int(m.group(1))
                while len(q) > n: done.add(q.pop(0))
            m = re.search(r'needtag=(\w+)', c)
            if m and m.group(1) in q: print(label, "ERR needtag", x); errs += 1
        elif x.startswith("s_barrier"):
            m = re.search(r'pub=([\w,]*)', c)
            if m:
                for t in m.group(1).split(','):
                    if not t: continue
                    if t in q or (t not in done): print(label, "ERR publish not landed", t, x); errs += 1
                    pub.add(t)
        elif x.startswith("ds_read"):
            m = re.search(r'need=(\w+)', c)
            if m and m.group(1) not in pub and m.group(1) not in ('KV64',): print(label, "ERR read unpublished", x); errs += 1
        assert len(q) <= 63, ("vmcnt overflow", x)
    return errs

def finish(L):
    L = resolve_waits(L)
    return L

def strip_markers(L):
    return [x for x in L if not x.startswith(("LOOPBEGIN", "LOOPEND", "LOOPEXIT"))]

def kernel2():
    b = B()
    ACC = 0
    FR = 16
    D = 4
    b("oproj_kernel:")
    b("s_cmp_ge_u32 s2, 240\ns_cbranch_scc1 L_end2")
    b("s_load_dwordx2 s[46:47], s[0:1], 96\ns_load_dwordx2 s[48:49], s[0:1], 80")
    b(f"""s_and_b32 s3, s2, 7
    s_lshr_b32 s2, s2, 3
    v_lshrrev_b32 v1, 6, v0
    s_mul_i32 s20, s2, 43
    s_lshr_b32 s20, s20, 8          ; j/6
    v_readfirstlane_b32 s32, v1
    s_mul_i32 s21, s20, 6
    s_sub_u32 s21, s2, s21          ; nt
    s_and_b32 s22, s3, 3
    s_mul_i32 s22, s22, 5
    s_add_u32 s20, s20, s22         ; mt
    s_lshr_b32 s3, s3, 2            ; blk
    v_and_b32 v2, 63, v0
    v_lshlrev_b32 v2, 4, v2
    v_add_u32 v3, 4096, v2
    s_mul_i32 s22, s3, {O_BLK}
    s_mul_i32 s23, s20, 6144
    s_add_u32 s22, s22, s23
    s_mul_i32 s24, s3, {WOT_BLK}
    s_mul_i32 s25, s21, 6144
    s_add_u32 s24, s24, s25
    s_add_u32 s24, s24, {WOT_OFF}
    s_mul_i32 s34, s32, {32*122880}   ; O soffset
    s_mul_i32 s35, s32, {32*36864}    ; W soffset
    s_waitcnt lgkmcnt(0)
    s_add_u32 s4, s46, s22
    s_addc_u32 s5, s47, 0
    s_sub_u32 s6, {O_BLK}, s23
    s_mov_b32 s7, 0x20000
    s_add_u32 s8, s46, s24
    s_addc_u32 s9, s47, 0
    s_sub_u32 s10, {WOT_BLK}, s25
    s_mov_b32 s11, 0x20000
    s_mov_b32 s12, s48
    s_mov_b32 s13, s49
    s_mov_b32 s14, {8*240*1152*2}
    s_mov_b32 s15, 0x20000""")
    def loads(slot):
        out = []
        for i in range(6):
            r = FR + 48 * slot + 4 * i
            out.append(f"buffer_load_dwordx4 {vr(r,4)}, v{2 if i < 4 else 3}, s[8:11], s35 offen offset:{1024*(i%4)}")
        for i in range(6):
            r = FR + 48 * slot + 24 + 4 * i
            out.append(f"buffer_load_dwordx4 {vr(r,4)}, v{2 if i < 4 else 3}, s[4:7], s34 offen offset:{1024*(i%4)}")
        out.append("s_add_u32 s34, s34, 122880"); out.append("s_add_u32 s35, s35, 36864")
        return out
    for s in range(D): b.ext(loads(s))
    def step(slot, first, prefetch, N):
        b(f"s_waitcnt vmcnt({N})")
        slots = []; gaps = [[] for _ in range(36)]
        for q in range(6):
            for n in range(6):
                acc = ar(ACC + 4 * (6 * q + n), 4)
                slots.append(f"{MF} {acc}, {vr(FR+48*slot+4*n,4)}, {vr(FR+48*slot+24+4*q,4)}, {'0' if first else acc}")
        if prefetch:
            ld = loads(slot)
            for q in range(6): gaps[6 * q + 5].append(ld[6 + q])
            for n in range(6): gaps[30 + n].append(ld[n])
            gaps[35] += ld[12:]
        emit_slots(b, slots, gaps)
    for s in range(D): step(s, s == 0, True, 36)
    b("s_mov_b32 s36, 0\n.p2align 3\nL_k2:")
    for s in range(D): step(s, False, True, 36)
    b("s_add_u32 s36, s36, 1\ns_cmp_lt_u32 s36, 6\ns_cbranch_scc1 L_k2")
    for s in range(D): step(s, False, False, 12 * (D - 1 - s))
    b("v_lshlrev_b32 v4, 0, v2")
    for w in range(4):
        b(f"s_cmp_eq_u32 s32, {w}\ns_cbranch_scc1 L_red{w}")
    for w in range(4):
        b(f"L_red{w}:")
        cnt = 0
        for q in range(6):
            for n in range(6):
                own = (q // 3) * 2 + (n // 3)
                if own == w: continue
                src = (w - own - 1) % 4
                t = (q % 3) * 3 + n % 3
                addr = own * 27648 + src * 9216 + t * 1024
                base, off = divmod(addr, 65536)
                b(f"ds_write_b128 v{4 if base == 0 else 5}, {ar(ACC+4*(6*q+n),4)} offset:{off}") if True else None
        b("s_waitcnt lgkmcnt(0)\ns_barrier")
        q0, n0 = 3 * (w // 2), 3 * (w % 2)
        for t in range(9):
            for src in range(3):
                addr = w * 27648 + src * 9216 + t * 1024
                base, off = divmod(addr, 65536)
                b(f"ds_read_b128 {vr(FR+12*t+4*src,4)}, v{4 if base == 0 else 5} offset:{off}")
                if (t * 3 + src) == 14: b("s_waitcnt lgkmcnt(8)")
        for t in range(9):
            q, n = q0 + t // 3, n0 + t % 3
            for r in range(4): b(f"v_accvgpr_read_b32 v{FR+128+4*t+r}, a{ACC+4*(6*q+n)+r}")
        b("s_waitcnt lgkmcnt(0)")
        for t in range(9):
            for r in range(4):
                x = FR + 128 + 4 * t + r
                b(f"v_add_f32 v{FR+12*t+r}, v{FR+12*t+r}, v{FR+12*t+4+r}")
                b(f"v_add_f32 v{x}, v{x}, v{FR+12*t+8+r}")
                b(f"v_add_f32 v{x}, v{x}, v{FR+12*t+r}")
            b(f"v_cvt_pk_bf16_f32 v{FR+170+2*t}, v{FR+128+4*t}, v{FR+128+4*t+1}")
            b(f"v_cvt_pk_bf16_f32 v{FR+170+2*t+1}, v{FR+128+4*t+2}, v{FR+128+4*t+3}")
        for t in range(9):
            q, n = q0 + t // 3, n0 + t % 3
            b(f"buffer_store_dwordx2 v[{FR+170+2*t}:{FR+170+2*t+1}], v{6 + (q%3)}, s[12:15], s37 offen offset:{32*n}")
        b("s_endpgm")
    b("L_end2:\ns_endpgm")
    i = b.L.index("v_lshlrev_b32 v4, 0, v2")
    setup = f"""v_mov_b32 v4, v2
    v_add_u32 v5, 0x10000, v2
    v_and_b32 v6, 15, v0
    v_mul_u32_u24 v6, 2304, v6
    v_bfe_u32 v7, v0, 4, 2
    v_lshl_add_u32 v6, v7, 3, v6
    v_add_u32 v7, {16*2304}, v6
    v_add_u32 v8, {32*2304}, v6
    s_lshr_b32 s38, s32, 1
    s_mul_i32 s38, s38, {48*2304}
    s_mul_i32 s37, s20, {96*2304}
    s_add_u32 s37, s37, s38
    s_mul_i32 s38, s3, 1152
    s_add_u32 s37, s37, s38
    s_mul_i32 s38, s21, 192
    s_add_u32 s37, s37, s38""".split("\n")
    b.L[i:i+1] = [x.strip() for x in setup]
    return b.L

DESC = """.section .rodata,"a"
.p2align 6
.amdhsa_kernel {name}
  .amdhsa_next_free_vgpr {vgpr}
  .amdhsa_next_free_sgpr 102
  .amdhsa_accum_offset 256
  .amdhsa_group_segment_fixed_size 0
  .amdhsa_kernarg_size 104
  .amdhsa_user_sgpr_count 2
  .amdhsa_user_sgpr_kernarg_segment_ptr 1
  .amdhsa_system_sgpr_workgroup_id_x 1
  .amdhsa_float_denorm_mode_32 3
.end_amdhsa_kernel
"""

def build(**kw):
    OPT.update(kw)
    k1 = finish(kernel1())
    i4 = k1.index("L_begin4:"); i3 = k1.index("L_begin3:")
    e = check_protocol(k1[i4:i3], "w4") + check_protocol(k1[i3:], "w3")
    assert e == 0
    k1 = strip_markers(k1)
    k1, n1, p1 = fix_hazards(k1)
    k2, n2, p2 = fix_hazards(kernel2())
    for p in p1 + p2: print("BRANCH HAZARD", p)
    assert not (p1 or p2)
    hdr = open("cdna_kernels/%s.s.ref" % NAME).read().split("; Override")[0]
    out = hdr
    out += "; generated by my own schedule generator (dev/gen.py); two launches: fused q-proj+attention, then output projection\n"
    out += "; @launch kernel=attn_kernel grid=(256,1,1) block=(256,1,1) lds=163840\n"
    out += "; @launch kernel=oproj_kernel grid=(240,1,1) block=(256,1,1) lds=110592\n"
    out += '.amdgcn_target "amdgcn-amd-amdhsa--gfx950"\n.text\n'
    out += ".globl attn_kernel\n.p2align 8\n.type attn_kernel,@function\n" + "\n".join(k1) + "\n"
    out += ".globl oproj_kernel\n.p2align 8\n.type oproj_kernel,@function\n" + "\n".join(k2) + "\n"
    out += DESC.format(name="attn_kernel", vgpr=512) + DESC.format(name="oproj_kernel", vgpr=400)
    return out, (n1, n2)

if __name__ == "__main__":
    kw = {}
    for a in sys.argv[2:]:
        k, v = a.split('='); kw[k] = int(v)
    s, info = build(**kw)
    open(sys.argv[1], "w").write(s)
    print("nops inserted", info, "bytes", len(s))
```

```python
import sys, re
from asmlib import fix_hazards, Ins

NAME = "concat_heads__mha_block_cached__mha_block_cached__near_ridge"
MF = "v_mfma_f32_16x16x32_bf16"
CSCALE = 0x3e0293ee
LTHR = 0x4e800000

O_BLK = 128 * 122880
WOT_OFF = 2 * O_BLK
WOT_BLK = 128 * 36864

class B:
    def __init__(self): self.L = []
    def __call__(self, s):
        for x in s.split("\n"):
            x = x.strip()
            if x: self.L.append(x)
    def ext(self, l): self.L.extend(l)

def vr(b, n): return f"v[{b}:{b+n-1}]"
def ar(b, n): return f"a[{b}:{b+n-1}]"

def emit_slots(b, slots, gaps):
    for i, s in enumerate(slots):
        if s: b(s)
        nv = [x for x in gaps[i] if not x.startswith('v_')]
        v = [x for x in gaps[i] if x.startswith('v_')]
        for x in nv + v: b(x)

S_ = 16; P_ = 48; CI = 64; LS = 80
KA = 84
VA = 88
DK0 = 96; DK1 = 97; DV0 = 98; DV1 = 99
VO = 100
VWO = 101
VWX = 102
VLN = 103
T0 = 108
O_ = 128
XA = 16; WA = 18; DX = 20; DW = 24
AQ = 0; AQ2 = 64; AK = 128; AV = 160; ASP = 192
AX = 0; AW = 64
SX = 4; SW = 8; SK = 12; SV = 16; SO = 20; SWO = 24; SWT = 28
sWAVE = 32; sWB = 33; sKV = 34; sCNT = 35; sHEAD = 36; sSAFE = 37; sFLAG = 38
sXO = 39; sXO2 = 40; sWOFF = 41; sXB = 42; sOO = 43; sC = 44
sT = 46
sH0 = 68; sWOS = 69; sWTS = 70; sSTAMP = 72

OPT = dict(nt_kv=1, nt_w=0, nt_x=0, nt_wo=1, stamps=0, warm=1)

K2F = ['', ' nt', ' sc1', ' sc0 sc1', ' sc0', ' sc1 nt']
def fl(k): return " nt" if OPT[k] else ""

def dma(voff, srd, soff, off, flag, tag):
    return f"buffer_load_dwordx4 v{voff}, s[{srd}:{srd+3}], {soff} offen offset:{off}{flag} lds ; tag={tag}"

def kv_dma(tile):
    return [dma(DK0, SK, f"s{sKV}", 0, fl('nt_kv'), f"KV{tile}"),
            dma(DK1, SK, f"s{sKV}", 1024, fl('nt_kv'), f"KV{tile}"),
            dma(DV0, SV, f"s{sKV}", 2048, fl('nt_kv'), f"KV{tile}"),
            dma(DV1, SV, f"s{sKV}", 3072, fl('nt_kv'), f"KV{tile}")]

def x_dma(m, nq):
    slot = 32768 if m % 2 else 65536
    out = []
    out.append(f"s_add_u32 m0, s{sXB}, {slot}")
    for j in range(4): out.append(dma(DX + j, SX, f"s{sXO}", 1024 * j, fl('nt_x'), f"X{m}"))
    out.append(f"s_add_u32 m0, s{sXB}, {slot + 4096}")
    for j in range(4 if nq == 4 else 2): out.append(dma(DX + j, SX, f"s{sXO2}", 1024 * j, fl('nt_x'), f"X{m}"))
    out.append(f"s_add_u32 s{sXO}, s{sXO}, 128")
    out.append(f"s_add_u32 s{sXO2}, s{sXO2}, 128")
    return out

def w_dma(n):
    out = [f"s_add_u32 m0, s{sWB}, {98304 + (n % 4) * 16384}"]
    for j in range(4): out.append(dma(DW + j, SW, f"s{sWOFF}", 1024 * j, fl('nt_w'), f"W{n}"))
    if n % 2 == 0: out.append(f"s_add_u32 s{sWOFF}, s{sWOFF}, 256")
    else: out.append(f"s_add_u32 s{sWOFF}, s{sWOFF}, {524288 - 256}")
    return out

def w_reads(n, T):
    sp_, a = T // 2, T % 2
    hl, sp = sp_ // 2, sp_ % 2
    out = []
    for s in range(2):
        for a2 in range(2):
            d = AW + 8 * (T % 4) + 4 * s + 2 * a2
            off = (n % 4) * 16384 + hl * 8192 + (32 * s + 4 * a2) * 128 + 8 * a
            out.append(f"ds_read_b64_tr_b16 {ar(d,2)}, v{WA+sp} offset:{off} ; need=W{n}")
    return out

def x_reads(m, nq):
    out = []
    for q in range(nq):
        for s in range(2):
            d = AX + 32 * (m % 2) + 8 * q + 4 * s
            off = (0 if m % 2 else 32768) + q * 2048
            out.append(f"ds_read_b128 {ar(d,4)}, v{XA+s} offset:{off} ; need=X{m}")
    return out

def qacc(hd, q, T):
    r = 128 + 32 * q + 4 * T
    return vr(r, 4) if hd == 0 else ar(r, 4)

def qproj_stage(b, n, nq):
    hd, m = n % 2, n // 2
    nx = 8 if nq == 4 else 6
    slots = []; gaps = [[] for _ in range(64)]
    for T in range(8):
        for q in range(4):
            for s in range(2):
                if q >= nq: slots.append(None); continue
                acc = qacc(hd, q, T)
                c = "0" if (m == 0 and s == 0) else acc
                slots.append(f"{MF} {acc}, {ar(AW+8*(T%4)+4*s,4)}, {ar(AX+32*(m%2)+8*q+4*s,4)}, {c}")
    start = {3: 5, 4: 12, 5: 19, 6: 26, 7: 33}
    rd = w_reads(n, 2); gaps[0].append(rd[3])
    for T, g in start.items():
        for i, x in enumerate(w_reads(n, T)): gaps[g + i].append(x)
    if n < 17:
        for T, g in ((0, 45), (1, 53)):
            for i, x in enumerate(w_reads(n + 1, T)): gaps[g + i].append(x)
        for i, x in enumerate(w_reads(n + 1, 2)[:3]): gaps[61 + i].append(x)
    xr = []
    if n % 2 == 1 and m + 1 <= 8:
        xr = x_reads(m + 1, nq)
        for x, g in zip(xr, (9, 10, 16, 17, 23, 24, 30, 31)): gaps[g].append(x)
    for T in range(1, 8): gaps[8 * T - 1].append(f"WAITL W{n}.{T}")
    if n < 17: gaps[63].append(f"WAITL W{n+1}.0")
    if n <= 14: N = 8 + nx if n != 14 else 16
    elif n == 15: N = 12
    else: N = 16
    if n == 13: N = 8 + nx
    gaps[43].append(f"s_waitcnt vmcnt({N}) lgkmcnt(0)")
    req = []
    if n + 1 <= 17: req.append(f"W{n+1}")
    if n % 2 == 0 and m + 1 <= 8: req.append(f"X{m+1}")
    if n == 17: req += ["KV0", "KV1"]
    gaps[44].append("s_barrier ; pub=" + ",".join(req))
    if n % 2 == 0 and m + 2 <= 8:
        xd = x_dma(m + 2, nq)
        pos = [0, 1, 2, 3, 4, 8, 9, 10, 11, 16, 17, 18]
        if nq == 3: pos = [0, 1, 2, 3, 4, 8, 9, 10, 17, 18]
        for x, g in zip(xd, pos): gaps[g].append(x)
    if n in (14, 16):
        t0 = 2 if n == 14 else 4
        seq = []
        for t in (t0, t0 + 1):
            seq.append(f"s_add_u32 m0, s{sWB}, {t * 16384}")
            seq += kv_dma(t)
            seq.append(f"s_add_u32 s{sKV}, s{sKV}, 8192")
        for x, g in zip(seq, [0, 1, 2, 3, 4, 5, 8, 9, 10, 11, 16, 17]): gaps[g].append(x)
    if n + 4 <= 17:
        for x, g in zip(w_dma(n + 4), [48, 49, 51, 57, 59, 60]): gaps[g].append(x)
    emit_slots(b, slots, gaps)

def k_reads(unit, tile):
    out = []
    for kt in range(2):
        for s in range(4):
            f = 4 * kt + s
            off = (unit % 4) * 16384 + (2 * (s // 2) + kt) * 4096
            out.append(f"ds_read_b128 {ar(AK+4*f,4)}, v{KA + (s%2) + 2*(unit//4)} offset:{off} ; need=KV{tile}")
    return out

def v_reads(unit, tile):
    out = []
    for T in range(8):
        th, tl = T // 4, T % 4
        for a in range(2):
            off = (unit % 4) * 16384 + (2 * th + a) * 4096 + 2048
            out.append(f"ds_read_b64_tr_b16 {ar(AV+4*T+2*a,2)}, v{VA + tl + 4*(unit//4)} offset:{off} ; need=KV{tile}")
    return out

def softmax_fill(gaps, half, g0, nq, N, lo=None, hi=None):
    for j in range(16):
        q = 2 * half + j // 8; e = j % 8
        if q >= nq: continue
        s = S_ + 8 * q + e
        g = g0 + 2 * j
        items = [(g, f"v_exp_f32 v{s}, v{s}"), (g + 1, f"v_add_f32 v{LS+q}, v{LS+q}, v{s}")]
        if e % 2 == 1: items.append((g + 1, f"v_cvt_pk_bf16_f32 v{P_+4*q+e//2}, v{s-1}, v{s}"))
        for gg, t in items:
            if lo <= gg < hi: gaps[gg % N].append(t)

def qk(q, kt, s, czero=False):
    d = vr(S_ + 8 * q + 4 * kt, 4)
    c = d if s else ("0" if czero else vr(CI + 4 * q, 4))
    return f"{MF} {d}, {ar(AK+4*(4*kt+s),4)}, {ar(AQ+16*q+4*s,4)}, {c}"

def pv(q, T, czero=False):
    d = vr(O_ + 32 * q + 4 * T, 4)
    return f"{MF} {d}, {ar(AV+4*T,4)}, {vr(P_+4*q,4)}, {'0' if czero else d}"

def attn_stage(b, k, nq, extra=None):
    kk = k % 32; u = k % 8
    slots = []; gaps = [[] for _ in range(64)]
    for q in (0, 1):
        for kt in range(2):
            for s in range(4): slots.append(qk(q, kt, s))
    for q in (2, 3):
        for T in range(8): slots.append(pv(q, T, kk == 1) if (q < nq and kk > 0) else None)
    for q in (2, 3):
        for kt in range(2):
            for s in range(4): slots.append(qk(q, kt, s) if q < nq else None)
    for q in (0, 1):
        for T in range(8): slots.append(pv(q, T, kk == 0))
    softmax_fill(gaps, 0, 8, nq, 64, 0, 64)
    softmax_fill(gaps, 1, 40, nq, 64, 0, 64)
    if kk > 0: softmax_fill(gaps, 1, 40, nq, 64, 64, 128)
    for i, x in enumerate(v_reads(u, k)): gaps[26 + i].append(x)
    if k % 2 == 1:
        gaps[46].append("s_waitcnt vmcnt(16) lgkmcnt(0)")
        gaps[47].append(f"s_barrier ; pub=KV{k+1},KV{k+2}")
    else:
        gaps[47].append("s_waitcnt lgkmcnt(0)")
    for i, x in enumerate(k_reads((u + 1) % 8, k + 1)): gaps[48 + i].append(x)
    gaps[63].append("s_waitcnt lgkmcnt(0)")
    gaps[0].append(f"s_add_u32 m0, s{sWB}, {((k + 6) % 8) * 16384}")
    for x, g in zip(kv_dma(k + 6), (1, 5, 9, 13)): gaps[g].append(x)
    gaps[16].append(f"s_add_u32 s{sKV}, s{sKV}, 8192")
    if OPT.get('kvsmall'): gaps[18].append(f"s_and_b32 s{sKV}, s{sKV}, 0xffff")
    if extra:
        for g, x in extra: gaps[g].append(x)
    emit_slots(b, slots, gaps)

def xlane_reduce(b, reg, tmp, op):
    b(f"v_mov_b32 v{tmp}, v{reg}")
    b(f"v_permlane32_swap_b32 v{reg}, v{tmp}")
    b(f"{op} v{reg}, v{reg}, v{tmp}")
    b(f"v_mov_b32 v{tmp}, v{reg}")
    b(f"v_permlane16_swap_b32 v{reg}, v{tmp}")
    b(f"{op} v{reg}, v{reg}, v{tmp}")

def xlane_reduce_multi(b, regs, tmps, op):
    for sw in ("v_permlane32_swap_b32", "v_permlane16_swap_b32"):
        for r, t in zip(regs, tmps): b(f"v_mov_b32 v{t}, v{r}")
        for r, t in zip(regs, tmps): b(f"{sw} v{r}, v{t}")
        for r, t in zip(regs, tmps): b(f"{op} v{r}, v{r}, v{t}")

def stamp(b, idx=None):
    if not OPT['stamps']: return
    b(f"s_memtime s[{sSTAMP}:{sSTAMP+1}]\ns_memrealtime s[{sSTAMP+2}:{sSTAMP+3}]\ns_waitcnt lgkmcnt(0)")
    b(f"s_mov_b32 s95, m0\ns_mov_b32 m0, s96\nv_writelane_b32 v14, s{sSTAMP}, m0\nv_writelane_b32 v15, s{sSTAMP+2}, m0\ns_mov_b32 m0, s95\ns_add_u32 s96, s96, 1")

def stamp_dump(b, k, wave):
    if not OPT['stamps']: return
    b("s_waitcnt vmcnt(0)")
    stamp(b)
    b("s_load_dwordx2 s[92:93], s[0:1], 96\ns_waitcnt lgkmcnt(0)")
    b(f"s_add_u32 s88, s92, {(48+k)*1024*1024}\ns_addc_u32 s89, s93, 0\ns_mov_b32 s90, 0x100000\ns_mov_b32 s91, 0x20000")
    b(f"s_lshl_b32 s94, s97, 2\ns_add_u32 s94, s94, s{wave}\ns_lshl_b32 s94, s94, 9")
    b("v_and_b32 v1, 63, v0\nv_lshlrev_b32 v1, 3, v1")
    b("buffer_store_dwordx2 v[14:15], v1, s[88:91], s94 offen")

def wave_code(b, nq, sfx):
    nx = 8 if nq == 4 else 6
    b(f"L_begin{sfx}:")
    lane = T0; t1 = T0 + 1; t2 = T0 + 2; t3 = T0 + 3; g_ = T0 + 4; ihi = T0 + 5; i8 = T0 + 6
    b(f"""v_and_b32 v{lane}, 63, v0
    v_lshrrev_b32 v{g_}, 4, v{lane}
    v_lshrrev_b32 v{ihi}, 3, v{lane}
    v_and_b32 v{i8}, 7, v{lane}""")
    b(f"s_lshl_b32 s{sT}, s{sWAVE}, 6")
    b(f"v_add_u32 v{t1}, s{sT}, v{ihi}")
    b(f"v_mul_u32_u24 v{t1}, 1152, v{t1}")
    for j in range(4):
        b(f"v_xor_b32 v{t2}, {4*(j%2)}, v{g_}")
        b(f"v_xor_b32 v{t2}, v{t2}, v{i8}")
        b(f"v_lshl_add_u32 v{t2}, v{t2}, 4, v{t1}")
        b(f"v_add_u32 v{DX+j}, {8*j*1152 - 1024*j}, v{t2}")
    b(f"""s_and_b32 s{sT}, s{sWAVE}, 1
    s_lshl_b32 s{sT}, s{sT}, 18
    s_lshr_b32 s{sT+1}, s{sWAVE}, 1
    s_lshl_b32 s{sT+1}, s{sT+1}, 7
    s_add_u32 s{sT}, s{sT}, s{sT+1}
    v_lshlrev_b32 v{t1}, 13, v{ihi}
    v_add_u32 v{t1}, s{sT}, v{t1}
    v_lshrrev_b32 v{t2}, 2, v{i8}
    v_xor_b32 v{t2}, v{t2}, v{g_}
    v_and_b32 v{t2}, 1, v{t2}
    v_lshl_add_u32 v{t1}, v{t2}, 6, v{t1}
    v_and_b32 v{t2}, 3, v{i8}
    v_lshl_add_u32 v{t1}, v{t2}, 4, v{t1}""")
    for j in range(4): b(f"v_add_u32 v{DW+j}, {8*j*8192 - 1024*j}, v{t1}")
    b(f"""s_mov_b32 s{sXO}, 0
    s_mov_b32 s{sXO2}, 36864
    s_mov_b32 s{sWOFF}, 0
    s_mov_b32 s{sKV}, 0
    s_mov_b32 s{sHEAD}, 0""")
    b.ext(x_dma(0, nq)); b.ext(w_dma(0)); b.ext(w_dma(1)); b.ext(x_dma(1, nq)); b.ext(w_dma(2)); b.ext(w_dma(3))
    for t in (0, 1):
        b(f"s_add_u32 m0, s{sWB}, {t*16384}"); b.ext(kv_dma(t)); b(f"s_add_u32 s{sKV}, s{sKV}, 8192")
    i16 = T0 + 7; r_ = T0 + 8; c4 = T0 + 9
    b(f"""v_and_b32 v{i16}, 15, v{lane}
    v_lshrrev_b32 v{r_}, 2, v{i16}
    v_and_b32 v{c4}, 3, v{lane}
    v_lshlrev_b32 v{t1}, 7, v{i16}
    v_add_u32 v{t1}, s{sXB}, v{t1}
    v_add_u32 v{t1}, 32768, v{t1}
    v_lshrrev_b32 v{t3}, 1, v{i16}""")
    for s in range(2):
        b(f"v_xor_b32 v{t2}, {4*s}, v{g_}")
        b(f"v_xor_b32 v{t2}, v{t2}, v{t3}")
        b(f"v_lshl_add_u32 v{XA+s}, v{t2}, 4, v{t1}")
    b(f"""v_lshl_add_u32 v{t1}, v{g_}, 3, v{r_}
    v_lshlrev_b32 v{t1}, 7, v{t1}
    v_lshl_add_u32 v{t1}, v{c4}, 4, v{t1}
    v_add_u32 v{t1}, 98304, v{t1}
    v_lshrrev_b32 v{t3}, 1, v{r_}""")
    for sp in range(2):
        b(f"v_xor_b32 v{t2}, {sp}, v{t3}")
        b(f"v_lshl_add_u32 v{WA+sp}, v{t2}, 6, v{t1}")
    stamp(b, 0)
    b(f"s_waitcnt vmcnt({4 + nx + 4 + 4 + 8})")
    b("s_barrier ; pub=X0,W0")
    b.ext(x_reads(0, nq))
    for T in (0, 1): b.ext(w_reads(0, T))
    b.ext(w_reads(0, 2)[:3])
    b("WAITL W0.0")
    stamp(b, 1)
    for n in range(0, 4): qproj_stage(b, n, nq)
    b(f"s_mov_b32 s{sCNT}, 0")
    b(f".p2align 3\nL_qp{sfx}:")
    b("LOOPBEGIN qp 2 4")
    for n in range(4, 8): qproj_stage(b, n, nq)
    b(f"s_add_u32 s{sCNT}, s{sCNT}, 1\ns_cmp_lt_u32 s{sCNT}, 2\ns_cbranch_scc1 L_qp{sfx}")
    b("LOOPEND qp")
    for n in range(12, 18): qproj_stage(b, n, nq)
    stamp(b, 2)
    def conv(hd, q, sp):
        for a in range(2):
            T = 2 * sp + a
            for h in range(2):
                r = 128 + 32 * q + 4 * T + 2 * h
                tmp = T0 + 4 * ((2 * a + h) % 4)
                if hd == 1:
                    b(f"v_accvgpr_read_b32 v{tmp}, a{r}\nv_accvgpr_read_b32 v{tmp+1}, a{r+1}")
                    src = tmp
                else: src = r
                b(f"v_pk_mul_f32 v[{tmp}:{tmp+1}], v[{src}:{src+1}], s[{sC}:{sC+1}]")
                b(f"v_cvt_pk_bf16_f32 v{tmp+2}, v{tmp}, v{tmp+1}")
                b(f"v_accvgpr_write_b32 a{64*hd + 16*q + 4*sp + 2*a + h}, v{tmp+2}")
    for sp in range(4): conv(1, 0, sp)
    b.ext(k_reads(0, 0))
    for q in range(1, nq):
        for sp in range(4): conv(1, q, sp)
    for q in range(nq):
        for sp in range(4): conv(0, q, sp)
    b("s_waitcnt lgkmcnt(0)")
    stamp(b, 3)
    b(f".p2align 3\nL_head{sfx}:")
    b("LOOPBEGIN head 2 32")
    b(f"s_cmp_lg_u32 s{sSAFE}, 0\ns_cbranch_scc1 L_maxpass{sfx}")
    for q in range(nq):
        for s in range(4): b(qk(q, 0, s, czero=True))
    ms = [S_ + 8 * q for q in range(nq)]
    for q in range(nq):
        s = S_ + 8 * q
        b(f"v_max3_f32 v{s}, v{s}, v{s+1}, v{s+2}\nv_max_f32 v{s}, v{s}, v{s+3}")
    b(f"L_maxdone{sfx}:")
    xlane_reduce_multi(b, ms, [T0 + q for q in range(nq)], "v_max_f32")
    for q in range(nq):
        for r in range(4): b(f"v_sub_f32 v{CI+4*q+r}, 0, v{S_+8*q}")
        b(f"v_mov_b32 v{LS+q}, 0")
    b(f"s_add_u32 m0, s{sXB}, 131072")
    for j in range(4):
        b(f"s_add_u32 s{sT}, s{sWOS}, {8192*j}")
        b(dma(VWO, SWO, f"s{sT}", 1024 * j, fl('nt_wo'), "WO"))
    b(f"s_cmp_lg_u32 s{sHEAD}, 0\ns_cbranch_scc1 L_nox{sfx}")
    b(f"s_add_u32 m0, s{sXB}, {131072 + 4096}")
    b(dma(VWX, SWO, "0", 0, fl('nt_wo'), "WO"))
    b(f"L_nox{sfx}:")
    stamp(b)
    attn_stage(b, 0, nq)
    attn_stage(b, 1, nq)
    b(f"s_mov_b32 s{sCNT}, 0")
    b(f".p2align 3\nL_at{sfx}:")
    b("LOOPBEGIN at 4 8")
    for k in range(2, 8):
        ex = None
        if k == 7: ex = [(60, f"s_add_u32 s{sCNT}, s{sCNT}, 1"), (62, f"s_cmp_eq_u32 s{sCNT}, 4")]
        attn_stage(b, k, nq, ex)
    b(f"s_cbranch_scc1 L_atx{sfx}")
    b("LOOPEXIT at")
    for k in range(8, 10): attn_stage(b, k, nq)
    b(f"s_branch L_at{sfx}")
    b("LOOPEND at")
    b(f"L_atx{sfx}:")
    slots = []; gaps = [[] for _ in range(64)]
    for q in (2, 3):
        for T in range(8): slots.append(pv(q, T) if q < nq else None)
    softmax_fill(gaps, 1, 40, nq, 64, 64, 128)
    emit_slots(b, slots, gaps)
    stamp(b, 4)
    ls = [LS + q for q in range(nq)]
    xlane_reduce_multi(b, ls, [T0 + q for q in range(nq)], "v_add_f32")
    b(f"v_mov_b32 v{T0+8}, {LTHR}")
    for q in range(nq):
        b(f"v_cmp_nlt_f32 vcc, v{LS+q}, v{T0+8}")
        b(f"s_or_b32 s{sFLAG}, s{sFLAG}, vcc_lo\ns_or_b32 s{sFLAG}, s{sFLAG}, vcc_hi")
        b(f"v_rcp_f32 v{LS+q}, v{LS+q}")
    b(f"s_add_u32 s{sT}, s{sXB}, 65536")
    for tl in range(4):
        b(f"v_add_u32 v{T0+12+tl}, s{sT}, v{VA+4+tl}")
    b("s_waitcnt vmcnt(16) ; needtag=WO")
    for tl in range(4):
        for a in range(2):
            b(f"ds_read_b64_tr_b16 v[{S_+4*tl+2*a}:{S_+4*tl+2*a+1}], v{T0+12+tl} offset:{2048*a}")
    cnt = 0
    for q in range(nq):
        for sp in range(4):
            d = P_ + 4 * (cnt % 4); cnt += 1
            for a in range(2):
                for h in range(2):
                    r = O_ + 32 * q + 4 * (2 * sp + a) + 2 * h
                    b(f"v_mul_f32 v{r}, v{r}, v{LS+q}\nv_mul_f32 v{r+1}, v{r+1}, v{LS+q}")
                    b(f"v_cvt_pk_bf16_f32 v{d+2*a+h}, v{r}, v{r+1}")
            b(f"s_add_u32 s{sT}, s{sOO}, {sp*122880}")
            b(f"buffer_store_dwordx4 {vr(d,4)}, v{VO}, s[{SO}:{SO+3}], s{sT} offen offset:{1024*q}{K2F[OPT.get('of',0)]}")
    b("s_waitcnt lgkmcnt(0)")
    for tl in range(4):
        b(f"buffer_store_dwordx4 {vr(S_+4*tl,4)}, v{VLN}, s[{SWT}:{SWT+3}], s{sWTS} offen offset:{1024*tl}{K2F[OPT.get('of',0)]}")
    stamp(b)
    b(f"s_cmp_lg_u32 s{sHEAD}, 0\ns_cbranch_scc1 L_fin{sfx}")
    b(f"""v_and_b32 v{T0}, 63, v0
    v_lshlrev_b32 v{T0}, 3, v{T0}
    v_add_u32 v{T0}, s{sXB}, v{T0}
    v_add_u32 v{T0}, {131072+4096}, v{T0}
    ds_read_b64_tr_b16 v[{S_+16}:{S_+17}], v{T0} offset:0
    ds_read_b64_tr_b16 v[{S_+18}:{S_+19}], v{T0} offset:512
    s_lshl_b32 s{sT}, s{sWAVE}, 10
    s_add_u32 s{sT}, s{sT}, 32768""")
    for i in range(16 * nq): b(f"v_accvgpr_mov_b32 a{AQ+i}, a{AQ2+i}")
    b(f"""s_waitcnt lgkmcnt(0)
    buffer_store_dwordx4 {vr(S_+16,4)}, v{VLN}, s[{SWT}:{SWT+3}], s{sT} offen
    s_add_u32 s{sOO}, s{sOO}, {4*122880}
    s_add_u32 s{sWOS}, s{sWOS}, 512
    s_add_u32 s{sWTS}, s{sWTS}, 16384
    s_mov_b32 s{sHEAD}, 1
    s_branch L_head{sfx}""")
    b("LOOPEND head")
    b(f"L_fin{sfx}:")
    b(f"s_branch L_vote")
    b(f"L_maxpass{sfx}:")
    for q in range(nq): b(f"v_mov_b32 v{T0+8+q}, 0xff800000")
    for s2 in range(2): b(f"v_add_u32 v{T0+12+s2}, 65536, v{KA+2+s2}")
    b(f"s_lshl_b32 s{sT}, s{sHEAD}, 18\ns_mov_b32 s{sCNT}, 0")
    b(f"L_mp{sfx}:")
    b(f"s_barrier\ns_add_u32 m0, s{sWB}, 131072")
    b(dma(DK0, SK, f"s{sT}", 0, "", "MP")); b(dma(DK1, SK, f"s{sT}", 1024, "", "MP"))
    b("s_waitcnt vmcnt(0)\ns_barrier")
    for kt in range(2):
        for s in range(4):
            b(f"ds_read_b128 {ar(ASP+4*(4*kt+s),4)}, v{T0+12+s%2} offset:{(2*(s//2)+kt)*4096}")
    b("s_waitcnt lgkmcnt(0)")
    for q in range(nq):
        for kt in range(2):
            for s in range(4):
                d = vr(S_ + 8 * q + 4 * kt, 4)
                b(f"{MF} {d}, {ar(ASP+4*(4*kt+s),4)}, {ar(AQ+16*q+4*s,4)}, {d if s else '0'}")
    for q in range(nq):
        for e in range(0, 8, 2): b(f"v_max3_f32 v{T0+8+q}, v{T0+8+q}, v{S_+8*q+e}, v{S_+8*q+e+1}")
    b(f"s_add_u32 s{sT}, s{sT}, 8192\ns_add_u32 s{sCNT}, s{sCNT}, 1\ns_cmp_lt_u32 s{sCNT}, 32\ns_cbranch_scc1 L_mp{sfx}")
    b("s_barrier")
    for q in range(nq): b(f"v_mov_b32 v{S_+8*q}, v{T0+8+q}")
    b(f"s_branch L_maxdone{sfx}")

def kernel1():
    b = B()
    b("attn_kernel:")
    b("s_cmp_ge_u32 s2, 256\ns_cbranch_scc1 L_end1")
    if OPT['stamps']: b("s_mov_b32 s96, 0\nv_mov_b32 v14, 0\nv_mov_b32 v15, 0")
    stamp(b)
    b("s_load_dwordx16 s[48:63], s[0:1], 0\ns_load_dwordx4 s[64:67], s[0:1], 64\ns_load_dwordx2 s[46:47], s[0:1], 96")
    b(f"""s_mov_b32 s97, s2
    s_and_b32 s3, s2, 7
    s_lshr_b32 s2, s2, 3
    v_lshrrev_b32 v1, 6, v0
    s_and_b32 s68, s3, 1
    s_lshl_b32 s68, s68, 2
    s_and_b32 s69, s2, 3
    s_add_u32 s68, s68, s69        ; b
    v_readfirstlane_b32 s{sWAVE}, v1
    s_bfe_u32 s69, s3, 0x10001
    s_lshl_b32 s69, s69, 3
    s_lshr_b32 s70, s2, 2
    s_add_u32 s69, s69, s70        ; hp
    s_lshr_b32 s3, s3, 2           ; blk
    s_lshl_b32 s{sWB}, s{sWAVE}, 12
    s_lshl_b32 s{sXB}, s{sWAVE}, 13
    s_mov_b32 s{sC}, {CSCALE}
    s_mov_b32 s{sC+1}, {CSCALE}
    s_mov_b32 s{sSAFE}, 0
    s_mov_b32 s{sFLAG}, 0
    s_cmp_eq_u32 s3, 0
    s_waitcnt lgkmcnt(0)
    s_cselect_b64 s[48:49], s[48:49], s[58:59]
    s_cselect_b64 s[50:51], s[50:51], s[60:61]
    s_cselect_b64 s[52:53], s[52:53], s[62:63]
    s_cselect_b64 s[54:55], s[54:55], s[64:65]
    s_cselect_b64 s[56:57], s[56:57], s[66:67]""")
    b(f"""s_mul_i32 s71, s68, 276480
    s_add_u32 s{SX}, s48, s71
    s_addc_u32 s{SX+1}, s49, 0
    s_mov_b32 s{SX+2}, 276480
    s_mov_b32 s{SX+3}, 0x20000
    s_lshl_b32 s71, s69, 9
    s_add_u32 s{SW}, s54, s71
    s_addc_u32 s{SW+1}, s55, 0
    s_sub_u32 s{SW+2}, 4718592, s71
    s_mov_b32 s{SW+3}, 0x20000
    s_lshl_b32 s71, s68, 4
    s_add_u32 s71, s71, s69
    s_lshl_b32 s70, s71, 19
    s_add_u32 s{SK}, s50, s70
    s_addc_u32 s{SK+1}, s51, 0
    s_mov_b32 s{SK+2}, 524288
    s_mov_b32 s{SK+3}, 0x20000
    s_add_u32 s{SV}, s52, s70
    s_addc_u32 s{SV+1}, s53, 0
    s_sub_u32 s{SV}, s{SV}, 2048
    s_subb_u32 s{SV+1}, s{SV+1}, 0
    s_mov_b32 s{SV+2}, {524288+2048}
    s_mov_b32 s{SV+3}, 0x20000
    s_mul_i32 s70, s3, {O_BLK}
    s_add_u32 s{SO}, s46, s70
    s_addc_u32 s{SO+1}, s47, 0
    s_mov_b32 s{SO+2}, {O_BLK}
    s_mov_b32 s{SO+3}, 0x20000
    s_mul_i32 s70, s71, 36864
    s_add_u32 s{SWO}, s56, s70
    s_addc_u32 s{SWO+1}, s57, 0
    s_mov_b32 s{SWO+2}, 36864
    s_mov_b32 s{SWO+3}, 0x20000
    s_mul_i32 s71, s3, {WOT_BLK}
    s_add_u32 s70, s70, s71
    s_add_u32 s70, s70, {WOT_OFF}
    s_add_u32 s{SWT}, s46, s70
    s_addc_u32 s{SWT+1}, s47, 0
    s_mov_b32 s{SWT+2}, 36864
    s_mov_b32 s{SWT+3}, 0x20000
    s_mul_i32 s62, s69, {8*122880}
    s_mul_i32 s63, s68, 15360        ; b*15*1024""")
    lane = T0; t1 = T0 + 1; t2 = T0 + 2; t3 = T0 + 3; g_ = T0 + 4; ihi = T0 + 5; i8 = T0 + 6; i16 = T0 + 7; r_ = T0 + 8; c4 = T0 + 9
    b(f"""v_and_b32 v{lane}, 63, v0
    v_lshrrev_b32 v{g_}, 4, v{lane}
    v_lshrrev_b32 v{ihi}, 3, v{lane}
    v_and_b32 v{i8}, 7, v{lane}
    v_and_b32 v{i16}, 15, v{lane}
    v_lshrrev_b32 v{r_}, 2, v{i16}
    v_and_b32 v{c4}, 3, v{lane}
    v_lshlrev_b32 v{VLN}, 4, v{lane}
    s_add_u32 s63, s63, s{sWB}
    v_add_u32 v{VO}, s63, v{VLN}""")
    b(f"""s_and_b32 s70, s{sWAVE}, 1
    s_lshl_b32 s70, s70, 12
    s_lshr_b32 s71, s{sWAVE}, 1
    s_lshl_b32 s71, s71, 7
    s_add_u32 s70, s70, s71
    v_lshlrev_b32 v{t1}, 8, v{ihi}
    v_add_u32 v{t1}, s70, v{t1}
    v_xor_b32 v{t2}, v{i8}, v{g_}
    v_lshl_add_u32 v{DK0}, v{t2}, 4, v{t1}
    v_xor_b32 v{t2}, 4, v{t2}
    v_lshl_add_u32 v{DK1}, v{t2}, 4, v{t1}
    v_add_u32 v{DK1}, 1024, v{DK1}
    v_lshlrev_b32 v{t2}, 1, v{g_}
    v_xor_b32 v{t2}, v{t2}, v{i8}
    v_lshl_add_u32 v{DV0}, v{t2}, 4, v{t1}
    v_add_u32 v{DV1}, 1024, v{DV0}""")
    b(f"""v_mul_u32_u24 v{t1}, 1152, v{ihi}
    v_lshl_add_u32 v{t1}, v{t2}, 4, v{t1}
    s_lshl_b32 s70, s{sWAVE}, 7
    v_add_u32 v{VWO}, s70, v{t1}
    v_lshrrev_b32 v{t1}, 1, v{lane}
    v_mul_u32_u24 v{t1}, 1152, v{t1}
    v_and_b32 v{t2}, 1, v{lane}
    v_lshl_add_u32 v{t1}, v{t2}, 4, v{t1}
    s_lshl_b32 s70, s{sWAVE}, 5
    s_add_u32 s70, s70, 1024
    v_add_u32 v{VWX}, s70, v{t1}""")
    b(f"""v_lshrrev_b32 v{t1}, 3, v{i16}
    v_lshlrev_b32 v{t1}, 10, v{t1}
    v_lshl_add_u32 v{t1}, v{i8}, 7, v{t1}
    v_lshrrev_b32 v{t3}, 1, v{i16}""")
    for s2 in range(2):
        b(f"v_xor_b32 v{t2}, {4*s2}, v{g_}\nv_xor_b32 v{t2}, v{t2}, v{t3}\nv_lshl_add_u32 v{KA+s2}, v{t2}, 4, v{t1}\nv_add_u32 v{KA+2+s2}, 0x10000, v{KA+s2}")
    b(f"""v_lshrrev_b32 v{t1}, 1, v{g_}
    v_lshlrev_b32 v{t1}, 10, v{t1}
    v_and_b32 v{t2}, 1, v{g_}
    v_lshl_add_u32 v{t2}, v{t2}, 2, v{r_}
    v_lshl_add_u32 v{t1}, v{t2}, 7, v{t1}
    v_lshl_add_u32 v{t1}, v{c4}, 3, v{t1}
    v_lshrrev_b32 v{t3}, 1, v{t2}""")
    for tl in range(4):
        b(f"v_xor_b32 v{t2}, {tl}, v{t3}\nv_lshl_add_u32 v{VA+tl}, v{t2}, 5, v{t1}\nv_add_u32 v{VA+4+tl}, 0x10000, v{VA+tl}")
    b("L_restart:")
    b(f"""s_mov_b32 s{sOO}, s62
    s_mov_b32 s{sWOS}, 0
    s_mov_b32 s{sWTS}, s{sWB}
    s_cmp_eq_u32 s{sWAVE}, 3
    s_cbranch_scc1 L_begin3""")
    wave_code(b, 4, "4")
    b(".p2align 6")
    wave_code(b, 3, "3")
    b("L_vote:")
    b(f"""s_cmp_lg_u32 s{sSAFE}, 0
    s_cbranch_scc1 L_done1
    v_mov_b32 v{T0}, s{sFLAG}
    s_lshl_b32 s{sT}, s{sWAVE}, 2
    s_add_u32 s{sT}, s{sT}, {131072+7168}
    v_mov_b32 v{T0+1}, s{sT}
    ds_write_b32 v{T0+1}, v{T0}
    v_mov_b32 v{T0+1}, {131072+7168}
    s_waitcnt lgkmcnt(0)
    s_barrier
    ds_read_b128 v[{T0+4}:{T0+7}], v{T0+1}
    s_waitcnt lgkmcnt(0)
    v_or_b32 v{T0+4}, v{T0+4}, v{T0+5}
    v_or3_b32 v{T0+4}, v{T0+4}, v{T0+6}, v{T0+7}
    v_readfirstlane_b32 s{sT}, v{T0+4}
    s_cmp_eq_u32 s{sT}, 0
    s_cbranch_scc1 L_done1
    s_mov_b32 s{sSAFE}, 1
    s_waitcnt vmcnt(0)
    s_barrier
    s_branch L_restart""")
    b("L_done1:")
    stamp_dump(b, 0, sWAVE)
    b("L_end1:\ns_endpgm")
    return b.L

def resolve_waits(L):
    out = []
    for i, x in enumerate(L):
        if x.startswith("WAITL"):
            tag = x.split()[1]
            n, T = tag[1:].split('.'); T = int(T)
            dst = set(range(AW + 8 * (T % 4), AW + 8 * (T % 4) + 8))
            cnt = 0; found = False
            for y in reversed(out):
                if y.startswith("s_waitcnt") and "lgkmcnt(0)" in y:
                    found = True; cnt = None; break
                if y.startswith("ds_"):
                    I = Ins(y)
                    if any(k == 'a' and r in dst for k, r in I.wr) or (T == 0 and 'need=X' in y):
                        found = True; break
                    cnt += 1
            assert found, x
            if cnt is not None:
                assert cnt <= 15
                out.append(f"s_waitcnt lgkmcnt({cnt})")
        else: out.append(x)
    return out

def expand_trace(L):
    def shift(line, name, it, step):
        if it == 0: return line
        def rep(m):
            k, n = m.group(1), int(m.group(2))
            if name == 'qp':
                if k == 'W': return f"W{n + step*it}"
                if k == 'X': return f"X{n + step*it//2}"
                return m.group(0)
            if k == 'KV': return f"KV{n + step*it}"
            return m.group(0)
        if ';' not in line: return line
        a, c = line.split(';', 1)
        return a + ';' + re.sub(r'\b(KV|W|X)(\d+)\b', rep, c)
    def go(i, stop):
        res = []
        while i < len(L):
            x = L[i]
            if x.startswith("LOOPBEGIN"):
                _, name, cnt, step = x.split(); cnt = int(cnt); step = int(step)
                body, j = go(i + 1, name)
                for it in range(cnt):
                    for y in body:
                        if y == f"LOOPEXIT {name}":
                            if it == cnt - 1: break
                            continue
                        res.append(shift(y, name, it, step))
                i = j + 1; continue
            if x.startswith("LOOPEND") and x.split()[1] == stop: return res, i
            res.append(x); i += 1
        return res, i
    return go(0, None)[0]

def check_protocol(L, label):
    tr = expand_trace(L)
    q = []; done = set(); issued = {}; pub = set(); errs = 0
    for x in tr:
        if x.startswith("L_maxpass"): break
        c = x.split(';', 1)[1] if ';' in x else ''
        if x.startswith("buffer_"):
            m = re.search(r'tag=(\w+)', c); q.append(m.group(1) if m else 'other')
        elif x.startswith("s_waitcnt"):
            m = re.search(r'vmcnt\((\d+)\)', x)
            if m:
                n = int(m.group(1))
                while len(q) > n: done.add(q.pop(0))
            m = re.search(r'needtag=(\w+)', c)
            if m and m.group(1) in q: print(label, "ERR needtag", x); errs += 1
        elif x.startswith("s_barrier"):
            m = re.search(r'pub=([\w,]*)', c)
            if m:
                for t in m.group(1).split(','):
                    if not t: continue
                    if t in q or (t not in done): print(label, "ERR publish not landed", t, x); errs += 1
                    pub.add(t)
        elif x.startswith("ds_read"):
            m = re.search(r'need=(\w+)', c)
            if m and m.group(1) not in pub and m.group(1) not in ('KV64',): print(label, "ERR read unpublished", x); errs += 1
        assert len(q) <= 63, ("vmcnt overflow", x)
    return errs

def finish(L):
    L = resolve_waits(L)
    return L

def strip_markers(L):
    return [x for x in L if not x.startswith(("LOOPBEGIN", "LOOPEND", "LOOPEXIT"))]

def kernel2():
    b = B()
    ACC = 0
    FR = 16
    D = 4
    b("oproj_kernel:")
    b("s_cmp_ge_u32 s2, 240\ns_cbranch_scc1 L_end2")
    if OPT['stamps']: b("s_mov_b32 s96, 0\nv_mov_b32 v14, 0\nv_mov_b32 v15, 0\ns_mov_b32 s97, s2")
    stamp(b)
    b("s_load_dwordx2 s[46:47], s[0:1], 96\ns_load_dwordx2 s[48:49], s[0:1], 80")
    b(f"""s_and_b32 s3, s2, 7
    s_lshr_b32 s2, s2, 3
    v_lshrrev_b32 v1, 6, v0
    s_mul_i32 s20, s2, 43
    s_lshr_b32 s20, s20, 8          ; j/6
    v_readfirstlane_b32 s32, v1
    s_mul_i32 s21, s20, 6
    s_sub_u32 s21, s2, s21          ; nt
    s_and_b32 s22, s3, 3
    s_mul_i32 s22, s22, 5
    s_add_u32 s20, s20, s22         ; mt
    s_lshr_b32 s3, s3, 2            ; blk
    v_and_b32 v2, 63, v0
    v_lshlrev_b32 v2, 4, v2
    v_add_u32 v3, 4096, v2
    s_mul_i32 s22, s3, {O_BLK}
    s_mul_i32 s23, s20, 6144
    s_add_u32 s22, s22, s23
    s_mul_i32 s24, s3, {WOT_BLK}
    s_mul_i32 s25, s21, 6144
    s_add_u32 s24, s24, s25
    s_add_u32 s24, s24, {WOT_OFF}
    s_mul_i32 s34, s32, {32*122880}   ; O soffset
    s_mul_i32 s35, s32, {32*36864}    ; W soffset
    s_waitcnt lgkmcnt(0)
    s_add_u32 s4, s46, s22
    s_addc_u32 s5, s47, 0
    s_sub_u32 s6, {O_BLK}, s23
    s_mov_b32 s7, 0x20000
    s_add_u32 s8, s46, s24
    s_addc_u32 s9, s47, 0
    s_sub_u32 s10, {WOT_BLK}, s25
    s_mov_b32 s11, 0x20000
    s_mov_b32 s12, s48
    s_mov_b32 s13, s49
    s_mov_b32 s14, {8*240*1152*2}
    s_mov_b32 s15, 0x20000""")
    def loads(slot):
        out = []
        for i in range(6):
            r = FR + 48 * slot + 4 * i
            out.append(f"buffer_load_dwordx4 {vr(r,4)}, v{2 if i < 4 else 3}, s[8:11], s35 offen offset:{1024*(i%4)}{K2F[OPT.get('k2f',0)]}")
        for i in range(6):
            r = FR + 48 * slot + 24 + 4 * i
            out.append(f"buffer_load_dwordx4 {vr(r,4)}, v{2 if i < 4 else 3}, s[4:7], s34 offen offset:{1024*(i%4)}{K2F[OPT.get('k2f',0)]}")
        if OPT.get('k2small'):
            out.append("s_xor_b32 s34, s34, 122880*0+8192"); out.append("s_xor_b32 s35, s35, 8192")
        else:
            out.append("s_add_u32 s34, s34, 122880"); out.append("s_add_u32 s35, s35, 36864")
        return out
    for s in range(D): b.ext(loads(s))
    def step(slot, first, prefetch, N):
        b(f"s_waitcnt vmcnt({N})")
        slots = []; gaps = [[] for _ in range(36)]
        for q in range(6):
            for n in range(6):
                acc = ar(ACC + 4 * (6 * q + n), 4)
                slots.append(f"{MF} {acc}, {vr(FR+48*slot+4*n,4)}, {vr(FR+48*slot+24+4*q,4)}, {'0' if first else acc}")
        if prefetch:
            ld = loads(slot)
            for q in range(6): gaps[6 * q + 5].append(ld[6 + q])
            for n in range(6): gaps[30 + n].append(ld[n])
            gaps[35] += ld[12:]
        if OPT.get('k2nomfma'): slots = [x if i % 6 == 5 else None for i, x in enumerate(slots)]
        emit_slots(b, slots, gaps)
    if OPT['stamps']: b("s_waitcnt vmcnt(36)")
    stamp(b)
    for s in range(D): step(s, s == 0, True, 36)
    b("s_mov_b32 s36, 0\n.p2align 3\nL_k2:")
    for s in range(D): step(s, False, True, 36)
    b("s_add_u32 s36, s36, 1\ns_cmp_lt_u32 s36, 6\ns_cbranch_scc1 L_k2")
    for s in range(D): step(s, False, False, 12 * (D - 1 - s))
    stamp(b)
    b("v_lshlrev_b32 v4, 0, v2")
    for w in range(4):
        b(f"s_cmp_eq_u32 s32, {w}\ns_cbranch_scc1 L_red{w}")
    for w in range(4):
        b(f"L_red{w}:")
        cnt = 0
        for q in range(6):
            for n in range(6):
                own = (q // 3) * 2 + (n // 3)
                if own == w: continue
                src = (w - own - 1) % 4
                t = (q % 3) * 3 + n % 3
                addr = own * 27648 + src * 9216 + t * 1024
                base, off = divmod(addr, 65536)
                b(f"ds_write_b128 v{4 if base == 0 else 5}, {ar(ACC+4*(6*q+n),4)} offset:{off}") if True else None
        b("s_waitcnt lgkmcnt(0)\ns_barrier")
        q0, n0 = 3 * (w // 2), 3 * (w % 2)
        for t in range(9):
            for src in range(3):
                addr = w * 27648 + src * 9216 + t * 1024
                base, off = divmod(addr, 65536)
                b(f"ds_read_b128 {vr(FR+12*t+4*src,4)}, v{4 if base == 0 else 5} offset:{off}")
                if (t * 3 + src) == 14: b("s_waitcnt lgkmcnt(8)")
        for t in range(9):
            q, n = q0 + t // 3, n0 + t % 3
            for r in range(4): b(f"v_accvgpr_read_b32 v{FR+128+4*t+r}, a{ACC+4*(6*q+n)+r}")
        b("s_waitcnt lgkmcnt(0)")
        for t in range(9):
            for r in range(4):
                x = FR + 128 + 4 * t + r
                b(f"v_add_f32 v{FR+12*t+r}, v{FR+12*t+r}, v{FR+12*t+4+r}")
                b(f"v_add_f32 v{x}, v{x}, v{FR+12*t+8+r}")
                b(f"v_add_f32 v{x}, v{x}, v{FR+12*t+r}")
            b(f"v_cvt_pk_bf16_f32 v{FR+170+2*t}, v{FR+128+4*t}, v{FR+128+4*t+1}")
            b(f"v_cvt_pk_bf16_f32 v{FR+170+2*t+1}, v{FR+128+4*t+2}, v{FR+128+4*t+3}")
        for t in range(9):
            q, n = q0 + t // 3, n0 + t % 3
            b(f"buffer_store_dwordx2 v[{FR+170+2*t}:{FR+170+2*t+1}], v{6 + (q%3)}, s[12:15], s37 offen offset:{32*n}")
        stamp_dump(b, 1, 32)
        b("s_endpgm")
    b("L_end2:\ns_endpgm")
    i = b.L.index("v_lshlrev_b32 v4, 0, v2")
    setup = f"""v_mov_b32 v4, v2
    v_add_u32 v5, 0x10000, v2
    v_and_b32 v6, 15, v0
    v_mul_u32_u24 v6, 2304, v6
    v_bfe_u32 v7, v0, 4, 2
    v_lshl_add_u32 v6, v7, 3, v6
    v_add_u32 v7, {16*2304}, v6
    v_add_u32 v8, {32*2304}, v6
    s_lshr_b32 s38, s32, 1
    s_mul_i32 s38, s38, {48*2304}
    s_mul_i32 s37, s20, {96*2304}
    s_add_u32 s37, s37, s38
    s_mul_i32 s38, s3, 1152
    s_add_u32 s37, s37, s38
    s_mul_i32 s38, s21, 192
    s_add_u32 s37, s37, s38""".split("\n")
    b.L[i:i+1] = [x.strip() for x in setup]
    return b.L

DESC = """.section .rodata,"a"
.p2align 6
.amdhsa_kernel {name}
  .amdhsa_next_free_vgpr {vgpr}
  .amdhsa_next_free_sgpr 102
  .amdhsa_accum_offset 256
  .amdhsa_group_segment_fixed_size 0
  .amdhsa_kernarg_size 104
  .amdhsa_user_sgpr_count 2
  .amdhsa_user_sgpr_kernarg_segment_ptr 1
  .amdhsa_system_sgpr_workgroup_id_x 1
  .amdhsa_float_denorm_mode_32 3
.end_amdhsa_kernel
"""

def build(**kw):
    OPT.update(kw)
    k1 = finish(kernel1())
    i4 = k1.index("L_begin4:"); i3 = k1.index("L_begin3:")
    e = check_protocol(k1[i4:i3], "w4") + check_protocol(k1[i3:], "w3")
    assert e == 0
    k1 = strip_markers(k1)
    k1, n1, p1 = fix_hazards(k1)
    k2, n2, p2 = fix_hazards(kernel2())
    for p in p1 + p2: print("BRANCH HAZARD", p)
    assert not (p1 or p2)
    hdr = open("cdna_kernels/%s.s.ref" % NAME).read().split("; Override")[0]
    out = hdr
    out += "; generated by my own schedule generator (dev/gen.py); two launches: fused q-proj+attention, then output projection\n"
    if not OPT.get('only2'): out += "; @launch kernel=attn_kernel grid=(256,1,1) block=(256,1,1) lds=163840\n"
    out += "; @launch kernel=oproj_kernel grid=(240,1,1) block=(256,1,1) lds=110592\n"
    out += '.amdgcn_target "amdgcn-amd-amdhsa--gfx950"\n.text\n'
    out += ".globl attn_kernel\n.p2align 8\n.type attn_kernel,@function\n" + "\n".join(k1) + "\n"
    out += ".globl oproj_kernel\n.p2align 8\n.type oproj_kernel,@function\n" + "\n".join(k2) + "\n"
    out += DESC.format(name="attn_kernel", vgpr=512) + DESC.format(name="oproj_kernel", vgpr=400)
    return out, (n1, n2)

if __name__ == "__main__":
    kw = {}
    for a in sys.argv[2:]:
        k, v = a.split('='); kw[k] = int(v)
    s, info = build(**kw)
    open(sys.argv[1], "w").write(s)
    print("nops inserted", info, "bytes", len(s))
```

```python
import re

REG_RE = re.compile(r'\b([vas])(?:(\d+)|\[(\d+):(\d+)\])')

def regs_of(tok):
    out = []
    for m in REG_RE.finditer(tok):
        k = m.group(1)
        if m.group(2) is not None:
            out.append((k, int(m.group(2))))
        else:
            for i in range(int(m.group(3)), int(m.group(4)) + 1):
                out.append((k, i))
    return out

TRANS = ('v_exp_f32', 'v_log_f32', 'v_rcp_f32', 'v_rsq_f32', 'v_sqrt_f32')

class Ins:
    __slots__ = ('text', 'op', 'ops', 'kind', 'wr', 'rd', 'srcc', 'passes')
    def __init__(self, text):
        self.text = text
        t = text.split(';')[0].strip()
        self.op = t.split()[0] if t else ''
        rest = t[len(self.op):].strip()
        self.ops = [x.strip() for x in rest.split(',')] if rest else []
        op = self.op
        self.wr = set(); self.rd = set(); self.srcc = set(); self.passes = 0
        if t.endswith(':') or op.startswith('.') or not t:
            self.kind = 'label'
        elif op.startswith('v_mfma'):
            self.kind = 'mfma'
            self.passes = 4 if '16x16x32' in op else 8
            self.wr = set(regs_of(self.ops[0]))
            self.rd = set(regs_of(self.ops[1]) + regs_of(self.ops[2]))
            self.srcc = set(regs_of(self.ops[3]))
        elif op.startswith('v_'):
            self.kind = 'valu'
            if op.startswith('v_cmp'):
                self.wr = set(regs_of(self.ops[0])) | ({('s', 'vcc')} if self.ops[0] == 'vcc' else set())
                self.rd = set(sum([regs_of(x) for x in self.ops[1:]], []))
            elif op.startswith('v_permlane'):
                self.wr = set(regs_of(self.ops[0]) + regs_of(self.ops[1])); self.rd = set(self.wr)
            else:
                self.wr = set(regs_of(self.ops[0]))
                self.rd = set(sum([regs_of(x) for x in self.ops[1:]], []))
                if op.startswith('v_fmac') or op.startswith('v_writelane'):
                    self.rd |= self.wr
                if '_co_' in op:
                    self.wr.add(('s', 'vcc'))
                    if self.ops[-1] == 'vcc': self.rd.add(('s', 'vcc'))
                elif 'vcc' in self.ops[1:]:
                    self.rd.add(('s', 'vcc'))
        elif op.startswith('ds_read'):
            self.kind = 'dsr'
            self.wr = set(regs_of(self.ops[0])); self.rd = set(regs_of(self.ops[1]))
        elif op.startswith('ds_write'):
            self.kind = 'dsw'
            self.rd = set(sum([regs_of(x) for x in self.ops], []))
        elif op.startswith('buffer_load') or op.startswith('global_load'):
            if ' lds' in t:
                self.kind = 'dma'
                self.rd = set(sum([regs_of(x) for x in self.ops], []))
            else:
                self.kind = 'vload'
                self.wr = set(regs_of(self.ops[0])); self.rd = set(sum([regs_of(x) for x in self.ops[1:]], []))
        elif op.startswith('buffer_store') or op.startswith('global_store') or op.startswith('buffer_atomic') or op.startswith('global_atomic'):
            self.kind = 'vstore'
            self.rd = set(sum([regs_of(x) for x in self.ops], []))
        elif op.startswith('s_'):
            self.kind = 'salu'
            if op in ('s_waitcnt', 's_barrier', 's_nop', 's_endpgm', 's_branch', 's_setprio') or op.startswith('s_cbranch') or op.startswith('s_cmp'):
                if op.startswith('s_cmp'):
                    self.rd = set(sum([regs_of(x) for x in self.ops], []))
            else:
                self.wr = set(regs_of(self.ops[0]))
                if self.ops[0] == 'm0': self.wr = {('s', 'm0')}
                if self.ops[0].startswith('exec'): self.wr = {('s', 'exec')}
                self.rd = set(sum([regs_of(x) for x in self.ops[1:]], []))
                if any(o.startswith('vcc') for o in self.ops[1:]): self.rd.add(('s', 'vcc'))
        else:
            raise ValueError("unknown instr: " + text)
    def states(self):
        if self.kind == 'label': return 0
        if self.op == 's_nop': return int(self.ops[0], 0) + 1
        return 1

def need(p, c):
    n = 0
    if p.kind == 'mfma':
        big = {4: 8, 8: 12}[p.passes]
        if c.kind == 'mfma':
            if p.wr & c.rd: n = max(n, big)
            if p.wr & c.srcc:
                if not (p.wr == c.srcc and p.passes == c.passes): n = max(n, big - 2)
            elif p.wr & c.wr: n = max(n, 0)
        elif c.kind in ('valu', 'dsr', 'dsw', 'vload', 'vstore', 'dma'):
            if p.wr & (c.rd | c.wr): n = max(n, big)
            if c.kind == 'valu' and (p.srcc & c.wr): n = max(n, {4: 3, 8: 7}[p.passes])
    elif p.kind == 'valu':
        vw = {r for r in p.wr if r[0] in 'va'}
        sw = {r for r in p.wr if r[0] == 's'}
        if c.kind == 'mfma' and vw & (c.rd | c.srcc): n = max(n, 2)
        if c.kind == 'valu':
            if p.op.startswith(TRANS) and (vw & c.rd) : n = max(n, 1)
            if c.op.startswith('v_permlane') and vw & c.rd: n = max(n, 2)
            if (c.op.startswith('v_readfirstlane') or c.op.startswith('v_readlane')) and vw & c.rd: n = max(n, 1)
            if sw & c.rd: n = max(n, 2)
        if c.kind in ('dma', 'vload', 'vstore') and sw & c.rd: n = max(n, 5)
        if c.kind == 'salu' and sw & c.rd: n = max(n, 4)
        if c.kind in ('vstore','dsw') and p.op.startswith(TRANS) and vw & c.rd: n = max(n, 1)
    elif p.kind == 'salu':
        if ('s', 'm0') in p.wr and c.kind == 'dma': n = max(n, 1)
    elif p.kind in ('vstore',):
        if c.kind == 'valu' and ('x4' in p.op or 'x3' in p.op) and (set(regs_of(p.ops[0])) & c.wr): n = max(n, 2)
        if c.kind in ('dsr','vload') and ('x4' in p.op or 'x3' in p.op) and (set(regs_of(p.ops[0])) & c.wr): n = max(n, 1)
    return n

MAXD = 14

def fix_hazards(lines, verbose=False):
    ins = [Ins(l) for l in lines]
    out = []
    nn = 0
    for c in ins:
        if c.kind != 'label':
            d = 0; req = 0
            for p in reversed(out):
                if p.kind == 'label': continue
                if p.op in ('s_branch', 's_endpgm'): break
                r = need(p, c)
                if r - d > req: req = r - d
                d += p.states()
                if d >= MAXD: break
            if req > 0:
                out.append(Ins(f"s_nop {req-1}")); nn += 1
                if verbose: print("pad", req, "before", c.text)
        out.append(c)
    labels = {}
    for i, c in enumerate(out):
        t = c.text.split(';')[0].strip()
        if c.kind == 'label' and t.endswith(':'): labels[t[:-1]] = i
    problems = []
    for i, b in enumerate(out):
        if b.op == 's_branch' or b.op.startswith('s_cbranch'):
            tgt = labels.get(b.ops[0])
            if tgt is None: continue
            tail = []; d = 0
            j = i
            while j >= 0 and d < MAXD:
                if out[j].kind != 'label':
                    tail.append((out[j], d)); d += out[j].states()
                j -= 1
            e = 0; j = tgt
            while j < len(out) and e < MAXD:
                c = out[j]
                if c.kind != 'label':
                    for p, dp in tail:
                        dist = dp + e - (0)
                        r = need(p, c)
                        if r > dist:
                            problems.append((p.text, c.text, r, dist))
                    e += c.states()
                    if c.op in ('s_branch', 's_endpgm'): break
                j += 1
    return [c.text for c in out], nn, problems
```

```python
import sys, re
from asmlib import fix_hazards, Ins

NAME = "concat_heads__mha_block_cached__mha_block_cached__near_ridge"
MF = "v_mfma_f32_16x16x32_bf16"
CSCALE = 0x3e0293ee
LTHR = 0x4e800000

O_BLK = 128 * 122880
WOT_OFF = 2 * O_BLK
WOT_BLK = 128 * 36864

class B:
    def __init__(self): self.L = []
    def __call__(self, s):
        for x in s.split("\n"):
            x = x.strip()
            if x: self.L.append(x)
    def ext(self, l): self.L.extend(l)

def vr(b, n): return f"v[{b}:{b+n-1}]"
def ar(b, n): return f"a[{b}:{b+n-1}]"

def emit_slots(b, slots, gaps):
    for i, s in enumerate(slots):
        if s: b(s)
        nv = [x for x in gaps[i] if not x.startswith('v_')]
        v = [x for x in gaps[i] if x.startswith('v_')]
        for x in nv + v: b(x)

S_ = 16; P_ = 48; CI = 64; LS = 80
KA = 84
VA = 88
DK0 = 96; DK1 = 97; DV0 = 98; DV1 = 99
VO = 100
VWO = 101
VWX = 102
VLN = 103
T0 = 108
O_ = 128
XA = 16; WA = 18; DX = 20; DW = 24
AQ = 0; AQ2 = 64; AK = 128; AV = 160; ASP = 192
AX = 0; AW = 64
SX = 4; SW = 8; SK = 12; SV = 16; SO = 20; SWO = 24; SWT = 28
sWAVE = 32; sWB = 33; sKV = 34; sCNT = 35; sHEAD = 36; sSAFE = 37; sFLAG = 38
sXO = 39; sXO2 = 40; sWOFF = 41; sXB = 42; sOO = 43; sC = 44
sT = 46
sH0 = 68; sWOS = 64; sWTS = 65; sSTAMP = 72

OPT = dict(nt_kv=1, nt_w=1, nt_x=0, nt_wo=1, stamps=0, warm=3, of=2)

K2F = ['', ' nt', ' sc1', ' sc0 sc1', ' sc0', ' sc1 nt']
def fl(k): return " nt" if OPT[k] else ""

def dma(voff, srd, soff, off, flag, tag):
    return f"buffer_load_dwordx4 v{voff}, s[{srd}:{srd+3}], {soff} offen offset:{off}{flag} lds ; tag={tag}"

def kv_dma(tile):
    return [dma(DK0, SK, f"s{sKV}", 0, fl('nt_kv'), f"KV{tile}"),
            dma(DK1, SK, f"s{sKV}", 1024, fl('nt_kv'), f"KV{tile}"),
            dma(DV0, SV, f"s{sKV}", 2048, fl('nt_kv'), f"KV{tile}"),
            dma(DV1, SV, f"s{sKV}", 3072, fl('nt_kv'), f"KV{tile}")]

def x_dma(m, nq):
    slot = 32768 if m % 2 else 65536
    out = []
    out.append(f"s_add_u32 m0, s{sXB}, {slot}")
    for j in range(4): out.append(dma(DX + j, SX, f"s{sXO}", 1024 * j, fl('nt_x'), f"X{m}"))
    out.append(f"s_add_u32 m0, s{sXB}, {slot + 4096}")
    for j in range(4 if nq == 4 else 2): out.append(dma(DX + j, SX, f"s{sXO2}", 1024 * j, fl('nt_x'), f"X{m}"))
    out.append(f"s_add_u32 s{sXO}, s{sXO}, 128")
    out.append(f"s_add_u32 s{sXO2}, s{sXO2}, 128")
    return out

def w_dma(n):
    out = [f"s_add_u32 m0, s{sWB}, {98304 + (n % 4) * 16384}"]
    for j in range(4): out.append(dma(DW + j, SW, f"s{sWOFF}", 1024 * j, fl('nt_w'), f"W{n}"))
    if n % 2 == 0: out.append(f"s_add_u32 s{sWOFF}, s{sWOFF}, 256")
    else: out.append(f"s_add_u32 s{sWOFF}, s{sWOFF}, {524288 - 256}")
    return out

def w_reads(n, T):
    sp_, a = T // 2, T % 2
    hl, sp = sp_ // 2, sp_ % 2
    out = []
    for s in range(2):
        for a2 in range(2):
            d = AW + 8 * (T % 4) + 4 * s + 2 * a2
            off = (n % 4) * 16384 + hl * 8192 + (32 * s + 4 * a2) * 128 + 8 * a
            out.append(f"ds_read_b64_tr_b16 {ar(d,2)}, v{WA+sp} offset:{off} ; need=W{n}")
    return out

def x_reads(m, nq):
    out = []
    for q in range(nq):
        for s in range(2):
            d = AX + 32 * (m % 2) + 8 * q + 4 * s
            off = (0 if m % 2 else 32768) + q * 2048
            out.append(f"ds_read_b128 {ar(d,4)}, v{XA+s} offset:{off} ; need=X{m}")
    return out

def qacc(hd, q, T):
    r = 128 + 32 * q + 4 * T
    return vr(r, 4) if hd == 0 else ar(r, 4)

def qproj_stage(b, n, nq):
    hd, m = n % 2, n // 2
    nx = 8 if nq == 4 else 6
    slots = []; gaps = [[] for _ in range(64)]
    for T in range(8):
        for q in range(4):
            for s in range(2):
                if q >= nq: slots.append(None); continue
                acc = qacc(hd, q, T)
                c = "0" if (m == 0 and s == 0) else acc
                slots.append(f"{MF} {acc}, {ar(AW+8*(T%4)+4*s,4)}, {ar(AX+32*(m%2)+8*q+4*s,4)}, {c}")
    start = {3: 5, 4: 12, 5: 19, 6: 26, 7: 33}
    rd = w_reads(n, 2); gaps[0].append(rd[3])
    for T, g in start.items():
        for i, x in enumerate(w_reads(n, T)): gaps[g + i].append(x)
    if n < 17:
        for T, g in ((0, 45), (1, 53)):
            for i, x in enumerate(w_reads(n + 1, T)): gaps[g + i].append(x)
        for i, x in enumerate(w_reads(n + 1, 2)[:3]): gaps[61 + i].append(x)
    xr = []
    if n % 2 == 1 and m + 1 <= 8:
        xr = x_reads(m + 1, nq)
        for x, g in zip(xr, (9, 10, 16, 17, 23, 24, 30, 31)): gaps[g].append(x)
    for T in range(1, 8): gaps[8 * T - 1].append(f"WAITL W{n}.{T}")
    if n < 17: gaps[63].append(f"WAITL W{n+1}.0")
    if n <= 14: N = 8 + nx if n != 14 else 16
    elif n == 15: N = 12
    else: N = 16
    if n == 13: N = 8 + nx
    gaps[43].append(f"s_waitcnt vmcnt({N}) lgkmcnt(0)")
    req = []
    if n + 1 <= 17: req.append(f"W{n+1}")
    if n % 2 == 0 and m + 1 <= 8: req.append(f"X{m+1}")
    if n == 17: req += ["KV0", "KV1"]
    gaps[44].append("s_barrier ; pub=" + ",".join(req))
    if n % 2 == 0 and m + 2 <= 8:
        xd = x_dma(m + 2, nq)
        pos = [0, 1, 2, 3, 4, 8, 9, 10, 11, 16, 17, 18]
        if nq == 3: pos = [0, 1, 2, 3, 4, 8, 9, 10, 17, 18]
        for x, g in zip(xd, pos): gaps[g].append(x)
    if n in (14, 16):
        t0 = 2 if n == 14 else 4
        seq = []
        for t in (t0, t0 + 1):
            seq.append(f"s_add_u32 m0, s{sWB}, {t * 16384}")
            seq += kv_dma(t)
            seq.append(f"s_add_u32 s{sKV}, s{sKV}, 8192")
        for x, g in zip(seq, [0, 1, 2, 3, 4, 5, 8, 9, 10, 11, 16, 17]): gaps[g].append(x)
    if n + 4 <= 17:
        for x, g in zip(w_dma(n + 4), [48, 49, 51, 57, 59, 60]): gaps[g].append(x)
    emit_slots(b, slots, gaps)
    if OPT.get('qstamps'): stamp(b)

def k_reads(unit, tile):
    out = []
    for kt in range(2):
        for s in range(4):
            f = 4 * kt + s
            off = (unit % 4) * 16384 + (2 * (s // 2) + kt) * 4096
            out.append(f"ds_read_b128 {ar(AK+4*f,4)}, v{KA + (s%2) + 2*(unit//4)} offset:{off} ; need=KV{tile}")
    return out

def v_reads(unit, tile):
    out = []
    for T in range(8):
        th, tl = T // 4, T % 4
        for a in range(2):
            off = (unit % 4) * 16384 + (2 * th + a) * 4096 + 2048
            out.append(f"ds_read_b64_tr_b16 {ar(AV+4*T+2*a,2)}, v{VA + tl + 4*(unit//4)} offset:{off} ; need=KV{tile}")
    return out

def softmax_fill(gaps, half, g0, nq, N, lo=None, hi=None):
    for j in range(16):
        q = 2 * half + j // 8; e = j % 8
        if q >= nq: continue
        s = S_ + 8 * q + e
        g = g0 + 2 * j
        items = [(g, f"v_exp_f32 v{s}, v{s}"), (g + 1, f"v_add_f32 v{LS+q}, v{LS+q}, v{s}")]
        if e % 2 == 1: items.append((g + 1, f"v_cvt_pk_bf16_f32 v{P_+4*q+e//2}, v{s-1}, v{s}"))
        for gg, t in items:
            if lo <= gg < hi: gaps[gg % N].append(t)

def qk(q, kt, s, czero=False):
    d = vr(S_ + 8 * q + 4 * kt, 4)
    c = d if s else ("0" if czero else vr(CI + 4 * q, 4))
    return f"{MF} {d}, {ar(AK+4*(4*kt+s),4)}, {ar(AQ+16*q+4*s,4)}, {c}"

def pv(q, T, czero=False):
    d = vr(O_ + 32 * q + 4 * T, 4)
    return f"{MF} {d}, {ar(AV+4*T,4)}, {vr(P_+4*q,4)}, {'0' if czero else d}"

def attn_stage(b, k, nq, extra=None):
    kk = k % 32; u = k % 8
    slots = []; gaps = [[] for _ in range(64)]
    for q in (0, 1):
        for kt in range(2):
            for s in range(4): slots.append(qk(q, kt, s))
    for q in (2, 3):
        for T in range(8): slots.append(pv(q, T, kk == 1) if (q < nq and kk > 0) else None)
    for q in (2, 3):
        for kt in range(2):
            for s in range(4): slots.append(qk(q, kt, s) if q < nq else None)
    for q in (0, 1):
        for T in range(8): slots.append(pv(q, T, kk == 0))
    softmax_fill(gaps, 0, 8, nq, 64, 0, 64)
    softmax_fill(gaps, 1, 40, nq, 64, 0, 64)
    if kk > 0: softmax_fill(gaps, 1, 40, nq, 64, 64, 128)
    for i, x in enumerate(v_reads(u, k)): gaps[26 + i].append(x)
    if k % 2 == 1:
        gaps[46].append("s_waitcnt vmcnt(16) lgkmcnt(0)")
        gaps[47].append(f"s_barrier ; pub=KV{k+1},KV{k+2}")
    else:
        gaps[47].append("s_waitcnt lgkmcnt(0)")
    for i, x in enumerate(k_reads((u + 1) % 8, k + 1)): gaps[48 + i].append(x)
    gaps[63].append("s_waitcnt lgkmcnt(0)")
    gaps[0].append(f"s_add_u32 m0, s{sWB}, {((k + 6) % 8) * 16384}")
    for x, g in zip(kv_dma(k + 6), (1, 5, 9, 13)): gaps[g].append(x)
    gaps[16].append(f"s_add_u32 s{sKV}, s{sKV}, 8192")
    if OPT.get('kvsmall'): gaps[18].append(f"s_and_b32 s{sKV}, s{sKV}, 0xffff")
    if extra:
        for g, x in extra: gaps[g].append(x)
    emit_slots(b, slots, gaps)

def xlane_reduce(b, reg, tmp, op):
    b(f"v_mov_b32 v{tmp}, v{reg}")
    b(f"v_permlane32_swap_b32 v{reg}, v{tmp}")
    b(f"{op} v{reg}, v{reg}, v{tmp}")
    b(f"v_mov_b32 v{tmp}, v{reg}")
    b(f"v_permlane16_swap_b32 v{reg}, v{tmp}")
    b(f"{op} v{reg}, v{reg}, v{tmp}")

def xlane_reduce_multi(b, regs, tmps, op):
    for sw in ("v_permlane32_swap_b32", "v_permlane16_swap_b32"):
        for r, t in zip(regs, tmps): b(f"v_mov_b32 v{t}, v{r}")
        for r, t in zip(regs, tmps): b(f"{sw} v{r}, v{t}")
        for r, t in zip(regs, tmps): b(f"{op} v{r}, v{r}, v{t}")

def stamp(b, idx=None):
    if not OPT['stamps']: return
    b(f"s_memtime s[{sSTAMP}:{sSTAMP+1}]\ns_memrealtime s[{sSTAMP+2}:{sSTAMP+3}]\ns_waitcnt lgkmcnt(0)")
    b(f"s_mov_b32 s95, m0\ns_mov_b32 m0, s96\nv_writelane_b32 v14, s{sSTAMP}, m0\nv_writelane_b32 v15, s{sSTAMP+2}, m0\ns_mov_b32 m0, s95\ns_add_u32 s96, s96, 1")

def stamp_dump(b, k, wave):
    if not OPT['stamps']: return
    b("s_waitcnt vmcnt(0)")
    stamp(b)
    b("s_load_dwordx2 s[92:93], s[0:1], 96\ns_waitcnt lgkmcnt(0)")
    b(f"s_add_u32 s88, s92, {(48+k)*1024*1024}\ns_addc_u32 s89, s93, 0\ns_mov_b32 s90, 0x100000\ns_mov_b32 s91, 0x20000")
    b(f"s_lshl_b32 s94, s97, 2\ns_add_u32 s94, s94, s{wave}\ns_lshl_b32 s94, s94, 9")
    b("v_and_b32 v1, 63, v0\nv_lshlrev_b32 v1, 3, v1")
    b("buffer_store_dwordx2 v[14:15], v1, s[88:91], s94 offen")

def persist_regs(b):
    lane = T0; t1 = T0 + 1; t2 = T0 + 2; t3 = T0 + 3; g_ = T0 + 4; ihi = T0 + 5; i8 = T0 + 6; i16 = T0 + 7; r_ = T0 + 8; c4 = T0 + 9
    b(f"""v_and_b32 v{lane}, 63, v0
    v_lshrrev_b32 v{g_}, 4, v{lane}
    v_lshrrev_b32 v{ihi}, 3, v{lane}
    v_and_b32 v{i8}, 7, v{lane}
    v_and_b32 v{i16}, 15, v{lane}
    v_lshrrev_b32 v{r_}, 2, v{i16}
    v_and_b32 v{c4}, 3, v{lane}
    v_lshlrev_b32 v{VLN}, 4, v{lane}
    s_add_u32 s71, s63, s{sWB}
    v_add_u32 v{VO}, s71, v{VLN}""")
    b(f"""s_and_b32 s70, s{sWAVE}, 1
    s_lshl_b32 s70, s70, 12
    s_lshr_b32 s71, s{sWAVE}, 1
    s_lshl_b32 s71, s71, 7
    s_add_u32 s70, s70, s71
    v_lshlrev_b32 v{t1}, 8, v{ihi}
    v_add_u32 v{t1}, s70, v{t1}
    v_xor_b32 v{t2}, v{i8}, v{g_}
    v_lshl_add_u32 v{DK0}, v{t2}, 4, v{t1}
    v_xor_b32 v{t2}, 4, v{t2}
    v_lshl_add_u32 v{DK1}, v{t2}, 4, v{t1}
    v_add_u32 v{DK1}, 1024, v{DK1}
    v_lshlrev_b32 v{t2}, 1, v{g_}
    v_xor_b32 v{t2}, v{t2}, v{i8}
    v_lshl_add_u32 v{DV0}, v{t2}, 4, v{t1}
    v_add_u32 v{DV1}, 1024, v{DV0}""")
    b(f"""v_mul_u32_u24 v{t1}, 1152, v{ihi}
    v_lshl_add_u32 v{t1}, v{t2}, 4, v{t1}
    s_lshl_b32 s70, s{sWAVE}, 7
    v_add_u32 v{VWO}, s70, v{t1}
    v_lshrrev_b32 v{t1}, 1, v{lane}
    v_mul_u32_u24 v{t1}, 1152, v{t1}
    v_and_b32 v{t2}, 1, v{lane}
    v_lshl_add_u32 v{t1}, v{t2}, 4, v{t1}
    s_lshl_b32 s70, s{sWAVE}, 5
    s_add_u32 s70, s70, 1024
    v_add_u32 v{VWX}, s70, v{t1}""")
    b(f"""v_lshrrev_b32 v{t1}, 3, v{i16}
    v_lshlrev_b32 v{t1}, 10, v{t1}
    v_lshl_add_u32 v{t1}, v{i8}, 7, v{t1}
    v_lshrrev_b32 v{t3}, 1, v{i16}""")
    for s2 in range(2):
        b(f"v_xor_b32 v{t2}, {4*s2}, v{g_}\nv_xor_b32 v{t2}, v{t2}, v{t3}\nv_lshl_add_u32 v{KA+s2}, v{t2}, 4, v{t1}\nv_add_u32 v{KA+2+s2}, 0x10000, v{KA+s2}")
    b(f"""v_lshrrev_b32 v{t1}, 1, v{g_}
    v_lshlrev_b32 v{t1}, 10, v{t1}
    v_and_b32 v{t2}, 1, v{g_}
    v_lshl_add_u32 v{t2}, v{t2}, 2, v{r_}
    v_lshl_add_u32 v{t1}, v{t2}, 7, v{t1}
    v_lshl_add_u32 v{t1}, v{c4}, 3, v{t1}
    v_lshrrev_b32 v{t3}, 1, v{t2}""")
    for tl in range(4):
        b(f"v_xor_b32 v{t2}, {tl}, v{t3}\nv_lshl_add_u32 v{VA+tl}, v{t2}, 5, v{t1}\nv_add_u32 v{VA+4+tl}, 0x10000, v{VA+tl}")

def warm_code(b, sfx):
    if not OPT.get('warm'): return
    b(f"""s_getpc_b64 s[{sT}:{sT+1}]
    L_pc{sfx}:
    s_sub_u32 s{sT}, s{sT}, L_pc{sfx}-attn_kernel
    s_subb_u32 s{sT+1}, s{sT+1}, 0
    v_and_b32 v2, 63, v0
    v_lshlrev_b32 v2, 7, v2
    v_lshl_add_u32 v5, s{sWAVE}, 13, v2""")
    for i in range(OPT['warm']):
        b(f"""v_min_u32 v2, L_codeend-attn_kernel-4, v5
        v_mov_b32 v3, s{sT+1}
        v_add_co_u32 v2, vcc, s{sT}, v2
        v_addc_co_u32 v3, vcc, 0, v3, vcc
        global_load_dword v4, v[2:3], off""")
        if i + 1 < OPT['warm']: b("v_add_u32 v5, 0x8000, v5")

def wave_code(b, nq, sfx):
    nx = 8 if nq == 4 else 6
    b(f"L_begin{sfx}:")
    lane = T0; t1 = T0 + 1; t2 = T0 + 2; t3 = T0 + 3; g_ = T0 + 4; ihi = T0 + 5; i8 = T0 + 6
    b(f"""v_and_b32 v{lane}, 63, v0
    v_lshrrev_b32 v{g_}, 4, v{lane}
    v_lshrrev_b32 v{ihi}, 3, v{lane}
    v_and_b32 v{i8}, 7, v{lane}""")
    b(f"s_lshl_b32 s{sT}, s{sWAVE}, 6")
    b(f"v_add_u32 v{t1}, s{sT}, v{ihi}")
    b(f"v_mul_u32_u24 v{t1}, 1152, v{t1}")
    for j in range(4):
        b(f"v_xor_b32 v{t2}, {4*(j%2)}, v{g_}")
        b(f"v_xor_b32 v{t2}, v{t2}, v{i8}")
        b(f"v_lshl_add_u32 v{t2}, v{t2}, 4, v{t1}")
        b(f"v_add_u32 v{DX+j}, {8*j*1152 - 1024*j}, v{t2}")
    b(f"""s_and_b32 s{sT}, s{sWAVE}, 1
    s_lshl_b32 s{sT}, s{sT}, 18
    s_lshr_b32 s{sT+1}, s{sWAVE}, 1
    s_lshl_b32 s{sT+1}, s{sT+1}, 7
    s_add_u32 s{sT}, s{sT}, s{sT+1}
    v_lshlrev_b32 v{t1}, 13, v{ihi}
    v_add_u32 v{t1}, s{sT}, v{t1}
    v_lshrrev_b32 v{t2}, 2, v{i8}
    v_xor_b32 v{t2}, v{t2}, v{g_}
    v_and_b32 v{t2}, 1, v{t2}
    v_lshl_add_u32 v{t1}, v{t2}, 6, v{t1}
    v_and_b32 v{t2}, 3, v{i8}
    v_lshl_add_u32 v{t1}, v{t2}, 4, v{t1}""")
    for j in range(4): b(f"v_add_u32 v{DW+j}, {8*j*8192 - 1024*j}, v{t1}")
    b(f"""s_mov_b32 s{sXO}, 0
    s_mov_b32 s{sXO2}, 36864
    s_mov_b32 s{sWOFF}, 0
    s_mov_b32 s{sKV}, 0
    s_mov_b32 s{sHEAD}, 0""")
    b.ext(x_dma(0, nq)); b.ext(w_dma(0)); b.ext(w_dma(1)); b.ext(x_dma(1, nq)); b.ext(w_dma(2)); b.ext(w_dma(3))
    warm_code(b, sfx)
    persist_regs(b)
    for t in (0, 1):
        b(f"s_add_u32 m0, s{sWB}, {t*16384}"); b.ext(kv_dma(t)); b(f"s_add_u32 s{sKV}, s{sKV}, 8192")
    i16 = T0 + 7; r_ = T0 + 8; c4 = T0 + 9
    b(f"""v_and_b32 v{i16}, 15, v{lane}
    v_lshrrev_b32 v{r_}, 2, v{i16}
    v_and_b32 v{c4}, 3, v{lane}
    v_lshlrev_b32 v{t1}, 7, v{i16}
    v_add_u32 v{t1}, s{sXB}, v{t1}
    v_add_u32 v{t1}, 32768, v{t1}
    v_lshrrev_b32 v{t3}, 1, v{i16}""")
    for s in range(2):
        b(f"v_xor_b32 v{t2}, {4*s}, v{g_}")
        b(f"v_xor_b32 v{t2}, v{t2}, v{t3}")
        b(f"v_lshl_add_u32 v{XA+s}, v{t2}, 4, v{t1}")
    b(f"""v_lshl_add_u32 v{t1}, v{g_}, 3, v{r_}
    v_lshlrev_b32 v{t1}, 7, v{t1}
    v_lshl_add_u32 v{t1}, v{c4}, 4, v{t1}
    v_add_u32 v{t1}, 98304, v{t1}
    v_lshrrev_b32 v{t3}, 1, v{r_}""")
    for sp in range(2):
        b(f"v_xor_b32 v{t2}, {sp}, v{t3}")
        b(f"v_lshl_add_u32 v{WA+sp}, v{t2}, 6, v{t1}")
    stamp(b, 0)
    b(f"s_waitcnt vmcnt({4 + nx + 4 + 4 + 8 + OPT.get('warm',0)})")
    b("s_barrier ; pub=X0,W0")
    b.ext(x_reads(0, nq))
    for T in (0, 1): b.ext(w_reads(0, T))
    b.ext(w_reads(0, 2)[:3])
    b("WAITL W0.0")
    stamp(b, 1)
    for n in range(0, 4): qproj_stage(b, n, nq)
    b(f"s_mov_b32 s{sCNT}, 0")
    b(f".p2align 3\nL_qp{sfx}:")
    b("LOOPBEGIN qp 2 4")
    for n in range(4, 8): qproj_stage(b, n, nq)
    b(f"s_add_u32 s{sCNT}, s{sCNT}, 1\ns_cmp_lt_u32 s{sCNT}, 2\ns_cbranch_scc1 L_qp{sfx}")
    b("LOOPEND qp")
    for n in range(12, 18): qproj_stage(b, n, nq)
    stamp(b, 2)
    def conv(hd, q, sp):
        for a in range(2):
            T = 2 * sp + a
            for h in range(2):
                r = 128 + 32 * q + 4 * T + 2 * h
                tmp = T0 + 4 * ((2 * a + h) % 4)
                if hd == 1:
                    b(f"v_accvgpr_read_b32 v{tmp}, a{r}\nv_accvgpr_read_b32 v{tmp+1}, a{r+1}")
                    src = tmp
                else: src = r
                b(f"v_pk_mul_f32 v[{tmp}:{tmp+1}], v[{src}:{src+1}], s[{sC}:{sC+1}]")
                b(f"v_cvt_pk_bf16_f32 v{tmp+2}, v{tmp}, v{tmp+1}")
                b(f"v_accvgpr_write_b32 a{64*hd + 16*q + 4*sp + 2*a + h}, v{tmp+2}")
    for sp in range(4): conv(1, 0, sp)
    b.ext(k_reads(0, 0))
    for q in range(1, nq):
        for sp in range(4): conv(1, q, sp)
    for q in range(nq):
        for sp in range(4): conv(0, q, sp)
    b("s_waitcnt lgkmcnt(0)")
    stamp(b, 3)
    b(f".p2align 3\nL_head{sfx}:")
    b("LOOPBEGIN head 2 32")
    b(f"s_cmp_lg_u32 s{sSAFE}, 0\ns_cbranch_scc1 L_maxpass{sfx}")
    for q in range(nq):
        for s in range(4): b(qk(q, 0, s, czero=True))
    ms = [S_ + 8 * q for q in range(nq)]
    for q in range(nq):
        s = S_ + 8 * q
        b(f"v_max3_f32 v{s}, v{s}, v{s+1}, v{s+2}\nv_max_f32 v{s}, v{s}, v{s+3}")
    b(f"L_maxdone{sfx}:")
    xlane_reduce_multi(b, ms, [T0 + q for q in range(nq)], "v_max_f32")
    for q in range(nq):
        for r in range(4): b(f"v_sub_f32 v{CI+4*q+r}, 0, v{S_+8*q}")
        b(f"v_mov_b32 v{LS+q}, 0")
    b(f"s_add_u32 m0, s{sXB}, 131072")
    for j in range(4):
        b(f"s_add_u32 s{sT}, s{sWOS}, {8192*j}")
        b(dma(VWO, SWO, f"s{sT}", 1024 * j, fl('nt_wo'), "WO"))
    b(f"s_cmp_lg_u32 s{sHEAD}, 0\ns_cbranch_scc1 L_nox{sfx}")
    b(f"s_add_u32 m0, s{sXB}, {131072 + 4096}")
    b(dma(VWX, SWO, "0", 0, fl('nt_wo'), "WO"))
    b(f"L_nox{sfx}:")
    stamp(b)
    attn_stage(b, 0, nq)
    attn_stage(b, 1, nq)
    b(f"s_mov_b32 s{sCNT}, 0")
    b(f".p2align 3\nL_at{sfx}:")
    b("LOOPBEGIN at 4 8")
    for k in range(2, 8):
        ex = None
        if k == 7: ex = [(60, f"s_add_u32 s{sCNT}, s{sCNT}, 1"), (62, f"s_cmp_eq_u32 s{sCNT}, 4")]
        attn_stage(b, k, nq, ex)
    b(f"s_cbranch_scc1 L_atx{sfx}")
    b("LOOPEXIT at")
    for k in range(8, 10): attn_stage(b, k, nq)
    b(f"s_branch L_at{sfx}")
    b("LOOPEND at")
    b(f"L_atx{sfx}:")
    slots = []; gaps = [[] for _ in range(64)]
    for q in (2, 3):
        for T in range(8): slots.append(pv(q, T) if q < nq else None)
    softmax_fill(gaps, 1, 40, nq, 64, 64, 128)
    emit_slots(b, slots, gaps)
    stamp(b, 4)
    ls = [LS + q for q in range(nq)]
    xlane_reduce_multi(b, ls, [T0 + q for q in range(nq)], "v_add_f32")
    b(f"v_mov_b32 v{T0+8}, {LTHR}")
    for q in range(nq):
        b(f"v_cmp_nlt_f32 vcc, v{LS+q}, v{T0+8}")
        b(f"s_or_b32 s{sFLAG}, s{sFLAG}, vcc_lo\ns_or_b32 s{sFLAG}, s{sFLAG}, vcc_hi")
        b(f"v_rcp_f32 v{LS+q}, v{LS+q}")
    b(f"s_add_u32 s{sT}, s{sXB}, 65536")
    for tl in range(4):
        b(f"v_add_u32 v{T0+12+tl}, s{sT}, v{VA+4+tl}")
    b("s_waitcnt vmcnt(16) ; needtag=WO")
    for tl in range(4):
        for a in range(2):
            b(f"ds_read_b64_tr_b16 v[{S_+4*tl+2*a}:{S_+4*tl+2*a+1}], v{T0+12+tl} offset:{2048*a}")
    cnt = 0
    for q in range(nq):
        for sp in range(4):
            d = P_ + 4 * (cnt % 4); cnt += 1
            for a in range(2):
                for h in range(2):
                    r = O_ + 32 * q + 4 * (2 * sp + a) + 2 * h
                    b(f"v_mul_f32 v{r}, v{r}, v{LS+q}\nv_mul_f32 v{r+1}, v{r+1}, v{LS+q}")
                    b(f"v_cvt_pk_bf16_f32 v{d+2*a+h}, v{r}, v{r+1}")
            b(f"s_add_u32 s{sT}, s{sOO}, {sp*122880}")
            b(f"buffer_store_dwordx4 {vr(d,4)}, v{VO}, s[{SO}:{SO+3}], s{sT} offen offset:{1024*q}{K2F[OPT.get('of',0)]}")
    b("s_waitcnt lgkmcnt(0)")
    for tl in range(4):
        b(f"buffer_store_dwordx4 {vr(S_+4*tl,4)}, v{VLN}, s[{SWT}:{SWT+3}], s{sWTS} offen offset:{1024*tl}{K2F[OPT.get('of',0)]}")
    stamp(b)
    b(f"s_cmp_lg_u32 s{sHEAD}, 0\ns_cbranch_scc1 L_fin{sfx}")
    b(f"""v_and_b32 v{T0}, 63, v0
    v_lshlrev_b32 v{T0}, 3, v{T0}
    v_add_u32 v{T0}, s{sXB}, v{T0}
    v_add_u32 v{T0}, {131072+4096}, v{T0}
    ds_read_b64_tr_b16 v[{S_+16}:{S_+17}], v{T0} offset:0
    ds_read_b64_tr_b16 v[{S_+18}:{S_+19}], v{T0} offset:512
    s_lshl_b32 s{sT}, s{sWAVE}, 10
    s_add_u32 s{sT}, s{sT}, 32768""")
    for i in range(16 * nq): b(f"v_accvgpr_mov_b32 a{AQ+i}, a{AQ2+i}")
    b(f"""s_waitcnt lgkmcnt(0)
    buffer_store_dwordx4 {vr(S_+16,4)}, v{VLN}, s[{SWT}:{SWT+3}], s{sT} offen
    s_add_u32 s{sOO}, s{sOO}, {4*122880}
    s_add_u32 s{sWOS}, s{sWOS}, 512
    s_add_u32 s{sWTS}, s{sWTS}, 16384
    s_mov_b32 s{sHEAD}, 1
    s_branch L_head{sfx}""")
    b("LOOPEND head")
    b(f"L_fin{sfx}:")
    b(f"s_branch L_vote")
    b(f"L_maxpass{sfx}:")
    for q in range(nq): b(f"v_mov_b32 v{T0+8+q}, 0xff800000")
    for s2 in range(2): b(f"v_add_u32 v{T0+12+s2}, 65536, v{KA+2+s2}")
    b(f"s_lshl_b32 s{sT}, s{sHEAD}, 18\ns_mov_b32 s{sCNT}, 0")
    b(f"L_mp{sfx}:")
    b(f"s_barrier\ns_add_u32 m0, s{sWB}, 131072")
    b(dma(DK0, SK, f"s{sT}", 0, "", "MP")); b(dma(DK1, SK, f"s{sT}", 1024, "", "MP"))
    b("s_waitcnt vmcnt(0)\ns_barrier")
    for kt in range(2):
        for s in range(4):
            b(f"ds_read_b128 {ar(ASP+4*(4*kt+s),4)}, v{T0+12+s%2} offset:{(2*(s//2)+kt)*4096}")
    b("s_waitcnt lgkmcnt(0)")
    for q in range(nq):
        for kt in range(2):
            for s in range(4):
                d = vr(S_ + 8 * q + 4 * kt, 4)
                b(f"{MF} {d}, {ar(ASP+4*(4*kt+s),4)}, {ar(AQ+16*q+4*s,4)}, {d if s else '0'}")
    for q in range(nq):
        for e in range(0, 8, 2): b(f"v_max3_f32 v{T0+8+q}, v{T0+8+q}, v{S_+8*q+e}, v{S_+8*q+e+1}")
    b(f"s_add_u32 s{sT}, s{sT}, 8192\ns_add_u32 s{sCNT}, s{sCNT}, 1\ns_cmp_lt_u32 s{sCNT}, 32\ns_cbranch_scc1 L_mp{sfx}")
    b("s_barrier")
    for q in range(nq): b(f"v_mov_b32 v{S_+8*q}, v{T0+8+q}")
    b(f"s_branch L_maxdone{sfx}")

def kernel1():
    b = B()
    b("attn_kernel:")
    b("s_cmp_ge_u32 s2, 256\ns_cbranch_scc1 L_end1")
    if OPT['stamps']: b("s_mov_b32 s96, 0\nv_mov_b32 v14, 0\nv_mov_b32 v15, 0")
    stamp(b)
    b("s_load_dwordx16 s[48:63], s[0:1], 0\ns_load_dwordx4 s[64:67], s[0:1], 64\ns_load_dwordx2 s[46:47], s[0:1], 96")
    b(f"""s_mov_b32 s97, s2
    s_and_b32 s3, s2, 7
    s_lshr_b32 s2, s2, 3
    v_lshrrev_b32 v1, 6, v0
    s_and_b32 s68, s3, 1
    s_lshl_b32 s68, s68, 2
    s_and_b32 s69, s2, 3
    s_add_u32 s68, s68, s69        ; b
    v_readfirstlane_b32 s{sWAVE}, v1
    s_bfe_u32 s69, s3, 0x10001
    s_lshl_b32 s69, s69, 3
    s_lshr_b32 s70, s2, 2
    s_add_u32 s69, s69, s70        ; hp
    s_lshr_b32 s3, s3, 2           ; blk
    s_lshl_b32 s{sWB}, s{sWAVE}, 12
    s_lshl_b32 s{sXB}, s{sWAVE}, 13
    s_mov_b32 s{sC}, {CSCALE}
    s_mov_b32 s{sC+1}, {CSCALE}
    s_mov_b32 s{sSAFE}, 0
    s_mov_b32 s{sFLAG}, 0
    s_cmp_eq_u32 s3, 0
    s_waitcnt lgkmcnt(0)
    s_cselect_b64 s[48:49], s[48:49], s[58:59]
    s_cselect_b64 s[50:51], s[50:51], s[60:61]
    s_cselect_b64 s[52:53], s[52:53], s[62:63]
    s_cselect_b64 s[54:55], s[54:55], s[64:65]
    s_cselect_b64 s[56:57], s[56:57], s[66:67]""")
    b(f"""s_mul_i32 s71, s68, 276480
    s_add_u32 s{SX}, s48, s71
    s_addc_u32 s{SX+1}, s49, 0
    s_mov_b32 s{SX+2}, 276480
    s_mov_b32 s{SX+3}, 0x20000
    s_lshl_b32 s71, s69, 9
    s_add_u32 s{SW}, s54, s71
    s_addc_u32 s{SW+1}, s55, 0
    s_sub_u32 s{SW+2}, 4718592, s71
    s_mov_b32 s{SW+3}, 0x20000
    s_lshl_b32 s71, s68, 4
    s_add_u32 s71, s71, s69
    s_lshl_b32 s70, s71, 19
    s_add_u32 s{SK}, s50, s70
    s_addc_u32 s{SK+1}, s51, 0
    s_mov_b32 s{SK+2}, 524288
    s_mov_b32 s{SK+3}, 0x20000
    s_add_u32 s{SV}, s52, s70
    s_addc_u32 s{SV+1}, s53, 0
    s_sub_u32 s{SV}, s{SV}, 2048
    s_subb_u32 s{SV+1}, s{SV+1}, 0
    s_mov_b32 s{SV+2}, {524288+2048}
    s_mov_b32 s{SV+3}, 0x20000
    s_mul_i32 s70, s3, {O_BLK}
    s_add_u32 s{SO}, s46, s70
    s_addc_u32 s{SO+1}, s47, 0
    s_mov_b32 s{SO+2}, {O_BLK}
    s_mov_b32 s{SO+3}, 0x20000
    s_mul_i32 s70, s71, 36864
    s_add_u32 s{SWO}, s56, s70
    s_addc_u32 s{SWO+1}, s57, 0
    s_mov_b32 s{SWO+2}, 36864
    s_mov_b32 s{SWO+3}, 0x20000
    s_mul_i32 s71, s3, {WOT_BLK}
    s_add_u32 s70, s70, s71
    s_add_u32 s70, s70, {WOT_OFF}
    s_add_u32 s{SWT}, s46, s70
    s_addc_u32 s{SWT+1}, s47, 0
    s_mov_b32 s{SWT+2}, 36864
    s_mov_b32 s{SWT+3}, 0x20000
    s_mul_i32 s62, s69, {8*122880}
    s_mul_i32 s63, s68, 15360        ; b*15*1024""")
    b("L_restart:")
    b(f"""s_mov_b32 s{sOO}, s62
    s_mov_b32 s{sWOS}, 0
    s_mov_b32 s{sWTS}, s{sWB}
    s_cmp_eq_u32 s{sWAVE}, 3
    s_cbranch_scc1 L_begin3""")
    wave_code(b, 4, "4")
    b(".p2align 6")
    wave_code(b, 3, "3")
    b("L_vote:")
    b(f"""s_cmp_lg_u32 s{sSAFE}, 0
    s_cbranch_scc1 L_done1
    v_mov_b32 v{T0}, s{sFLAG}
    s_lshl_b32 s{sT}, s{sWAVE}, 2
    s_add_u32 s{sT}, s{sT}, {131072+7168}
    v_mov_b32 v{T0+1}, s{sT}
    ds_write_b32 v{T0+1}, v{T0}
    v_mov_b32 v{T0+1}, {131072+7168}
    s_waitcnt lgkmcnt(0)
    s_barrier
    ds_read_b128 v[{T0+4}:{T0+7}], v{T0+1}
    s_waitcnt lgkmcnt(0)
    v_or_b32 v{T0+4}, v{T0+4}, v{T0+5}
    v_or3_b32 v{T0+4}, v{T0+4}, v{T0+6}, v{T0+7}
    v_readfirstlane_b32 s{sT}, v{T0+4}
    s_cmp_eq_u32 s{sT}, 0
    s_cbranch_scc1 L_done1
    s_mov_b32 s{sSAFE}, 1
    s_waitcnt vmcnt(0)
    s_barrier
    s_branch L_restart""")
    b("L_done1:")
    stamp_dump(b, 0, sWAVE)
    b("L_end1:\ns_endpgm")
    return b.L

def resolve_waits(L):
    out = []
    for i, x in enumerate(L):
        if x.startswith("WAITL"):
            tag = x.split()[1]
            n, T = tag[1:].split('.'); T = int(T)
            dst = set(range(AW + 8 * (T % 4), AW + 8 * (T % 4) + 8))
            cnt = 0; found = False
            for y in reversed(out):
                if y.startswith("s_waitcnt") and "lgkmcnt(0)" in y:
                    found = True; cnt = None; break
                if y.startswith("ds_"):
                    I = Ins(y)
                    if any(k == 'a' and r in dst for k, r in I.wr) or (T == 0 and 'need=X' in y):
                        found = True; break
                    cnt += 1
            assert found, x
            if cnt is not None:
                assert cnt <= 15
                out.append(f"s_waitcnt lgkmcnt({cnt})")
        else: out.append(x)
    return out

def expand_trace(L):
    def shift(line, name, it, step):
        if it == 0: return line
        def rep(m):
            k, n = m.group(1), int(m.group(2))
            if name == 'qp':
                if k == 'W': return f"W{n + step*it}"
                if k == 'X': return f"X{n + step*it//2}"
                return m.group(0)
            if k == 'KV': return f"KV{n + step*it}"
            return m.group(0)
        if ';' not in line: return line
        a, c = line.split(';', 1)
        return a + ';' + re.sub(r'\b(KV|W|X)(\d+)\b', rep, c)
    def go(i, stop):
        res = []
        while i < len(L):
            x = L[i]
            if x.startswith("LOOPBEGIN"):
                _, name, cnt, step = x.split(); cnt = int(cnt); step = int(step)
                body, j = go(i + 1, name)
                for it in range(cnt):
                    for y in body:
                        if y == f"LOOPEXIT {name}":
                            if it == cnt - 1: break
                            continue
                        res.append(shift(y, name, it, step))
                i = j + 1; continue
            if x.startswith("LOOPEND") and x.split()[1] == stop: return res, i
            res.append(x); i += 1
        return res, i
    return go(0, None)[0]

def check_protocol(L, label):
    tr = expand_trace(L)
    q = []; done = set(); issued = {}; pub = set(); errs = 0
    for x in tr:
        if x.startswith("L_maxpass"): break
        c = x.split(';', 1)[1] if ';' in x else ''
        if x.startswith("buffer_") or x.startswith("global_"):
            m = re.search(r'tag=(\w+)', c); q.append(m.group(1) if m else 'other')
        elif x.startswith("s_waitcnt"):
            m = re.search(r'vmcnt\((\d+)\)', x)
            if m:
                n = int(m.group(1))
                while len(q) > n: done.add(q.pop(0))
            m = re.search(r'needtag=(\w+)', c)
            if m and m.group(1) in q: print(label, "ERR needtag", x); errs += 1
        elif x.startswith("s_barrier"):
            m = re.search(r'pub=([\w,]*)', c)
            if m:
                for t in m.group(1).split(','):
                    if not t: continue
                    if t in q or (t not in done): print(label, "ERR publish not landed", t, x); errs += 1
                    pub.add(t)
        elif x.startswith("ds_read"):
            m = re.search(r'need=(\w+)', c)
            if m and m.group(1) not in pub and m.group(1) not in ('KV64',): print(label, "ERR read unpublished", x); errs += 1
        assert len(q) <= 63, ("vmcnt overflow", x)
    return errs

def finish(L):
    L = resolve_waits(L)
    return L

def strip_markers(L):
    return [x for x in L if not x.startswith(("LOOPBEGIN", "LOOPEND", "LOOPEXIT"))]

def kernel2():
    b = B()
    ACC = 0
    FR = 16
    D = 4
    b("oproj_kernel:")
    b("s_cmp_ge_u32 s2, 240\ns_cbranch_scc1 L_end2")
    if OPT['stamps']: b("s_mov_b32 s96, 0\nv_mov_b32 v14, 0\nv_mov_b32 v15, 0\ns_mov_b32 s97, s2")
    stamp(b)
    b("s_load_dwordx2 s[46:47], s[0:1], 96\ns_load_dwordx2 s[48:49], s[0:1], 80")
    b(f"""s_and_b32 s3, s2, 7
    s_lshr_b32 s2, s2, 3
    v_lshrrev_b32 v1, 6, v0
    s_mul_i32 s20, s2, 43
    s_lshr_b32 s20, s20, 8          ; j/6
    v_readfirstlane_b32 s32, v1
    s_mul_i32 s21, s20, 6
    s_sub_u32 s21, s2, s21          ; nt
    s_and_b32 s22, s3, 3
    s_mul_i32 s22, s22, 5
    s_add_u32 s20, s20, s22         ; mt
    s_lshr_b32 s3, s3, 2            ; blk
    v_and_b32 v2, 63, v0
    v_lshlrev_b32 v2, 4, v2
    v_add_u32 v3, 4096, v2
    s_mul_i32 s22, s3, {O_BLK}
    s_mul_i32 s23, s20, 6144
    s_add_u32 s22, s22, s23
    s_mul_i32 s24, s3, {WOT_BLK}
    s_mul_i32 s25, s21, 6144
    s_add_u32 s24, s24, s25
    s_add_u32 s24, s24, {WOT_OFF}
    s_mul_i32 s34, s32, {32*122880}   ; O soffset
    s_mul_i32 s35, s32, {32*36864}    ; W soffset
    s_waitcnt lgkmcnt(0)
    s_add_u32 s4, s46, s22
    s_addc_u32 s5, s47, 0
    s_sub_u32 s6, {O_BLK}, s23
    s_mov_b32 s7, 0x20000
    s_add_u32 s8, s46, s24
    s_addc_u32 s9, s47, 0
    s_sub_u32 s10, {WOT_BLK}, s25
    s_mov_b32 s11, 0x20000
    s_mov_b32 s12, s48
    s_mov_b32 s13, s49
    s_mov_b32 s14, {8*240*1152*2}
    s_mov_b32 s15, 0x20000""")
    def loads(slot):
        out = []
        for i in range(6):
            r = FR + 48 * slot + 4 * i
            out.append(f"buffer_load_dwordx4 {vr(r,4)}, v{2 if i < 4 else 3}, s[8:11], s35 offen offset:{1024*(i%4)}{K2F[OPT.get('k2f',0)]}")
        for i in range(6):
            r = FR + 48 * slot + 24 + 4 * i
            out.append(f"buffer_load_dwordx4 {vr(r,4)}, v{2 if i < 4 else 3}, s[4:7], s34 offen offset:{1024*(i%4)}{K2F[OPT.get('k2f',0)]}")
        if OPT.get('k2small'):
            out.append("s_xor_b32 s34, s34, 122880*0+8192"); out.append("s_xor_b32 s35, s35, 8192")
        else:
            out.append("s_add_u32 s34, s34, 122880"); out.append("s_add_u32 s35, s35, 36864")
        return out
    for s in range(D): b.ext(loads(s))
    def step(slot, first, prefetch, N):
        b(f"s_waitcnt vmcnt({N})")
        slots = []; gaps = [[] for _ in range(36)]
        for q in range(6):
            for n in range(6):
                acc = ar(ACC + 4 * (6 * q + n), 4)
                slots.append(f"{MF} {acc}, {vr(FR+48*slot+4*n,4)}, {vr(FR+48*slot+24+4*q,4)}, {'0' if first else acc}")
        if prefetch:
            ld = loads(slot)
            for q in range(6): gaps[6 * q + 5].append(ld[6 + q])
            for n in range(6): gaps[30 + n].append(ld[n])
            gaps[35] += ld[12:]
        if OPT.get('k2nomfma'): slots = [x if i % 6 == 5 else None for i, x in enumerate(slots)]
        emit_slots(b, slots, gaps)
    if OPT['stamps']: b("s_waitcnt vmcnt(36)")
    stamp(b)
    for s in range(D): step(s, s == 0, True, 36)
    b("s_mov_b32 s36, 0\n.p2align 3\nL_k2:")
    for s in range(D): step(s, False, True, 36)
    b("s_add_u32 s36, s36, 1\ns_cmp_lt_u32 s36, 6\ns_cbranch_scc1 L_k2")
    for s in range(D): step(s, False, False, 12 * (D - 1 - s))
    stamp(b)
    b("v_lshlrev_b32 v4, 0, v2")
    for w in range(4):
        b(f"s_cmp_eq_u32 s32, {w}\ns_cbranch_scc1 L_red{w}")
    for w in range(4):
        b(f"L_red{w}:")
        cnt = 0
        for q in range(6):
            for n in range(6):
                own = (q // 3) * 2 + (n // 3)
                if own == w: continue
                src = (w - own - 1) % 4
                t = (q % 3) * 3 + n % 3
                addr = own * 27648 + src * 9216 + t * 1024
                base, off = divmod(addr, 65536)
                b(f"ds_write_b128 v{4 if base == 0 else 5}, {ar(ACC+4*(6*q+n),4)} offset:{off}") if True else None
        b("s_waitcnt lgkmcnt(0)\ns_barrier")
        q0, n0 = 3 * (w // 2), 3 * (w % 2)
        for t in range(9):
            for src in range(3):
                addr = w * 27648 + src * 9216 + t * 1024
                base, off = divmod(addr, 65536)
                b(f"ds_read_b128 {vr(FR+12*t+4*src,4)}, v{4 if base == 0 else 5} offset:{off}")
                if (t * 3 + src) == 14: b("s_waitcnt lgkmcnt(8)")
        for t in range(9):
            q, n = q0 + t // 3, n0 + t % 3
            for r in range(4): b(f"v_accvgpr_read_b32 v{FR+128+4*t+r}, a{ACC+4*(6*q+n)+r}")
        b("s_waitcnt lgkmcnt(0)")
        for t in range(9):
            for r in range(4):
                x = FR + 128 + 4 * t + r
                b(f"v_add_f32 v{FR+12*t+r}, v{FR+12*t+r}, v{FR+12*t+4+r}")
                b(f"v_add_f32 v{x}, v{x}, v{FR+12*t+8+r}")
                b(f"v_add_f32 v{x}, v{x}, v{FR+12*t+r}")
            b(f"v_cvt_pk_bf16_f32 v{FR+170+2*t}, v{FR+128+4*t}, v{FR+128+4*t+1}")
            b(f"v_cvt_pk_bf16_f32 v{FR+170+2*t+1}, v{FR+128+4*t+2}, v{FR+128+4*t+3}")
        for t in range(9):
            q, n = q0 + t // 3, n0 + t % 3
            b(f"buffer_store_dwordx2 v[{FR+170+2*t}:{FR+170+2*t+1}], v{6 + (q%3)}, s[12:15], s37 offen offset:{32*n}")
        stamp_dump(b, 1, 32)
        b("s_endpgm")
    b("L_end2:\ns_endpgm\nL_codeend:")
    i = b.L.index("v_lshlrev_b32 v4, 0, v2")
    setup = f"""v_mov_b32 v4, v2
    v_add_u32 v5, 0x10000, v2
    v_and_b32 v6, 15, v0
    v_mul_u32_u24 v6, 2304, v6
    v_bfe_u32 v7, v0, 4, 2
    v_lshl_add_u32 v6, v7, 3, v6
    v_add_u32 v7, {16*2304}, v6
    v_add_u32 v8, {32*2304}, v6
    s_lshr_b32 s38, s32, 1
    s_mul_i32 s38, s38, {48*2304}
    s_mul_i32 s37, s20, {96*2304}
    s_add_u32 s37, s37, s38
    s_mul_i32 s38, s3, 1152
    s_add_u32 s37, s37, s38
    s_mul_i32 s38, s21, 192
    s_add_u32 s37, s37, s38""".split("\n")
    b.L[i:i+1] = [x.strip() for x in setup]
    return b.L

DESC = """.section .rodata,"a"
.p2align 6
.amdhsa_kernel {name}
  .amdhsa_next_free_vgpr {vgpr}
  .amdhsa_next_free_sgpr 102
  .amdhsa_accum_offset 256
  .amdhsa_group_segment_fixed_size 0
  .amdhsa_kernarg_size 104
  .amdhsa_user_sgpr_count 2
  .amdhsa_user_sgpr_kernarg_segment_ptr 1
  .amdhsa_system_sgpr_workgroup_id_x 1
  .amdhsa_float_denorm_mode_32 3
.end_amdhsa_kernel
"""

def build(**kw):
    OPT.update(kw)
    k1 = finish(kernel1())
    i4 = k1.index("L_begin4:"); i3 = k1.index("L_begin3:")
    e = check_protocol(k1[i4:i3], "w4") + check_protocol(k1[i3:], "w3")
    assert e == 0
    k1 = strip_markers(k1)
    k1, n1, p1 = fix_hazards(k1)
    k2, n2, p2 = fix_hazards(kernel2())
    for p in p1 + p2: print("BRANCH HAZARD", p)
    assert not (p1 or p2)
    hdr = open("cdna_kernels/%s.s.ref" % NAME).read().split("; Override")[0]
    out = hdr
    out += "; generated by my own schedule generator (dev/gen.py); two launches: fused q-proj+attention, then output projection\n"
    if not OPT.get('only2'): out += "; @launch kernel=attn_kernel grid=(256,1,1) block=(256,1,1) lds=163840\n"
    out += "; @launch kernel=oproj_kernel grid=(240,1,1) block=(256,1,1) lds=110592\n"
    out += '.amdgcn_target "amdgcn-amd-amdhsa--gfx950"\n.text\n'
    out += ".globl attn_kernel\n.p2align 8\n.type attn_kernel,@function\n" + "\n".join(k1) + "\n"
    out += ".globl oproj_kernel\n.p2align 8\n.type oproj_kernel,@function\n" + "\n".join(k2) + "\n"
    out += DESC.format(name="attn_kernel", vgpr=512) + DESC.format(name="oproj_kernel", vgpr=400)
    return out, (n1, n2)

if __name__ == "__main__":
    kw = {}
    for a in sys.argv[2:]:
        k, v = a.split('='); kw[k] = int(v)
    s, info = build(**kw)
    open(sys.argv[1], "w").write(s)
    print("nops inserted", info, "bytes", len(s))
```

```python
import sys, re
from asmlib import fix_hazards, Ins

NAME = "concat_heads__mha_block_cached__mha_block_cached__near_ridge"
MF = "v_mfma_f32_16x16x32_bf16"
CSCALE = 0x3e0293ee
LTHR = 0x4e800000

O_BLK = 128 * 122880
WOT_OFF = 2 * O_BLK
WOT_BLK = 128 * 36864

class B:
    def __init__(self): self.L = []
    def __call__(self, s):
        for x in s.split("\n"):
            x = x.strip()
            if x: self.L.append(x)
    def ext(self, l): self.L.extend(l)

def vr(b, n): return f"v[{b}:{b+n-1}]"
def ar(b, n): return f"a[{b}:{b+n-1}]"

def emit_slots(b, slots, gaps):
    for i, s in enumerate(slots):
        if s: b(s)
        nv = [x for x in gaps[i] if not x.startswith('v_')]
        v = [x for x in gaps[i] if x.startswith('v_')]
        for x in nv + v: b(x)

S_ = 16; P_ = 48; CI = 64; LS = 80
KA = 84
VA = 88
DK0 = 96; DK1 = 97; DV0 = 98; DV1 = 99
VO = 100
VWO = 101
VWX = 102
VLN = 103
T0 = 108
O_ = 128
XA = 16; WA = 18; DX = 20; DW = 24
AQ = 0; AQ2 = 64; AK = 128; AV = 160; ASP = 192
AX = 0; AW = 64
SX = 4; SW = 8; SK = 12; SV = 16; SO = 20; SWO = 24; SWT = 28
sWAVE = 32; sWB = 33; sKV = 34; sCNT = 35; sHEAD = 36; sSAFE = 37; sFLAG = 38
sXO = 39; sXO2 = 40; sWOFF = 41; sXB = 42; sOO = 43; sC = 44
sT = 46
sH0 = 68; sWOS = 64; sWTS = 65; sSTAMP = 72

OPT = dict(nt_kv=1, nt_w=1, nt_x=0, nt_wo=1, stamps=0, warm=0, of=2)

K2F = ['', ' nt', ' sc1', ' sc0 sc1', ' sc0', ' sc1 nt']
def fl(k): return " nt" if OPT[k] else ""

def dma(voff, srd, soff, off, flag, tag):
    return f"buffer_load_dwordx4 v{voff}, s[{srd}:{srd+3}], {soff} offen offset:{off}{flag} lds ; tag={tag}"

def kv_dma(tile):
    return [dma(DK0, SK, f"s{sKV}", 0, fl('nt_kv'), f"KV{tile}"),
            dma(DK1, SK, f"s{sKV}", 1024, fl('nt_kv'), f"KV{tile}"),
            dma(DV0, SV, f"s{sKV}", 2048, fl('nt_kv'), f"KV{tile}"),
            dma(DV1, SV, f"s{sKV}", 3072, fl('nt_kv'), f"KV{tile}")]

def x_dma(m, nq):
    slot = 32768 if m % 2 else 65536
    out = []
    out.append(f"s_add_u32 m0, s{sXB}, {slot}")
    for j in range(4): out.append(dma(DX + j, SX, f"s{sXO}", 1024 * j, fl('nt_x'), f"X{m}"))
    out.append(f"s_add_u32 m0, s{sXB}, {slot + 4096}")
    for j in range(4 if nq == 4 else 2): out.append(dma(DX + j, SX, f"s{sXO2}", 1024 * j, fl('nt_x'), f"X{m}"))
    out.append(f"s_add_u32 s{sXO}, s{sXO}, 128")
    out.append(f"s_add_u32 s{sXO2}, s{sXO2}, 128")
    return out

def w_dma(n):
    out = [f"s_add_u32 m0, s{sWB}, {98304 + (n % 4) * 16384}"]
    for j in range(4): out.append(dma(DW + j, SW, f"s{sWOFF}", 1024 * j, fl('nt_w'), f"W{n}"))
    if n % 2 == 0: out.append(f"s_add_u32 s{sWOFF}, s{sWOFF}, 256")
    else: out.append(f"s_add_u32 s{sWOFF}, s{sWOFF}, {524288 - 256}")
    return out

def w_reads(n, T):
    sp_, a = T // 2, T % 2
    hl, sp = sp_ // 2, sp_ % 2
    out = []
    for s in range(2):
        for a2 in range(2):
            d = AW + 8 * (T % 4) + 4 * s + 2 * a2
            off = (n % 4) * 16384 + hl * 8192 + (32 * s + 4 * a2) * 128 + 8 * a
            out.append(f"ds_read_b64_tr_b16 {ar(d,2)}, v{WA+sp} offset:{off} ; need=W{n}")
    return out

def x_reads(m, nq):
    out = []
    for q in range(nq):
        for s in range(2):
            d = AX + 32 * (m % 2) + 8 * q + 4 * s
            off = (0 if m % 2 else 32768) + q * 2048
            out.append(f"ds_read_b128 {ar(d,4)}, v{XA+s} offset:{off} ; need=X{m}")
    return out

def qacc(hd, q, T):
    r = 128 + 32 * q + 4 * T
    return vr(r, 4) if hd == 0 else ar(r, 4)

def qproj_stage(b, n, nq):
    hd, m = n % 2, n // 2
    nx = 8 if nq == 4 else 6
    slots = []; gaps = [[] for _ in range(64)]
    for T in range(8):
        for q in range(4):
            for s in range(2):
                if q >= nq: slots.append(None); continue
                acc = qacc(hd, q, T)
                c = "0" if (m == 0 and s == 0) else acc
                slots.append(f"{MF} {acc}, {ar(AW+8*(T%4)+4*s,4)}, {ar(AX+32*(m%2)+8*q+4*s,4)}, {c}")
    start = {3: 5, 4: 12, 5: 19, 6: 26, 7: 33}
    rd = w_reads(n, 2); gaps[0].append(rd[3])
    for T, g in start.items():
        for i, x in enumerate(w_reads(n, T)): gaps[g + i].append(x)
    if n < 17:
        for T, g in ((0, 45), (1, 53)):
            for i, x in enumerate(w_reads(n + 1, T)): gaps[g + i].append(x)
        for i, x in enumerate(w_reads(n + 1, 2)[:3]): gaps[61 + i].append(x)
    xr = []
    if n % 2 == 1 and m + 1 <= 8:
        xr = x_reads(m + 1, nq)
        for x, g in zip(xr, (9, 10, 16, 17, 23, 24, 30, 31)): gaps[g].append(x)
    for T in range(1, 8): gaps[8 * T - 1].append(f"WAITL W{n}.{T}")
    if n < 17: gaps[63].append(f"WAITL W{n+1}.0")
    if n <= 14: N = 8 + nx if n != 14 else 16
    elif n == 15: N = 12
    else: N = 16
    if n == 13: N = 8 + nx
    gaps[43].append(f"s_waitcnt vmcnt({N}) lgkmcnt(0)")
    req = []
    if n + 1 <= 17: req.append(f"W{n+1}")
    if n % 2 == 0 and m + 1 <= 8: req.append(f"X{m+1}")
    if n == 17: req += ["KV0", "KV1"]
    gaps[44].append("s_barrier ; pub=" + ",".join(req))
    if n % 2 == 0 and m + 2 <= 8:
        xd = x_dma(m + 2, nq)
        pos = [0, 1, 2, 3, 4, 8, 9, 10, 11, 16, 17, 18]
        if nq == 3: pos = [0, 1, 2, 3, 4, 8, 9, 10, 17, 18]
        for x, g in zip(xd, pos): gaps[g].append(x)
    if n in (14, 16):
        t0 = 2 if n == 14 else 4
        seq = []
        for t in (t0, t0 + 1):
            seq.append(f"s_add_u32 m0, s{sWB}, {t * 16384}")
            seq += kv_dma(t)
            seq.append(f"s_add_u32 s{sKV}, s{sKV}, 8192")
        for x, g in zip(seq, [0, 1, 2, 3, 4, 5, 8, 9, 10, 11, 16, 17]): gaps[g].append(x)
    if n + 4 <= 17:
        for x, g in zip(w_dma(n + 4), [48, 49, 51, 57, 59, 60]): gaps[g].append(x)
    emit_slots(b, slots, gaps)
    if OPT.get('qstamps'): stamp(b)

def k_reads(unit, tile):
    out = []
    for kt in range(2):
        for s in range(4):
            f = 4 * kt + s
            off = (unit % 4) * 16384 + (2 * (s // 2) + kt) * 4096
            out.append(f"ds_read_b128 {ar(AK+4*f,4)}, v{KA + (s%2) + 2*(unit//4)} offset:{off} ; need=KV{tile}")
    return out

def v_reads(unit, tile):
    out = []
    for T in range(8):
        th, tl = T // 4, T % 4
        for a in range(2):
            off = (unit % 4) * 16384 + (2 * th + a) * 4096 + 2048
            out.append(f"ds_read_b64_tr_b16 {ar(AV+4*T+2*a,2)}, v{VA + tl + 4*(unit//4)} offset:{off} ; need=KV{tile}")
    return out

def softmax_fill(gaps, half, g0, nq, N, lo=None, hi=None):
    for j in range(16):
        q = 2 * half + j // 8; e = j % 8
        if q >= nq: continue
        s = S_ + 8 * q + e
        g = g0 + 2 * j
        items = [(g, f"v_exp_f32 v{s}, v{s}"), (g + 1, f"v_add_f32 v{LS+q}, v{LS+q}, v{s}")]
        if e % 2 == 1: items.append((g + 1, f"v_cvt_pk_bf16_f32 v{P_+4*q+e//2}, v{s-1}, v{s}"))
        for gg, t in items:
            if lo <= gg < hi: gaps[gg % N].append(t)

def qk(q, kt, s, czero=False):
    d = vr(S_ + 8 * q + 4 * kt, 4)
    c = d if s else ("0" if czero else vr(CI + 4 * q, 4))
    return f"{MF} {d}, {ar(AK+4*(4*kt+s),4)}, {ar(AQ+16*q+4*s,4)}, {c}"

def pv(q, T, czero=False):
    d = vr(O_ + 32 * q + 4 * T, 4)
    return f"{MF} {d}, {ar(AV+4*T,4)}, {vr(P_+4*q,4)}, {'0' if czero else d}"

def attn_stage(b, k, nq, extra=None):
    kk = k % 32; u = k % 8
    slots = []; gaps = [[] for _ in range(64)]
    for q in (0, 1):
        for kt in range(2):
            for s in range(4): slots.append(qk(q, kt, s))
    for q in (2, 3):
        for T in range(8): slots.append(pv(q, T, kk == 1) if (q < nq and kk > 0) else None)
    for q in (2, 3):
        for kt in range(2):
            for s in range(4): slots.append(qk(q, kt, s) if q < nq else None)
    for q in (0, 1):
        for T in range(8): slots.append(pv(q, T, kk == 0))
    softmax_fill(gaps, 0, 8, nq, 64, 0, 64)
    softmax_fill(gaps, 1, 40, nq, 64, 0, 64)
    if kk > 0: softmax_fill(gaps, 1, 40, nq, 64, 64, 128)
    for i, x in enumerate(v_reads(u, k)): gaps[26 + i].append(x)
    if k % 2 == 1:
        gaps[46].append("s_waitcnt vmcnt(16) lgkmcnt(0)")
        gaps[47].append(f"s_barrier ; pub=KV{k+1},KV{k+2}")
    else:
        gaps[47].append("s_waitcnt lgkmcnt(0)")
    for i, x in enumerate(k_reads((u + 1) % 8, k + 1)): gaps[48 + i].append(x)
    gaps[63].append("s_waitcnt lgkmcnt(0)")
    gaps[0].append(f"s_add_u32 m0, s{sWB}, {((k + 6) % 8) * 16384}")
    for x, g in zip(kv_dma(k + 6), (1, 5, 9, 13)): gaps[g].append(x)
    gaps[16].append(f"s_add_u32 s{sKV}, s{sKV}, 8192")
    if OPT.get('kvsmall'): gaps[18].append(f"s_and_b32 s{sKV}, s{sKV}, 0xffff")
    if extra:
        for g, x in extra: gaps[g].append(x)
    emit_slots(b, slots, gaps)

def xlane_reduce(b, reg, tmp, op):
    b(f"v_mov_b32 v{tmp}, v{reg}")
    b(f"v_permlane32_swap_b32 v{reg}, v{tmp}")
    b(f"{op} v{reg}, v{reg}, v{tmp}")
    b(f"v_mov_b32 v{tmp}, v{reg}")
    b(f"v_permlane16_swap_b32 v{reg}, v{tmp}")
    b(f"{op} v{reg}, v{reg}, v{tmp}")

def xlane_reduce_multi(b, regs, tmps, op):
    for sw in ("v_permlane32_swap_b32", "v_permlane16_swap_b32"):
        for r, t in zip(regs, tmps): b(f"v_mov_b32 v{t}, v{r}")
        for r, t in zip(regs, tmps): b(f"{sw} v{r}, v{t}")
        for r, t in zip(regs, tmps): b(f"{op} v{r}, v{r}, v{t}")

def stamp(b, idx=None):
    if not OPT['stamps']: return
    b(f"s_memtime s[{sSTAMP}:{sSTAMP+1}]\ns_memrealtime s[{sSTAMP+2}:{sSTAMP+3}]\ns_waitcnt lgkmcnt(0)")
    b(f"s_mov_b32 s95, m0\ns_mov_b32 m0, s96\nv_writelane_b32 v14, s{sSTAMP}, m0\nv_writelane_b32 v15, s{sSTAMP+2}, m0\ns_mov_b32 m0, s95\ns_add_u32 s96, s96, 1")

def stamp_dump(b, k, wave):
    if not OPT['stamps']: return
    b("s_waitcnt vmcnt(0)")
    stamp(b)
    if OPT['stamps'] == 2:
        b("s_load_dwordx2 s[92:93], s[0:1], 88\ns_waitcnt lgkmcnt(0)")
        b(f"s_cmp_lg_u32 s{wave}, 0\ns_cbranch_scc1 L_end{k+1}\ns_and_b32 s94, s97, 31\ns_cmp_lg_u32 s94, 5\ns_cbranch_scc1 L_end{k+1}")
        b(f"s_add_u32 s88, s92, {OPT.get('dbgoff',0)*(1-k)}\ns_addc_u32 s89, s93, 0\ns_mov_b32 s90, 256\ns_mov_b32 s91, 0x20000")
        sel = [0, 2, 3, 6, 7, 9, 10, 11] if k == 0 else [0, 1, 2, 3]
        b("s_mov_b64 exec, 1")
        for i, ix in enumerate(sel):
            b(f"v_readlane_b32 s94, v15, {ix}\ns_nop 3")
            if i == 0 and k == 0: b("s_not_b32 s94, s94")
            b(f"v_mov_b32 v1, s94\nv_mov_b32 v2, {4*(i + (0 if k == 0 else 8))}\nbuffer_atomic_umax v1, v2, s[88:91], 0 offen")
        return
    b("s_load_dwordx2 s[92:93], s[0:1], 96\ns_waitcnt lgkmcnt(0)")
    b(f"s_add_u32 s88, s92, {(48+k)*1024*1024}\ns_addc_u32 s89, s93, 0\ns_mov_b32 s90, 0x100000\ns_mov_b32 s91, 0x20000")
    b(f"s_lshl_b32 s94, s97, 2\ns_add_u32 s94, s94, s{wave}\ns_lshl_b32 s94, s94, 9")
    b("v_and_b32 v1, 63, v0\nv_lshlrev_b32 v1, 3, v1")
    b("buffer_store_dwordx2 v[14:15], v1, s[88:91], s94 offen")

def persist_regs(b):
    lane = T0; t1 = T0 + 1; t2 = T0 + 2; t3 = T0 + 3; g_ = T0 + 4; ihi = T0 + 5; i8 = T0 + 6; i16 = T0 + 7; r_ = T0 + 8; c4 = T0 + 9
    b(f"""v_and_b32 v{lane}, 63, v0
    v_lshrrev_b32 v{g_}, 4, v{lane}
    v_lshrrev_b32 v{ihi}, 3, v{lane}
    v_and_b32 v{i8}, 7, v{lane}
    v_and_b32 v{i16}, 15, v{lane}
    v_lshrrev_b32 v{r_}, 2, v{i16}
    v_and_b32 v{c4}, 3, v{lane}
    v_lshlrev_b32 v{VLN}, 4, v{lane}
    s_add_u32 s71, s63, s{sWB}
    v_add_u32 v{VO}, s71, v{VLN}""")
    b(f"""s_and_b32 s70, s{sWAVE}, 1
    s_lshl_b32 s70, s70, 12
    s_lshr_b32 s71, s{sWAVE}, 1
    s_lshl_b32 s71, s71, 7
    s_add_u32 s70, s70, s71
    v_lshlrev_b32 v{t1}, 8, v{ihi}
    v_add_u32 v{t1}, s70, v{t1}
    v_xor_b32 v{t2}, v{i8}, v{g_}
    v_lshl_add_u32 v{DK0}, v{t2}, 4, v{t1}
    v_xor_b32 v{t2}, 4, v{t2}
    v_lshl_add_u32 v{DK1}, v{t2}, 4, v{t1}
    v_add_u32 v{DK1}, 1024, v{DK1}
    v_lshlrev_b32 v{t2}, 1, v{g_}
    v_xor_b32 v{t2}, v{t2}, v{i8}
    v_lshl_add_u32 v{DV0}, v{t2}, 4, v{t1}
    v_add_u32 v{DV1}, 1024, v{DV0}""")
    b(f"""v_mul_u32_u24 v{t1}, 1152, v{ihi}
    v_lshl_add_u32 v{t1}, v{t2}, 4, v{t1}
    s_lshl_b32 s70, s{sWAVE}, 7
    v_add_u32 v{VWO}, s70, v{t1}
    v_lshrrev_b32 v{t1}, 1, v{lane}
    v_mul_u32_u24 v{t1}, 1152, v{t1}
    v_and_b32 v{t2}, 1, v{lane}
    v_lshl_add_u32 v{t1}, v{t2}, 4, v{t1}
    s_lshl_b32 s70, s{sWAVE}, 5
    s_add_u32 s70, s70, 1024
    v_add_u32 v{VWX}, s70, v{t1}""")
    b(f"""v_lshrrev_b32 v{t1}, 3, v{i16}
    v_lshlrev_b32 v{t1}, 10, v{t1}
    v_lshl_add_u32 v{t1}, v{i8}, 7, v{t1}
    v_lshrrev_b32 v{t3}, 1, v{i16}""")
    for s2 in range(2):
        b(f"v_xor_b32 v{t2}, {4*s2}, v{g_}\nv_xor_b32 v{t2}, v{t2}, v{t3}\nv_lshl_add_u32 v{KA+s2}, v{t2}, 4, v{t1}\nv_add_u32 v{KA+2+s2}, 0x10000, v{KA+s2}")
    b(f"""v_lshrrev_b32 v{t1}, 1, v{g_}
    v_lshlrev_b32 v{t1}, 10, v{t1}
    v_and_b32 v{t2}, 1, v{g_}
    v_lshl_add_u32 v{t2}, v{t2}, 2, v{r_}
    v_lshl_add_u32 v{t1}, v{t2}, 7, v{t1}
    v_lshl_add_u32 v{t1}, v{c4}, 3, v{t1}
    v_lshrrev_b32 v{t3}, 1, v{t2}""")
    for tl in range(4):
        b(f"v_xor_b32 v{t2}, {tl}, v{t3}\nv_lshl_add_u32 v{VA+tl}, v{t2}, 5, v{t1}\nv_add_u32 v{VA+4+tl}, 0x10000, v{VA+tl}")

def warm_code(b, sfx):
    if not OPT.get('warm'): return
    b(f"""s_getpc_b64 s[{sT}:{sT+1}]
    L_pc{sfx}:
    s_sub_u32 s{sT}, s{sT}, L_pc{sfx}-attn_kernel
    s_subb_u32 s{sT+1}, s{sT+1}, 0
    v_and_b32 v2, 63, v0
    v_lshlrev_b32 v2, 7, v2
    v_lshl_add_u32 v5, s{sWAVE}, 13, v2""")
    for i in range(OPT['warm']):
        b(f"""v_min_u32 v2, L_codeend-attn_kernel-4, v5
        v_mov_b32 v3, s{sT+1}
        v_add_co_u32 v2, vcc, s{sT}, v2
        v_addc_co_u32 v3, vcc, 0, v3, vcc
        global_load_dword v4, v[2:3], off""")
        if i + 1 < OPT['warm']: b("v_add_u32 v5, 0x8000, v5")

def wave_code(b, nq, sfx):
    nx = 8 if nq == 4 else 6
    b(f"L_begin{sfx}:")
    lane = T0; t1 = T0 + 1; t2 = T0 + 2; t3 = T0 + 3; g_ = T0 + 4; ihi = T0 + 5; i8 = T0 + 6
    b(f"""v_and_b32 v{lane}, 63, v0
    v_lshrrev_b32 v{g_}, 4, v{lane}
    v_lshrrev_b32 v{ihi}, 3, v{lane}
    v_and_b32 v{i8}, 7, v{lane}""")
    b(f"s_lshl_b32 s{sT}, s{sWAVE}, 6")
    b(f"v_add_u32 v{t1}, s{sT}, v{ihi}")
    b(f"v_mul_u32_u24 v{t1}, 1152, v{t1}")
    for j in range(4):
        b(f"v_xor_b32 v{t2}, {4*(j%2)}, v{g_}")
        b(f"v_xor_b32 v{t2}, v{t2}, v{i8}")
        b(f"v_lshl_add_u32 v{t2}, v{t2}, 4, v{t1}")
        b(f"v_add_u32 v{DX+j}, {8*j*1152 - 1024*j}, v{t2}")
    b(f"""s_and_b32 s{sT}, s{sWAVE}, 1
    s_lshl_b32 s{sT}, s{sT}, 18
    s_lshr_b32 s{sT+1}, s{sWAVE}, 1
    s_lshl_b32 s{sT+1}, s{sT+1}, 7
    s_add_u32 s{sT}, s{sT}, s{sT+1}
    v_lshlrev_b32 v{t1}, 13, v{ihi}
    v_add_u32 v{t1}, s{sT}, v{t1}
    v_lshrrev_b32 v{t2}, 2, v{i8}
    v_xor_b32 v{t2}, v{t2}, v{g_}
    v_and_b32 v{t2}, 1, v{t2}
    v_lshl_add_u32 v{t1}, v{t2}, 6, v{t1}
    v_and_b32 v{t2}, 3, v{i8}
    v_lshl_add_u32 v{t1}, v{t2}, 4, v{t1}""")
    for j in range(4): b(f"v_add_u32 v{DW+j}, {8*j*8192 - 1024*j}, v{t1}")
    b(f"""s_mov_b32 s{sXO}, 0
    s_mov_b32 s{sXO2}, 36864
    s_mov_b32 s{sWOFF}, 0
    s_mov_b32 s{sKV}, 0
    s_mov_b32 s{sHEAD}, 0""")
    b.ext(x_dma(0, nq)); b.ext(w_dma(0)); b.ext(w_dma(1)); b.ext(x_dma(1, nq)); b.ext(w_dma(2)); b.ext(w_dma(3))
    warm_code(b, sfx)
    persist_regs(b)
    for t in (0, 1):
        b(f"s_add_u32 m0, s{sWB}, {t*16384}"); b.ext(kv_dma(t)); b(f"s_add_u32 s{sKV}, s{sKV}, 8192")
    i16 = T0 + 7; r_ = T0 + 8; c4 = T0 + 9
    b(f"""v_and_b32 v{i16}, 15, v{lane}
    v_lshrrev_b32 v{r_}, 2, v{i16}
    v_and_b32 v{c4}, 3, v{lane}
    v_lshlrev_b32 v{t1}, 7, v{i16}
    v_add_u32 v{t1}, s{sXB}, v{t1}
    v_add_u32 v{t1}, 32768, v{t1}
    v_lshrrev_b32 v{t3}, 1, v{i16}""")
    for s in range(2):
        b(f"v_xor_b32 v{t2}, {4*s}, v{g_}")
        b(f"v_xor_b32 v{t2}, v{t2}, v{t3}")
        b(f"v_lshl_add_u32 v{XA+s}, v{t2}, 4, v{t1}")
    b(f"""v_lshl_add_u32 v{t1}, v{g_}, 3, v{r_}
    v_lshlrev_b32 v{t1}, 7, v{t1}
    v_lshl_add_u32 v{t1}, v{c4}, 4, v{t1}
    v_add_u32 v{t1}, 98304, v{t1}
    v_lshrrev_b32 v{t3}, 1, v{r_}""")
    for sp in range(2):
        b(f"v_xor_b32 v{t2}, {sp}, v{t3}")
        b(f"v_lshl_add_u32 v{WA+sp}, v{t2}, 6, v{t1}")
    stamp(b, 0)
    b(f"s_waitcnt vmcnt({4 + nx + 4 + 4 + 8 + OPT.get('warm',0)})")
    b("s_barrier ; pub=X0,W0")
    b.ext(x_reads(0, nq))
    for T in (0, 1): b.ext(w_reads(0, T))
    b.ext(w_reads(0, 2)[:3])
    b("WAITL W0.0")
    stamp(b, 1)
    for n in range(0, 4): qproj_stage(b, n, nq)
    b(f"s_mov_b32 s{sCNT}, 0")
    b(f".p2align 3\nL_qp{sfx}:")
    b("LOOPBEGIN qp 2 4")
    for n in range(4, 8): qproj_stage(b, n, nq)
    b(f"s_add_u32 s{sCNT}, s{sCNT}, 1\ns_cmp_lt_u32 s{sCNT}, 2\ns_cbranch_scc1 L_qp{sfx}")
    b("LOOPEND qp")
    for n in range(12, 18): qproj_stage(b, n, nq)
    stamp(b, 2)
    def conv(hd, q, sp):
        for a in range(2):
            T = 2 * sp + a
            for h in range(2):
                r = 128 + 32 * q + 4 * T + 2 * h
                tmp = T0 + 4 * ((2 * a + h) % 4)
                if hd == 1:
                    b(f"v_accvgpr_read_b32 v{tmp}, a{r}\nv_accvgpr_read_b32 v{tmp+1}, a{r+1}")
                    src = tmp
                else: src = r
                b(f"v_pk_mul_f32 v[{tmp}:{tmp+1}], v[{src}:{src+1}], s[{sC}:{sC+1}]")
                b(f"v_cvt_pk_bf16_f32 v{tmp+2}, v{tmp}, v{tmp+1}")
                b(f"v_accvgpr_write_b32 a{64*hd + 16*q + 4*sp + 2*a + h}, v{tmp+2}")
    for sp in range(4): conv(1, 0, sp)
    b.ext(k_reads(0, 0))
    for q in range(1, nq):
        for sp in range(4): conv(1, q, sp)
    for q in range(nq):
        for sp in range(4): conv(0, q, sp)
    b("s_waitcnt lgkmcnt(0)")
    stamp(b, 3)
    b(f".p2align 3\nL_head{sfx}:")
    b("LOOPBEGIN head 2 32")
    b(f"s_cmp_lg_u32 s{sSAFE}, 0\ns_cbranch_scc1 L_maxpass{sfx}")
    for q in range(nq):
        for s in range(4): b(qk(q, 0, s, czero=True))
    ms = [S_ + 8 * q for q in range(nq)]
    for q in range(nq):
        s = S_ + 8 * q
        b(f"v_max3_f32 v{s}, v{s}, v{s+1}, v{s+2}\nv_max_f32 v{s}, v{s}, v{s+3}")
    b(f"L_maxdone{sfx}:")
    xlane_reduce_multi(b, ms, [T0 + q for q in range(nq)], "v_max_f32")
    for q in range(nq):
        for r in range(4): b(f"v_sub_f32 v{CI+4*q+r}, 0, v{S_+8*q}")
        b(f"v_mov_b32 v{LS+q}, 0")
    b(f"s_add_u32 m0, s{sXB}, 131072")
    for j in range(4):
        b(f"s_add_u32 s{sT}, s{sWOS}, {8192*j}")
        b(dma(VWO, SWO, f"s{sT}", 1024 * j, fl('nt_wo'), "WO"))
    b(f"s_cmp_lg_u32 s{sHEAD}, 0\ns_cbranch_scc1 L_nox{sfx}")
    b(f"s_add_u32 m0, s{sXB}, {131072 + 4096}")
    b(dma(VWX, SWO, "0", 0, fl('nt_wo'), "WO"))
    b(f"L_nox{sfx}:")
    stamp(b)
    attn_stage(b, 0, nq)
    attn_stage(b, 1, nq)
    b(f"s_mov_b32 s{sCNT}, 0")
    b(f".p2align 3\nL_at{sfx}:")
    b("LOOPBEGIN at 4 8")
    for k in range(2, 8):
        ex = None
        if k == 7: ex = [(60, f"s_add_u32 s{sCNT}, s{sCNT}, 1"), (62, f"s_cmp_eq_u32 s{sCNT}, 4")]
        attn_stage(b, k, nq, ex)
    b(f"s_cbranch_scc1 L_atx{sfx}")
    b("LOOPEXIT at")
    for k in range(8, 10): attn_stage(b, k, nq)
    b(f"s_branch L_at{sfx}")
    b("LOOPEND at")
    b(f"L_atx{sfx}:")
    slots = []; gaps = [[] for _ in range(64)]
    for q in (2, 3):
        for T in range(8): slots.append(pv(q, T) if q < nq else None)
    softmax_fill(gaps, 1, 40, nq, 64, 64, 128)
    emit_slots(b, slots, gaps)
    stamp(b, 4)
    ls = [LS + q for q in range(nq)]
    xlane_reduce_multi(b, ls, [T0 + q for q in range(nq)], "v_add_f32")
    b(f"v_mov_b32 v{T0+8}, {LTHR}")
    for q in range(nq):
        b(f"v_cmp_nlt_f32 vcc, v{LS+q}, v{T0+8}")
        b(f"s_or_b32 s{sFLAG}, s{sFLAG}, vcc_lo\ns_or_b32 s{sFLAG}, s{sFLAG}, vcc_hi")
        b(f"v_rcp_f32 v{LS+q}, v{LS+q}")
    b(f"s_add_u32 s{sT}, s{sXB}, 65536")
    for tl in range(4):
        b(f"v_add_u32 v{T0+12+tl}, s{sT}, v{VA+4+tl}")
    b("s_waitcnt vmcnt(16) ; needtag=WO")
    for tl in range(4):
        for a in range(2):
            b(f"ds_read_b64_tr_b16 v[{S_+4*tl+2*a}:{S_+4*tl+2*a+1}], v{T0+12+tl} offset:{2048*a}")
    cnt = 0
    for q in range(nq):
        for sp in range(4):
            d = P_ + 4 * (cnt % 4); cnt += 1
            for a in range(2):
                for h in range(2):
                    r = O_ + 32 * q + 4 * (2 * sp + a) + 2 * h
                    b(f"v_mul_f32 v{r}, v{r}, v{LS+q}\nv_mul_f32 v{r+1}, v{r+1}, v{LS+q}")
                    b(f"v_cvt_pk_bf16_f32 v{d+2*a+h}, v{r}, v{r+1}")
            b(f"s_add_u32 s{sT}, s{sOO}, {sp*122880}")
            b(f"buffer_store_dwordx4 {vr(d,4)}, v{VO}, s[{SO}:{SO+3}], s{sT} offen offset:{1024*q}{K2F[OPT.get('of',0)]}")
    b("s_waitcnt lgkmcnt(0)")
    for tl in range(4):
        b(f"buffer_store_dwordx4 {vr(S_+4*tl,4)}, v{VLN}, s[{SWT}:{SWT+3}], s{sWTS} offen offset:{1024*tl}{K2F[OPT.get('of',0)]}")
    stamp(b)
    b(f"s_cmp_lg_u32 s{sHEAD}, 0\ns_cbranch_scc1 L_fin{sfx}")
    b(f"""v_and_b32 v{T0}, 63, v0
    v_lshlrev_b32 v{T0}, 3, v{T0}
    v_add_u32 v{T0}, s{sXB}, v{T0}
    v_add_u32 v{T0}, {131072+4096}, v{T0}
    ds_read_b64_tr_b16 v[{S_+16}:{S_+17}], v{T0} offset:0
    ds_read_b64_tr_b16 v[{S_+18}:{S_+19}], v{T0} offset:512
    s_lshl_b32 s{sT}, s{sWAVE}, 10
    s_add_u32 s{sT}, s{sT}, 32768""")
    for i in range(16 * nq): b(f"v_accvgpr_mov_b32 a{AQ+i}, a{AQ2+i}")
    b(f"""s_waitcnt lgkmcnt(0)
    buffer_store_dwordx4 {vr(S_+16,4)}, v{VLN}, s[{SWT}:{SWT+3}], s{sT} offen
    s_add_u32 s{sOO}, s{sOO}, {4*122880}
    s_add_u32 s{sWOS}, s{sWOS}, 512
    s_add_u32 s{sWTS}, s{sWTS}, 16384
    s_mov_b32 s{sHEAD}, 1
    s_branch L_head{sfx}""")
    b("LOOPEND head")
    b(f"L_fin{sfx}:")
    b(f"s_branch L_vote")
    b(f"L_maxpass{sfx}:")
    for q in range(nq): b(f"v_mov_b32 v{T0+8+q}, 0xff800000")
    for s2 in range(2): b(f"v_add_u32 v{T0+12+s2}, 65536, v{KA+2+s2}")
    b(f"s_lshl_b32 s{sT}, s{sHEAD}, 18\ns_mov_b32 s{sCNT}, 0")
    b(f"L_mp{sfx}:")
    b(f"s_barrier\ns_add_u32 m0, s{sWB}, 131072")
    b(dma(DK0, SK, f"s{sT}", 0, "", "MP")); b(dma(DK1, SK, f"s{sT}", 1024, "", "MP"))
    b("s_waitcnt vmcnt(0)\ns_barrier")
    for kt in range(2):
        for s in range(4):
            b(f"ds_read_b128 {ar(ASP+4*(4*kt+s),4)}, v{T0+12+s%2} offset:{(2*(s//2)+kt)*4096}")
    b("s_waitcnt lgkmcnt(0)")
    for q in range(nq):
        for kt in range(2):
            for s in range(4):
                d = vr(S_ + 8 * q + 4 * kt, 4)
                b(f"{MF} {d}, {ar(ASP+4*(4*kt+s),4)}, {ar(AQ+16*q+4*s,4)}, {d if s else '0'}")
    for q in range(nq):
        for e in range(0, 8, 2): b(f"v_max3_f32 v{T0+8+q}, v{T0+8+q}, v{S_+8*q+e}, v{S_+8*q+e+1}")
    b(f"s_add_u32 s{sT}, s{sT}, 8192\ns_add_u32 s{sCNT}, s{sCNT}, 1\ns_cmp_lt_u32 s{sCNT}, 32\ns_cbranch_scc1 L_mp{sfx}")
    b("s_barrier")
    for q in range(nq): b(f"v_mov_b32 v{S_+8*q}, v{T0+8+q}")
    b(f"s_branch L_maxdone{sfx}")

def kernel1():
    b = B()
    b("attn_kernel:")
    b("s_cmp_ge_u32 s2, 256\ns_cbranch_scc1 L_end1")
    if OPT['stamps']: b("s_mov_b32 s96, 0\nv_mov_b32 v14, 0\nv_mov_b32 v15, 0")
    stamp(b)
    b("s_load_dwordx16 s[48:63], s[0:1], 0\ns_load_dwordx4 s[64:67], s[0:1], 64\ns_load_dwordx2 s[46:47], s[0:1], 96")
    b(f"""s_mov_b32 s97, s2
    s_and_b32 s3, s2, 7
    s_lshr_b32 s2, s2, 3
    v_lshrrev_b32 v1, 6, v0
    s_and_b32 s68, s3, 1
    s_lshl_b32 s68, s68, 2
    s_and_b32 s69, s2, 3
    s_add_u32 s68, s68, s69        ; b
    v_readfirstlane_b32 s{sWAVE}, v1
    s_bfe_u32 s69, s3, 0x10001
    s_lshl_b32 s69, s69, 3
    s_lshr_b32 s70, s2, 2
    s_add_u32 s69, s69, s70        ; hp
    s_lshr_b32 s3, s3, 2           ; blk
    s_lshl_b32 s{sWB}, s{sWAVE}, 12
    s_lshl_b32 s{sXB}, s{sWAVE}, 13
    s_mov_b32 s{sC}, {CSCALE}
    s_mov_b32 s{sC+1}, {CSCALE}
    s_mov_b32 s{sSAFE}, 0
    s_mov_b32 s{sFLAG}, 0
    s_cmp_eq_u32 s3, 0
    s_waitcnt lgkmcnt(0)
    s_cselect_b64 s[48:49], s[48:49], s[58:59]
    s_cselect_b64 s[50:51], s[50:51], s[60:61]
    s_cselect_b64 s[52:53], s[52:53], s[62:63]
    s_cselect_b64 s[54:55], s[54:55], s[64:65]
    s_cselect_b64 s[56:57], s[56:57], s[66:67]""")
    b(f"""s_mul_i32 s71, s68, 276480
    s_add_u32 s{SX}, s48, s71
    s_addc_u32 s{SX+1}, s49, 0
    s_mov_b32 s{SX+2}, 276480
    s_mov_b32 s{SX+3}, 0x20000
    s_lshl_b32 s71, s69, 9
    s_add_u32 s{SW}, s54, s71
    s_addc_u32 s{SW+1}, s55, 0
    s_sub_u32 s{SW+2}, 4718592, s71
    s_mov_b32 s{SW+3}, 0x20000
    s_lshl_b32 s71, s68, 4
    s_add_u32 s71, s71, s69
    s_lshl_b32 s70, s71, 19
    s_add_u32 s{SK}, s50, s70
    s_addc_u32 s{SK+1}, s51, 0
    s_mov_b32 s{SK+2}, 524288
    s_mov_b32 s{SK+3}, 0x20000
    s_add_u32 s{SV}, s52, s70
    s_addc_u32 s{SV+1}, s53, 0
    s_sub_u32 s{SV}, s{SV}, 2048
    s_subb_u32 s{SV+1}, s{SV+1}, 0
    s_mov_b32 s{SV+2}, {524288+2048}
    s_mov_b32 s{SV+3}, 0x20000
    s_mul_i32 s70, s3, {O_BLK}
    s_add_u32 s{SO}, s46, s70
    s_addc_u32 s{SO+1}, s47, 0
    s_mov_b32 s{SO+2}, {O_BLK}
    s_mov_b32 s{SO+3}, 0x20000
    s_mul_i32 s70, s71, 36864
    s_add_u32 s{SWO}, s56, s70
    s_addc_u32 s{SWO+1}, s57, 0
    s_mov_b32 s{SWO+2}, 36864
    s_mov_b32 s{SWO+3}, 0x20000
    s_mul_i32 s71, s3, {WOT_BLK}
    s_add_u32 s70, s70, s71
    s_add_u32 s70, s70, {WOT_OFF}
    s_add_u32 s{SWT}, s46, s70
    s_addc_u32 s{SWT+1}, s47, 0
    s_mov_b32 s{SWT+2}, 36864
    s_mov_b32 s{SWT+3}, 0x20000
    s_mul_i32 s62, s69, {8*122880}
    s_mul_i32 s63, s68, 15360        ; b*15*1024""")
    b("L_restart:")
    b(f"""s_mov_b32 s{sOO}, s62
    s_mov_b32 s{sWOS}, 0
    s_mov_b32 s{sWTS}, s{sWB}
    s_cmp_eq_u32 s{sWAVE}, 3
    s_cbranch_scc1 L_begin3""")
    wave_code(b, 4, "4")
    b(".p2align 6")
    wave_code(b, 3, "3")
    b("L_vote:")
    b(f"""s_cmp_lg_u32 s{sSAFE}, 0
    s_cbranch_scc1 L_done1
    v_mov_b32 v{T0}, s{sFLAG}
    s_lshl_b32 s{sT}, s{sWAVE}, 2
    s_add_u32 s{sT}, s{sT}, {131072+7168}
    v_mov_b32 v{T0+1}, s{sT}
    ds_write_b32 v{T0+1}, v{T0}
    v_mov_b32 v{T0+1}, {131072+7168}
    s_waitcnt lgkmcnt(0)
    s_barrier
    ds_read_b128 v[{T0+4}:{T0+7}], v{T0+1}
    s_waitcnt lgkmcnt(0)
    v_or_b32 v{T0+4}, v{T0+4}, v{T0+5}
    v_or3_b32 v{T0+4}, v{T0+4}, v{T0+6}, v{T0+7}
    v_readfirstlane_b32 s{sT}, v{T0+4}
    s_cmp_eq_u32 s{sT}, 0
    s_cbranch_scc1 L_done1
    s_mov_b32 s{sSAFE}, 1
    s_waitcnt vmcnt(0)
    s_barrier
    s_branch L_restart""")
    b("L_done1:")
    stamp_dump(b, 0, sWAVE)
    b("L_end1:\ns_endpgm")
    return b.L

def resolve_waits(L):
    out = []
    for i, x in enumerate(L):
        if x.startswith("WAITL"):
            tag = x.split()[1]
            n, T = tag[1:].split('.'); T = int(T)
            dst = set(range(AW + 8 * (T % 4), AW + 8 * (T % 4) + 8))
            cnt = 0; found = False
            for y in reversed(out):
                if y.startswith("s_waitcnt") and "lgkmcnt(0)" in y:
                    found = True; cnt = None; break
                if y.startswith("ds_"):
                    I = Ins(y)
                    if any(k == 'a' and r in dst for k, r in I.wr) or (T == 0 and 'need=X' in y):
                        found = True; break
                    cnt += 1
            assert found, x
            if cnt is not None:
                assert cnt <= 15
                out.append(f"s_waitcnt lgkmcnt({cnt})")
        else: out.append(x)
    return out

def expand_trace(L):
    def shift(line, name, it, step):
        if it == 0: return line
        def rep(m):
            k, n = m.group(1), int(m.group(2))
            if name == 'qp':
                if k == 'W': return f"W{n + step*it}"
                if k == 'X': return f"X{n + step*it//2}"
                return m.group(0)
            if k == 'KV': return f"KV{n + step*it}"
            return m.group(0)
        if ';' not in line: return line
        a, c = line.split(';', 1)
        return a + ';' + re.sub(r'\b(KV|W|X)(\d+)\b', rep, c)
    def go(i, stop):
        res = []
        while i < len(L):
            x = L[i]
            if x.startswith("LOOPBEGIN"):
                _, name, cnt, step = x.split(); cnt = int(cnt); step = int(step)
                body, j = go(i + 1, name)
                for it in range(cnt):
                    for y in body:
                        if y == f"LOOPEXIT {name}":
                            if it == cnt - 1: break
                            continue
                        res.append(shift(y, name, it, step))
                i = j + 1; continue
            if x.startswith("LOOPEND") and x.split()[1] == stop: return res, i
            res.append(x); i += 1
        return res, i
    return go(0, None)[0]

def check_protocol(L, label):
    tr = expand_trace(L)
    q = []; done = set(); issued = {}; pub = set(); errs = 0
    for x in tr:
        if x.startswith("L_maxpass"): break
        c = x.split(';', 1)[1] if ';' in x else ''
        if x.startswith("buffer_") or x.startswith("global_"):
            m = re.search(r'tag=(\w+)', c); q.append(m.group(1) if m else 'other')
        elif x.startswith("s_waitcnt"):
            m = re.search(r'vmcnt\((\d+)\)', x)
            if m:
                n = int(m.group(1))
                while len(q) > n: done.add(q.pop(0))
            m = re.search(r'needtag=(\w+)', c)
            if m and m.group(1) in q: print(label, "ERR needtag", x); errs += 1
        elif x.startswith("s_barrier"):
            m = re.search(r'pub=([\w,]*)', c)
            if m:
                for t in m.group(1).split(','):
                    if not t: continue
                    if t in q or (t not in done): print(label, "ERR publish not landed", t, x); errs += 1
                    pub.add(t)
        elif x.startswith("ds_read"):
            m = re.search(r'need=(\w+)', c)
            if m and m.group(1) not in pub and m.group(1) not in ('KV64',): print(label, "ERR read unpublished", x); errs += 1
        assert len(q) <= 63, ("vmcnt overflow", x)
    return errs

def finish(L):
    L = resolve_waits(L)
    return L

def strip_markers(L):
    return [x for x in L if not x.startswith(("LOOPBEGIN", "LOOPEND", "LOOPEXIT"))]

def kernel2():
    b = B()
    ACC = 0
    FR = 16
    D = 4
    b("oproj_kernel:")
    b("s_cmp_ge_u32 s2, 240\ns_cbranch_scc1 L_end2")
    if OPT['stamps']: b("s_mov_b32 s96, 0\nv_mov_b32 v14, 0\nv_mov_b32 v15, 0\ns_mov_b32 s97, s2")
    stamp(b)
    b("s_load_dwordx2 s[46:47], s[0:1], 96\ns_load_dwordx2 s[48:49], s[0:1], 80")
    b(f"""s_and_b32 s3, s2, 7
    s_lshr_b32 s2, s2, 3
    v_lshrrev_b32 v1, 6, v0
    s_mul_i32 s20, s2, 43
    s_lshr_b32 s20, s20, 8          ; j/6
    v_readfirstlane_b32 s32, v1
    s_mul_i32 s21, s20, 6
    s_sub_u32 s21, s2, s21          ; nt
    s_and_b32 s22, s3, 3
    s_mul_i32 s22, s22, 5
    s_add_u32 s20, s20, s22         ; mt
    s_lshr_b32 s3, s3, 2            ; blk
    v_and_b32 v2, 63, v0
    v_lshlrev_b32 v2, 4, v2
    v_add_u32 v3, 4096, v2
    s_mul_i32 s22, s3, {O_BLK}
    s_mul_i32 s23, s20, 6144
    s_add_u32 s22, s22, s23
    s_mul_i32 s24, s3, {WOT_BLK}
    s_mul_i32 s25, s21, 6144
    s_add_u32 s24, s24, s25
    s_add_u32 s24, s24, {WOT_OFF}
    s_mul_i32 s34, s32, {32*122880}   ; O soffset
    s_mul_i32 s35, s32, {32*36864}    ; W soffset
    s_waitcnt lgkmcnt(0)
    s_add_u32 s4, s46, s22
    s_addc_u32 s5, s47, 0
    s_sub_u32 s6, {O_BLK}, s23
    s_mov_b32 s7, 0x20000
    s_add_u32 s8, s46, s24
    s_addc_u32 s9, s47, 0
    s_sub_u32 s10, {WOT_BLK}, s25
    s_mov_b32 s11, 0x20000
    s_mov_b32 s12, s48
    s_mov_b32 s13, s49
    s_mov_b32 s14, {8*240*1152*2}
    s_mov_b32 s15, 0x20000""")
    def loads(slot):
        out = []
        for i in range(6):
            r = FR + 48 * slot + 4 * i
            out.append(f"buffer_load_dwordx4 {vr(r,4)}, v{2 if i < 4 else 3}, s[8:11], s35 offen offset:{1024*(i%4)}{K2F[OPT.get('k2f',0)]}")
        for i in range(6):
            r = FR + 48 * slot + 24 + 4 * i
            out.append(f"buffer_load_dwordx4 {vr(r,4)}, v{2 if i < 4 else 3}, s[4:7], s34 offen offset:{1024*(i%4)}{K2F[OPT.get('k2f',0)]}")
        if OPT.get('k2small'):
            out.append("s_xor_b32 s34, s34, 122880*0+8192"); out.append("s_xor_b32 s35, s35, 8192")
        else:
            out.append("s_add_u32 s34, s34, 122880"); out.append("s_add_u32 s35, s35, 36864")
        return out
    for s in range(D): b.ext(loads(s))
    def step(slot, first, prefetch, N):
        b(f"s_waitcnt vmcnt({N})")
        slots = []; gaps = [[] for _ in range(36)]
        for q in range(6):
            for n in range(6):
                acc = ar(ACC + 4 * (6 * q + n), 4)
                slots.append(f"{MF} {acc}, {vr(FR+48*slot+4*n,4)}, {vr(FR+48*slot+24+4*q,4)}, {'0' if first else acc}")
        if prefetch:
            ld = loads(slot)
            for q in range(6): gaps[6 * q + 5].append(ld[6 + q])
            for n in range(6): gaps[30 + n].append(ld[n])
            gaps[35] += ld[12:]
        if OPT.get('k2nomfma'): slots = [x if i % 6 == 5 else None for i, x in enumerate(slots)]
        emit_slots(b, slots, gaps)
    if OPT['stamps']: b("s_waitcnt vmcnt(36)")
    stamp(b)
    for s in range(D): step(s, s == 0, True, 36)
    b("s_mov_b32 s36, 0\n.p2align 3\nL_k2:")
    for s in range(D): step(s, False, True, 36)
    b("s_add_u32 s36, s36, 1\ns_cmp_lt_u32 s36, 6\ns_cbranch_scc1 L_k2")
    for s in range(D): step(s, False, False, 12 * (D - 1 - s))
    stamp(b)
    b("v_lshlrev_b32 v4, 0, v2")
    for w in range(4):
        b(f"s_cmp_eq_u32 s32, {w}\ns_cbranch_scc1 L_red{w}")
    for w in range(4):
        b(f"L_red{w}:")
        cnt = 0
        for q in range(6):
            for n in range(6):
                own = (q // 3) * 2 + (n // 3)
                if own == w: continue
                src = (w - own - 1) % 4
                t = (q % 3) * 3 + n % 3
                addr = own * 27648 + src * 9216 + t * 1024
                base, off = divmod(addr, 65536)
                b(f"ds_write_b128 v{4 if base == 0 else 5}, {ar(ACC+4*(6*q+n),4)} offset:{off}") if True else None
        b("s_waitcnt lgkmcnt(0)\ns_barrier")
        q0, n0 = 3 * (w // 2), 3 * (w % 2)
        for t in range(9):
            for src in range(3):
                addr = w * 27648 + src * 9216 + t * 1024
                base, off = divmod(addr, 65536)
                b(f"ds_read_b128 {vr(FR+12*t+4*src,4)}, v{4 if base == 0 else 5} offset:{off}")
                if (t * 3 + src) == 14: b("s_waitcnt lgkmcnt(8)")
        for t in range(9):
            q, n = q0 + t // 3, n0 + t % 3
            for r in range(4): b(f"v_accvgpr_read_b32 v{FR+128+4*t+r}, a{ACC+4*(6*q+n)+r}")
        b("s_waitcnt lgkmcnt(0)")
        for t in range(9):
            for r in range(4):
                x = FR + 128 + 4 * t + r
                b(f"v_add_f32 v{FR+12*t+r}, v{FR+12*t+r}, v{FR+12*t+4+r}")
                b(f"v_add_f32 v{x}, v{x}, v{FR+12*t+8+r}")
                b(f"v_add_f32 v{x}, v{x}, v{FR+12*t+r}")
            b(f"v_cvt_pk_bf16_f32 v{FR+170+2*t}, v{FR+128+4*t}, v{FR+128+4*t+1}")
            b(f"v_cvt_pk_bf16_f32 v{FR+170+2*t+1}, v{FR+128+4*t+2}, v{FR+128+4*t+3}")
        for t in range(9):
            q, n = q0 + t // 3, n0 + t % 3
            b(f"buffer_store_dwordx2 v[{FR+170+2*t}:{FR+170+2*t+1}], v{6 + (q%3)}, s[12:15], s37 offen offset:{32*n}")
        stamp_dump(b, 1, 32)
        b("s_endpgm")
    b("L_end2:\ns_endpgm\nL_codeend:")
    i = b.L.index("v_lshlrev_b32 v4, 0, v2")
    setup = f"""v_mov_b32 v4, v2
    v_add_u32 v5, 0x10000, v2
    v_and_b32 v6, 15, v0
    v_mul_u32_u24 v6, 2304, v6
    v_bfe_u32 v7, v0, 4, 2
    v_lshl_add_u32 v6, v7, 3, v6
    v_add_u32 v7, {16*2304}, v6
    v_add_u32 v8, {32*2304}, v6
    s_lshr_b32 s38, s32, 1
    s_mul_i32 s38, s38, {48*2304}
    s_mul_i32 s37, s20, {96*2304}
    s_add_u32 s37, s37, s38
    s_mul_i32 s38, s3, 1152
    s_add_u32 s37, s37, s38
    s_mul_i32 s38, s21, 192
    s_add_u32 s37, s37, s38""".split("\n")
    b.L[i:i+1] = [x.strip() for x in setup]
    return b.L

DESC = """.section .rodata,"a"
.p2align 6
.amdhsa_kernel {name}
  .amdhsa_next_free_vgpr {vgpr}
  .amdhsa_next_free_sgpr 102
  .amdhsa_accum_offset 256
  .amdhsa_group_segment_fixed_size 0
  .amdhsa_kernarg_size 104
  .amdhsa_user_sgpr_count 2
  .amdhsa_user_sgpr_kernarg_segment_ptr 1
  .amdhsa_system_sgpr_workgroup_id_x 1
  .amdhsa_float_denorm_mode_32 3
.end_amdhsa_kernel
"""

def build(**kw):
    OPT.update(kw)
    k1 = finish(kernel1())
    i4 = k1.index("L_begin4:"); i3 = k1.index("L_begin3:")
    e = check_protocol(k1[i4:i3], "w4") + check_protocol(k1[i3:], "w3")
    assert e == 0
    k1 = strip_markers(k1)
    k1, n1, p1 = fix_hazards(k1)
    k2, n2, p2 = fix_hazards(kernel2())
    for p in p1 + p2: print("BRANCH HAZARD", p)
    assert not (p1 or p2)
    hdr = open("cdna_kernels/%s.s.ref" % NAME).read().split("; Override")[0]
    out = hdr
    out += "; generated by my own schedule generator (dev/gen.py); two launches: fused q-proj+attention, then output projection\n"
    if not OPT.get('only2'): out += "; @launch kernel=attn_kernel grid=(256,1,1) block=(256,1,1) lds=163840\n"
    out += "; @launch kernel=oproj_kernel grid=(240,1,1) block=(256,1,1) lds=110592\n"
    out += '.amdgcn_target "amdgcn-amd-amdhsa--gfx950"\n.text\n'
    out += ".globl attn_kernel\n.p2align 8\n.type attn_kernel,@function\n" + "\n".join(k1) + "\n"
    out += ".globl oproj_kernel\n.p2align 8\n.type oproj_kernel,@function\n" + "\n".join(k2) + "\n"
    out += DESC.format(name="attn_kernel", vgpr=512) + DESC.format(name="oproj_kernel", vgpr=400)
    return out, (n1, n2)

if __name__ == "__main__":
    kw = {}
    for a in sys.argv[2:]:
        k, v = a.split('='); kw[k] = int(v)
    s, info = build(**kw)
    open(sys.argv[1], "w").write(s)
    print("nops inserted", info, "bytes", len(s))
```

```python
def schedule(nq, lds_gaps, dma_gaps, verbose=False):
    N = 64
    present = [True] * N
    for g in range(N):
        blk, q = g // 16, (g % 16) // 8
        if blk in (1, 2) and 2 + q >= nq: present[g] = False
    cap = [2 if present[g] else 0 for g in range(N)]
    for g in list(lds_gaps) + list(dma_gaps): cap[g % N] -= 1
    rdy = {(0, 0): 3, (0, 1): 7, (1, 0): 11, (1, 1): 15, (2, 0): 35, (2, 1): 39, (3, 0): 43, (3, 1): 47}
    pneed = {0: 48, 1: 56, 2: 80, 3: 88}
    pfree = {0: -8, 1: 0, 2: 24, 3: 32}
    sover = {(0, 0): 64, (0, 1): 68, (1, 0): 72, (1, 1): 76, (2, 0): 96, (2, 1): 100, (3, 0): 104, (3, 1): 108}
    place = {}
    order = [(q, e) for q in range(nq) for e in range(8)]
    used = cap[:]
    exp_at = {}
    whole = [g for g in range(N) if cap[g] == 2]
    nexp = len(order)
    pref = [g for g in whole if g >= 25]
    rest = [g for g in whole if g < 25]
    need = nexp - len(pref)
    if need < 0: pref = pref[:nexp]; need = 0
    step = len(rest) / max(need, 1)
    chosen = sorted(set(pref) | {rest[min(len(rest) - 1, int(i * step))] for i in range(need)})
    assert len(chosen) == nexp, (len(chosen), nexp)
    un = sorted(chosen + [g + N for g in chosen])
    taken = set()
    last = -1
    for (q, e) in order:
        lo = max(rdy[(q, e // 4)] + 4, last + 1)
        g = next(x for x in un if x >= lo and (x % N) not in taken)
        taken.add(g % N); exp_at[(q, e)] = g; last = g; used[g % N] = 0
    items = []
    for (q, e) in order:
        items.append(('add', q, e, exp_at[(q, e)] + 1, sover[(q, e // 4)] - 1))
        if e % 2: items.append(('cvt', q, e, max(exp_at[(q, e)] + 1, pfree[q]), min(pneed[q] - 2, sover[(q, e // 4)] - 1)))
    items.sort(key=lambda t: (t[4], t[3]))
    res = {}
    over = 0
    for it in sorted(items, key=lambda t: (0 if t[0] == 'cvt' else 1, t[4], t[3])):
        lo, hi = it[3], it[4]
        assert lo <= hi, it
        c = [g for g in range(lo, hi + 1) if used[g % N] > 0]
        if c: g = c[0]
        else:
            g = max(range(lo, hi + 1), key=lambda x: (present[x % N], used[x % N], -x)); over += 1
        used[g % N] -= 1
        res[(it[0], it[1], it[2])] = g
    for k, g in exp_at.items(): res[('exp',) + k] = g
    if verbose:
        print("overflow", over)
        for g in range(N):
            print(g, present[g], 'L' if g in lds_gaps else 'D' if g in dma_gaps else ' ', [k for k, v in res.items() if v % N == g])
    return res
if __name__ == "__main__":
    lds = [25, 26, 28, 29, 30, 32, 33, 34, 36, 37, 38, 40, 41, 42, 44, 45] + [48, 50, 52, 54, 56, 58, 60, 62]
    schedule(4, lds, [1, 9, 17, 23], True)
```

```python
import sys, re
from asmlib import fix_hazards, Ins

NAME = "concat_heads__mha_block_cached__mha_block_cached__near_ridge"
MF = "v_mfma_f32_16x16x32_bf16"
CSCALE = 0x3e0293ee
LTHR = 0x4e800000

O_BLK = 128 * 122880
WOT_OFF = 2 * O_BLK
WOT_BLK = 128 * 36864

class B:
    def __init__(self): self.L = []
    def __call__(self, s):
        for x in s.split("\n"):
            x = x.strip()
            if x: self.L.append(x)
    def ext(self, l): self.L.extend(l)

def vr(b, n): return f"v[{b}:{b+n-1}]"
def ar(b, n): return f"a[{b}:{b+n-1}]"

def emit_slots(b, slots, gaps):
    for i, s in enumerate(slots):
        if s: b(s)
        nv = [x for x in gaps[i] if not x.startswith('v_')]
        v = [x for x in gaps[i] if x.startswith('v_')]
        for x in nv + v: b(x)

S_ = 16; P_ = 48; CI = 64; LS = 80
KA = 84
VA = 88
DK0 = 96; DK1 = 97; DV0 = 98; DV1 = 99
VO = 100
VWO = 101
VWX = 102
VLN = 103
VPF = 104
VPD = 105
T0 = 108
O_ = 128
XA = 16; WA = 18; DX = 20; DW = 24
def AQ(q): return 32 + 64 * (q // 2) + 16 * (q % 2)
def AQ2(q): return 64 * (q // 2) + 16 * (q % 2)
AK = 128; AV = 160; ASP = 192
AX = 0; AW = 64
SX = 4; SW = 8; SK = 12; SV = 16; SO = 20; SWO = 24; SWT = 28
sWAVE = 32; sWB = 33; sKV = 34; sCNT = 35; sHEAD = 36; sSAFE = 37; sFLAG = 38
sXO = 39; sXO2 = 40; sWOFF = 41; sXB = 42; sOO = 43; sC = 44
sT = 46
sH0 = 68; sWOS = 64; sWTS = 65; sSTAMP = 72; SPF = 76; sPF = 66; sWXS = 67; sROT = 80; sLIN = 81

OPT = dict(nt_kv=1, nt_w=1, nt_x=0, nt_wo=1, stamps=0, warm=1, of=2)

K2F = ['', ' nt', ' sc1', ' sc0 sc1', ' sc0', ' sc1 nt']
def fl(k): return " nt" if OPT[k] else ""

def dma(voff, srd, soff, off, flag, tag):
    return f"buffer_load_dwordx4 v{voff}, s[{srd}:{srd+3}], {soff} offen offset:{off}{flag} lds ; tag={tag}"

def kv_adv():
    if not OPT.get('rot'): return [f"s_add_u32 s{sKV}, s{sKV}, 8192"]
    return [f"s_add_u32 s{sLIN}, s{sLIN}, 8192", f"s_add_u32 s{sKV}, s{sLIN}, s{sROT}",
            f"s_and_b32 s{sKV}, s{sKV}, 0x3ffff", f"s_and_b32 s{sT+1}, s{sLIN}, 0xfffc0000", f"s_or_b32 s{sKV}, s{sKV}, s{sT+1}"]

def kv_dma(tile):
    return [dma(DK0, SK, f"s{sKV}", 0, fl('nt_kv'), f"KV{tile}"),
            dma(DK1, SK, f"s{sKV}", 1024, fl('nt_kv'), f"KV{tile}"),
            dma(DV0, SV, f"s{sKV}", 2048, fl('nt_kv'), f"KV{tile}"),
            dma(DV1, SV, f"s{sKV}", 3072, fl('nt_kv'), f"KV{tile}")]

def x_dma(m, nq):
    slot = 32768 if m % 2 else 65536
    out = []
    out.append(f"s_add_u32 m0, s{sXB}, {slot}")
    for j in range(4): out.append(dma(DX + j, SX, f"s{sXO}", 1024 * j, fl('nt_x'), f"X{m}"))
    out.append(f"s_add_u32 m0, s{sXB}, {slot + 4096}")
    for j in range(4 if nq == 4 else 2): out.append(dma(DX + j, SX, f"s{sXO2}", 1024 * j, fl('nt_x'), f"X{m}"))
    out.append(f"s_add_u32 s{sXO}, s{sXO}, 128")
    out.append(f"s_add_u32 s{sXO2}, s{sXO2}, 128")
    return out

def w_dma(n):
    out = [f"s_add_u32 m0, s{sWB}, {98304 + (n % 4) * 16384}"]
    for j in range(4): out.append(dma(DW + j, SW, f"s{sWOFF}", 1024 * j, fl('nt_w'), f"W{n}"))
    if n % 2 == 0: out.append(f"s_add_u32 s{sWOFF}, s{sWOFF}, 256")
    else: out.append(f"s_add_u32 s{sWOFF}, s{sWOFF}, {524288 - 256}")
    return out

def w_reads(n, T):
    sp_, a = T // 2, T % 2
    hl, sp = sp_ // 2, sp_ % 2
    out = []
    for s in range(2):
        for a2 in range(2):
            d = AW + 8 * (T % 4) + 4 * s + 2 * a2
            off = (n % 4) * 16384 + hl * 8192 + (32 * s + 4 * a2) * 128 + 8 * a
            out.append(f"ds_read_b64_tr_b16 {ar(d,2)}, v{WA+sp} offset:{off} ; need=W{n}")
    return out

def x_reads(m, nq):
    out = []
    for q in range(nq):
        for s in range(2):
            d = AX + 32 * (m % 2) + 8 * q + 4 * s
            off = (0 if m % 2 else 32768) + q * 2048
            out.append(f"ds_read_b128 {ar(d,4)}, v{XA+s} offset:{off} ; need=X{m}")
    return out

def qacc(hd, q, T):
    r = 128 + 32 * q + 4 * T
    return vr(r, 4) if hd == 0 else ar(r, 4)

def pf_load():
    return f"buffer_load_dword v{VPD}, v{VPF}, s[{SPF}:{SPF+3}], s{sPF} offen nt ; tag=PF"

def qproj_stage(b, n, nq, fill=None):
    hd, m = n % 2, n // 2
    nx = 8 if nq == 4 else 6
    slots = []; gaps = [[] for _ in range(64)]
    for T in range(8):
        for q in range(4):
            for s in range(2):
                if q >= nq: slots.append(None); continue
                acc = qacc(hd, q, T)
                c = "0" if (m == 0 and s == 0) else acc
                slots.append(f"{MF} {acc}, {ar(AW+8*(T%4)+4*s,4)}, {ar(AX+32*(m%2)+8*q+4*s,4)}, {c}")
    start = {3: 5, 4: 12, 5: 19, 6: 26, 7: 33}
    rd = w_reads(n, 2); gaps[0].append(rd[3])
    for T, g in start.items():
        for i, x in enumerate(w_reads(n, T)): gaps[g + i].append(x)
    if n < 17:
        for T, g in ((0, 45), (1, 53)):
            for i, x in enumerate(w_reads(n + 1, T)): gaps[g + i].append(x)
        for i, x in enumerate(w_reads(n + 1, 2)[:3]): gaps[61 + i].append(x)
    xr = []
    if n % 2 == 1 and m + 1 <= 8:
        xr = x_reads(m + 1, nq)
        for x, g in zip(xr, (9, 10, 16, 17, 23, 24, 30, 31)): gaps[g].append(x)
    for T in range(1, 8): gaps[8 * T - 1].append(f"WAITL W{n}.{T}")
    if n < 17: gaps[63].append(f"WAITL W{n+1}.0")
    req = []
    if n + 1 <= 17: req.append(f"W{n+1}")
    if n % 2 == 0 and m + 1 <= 8: req.append(f"X{m+1}")
    if n == 17: req += ["KV0", "KV1"]
    gaps[43].append("WAITV lgkmcnt(0) ; cover=" + ",".join(req))
    gaps[44].append("s_barrier ; pub=" + ",".join(req))
    def place(seq, first, step):
        g = first
        for x in seq:
            if x.startswith("buffer_"): gaps[g].append(x); g += step
            elif x.startswith("s_add_u32 m0"): gaps[g - 1].append(x)
            else: gaps[min(g - step + 1, 63)].append(x)
    if n % 2 == 0 and m + 2 <= 8: place(x_dma(m + 2, nq), 2, 5)
    if n in (14, 16):
        t0 = 2 if n == 14 else 4
        seq = []
        for t in (t0, t0 + 1):
            seq.append(f"s_add_u32 m0, s{sWB}, {t * 16384}")
            seq += kv_dma(t)
            seq += kv_adv()
        place(seq, 2, 5)
    if n + 4 <= 17: place(w_dma(n + 4), 46, 5)
    if OPT.get('pf') and n in (13, 15, 17)[:OPT['pf'] // 2]:
        gaps[20].append(pf_load()); gaps[22].append(f"s_add_u32 s{sPF}, s{sPF}, 16384")
    if fill is not None:
        for g in range(20 if n == 16 else 0, 64):
            if slots[g] is None: continue
            for _ in range(2):
                if fill: gaps[g].append(fill.pop(0))
    emit_slots(b, slots, gaps)
    if OPT.get('qstamps'): stamp(b)

def k_reads(unit, tile):
    out = []
    for kt in range(2):
        for s in range(4):
            f = 4 * kt + s
            off = (unit % 4) * 16384 + (2 * (s // 2) + kt) * 4096
            out.append(f"ds_read_b128 {ar(AK+4*f,4)}, v{KA + (s%2) + 2*(unit//4)} offset:{off} ; need=KV{tile}")
    return out

def v_reads(unit, tile):
    out = []
    for T in range(8):
        th, tl = T // 4, T % 4
        for a in range(2):
            off = (unit % 4) * 16384 + (2 * th + a) * 4096 + 2048
            out.append(f"ds_read_b64_tr_b16 {ar(AV+4*T+2*a,2)}, v{VA + tl + 4*(unit//4)} offset:{off} ; need=KV{tile}")
    return out

import sched
V_GAPS = list(range(25, 41)); K_GAPS = list(range(48, 56)); D_GAPS = [1, 9, 17, 23]
SM = sched.schedule(4, V_GAPS + K_GAPS, D_GAPS)
def sm_text(kind, q, e):
    s = S_ + 8 * q + e
    if kind == 'exp': return f"v_exp_f32 v{s}, v{s}"
    if kind == 'add': return f"v_add_f32 v{LS+q}, v{LS+q}, v{s}"
    return f"v_cvt_pk_bf16_f32 v{P_+4*q+e//2}, v{s-1}, v{s}"
def sm_items(nq, lo, hi):
    it = [(g, k[0] == 'exp', k) for k, g in SM.items() if k[1] < nq and lo <= g < hi]
    it.sort(key=lambda t: (t[0] % 64, t[1], -t[0]))
    return [(g, k) for g, _, k in it]

def qk(q, kt, s, czero=False):
    d = vr(S_ + 8 * q + 4 * kt, 4)
    c = d if s else ("0" if czero else vr(CI + 4 * q, 4))
    return f"{MF} {d}, {ar(AK+4*(4*kt+s),4)}, {ar(AQ(q)+4*s,4)}, {c}"

def pv(q, T, czero=False):
    d = vr(O_ + 32 * q + 4 * T, 4)
    return f"{MF} {d}, {ar(AV+4*T,4)}, {vr(P_+4*q,4)}, {'0' if czero else d}"

def attn_stage(b, k, nq, extra=None):
    kk = k % 32; u = k % 8
    slots = []; gaps = [[] for _ in range(64)]
    for q in (0, 1):
        for kt in range(2):
            for s in range(4): slots.append(qk(q, kt, s))
    for q in (2, 3):
        for T in range(8): slots.append(pv(q, T, kk == 1) if (q < nq and kk > 0) else None)
    for q in (2, 3):
        for kt in range(2):
            for s in range(4): slots.append(qk(q, kt, s) if q < nq else None)
    for q in (0, 1):
        for T in range(8): slots.append(pv(q, T, kk == 0))
    for g, key in sm_items(nq, 0, 128 if kk > 0 else 64): gaps[g % 64].append(sm_text(*key))
    for g, x in zip(V_GAPS, v_reads(u, k)): gaps[g].append(x)
    if k % 2 == 1:
        gaps[46].append(f"WAITV lgkmcnt(0) ; cover=KV{k+1},KV{k+2}")
        gaps[47].append(f"s_barrier ; pub=KV{k+1},KV{k+2}")
    else:
        gaps[47].append("s_waitcnt lgkmcnt(0)")
    for g, x in zip(K_GAPS, k_reads((u + 1) % 8, k + 1)): gaps[g].append(x)
    gaps[63].append("s_waitcnt lgkmcnt(0)")
    gaps[0].append(f"s_add_u32 m0, s{sWB}, {((k + 6) % 8) * 16384}")
    for x, g in zip(kv_dma(k + 6), D_GAPS): gaps[g].append(x)
    for i_, x in enumerate(kv_adv()): gaps[(42, 42, 43, 43, 44)[i_]].append(x)
    if OPT.get('pf') and k % 2 == 0:
        gaps[57].append(pf_load()); gaps[59].append(f"s_add_u32 s{sPF}, s{sPF}, 16384")
    if OPT.get('kvsmall'): gaps[44].append(f"s_and_b32 s{sKV}, s{sKV}, 0xffff")
    if extra:
        for g, x in extra: gaps[g].append(x)
    if OPT.get('astamps') and k % 2 == 0: stamp(b)
    if OPT.get('dmaonly'):
        slots = [None] * 64
        gaps = [[x for x in g if not x.startswith(('v_', 'ds_'))] for g in gaps]
    emit_slots(b, slots, gaps)

def xlane_reduce(b, reg, tmp, op):
    b(f"v_mov_b32 v{tmp}, v{reg}")
    b(f"v_permlane32_swap_b32 v{reg}, v{tmp}")
    b(f"{op} v{reg}, v{reg}, v{tmp}")
    b(f"v_mov_b32 v{tmp}, v{reg}")
    b(f"v_permlane16_swap_b32 v{reg}, v{tmp}")
    b(f"{op} v{reg}, v{reg}, v{tmp}")

def xlane_reduce_multi(b, regs, tmps, op):
    for sw in ("v_permlane32_swap_b32", "v_permlane16_swap_b32"):
        for r, t in zip(regs, tmps): b(f"v_mov_b32 v{t}, v{r}")
        for r, t in zip(regs, tmps): b(f"{sw} v{r}, v{t}")
        for r, t in zip(regs, tmps): b(f"{op} v{r}, v{r}, v{t}")

def stamp(b, idx=None):
    if not OPT['stamps']: return
    b(f"s_memtime s[{sSTAMP}:{sSTAMP+1}]\ns_memrealtime s[{sSTAMP+2}:{sSTAMP+3}]\ns_waitcnt lgkmcnt(0)")
    b(f"s_mov_b32 s95, m0\ns_mov_b32 m0, s96\nv_writelane_b32 v14, s{sSTAMP}, m0\nv_writelane_b32 v15, s{sSTAMP+2}, m0\ns_mov_b32 m0, s95\ns_add_u32 s96, s96, 1")

def stamp_dump(b, k, wave):
    if not OPT['stamps']: return
    b("s_waitcnt vmcnt(0)")
    stamp(b)
    if OPT['stamps'] == 2:
        b("s_load_dwordx2 s[92:93], s[0:1], 88\ns_waitcnt lgkmcnt(0)")
        b(f"s_cmp_lg_u32 s{wave}, 0\ns_cbranch_scc1 L_end{k+1}\ns_and_b32 s94, s97, 31\ns_cmp_lg_u32 s94, 5\ns_cbranch_scc1 L_end{k+1}")
        b(f"s_add_u32 s88, s92, {OPT.get('dbgoff',0)*(1-k)}\ns_addc_u32 s89, s93, 0\ns_mov_b32 s90, 256\ns_mov_b32 s91, 0x20000")
        sel = [0, 2, 3, 6, 7, 9, 10, 11] if k == 0 else [0, 1, 2, 3]
        b("s_mov_b64 exec, 1")
        for i, ix in enumerate(sel):
            b(f"v_readlane_b32 s94, v15, {ix}\ns_nop 3")
            if i == 0 and k == 0: b("s_not_b32 s94, s94")
            b(f"v_mov_b32 v1, s94\nv_mov_b32 v2, {4*(i + (0 if k == 0 else 8))}\nbuffer_atomic_umax v1, v2, s[88:91], 0 offen")
        return
    b("s_load_dwordx2 s[92:93], s[0:1], 96\ns_waitcnt lgkmcnt(0)")
    b(f"s_add_u32 s88, s92, {(48+k)*1024*1024}\ns_addc_u32 s89, s93, 0\ns_mov_b32 s90, 0x100000\ns_mov_b32 s91, 0x20000")
    b(f"s_lshl_b32 s94, s97, 2\ns_add_u32 s94, s94, s{wave}\ns_lshl_b32 s94, s94, 9")
    b("v_and_b32 v1, 63, v0\nv_lshlrev_b32 v1, 3, v1")
    b("buffer_store_dwordx2 v[14:15], v1, s[88:91], s94 offen")

def persist_regs(b):
    lane = T0; t1 = T0 + 1; t2 = T0 + 2; t3 = T0 + 3; g_ = T0 + 4; ihi = T0 + 5; i8 = T0 + 6; i16 = T0 + 7; r_ = T0 + 8; c4 = T0 + 9
    b(f"""v_and_b32 v{lane}, 63, v0
    v_lshrrev_b32 v{g_}, 4, v{lane}
    v_lshrrev_b32 v{ihi}, 3, v{lane}
    v_and_b32 v{i8}, 7, v{lane}
    v_and_b32 v{i16}, 15, v{lane}
    v_lshrrev_b32 v{r_}, 2, v{i16}
    v_and_b32 v{c4}, 3, v{lane}
    v_lshlrev_b32 v{VLN}, 4, v{lane}
    v_lshlrev_b32 v{VPF}, 7, v{lane}
    s_add_u32 s71, s63, s{sWB}
    v_add_u32 v{VO}, s71, v{VLN}""")
    b(f"""s_and_b32 s70, s{sWAVE}, 1
    s_lshl_b32 s70, s70, 12
    s_lshr_b32 s71, s{sWAVE}, 1
    s_lshl_b32 s71, s71, 7
    s_add_u32 s70, s70, s71
    v_lshlrev_b32 v{t1}, 8, v{ihi}
    v_add_u32 v{t1}, s70, v{t1}
    v_xor_b32 v{t2}, v{i8}, v{g_}
    v_lshl_add_u32 v{DK0}, v{t2}, 4, v{t1}
    v_xor_b32 v{t2}, 4, v{t2}
    v_lshl_add_u32 v{DK1}, v{t2}, 4, v{t1}
    v_add_u32 v{DK1}, 1024, v{DK1}
    v_lshlrev_b32 v{t2}, 1, v{g_}
    v_xor_b32 v{t2}, v{t2}, v{i8}
    v_lshl_add_u32 v{DV0}, v{t2}, 4, v{t1}
    v_add_u32 v{DV1}, 1024, v{DV0}""")
    b(f"""v_mul_u32_u24 v{t1}, 1152, v{ihi}
    v_lshl_add_u32 v{t1}, v{t2}, 4, v{t1}
    s_lshl_b32 s70, s{sWAVE}, 7
    v_add_u32 v{VWO}, s70, v{t1}
    v_lshrrev_b32 v{t1}, 1, v{lane}
    v_mul_u32_u24 v{t1}, 1152, v{t1}
    v_and_b32 v{t2}, 1, v{lane}
    v_lshl_add_u32 v{t1}, v{t2}, 4, v{t1}
    s_lshl_b32 s70, s{sWAVE}, 5
    s_add_u32 s70, s70, 1024
    v_add_u32 v{VWX}, s70, v{t1}""")
    b(f"""v_lshrrev_b32 v{t1}, 3, v{i16}
    v_lshlrev_b32 v{t1}, 10, v{t1}
    v_lshl_add_u32 v{t1}, v{i8}, 7, v{t1}
    v_lshrrev_b32 v{t3}, 1, v{i16}""")
    for s2 in range(2):
        b(f"v_xor_b32 v{t2}, {4*s2}, v{g_}\nv_xor_b32 v{t2}, v{t2}, v{t3}\nv_lshl_add_u32 v{KA+s2}, v{t2}, 4, v{t1}\nv_add_u32 v{KA+2+s2}, 0x10000, v{KA+s2}")
    b(f"""v_lshrrev_b32 v{t1}, 1, v{g_}
    v_lshlrev_b32 v{t1}, 10, v{t1}
    v_and_b32 v{t2}, 1, v{g_}
    v_lshl_add_u32 v{t2}, v{t2}, 2, v{r_}
    v_lshl_add_u32 v{t1}, v{t2}, 7, v{t1}
    v_lshl_add_u32 v{t1}, v{c4}, 3, v{t1}
    v_lshrrev_b32 v{t3}, 1, v{t2}""")
    for tl in range(4):
        b(f"v_xor_b32 v{t2}, {tl}, v{t3}\nv_lshl_add_u32 v{VA+tl}, v{t2}, 5, v{t1}\nv_add_u32 v{VA+4+tl}, 0x10000, v{VA+tl}")

def warm_code(b):
    if not OPT.get('warm'): return
    b(f"""s_getpc_b64 s[70:71]
    L_pc:
    s_sub_u32 s70, s70, L_pc-attn_kernel
    s_subb_u32 s71, s71, 0
    v_lshrrev_b32 v2, 3, v0
    v_and_b32 v2, 31, v2
    v_lshl_add_u32 v2, s2, 5, v2
    v_lshlrev_b32 v2, 7, v2
    v_min_u32 v2, L_codeend-attn_kernel-4, v2
    v_mov_b32 v3, s71
    v_add_co_u32 v2, vcc, s70, v2
    v_addc_co_u32 v3, vcc, 0, v3, vcc
    global_load_dword v4, v[2:3], off""")

def wave_code(b, nq, sfx):
    nx = 8 if nq == 4 else 6
    b(f"L_begin{sfx}:")
    lane = T0; t1 = T0 + 1; t2 = T0 + 2; t3 = T0 + 3; g_ = T0 + 4; ihi = T0 + 5; i8 = T0 + 6
    b(f"""v_and_b32 v{lane}, 63, v0
    v_lshrrev_b32 v{g_}, 4, v{lane}
    v_lshrrev_b32 v{ihi}, 3, v{lane}
    v_and_b32 v{i8}, 7, v{lane}""")
    b(f"s_lshl_b32 s{sT}, s{sWAVE}, 6")
    b(f"v_add_u32 v{t1}, s{sT}, v{ihi}")
    b(f"v_mul_u32_u24 v{t1}, 1152, v{t1}")
    for j in range(4):
        b(f"v_xor_b32 v{t2}, {4*(j%2)}, v{g_}")
        b(f"v_xor_b32 v{t2}, v{t2}, v{i8}")
        b(f"v_lshl_add_u32 v{t2}, v{t2}, 4, v{t1}")
        b(f"v_add_u32 v{DX+j}, {8*j*1152 - 1024*j}, v{t2}")
    b(f"""s_and_b32 s{sT}, s{sWAVE}, 1
    s_lshl_b32 s{sT}, s{sT}, 18
    s_lshr_b32 s{sT+1}, s{sWAVE}, 1
    s_lshl_b32 s{sT+1}, s{sT+1}, 7
    s_add_u32 s{sT}, s{sT}, s{sT+1}
    v_lshlrev_b32 v{t1}, 13, v{ihi}
    v_add_u32 v{t1}, s{sT}, v{t1}
    v_lshrrev_b32 v{t2}, 2, v{i8}
    v_xor_b32 v{t2}, v{t2}, v{g_}
    v_and_b32 v{t2}, 1, v{t2}
    v_lshl_add_u32 v{t1}, v{t2}, 6, v{t1}
    v_and_b32 v{t2}, 3, v{i8}
    v_lshl_add_u32 v{t1}, v{t2}, 4, v{t1}""")
    for j in range(4): b(f"v_add_u32 v{DW+j}, {8*j*8192 - 1024*j}, v{t1}")
    b(f"""s_mov_b32 s{sXO}, 0
    s_mov_b32 s{sXO2}, 36864
    s_mov_b32 s{sWOFF}, 0
    s_mov_b32 s{sKV}, 0
    s_mov_b32 s{sHEAD}, 0""")
    if OPT.get('rot'):
        b(f"s_mul_i32 s{sROT}, s97, {OPT['rot']}\ns_and_b32 s{sROT}, s{sROT}, 31\ns_lshl_b32 s{sROT}, s{sROT}, 13\ns_mov_b32 s{sKV}, s{sROT}\ns_mov_b32 s{sLIN}, 0")
    if OPT.get('pf'):
        b(f"s_lshr_b32 s{sPF}, s{sWAVE}, 1\ns_add_u32 s{sPF}, s{sPF}, 6\ns_lshl_b32 s{sPF}, s{sPF}, 13")
    b.ext(x_dma(0, nq)); b.ext(w_dma(0)); b.ext(w_dma(1)); b.ext(x_dma(1, nq)); b.ext(w_dma(2)); b.ext(w_dma(3))
    persist_regs(b)
    for t in (0, 1):
        b(f"s_add_u32 m0, s{sWB}, {t*16384}"); b.ext(kv_dma(t)); b.ext(kv_adv())
    i16 = T0 + 7; r_ = T0 + 8; c4 = T0 + 9
    b(f"""v_and_b32 v{i16}, 15, v{lane}
    v_lshrrev_b32 v{r_}, 2, v{i16}
    v_and_b32 v{c4}, 3, v{lane}
    v_lshlrev_b32 v{t1}, 7, v{i16}
    v_add_u32 v{t1}, s{sXB}, v{t1}
    v_add_u32 v{t1}, 32768, v{t1}
    v_lshrrev_b32 v{t3}, 1, v{i16}""")
    for s in range(2):
        b(f"v_xor_b32 v{t2}, {4*s}, v{g_}")
        b(f"v_xor_b32 v{t2}, v{t2}, v{t3}")
        b(f"v_lshl_add_u32 v{XA+s}, v{t2}, 4, v{t1}")
    b(f"""v_lshl_add_u32 v{t1}, v{g_}, 3, v{r_}
    v_lshlrev_b32 v{t1}, 7, v{t1}
    v_lshl_add_u32 v{t1}, v{c4}, 4, v{t1}
    v_add_u32 v{t1}, 98304, v{t1}
    v_lshrrev_b32 v{t3}, 1, v{r_}""")
    for sp in range(2):
        b(f"v_xor_b32 v{t2}, {sp}, v{t3}")
        b(f"v_lshl_add_u32 v{WA+sp}, v{t2}, 6, v{t1}")
    stamp(b, 0)
    b("WAITV ; cover=X0,W0")
    b("s_barrier ; pub=X0,W0")
    b.ext(x_reads(0, nq))
    for T in (0, 1): b.ext(w_reads(0, T))
    b.ext(w_reads(0, 2)[:3])
    b("WAITL W0.0")
    stamp(b, 1)
    for n in range(0, 4): qproj_stage(b, n, nq)
    b(f"s_mov_b32 s{sCNT}, 0")
    b(f".p2align 3\nL_qp{sfx}:")
    b("LOOPBEGIN qp 2 4")
    for n in range(4, 8): qproj_stage(b, n, nq)
    b(f"s_add_u32 s{sCNT}, s{sCNT}, 1\ns_cmp_lt_u32 s{sCNT}, 2\ns_cbranch_scc1 L_qp{sfx}")
    b("LOOPEND qp")
    fill = []; post = []
    for sp in range(4):
        for q in range(nq):
            rs = [128 + 32 * q + 8 * sp + 2 * i_ for i_ in range(4)]
            for r in rs: fill += [f"v_mul_f32 v{r}, s{sC}, v{r}", f"v_mul_f32 v{r+1}, s{sC}, v{r+1}"]
            for r in rs: fill.append(f"v_cvt_pk_bf16_f32 v{r}, v{r}, v{r+1}")
            for i_, r in enumerate(rs): post.append(f"v_accvgpr_write_b32 a{AQ(q) + 4*sp + i_}, v{r}")
    for n in range(12, 18): qproj_stage(b, n, nq, fill if n >= 16 else None)
    stamp(b, 2)
    b.ext(fill); b.ext(post)
    def conv1(q, pk):
        out = []
        for sp in range(4):
            rs = [128 + 32 * q + 8 * sp + 2 * i_ for i_ in range(4)]
            for r in rs: out += [f"v_accvgpr_read_b32 v{r}, a{r}", f"v_accvgpr_read_b32 v{r+1}, a{r+1}"]
            for r in rs:
                if pk and OPT.get('pk', 1): out.append(f"v_pk_mul_f32 v[{r}:{r+1}], v[{r}:{r+1}], s[{sC}:{sC+1}]")
                else: out += [f"v_mul_f32 v{r}, s{sC}, v{r}", f"v_mul_f32 v{r+1}, s{sC}, v{r+1}"]
            for r in rs: out.append(f"v_cvt_pk_bf16_f32 v{r}, v{r}, v{r+1}")
            for i_, r in enumerate(rs): out.append(f"v_accvgpr_write_b32 a{AQ2(q) + 4*sp + i_}, v{r}")
        return out
    def pre_mfma(): return [qk(q, 0, s_, czero=True) for q in range(nq) for s_ in range(4)]
    def pre_max():
        t = B()
        for q in range(nq):
            s_ = S_ + 8 * q
            t(f"v_max3_f32 v{s_}, v{s_}, v{s_+1}, v{s_+2}")
        for q in range(nq):
            s_ = S_ + 8 * q
            t(f"v_max_f32 v{s_}, v{s_}, v{s_+3}")
        xlane_reduce_multi(t, [S_ + 8 * q for q in range(nq)], [T0 + q for q in range(nq)], "v_max_f32")
        for q in range(nq):
            for r in range(4): t(f"v_sub_f32 v{CI+4*q+r}, 0, v{S_+8*q}")
        return t.L
    def weave(mf, st, per):
        for x in mf:
            b(x)
            for _ in range(per):
                if st: b(st.pop(0))
    def zipper(a_, b_, ra, rb):
        out = []
        while a_ or b_:
            for _ in range(ra):
                if a_: out.append(a_.pop(0))
            for _ in range(rb):
                if b_: out.append(b_.pop(0))
        return out
    b.ext(conv1(0, True))
    b.ext(k_reads(0, 0))
    b.ext(conv1(1, True))
    c2 = conv1(2, False)
    b.ext([x for x in c2 if 'accvgpr_read' in x])
    b("s_waitcnt lgkmcnt(0)")
    st = [x for x in c2 if 'accvgpr' not in x]
    weave(pre_mfma(), st, 3 if nq == 4 else 4)
    rest = st + [x for x in c2 if 'accvgpr_write' in x] + (conv1(3, True) if nq == 4 else [])
    b.ext(rest[:10]); b.ext(zipper(rest[10:], pre_max(), 2, 1))
    stamp(b, 3)
    b(f".p2align 3\nL_head{sfx}:")
    b("LOOPBEGIN head 2 32")
    b(f"s_cmp_lg_u32 s{sSAFE}, 0\ns_cbranch_scc1 L_maxpass{sfx}")
    b(f"L_maxdone{sfx}:")
    for q in range(nq): b(f"v_mov_b32 v{LS+q}, 0")
    ex = [(27, f"s_add_u32 m0, s{sXB}, 131072")]
    for j in range(4):
        ex += [(28 + 4 * j, f"s_add_u32 s{sT}, s{sWOS}, {8192*j}"), (29 + 4 * j, dma(VWO, SWO, f"s{sT}", 1024 * j, fl('nt_wo'), "WO"))]
    ex += [(44, f"s_add_u32 m0, s{sXB}, {131072 + 4096}"), (45, dma(VWX, SWO, f"s{sWXS}", 0, fl('nt_wo'), "WO"))]
    stamp(b)
    attn_stage(b, 0, nq, ex)
    attn_stage(b, 1, nq)
    b(f"s_mov_b32 s{sCNT}, 0")
    b(f".p2align 3\nL_at{sfx}:")
    b("LOOPBEGIN at 4 8")
    for k in range(2, 8):
        ex = None
        if k == 7: ex = [(60, f"s_add_u32 s{sCNT}, s{sCNT}, 1"), (62, f"s_cmp_eq_u32 s{sCNT}, 4")]
        attn_stage(b, k, nq, ex)
    b(f"s_cbranch_scc1 L_atx{sfx}")
    b("LOOPEXIT at")
    for k in range(8, 10): attn_stage(b, k, nq)
    b(f"s_branch L_at{sfx}")
    b("LOOPEND at")
    b(f"L_atx{sfx}:")
    b(f"s_cmp_lg_u32 s{sHEAD}, 0\ns_cbranch_scc1 L_fin{sfx}")
    b("LOOPEXIT head")

    WF = [S_ + 4, S_ + 12, S_ + 20, S_ + 28, T0 + 16]
    def lsum(qs):
        t = B()
        xlane_reduce_multi(t, [LS + q for q in qs], [T0 + 4 + q for q in qs], "v_add_f32")
        for q in qs:
            t(f"v_cmp_nlt_f32 vcc, v{LS+q}, v{T0+8}")
            t(f"v_rcp_f32 v{LS+q}, v{LS+q}")
            t(f"s_or_b32 s{sFLAG}, s{sFLAG}, vcc_lo\ns_or_b32 s{sFLAG}, s{sFLAG}, vcc_hi")
        return t.L
    cnt = [0]
    def onorm(q, pk, flag):
        out = []
        for sp in range(4):
            d = P_ + 4 * (cnt[0] % 2); cnt[0] += 1
            rs = [O_ + 32 * q + 8 * sp + 2 * i_ for i_ in range(4)]
            for r in rs:
                if pk and OPT.get('pk', 1): out.append(f"v_pk_mul_f32 v[{r}:{r+1}], v[{r}:{r+1}], v[{LS+q-(q%2)}:{LS+q-(q%2)+1}] op_sel:[0,{q%2}] op_sel_hi:[1,{q%2}]")
                else: out += [f"v_mul_f32 v{r}, v{r}, v{LS+q}", f"v_mul_f32 v{r+1}, v{r+1}, v{LS+q}"]
            for i_, r in enumerate(rs): out.append(f"v_cvt_pk_bf16_f32 v{d+i_}, v{r}, v{r+1}")
            out.append(f"s_add_u32 s{sT}, s{sOO}, {sp*122880}")
            out.append(f"buffer_store_dwordx4 {vr(d,4)}, v{VO}, s[{SO}:{SO+3}], s{sT} offen offset:{1024*q}{flag}")
        return out
    def wo_reads(extra):
        t = B()
        t(f"s_add_u32 s{sT+1}, s{sXB}, 65536")
        for tl in range(4): t(f"v_add_u32 v{T0+12+tl}, s{sT+1}, v{VA+4+tl}")
        for tl in range(4):
            for a in range(2): t(f"ds_read_b64_tr_b16 v[{WF[tl]+2*a}:{WF[tl]+2*a+1}], v{T0+12+tl} offset:{2048*a}")
        if extra:
            t(f"v_lshrrev_b32 v{T0+9}, 1, v{VLN}\nv_add_u32 v{T0+9}, s{sT+1}, v{T0+9}\nv_add_u32 v{T0+9}, {65536+4096}, v{T0+9}")
            t(f"ds_read_b64_tr_b16 v[{WF[4]}:{WF[4]+1}], v{T0+9} offset:0\nds_read_b64_tr_b16 v[{WF[4]+2}:{WF[4]+3}], v{T0+9} offset:512")
        return t.L
    def wo_stores(extra, flag):
        t = B(); t("s_waitcnt lgkmcnt(0)")
        for tl in range(4): t(f"buffer_store_dwordx4 {vr(WF[tl],4)}, v{VLN}, s[{SWT}:{SWT+3}], s{sWTS} offen offset:{1024*tl}{flag}")
        if extra:
            t(f"s_lshl_b32 s{sT+1}, s{sWAVE}, 10\ns_add_u32 s{sT+1}, s{sT+1}, 32768")
            t(f"buffer_store_dwordx4 {vr(WF[4],4)}, v{VLN}, s[{SWT}:{SWT+3}], s{sT+1} offen{flag}")
        return t.L
    def drain(st):
        slots = []; gaps = [[] for _ in range(64)]
        for q in (2, 3):
            for T in range(8): slots.append(pv(q, T) if q < nq else None)
        rem = sorted(sm_items(nq, 64, 128), key=lambda t: t[0])
        b.ext([sm_text(*k_) for g, k_ in rem if k_[1] == 2 and k_[0] != 'add'])
        crit = [k_ for g, k_ in rem if k_[1] == 3 and k_[0] != 'add']
        crit.sort(key=lambda k_: (k_[2], k_[0] == 'cvt'))
        g = 0
        for k_ in crit:
            if k_[0] == 'exp' and gaps[g]: g += 1
            gaps[min(g, 6)].append(sm_text(*k_))
            if k_[0] == 'exp': g += 1
        late = [sm_text(*k_) for g_, k_ in rem if k_[0] == 'add']
        st[:0] = []
        for i_, x in enumerate(late): gaps[min(7 + i_ // 2, 15) if nq == 4 else 0].append(x)
        for g in range(16):
            if slots[g] is None: continue
            room = 2 - sum(2 if 'exp' in x else 1 for x in gaps[g])
            while room > 0 and st: gaps[g].append(st.pop(0)); room -= 1
        for i_, s_ in enumerate(slots):
            if s_: b(s_)
            b.ext(gaps[i_])
    hi = list(range(2, nq))
    movs = [f"v_accvgpr_mov_b32 a{AQ(q)+i_}, a{AQ2(q)+i_}" for q in range(nq) for i_ in range(16)]
    b(f"v_mov_b32 v{T0+8}, {LTHR}")
    b("WAITV ; cover=WO")
    f0 = K2F[OPT.get('of0', 0)]
    st = lsum([0, 1]) + onorm(0, False, f0)
    drain(st)
    stamp(b, 4)
    b.ext(wo_reads(True))
    b.ext(zipper(st, lsum(hi), 2, 1))
    b.ext(movs)
    st = onorm(1, False, f0)
    weave(pre_mfma(), st, 3 if nq == 4 else 4)
    b.ext(st)
    rest = []
    for q in hi: rest += onorm(q, True, f0)
    b.ext(zipper(rest, pre_max(), 2, 1))
    b.ext(wo_stores(True, f0))
    b(f"""s_add_u32 s{sOO}, s{sOO}, {4*122880}
    s_add_u32 s{sWOS}, s{sWOS}, 512
    s_add_u32 s{sWTS}, s{sWTS}, 16384
    s_mov_b32 s{sWXS}, 0x100000
    s_mov_b32 s{sHEAD}, 1""")
    stamp(b)
    b(f"s_branch L_head{sfx}")
    b("LOOPEND head")
    b(f"L_fin{sfx}:")
    f1 = K2F[OPT.get('of', 0)]
    WF[:4] = [CI, CI + 4, CI + 8, CI + 12]
    b(f"v_mov_b32 v{T0+8}, {LTHR}")
    b("WAITV ; cover=WO")
    b.ext(wo_reads(False))
    st = lsum([0, 1]) + onorm(0, False, f1)
    drain(st)
    stamp(b, 4)
    b.ext(st)
    b.ext(wo_stores(False, f1))
    b.ext(zipper(onorm(1, True, f1), lsum(hi), 2, 1))
    for q in hi: b.ext(onorm(q, True, f1))
    stamp(b)
    b(f"s_branch L_vote")
    b(f"L_maxpass{sfx}:")
    for q in range(nq): b(f"v_mov_b32 v{T0+8+q}, 0xff800000")
    for s2 in range(2): b(f"v_add_u32 v{T0+12+s2}, 65536, v{KA+2+s2}")
    b(f"s_lshl_b32 s{sT}, s{sHEAD}, 18\ns_mov_b32 s{sCNT}, 0")
    b(f"L_mp{sfx}:")
    b(f"s_barrier\ns_add_u32 m0, s{sWB}, 131072")
    b(dma(DK0, SK, f"s{sT}", 0, "", "MP")); b(dma(DK1, SK, f"s{sT}", 1024, "", "MP"))
    b("s_waitcnt vmcnt(0)\ns_barrier")
    for kt in range(2):
        for s in range(4):
            b(f"ds_read_b128 {ar(ASP+4*(4*kt+s),4)}, v{T0+12+s%2} offset:{(2*(s//2)+kt)*4096}")
    b("s_waitcnt lgkmcnt(0)")
    for q in range(nq):
        for kt in range(2):
            for s in range(4):
                d = vr(S_ + 8 * q + 4 * kt, 4)
                b(f"{MF} {d}, {ar(ASP+4*(4*kt+s),4)}, {ar(AQ(q)+4*s,4)}, {d if s else '0'}")
    for q in range(nq):
        for e in range(0, 8, 2): b(f"v_max3_f32 v{T0+8+q}, v{T0+8+q}, v{S_+8*q+e}, v{S_+8*q+e+1}")
    b(f"s_add_u32 s{sT}, s{sT}, 8192\ns_add_u32 s{sCNT}, s{sCNT}, 1\ns_cmp_lt_u32 s{sCNT}, 32\ns_cbranch_scc1 L_mp{sfx}")
    b("s_barrier")
    xlane_reduce_multi(b, [T0 + 8 + q for q in range(nq)], [T0 + q for q in range(nq)], "v_max_f32")
    for q in range(nq):
        for r in range(4): b(f"v_sub_f32 v{CI+4*q+r}, 0, v{T0+8+q}")
    b(f"s_branch L_maxdone{sfx}")

def kernel1():
    b = B()
    b("attn_kernel:")
    b("s_cmp_ge_u32 s2, 256\ns_cbranch_scc1 L_end1")
    if OPT['stamps']: b("s_mov_b32 s96, 0\nv_mov_b32 v14, 0\nv_mov_b32 v15, 0")
    stamp(b)
    b("s_load_dwordx16 s[48:63], s[0:1], 0\ns_load_dwordx4 s[64:67], s[0:1], 64\ns_load_dwordx2 s[46:47], s[0:1], 96")
    b(f"""s_mov_b32 s97, s2
    s_and_b32 s3, s2, 7
    s_lshr_b32 s2, s2, 3""")
    warm_code(b)
    b(f"""v_lshrrev_b32 v1, 6, v0
    s_and_b32 s68, s3, 1
    s_lshl_b32 s68, s68, 2
    s_and_b32 s69, s2, 3
    s_add_u32 s68, s68, s69        ; b
    v_readfirstlane_b32 s{sWAVE}, v1
    s_bfe_u32 s69, s3, 0x10001
    s_lshl_b32 s69, s69, 3
    s_lshr_b32 s70, s2, 2
    s_add_u32 s69, s69, s70        ; hp
    s_lshr_b32 s3, s3, 2           ; blk
    s_lshl_b32 s{sWB}, s{sWAVE}, 12
    s_lshl_b32 s{sXB}, s{sWAVE}, 13
    s_mov_b32 s{sC}, {CSCALE}
    s_mov_b32 s{sC+1}, {CSCALE}
    s_mov_b32 s{sSAFE}, 0
    s_mov_b32 s{sFLAG}, 0
    s_cmp_eq_u32 s3, 0
    s_waitcnt lgkmcnt(0)
    s_cselect_b64 s[48:49], s[48:49], s[58:59]
    s_cselect_b64 s[50:51], s[50:51], s[60:61]
    s_cselect_b64 s[52:53], s[52:53], s[62:63]
    s_cselect_b64 s[54:55], s[54:55], s[64:65]
    s_cselect_b64 s[56:57], s[56:57], s[66:67]""")
    b(f"""s_mul_i32 s71, s68, 276480
    s_add_u32 s{SX}, s48, s71
    s_addc_u32 s{SX+1}, s49, 0
    s_mov_b32 s{SX+2}, 276480
    s_mov_b32 s{SX+3}, 0x20000
    s_lshl_b32 s71, s69, 9
    s_add_u32 s{SW}, s54, s71
    s_addc_u32 s{SW+1}, s55, 0
    s_sub_u32 s{SW+2}, 4718592, s71
    s_mov_b32 s{SW+3}, 0x20000
    s_lshl_b32 s71, s68, 4
    s_add_u32 s71, s71, s69
    s_lshl_b32 s70, s71, 19
    s_add_u32 s{SK}, s50, s70
    s_addc_u32 s{SK+1}, s51, 0
    s_mov_b32 s{SK+2}, 524288
    s_mov_b32 s{SK+3}, 0x20000
    s_add_u32 s{SV}, s52, s70
    s_addc_u32 s{SV+1}, s53, 0
    s_sub_u32 s{SV}, s{SV}, 2048
    s_subb_u32 s{SV+1}, s{SV+1}, 0
    s_mov_b32 s{SV+2}, {524288+2048}
    s_mov_b32 s{SV+3}, 0x20000
    s_bitcmp1_b32 s{sWAVE}, 0
    s_cselect_b64 s[{SPF}:{SPF+1}], s[52:53], s[50:51]
    s_add_u32 s{SPF}, s{SPF}, s70
    s_addc_u32 s{SPF+1}, s{SPF+1}, 0
    s_mov_b32 s{SPF+2}, 524288
    s_mov_b32 s{SPF+3}, 0x20000
    s_mul_i32 s70, s3, {O_BLK}
    s_add_u32 s{SO}, s46, s70
    s_addc_u32 s{SO+1}, s47, 0
    s_mov_b32 s{SO+2}, {O_BLK}
    s_mov_b32 s{SO+3}, 0x20000
    s_mul_i32 s70, s71, 36864
    s_add_u32 s{SWO}, s56, s70
    s_addc_u32 s{SWO+1}, s57, 0
    s_mov_b32 s{SWO+2}, 36864
    s_mov_b32 s{SWO+3}, 0x20000
    s_mul_i32 s71, s3, {WOT_BLK}
    s_add_u32 s70, s70, s71
    s_add_u32 s70, s70, {WOT_OFF}
    s_add_u32 s{SWT}, s46, s70
    s_addc_u32 s{SWT+1}, s47, 0
    s_mov_b32 s{SWT+2}, 36864
    s_mov_b32 s{SWT+3}, 0x20000
    s_mul_i32 s62, s69, {8*122880}
    s_mul_i32 s63, s68, 15360        ; b*15*1024""")
    b("L_restart:")
    b(f"""s_mov_b32 s{sOO}, s62
    s_mov_b32 s{sWOS}, 0
    s_mov_b32 s{sWXS}, 0
    s_mov_b32 s{sWTS}, s{sWB}
    s_cmp_eq_u32 s{sWAVE}, 3
    s_cbranch_scc1 L_begin3""")
    wave_code(b, 4, "4")
    b(".p2align 6")
    wave_code(b, 3, "3")
    b("L_vote:")
    b(f"""s_cmp_lg_u32 s{sSAFE}, 0
    s_cbranch_scc1 L_done1
    v_mov_b32 v{T0}, s{sFLAG}
    s_lshl_b32 s{sT}, s{sWAVE}, 2
    s_add_u32 s{sT}, s{sT}, {131072+7168}
    v_mov_b32 v{T0+1}, s{sT}
    ds_write_b32 v{T0+1}, v{T0}
    v_mov_b32 v{T0+1}, {131072+7168}
    s_waitcnt lgkmcnt(0)
    s_barrier
    ds_read_b128 v[{T0+4}:{T0+7}], v{T0+1}
    s_waitcnt lgkmcnt(0)
    v_or_b32 v{T0+4}, v{T0+4}, v{T0+5}
    v_or3_b32 v{T0+4}, v{T0+4}, v{T0+6}, v{T0+7}
    v_readfirstlane_b32 s{sT}, v{T0+4}
    s_cmp_eq_u32 s{sT}, 0
    s_cbranch_scc1 L_done1
    s_mov_b32 s{sSAFE}, 1
    s_waitcnt vmcnt(0)
    s_barrier
    s_branch L_restart""")
    b("L_done1:")
    stamp_dump(b, 0, sWAVE)
    b("L_end1:\ns_endpgm")
    return b.L

def resolve_waits(L):
    out = []
    for i, x in enumerate(L):
        if x.startswith("WAITL"):
            tag = x.split()[1]
            n, T = tag[1:].split('.'); T = int(T)
            dst = set(range(AW + 8 * (T % 4), AW + 8 * (T % 4) + 8))
            cnt = 0; found = False
            for y in reversed(out):
                if y.startswith(("s_waitcnt", "WAITV")) and "lgkmcnt(0)" in y:
                    found = True; cnt = None; break
                if y.startswith("ds_"):
                    I = Ins(y)
                    if any(k == 'a' and r in dst for k, r in I.wr) or (T == 0 and 'need=X' in y):
                        found = True; break
                    cnt += 1
            assert found, x
            if cnt is not None:
                assert cnt <= 15
                out.append(f"s_waitcnt lgkmcnt({cnt})")
        else: out.append(x)
    return out

def expand_trace(L):
    def shift(line, name, it, step):
        if it == 0: return line
        def rep(m):
            k, n = m.group(1), int(m.group(2))
            if name == 'qp':
                if k == 'W': return f"W{n + step*it}"
                if k == 'X': return f"X{n + step*it//2}"
                return m.group(0)
            if k == 'KV': return f"KV{n + step*it}"
            return m.group(0)
        if ';' not in line: return line
        a, c = line.split(';', 1)
        return a + ';' + re.sub(r'\b(KV|W|X)(\d+)\b', rep, c)
    def go(i, stop):
        res = []
        while i < len(L):
            x = L[i]
            if x.startswith("LOOPBEGIN"):
                _, name, cnt, step = x.split(); cnt = int(cnt); step = int(step)
                body, j = go(i + 1, name)
                for it in range(cnt):
                    for y in body:
                        if y == f"LOOPEXIT {name}":
                            if it == cnt - 1: break
                            continue
                        res.append(shift(y, name, it, step))
                i = j + 1; continue
            if x.startswith("LOOPEND") and x.split()[1] == stop: return res, i
            res.append(x); i += 1
        return res, i
    return go(0, None)[0]

def resolve_vm(L):
    idx = [f"{x} ;#{i}" if x.startswith("WAITV") else x for i, x in enumerate(L)]
    tr = expand_trace(idx)
    q = []; best = {}
    for x in tr:
        if x.startswith("L_maxpass"): break
        c = x.split(';', 1)[1] if ';' in x else ''
        if x.startswith(("buffer_", "global_")):
            m = re.search(r'tag=(\w+)', c); q.append(m.group(1) if m else 'other')
        elif x.startswith("WAITV"):
            tags = set(re.search(r'cover=([\w,]*)', c).group(1).split(','))
            i = int(x.rsplit('#', 1)[1])
            n = 0
            for t in reversed(q):
                if t in tags: break
                n += 1
            best[i] = min(best.get(i, 63), n, 63)
    out = []
    for i, x in enumerate(L):
        if x.startswith("WAITV"):
            a, c = x.split(';', 1)
            out.append(f"s_waitcnt vmcnt({best[i]}) {a[5:].strip()} ;{c}")
        else: out.append(x)
    return out

def check_protocol(L, label):
    tr = expand_trace(L)
    q = []; done = set(); issued = {}; pub = set(); errs = 0
    for x in tr:
        if x.startswith("L_maxpass"): break
        c = x.split(';', 1)[1] if ';' in x else ''
        if x.startswith("buffer_") or x.startswith("global_"):
            m = re.search(r'tag=(\w+)', c); q.append(m.group(1) if m else 'other')
        elif x.startswith("s_waitcnt"):
            m = re.search(r'vmcnt\((\d+)\)', x)
            if m:
                n = int(m.group(1))
                while len(q) > n: done.add(q.pop(0))
            m = re.search(r'needtag=(\w+)', c)
            if m and m.group(1) in q: print(label, "ERR needtag", x); errs += 1
        elif x.startswith("s_barrier"):
            m = re.search(r'pub=([\w,]*)', c)
            if m:
                for t in m.group(1).split(','):
                    if not t: continue
                    if t in q or (t not in done): print(label, "ERR publish not landed", t, x); errs += 1
                    pub.add(t)
        elif x.startswith("ds_read"):
            m = re.search(r'need=(\w+)', c)
            if m and m.group(1) not in pub and m.group(1) not in ('KV64',): print(label, "ERR read unpublished", x); errs += 1
        assert len(q) <= 63, ("vmcnt overflow", x)
    return errs

def finish(L):
    L = resolve_waits(L)
    return L

def strip_markers(L):
    return [x for x in L if not x.startswith(("LOOPBEGIN", "LOOPEND", "LOOPEXIT"))]

def kernel2():
    b = B()
    ACC = 0
    FR = 16
    D = 4
    b("oproj_kernel:")
    b("s_cmp_ge_u32 s2, 240\ns_cbranch_scc1 L_end2")
    if OPT['stamps']: b("s_mov_b32 s96, 0\nv_mov_b32 v14, 0\nv_mov_b32 v15, 0\ns_mov_b32 s97, s2")
    stamp(b)
    b("s_load_dwordx2 s[46:47], s[0:1], 96\ns_load_dwordx2 s[48:49], s[0:1], 80")
    b(f"""s_and_b32 s3, s2, 7
    s_lshr_b32 s2, s2, 3
    v_lshrrev_b32 v1, 6, v0
    s_mul_i32 s20, s2, 43
    s_lshr_b32 s20, s20, 8          ; j/6
    v_readfirstlane_b32 s32, v1
    s_mul_i32 s21, s20, 6
    s_sub_u32 s21, s2, s21          ; nt
    s_and_b32 s22, s3, 3
    s_mul_i32 s22, s22, 5
    s_add_u32 s20, s20, s22         ; mt
    s_lshr_b32 s3, s3, 2            ; blk
    v_and_b32 v2, 63, v0
    v_lshlrev_b32 v2, 4, v2
    v_add_u32 v3, 4096, v2
    s_mul_i32 s22, s3, {O_BLK}
    s_mul_i32 s23, s20, 6144
    s_add_u32 s22, s22, s23
    s_mul_i32 s24, s3, {WOT_BLK}
    s_mul_i32 s25, s21, 6144
    s_add_u32 s24, s24, s25
    s_add_u32 s24, s24, {WOT_OFF}
    s_mul_i32 s34, s32, {32*122880}   ; O soffset
    s_mul_i32 s35, s32, {32*36864}    ; W soffset
    s_waitcnt lgkmcnt(0)
    s_add_u32 s4, s46, s22
    s_addc_u32 s5, s47, 0
    s_sub_u32 s6, {O_BLK}, s23
    s_mov_b32 s7, 0x20000
    s_add_u32 s8, s46, s24
    s_addc_u32 s9, s47, 0
    s_sub_u32 s10, {WOT_BLK}, s25
    s_mov_b32 s11, 0x20000
    s_mov_b32 s12, s48
    s_mov_b32 s13, s49
    s_mov_b32 s14, {8*240*1152*2}
    s_mov_b32 s15, 0x20000""")
    def loads(slot):
        out = []
        for i in range(6):
            r = FR + 48 * slot + 4 * i
            out.append(f"buffer_load_dwordx4 {vr(r,4)}, v{2 if i < 4 else 3}, s[8:11], s35 offen offset:{1024*(i%4)}{K2F[OPT.get('k2f',0)]}")
        for i in range(6):
            r = FR + 48 * slot + 24 + 4 * i
            out.append(f"buffer_load_dwordx4 {vr(r,4)}, v{2 if i < 4 else 3}, s[4:7], s34 offen offset:{1024*(i%4)}{K2F[OPT.get('k2f',0)]}")
        if OPT.get('k2small'):
            out.append("s_xor_b32 s34, s34, 122880*0+8192"); out.append("s_xor_b32 s35, s35, 8192")
        else:
            out.append("s_add_u32 s34, s34, 122880"); out.append("s_add_u32 s35, s35, 36864")
        return out
    for s in range(D): b.ext(loads(s))
    def step(slot, first, prefetch, N):
        b(f"s_waitcnt vmcnt({N})")
        slots = []; gaps = [[] for _ in range(36)]
        for q in range(6):
            for n in range(6):
                acc = ar(ACC + 4 * (6 * q + n), 4)
                slots.append(f"{MF} {acc}, {vr(FR+48*slot+4*n,4)}, {vr(FR+48*slot+24+4*q,4)}, {'0' if first else acc}")
        if prefetch:
            ld = loads(slot)
            for q in range(6): gaps[6 * q + 5].append(ld[6 + q])
            for n in range(6): gaps[30 + n].append(ld[n])
            gaps[35] += ld[12:]
        if OPT.get('k2nomfma'): slots = [x if i % 6 == 5 else None for i, x in enumerate(slots)]
        emit_slots(b, slots, gaps)
    if OPT['stamps']: b("s_waitcnt vmcnt(36)")
    stamp(b)
    for s in range(D): step(s, s == 0, True, 36)
    b("s_mov_b32 s36, 0\n.p2align 3\nL_k2:")
    for s in range(D): step(s, False, True, 36)
    b("s_add_u32 s36, s36, 1\ns_cmp_lt_u32 s36, 6\ns_cbranch_scc1 L_k2")
    for s in range(D): step(s, False, False, 12 * (D - 1 - s))
    stamp(b)
    b("v_lshlrev_b32 v4, 0, v2")
    for w in range(4):
        b(f"s_cmp_eq_u32 s32, {w}\ns_cbranch_scc1 L_red{w}")
    for w in range(4):
        b(f"L_red{w}:")
        cnt = 0
        for q in range(6):
            for n in range(6):
                own = (q // 3) * 2 + (n // 3)
                if own == w: continue
                src = (w - own - 1) % 4
                t = (q % 3) * 3 + n % 3
                addr = own * 27648 + src * 9216 + t * 1024
                base, off = divmod(addr, 65536)
                b(f"ds_write_b128 v{4 if base == 0 else 5}, {ar(ACC+4*(6*q+n),4)} offset:{off}") if True else None
        b("s_waitcnt lgkmcnt(0)\ns_barrier")
        q0, n0 = 3 * (w // 2), 3 * (w % 2)
        for t in range(9):
            for src in range(3):
                addr = w * 27648 + src * 9216 + t * 1024
                base, off = divmod(addr, 65536)
                b(f"ds_read_b128 {vr(FR+12*t+4*src,4)}, v{4 if base == 0 else 5} offset:{off}")
                if (t * 3 + src) == 14: b("s_waitcnt lgkmcnt(8)")
        for t in range(9):
            q, n = q0 + t // 3, n0 + t % 3
            for r in range(4): b(f"v_accvgpr_read_b32 v{FR+128+4*t+r}, a{ACC+4*(6*q+n)+r}")
        b("s_waitcnt lgkmcnt(0)")
        for t in range(9):
            for r in range(4):
                x = FR + 128 + 4 * t + r
                b(f"v_add_f32 v{FR+12*t+r}, v{FR+12*t+r}, v{FR+12*t+4+r}")
                b(f"v_add_f32 v{x}, v{x}, v{FR+12*t+8+r}")
                b(f"v_add_f32 v{x}, v{x}, v{FR+12*t+r}")
            b(f"v_cvt_pk_bf16_f32 v{FR+170+2*t}, v{FR+128+4*t}, v{FR+128+4*t+1}")
            b(f"v_cvt_pk_bf16_f32 v{FR+170+2*t+1}, v{FR+128+4*t+2}, v{FR+128+4*t+3}")
        for t in range(9):
            q, n = q0 + t // 3, n0 + t % 3
            b(f"buffer_store_dwordx2 v[{FR+170+2*t}:{FR+170+2*t+1}], v{6 + (q%3)}, s[12:15], s37 offen offset:{32*n}")
        stamp_dump(b, 1, 32)
        b("s_endpgm")
    b("L_end2:\ns_endpgm\nL_codeend:")
    i = b.L.index("v_lshlrev_b32 v4, 0, v2")
    setup = f"""v_mov_b32 v4, v2
    v_add_u32 v5, 0x10000, v2
    v_and_b32 v6, 15, v0
    v_mul_u32_u24 v6, 2304, v6
    v_bfe_u32 v7, v0, 4, 2
    v_lshl_add_u32 v6, v7, 3, v6
    v_add_u32 v7, {16*2304}, v6
    v_add_u32 v8, {32*2304}, v6
    s_lshr_b32 s38, s32, 1
    s_mul_i32 s38, s38, {48*2304}
    s_mul_i32 s37, s20, {96*2304}
    s_add_u32 s37, s37, s38
    s_mul_i32 s38, s3, 1152
    s_add_u32 s37, s37, s38
    s_mul_i32 s38, s21, 192
    s_add_u32 s37, s37, s38""".split("\n")
    b.L[i:i+1] = [x.strip() for x in setup]
    return b.L

DESC = """.section .rodata,"a"
.p2align 6
.amdhsa_kernel {name}
  .amdhsa_next_free_vgpr {vgpr}
  .amdhsa_next_free_sgpr 102
  .amdhsa_accum_offset 256
  .amdhsa_group_segment_fixed_size 0
  .amdhsa_kernarg_size 104
  .amdhsa_user_sgpr_count 2
  .amdhsa_user_sgpr_kernarg_segment_ptr 1
  .amdhsa_system_sgpr_workgroup_id_x 1
  .amdhsa_float_denorm_mode_32 3
.end_amdhsa_kernel
"""

def build(**kw):
    OPT.update(kw)
    k1 = finish(kernel1())
    i4 = k1.index("L_begin4:"); i3 = k1.index("L_begin3:"); iv = k1.index("L_vote:")
    k1 = k1[:i4] + resolve_vm(k1[i4:i3]) + resolve_vm(k1[i3:iv]) + k1[iv:]
    e = check_protocol(k1[i4:i3], "w4") + check_protocol(k1[i3:], "w3")
    assert e == 0
    k1 = strip_markers(k1)
    k1, n1, p1 = fix_hazards(k1)
    k2, n2, p2 = fix_hazards(kernel2())
    for p in p1 + p2: print("BRANCH HAZARD", p)
    assert not (p1 or p2)
    hdr = open("cdna_kernels/%s.s.ref" % NAME).read().split("; Override")[0]
    out = hdr
    out += "; generated by my own schedule generator (dev/gen.py); two launches: fused q-proj+attention, then output projection\n"
    if not OPT.get('only2'): out += "; @launch kernel=attn_kernel grid=(256,1,1) block=(256,1,1) lds=163840\n"
    out += "; @launch kernel=oproj_kernel grid=(240,1,1) block=(256,1,1) lds=110592\n"
    out += '.amdgcn_target "amdgcn-amd-amdhsa--gfx950"\n.text\n'
    out += ".globl attn_kernel\n.p2align 8\n.type attn_kernel,@function\n" + "\n".join(k1) + "\n"
    out += ".globl oproj_kernel\n.p2align 8\n.type oproj_kernel,@function\n" + "\n".join(k2) + "\n"
    out += DESC.format(name="attn_kernel", vgpr=512) + DESC.format(name="oproj_kernel", vgpr=400)
    return out, (n1, n2)

if __name__ == "__main__":
    kw = {}
    for a in sys.argv[2:]:
        k, v = a.split('='); kw[k] = int(v)
    s, info = build(**kw)
    open(sys.argv[1], "w").write(s)
    print("nops inserted", info, "bytes", len(s))
```

```python
import re

REG_RE = re.compile(r'\b([vas])(?:(\d+)|\[(\d+):(\d+)\])')

def regs_of(tok):
    out = []
    for m in REG_RE.finditer(tok):
        k = m.group(1)
        if m.group(2) is not None:
            out.append((k, int(m.group(2))))
        else:
            for i in range(int(m.group(3)), int(m.group(4)) + 1):
                out.append((k, i))
    return out

TRANS = ('v_exp_f32', 'v_log_f32', 'v_rcp_f32', 'v_rsq_f32', 'v_sqrt_f32')

class Ins:
    __slots__ = ('text', 'op', 'ops', 'kind', 'wr', 'rd', 'srcc', 'passes')
    def __init__(self, text):
        self.text = text
        t = text.split(';')[0].strip()
        self.op = t.split()[0] if t else ''
        rest = t[len(self.op):].strip()
        self.ops = [x.strip() for x in rest.split(',')] if rest else []
        op = self.op
        self.wr = set(); self.rd = set(); self.srcc = set(); self.passes = 0
        if t.endswith(':') or op.startswith('.') or not t:
            self.kind = 'label'
        elif op.startswith('v_mfma'):
            self.kind = 'mfma'
            self.passes = 4 if '16x16x32' in op else 8
            self.wr = set(regs_of(self.ops[0]))
            self.rd = set(regs_of(self.ops[1]) + regs_of(self.ops[2]))
            self.srcc = set(regs_of(self.ops[3]))
        elif op.startswith('v_'):
            self.kind = 'valu'
            if op == 'v_nop': pass
            elif op.startswith('v_cmp'):
                self.wr = set(regs_of(self.ops[0])) | ({('s', 'vcc')} if self.ops[0] == 'vcc' else set())
                self.rd = set(sum([regs_of(x) for x in self.ops[1:]], []))
            elif op.startswith('v_permlane'):
                self.wr = set(regs_of(self.ops[0]) + regs_of(self.ops[1])); self.rd = set(self.wr)
            else:
                self.wr = set(regs_of(self.ops[0]))
                self.rd = set(sum([regs_of(x) for x in self.ops[1:]], []))
                if op.startswith('v_fmac') or op.startswith('v_writelane'):
                    self.rd |= self.wr
                if '_co_' in op:
                    self.wr.add(('s', 'vcc'))
                    if self.ops[-1] == 'vcc': self.rd.add(('s', 'vcc'))
                elif 'vcc' in self.ops[1:]:
                    self.rd.add(('s', 'vcc'))
        elif op.startswith('ds_read'):
            self.kind = 'dsr'
            self.wr = set(regs_of(self.ops[0])); self.rd = set(regs_of(self.ops[1]))
        elif op.startswith('ds_write'):
            self.kind = 'dsw'
            self.rd = set(sum([regs_of(x) for x in self.ops], []))
        elif op.startswith('buffer_load') or op.startswith('global_load'):
            if ' lds' in t:
                self.kind = 'dma'
                self.rd = set(sum([regs_of(x) for x in self.ops], []))
            else:
                self.kind = 'vload'
                self.wr = set(regs_of(self.ops[0])); self.rd = set(sum([regs_of(x) for x in self.ops[1:]], []))
        elif op.startswith('buffer_store') or op.startswith('global_store') or op.startswith('buffer_atomic') or op.startswith('buffer_wbl2') or op.startswith('buffer_inv') or op.startswith('global_atomic'):
            self.kind = 'vstore'
            self.rd = set(sum([regs_of(x) for x in self.ops], []))
        elif op.startswith('s_'):
            self.kind = 'salu'
            if op in ('s_waitcnt', 's_barrier', 's_nop', 's_endpgm', 's_branch', 's_setprio') or op.startswith('s_cbranch') or op.startswith('s_cmp'):
                if op.startswith('s_cmp'):
                    self.rd = set(sum([regs_of(x) for x in self.ops], []))
            else:
                self.wr = set(regs_of(self.ops[0]))
                if self.ops[0] == 'm0': self.wr = {('s', 'm0')}
                if self.ops[0].startswith('exec'): self.wr = {('s', 'exec')}
                self.rd = set(sum([regs_of(x) for x in self.ops[1:]], []))
                if any(o.startswith('vcc') for o in self.ops[1:]): self.rd.add(('s', 'vcc'))
        else:
            raise ValueError("unknown instr: " + text)
    def states(self):
        if self.kind == 'label': return 0
        if self.op == 's_nop': return int(self.ops[0], 0) + 1
        return 1

def need(p, c):
    n = 0
    if p.kind == 'mfma':
        big = {4: 8, 8: 12}[p.passes]
        if c.kind == 'mfma':
            if p.wr & c.rd: n = max(n, big)
            if p.wr & c.srcc:
                if not (p.wr == c.srcc and p.passes == c.passes): n = max(n, big - 2)
            elif p.wr & c.wr: n = max(n, 0)
        elif c.kind in ('valu', 'dsr', 'dsw', 'vload', 'vstore', 'dma'):
            if p.wr & (c.rd | c.wr): n = max(n, big)
            if c.kind == 'valu' and (p.srcc & c.wr): n = max(n, {4: 3, 8: 7}[p.passes])
    elif p.kind == 'valu':
        vw = {r for r in p.wr if r[0] in 'va'}
        sw = {r for r in p.wr if r[0] == 's'}
        if c.kind == 'mfma' and vw & (c.rd | c.srcc): n = max(n, 2)
        if c.kind == 'valu':
            if p.op.startswith(TRANS) and (vw & c.rd) : n = max(n, 1)
            if c.op.startswith('v_permlane') and vw & c.rd: n = max(n, 2)
            if (c.op.startswith('v_readfirstlane') or c.op.startswith('v_readlane')) and vw & c.rd: n = max(n, 1)
            if sw & c.rd: n = max(n, 2)
        if c.kind in ('dma', 'vload', 'vstore') and sw & c.rd: n = max(n, 5)
        if c.kind == 'salu' and sw & c.rd: n = max(n, 4)
        if c.kind in ('vstore','dsw') and p.op.startswith(TRANS) and vw & c.rd: n = max(n, 1)
    elif p.kind == 'salu':
        if ('s', 'm0') in p.wr and c.kind == 'dma': n = max(n, 1)
    elif p.kind in ('vstore',) and p.ops:
        if c.kind == 'valu' and ('x4' in p.op or 'x3' in p.op) and (set(regs_of(p.ops[0])) & c.wr): n = max(n, 2)
        if c.kind in ('dsr','vload') and ('x4' in p.op or 'x3' in p.op) and (set(regs_of(p.ops[0])) & c.wr): n = max(n, 1)
    return n

MAXD = 14

def fix_hazards(lines, verbose=False):
    ins = [Ins(l) for l in lines]
    out = []
    nn = 0
    for c in ins:
        if c.kind != 'label':
            d = 0; req = 0
            for p in reversed(out):
                if p.kind == 'label': continue
                if p.op in ('s_branch', 's_endpgm'): break
                r = need(p, c)
                if r - d > req: req = r - d
                d += p.states()
                if d >= MAXD: break
            if req > 0:
                out.append(Ins(f"s_nop {req-1}")); nn += 1
                if verbose: print("pad", req, "before", c.text)
        out.append(c)
    labels = {}
    for i, c in enumerate(out):
        t = c.text.split(';')[0].strip()
        if c.kind == 'label' and t.endswith(':'): labels[t[:-1]] = i
    problems = []
    for i, b in enumerate(out):
        if b.op == 's_branch' or b.op.startswith('s_cbranch'):
            tgt = labels.get(b.ops[0])
            if tgt is None: continue
            tail = []; d = 0
            j = i
            while j >= 0 and d < MAXD:
                if out[j].kind != 'label':
                    tail.append((out[j], d)); d += out[j].states()
                j -= 1
            e = 0; j = tgt
            while j < len(out) and e < MAXD:
                c = out[j]
                if c.kind != 'label':
                    for p, dp in tail:
                        dist = dp + e - (0)
                        r = need(p, c)
                        if r > dist:
                            problems.append((p.text, c.text, r, dist))
                    e += c.states()
                    if c.op in ('s_branch', 's_endpgm'): break
                j += 1
    return [c.text for c in out], nn, problems
```

```python
import sys, re
from asmlib import fix_hazards, Ins

NAME = "concat_heads__mha_block_cached__mha_block_cached__near_ridge"
MF = "v_mfma_f32_16x16x32_bf16"
CSCALE = 0x3e0293ee
LTHR = 0x4e800000

O_BLK = 128 * 122880
WOT_OFF = 2 * O_BLK
WOT_BLK = 128 * 36864
CNT_OFF = WOT_OFF + 2 * WOT_BLK

class B:
    def __init__(self): self.L = []
    def __call__(self, s):
        for x in s.split("\n"):
            x = x.strip()
            if x: self.L.append(x)
    def ext(self, l): self.L.extend(l)

def vr(b, n): return f"v[{b}:{b+n-1}]"
def ar(b, n): return f"a[{b}:{b+n-1}]"

def emit_slots(b, slots, gaps):
    for i, s in enumerate(slots):
        if s: b(s)
        nv = [x for x in gaps[i] if not x.startswith('v_')]
        v = [x for x in gaps[i] if x.startswith('v_')]
        for x in nv + v: b(x)

S_ = 16; P_ = 48; CI = 64; LS = 80
KA = 84
VA = 88
DK0 = 96; DK1 = 97; DV0 = 98; DV1 = 99
VO = 100
VWO = 101
VWX = 102
VLN = 103
VPF = 104
VPD = 105
T0 = 108
O_ = 128
XA = 16; WA = 18; DX = 20; DW = 24
def AQ(q): return 32 + 64 * (q // 2) + 16 * (q % 2)
def AQ2(q): return 64 * (q // 2) + 16 * (q % 2)
AK = 128; AV = 160; ASP = 192
AX = 0; AW = 64
SX = 4; SW = 8; SK = 12; SV = 16; SO = 20; SWO = 24; SWT = 28
sWAVE = 32; sWB = 33; sKV = 34; sCNT = 35; sHEAD = 36; sSAFE = 37; sFLAG = 38
sXO = 39; sXO2 = 40; sWOFF = 41; sXB = 42; sOO = 43; sC = 44
sT = 46
sH0 = 68; sWOS = 64; sWTS = 65; sSTAMP = 72; SPF = 76; sPF = 66; sWXS = 67; sROT = 80; sLIN = 81
SCN = 48; SDB = 52; sWS = 56; sCO = 60; sCW = 61; SIN = 84; SIF = 88; sOUT = 76; VHS = 106; VCW = 107; VONE = 104

OPT = dict(nt_kv=1, nt_w=1, nt_x=1, nt_wo=1, stamps=0, warm=1, of=2, of0=2)

K2F = ['', ' nt', ' sc1', ' sc0 sc1', ' sc0', ' sc1 nt']
def fl(k): return " nt" if OPT[k] else ""

def dma(voff, srd, soff, off, flag, tag):
    return f"buffer_load_dwordx4 v{voff}, s[{srd}:{srd+3}], {soff} offen offset:{off}{flag} lds ; tag={tag}"

def kv_adv():
    if not OPT.get('rot'): return [f"s_add_u32 s{sKV}, s{sKV}, 8192"]
    return [f"s_add_u32 s{sLIN}, s{sLIN}, 8192", f"s_add_u32 s{sKV}, s{sLIN}, s{sROT}",
            f"s_and_b32 s{sKV}, s{sKV}, 0x3ffff", f"s_and_b32 s{sT+1}, s{sLIN}, 0xfffc0000", f"s_or_b32 s{sKV}, s{sKV}, s{sT+1}"]

def kv_dma(tile):
    return [dma(DK0, SK, f"s{sKV}", 0, fl('nt_kv'), f"KV{tile}"),
            dma(DK1, SK, f"s{sKV}", 1024, fl('nt_kv'), f"KV{tile}"),
            dma(DV0, SV, f"s{sKV}", 2048, fl('nt_kv'), f"KV{tile}"),
            dma(DV1, SV, f"s{sKV}", 3072, fl('nt_kv'), f"KV{tile}")]

def x_dma(m, nq):
    slot = 32768 if m % 2 else 65536
    out = []
    out.append(f"s_add_u32 m0, s{sXB}, {slot}")
    for j in range(4): out.append(dma(DX + j, SX, f"s{sXO}", 1024 * j, fl('nt_x'), f"X{m}"))
    out.append(f"s_add_u32 m0, s{sXB}, {slot + 4096}")
    for j in range(4 if nq == 4 else 2): out.append(dma(DX + j, SX, f"s{sXO2}", 1024 * j, fl('nt_x'), f"X{m}"))
    out.append(f"s_add_u32 s{sXO}, s{sXO}, 128")
    out.append(f"s_add_u32 s{sXO2}, s{sXO2}, 128")
    return out

def w_dma(n, nq):
    out = [f"s_add_u32 m0, s{sWB}, {98304 + (n % 4) * 16384}"]
    for j in range(4): out.append(dma(DW + j, SW, f"s{sWOFF}", 1024 * j, fl('nt_w'), f"W{n}"))
    if n % 2 == 0: out.append(f"s_add_u32 s{sWOFF}, s{sWOFF}, 256")
    else: out.append(f"s_add_u32 s{sWOFF}, s{sWOFF}, {524288 - 256}")
    return out

def w_reads(n, T):
    sp_, a = T // 2, T % 2
    hl, sp = sp_ // 2, sp_ % 2
    out = []
    for s in range(2):
        for a2 in range(2):
            d = AW + 8 * (T % 4) + 4 * s + 2 * a2
            off = (n % 4) * 16384 + hl * 8192 + (32 * s + 4 * a2) * 128 + 8 * a
            out.append(f"ds_read_b64_tr_b16 {ar(d,2)}, v{WA+sp} offset:{off} ; need=W{n}")
    return out

def x_reads(m, nq):
    out = []
    for q in range(nq):
        for s in range(2):
            d = AX + 32 * (m % 2) + 8 * q + 4 * s
            off = (0 if m % 2 else 32768) + q * 2048
            out.append(f"ds_read_b128 {ar(d,4)}, v{XA+s} offset:{off} ; need=X{m}")
    return out

def qacc(hd, q, T):
    r = 128 + 32 * q + 4 * T
    return vr(r, 4) if hd == 0 else ar(r, 4)

def pf_load():
    return f"buffer_load_dword v{VPD}, v{VPF}, s[{SPF}:{SPF+3}], s{sPF} offen nt ; tag=PF"

def wo_dma(extra):
    out = [f"s_add_u32 m0, s{sXB}, 131072"]
    for j in range(4):
        out += [f"PRE s_add_u32 s{sT}, s{sWOS}, {8192*j}", dma(VWO, SWO, f"s{sT}", 1024 * j, fl('nt_wo'), "WO")]
    if extra: out += [f"s_add_u32 m0, s{sXB}, {131072 + 4096}", dma(VWX, SWO, "0", 0, fl('nt_wo'), "WO")]
    return out

def qproj_stage(b, n, nq, fill=None):
    hd, m = n % 2, n // 2
    nx = 8 if nq == 4 else 6
    slots = []; gaps = [[] for _ in range(64)]
    for T in range(8):
        for q in range(4):
            for s in range(2):
                if q >= nq: slots.append(None); continue
                acc = qacc(hd, q, T)
                c = "0" if (m == 0 and s == 0) else acc
                slots.append(f"{MF} {acc}, {ar(AW+8*(T%4)+4*s,4)}, {ar(AX+32*(m%2)+8*q+4*s,4)}, {c}")
    start = {3: 5, 4: 12, 5: 19, 6: 26, 7: 33}
    rd = w_reads(n, 2); gaps[0].append(rd[3])
    for T, g in start.items():
        for i, x in enumerate(w_reads(n, T)): gaps[g + i].append(x)
    if n < 17:
        for T, g in ((0, 45), (1, 53)):
            for i, x in enumerate(w_reads(n + 1, T)): gaps[g + i].append(x)
        for i, x in enumerate(w_reads(n + 1, 2)[:3]): gaps[61 + i].append(x)
    xr = []
    if n % 2 == 1 and m + 1 <= 8:
        xr = x_reads(m + 1, nq)
        for x, g in zip(xr, (9, 10, 16, 17, 23, 24, 30, 31)): gaps[g].append(x)
    for T in range(1, 8): gaps[8 * T - 1].append(f"WAITL W{n}.{T}")
    if n < 17: gaps[63].append(f"WAITL W{n+1}.0")
    req = []
    if n + 1 <= 17: req.append(f"W{n+1}")
    if n % 2 == 0 and m + 1 <= 8: req.append(f"X{m+1}")
    if n == 17: req += ["KV0", "KV1"]
    cov = list(req)
    if nq == 3 and n == 2:
        cov.append("INIT")
        gaps[45].append(f"buffer_store_dword v{VONE}, v{VLN}, s[{SIF}:{SIF+3}], 0 offen sc1 ; tag=FLAG")
    if nq == 3 and n == 12:
        gaps[45].append(f"buffer_load_dword v{VHS}, off, s[{SDB}:{SDB+3}], 0 sc1 ; tag=HS")
    gaps[43].append("WAITV lgkmcnt(0) ; cover=" + ",".join(cov))
    gaps[44].append("s_barrier ; pub=" + ",".join(req))
    def place(seq, first, step):
        g = first
        for x in seq:
            if x.startswith("buffer_"): gaps[g].append(x); g += step
            elif x.startswith("s_add_u32 m0"): gaps[g - 1].append(x)
            elif x.startswith("PRE "): gaps[g - 1].append(x[4:])
            else: gaps[min(g - step + 1, 63)].append(x)
    if n % 2 == 0 and m + 2 <= 8: place(x_dma(m + 2, nq), 2, 5)
    if n in (14, 16, 17):
        t0 = {14: 2, 16: 4, 17: 6}[n]
        seq = []
        for t in (t0, t0 + 1):
            if t >= OPT.get('dist', 6): continue
            seq.append(f"s_add_u32 m0, s{sWB}, {t * 16384}")
            seq += kv_dma(t)
            seq += kv_adv()
        place(seq, 2 if n < 17 else 46, {14: 5, 16: 5, 17: 4}[n])
    if n == 15: place(wo_dma(True), 46, 4)
    if n + 4 <= 17: place(w_dma(n + 4, nq), 46, 5)
    if fill is not None:
        for g in range(20 if n == 16 else 0, 64):
            if slots[g] is None: continue
            for _ in range(2):
                if fill: gaps[g].append(fill.pop(0))
    emit_slots(b, slots, gaps)
    if OPT.get('qstamps'): stamp(b)

def k_reads(unit, tile):
    out = []
    for kt in range(2):
        for s in range(4):
            f = 4 * kt + s
            off = (unit % 4) * 16384 + (2 * (s // 2) + kt) * 4096
            out.append(f"ds_read_b128 {ar(AK+4*f,4)}, v{KA + (s%2) + 2*(unit//4)} offset:{off} ; need=KV{tile}")
    return out

def v_reads(unit, tile):
    out = []
    for T in range(8):
        th, tl = T // 4, T % 4
        for a in range(2):
            off = (unit % 4) * 16384 + (2 * th + a) * 4096 + 2048
            out.append(f"ds_read_b64_tr_b16 {ar(AV+4*T+2*a,2)}, v{VA + tl + 4*(unit//4)} offset:{off} ; need=KV{tile}")
    return out

import sched
V_GAPS = list(range(25, 41)); K_GAPS = list(range(48, 56)); D_GAPS = [1, 9, 17, 23]
SM = sched.schedule(4, V_GAPS + K_GAPS, D_GAPS)
def sm_text(kind, q, e):
    s = S_ + 8 * q + e
    if kind == 'exp': return f"v_exp_f32 v{s}, v{s}"
    if kind == 'add': return f"v_add_f32 v{LS+q}, v{LS+q}, v{s}"
    return f"v_cvt_pk_bf16_f32 v{P_+4*q+e//2}, v{s-1}, v{s}"
def sm_items(nq, lo, hi):
    it = [(g, k[0] == 'exp', k) for k, g in SM.items() if k[1] < nq and lo <= g < hi]
    it.sort(key=lambda t: (t[0] % 64, t[1], -t[0]))
    return [(g, k) for g, _, k in it]

def qk(q, kt, s, czero=False):
    d = vr(S_ + 8 * q + 4 * kt, 4)
    c = d if s else ("0" if czero else vr(CI + 4 * q, 4))
    return f"{MF} {d}, {ar(AK+4*(4*kt+s),4)}, {ar(AQ(q)+4*s,4)}, {c}"

def pv(q, T, czero=False):
    d = vr(O_ + 32 * q + 4 * T, 4)
    return f"{MF} {d}, {ar(AV+4*T,4)}, {vr(P_+4*q,4)}, {'0' if czero else d}"

def attn_stage(b, k, nq, extra=None):
    kk = k % 32; u = k % 8
    slots = []; gaps = [[] for _ in range(64)]
    for q in (0, 1):
        for kt in range(2):
            for s in range(4): slots.append(qk(q, kt, s))
    for q in (2, 3):
        for T in range(8): slots.append(pv(q, T, kk == 1) if (q < nq and kk > 0) else None)
    for q in (2, 3):
        for kt in range(2):
            for s in range(4): slots.append(qk(q, kt, s) if q < nq else None)
    for q in (0, 1):
        for T in range(8): slots.append(pv(q, T, kk == 0))
    for g, key in sm_items(nq, 0, 128 if kk > 0 else 64): gaps[g % 64].append(sm_text(*key))
    for g, x in zip(V_GAPS, v_reads(u, k)): gaps[g].append(x)
    DIST = OPT.get('dist', 6)
    if DIST == 7:
        gaps[46].append(f"WAITV lgkmcnt(0) ; cover=KV{k+1}")
        gaps[47].append(f"s_barrier ; pub=KV{k+1}")
    elif k % 2 == 1:
        gaps[46].append(f"WAITV lgkmcnt(0) ; cover=KV{k+1},KV{k+2}" + (",WT" if kk == 3 else ""))
        gaps[47].append(f"s_barrier ; pub=KV{k+1},KV{k+2}")
    else:
        gaps[47].append("s_waitcnt lgkmcnt(0)")
    for g, x in zip(K_GAPS, k_reads((u + 1) % 8, k + 1)): gaps[g].append(x)
    gaps[63].append("s_waitcnt lgkmcnt(0)")
    gaps[0].append(f"s_add_u32 m0, s{sWB}, {((k + DIST) % 8) * 16384}")
    for x, g in zip(kv_dma(k + DIST), {0: D_GAPS, 1: [1, 1, 1, 1], 2: [1, 1, 17, 17], 3: [1, 2, 3, 4]}[OPT.get('burst', 0)]): gaps[g].append(x)
    for i_, x in enumerate(kv_adv()): gaps[(42, 42, 43, 43, 44)[i_]].append(x)
    for i_ in range(OPT.get('slow', 0)): gaps[2 + 2 * i_].append('v_nop\nv_nop\nv_nop\nv_nop')
    if OPT.get('kvsmall'): gaps[44].append(f"s_and_b32 s{sKV}, s{sKV}, 0xffff")
    if extra:
        for g, x in extra: gaps[g].append(x)
    if OPT.get('astamps') and k % 2 == 0: stamp(b)
    if OPT.get('dmaonly'):
        slots = [None] * 64
        gaps = [[x for x in g if not x.startswith(('v_', 'ds_'))] for g in gaps]
    emit_slots(b, slots, gaps)

def xlane_reduce(b, reg, tmp, op):
    b(f"v_mov_b32 v{tmp}, v{reg}")
    b(f"v_permlane32_swap_b32 v{reg}, v{tmp}")
    b(f"{op} v{reg}, v{reg}, v{tmp}")
    b(f"v_mov_b32 v{tmp}, v{reg}")
    b(f"v_permlane16_swap_b32 v{reg}, v{tmp}")
    b(f"{op} v{reg}, v{reg}, v{tmp}")

def xlane_reduce_multi(b, regs, tmps, op):
    for sw in ("v_permlane32_swap_b32", "v_permlane16_swap_b32"):
        for r, t in zip(regs, tmps): b(f"v_mov_b32 v{t}, v{r}")
        for r, t in zip(regs, tmps): b(f"{sw} v{r}, v{t}")
        for r, t in zip(regs, tmps): b(f"{op} v{r}, v{r}, v{t}")

def stamp(b, idx=None):
    if not OPT['stamps']: return
    b(f"s_memtime s[{sSTAMP}:{sSTAMP+1}]\ns_memrealtime s[{sSTAMP+2}:{sSTAMP+3}]\ns_waitcnt lgkmcnt(0)")
    b(f"s_mov_b32 s95, m0\ns_mov_b32 m0, s96\nv_writelane_b32 v14, s{sSTAMP}, m0\nv_writelane_b32 v15, s{sSTAMP+2}, m0\ns_mov_b32 m0, s95\ns_add_u32 s96, s96, 1")

def stamp_dump(b, k, wave):
    if not OPT['stamps']: return
    b("s_waitcnt vmcnt(0)")
    stamp(b)
    if OPT['stamps'] == 2:
        b("s_load_dwordx2 s[92:93], s[0:1], 88\ns_waitcnt lgkmcnt(0)")
        b(f"s_cmp_lg_u32 s{wave}, 0\ns_cbranch_scc1 L_end{k+1}\ns_and_b32 s94, s97, 31\ns_cmp_lg_u32 s94, 5\ns_cbranch_scc1 L_end{k+1}")
        b(f"s_add_u32 s88, s92, {OPT.get('dbgoff',0)*(1-k)}\ns_addc_u32 s89, s93, 0\ns_mov_b32 s90, 256\ns_mov_b32 s91, 0x20000")
        sel = [0, 2, 3, 6, 7, 9, 10, 11] if k == 0 else [0, 1, 2, 3]
        b("s_mov_b64 exec, 1")
        for i, ix in enumerate(sel):
            b(f"v_readlane_b32 s94, v15, {ix}\ns_nop 3")
            if i == 0 and k == 0: b("s_not_b32 s94, s94")
            b(f"v_mov_b32 v1, s94\nv_mov_b32 v2, {4*(i + (0 if k == 0 else 8))}\nbuffer_atomic_umax v1, v2, s[88:91], 0 offen")
        return
    b("s_load_dwordx2 s[92:93], s[0:1], 96\ns_waitcnt lgkmcnt(0)")
    b(f"s_add_u32 s88, s92, {(48+k)*1024*1024}\ns_addc_u32 s89, s93, 0\ns_mov_b32 s90, 0x100000\ns_mov_b32 s91, 0x20000")
    b(f"s_lshl_b32 s94, s97, 2\ns_add_u32 s94, s94, s{wave}\ns_lshl_b32 s94, s94, 9")
    b("v_and_b32 v1, 63, v0\nv_lshlrev_b32 v1, 3, v1")
    b("buffer_store_dwordx2 v[14:15], v1, s[88:91], s94 offen")

def persist_regs(b):
    lane = T0; t1 = T0 + 1; t2 = T0 + 2; t3 = T0 + 3; g_ = T0 + 4; ihi = T0 + 5; i8 = T0 + 6; i16 = T0 + 7; r_ = T0 + 8; c4 = T0 + 9
    b(f"""v_and_b32 v{lane}, 63, v0
    v_lshrrev_b32 v{g_}, 4, v{lane}
    v_lshrrev_b32 v{ihi}, 3, v{lane}
    v_and_b32 v{i8}, 7, v{lane}
    v_and_b32 v{i16}, 15, v{lane}
    v_lshrrev_b32 v{r_}, 2, v{i16}
    v_and_b32 v{c4}, 3, v{lane}
    v_lshlrev_b32 v{VLN}, 4, v{lane}
    s_add_u32 s71, s63, s{sWB}
    v_add_u32 v{VO}, s71, v{VLN}""")
    b(f"""s_and_b32 s70, s{sWAVE}, 1
    s_lshl_b32 s70, s70, 12
    s_lshr_b32 s71, s{sWAVE}, 1
    s_lshl_b32 s71, s71, 7
    s_add_u32 s70, s70, s71
    v_lshlrev_b32 v{t1}, 8, v{ihi}
    v_add_u32 v{t1}, s70, v{t1}
    v_xor_b32 v{t2}, v{i8}, v{g_}
    v_lshl_add_u32 v{DK0}, v{t2}, 4, v{t1}
    v_xor_b32 v{t2}, 4, v{t2}
    v_lshl_add_u32 v{DK1}, v{t2}, 4, v{t1}
    v_add_u32 v{DK1}, 1024, v{DK1}
    v_lshlrev_b32 v{t2}, 1, v{g_}
    v_xor_b32 v{t2}, v{t2}, v{i8}
    v_lshl_add_u32 v{DV0}, v{t2}, 4, v{t1}
    v_add_u32 v{DV1}, 1024, v{DV0}""")
    b(f"""v_mul_u32_u24 v{t1}, 1152, v{ihi}
    v_lshl_add_u32 v{t1}, v{t2}, 4, v{t1}
    s_lshl_b32 s70, s{sWAVE}, 7
    v_add_u32 v{VWO}, s70, v{t1}
    v_lshrrev_b32 v{t1}, 1, v{lane}
    v_mul_u32_u24 v{t1}, 1152, v{t1}
    v_and_b32 v{t2}, 1, v{lane}
    v_lshl_add_u32 v{t1}, v{t2}, 4, v{t1}
    s_lshl_b32 s70, s{sWAVE}, 5
    s_add_u32 s70, s70, 1024
    v_add_u32 v{VWX}, s70, v{t1}""")
    b(f"""v_lshrrev_b32 v{t1}, 3, v{i16}
    v_lshlrev_b32 v{t1}, 10, v{t1}
    v_lshl_add_u32 v{t1}, v{i8}, 7, v{t1}
    v_lshrrev_b32 v{t3}, 1, v{i16}""")
    for s2 in range(2):
        b(f"v_xor_b32 v{t2}, {4*s2}, v{g_}\nv_xor_b32 v{t2}, v{t2}, v{t3}\nv_lshl_add_u32 v{KA+s2}, v{t2}, 4, v{t1}\nv_add_u32 v{KA+2+s2}, 0x10000, v{KA+s2}")
    b(f"""v_lshrrev_b32 v{t1}, 1, v{g_}
    v_lshlrev_b32 v{t1}, 10, v{t1}
    v_and_b32 v{t2}, 1, v{g_}
    v_lshl_add_u32 v{t2}, v{t2}, 2, v{r_}
    v_lshl_add_u32 v{t1}, v{t2}, 7, v{t1}
    v_lshl_add_u32 v{t1}, v{c4}, 3, v{t1}
    v_lshrrev_b32 v{t3}, 1, v{t2}""")
    for tl in range(4):
        b(f"v_xor_b32 v{t2}, {tl}, v{t3}\nv_lshl_add_u32 v{VA+tl}, v{t2}, 5, v{t1}\nv_add_u32 v{VA+4+tl}, 0x10000, v{VA+tl}")

def late_setup(b, sfx):
    b(f"s_cmp_lg_u32 s{sSAFE}, 0\ns_cbranch_scc1 L_late{sfx}")
    b(f"""s_lshl_b32 s71, s68, 4
    s_add_u32 s71, s71, s69
    s_lshl_b32 s70, s71, 19
    s_add_u32 s{SK}, s50, s70
    s_addc_u32 s{SK+1}, s51, 0
    s_mov_b32 s{SK+2}, 524288
    s_mov_b32 s{SK+3}, 0x20000
    s_add_u32 s{SV}, s52, s70
    s_addc_u32 s{SV+1}, s53, 0
    s_sub_u32 s{SV}, s{SV}, 2048
    s_subb_u32 s{SV+1}, s{SV+1}, 0
    s_mov_b32 s{SV+2}, {524288+2048}
    s_mov_b32 s{SV+3}, 0x20000
    s_mul_i32 s70, s3, {O_BLK}
    s_add_u32 s{SO}, s100, s70
    s_addc_u32 s{SO+1}, s101, 0
    s_mov_b32 s{SO+2}, {O_BLK}
    s_mov_b32 s{SO+3}, 0x20000
    s_mul_i32 s70, s71, 36864
    s_add_u32 s{SWO}, s56, s70
    s_addc_u32 s{SWO+1}, s57, 0
    s_mov_b32 s{SWO+2}, 36864
    s_mov_b32 s{SWO+3}, 0x20000
    s_mul_i32 s71, s3, {WOT_BLK}
    s_add_u32 s70, s70, s71
    s_add_u32 s70, s70, {WOT_OFF}
    s_add_u32 s{SWT}, s100, s70
    s_addc_u32 s{SWT+1}, s101, 0
    s_mov_b32 s{SWT+2}, 36864
    s_mov_b32 s{SWT+3}, 0x20000
    s_mul_i32 s62, s69, {8*122880}
    s_mul_i32 s63, s68, 15360        ; b*15*1024
    s_mov_b64 s[{sWS}:{sWS+1}], s[100:101]
    s_add_u32 s{SCN}, s100, {CNT_OFF}
    s_addc_u32 s{SCN+1}, s101, 0
    s_mov_b32 s{SCN+2}, 16384
    s_mov_b32 s{SCN+3}, 0x20000
    s_mov_b64 s[{SDB}:{SDB+1}], s[78:79]
    s_mov_b32 s{SDB+2}, 256
    s_mov_b32 s{SDB+3}, 0x20000
    s_mov_b64 s[{SIN}:{SIN+1}], s[{SCN}:{SCN+1}]
    s_mov_b32 s{SIN+3}, 0x20000
    s_mov_b64 s[{SIF}:{SIF+1}], s[78:79]
    s_mov_b32 s{SIF+3}, 0x20000
    s_lshl_b32 s70, s3, 3
    s_add_u32 s70, s70, s68
    s_lshl_b32 s{sCO}, s70, 2
    s_lshr_b32 s71, s69, 2
    s_add_u32 s{sCO}, s{sCO}, s71
    s_lshl_b32 s{sCO}, s{sCO}, 7
    s_lshr_b32 s{sCW}, s70, 1
    s_lshl_b32 s{sCW}, s{sCW}, 7
    s_add_u32 s{sCW}, s{sCW}, 8192""")
    b(f"L_late{sfx}:")
    b(f"""s_or_b32 s70, s97, s{sSAFE}
    s_cmp_eq_u32 s70, 0
    s_cselect_b32 s{SIN+2}, 16384, 0
    s_cselect_b32 s{SIF+2}, 4, 0
    s_mov_b32 s{sOO}, s62
    s_mov_b32 s{sWOS}, 0
    s_mov_b32 s{sWTS}, s{sWB}""")

def warm_code(b):
    if not OPT.get('warm'): return
    b(f"""s_getpc_b64 s[70:71]
    L_pc:
    s_sub_u32 s70, s70, L_pc-attn_kernel
    s_subb_u32 s71, s71, 0
    v_lshrrev_b32 v2, 3, v0
    v_and_b32 v2, 31, v2
    v_lshl_add_u32 v2, s2, 5, v2
    v_lshlrev_b32 v2, 7, v2
    v_min_u32 v2, L_codeend-attn_kernel-4, v2
    v_mov_b32 v3, s71
    v_add_co_u32 v2, vcc, s70, v2
    v_addc_co_u32 v3, vcc, 0, v3, vcc
    global_load_dword v4, v[2:3], off""")

def wave_code(b, nq, sfx):
    nx = 8 if nq == 4 else 6
    b(f"L_begin{sfx}:")
    lane = T0; t1 = T0 + 1; t2 = T0 + 2; t3 = T0 + 3; g_ = T0 + 4; ihi = T0 + 5; i8 = T0 + 6
    b(f"""v_and_b32 v{lane}, 63, v0
    v_lshrrev_b32 v{g_}, 4, v{lane}
    v_lshrrev_b32 v{ihi}, 3, v{lane}
    v_and_b32 v{i8}, 7, v{lane}""")
    b(f"s_lshl_b32 s{sT}, s{sWAVE}, 6")
    b(f"v_add_u32 v{t1}, s{sT}, v{ihi}")
    b(f"v_mul_u32_u24 v{t1}, 1152, v{t1}")
    for j in range(4):
        b(f"v_xor_b32 v{t2}, {4*(j%2)}, v{g_}")
        b(f"v_xor_b32 v{t2}, v{t2}, v{i8}")
        b(f"v_lshl_add_u32 v{t2}, v{t2}, 4, v{t1}")
        b(f"v_add_u32 v{DX+j}, {8*j*1152 - 1024*j}, v{t2}")
    b(f"""s_and_b32 s{sT}, s{sWAVE}, 1
    s_lshl_b32 s{sT}, s{sT}, 18
    s_lshr_b32 s{sT+1}, s{sWAVE}, 1
    s_lshl_b32 s{sT+1}, s{sT+1}, 7
    s_add_u32 s{sT}, s{sT}, s{sT+1}
    v_lshlrev_b32 v{t1}, 13, v{ihi}
    v_add_u32 v{t1}, s{sT}, v{t1}
    v_lshrrev_b32 v{t2}, 2, v{i8}
    v_xor_b32 v{t2}, v{t2}, v{g_}
    v_and_b32 v{t2}, 1, v{t2}
    v_lshl_add_u32 v{t1}, v{t2}, 6, v{t1}
    v_and_b32 v{t2}, 3, v{i8}
    v_lshl_add_u32 v{t1}, v{t2}, 4, v{t1}""")
    for j in range(4): b(f"v_add_u32 v{DW+j}, {8*j*8192 - 1024*j}, v{t1}")
    b(f"""s_mov_b32 s{sXO}, 0
    s_mov_b32 s{sXO2}, 36864
    s_mov_b32 s{sWOFF}, 0
    s_mov_b32 s{sKV}, 0
    s_mov_b32 s{sHEAD}, 0""")
    if OPT.get('rot'):
        b(f"s_mul_i32 s{sROT}, s97, {OPT['rot']}\ns_and_b32 s{sROT}, s{sROT}, 31\ns_lshl_b32 s{sROT}, s{sROT}, 13\ns_mov_b32 s{sKV}, s{sROT}\ns_mov_b32 s{sLIN}, 0")
    b.ext(x_dma(0, nq)); b.ext(w_dma(0, nq)); b.ext(w_dma(1, nq)); b.ext(x_dma(1, nq)); b.ext(w_dma(2, nq)); b.ext(w_dma(3, nq))
    late_setup(b, sfx)
    persist_regs(b)
    b(f"v_mov_b32 v{VONE}, 1")
    if nq == 3:
        b(f"v_mov_b32 v{VHS}, 0\nv_lshlrev_b32 v{VCW}, 3, v{VLN}")
        b(f"buffer_store_dword v{VHS}, v{VCW}, s[{SIN}:{SIN+3}], 0 offen sc1 ; tag=INIT")
        b(f"s_mov_b32 s{sT}, 8192\nbuffer_store_dword v{VHS}, v{VCW}, s[{SIN}:{SIN+3}], s{sT} offen sc1 ; tag=INIT")
    for t in (0, 1):
        b(f"s_add_u32 m0, s{sWB}, {t*16384}"); b.ext(kv_dma(t)); b.ext(kv_adv())
    if OPT.get('tlb', 0):
        b(f"buffer_load_dword v{VPD}, off, s[{SWO}:{SWO+3}], 0 nt")
        if OPT.get('tlb', 0) > 1:
            b(f"buffer_store_dword v{VONE}, v{VO}, s[{SO}:{SO+3}], s{sOO} offen sc1")
            b(f"s_add_u32 s{sT}, s{sOO}, {7*122880}\nbuffer_store_dword v{VONE}, v{VO}, s[{SO}:{SO+3}], s{sT} offen sc1")
            b(f"buffer_store_dword v{VONE}, v{VLN}, s[{SWT}:{SWT+3}], s{sWTS} offen sc1")
    i16 = T0 + 7; r_ = T0 + 8; c4 = T0 + 9
    b(f"""v_and_b32 v{i16}, 15, v{lane}
    v_lshrrev_b32 v{r_}, 2, v{i16}
    v_and_b32 v{c4}, 3, v{lane}
    v_lshlrev_b32 v{t1}, 7, v{i16}
    v_add_u32 v{t1}, s{sXB}, v{t1}
    v_add_u32 v{t1}, 32768, v{t1}
    v_lshrrev_b32 v{t3}, 1, v{i16}""")
    for s in range(2):
        b(f"v_xor_b32 v{t2}, {4*s}, v{g_}")
        b(f"v_xor_b32 v{t2}, v{t2}, v{t3}")
        b(f"v_lshl_add_u32 v{XA+s}, v{t2}, 4, v{t1}")
    b(f"""v_lshl_add_u32 v{t1}, v{g_}, 3, v{r_}
    v_lshlrev_b32 v{t1}, 7, v{t1}
    v_lshl_add_u32 v{t1}, v{c4}, 4, v{t1}
    v_add_u32 v{t1}, 98304, v{t1}
    v_lshrrev_b32 v{t3}, 1, v{r_}""")
    for sp in range(2):
        b(f"v_xor_b32 v{t2}, {sp}, v{t3}")
        b(f"v_lshl_add_u32 v{WA+sp}, v{t2}, 6, v{t1}")
    stamp(b, 0)
    b("WAITV ; cover=X0,W0")
    b("s_barrier ; pub=X0,W0")
    b.ext(x_reads(0, nq))
    for T in (0, 1): b.ext(w_reads(0, T))
    b.ext(w_reads(0, 2)[:3])
    b("WAITL W0.0")
    stamp(b, 1)
    for n in range(0, 4): qproj_stage(b, n, nq)
    b(f"s_mov_b32 s{sCNT}, 0")
    b(f".p2align 3\nL_qp{sfx}:")
    b("LOOPBEGIN qp 2 4")
    for n in range(4, 8): qproj_stage(b, n, nq)
    b(f"s_add_u32 s{sCNT}, s{sCNT}, 1\ns_cmp_lt_u32 s{sCNT}, 2\ns_cbranch_scc1 L_qp{sfx}")
    b("LOOPEND qp")
    fill = []; post = []
    for sp in range(4):
        for q in range(nq):
            rs = [128 + 32 * q + 8 * sp + 2 * i_ for i_ in range(4)]
            for r in rs: fill += [f"v_mul_f32 v{r}, s{sC}, v{r}", f"v_mul_f32 v{r+1}, s{sC}, v{r+1}"]
            for r in rs: fill.append(f"v_cvt_pk_bf16_f32 v{r}, v{r}, v{r+1}")
            for i_, r in enumerate(rs): post.append(f"v_accvgpr_write_b32 a{AQ(q) + 4*sp + i_}, v{r}")
    for n in range(12, 18): qproj_stage(b, n, nq, fill if n >= 16 else None)
    stamp(b, 2)
    b.ext(fill); b.ext(post)
    def conv1(q, pk):
        out = []
        for sp in range(4):
            rs = [128 + 32 * q + 8 * sp + 2 * i_ for i_ in range(4)]
            for r in rs: out += [f"v_accvgpr_read_b32 v{r}, a{r}", f"v_accvgpr_read_b32 v{r+1}, a{r+1}"]
            for r in rs:
                if pk and OPT.get('pk', 1): out.append(f"v_pk_mul_f32 v[{r}:{r+1}], v[{r}:{r+1}], s[{sC}:{sC+1}]")
                else: out += [f"v_mul_f32 v{r}, s{sC}, v{r}", f"v_mul_f32 v{r+1}, s{sC}, v{r+1}"]
            for r in rs: out.append(f"v_cvt_pk_bf16_f32 v{r}, v{r}, v{r+1}")
            for i_, r in enumerate(rs): out.append(f"v_accvgpr_write_b32 a{AQ2(q) + 4*sp + i_}, v{r}")
        return out
    def pre_mfma(): return [qk(q, 0, s_, czero=True) for q in range(nq) for s_ in range(4)]
    def pre_max():
        t = B()
        for q in range(nq):
            s_ = S_ + 8 * q
            t(f"v_max3_f32 v{s_}, v{s_}, v{s_+1}, v{s_+2}")
        for q in range(nq):
            s_ = S_ + 8 * q
            t(f"v_max_f32 v{s_}, v{s_}, v{s_+3}")
        xlane_reduce_multi(t, [S_ + 8 * q for q in range(nq)], [T0 + q for q in range(nq)], "v_max_f32")
        for q in range(nq):
            for r in range(4): t(f"v_sub_f32 v{CI+4*q+r}, 0, v{S_+8*q}")
        return t.L
    def weave(mf, st, per):
        for x in mf:
            b(x)
            for _ in range(per):
                if st: b(st.pop(0))
    def zipper(a_, b_, ra, rb):
        out = []
        while a_ or b_:
            for _ in range(ra):
                if a_: out.append(a_.pop(0))
            for _ in range(rb):
                if b_: out.append(b_.pop(0))
        return out
    WF = [S_ + 4, S_ + 12, S_ + 20, S_ + 28, T0 + 16]
    def wo_reads(extra):
        t = B()
        t(f"s_add_u32 s{sT+1}, s{sXB}, 65536")
        for tl in range(4): t(f"v_add_u32 v{T0+12+tl}, s{sT+1}, v{VA+4+tl}")
        for tl in range(4):
            for a in range(2): t(f"ds_read_b64_tr_b16 v[{WF[tl]+2*a}:{WF[tl]+2*a+1}], v{T0+12+tl} offset:{2048*a}")
        if extra:
            t(f"v_lshrrev_b32 v{T0+9}, 1, v{VLN}\nv_add_u32 v{T0+9}, s{sT+1}, v{T0+9}\nv_add_u32 v{T0+9}, {65536+4096}, v{T0+9}")
            t(f"ds_read_b64_tr_b16 v[{WF[4]}:{WF[4]+1}], v{T0+9} offset:0\nds_read_b64_tr_b16 v[{WF[4]+2}:{WF[4]+3}], v{T0+9} offset:512")
        return t.L
    def wo_stores(extra, flag):
        t = B(); t("s_waitcnt lgkmcnt(0)")
        for tl in range(4): t(f"buffer_store_dwordx4 {vr(WF[tl],4)}, v{VLN}, s[{SWT}:{SWT+3}], s{sWTS} offen offset:{1024*tl}{flag} ; tag=WT")
        if extra:
            t(f"s_lshl_b32 s{sT+1}, s{sWAVE}, 10\ns_add_u32 s{sT+1}, s{sT+1}, 32768")
            t(f"buffer_store_dwordx4 {vr(WF[4],4)}, v{VLN}, s[{SWT}:{SWT+3}], s{sT+1} offen{flag} ; tag=WT")
        return t.L
    b.ext(conv1(0, True))
    b.ext(k_reads(0, 0))
    b.ext(conv1(1, True))
    c2 = conv1(2, False)
    b.ext([x for x in c2 if 'accvgpr_read' in x])
    b("s_waitcnt lgkmcnt(0)")
    st = [x for x in c2 if 'accvgpr' not in x]
    weave(pre_mfma(), st, 3 if nq == 4 else 4)
    rest = st + [x for x in c2 if 'accvgpr_write' in x] + (conv1(3, True) if nq == 4 else [])
    b.ext(rest[:10])
    b("WAITV ; cover=WO,HS")
    b.ext(wo_reads(True))
    b.ext(zipper(rest[10:], pre_max(), 2, 1))
    b.ext(wo_stores(True, " sc1"))
    b(f"s_add_u32 s{sWOS}, s{sWOS}, 512\ns_add_u32 s{sWTS}, s{sWTS}, 16384")
    if nq == 3:
        b(f"v_readfirstlane_b32 s{sT}, v{VHS}\ns_cmp_eq_u32 s{sT}, 0\ns_cbranch_scc1 L_hspin\nL_hsok:")
    stamp(b, 3)
    b(f".p2align 3\nL_head{sfx}:")
    b("LOOPBEGIN head 2 32")
    b(f"s_cmp_lg_u32 s{sSAFE}, 0\ns_cbranch_scc1 L_maxpass{sfx}")
    b(f"L_maxdone{sfx}:")
    for q in range(nq): b(f"v_mov_b32 v{LS+q}, 0")
    ex = []; g = 29
    for x in wo_dma(False):
        if x.startswith("buffer_"): ex.append((g, x)); g += 4
        else: ex.append((g - 1, x.replace("PRE ", "")))
    stamp(b)
    attn_stage(b, 0, nq, ex)
    attn_stage(b, 1, nq)
    b(f"s_mov_b32 s{sCNT}, 0")
    b(f".p2align 3\nL_at{sfx}:")
    b("LOOPBEGIN at 4 8")
    for k in range(2, 8):
        ex = None
        if k == 3 and nq == 3:
            ex = [(57, f"""s_or_b32 s{sT}, s{sCNT}, s{sSAFE}
            s_xor_b32 s{sT+1}, s{sHEAD}, 1
            s_or_b32 s{sT}, s{sT}, s{sT+1}
            s_cbranch_scc1 L_nosig
            s_mov_b64 exec, 1
            buffer_atomic_add v{VONE}, off, s[{SCN}:{SCN+3}], s{sCW} sc1 ; cond
            s_mov_b64 exec, -1
            L_nosig:""")]
        if k == 5 and nq == 3 and OPT.get('wb', 0):
            ex = [(57, f"""s_xor_b32 s{sT}, s{sCNT}, {OPT['wb'] - 1}
            s_xor_b32 s{sT+1}, s{sHEAD}, 1
            s_or_b32 s{sT}, s{sT}, s{sT+1}
            s_cbranch_scc1 L_nowb
            buffer_wbl2 sc1 ; cond
            L_nowb:""")]
        if k == 7: ex = [(60, f"s_add_u32 s{sCNT}, s{sCNT}, 1"), (62, f"s_cmp_eq_u32 s{sCNT}, 4")]
        attn_stage(b, k, nq, ex)
    b(f"s_cbranch_scc1 L_atx{sfx}")
    b("LOOPEXIT at")
    for k in range(8, 10): attn_stage(b, k, nq)
    b(f"s_branch L_at{sfx}")
    b("LOOPEND at")
    b(f"L_atx{sfx}:")
    b(f"s_cmp_lg_u32 s{sHEAD}, 0\ns_cbranch_scc1 L_fin{sfx}")
    b("LOOPEXIT head")

    def lsum(qs):
        t = B()
        xlane_reduce_multi(t, [LS + q for q in qs], [T0 + 4 + q for q in qs], "v_add_f32")
        for q in qs:
            t(f"v_cmp_nlt_f32 vcc, v{LS+q}, v{T0+8}")
            t(f"v_rcp_f32 v{LS+q}, v{LS+q}")
            t(f"s_or_b32 s{sFLAG}, s{sFLAG}, vcc_lo\ns_or_b32 s{sFLAG}, s{sFLAG}, vcc_hi")
        return t.L
    cnt = [0]
    def onorm(q, pk, flag):
        out = []
        for sp in range(4):
            d = P_ + 4 * (cnt[0] % 2); cnt[0] += 1
            rs = [O_ + 32 * q + 8 * sp + 2 * i_ for i_ in range(4)]
            for r in rs:
                if pk and OPT.get('pk', 1): out.append(f"v_pk_mul_f32 v[{r}:{r+1}], v[{r}:{r+1}], v[{LS+q-(q%2)}:{LS+q-(q%2)+1}] op_sel:[0,{q%2}] op_sel_hi:[1,{q%2}]")
                else: out += [f"v_mul_f32 v{r}, v{r}, v{LS+q}", f"v_mul_f32 v{r+1}, v{r+1}, v{LS+q}"]
            for i_, r in enumerate(rs): out.append(f"v_cvt_pk_bf16_f32 v{d+i_}, v{r}, v{r+1}")
            out.append(f"s_add_u32 s{sT}, s{sOO}, {sp*122880}")
            out.append(f"buffer_store_dwordx4 {vr(d,4)}, v{VO}, s[{SO}:{SO+3}], s{sT} offen offset:{1024*q}{flag}")
        return out
    def drain(st):
        slots = []; gaps = [[] for _ in range(64)]
        for q in (2, 3):
            for T in range(8): slots.append(pv(q, T) if q < nq else None)
        rem = sorted(sm_items(nq, 64, 128), key=lambda t: t[0])
        b.ext([sm_text(*k_) for g, k_ in rem if k_[1] == 2 and k_[0] != 'add'])
        crit = [k_ for g, k_ in rem if k_[1] == 3 and k_[0] != 'add']
        crit.sort(key=lambda k_: (k_[2], k_[0] == 'cvt'))
        g = 0
        for k_ in crit:
            if k_[0] == 'exp' and gaps[g]: g += 1
            gaps[min(g, 6)].append(sm_text(*k_))
            if k_[0] == 'exp': g += 1
        late = [sm_text(*k_) for g_, k_ in rem if k_[0] == 'add']
        st[:0] = []
        for i_, x in enumerate(late): gaps[min(7 + i_ // 2, 15) if nq == 4 else 0].append(x)
        for g in range(16):
            if slots[g] is None: continue
            room = 2 - sum(2 if 'exp' in x else 1 for x in gaps[g])
            while room > 0 and st: gaps[g].append(st.pop(0)); room -= 1
        for i_, s_ in enumerate(slots):
            if s_: b(s_)
            b.ext(gaps[i_])
    hi = list(range(2, nq))
    movs = [f"v_accvgpr_mov_b32 a{AQ(q)+i_}, a{AQ2(q)+i_}" for q in range(nq) for i_ in range(16)]
    b(f"v_mov_b32 v{T0+8}, {LTHR}")
    b("WAITV ; cover=WO")
    f0 = K2F[OPT.get('of0', 0)]
    st = lsum([0, 1]) + onorm(0, False, f0)
    drain(st)
    stamp(b, 4)
    b.ext(wo_reads(False))
    b.ext(zipper(st, lsum(hi), 2, 1))
    b.ext(movs)
    st = onorm(1, False, f0)
    weave(pre_mfma(), st, 3 if nq == 4 else 4)
    b.ext(st)
    rest = []
    for q in hi: rest += onorm(q, True, f0)
    b.ext(zipper(rest, pre_max(), 2, 1))
    b.ext(wo_stores(False, ' sc1'))
    b(f"""s_add_u32 s{sOO}, s{sOO}, {4*122880}
    s_mov_b32 s{sWOS}, 0x100000
    s_mov_b32 s{sHEAD}, 1""")
    stamp(b)
    b(f"s_branch L_head{sfx}")
    b("LOOPEND head")
    b(f"L_fin{sfx}:")
    f1 = K2F[OPT.get('of', 0)]
    b(f"v_mov_b32 v{T0+8}, {LTHR}")
    b(f"s_lshl_b32 s{sT}, s3, 2\ns_add_u32 s{sT}, s{sT}, s{sWAVE}\ns_lshl_b32 s{sT}, s{sT}, 7\ns_add_u32 s58, s{sT}, 8192")
    b(f"buffer_load_dword v{VCW}, off, s[{SCN}:{SCN+3}], s58 sc1 ; tag=CW")
    if nq == 3 and OPT.get('wb', 0) == 0 and OPT.get('of0', 0) == 0: b("buffer_wbl2 sc1")
    st = lsum([0, 1]) + onorm(0, False, f1)
    drain(st)
    stamp(b, 4)
    b.ext(st)
    b.ext(zipper(onorm(1, True, f1), lsum(hi), 2, 1))
    for q in hi: b.ext(onorm(q, True, f1))
    stamp(b)
    b("WAITV ; cover=CW")
    b(f"s_branch L_vote")
    if nq == 3:
        b(f"""L_hspin:
        s_mov_b32 s{sCNT}, 0
        L_hsp:
        s_sleep 8
        buffer_load_dword v{VHS}, off, s[{SDB}:{SDB+3}], 0 sc1
        s_waitcnt vmcnt(0)
        v_readfirstlane_b32 s{sT}, v{VHS}
        s_add_u32 s{sCNT}, s{sCNT}, 1
        s_lshr_b32 s{sT+1}, s{sCNT}, 17
        s_or_b32 s{sT}, s{sT}, s{sT+1}
        s_cmp_eq_u32 s{sT}, 0
        s_cbranch_scc1 L_hsp
        s_branch L_hsok""")
    b(f"L_maxpass{sfx}:")
    for q in range(nq): b(f"v_mov_b32 v{T0+8+q}, 0xff800000")
    for s2 in range(2): b(f"v_add_u32 v{T0+12+s2}, 65536, v{KA+2+s2}")
    b(f"s_lshl_b32 s{sT}, s{sHEAD}, 18\ns_mov_b32 s{sCNT}, 0")
    b(f"L_mp{sfx}:")
    b(f"s_barrier\ns_add_u32 m0, s{sWB}, 131072")
    b(dma(DK0, SK, f"s{sT}", 0, "", "MP")); b(dma(DK1, SK, f"s{sT}", 1024, "", "MP"))
    b("s_waitcnt vmcnt(0)\ns_barrier")
    for kt in range(2):
        for s in range(4):
            b(f"ds_read_b128 {ar(ASP+4*(4*kt+s),4)}, v{T0+12+s%2} offset:{(2*(s//2)+kt)*4096}")
    b("s_waitcnt lgkmcnt(0)")
    for q in range(nq):
        for kt in range(2):
            for s in range(4):
                d = vr(S_ + 8 * q + 4 * kt, 4)
                b(f"{MF} {d}, {ar(ASP+4*(4*kt+s),4)}, {ar(AQ(q)+4*s,4)}, {d if s else '0'}")
    for q in range(nq):
        for e in range(0, 8, 2): b(f"v_max3_f32 v{T0+8+q}, v{T0+8+q}, v{S_+8*q+e}, v{S_+8*q+e+1}")
    b(f"s_add_u32 s{sT}, s{sT}, 8192\ns_add_u32 s{sCNT}, s{sCNT}, 1\ns_cmp_lt_u32 s{sCNT}, 32\ns_cbranch_scc1 L_mp{sfx}")
    b("s_barrier")
    xlane_reduce_multi(b, [T0 + 8 + q for q in range(nq)], [T0 + q for q in range(nq)], "v_max_f32")
    for q in range(nq):
        for r in range(4): b(f"v_sub_f32 v{CI+4*q+r}, 0, v{T0+8+q}")
    b(f"s_branch L_maxdone{sfx}")

def phase2(b):
    ACC = 0; FR = 16; D = 4
    LF = " sc1"
    b(f"""s_lshr_b32 s2, s97, 3
    s_mul_i32 s100, s2, 43
    s_lshr_b32 s100, s100, 8          ; jj = j/6
    s_mul_i32 s101, s100, 6
    s_sub_u32 s101, s2, s101          ; nt
    s_and_b32 s66, s97, 3
    s_lshl_b32 s70, s66, 1
    s_cmp_ge_u32 s100, 3
    s_addc_u32 s71, s70, 0
    s_cmp_ge_u32 s100, 2
    s_addc_u32 s70, s70, 0
    s_mul_i32 s66, s66, 5
    s_add_u32 s100, s100, s66         ; mt
    v_and_b32 v2, 63, v0
    v_lshlrev_b32 v2, 4, v2
    v_add_u32 v3, 4096, v2
    s_mul_i32 s66, s3, {O_BLK}
    s_mul_i32 s67, s100, 6144
    s_add_u32 s66, s66, s67
    s_mul_i32 s68, s3, {WOT_BLK}
    s_mul_i32 s69, s101, 6144
    s_add_u32 s68, s68, s69
    s_add_u32 s68, s68, {WOT_OFF}
    s_mul_i32 s98, s{sWAVE}, {32*122880}   ; O soffset
    s_mul_i32 s99, s{sWAVE}, {32*36864}    ; W soffset
    s_add_u32 s80, s{sWS}, s68
    s_addc_u32 s81, s{sWS+1}, 0
    s_sub_u32 s82, {WOT_BLK}, s69
    s_mov_b32 s83, 0x20000""")
    SW2 = 80; SO2 = 84; SOUT = 88
    def wl(slot): return [f"buffer_load_dwordx4 {vr(FR+48*slot+4*i,4)}, v{2 if i < 4 else 3}, s[{SW2}:{SW2+3}], s99 offen offset:{1024*(i%4)}{LF}" for i in range(6)]
    def ol(slot): return [f"buffer_load_dwordx4 {vr(FR+48*slot+24+4*i,4)}, v{2 if i < 4 else 3}, s[{SO2}:{SO2+3}], s98 offen offset:{1024*(i%4)}{LF}" for i in range(6)]
    b(f"""v_readfirstlane_b32 s{sT}, v{VCW}
    s_cmp_ge_u32 s97, 240
    s_cbranch_scc1 L_nowl
    s_cmp_lt_u32 s{sT}, 32
    s_cbranch_scc1 L_wspin
    L_wok:""")
    for s_ in range(D): b.ext(wl(s_)); b("s_add_u32 s99, s99, 36864")
    b(f"""L_nowl:
    v_mov_b32 v4, s{sFLAG}
    s_lshl_b32 s{sT}, s{sWAVE}, 2
    s_add_u32 s{sT}, s{sT}, {131072+7168}
    v_mov_b32 v5, s{sT}
    ds_write_b32 v5, v4
    v_mov_b32 v5, {131072+7168}
    s_waitcnt vmcnt(0) lgkmcnt(0)
    s_barrier
    ds_read_b128 v[8:11], v5
    v_mov_b32 v4, 1
    s_waitcnt lgkmcnt(0)
    v_or_b32 v8, v8, v9
    v_or3_b32 v8, v8, v10, v11
    v_readfirstlane_b32 s{sT}, v8
    s_cmp_lg_u32 s{sSAFE}, 0
    s_cselect_b32 s{sT}, 0, s{sT}
    s_cmp_lg_u32 s{sT}, 0
    s_cbranch_scc1 L_redo
    s_cmp_eq_u32 s{sWAVE}, 3
    s_cbranch_scc0 L_nosig2
    s_mov_b64 exec, 1
    buffer_atomic_add v4, off, s[{SCN}:{SCN+3}], s{sCO} sc1
    s_mov_b64 exec, -1
    L_nosig2:""")
    stamp(b)
    b(f"""s_cmp_ge_u32 s97, 240
    s_cbranch_scc1 L_fini
    s_add_u32 s{SO2}, s{sWS}, s66
    s_addc_u32 s{SO2+1}, s{sWS+1}, 0
    s_sub_u32 s{SO2+2}, {O_BLK}, s67
    s_mov_b32 s{SO2+3}, 0x20000
    s_lshl_b32 s59, s3, 3
    s_add_u32 s70, s70, s59
    s_add_u32 s71, s71, s59
    s_lshl_b32 s70, s70, 2
    s_lshl_b32 s71, s71, 2
    s_add_u32 s70, s70, s{sWAVE}
    s_add_u32 s71, s71, s{sWAVE}
    s_lshl_b32 s70, s70, 7
    s_lshl_b32 s71, s71, 7
    v_mov_b32 v4, s70
    v_mov_b32 v5, s71
    v_cmp_gt_u32 vcc, 512, v2
    s_mov_b32 s59, 0
    v_cndmask_b32 v4, v4, v5, vcc
    L_poll:
    buffer_load_dword v5, v4, s[{SCN}:{SCN+3}], 0 offen sc1
    s_add_u32 s59, s59, 1
    s_waitcnt vmcnt(0)
    v_cmp_gt_u32 vcc, 4, v5
    s_cbranch_vccz L_ready
    s_sleep 4
    s_cmp_lt_u32 s59, 0x20000
    s_cbranch_scc1 L_poll
    L_ready:""")
    for s_ in range(D): b.ext(ol(s_)); b("s_add_u32 s98, s98, 122880")
    b(f"""s_mov_b32 s{SOUT}, s{sOUT}
    s_mov_b32 s{SOUT+1}, s{sOUT+1}
    s_mov_b32 s{SOUT+2}, {8*240*1152*2}
    s_mov_b32 s{SOUT+3}, 0x20000""")
    stamp(b)
    def step(slot, first, prefetch, N):
        b(f"s_waitcnt vmcnt({N})")
        slots = []; gaps = [[] for _ in range(36)]
        for q in range(6):
            for n in range(6):
                acc = ar(ACC + 4 * (6 * q + n), 4)
                slots.append(f"{MF} {acc}, {vr(FR+48*slot+4*n,4)}, {vr(FR+48*slot+24+4*q,4)}, {'0' if first else acc}")
        if prefetch:
            o_, w_ = ol(slot), wl(slot)
            for q in range(6): gaps[6 * q + 5].append(o_[q])
            for n in range(6): gaps[30 + n].append(w_[n])
            gaps[35] += ["s_add_u32 s98, s98, 122880", "s_add_u32 s99, s99, 36864"]
        emit_slots(b, slots, gaps)
    for s_ in range(D): step(s_, s_ == 0, True, 18 + 6 * s_)
    b("s_mov_b32 s36, 0\n.p2align 3\nL_k2:")
    for s_ in range(D): step(s_, False, True, 36)
    b("s_add_u32 s36, s36, 1\ns_cmp_lt_u32 s36, 6\ns_cbranch_scc1 L_k2")
    for s_ in range(D): step(s_, False, False, 12 * (D - 1 - s_))
    stamp(b)
    b(f"""v_mov_b32 v4, v2
    v_add_u32 v5, 0x10000, v2
    v_and_b32 v6, 15, v0
    v_mul_u32_u24 v6, 2304, v6
    v_bfe_u32 v7, v0, 4, 2
    v_lshl_add_u32 v6, v7, 3, v6
    v_add_u32 v7, {16*2304}, v6
    v_add_u32 v8, {32*2304}, v6
    s_lshr_b32 s38, s{sWAVE}, 1
    s_mul_i32 s38, s38, {48*2304}
    s_mul_i32 s37, s100, {96*2304}
    s_add_u32 s37, s37, s38
    s_mul_i32 s38, s3, 1152
    s_add_u32 s37, s37, s38
    s_mul_i32 s38, s101, 192
    s_add_u32 s37, s37, s38""")
    for w in range(1, 4):
        b(f"s_cmp_eq_u32 s{sWAVE}, {w}\ns_cbranch_scc1 L_red{w}")
    for w in range(4):
        b(f"L_red{w}:")
        for q in range(6):
            for n in range(6):
                own = (q // 3) * 2 + (n // 3)
                if own == w: continue
                src = (w - own - 1) % 4
                t = (q % 3) * 3 + n % 3
                base, off = divmod(own * 27648 + src * 9216 + t * 1024, 65536)
                b(f"ds_write_b128 v{4 if base == 0 else 5}, {ar(ACC+4*(6*q+n),4)} offset:{off}")
        q0, n0 = 3 * (w // 2), 3 * (w % 2)
        for t in range(9):
            q, n = q0 + t // 3, n0 + t % 3
            for r in range(4): b(f"v_accvgpr_read_b32 v{FR+128+4*t+r}, a{ACC+4*(6*q+n)+r}")
        b("s_waitcnt lgkmcnt(0)\ns_barrier")
        for t in range(9):
            for src in range(3):
                base, off = divmod(w * 27648 + src * 9216 + t * 1024, 65536)
                b(f"ds_read_b128 {vr(FR+12*t+4*src,4)}, v{4 if base == 0 else 5} offset:{off}")
        for t in range(9):
            q, n = q0 + t // 3, n0 + t % 3
            b(f"s_waitcnt lgkmcnt({min(15, 3 * (8 - t))})")
            for r in range(4): b(f"v_add_f32 v{FR+12*t+r}, v{FR+12*t+r}, v{FR+12*t+4+r}")
            for r in range(4): b(f"v_add_f32 v{FR+128+4*t+r}, v{FR+128+4*t+r}, v{FR+12*t+8+r}")
            for r in range(4): b(f"v_add_f32 v{FR+128+4*t+r}, v{FR+128+4*t+r}, v{FR+12*t+r}")
            b(f"v_cvt_pk_bf16_f32 v{FR+170+2*t}, v{FR+128+4*t}, v{FR+128+4*t+1}")
            b(f"v_cvt_pk_bf16_f32 v{FR+170+2*t+1}, v{FR+128+4*t+2}, v{FR+128+4*t+3}")
            b(f"buffer_store_dwordx2 v[{FR+170+2*t}:{FR+170+2*t+1}], v{6 + (q%3)}, s[{SOUT}:{SOUT+3}], s37 offen offset:{32*n}")
        if w < 3: b("s_branch L_fini")
    b("L_fini:")
    stamp_dump(b, 0, sWAVE)
    b("s_endpgm")
    b(f"""L_redo:
    s_mov_b32 s{sSAFE}, 1
    s_barrier
    s_branch L_restart
    L_wspin:
    s_mov_b32 s59, 0
    L_wsp:
    s_sleep 8
    buffer_load_dword v{VCW}, off, s[{SCN}:{SCN+3}], s58 sc1
    s_add_u32 s59, s59, 1
    s_waitcnt vmcnt(0)
    v_readfirstlane_b32 s{sT}, v{VCW}
    s_cmp_ge_u32 s59, 0x20000
    s_cbranch_scc1 L_wok
    s_cmp_lt_u32 s{sT}, 32
    s_cbranch_scc1 L_wsp
    s_branch L_wok""")

def kernel1():
    b = B()
    b("attn_kernel:")
    b("s_cmp_ge_u32 s2, 256\ns_cbranch_scc1 L_end1")
    if OPT['stamps']: b("s_mov_b32 s96, 0\nv_mov_b32 v14, 0\nv_mov_b32 v15, 0")
    stamp(b)
    b("s_load_dwordx16 s[48:63], s[0:1], 0\ns_load_dwordx4 s[64:67], s[0:1], 64\ns_load_dwordx2 s[100:101], s[0:1], 96\ns_load_dwordx4 s[76:79], s[0:1], 80")
    b(f"""s_mov_b32 s97, s2
    s_and_b32 s3, s2, 7
    s_lshr_b32 s2, s2, 3""")
    warm_code(b)
    b(f"""v_lshrrev_b32 v1, 6, v0
    s_and_b32 s68, s3, 1
    s_lshl_b32 s68, s68, 2
    s_and_b32 s69, s2, 3
    s_add_u32 s68, s68, s69        ; b
    v_readfirstlane_b32 s{sWAVE}, v1
    s_bfe_u32 s69, s3, 0x10001
    s_lshl_b32 s69, s69, 3
    s_lshr_b32 s70, s2, 2
    s_add_u32 s69, s69, s70        ; hp
    s_lshr_b32 s3, s3, 2           ; blk
    s_lshl_b32 s{sWB}, s{sWAVE}, 12
    s_lshl_b32 s{sXB}, s{sWAVE}, 13
    s_mov_b32 s{sC}, {CSCALE}
    s_mov_b32 s{sC+1}, {CSCALE}
    s_mov_b32 s{sSAFE}, 0
    s_mov_b32 s{sFLAG}, 0
    s_cmp_eq_u32 s3, 0
    s_waitcnt lgkmcnt(0)
    s_cselect_b64 s[48:49], s[48:49], s[58:59]
    s_cselect_b64 s[50:51], s[50:51], s[60:61]
    s_cselect_b64 s[52:53], s[52:53], s[62:63]
    s_cselect_b64 s[54:55], s[54:55], s[64:65]
    s_cselect_b64 s[56:57], s[56:57], s[66:67]""")
    b(f"""s_mul_i32 s71, s68, 276480
    s_add_u32 s{SX}, s48, s71
    s_addc_u32 s{SX+1}, s49, 0
    s_mov_b32 s{SX+2}, 276480
    s_mov_b32 s{SX+3}, 0x20000
    s_lshl_b32 s71, s69, 9
    s_add_u32 s{SW}, s54, s71
    s_addc_u32 s{SW+1}, s55, 0
    s_sub_u32 s{SW+2}, 4718592, s71
    s_mov_b32 s{SW+3}, 0x20000""")
    b("L_restart:")
    b(f"""s_cmp_eq_u32 s{sWAVE}, 3
    s_cbranch_scc1 L_begin3""")
    wave_code(b, 4, "4")
    b(".p2align 6")
    wave_code(b, 3, "3")
    b("L_vote:")
    phase2(b)
    b("L_end1:\ns_endpgm\nL_codeend:")
    return b.L

def resolve_waits(L):
    out = []
    for i, x in enumerate(L):
        if x.startswith("WAITL"):
            tag = x.split()[1]
            n, T = tag[1:].split('.'); T = int(T)
            dst = set(range(AW + 8 * (T % 4), AW + 8 * (T % 4) + 8))
            cnt = 0; found = False
            for y in reversed(out):
                if y.startswith(("s_waitcnt", "WAITV")) and "lgkmcnt(0)" in y:
                    found = True; cnt = None; break
                if y.startswith("ds_"):
                    I = Ins(y)
                    if any(k == 'a' and r in dst for k, r in I.wr) or (T == 0 and 'need=X' in y):
                        found = True; break
                    cnt += 1
            assert found, x
            if cnt is not None:
                assert cnt <= 15
                out.append(f"s_waitcnt lgkmcnt({cnt})")
        else: out.append(x)
    return out

def expand_trace(L):
    def shift(line, name, it, step):
        if it == 0: return line
        def rep(m):
            k, n = m.group(1), int(m.group(2))
            if name == 'qp':
                if k == 'W': return f"W{n + step*it}"
                if k == 'X': return f"X{n + step*it//2}"
                return m.group(0)
            if k == 'KV': return f"KV{n + step*it}"
            return m.group(0)
        if ';' not in line: return line
        a, c = line.split(';', 1)
        return a + ';' + re.sub(r'\b(KV|W|X)(\d+)\b', rep, c)
    def go(i, stop):
        res = []
        while i < len(L):
            x = L[i]
            if x.startswith("LOOPBEGIN"):
                _, name, cnt, step = x.split(); cnt = int(cnt); step = int(step)
                body, j = go(i + 1, name)
                for it in range(cnt):
                    for y in body:
                        if y == f"LOOPEXIT {name}":
                            if it == cnt - 1: break
                            continue
                        res.append(shift(y, name, it, step))
                i = j + 1; continue
            if x.startswith("LOOPEND") and x.split()[1] == stop: return res, i
            res.append(x); i += 1
        return res, i
    return go(0, None)[0]

def resolve_vm(L):
    idx = [f"{x} ;#{i}" if x.startswith("WAITV") else x for i, x in enumerate(L)]
    tr = expand_trace(idx)
    q = []; best = {}
    for x in tr:
        if x.startswith(("L_maxpass", "L_hspin")): break
        c = x.split(';', 1)[1] if ';' in x else ''
        if x.startswith(("buffer_", "global_")):
            if 'cond' in c: continue
            m = re.search(r'tag=(\w+)', c); q.append(m.group(1) if m else 'other')
        elif x.startswith("WAITV"):
            tags = set(re.search(r'cover=([\w,]*)', c).group(1).split(','))
            i = int(x.rsplit('#', 1)[1])
            n = 0
            for t in reversed(q):
                if t in tags: break
                n += 1
            else: n = 63
            best[i] = min(best.get(i, 63), n, 63)
    out = []
    for i, x in enumerate(L):
        if x.startswith("WAITV"):
            a, c = x.split(';', 1)
            out.append(f"s_waitcnt vmcnt({best[i]}) {a[5:].strip()} ;{c}")
        else: out.append(x)
    return out

def check_protocol(L, label):
    tr = expand_trace(L)
    q = []; done = set(); issued = {}; pub = set(); errs = 0
    for x in tr:
        if x.startswith(("L_maxpass", "L_hspin")): break
        c = x.split(';', 1)[1] if ';' in x else ''
        if x.startswith("buffer_") or x.startswith("global_"):
            if 'cond' in c: continue
            m = re.search(r'tag=(\w+)', c); q.append(m.group(1) if m else 'other')
        elif x.startswith("s_waitcnt"):
            m = re.search(r'vmcnt\((\d+)\)', x)
            if m:
                n = int(m.group(1))
                while len(q) > n: done.add(q.pop(0))
            m = re.search(r'needtag=(\w+)', c)
            if m and m.group(1) in q: print(label, "ERR needtag", x); errs += 1
        elif x.startswith("s_barrier"):
            m = re.search(r'pub=([\w,]*)', c)
            if m:
                for t in m.group(1).split(','):
                    if not t: continue
                    if t in q or (t not in done and not (label == 'w3' and t[0] in 'XW')): print(label, "ERR publish not landed", t, x); errs += 1
                    pub.add(t)
        elif x.startswith("ds_read"):
            m = re.search(r'need=(\w+)', c)
            if m and m.group(1) not in pub and m.group(1) not in ('KV64',): print(label, "ERR read unpublished", x); errs += 1
        assert len(q) <= 63, ("vmcnt overflow", x)
    return errs

def finish(L):
    L = resolve_waits(L)
    return L

def strip_markers(L):
    return [x for x in L if not x.startswith(("LOOPBEGIN", "LOOPEND", "LOOPEXIT"))]

DESC = """.section .rodata,"a"
.p2align 6
.amdhsa_kernel {name}
  .amdhsa_next_free_vgpr {vgpr}
  .amdhsa_next_free_sgpr 102
  .amdhsa_accum_offset 256
  .amdhsa_group_segment_fixed_size 0
  .amdhsa_kernarg_size 104
  .amdhsa_user_sgpr_count 2
  .amdhsa_user_sgpr_kernarg_segment_ptr 1
  .amdhsa_system_sgpr_workgroup_id_x 1
  .amdhsa_float_denorm_mode_32 3
.end_amdhsa_kernel
"""

def build(**kw):
    OPT.update(kw)
    k1 = finish(kernel1())
    i4 = k1.index("L_begin4:"); i3 = k1.index("L_begin3:"); iv = k1.index("L_vote:")
    k1 = k1[:i4] + resolve_vm(k1[i4:i3]) + resolve_vm(k1[i3:iv]) + k1[iv:]
    e = check_protocol(k1[i4:i3], "w4") + check_protocol(k1[i3:], "w3")
    assert e == 0
    k1 = strip_markers(k1)
    k1, n1, p1 = fix_hazards(k1)
    for p in p1: print("BRANCH HAZARD", p)
    assert not p1
    hdr = open("cdna_kernels/%s.s.ref" % NAME).read().split("; Override")[0]
    KN = NAME + "_kernel"
    k1 = [x.replace("attn_kernel", KN) for x in k1]
    out = hdr
    out += "; generated by my own schedule generator: q-projection + attention (2 heads per workgroup), hand-off, output projection\n"
    out += ("; @launch kernel=%s grid=(256,1,1) block=(256,1,1) lds=163840\n" % KN) if OPT.get('list') else "; @launch grid=(256,1,1) block=(256,1,1) lds=163840\n"
    out += '.amdgcn_target "amdgcn-amd-amdhsa--gfx950"\n.text\n'
    out += ".globl %s\n.p2align 8\n.type %s,@function\n" % (KN, KN) + "\n".join(k1) + "\n"
    out += DESC.format(name=KN, vgpr=512)
    return out, n1

if __name__ == "__main__":
    kw = {}
    for a in sys.argv[2:]:
        k, v = a.split('='); kw[k] = int(v)
    s, info = build(**kw)
    open(sys.argv[1], "w").write(s)
    print("nops inserted", info, "bytes", len(s))
```

```python
import sys, re
from asmlib import fix_hazards, Ins

NAME = "concat_heads__mha_block_cached__mha_block_cached__near_ridge"
MF = "v_mfma_f32_16x16x32_bf16"
CSCALE = 0x3e0293ee
LTHR = 0x4e800000

O_BLK = 128 * 122880
WOT_OFF = 2 * O_BLK
WOT_BLK = 128 * 36864
CNT_OFF = WOT_OFF + 2 * WOT_BLK

class B:
    def __init__(self): self.L = []
    def __call__(self, s):
        for x in s.split("\n"):
            x = x.strip()
            if x: self.L.append(x)
    def ext(self, l): self.L.extend(l)

def vr(b, n): return f"v[{b}:{b+n-1}]"
def ar(b, n): return f"a[{b}:{b+n-1}]"

def emit_slots(b, slots, gaps):
    for i, s in enumerate(slots):
        if s: b(s)
        nv = [x for x in gaps[i] if not x.startswith('v_')]
        v = [x for x in gaps[i] if x.startswith('v_')]
        for x in nv + v: b(x)

S_ = 16; P_ = 48; CI = 64; LS = 80
KA = 84
VA = 88
VWA = 105
DK0 = 96; DK1 = 97; DV0 = 98; DV1 = 99
VO = 100
VWO = 101
VWX = 102
VLN = 103
VPF = 104
VPD = 105
T0 = 108
O_ = 128
XA = 16; WA = 28; DX = 20; DW = 24
WSLOT = [49152, 114688, 131072, 147456]; sKB = 69
def AQ(q): return 32 + 64 * (q // 2) + 16 * (q % 2)
def AQ2(q): return 64 * (q // 2) + 16 * (q % 2)
AK = 128; AV = 160; ASP = 160
AX = 0; AW = 64
SX = 4; SW = 8; SK = 12; SV = 16; SO = 20; SWO = 24; SWT = 28
sWAVE = 32; sWB = 33; sKV = 34; sCNT = 35; sHEAD = 36; sSAFE = 37; sFLAG = 38
sXO = 39; sXO2 = 40; sWOFF = 41; sXB = 42; sOO = 43; sC = 44
sT = 46
sH0 = 68; sWOS = 64; sWTS = 65; sSTAMP = 72; SPF = 76; sPF = 66; sWXS = 67; sROT = 80; sLIN = 81
SCN = 48; SDB = 52; SO2 = 56; sCO = 60; sCW = 61; SIN = 84; SIF = 88; sOUT = 76; VHS = 106; VCW = 107; VONE = 104
SW2 = 80; sO2 = 98; sW2 = 99; sOUTO = 66; sOP = 67; VPE = 11; VTH = 12; VP2 = 13; VL4 = 10; AST = 192; sSIG = 78; sLATE = 79

OPT = dict(nt_kv=1, nt_w=1, nt_x=1, nt_wo=1, stamps=0, warm=1, of=2, of0=2)

K2F = ['', ' nt', ' sc1', ' sc0 sc1', ' sc0', ' sc1 nt']
def fl(k): return " nt" if OPT[k] else ""

def dma(voff, srd, soff, off, flag, tag):
    return f"buffer_load_dwordx4 v{voff}, s[{srd}:{srd+3}], {soff} offen offset:{off}{flag} lds ; tag={tag}"

def kv_adv():
    if not OPT.get('rot'): return [f"s_add_u32 s{sKV}, s{sKV}, 8192"]
    return [f"s_add_u32 s{sLIN}, s{sLIN}, 8192", f"s_add_u32 s{sKV}, s{sLIN}, s{sROT}",
            f"s_and_b32 s{sKV}, s{sKV}, 0x3ffff", f"s_and_b32 s{sT+1}, s{sLIN}, 0xfffc0000", f"s_or_b32 s{sKV}, s{sKV}, s{sT+1}"]

def k_dma(tile, so=None):
    so = so or f"s{sKV}"
    return [f"s_add_u32 m0, s{sKB}, {(tile % 8) * 8192}",
            dma(DK0, SK, so, 0, fl('nt_kv'), f"KV{tile}"), dma(DK1, SK, so, 1024, fl('nt_kv'), f"KV{tile}")]
def v_dma(tile, so=None):
    so = so or f"s{sKV}"
    return [f"s_add_u32 m0, s{sKB}, {65536 + (tile % 8) * 8192}",
            dma(DV0, SV, so, 0, fl('nt_kv'), f"KV{tile}"), dma(DV1, SV, so, 1024, fl('nt_kv'), f"KV{tile}")]

def x_dma(m, nq):
    slot = 16384 if m % 2 else 81920
    out = []
    out.append(f"s_add_u32 m0, s{sXB}, {slot}")
    for j in range(4): out.append(dma(DX + j, SX, f"s{sXO}", 1024 * j, fl('nt_x'), f"X{m}"))
    out.append(f"s_add_u32 m0, s{sXB}, {slot + 4096}")
    for j in range(4 if nq == 4 else 2): out.append(dma(DX + j, SX, f"s{sXO2}", 1024 * j, fl('nt_x'), f"X{m}"))
    out.append(f"s_add_u32 s{sXO}, s{sXO}, 128")
    out.append(f"s_add_u32 s{sXO2}, s{sXO2}, 128")
    return out

def w_dma(n, nq):
    out = [f"s_add_u32 m0, s{sWB}, {WSLOT[n % 4]}"]
    for j in range(4): out.append(dma(DW + j, SW, f"s{sWOFF}", 1024 * j, fl('nt_w'), f"W{n}"))
    if n % 2 == 0: out.append(f"s_add_u32 s{sWOFF}, s{sWOFF}, 256")
    else: out.append(f"s_add_u32 s{sWOFF}, s{sWOFF}, {524288 - 256}")
    return out

def w_reads(n, T):
    sp_, a = T // 2, T % 2
    hl, sp = sp_ // 2, sp_ % 2
    out = []
    for s in range(2):
        for a2 in range(2):
            d = AW + 8 * (T % 4) + 4 * s + 2 * a2
            off = max(n % 4 - 1, 0) * 16384 + hl * 8192 + (32 * s + 4 * a2) * 128 + 8 * a
            out.append(f"ds_read_b64_tr_b16 {ar(d,2)}, v{WA + sp + (2 if n % 4 else 0)} offset:{off} ; need=W{n}")
    return out

def x_reads(m, nq):
    out = []
    for q in range(nq):
        for s in range(2):
            d = AX + 32 * (m % 2) + 8 * q + 4 * s
            out.append(f"ds_read_b128 {ar(d,4)}, v{XA + s + (0 if m % 2 else 2)} offset:{q * 2048} ; need=X{m}")
    return out

def qacc(hd, q, T):
    r = 128 + 32 * q + 4 * T
    return vr(r, 4) if hd == 0 else ar(r, 4)

def pf_load():
    return f"buffer_load_dword v{VPD}, v{VPF}, s[{SPF}:{SPF+3}], s{sPF} offen nt ; tag=PF"

def wo_dma(extra):
    out = [f"s_add_u32 m0, s{sXB}, 131072"]
    for j in range(4):
        out += [f"PRE s_add_u32 s{sT}, s{sWOS}, {8192*j}", dma(VWO, SWO, f"s{sT}", 1024 * j, fl('nt_wo'), "WO")]
    if extra: out += [f"s_add_u32 m0, s{sXB}, {131072 + 4096}", dma(VWX, SWO, "0", 0, fl('nt_wo'), "WO")]
    return out

def qproj_stage(b, n, nq, fill=None):
    hd, m = n % 2, n // 2
    nx = 8 if nq == 4 else 6
    slots = []; gaps = [[] for _ in range(64)]
    for T in range(8):
        for q in range(4):
            for s in range(2):
                if q >= nq: slots.append(None); continue
                acc = qacc(hd, q, T)
                c = "0" if (m == 0 and s == 0) else acc
                slots.append(f"{MF} {acc}, {ar(AW+8*(T%4)+4*s,4)}, {ar(AX+32*(m%2)+8*q+4*s,4)}, {c}")
    start = {3: 5, 4: 12, 5: 19, 6: 26, 7: 33}
    rd = w_reads(n, 2); gaps[0].append(rd[3])
    for T, g in start.items():
        for i, x in enumerate(w_reads(n, T)): gaps[g + i].append(x)
    if n < 17:
        for T, g in ((0, 45), (1, 53)):
            for i, x in enumerate(w_reads(n + 1, T)): gaps[g + i].append(x)
        for i, x in enumerate(w_reads(n + 1, 2)[:3]): gaps[61 + i].append(x)
    xr = []
    if n % 2 == 1 and m + 1 <= 8:
        xr = x_reads(m + 1, nq)
        for x, g in zip(xr, (9, 10, 16, 17, 23, 24, 30, 31)): gaps[g].append(x)
    for T in range(1, 8): gaps[8 * T - 1].append(f"WAITL W{n}.{T}")
    if n < 17: gaps[63].append(f"WAITL W{n+1}.0")
    req = []
    if n + 1 <= 17: req.append(f"W{n+1}")
    if n % 2 == 0 and m + 1 <= 8: req.append(f"X{m+1}")
    if n == 17: req += ["KV0", "KV1"]
    cov = list(req)
    if nq == 3 and n == 2:
        cov.append("INIT")
        gaps[45].append(f"buffer_store_dword v{VONE}, v{VLN}, s[{SIF}:{SIF+3}], 0 offen sc1 ; tag=FLAG")
    if nq == 3 and n == 12:
        gaps[45].append(f"buffer_load_dword v{VHS}, off, s[{SDB}:{SDB+3}], 0 ; tag=HS")
    gaps[43].append("WAITV lgkmcnt(0) ; cover=" + ",".join(cov))
    gaps[44].append("s_barrier ; pub=" + ",".join(req))
    def place(seq, first, step):
        g = first
        for x in seq:
            if x.startswith("buffer_"): gaps[g].append(x); g += step
            elif x.startswith("s_add_u32 m0"): gaps[g - 1].append(x)
            elif x.startswith("PRE "): gaps[g - 1].append(x[4:])
            else: gaps[min(g - step + 1, 63)].append(x)
    if n % 2 == 0 and m + 2 <= 8: place(x_dma(m + 2, nq), 2, 5)
    if n in (14, 16):
        seq = []
        for t in range(2, 6):
            seq += [f"PRE s_add_u32 s{sT}, s{sKV}, {(t - 2) * 8192}"] + (k_dma if n == 14 else v_dma)(t, f"s{sT}")
        if n == 16: seq.append(f"s_add_u32 s{sKV}, s{sKV}, 32768")
        place(seq, 2, 5)
    if n == OPT.get('wost', 17): place(wo_dma(True)[:OPT.get('won', 99)], 46, 4)
    if n + 4 <= 17: place(w_dma(n + 4, nq), 46, 5)
    for i_ in range(OPT.get('qslow', 0)): gaps[2 + 2 * i_].append('v_nop\nv_nop\nv_nop\nv_nop\nv_nop\nv_nop')
    if fill is not None:
        for g in range(20 if n == 16 else 0, 64):
            if slots[g] is None: continue
            for _ in range(2):
                if fill: gaps[g].append(fill.pop(0))
    emit_slots(b, slots, gaps)
    if OPT.get('qstamps'): stamp(b)

def k_reads(unit, tile):
    out = []
    for kt in range(2):
        for s in range(4):
            f = 4 * kt + s
            out.append(f"ds_read_b128 {ar(AK+4*f,4)}, v{KA + s} offset:{unit * 8192 + kt * 4096} ; need=KV{tile}")
    return out

def v_reads(unit, tile):
    out = []
    for T in range(8):
        th, tl = T // 4, T % 4
        for a in range(2):
            out.append(f"ds_read_b64_tr_b16 {ar(AV+4*T+2*a,2)}, v{VA + T} offset:{unit * 8192 + a * 4096} ; need=KV{tile}")
    return out

import sched
V_GAPS = list(range(25, 41)); K_GAPS = list(range(48, 56)); D_GAPS = [1, 9, 17, 23]
SM = sched.schedule(4, V_GAPS + K_GAPS, D_GAPS)
def sm_text(kind, q, e):
    s = S_ + 8 * q + e
    if kind == 'exp': return f"v_exp_f32 v{s}, v{s}"
    if kind == 'add': return f"v_add_f32 v{LS+q}, v{LS+q}, v{s}"
    return f"v_cvt_pk_bf16_f32 v{P_+4*q+e//2}, v{s-1}, v{s}"
def sm_items(nq, lo, hi):
    it = [(g, k[0] == 'exp', k) for k, g in SM.items() if k[1] < nq and lo <= g < hi]
    it.sort(key=lambda t: (t[0] % 64, t[1], -t[0]))
    return [(g, k) for g, _, k in it]

def qk(q, kt, s, czero=False):
    d = vr(S_ + 8 * q + 4 * kt, 4)
    c = d if s else ("0" if czero else vr(CI + 4 * q, 4))
    return f"{MF} {d}, {ar(AK+4*(4*kt+s),4)}, {ar(AQ(q)+4*s,4)}, {c}"

def pv(q, T, czero=False):
    d = vr(O_ + 32 * q + 4 * T, 4)
    return f"{MF} {d}, {ar(AV+4*T,4)}, {vr(P_+4*q,4)}, {'0' if czero else d}"

def attn_stage(b, k, nq, extra=None):
    kk = k % 32; u = k % 8
    slots = []; gaps = [[] for _ in range(64)]
    for q in (0, 1):
        for kt in range(2):
            for s in range(4): slots.append(qk(q, kt, s))
    for q in (2, 3):
        for T in range(8): slots.append(pv(q, T, kk == 1) if (q < nq and kk > 0) else None)
    for q in (2, 3):
        for kt in range(2):
            for s in range(4): slots.append(qk(q, kt, s) if q < nq else None)
    for q in (0, 1):
        for T in range(8): slots.append(pv(q, T, kk == 0))
    for g, key in sm_items(nq, 0, 128 if kk > 0 else 64): gaps[g % 64].append(sm_text(*key))
    for g, x in zip(V_GAPS, v_reads(u, k)): gaps[g].append(x)
    DIST = OPT.get('dist', 6)
    if DIST == 7:
        gaps[46].append(f"WAITV lgkmcnt(0) ; cover=KV{k+1}")
        gaps[47].append(f"s_barrier ; pub=KV{k+1}")
    elif k % 2 == 1:
        gaps[46].append(f"WAITV lgkmcnt(0) ; cover=KV{k+1},KV{k+2}" + (",WT" if kk == 11 else ""))
        gaps[47].append(f"s_barrier ; pub=KV{k+1},KV{k+2}")
    else:
        gaps[47].append("s_waitcnt lgkmcnt(0)")
    for g, x in zip(K_GAPS, k_reads((u + 1) % 8, k + 1)): gaps[g].append(x)
    gaps[63].append("s_waitcnt lgkmcnt(0)")
    kd, vd = k_dma(k + DIST), v_dma(k + DIST)
    gaps[D_GAPS[0] - 1].append(kd[0]); gaps[D_GAPS[2] - 1].append(vd[0])
    for x, g in zip(kd[1:] + vd[1:], D_GAPS): gaps[g].append(x)
    for i_, x in enumerate(kv_adv()): gaps[(42, 42, 43, 43, 44)[i_]].append(x)
    for i_ in range(OPT.get('slow', 0)): gaps[2 + 2 * i_].append('v_nop\nv_nop\nv_nop\nv_nop')
    if OPT.get('kvsmall'): gaps[44].append(f"s_and_b32 s{sKV}, s{sKV}, 0xffff")
    if extra:
        for g, x in extra: gaps[g].append(x)
    if OPT.get('astamps') and k % 2 == 0: stamp(b)
    if OPT.get('dmaonly'):
        slots = [None] * 64
        gaps = [[x for x in g if not x.startswith(('v_', 'ds_'))] for g in gaps]
    emit_slots(b, slots, gaps)

def xlane_reduce(b, reg, tmp, op):
    b(f"v_mov_b32 v{tmp}, v{reg}")
    b(f"v_permlane32_swap_b32 v{reg}, v{tmp}")
    b(f"{op} v{reg}, v{reg}, v{tmp}")
    b(f"v_mov_b32 v{tmp}, v{reg}")
    b(f"v_permlane16_swap_b32 v{reg}, v{tmp}")
    b(f"{op} v{reg}, v{reg}, v{tmp}")

def xlane_reduce_multi(b, regs, tmps, op):
    for sw in ("v_permlane32_swap_b32", "v_permlane16_swap_b32"):
        for r, t in zip(regs, tmps): b(f"v_mov_b32 v{t}, v{r}")
        for r, t in zip(regs, tmps): b(f"{sw} v{r}, v{t}")
        for r, t in zip(regs, tmps): b(f"{op} v{r}, v{r}, v{t}")

def stamp(b, idx=None):
    if not OPT['stamps']: return
    b(f"s_memtime s[{sSTAMP}:{sSTAMP+1}]\ns_memrealtime s[{sSTAMP+2}:{sSTAMP+3}]\ns_waitcnt lgkmcnt(0)")
    b(f"s_mov_b32 s95, m0\ns_mov_b32 m0, s96\nv_writelane_b32 v14, s{sSTAMP}, m0\nv_writelane_b32 v15, s{sSTAMP+2}, m0\ns_mov_b32 m0, s95\ns_add_u32 s96, s96, 1")

def stamp_dump(b, k, wave):
    if not OPT['stamps']: return
    b("s_waitcnt vmcnt(0)")
    stamp(b)
    if OPT['stamps'] == 2:
        b("s_load_dwordx2 s[92:93], s[0:1], 88\ns_waitcnt lgkmcnt(0)")
        b(f"s_cmp_lg_u32 s{wave}, 0\ns_cbranch_scc1 L_end{k+1}\ns_and_b32 s94, s97, 31\ns_cmp_lg_u32 s94, 5\ns_cbranch_scc1 L_end{k+1}")
        b(f"s_add_u32 s88, s92, {OPT.get('dbgoff',0)*(1-k)}\ns_addc_u32 s89, s93, 0\ns_mov_b32 s90, 256\ns_mov_b32 s91, 0x20000")
        sel = [0, 2, 3, 6, 7, 9, 10, 11] if k == 0 else [0, 1, 2, 3]
        b("s_mov_b64 exec, 1")
        for i, ix in enumerate(sel):
            b(f"v_readlane_b32 s94, v15, {ix}\ns_nop 3")
            if i == 0 and k == 0: b("s_not_b32 s94, s94")
            b(f"v_mov_b32 v1, s94\nv_mov_b32 v2, {4*(i + (0 if k == 0 else 8))}\nbuffer_atomic_umax v1, v2, s[88:91], 0 offen")
        return
    b("s_load_dwordx2 s[92:93], s[0:1], 96\ns_waitcnt lgkmcnt(0)")
    b(f"s_add_u32 s88, s92, {(48+k)*1024*1024}\ns_addc_u32 s89, s93, 0\ns_mov_b32 s90, 0x100000\ns_mov_b32 s91, 0x20000")
    b(f"s_lshl_b32 s94, s97, 2\ns_add_u32 s94, s94, s{wave}\ns_lshl_b32 s94, s94, 9")
    b("v_and_b32 v1, 63, v0\nv_lshlrev_b32 v1, 3, v1")
    b("buffer_store_dwordx2 v[14:15], v1, s[88:91], s94 offen")

def persist_regs(b):
    lane = T0; t1 = T0 + 1; t2 = T0 + 2; t3 = T0 + 3; g_ = T0 + 4; ihi = T0 + 5; i8 = T0 + 6; i16 = T0 + 7; r_ = T0 + 8; c4 = T0 + 9
    b(f"""v_and_b32 v{lane}, 63, v0
    v_lshrrev_b32 v{g_}, 4, v{lane}
    v_lshrrev_b32 v{ihi}, 3, v{lane}
    v_and_b32 v{i8}, 7, v{lane}
    v_and_b32 v{i16}, 15, v{lane}
    v_lshrrev_b32 v{r_}, 2, v{i16}
    v_and_b32 v{c4}, 3, v{lane}
    v_lshlrev_b32 v{VLN}, 4, v{lane}
    s_add_u32 s71, s63, s{sWB}
    v_add_u32 v{VO}, s71, v{VLN}""")
    b(f"""s_lshl_b32 s70, s{sWAVE}, 11
    v_lshlrev_b32 v{t1}, 8, v{g_}
    v_add_u32 v{t1}, s70, v{t1}
    s_and_b32 s70, s{sWAVE}, 1
    s_lshl_b32 s70, s70, 3
    v_xor_b32 v{t2}, v{i16}, v{g_}
    v_xor_b32 v{t2}, s70, v{t2}
    v_lshl_add_u32 v{DK0}, v{t2}, 4, v{t1}
    v_xor_b32 v{DK1}, 64, v{DK0}
    v_lshlrev_b32 v{t2}, 1, v{g_}
    v_xor_b32 v{t3}, v{t2}, v{i16}
    v_lshl_add_u32 v{DV0}, v{t3}, 4, v{t1}
    v_xor_b32 v{DV1}, 128, v{DV0}
    v_xor_b32 v{t2}, v{t2}, v{i8}""")
    b(f"""v_mul_u32_u24 v{t1}, 1152, v{ihi}
    v_lshl_add_u32 v{t1}, v{t2}, 4, v{t1}
    s_lshl_b32 s70, s{sWAVE}, 7
    v_add_u32 v{VWO}, s70, v{t1}
    v_lshrrev_b32 v{t1}, 1, v{lane}
    v_mul_u32_u24 v{t1}, 1152, v{t1}
    v_and_b32 v{t2}, 1, v{lane}
    v_lshl_add_u32 v{t1}, v{t2}, 4, v{t1}
    s_lshl_b32 s70, s{sWAVE}, 5
    s_add_u32 s70, s70, 1024
    v_add_u32 v{VWX}, s70, v{t1}""")
    b(f"""v_xor_b32 v{t2}, v{g_}, v{i16}
    v_lshlrev_b32 v{t2}, 4, v{t2}
    v_lshl_add_u32 v{KA}, v{i16}, 8, v{t2}""")
    for s_ in range(1, 4): b(f"v_xor_b32 v{KA+s_}, {64*s_}, v{KA}")
    b(f"""v_lshl_add_u32 v{t2}, v{g_}, 2, v{r_}
    v_lshlrev_b32 v{t1}, 8, v{t2}
    v_and_b32 v{t2}, 7, v{t2}
    v_lshl_add_u32 v{t1}, v{t2}, 5, v{t1}
    v_lshl_add_u32 v{t1}, v{c4}, 3, v{t1}
    v_add_u32 v{VA}, 0x10000, v{t1}""")
    for T in range(1, 8): b(f"v_xor_b32 v{VA+T}, {32*T}, v{VA}")
    b(f"""v_lshrrev_b32 v{t1}, 1, v{g_}
    v_lshlrev_b32 v{t1}, 10, v{t1}
    v_lshl_add_u32 v{t1}, v{t2}, 7, v{t1}
    v_lshl_add_u32 v{t1}, v{c4}, 3, v{t1}
    v_lshrrev_b32 v{t2}, 1, v{t2}
    v_lshl_add_u32 v{t1}, v{t2}, 5, v{t1}
    s_add_u32 s70, s{sXB}, 131072
    v_add_u32 v{VWA}, s70, v{t1}""")

def late_setup(b, sfx):
    b(f"s_cmp_lg_u32 s{sSAFE}, 0\ns_cbranch_scc1 L_late{sfx}")
    b(f"""s_lshl_b32 s71, s68, 4
    s_add_u32 s71, s71, s69
    s_lshl_b32 s70, s71, 19
    s_add_u32 s{SK}, s50, s70
    s_addc_u32 s{SK+1}, s51, 0
    s_mov_b32 s{SK+2}, 524288
    s_mov_b32 s{SK+3}, 0x20000
    s_add_u32 s{SV}, s52, s70
    s_addc_u32 s{SV+1}, s53, 0
    s_mov_b32 s{SV+2}, 524288
    s_mov_b32 s{SV+3}, 0x20000
    s_mul_i32 s70, s3, {O_BLK}
    s_add_u32 s{SO}, s100, s70
    s_addc_u32 s{SO+1}, s101, 0
    s_mov_b32 s{SO+2}, {O_BLK}
    s_mov_b32 s{SO+3}, 0x20000
    s_mul_i32 s70, s71, 36864
    s_add_u32 s{SWO}, s56, s70
    s_addc_u32 s{SWO+1}, s57, 0
    s_mov_b32 s{SWO+2}, 36864
    s_mov_b32 s{SWO+3}, 0x20000
    s_mul_i32 s71, s3, {WOT_BLK}
    s_add_u32 s70, s70, s71
    s_add_u32 s70, s70, {WOT_OFF}
    s_add_u32 s{SWT}, s100, s70
    s_addc_u32 s{SWT+1}, s101, 0
    s_mov_b32 s{SWT+2}, 36864
    s_mov_b32 s{SWT+3}, 0x20000
    s_mul_i32 s62, s69, {8*122880}
    s_mul_i32 s63, s68, 15360        ; b*15*1024
    s_add_u32 s{SCN}, s100, {CNT_OFF}
    s_addc_u32 s{SCN+1}, s101, 0
    s_mov_b32 s{SCN+2}, 24576
    s_mov_b32 s{SCN+3}, 0x20000
    s_mov_b64 s[{SDB}:{SDB+1}], s[78:79]
    s_mov_b32 s{SDB+2}, 256
    s_mov_b32 s{SDB+3}, 0x20000
    s_mov_b64 s[{SIN}:{SIN+1}], s[{SCN}:{SCN+1}]
    s_mov_b32 s{SIN+3}, 0x20000
    s_mov_b64 s[{SIF}:{SIF+1}], s[78:79]
    s_mov_b32 s{SIF+3}, 0x20000
    s_lshl_b32 s70, s3, 3
    s_add_u32 s70, s70, s68
    s_lshl_b32 s{sCO}, s70, 2
    s_lshr_b32 s71, s69, 2
    s_add_u32 s{sCO}, s{sCO}, s71
    s_lshl_b32 s{sCO}, s{sCO}, 7
    s_lshr_b32 s{sCW}, s70, 1
    s_lshl_b32 s{sCW}, s{sCW}, 7
    s_add_u32 s{sCW}, s{sCW}, 8192
    s_mul_i32 s68, s2, 43
    s_lshr_b32 s68, s68, 8
    s_mul_i32 s69, s68, 6
    s_sub_u32 s69, s2, s69             ; nt
    s_and_b32 s70, s97, 3
    s_lshl_b32 s78, s3, 2
    s_add_u32 s78, s78, s70
    s_lshl_b32 s78, s78, 1             ; blk*8 + 2x
    s_cmp_ge_u32 s68, 3
    s_addc_u32 s79, s78, 0
    s_cmp_ge_u32 s68, 2
    s_addc_u32 s78, s78, 0
    s_lshl_b32 s78, s78, 2
    s_lshl_b32 s79, s79, 2
    s_add_u32 s78, s78, s{sWAVE}
    s_add_u32 s79, s79, s{sWAVE}
    s_lshl_b32 s78, s78, 7
    s_lshl_b32 s79, s79, 7
    s_mul_i32 s70, s70, 5
    s_add_u32 s68, s68, s70            ; mt
    s_mul_i32 s70, s3, {O_BLK}
    s_mul_i32 s71, s68, 6144
    s_add_u32 s70, s70, s71
    s_add_u32 s{SO2}, s100, s70
    s_addc_u32 s{SO2+1}, s101, 0
    s_sub_u32 s{SO2+2}, {O_BLK}, s71
    s_mov_b32 s{SO2+3}, 0x20000
    s_mul_i32 s70, s3, {WOT_BLK}
    s_mul_i32 s71, s69, 6144
    s_add_u32 s70, s70, s71
    s_add_u32 s70, s70, {WOT_OFF}
    s_add_u32 s{SW2}, s100, s70
    s_addc_u32 s{SW2+1}, s101, 0
    s_sub_u32 s{SW2+2}, {WOT_BLK}, s71
    s_mov_b32 s{SW2+3}, 0x20000
    s_cmp_ge_u32 s97, 240
    s_cselect_b32 s{SO2+2}, 0, s{SO2+2}
    s_cselect_b32 s{SW2+2}, 0, s{SW2+2}
    s_mov_b32 s100, s{SO2+2}
    s_mov_b32 s101, s{SW2+2}
    s_lshr_b32 s70, s{sWAVE}, 1
    s_mul_i32 s70, s70, {48*2304}
    s_mul_i32 s{sOUTO}, s68, {96*2304}
    s_add_u32 s{sOUTO}, s{sOUTO}, s70
    s_mul_i32 s70, s3, 1152
    s_add_u32 s{sOUTO}, s{sOUTO}, s70
    s_mul_i32 s70, s69, 192
    s_add_u32 s{sOUTO}, s{sOUTO}, s70
    s_lshl_b32 s70, s3, 2
    s_add_u32 s70, s70, s{sWAVE}
    s_lshl_b32 s70, s70, 7
    s_add_u32 s70, s70, 8192
    v_and_b32 v1, 1, v0
    v_mov_b32 v{VP2}, s78
    v_mov_b32 v2, s79
    v_cmp_eq_u32 vcc, 1, v1
    v_and_b32 v1, 2, v0
    v_mov_b32 v3, s70
    v_cndmask_b32 v{VP2}, v{VP2}, v2, vcc
    v_cmp_eq_u32 vcc, 2, v1
    v_add_u32 v{VPE}, 16384, v{VP2}
    v_mov_b32 v{VTH}, 4
    v_cndmask_b32 v{VPE}, v{VPE}, v3, vcc
    v_mov_b32 v3, 32
    v_cndmask_b32 v{VTH}, v{VTH}, v3, vcc
    s_mov_b32 s{sSIG}, 0""")
    b(f"L_late{sfx}:")
    b(f"""s_or_b32 s70, s97, s{sSAFE}
    s_cmp_eq_u32 s70, 0
    s_cselect_b32 s{SIN+2}, 24576, 0
    s_cselect_b32 s{SIF+2}, 4, 0
    s_mov_b32 s{sOO}, s62
    s_mov_b32 s{sOP}, 0x7f000000
    s_mov_b32 s{sLATE}, 0
    s_mov_b32 s{SO2+2}, s100
    s_mov_b32 s{SW2+2}, s101
    s_mul_i32 s{sO2}, s{sWAVE}, {32*122880}
    s_mul_i32 s{sW2}, s{sWAVE}, {32*36864}
    s_mov_b32 s{sWOS}, 0
    s_mov_b32 s{sWTS}, s{sWB}
    s_lshl_b32 s{sKB}, s{sWAVE}, 11""")

def warm_code(b):
    if not OPT.get('warm'): return
    b(f"""s_getpc_b64 s[70:71]
    L_pc:
    s_sub_u32 s70, s70, L_pc-attn_kernel
    s_subb_u32 s71, s71, 0
    v_lshrrev_b32 v2, 3, v0
    v_and_b32 v2, 31, v2
    v_lshl_add_u32 v2, s2, 5, v2
    v_lshlrev_b32 v2, 7, v2
    v_min_u32 v2, L_codeend-attn_kernel-4, v2
    v_mov_b32 v3, s71
    v_add_co_u32 v2, vcc, s70, v2
    v_addc_co_u32 v3, vcc, 0, v3, vcc
    global_load_dword v4, v[2:3], off""")

def wave_code(b, nq, sfx):
    nx = 8 if nq == 4 else 6
    b(f"L_begin{sfx}:")
    lane = T0; t1 = T0 + 1; t2 = T0 + 2; t3 = T0 + 3; g_ = T0 + 4; ihi = T0 + 5; i8 = T0 + 6
    b(f"""v_and_b32 v{lane}, 63, v0
    v_lshrrev_b32 v{g_}, 4, v{lane}
    v_lshrrev_b32 v{ihi}, 3, v{lane}
    v_and_b32 v{i8}, 7, v{lane}""")
    b(f"s_lshl_b32 s{sT}, s{sWAVE}, 6")
    b(f"v_add_u32 v{t1}, s{sT}, v{ihi}")
    b(f"v_mul_u32_u24 v{t1}, 1152, v{t1}")
    for j in range(4):
        b(f"v_xor_b32 v{t2}, {4*(j%2)}, v{g_}")
        b(f"v_xor_b32 v{t2}, v{t2}, v{i8}")
        b(f"v_lshl_add_u32 v{t2}, v{t2}, 4, v{t1}")
        b(f"v_add_u32 v{DX+j}, {8*j*1152 - 1024*j}, v{t2}")
    b(f"""s_and_b32 s{sT}, s{sWAVE}, 1
    s_lshl_b32 s{sT}, s{sT}, 18
    s_lshr_b32 s{sT+1}, s{sWAVE}, 1
    s_lshl_b32 s{sT+1}, s{sT+1}, 7
    s_add_u32 s{sT}, s{sT}, s{sT+1}
    v_lshlrev_b32 v{t1}, 13, v{ihi}
    v_add_u32 v{t1}, s{sT}, v{t1}
    v_lshrrev_b32 v{t2}, 2, v{i8}
    v_xor_b32 v{t2}, v{t2}, v{g_}
    v_and_b32 v{t2}, 1, v{t2}
    v_lshl_add_u32 v{t1}, v{t2}, 6, v{t1}
    v_and_b32 v{t2}, 3, v{i8}
    v_lshl_add_u32 v{t1}, v{t2}, 4, v{t1}""")
    for j in range(4): b(f"v_add_u32 v{DW+j}, {8*j*8192 - 1024*j}, v{t1}")
    b(f"""s_mov_b32 s{sXO}, 0
    s_mov_b32 s{sXO2}, 36864
    s_mov_b32 s{sWOFF}, 0
    s_mov_b32 s{sKV}, 0
    s_mov_b32 s{sHEAD}, 0""")
    if OPT.get('rot'):
        b(f"s_mul_i32 s{sROT}, s97, {OPT['rot']}\ns_and_b32 s{sROT}, s{sROT}, 31\ns_lshl_b32 s{sROT}, s{sROT}, 13\ns_mov_b32 s{sKV}, s{sROT}\ns_mov_b32 s{sLIN}, 0")
    b.ext(x_dma(0, nq)); b.ext(w_dma(0, nq)); b.ext(w_dma(1, nq)); b.ext(x_dma(1, nq)); b.ext(w_dma(2, nq)); b.ext(w_dma(3, nq))
    late_setup(b, sfx)
    persist_regs(b)
    b(f"v_mov_b32 v{VONE}, 1\nv_add_u32 v{VL4}, 4096, v{VLN}")
    if nq == 3:
        b(f"v_mov_b32 v{VHS}, 0\nv_lshlrev_b32 v{VCW}, 3, v{VLN}")
        b(f"buffer_store_dword v{VHS}, v{VCW}, s[{SIN}:{SIN+3}], 0 offen sc1 ; tag=INIT")
        b(f"s_mov_b32 s{sT}, 8192\nbuffer_store_dword v{VHS}, v{VCW}, s[{SIN}:{SIN+3}], s{sT} offen sc1 ; tag=INIT")
        b(f"s_mov_b32 s{sT}, 16384\nbuffer_store_dword v{VHS}, v{VCW}, s[{SIN}:{SIN+3}], s{sT} offen sc1 ; tag=INIT")
    for t in (0, 1):
        b.ext(k_dma(t)); b.ext(v_dma(t)); b.ext(kv_adv())
    if OPT.get('tlb', 0):
        b(f"buffer_load_dword v{VPD}, off, s[{SWO}:{SWO+3}], 0 nt")
        if OPT.get('tlb', 0) > 1:
            b(f"buffer_store_dword v{VONE}, v{VO}, s[{SO}:{SO+3}], s{sOO} offen sc1")
            b(f"s_add_u32 s{sT}, s{sOO}, {7*122880}\nbuffer_store_dword v{VONE}, v{VO}, s[{SO}:{SO+3}], s{sT} offen sc1")
            b(f"buffer_store_dword v{VONE}, v{VLN}, s[{SWT}:{SWT+3}], s{sWTS} offen sc1")
    i16 = T0 + 7; r_ = T0 + 8; c4 = T0 + 9
    b(f"""v_and_b32 v{i16}, 15, v{lane}
    v_lshrrev_b32 v{r_}, 2, v{i16}
    v_and_b32 v{c4}, 3, v{lane}
    v_lshlrev_b32 v{t1}, 7, v{i16}
    v_add_u32 v{t1}, s{sXB}, v{t1}
    v_add_u32 v{t1}, 16384, v{t1}
    v_lshrrev_b32 v{t3}, 1, v{i16}""")
    for s in range(2):
        b(f"v_xor_b32 v{t2}, {4*s}, v{g_}")
        b(f"v_xor_b32 v{t2}, v{t2}, v{t3}")
        b(f"v_lshl_add_u32 v{XA+s}, v{t2}, 4, v{t1}\nv_add_u32 v{XA+2+s}, 65536, v{XA+s}")
    b(f"""v_lshl_add_u32 v{t1}, v{g_}, 3, v{r_}
    v_lshlrev_b32 v{t1}, 7, v{t1}
    v_lshl_add_u32 v{t1}, v{c4}, 4, v{t1}
    v_add_u32 v{t1}, 49152, v{t1}
    v_lshrrev_b32 v{t3}, 1, v{r_}""")
    for sp in range(2):
        b(f"v_xor_b32 v{t2}, {sp}, v{t3}")
        b(f"v_lshl_add_u32 v{WA+sp}, v{t2}, 6, v{t1}\nv_add_u32 v{WA+2+sp}, 65536, v{WA+sp}")
    stamp(b, 0)
    b("WAITV ; cover=X0,W0")
    b("s_barrier ; pub=X0,W0")
    b.ext(x_reads(0, nq))
    for T in (0, 1): b.ext(w_reads(0, T))
    b.ext(w_reads(0, 2)[:3])
    b("WAITL W0.0")
    stamp(b, 1)
    for n in range(0, 4): qproj_stage(b, n, nq)
    b(f"s_mov_b32 s{sCNT}, 0")
    b(f".p2align 3\nL_qp{sfx}:")
    b("LOOPBEGIN qp 2 4")
    for n in range(4, 8): qproj_stage(b, n, nq)
    b(f"s_add_u32 s{sCNT}, s{sCNT}, 1\ns_cmp_lt_u32 s{sCNT}, 2\ns_cbranch_scc1 L_qp{sfx}")
    b("LOOPEND qp")
    fill = []; post = []
    for sp in range(4):
        for q in range(nq):
            rs = [128 + 32 * q + 8 * sp + 2 * i_ for i_ in range(4)]
            for r in rs: fill += [f"v_mul_f32 v{r}, s{sC}, v{r}", f"v_mul_f32 v{r+1}, s{sC}, v{r+1}"]
            for r in rs: fill.append(f"v_cvt_pk_bf16_f32 v{r}, v{r}, v{r+1}")
            for i_, r in enumerate(rs): post.append(f"v_accvgpr_write_b32 a{AQ(q) + 4*sp + i_}, v{r}")
    for n in range(12, 18): qproj_stage(b, n, nq, fill if n >= 16 else None)
    stamp(b, 2)
    b('BURNON')
    b.ext(fill); b.ext(post)
    def conv1(q, pk):
        out = []
        for sp in range(4):
            rs = [128 + 32 * q + 8 * sp + 2 * i_ for i_ in range(4)]
            for r in rs: out += [f"v_accvgpr_read_b32 v{r}, a{r}", f"v_accvgpr_read_b32 v{r+1}, a{r+1}"]
            for r in rs:
                if pk and OPT.get('pk', 1): out.append(f"v_pk_mul_f32 v[{r}:{r+1}], v[{r}:{r+1}], s[{sC}:{sC+1}]")
                else: out += [f"v_mul_f32 v{r}, s{sC}, v{r}", f"v_mul_f32 v{r+1}, s{sC}, v{r+1}"]
            for r in rs: out.append(f"v_cvt_pk_bf16_f32 v{r}, v{r}, v{r+1}")
            for i_, r in enumerate(rs): out.append(f"v_accvgpr_write_b32 a{AQ2(q) + 4*sp + i_}, v{r}")
        return out
    def pre_mfma(): return [qk(q, 0, s_, czero=True) for q in range(nq) for s_ in range(4)]
    def pre_max():
        t = B()
        for q in range(nq):
            s_ = S_ + 8 * q
            t(f"v_max3_f32 v{s_}, v{s_}, v{s_+1}, v{s_+2}")
        for q in range(nq):
            s_ = S_ + 8 * q
            t(f"v_max_f32 v{s_}, v{s_}, v{s_+3}")
        xlane_reduce_multi(t, [S_ + 8 * q for q in range(nq)], [T0 + q for q in range(nq)], "v_max_f32")
        for q in range(nq):
            for r in range(4): t(f"v_sub_f32 v{CI+4*q+r}, 0, v{S_+8*q}")
        return t.L
    def weave(mf, st, per):
        for x in mf:
            b(x)
            for _ in range(per):
                if st: b(st.pop(0))
    def zipper(a_, b_, ra, rb):
        out = []
        while a_ or b_:
            for _ in range(ra):
                if a_: out.append(a_.pop(0))
            for _ in range(rb):
                if b_: out.append(b_.pop(0))
        return out
    WF = [S_ + 4, S_ + 12, S_ + 20, S_ + 28, T0 + 16]
    def wo_reads(extra):
        t = B()
        t(f"s_add_u32 s{sT+1}, s{sXB}, 65536")
        for tl in range(4): t(f"v_xor_b32 v{T0+12+tl}, {32*tl}, v{VWA}")
        for tl in range(4):
            for a in range(2): t(f"ds_read_b64_tr_b16 v[{WF[tl]+2*a}:{WF[tl]+2*a+1}], v{T0+12+tl} offset:{2048*a}")
        if extra:
            t(f"v_lshrrev_b32 v{T0+9}, 1, v{VLN}\nv_add_u32 v{T0+9}, s{sT+1}, v{T0+9}\nv_add_u32 v{T0+9}, {65536+4096}, v{T0+9}")
            t(f"ds_read_b64_tr_b16 v[{WF[4]}:{WF[4]+1}], v{T0+9} offset:0\nds_read_b64_tr_b16 v[{WF[4]+2}:{WF[4]+3}], v{T0+9} offset:512")
        return t.L
    def wo_stores(extra, flag):
        t = B(); t("s_waitcnt lgkmcnt(0)")
        for tl in range(4): t(f"buffer_store_dwordx4 {vr(WF[tl],4)}, v{VLN}, s[{SWT}:{SWT+3}], s{sWTS} offen offset:{1024*tl}{flag} ; tag=WT")
        if extra:
            t(f"s_lshl_b32 s{sT+1}, s{sWAVE}, 10\ns_add_u32 s{sT+1}, s{sT+1}, 32768")
            t(f"buffer_store_dwordx4 {vr(WF[4],4)}, v{VLN}, s[{SWT}:{SWT+3}], s{sT+1} offen{flag} ; tag=WT")
        return t.L
    b.ext(conv1(0, True))
    b.ext(k_reads(0, 0))
    b.ext(conv1(1, True))
    c2 = conv1(2, False)
    b.ext([x for x in c2 if 'accvgpr_read' in x])
    b("s_waitcnt lgkmcnt(0)")
    st = [x for x in c2 if 'accvgpr' not in x]
    weave(pre_mfma(), st, 3 if nq == 4 else 4)
    rest = st + [x for x in c2 if 'accvgpr_write' in x] + (conv1(3, True) if nq == 4 else [])
    b.ext(rest[:10])
    b("WAITV ; cover=WO,HS")
    b.ext(wo_reads(True))
    b.ext(zipper(rest[10:], pre_max(), 2, 1))
    b.ext(wo_stores(True, " sc1"))
    b(f"s_add_u32 s{sWOS}, s{sWOS}, 512\ns_add_u32 s{sWTS}, s{sWTS}, 16384")
    if nq == 3:
        b(f"v_readfirstlane_b32 s{sT}, v{VHS}\ns_cmp_eq_u32 s{sT}, 0\ns_cbranch_scc1 L_hspin\nL_hsok:")
    stamp(b, 3)
    b('BURNOFF')
    for i_ in range(OPT.get('pause', 0)): b('s_sleep 32')
    b(f".p2align 3\nL_head{sfx}:")
    b("LOOPBEGIN head 2 32")
    b(f"s_cmp_lg_u32 s{sSAFE}, 0\ns_cbranch_scc1 L_maxpass{sfx}")
    b(f"L_maxdone{sfx}:")
    for q in range(nq): b(f"v_mov_b32 v{LS+q}, 0")
    ex = []; g = 29
    for x in wo_dma(False):
        if x.startswith("buffer_"): ex.append((g, x)); g += 4
        else: ex.append((g - 1, x.replace("PRE ", "")))
    stamp(b)
    dst = [(q, sp) for q in range(nq) for sp in range(4)]
    for k in range(8):
        e2 = list(ex) if k == 0 else []
        for g in (5, 13):
            if dst:
                q, sp = dst.pop(0)
                e2 += [(g - 1, f"s_add_u32 s{sT+1}, s{sOP}, {sp*122880}"),
                       (g, f"buffer_store_dwordx4 {ar(AST+16*q+4*sp,4)}, v{VO}, s[{SO}:{SO+3}], s{sT+1} offen offset:{1024*q} sc1 ; tag=WT")]
        attn_stage(b, k, nq, e2)
    b(f"s_mov_b32 s{sCNT}, 0")
    b(f".p2align 3\nL_at{sfx}:")
    b("LOOPBEGIN at 3 8")
    for k in range(8, 16):
        ex = []
        if k == 11 and nq == 3:
            ex = [(57, f"""s_xor_b32 s{sT+1}, s{sHEAD}, 1
            s_or_b32 s{sT}, s{sCNT}, s{sT+1}
            s_cbranch_scc0 L_sig
            L_nosig:""")]
        if k == 13: ex = [(58, f"buffer_load_dword v{VCW}, v{VPE}, s[{SCN}:{SCN+3}], 0 offen sc1 ; tag=CW")]
        if k == 15: ex = [(60, f"s_add_u32 s{sCNT}, s{sCNT}, 1"), (62, f"s_cmp_lt_u32 s{sCNT}, 3")]
        attn_stage(b, k, nq, ex)
    b(f"s_cbranch_scc1 L_at{sfx}")
    b("LOOPEND at")
    b(f"L_atx{sfx}:")
    b(f"s_cmp_lg_u32 s{sHEAD}, 0\ns_cbranch_scc1 L_fin{sfx}")
    b("LOOPEXIT head")

    def lsum(qs):
        t = B()
        xlane_reduce_multi(t, [LS + q for q in qs], [T0 + 4 + q for q in qs], "v_add_f32")
        for q in qs:
            t(f"v_cmp_nlt_f32 vcc, v{LS+q}, v{T0+8}")
            t(f"v_rcp_f32 v{LS+q}, v{LS+q}")
            t(f"s_or_b32 s{sFLAG}, s{sFLAG}, vcc_lo\ns_or_b32 s{sFLAG}, s{sFLAG}, vcc_hi")
        return t.L
    cnt = [0]
    def onorm(q, pk, flag):
        out = []
        for sp in range(4):
            d = P_ + 4 * (cnt[0] % 2); cnt[0] += 1
            rs = [O_ + 32 * q + 8 * sp + 2 * i_ for i_ in range(4)]
            for r in rs:
                if pk and OPT.get('pk', 1): out.append(f"v_pk_mul_f32 v[{r}:{r+1}], v[{r}:{r+1}], v[{LS+q-(q%2)}:{LS+q-(q%2)+1}] op_sel:[0,{q%2}] op_sel_hi:[1,{q%2}]")
                else: out += [f"v_mul_f32 v{r}, v{r}, v{LS+q}", f"v_mul_f32 v{r+1}, v{r+1}, v{LS+q}"]
            for i_, r in enumerate(rs): out.append(f"v_cvt_pk_bf16_f32 v{d+i_}, v{r}, v{r+1}")
            if flag is None:
                for i_ in range(4): out.append(f"v_accvgpr_write_b32 a{AST+16*q+4*sp+i_}, v{d+i_}")
                continue
            out.append(f"s_add_u32 s{sT}, s{sOO}, {sp*122880}")
            out.append(f"buffer_store_dwordx4 {vr(d,4)}, v{VO}, s[{SO}:{SO+3}], s{sT} offen offset:{1024*q}{flag}")
        return out
    def drain(st, ld=None):
        slots = []; gaps = [[] for _ in range(64)]
        for q in (2, 3):
            for T in range(8): slots.append(pv(q, T) if q < nq else None)
        rem = sorted(sm_items(nq, 64, 128), key=lambda t: t[0])
        b.ext([sm_text(*k_) for g, k_ in rem if k_[1] == 2 and k_[0] != 'add'])
        crit = [k_ for g, k_ in rem if k_[1] == 3 and k_[0] != 'add']
        crit.sort(key=lambda k_: (k_[2], k_[0] == 'cvt'))
        g = 0
        for k_ in crit:
            if k_[0] == 'exp' and gaps[g]: g += 1
            gaps[min(g, 6)].append(sm_text(*k_))
            if k_[0] == 'exp': g += 1
        late = [sm_text(*k_) for g_, k_ in rem if k_[0] == 'add']
        st[:0] = []
        for i_, x in enumerate(late): gaps[min(7 + i_ // 2, 15) if nq == 4 else 0].append(x)
        for g in range(16):
            if slots[g] is None: continue
            room = 2 - sum(2 if 'exp' in x else 1 for x in gaps[g])
            while room > 0 and st: gaps[g].append(st.pop(0)); room -= 1
        for i_, s_ in enumerate(slots):
            if s_: b(s_)
            if s_ and ld:
                b(ld.pop(0))
                while ld and ld[0].startswith("s_"): b(ld.pop(0))
            b.ext(gaps[i_])
    hi = list(range(2, nq))
    movs = [f"v_accvgpr_mov_b32 a{AQ(q)+i_}, a{AQ2(q)+i_}" for q in range(nq) for i_ in range(16)]
    b(f"v_mov_b32 v{T0+8}, {LTHR}")
    b("WAITV ; cover=WO")
    f0 = None
    st = lsum([0, 1]) + onorm(0, False, f0)
    drain(st)
    stamp(b, 4)
    b('BURNON')
    b.ext(wo_reads(False))
    b.ext(zipper(st, lsum(hi), 2, 1))
    b.ext(movs)
    st = onorm(1, False, f0)
    weave(pre_mfma(), st, 3 if nq == 4 else 4)
    b.ext(st)
    rest = []
    for q in hi: rest += onorm(q, True, f0)
    b.ext(zipper(rest, pre_max(), 2, 1))
    b('BURNOFF')
    b.ext(vote_write())
    b.ext(wo_stores(False, ' sc1'))
    b(f"""s_mov_b32 s{sOP}, s{sOO}
    s_add_u32 s{sOO}, s{sOO}, {4*122880}
    s_mov_b32 s{sWOS}, 0x100000
    s_mov_b32 s{sHEAD}, 1""")
    stamp(b)
    b(f"s_branch L_head{sfx}")
    b("LOOPEND head")
    b(f"L_fin{sfx}:")
    f1 = K2F[OPT.get('of', 0)]
    b(f"v_mov_b32 v{T0+8}, {LTHR}")
    b("WAITV ; cover=CW")
    b(f"v_cmp_gt_u32 vcc, v{VTH}, v{VCW}\ns_cbranch_vccnz L_espin{sfx}\nL_eok{sfx}:")
    p2 = []
    for s_ in range(4): p2 += p2_w(s_) + p2_o(s_) + p2_adv(s_)
    st = lsum([0, 1]) + onorm(0, False, f1)
    drain(st, p2)
    stamp(b, 4)
    body = st + zipper(onorm(1, True, f1), lsum(hi), 2, 1)
    for q in hi: body += onorm(q, True, f1)
    body = [x + " ; tag=OS" if x.startswith("buffer_store") else x for x in body]
    nld = sum(1 for x in p2 if x.startswith("buffer_"))
    per = max(1, len(body) // (nld + 2))
    seq = []
    while body or p2:
        if p2:
            seq.append(p2.pop(0))
            while p2 and p2[0].startswith("s_"): seq.append(p2.pop(0))
        for _ in range(per):
            if body: seq.append(body.pop(0))
    outst = 8 + 48 - nld
    for x in seq:
        if x.startswith("buffer_"):
            if outst >= 62: b("s_waitcnt vmcnt(52)"); outst = 52
            outst += 1
        b(x)
    b.ext(vote_write())
    stamp(b)
    b(f"L_p2s{sfx}:")
    for s_ in range(4): p2_step(b, s_, s_ == 0, True, f"WAITV ; cover=P{s_} cap=51")
    b("WAITV lgkmcnt(0) ; cover=OS")
    b("s_branch L_vote")
    b(f"""L_espin{sfx}:
    s_mov_b32 s{sLATE}, 1
    s_mov_b32 s{SO2+2}, 0
    s_mov_b32 s{SW2+2}, 0
    s_branch L_eok{sfx}""")
    if nq == 3:
        b(f"""L_sig:
        v_mov_b32 v4, {131072+7168}
        ds_read_b128 v[4:7], v4
        s_waitcnt lgkmcnt(0)
        v_or_b32 v4, v4, v5
        v_or3_b32 v4, v4, v6, v7
        v_readfirstlane_b32 s{sT}, v4
        s_mov_b64 exec, 1
        s_cmp_lg_u32 s{sSAFE}, 0
        s_cselect_b32 s{sT}, 0, s{sT}
        s_cbranch_scc1 L_sig1
        buffer_atomic_add v{VONE}, off, s[{SCN}:{SCN+3}], s{sCW} sc1
        L_sig1:
        s_or_b32 s{sT}, s{sT}, s{sSIG}
        s_cbranch_scc1 L_sig2
        s_add_u32 s{sT}, s{sCO}, 16384
        s_mov_b32 s{sSIG}, 1
        buffer_atomic_add v{VONE}, off, s[{SCN}:{SCN+3}], s{sT} sc1
        L_sig2:
        s_mov_b64 exec, -1
        s_branch L_nosig""")
        b(f"""L_hspin:
        s_mov_b32 s{sCNT}, 0
        L_hsp:
        s_sleep 8
        buffer_load_dword v{VHS}, off, s[{SDB}:{SDB+3}], 0 sc1
        s_waitcnt vmcnt(0)
        v_readfirstlane_b32 s{sT}, v{VHS}
        s_add_u32 s{sCNT}, s{sCNT}, 1
        s_lshr_b32 s{sT+1}, s{sCNT}, 17
        s_or_b32 s{sT}, s{sT}, s{sT+1}
        s_cmp_eq_u32 s{sT}, 0
        s_cbranch_scc1 L_hsp
        s_branch L_hsok""")
    b(f"L_maxpass{sfx}:")
    for q in range(nq): b(f"v_mov_b32 v{T0+8+q}, 0xff800000")
    for s2 in range(4): b(f"v_add_u32 v{T0+12+s2}, 131072, v{KA+s2}")
    b(f"s_lshl_b32 s{sT}, s{sHEAD}, 18\ns_mov_b32 s{sCNT}, 0")
    b(f"L_mp{sfx}:")
    b(f"s_barrier\ns_add_u32 m0, s{sKB}, 131072")
    b(dma(DK0, SK, f"s{sT}", 0, "", "MP")); b(dma(DK1, SK, f"s{sT}", 1024, "", "MP"))
    b("s_waitcnt vmcnt(0)\ns_barrier")
    for kt in range(2):
        for s in range(4):
            b(f"ds_read_b128 {ar(ASP+4*(4*kt+s),4)}, v{T0+12+s} offset:{kt*4096}")
    b("s_waitcnt lgkmcnt(0)")
    for q in range(nq):
        for kt in range(2):
            for s in range(4):
                d = vr(S_ + 8 * q + 4 * kt, 4)
                b(f"{MF} {d}, {ar(ASP+4*(4*kt+s),4)}, {ar(AQ(q)+4*s,4)}, {d if s else '0'}")
    for q in range(nq):
        for e in range(0, 8, 2): b(f"v_max3_f32 v{T0+8+q}, v{T0+8+q}, v{S_+8*q+e}, v{S_+8*q+e+1}")
    b(f"s_add_u32 s{sT}, s{sT}, 8192\ns_add_u32 s{sCNT}, s{sCNT}, 1\ns_cmp_lt_u32 s{sCNT}, 32\ns_cbranch_scc1 L_mp{sfx}")
    b("s_barrier")
    xlane_reduce_multi(b, [T0 + 8 + q for q in range(nq)], [T0 + q for q in range(nq)], "v_max_f32")
    for q in range(nq):
        for r in range(4): b(f"v_sub_f32 v{CI+4*q+r}, 0, v{T0+8+q}")
    b(f"s_branch L_maxdone{sfx}")

FA = [0, 48, 96 - 16 + 16, 192]
def p2_reg(slot, i):
    if slot == 2: return 96 + 4 * i if i < 8 else 240 + 4 * (i - 8)
    return FA[slot] + 4 * i
def p2_w(slot): return [f"buffer_load_dwordx4 {ar(p2_reg(slot, i),4)}, v{VLN if i < 4 else VL4}, s[{SW2}:{SW2+3}], s{sW2} offen offset:{1024*(i%4)} sc1 ; tag=P{slot}" for i in range(6)]
def p2_o(slot): return [f"buffer_load_dwordx4 {ar(p2_reg(slot, 6+i),4)}, v{VLN if i < 4 else VL4}, s[{SO2}:{SO2+3}], s{sO2} offen offset:{1024*(i%4)} sc1 ; tag=P{slot}" for i in range(6)]
def p2_adv(slot):
    m = 5 if slot == 3 else 1
    return [f"s_add_u32 s{sO2}, s{sO2}, {m*122880}", f"s_add_u32 s{sW2}, s{sW2}, {m*36864}"]

def vote_write():
    return [f"v_mov_b32 v4, s{sFLAG}", f"s_lshl_b32 s{sT}, s{sWAVE}, 2", f"s_add_u32 s{sT}, s{sT}, {131072+7168}",
            f"v_mov_b32 v5, s{sT}", "ds_write_b32 v5, v4"]

P2ACC = 112
def p2_acc(q, n): return P2ACC + 4 * (6 * q + n)
def p2_step(b, slot, first, prefetch, wait, order=None, extra=None):
    b(wait)
    order = order or [(q, n) for q in range(6) for n in range(6)]
    slots = []; gaps = [[] for _ in range(36)]
    for q, n in order:
        a_ = vr(p2_acc(q, n), 4)
        slots.append(f"{MF} {a_}, {ar(p2_reg(slot, n),4)}, {ar(p2_reg(slot, 6+q),4)}, {'0' if first else a_}")
    if prefetch:
        o_, w_ = p2_o(slot), p2_w(slot)
        for q in range(6): gaps[6 * q + 5].append(o_[q])
        for n in range(6): gaps[30 + n].append(w_[n])
        gaps[35] += p2_adv(slot)
    for g, x in (extra or []): gaps[g].append(x)
    emit_slots(b, slots, gaps)

def phase2(b):
    D = 4
    acc = p2_acc
    def step(slot, first, prefetch, N, order=None, extra=None): p2_step(b, slot, first, prefetch, f"s_waitcnt vmcnt({N})", order, extra)
    b(f"""L_vote:
    s_cmp_eq_u32 s{sLATE}, 2
    s_cbranch_scc1 L_go
    v_mov_b32 v5, {131072+7168}
    s_barrier
    ds_read_b128 v[16:19], v5
    s_waitcnt lgkmcnt(0)
    v_or_b32 v16, v16, v17
    v_or3_b32 v16, v16, v18, v19
    v_readfirstlane_b32 s{sT}, v16
    s_cmp_lg_u32 s{sSAFE}, 0
    s_cselect_b32 s{sT}, 0, s{sT}
    s_cmp_lg_u32 s{sT}, 0
    s_cbranch_scc1 L_redo
    s_cmp_eq_u32 s{sWAVE}, 3
    s_cbranch_scc0 L_nosig2
    s_mov_b64 exec, 1
    buffer_atomic_add v{VONE}, off, s[{SCN}:{SCN+3}], s{sCO} sc1
    s_mov_b64 exec, -1
    L_nosig2:""")
    stamp(b)
    b(f"""s_cmp_ge_u32 s97, 240
    s_cbranch_scc1 L_fini
    s_cmp_eq_u32 s{sLATE}, 1
    s_cbranch_scc1 L_lateld
    L_go:
    s_mov_b32 s36, 0
    .p2align 3
    L_k2:""")
    for s_ in range(D):
        step(s_, False, True, 36, extra=[(0, f"buffer_load_dword v6, v{VP2}, s[{SCN}:{SCN+3}], 0 offen sc1")] if s_ == 0 else None)
    b("""s_add_u32 s36, s36, 1
    s_cmp_eq_u32 s36, 2
    s_cbranch_scc1 L_chk
    L_chkd:
    s_cmp_lt_u32 s36, 6
    s_cbranch_scc1 L_k2""")
    for s_ in range(D - 1): step(s_, False, False, 12 * (D - 1 - s_))
    stamp(b)
    b(f"""v_add_u32 v5, 0x10000, v{VLN}
    v_and_b32 v6, 15, v0
    v_mul_u32_u24 v6, 2304, v6
    v_bfe_u32 v7, v0, 4, 2
    v_lshl_add_u32 v6, v7, 3, v6
    v_add_u32 v7, {16*2304}, v6
    v_add_u32 v8, {32*2304}, v6
    s_mov_b32 s88, s{sOUT}
    s_mov_b32 s89, s{sOUT+1}
    s_mov_b32 s90, {8*240*1152*2}
    s_mov_b32 s91, 0x20000""")
    for w in range(1, 4):
        b(f"s_cmp_eq_u32 s{sWAVE}, {w}\ns_cbranch_scc1 L_red{w}")
    for w in range(4):
        b(f"L_red{w}:")
        own = lambda q, n: (q // 3) * 2 + (n // 3)
        oth = [(q, n) for q in range(6) for n in range(6) if own(q, n) != w]
        mine = [(q, n) for q in range(6) for n in range(6) if own(q, n) == w]
        wr = []
        for i_, (q, n) in enumerate(oth):
            src = (w - own(q, n) - 1) % 4
            base, off = divmod(own(q, n) * 27648 + src * 9216 + ((q % 3) * 3 + n % 3) * 1024, 65536)
            wr.append((min(i_ + 5, 35), f"ds_write_b128 v{VLN if base == 0 else 5}, {vr(acc(q, n),4)} offset:{off}"))
        step(D - 1, False, False, 0, order=oth + mine, extra=wr)
        b("s_waitcnt lgkmcnt(0)\ns_barrier")
        for t in range(9):
            for src in range(3):
                base, off = divmod(w * 27648 + src * 9216 + t * 1024, 65536)
                b(f"ds_read_b128 {vr(acc(*oth[3*t+src]),4)}, v{VLN if base == 0 else 5} offset:{off}")
        for t, (q, n) in enumerate(mine):
            r0, r1, r2, m = acc(*oth[3*t]), acc(*oth[3*t+1]), acc(*oth[3*t+2]), acc(q, n)
            b(f"s_waitcnt lgkmcnt({min(15, 3 * (8 - t))})")
            for r in range(4): b(f"v_add_f32 v{r0+r}, v{r0+r}, v{r1+r}")
            for r in range(4): b(f"v_add_f32 v{m+r}, v{m+r}, v{r2+r}")
            for r in range(4): b(f"v_add_f32 v{m+r}, v{m+r}, v{r0+r}")
            b(f"v_cvt_pk_bf16_f32 v{16+2*t}, v{m}, v{m+1}\nv_cvt_pk_bf16_f32 v{17+2*t}, v{m+2}, v{m+3}")
            b(f"buffer_store_dwordx2 v[{16+2*t}:{17+2*t}], v{6 + (q%3)}, s[88:91], s{sOUTO} offen offset:{32*n}")
        if w < 3: b("s_branch L_fini")
    b("L_fini:")
    stamp_dump(b, 0, sWAVE)
    b("s_endpgm")
    b(f"""L_chk:
    s_waitcnt vmcnt(48)
    s_sub_u32 s{sO2}, s{sO2}, {28*122880}
    s_sub_u32 s{sW2}, s{sW2}, {28*36864}
    v_cmp_gt_u32 vcc, 4, v6
    s_cbranch_vccz L_chkd
    s_mov_b32 s37, 0
    L_poll:
    s_sleep 4
    buffer_load_dword v6, v{VP2}, s[{SCN}:{SCN+3}], 0 offen sc1
    s_add_u32 s37, s37, 1
    s_waitcnt vmcnt(0)
    v_cmp_gt_u32 vcc, 4, v6
    s_cbranch_vccz L_chkd
    s_cmp_lt_u32 s37, 0x20000
    s_cbranch_scc1 L_poll
    s_branch L_chkd
    L_lateld:
    s_mov_b32 s{SO2+2}, s100
    s_mov_b32 s{SW2+2}, s101
    s_mul_i32 s{sO2}, s{sWAVE}, {32*122880}
    s_mul_i32 s{sW2}, s{sWAVE}, {32*36864}
    s_mov_b32 s{sLATE}, 2
    s_mov_b32 s37, 0
    L_esp:
    s_sleep 4
    buffer_load_dword v{VCW}, v{VPE}, s[{SCN}:{SCN+3}], 0 offen sc1
    s_add_u32 s37, s37, 1
    s_waitcnt vmcnt(0)
    v_cmp_gt_u32 vcc, v{VTH}, v{VCW}
    s_cbranch_vccz L_espd
    s_cmp_lt_u32 s37, 0x20000
    s_cbranch_scc1 L_esp
    L_espd:""")
    for s_ in range(4): b.ext(p2_w(s_) + p2_o(s_) + p2_adv(s_))
    b(f"""s_waitcnt vmcnt(0)
    s_cmp_eq_u32 s{sWAVE}, 3
    s_cbranch_scc1 L_p2s3
    s_branch L_p2s4
    L_redo:
    s_mov_b32 s{sSAFE}, 1
    s_waitcnt vmcnt(0)
    s_barrier
    s_branch L_restart""")

def kernel1():
    b = B()
    b("attn_kernel:")
    b("s_cmp_ge_u32 s2, 256\ns_cbranch_scc1 L_end1")
    if OPT['stamps']: b("s_mov_b32 s96, 0\nv_mov_b32 v14, 0\nv_mov_b32 v15, 0")
    stamp(b)
    b("s_load_dwordx16 s[48:63], s[0:1], 0\ns_load_dwordx4 s[64:67], s[0:1], 64\ns_load_dwordx2 s[100:101], s[0:1], 96\ns_load_dwordx4 s[76:79], s[0:1], 80")
    b(f"""s_mov_b32 s97, s2
    s_and_b32 s3, s2, 7
    s_lshr_b32 s2, s2, 3""")
    warm_code(b)
    b(f"""v_lshrrev_b32 v1, 6, v0
    s_and_b32 s68, s3, 1
    s_lshl_b32 s68, s68, 2
    s_and_b32 s69, s2, 3
    s_add_u32 s68, s68, s69        ; b
    v_readfirstlane_b32 s{sWAVE}, v1
    s_bfe_u32 s69, s3, 0x10001
    s_lshl_b32 s69, s69, 3
    s_lshr_b32 s70, s2, 2
    s_add_u32 s69, s69, s70        ; hp
    s_lshr_b32 s3, s3, 2           ; blk
    s_lshl_b32 s{sWB}, s{sWAVE}, 12
    s_lshl_b32 s{sXB}, s{sWAVE}, 13
    s_mov_b32 s{sC}, {CSCALE}
    s_mov_b32 s{sC+1}, {CSCALE}
    s_mov_b32 s{sSAFE}, 0
    s_mov_b32 s{sFLAG}, 0
    s_cmp_eq_u32 s3, 0
    s_waitcnt lgkmcnt(0)
    s_cselect_b64 s[48:49], s[48:49], s[58:59]
    s_cselect_b64 s[50:51], s[50:51], s[60:61]
    s_cselect_b64 s[52:53], s[52:53], s[62:63]
    s_cselect_b64 s[54:55], s[54:55], s[64:65]
    s_cselect_b64 s[56:57], s[56:57], s[66:67]""")
    b(f"""s_mul_i32 s71, s68, 276480
    s_add_u32 s{SX}, s48, s71
    s_addc_u32 s{SX+1}, s49, 0
    s_mov_b32 s{SX+2}, 276480
    s_mov_b32 s{SX+3}, 0x20000
    s_lshl_b32 s71, s69, 9
    s_add_u32 s{SW}, s54, s71
    s_addc_u32 s{SW+1}, s55, 0
    s_sub_u32 s{SW+2}, 4718592, s71
    s_mov_b32 s{SW+3}, 0x20000""")
    b("L_restart:")
    b(f"""s_cmp_eq_u32 s{sWAVE}, 3
    s_cbranch_scc1 L_begin3""")
    wave_code(b, 4, "4")
    b(".p2align 6")
    wave_code(b, 3, "3")
    b("L_phase2:")
    phase2(b)
    b("L_end1:\ns_endpgm\nL_codeend:")
    return b.L

def resolve_waits(L):
    out = []
    for i, x in enumerate(L):
        if x.startswith("WAITL"):
            tag = x.split()[1]
            n, T = tag[1:].split('.'); T = int(T)
            dst = set(range(AW + 8 * (T % 4), AW + 8 * (T % 4) + 8))
            cnt = 0; found = False
            for y in reversed(out):
                if y.startswith(("s_waitcnt", "WAITV")) and "lgkmcnt(0)" in y:
                    found = True; cnt = None; break
                if y.startswith("ds_"):
                    I = Ins(y)
                    if any(k == 'a' and r in dst for k, r in I.wr) or (T == 0 and 'need=X' in y):
                        found = True; break
                    cnt += 1
            assert found, x
            if cnt is not None:
                assert cnt <= 15
                out.append(f"s_waitcnt lgkmcnt({cnt})")
        else: out.append(x)
    return out

def expand_trace(L):
    def shift(line, name, it, step):
        if it == 0: return line
        def rep(m):
            k, n = m.group(1), int(m.group(2))
            if name == 'qp':
                if k == 'W': return f"W{n + step*it}"
                if k == 'X': return f"X{n + step*it//2}"
                return m.group(0)
            if k == 'KV': return f"KV{n + step*it}"
            return m.group(0)
        if ';' not in line: return line
        a, c = line.split(';', 1)
        return a + ';' + re.sub(r'\b(KV|W|X)(\d+)\b', rep, c)
    def go(i, stop):
        res = []
        while i < len(L):
            x = L[i]
            if x.startswith("LOOPBEGIN"):
                _, name, cnt, step = x.split(); cnt = int(cnt); step = int(step)
                body, j = go(i + 1, name)
                for it in range(cnt):
                    for y in body:
                        if y == f"LOOPEXIT {name}":
                            if it == cnt - 1: break
                            continue
                        res.append(shift(y, name, it, step))
                i = j + 1; continue
            if x.startswith("LOOPEND") and x.split()[1] == stop: return res, i
            res.append(x); i += 1
        return res, i
    return go(0, None)[0]

def resolve_vm(L):
    idx = [f"{x} ;#{i}" if x.startswith("WAITV") else x for i, x in enumerate(L)]
    tr = expand_trace(idx)
    q = []; best = {}
    for x in tr:
        if x.startswith(("L_maxpass", "L_hspin", "L_espin")): break
        c = x.split(';', 1)[1] if ';' in x else ''
        if x.startswith(("buffer_", "global_")):
            if 'cond' in c: continue
            m = re.search(r'tag=(\w+)', c); q.append(m.group(1) if m else 'other')
        elif x.startswith("WAITV"):
            tags = set(re.search(r'cover=([\w,]*)', c).group(1).split(','))
            i = int(x.rsplit('#', 1)[1])
            n = 0
            for t in reversed(q):
                if t in tags: break
                n += 1
            else: n = 63
            m = re.search(r'cap=(\d+)', c)
            best[i] = min(best.get(i, 63), n, int(m.group(1)) if m else 63)
    out = []
    for i, x in enumerate(L):
        if x.startswith("WAITV"):
            a, c = x.split(';', 1)
            out.append(f"s_waitcnt vmcnt({best[i]}) {a[5:].strip()} ;{c}")
        else: out.append(x)
    return out

def check_protocol(L, label):
    tr = expand_trace(L)
    q = []; done = set(); issued = {}; pub = set(); errs = 0
    for x in tr:
        if x.startswith(("L_maxpass", "L_hspin", "L_espin")): break
        c = x.split(';', 1)[1] if ';' in x else ''
        if x.startswith("buffer_") or x.startswith("global_"):
            if 'cond' in c: continue
            m = re.search(r'tag=(\w+)', c); q.append(m.group(1) if m else 'other')
        elif x.startswith("s_waitcnt"):
            m = re.search(r'vmcnt\((\d+)\)', x)
            if m:
                n = int(m.group(1))
                while len(q) > n: done.add(q.pop(0))
            m = re.search(r'needtag=(\w+)', c)
            if m and m.group(1) in q: print(label, "ERR needtag", x); errs += 1
        elif x.startswith("s_barrier"):
            m = re.search(r'pub=([\w,]*)', c)
            if m:
                for t in m.group(1).split(','):
                    if not t: continue
                    if t in q or (t not in done and not (label == 'w3' and t[0] in 'XW')): print(label, "ERR publish not landed", t, x); errs += 1
                    pub.add(t)
        elif x.startswith("ds_read"):
            m = re.search(r'need=(\w+)', c)
            if m and m.group(1) not in pub and m.group(1) not in ('KV64',): print(label, "ERR read unpublished", x); errs += 1
        assert len(q) <= 63, ("vmcnt overflow", x)
    return errs

def burn(L):
    out = []; on = False; c = 0; k = 0
    for x in L:
        if x == 'BURNON': on = True; c = 0; continue
        if x == 'BURNOFF': on = False; continue
        out.append(x)
        if on and OPT.get('burn'):
            if x.startswith('v_mfma'): c = 0
            elif x.startswith('v_'):
                c += 1
                if c >= OPT['burn']:
                    c = 0; k += 1
                    out.append(f"{MF} v[4:7], a[{32+4*(k%8)}:{35+4*(k%8)}], a[{96+4*(k%7)}:{99+4*(k%7)}], v[4:7]")
    return out

def finish(L):
    L = burn(L)
    L = resolve_waits(L)
    return L

def strip_markers(L):
    return [x for x in L if not x.startswith(("LOOPBEGIN", "LOOPEND", "LOOPEXIT"))]

DESC = """.section .rodata,"a"
.p2align 6
.amdhsa_kernel {name}
  .amdhsa_next_free_vgpr {vgpr}
  .amdhsa_next_free_sgpr 102
  .amdhsa_accum_offset 256
  .amdhsa_group_segment_fixed_size 0
  .amdhsa_kernarg_size 104
  .amdhsa_user_sgpr_count 2
  .amdhsa_user_sgpr_kernarg_segment_ptr 1
  .amdhsa_system_sgpr_workgroup_id_x 1
  .amdhsa_float_denorm_mode_32 3
.end_amdhsa_kernel
"""

def build(**kw):
    OPT.update(kw)
    k1 = finish(kernel1())
    i4 = k1.index("L_begin4:"); i3 = k1.index("L_begin3:"); iv = k1.index("L_phase2:")
    k1 = k1[:i4] + resolve_vm(k1[i4:i3]) + resolve_vm(k1[i3:iv]) + k1[iv:]
    e = check_protocol(k1[i4:i3], "w4") + check_protocol(k1[i3:], "w3")
    assert e == 0
    k1 = strip_markers(k1)
    k1, n1, p1 = fix_hazards(k1)
    for p in p1: print("BRANCH HAZARD", p)
    assert not p1
    hdr = open("cdna_kernels/%s.s.ref" % NAME).read().split("; Override")[0]
    KN = NAME + "_kernel"
    k1 = [x.replace("attn_kernel", KN) for x in k1]
    out = hdr
    out += "; generated by my own schedule generator: q-projection + attention (2 heads per workgroup), hand-off, output projection\n"
    out += ("; @launch kernel=%s grid=(256,1,1) block=(256,1,1) lds=163840\n" % KN) if OPT.get('list') else "; @launch grid=(256,1,1) block=(256,1,1) lds=163840\n"
    out += '.amdgcn_target "amdgcn-amd-amdhsa--gfx950"\n.text\n'
    out += ".globl %s\n.p2align 8\n.type %s,@function\n" % (KN, KN) + "\n".join(k1) + "\n"
    out += DESC.format(name=KN, vgpr=512)
    return out, n1

if __name__ == "__main__":
    kw = {}
    for a in sys.argv[2:]:
        k, v = a.split('='); kw[k] = int(v)
    s, info = build(**kw)
    open(sys.argv[1], "w").write(s)
    print("nops inserted", info, "bytes", len(s))
```

```python
def schedule(lds_gaps, dma_gaps, verbose=False):
    N = 68
    cap = [2] * N
    for g in list(lds_gaps) + list(dma_gaps): cap[g] -= 1
    rdy = {(0, 0): 3, (0, 1): 7, (1, 0): 11, (1, 1): 15, (2, 0): 37, (2, 1): 41, (3, 0): 45, (3, 1): 49}
    pneed = {0: 50, 1: 59, 2: 84, 3: 93}
    pfree = {0: -9, 1: 0, 2: 25, 3: 34}
    sover = {(0, 0): 68, (0, 1): 72, (1, 0): 76, (1, 1): 80, (2, 0): 102, (2, 1): 106, (3, 0): 110, (3, 1): 114}
    order = [(q, e) for q in range(4) for e in range(8)]
    whole = [g for g in range(N) if cap[g] == 2]
    un = sorted(whole + [g + N for g in whole])
    used = cap[:]; res = {}; last = -1
    for (q, e) in order:
        lo = max(rdy[(q, e // 4)] + 6, last + 1)
        g = next(x for x in un if x >= lo and used[x % N] == 2)
        used[g % N] = 0; res[('exp', q, e)] = g; last = g
    over = 0
    for (q, e) in order:
        if e % 2 == 0: continue
        lo = max(res[('exp', q, e)] + 1, pfree[q]); hi = min(pneed[q] - 2, sover[(q, e // 4)] - 1)
        assert lo <= hi, (q, e, lo, hi)
        c = [g for g in range(lo, hi + 1) if used[g % N] > 0]
        if c: g = c[0]
        else: g = lo; over += 1
        used[g % N] -= 1; res[('cvt', q, e)] = g
    if verbose:
        print("overflow", over)
        for g in range(N): print(g, 'L' if g in lds_gaps else 'D' if g in dma_gaps else ' ', [k for k, v in res.items() if v % N == g])
    return res
if __name__ == "__main__":
    schedule(list(range(26, 42)) + list(range(50, 58)), [3, 11, 17, 23], True)
```

```python
import sys, re
from asmlib import fix_hazards, Ins

NAME = "concat_heads__mha_block_cached__mha_block_cached__near_ridge"
MF = "v_mfma_f32_16x16x32_bf16"
CSCALE = 0x3e0293ee
LTHR = 0x4e800000

O_BLK = 128 * 122880
WOT_OFF = 2 * O_BLK
WOT_BLK = 128 * 36864
CNT_OFF = WOT_OFF + 2 * WOT_BLK

class B:
    def __init__(self): self.L = []
    def __call__(self, s):
        for x in s.split("\n"):
            x = x.strip()
            if x: self.L.append(x)
    def ext(self, l): self.L.extend(l)

def vr(b, n): return f"v[{b}:{b+n-1}]"
def ar(b, n): return f"a[{b}:{b+n-1}]"

def emit_slots(b, slots, gaps):
    for i, s in enumerate(slots):
        if s: b(s)
        nv = [x for x in gaps[i] if not x.startswith('v_')]
        v = [x for x in gaps[i] if x.startswith('v_')]
        for x in nv + v: b(x)

S_ = 16; P_ = 48; CI = 64; LS = 80
KA = 84
VA = 88
VWA = 105
DK0 = 96; DK1 = 97; DV0 = 98; DV1 = 99
VO = 100
VWO = 101
VWX = 102
VLN = 103
VPF = 104
VPD = 105
T0 = 108
O_ = 128
XA = 16; WA = 28; DX = 20; DW = 24
WSLOT = [49152, 114688, 131072, 147456]; sKB = 69
def AQ(q): return 32 + 64 * (q // 2) + 16 * (q % 2)
def AQ2(q): return 128 + 16 * q
AK = 0; AV = 64; ASP = 64
AX = 0; AW = 64
SX = 4; SW = 8; SK = 12; SV = 16; SO = 20; SWO = 24; SWT = 28
sWAVE = 32; sWB = 33; sKV = 34; sCNT = 35; sHEAD = 36; sSAFE = 37; sFLAG = 38
sXO = 39; sXO2 = 40; sWOFF = 41; sXB = 42; sOO = 43; sC = 44
sT = 46
sH0 = 68; sWOS = 64; sWTS = 65; sSTAMP = 72; SPF = 76; sPF = 68; sWXS = 67; sROT = 80; sLIN = 81
SCN = 48; SDB = 52; SO2 = 56; sCO = 60; sCW = 61; SIN = 84; SIF = 88; sOUT = 76; VHS = 106; VCW = 107; VONE = 104
SW2 = 80; sO2 = 98; sW2 = 99; sOUTO = 66; sOP = 67; VPE = 11; VTH = 12; VP2 = 13; VWE = 10; AST = 192; sSIG = 78; sLATE = 79

OPT = dict(nt_kv=1, nt_w=1, nt_x=1, nt_wo=1, stamps=0, warm=1, of=2, of0=2)

K2F = ['', ' nt', ' sc1', ' sc0 sc1', ' sc0', ' sc1 nt']
def fl(k): return " nt" if OPT[k] else ""

def dma(voff, srd, soff, off, flag, tag):
    return f"buffer_load_dwordx4 v{voff}, s[{srd}:{srd+3}], {soff} offen offset:{off}{flag} lds ; tag={tag}"

def kv_adv():
    if not OPT.get('rot'): return [f"s_add_u32 s{sKV}, s{sKV}, 8192"]
    return [f"s_add_u32 s{sLIN}, s{sLIN}, 8192", f"s_add_u32 s{sKV}, s{sLIN}, s{sROT}",
            f"s_and_b32 s{sKV}, s{sKV}, 0x3ffff", f"s_and_b32 s{sT+1}, s{sLIN}, 0xfffc0000", f"s_or_b32 s{sKV}, s{sKV}, s{sT+1}"]

def k_dma(tile, so=None):
    so = so or f"s{sKV}"
    return [f"s_add_u32 m0, s{sKB}, {(tile % 8) * 8192}",
            dma(DK0, SK, so, 0, fl('nt_kv'), f"KV{tile}"), dma(DK1, SK, so, 1024, fl('nt_kv'), f"KV{tile}")]
def v_dma(tile, so=None):
    so = so or f"s{sKV}"
    return [f"s_add_u32 m0, s{sKB}, {65536 + (tile % 8) * 8192}",
            dma(DV0, SV, so, 0, fl('nt_kv'), f"KV{tile}"), dma(DV1, SV, so, 1024, fl('nt_kv'), f"KV{tile}")]

def x_dma(m, nq):
    slot = 16384 if m % 2 else 81920
    out = []
    out.append(f"s_add_u32 m0, s{sXB}, {slot}")
    for j in range(4): out.append(dma(DX + j, SX, f"s{sXO}", 1024 * j, fl('nt_x'), f"X{m}"))
    out.append(f"s_add_u32 m0, s{sXB}, {slot + 4096}")
    for j in range(4 if nq == 4 else 2): out.append(dma(DX + j, SX, f"s{sXO2}", 1024 * j, fl('nt_x'), f"X{m}"))
    out.append(f"s_add_u32 s{sXO}, s{sXO}, 128")
    out.append(f"s_add_u32 s{sXO2}, s{sXO2}, 128")
    return out

def w_dma(n, nq):
    out = [f"s_add_u32 m0, s{sWB}, {WSLOT[n % 4]}"]
    for j in range(4): out.append(dma(DW + j, SW, f"s{sWOFF}", 1024 * j, fl('nt_w'), f"W{n}"))
    if n % 2 == 0: out.append(f"s_add_u32 s{sWOFF}, s{sWOFF}, 256")
    else: out.append(f"s_add_u32 s{sWOFF}, s{sWOFF}, {524288 - 256}")
    return out

def w_reads(n, T):
    sp_, a = T // 2, T % 2
    hl, sp = sp_ // 2, sp_ % 2
    out = []
    for s in range(2):
        for a2 in range(2):
            d = AW + 8 * (T % 4) + 4 * s + 2 * a2
            off = max(n % 4 - 1, 0) * 16384 + hl * 8192 + (32 * s + 4 * a2) * 128 + 8 * a
            out.append(f"ds_read_b64_tr_b16 {ar(d,2)}, v{WA + sp + (2 if n % 4 else 0)} offset:{off} ; need=W{n}")
    return out

def x_reads(m, nq):
    out = []
    for q in range(nq):
        for s in range(2):
            d = AX + 32 * (m % 2) + 8 * q + 4 * s
            out.append(f"ds_read_b128 {ar(d,4)}, v{XA + s + (0 if m % 2 else 2)} offset:{q * 2048} ; need=X{m}")
    return out

def qacc(hd, q, T):
    r = 128 + 32 * q + 4 * T
    return vr(r, 4) if hd == 0 else ar(r, 4)

def pf_load():
    return f"buffer_load_dword v{VPD}, v{VPF}, s[{SPF}:{SPF+3}], s{sPF} offen nt ; tag=PF"

def wo_dma(extra):
    out = [f"s_add_u32 m0, s{sXB}, 131072"]
    for j in range(4):
        out += [f"PRE s_add_u32 s{sT}, s{sWOS}, {8192*j}", dma(VWO, SWO, f"s{sT}", 1024 * j, fl('nt_wo'), "WO")]
    if extra: out += [f"s_add_u32 m0, s{sXB}, {131072 + 4096}", dma(VWX, SWO, "0", 0, fl('nt_wo'), "WO")]
    return out

def qproj_stage(b, n, nq, fill=None):
    hd, m = n % 2, n // 2
    nx = 8 if nq == 4 else 6
    slots = []; gaps = [[] for _ in range(64)]
    for T in range(8):
        for q in range(4):
            for s in range(2):
                if q >= nq: slots.append(None); continue
                acc = qacc(hd, q, T)
                c = "0" if (m == 0 and s == 0) else acc
                slots.append(f"{MF} {acc}, {ar(AW+8*(T%4)+4*s,4)}, {ar(AX+32*(m%2)+8*q+4*s,4)}, {c}")
    start = {3: 5, 4: 12, 5: 19, 6: 26, 7: 33}
    rd = w_reads(n, 2); gaps[0].append(rd[3])
    for T, g in start.items():
        for i, x in enumerate(w_reads(n, T)): gaps[g + i].append(x)
    if n < 17:
        for T, g in ((0, 45), (1, 53)):
            for i, x in enumerate(w_reads(n + 1, T)): gaps[g + i].append(x)
        for i, x in enumerate(w_reads(n + 1, 2)[:3]): gaps[61 + i].append(x)
    xr = []
    if n % 2 == 1 and m + 1 <= 8:
        xr = x_reads(m + 1, nq)
        for x, g in zip(xr, (9, 10, 16, 17, 23, 24, 30, 31)): gaps[g].append(x)
    for T in range(1, 8): gaps[8 * T - 1].append(f"WAITL W{n}.{T}")
    if n < 17: gaps[63].append(f"WAITL W{n+1}.0")
    req = []
    if n + 1 <= 17: req.append(f"W{n+1}")
    if n % 2 == 0 and m + 1 <= 8: req.append(f"X{m+1}")
    if n == 17: req += ["KV0", "KV1"]
    cov = list(req)
    if nq == 3 and n == 2:
        cov.append("INIT")
        gaps[45].append(f"buffer_store_dword v{VONE}, v{VLN}, s[{SIF}:{SIF+3}], 0 offen sc1 ; tag=FLAG")
    if nq == 3 and n == 12:
        gaps[45].append(f"buffer_load_dword v{VHS}, off, s[{SDB}:{SDB+3}], 0 ; tag=HS")
    gaps[43].append("WAITV lgkmcnt(0) ; cover=" + ",".join(cov))
    gaps[44].append("s_barrier ; pub=" + ",".join(req))
    def place(seq, first, step):
        g = first
        for x in seq:
            if x.startswith("buffer_"): gaps[g].append(x); g += step
            elif x.startswith("s_add_u32 m0"): gaps[g - 1].append(x)
            elif x.startswith("PRE "): gaps[g - 1].append(x[4:])
            else: gaps[min(g - step + 1, 63)].append(x)
    if n == 0: place(w_dma(2, nq) + w_dma(3, nq) + x_dma(2, nq), 1, 2)
    elif n == 1: place(k_dma(0) + v_dma(0) + kv_adv() + k_dma(1) + v_dma(1) + kv_adv(), 2, 5)
    elif n % 2 == 0 and m + 2 <= 8: place(x_dma(m + 2, nq), 2, 5)
    if n in (14, 16):
        seq = []
        for t in range(2, 6):
            seq += [f"PRE s_add_u32 s{sT}, s{sKV}, {(t - 2) * 8192}"] + (k_dma if n == 14 else v_dma)(t, f"s{sT}")
        if n == 16: seq.append(f"s_add_u32 s{sKV}, s{sKV}, 32768")
        place(seq, 2, 5)
    if OPT.get('awake') and n % 2 == 1 and 3 <= n <= 11:
        seq = []
        for t in range(OPT['awake']):
            seq += [f"PRE s_add_u32 s{sPF}, s{sPF}, 8192"] + k_dma(t % 2, f"s{sPF}") + v_dma(t % 2, f"s{sPF}")
        seq = [x.replace('tag=KV0', 'tag=DUM').replace('tag=KV1', 'tag=DUM') for x in seq]
        place(seq, 2, 40 // (4 * OPT['awake']))
    if OPT.get('awake') and n == 13:
        place([f"PRE s_mov_b32 s{sPF}, 0"] + k_dma(0, f"s{sPF}") + v_dma(0, f"s{sPF}") + [f"PRE s_mov_b32 s{sPF}, 8192"] + k_dma(1, f"s{sPF}") + v_dma(1, f"s{sPF}"), 2, 5)
    if n == OPT.get('wost', 17): place(wo_dma(True)[:OPT.get('won', 99)], 46, 4)
    if n + 4 <= 17: place(w_dma(n + 4, nq), 46, 5)
    for i_ in range(OPT.get('qslow', 0)): gaps[2 + 2 * i_].append('v_nop\nv_nop\nv_nop\nv_nop\nv_nop\nv_nop')
    if fill is not None:
        for g in range(20 if n == 16 else 0, 64):
            if slots[g] is None: continue
            for _ in range(2):
                if fill: gaps[g].append(fill.pop(0))
    emit_slots(b, slots, gaps)
    if OPT.get('qstamps'): stamp(b)

def k_reads(unit, tile):
    out = []
    for kt in range(2):
        for s in range(4):
            f = 4 * kt + s
            out.append(f"ds_read_b128 {ar(AK+4*f,4)}, v{KA + s} offset:{unit * 8192 + kt * 4096} ; need=KV{tile}")
    return out

def v_reads(unit, tile):
    out = []
    for T in range(8):
        th, tl = T // 4, T % 4
        for a in range(2):
            out.append(f"ds_read_b64_tr_b16 {ar(AV+4*T+2*a,2)}, v{VA + T} offset:{unit * 8192 + a * 4096} ; need=KV{tile}")
    return out

import sched, sched2
LM = 1
for a_ in sys.argv[2:]:
    if a_.startswith('lm='): LM = int(a_[3:])
if LM:
    NS = 68
    V_GAPS = list(range(26, 42)); K_GAPS = list(range(50, 58)); D_GAPS = [3, 11, 17, 23]
    SM = sched2.schedule(V_GAPS + K_GAPS, D_GAPS)
else:
    NS = 64
    V_GAPS = list(range(25, 41)); K_GAPS = list(range(48, 56)); D_GAPS = [1, 9, 17, 23]
    SM = sched.schedule(4, V_GAPS + K_GAPS, D_GAPS)
BG = K_GAPS[0] - 1
LA = 108; ONES = 124
def sm_text(kind, q, e):
    s = S_ + 8 * q + e
    if kind == 'exp': return f"v_exp_f32 v{s}, v{s}"
    if kind == 'add': return f"v_add_f32 v{LS+q}, v{LS+q}, v{s}"
    return f"v_cvt_pk_bf16_f32 v{P_+4*q+e//2}, v{s-1}, v{s}"
def sm_items(nq, lo, hi):
    it = [(g, k[0] == 'exp', k) for k, g in SM.items() if k[1] < nq and lo <= g < hi]
    it.sort(key=lambda t: (t[0] % NS, t[1], -t[0]))
    return [(g, k) for g, _, k in it]

def qk(q, kt, s, czero=False):
    d = vr(S_ + 8 * q + 4 * kt, 4)
    c = d if s else ("0" if czero else vr(CI + 4 * q, 4))
    return f"{MF} {d}, {ar(AK+4*(4*kt+s),4)}, {ar(AQ(q)+4*s,4)}, {c}"

def pv(q, T, czero=False):
    d = vr(O_ + 32 * q + 4 * T, 4)
    return f"{MF} {d}, {ar(AV+4*T,4)}, {vr(P_+4*q,4)}, {'0' if czero else d}"

def lsm(q, czero=False):
    d = vr(LA + 4 * q, 4)
    return f"{MF} {d}, {vr(ONES,4)}, {vr(P_+4*q,4)}, {'0' if czero else d}"

def attn_stage(b, k, nq, extra=None, fill=None):
    kk = k % 32; u = k % 8
    slots = []; gaps = [[] for _ in range(NS)]
    for q in (0, 1):
        for kt in range(2):
            for s in range(4): slots.append(qk(q, kt, s))
    for q in (2, 3):
        for T in range(8): slots.append(pv(q, T, kk == 1) if (q < nq and kk > 0) else None)
        if LM: slots.append(lsm(q, kk == 1) if (q < nq and kk > 0) else None)
    for q in (2, 3):
        for kt in range(2):
            for s in range(4): slots.append(qk(q, kt, s) if q < nq else None)
    for q in (0, 1):
        for T in range(8): slots.append(pv(q, T, kk == 0))
        if LM: slots.append(lsm(q, kk == 0))
    for g, key in sm_items(nq, 0, 2 * NS if kk > 0 else NS): gaps[g % NS].append(sm_text(*key))
    for g, x in zip(V_GAPS, v_reads(u, k)): gaps[g].append(x)
    DIST = 6
    if k % 2 == 1:
        gaps[BG - 1].append(f"WAITV lgkmcnt(0) ; cover=KV{k+1},KV{k+2}" + (",WT" if kk == 11 else ""))
        gaps[BG].append(f"s_barrier ; pub=KV{k+1},KV{k+2}")
    else:
        gaps[BG].append("s_waitcnt lgkmcnt(0)")
    for g, x in zip(K_GAPS, k_reads((u + 1) % 8, k + 1)): gaps[g].append(x)
    gaps[NS - 1].append("s_waitcnt lgkmcnt(0)")
    kd, vd = k_dma(k + DIST), v_dma(k + DIST)
    gaps[D_GAPS[0] - 1].append(kd[0]); gaps[D_GAPS[2] - 1].append(vd[0])
    for x, g in zip(kd[1:] + vd[1:], D_GAPS): gaps[g].append(x)
    gaps[44] += kv_adv()
    for i_ in range(OPT.get('slow', 0)): gaps[2 + 2 * i_].append('v_nop\nv_nop\nv_nop\nv_nop')
    if extra:
        for g, x in extra: gaps[g].append(x)
    if fill:
        cost = lambda x: 2 if x.startswith('v_exp') else (1 if x.startswith(('v_', 'ds_', 'buffer_')) else 0)
        room = [max(0, 2 - sum(cost(x) for x in gaps[g])) if slots[g] else 0 for g in range(NS)]
        left = len(fill) - sum(room)
        live = [g for g in range(NS) if slots[g]]
        for i_ in range(max(left, 0)): room[live[(i_ * len(live)) // left]] += 1
        for g in range(NS):
            for _ in range(room[g]):
                if fill: gaps[g].append(fill.pop(0))
        assert not fill
    if OPT.get('astamps') and k % 2 == 0: stamp(b)
    if OPT.get('dmaonly'):
        slots = [None] * NS
        gaps = [[x for x in g if not x.startswith(('v_', 'ds_'))] for g in gaps]
    emit_slots(b, slots, gaps)

def xlane_reduce(b, reg, tmp, op):
    b(f"v_mov_b32 v{tmp}, v{reg}")
    b(f"v_permlane32_swap_b32 v{reg}, v{tmp}")
    b(f"{op} v{reg}, v{reg}, v{tmp}")
    b(f"v_mov_b32 v{tmp}, v{reg}")
    b(f"v_permlane16_swap_b32 v{reg}, v{tmp}")
    b(f"{op} v{reg}, v{reg}, v{tmp}")

def xlane_reduce_multi(b, regs, tmps, op):
    for sw in ("v_permlane32_swap_b32", "v_permlane16_swap_b32"):
        for r, t in zip(regs, tmps): b(f"v_mov_b32 v{t}, v{r}")
        for r, t in zip(regs, tmps): b(f"{sw} v{r}, v{t}")
        for r, t in zip(regs, tmps): b(f"{op} v{r}, v{r}, v{t}")

def stamp(b, idx=None):
    if not OPT['stamps']: return
    b(f"s_memtime s[{sSTAMP}:{sSTAMP+1}]\ns_memrealtime s[{sSTAMP+2}:{sSTAMP+3}]\ns_waitcnt lgkmcnt(0)")
    b(f"s_mov_b32 s95, m0\ns_mov_b32 m0, s96\nv_writelane_b32 v14, s{sSTAMP}, m0\nv_writelane_b32 v15, s{sSTAMP+2}, m0\ns_mov_b32 m0, s95\ns_add_u32 s96, s96, 1")

def stamp_dump(b, k, wave):
    if not OPT['stamps']: return
    b("s_waitcnt vmcnt(0)")
    stamp(b)
    if OPT['stamps'] == 2:
        b("s_load_dwordx2 s[92:93], s[0:1], 88\ns_waitcnt lgkmcnt(0)")
        b(f"s_cmp_lg_u32 s{wave}, 0\ns_cbranch_scc1 L_end{k+1}\ns_and_b32 s94, s97, 31\ns_cmp_lg_u32 s94, 5\ns_cbranch_scc1 L_end{k+1}")
        b(f"s_add_u32 s88, s92, {OPT.get('dbgoff',0)*(1-k)}\ns_addc_u32 s89, s93, 0\ns_mov_b32 s90, 256\ns_mov_b32 s91, 0x20000")
        sel = [0, 2, 3, 6, 7, 9, 10, 11] if k == 0 else [0, 1, 2, 3]
        b("s_mov_b64 exec, 1")
        for i, ix in enumerate(sel):
            b(f"v_readlane_b32 s94, v15, {ix}\ns_nop 3")
            if i == 0 and k == 0: b("s_not_b32 s94, s94")
            b(f"v_mov_b32 v1, s94\nv_mov_b32 v2, {4*(i + (0 if k == 0 else 8))}\nbuffer_atomic_umax v1, v2, s[88:91], 0 offen")
        return
    b("s_load_dwordx2 s[92:93], s[0:1], 96\ns_waitcnt lgkmcnt(0)")
    b(f"s_add_u32 s88, s92, {(48+k)*1024*1024}\ns_addc_u32 s89, s93, 0\ns_mov_b32 s90, 0x100000\ns_mov_b32 s91, 0x20000")
    b(f"s_lshl_b32 s94, s97, 2\ns_add_u32 s94, s94, s{wave}\ns_lshl_b32 s94, s94, 9")
    b("v_and_b32 v1, 63, v0\nv_lshlrev_b32 v1, 3, v1")
    b("buffer_store_dwordx2 v[14:15], v1, s[88:91], s94 offen")

def persist_regs(b):
    lane = T0; t1 = T0 + 1; t2 = T0 + 2; t3 = T0 + 3; g_ = T0 + 4; ihi = T0 + 5; i8 = T0 + 6; i16 = T0 + 7; r_ = T0 + 8; c4 = T0 + 9
    b(f"""v_and_b32 v{lane}, 63, v0
    v_lshrrev_b32 v{g_}, 4, v{lane}
    v_lshrrev_b32 v{ihi}, 3, v{lane}
    v_and_b32 v{i8}, 7, v{lane}
    v_and_b32 v{i16}, 15, v{lane}
    v_lshrrev_b32 v{r_}, 2, v{i16}
    v_and_b32 v{c4}, 3, v{lane}
    v_lshlrev_b32 v{VLN}, 4, v{lane}
    s_add_u32 s71, s63, s{sWB}
    v_add_u32 v{VO}, s71, v{VLN}""")
    b(f"""s_lshl_b32 s70, s{sWAVE}, 11
    v_lshlrev_b32 v{t1}, 8, v{g_}
    v_add_u32 v{t1}, s70, v{t1}
    s_and_b32 s70, s{sWAVE}, 1
    s_lshl_b32 s70, s70, 3
    v_xor_b32 v{t2}, v{i16}, v{g_}
    v_xor_b32 v{t2}, s70, v{t2}
    v_lshl_add_u32 v{DK0}, v{t2}, 4, v{t1}
    v_xor_b32 v{DK1}, 64, v{DK0}
    v_lshlrev_b32 v{t2}, 1, v{g_}
    v_xor_b32 v{t3}, v{t2}, v{i16}
    v_lshl_add_u32 v{DV0}, v{t3}, 4, v{t1}
    v_xor_b32 v{DV1}, 128, v{DV0}""")
    b(f"""v_mul_u32_u24 v{t1}, 1152, v{ihi}
    v_lshl_add_u32 v{t1}, v{i8}, 4, v{t1}
    s_lshl_b32 s70, s{sWAVE}, 7
    v_add_u32 v{VWO}, s70, v{t1}
    v_lshrrev_b32 v{t1}, 1, v{lane}
    v_mul_u32_u24 v{t1}, 1152, v{t1}
    v_and_b32 v{t2}, 1, v{lane}
    v_lshl_add_u32 v{t1}, v{t2}, 4, v{t1}
    s_lshl_b32 s70, s{sWAVE}, 5
    s_add_u32 s70, s70, 1024
    v_add_u32 v{VWX}, s70, v{t1}""")
    b(f"""v_xor_b32 v{t2}, v{g_}, v{i16}
    v_lshlrev_b32 v{t2}, 4, v{t2}
    v_lshl_add_u32 v{KA}, v{i16}, 8, v{t2}""")
    for s_ in range(1, 4): b(f"v_xor_b32 v{KA+s_}, {64*s_}, v{KA}")
    b(f"""v_lshl_add_u32 v{t2}, v{g_}, 2, v{r_}
    v_lshlrev_b32 v{t1}, 8, v{t2}
    v_and_b32 v{t2}, 7, v{t2}
    v_lshl_add_u32 v{t1}, v{t2}, 5, v{t1}
    v_lshl_add_u32 v{t1}, v{c4}, 3, v{t1}
    v_add_u32 v{VA}, 0x10000, v{t1}""")
    for T in range(1, 8): b(f"v_xor_b32 v{VA+T}, {32*T}, v{VA}")
    b(f"""v_lshl_add_u32 v{t2}, v{g_}, 2, v{r_}
    v_lshlrev_b32 v{t1}, 7, v{t2}
    v_lshl_add_u32 v{t1}, v{c4}, 3, v{t1}
    s_add_u32 s70, s{sXB}, 131072
    v_add_u32 v{VWA}, s70, v{t1}
    s_add_u32 s70, s70, 4096
    v_lshlrev_b32 v{t1}, 3, v{lane}
    v_add_u32 v{VWE}, s70, v{t1}""")

def late_setup(b, sfx):
    b(f"s_cmp_lg_u32 s{sSAFE}, 0\ns_cbranch_scc1 L_late{sfx}")
    b(f"""s_lshl_b32 s71, s68, 4
    s_add_u32 s71, s71, s69
    s_lshl_b32 s70, s71, 19
    s_add_u32 s{SK}, s50, s70
    s_addc_u32 s{SK+1}, s51, 0
    s_mov_b32 s{SK+2}, 524288
    s_mov_b32 s{SK+3}, 0x20000
    s_add_u32 s{SV}, s52, s70
    s_addc_u32 s{SV+1}, s53, 0
    s_mov_b32 s{SV+2}, 524288
    s_mov_b32 s{SV+3}, 0x20000
    s_mul_i32 s70, s3, {O_BLK}
    s_add_u32 s{SO}, s100, s70
    s_addc_u32 s{SO+1}, s101, 0
    s_mov_b32 s{SO+2}, {O_BLK}
    s_mov_b32 s{SO+3}, 0x20000
    s_mul_i32 s70, s71, 36864
    s_add_u32 s{SWO}, s56, s70
    s_addc_u32 s{SWO+1}, s57, 0
    s_mov_b32 s{SWO+2}, 36864
    s_mov_b32 s{SWO+3}, 0x20000
    s_mul_i32 s71, s3, {WOT_BLK}
    s_add_u32 s70, s70, s71
    s_add_u32 s70, s70, {WOT_OFF}
    s_add_u32 s{SWT}, s100, s70
    s_addc_u32 s{SWT+1}, s101, 0
    s_mov_b32 s{SWT+2}, 36864
    s_mov_b32 s{SWT+3}, 0x20000
    s_mul_i32 s62, s69, {8*122880}
    s_mul_i32 s63, s68, 15360        ; b*15*1024
    s_add_u32 s{SCN}, s100, {CNT_OFF}
    s_addc_u32 s{SCN+1}, s101, 0
    s_mov_b32 s{SCN+2}, 24576
    s_mov_b32 s{SCN+3}, 0x20000
    s_mov_b64 s[{SDB}:{SDB+1}], s[78:79]
    s_mov_b32 s{SDB+2}, 256
    s_mov_b32 s{SDB+3}, 0x20000
    s_mov_b64 s[{SIN}:{SIN+1}], s[{SCN}:{SCN+1}]
    s_mov_b32 s{SIN+3}, 0x20000
    s_mov_b64 s[{SIF}:{SIF+1}], s[78:79]
    s_mov_b32 s{SIF+3}, 0x20000
    s_lshl_b32 s70, s3, 3
    s_add_u32 s70, s70, s68
    s_lshl_b32 s{sCO}, s70, 2
    s_lshr_b32 s71, s69, 2
    s_add_u32 s{sCO}, s{sCO}, s71
    s_lshl_b32 s{sCO}, s{sCO}, 7
    s_lshr_b32 s{sCW}, s70, 1
    s_lshl_b32 s{sCW}, s{sCW}, 7
    s_add_u32 s{sCW}, s{sCW}, 8192
    s_mul_i32 s68, s2, 43
    s_lshr_b32 s68, s68, 8
    s_mul_i32 s69, s68, 6
    s_sub_u32 s69, s2, s69             ; nt
    s_and_b32 s70, s97, 3
    s_lshl_b32 s78, s3, 2
    s_add_u32 s78, s78, s70
    s_lshl_b32 s78, s78, 1             ; blk*8 + 2x
    s_cmp_ge_u32 s68, 3
    s_addc_u32 s79, s78, 0
    s_cmp_ge_u32 s68, 2
    s_addc_u32 s78, s78, 0
    s_lshl_b32 s78, s78, 2
    s_lshl_b32 s79, s79, 2
    s_add_u32 s78, s78, s{sWAVE}
    s_add_u32 s79, s79, s{sWAVE}
    s_lshl_b32 s78, s78, 7
    s_lshl_b32 s79, s79, 7
    s_mul_i32 s70, s70, 5
    s_add_u32 s68, s68, s70            ; mt
    s_mul_i32 s70, s3, {O_BLK}
    s_mul_i32 s71, s68, 6144
    s_add_u32 s70, s70, s71
    s_add_u32 s{SO2}, s100, s70
    s_addc_u32 s{SO2+1}, s101, 0
    s_sub_u32 s{SO2+2}, {O_BLK}, s71
    s_mov_b32 s{SO2+3}, 0x20000
    s_mul_i32 s70, s3, {WOT_BLK}
    s_mul_i32 s71, s69, 6144
    s_add_u32 s70, s70, s71
    s_add_u32 s70, s70, {WOT_OFF}
    s_add_u32 s{SW2}, s100, s70
    s_addc_u32 s{SW2+1}, s101, 0
    s_sub_u32 s{SW2+2}, {WOT_BLK}, s71
    s_mov_b32 s{SW2+3}, 0x20000
    s_cmp_ge_u32 s97, 240
    s_cselect_b32 s{SO2+2}, 0, s{SO2+2}
    s_cselect_b32 s{SW2+2}, 0, s{SW2+2}
    s_mov_b32 s100, s{SO2+2}
    s_mov_b32 s101, s{SW2+2}
    s_lshr_b32 s70, s{sWAVE}, 1
    s_mul_i32 s70, s70, {48*2304}
    s_mul_i32 s{sOUTO}, s68, {96*2304}
    s_add_u32 s{sOUTO}, s{sOUTO}, s70
    s_mul_i32 s70, s3, 1152
    s_add_u32 s{sOUTO}, s{sOUTO}, s70
    s_mul_i32 s70, s69, 192
    s_add_u32 s{sOUTO}, s{sOUTO}, s70
    s_and_b32 s70, s{sWAVE}, 1
    s_mul_i32 s70, s70, 96
    s_add_u32 s{sOUTO}, s{sOUTO}, s70
    s_lshl_b32 s70, s3, 2
    s_add_u32 s70, s70, s{sWAVE}
    s_lshl_b32 s70, s70, 7
    s_add_u32 s70, s70, 8192
    v_and_b32 v1, 1, v0
    v_mov_b32 v{VP2}, s78
    v_mov_b32 v2, s79
    v_cmp_eq_u32 vcc, 1, v1
    v_and_b32 v1, 2, v0
    v_mov_b32 v3, s70
    v_cndmask_b32 v{VP2}, v{VP2}, v2, vcc
    v_cmp_eq_u32 vcc, 2, v1
    v_add_u32 v{VPE}, 16384, v{VP2}
    v_mov_b32 v{VTH}, 4
    v_cndmask_b32 v{VPE}, v{VPE}, v3, vcc
    v_mov_b32 v3, 32
    v_cndmask_b32 v{VTH}, v{VTH}, v3, vcc
    s_mov_b32 s{sSIG}, 0""")
    b(f"L_late{sfx}:")
    b(f"""s_or_b32 s70, s97, s{sSAFE}
    s_cmp_eq_u32 s70, 0
    s_cselect_b32 s{SIN+2}, 24576, 0
    s_cselect_b32 s{SIF+2}, 4, 0
    s_mov_b32 s{sOO}, s62
    s_mov_b32 s{sLATE}, 0
    s_mov_b32 s{SO2+2}, s100
    s_mov_b32 s{SW2+2}, s101
    s_mul_i32 s{sO2}, s{sWAVE}, {32*122880}
    s_mul_i32 s{sW2}, s{sWAVE}, {32*36864}
    s_mov_b32 s{sWOS}, 0
    s_mov_b32 s{sWTS}, s{sWB}
    s_mov_b32 s{sPF}, 0x40000
    s_lshl_b32 s{sKB}, s{sWAVE}, 11""")

def warm_code(b):
    if not OPT.get('warm'): return
    b(f"""s_getpc_b64 s[70:71]
    L_pc:
    s_sub_u32 s70, s70, L_pc-attn_kernel
    s_subb_u32 s71, s71, 0
    v_lshrrev_b32 v2, 3, v0
    v_and_b32 v2, 31, v2
    v_lshl_add_u32 v2, s2, 5, v2
    v_lshlrev_b32 v2, 7, v2
    v_min_u32 v2, L_codeend-attn_kernel-4, v2
    v_mov_b32 v3, s71
    v_add_co_u32 v2, vcc, s70, v2
    v_addc_co_u32 v3, vcc, 0, v3, vcc
    global_load_dword v4, v[2:3], off""")

def prologue_a(b):
    lane = T0; t1 = T0 + 1; t2 = T0 + 2; t3 = T0 + 3; g_ = T0 + 4; ihi = T0 + 5; i8 = T0 + 6
    b(f"""v_and_b32 v{lane}, 63, v0
    v_lshrrev_b32 v{g_}, 4, v{lane}
    v_lshrrev_b32 v{ihi}, 3, v{lane}
    v_and_b32 v{i8}, 7, v{lane}""")
    b(f"s_lshl_b32 s{sT}, s{sWAVE}, 6")
    b(f"v_add_u32 v{t1}, s{sT}, v{ihi}")
    b(f"v_mul_u32_u24 v{t1}, 1152, v{t1}")
    for j in range(4):
        b(f"v_xor_b32 v{t2}, {4*(j%2)}, v{g_}")
        b(f"v_xor_b32 v{t2}, v{t2}, v{i8}")
        b(f"v_lshl_add_u32 v{t2}, v{t2}, 4, v{t1}")
        b(f"v_add_u32 v{DX+j}, {8*j*1152 - 1024*j}, v{t2}")
    b(f"""s_and_b32 s{sT}, s{sWAVE}, 1
    s_lshl_b32 s{sT}, s{sT}, 18
    s_lshr_b32 s{sT+1}, s{sWAVE}, 1
    s_lshl_b32 s{sT+1}, s{sT+1}, 7
    s_add_u32 s{sT}, s{sT}, s{sT+1}
    v_lshlrev_b32 v{t1}, 13, v{ihi}
    v_add_u32 v{t1}, s{sT}, v{t1}
    v_lshrrev_b32 v{t2}, 2, v{i8}
    v_xor_b32 v{t2}, v{t2}, v{g_}
    v_and_b32 v{t2}, 1, v{t2}
    v_lshl_add_u32 v{t1}, v{t2}, 6, v{t1}
    v_and_b32 v{t2}, 3, v{i8}
    v_lshl_add_u32 v{t1}, v{t2}, 4, v{t1}""")
    for j in range(4): b(f"v_add_u32 v{DW+j}, {8*j*8192 - 1024*j}, v{t1}")
    b(f"""s_mov_b32 s{sXO}, 0
    s_mov_b32 s{sXO2}, 36864
    s_mov_b32 s{sWOFF}, 0
    s_mov_b32 s{sKV}, 0
    s_mov_b32 s{sHEAD}, 0""")

def prologue_b(b):
    lane = T0; t1 = T0 + 1; t2 = T0 + 2; t3 = T0 + 3; g_ = T0 + 4; ihi = T0 + 5; i8 = T0 + 6
    if OPT.get('sstamps'): stamp(b)
    b.ext(x_dma(0, 4)); b.ext(w_dma(0, 4))
    if OPT.get('sstamps'): stamp(b)
    if OPT.get('xw'):
        pf = K2F[OPT.get('xwf', 0)]
        b(f"""s_lshr_b32 s70, s2, 2
        s_mul_i32 s70, s70, 270
        s_mul_i32 s71, s{sWAVE}, 68
        s_add_u32 s70, s70, s71
        s_lshl_b32 s70, s70, 7
        v_lshlrev_b32 v5, 7, v{lane}
        buffer_load_dword v6, v5, s[{SX}:{SX+3}], s70 offen{pf}
        s_and_b32 s70, s2, 3
        s_lshl_b32 s70, s70, 2
        s_add_u32 s70, s70, s{sWAVE}
        s_lshl_b32 s70, s70, 13
        v_lshrrev_b32 v5, 2, v{lane}
        v_lshlrev_b32 v5, 17, v5
        v_and_b32 v7, 3, v{lane}
        v_lshl_add_u32 v5, v7, 7, v5
        buffer_load_dword v6, v5, s[{SW}:{SW+3}], s70 offen{pf}
        s_add_u32 s70, s70, {256*8192}
        buffer_load_dword v6, v5, s[{SW}:{SW+3}], s70 offen{pf}
        s_add_u32 s70, s70, {256*8192}
        buffer_load_dword v6, v5, s[{SW}:{SW+3}], s70 offen{pf}""")
    late_setup(b, "")
    persist_regs(b)
    b(f"""v_mov_b32 v{VONE}, 1
    s_and_b32 s70, s{sWAVE}, 1
    s_mul_i32 s70, s70, 3072
    s_sub_u32 s71, 3072, s70
    v_add_u32 v{VPW}, s70, v{VLN}
    v_add_u32 v{VPW+1}, s71, v{VLN}
    s_lshr_b32 s70, s{sWAVE}, 1
    s_mul_i32 s70, s70, 3072
    s_sub_u32 s71, 3072, s70
    v_add_u32 v{VPO}, s70, v{VLN}
    v_add_u32 v{VPO+1}, s71, v{VLN}""")
    i16 = T0 + 7; r_ = T0 + 8; c4 = T0 + 9
    b(f"""v_and_b32 v{i16}, 15, v{lane}
    v_lshrrev_b32 v{r_}, 2, v{i16}
    v_and_b32 v{c4}, 3, v{lane}
    v_lshlrev_b32 v{t1}, 7, v{i16}
    v_add_u32 v{t1}, s{sXB}, v{t1}
    v_add_u32 v{t1}, 16384, v{t1}
    v_lshrrev_b32 v{t3}, 1, v{i16}""")
    for s in range(2):
        b(f"v_xor_b32 v{t2}, {4*s}, v{g_}")
        b(f"v_xor_b32 v{t2}, v{t2}, v{t3}")
        b(f"v_lshl_add_u32 v{XA+s}, v{t2}, 4, v{t1}\nv_add_u32 v{XA+2+s}, 65536, v{XA+s}")
    b(f"""v_lshl_add_u32 v{t1}, v{g_}, 3, v{r_}
    v_lshlrev_b32 v{t1}, 7, v{t1}
    v_lshl_add_u32 v{t1}, v{c4}, 4, v{t1}
    v_add_u32 v{t1}, 49152, v{t1}
    v_lshrrev_b32 v{t3}, 1, v{r_}""")
    for sp in range(2):
        b(f"v_xor_b32 v{t2}, {sp}, v{t3}")
        b(f"v_lshl_add_u32 v{WA+sp}, v{t2}, 6, v{t1}\nv_add_u32 v{WA+2+sp}, 65536, v{WA+sp}")
    if OPT.get('sstamps'): stamp(b)
    b.ext(w_dma(1, 4)); b.ext(x_dma(1, 4))

def wave_code(b, nq, sfx):
    nx = 8 if nq == 4 else 6
    b(f"L_begin{sfx}:")
    if nq == 3:
        b(f"v_mov_b32 v{VHS}, 0\nv_lshlrev_b32 v{VCW}, 3, v{VLN}")
        b(f"buffer_store_dword v{VHS}, v{VCW}, s[{SIN}:{SIN+3}], 0 offen sc1 ; tag=INIT")
        b(f"s_mov_b32 s{sT}, 8192\nbuffer_store_dword v{VHS}, v{VCW}, s[{SIN}:{SIN+3}], s{sT} offen sc1 ; tag=INIT")
        b(f"s_mov_b32 s{sT}, 16384\nbuffer_store_dword v{VHS}, v{VCW}, s[{SIN}:{SIN+3}], s{sT} offen sc1 ; tag=INIT")
    stamp(b, 0)
    b("WAITV ; cover=X0,W0")
    b("s_barrier ; pub=X0,W0")
    b.ext(x_reads(0, nq))
    for T in (0, 1): b.ext(w_reads(0, T))
    b.ext(w_reads(0, 2)[:3])
    b("WAITL W0.0")
    stamp(b, 1)
    for n in range(0, 4): qproj_stage(b, n, nq)
    b(f"s_mov_b32 s{sCNT}, 0")
    b(f".p2align 3\nL_qp{sfx}:")
    b("LOOPBEGIN qp 2 4")
    for n in range(4, 8): qproj_stage(b, n, nq)
    b(f"s_add_u32 s{sCNT}, s{sCNT}, 1\ns_cmp_lt_u32 s{sCNT}, 2\ns_cbranch_scc1 L_qp{sfx}")
    b("LOOPEND qp")
    fill = []; post = []
    for sp in range(4):
        for q in range(nq):
            rs = [128 + 32 * q + 8 * sp + 2 * i_ for i_ in range(4)]
            for r in rs: fill += [f"v_mul_f32 v{r}, s{sC}, v{r}", f"v_mul_f32 v{r+1}, s{sC}, v{r+1}"]
            for r in rs: fill.append(f"v_cvt_pk_bf16_f32 v{r}, v{r}, v{r+1}")
            for i_, r in enumerate(rs): fill.append(f"v_accvgpr_write_b32 a{AQ(q) + 4*sp + i_}, v{r}")
    for n in range(12, 18): qproj_stage(b, n, nq, fill if n >= 16 else None)
    stamp(b, 2)
    conv2 = []
    for q in range(nq):
        for h in range(8):
            r = 128 + 32 * q + 4 * h
            conv2 += [f"v_accvgpr_read_b32 v{4+i_}, a{r+i_}" for i_ in range(4)]
            conv2 += [f"v_mul_f32 v{4+i_}, s{sC}, v{4+i_}" for i_ in range(4)]
            conv2 += ["v_cvt_pk_bf16_f32 v4, v4, v5", "v_cvt_pk_bf16_f32 v6, v6, v7",
                      f"v_accvgpr_write_b32 a{AQ2(q)+2*h}, v4", f"v_accvgpr_write_b32 a{AQ2(q)+2*h+1}, v6"]
    def pre_mfma(): return [qk(q, 0, s_, czero=True) for q in range(nq) for s_ in range(4)]
    def pre_max():
        t = B()
        for q in range(nq):
            s_ = S_ + 8 * q
            t(f"v_max3_f32 v{s_}, v{s_}, v{s_+1}, v{s_+2}")
        for q in range(nq):
            s_ = S_ + 8 * q
            t(f"v_max_f32 v{s_}, v{s_}, v{s_+3}")
        xlane_reduce_multi(t, [S_ + 8 * q for q in range(nq)], [T0 + q for q in range(nq)], "v_max_f32")
        for q in range(nq):
            for r in range(4): t(f"v_sub_f32 v{CI+4*q+r}, 0, v{S_+8*q}")
        return t.L
    def weave(mf, st, per):
        for x in mf:
            b(x)
            for _ in range(per):
                if st: b(st.pop(0))
    def zipper(a_, b_, ra, rb):
        out = []
        while a_ or b_:
            for _ in range(ra):
                if a_: out.append(a_.pop(0))
            for _ in range(rb):
                if b_: out.append(b_.pop(0))
        return out
    AWO = 192 if nq == 4 else 224
    def wo_reads(extra):
        out = [f"ds_read_b64_tr_b16 {ar(AWO+4*tl+2*a,2)}, v{VWA} offset:{2048*a + 32*tl}" for tl in range(4) for a in range(2)]
        if extra: out += [f"ds_read_b64_tr_b16 {ar(AWO+16+2*a,2)}, v{VWE} offset:{512*a}" for a in range(2)]
        return out
    def wo_stores(extra):
        out = [f"buffer_store_dwordx4 {ar(AWO+4*tl,4)}, v{VLN}, s[{SWT}:{SWT+3}], s{sWTS} offen offset:{1024*tl} sc1 ; tag=WT" for tl in range(4)]
        if extra: out.append(f"buffer_store_dwordx4 {ar(AWO+16,4)}, v{VLN}, s[{SWT}:{SWT+3}], s{sT+1} offen sc1 ; tag=WT")
        return out
    b.ext(k_reads(0, 0))
    b.ext(fill)
    b(f"v_and_b32 v4, 3, v0\nv_mov_b32 v5, 0x3f803f80\nv_cmp_eq_u32 vcc, 0, v4")
    for i_ in range(4): b(f"v_cndmask_b32 v{ONES+i_}, 0, v5, vcc")
    b("s_waitcnt lgkmcnt(0)")
    b.ext(pre_mfma())
    b.ext(pre_max())
    stamp(b, 3)
    for i_ in range(OPT.get('pause', 0)): b('s_sleep 32')
    adv8 = lambda x: x
    def head_start(hd):
        b(f"s_cmp_lg_u32 s{sSAFE}, 0\ns_cbranch_scc1 L_maxpass{sfx}\nL_maxdone{hd}{sfx}:")
        if not LM:
            for q in range(nq): b(f"v_mov_b32 v{LS+q}, 0")
        stamp(b)
    head_start(0)
    per = -(-len(conv2) // 8)
    for k in range(8):
        ex = []
        if k == 6:
            ex = [(3, "WAITV ; cover=WO,HS")] + list(zip((4, 5, 6, 7, 8, 42, 43, 44, 45, 46), wo_reads(True)))
            if nq == 3: ex.append((47, f"v_readfirstlane_b32 s{sT}, v{VHS}\ns_cmp_eq_u32 s{sT}, 0\ns_cbranch_scc1 L_hspin\nL_hsok:"))
        if k == 7:
            ex = [(0, f"s_lshl_b32 s{sT+1}, s{sWAVE}, 10"), (1, f"s_add_u32 s{sT+1}, s{sT+1}, 32768")]
            ex += list(zip((4, 5, 6, 7, 8), wo_stores(True)))
            ex += [(9, f"s_add_u32 s{sWOS}, s{sWOS}, 512"), (10, f"s_add_u32 s{sWTS}, s{sWTS}, 16384")]
            g = 29
            for x in wo_dma(False):
                if x.startswith("buffer_"): ex.append((g, x)); g += 4
                else: ex.append((g - 1, x.replace("PRE ", "")))
        attn_stage(b, k, nq, ex, fill=[conv2.pop(0) for _ in range(min(per, len(conv2)))])
    b(f"L_atin{sfx}:")
    b(f"s_mov_b32 s{sCNT}, 0")
    b(f".p2align 3\nL_at{sfx}:")
    b("LOOPBEGIN at 3 8")
    for k in range(8, 16):
        ex = []
        if k == 11 and nq == 3:
            ex = [(59, f"""s_xor_b32 s{sT+1}, s{sHEAD}, 1
            s_or_b32 s{sT}, s{sCNT}, s{sT+1}
            s_cbranch_scc0 L_sig
            L_nosig:""")]
        if k == 13: ex = [(4, f"s_add_u32 s{sT}, s{sCNT}, s{sHEAD}"), (5, f"s_cmp_lt_u32 s{sT}, 3"), (6, f"""s_cbranch_scc1 L_nopoll{sfx}
            buffer_load_dword v{VCW}, v{VPE}, s[{SCN}:{SCN+3}], 0 offen sc1 ; cond
            L_nopoll{sfx}:""")]
        if k == 15: ex = [(NS - 4, f"s_add_u32 s{sCNT}, s{sCNT}, 1"), (NS - 2, f"s_cmp_lt_u32 s{sCNT}, 3")]
        attn_stage(b, k, nq, ex)
    b(f"s_cbranch_scc1 L_at{sfx}")
    b("LOOPEND at")
    b(f"L_atx{sfx}:")
    b(f"s_cmp_lg_u32 s{sHEAD}, 0\ns_cbranch_scc1 L_fin{sfx}")

    def lsum(qs):
        t = B()
        if not LM: xlane_reduce_multi(t, [LS + q for q in qs], [T0 + 4 + q for q in qs], "v_add_f32")
        for q in qs:
            src = LA + 4 * q if LM else LS + q
            t(f"v_cmp_ngt_f32 vcc, {LTHR}, v{src}")
            t(f"v_rcp_f32 v{LS+q}, v{src}")
            t(f"s_or_b32 s{sFLAG}, s{sFLAG}, vcc_lo\ns_or_b32 s{sFLAG}, s{sFLAG}, vcc_hi")
        return t.L
    cnt = [0]
    def onorm(q, pk, flag):
        out = []
        for sp in range(4):
            d = P_ + 4 * (cnt[0] % 2); cnt[0] += 1
            rs = [O_ + 32 * q + 8 * sp + 2 * i_ for i_ in range(4)]
            for r in rs:
                if pk and OPT.get('pk', 1): out.append(f"v_pk_mul_f32 v[{r}:{r+1}], v[{r}:{r+1}], v[{LS+q-(q%2)}:{LS+q-(q%2)+1}] op_sel:[0,{q%2}] op_sel_hi:[1,{q%2}]")
                else: out += [f"v_mul_f32 v{r}, v{r}, v{LS+q}", f"v_mul_f32 v{r+1}, v{r+1}, v{LS+q}"]
            for i_, r in enumerate(rs): out.append(f"v_cvt_pk_bf16_f32 v{d+i_}, v{r}, v{r+1}")
            if flag is None:
                for i_ in range(4): out.append(f"v_accvgpr_write_b32 a{AST+16*q+4*sp+i_}, v{d+i_}")
                continue
            out.append(f"s_add_u32 s{sT}, s{sOO}, {sp*122880}")
            out.append(f"buffer_store_dwordx4 {vr(d,4)}, v{VO}, s[{SO}:{SO+3}], s{sT} offen offset:{1024*q}{flag}")
        return out
    def drain(st, ld=None):
        slots = []; gaps = [[] for _ in range(18)]
        for q in (2, 3):
            for T in range(8): slots.append(pv(q, T) if q < nq else None)
            slots.append(lsm(q) if (q < nq and LM) else None)
        rem = sorted(sm_items(nq, NS, 2 * NS), key=lambda t: t[0])
        b.ext([sm_text(*k_) for g, k_ in rem if k_[1] == 2 and k_[0] != 'add'])
        crit = sorted([k_ for g, k_ in rem if k_[1] == 3 and k_[0] != 'add'], key=lambda k_: (k_[2], k_[0] == 'cvt'))
        g = 0
        for k_ in crit:
            if k_[0] == 'exp' and gaps[min(g, 6)]: g += 1
            gaps[min(g, 6)].append(sm_text(*k_))
            if k_[0] == 'exp' or len(gaps[min(g, 6)]) == 2: g += 1
        late = [sm_text(*k_) for g_, k_ in rem if k_[0] == 'add']
        for i_, x in enumerate(late): gaps[min(9 + i_ // 2, 16) if nq == 4 else 0].append(x)
        for g in range(18):
            if slots[g] is None: continue
            room = 2 - sum(2 if 'exp' in x else 1 for x in gaps[g])
            while room > 0 and st: gaps[g].append(st.pop(0)); room -= 1
        for i_, s_ in enumerate(slots):
            if s_: b(s_)
            if s_ and ld:
                b(ld.pop(0))
                while ld and ld[0].startswith("s_"): b(ld.pop(0))
            b.ext(gaps[i_])
    hi = list(range(2, nq))
    movs = [f"v_accvgpr_mov_b32 a{AQ(q)+i_}, a{AQ2(q)+i_}" for q in range(nq) for i_ in range(16)]
    f0 = ' sc1 ; tag=WT'
    st = lsum([0, 1]) + onorm(0, False, f0)
    drain(st)
    stamp(b, 4)
    b.ext(zipper(st, lsum(hi), 2, 1))
    b.ext(movs)
    st = onorm(1, False, f0)
    weave(pre_mfma(), st, 3 if nq == 4 else 4)
    b.ext(st)
    rest = []
    for q in hi: rest += onorm(q, True, f0)
    b.ext(zipper(rest, pre_max(), 2, 1))
    b.ext(vote_write())
    b(f"s_add_u32 s{sOO}, s{sOO}, {4*122880}\ns_mov_b32 s{sHEAD}, 1")
    head_start(1)
    for k in range(32, 40):
        ex = []
        if k == 33: ex = [(3, "WAITV ; cover=WO")] + list(zip((4, 5, 6, 7, 8, 42, 43, 44), wo_reads(False)))
        if k == 34: ex = list(zip((4, 5, 6, 7), wo_stores(False)))
        attn_stage(b, k, nq, ex)
    b(f"s_branch L_atin{sfx}")
    b("REPLAY at 32")
    b(f"L_fin{sfx}:")
    f1 = K2F[OPT.get('of', 0)]
    b("s_waitcnt vmcnt(8)")
    b(f"v_cmp_gt_u32 vcc, v{VTH}, v{VCW}\ns_cbranch_vccnz L_espin{sfx}\nL_eok{sfx}:")
    p2 = []
    for s_ in range(4): p2 += p2_w(s_) + p2_o(s_) + p2_adv(s_)
    st = lsum([0, 1]) + onorm(0, False, f1)
    drain(st, p2)
    stamp(b, 4)
    body = st + zipper(onorm(1, True, f1), lsum(hi), 2, 1)
    for q in hi: body += onorm(q, True, f1)
    body = [x + " ; tag=OS" if x.startswith("buffer_store") else x for x in body]
    nld = sum(1 for x in p2 if x.startswith("buffer_"))
    per = max(1, len(body) // (nld + 2))
    seq = []
    while body or p2:
        if p2:
            seq.append(p2.pop(0))
            while p2 and p2[0].startswith("s_"): seq.append(p2.pop(0))
        for _ in range(per):
            if body: seq.append(body.pop(0))
    outst = 8 + 48 - nld
    for x in seq:
        if x.startswith("buffer_"):
            if outst >= 62: b("s_waitcnt vmcnt(52)"); outst = 52
            outst += 1
        b(x)
    b.ext(vote_write())
    stamp(b)
    b(f"L_p2s{sfx}:")
    for s_ in range(4): p2_step(b, s_, s_ == 0, True, f"WAITV ; cover=P{s_} cap=51")
    b("WAITV lgkmcnt(0) ; cover=OS")
    b("s_branch L_vote")
    b(f"""L_espin{sfx}:
    s_mov_b32 s{sLATE}, 1
    s_mov_b32 s{SO2+2}, 0
    s_mov_b32 s{SW2+2}, 0
    s_branch L_eok{sfx}""")
    if nq == 3:
        b(f"""L_sig:
        v_mov_b32 v4, {131072+7168}
        ds_read_b128 v[4:7], v4
        s_waitcnt lgkmcnt(0)
        v_or_b32 v4, v4, v5
        v_or3_b32 v4, v4, v6, v7
        v_readfirstlane_b32 s{sT}, v4
        s_mov_b64 exec, 1
        s_cmp_lg_u32 s{sSAFE}, 0
        s_cselect_b32 s{sT}, 0, s{sT}
        s_cbranch_scc1 L_sig1
        buffer_atomic_add v{VONE}, off, s[{SCN}:{SCN+3}], s{sCW} sc1
        L_sig1:
        s_or_b32 s{sT}, s{sT}, s{sSIG}
        s_cbranch_scc1 L_sig2
        s_add_u32 s{sT}, s{sCO}, 16384
        s_mov_b32 s{sSIG}, 1
        buffer_atomic_add v{VONE}, off, s[{SCN}:{SCN+3}], s{sT} sc1
        L_sig2:
        s_mov_b64 exec, -1
        s_branch L_nosig""")
        b(f"""L_hspin:
        s_mov_b32 s{sCNT}, 0
        L_hsp:
        s_sleep 8
        buffer_load_dword v{VHS}, off, s[{SDB}:{SDB+3}], 0 sc1
        s_waitcnt vmcnt(0)
        v_readfirstlane_b32 s{sT}, v{VHS}
        s_add_u32 s{sCNT}, s{sCNT}, 1
        s_lshr_b32 s{sT+1}, s{sCNT}, 17
        s_or_b32 s{sT}, s{sT}, s{sT+1}
        s_cmp_eq_u32 s{sT}, 0
        s_cbranch_scc1 L_hsp
        s_branch L_hsok""")
    b(f"L_maxpass{sfx}:")
    for q in range(nq): b(f"v_mov_b32 v{T0+8+q}, 0xff800000")
    b(f"s_lshl_b32 s{sT}, s{sHEAD}, 18\ns_mov_b32 s{sCNT}, 0")
    b(f"L_mp{sfx}:")
    b(f"s_barrier\ns_add_u32 m0, s{sKB}, 49152")
    b(dma(DK0, SK, f"s{sT}", 0, "", "MP")); b(dma(DK1, SK, f"s{sT}", 1024, "", "MP"))
    b("s_waitcnt vmcnt(0)\ns_barrier")
    for kt in range(2):
        for s in range(4):
            b(f"ds_read_b128 {ar(ASP+4*(4*kt+s),4)}, v{KA+s} offset:{49152 + kt*4096}")
    b("s_waitcnt lgkmcnt(0)")
    for q in range(nq):
        for kt in range(2):
            for s in range(4):
                d = vr(S_ + 8 * q + 4 * kt, 4)
                b(f"{MF} {d}, {ar(ASP+4*(4*kt+s),4)}, {ar(AQ(q)+4*s,4)}, {d if s else '0'}")
    for q in range(nq):
        for e in range(0, 8, 2): b(f"v_max3_f32 v{T0+8+q}, v{T0+8+q}, v{S_+8*q+e}, v{S_+8*q+e+1}")
    b(f"s_add_u32 s{sT}, s{sT}, 8192\ns_add_u32 s{sCNT}, s{sCNT}, 1\ns_cmp_lt_u32 s{sCNT}, 32\ns_cbranch_scc1 L_mp{sfx}")
    b("s_barrier")
    xlane_reduce_multi(b, [T0 + 8 + q for q in range(nq)], [T0 + q for q in range(nq)], "v_max_f32")
    for q in range(nq):
        for r in range(4): b(f"v_sub_f32 v{CI+4*q+r}, 0, v{T0+8+q}")
    b(f"s_cmp_eq_u32 s{sHEAD}, 0\ns_cbranch_scc1 L_maxdone0{sfx}\ns_branch L_maxdone1{sfx}")

FA = [0, 96, 144, 192]
def p2_reg(slot, i): return FA[slot] + 4 * i
VPW = 2; VPO = 8
def p2_w(slot): return [f"buffer_load_dwordx4 {ar(p2_reg(slot, i),4)}, v{VPW + i//3}, s[{SW2}:{SW2+3}], s{sW2} offen offset:{1024*(i%3)}{K2F[OPT.get('p2f', 2)]} ; tag=P{slot}" for i in range(6)]
def p2_o(slot): return [f"buffer_load_dwordx4 {ar(p2_reg(slot, 6+i),4)}, v{VPO + i//3}, s[{SO2}:{SO2+3}], s{sO2} offen offset:{1024*(i%3)}{K2F[OPT.get('p2f', 2)]} ; tag=P{slot}" for i in range(6)]
def p2_adv(slot):
    m = 5 if slot == 3 else 1
    return [f"s_add_u32 s{sO2}, s{sO2}, {m*122880}", f"s_add_u32 s{sW2}, s{sW2}, {m*36864}"]

def vote_write():
    return [f"v_mov_b32 v4, s{sFLAG}", f"s_lshl_b32 s{sT}, s{sWAVE}, 2", f"s_add_u32 s{sT}, s{sT}, {131072+7168}",
            f"v_mov_b32 v5, s{sT}", "ds_write_b32 v5, v4"]

P2ACC = 112
def p2_acc(q, n): return P2ACC + 4 * (6 * q + n)
def p2_step(b, slot, first, prefetch, wait, order=None, extra=None):
    b(wait)
    order = order or [(q, n) for q in range(6) for n in range(6)]
    slots = []; gaps = [[] for _ in range(36)]
    for q, n in order:
        a_ = vr(p2_acc(q, n), 4)
        slots.append(f"{MF} {a_}, {ar(p2_reg(slot, n),4)}, {ar(p2_reg(slot, 6+q),4)}, {'0' if first else a_}")
    if prefetch:
        o_, w_ = p2_o(slot), p2_w(slot)
        for q in range(6): gaps[6 * q + 5].append(o_[q])
        for n in range(6): gaps[30 + n].append(w_[n])
        gaps[35] += p2_adv(slot)
    for g, x in (extra or []): gaps[g].append(x)
    emit_slots(b, slots, gaps)

def phase2(b):
    D = 4
    acc = p2_acc
    def step(slot, first, prefetch, N, order=None, extra=None): p2_step(b, slot, first, prefetch, f"s_waitcnt vmcnt({N})", order, extra)
    b(f"""L_vote:
    s_cmp_eq_u32 s{sLATE}, 2
    s_cbranch_scc1 L_go
    v_mov_b32 v5, {131072+7168}
    s_barrier
    ds_read_b128 v[16:19], v5
    s_waitcnt lgkmcnt(0)
    v_or_b32 v16, v16, v17
    v_or3_b32 v16, v16, v18, v19
    v_readfirstlane_b32 s{sT}, v16
    s_cmp_lg_u32 s{sSAFE}, 0
    s_cselect_b32 s{sT}, 0, s{sT}
    s_cmp_lg_u32 s{sT}, 0
    s_cbranch_scc1 L_redo
    s_cmp_eq_u32 s{sWAVE}, 3
    s_cbranch_scc0 L_nosig2
    s_mov_b64 exec, 1
    buffer_atomic_add v{VONE}, off, s[{SCN}:{SCN+3}], s{sCO} sc1
    s_mov_b64 exec, -1
    L_nosig2:""")
    stamp(b)
    b(f"""s_cmp_ge_u32 s97, 240
    s_cbranch_scc1 L_fini
    s_cmp_eq_u32 s{sLATE}, 1
    s_cbranch_scc1 L_lateld
    L_go:
    s_xor_b32 s70, s{sWAVE}, 1
    s_mul_i32 s70, s70, 27648
    v_add_u32 v16, s70, v{VLN}
    s_xor_b32 s70, s{sWAVE}, 2
    s_mul_i32 s70, s70, 27648
    s_add_u32 s70, s70, 9216
    v_add_u32 v17, s70, v{VLN}
    s_xor_b32 s70, s{sWAVE}, 3
    s_mul_i32 s70, s70, 27648
    s_add_u32 s70, s70, 18432
    v_add_u32 v18, s70, v{VLN}
    s_mul_i32 s70, s{sWAVE}, 27648
    v_add_u32 v19, s70, v{VLN}
    v_and_b32 v20, 15, v0
    v_mul_u32_u24 v20, 2304, v20
    v_bfe_u32 v21, v0, 4, 2
    v_lshl_add_u32 v20, v21, 3, v20
    v_add_u32 v21, {16*2304}, v20
    v_add_u32 v22, {32*2304}, v20
    s_mov_b32 s88, s{sOUT}
    s_mov_b32 s89, s{sOUT+1}
    s_mov_b32 s90, {8*240*1152*2}
    s_mov_b32 s91, 0x20000
    s_mov_b32 s36, 0
    .p2align 3
    L_k2:""")
    for s_ in range(D):
        step(s_, False, True, 36, extra=[(0, f"buffer_load_dword v6, v{VP2}, s[{SCN}:{SCN+3}], 0 offen sc1")] if s_ == 0 else None)
    b("""s_add_u32 s36, s36, 1
    s_cmp_eq_u32 s36, 2
    s_cbranch_scc1 L_chk
    L_chkd:
    s_cmp_lt_u32 s36, 6
    s_cbranch_scc1 L_k2""")
    for s_ in range(D - 1): step(s_, False, False, 12 * (D - 1 - s_))
    stamp(b)
    quad = lambda q, n: (q // 3) * 2 + (n // 3)
    oth = [(q, n) for d in (1, 2, 3) for q in range(6) for n in range(6) if quad(q, n) == d]
    mine = [(q, n) for q in range(3) for n in range(3)]
    wr = [(min(i_ + 5, 35), f"ds_write_b128 v{15 + quad(q, n)}, {vr(acc(q, n),4)} offset:{((q % 3) * 3 + n % 3) * 1024}") for i_, (q, n) in enumerate(oth)]
    step(D - 1, False, False, 0, order=oth + mine, extra=wr)
    if OPT.get('rstamps'): stamp(b)
    b("s_waitcnt lgkmcnt(0)\ns_barrier")
    if OPT.get('rstamps'): stamp(b)
    for t in range(9):
        for src in range(3):
            b(f"ds_read_b128 {vr(acc(*oth[3*t+src]),4)}, v19 offset:{src * 9216 + t * 1024}")
    for t, (q, n) in enumerate(mine):
        r0, r1, r2, m = acc(*oth[3*t]), acc(*oth[3*t+1]), acc(*oth[3*t+2]), acc(q, n)
        b(f"s_waitcnt lgkmcnt({min(15, 3 * (8 - t))})")
        for r in range(4): b(f"v_add_f32 v{r0+r}, v{r0+r}, v{r1+r}")
        for r in range(4): b(f"v_add_f32 v{m+r}, v{m+r}, v{r2+r}")
        for r in range(4): b(f"v_add_f32 v{m+r}, v{m+r}, v{r0+r}")
        b(f"v_cvt_pk_bf16_f32 v{24+2*t}, v{m}, v{m+1}\nv_cvt_pk_bf16_f32 v{25+2*t}, v{m+2}, v{m+3}")
        b(f"buffer_store_dwordx2 v[{24+2*t}:{25+2*t}], v{20 + q}, s[88:91], s{sOUTO} offen offset:{32*n}")
    if OPT.get('rstamps'): stamp(b)
    b("L_fini:")
    stamp_dump(b, 0, sWAVE)
    b("s_endpgm")
    b(f"""L_chk:
    s_waitcnt vmcnt(48)
    s_sub_u32 s{sO2}, s{sO2}, {28*122880}
    s_sub_u32 s{sW2}, s{sW2}, {28*36864}
    v_cmp_gt_u32 vcc, 4, v6
    s_cbranch_vccz L_chkd
    s_mov_b32 s37, 0
    L_poll:
    s_sleep 4
    buffer_load_dword v6, v{VP2}, s[{SCN}:{SCN+3}], 0 offen sc1
    s_add_u32 s37, s37, 1
    s_waitcnt vmcnt(0)
    v_cmp_gt_u32 vcc, 4, v6
    s_cbranch_vccz L_chkd
    s_cmp_lt_u32 s37, 0x20000
    s_cbranch_scc1 L_poll
    s_branch L_chkd
    L_lateld:
    s_mov_b32 s{SO2+2}, s100
    s_mov_b32 s{SW2+2}, s101
    s_mul_i32 s{sO2}, s{sWAVE}, {32*122880}
    s_mul_i32 s{sW2}, s{sWAVE}, {32*36864}
    s_mov_b32 s{sLATE}, 2
    s_mov_b32 s37, 0
    L_esp:
    s_sleep 4
    buffer_load_dword v{VCW}, v{VPE}, s[{SCN}:{SCN+3}], 0 offen sc1
    s_add_u32 s37, s37, 1
    s_waitcnt vmcnt(0)
    v_cmp_gt_u32 vcc, v{VTH}, v{VCW}
    s_cbranch_vccz L_espd
    s_cmp_lt_u32 s37, 0x20000
    s_cbranch_scc1 L_esp
    L_espd:""")
    for s_ in range(4): b.ext(p2_w(s_) + p2_o(s_) + p2_adv(s_))
    b(f"""s_waitcnt vmcnt(0)
    s_cmp_eq_u32 s{sWAVE}, 3
    s_cbranch_scc1 L_p2s3
    s_branch L_p2s4
    L_redo:
    s_mov_b32 s{sSAFE}, 1
    s_waitcnt vmcnt(0)
    s_barrier""")
    prologue_a(b)
    b("s_branch L_srdok")

def kernel1():
    b = B()
    b("attn_kernel:")
    b("s_cmp_ge_u32 s2, 256\ns_cbranch_scc1 L_end1")
    if OPT['stamps']: b("s_mov_b32 s96, 0\nv_mov_b32 v14, 0\nv_mov_b32 v15, 0")
    stamp(b)
    b("s_load_dwordx16 s[48:63], s[0:1], 0\ns_load_dwordx4 s[64:67], s[0:1], 64\ns_load_dwordx2 s[100:101], s[0:1], 96\ns_load_dwordx4 s[76:79], s[0:1], 80")
    b(f"""s_mov_b32 s97, s2
    s_and_b32 s3, s2, 7
    s_lshr_b32 s2, s2, 3""")
    warm_code(b)
    b(f"""v_lshrrev_b32 v1, 6, v0
    s_and_b32 s68, s3, 1
    s_lshl_b32 s68, s68, 2
    s_and_b32 s69, s2, 3
    s_add_u32 s68, s68, s69        ; b
    v_readfirstlane_b32 s{sWAVE}, v1
    s_bfe_u32 s69, s3, 0x10001
    s_lshl_b32 s69, s69, 3
    s_lshr_b32 s70, s2, 2
    s_add_u32 s69, s69, s70        ; hp
    s_lshr_b32 s3, s3, 2           ; blk
    s_lshl_b32 s{sWB}, s{sWAVE}, 12
    s_lshl_b32 s{sXB}, s{sWAVE}, 13
    s_mov_b32 s{sC}, {CSCALE}
    s_mov_b32 s{sC+1}, {CSCALE}
    s_mov_b32 s{sSAFE}, 0
    s_mov_b32 s{sFLAG}, 0""")
    prologue_a(b)
    b(f"""s_cmp_eq_u32 s3, 0
    s_waitcnt lgkmcnt(0)
    s_cselect_b64 s[48:49], s[48:49], s[58:59]
    s_cselect_b64 s[50:51], s[50:51], s[60:61]
    s_cselect_b64 s[52:53], s[52:53], s[62:63]
    s_cselect_b64 s[54:55], s[54:55], s[64:65]
    s_cselect_b64 s[56:57], s[56:57], s[66:67]""")
    if OPT.get('sstamps'): stamp(b)
    b(f"""s_mul_i32 s71, s68, 276480
    s_add_u32 s{SX}, s48, s71
    s_addc_u32 s{SX+1}, s49, 0
    s_mov_b32 s{SX+2}, 276480
    s_mov_b32 s{SX+3}, 0x20000
    s_lshl_b32 s71, s69, 9
    s_add_u32 s{SW}, s54, s71
    s_addc_u32 s{SW+1}, s55, 0
    s_sub_u32 s{SW+2}, 4718592, s71
    s_mov_b32 s{SW+3}, 0x20000""")
    b("L_srdok:")
    prologue_b(b)
    b(f"""s_cmp_eq_u32 s{sWAVE}, 3
    s_cbranch_scc1 L_begin3""")
    wave_code(b, 4, "4")
    b(".p2align 6")
    wave_code(b, 3, "3")
    b("L_phase2:")
    phase2(b)
    b("L_end1:\ns_endpgm\nL_codeend:")
    return b.L

def resolve_waits(L):
    out = []
    for i, x in enumerate(L):
        if x.startswith("WAITL"):
            tag = x.split()[1]
            n, T = tag[1:].split('.'); T = int(T)
            dst = set(range(AW + 8 * (T % 4), AW + 8 * (T % 4) + 8))
            cnt = 0; found = False
            for y in reversed(out):
                if y.startswith(("s_waitcnt", "WAITV")) and "lgkmcnt(0)" in y:
                    found = True; cnt = None; break
                if y.startswith("ds_"):
                    I = Ins(y)
                    if any(k == 'a' and r in dst for k, r in I.wr) or (T == 0 and 'need=X' in y):
                        found = True; break
                    cnt += 1
            assert found, x
            if cnt is not None:
                assert cnt <= 15
                out.append(f"s_waitcnt lgkmcnt({cnt})")
        else: out.append(x)
    return out

def expand_trace(L):
    def shift(line, name, it, step):
        if it == 0: return line
        def rep(m):
            k, n = m.group(1), int(m.group(2))
            if name == 'qp':
                if k == 'W': return f"W{n + step*it}"
                if k == 'X': return f"X{n + step*it//2}"
                return m.group(0)
            if k == 'KV': return f"KV{n + step*it}"
            return m.group(0)
        if ';' not in line: return line
        a, c = line.split(';', 1)
        return a + ';' + re.sub(r'\b(KV|W|X)(\d+)\b', rep, c)
    bodies = {}
    def go(i, stop):
        res = []
        while i < len(L):
            x = L[i]
            if x.startswith("LOOPBEGIN"):
                _, name, cnt, step = x.split(); cnt = int(cnt); step = int(step)
                body, j = go(i + 1, name)
                bodies[name] = (body, cnt, step)
                for it in range(cnt):
                    for y in body:
                        if y == f"LOOPEXIT {name}":
                            if it == cnt - 1: break
                            continue
                        res.append(shift(y, name, it, step))
                i = j + 1; continue
            if x.startswith("REPLAY"):
                _, name, off = x.split(); body, cnt, step = bodies[name]
                for it in range(cnt):
                    for y in body: res.append(shift(shift(y, name, it, step), name, 1, int(off)))
                i += 1; continue
            if x.startswith("LOOPEND") and x.split()[1] == stop: return res, i
            res.append(x); i += 1
        return res, i
    return go(0, None)[0]

def resolve_vm(L):
    idx = [f"{x} ;#{i}" if x.startswith("WAITV") else x for i, x in enumerate(L)]
    tr = expand_trace(idx)
    q = []; best = {}
    for x in tr:
        if x.startswith(("L_maxpass", "L_hspin", "L_espin")): break
        c = x.split(';', 1)[1] if ';' in x else ''
        if x.startswith(("buffer_", "global_")):
            if 'cond' in c: continue
            m = re.search(r'tag=(\w+)', c); q.append(m.group(1) if m else 'other')
        elif x.startswith("WAITV"):
            tags = set(re.search(r'cover=([\w,]*)', c).group(1).split(','))
            i = int(x.rsplit('#', 1)[1])
            n = 0
            for t in reversed(q):
                if t in tags: break
                n += 1
            else: n = 63
            m = re.search(r'cap=(\d+)', c)
            best[i] = min(best.get(i, 63), n, int(m.group(1)) if m else 63)
    out = []
    for i, x in enumerate(L):
        if x.startswith("WAITV"):
            a, c = x.split(';', 1)
            out.append(f"s_waitcnt vmcnt({best[i]}) {a[5:].strip()} ;{c}")
        else: out.append(x)
    return out

def check_protocol(L, label):
    tr = expand_trace(L)
    q = []; done = set(); issued = {}; pub = set(); errs = 0
    for x in tr:
        if x.startswith(("L_maxpass", "L_hspin", "L_espin")): break
        c = x.split(';', 1)[1] if ';' in x else ''
        if x.startswith("buffer_") or x.startswith("global_"):
            if 'cond' in c: continue
            m = re.search(r'tag=(\w+)', c); q.append(m.group(1) if m else 'other')
        elif x.startswith("s_waitcnt"):
            m = re.search(r'vmcnt\((\d+)\)', x)
            if m:
                n = int(m.group(1))
                while len(q) > n: done.add(q.pop(0))
            m = re.search(r'needtag=(\w+)', c)
            if m and m.group(1) in q: print(label, "ERR needtag", x); errs += 1
        elif x.startswith("s_barrier"):
            m = re.search(r'pub=([\w,]*)', c)
            if m:
                for t in m.group(1).split(','):
                    if not t: continue
                    if t in q or (t not in done and not (label == 'w3' and t[0] in 'XW')): print(label, "ERR publish not landed", t, x); errs += 1
                    pub.add(t)
        elif x.startswith("ds_read"):
            m = re.search(r'need=(\w+)', c)
            if m and m.group(1) not in pub and m.group(1) not in ('KV64',): print(label, "ERR read unpublished", x); errs += 1
        assert len(q) <= 63, ("vmcnt overflow", x)
    return errs

def burn(L):
    out = []; on = False; c = 0; k = 0
    for x in L:
        if x == 'BURNON': on = True; c = 0; continue
        if x == 'BURNOFF': on = False; continue
        out.append(x)
        if on and OPT.get('burn'):
            if x.startswith('v_mfma'): c = 0
            elif x.startswith('v_'):
                c += 1
                if c >= OPT['burn']:
                    c = 0; k += 1
                    out.append(f"{MF} v[4:7], a[{32+4*(k%8)}:{35+4*(k%8)}], a[{96+4*(k%7)}:{99+4*(k%7)}], v[4:7]")
    return out

def finish(L):
    L = burn(L)
    L = resolve_waits(L)
    return L

def strip_markers(L):
    return [x for x in L if not x.startswith(("LOOPBEGIN", "LOOPEND", "LOOPEXIT", "REPLAY"))]

DESC = """.section .rodata,"a"
.p2align 6
.amdhsa_kernel {name}
  .amdhsa_next_free_vgpr {vgpr}
  .amdhsa_next_free_sgpr 102
  .amdhsa_accum_offset 256
  .amdhsa_group_segment_fixed_size 0
  .amdhsa_kernarg_size 104
  .amdhsa_user_sgpr_count 2
  .amdhsa_user_sgpr_kernarg_segment_ptr 1
  .amdhsa_system_sgpr_workgroup_id_x 1
  .amdhsa_float_denorm_mode_32 3
.end_amdhsa_kernel
"""

def build(**kw):
    OPT.update(kw)
    k1 = finish(kernel1())
    i4 = k1.index("L_begin4:"); i3 = k1.index("L_begin3:"); iv = k1.index("L_phase2:")
    ip = k1.index("L_srdok:"); pre = k1[ip:i4]
    k1 = k1[:i4] + resolve_vm(pre + k1[i4:i3])[len(pre):] + resolve_vm(pre + k1[i3:iv])[len(pre):] + k1[iv:]
    e = check_protocol(pre + k1[i4:i3], "w4") + check_protocol(pre + k1[i3:], "w3")
    assert e == 0
    k1 = strip_markers(k1)
    k1, n1, p1 = fix_hazards(k1)
    for p in p1: print("BRANCH HAZARD", p)
    assert not p1
    hdr = open("ref.txt").read().split("; Override")[0]
    KN = NAME + "_kernel"
    k1 = [x.replace("attn_kernel", KN) for x in k1]
    out = hdr
    out += "; generated by my own schedule generator: q-projection + attention (2 heads per workgroup), hand-off, output projection\n"
    out += ("; @launch kernel=%s grid=(256,1,1) block=(256,1,1) lds=163840\n" % KN) if OPT.get('list') else "; @launch grid=(256,1,1) block=(256,1,1) lds=163840\n"
    out += '.amdgcn_target "amdgcn-amd-amdhsa--gfx950"\n.text\n'
    out += ".globl %s\n.p2align 8\n.type %s,@function\n" % (KN, KN) + "\n".join(k1) + "\n"
    out += DESC.format(name=KN, vgpr=512)
    return out, n1

if __name__ == "__main__":
    kw = {}
    for a in sys.argv[2:]:
        k, v = a.split('='); kw[k] = int(v)
    s, info = build(**kw)
    open(sys.argv[1], "w").write(s)
    print("nops inserted", info, "bytes", len(s))
```

```python
import sys, re
from asmlib import fix_hazards, Ins

NAME = "concat_heads__mha_block_cached__mha_block_cached__near_ridge"
MF = "v_mfma_f32_16x16x32_bf16"
CSCALE = 0x3e0293ee
LTHR = 0x4e800000

O_BLK = 128 * 122880
WOT_OFF = 2 * O_BLK
WOT_BLK = 128 * 36864
CNT_OFF = WOT_OFF + 2 * WOT_BLK

class B:
    def __init__(self): self.L = []
    def __call__(self, s):
        for x in s.split("\n"):
            x = x.strip()
            if x: self.L.append(x)
    def ext(self, l): self.L.extend(l)

def vr(b, n): return f"v[{b}:{b+n-1}]"
def ar(b, n): return f"a[{b}:{b+n-1}]"

def emit_slots(b, slots, gaps):
    for i, s in enumerate(slots):
        if s: b(s)
        nv = [x for x in gaps[i] if not x.startswith('v_')]
        v = [x for x in gaps[i] if x.startswith('v_')]
        for x in nv + v: b(x)

S_ = 16; P_ = 48; CI = 64; LS = 80
KA = 84
VA = 88
VWA = 105
DK0 = 96; DK1 = 97; DV0 = 98; DV1 = 99
VO = 100
VWO = 101
VWX = 102
VLN = 103
VPF = 104
VPD = 105
T0 = 108
O_ = 128
XA = 16; WA = 28; DX = 20; DW = 24
WSLOT = [49152, 114688, 131072, 147456]; sKB = 69
def AQ(q): return 32 + 64 * (q // 2) + 16 * (q % 2)
def AQ2(q): return 128 + 16 * q
AK = 0; AV = 64; ASP = 64
AX = 0; AW = 64
SX = 4; SW = 8; SK = 12; SV = 16; SO = 20; SWO = 24; SWT = 28
sWAVE = 32; sWB = 33; sKV = 34; sCNT = 35; sHEAD = 36; sSAFE = 37; sFLAG = 38
sXO = 39; sXO2 = 40; sWOFF = 41; sXB = 42; sOO = 43; sC = 44
sT = 46
sH0 = 68; sWOS = 64; sWTS = 65; sSTAMP = 72; SPF = 76; sPF = 68; sWXS = 67; sROT = 80; sLIN = 81
SCN = 48; SDB = 52; SO2 = 56; sCO = 60; sCW = 61; SIN = 84; SIF = 88; sOUT = 76; VHS = 106; VCW = 107; VONE = 104
SW2 = 80; sO2 = 98; sW2 = 99; sOUTO = 66; sOP = 67; VPE = 11; VTH = 12; VP2 = 13; VWE = 10; AST = 192; sSIG = 78; sLATE = 79

OPT = dict(nt_kv=1, nt_w=1, nt_x=1, nt_wo=1, stamps=0, warm=1, of=2, of0=2)

K2F = ['', ' nt', ' sc1', ' sc0 sc1', ' sc0', ' sc1 nt']
def fl(k): return " nt" if OPT[k] else ""

def dma(voff, srd, soff, off, flag, tag):
    return f"buffer_load_dwordx4 v{voff}, s[{srd}:{srd+3}], {soff} offen offset:{off}{flag} lds ; tag={tag}"

def kv_adv():
    if not OPT.get('rot'): return [f"s_add_u32 s{sKV}, s{sKV}, 8192"]
    return [f"s_add_u32 s{sLIN}, s{sLIN}, 8192", f"s_add_u32 s{sKV}, s{sLIN}, s{sROT}",
            f"s_and_b32 s{sKV}, s{sKV}, 0x3ffff", f"s_and_b32 s{sT+1}, s{sLIN}, 0xfffc0000", f"s_or_b32 s{sKV}, s{sKV}, s{sT+1}"]

def k_dma(tile, so=None):
    so = so or f"s{sKV}"
    return [f"s_add_u32 m0, s{sKB}, {(tile % 8) * 8192}",
            dma(DK0, SK, so, 0, fl('nt_kv'), f"KV{tile}"), dma(DK1, SK, so, 1024, fl('nt_kv'), f"KV{tile}")]
def v_dma(tile, so=None):
    so = so or f"s{sKV}"
    return [f"s_add_u32 m0, s{sKB}, {65536 + (tile % 8) * 8192}",
            dma(DV0, SV, so, 0, fl('nt_kv'), f"KV{tile}"), dma(DV1, SV, so, 1024, fl('nt_kv'), f"KV{tile}")]

def x_dma(m, nq):
    slot = 16384 if m % 2 else 81920
    out = []
    out.append(f"s_add_u32 m0, s{sXB}, {slot}")
    for j in range(4): out.append(dma(DX + j, SX, f"s{sXO}", 1024 * j, fl('nt_x'), f"X{m}"))
    out.append(f"s_add_u32 m0, s{sXB}, {slot + 4096}")
    for j in range(4 if nq == 4 else 2): out.append(dma(DX + j, SX, f"s{sXO2}", 1024 * j, fl('nt_x'), f"X{m}"))
    out.append(f"s_add_u32 s{sXO}, s{sXO}, 128")
    out.append(f"s_add_u32 s{sXO2}, s{sXO2}, 128")
    return out

def w_dma(n, nq):
    out = [f"s_add_u32 m0, s{sWB}, {WSLOT[n % 4]}"]
    for j in range(4): out.append(dma(DW + j, SW, f"s{sWOFF}", 1024 * j, fl('nt_w'), f"W{n}"))
    if n % 2 == 0: out.append(f"s_add_u32 s{sWOFF}, s{sWOFF}, 256")
    else: out.append(f"s_add_u32 s{sWOFF}, s{sWOFF}, {524288 - 256}")
    return out

def w_reads(n, T):
    sp_, a = T // 2, T % 2
    hl, sp = sp_ // 2, sp_ % 2
    out = []
    for s in range(2):
        for a2 in range(2):
            d = AW + 8 * (T % 4) + 4 * s + 2 * a2
            off = max(n % 4 - 1, 0) * 16384 + hl * 8192 + (32 * s + 4 * a2) * 128 + 8 * a
            out.append(f"ds_read_b64_tr_b16 {ar(d,2)}, v{WA + sp + (2 if n % 4 else 0)} offset:{off} ; need=W{n}")
    return out

def x_reads(m, nq):
    out = []
    for q in range(nq):
        for s in range(2):
            d = AX + 32 * (m % 2) + 8 * q + 4 * s
            out.append(f"ds_read_b128 {ar(d,4)}, v{XA + s + (0 if m % 2 else 2)} offset:{q * 2048} ; need=X{m}")
    return out

def qacc(hd, q, T):
    r = 128 + 32 * q + 4 * T
    return vr(r, 4) if hd == 0 else ar(r, 4)

def pf_load():
    return f"buffer_load_dword v{VPD}, v{VPF}, s[{SPF}:{SPF+3}], s{sPF} offen nt ; tag=PF"

def wo_dma(extra):
    out = [f"s_add_u32 m0, s{sXB}, 131072"]
    for j in range(4):
        out += [f"PRE s_add_u32 s{sT}, s{sWOS}, {8192*j}", dma(VWO, SWO, f"s{sT}", 1024 * j, fl('nt_wo'), "WO")]
    if extra: out += [f"s_add_u32 m0, s{sXB}, {131072 + 4096}", dma(VWX, SWO, "0", 0, fl('nt_wo'), "WO")]
    return out

def qproj_stage(b, n, nq, fill=None):
    hd, m = n % 2, n // 2
    nx = 8 if nq == 4 else 6
    slots = []; gaps = [[] for _ in range(64)]
    for T in range(8):
        for q in range(4):
            for s in range(2):
                if q >= nq: slots.append(None); continue
                acc = qacc(hd, q, T)
                c = "0" if (m == 0 and s == 0) else acc
                slots.append(f"{MF} {acc}, {ar(AW+8*(T%4)+4*s,4)}, {ar(AX+32*(m%2)+8*q+4*s,4)}, {c}")
    start = {3: 5, 4: 12, 5: 19, 6: 26, 7: 33}
    rd = w_reads(n, 2); gaps[0].append(rd[3])
    for T, g in start.items():
        for i, x in enumerate(w_reads(n, T)): gaps[g + i].append(x)
    if n < 17:
        for T, g in ((0, 45), (1, 53)):
            for i, x in enumerate(w_reads(n + 1, T)): gaps[g + i].append(x)
        for i, x in enumerate(w_reads(n + 1, 2)[:3]): gaps[61 + i].append(x)
    xr = []
    if n % 2 == 1 and m + 1 <= 8:
        xr = x_reads(m + 1, nq)
        for x, g in zip(xr, (9, 10, 16, 17, 23, 24, 30, 31)): gaps[g].append(x)
    for T in range(1, 8): gaps[8 * T - 1].append(f"WAITL W{n}.{T}")
    if n < 17: gaps[63].append(f"WAITL W{n+1}.0")
    req = []
    if n + 1 <= 17: req.append(f"W{n+1}")
    if n % 2 == 0 and m + 1 <= 8: req.append(f"X{m+1}")
    if n == 17: req += ["KV0", "KV1"]
    cov = list(req)
    if nq == 3 and n == 2:
        cov.append("INIT")
        gaps[45].append(f"buffer_store_dword v{VONE}, v{VLN}, s[{SIF}:{SIF+3}], 0 offen sc1 ; tag=FLAG")
    if nq == 3 and n == 12:
        gaps[45].append(f"buffer_load_dword v{VHS}, off, s[{SDB}:{SDB+3}], 0 ; tag=HS")
    gaps[43].append("WAITV lgkmcnt(0) ; cover=" + ",".join(cov))
    gaps[44].append("s_barrier ; pub=" + ",".join(req))
    def place(seq, first, step):
        g = first
        for x in seq:
            if x.startswith("buffer_"): gaps[g].append(x); g += step
            elif x.startswith("s_add_u32 m0"): gaps[g - 1].append(x)
            elif x.startswith("PRE "): gaps[g - 1].append(x[4:])
            else: gaps[min(g - step + 1, 63)].append(x)
    if n == 0: place(w_dma(2, nq) + w_dma(3, nq) + x_dma(2, nq), 1, 2)
    elif n == 1: place(k_dma(0) + v_dma(0) + kv_adv() + k_dma(1) + v_dma(1) + kv_adv(), 2, 5)
    elif n % 2 == 0 and m + 2 <= 8: place(x_dma(m + 2, nq), 2, 5)
    if n in (14, 16):
        seq = []
        for t in range(2, 6):
            seq += [f"PRE s_add_u32 s{sT}, s{sKV}, {(t - 2) * 8192}"] + (k_dma if n == 14 else v_dma)(t, f"s{sT}")
        if n == 16: seq.append(f"s_add_u32 s{sKV}, s{sKV}, 32768")
        place(seq, 2, 5)
    if OPT.get('awake') and n % 2 == 1 and 3 <= n <= 11:
        seq = []
        for t in range(OPT['awake']):
            seq += [f"PRE s_add_u32 s{sPF}, s{sPF}, 8192"] + k_dma(t % 2, f"s{sPF}") + v_dma(t % 2, f"s{sPF}")
        seq = [x.replace('tag=KV0', 'tag=DUM').replace('tag=KV1', 'tag=DUM') for x in seq]
        place(seq, 2, 40 // (4 * OPT['awake']))
    if OPT.get('awake') and n == 13:
        place([f"PRE s_mov_b32 s{sPF}, 0"] + k_dma(0, f"s{sPF}") + v_dma(0, f"s{sPF}") + [f"PRE s_mov_b32 s{sPF}, 8192"] + k_dma(1, f"s{sPF}") + v_dma(1, f"s{sPF}"), 2, 5)
    if n == OPT.get('wost', 17): place(wo_dma(True)[:OPT.get('won', 99)], 46, 4)
    if n + 4 <= 17: place(w_dma(n + 4, nq), 46, 5)
    for i_ in range(OPT.get('qslow', 0)): gaps[2 + 2 * i_].append('v_nop\nv_nop\nv_nop\nv_nop\nv_nop\nv_nop')
    if fill is not None:
        for g in range(20 if n == 16 else 0, 64):
            if slots[g] is None: continue
            for _ in range(2):
                if fill: gaps[g].append(fill.pop(0))
    emit_slots(b, slots, gaps)
    if OPT.get('qstamps'): stamp(b)

def k_reads(unit, tile):
    out = []
    for kt in range(2):
        for s in range(4):
            f = 4 * kt + s
            out.append(f"ds_read_b128 {ar(AK+4*f,4)}, v{KA + s} offset:{unit * 8192 + kt * 4096} ; need=KV{tile}")
    return out

def v_reads(unit, tile):
    out = []
    for T in range(8):
        th, tl = T // 4, T % 4
        for a in range(2):
            out.append(f"ds_read_b64_tr_b16 {ar(AV+4*T+2*a,2)}, v{VA + T} offset:{unit * 8192 + a * 4096} ; need=KV{tile}")
    return out

import sched, sched2
LM = 1
for a_ in sys.argv[2:]:
    if a_.startswith('lm='): LM = int(a_[3:])
if LM:
    NS = 68
    V_GAPS = list(range(26, 42)); K_GAPS = list(range(50, 58)); D_GAPS = [3, 11, 17, 23]
    SM = sched2.schedule(V_GAPS + K_GAPS, D_GAPS)
else:
    NS = 64
    V_GAPS = list(range(25, 41)); K_GAPS = list(range(48, 56)); D_GAPS = [1, 9, 17, 23]
    SM = sched.schedule(4, V_GAPS + K_GAPS, D_GAPS)
BG = K_GAPS[0] - 1
LA = 108; ONES = 124
def sm_text(kind, q, e):
    s = S_ + 8 * q + e
    if kind == 'exp': return f"v_exp_f32 v{s}, v{s}"
    if kind == 'add': return f"v_add_f32 v{LS+q}, v{LS+q}, v{s}"
    return f"v_cvt_pk_bf16_f32 v{P_+4*q+e//2}, v{s-1}, v{s}"
def sm_items(nq, lo, hi):
    it = [(g, k[0] == 'exp', k) for k, g in SM.items() if k[1] < nq and lo <= g < hi]
    it.sort(key=lambda t: (t[0] % NS, t[1], -t[0]))
    return [(g, k) for g, _, k in it]

def qk(q, kt, s, czero=False):
    d = vr(S_ + 8 * q + 4 * kt, 4)
    c = d if s else ("0" if czero else vr(CI + 4 * q, 4))
    return f"{MF} {d}, {ar(AK+4*(4*kt+s),4)}, {ar(AQ(q)+4*s,4)}, {c}"

def pv(q, T, czero=False):
    d = vr(O_ + 32 * q + 4 * T, 4)
    return f"{MF} {d}, {ar(AV+4*T,4)}, {vr(P_+4*q,4)}, {'0' if czero else d}"

def lsm(q, czero=False):
    d = vr(LA + 4 * q, 4)
    return f"{MF} {d}, {vr(ONES,4)}, {vr(P_+4*q,4)}, {'0' if czero else d}"

def attn_stage(b, k, nq, extra=None, fill=None):
    kk = k % 32; u = k % 8
    slots = []; gaps = [[] for _ in range(NS)]
    for q in (0, 1):
        for kt in range(2):
            for s in range(4): slots.append(qk(q, kt, s))
    for q in (2, 3):
        for T in range(8): slots.append(pv(q, T, kk == 1) if (q < nq and kk > 0) else None)
        if LM: slots.append(lsm(q, kk == 1) if (q < nq and kk > 0) else None)
    for q in (2, 3):
        for kt in range(2):
            for s in range(4): slots.append(qk(q, kt, s) if q < nq else None)
    for q in (0, 1):
        for T in range(8): slots.append(pv(q, T, kk == 0))
        if LM: slots.append(lsm(q, kk == 0))
    for g, key in sm_items(nq, 0, 2 * NS if kk > 0 else NS): gaps[g % NS].append(sm_text(*key))
    for g, x in zip(V_GAPS, v_reads(u, k)): gaps[g].append(x)
    DIST = 6
    if k % 2 == 1:
        gaps[BG - 1].append(f"WAITV lgkmcnt(0) ; cover=KV{k+1},KV{k+2}" + (",WT" if kk == 11 else ""))
        gaps[BG].append(f"s_barrier ; pub=KV{k+1},KV{k+2}")
    else:
        gaps[BG].append("s_waitcnt lgkmcnt(0)")
    for g, x in zip(K_GAPS, k_reads((u + 1) % 8, k + 1)): gaps[g].append(x)
    gaps[NS - 1].append("s_waitcnt lgkmcnt(0)")
    kd, vd = k_dma(k + DIST), v_dma(k + DIST)
    gaps[D_GAPS[0] - 1].append(kd[0]); gaps[D_GAPS[2] - 1].append(vd[0])
    for x, g in zip(kd[1:] + vd[1:], D_GAPS): gaps[g].append(x)
    gaps[44] += kv_adv()
    for i_ in range(OPT.get('slow', 0)): gaps[2 + 2 * i_].append('v_nop\nv_nop\nv_nop\nv_nop')
    if extra:
        for g, x in extra: gaps[g].append(x)
    if fill:
        cost = lambda x: 2 if x.startswith('v_exp') else (1 if x.startswith(('v_', 'ds_', 'buffer_')) else 0)
        room = [max(0, 2 - sum(cost(x) for x in gaps[g])) if slots[g] else 0 for g in range(NS)]
        left = len(fill) - sum(room)
        live = [g for g in range(NS) if slots[g]]
        for i_ in range(max(left, 0)): room[live[(i_ * len(live)) // left]] += 1
        for g in range(NS):
            for _ in range(room[g]):
                if fill: gaps[g].append(fill.pop(0))
        assert not fill
    if OPT.get('astamps') and k % 2 == 0: stamp(b)
    if OPT.get('dmaonly'):
        slots = [None] * NS
        gaps = [[x for x in g if not x.startswith(('v_', 'ds_'))] for g in gaps]
    emit_slots(b, slots, gaps)

def xlane_reduce(b, reg, tmp, op):
    b(f"v_mov_b32 v{tmp}, v{reg}")
    b(f"v_permlane32_swap_b32 v{reg}, v{tmp}")
    b(f"{op} v{reg}, v{reg}, v{tmp}")
    b(f"v_mov_b32 v{tmp}, v{reg}")
    b(f"v_permlane16_swap_b32 v{reg}, v{tmp}")
    b(f"{op} v{reg}, v{reg}, v{tmp}")

def xlane_reduce_multi(b, regs, tmps, op):
    for sw in ("v_permlane32_swap_b32", "v_permlane16_swap_b32"):
        for r, t in zip(regs, tmps): b(f"v_mov_b32 v{t}, v{r}")
        for r, t in zip(regs, tmps): b(f"{sw} v{r}, v{t}")
        for r, t in zip(regs, tmps): b(f"{op} v{r}, v{r}, v{t}")

def stamp(b, idx=None):
    if not OPT['stamps']: return
    b(f"s_memtime s[{sSTAMP}:{sSTAMP+1}]\ns_memrealtime s[{sSTAMP+2}:{sSTAMP+3}]\ns_waitcnt lgkmcnt(0)")
    b(f"s_mov_b32 s95, m0\ns_mov_b32 m0, s96\nv_writelane_b32 v14, s{sSTAMP}, m0\nv_writelane_b32 v15, s{sSTAMP+2}, m0\ns_mov_b32 m0, s95\ns_add_u32 s96, s96, 1")

def stamp_dump(b, k, wave):
    if not OPT['stamps']: return
    b("s_waitcnt vmcnt(0)")
    stamp(b)
    if OPT['stamps'] == 2:
        b("s_load_dwordx2 s[92:93], s[0:1], 88\ns_waitcnt lgkmcnt(0)")
        b(f"s_cmp_lg_u32 s{wave}, 0\ns_cbranch_scc1 L_end{k+1}\ns_and_b32 s94, s97, 31\ns_cmp_lg_u32 s94, 5\ns_cbranch_scc1 L_end{k+1}")
        b(f"s_add_u32 s88, s92, {OPT.get('dbgoff',0)*(1-k)}\ns_addc_u32 s89, s93, 0\ns_mov_b32 s90, 256\ns_mov_b32 s91, 0x20000")
        sel = [0, 2, 3, 6, 7, 9, 10, 11] if k == 0 else [0, 1, 2, 3]
        b("s_mov_b64 exec, 1")
        for i, ix in enumerate(sel):
            b(f"v_readlane_b32 s94, v15, {ix}\ns_nop 3")
            if i == 0 and k == 0: b("s_not_b32 s94, s94")
            b(f"v_mov_b32 v1, s94\nv_mov_b32 v2, {4*(i + (0 if k == 0 else 8))}\nbuffer_atomic_umax v1, v2, s[88:91], 0 offen")
        return
    b("s_load_dwordx2 s[92:93], s[0:1], 96\ns_waitcnt lgkmcnt(0)")
    b(f"s_add_u32 s88, s92, {(48+k)*1024*1024}\ns_addc_u32 s89, s93, 0\ns_mov_b32 s90, 0x100000\ns_mov_b32 s91, 0x20000")
    b(f"s_lshl_b32 s94, s97, 2\ns_add_u32 s94, s94, s{wave}\ns_lshl_b32 s94, s94, 9")
    b("v_and_b32 v1, 63, v0\nv_lshlrev_b32 v1, 3, v1")
    b("buffer_store_dwordx2 v[14:15], v1, s[88:91], s94 offen")

def persist_regs(b):
    lane = T0; t1 = T0 + 1; t2 = T0 + 2; t3 = T0 + 3; g_ = T0 + 4; ihi = T0 + 5; i8 = T0 + 6; i16 = T0 + 7; r_ = T0 + 8; c4 = T0 + 9
    b(f"""v_and_b32 v{lane}, 63, v0
    v_lshrrev_b32 v{g_}, 4, v{lane}
    v_lshrrev_b32 v{ihi}, 3, v{lane}
    v_and_b32 v{i8}, 7, v{lane}
    v_and_b32 v{i16}, 15, v{lane}
    v_lshrrev_b32 v{r_}, 2, v{i16}
    v_and_b32 v{c4}, 3, v{lane}
    v_lshlrev_b32 v{VLN}, 4, v{lane}
    s_add_u32 s71, s63, s{sWB}
    v_add_u32 v{VO}, s71, v{VLN}""")
    b(f"""s_lshl_b32 s70, s{sWAVE}, 11
    v_lshlrev_b32 v{t1}, 8, v{g_}
    v_add_u32 v{t1}, s70, v{t1}
    s_and_b32 s70, s{sWAVE}, 1
    s_lshl_b32 s70, s70, 3
    v_xor_b32 v{t2}, v{i16}, v{g_}
    v_xor_b32 v{t2}, s70, v{t2}
    v_lshl_add_u32 v{DK0}, v{t2}, 4, v{t1}
    v_xor_b32 v{DK1}, 64, v{DK0}
    v_lshlrev_b32 v{t2}, 1, v{g_}
    v_xor_b32 v{t3}, v{t2}, v{i16}
    v_lshl_add_u32 v{DV0}, v{t3}, 4, v{t1}
    v_xor_b32 v{DV1}, 128, v{DV0}""")
    b(f"""v_mul_u32_u24 v{t1}, 1152, v{ihi}
    v_lshl_add_u32 v{t1}, v{i8}, 4, v{t1}
    s_lshl_b32 s70, s{sWAVE}, 7
    v_add_u32 v{VWO}, s70, v{t1}
    v_lshrrev_b32 v{t1}, 1, v{lane}
    v_mul_u32_u24 v{t1}, 1152, v{t1}
    v_and_b32 v{t2}, 1, v{lane}
    v_lshl_add_u32 v{t1}, v{t2}, 4, v{t1}
    s_lshl_b32 s70, s{sWAVE}, 5
    s_add_u32 s70, s70, 1024
    v_add_u32 v{VWX}, s70, v{t1}""")
    b(f"""v_xor_b32 v{t2}, v{g_}, v{i16}
    v_lshlrev_b32 v{t2}, 4, v{t2}
    v_lshl_add_u32 v{KA}, v{i16}, 8, v{t2}""")
    for s_ in range(1, 4): b(f"v_xor_b32 v{KA+s_}, {64*s_}, v{KA}")
    b(f"""v_lshl_add_u32 v{t2}, v{g_}, 2, v{r_}
    v_lshlrev_b32 v{t1}, 8, v{t2}
    v_and_b32 v{t2}, 7, v{t2}
    v_lshl_add_u32 v{t1}, v{t2}, 5, v{t1}
    v_lshl_add_u32 v{t1}, v{c4}, 3, v{t1}
    v_add_u32 v{VA}, 0x10000, v{t1}""")
    for T in range(1, 8): b(f"v_xor_b32 v{VA+T}, {32*T}, v{VA}")
    b(f"""v_lshl_add_u32 v{t2}, v{g_}, 2, v{r_}
    v_lshlrev_b32 v{t1}, 7, v{t2}
    v_lshl_add_u32 v{t1}, v{c4}, 3, v{t1}
    s_add_u32 s70, s{sXB}, 131072
    v_add_u32 v{VWA}, s70, v{t1}
    s_add_u32 s70, s70, 4096
    v_lshlrev_b32 v{t1}, 3, v{lane}
    v_add_u32 v{VWE}, s70, v{t1}""")

def late_setup(b, sfx):
    b(f"s_cmp_lg_u32 s{sSAFE}, 0\ns_cbranch_scc1 L_late{sfx}")
    b(f"""s_lshl_b32 s71, s68, 4
    s_add_u32 s71, s71, s69
    s_lshl_b32 s70, s71, 19
    s_add_u32 s{SK}, s50, s70
    s_addc_u32 s{SK+1}, s51, 0
    s_mov_b32 s{SK+2}, 524288
    s_mov_b32 s{SK+3}, 0x20000
    s_add_u32 s{SV}, s52, s70
    s_addc_u32 s{SV+1}, s53, 0
    s_mov_b32 s{SV+2}, 524288
    s_mov_b32 s{SV+3}, 0x20000
    s_mul_i32 s70, s3, {O_BLK}
    s_add_u32 s{SO}, s100, s70
    s_addc_u32 s{SO+1}, s101, 0
    s_mov_b32 s{SO+2}, {O_BLK}
    s_mov_b32 s{SO+3}, 0x20000
    s_mul_i32 s70, s71, 36864
    s_add_u32 s{SWO}, s56, s70
    s_addc_u32 s{SWO+1}, s57, 0
    s_mov_b32 s{SWO+2}, 36864
    s_mov_b32 s{SWO+3}, 0x20000
    s_mul_i32 s71, s3, {WOT_BLK}
    s_add_u32 s70, s70, s71
    s_add_u32 s70, s70, {WOT_OFF}
    s_add_u32 s{SWT}, s100, s70
    s_addc_u32 s{SWT+1}, s101, 0
    s_mov_b32 s{SWT+2}, 36864
    s_mov_b32 s{SWT+3}, 0x20000
    s_mul_i32 s62, s69, {8*122880}
    s_mul_i32 s63, s68, 15360        ; b*15*1024
    s_add_u32 s{SCN}, s100, {CNT_OFF}
    s_addc_u32 s{SCN+1}, s101, 0
    s_mov_b32 s{SCN+2}, 24576
    s_mov_b32 s{SCN+3}, 0x20000
    s_mov_b64 s[{SDB}:{SDB+1}], s[78:79]
    s_mov_b32 s{SDB+2}, 256
    s_mov_b32 s{SDB+3}, 0x20000
    s_mov_b64 s[{SIN}:{SIN+1}], s[{SCN}:{SCN+1}]
    s_mov_b32 s{SIN+3}, 0x20000
    s_mov_b64 s[{SIF}:{SIF+1}], s[78:79]
    s_mov_b32 s{SIF+3}, 0x20000
    s_lshl_b32 s70, s3, 3
    s_add_u32 s70, s70, s68
    s_lshl_b32 s{sCO}, s70, 2
    s_lshr_b32 s71, s69, 2
    s_add_u32 s{sCO}, s{sCO}, s71
    s_lshl_b32 s{sCO}, s{sCO}, 7
    s_lshr_b32 s{sCW}, s70, 1
    s_lshl_b32 s{sCW}, s{sCW}, 7
    s_add_u32 s{sCW}, s{sCW}, 8192
    s_mul_i32 s68, s2, 43
    s_lshr_b32 s68, s68, 8
    s_mul_i32 s69, s68, 6
    s_sub_u32 s69, s2, s69             ; nt
    s_and_b32 s70, s97, 3
    s_lshl_b32 s78, s3, 2
    s_add_u32 s78, s78, s70
    s_lshl_b32 s78, s78, 1             ; blk*8 + 2x
    s_cmp_ge_u32 s68, 3
    s_addc_u32 s79, s78, 0
    s_cmp_ge_u32 s68, 2
    s_addc_u32 s78, s78, 0
    s_lshl_b32 s78, s78, 2
    s_lshl_b32 s79, s79, 2
    s_add_u32 s78, s78, s{sWAVE}
    s_add_u32 s79, s79, s{sWAVE}
    s_lshl_b32 s78, s78, 7
    s_lshl_b32 s79, s79, 7
    s_mul_i32 s70, s70, 5
    s_add_u32 s68, s68, s70            ; mt
    s_mul_i32 s70, s3, {O_BLK}
    s_mul_i32 s71, s68, 6144
    s_add_u32 s70, s70, s71
    s_add_u32 s{SO2}, s100, s70
    s_addc_u32 s{SO2+1}, s101, 0
    s_sub_u32 s{SO2+2}, {O_BLK}, s71
    s_mov_b32 s{SO2+3}, 0x20000
    s_mul_i32 s70, s3, {WOT_BLK}
    s_mul_i32 s71, s69, 6144
    s_add_u32 s70, s70, s71
    s_add_u32 s70, s70, {WOT_OFF}
    s_add_u32 s{SW2}, s100, s70
    s_addc_u32 s{SW2+1}, s101, 0
    s_sub_u32 s{SW2+2}, {WOT_BLK}, s71
    s_mov_b32 s{SW2+3}, 0x20000
    s_cmp_ge_u32 s97, 240
    s_cselect_b32 s{SO2+2}, 0, s{SO2+2}
    s_cselect_b32 s{SW2+2}, 0, s{SW2+2}
    s_mov_b32 s100, s{SO2+2}
    s_mov_b32 s101, s{SW2+2}
    s_lshr_b32 s70, s{sWAVE}, 1
    s_mul_i32 s70, s70, {48*2304}
    s_mul_i32 s{sOUTO}, s68, {96*2304}
    s_add_u32 s{sOUTO}, s{sOUTO}, s70
    s_mul_i32 s70, s3, 1152
    s_add_u32 s{sOUTO}, s{sOUTO}, s70
    s_mul_i32 s70, s69, 192
    s_add_u32 s{sOUTO}, s{sOUTO}, s70
    s_and_b32 s70, s{sWAVE}, 1
    s_mul_i32 s70, s70, 96
    s_add_u32 s{sOUTO}, s{sOUTO}, s70
    s_lshl_b32 s70, s3, 2
    s_add_u32 s70, s70, s{sWAVE}
    s_lshl_b32 s70, s70, 7
    s_add_u32 s70, s70, 8192
    v_and_b32 v1, 1, v0
    v_mov_b32 v{VP2}, s78
    v_mov_b32 v2, s79
    v_cmp_eq_u32 vcc, 1, v1
    v_and_b32 v1, 2, v0
    v_mov_b32 v3, s70
    v_cndmask_b32 v{VP2}, v{VP2}, v2, vcc
    v_cmp_eq_u32 vcc, 2, v1
    v_add_u32 v{VPE}, 16384, v{VP2}
    v_mov_b32 v{VTH}, 4
    v_cndmask_b32 v{VPE}, v{VPE}, v3, vcc
    v_mov_b32 v3, 32
    v_cndmask_b32 v{VTH}, v{VTH}, v3, vcc
    s_mov_b32 s{sSIG}, 0""")
    b(f"L_late{sfx}:")
    b(f"""s_or_b32 s70, s97, s{sSAFE}
    s_cmp_eq_u32 s70, 0
    s_cselect_b32 s{SIN+2}, 24576, 0
    s_cselect_b32 s{SIF+2}, 4, 0
    s_mov_b32 s{sOO}, s62
    s_mov_b32 s{sLATE}, 0
    s_mov_b32 s{SO2+2}, s100
    s_mov_b32 s{SW2+2}, s101
    s_mul_i32 s{sO2}, s{sWAVE}, {32*122880}
    s_mul_i32 s{sW2}, s{sWAVE}, {32*36864}
    s_mov_b32 s{sWOS}, 0
    s_mov_b32 s{sWTS}, s{sWB}
    s_mov_b32 s{sPF}, 0x40000
    s_lshl_b32 s{sKB}, s{sWAVE}, 11""")

def warm_code(b):
    if not OPT.get('warm'): return
    b(f"""s_getpc_b64 s[70:71]
    L_pc:
    s_sub_u32 s70, s70, L_pc-attn_kernel
    s_subb_u32 s71, s71, 0
    v_lshrrev_b32 v2, 3, v0
    v_and_b32 v2, 31, v2
    v_lshl_add_u32 v2, s2, 5, v2
    v_lshlrev_b32 v2, 7, v2
    v_min_u32 v2, L_codeend-attn_kernel-4, v2
    v_mov_b32 v3, s71
    v_add_co_u32 v2, vcc, s70, v2
    v_addc_co_u32 v3, vcc, 0, v3, vcc
    global_load_dword v4, v[2:3], off""")

def prologue_a(b):
    lane = T0; t1 = T0 + 1; t2 = T0 + 2; t3 = T0 + 3; g_ = T0 + 4; ihi = T0 + 5; i8 = T0 + 6
    b(f"""v_and_b32 v{lane}, 63, v0
    v_lshrrev_b32 v{g_}, 4, v{lane}
    v_lshrrev_b32 v{ihi}, 3, v{lane}
    v_and_b32 v{i8}, 7, v{lane}""")
    b(f"s_lshl_b32 s{sT}, s{sWAVE}, 6")
    b(f"v_add_u32 v{t1}, s{sT}, v{ihi}")
    b(f"v_mul_u32_u24 v{t1}, 1152, v{t1}")
    for j in range(4):
        b(f"v_xor_b32 v{t2}, {4*(j%2)}, v{g_}")
        b(f"v_xor_b32 v{t2}, v{t2}, v{i8}")
        b(f"v_lshl_add_u32 v{t2}, v{t2}, 4, v{t1}")
        b(f"v_add_u32 v{DX+j}, {8*j*1152 - 1024*j}, v{t2}")
    b(f"""s_and_b32 s{sT}, s{sWAVE}, 1
    s_lshl_b32 s{sT}, s{sT}, 18
    s_lshr_b32 s{sT+1}, s{sWAVE}, 1
    s_lshl_b32 s{sT+1}, s{sT+1}, 7
    s_add_u32 s{sT}, s{sT}, s{sT+1}
    v_lshlrev_b32 v{t1}, 13, v{ihi}
    v_add_u32 v{t1}, s{sT}, v{t1}
    v_lshrrev_b32 v{t2}, 2, v{i8}
    v_xor_b32 v{t2}, v{t2}, v{g_}
    v_and_b32 v{t2}, 1, v{t2}
    v_lshl_add_u32 v{t1}, v{t2}, 6, v{t1}
    v_and_b32 v{t2}, 3, v{i8}
    v_lshl_add_u32 v{t1}, v{t2}, 4, v{t1}""")
    for j in range(4): b(f"v_add_u32 v{DW+j}, {8*j*8192 - 1024*j}, v{t1}")
    b(f"""s_mov_b32 s{sXO}, 0
    s_mov_b32 s{sXO2}, 36864
    s_mov_b32 s{sWOFF}, 0
    s_mov_b32 s{sKV}, 0
    s_mov_b32 s{sHEAD}, 0""")

def prologue_b(b):
    lane = T0; t1 = T0 + 1; t2 = T0 + 2; t3 = T0 + 3; g_ = T0 + 4; ihi = T0 + 5; i8 = T0 + 6
    if OPT.get('sstamps'): stamp(b)
    b.ext(x_dma(0, 4)); b.ext(w_dma(0, 4))
    if OPT.get('sstamps'): stamp(b)
    if OPT.get('xw'):
        pf = K2F[OPT.get('xwf', 0)]
        b(f"""s_lshr_b32 s70, s2, 2
        s_mul_i32 s70, s70, 270
        s_mul_i32 s71, s{sWAVE}, 68
        s_add_u32 s70, s70, s71
        s_lshl_b32 s70, s70, 7
        v_lshlrev_b32 v5, 7, v{lane}
        buffer_load_dword v6, v5, s[{SX}:{SX+3}], s70 offen{pf}
        s_and_b32 s70, s2, 3
        s_lshl_b32 s70, s70, 2
        s_add_u32 s70, s70, s{sWAVE}
        s_lshl_b32 s70, s70, 13
        v_lshrrev_b32 v5, 2, v{lane}
        v_lshlrev_b32 v5, 17, v5
        v_and_b32 v7, 3, v{lane}
        v_lshl_add_u32 v5, v7, 7, v5
        buffer_load_dword v6, v5, s[{SW}:{SW+3}], s70 offen{pf}
        s_add_u32 s70, s70, {256*8192}
        buffer_load_dword v6, v5, s[{SW}:{SW+3}], s70 offen{pf}
        s_add_u32 s70, s70, {256*8192}
        buffer_load_dword v6, v5, s[{SW}:{SW+3}], s70 offen{pf}""")
    late_setup(b, "")
    persist_regs(b)
    b(f"""v_mov_b32 v{VONE}, 1
    s_and_b32 s70, s{sWAVE}, 1
    s_mul_i32 s70, s70, 3072
    s_sub_u32 s71, 3072, s70
    v_add_u32 v{VPW}, s70, v{VLN}
    v_add_u32 v{VPW+1}, s71, v{VLN}
    s_lshr_b32 s70, s{sWAVE}, 1
    s_mul_i32 s70, s70, 3072
    s_sub_u32 s71, 3072, s70
    v_add_u32 v{VPO}, s70, v{VLN}
    v_add_u32 v{VPO+1}, s71, v{VLN}""")
    i16 = T0 + 7; r_ = T0 + 8; c4 = T0 + 9
    b(f"""v_and_b32 v{i16}, 15, v{lane}
    v_lshrrev_b32 v{r_}, 2, v{i16}
    v_and_b32 v{c4}, 3, v{lane}
    v_lshlrev_b32 v{t1}, 7, v{i16}
    v_add_u32 v{t1}, s{sXB}, v{t1}
    v_add_u32 v{t1}, 16384, v{t1}
    v_lshrrev_b32 v{t3}, 1, v{i16}""")
    for s in range(2):
        b(f"v_xor_b32 v{t2}, {4*s}, v{g_}")
        b(f"v_xor_b32 v{t2}, v{t2}, v{t3}")
        b(f"v_lshl_add_u32 v{XA+s}, v{t2}, 4, v{t1}\nv_add_u32 v{XA+2+s}, 65536, v{XA+s}")
    b(f"""v_lshl_add_u32 v{t1}, v{g_}, 3, v{r_}
    v_lshlrev_b32 v{t1}, 7, v{t1}
    v_lshl_add_u32 v{t1}, v{c4}, 4, v{t1}
    v_add_u32 v{t1}, 49152, v{t1}
    v_lshrrev_b32 v{t3}, 1, v{r_}""")
    for sp in range(2):
        b(f"v_xor_b32 v{t2}, {sp}, v{t3}")
        b(f"v_lshl_add_u32 v{WA+sp}, v{t2}, 6, v{t1}\nv_add_u32 v{WA+2+sp}, 65536, v{WA+sp}")
    if OPT.get('sstamps'): stamp(b)
    b.ext(w_dma(1, 4)); b.ext(x_dma(1, 4))

def wave_code(b, nq, sfx):
    nx = 8 if nq == 4 else 6
    b(f"L_begin{sfx}:")
    if nq == 3:
        b(f"v_mov_b32 v{VHS}, 0\nv_lshlrev_b32 v{VCW}, 3, v{VLN}")
        b(f"buffer_store_dword v{VHS}, v{VCW}, s[{SIN}:{SIN+3}], 0 offen sc1 ; tag=INIT")
        b(f"s_mov_b32 s{sT}, 8192\nbuffer_store_dword v{VHS}, v{VCW}, s[{SIN}:{SIN+3}], s{sT} offen sc1 ; tag=INIT")
        b(f"s_mov_b32 s{sT}, 16384\nbuffer_store_dword v{VHS}, v{VCW}, s[{SIN}:{SIN+3}], s{sT} offen sc1 ; tag=INIT")
    stamp(b, 0)
    b("WAITV ; cover=X0,W0")
    b("s_barrier ; pub=X0,W0")
    b.ext(x_reads(0, nq))
    for T in (0, 1): b.ext(w_reads(0, T))
    b.ext(w_reads(0, 2)[:3])
    b("WAITL W0.0")
    stamp(b, 1)
    for n in range(0, 4): qproj_stage(b, n, nq)
    b(f"s_mov_b32 s{sCNT}, 0")
    b(f".p2align 3\nL_qp{sfx}:")
    b("LOOPBEGIN qp 2 4")
    for n in range(4, 8): qproj_stage(b, n, nq)
    b(f"s_add_u32 s{sCNT}, s{sCNT}, 1\ns_cmp_lt_u32 s{sCNT}, 2\ns_cbranch_scc1 L_qp{sfx}")
    b("LOOPEND qp")
    fill = []; post = []
    for sp in range(4):
        for q in range(nq):
            rs = [128 + 32 * q + 8 * sp + 2 * i_ for i_ in range(4)]
            for r in rs: fill += [f"v_mul_f32 v{r}, s{sC}, v{r}", f"v_mul_f32 v{r+1}, s{sC}, v{r+1}"]
            for r in rs: fill.append(f"v_cvt_pk_bf16_f32 v{r}, v{r}, v{r+1}")
            for i_, r in enumerate(rs): fill.append(f"v_accvgpr_write_b32 a{AQ(q) + 4*sp + i_}, v{r}")
    for n in range(12, 18): qproj_stage(b, n, nq, fill if n >= 16 else None)
    stamp(b, 2)
    conv2 = []
    for q in range(nq):
        for h in range(8):
            r = 128 + 32 * q + 4 * h
            conv2 += [f"v_accvgpr_read_b32 v{4+i_}, a{r+i_}" for i_ in range(4)]
            conv2 += [f"v_mul_f32 v{4+i_}, s{sC}, v{4+i_}" for i_ in range(4)]
            conv2 += ["v_cvt_pk_bf16_f32 v4, v4, v5", "v_cvt_pk_bf16_f32 v6, v6, v7",
                      f"v_accvgpr_write_b32 a{AQ2(q)+2*h}, v4", f"v_accvgpr_write_b32 a{AQ2(q)+2*h+1}, v6"]
    def pre_mfma(): return [qk(q, 0, s_, czero=True) for q in range(nq) for s_ in range(4)]
    def pre_max():
        t = B()
        for q in range(nq):
            s_ = S_ + 8 * q
            t(f"v_max3_f32 v{s_}, v{s_}, v{s_+1}, v{s_+2}")
        for q in range(nq):
            s_ = S_ + 8 * q
            t(f"v_max_f32 v{s_}, v{s_}, v{s_+3}")
        xlane_reduce_multi(t, [S_ + 8 * q for q in range(nq)], [T0 + q for q in range(nq)], "v_max_f32")
        for q in range(nq):
            for r in range(4): t(f"v_sub_f32 v{CI+4*q+r}, 0, v{S_+8*q}")
        return t.L
    def weave(mf, st, per):
        for x in mf:
            b(x)
            for _ in range(per):
                if st: b(st.pop(0))
    def zipper(a_, b_, ra, rb):
        out = []
        while a_ or b_:
            for _ in range(ra):
                if a_: out.append(a_.pop(0))
            for _ in range(rb):
                if b_: out.append(b_.pop(0))
        return out
    AWO = 192 if nq == 4 else 224
    def wo_reads(extra):
        out = [f"ds_read_b64_tr_b16 {ar(AWO+4*tl+2*a,2)}, v{VWA} offset:{2048*a + 32*tl}" for tl in range(4) for a in range(2)]
        if extra: out += [f"ds_read_b64_tr_b16 {ar(AWO+16+2*a,2)}, v{VWE} offset:{512*a}" for a in range(2)]
        return out
    def wo_stores(extra):
        out = [f"buffer_store_dwordx4 {ar(AWO+4*tl,4)}, v{VLN}, s[{SWT}:{SWT+3}], s{sWTS} offen offset:{1024*tl} sc1 ; tag=WT" for tl in range(4)]
        if extra: out.append(f"buffer_store_dwordx4 {ar(AWO+16,4)}, v{VLN}, s[{SWT}:{SWT+3}], s{sT+1} offen sc1 ; tag=WT")
        return out
    b.ext(k_reads(0, 0))
    b.ext(fill)
    b(f"v_and_b32 v4, 3, v0\nv_mov_b32 v5, 0x3f803f80\nv_cmp_eq_u32 vcc, 0, v4")
    for i_ in range(4): b(f"v_cndmask_b32 v{ONES+i_}, 0, v5, vcc")
    b("s_waitcnt lgkmcnt(0)")
    b.ext(pre_mfma())
    b.ext(pre_max())
    stamp(b, 3)
    for i_ in range(OPT.get('pause', 0)): b('s_sleep 32')
    adv8 = lambda x: x
    def head_start(hd):
        b(f"s_cmp_lg_u32 s{sSAFE}, 0\ns_cbranch_scc1 L_maxpass{sfx}\nL_maxdone{hd}{sfx}:")
        if not LM:
            for q in range(nq): b(f"v_mov_b32 v{LS+q}, 0")
        stamp(b)
    head_start(0)
    per = -(-len(conv2) // 8)
    for k in range(8):
        ex = []
        if k == 6:
            ex = [(3, "WAITV ; cover=WO,HS")] + list(zip((4, 5, 6, 7, 8, 42, 43, 44, 45, 46), wo_reads(True)))
            if nq == 3: ex.append((47, f"v_readfirstlane_b32 s{sT}, v{VHS}\ns_cmp_eq_u32 s{sT}, 0\ns_cbranch_scc1 L_hspin\nL_hsok:"))
        if k == 7:
            ex = [(0, f"s_lshl_b32 s{sT+1}, s{sWAVE}, 10"), (1, f"s_add_u32 s{sT+1}, s{sT+1}, 32768")]
            ex += list(zip((4, 5, 6, 7, 8), wo_stores(True)))
            ex += [(9, f"s_add_u32 s{sWOS}, s{sWOS}, 512"), (10, f"s_add_u32 s{sWTS}, s{sWTS}, 16384")]
            g = 29
            for x in wo_dma(False):
                if x.startswith("buffer_"): ex.append((g, x)); g += 4
                else: ex.append((g - 1, x.replace("PRE ", "")))
        attn_stage(b, k, nq, ex, fill=[conv2.pop(0) for _ in range(min(per, len(conv2)))])
    b(f"L_atin{sfx}:")
    b(f"s_mov_b32 s{sCNT}, 0")
    b(f".p2align 3\nL_at{sfx}:")
    b("LOOPBEGIN at 3 8")
    for k in range(8, 16):
        ex = []
        if k == 11 and nq == 3:
            ex = [(59, f"""s_xor_b32 s{sT+1}, s{sHEAD}, 1
            s_or_b32 s{sT}, s{sCNT}, s{sT+1}
            s_cbranch_scc0 L_sig
            L_nosig:""")]
        if k == 13: ex = [(4, f"s_add_u32 s{sT}, s{sCNT}, s{sHEAD}"), (5, f"s_cmp_lt_u32 s{sT}, 3"), (6, f"""s_cbranch_scc1 L_nopoll{sfx}
            buffer_load_dword v{VCW}, v{VPE}, s[{SCN}:{SCN+3}], 0 offen sc1 ; cond
            L_nopoll{sfx}:""")]
        if k == 15: ex = [(NS - 4, f"s_add_u32 s{sCNT}, s{sCNT}, 1"), (NS - 2, f"s_cmp_lt_u32 s{sCNT}, 3")]
        attn_stage(b, k, nq, ex)
    b(f"s_cbranch_scc1 L_at{sfx}")
    b("LOOPEND at")
    b(f"L_atx{sfx}:")
    b(f"s_cmp_lg_u32 s{sHEAD}, 0\ns_cbranch_scc1 L_fin{sfx}")

    def lsum(qs):
        t = B()
        if not LM: xlane_reduce_multi(t, [LS + q for q in qs], [T0 + 4 + q for q in qs], "v_add_f32")
        for q in qs:
            src = LA + 4 * q if LM else LS + q
            t(f"v_cmp_ngt_f32 vcc, {LTHR}, v{src}")
            t(f"v_rcp_f32 v{LS+q}, v{src}")
            t(f"s_or_b32 s{sFLAG}, s{sFLAG}, vcc_lo\ns_or_b32 s{sFLAG}, s{sFLAG}, vcc_hi")
        return t.L
    cnt = [0]
    def onorm(q, pk, flag):
        out = []
        for sp in range(4):
            d = P_ + 4 * (cnt[0] % 2); cnt[0] += 1
            rs = [O_ + 32 * q + 8 * sp + 2 * i_ for i_ in range(4)]
            for r in rs:
                if pk and OPT.get('pk', 1): out.append(f"v_pk_mul_f32 v[{r}:{r+1}], v[{r}:{r+1}], v[{LS+q-(q%2)}:{LS+q-(q%2)+1}] op_sel:[0,{q%2}] op_sel_hi:[1,{q%2}]")
                else: out += [f"v_mul_f32 v{r}, v{r}, v{LS+q}", f"v_mul_f32 v{r+1}, v{r+1}, v{LS+q}"]
            for i_, r in enumerate(rs): out.append(f"v_cvt_pk_bf16_f32 v{d+i_}, v{r}, v{r+1}")
            if flag is None:
                for i_ in range(4): out.append(f"v_accvgpr_write_b32 a{AST+16*q+4*sp+i_}, v{d+i_}")
                continue
            out.append(f"s_add_u32 s{sT}, s{sOO}, {sp*122880}")
            out.append(f"buffer_store_dwordx4 {vr(d,4)}, v{VO}, s[{SO}:{SO+3}], s{sT} offen offset:{1024*q}{flag}")
        return out
    def drain(st, ld=None):
        slots = []; gaps = [[] for _ in range(18)]
        for q in (2, 3):
            for T in range(8): slots.append(pv(q, T) if q < nq else None)
            slots.append(lsm(q) if (q < nq and LM) else None)
        rem = sorted(sm_items(nq, NS, 2 * NS), key=lambda t: t[0])
        b.ext([sm_text(*k_) for g, k_ in rem if k_[1] == 2 and k_[0] != 'add'])
        crit = sorted([k_ for g, k_ in rem if k_[1] == 3 and k_[0] != 'add'], key=lambda k_: (k_[2], k_[0] == 'cvt'))
        g = 0
        for k_ in crit:
            if k_[0] == 'exp' and gaps[min(g, 6)]: g += 1
            gaps[min(g, 6)].append(sm_text(*k_))
            if k_[0] == 'exp' or len(gaps[min(g, 6)]) == 2: g += 1
        late = [sm_text(*k_) for g_, k_ in rem if k_[0] == 'add']
        for i_, x in enumerate(late): gaps[min(9 + i_ // 2, 16) if nq == 4 else 0].append(x)
        for g in range(18):
            if slots[g] is None: continue
            room = 2 - sum(2 if 'exp' in x else 1 for x in gaps[g])
            while room > 0 and st: gaps[g].append(st.pop(0)); room -= 1
        for i_, s_ in enumerate(slots):
            if s_: b(s_)
            if s_ and ld:
                b(ld.pop(0))
                while ld and ld[0].startswith("s_"): b(ld.pop(0))
            b.ext(gaps[i_])
    hi = list(range(2, nq))
    movs = [f"v_accvgpr_mov_b32 a{AQ(q)+i_}, a{AQ2(q)+i_}" for q in range(nq) for i_ in range(16)]
    f0 = ' sc1 ; tag=WT'
    st = lsum([0, 1]) + onorm(0, False, f0)
    drain(st)
    stamp(b, 4)
    b.ext(zipper(st, lsum(hi), 2, 1))
    b.ext(movs)
    st = onorm(1, False, f0)
    weave(pre_mfma(), st, 3 if nq == 4 else 4)
    b.ext(st)
    rest = []
    for q in hi: rest += onorm(q, True, f0)
    b.ext(zipper(rest, pre_max(), 2, 1))
    b.ext(vote_write())
    b(f"s_add_u32 s{sOO}, s{sOO}, {4*122880}\ns_mov_b32 s{sHEAD}, 1")
    head_start(1)
    for k in range(32, 40):
        ex = []
        if k == 33: ex = [(3, "WAITV ; cover=WO")] + list(zip((4, 5, 6, 7, 8, 42, 43, 44), wo_reads(False)))
        if k == 34: ex = list(zip((4, 5, 6, 7), wo_stores(False)))
        attn_stage(b, k, nq, ex)
    b(f"s_branch L_atin{sfx}")
    b("REPLAY at 32")
    b(f"L_fin{sfx}:")
    f1 = K2F[OPT.get('of', 0)]
    b("s_waitcnt vmcnt(8)")
    b(f"v_cmp_gt_u32 vcc, v{VTH}, v{VCW}\ns_cbranch_vccnz L_espin{sfx}\nL_eok{sfx}:")
    p2 = []
    for s_ in range(4): p2 += p2_w(s_) + p2_o(s_) + p2_adv(s_)
    st = lsum([0, 1]) + onorm(0, False, f1)
    drain(st, p2)
    stamp(b, 4)
    body = st + zipper(onorm(1, True, f1), lsum(hi), 2, 1)
    for q in hi: body += onorm(q, True, f1)
    body = [x + " ; tag=OS" if x.startswith("buffer_store") else x for x in body]
    nld = sum(1 for x in p2 if x.startswith("buffer_"))
    per = max(1, len(body) // (nld + 2))
    seq = []
    while body or p2:
        if p2:
            seq.append(p2.pop(0))
            while p2 and p2[0].startswith("s_"): seq.append(p2.pop(0))
        for _ in range(per):
            if body: seq.append(body.pop(0))
    outst = 8 + 48 - nld
    for x in seq:
        if x.startswith("buffer_"):
            if outst >= 62: b("s_waitcnt vmcnt(52)"); outst = 52
            outst += 1
        b(x)
    b.ext(vote_write())
    stamp(b)
    b(f"L_p2s{sfx}:")
    for s_ in range(4): p2_step(b, s_, s_ == 0, True, f"WAITV ; cover=P{s_} cap=51")
    b("WAITV lgkmcnt(0) ; cover=OS")
    b("s_branch L_vote")
    b(f"""L_espin{sfx}:
    s_mov_b32 s{sLATE}, 1
    s_mov_b32 s{SO2+2}, 0
    s_mov_b32 s{SW2+2}, 0
    s_branch L_eok{sfx}""")
    if nq == 3:
        b(f"""L_sig:
        v_mov_b32 v4, {131072+7168}
        ds_read_b128 v[4:7], v4
        s_waitcnt lgkmcnt(0)
        v_or_b32 v4, v4, v5
        v_or3_b32 v4, v4, v6, v7
        v_readfirstlane_b32 s{sT}, v4
        s_mov_b64 exec, 1
        s_cmp_lg_u32 s{sSAFE}, 0
        s_cselect_b32 s{sT}, 0, s{sT}
        s_cbranch_scc1 L_sig1
        buffer_atomic_add v{VONE}, off, s[{SCN}:{SCN+3}], s{sCW} sc1
        L_sig1:
        s_or_b32 s{sT}, s{sT}, s{sSIG}
        s_cbranch_scc1 L_sig2
        s_add_u32 s{sT}, s{sCO}, 16384
        s_mov_b32 s{sSIG}, 1
        buffer_atomic_add v{VONE}, off, s[{SCN}:{SCN+3}], s{sT} sc1
        L_sig2:
        s_mov_b64 exec, -1
        s_branch L_nosig""")
        b(f"""L_hspin:
        s_mov_b32 s{sCNT}, 0
        L_hsp:
        s_sleep 8
        buffer_load_dword v{VHS}, off, s[{SDB}:{SDB+3}], 0 sc1
        s_waitcnt vmcnt(0)
        v_readfirstlane_b32 s{sT}, v{VHS}
        s_add_u32 s{sCNT}, s{sCNT}, 1
        s_lshr_b32 s{sT+1}, s{sCNT}, 17
        s_or_b32 s{sT}, s{sT}, s{sT+1}
        s_cmp_eq_u32 s{sT}, 0
        s_cbranch_scc1 L_hsp
        s_branch L_hsok""")
    b(f"L_maxpass{sfx}:")
    for q in range(nq): b(f"v_mov_b32 v{T0+8+q}, 0xff800000")
    b(f"s_lshl_b32 s{sT}, s{sHEAD}, 18\ns_mov_b32 s{sCNT}, 0")
    b(f"L_mp{sfx}:")
    b(f"s_barrier\ns_add_u32 m0, s{sKB}, 49152")
    b(dma(DK0, SK, f"s{sT}", 0, "", "MP")); b(dma(DK1, SK, f"s{sT}", 1024, "", "MP"))
    b("s_waitcnt vmcnt(0)\ns_barrier")
    for kt in range(2):
        for s in range(4):
            b(f"ds_read_b128 {ar(ASP+4*(4*kt+s),4)}, v{KA+s} offset:{49152 + kt*4096}")
    b("s_waitcnt lgkmcnt(0)")
    for q in range(nq):
        for kt in range(2):
            for s in range(4):
                d = vr(S_ + 8 * q + 4 * kt, 4)
                b(f"{MF} {d}, {ar(ASP+4*(4*kt+s),4)}, {ar(AQ(q)+4*s,4)}, {d if s else '0'}")
    for q in range(nq):
        for e in range(0, 8, 2): b(f"v_max3_f32 v{T0+8+q}, v{T0+8+q}, v{S_+8*q+e}, v{S_+8*q+e+1}")
    b(f"s_add_u32 s{sT}, s{sT}, 8192\ns_add_u32 s{sCNT}, s{sCNT}, 1\ns_cmp_lt_u32 s{sCNT}, 32\ns_cbranch_scc1 L_mp{sfx}")
    b("s_barrier")
    xlane_reduce_multi(b, [T0 + 8 + q for q in range(nq)], [T0 + q for q in range(nq)], "v_max_f32")
    for q in range(nq):
        for r in range(4): b(f"v_sub_f32 v{CI+4*q+r}, 0, v{T0+8+q}")
    b(f"s_cmp_eq_u32 s{sHEAD}, 0\ns_cbranch_scc1 L_maxdone0{sfx}\ns_branch L_maxdone1{sfx}")

FA = [0, 96, 144, 192]
def p2_reg(slot, i): return FA[slot] + 4 * i
VPW = 2; VPO = 8
def p2_w(slot): return [f"buffer_load_dwordx4 {ar(p2_reg(slot, i),4)}, v{VPW + i//3}, s[{SW2}:{SW2+3}], s{sW2} offen offset:{1024*(i%3)}{K2F[OPT.get('p2f', 2)]} ; tag=P{slot}" for i in range(6)]
def p2_o(slot): return [f"buffer_load_dwordx4 {ar(p2_reg(slot, 6+i),4)}, v{VPO + i//3}, s[{SO2}:{SO2+3}], s{sO2} offen offset:{1024*(i%3)}{K2F[OPT.get('p2f', 2)]} ; tag=P{slot}" for i in range(6)]
def p2_adv(slot):
    m = 5 if slot == 3 else 1
    return [f"s_add_u32 s{sO2}, s{sO2}, {m*122880}", f"s_add_u32 s{sW2}, s{sW2}, {m*36864}"]

def vote_write():
    return [f"v_mov_b32 v4, s{sFLAG}", f"s_lshl_b32 s{sT}, s{sWAVE}, 2", f"s_add_u32 s{sT}, s{sT}, {131072+7168}",
            f"v_mov_b32 v5, s{sT}", "ds_write_b32 v5, v4"]

P2ACC = 112
def p2_acc(q, n): return P2ACC + 4 * (6 * q + n)
def p2_step(b, slot, first, prefetch, wait, order=None, extra=None):
    b(wait)
    order = order or [(q, n) for q in range(6) for n in range(6)]
    slots = []; gaps = [[] for _ in range(36)]
    for q, n in order:
        a_ = vr(p2_acc(q, n), 4)
        slots.append(f"{MF} {a_}, {ar(p2_reg(slot, n),4)}, {ar(p2_reg(slot, 6+q),4)}, {'0' if first else a_}")
    if prefetch:
        o_, w_ = p2_o(slot), p2_w(slot)
        for q in range(6): gaps[6 * q + 5].append(o_[q])
        for n in range(6): gaps[30 + n].append(w_[n])
        gaps[35] += p2_adv(slot)
    for g, x in (extra or []): gaps[g].append(x)
    emit_slots(b, slots, gaps)

def phase2(b):
    D = 4
    acc = p2_acc
    def step(slot, first, prefetch, N, order=None, extra=None): p2_step(b, slot, first, prefetch, f"s_waitcnt vmcnt({N})", order, extra)
    b(f"""L_vote:
    s_cmp_eq_u32 s{sLATE}, 2
    s_cbranch_scc1 L_go
    v_mov_b32 v5, {131072+7168}
    s_barrier
    ds_read_b128 v[16:19], v5
    s_waitcnt lgkmcnt(0)
    v_or_b32 v16, v16, v17
    v_or3_b32 v16, v16, v18, v19
    v_readfirstlane_b32 s{sT}, v16
    s_cmp_lg_u32 s{sSAFE}, 0
    s_cselect_b32 s{sT}, 0, s{sT}
    s_cmp_lg_u32 s{sT}, 0
    s_cbranch_scc1 L_redo
    s_cmp_eq_u32 s{sWAVE}, 3
    s_cbranch_scc0 L_nosig2
    s_mov_b64 exec, 1
    buffer_atomic_add v{VONE}, off, s[{SCN}:{SCN+3}], s{sCO} sc1
    s_mov_b64 exec, -1
    L_nosig2:""")
    stamp(b)
    b(f"""s_cmp_ge_u32 s97, 240
    s_cbranch_scc1 L_fini
    s_cmp_eq_u32 s{sLATE}, 1
    s_cbranch_scc1 L_lateld
    L_go:
    s_xor_b32 s70, s{sWAVE}, 1
    s_mul_i32 s70, s70, 27648
    v_add_u32 v16, s70, v{VLN}
    s_xor_b32 s70, s{sWAVE}, 2
    s_mul_i32 s70, s70, 27648
    s_add_u32 s70, s70, 9216
    v_add_u32 v17, s70, v{VLN}
    s_xor_b32 s70, s{sWAVE}, 3
    s_mul_i32 s70, s70, 27648
    s_add_u32 s70, s70, 18432
    v_add_u32 v18, s70, v{VLN}
    s_mul_i32 s70, s{sWAVE}, 27648
    v_add_u32 v19, s70, v{VLN}
    v_and_b32 v20, 15, v0
    v_mul_u32_u24 v20, 2304, v20
    v_bfe_u32 v21, v0, 4, 2
    v_lshl_add_u32 v20, v21, 3, v20
    v_add_u32 v21, {16*2304}, v20
    v_add_u32 v22, {32*2304}, v20
    s_mov_b32 s88, s{sOUT}
    s_mov_b32 s89, s{sOUT+1}
    s_mov_b32 s90, {8*240*1152*2}
    s_mov_b32 s91, 0x20000
    s_mov_b32 s36, 0
    .p2align 3
    L_k2:""")
    for s_ in range(D):
        step(s_, False, True, 36, extra=[(0, f"buffer_load_dword v6, v{VP2}, s[{SCN}:{SCN+3}], 0 offen sc1")] if s_ == 0 else None)
    b("""s_add_u32 s36, s36, 1
    s_cmp_eq_u32 s36, 2
    s_cbranch_scc1 L_chk
    L_chkd:
    s_cmp_lt_u32 s36, 6
    s_cbranch_scc1 L_k2""")
    for s_ in range(D - 1): step(s_, False, False, 12 * (D - 1 - s_))
    stamp(b)
    quad = lambda q, n: (q // 3) * 2 + (n // 3)
    oth = [(q, n) for d in (1, 2, 3) for q in range(6) for n in range(6) if quad(q, n) == d]
    mine = [(q, n) for q in range(3) for n in range(3)]
    wr = [(min(i_ + 5, 35), f"ds_write_b128 v{15 + quad(q, n)}, {vr(acc(q, n),4)} offset:{((q % 3) * 3 + n % 3) * 1024}") for i_, (q, n) in enumerate(oth)]
    step(D - 1, False, False, 0, order=oth + mine, extra=wr)
    if OPT.get('rstamps'): stamp(b)
    b("s_waitcnt lgkmcnt(0)\ns_barrier")
    if OPT.get('rstamps'): stamp(b)
    for t in range(9):
        for src in range(3):
            b(f"ds_read_b128 {vr(acc(*oth[3*t+src]),4)}, v19 offset:{src * 9216 + t * 1024}")
    for t, (q, n) in enumerate(mine):
        r0, r1, r2, m = acc(*oth[3*t]), acc(*oth[3*t+1]), acc(*oth[3*t+2]), acc(q, n)
        b(f"s_waitcnt lgkmcnt({min(15, 3 * (8 - t))})")
        for r in range(4): b(f"v_add_f32 v{r0+r}, v{r0+r}, v{r1+r}")
        for r in range(4): b(f"v_add_f32 v{m+r}, v{m+r}, v{r2+r}")
        for r in range(4): b(f"v_add_f32 v{m+r}, v{m+r}, v{r0+r}")
        b(f"v_cvt_pk_bf16_f32 v{24+2*t}, v{m}, v{m+1}\nv_cvt_pk_bf16_f32 v{25+2*t}, v{m+2}, v{m+3}")
        b(f"buffer_store_dwordx2 v[{24+2*t}:{25+2*t}], v{20 + q}, s[88:91], s{sOUTO} offen offset:{32*n}{K2F[OPT.get('outf', 0)]}")
    if OPT.get('rstamps'): stamp(b)
    b("L_fini:")
    if OPT.get('fixspan'):
        b(f"""s_waitcnt vmcnt(0)
        L_fix:
        s_memrealtime s[74:75]
        s_waitcnt lgkmcnt(0)
        s_sub_u32 s74, s74, s72
        s_cmp_lt_u32 s74, {OPT['fixspan'] * 100}
        s_cbranch_scc1 L_fix""")
    stamp_dump(b, 0, sWAVE)
    b("s_endpgm")
    b(f"""L_chk:
    s_waitcnt vmcnt(48)
    s_sub_u32 s{sO2}, s{sO2}, {28*122880}
    s_sub_u32 s{sW2}, s{sW2}, {28*36864}
    v_cmp_gt_u32 vcc, 4, v6
    s_cbranch_vccz L_chkd
    s_mov_b32 s37, 0
    L_poll:
    s_sleep 4
    buffer_load_dword v6, v{VP2}, s[{SCN}:{SCN+3}], 0 offen sc1
    s_add_u32 s37, s37, 1
    s_waitcnt vmcnt(0)
    v_cmp_gt_u32 vcc, 4, v6
    s_cbranch_vccz L_chkd
    s_cmp_lt_u32 s37, 0x20000
    s_cbranch_scc1 L_poll
    s_branch L_chkd
    L_lateld:
    s_mov_b32 s{SO2+2}, s100
    s_mov_b32 s{SW2+2}, s101
    s_mul_i32 s{sO2}, s{sWAVE}, {32*122880}
    s_mul_i32 s{sW2}, s{sWAVE}, {32*36864}
    s_mov_b32 s{sLATE}, 2
    s_mov_b32 s37, 0
    L_esp:
    s_sleep 4
    buffer_load_dword v{VCW}, v{VPE}, s[{SCN}:{SCN+3}], 0 offen sc1
    s_add_u32 s37, s37, 1
    s_waitcnt vmcnt(0)
    v_cmp_gt_u32 vcc, v{VTH}, v{VCW}
    s_cbranch_vccz L_espd
    s_cmp_lt_u32 s37, 0x20000
    s_cbranch_scc1 L_esp
    L_espd:""")
    for s_ in range(4): b.ext(p2_w(s_) + p2_o(s_) + p2_adv(s_))
    b(f"""s_waitcnt vmcnt(0)
    s_cmp_eq_u32 s{sWAVE}, 3
    s_cbranch_scc1 L_p2s3
    s_branch L_p2s4
    L_redo:
    s_mov_b32 s{sSAFE}, 1
    s_waitcnt vmcnt(0)
    s_barrier""")
    prologue_a(b)
    b("s_branch L_srdok")

def kernel1():
    b = B()
    b("attn_kernel:")
    b("s_cmp_ge_u32 s2, 256\ns_cbranch_scc1 L_end1")
    if OPT['stamps']: b("s_mov_b32 s96, 0\nv_mov_b32 v14, 0\nv_mov_b32 v15, 0")
    stamp(b)
    if OPT.get('fixspan'): b("s_memrealtime s[72:73]\ns_waitcnt lgkmcnt(0)")
    b("s_load_dwordx16 s[48:63], s[0:1], 0\ns_load_dwordx4 s[64:67], s[0:1], 64\ns_load_dwordx2 s[100:101], s[0:1], 96\ns_load_dwordx4 s[76:79], s[0:1], 80")
    b(f"""s_mov_b32 s97, s2
    s_and_b32 s3, s2, 7
    s_lshr_b32 s2, s2, 3""")
    warm_code(b)
    b(f"""v_lshrrev_b32 v1, 6, v0
    s_and_b32 s68, s3, 1
    s_lshl_b32 s68, s68, 2
    s_and_b32 s69, s2, 3
    s_add_u32 s68, s68, s69        ; b
    v_readfirstlane_b32 s{sWAVE}, v1
    s_bfe_u32 s69, s3, 0x10001
    s_lshl_b32 s69, s69, 3
    s_lshr_b32 s70, s2, 2
    s_add_u32 s69, s69, s70        ; hp
    s_lshr_b32 s3, s3, 2           ; blk
    s_lshl_b32 s{sWB}, s{sWAVE}, 12
    s_lshl_b32 s{sXB}, s{sWAVE}, 13
    s_mov_b32 s{sC}, {CSCALE}
    s_mov_b32 s{sC+1}, {CSCALE}
    s_mov_b32 s{sSAFE}, 0
    s_mov_b32 s{sFLAG}, 0""")
    prologue_a(b)
    b(f"""s_cmp_eq_u32 s3, 0
    s_waitcnt lgkmcnt(0)
    s_cselect_b64 s[48:49], s[48:49], s[58:59]
    s_cselect_b64 s[50:51], s[50:51], s[60:61]
    s_cselect_b64 s[52:53], s[52:53], s[62:63]
    s_cselect_b64 s[54:55], s[54:55], s[64:65]
    s_cselect_b64 s[56:57], s[56:57], s[66:67]""")
    if OPT.get('sstamps'): stamp(b)
    b(f"""s_mul_i32 s71, s68, 276480
    s_add_u32 s{SX}, s48, s71
    s_addc_u32 s{SX+1}, s49, 0
    s_mov_b32 s{SX+2}, 276480
    s_mov_b32 s{SX+3}, 0x20000
    s_lshl_b32 s71, s69, 9
    s_add_u32 s{SW}, s54, s71
    s_addc_u32 s{SW+1}, s55, 0
    s_sub_u32 s{SW+2}, 4718592, s71
    s_mov_b32 s{SW+3}, 0x20000""")
    b("L_srdok:")
    prologue_b(b)
    b(f"""s_cmp_eq_u32 s{sWAVE}, 3
    s_cbranch_scc1 L_begin3""")
    wave_code(b, 4, "4")
    b(".p2align 6")
    wave_code(b, 3, "3")
    b("L_phase2:")
    phase2(b)
    b("L_end1:\ns_endpgm\nL_codeend:")
    return b.L

def resolve_waits(L):
    out = []
    for i, x in enumerate(L):
        if x.startswith("WAITL"):
            tag = x.split()[1]
            n, T = tag[1:].split('.'); T = int(T)
            dst = set(range(AW + 8 * (T % 4), AW + 8 * (T % 4) + 8))
            cnt = 0; found = False
            for y in reversed(out):
                if y.startswith(("s_waitcnt", "WAITV")) and "lgkmcnt(0)" in y:
                    found = True; cnt = None; break
                if y.startswith("ds_"):
                    I = Ins(y)
                    if any(k == 'a' and r in dst for k, r in I.wr) or (T == 0 and 'need=X' in y):
                        found = True; break
                    cnt += 1
            assert found, x
            if cnt is not None:
                assert cnt <= 15
                out.append(f"s_waitcnt lgkmcnt({cnt})")
        else: out.append(x)
    return out

def expand_trace(L):
    def shift(line, name, it, step):
        if it == 0: return line
        def rep(m):
            k, n = m.group(1), int(m.group(2))
            if name == 'qp':
                if k == 'W': return f"W{n + step*it}"
                if k == 'X': return f"X{n + step*it//2}"
                return m.group(0)
            if k == 'KV': return f"KV{n + step*it}"
            return m.group(0)
        if ';' not in line: return line
        a, c = line.split(';', 1)
        return a + ';' + re.sub(r'\b(KV|W|X)(\d+)\b', rep, c)
    bodies = {}
    def go(i, stop):
        res = []
        while i < len(L):
            x = L[i]
            if x.startswith("LOOPBEGIN"):
                _, name, cnt, step = x.split(); cnt = int(cnt); step = int(step)
                body, j = go(i + 1, name)
                bodies[name] = (body, cnt, step)
                for it in range(cnt):
                    for y in body:
                        if y == f"LOOPEXIT {name}":
                            if it == cnt - 1: break
                            continue
                        res.append(shift(y, name, it, step))
                i = j + 1; continue
            if x.startswith("REPLAY"):
                _, name, off = x.split(); body, cnt, step = bodies[name]
                for it in range(cnt):
                    for y in body: res.append(shift(shift(y, name, it, step), name, 1, int(off)))
                i += 1; continue
            if x.startswith("LOOPEND") and x.split()[1] == stop: return res, i
            res.append(x); i += 1
        return res, i
    return go(0, None)[0]

def resolve_vm(L):
    idx = [f"{x} ;#{i}" if x.startswith("WAITV") else x for i, x in enumerate(L)]
    tr = expand_trace(idx)
    q = []; best = {}
    for x in tr:
        if x.startswith(("L_maxpass", "L_hspin", "L_espin")): break
        c = x.split(';', 1)[1] if ';' in x else ''
        if x.startswith(("buffer_", "global_")):
            if 'cond' in c: continue
            m = re.search(r'tag=(\w+)', c); q.append(m.group(1) if m else 'other')
        elif x.startswith("WAITV"):
            tags = set(re.search(r'cover=([\w,]*)', c).group(1).split(','))
            i = int(x.rsplit('#', 1)[1])
            n = 0
            for t in reversed(q):
                if t in tags: break
                n += 1
            else: n = 63
            m = re.search(r'cap=(\d+)', c)
            best[i] = min(best.get(i, 63), n, int(m.group(1)) if m else 63)
    out = []
    for i, x in enumerate(L):
        if x.startswith("WAITV"):
            a, c = x.split(';', 1)
            out.append(f"s_waitcnt vmcnt({best[i]}) {a[5:].strip()} ;{c}")
        else: out.append(x)
    return out

def check_protocol(L, label):
    tr = expand_trace(L)
    q = []; done = set(); issued = {}; pub = set(); errs = 0
    for x in tr:
        if x.startswith(("L_maxpass", "L_hspin", "L_espin")): break
        c = x.split(';', 1)[1] if ';' in x else ''
        if x.startswith("buffer_") or x.startswith("global_"):
            if 'cond' in c: continue
            m = re.search(r'tag=(\w+)', c); q.append(m.group(1) if m else 'other')
        elif x.startswith("s_waitcnt"):
            m = re.search(r'vmcnt\((\d+)\)', x)
            if m:
                n = int(m.group(1))
                while len(q) > n: done.add(q.pop(0))
            m = re.search(r'needtag=(\w+)', c)
            if m and m.group(1) in q: print(label, "ERR needtag", x); errs += 1
        elif x.startswith("s_barrier"):
            m = re.search(r'pub=([\w,]*)', c)
            if m:
                for t in m.group(1).split(','):
                    if not t: continue
                    if t in q or (t not in done and not (label == 'w3' and t[0] in 'XW')): print(label, "ERR publish not landed", t, x); errs += 1
                    pub.add(t)
        elif x.startswith("ds_read"):
            m = re.search(r'need=(\w+)', c)
            if m and m.group(1) not in pub and m.group(1) not in ('KV64',): print(label, "ERR read unpublished", x); errs += 1
        assert len(q) <= 63, ("vmcnt overflow", x)
    return errs

def burn(L):
    out = []; on = False; c = 0; k = 0
    for x in L:
        if x == 'BURNON': on = True; c = 0; continue
        if x == 'BURNOFF': on = False; continue
        out.append(x)
        if on and OPT.get('burn'):
            if x.startswith('v_mfma'): c = 0
            elif x.startswith('v_'):
                c += 1
                if c >= OPT['burn']:
                    c = 0; k += 1
                    out.append(f"{MF} v[4:7], a[{32+4*(k%8)}:{35+4*(k%8)}], a[{96+4*(k%7)}:{99+4*(k%7)}], v[4:7]")
    return out

def finish(L):
    L = burn(L)
    L = resolve_waits(L)
    return L

def strip_markers(L):
    return [x for x in L if not x.startswith(("LOOPBEGIN", "LOOPEND", "LOOPEXIT", "REPLAY"))]

DESC = """.section .rodata,"a"
.p2align 6
.amdhsa_kernel {name}
  .amdhsa_next_free_vgpr {vgpr}
  .amdhsa_next_free_sgpr 102
  .amdhsa_accum_offset 256
  .amdhsa_group_segment_fixed_size 0
  .amdhsa_kernarg_size 104
  .amdhsa_user_sgpr_count 2
  .amdhsa_user_sgpr_kernarg_segment_ptr 1
  .amdhsa_system_sgpr_workgroup_id_x 1
  .amdhsa_float_denorm_mode_32 3
.end_amdhsa_kernel
"""

def build(**kw):
    OPT.update(kw)
    k1 = finish(kernel1())
    i4 = k1.index("L_begin4:"); i3 = k1.index("L_begin3:"); iv = k1.index("L_phase2:")
    ip = k1.index("L_srdok:"); pre = k1[ip:i4]
    k1 = k1[:i4] + resolve_vm(pre + k1[i4:i3])[len(pre):] + resolve_vm(pre + k1[i3:iv])[len(pre):] + k1[iv:]
    e = check_protocol(pre + k1[i4:i3], "w4") + check_protocol(pre + k1[i3:], "w3")
    assert e == 0
    k1 = strip_markers(k1)
    k1, n1, p1 = fix_hazards(k1)
    for p in p1: print("BRANCH HAZARD", p)
    assert not p1
    hdr = open("ref.txt").read().split("; Override")[0]
    KN = NAME + "_kernel"
    k1 = [x.replace("attn_kernel", KN) for x in k1]
    out = hdr
    out += "; generated by my own schedule generator: q-projection + attention (2 heads per workgroup), hand-off, output projection\n"
    out += ("; @launch kernel=%s grid=(256,1,1) block=(256,1,1) lds=163840\n" % KN) if OPT.get('list') else "; @launch grid=(256,1,1) block=(256,1,1) lds=163840\n"
    out += '.amdgcn_target "amdgcn-amd-amdhsa--gfx950"\n.text\n'
    out += ".globl %s\n.p2align 8\n.type %s,@function\n" % (KN, KN) + "\n".join(k1) + "\n"
    out += DESC.format(name=KN, vgpr=512)
    return out, n1

if __name__ == "__main__":
    kw = {}
    for a in sys.argv[2:]:
        k, v = a.split('='); kw[k] = int(v)
    s, info = build(**kw)
    open(sys.argv[1], "w").write(s)
    print("nops inserted", info, "bytes", len(s))
```

```python
import sys, re
from asmlib import fix_hazards, Ins

NAME = "concat_heads__mha_block_cached__mha_block_cached__near_ridge"
MF = "v_mfma_f32_16x16x32_bf16"
CSCALE = 0x3e0293ee
LTHR = 0x4e800000

O_BLK = 128 * 122880
WOT_OFF = 2 * O_BLK
WOT_BLK = 128 * 36864
CNT_OFF = WOT_OFF + 2 * WOT_BLK

class B:
    def __init__(self): self.L = []
    def __call__(self, s):
        for x in s.split("\n"):
            x = x.strip()
            if x: self.L.append(x)
    def ext(self, l): self.L.extend(l)

def vr(b, n): return f"v[{b}:{b+n-1}]"
def ar(b, n): return f"a[{b}:{b+n-1}]"

def emit_slots(b, slots, gaps):
    for i, s in enumerate(slots):
        if s: b(s)
        nv = [x for x in gaps[i] if not x.startswith('v_')]
        v = [x for x in gaps[i] if x.startswith('v_')]
        for x in nv + v: b(x)

S_ = 16; P_ = 48; CI = 64; LS = 80
KA = 84
VA = 88
VWA = 105
DK0 = 96; DK1 = 97; DV0 = 98; DV1 = 99
VO = 100
VWO = 101
VWX = 102
VLN = 103
VPF = 104
VPD = 105
T0 = 108
O_ = 128
XA = 16; WA = 28; DX = 20; DW = 24
WSLOT = [49152, 114688, 131072, 147456]; sKB = 69
def AQ(q): return 32 + 64 * (q // 2) + 16 * (q % 2)
def AQ2(q): return 128 + 16 * q
AK = 0; AV = 64; ASP = 64
AX = 0; AW = 64
SX = 4; SW = 8; SK = 12; SV = 16; SO = 20; SWO = 24; SWT = 28
sWAVE = 32; sWB = 33; sKV = 34; sCNT = 35; sHEAD = 36; sSAFE = 37; sFLAG = 38
sXO = 39; sXO2 = 40; sWOFF = 41; sXB = 42; sOO = 43; sC = 44
sT = 46
sH0 = 68; sWOS = 64; sWTS = 65; sSTAMP = 72; SPF = 76; sPF = 68; sWXS = 67; sROT = 80; sLIN = 81
SCN = 48; SDB = 52; SO2 = 56; sCO = 60; sCW = 61; SIN = 84; SIF = 88; sOUT = 76; VHS = 106; VCW = 107; VONE = 104
SW2 = 80; sO2 = 98; sW2 = 99; sOUTO = 66; sOP = 67; VPE = 11; VTH = 12; VP2 = 13; VWE = 10; AST = 192; sSIG = 78; sLATE = 79

OPT = dict(nt_kv=1, nt_w=1, nt_x=1, nt_wo=1, stamps=0, warm=1, of=2, of0=2, e67=1)

K2F = ['', ' nt', ' sc1', ' sc0 sc1', ' sc0', ' sc1 nt']
def fl(k): return ["", " nt", " sc1 nt", " sc0 sc1 nt", " sc0 nt"][OPT[k]]

def dma(voff, srd, soff, off, flag, tag):
    return f"buffer_load_dwordx4 v{voff}, s[{srd}:{srd+3}], {soff} offen offset:{off}{flag} lds ; tag={tag}"

def kv_adv():
    if not OPT.get('rot'): return [f"s_add_u32 s{sKV}, s{sKV}, 8192"]
    return [f"s_add_u32 s{sLIN}, s{sLIN}, 8192", f"s_add_u32 s{sKV}, s{sLIN}, s{sROT}",
            f"s_and_b32 s{sKV}, s{sKV}, 0x3ffff", f"s_and_b32 s{sT+1}, s{sLIN}, 0xfffc0000", f"s_or_b32 s{sKV}, s{sKV}, s{sT+1}"]

def k_dma(tile, so=None):
    so = so or f"s{sKV}"
    return [f"s_add_u32 m0, s{sKB}, {(tile % 8) * 8192}",
            dma(DK0, SK, so, 0, fl('nt_kv'), f"KV{tile}"), dma(DK1, SK, so, 1024, fl('nt_kv'), f"KV{tile}")]
def v_dma(tile, so=None):
    so = so or f"s{sKV}"
    return [f"s_add_u32 m0, s{sKB}, {65536 + (tile % 8) * 8192}",
            dma(DV0, SV, so, 0, fl('nt_kv'), f"KV{tile}"), dma(DV1, SV, so, 1024, fl('nt_kv'), f"KV{tile}")]

def x_dma(m, nq):
    slot = 16384 if m % 2 else 81920
    out = []
    out.append(f"s_add_u32 m0, s{sXB}, {slot}")
    for j in range(4): out.append(dma(DX + j, SX, f"s{sXO}", 1024 * j, fl('nt_x'), f"X{m}"))
    out.append(f"s_add_u32 m0, s{sXB}, {slot + 4096}")
    for j in range(4 if nq == 4 else 2): out.append(dma(DX + j, SX, f"s{sXO2}", 1024 * j, fl('nt_x'), f"X{m}"))
    out.append(f"s_add_u32 s{sXO}, s{sXO}, 128")
    out.append(f"s_add_u32 s{sXO2}, s{sXO2}, 128")
    return out

def w_dma(n, nq):
    out = [f"s_add_u32 m0, s{sWB}, {WSLOT[n % 4]}"]
    for j in range(4): out.append(dma(DW + j, SW, f"s{sWOFF}", 1024 * j, fl('nt_w'), f"W{n}"))
    if n % 2 == 0: out.append(f"s_add_u32 s{sWOFF}, s{sWOFF}, 256")
    else: out.append(f"s_add_u32 s{sWOFF}, s{sWOFF}, {524288 - 256}")
    return out

def w_reads(n, T):
    sp_, a = T // 2, T % 2
    hl, sp = sp_ // 2, sp_ % 2
    out = []
    for s in range(2):
        for a2 in range(2):
            d = AW + 8 * (T % 4) + 4 * s + 2 * a2
            off = max(n % 4 - 1, 0) * 16384 + hl * 8192 + (32 * s + 4 * a2) * 128 + 8 * a
            out.append(f"ds_read_b64_tr_b16 {ar(d,2)}, v{WA + sp + (2 if n % 4 else 0)} offset:{off} ; need=W{n}")
    return out

def x_reads(m, nq):
    out = []
    for q in range(nq):
        for s in range(2):
            d = AX + 32 * (m % 2) + 8 * q + 4 * s
            out.append(f"ds_read_b128 {ar(d,4)}, v{XA + s + (0 if m % 2 else 2)} offset:{q * 2048} ; need=X{m}")
    return out

def qacc(hd, q, T):
    r = 128 + 32 * q + 4 * T
    return vr(r, 4) if hd == 0 else ar(r, 4)

def pf_load():
    return f"buffer_load_dword v{VPD}, v{VPF}, s[{SPF}:{SPF+3}], s{sPF} offen nt ; tag=PF"

def wo_dma():
    out = []
    for r in range(2):
        out.append(f"s_add_u32 m0, s{sWOS}, {4096*r}")
        for j in range(4):
            out += [f"PRE s_mov_b32 s{sT}, {8192*j + 512*r}", dma(VWO, SWO, f"s{sT}", 1024 * j, fl('nt_wo'), "WO")]
    out += [f"s_mov_b32 m0, s{sWTS}", dma(VWX, SWO, "0", 0, fl('nt_wo'), "WO")]
    return out
WOF = 32
def wo_reads():
    out = [f"ds_read_b64_tr_b16 {vr(WOF+16*r+4*tl+2*a,2)}, v{VWA} offset:{4096*r + 2048*a + 32*tl}" for r in range(2) for tl in range(4) for a in range(2)]
    return out + [f"ds_read_b64_tr_b16 {vr(WOF+32+2*a,2)}, v{VWE} offset:{512*a}" for a in range(2)]
def wo_stores():
    out = []
    for r in range(2):
        out.append(f"PRE s_add_u32 s{sT}, s{sWB}, {16384*r}")
        out += [f"buffer_store_dwordx4 {vr(WOF+16*r+4*tl,4)}, v{VLN}, s[{SWT}:{SWT+3}], s{sT} offen offset:{1024*tl} sc1 ; tag=WT" for tl in range(4)]
    out += [f"PRE s_lshl_b32 s{sT}, s{sWAVE}, 10", f"PRE s_add_u32 s{sT}, s{sT}, 32768",
            f"buffer_store_dwordx4 {vr(WOF+32,4)}, v{VLN}, s[{SWT}:{SWT+3}], s{sT} offen sc1 ; tag=WT"]
    return out

def qproj_stage(b, n, nq, fill=None):
    hd, m = n % 2, n // 2
    nx = 8 if nq == 4 else 6
    slots = []; gaps = [[] for _ in range(64)]
    for T in range(8):
        for q in range(4):
            for s in range(2):
                if q >= nq: slots.append(None); continue
                acc = qacc(hd, q, T)
                c = "0" if (m == 0 and s == 0) else acc
                slots.append(f"{MF} {acc}, {ar(AW+8*(T%4)+4*s,4)}, {ar(AX+32*(m%2)+8*q+4*s,4)}, {c}")
    start = {3: 5, 4: 12, 5: 19, 6: 26, 7: 33}
    rd = w_reads(n, 2); gaps[0].append(rd[3])
    for T, g in start.items():
        for i, x in enumerate(w_reads(n, T)): gaps[g + i].append(x)
    if n < 17:
        for T, g in ((0, 45), (1, 53)):
            for i, x in enumerate(w_reads(n + 1, T)): gaps[g + i].append(x)
        for i, x in enumerate(w_reads(n + 1, 2)[:3]): gaps[61 + i].append(x)
    xr = []
    if n % 2 == 1 and m + 1 <= 8:
        xr = x_reads(m + 1, nq)
        for x, g in zip(xr, (9, 10, 16, 17, 23, 24, 30, 31)): gaps[g].append(x)
    for T in range(1, 8): gaps[8 * T - 1].append(f"WAITL W{n}.{T}")
    if n < 17: gaps[63].append(f"WAITL W{n+1}.0")
    req = []
    if n + 1 <= 17: req.append(f"W{n+1}")
    if n % 2 == 0 and m + 1 <= 8: req.append(f"X{m+1}")
    if n == 17: req += ["KV0", "KV1"]
    cov = list(req)
    if nq == 3 and n == 2:
        cov.append("INIT")
        gaps[45].append(f"buffer_store_dword v{VONE}, v{VLN}, s[{SIF}:{SIF+3}], 0 offen sc1 ; tag=FLAG")
    if nq == 3 and n == 12:
        gaps[45].append(f"buffer_load_dword v{VHS}, off, s[{SDB}:{SDB+3}], 0 ; tag=HS")
    gaps[43].append("WAITV lgkmcnt(0) ; cover=" + ",".join(cov))
    gaps[44].append("s_barrier ; pub=" + ",".join(req))
    def place(seq, first, step):
        g = first
        for x in seq:
            if x.startswith("buffer_"): gaps[g].append(x); g += step
            elif x.startswith(("s_add_u32 m0", "s_mov_b32 m0")): gaps[g - 1].append(x)
            elif x.startswith("PRE "): gaps[g - 1].append(x[4:])
            else: gaps[min(g - step + 1, 63)].append(x)
    if n == 0: place(w_dma(2, nq) + w_dma(3, nq) + x_dma(2, nq), 1, 2)
    elif n % 2 == 0 and m + 2 <= 8: place(x_dma(m + 2, nq), 2, 5)
    def single(kind, i_):
        if kind == 'wo':
            if i_ == 8: return [f"s_mov_b32 m0, s{sWTS}", None, dma(VWX, SWO, "0", 0, fl('nt_wo'), "WO")]
            r, j_ = i_ // 4, i_ % 4
            return [f"s_add_u32 m0, s{sWOS}, {4096*r}", f"s_mov_b32 s{sT}, {8192*j_ + 512*r}", dma(VWO, SWO, f"s{sT}", 1024 * j_, fl('nt_wo'), "WO")]
        t, j_ = i_ // 4, i_ % 4
        d_ = (k_dma if j_ < 2 else v_dma)(t, f"s{sT}")
        return [d_[0], f"s_mov_b32 s{sT}, {8192*t}", d_[1 + j_ % 2]]
    W0 = OPT.get('wo0', 1); R0 = W0 + 7
    sched_ = {W0 + i_ // 2: [] for i_ in range(9)}
    for i_ in range(9): sched_[W0 + i_ // 2].append(('wo', i_))
    for i_ in range(8): sched_.setdefault(R0 + 2 + i_ // 2, []).append(('kv', i_))
    for (kind, i_), g in zip(sched_.get(n, []), (39, 42) if n % 2 == 0 else (12, 32)):
        m0_, so_, ld_ = single(kind, i_)
        gaps[g - 1].append(m0_)
        if so_: gaps[g - 1].append(so_)
        gaps[g].append(ld_)
    if n == 13: gaps[62].append(f"s_mov_b32 s{sKV}, 16384")
    if n in (R0, R0 + 1):
        rd = wo_reads()
        if n == R0:
            gaps[44].append("WAITV ; cover=WO")
            for x, g in zip(rd[:8], [49, 50, 51, 52, 57, 58, 59, 60]): gaps[g].append(x)
        else:
            for x, g in zip(rd[8:], [1, 2, 3, 4, 11, 18, 25, 37, 38, 39]): gaps[g].append(x)
    for i_ in range(9):
        if n != min(R0 + 1 + i_, 17 - (1 if i_ < 8 else 0)) : continue
        r, tl = i_ // 4, i_ % 4
        g = 62 if not any('tag=WT' in x for x in gaps[62]) else 48
        if i_ < 8: gaps[g - 1].append(f"s_add_u32 s{sT+1}, s{sWB}, {16384*r}")
        else: gaps[g - 2].append(f"s_lshl_b32 s{sT+1}, s{sWAVE}, 10"); gaps[g - 1].append(f"s_add_u32 s{sT+1}, s{sT+1}, 32768")
        gaps[g].append(f"buffer_store_dwordx4 {vr(WOF+4*i_,4)}, v{VLN}, s[{SWT}:{SWT+3}], s{sT+1} offen offset:{1024*tl if i_ < 8 else 0} sc1 ; tag=WT")
    if n in (14, 16):
        seq = []
        for t in range(2, 6):
            seq += [f"PRE s_add_u32 s{sT}, s{sKV}, {(t - 2) * 8192}"] + (k_dma if n == 14 else v_dma)(t, f"s{sT}")
        if n == 16: seq.append(f"s_add_u32 s{sKV}, s{sKV}, 32768")
        place(seq, 2, 5)
    if n == 17 and OPT.get('e67'):
        place(k_dma(6) + [f"PRE s_add_u32 s{sT}, s{sKV}, 8192"] + k_dma(7, f"s{sT}"), 4, 9)
        place(v_dma(6) + v_dma(7, f"s{sT}") + [f"s_add_u32 s{sKV}, s{sKV}, 16384"], 47, 4)
    if OPT.get('awake') and n % 2 == 1 and 3 <= n <= 11:
        seq = []
        for t in range(OPT['awake']):
            seq += [f"PRE s_add_u32 s{sPF}, s{sPF}, 8192"] + k_dma(t % 2, f"s{sPF}") + v_dma(t % 2, f"s{sPF}")
        seq = [x.replace('tag=KV0', 'tag=DUM').replace('tag=KV1', 'tag=DUM') for x in seq]
        place(seq, 2, 40 // (4 * OPT['awake']))
    if OPT.get('awake') and n == 13:
        place([f"PRE s_mov_b32 s{sPF}, 0"] + k_dma(0, f"s{sPF}") + v_dma(0, f"s{sPF}") + [f"PRE s_mov_b32 s{sPF}, 8192"] + k_dma(1, f"s{sPF}") + v_dma(1, f"s{sPF}"), 2, 5)
    if n + 4 <= 17: place(w_dma(n + 4, nq), 46, 5)
    for i_ in range(OPT.get('qslow', 0)): gaps[2 + 2 * i_].append('v_nop\nv_nop\nv_nop\nv_nop\nv_nop\nv_nop')
    if fill is not None:
        for g in range(20 if n == 16 else 0, 64):
            if slots[g] is None: continue
            for _ in range(2):
                if fill: gaps[g].append(fill.pop(0))
    emit_slots(b, slots, gaps)
    if OPT.get('qstamps'): stamp(b)

def k_reads(unit, tile):
    out = []
    for kt in range(2):
        for s in range(4):
            f = 4 * kt + s
            out.append(f"ds_read_b128 {ar(AK+4*f,4)}, v{KA + s} offset:{unit * 8192 + kt * 4096} ; need=KV{tile}")
    return out

def v_reads(unit, tile):
    out = []
    for T in range(8):
        th, tl = T // 4, T % 4
        for a in range(2):
            out.append(f"ds_read_b64_tr_b16 {ar(AV+4*T+2*a,2)}, v{VA + T} offset:{unit * 8192 + a * 4096} ; need=KV{tile}")
    return out

import sched, sched2
LM = 1
for a_ in sys.argv[2:]:
    if a_.startswith('lm='): LM = int(a_[3:])
if LM:
    NS = 68
    V_GAPS = list(range(26, 42)); K_GAPS = list(range(50, 58)); D_GAPS = [3, 11, 17, 23]
    SM = sched2.schedule(V_GAPS + K_GAPS, D_GAPS)
else:
    NS = 64
    V_GAPS = list(range(25, 41)); K_GAPS = list(range(48, 56)); D_GAPS = [1, 9, 17, 23]
    SM = sched.schedule(4, V_GAPS + K_GAPS, D_GAPS)
BG = K_GAPS[0] - 1
LA = 108; ONES = 124
def sm_text(kind, q, e):
    s = S_ + 8 * q + e
    if kind == 'exp': return f"v_exp_f32 v{s}, v{s}"
    if kind == 'add': return f"v_add_f32 v{LS+q}, v{LS+q}, v{s}"
    return f"v_cvt_pk_bf16_f32 v{P_+4*q+e//2}, v{s-1}, v{s}"
def sm_items(nq, lo, hi):
    it = [(g, k[0] == 'exp', k) for k, g in SM.items() if k[1] < nq and lo <= g < hi]
    it.sort(key=lambda t: (t[0] % NS, t[1], -t[0]))
    return [(g, k) for g, _, k in it]

def qk(q, kt, s, czero=False):
    d = vr(S_ + 8 * q + 4 * kt, 4)
    c = d if s else ("0" if czero else vr(CI + 4 * q, 4))
    return f"{MF} {d}, {ar(AK+4*(4*kt+s),4)}, {ar(AQ(q)+4*s,4)}, {c}"

def pv(q, T, czero=False):
    d = vr(O_ + 32 * q + 4 * T, 4)
    return f"{MF} {d}, {ar(AV+4*T,4)}, {vr(P_+4*q,4)}, {'0' if czero else d}"

def lsm(q, czero=False):
    d = vr(LA + 4 * q, 4)
    return f"{MF} {d}, {vr(ONES,4)}, {vr(P_+4*q,4)}, {'0' if czero else d}"

def attn_stage(b, k, nq, extra=None, fill=None):
    kk = k % 32; u = k % 8
    slots = []; gaps = [[] for _ in range(NS)]
    for q in (0, 1):
        for kt in range(2):
            for s in range(4): slots.append(qk(q, kt, s))
    for q in (2, 3):
        for T in range(8): slots.append(pv(q, T, kk == 1) if (q < nq and kk > 0) else None)
        if LM: slots.append(lsm(q, kk == 1) if (q < nq and kk > 0) else None)
    for q in (2, 3):
        for kt in range(2):
            for s in range(4): slots.append(qk(q, kt, s) if q < nq else None)
    for q in (0, 1):
        for T in range(8): slots.append(pv(q, T, kk == 0))
        if LM: slots.append(lsm(q, kk == 0))
    for g, key in sm_items(nq, 0, 2 * NS if kk > 0 else NS): gaps[g % NS].append(sm_text(*key))
    for g, x in zip(V_GAPS, v_reads(u, k)): gaps[g].append(x)
    DIST = 6
    if k % 2 == 1 and k < 63:
        gaps[BG - 1].append(f"WAITV lgkmcnt(0) ; cover=KV{k+1},KV{k+2}" + (",WT" if kk == 11 else ""))
        gaps[BG].append(f"s_barrier ; pub=KV{k+1},KV{k+2}")
    else:
        gaps[BG].append("s_waitcnt lgkmcnt(0)")
    if k < 63:
        for g, x in zip(K_GAPS, k_reads((u + 1) % 8, k + 1)): gaps[g].append(x)
        gaps[NS - 1].append("s_waitcnt lgkmcnt(0)")
    if k + DIST < 64 and not (OPT.get('e67') and k < 2):
        kd, vd = k_dma(k + DIST), v_dma(k + DIST)
        gaps[D_GAPS[0] - 1].append(kd[0]); gaps[D_GAPS[2] - 1].append(vd[0])
        for x, g in zip(kd[1:] + vd[1:], D_GAPS): gaps[g].append(x)
        gaps[44] += kv_adv()
    for i_ in range(OPT.get('slow', 0)): gaps[2 + 2 * i_].append('v_nop\nv_nop\nv_nop\nv_nop')
    if extra:
        for g, x in extra: gaps[g].append(x)
    if fill:
        cost = lambda x: 2 if x.startswith('v_exp') else (1 if x.startswith(('v_', 'ds_', 'buffer_')) else 0)
        room = [max(0, 2 - sum(cost(x) for x in gaps[g])) if slots[g] else 0 for g in range(NS)]
        left = len(fill) - sum(room)
        live = [g for g in range(NS) if slots[g]]
        for i_ in range(max(left, 0)): room[live[(i_ * len(live)) // left]] += 1
        for g in range(NS):
            for _ in range(room[g]):
                if fill: gaps[g].append(fill.pop(0))
        assert not fill
    if OPT.get('astamps') and k % 2 == 0: stamp(b)
    if OPT.get('dmaonly'):
        slots = [None] * NS
        gaps = [[x for x in g if not x.startswith(('v_', 'ds_'))] for g in gaps]
    emit_slots(b, slots, gaps)

def xlane_reduce(b, reg, tmp, op):
    b(f"v_mov_b32 v{tmp}, v{reg}")
    b(f"v_permlane32_swap_b32 v{reg}, v{tmp}")
    b(f"{op} v{reg}, v{reg}, v{tmp}")
    b(f"v_mov_b32 v{tmp}, v{reg}")
    b(f"v_permlane16_swap_b32 v{reg}, v{tmp}")
    b(f"{op} v{reg}, v{reg}, v{tmp}")

def xlane_reduce_multi(b, regs, tmps, op):
    for sw in ("v_permlane32_swap_b32", "v_permlane16_swap_b32"):
        for r, t in zip(regs, tmps): b(f"v_mov_b32 v{t}, v{r}")
        for r, t in zip(regs, tmps): b(f"{sw} v{r}, v{t}")
        for r, t in zip(regs, tmps): b(f"{op} v{r}, v{r}, v{t}")

def stamp(b, idx=None):
    if not OPT['stamps']: return
    b(f"s_memtime s[{sSTAMP}:{sSTAMP+1}]\ns_memrealtime s[{sSTAMP+2}:{sSTAMP+3}]\ns_waitcnt lgkmcnt(0)")
    b(f"s_mov_b32 s95, m0\ns_mov_b32 m0, s96\nv_writelane_b32 v14, s{sSTAMP}, m0\nv_writelane_b32 v15, s{sSTAMP+2}, m0\ns_mov_b32 m0, s95\ns_add_u32 s96, s96, 1")

def stamp_dump(b, k, wave):
    if not OPT['stamps']: return
    b("s_waitcnt vmcnt(0)")
    stamp(b)
    if OPT['stamps'] == 2:
        b("s_load_dwordx2 s[92:93], s[0:1], 88\ns_waitcnt lgkmcnt(0)")
        b(f"s_cmp_lg_u32 s{wave}, 0\ns_cbranch_scc1 L_end{k+1}\ns_and_b32 s94, s97, 31\ns_cmp_lg_u32 s94, 5\ns_cbranch_scc1 L_end{k+1}")
        b(f"s_add_u32 s88, s92, {OPT.get('dbgoff',0)*(1-k)}\ns_addc_u32 s89, s93, 0\ns_mov_b32 s90, 256\ns_mov_b32 s91, 0x20000")
        sel = [0, 2, 3, 6, 7, 9, 10, 11] if k == 0 else [0, 1, 2, 3]
        b("s_mov_b64 exec, 1")
        for i, ix in enumerate(sel):
            b(f"v_readlane_b32 s94, v15, {ix}\ns_nop 3")
            if i == 0 and k == 0: b("s_not_b32 s94, s94")
            b(f"v_mov_b32 v1, s94\nv_mov_b32 v2, {4*(i + (0 if k == 0 else 8))}\nbuffer_atomic_umax v1, v2, s[88:91], 0 offen")
        return
    b("s_getreg_b32 s94, hwreg(HW_REG_XCC_ID)\nv_writelane_b32 v14, s94, 63")
    b("s_load_dwordx2 s[92:93], s[0:1], 96\ns_waitcnt lgkmcnt(0)")
    b(f"s_add_u32 s88, s92, {(48+k)*1024*1024}\ns_addc_u32 s89, s93, 0\ns_mov_b32 s90, 0x100000\ns_mov_b32 s91, 0x20000")
    b(f"s_lshl_b32 s94, s97, 2\ns_add_u32 s94, s94, s{wave}\ns_lshl_b32 s94, s94, 9")
    b("v_and_b32 v1, 63, v0\nv_lshlrev_b32 v1, 3, v1")
    b("buffer_store_dwordx2 v[14:15], v1, s[88:91], s94 offen")

def persist_regs(b):
    lane = T0; t1 = T0 + 1; t2 = T0 + 2; t3 = T0 + 3; g_ = T0 + 4; ihi = T0 + 5; i8 = T0 + 6; i16 = T0 + 7; r_ = T0 + 8; c4 = T0 + 9
    b(f"""v_and_b32 v{lane}, 63, v0
    v_lshrrev_b32 v{g_}, 4, v{lane}
    v_lshrrev_b32 v{ihi}, 3, v{lane}
    v_and_b32 v{i8}, 7, v{lane}
    v_and_b32 v{i16}, 15, v{lane}
    v_lshrrev_b32 v{r_}, 2, v{i16}
    v_and_b32 v{c4}, 3, v{lane}
    v_lshlrev_b32 v{VLN}, 4, v{lane}
    s_add_u32 s71, s63, s{sWB}
    v_add_u32 v{VO}, s71, v{VLN}""")
    b(f"""s_lshl_b32 s70, s{sWAVE}, 11
    v_lshlrev_b32 v{t1}, 8, v{g_}
    v_add_u32 v{t1}, s70, v{t1}
    s_and_b32 s70, s{sWAVE}, 1
    s_lshl_b32 s70, s70, 3
    v_xor_b32 v{t2}, v{i16}, v{g_}
    v_xor_b32 v{t2}, s70, v{t2}
    v_lshl_add_u32 v{DK0}, v{t2}, 4, v{t1}
    v_xor_b32 v{DK1}, 64, v{DK0}
    v_lshlrev_b32 v{t2}, 1, v{g_}
    v_xor_b32 v{t3}, v{t2}, v{i16}
    v_lshl_add_u32 v{DV0}, v{t3}, 4, v{t1}
    v_xor_b32 v{DV1}, 128, v{DV0}""")
    b(f"""v_mul_u32_u24 v{t1}, 1152, v{ihi}
    v_lshl_add_u32 v{t1}, v{i8}, 4, v{t1}
    s_lshl_b32 s70, s{sWAVE}, 7
    v_add_u32 v{VWO}, s70, v{t1}
    v_lshrrev_b32 v{t1}, 1, v{lane}
    v_mul_u32_u24 v{t1}, 1152, v{t1}
    v_and_b32 v{t2}, 1, v{lane}
    v_lshl_add_u32 v{t1}, v{t2}, 4, v{t1}
    s_lshl_b32 s70, s{sWAVE}, 5
    s_add_u32 s70, s70, 1024
    v_add_u32 v{VWX}, s70, v{t1}""")
    b(f"""v_xor_b32 v{t2}, v{g_}, v{i16}
    v_lshlrev_b32 v{t2}, 4, v{t2}
    v_lshl_add_u32 v{KA}, v{i16}, 8, v{t2}""")
    for s_ in range(1, 4): b(f"v_xor_b32 v{KA+s_}, {64*s_}, v{KA}")
    b(f"""v_lshl_add_u32 v{t2}, v{g_}, 2, v{r_}
    v_lshlrev_b32 v{t1}, 8, v{t2}
    v_and_b32 v{t2}, 7, v{t2}
    v_lshl_add_u32 v{t1}, v{t2}, 5, v{t1}
    v_lshl_add_u32 v{t1}, v{c4}, 3, v{t1}
    v_add_u32 v{VA}, 0x10000, v{t1}""")
    for T in range(1, 8): b(f"v_xor_b32 v{VA+T}, {32*T}, v{VA}")
    b(f"""v_lshl_add_u32 v{t2}, v{g_}, 2, v{r_}
    v_lshlrev_b32 v{t1}, 7, v{t2}
    v_lshl_add_u32 v{t1}, v{c4}, 3, v{t1}
    s_lshr_b32 s70, s{sWAVE}, 1
    s_lshl_b32 s70, s70, 16
    s_and_b32 s71, s{sWAVE}, 1
    s_lshl_b32 s{sWOS}, s71, 13
    s_add_u32 s{sWOS}, s{sWOS}, s70
    s_lshl_b32 s{sWTS}, s71, 10
    s_add_u32 s{sWTS}, s{sWTS}, s70
    s_add_u32 s{sWTS}, s{sWTS}, 47104
    v_add_u32 v{VWA}, s{sWOS}, v{t1}
    v_lshlrev_b32 v{t1}, 3, v{lane}
    v_add_u32 v{VWE}, s{sWTS}, v{t1}""")

def late_setup(b, sfx):
    b(f"s_cmp_lg_u32 s{sSAFE}, 0\ns_cbranch_scc1 L_late{sfx}")
    b(f"""s_lshl_b32 s71, s68, 4
    s_add_u32 s71, s71, s69
    s_lshl_b32 s70, s71, 19
    s_add_u32 s{SK}, s50, s70
    s_addc_u32 s{SK+1}, s51, 0
    s_mov_b32 s{SK+2}, 524288
    s_mov_b32 s{SK+3}, 0x20000
    s_add_u32 s{SV}, s52, s70
    s_addc_u32 s{SV+1}, s53, 0
    s_mov_b32 s{SV+2}, 524288
    s_mov_b32 s{SV+3}, 0x20000
    s_mul_i32 s70, s3, {O_BLK}
    s_add_u32 s{SO}, s100, s70
    s_addc_u32 s{SO+1}, s101, 0
    s_mov_b32 s{SO+2}, {O_BLK}
    s_mov_b32 s{SO+3}, 0x20000
    s_mul_i32 s70, s71, 36864
    s_add_u32 s{SWO}, s56, s70
    s_addc_u32 s{SWO+1}, s57, 0
    s_mov_b32 s{SWO+2}, 36864
    s_mov_b32 s{SWO+3}, 0x20000
    s_mul_i32 s71, s3, {WOT_BLK}
    s_add_u32 s70, s70, s71
    s_add_u32 s70, s70, {WOT_OFF}
    s_add_u32 s{SWT}, s100, s70
    s_addc_u32 s{SWT+1}, s101, 0
    s_mov_b32 s{SWT+2}, 36864
    s_mov_b32 s{SWT+3}, 0x20000
    s_mul_i32 s62, s69, {8*122880}
    s_mul_i32 s63, s68, 15360        ; b*15*1024
    s_add_u32 s{SCN}, s100, {CNT_OFF}
    s_addc_u32 s{SCN+1}, s101, 0
    s_mov_b32 s{SCN+2}, 24576
    s_mov_b32 s{SCN+3}, 0x20000
    s_mov_b64 s[{SDB}:{SDB+1}], s[78:79]
    s_mov_b32 s{SDB+2}, 256
    s_mov_b32 s{SDB+3}, 0x20000
    s_mov_b64 s[{SIN}:{SIN+1}], s[{SCN}:{SCN+1}]
    s_mov_b32 s{SIN+3}, 0x20000
    s_mov_b64 s[{SIF}:{SIF+1}], s[78:79]
    s_mov_b32 s{SIF+3}, 0x20000
    s_lshl_b32 s70, s3, 3
    s_add_u32 s70, s70, s68
    s_lshl_b32 s{sCO}, s70, 2
    s_lshr_b32 s71, s69, 2
    s_add_u32 s{sCO}, s{sCO}, s71
    s_lshl_b32 s{sCO}, s{sCO}, 7
    s_lshr_b32 s{sCW}, s70, 1
    s_lshl_b32 s{sCW}, s{sCW}, 7
    s_add_u32 s{sCW}, s{sCW}, 8192
    s_mul_i32 s68, s2, 43
    s_lshr_b32 s68, s68, 8             ; jj = j/6   (output-projection tile of this workgroup)
    s_mul_i32 s69, s68, 6
    s_sub_u32 s69, s2, s69             ; nt
    s_and_b32 s70, s97, 3
    s_lshl_b32 s78, s3, 2
    s_add_u32 s78, s78, s70
    s_lshl_b32 s78, s78, 1             ; blk*8 + 2x
    s_cmp_ge_u32 s68, 3
    s_addc_u32 s79, s78, 0
    s_cmp_ge_u32 s68, 2
    s_addc_u32 s78, s78, 0
    s_lshl_b32 s78, s78, 2
    s_lshl_b32 s79, s79, 2
    s_add_u32 s78, s78, s{sWAVE}
    s_add_u32 s79, s79, s{sWAVE}
    s_lshl_b32 s78, s78, 7
    s_lshl_b32 s79, s79, 7
    s_mul_i32 s70, s70, 5
    s_add_u32 s68, s68, s70            ; mt
    s_mul_i32 s70, s3, {O_BLK}
    s_mul_i32 s71, s68, 6144
    s_add_u32 s70, s70, s71
    s_add_u32 s{SO2}, s100, s70
    s_addc_u32 s{SO2+1}, s101, 0
    s_sub_u32 s{SO2+2}, {O_BLK}, s71
    s_mov_b32 s{SO2+3}, 0x20000
    s_mul_i32 s70, s3, {WOT_BLK}
    s_mul_i32 s71, s69, 6144
    s_add_u32 s70, s70, s71
    s_add_u32 s70, s70, {WOT_OFF}
    s_add_u32 s{SW2}, s100, s70
    s_addc_u32 s{SW2+1}, s101, 0
    s_sub_u32 s{SW2+2}, {WOT_BLK}, s71
    s_mov_b32 s{SW2+3}, 0x20000
    s_cmp_ge_u32 s97, 240
    s_cselect_b32 s{SO2+2}, 0, s{SO2+2}   ; workgroups without an output tile load nothing
    s_cselect_b32 s{SW2+2}, 0, s{SW2+2}
    s_mov_b32 s100, s{SO2+2}
    s_mov_b32 s101, s{SW2+2}
    s_lshr_b32 s70, s{sWAVE}, 1
    s_mul_i32 s70, s70, {48*2304}
    s_mul_i32 s{sOUTO}, s68, {96*2304}
    s_add_u32 s{sOUTO}, s{sOUTO}, s70
    s_mul_i32 s70, s3, 1152
    s_add_u32 s{sOUTO}, s{sOUTO}, s70
    s_mul_i32 s70, s69, 192
    s_add_u32 s{sOUTO}, s{sOUTO}, s70
    s_and_b32 s70, s{sWAVE}, 1
    s_mul_i32 s70, s70, 96
    s_add_u32 s{sOUTO}, s{sOUTO}, s70
    s_lshl_b32 s70, s3, 2
    s_add_u32 s70, s70, s{sWAVE}
    s_lshl_b32 s70, s70, 7
    s_add_u32 s70, s70, 8192
    v_and_b32 v1, 1, v0
    v_mov_b32 v{VP2}, s78
    v_mov_b32 v2, s79
    v_cmp_eq_u32 vcc, 1, v1
    v_and_b32 v1, 2, v0
    v_mov_b32 v3, s70
    v_cndmask_b32 v{VP2}, v{VP2}, v2, vcc
    v_cmp_eq_u32 vcc, 2, v1
    v_add_u32 v{VPE}, 16384, v{VP2}
    v_mov_b32 v{VTH}, 4
    v_cndmask_b32 v{VPE}, v{VPE}, v3, vcc
    v_mov_b32 v3, 32
    v_cndmask_b32 v{VTH}, v{VTH}, v3, vcc
    s_mov_b32 s{sSIG}, 0""")
    b(f"L_late{sfx}:")
    b(f"""s_or_b32 s70, s97, s{sSAFE}
    s_cmp_eq_u32 s70, 0
    s_cselect_b32 s{SIN+2}, 24576, 0   ; only workgroup 0 (first pass) really initialises the counters
    s_cselect_b32 s{SIF+2}, 4, 0
    s_mov_b32 s{sOO}, s62
    s_mov_b32 s{sLATE}, 0
    s_mov_b32 s{SO2+2}, s100
    s_mov_b32 s{SW2+2}, s101
    s_mul_i32 s{sO2}, s{sWAVE}, {32*122880}
    s_mul_i32 s{sW2}, s{sWAVE}, {32*36864}
    s_mov_b32 s{sPF}, 0x40000
    s_lshl_b32 s{sKB}, s{sWAVE}, 11""")

def warm_code(b):
    if not OPT.get('warm'): return
    b(f"""s_getpc_b64 s[70:71]
    L_pc:
    s_sub_u32 s70, s70, L_pc-attn_kernel
    s_subb_u32 s71, s71, 0
    v_lshrrev_b32 v2, 3, v0
    v_and_b32 v2, 31, v2
    v_lshl_add_u32 v2, s2, 5, v2
    v_lshlrev_b32 v2, 7, v2
    v_min_u32 v2, L_codeend-attn_kernel-4, v2
    v_mov_b32 v3, s71
    v_add_co_u32 v2, vcc, s70, v2
    v_addc_co_u32 v3, vcc, 0, v3, vcc
    global_load_dword v4, v[2:3], off""")

def prologue_a(b):
    lane = T0; t1 = T0 + 1; t2 = T0 + 2; t3 = T0 + 3; g_ = T0 + 4; ihi = T0 + 5; i8 = T0 + 6
    b(f"""v_and_b32 v{lane}, 63, v0
    v_lshrrev_b32 v{g_}, 4, v{lane}
    v_lshrrev_b32 v{ihi}, 3, v{lane}
    v_and_b32 v{i8}, 7, v{lane}""")
    b(f"s_lshl_b32 s{sT}, s{sWAVE}, 6")
    b(f"v_add_u32 v{t1}, s{sT}, v{ihi}")
    b(f"v_mul_u32_u24 v{t1}, 1152, v{t1}")
    for j in range(4):
        b(f"v_xor_b32 v{t2}, {4*(j%2)}, v{g_}")
        b(f"v_xor_b32 v{t2}, v{t2}, v{i8}")
        b(f"v_lshl_add_u32 v{t2}, v{t2}, 4, v{t1}")
        b(f"v_add_u32 v{DX+j}, {8*j*1152 - 1024*j}, v{t2}")
    b(f"""s_and_b32 s{sT}, s{sWAVE}, 1
    s_lshl_b32 s{sT}, s{sT}, 18
    s_lshr_b32 s{sT+1}, s{sWAVE}, 1
    s_lshl_b32 s{sT+1}, s{sT+1}, 7
    s_add_u32 s{sT}, s{sT}, s{sT+1}
    v_lshlrev_b32 v{t1}, 13, v{ihi}
    v_add_u32 v{t1}, s{sT}, v{t1}
    v_lshrrev_b32 v{t2}, 2, v{i8}
    v_xor_b32 v{t2}, v{t2}, v{g_}
    v_and_b32 v{t2}, 1, v{t2}
    v_lshl_add_u32 v{t1}, v{t2}, 6, v{t1}
    v_and_b32 v{t2}, 3, v{i8}
    v_lshl_add_u32 v{t1}, v{t2}, 4, v{t1}""")
    for j in range(4): b(f"v_add_u32 v{DW+j}, {8*j*8192 - 1024*j}, v{t1}")
    b(f"""s_mov_b32 s{sXO}, 0
    s_mov_b32 s{sXO2}, 36864
    s_mov_b32 s{sWOFF}, 0
    s_mov_b32 s{sKV}, 0
    s_mov_b32 s{sHEAD}, 0""")

def prologue_b(b):
    lane = T0; t1 = T0 + 1; t2 = T0 + 2; t3 = T0 + 3; g_ = T0 + 4; ihi = T0 + 5; i8 = T0 + 6
    if OPT.get('sstamps'): stamp(b)
    b.ext(x_dma(0, 4)); b.ext(w_dma(0, 4))
    if OPT.get('sstamps'): stamp(b)
    if OPT.get('xw'):
        pf = K2F[OPT.get('xwf', 0)]
        b(f"""s_lshr_b32 s70, s2, 2
        s_mul_i32 s70, s70, 270
        s_mul_i32 s71, s{sWAVE}, 68
        s_add_u32 s70, s70, s71
        s_lshl_b32 s70, s70, 7
        v_lshlrev_b32 v5, 7, v{lane}
        buffer_load_dword v6, v5, s[{SX}:{SX+3}], s70 offen{pf}
        s_and_b32 s70, s2, 3
        s_lshl_b32 s70, s70, 2
        s_add_u32 s70, s70, s{sWAVE}
        s_lshl_b32 s70, s70, 13
        v_lshrrev_b32 v5, 2, v{lane}
        v_lshlrev_b32 v5, 17, v5
        v_and_b32 v7, 3, v{lane}
        v_lshl_add_u32 v5, v7, 7, v5
        buffer_load_dword v6, v5, s[{SW}:{SW+3}], s70 offen{pf}
        s_add_u32 s70, s70, {256*8192}
        buffer_load_dword v6, v5, s[{SW}:{SW+3}], s70 offen{pf}
        s_add_u32 s70, s70, {256*8192}
        buffer_load_dword v6, v5, s[{SW}:{SW+3}], s70 offen{pf}""")
    late_setup(b, "")
    persist_regs(b)
    b(f"""v_mov_b32 v{VONE}, 1
    s_and_b32 s70, s{sWAVE}, 1
    s_mul_i32 s70, s70, 3072
    s_sub_u32 s71, 3072, s70
    v_add_u32 v{VPW}, s70, v{VLN}
    v_add_u32 v{VPW+1}, s71, v{VLN}
    s_lshr_b32 s70, s{sWAVE}, 1
    s_mul_i32 s70, s70, 3072
    s_sub_u32 s71, 3072, s70
    v_add_u32 v{VPO}, s70, v{VLN}
    v_add_u32 v{VPO+1}, s71, v{VLN}""")
    i16 = T0 + 7; r_ = T0 + 8; c4 = T0 + 9
    b(f"""v_and_b32 v{i16}, 15, v{lane}
    v_lshrrev_b32 v{r_}, 2, v{i16}
    v_and_b32 v{c4}, 3, v{lane}
    v_lshlrev_b32 v{t1}, 7, v{i16}
    v_add_u32 v{t1}, s{sXB}, v{t1}
    v_add_u32 v{t1}, 16384, v{t1}
    v_lshrrev_b32 v{t3}, 1, v{i16}""")
    for s in range(2):
        b(f"v_xor_b32 v{t2}, {4*s}, v{g_}")
        b(f"v_xor_b32 v{t2}, v{t2}, v{t3}")
        b(f"v_lshl_add_u32 v{XA+s}, v{t2}, 4, v{t1}\nv_add_u32 v{XA+2+s}, 65536, v{XA+s}")
    b(f"""v_lshl_add_u32 v{t1}, v{g_}, 3, v{r_}
    v_lshlrev_b32 v{t1}, 7, v{t1}
    v_lshl_add_u32 v{t1}, v{c4}, 4, v{t1}
    v_add_u32 v{t1}, 49152, v{t1}
    v_lshrrev_b32 v{t3}, 1, v{r_}""")
    for sp in range(2):
        b(f"v_xor_b32 v{t2}, {sp}, v{t3}")
        b(f"v_lshl_add_u32 v{WA+sp}, v{t2}, 6, v{t1}\nv_add_u32 v{WA+2+sp}, 65536, v{WA+sp}")
    if OPT.get('sstamps'): stamp(b)
    b.ext(w_dma(1, 4)); b.ext(x_dma(1, 4))

def wave_code(b, nq, sfx):
    nx = 8 if nq == 4 else 6
    b(f"L_begin{sfx}:")
    if nq == 3:
        b(f"v_mov_b32 v{VHS}, 0\nv_lshlrev_b32 v{VCW}, 3, v{VLN}")
        b(f"buffer_store_dword v{VHS}, v{VCW}, s[{SIN}:{SIN+3}], 0 offen sc1 ; tag=INIT")
        b(f"s_mov_b32 s{sT}, 8192\nbuffer_store_dword v{VHS}, v{VCW}, s[{SIN}:{SIN+3}], s{sT} offen sc1 ; tag=INIT")
        b(f"s_mov_b32 s{sT}, 16384\nbuffer_store_dword v{VHS}, v{VCW}, s[{SIN}:{SIN+3}], s{sT} offen sc1 ; tag=INIT")
    stamp(b, 0)
    b("WAITV ; cover=X0,W0")
    b("s_barrier ; pub=X0,W0")
    b.ext(x_reads(0, nq))
    for T in (0, 1): b.ext(w_reads(0, T))
    b.ext(w_reads(0, 2)[:3])
    b("WAITL W0.0")
    stamp(b, 1)
    for n in range(0, 12): qproj_stage(b, n, nq)
    fill = []; post = []
    for sp in range(4):
        for q in range(nq):
            rs = [128 + 32 * q + 8 * sp + 2 * i_ for i_ in range(4)]
            for r in rs: fill += [f"v_mul_f32 v{r}, s{sC}, v{r}", f"v_mul_f32 v{r+1}, s{sC}, v{r+1}"]
            for r in rs: fill.append(f"v_cvt_pk_bf16_f32 v{r}, v{r}, v{r+1}")
            for i_, r in enumerate(rs): fill.append(f"v_accvgpr_write_b32 a{AQ(q) + 4*sp + i_}, v{r}")
    for n in range(12, 18): qproj_stage(b, n, nq, fill if n >= 16 else None)
    stamp(b, 2)
    conv2 = []
    for q in range(nq):
        for h in range(8):
            r = 128 + 32 * q + 4 * h
            conv2 += [f"v_accvgpr_read_b32 v{4+i_}, a{r+i_}" for i_ in range(4)]
            conv2 += [f"v_mul_f32 v{4+i_}, s{sC}, v{4+i_}" for i_ in range(4)]
            conv2 += ["v_cvt_pk_bf16_f32 v4, v4, v5", "v_cvt_pk_bf16_f32 v6, v6, v7",
                      f"v_accvgpr_write_b32 a{AQ2(q)+2*h}, v4", f"v_accvgpr_write_b32 a{AQ2(q)+2*h+1}, v6"]
    def pre_mfma(): return [qk(q, 0, s_, czero=True) for q in range(nq) for s_ in range(4)]
    def pre_max():
        t = B()
        for q in range(nq):
            s_ = S_ + 8 * q
            t(f"v_max3_f32 v{s_}, v{s_}, v{s_+1}, v{s_+2}")
        for q in range(nq):
            s_ = S_ + 8 * q
            t(f"v_max_f32 v{s_}, v{s_}, v{s_+3}")
        xlane_reduce_multi(t, [S_ + 8 * q for q in range(nq)], [T0 + q for q in range(nq)], "v_max_f32")
        for q in range(nq):
            for r in range(4): t(f"v_sub_f32 v{CI+4*q+r}, 0, v{S_+8*q}")
        return t.L
    def weave(mf, st, per):
        for x in mf:
            b(x)
            for _ in range(per):
                if st: b(st.pop(0))
    def zipper(a_, b_, ra, rb):
        out = []
        while a_ or b_:
            for _ in range(ra):
                if a_: out.append(a_.pop(0))
            for _ in range(rb):
                if b_: out.append(b_.pop(0))
        return out
    b.ext(k_reads(0, 0))
    b.ext(fill)
    b(f"v_and_b32 v4, 3, v0\nv_mov_b32 v5, 0x3f803f80\nv_cmp_eq_u32 vcc, 0, v4")
    for i_ in range(4): b(f"v_cndmask_b32 v{ONES+i_}, 0, v5, vcc")
    b("s_waitcnt lgkmcnt(0)")
    b.ext(pre_mfma())
    b.ext(pre_max())
    stamp(b, 3)
    for i_ in range(OPT.get('pause', 0)): b('s_sleep 32')
    if OPT.get('skew'):
        b(f"s_lshr_b32 s{sT}, s97, 3\ns_and_b32 s{sT}, s{sT}, 7\nL_skew{sfx}:\ns_cmp_eq_u32 s{sT}, 0\ns_cbranch_scc1 L_skewd{sfx}\ns_sleep {OPT['skew']}\ns_sub_u32 s{sT}, s{sT}, 1\ns_branch L_skew{sfx}\nL_skewd{sfx}:")
    adv8 = lambda x: x
    def head_start(hd):
        b(f"s_cmp_lg_u32 s{sSAFE}, 0\ns_cbranch_scc1 L_maxpass{sfx}\nL_maxdone{hd}{sfx}:")
        if not LM:
            for q in range(nq): b(f"v_mov_b32 v{LS+q}, 0")
        stamp(b)
    head_start(0)
    per = -(-len(conv2) // 8); tot_ = len(conv2)
    for k in range(8):
        ex = []
        if k == 6 and nq == 3:
            ex = [(46, "WAITV ; cover=HS"), (47, f"v_readfirstlane_b32 s{sT}, v{VHS}\ns_cmp_eq_u32 s{sT}, 0\ns_cbranch_scc1 L_hspin\nL_hsok:")]
        cnt_ = per
        if OPT.get('front'): cnt_ = -(-tot_ * {1: (8, 8, 7, 7, 6, 5, 4, 3), 2: (3, 4, 5, 6, 7, 7, 8, 8), 3: (12, 12, 12, 12, 0, 0, 0, 0)}[OPT['front']][k] // 48)
        attn_stage(b, k, nq, ex, fill=[conv2.pop(0) for _ in range(min(cnt_, len(conv2)))])
    b(f"L_atin{sfx}:")
    b(f"s_mov_b32 s{sCNT}, 0")
    b(f".p2align 3\nL_at{sfx}:")
    b("LOOPBEGIN at 3 8")
    for k in range(8, 16):
        ex = []
        if k == 11 and nq == 3:
            ex = [(59, f"""s_xor_b32 s{sT+1}, s{sHEAD}, 1
            s_or_b32 s{sT}, s{sCNT}, s{sT+1}
            s_cbranch_scc0 L_sig
            L_nosig:""")]
        if k == 15: ex = [(NS - 6, f"s_add_u32 s{sCNT}, s{sCNT}, 1"), (NS - 4, f"s_add_u32 s{sT}, s{sCNT}, s{sHEAD}"), (NS - 2, f"s_cmp_lt_u32 s{sT}, 3")]
        attn_stage(b, k, nq, ex)
    if OPT.get('midgap'):
        b(f"s_cselect_b32 s{sT+1}, 1, 0\ns_lshl_b32 s{sT}, s{sHEAD}, 4\ns_add_u32 s{sT}, s{sT}, s{sCNT}\ns_cmp_eq_u32 s{sT}, {OPT.get('midat', 1)}\ns_cbranch_scc0 L_ng{sfx}")
        for i_ in range(OPT['midgap']): b("s_sleep 16")
        b(f"L_ng{sfx}:\ns_cmp_eq_u32 s{sT+1}, 1")
    b(f"s_cbranch_scc1 L_at{sfx}")
    b("LOOPEND at")
    b(f"L_atx{sfx}:")
    b(f"s_cmp_lg_u32 s{sHEAD}, 0\ns_cbranch_scc1 L_fin{sfx}")

    def lsum(qs):
        t = B()
        if not LM: xlane_reduce_multi(t, [LS + q for q in qs], [T0 + 4 + q for q in qs], "v_add_f32")
        for q in qs:
            src = LA + 4 * q if LM else LS + q
            t(f"v_cmp_ngt_f32 vcc, {LTHR}, v{src}")
            t(f"v_rcp_f32 v{LS+q}, v{src}")
            t(f"s_or_b32 s{sFLAG}, s{sFLAG}, vcc_lo\ns_or_b32 s{sFLAG}, s{sFLAG}, vcc_hi")
        return t.L
    cnt = [0]
    def onorm(q, pk, flag):
        out = []
        for sp in range(4):
            d = P_ + 4 * (cnt[0] % 2); cnt[0] += 1
            rs = [O_ + 32 * q + 8 * sp + 2 * i_ for i_ in range(4)]
            for r in rs:
                if pk and OPT.get('pk', 1): out.append(f"v_pk_mul_f32 v[{r}:{r+1}], v[{r}:{r+1}], v[{LS+q-(q%2)}:{LS+q-(q%2)+1}] op_sel:[0,{q%2}] op_sel_hi:[1,{q%2}]")
                else: out += [f"v_mul_f32 v{r}, v{r}, v{LS+q}", f"v_mul_f32 v{r+1}, v{r+1}, v{LS+q}"]
            for i_, r in enumerate(rs): out.append(f"v_cvt_pk_bf16_f32 v{d+i_}, v{r}, v{r+1}")
            if flag is None:
                for i_ in range(4): out.append(f"v_accvgpr_write_b32 a{AST+16*q+4*sp+i_}, v{d+i_}")
                continue
            out.append(f"s_add_u32 s{sT}, s{sOO}, {sp*122880}")
            out.append(f"buffer_store_dwordx4 {vr(d,4)}, v{VO}, s[{SO}:{SO+3}], s{sT} offen offset:{1024*q}{flag}")
        return out
    def drain(st, ld=None):
        slots = []; gaps = [[] for _ in range(18)]
        for q in (2, 3):
            for T in range(8): slots.append(pv(q, T) if q < nq else None)
            slots.append(lsm(q) if (q < nq and LM) else None)
        rem = sorted(sm_items(nq, NS, 2 * NS), key=lambda t: t[0])
        b.ext([sm_text(*k_) for g, k_ in rem if k_[1] == 2 and k_[0] != 'add'])
        crit = sorted([k_ for g, k_ in rem if k_[1] == 3 and k_[0] != 'add'], key=lambda k_: (k_[2], k_[0] == 'cvt'))
        g = 0
        for k_ in crit:
            if k_[0] == 'exp' and gaps[min(g, 6)]: g += 1
            gaps[min(g, 6)].append(sm_text(*k_))
            if k_[0] == 'exp' or len(gaps[min(g, 6)]) == 2: g += 1
        late = [sm_text(*k_) for g_, k_ in rem if k_[0] == 'add']
        for i_, x in enumerate(late): gaps[min(9 + i_ // 2, 16) if nq == 4 else 0].append(x)
        for g in range(18):
            if slots[g] is None: continue
            room = 2 - sum(2 if 'exp' in x else 1 for x in gaps[g])
            while room > 0 and st: gaps[g].append(st.pop(0)); room -= 1
        for i_, s_ in enumerate(slots):
            if s_: b(s_)
            if s_ and ld:
                b(ld.pop(0))
                while ld and ld[0].startswith("s_"): b(ld.pop(0))
            b.ext(gaps[i_])
    hi = list(range(2, nq))
    movs = [f"v_accvgpr_mov_b32 a{AQ(q)+i_}, a{AQ2(q)+i_}" for q in range(nq) for i_ in range(16)]
    f0 = None if OPT.get('defer') else ' sc1 ; tag=WT'
    st = lsum([0, 1]) + onorm(0, False, f0)
    drain(st)
    stamp(b, 4)
    b.ext(zipper(st, lsum(hi), 2, 1))
    b.ext(movs)
    st = onorm(1, False, f0)
    weave(pre_mfma(), st, 3 if nq == 4 else 4)
    b.ext(st)
    rest = []
    for q in hi: rest += onorm(q, True, f0)
    b.ext(zipper(rest, pre_max(), 2, 1))
    b.ext(vote_write())
    b(f"s_mov_b32 s{sOP}, s{sOO}\ns_add_u32 s{sOO}, s{sOO}, {4*122880}\ns_mov_b32 s{sHEAD}, 1")
    if OPT.get('emub'):
        b(f"s_and_b32 s{sT}, s97, 3\ns_cmp_eq_u32 s{sT}, s{sCNT}" if False else "")
        b(f"s_mov_b32 s{sT}, 0\nL_duma{sfx}:")
        for i_ in range(64):
            if (i_ // 2) % 4 >= nq: continue
            b(f"{MF} a[{192+4*(i_//2%16)}:{195+4*(i_//2%16)}], a[{4*(i_%8)}:{4*(i_%8)+3}], a[{32+4*(i_%7)}:{35+4*(i_%7)}], a[{192+4*(i_//2%16)}:{195+4*(i_//2%16)}]")
            if i_ % 2 == 0: b(f"ds_read_b64_tr_b16 v[4:5], v{VA + i_ % 8} offset:{(i_ % 16) * 4096}")
        b(f"s_waitcnt lgkmcnt(0)\ns_barrier\ns_add_u32 s{sT}, s{sT}, 1\ns_cmp_lt_u32 s{sT}, 8\ns_cbranch_scc1 L_duma{sfx}")
    head_start(1)
    dst = [(q, sp) for q in range(nq) for sp in range(4)] if OPT.get('defer') else []
    for k in range(32, 40):
        ex = []
        for g in (6, 36):
            if dst:
                q, sp = dst.pop(0)
                ex += [(g - 1, f"s_add_u32 s{sT+1}, s{sOP}, {sp*122880}"),
                       (g, f"buffer_store_dwordx4 {ar(AST+16*q+4*sp,4)}, v{VO}, s[{SO}:{SO+3}], s{sT+1} offen offset:{1024*q} sc1 ; tag=WT")]
        attn_stage(b, k, nq, ex)
    b(f"s_branch L_atin{sfx}")
    b("REPLAY at 32 2")
    b(f"L_fin{sfx}:")
    f1 = K2F[OPT.get('of', 0)]
    early = p2_w(0) + p2_o(0) + p2_adv(0) + p2_w(1) + p2_o(1) + p2_adv(1)
    for k in range(56, 64):
        ex = []
        if k == 56: ex = [(6, f"buffer_load_dword v{VCW}, v{VPE}, s[{SCN}:{SCN+3}], 0 offen sc1 ; tag=CW")]
        if k == 59: ex = [(NS - 3, f"WAITV ; cover=CW\nv_cmp_gt_u32 vcc, v{VTH}, v{VCW}\ns_cbranch_vccnz L_espin{sfx}\nL_eok{sfx}:")]
        if k >= 60:
            for g in (3, 7, 11, 17, 23, 45 if LM else 44):
                ex.append((g, early.pop(0)))
                while early and early[0].startswith("s_"): ex.append((g + 1, early.pop(0)))
        attn_stage(b, k, nq, ex)
    assert not early
    p2 = []
    for s_ in (2, 3): p2 += p2_w(s_) + p2_o(s_) + p2_adv(s_)
    st = lsum([0, 1]) + onorm(0, False, f1)
    drain(st, p2)
    stamp(b, 4)
    body = st + zipper(onorm(1, True, f1), lsum(hi), 2, 1)
    for q in hi: body += onorm(q, True, f1)
    body = [x + " ; tag=OS" if x.startswith("buffer_store") else x for x in body]
    nld = sum(1 for x in p2 if x.startswith("buffer_"))
    per = max(1, len(body) // (nld + 2))
    seq = []
    while body or p2:
        if p2:
            seq.append(p2.pop(0))
            while p2 and p2[0].startswith("s_"): seq.append(p2.pop(0))
        for _ in range(per):
            if body: seq.append(body.pop(0))
    outst = 48 - nld
    for x in seq:
        if x.startswith("buffer_"):
            if outst >= 62: b("s_waitcnt vmcnt(52)"); outst = 52
            outst += 1
        b(x)
    b.ext(vote_write())
    stamp(b)
    b(f"L_p2s{sfx}:")
    for s_ in range(4): p2_step(b, s_, s_ == 0, True, f"WAITV ; cover=P{s_} cap=51")
    b("WAITV lgkmcnt(0) ; cover=OS")
    b("s_branch L_vote")
    b(f"""L_espin{sfx}:
    s_mov_b32 s{sLATE}, 1
    s_mov_b32 s{SO2+2}, 0
    s_mov_b32 s{SW2+2}, 0
    s_branch L_eok{sfx}""")
    if nq == 3:
        b(f"""L_sig:
        v_mov_b32 v4, {131072+7168}
        ds_read_b128 v[4:7], v4
        s_waitcnt lgkmcnt(0)
        v_or_b32 v4, v4, v5
        v_or3_b32 v4, v4, v6, v7
        v_readfirstlane_b32 s{sT}, v4
        s_mov_b64 exec, 1
        s_cmp_lg_u32 s{sSAFE}, 0
        s_cselect_b32 s{sT}, 0, s{sT}
        s_cbranch_scc1 L_sig1
        buffer_atomic_add v{VONE}, off, s[{SCN}:{SCN+3}], s{sCW} sc1
        L_sig1:
        s_or_b32 s{sT}, s{sT}, s{sSIG}
        s_cbranch_scc1 L_sig2
        s_add_u32 s{sT}, s{sCO}, 16384
        s_mov_b32 s{sSIG}, 1
        buffer_atomic_add v{VONE}, off, s[{SCN}:{SCN+3}], s{sT} sc1
        L_sig2:
        s_mov_b64 exec, -1
        s_branch L_nosig""")
        b(f"""L_hspin:
        s_mov_b32 s{sCNT}, 0
        L_hsp:
        s_sleep 8
        buffer_load_dword v{VHS}, off, s[{SDB}:{SDB+3}], 0 sc1
        s_waitcnt vmcnt(0)
        v_readfirstlane_b32 s{sT}, v{VHS}
        s_add_u32 s{sCNT}, s{sCNT}, 1
        s_lshr_b32 s{sT+1}, s{sCNT}, 17
        s_or_b32 s{sT}, s{sT}, s{sT+1}
        s_cmp_eq_u32 s{sT}, 0
        s_cbranch_scc1 L_hsp
        s_branch L_hsok""")
    b(f"L_maxpass{sfx}:")
    for q in range(nq): b(f"v_mov_b32 v{T0+8+q}, 0xff800000")
    b(f"s_lshl_b32 s{sT}, s{sHEAD}, 18\ns_mov_b32 s{sCNT}, 0")
    b(f"L_mp{sfx}:")
    b(f"s_barrier\ns_add_u32 m0, s{sKB}, 49152")
    b(dma(DK0, SK, f"s{sT}", 0, "", "MP")); b(dma(DK1, SK, f"s{sT}", 1024, "", "MP"))
    b("s_waitcnt vmcnt(0)\ns_barrier")
    for kt in range(2):
        for s in range(4):
            b(f"ds_read_b128 {ar(ASP+4*(4*kt+s),4)}, v{KA+s} offset:{49152 + kt*4096}")
    b("s_waitcnt lgkmcnt(0)")
    for q in range(nq):
        for kt in range(2):
            for s in range(4):
                d = vr(S_ + 8 * q + 4 * kt, 4)
                b(f"{MF} {d}, {ar(ASP+4*(4*kt+s),4)}, {ar(AQ(q)+4*s,4)}, {d if s else '0'}")
    for q in range(nq):
        for e in range(0, 8, 2): b(f"v_max3_f32 v{T0+8+q}, v{T0+8+q}, v{S_+8*q+e}, v{S_+8*q+e+1}")
    b(f"s_add_u32 s{sT}, s{sT}, 8192\ns_add_u32 s{sCNT}, s{sCNT}, 1\ns_cmp_lt_u32 s{sCNT}, 32\ns_cbranch_scc1 L_mp{sfx}")
    b("s_barrier")
    xlane_reduce_multi(b, [T0 + 8 + q for q in range(nq)], [T0 + q for q in range(nq)], "v_max_f32")
    for q in range(nq):
        for r in range(4): b(f"v_sub_f32 v{CI+4*q+r}, 0, v{T0+8+q}")
    b(f"s_cmp_eq_u32 s{sHEAD}, 0\ns_cbranch_scc1 L_maxdone0{sfx}\ns_branch L_maxdone1{sfx}")

FA = [144, 192, 0, 96]
def p2_reg(slot, i): return FA[slot] + 4 * i
VPW = 2; VPO = 8
def p2_w(slot): return [f"buffer_load_dwordx4 {ar(p2_reg(slot, i),4)}, v{VPW + i//3}, s[{SW2}:{SW2+3}], s{sW2} offen offset:{1024*(i%3)}{K2F[OPT.get('p2f', 2)]} ; tag=P{slot}" for i in range(6)]
def p2_o(slot): return [f"buffer_load_dwordx4 {ar(p2_reg(slot, 6+i),4)}, v{VPO + i//3}, s[{SO2}:{SO2+3}], s{sO2} offen offset:{1024*(i%3)}{K2F[OPT.get('p2f', 2)]} ; tag=P{slot}" for i in range(6)]
def p2_adv(slot):
    m = 5 if slot == 3 else 1
    return [f"s_add_u32 s{sO2}, s{sO2}, {m*122880}", f"s_add_u32 s{sW2}, s{sW2}, {m*36864}"]

def vote_write():
    return [f"v_mov_b32 v4, s{sFLAG}", f"s_lshl_b32 s{sT}, s{sWAVE}, 2", f"s_add_u32 s{sT}, s{sT}, {131072+7168}",
            f"v_mov_b32 v5, s{sT}", "ds_write_b32 v5, v4"]

P2ACC = 112
def p2_acc(q, n): return P2ACC + 4 * (6 * q + n)
def p2_step(b, slot, first, prefetch, wait, order=None, extra=None):
    b(wait)
    order = order or [(q, n) for q in range(6) for n in range(6)]
    slots = []; gaps = [[] for _ in range(36)]
    for q, n in order:
        a_ = vr(p2_acc(q, n), 4)
        slots.append(f"{MF} {a_}, {ar(p2_reg(slot, n),4)}, {ar(p2_reg(slot, 6+q),4)}, {'0' if first else a_}")
    if prefetch:
        o_, w_ = p2_o(slot), p2_w(slot)
        for q in range(6): gaps[6 * q + 5].append(o_[q])
        for n in range(6): gaps[30 + n].append(w_[n])
        gaps[35] += p2_adv(slot)
    for g, x in (extra or []): gaps[g].append(x)
    emit_slots(b, slots, gaps)

def phase2(b):
    D = 4
    acc = p2_acc
    def step(slot, first, prefetch, N, order=None, extra=None): p2_step(b, slot, first, prefetch, f"s_waitcnt vmcnt({N})", order, extra)
    b(f"""L_vote:
    s_cmp_eq_u32 s{sLATE}, 2
    s_cbranch_scc1 L_go
    v_mov_b32 v5, {131072+7168}
    s_barrier
    ds_read_b128 v[16:19], v5
    s_waitcnt lgkmcnt(0)
    v_or_b32 v16, v16, v17
    v_or3_b32 v16, v16, v18, v19
    v_readfirstlane_b32 s{sT}, v16
    s_cmp_lg_u32 s{sSAFE}, 0
    s_cselect_b32 s{sT}, 0, s{sT}
    s_cmp_lg_u32 s{sT}, 0
    s_cbranch_scc1 L_redo
    s_cmp_eq_u32 s{sWAVE}, 3
    s_cbranch_scc0 L_nosig2
    s_mov_b64 exec, 1
    buffer_atomic_add v{VONE}, off, s[{SCN}:{SCN+3}], s{sCO} sc1
    s_mov_b64 exec, -1
    L_nosig2:""")
    stamp(b)
    b(f"""s_cmp_ge_u32 s97, 240
    s_cbranch_scc1 L_fini
    s_cmp_eq_u32 s{sLATE}, 1
    s_cbranch_scc1 L_lateld
    L_go:
    s_xor_b32 s70, s{sWAVE}, 1
    s_mul_i32 s70, s70, 27648
    v_add_u32 v16, s70, v{VLN}
    s_xor_b32 s70, s{sWAVE}, 2
    s_mul_i32 s70, s70, 27648
    s_add_u32 s70, s70, 9216
    v_add_u32 v17, s70, v{VLN}
    s_xor_b32 s70, s{sWAVE}, 3
    s_mul_i32 s70, s70, 27648
    s_add_u32 s70, s70, 18432
    v_add_u32 v18, s70, v{VLN}
    s_mul_i32 s70, s{sWAVE}, 27648
    v_add_u32 v19, s70, v{VLN}
    v_and_b32 v20, 15, v0
    v_mul_u32_u24 v20, 96, v20
    v_bfe_u32 v21, v0, 4, 2
    v_lshl_add_u32 v20, v21, 3, v20
    v_add_u32 v20, s70, v20            ; bf16 staging write address: row*96 + g*8
    v_and_b32 v21, 63, v0
    s_mov_b32 s71, 0x2aab""")
    for r in range(5):
        b(f"""v_add_u32 v22, {64*r}, v21
        v_mul_u32_u24 v23, s71, v22
        v_lshrrev_b32 v23, 16, v23
        v_mul_u32_u24 v{42+r}, {2304 - 96}, v23
        v_lshl_add_u32 v{42+r}, v22, 4, v{42+r}""")
    b(f"""v_cmp_gt_u32 vcc, 32, v21
    v_mov_b32 v22, 0x7f000000
    v_cndmask_b32 v46, v22, v46, vcc
    s_mov_b32 s88, s{sOUT}
    s_mov_b32 s89, s{sOUT+1}
    s_mov_b32 s90, {8*240*1152*2}
    s_mov_b32 s91, 0x20000
    s_mov_b32 s36, 0
    .p2align 3
    L_k2:""")
    for s_ in range(D):
        ex = [(0, f"buffer_load_dword v6, v{VP2}, s[{SCN}:{SCN+3}], 0 offen sc1")] if s_ == 0 else None
        step(s_, False, True, 36, extra=ex)
    b("""s_add_u32 s36, s36, 1
    s_cmp_eq_u32 s36, 2
    s_cbranch_scc1 L_chk
    L_chkd:
    s_cmp_lt_u32 s36, 6
    s_cbranch_scc1 L_k2""")
    b("L_tail:")
    for s_ in range(D - 1): step(s_, False, False, 12 * (D - 1 - s_))
    stamp(b)
    quad = lambda q, n: (q // 3) * 2 + (n // 3)
    oth = [(q, n) for d in (1, 2, 3) for q in range(6) for n in range(6) if quad(q, n) == d]
    mine = [(q, n) for q in range(3) for n in range(3)]
    wr = [(min(i_ + 5, 35), f"ds_write_b128 v{15 + quad(q, n)}, {vr(acc(q, n),4)} offset:{((q % 3) * 3 + n % 3) * 1024}") for i_, (q, n) in enumerate(oth)]
    step(D - 1, False, False, 0, order=oth + mine, extra=wr)
    if OPT.get('rstamps'): stamp(b)
    b("s_waitcnt lgkmcnt(0)\ns_barrier")
    if OPT.get('rstamps'): stamp(b)
    for t in range(9):
        for src in range(3):
            b(f"ds_read_b128 {vr(acc(*oth[3*t+src]),4)}, v19 offset:{src * 9216 + t * 1024}")
    for t, (q, n) in enumerate(mine):
        r0, r1, r2, m = acc(*oth[3*t]), acc(*oth[3*t+1]), acc(*oth[3*t+2]), acc(q, n)
        b(f"s_waitcnt lgkmcnt({min(15, 3 * (8 - t))})")
        for x_, y_ in ((r0, r1), (m, r2), (m, r0)):
            for r in (0, 2): b(f"v_pk_add_f32 v[{x_+r}:{x_+r+1}], v[{x_+r}:{x_+r+1}], v[{y_+r}:{y_+r+1}]")
        b(f"v_cvt_pk_bf16_f32 v{24+2*t}, v{m}, v{m+1}\nv_cvt_pk_bf16_f32 v{25+2*t}, v{m+2}, v{m+3}")
    for t, (q, n) in enumerate(mine):
        b(f"ds_write_b64 v20, v[{24+2*t}:{25+2*t}] offset:{q * 1536 + n * 32}")
    b("s_waitcnt lgkmcnt(0)")
    for r in range(5): b(f"ds_read_b128 {vr(48+4*r,4)}, v19 offset:{1024*r}")
    for r in range(5):
        b(f"s_waitcnt lgkmcnt({4-r})")
        b(f"buffer_store_dwordx4 {vr(48+4*r,4)}, v{42+r}, s[88:91], s{sOUTO} offen{K2F[OPT.get('outf', 0)]}")
    if OPT.get('rstamps'): stamp(b)
    b("L_fini:")
    if OPT.get('fixspan'):
        b(f"""s_waitcnt vmcnt(0)
        L_fix:
        s_memrealtime s[74:75]
        s_waitcnt lgkmcnt(0)
        s_sub_u32 s74, s74, s72
        s_cmp_lt_u32 s74, {OPT['fixspan'] * 100}
        s_cbranch_scc1 L_fix""")
    stamp_dump(b, 0, sWAVE)
    b("s_endpgm")
    b(f"""L_chk:
    s_waitcnt vmcnt(48)
    s_sub_u32 s{sO2}, s{sO2}, {28*122880}
    s_sub_u32 s{sW2}, s{sW2}, {28*36864}
    v_cmp_gt_u32 vcc, 4, v6
    s_cbranch_vccz L_chkd
    s_mov_b32 s37, 0
    L_poll:
    s_sleep 4
    buffer_load_dword v6, v{VP2}, s[{SCN}:{SCN+3}], 0 offen sc1
    s_add_u32 s37, s37, 1
    s_waitcnt vmcnt(0)
    v_cmp_gt_u32 vcc, 4, v6
    s_cbranch_vccz L_chkd
    s_cmp_lt_u32 s37, 0x20000
    s_cbranch_scc1 L_poll
    s_branch L_chkd
    L_lateld:
    s_mov_b32 s{SO2+2}, s100
    s_mov_b32 s{SW2+2}, s101
    s_mul_i32 s{sO2}, s{sWAVE}, {32*122880}
    s_mul_i32 s{sW2}, s{sWAVE}, {32*36864}
    s_mov_b32 s{sLATE}, 2
    s_mov_b32 s37, 0
    L_esp:
    s_sleep 4
    buffer_load_dword v{VCW}, v{VPE}, s[{SCN}:{SCN+3}], 0 offen sc1
    s_add_u32 s37, s37, 1
    s_waitcnt vmcnt(0)
    v_cmp_gt_u32 vcc, v{VTH}, v{VCW}
    s_cbranch_vccz L_espd
    s_cmp_lt_u32 s37, 0x20000
    s_cbranch_scc1 L_esp
    L_espd:""")
    for s_ in range(4): b.ext(p2_w(s_) + p2_o(s_) + p2_adv(s_))
    b(f"""s_waitcnt vmcnt(0)
    s_cmp_eq_u32 s{sWAVE}, 3
    s_cbranch_scc1 L_p2s3
    s_branch L_p2s4
    L_redo:
    s_mov_b32 s{sSAFE}, 1
    s_waitcnt vmcnt(0)
    s_barrier""")
    prologue_a(b)
    b("s_branch L_srdok")

def kernel1():
    b = B()
    b("attn_kernel:")
    b("s_cmp_ge_u32 s2, 256\ns_cbranch_scc1 L_end1")
    if OPT['stamps']: b("s_mov_b32 s96, 0\nv_mov_b32 v14, 0\nv_mov_b32 v15, 0")
    stamp(b)
    if OPT.get('fixspan'): b("s_memrealtime s[72:73]\ns_waitcnt lgkmcnt(0)")
    b("s_load_dwordx16 s[48:63], s[0:1], 0\ns_load_dwordx4 s[64:67], s[0:1], 64\ns_load_dwordx2 s[100:101], s[0:1], 96\ns_load_dwordx4 s[76:79], s[0:1], 80")
    b(f"""s_mov_b32 s97, s2
    s_and_b32 s3, s2, 7
    s_lshr_b32 s2, s2, 3""")
    warm_code(b)
    b(f"""v_lshrrev_b32 v1, 6, v0
    s_and_b32 s68, s3, 1
    s_lshl_b32 s68, s68, 2
    s_and_b32 s69, s2, 3
    s_add_u32 s68, s68, s69        ; b
    v_readfirstlane_b32 s{sWAVE}, v1
    s_bfe_u32 s69, s3, 0x10001
    s_lshl_b32 s69, s69, 3
    s_lshr_b32 s70, s2, 2
    s_add_u32 s69, s69, s70        ; hp
    s_lshr_b32 s3, s3, 2           ; blk
    s_lshl_b32 s{sWB}, s{sWAVE}, 12
    s_lshl_b32 s{sXB}, s{sWAVE}, 13
    s_mov_b32 s{sC}, {CSCALE}
    s_mov_b32 s{sC+1}, {CSCALE}
    s_mov_b32 s{sSAFE}, 0
    s_mov_b32 s{sFLAG}, 0""")
    prologue_a(b)
    b(f"""s_cmp_eq_u32 s3, 0
    s_waitcnt lgkmcnt(0)
    s_cselect_b64 s[48:49], s[48:49], s[58:59]
    s_cselect_b64 s[50:51], s[50:51], s[60:61]
    s_cselect_b64 s[52:53], s[52:53], s[62:63]
    s_cselect_b64 s[54:55], s[54:55], s[64:65]
    s_cselect_b64 s[56:57], s[56:57], s[66:67]""")
    if OPT.get('sstamps'): stamp(b)
    b(f"""s_mul_i32 s71, s68, 276480
    s_add_u32 s{SX}, s48, s71
    s_addc_u32 s{SX+1}, s49, 0
    s_mov_b32 s{SX+2}, 276480
    s_mov_b32 s{SX+3}, 0x20000
    s_lshl_b32 s71, s69, 9
    s_add_u32 s{SW}, s54, s71
    s_addc_u32 s{SW+1}, s55, 0
    s_sub_u32 s{SW+2}, 4718592, s71
    s_mov_b32 s{SW+3}, 0x20000""")
    b("L_srdok:")
    prologue_b(b)
    b(f"""s_cmp_eq_u32 s{sWAVE}, 3
    s_cbranch_scc1 L_begin3""")
    wave_code(b, 4, "4")
    b(".p2align 6")
    wave_code(b, 3, "3")
    b("L_phase2:")
    phase2(b)
    b("L_end1:\ns_endpgm\nL_codeend:")
    return b.L

def resolve_waits(L):
    out = []
    for i, x in enumerate(L):
        if x.startswith("WAITL"):
            tag = x.split()[1]
            n, T = tag[1:].split('.'); T = int(T)
            dst = set(range(AW + 8 * (T % 4), AW + 8 * (T % 4) + 8))
            cnt = 0; found = False
            for y in reversed(out):
                if y.startswith(("s_waitcnt", "WAITV")) and "lgkmcnt(0)" in y:
                    found = True; cnt = None; break
                if y.startswith("ds_"):
                    I = Ins(y)
                    if any(k == 'a' and r in dst for k, r in I.wr) or (T == 0 and 'need=X' in y):
                        found = True; break
                    cnt += 1
            assert found, x
            if cnt is not None:
                cnt = min(cnt, 15)
                out.append(f"s_waitcnt lgkmcnt({cnt})")
        else: out.append(x)
    return out

def expand_trace(L):
    def shift(line, name, it, step):
        if it == 0: return line
        def rep(m):
            k, n = m.group(1), int(m.group(2))
            if name == 'qp':
                if k == 'W': return f"W{n + step*it}"
                if k == 'X': return f"X{n + step*it//2}"
                return m.group(0)
            if k == 'KV': return f"KV{n + step*it}"
            return m.group(0)
        if ';' not in line: return line
        a, c = line.split(';', 1)
        return a + ';' + re.sub(r'\b(KV|W|X)(\d+)\b', rep, c)
    bodies = {}
    def go(i, stop):
        res = []
        while i < len(L):
            x = L[i]
            if x.startswith("LOOPBEGIN"):
                _, name, cnt, step = x.split(); cnt = int(cnt); step = int(step)
                body, j = go(i + 1, name)
                bodies[name] = (body, cnt, step)
                for it in range(cnt):
                    for y in body:
                        if y == f"LOOPEXIT {name}":
                            if it == cnt - 1: break
                            continue
                        res.append(shift(y, name, it, step))
                i = j + 1; continue
            if x.startswith("REPLAY"):
                _, name, off, cnt = x.split(); cnt = int(cnt); body, _, step = bodies[name]
                for it in range(cnt):
                    for y in body: res.append(shift(shift(y, name, it, step), name, 1, int(off)))
                i += 1; continue
            if x.startswith("LOOPEND") and x.split()[1] == stop: return res, i
            res.append(x); i += 1
        return res, i
    return go(0, None)[0]

def resolve_vm(L):
    idx = [f"{x} ;#{i}" if x.startswith("WAITV") else x for i, x in enumerate(L)]
    tr = expand_trace(idx)
    q = []; best = {}
    for x in tr:
        if x.startswith(("L_maxpass", "L_hspin", "L_espin")): break
        c = x.split(';', 1)[1] if ';' in x else ''
        if x.startswith(("buffer_", "global_")):
            if 'cond' in c: continue
            m = re.search(r'tag=(\w+)', c); q.append(m.group(1) if m else 'other')
        elif x.startswith("WAITV"):
            tags = set(re.search(r'cover=([\w,]*)', c).group(1).split(','))
            i = int(x.rsplit('#', 1)[1])
            n = 0
            for t in reversed(q):
                if t in tags: break
                n += 1
            else: n = 63
            m = re.search(r'cap=(\d+)', c)
            best[i] = min(best.get(i, 63), n, int(m.group(1)) if m else 63)
    out = []
    for i, x in enumerate(L):
        if x.startswith("WAITV"):
            a, c = x.split(';', 1)
            out.append(f"s_waitcnt vmcnt({best[i]}) {a[5:].strip()} ;{c}")
        else: out.append(x)
    return out

def check_protocol(L, label):
    tr = expand_trace(L)
    q = []; done = set(); issued = {}; pub = set(); errs = 0
    for x in tr:
        if x.startswith(("L_maxpass", "L_hspin", "L_espin")): break
        c = x.split(';', 1)[1] if ';' in x else ''
        if x.startswith("buffer_") or x.startswith("global_"):
            if 'cond' in c: continue
            m = re.search(r'tag=(\w+)', c); q.append(m.group(1) if m else 'other')
        elif x.startswith("s_waitcnt"):
            m = re.search(r'vmcnt\((\d+)\)', x)
            if m:
                n = int(m.group(1))
                while len(q) > n: done.add(q.pop(0))
            m = re.search(r'needtag=(\w+)', c)
            if m and m.group(1) in q: print(label, "ERR needtag", x); errs += 1
        elif x.startswith("s_barrier"):
            m = re.search(r'pub=([\w,]*)', c)
            if m:
                for t in m.group(1).split(','):
                    if not t: continue
                    if t in q or (t not in done and not (label == 'w3' and t[0] in 'XW')): print(label, "ERR publish not landed", t, x); errs += 1
                    pub.add(t)
        elif x.startswith("ds_read"):
            m = re.search(r'need=(\w+)', c)
            if m and m.group(1) not in pub : print(label, "ERR read unpublished", x); errs += 1
        assert len(q) <= 63, ("vmcnt overflow", x)
    return errs

def burn(L):
    out = []; on = False; c = 0; k = 0
    for x in L:
        if x == 'BURNON': on = True; c = 0; continue
        if x == 'BURNOFF': on = False; continue
        out.append(x)
        if on and OPT.get('burn'):
            if x.startswith('v_mfma'): c = 0
            elif x.startswith('v_'):
                c += 1
                if c >= OPT['burn']:
                    c = 0; k += 1
                    out.append(f"{MF} v[4:7], a[{32+4*(k%8)}:{35+4*(k%8)}], a[{96+4*(k%7)}:{99+4*(k%7)}], v[4:7]")
    return out

def finish(L):
    L = burn(L)
    L = resolve_waits(L)
    return L

def strip_markers(L):
    return [x for x in L if not x.startswith(("LOOPBEGIN", "LOOPEND", "LOOPEXIT", "REPLAY"))]

DESC = """.section .rodata,"a"
.p2align 6
.amdhsa_kernel {name}
  .amdhsa_next_free_vgpr {vgpr}
  .amdhsa_next_free_sgpr 102
  .amdhsa_accum_offset 256
  .amdhsa_group_segment_fixed_size 0
  .amdhsa_kernarg_size 104
  .amdhsa_user_sgpr_count 2
  .amdhsa_user_sgpr_kernarg_segment_ptr 1
  .amdhsa_system_sgpr_workgroup_id_x 1
  .amdhsa_float_denorm_mode_32 3
.end_amdhsa_kernel
"""

def build(**kw):
    OPT.update(kw)
    k1 = finish(kernel1())
    i4 = k1.index("L_begin4:"); i3 = k1.index("L_begin3:"); iv = k1.index("L_phase2:")
    ip = k1.index("L_srdok:"); pre = k1[ip:i4]
    k1 = k1[:i4] + resolve_vm(pre + k1[i4:i3])[len(pre):] + resolve_vm(pre + k1[i3:iv])[len(pre):] + k1[iv:]
    e = check_protocol(pre + k1[i4:i3], "w4") + check_protocol(pre + k1[i3:], "w3")
    assert e == 0
    k1 = strip_markers(k1)
    k1, n1, p1 = fix_hazards(k1)
    for p in p1: print("BRANCH HAZARD", p)
    assert not p1
    hdr = open("ref.txt").read().split("; Override")[0]
    KN = NAME + "_kernel"
    k1 = [x.replace("attn_kernel", KN) for x in k1]
    out = hdr
    out += "; generated by my own schedule generator: q-projection + attention (2 heads per workgroup), hand-off, output projection\n"
    out += ("; @launch kernel=%s grid=(256,1,1) block=(256,1,1) lds=163840\n" % KN) if OPT.get('list') else "; @launch grid=(256,1,1) block=(256,1,1) lds=163840\n"
    out += '.amdgcn_target "amdgcn-amd-amdhsa--gfx950"\n.text\n'
    out += ".globl %s\n.p2align 8\n.type %s,@function\n" % (KN, KN) + "\n".join(k1) + "\n"
    out += DESC.format(name=KN, vgpr=512)
    return out, n1

if __name__ == "__main__":
    kw = {}
    for a in sys.argv[2:]:
        k, v = a.split('='); kw[k] = int(v)
    s, info = build(**kw)
    open(sys.argv[1], "w").write(s)
    print("nops inserted", info, "bytes", len(s))
```

```python
import sys, re
from asmlib import fix_hazards, Ins

NAME = "concat_heads__mha_block_cached__mha_block_cached__near_ridge"
MF = "v_mfma_f32_16x16x32_bf16"
CSCALE = 0x3e0293ee
LTHR = 0x4e800000

O_BLK = 128 * 122880
WOT_OFF = 2 * O_BLK
WOT_BLK = 128 * 36864
CNT_OFF = WOT_OFF + 2 * WOT_BLK

class B:
    def __init__(self): self.L = []
    def __call__(self, s):
        for x in s.split("\n"):
            x = x.strip()
            if x: self.L.append(x)
    def ext(self, l): self.L.extend(l)

def vr(b, n): return f"v[{b}:{b+n-1}]"
def ar(b, n): return f"a[{b}:{b+n-1}]"

def emit_slots(b, slots, gaps):
    for i, s in enumerate(slots):
        if s: b(s)
        nv = [x for x in gaps[i] if not x.startswith('v_')]
        v = [x for x in gaps[i] if x.startswith('v_')]
        for x in nv + v: b(x)

S_ = 16; P_ = 48; CI = 64; LS = 80
KA = 84
VA = 88
VWA = 105
DK0 = 96; DK1 = 97; DV0 = 98; DV1 = 99
VO = 100
VWO = 101
VWX = 102
VLN = 103
VPF = 104
VPD = 105
T0 = 108
O_ = 128
XA = 16; WA = 28; DX = 20; DW = 24
WSLOT = [49152, 114688, 131072, 147456]; sKB = 69
def AQ(q): return 32 + 64 * (q // 2) + 16 * (q % 2)
def AQ2(q): return 128 + 16 * q
AK = 0; AV = 64; ASP = 64
AX = 0; AW = 64
SX = 4; SW = 8; SK = 12; SV = 16; SO = 20; SWO = 24; SWT = 28
sWAVE = 32; sWB = 33; sKV = 34; sCNT = 35; sHEAD = 36; sSAFE = 37; sFLAG = 38
sXO = 39; sXO2 = 40; sWOFF = 41; sXB = 42; sOO = 43; sC = 44
sT = 46
sH0 = 68; sWOS = 64; sWTS = 65; sSTAMP = 72; SPF = 76; sPF = 68; sWXS = 67; sROT = 80; sLIN = 81
SCN = 48; SDB = 52; SO2 = 56; sCO = 60; sCW = 61; SIN = 84; SIF = 88; sOUT = 76; VHS = 106; VCW = 107; VONE = 104
SW2 = 80; sO2 = 98; sW2 = 99; sOUTO = 66; sOP = 41; VPE = 11; VTH = 12; VP2 = 13; VWE = 10; AST = 192; sSIG = 78; sLATE = 79; sIDLE = 67; sFV = 39; VFA = 1; VFB = 101; FQ = 80; FLAGS = 131072 + 7168 + 32

OPT = dict(nt_kv=1, nt_w=1, nt_x=1, nt_wo=1, stamps=0, warm=1, of=2, of0=2, e67=1, bal=0, wts=1, sw2=2)

K2F = ['', ' nt', ' sc1', ' sc0 sc1', ' sc0', ' sc1 nt', ' sc0 sc1 nt']
def fl(k): return ["", " nt", " sc1 nt", " sc0 sc1 nt", " sc0 nt"][OPT[k]]

def dma(voff, srd, soff, off, flag, tag):
    return f"buffer_load_dwordx4 v{voff}, s[{srd}:{srd+3}], {soff} offen offset:{off}{flag} lds ; tag={tag}"

def kv_adv():
    if not OPT.get('rot'): return [f"s_add_u32 s{sKV}, s{sKV}, 8192"]
    return [f"s_add_u32 s{sLIN}, s{sLIN}, 8192", f"s_add_u32 s{sKV}, s{sLIN}, s{sROT}",
            f"s_and_b32 s{sKV}, s{sKV}, 0x3ffff", f"s_and_b32 s{sT+1}, s{sLIN}, 0xfffc0000", f"s_or_b32 s{sKV}, s{sKV}, s{sT+1}"]

def k_dma(tile, so=None):
    so = so or f"s{sKV}"
    return [f"s_add_u32 m0, s{sKB}, {(tile % 8) * 8192}",
            dma(DK0, SK, so, 0, fl('nt_kv'), f"KV{tile}"), dma(DK1, SK, so, 1024, fl('nt_kv'), f"KV{tile}")]
def v_dma(tile, so=None):
    so = so or f"s{sKV}"
    return [f"s_add_u32 m0, s{sKB}, {65536 + (tile % 8) * 8192}",
            dma(DV0, SV, so, 0, fl('nt_kv'), f"KV{tile}"), dma(DV1, SV, so, 1024, fl('nt_kv'), f"KV{tile}")]

def x_dma(m, nq):
    slot = 16384 if m % 2 else 81920
    out = []
    out.append(f"s_add_u32 m0, s{sXB}, {slot}")
    for j in range(4): out.append(dma(DX + j, SX, f"s{sXO}", 1024 * j, fl('nt_x'), f"X{m}"))
    out.append(f"s_add_u32 m0, s{sXB}, {slot + 4096}")
    for j in range(4 if nq == 4 else 2): out.append(dma(DX + j, SX, f"s{sXO2}", 1024 * j, fl('nt_x'), f"X{m}"))
    out.append(f"s_add_u32 s{sXO}, s{sXO}, 128")
    out.append(f"s_add_u32 s{sXO2}, s{sXO2}, 128")
    return out

def w_dma(n, nq):
    out = [f"s_add_u32 m0, s{sWB}, {WSLOT[n % 4]}"]
    for j in range(4): out.append(dma(DW + j, SW, f"s{sWOFF}", 1024 * j, fl('nt_w'), f"W{n}"))
    if n % 2 == 0: out.append(f"s_add_u32 s{sWOFF}, s{sWOFF}, 256")
    else: out.append(f"s_add_u32 s{sWOFF}, s{sWOFF}, {524288 - 256}")
    return out

def w_reads(n, T):
    sp_, a = T // 2, T % 2
    hl, sp = sp_ // 2, sp_ % 2
    out = []
    for s in range(2):
        for a2 in range(2):
            d = AW + 8 * (T % 4) + 4 * s + 2 * a2
            off = max(n % 4 - 1, 0) * 16384 + hl * 8192 + (32 * s + 4 * a2) * 128 + 8 * a
            out.append(f"ds_read_b64_tr_b16 {ar(d,2)}, v{WA + sp + (2 if n % 4 else 0)} offset:{off} ; need=W{n}")
    return out

def x_reads(m, nq):
    out = []
    for q in range(nq):
        for s in range(2):
            d = AX + 32 * (m % 2) + 8 * q + 4 * s
            out.append(f"ds_read_b128 {ar(d,4)}, v{XA + s + (0 if m % 2 else 2)} offset:{q * 2048} ; need=X{m}")
    return out

def qacc(hd, q, T):
    r = 128 + 32 * q + 4 * T
    return vr(r, 4) if hd == 0 else ar(r, 4)

def pf_load():
    return f"buffer_load_dword v{VPD}, v{VPF}, s[{SPF}:{SPF+3}], s{sPF} offen nt ; tag=PF"

def wo_dma():
    out = []
    for r in range(2):
        out.append(f"s_add_u32 m0, s{sWOS}, {4096*r}")
        for j in range(4):
            out += [f"PRE s_mov_b32 s{sT}, {8192*j + 512*r}", dma(VWO, SWO, f"s{sT}", 1024 * j, fl('nt_wo'), "WO")]
    out += [f"s_mov_b32 m0, s{sWTS}", dma(VWX, SWO, "0", 0, fl('nt_wo'), "WO")]
    return out
WOF = 32
def wo_reads():
    out = [f"ds_read_b64_tr_b16 {vr(WOF+16*r+4*tl+2*a,2)}, v{VWA} offset:{4096*r + 2048*a + 32*tl}" for r in range(2) for tl in range(4) for a in range(2)]
    return out + [f"ds_read_b64_tr_b16 {vr(WOF+32+2*a,2)}, v{VWE} offset:{512*a}" for a in range(2)]
def wo_stores():
    out = []
    for r in range(2):
        out.append(f"PRE s_add_u32 s{sT}, s{sWB}, {16384*r}")
        out += [f"buffer_store_dwordx4 {vr(WOF+16*r+4*tl,4)}, v{VLN}, s[{SWT}:{SWT+3}], s{sT} offen offset:{1024*tl} sc1 ; tag=WT" for tl in range(4)]
    out += [f"PRE s_lshl_b32 s{sT}, s{sWAVE}, 10", f"PRE s_add_u32 s{sT}, s{sT}, 32768",
            f"buffer_store_dwordx4 {vr(WOF+32,4)}, v{VLN}, s[{SWT}:{SWT+3}], s{sT} offen sc1 ; tag=WT"]
    return out

def qproj_stage(b, n, nq, fill=None):
    hd, m = n % 2, n // 2
    nx = 8 if nq == 4 else 6
    slots = []; gaps = [[] for _ in range(64)]
    for T in range(8):
        for q in range(4):
            for s in range(2):
                if q >= nq: slots.append(None); continue
                acc = qacc(hd, q, T)
                c = "0" if (m == 0 and s == 0) else acc
                slots.append(f"{MF} {acc}, {ar(AW+8*(T%4)+4*s,4)}, {ar(AX+32*(m%2)+8*q+4*s,4)}, {c}")
    start = {3: 5, 4: 12, 5: 19, 6: 26, 7: 33}
    rd = w_reads(n, 2); gaps[0].append(rd[3])
    for T, g in start.items():
        for i, x in enumerate(w_reads(n, T)): gaps[g + i].append(x)
    if n < 17:
        for T, g in ((0, 45), (1, 53)):
            for i, x in enumerate(w_reads(n + 1, T)): gaps[g + i].append(x)
        for i, x in enumerate(w_reads(n + 1, 2)[:3]): gaps[61 + i].append(x)
    xr = []
    if n % 2 == 1 and m + 1 <= 8:
        xr = x_reads(m + 1, nq)
        for x, g in zip(xr, (9, 10, 16, 17, 23, 24, 30, 31)): gaps[g].append(x)
    for T in range(1, 8): gaps[8 * T - 1].append(f"WAITL W{n}.{T}")
    if n < 17: gaps[63].append(f"WAITL W{n+1}.0")
    req = []
    if n + 1 <= 17: req.append(f"W{n+1}")
    if n % 2 == 0 and m + 1 <= 8: req.append(f"X{m+1}")
    if n == 17: req += ["KV0", "KV1"]
    cov = list(req)
    if nq == 3 and n == 2:
        cov.append("INIT")
        gaps[45].append(f"buffer_store_dword v{VONE}, v{VLN}, s[{SIF}:{SIF+3}], 0 offen sc1 ; tag=FLAG")
    if nq == 3 and n == 12:
        gaps[45].append(f"buffer_load_dword v{VHS}, off, s[{SDB}:{SDB+3}], 0 ; tag=HS")
    if n == 17 and OPT.get('fsa'):
        gaps[36] += [f"s_mov_b32 s{sFV}, 0", f"v_mov_b32 v{VFB}, {FLAGS}", f"v_mov_b32 v{FQ}, 0"]
        gaps[37] += [f"v_lshl_add_u32 v{VFA}, s{sWAVE}, 2, v{VFB}"]
        gaps[39] += [f"ds_write_b32 v{VFA}, v{FQ}"]
    gaps[43].append("WAITV lgkmcnt(0) ; cover=" + ",".join(cov))
    gaps[44].append("s_barrier ; pub=" + ",".join(req))
    def place(seq, first, step):
        g = first
        for x in seq:
            if x.startswith("buffer_"): gaps[g].append(x); g += step
            elif x.startswith(("s_add_u32 m0", "s_mov_b32 m0")): gaps[g - 1].append(x)
            elif x.startswith("PRE "): gaps[g - 1].append(x[4:])
            else: gaps[min(g - step + 1, 63)].append(x)
    if n == 0: place(w_dma(2, nq) + w_dma(3, nq) + x_dma(2, nq), 1, 2)
    elif n % 2 == 0 and m + 2 <= 8: place(x_dma(m + 2, nq), 2, 5)
    def single(kind, i_):
        if kind == 'wo':
            if i_ == 8: return [f"s_mov_b32 m0, s{sWTS}", None, dma(VWX, SWO, "0", 0, fl('nt_wo'), "WO")]
            r, j_ = i_ // 4, i_ % 4
            return [f"s_add_u32 m0, s{sWOS}, {4096*r}", f"s_mov_b32 s{sT}, {8192*j_ + 512*r}", dma(VWO, SWO, f"s{sT}", 1024 * j_, fl('nt_wo'), "WO")]
        t, j_ = i_ // 4, i_ % 4
        d_ = (k_dma if j_ < 2 else v_dma)(t, f"s{sT}")
        return [d_[0], f"s_mov_b32 s{sT}, {8192*t}", d_[1 + j_ % 2]]
    if OPT.get('slowpos', 0):
        R0 = 9
        sched_ = {2: [('wo', 0), ('wo', 1), ('wo', 2)], 4: [('wo', 3), ('wo', 4), ('wo', 5)], 6: [('wo', 6), ('wo', 7), ('wo', 8)],
                  10: [('kv', i_) for i_ in range(4)], 12: [('kv', i_) for i_ in range(4, 8)]}
        for (kind, i_) in sched_.get(n, []):
            gaps[63] += [x for x in single(kind, i_) if x]
    else:
        W0 = 1; R0 = W0 + 7
        sched_ = {W0 + i_ // 2: [] for i_ in range(9)}
        for i_ in range(9): sched_[W0 + i_ // 2].append(('wo', i_))
        if not OPT.get('late'):
            for i_ in range(8): sched_.setdefault(R0 + 2 + i_ // 2, []).append(('kv', i_))
        for (kind, i_), g in zip(sched_.get(n, []), (39, 42) if (n % 2 == 0 or OPT.get('stpos', 0)) else (12, 32)):
            m0_, so_, ld_ = single(kind, i_)
            gaps[g - 1].append(m0_)
            if so_: gaps[g - 1].append(so_)
            gaps[g].append(ld_)
    if n == 13: gaps[62].append(f"s_mov_b32 s{sKV}, 16384")
    if n in (R0, R0 + 1):
        rd = wo_reads()
        if n == R0:
            gaps[44].append("WAITV ; cover=WO")
            for x, g in zip(rd[:8], [49, 50, 51, 52, 57, 58, 59, 60]): gaps[g].append(x)
        else:
            for x, g in zip(rd[8:], [1, 2, 3, 4, 11, 18, 25, 37, 38, 39]): gaps[g].append(x)
    for i_ in range(0 if OPT.get('wts') else 9):
        if OPT.get('slowpos', 0):
            if n != (10, 10, 12, 12, 14, 14, 14, 16, 16)[i_]: continue
            t_ = [f"s_add_u32 s{sT+1}, s{sWB}, {16384*(i_//4)}"] if i_ < 8 else [f"s_lshl_b32 s{sT+1}, s{sWAVE}, 10", f"s_add_u32 s{sT+1}, s{sT+1}, 32768"]
            gaps[62] += t_ + [f"buffer_store_dwordx4 {vr(WOF+4*i_,4)}, v{VLN}, s[{SWT}:{SWT+3}], s{sT+1} offen offset:{1024*(i_%4) if i_ < 8 else 0} sc1 ; tag=WT"]
            continue
        r, tl = i_ // 4, i_ % 4
        if OPT.get('stpos', 0):
            if n != (9, 9, 11, 11, 13, 13, 15, 15, 15)[i_]: continue
            g = (8, 10, 2, 4, 2, 4, 2, 4, 7)[i_]
        else:
            if n != min(R0 + 1 + i_, 17 - (1 if i_ < 8 else 0)) : continue
            g = 62 if not any('tag=WT' in x for x in gaps[62]) else 48
        if i_ < 8: gaps[g - 1].append(f"s_add_u32 s{sT+1}, s{sWB}, {16384*r}")
        else: gaps[g - 2].append(f"s_lshl_b32 s{sT+1}, s{sWAVE}, 10"); gaps[g - 1].append(f"s_add_u32 s{sT+1}, s{sT+1}, 32768")
        gaps[g].append(f"buffer_store_dwordx4 {vr(WOF+4*i_,4)}, v{VLN}, s[{SWT}:{SWT+3}], s{sT+1} offen offset:{1024*tl if i_ < 8 else 0}{K2F[OPT.get('wtf', 2)]} ; tag=WT")
    if n == 14 and OPT.get('late'):
        place([f"PRE s_mov_b32 s{sT}, 0"] + k_dma(0, f"s{sT}") + v_dma(0, f"s{sT}") + [f"PRE s_mov_b32 s{sT}, 8192"] + k_dma(1, f"s{sT}") + v_dma(1, f"s{sT}"), 2, 5)
    if n in ((15, 16) if OPT.get('late') else (14, 16)):
        seq = []
        for t in range(2, 6):
            seq += [f"PRE s_add_u32 s{sT}, s{sKV}, {(t - 2) * 8192}"] + (k_dma if n < 16 else v_dma)(t, f"s{sT}")
        if n == 16: seq.append(f"s_add_u32 s{sKV}, s{sKV}, 32768")
        place(seq, 2, 5)
    if n == 17 and OPT.get('e67'):
        place(k_dma(6) + [f"PRE s_add_u32 s{sT}, s{sKV}, 8192"] + k_dma(7, f"s{sT}"), 4, 9)
        place(v_dma(6) + v_dma(7, f"s{sT}") + [f"s_add_u32 s{sKV}, s{sKV}, 16384"], 47, 4)
    if OPT.get('awake') and n % 2 == 1 and 3 <= n <= 11:
        seq = []
        for t in range(OPT['awake']):
            seq += [f"PRE s_add_u32 s{sPF}, s{sPF}, 8192"] + k_dma(t % 2, f"s{sPF}") + v_dma(t % 2, f"s{sPF}")
        seq = [x.replace('tag=KV0', 'tag=DUM').replace('tag=KV1', 'tag=DUM') for x in seq]
        place(seq, 2, 40 // (4 * OPT['awake']))
    if OPT.get('awake') and n == 13:
        place([f"PRE s_mov_b32 s{sPF}, 0"] + k_dma(0, f"s{sPF}") + v_dma(0, f"s{sPF}") + [f"PRE s_mov_b32 s{sPF}, 8192"] + k_dma(1, f"s{sPF}") + v_dma(1, f"s{sPF}"), 2, 5)
    if n + 4 <= 17: place(w_dma(n + 4, nq), 46, 5)
    for i_ in range(OPT.get('qslow', 0)): gaps[2 + 2 * i_].append('v_nop\nv_nop\nv_nop\nv_nop\nv_nop\nv_nop')
    if fill is not None:
        for g in range(20 if n == 16 else 0, 64):
            if slots[g] is None: continue
            for _ in range(2):
                if fill: gaps[g].append(fill.pop(0))
    emit_slots(b, slots, gaps)
    if OPT.get('qstamps'): stamp(b)

def k_reads(unit, tile):
    out = []
    for kt in range(2):
        for s in range(4):
            f = 4 * kt + s
            out.append(f"ds_read_b128 {ar(AK+4*f,4)}, v{KA + s} offset:{unit * 8192 + kt * 4096} ; need=KV{tile}")
    return out

def v_reads(unit, tile):
    out = []
    for T in range(8):
        th, tl = T // 4, T % 4
        for a in range(2):
            out.append(f"ds_read_b64_tr_b16 {ar(AV+4*T+2*a,2)}, v{VA + T} offset:{unit * 8192 + a * 4096} ; need=KV{tile}")
    return out

import sched, sched2
LM = 1
for a_ in sys.argv[2:]:
    if a_.startswith('lm='): LM = int(a_[3:])
if LM:
    NS = 68
    V_GAPS = list(range(26, 42)); K_GAPS = list(range(50, 58)); D_GAPS = [3, 11, 17, 23]
    SM = sched2.schedule(V_GAPS + K_GAPS, D_GAPS)
else:
    NS = 64
    V_GAPS = list(range(25, 41)); K_GAPS = list(range(48, 56)); D_GAPS = [1, 9, 17, 23]
    SM = sched.schedule(4, V_GAPS + K_GAPS, D_GAPS)
BG = K_GAPS[0] - 1
LA = 108; ONES = 124
def sm_text(kind, q, e):
    s = S_ + 8 * q + e
    if kind == 'exp': return f"v_exp_f32 v{s}, v{s}"
    if kind == 'add': return f"v_add_f32 v{LS+q}, v{LS+q}, v{s}"
    return f"v_cvt_pk_bf16_f32 v{P_+4*q+e//2}, v{s-1}, v{s}"
def sm_items(nq, lo, hi):
    it = [(g, k[0] == 'exp', k) for k, g in SM.items() if k[1] < nq and lo <= g < hi]
    it.sort(key=lambda t: (t[0] % NS, t[1], -t[0]))
    return [(g, k) for g, _, k in it]

def qk(q, kt, s, czero=False):
    d = vr(S_ + 8 * q + 4 * kt, 4)
    c = d if s else ("0" if czero else vr(CI + 4 * q, 4))
    return f"{MF} {d}, {ar(AK+4*(4*kt+s),4)}, {ar(AQ(q)+4*s,4)}, {c}"

def pv(q, T, czero=False):
    d = vr(O_ + 32 * q + 4 * T, 4)
    return f"{MF} {d}, {ar(AV+4*T,4)}, {vr(P_+4*q,4)}, {'0' if czero else d}"

def lsm(q, czero=False):
    d = vr(LA + 4 * q, 4)
    return f"{MF} {d}, {vr(ONES,4)}, {vr(P_+4*q,4)}, {'0' if czero else d}"

SPINS = []
def attn_stage(b, k, nq, extra=None, fill=None):
    kk = k % 32; u = k % 8
    slots = []; gaps = [[] for _ in range(NS)]
    for q in (0, 1):
        for kt in range(2):
            for s in range(4): slots.append(qk(q, kt, s))
    for q in (2, 3):
        for T in range(8): slots.append(pv(q, T, kk == 1) if (q < nq and kk > 0) else None)
        if LM: slots.append(lsm(q, kk == 1) if (q < nq and kk > 0) else None)
    for q in (2, 3):
        for kt in range(2):
            for s in range(4): slots.append(qk(q, kt, s) if q < nq else None)
    for q in (0, 1):
        for T in range(8): slots.append(pv(q, T, kk == 0))
        if LM: slots.append(lsm(q, kk == 0))
    for g, key in sm_items(nq, 0, 2 * NS if kk > 0 else NS): gaps[g % NS].append(sm_text(*key))
    for g, x in zip(V_GAPS, v_reads(u, k)): gaps[g].append(x)
    DIST = 7 if OPT.get('d7') else OPT.get('dist', 5 if OPT.get('fsa') else 6)
    if DIST == 7 and k < 63:
        gaps[BG - 1].append(f"WAITV lgkmcnt(0) ; cover=KV{k+1}" + (",WT" if kk == 11 else ""))
        gaps[BG].append(f"s_barrier ; pub=KV{k+1}")
    elif k % 2 == 1 and k < 63 and OPT.get('fsa'):
        uid = f"{k}_{nq}"
        pg = OPT.get('fsp', 30)
        gaps[pg - 1].append(f"s_add_u32 s{sFV}, s{sFV}, 1")
        gaps[pg].append(f"WAITV ; cover=KV{k+1},KV{k+2}" + (",WT" if kk == 11 else ""))
        gaps[pg].append(f"v_mov_b32 v{FQ}, s{sFV}")
        gaps[42].append(f"ds_write_b32 v{VFA}, v{FQ}") if pg >= 41 else gaps[pg + 1].append(f"ds_write_b32 v{VFA}, v{FQ}")
        gaps[BG - 5].append(f"ds_read_b128 {vr(FQ,4)}, v{VFB}")
        gaps[BG - 2].append("s_waitcnt lgkmcnt(0)")
        gaps[BG - 2].append(f"v_min3_u32 v{FQ}, v{FQ}, v{FQ+1}, v{FQ+2}")
        gaps[BG - 1].append(f"v_min_u32 v{FQ}, v{FQ}, v{FQ+3}")
        gaps[BG].append(f"v_cmp_gt_u32 vcc, s{sFV}, v{FQ}\ns_cbranch_vccnz L_fs{uid}\nL_fr{uid}: ; SYNC pub=KV{k+1},KV{k+2}")
        SPINS.append(uid)
    elif k % 2 == 1 and k < 63:
        gaps[BG - 1].append(f"WAITV lgkmcnt(0) ; cover=KV{k+1},KV{k+2}" + (",WT" if kk == 11 else ""))
        gaps[BG].append(f"s_barrier ; pub=KV{k+1},KV{k+2}")
    else:
        gaps[BG].append("s_waitcnt lgkmcnt(0)")
    if k < 63:
        for g, x in zip(K_GAPS, k_reads((u + 1) % 8, k + 1)): gaps[g].append(x)
        gaps[NS - 1].append("s_waitcnt lgkmcnt(0)")
    if k + DIST < 64 and not (OPT.get('e67') and k + DIST < 8) and not (OPT.get('sw2') and k in (32, 33)):
        kd, vd = k_dma(k + DIST), v_dma(k + DIST)
        gaps[D_GAPS[0] - 1].append(kd[0]); gaps[D_GAPS[2] - 1].append(vd[0])
        for x, g in zip(kd[1:] + vd[1:], D_GAPS): gaps[g].append(x)
        gaps[44] += kv_adv()
    for i_ in range(OPT.get('slow', 0)): gaps[2 + 2 * i_].append('v_nop\nv_nop\nv_nop\nv_nop')
    if extra:
        for g, x in extra: gaps[g].append(x)
    if fill:
        cost = lambda x: 2 if x.startswith('v_exp') else (1 if x.startswith(('v_', 'ds_', 'buffer_')) else 0)
        room = [max(0, 2 - sum(cost(x) for x in gaps[g])) if slots[g] else 0 for g in range(NS)]
        left = len(fill) - sum(room)
        live = [g for g in range(NS) if slots[g]]
        for i_ in range(max(left, 0)): room[live[(i_ * len(live)) // left]] += 1
        for g in range(NS):
            for _ in range(room[g]):
                if fill: gaps[g].append(fill.pop(0))
        assert not fill
    for key, pre in (('nobar', ('s_barrier',)), ('nodma', ('buffer_load_dwordx4 v9',)), ('nolds', ('ds_read',)), ('noexp', ('v_exp',))):
        if OPT.get(key) and 8 <= k < 16: gaps = [[x if not x.startswith(pre) else 's_nop 0 ;' + x.split(';', 1)[-1] for x in g] for g in gaps]
    if OPT.get('astamps') and k % 2 == 0: stamp(b)
    if OPT.get('dmaonly'):
        slots = [None] * NS
        gaps = [[x for x in g if not x.startswith(('v_', 'ds_'))] for g in gaps]
    emit_slots(b, slots, gaps)

def xlane_reduce(b, reg, tmp, op):
    b(f"v_mov_b32 v{tmp}, v{reg}")
    b(f"v_permlane32_swap_b32 v{reg}, v{tmp}")
    b(f"{op} v{reg}, v{reg}, v{tmp}")
    b(f"v_mov_b32 v{tmp}, v{reg}")
    b(f"v_permlane16_swap_b32 v{reg}, v{tmp}")
    b(f"{op} v{reg}, v{reg}, v{tmp}")

def xlane_reduce_multi(b, regs, tmps, op):
    for sw in ("v_permlane32_swap_b32", "v_permlane16_swap_b32"):
        for r, t in zip(regs, tmps): b(f"v_mov_b32 v{t}, v{r}")
        for r, t in zip(regs, tmps): b(f"{sw} v{r}, v{t}")
        for r, t in zip(regs, tmps): b(f"{op} v{r}, v{r}, v{t}")

def stamp(b, idx=None):
    if not OPT['stamps']: return
    b(f"s_memtime s[{sSTAMP}:{sSTAMP+1}]\ns_memrealtime s[{sSTAMP+2}:{sSTAMP+3}]\ns_waitcnt lgkmcnt(0)")
    b(f"s_mov_b32 s95, m0\ns_mov_b32 m0, s96\nv_writelane_b32 v14, s{sSTAMP}, m0\nv_writelane_b32 v15, s{sSTAMP+2}, m0\ns_mov_b32 m0, s95\ns_add_u32 s96, s96, 1")

def stamp_dump(b, k, wave):
    if not OPT['stamps']: return
    b("s_waitcnt vmcnt(0)")
    stamp(b)
    if OPT['stamps'] == 2:
        b("s_load_dwordx2 s[92:93], s[0:1], 88\ns_waitcnt lgkmcnt(0)")
        b(f"s_cmp_lg_u32 s{wave}, 0\ns_cbranch_scc1 L_end{k+1}\ns_and_b32 s94, s97, 31\ns_cmp_lg_u32 s94, 5\ns_cbranch_scc1 L_end{k+1}")
        b(f"s_add_u32 s88, s92, {OPT.get('dbgoff',0)*(1-k)}\ns_addc_u32 s89, s93, 0\ns_mov_b32 s90, 256\ns_mov_b32 s91, 0x20000")
        sel = [0, 2, 3, 6, 7, 9, 10, 11] if k == 0 else [0, 1, 2, 3]
        b("s_mov_b64 exec, 1")
        for i, ix in enumerate(sel):
            b(f"v_readlane_b32 s94, v15, {ix}\ns_nop 3")
            if i == 0 and k == 0: b("s_not_b32 s94, s94")
            b(f"v_mov_b32 v1, s94\nv_mov_b32 v2, {4*(i + (0 if k == 0 else 8))}\nbuffer_atomic_umax v1, v2, s[88:91], 0 offen")
        return
    b("s_getreg_b32 s94, hwreg(HW_REG_XCC_ID)\nv_writelane_b32 v14, s94, 63")
    b("s_load_dwordx2 s[92:93], s[0:1], 96\ns_waitcnt lgkmcnt(0)")
    b(f"s_add_u32 s88, s92, {(48+k)*1024*1024}\ns_addc_u32 s89, s93, 0\ns_mov_b32 s90, 0x100000\ns_mov_b32 s91, 0x20000")
    b(f"s_lshl_b32 s94, s97, 2\ns_add_u32 s94, s94, s{wave}\ns_lshl_b32 s94, s94, 9")
    b("v_and_b32 v1, 63, v0\nv_lshlrev_b32 v1, 3, v1")
    b("buffer_store_dwordx2 v[14:15], v1, s[88:91], s94 offen")

def persist_regs(b):
    lane = T0; t1 = T0 + 1; t2 = T0 + 2; t3 = T0 + 3; g_ = T0 + 4; ihi = T0 + 5; i8 = T0 + 6; i16 = T0 + 7; r_ = T0 + 8; c4 = T0 + 9
    b(f"""v_and_b32 v{lane}, 63, v0
    v_lshrrev_b32 v{g_}, 4, v{lane}
    v_lshrrev_b32 v{ihi}, 3, v{lane}
    v_and_b32 v{i8}, 7, v{lane}
    v_and_b32 v{i16}, 15, v{lane}
    v_lshrrev_b32 v{r_}, 2, v{i16}
    v_and_b32 v{c4}, 3, v{lane}
    v_lshlrev_b32 v{VLN}, 4, v{lane}
    s_add_u32 s71, s63, s{sWB}
    v_add_u32 v{VO}, s71, v{VLN}""")
    b(f"""s_lshl_b32 s70, s{sWAVE}, 11
    v_lshlrev_b32 v{t1}, 8, v{g_}
    v_add_u32 v{t1}, s70, v{t1}
    s_and_b32 s70, s{sWAVE}, 1
    s_lshl_b32 s70, s70, 3
    v_xor_b32 v{t2}, v{i16}, v{g_}
    v_xor_b32 v{t2}, s70, v{t2}
    v_lshl_add_u32 v{DK0}, v{t2}, 4, v{t1}
    v_xor_b32 v{DK1}, 64, v{DK0}
    v_lshlrev_b32 v{t2}, 1, v{g_}
    v_xor_b32 v{t3}, v{t2}, v{i16}
    v_lshl_add_u32 v{DV0}, v{t3}, 4, v{t1}
    v_xor_b32 v{DV1}, 128, v{DV0}""")
    b(f"""v_mul_u32_u24 v{t1}, 1152, v{ihi}
    v_lshl_add_u32 v{t1}, v{i8}, 4, v{t1}
    s_lshl_b32 s70, s{sWAVE}, 7
    v_add_u32 v{VWO}, s70, v{t1}
    v_lshrrev_b32 v{t1}, 1, v{lane}
    v_mul_u32_u24 v{t1}, 1152, v{t1}
    v_and_b32 v{t2}, 1, v{lane}
    v_lshl_add_u32 v{t1}, v{t2}, 4, v{t1}
    s_lshl_b32 s70, s{sWAVE}, 5
    s_add_u32 s70, s70, 1024
    v_add_u32 v{VWX}, s70, v{t1}""")
    b(f"""v_xor_b32 v{t2}, v{g_}, v{i16}
    v_lshlrev_b32 v{t2}, 4, v{t2}
    v_lshl_add_u32 v{KA}, v{i16}, 8, v{t2}""")
    for s_ in range(1, 4): b(f"v_xor_b32 v{KA+s_}, {64*s_}, v{KA}")
    b(f"""v_lshl_add_u32 v{t2}, v{g_}, 2, v{r_}
    v_lshlrev_b32 v{t1}, 8, v{t2}
    v_and_b32 v{t2}, 7, v{t2}
    v_lshl_add_u32 v{t1}, v{t2}, 5, v{t1}
    v_lshl_add_u32 v{t1}, v{c4}, 3, v{t1}
    v_add_u32 v{VA}, 0x10000, v{t1}""")
    for T in range(1, 8): b(f"v_xor_b32 v{VA+T}, {32*T}, v{VA}")
    b(f"""v_lshl_add_u32 v{t2}, v{g_}, 2, v{r_}
    v_lshlrev_b32 v{t1}, 7, v{t2}
    v_lshl_add_u32 v{t1}, v{c4}, 3, v{t1}
    s_lshr_b32 s70, s{sWAVE}, 1
    s_lshl_b32 s70, s70, 16
    s_and_b32 s71, s{sWAVE}, 1
    s_lshl_b32 s{sWOS}, s71, 13
    s_add_u32 s{sWOS}, s{sWOS}, s70
    s_lshl_b32 s{sWTS}, s71, 10
    s_add_u32 s{sWTS}, s{sWTS}, s70
    s_add_u32 s{sWTS}, s{sWTS}, 47104
    v_add_u32 v{VWA}, s{sWOS}, v{t1}
    v_lshlrev_b32 v{t1}, 3, v{lane}
    v_add_u32 v{VWE}, s{sWTS}, v{t1}""")

def late_setup(b, sfx):
    b(f"""s_lshl_b32 s71, s68, 4
    s_add_u32 s71, s71, s69
    s_lshl_b32 s70, s71, 19
    s_add_u32 s{SK}, s50, s70
    s_addc_u32 s{SK+1}, s51, 0
    s_mov_b32 s{SK+2}, 524288
    s_mov_b32 s{SK+3}, 0x20000
    s_add_u32 s{SV}, s52, s70
    s_addc_u32 s{SV+1}, s53, 0
    s_mov_b32 s{SV+2}, 524288
    s_mov_b32 s{SV+3}, 0x20000
    s_mul_i32 s70, s3, {O_BLK}
    s_add_u32 s{SO}, s100, s70
    s_addc_u32 s{SO+1}, s101, 0
    s_mov_b32 s{SO+2}, {O_BLK}
    s_mov_b32 s{SO+3}, 0x20000
    s_mul_i32 s70, s71, 36864
    s_add_u32 s{SWO}, s56, s70
    s_addc_u32 s{SWO+1}, s57, 0
    s_mov_b32 s{SWO+2}, 36864
    s_mov_b32 s{SWO+3}, 0x20000
    s_mul_i32 s71, s3, {WOT_BLK}
    s_add_u32 s70, s70, s71
    s_add_u32 s70, s70, {WOT_OFF}
    s_add_u32 s{SWT}, s100, s70
    s_addc_u32 s{SWT+1}, s101, 0
    s_mov_b32 s{SWT+2}, 36864
    s_mov_b32 s{SWT+3}, 0x20000
    s_mul_i32 s62, s69, {8*122880}
    s_mul_i32 s63, s68, 15360        ; b*15*1024
    s_add_u32 s{SCN}, s100, {CNT_OFF}
    s_addc_u32 s{SCN+1}, s101, 0
    s_mov_b32 s{SCN+2}, 24576
    s_mov_b32 s{SCN+3}, 0x20000
    s_mov_b64 s[{SDB}:{SDB+1}], s[78:79]
    s_mov_b32 s{SDB+2}, 256
    s_mov_b32 s{SDB+3}, 0x20000
    s_mov_b64 s[{SIN}:{SIN+1}], s[{SCN}:{SCN+1}]
    s_mov_b32 s{SIN+3}, 0x20000
    s_mov_b64 s[{SIF}:{SIF+1}], s[78:79]
    s_mov_b32 s{SIF+3}, 0x20000
    s_lshl_b32 s70, s3, 3
    s_add_u32 s70, s70, s68
    s_lshl_b32 s{sCO}, s70, 2
    s_lshr_b32 s71, s69, 2
    s_add_u32 s{sCO}, s{sCO}, s71
    s_lshl_b32 s{sCO}, s{sCO}, 7
    s_lshr_b32 s{sCW}, s70, 1
    s_lshl_b32 s{sCW}, s{sCW}, 7
    s_add_u32 s{sCW}, s{sCW}, 8192
    s_and_b32 s70, s97, 1
    s_mul_i32 s70, s70, {30 + OPT.get('bal', 0)}
    s_add_u32 s2, s2, s70              ; tile number inside the pair of workgroup classes (0..59 real)
    s_cmp_eq_u32 s70, 0
    s_cselect_b32 s71, {30 + OPT.get('bal', 0)}, 60
    s_cmp_ge_u32 s2, s71
    s_cselect_b32 s{sIDLE}, 1, 0       ; no output tile for this workgroup
    s_mul_i32 s68, s2, 43
    s_lshr_b32 s68, s68, 8
    s_mul_i32 s69, s68, 6
    s_sub_u32 s69, s2, s69             ; nt
    s_bfe_u32 s70, s97, 0x10001
    s_mul_i32 s70, s70, 10
    s_add_u32 s68, s68, s70            ; mt
    s_mul_i32 s79, s68, 103
    s_lshr_b32 s79, s79, 8
    s_mul_i32 s78, s68, 96
    s_add_u32 s78, s78, 95
    s_mul_i32 s78, s78, 4370
    s_lshr_b32 s78, s78, 20
    s_lshl_b32 s70, s3, 3
    s_add_u32 s78, s78, s70
    s_add_u32 s79, s79, s70
    s_lshl_b32 s78, s78, 2
    s_lshl_b32 s79, s79, 2
    s_add_u32 s78, s78, s{sWAVE}
    s_add_u32 s79, s79, s{sWAVE}
    s_lshl_b32 s78, s78, 7
    s_lshl_b32 s79, s79, 7
    s_mul_i32 s70, s3, {O_BLK}
    s_mul_i32 s71, s68, 6144
    s_add_u32 s70, s70, s71
    s_add_u32 s{SO2}, s100, s70
    s_addc_u32 s{SO2+1}, s101, 0
    s_sub_u32 s{SO2+2}, {O_BLK}, s71
    s_mov_b32 s{SO2+3}, 0x20000
    s_mul_i32 s70, s3, {WOT_BLK}
    s_mul_i32 s71, s69, 6144
    s_add_u32 s70, s70, s71
    s_add_u32 s70, s70, {WOT_OFF}
    s_add_u32 s{SW2}, s100, s70
    s_addc_u32 s{SW2+1}, s101, 0
    s_sub_u32 s{SW2+2}, {WOT_BLK}, s71
    s_mov_b32 s{SW2+3}, 0x20000
    s_cmp_eq_u32 s{sIDLE}, 1
    s_cselect_b32 s{SO2+2}, 0, s{SO2+2}   ; workgroups without an output tile load nothing
    s_cselect_b32 s{SW2+2}, 0, s{SW2+2}
    s_mov_b32 s100, s{SO2+2}
    s_mov_b32 s101, s{SW2+2}
    s_lshr_b32 s70, s{sWAVE}, 1
    s_mul_i32 s70, s70, {48*2304}
    s_mul_i32 s{sOUTO}, s68, {96*2304}
    s_add_u32 s{sOUTO}, s{sOUTO}, s70
    s_mul_i32 s70, s3, 1152
    s_add_u32 s{sOUTO}, s{sOUTO}, s70
    s_mul_i32 s70, s69, 192
    s_add_u32 s{sOUTO}, s{sOUTO}, s70
    s_and_b32 s70, s{sWAVE}, 1
    s_mul_i32 s70, s70, 96
    s_add_u32 s{sOUTO}, s{sOUTO}, s70
    s_lshl_b32 s70, s3, 2
    s_add_u32 s70, s70, s{sWAVE}
    s_lshl_b32 s70, s70, 7
    s_add_u32 s70, s70, 8192
    v_and_b32 v1, 1, v0
    v_mov_b32 v{VP2}, s78
    v_mov_b32 v2, s79
    v_cmp_eq_u32 vcc, 1, v1
    v_and_b32 v1, 2, v0
    v_mov_b32 v3, s70
    v_cndmask_b32 v{VP2}, v{VP2}, v2, vcc
    v_cmp_eq_u32 vcc, 2, v1
    v_add_u32 v{VPE}, 16384, v{VP2}
    v_mov_b32 v{VTH}, 4
    v_cndmask_b32 v{VPE}, v{VPE}, v3, vcc
    v_mov_b32 v3, 32
    v_cndmask_b32 v{VTH}, v{VTH}, v3, vcc
    s_mov_b32 s{sSIG}, 0""")
    b(f"L_late{sfx}:")
    b(f"""s_or_b32 s70, s97, s{sSAFE}
    s_cmp_eq_u32 s70, 0
    s_cselect_b32 s{SIN+2}, 24576, 0   ; only workgroup 0 (first pass) really initialises the counters
    s_cselect_b32 s{SIF+2}, 4, 0
    s_mov_b32 s{sOO}, s62
    s_mov_b32 s{sLATE}, 0
    s_mov_b32 s{SO2+2}, s100
    s_mov_b32 s{SW2+2}, s101
    s_mul_i32 s{sO2}, s{sWAVE}, {32*122880}
    s_mul_i32 s{sW2}, s{sWAVE}, {32*36864}
    s_mov_b32 s{sPF}, 0x40000
    s_lshl_b32 s{sKB}, s{sWAVE}, 11""")

def warm_code(b):
    if not OPT.get('warm'): return
    b(f"""s_getpc_b64 s[70:71]
    L_pc:
    s_sub_u32 s70, s70, L_pc-attn_kernel
    s_subb_u32 s71, s71, 0
    v_lshrrev_b32 v2, 3, v0
    v_and_b32 v2, 31, v2
    v_lshl_add_u32 v2, s2, 5, v2
    v_lshlrev_b32 v2, 7, v2
    v_min_u32 v2, L_codeend-attn_kernel-4, v2
    v_mov_b32 v3, s71
    v_add_co_u32 v2, vcc, s70, v2
    v_addc_co_u32 v3, vcc, 0, v3, vcc
    global_load_dword v4, v[2:3], off""")

def prologue_a(b):
    lane = T0; t1 = T0 + 1; t2 = T0 + 2; t3 = T0 + 3; g_ = T0 + 4; ihi = T0 + 5; i8 = T0 + 6
    b(f"""v_and_b32 v{lane}, 63, v0
    v_lshrrev_b32 v{g_}, 4, v{lane}
    v_lshrrev_b32 v{ihi}, 3, v{lane}
    v_and_b32 v{i8}, 7, v{lane}""")
    b(f"s_lshl_b32 s{sT}, s{sWAVE}, 6")
    b(f"v_add_u32 v{t1}, s{sT}, v{ihi}")
    b(f"v_mul_u32_u24 v{t1}, 1152, v{t1}")
    for j in range(4):
        b(f"v_xor_b32 v{t2}, {4*(j%2)}, v{g_}")
        b(f"v_xor_b32 v{t2}, v{t2}, v{i8}")
        b(f"v_lshl_add_u32 v{t2}, v{t2}, 4, v{t1}")
        b(f"v_add_u32 v{DX+j}, {8*j*1152 - 1024*j}, v{t2}")
    b(f"""s_and_b32 s{sT}, s{sWAVE}, 1
    s_lshl_b32 s{sT}, s{sT}, 18
    s_lshr_b32 s{sT+1}, s{sWAVE}, 1
    s_lshl_b32 s{sT+1}, s{sT+1}, 7
    s_add_u32 s{sT}, s{sT}, s{sT+1}
    v_lshlrev_b32 v{t1}, 13, v{ihi}
    v_add_u32 v{t1}, s{sT}, v{t1}
    v_lshrrev_b32 v{t2}, 2, v{i8}
    v_xor_b32 v{t2}, v{t2}, v{g_}
    v_and_b32 v{t2}, 1, v{t2}
    v_lshl_add_u32 v{t1}, v{t2}, 6, v{t1}
    v_and_b32 v{t2}, 3, v{i8}
    v_lshl_add_u32 v{t1}, v{t2}, 4, v{t1}""")
    for j in range(4): b(f"v_add_u32 v{DW+j}, {8*j*8192 - 1024*j}, v{t1}")
    b(f"""s_mov_b32 s{sXO}, 0
    s_mov_b32 s{sXO2}, 36864
    s_mov_b32 s{sWOFF}, 0
    s_mov_b32 s{sKV}, 0
    s_mov_b32 s{sHEAD}, 0""")

def prologue_b(b):
    lane = T0; t1 = T0 + 1; t2 = T0 + 2; t3 = T0 + 3; g_ = T0 + 4; ihi = T0 + 5; i8 = T0 + 6
    if OPT.get('sstamps'): stamp(b)
    b.ext(x_dma(0, 4)); b.ext(w_dma(0, 4))
    if OPT.get('sstamps'): stamp(b)
    if OPT.get('xw'):
        pf = K2F[OPT.get('xwf', 0)]
        b(f"""s_lshr_b32 s70, s2, 2
        s_mul_i32 s70, s70, 270
        s_mul_i32 s71, s{sWAVE}, 68
        s_add_u32 s70, s70, s71
        s_lshl_b32 s70, s70, 7
        v_lshlrev_b32 v5, 7, v{lane}
        buffer_load_dword v6, v5, s[{SX}:{SX+3}], s70 offen{pf}
        s_and_b32 s70, s2, 3
        s_lshl_b32 s70, s70, 2
        s_add_u32 s70, s70, s{sWAVE}
        s_lshl_b32 s70, s70, 13
        v_lshrrev_b32 v5, 2, v{lane}
        v_lshlrev_b32 v5, 17, v5
        v_and_b32 v7, 3, v{lane}
        v_lshl_add_u32 v5, v7, 7, v5
        buffer_load_dword v6, v5, s[{SW}:{SW+3}], s70 offen{pf}
        s_add_u32 s70, s70, {256*8192}
        buffer_load_dword v6, v5, s[{SW}:{SW+3}], s70 offen{pf}
        s_add_u32 s70, s70, {256*8192}
        buffer_load_dword v6, v5, s[{SW}:{SW+3}], s70 offen{pf}""")
    late_setup(b, "")
    if OPT.get('tlb'):
        for srd in (SK, SV, SWO): b(f"buffer_load_dword v1, off, s[{srd}:{srd+3}], 0 nt")
        if OPT['tlb'] > 1:
            b(f"s_mov_b64 exec, 1\nbuffer_store_dword v1, off, s[{SWT}:{SWT+3}], s{sWB} sc1\ns_mov_b64 exec, -1")
    persist_regs(b)
    b(f"""v_mov_b32 v{VONE}, 1
    s_and_b32 s70, s{sWAVE}, 1
    s_mul_i32 s70, s70, 3072
    s_sub_u32 s71, 3072, s70
    v_add_u32 v{VPW}, s70, v{VLN}
    v_add_u32 v{VPW+1}, s71, v{VLN}
    s_lshr_b32 s70, s{sWAVE}, 1
    s_mul_i32 s70, s70, 3072
    s_sub_u32 s71, 3072, s70
    v_add_u32 v{VPO}, s70, v{VLN}
    v_add_u32 v{VPO+1}, s71, v{VLN}""")
    i16 = T0 + 7; r_ = T0 + 8; c4 = T0 + 9
    b(f"""v_and_b32 v{i16}, 15, v{lane}
    v_lshrrev_b32 v{r_}, 2, v{i16}
    v_and_b32 v{c4}, 3, v{lane}
    v_lshlrev_b32 v{t1}, 7, v{i16}
    v_add_u32 v{t1}, s{sXB}, v{t1}
    v_add_u32 v{t1}, 16384, v{t1}
    v_lshrrev_b32 v{t3}, 1, v{i16}""")
    for s in range(2):
        b(f"v_xor_b32 v{t2}, {4*s}, v{g_}")
        b(f"v_xor_b32 v{t2}, v{t2}, v{t3}")
        b(f"v_lshl_add_u32 v{XA+s}, v{t2}, 4, v{t1}\nv_add_u32 v{XA+2+s}, 65536, v{XA+s}")
    b(f"""v_lshl_add_u32 v{t1}, v{g_}, 3, v{r_}
    v_lshlrev_b32 v{t1}, 7, v{t1}
    v_lshl_add_u32 v{t1}, v{c4}, 4, v{t1}
    v_add_u32 v{t1}, 49152, v{t1}
    v_lshrrev_b32 v{t3}, 1, v{r_}""")
    for sp in range(2):
        b(f"v_xor_b32 v{t2}, {sp}, v{t3}")
        b(f"v_lshl_add_u32 v{WA+sp}, v{t2}, 6, v{t1}\nv_add_u32 v{WA+2+sp}, 65536, v{WA+sp}")
    if OPT.get('sstamps'): stamp(b)
    b.ext(w_dma(1, 4)); b.ext(x_dma(1, 4))

def wave_code(b, nq, sfx):
    nx = 8 if nq == 4 else 6
    b(f"L_begin{sfx}:")
    if nq == 3:
        b(f"v_mov_b32 v{VHS}, 0\nv_lshlrev_b32 v{VCW}, 3, v{VLN}")
        b(f"buffer_store_dword v{VHS}, v{VCW}, s[{SIN}:{SIN+3}], 0 offen sc1 ; tag=INIT")
        b(f"s_mov_b32 s{sT}, 8192\nbuffer_store_dword v{VHS}, v{VCW}, s[{SIN}:{SIN+3}], s{sT} offen sc1 ; tag=INIT")
        b(f"s_mov_b32 s{sT}, 16384\nbuffer_store_dword v{VHS}, v{VCW}, s[{SIN}:{SIN+3}], s{sT} offen sc1 ; tag=INIT")
    stamp(b, 0)
    b("WAITV ; cover=X0,W0")
    b("s_barrier ; pub=X0,W0")
    b.ext(x_reads(0, nq))
    for T in (0, 1): b.ext(w_reads(0, T))
    b.ext(w_reads(0, 2)[:3])
    b("WAITL W0.0")
    stamp(b, 1)
    for n in range(0, 12): qproj_stage(b, n, nq)
    fill = []; post = []
    for sp in range(4):
        for q in range(nq):
            rs = [128 + 32 * q + 8 * sp + 2 * i_ for i_ in range(4)]
            for r in rs: fill += [f"v_mul_f32 v{r}, s{sC}, v{r}", f"v_mul_f32 v{r+1}, s{sC}, v{r+1}"]
            for r in rs: fill.append(f"v_cvt_pk_bf16_f32 v{r}, v{r}, v{r+1}")
            for i_, r in enumerate(rs): fill.append(f"v_accvgpr_write_b32 a{AQ(q) + 4*sp + i_}, v{r}")
    for n in range(12, 18): qproj_stage(b, n, nq, fill if n >= 16 else None)
    stamp(b, 2)
    conv2 = []
    for q in range(nq):
        for h in range(8):
            r = 128 + 32 * q + 4 * h
            conv2 += [f"v_accvgpr_read_b32 v{4+i_}, a{r+i_}" for i_ in range(4)]
            conv2 += [f"v_mul_f32 v{4+i_}, s{sC}, v{4+i_}" for i_ in range(4)]
            conv2 += ["v_cvt_pk_bf16_f32 v4, v4, v5", "v_cvt_pk_bf16_f32 v6, v6, v7",
                      f"v_accvgpr_write_b32 a{AQ2(q)+2*h}, v4", f"v_accvgpr_write_b32 a{AQ2(q)+2*h+1}, v6"]
    def pre_mfma(): return [qk(q, 0, s_, czero=True) for q in range(nq) for s_ in range(4)]
    def pre_max():
        t = B()
        for q in range(nq):
            s_ = S_ + 8 * q
            t(f"v_max3_f32 v{s_}, v{s_}, v{s_+1}, v{s_+2}")
        for q in range(nq):
            s_ = S_ + 8 * q
            t(f"v_max_f32 v{s_}, v{s_}, v{s_+3}")
        xlane_reduce_multi(t, [S_ + 8 * q for q in range(nq)], [T0 + q for q in range(nq)], "v_max_f32")
        for q in range(nq):
            for r in range(4): t(f"v_sub_f32 v{CI+4*q+r}, 0, v{S_+8*q}")
        return t.L
    def weave(mf, st, per):
        for x in mf:
            b(x)
            for _ in range(per):
                if st: b(st.pop(0))
    def zipper(a_, b_, ra, rb):
        out = []
        while a_ or b_:
            for _ in range(ra):
                if a_: out.append(a_.pop(0))
            for _ in range(rb):
                if b_: out.append(b_.pop(0))
        return out
    b.ext(k_reads(0, 0))
    b.ext(fill)
    b(f"v_and_b32 v4, 3, v0\nv_mov_b32 v5, 0x3f803f80\nv_cmp_eq_u32 vcc, 0, v4")
    for i_ in range(4): b(f"v_cndmask_b32 v{ONES+i_}, 0, v5, vcc")
    b("s_waitcnt lgkmcnt(0)")
    if OPT.get('wts'):
        mv = [f"v_mov_b32 v{192+i_}, v{WOF+i_}" for i_ in range(36)]
        b.ext(mv[:8])
        mv = mv[8:]
        weave(pre_mfma()[:8], mv, 4)
        b.ext(mv); b.ext(pre_mfma()[8:])
    else: b.ext(pre_mfma())
    b.ext(pre_max())
    stamp(b, 3)
    for i_ in range(OPT.get('pause', 0)): b('s_sleep 32')
    if OPT.get('skew'):
        b(f"s_lshr_b32 s{sT}, s97, 3\ns_and_b32 s{sT}, s{sT}, 7\nL_skew{sfx}:\ns_cmp_eq_u32 s{sT}, 0\ns_cbranch_scc1 L_skewd{sfx}\ns_sleep {OPT['skew']}\ns_sub_u32 s{sT}, s{sT}, 1\ns_branch L_skew{sfx}\nL_skewd{sfx}:")
    adv8 = lambda x: x
    def head_start(hd):
        b(f"s_cmp_lg_u32 s{sSAFE}, 0\ns_cbranch_scc1 L_maxpass{sfx}\nL_maxdone{hd}{sfx}:")
        if not LM:
            for q in range(nq): b(f"v_mov_b32 v{LS+q}, 0")
        stamp(b)
    if OPT.get('wtp') == 2 and nq == 3: b("WAITV ; cover=WT\nbuffer_wbl2 sc1 ; tag=WT")
    head_start(0)
    per = -(-len(conv2) // 8); tot_ = len(conv2)
    for k in range(8):
        ex = []
        if k == 0 and OPT.get('wts'):
            for i_ in range(9):
                g = 2 + 7 * i_
                if i_ < 8: ex.append((g - 1, f"s_add_u32 s{sT+1}, s{sWB}, {16384*(i_//4)}"))
                else: ex += [(g - 2, f"s_lshl_b32 s{sT+1}, s{sWAVE}, 10"), (g - 1, f"s_add_u32 s{sT+1}, s{sT+1}, 32768")]
                ex.append((g, f"buffer_store_dwordx4 {vr(192+4*i_,4)}, v{VLN}, s[{SWT}:{SWT+3}], s{sT+1} offen offset:{1024*(i_%4) if i_ < 8 else 0} sc1 ; tag=WT"))
        if k == 6 and nq == 3:
            ex = [(46, "WAITV ; cover=HS"), (47, f"v_readfirstlane_b32 s{sT}, v{VHS}\ns_cmp_eq_u32 s{sT}, 0\ns_cbranch_scc1 L_hspin\nL_hsok:")]
        cnt_ = per
        if OPT.get('front'): cnt_ = -(-tot_ * {1: (8, 8, 7, 7, 6, 5, 4, 3), 2: (3, 4, 5, 6, 7, 7, 8, 8), 3: (12, 12, 12, 12, 0, 0, 0, 0)}[OPT['front']][k] // 48)
        attn_stage(b, k, nq, ex, fill=[conv2.pop(0) for _ in range(min(cnt_, len(conv2)))])
    b(f"L_atin{sfx}:")
    b(f"s_mov_b32 s{sCNT}, 0")
    b(f".p2align 3\nL_at{sfx}:")
    b("LOOPBEGIN at 3 8")
    for k in range(8, 16):
        ex = []
        if k == 11 and nq == 3:
            ex = [(59, f"""s_xor_b32 s{sT+1}, s{sHEAD}, 1
            s_or_b32 s{sT}, s{sCNT}, s{sT+1}
            s_cbranch_scc0 L_sig
            L_nosig:""")]
        if k == 15: ex = [(NS - 6, f"s_add_u32 s{sCNT}, s{sCNT}, 1"), (NS - 4, f"s_add_u32 s{sT}, s{sCNT}, s{sHEAD}"), (NS - 2, f"s_cmp_lt_u32 s{sT}, 3")]
        attn_stage(b, k, nq, ex)
    if OPT.get('midgap'):
        b(f"s_cselect_b32 s{sT+1}, 1, 0\ns_lshl_b32 s{sT}, s{sHEAD}, 4\ns_add_u32 s{sT}, s{sT}, s{sCNT}\ns_cmp_eq_u32 s{sT}, {OPT.get('midat', 1)}\ns_cbranch_scc0 L_ng{sfx}")
        for i_ in range(OPT['midgap']): b("s_sleep 16")
        b(f"L_ng{sfx}:\ns_cmp_eq_u32 s{sT+1}, 1")
    b(f"s_cbranch_scc1 L_at{sfx}")
    b("LOOPEND at")
    b(f"L_atx{sfx}:")
    b(f"s_cmp_lg_u32 s{sHEAD}, 0\ns_cbranch_scc1 L_fin{sfx}")

    def lsum(qs):
        t = B()
        if not LM: xlane_reduce_multi(t, [LS + q for q in qs], [T0 + 4 + q for q in qs], "v_add_f32")
        for q in qs:
            src = LA + 4 * q if LM else LS + q
            t(f"v_cmp_ngt_f32 vcc, {LTHR}, v{src}")
            t(f"v_rcp_f32 v{LS+q}, v{src}")
            t(f"s_or_b32 s{sFLAG}, s{sFLAG}, vcc_lo\ns_or_b32 s{sFLAG}, s{sFLAG}, vcc_hi")
        return t.L
    cnt = [0]
    def onorm(q, pk, flag, inplace=False, so=None):
        out = []
        for sp in range(4):
            d = P_ + 4 * (cnt[0] % 2); cnt[0] += 1
            if inplace: d = O_ + 32 * q + 8 * sp
            rs = [O_ + 32 * q + 8 * sp + 2 * i_ for i_ in range(4)]
            for r in rs:
                if pk and OPT.get('pk', 1): out.append(f"v_pk_mul_f32 v[{r}:{r+1}], v[{r}:{r+1}], v[{LS+q-(q%2)}:{LS+q-(q%2)+1}] op_sel:[0,{q%2}] op_sel_hi:[1,{q%2}]")
                else: out += [f"v_mul_f32 v{r}, v{r}, v{LS+q}", f"v_mul_f32 v{r+1}, v{r+1}, v{LS+q}"]
            for i_, r in enumerate(rs): out.append(f"v_cvt_pk_bf16_f32 v{d+i_}, v{r}, v{r+1}")
            if flag is None:
                for i_ in range(4): out.append(f"v_accvgpr_write_b32 a{AST+16*q+4*sp+i_}, v{d+i_}")
                continue
            if so:
                out[-1] += f"\ns_add_u32 s{sT+1}, s{so}, {sp*122880}\nbuffer_store_dwordx4 {vr(d,4)}, v{VO}, s[{SO}:{SO+3}], s{sT+1} offen offset:{1024*q}{flag}"
                continue
            out.append(f"s_add_u32 s{sT}, s{sOO}, {sp*122880}")
            out.append(f"buffer_store_dwordx4 {vr(d,4)}, v{VO}, s[{SO}:{SO+3}], s{sT} offen offset:{1024*q}{flag}")
        return out
    def drain(st, ld=None, every=1):
        slots = []; gaps = [[] for _ in range(18)]
        for q in (2, 3):
            for T in range(8): slots.append(pv(q, T) if q < nq else None)
            slots.append(lsm(q) if (q < nq and LM) else None)
        rem = sorted(sm_items(nq, NS, 2 * NS), key=lambda t: t[0])
        b.ext([sm_text(*k_) for g, k_ in rem if k_[1] == 2 and k_[0] != 'add'])
        crit = sorted([k_ for g, k_ in rem if k_[1] == 3 and k_[0] != 'add'], key=lambda k_: (k_[2], k_[0] == 'cvt'))
        g = 0
        for k_ in crit:
            if k_[0] == 'exp' and gaps[min(g, 6)]: g += 1
            gaps[min(g, 6)].append(sm_text(*k_))
            if k_[0] == 'exp' or len(gaps[min(g, 6)]) == 2: g += 1
        late = [sm_text(*k_) for g_, k_ in rem if k_[0] == 'add']
        for i_, x in enumerate(late): gaps[min(9 + i_ // 2, 16) if nq == 4 else 0].append(x)
        for g in range(18):
            if slots[g] is None: continue
            room = 2 - sum(2 if 'exp' in x else 1 for x in gaps[g])
            while room > 0 and st: gaps[g].append(st.pop(0)); room -= 1
        for i_, s_ in enumerate(slots):
            if s_: b(s_)
            if s_ and ld and (i_ % every == 0 or nq == 3):
                b(ld.pop(0))
                while ld and ld[0].startswith("s_"): b(ld.pop(0))
            b.ext(gaps[i_])
    hi = list(range(2, nq))
    movs = [f"v_accvgpr_mov_b32 a{AQ(q)+i_}, a{AQ2(q)+i_}" for q in range(nq) for i_ in range(16)]
    f0 = None if OPT.get('defer') else K2F[OPT.get('of0', 2)] + ' ; tag=WT'
    if OPT.get('wtp') == 1 and nq == 3: b("buffer_wbl2 sc1 ; tag=WT")
    st = lsum([0, 1]) + onorm(0, False, f0)
    SW2_ = OPT.get('sw2', 0)
    if SW2_:
        ld = []
        for t in (38, 39): ld += k_dma(t) + v_dma(t) + kv_adv()
        b(ld.pop(0))
        ld2 = []
        for x in ld: ld2 += [x] if x.startswith('s_') else [x, 'v_nop']
        ld2 = [x for x in ld]
        drain(st, ld2, 2)
    else: drain(st)
    stamp(b, 4)
    b.ext(zipper(st, lsum(hi), 2, 1))
    b.ext(movs)
    st = onorm(1, False, f0)
    weave(pre_mfma(), st, 3 if nq == 4 else 4)
    b.ext(st)
    rest = []; late_ = []
    for q in hi:
        if SW2_ >= 2: late_ += onorm(q, False, f0, inplace=True, so=sOP)
        else: rest += onorm(q, True, f0)
    b.ext(zipper(rest, pre_max(), 2, 1))
    b.ext(vote_write())
    b(f"s_mov_b32 s{sOP}, s{sOO}\ns_add_u32 s{sOO}, s{sOO}, {4*122880}\ns_mov_b32 s{sHEAD}, 1")
    if OPT.get('emub'):
        b(f"s_and_b32 s{sT}, s97, 3\ns_cmp_eq_u32 s{sT}, s{sCNT}" if False else "")
        b(f"s_mov_b32 s{sT}, 0\nL_duma{sfx}:")
        for i_ in range(64):
            if (i_ // 2) % 4 >= nq: continue
            b(f"{MF} a[{192+4*(i_//2%16)}:{195+4*(i_//2%16)}], a[{4*(i_%8)}:{4*(i_%8)+3}], a[{32+4*(i_%7)}:{35+4*(i_%7)}], a[{192+4*(i_//2%16)}:{195+4*(i_//2%16)}]")
            if i_ % 2 == 0: b(f"ds_read_b64_tr_b16 v[4:5], v{VA + i_ % 8} offset:{(i_ % 16) * 4096}")
        b(f"s_waitcnt lgkmcnt(0)\ns_barrier\ns_add_u32 s{sT}, s{sT}, 1\ns_cmp_lt_u32 s{sT}, 8\ns_cbranch_scc1 L_duma{sfx}")
    head_start(1)
    dst = [(q, sp) for q in range(nq) for sp in range(4)] if OPT.get('defer') else []
    for k in range(32, 40):
        ex = []
        for g in (24, 25):
            if dst:
                q, sp = dst.pop(0)
                ex += [(g, f"s_add_u32 s{sT+1}, s{sOP}, {sp*122880}"),
                       (g, f"buffer_store_dwordx4 {ar(AST+16*q+4*sp,4)}, v{VO}, s[{SO}:{SO+3}], s{sT+1} offen offset:{1024*q} sc1 ; tag=WT")]
        attn_stage(b, k, nq, ex, fill=late_ if k == 32 else None)
    b(f"s_branch L_atin{sfx}")
    b("REPLAY at 32 2")
    b(f"L_fin{sfx}:")
    f1 = K2F[OPT.get('of', 0)]
    early = p2_w(0) + p2_o(0) + p2_adv(0) + p2_w(1) + p2_o(1) + p2_adv(1)
    for k in range(56, 64):
        ex = []
        if k == 56: ex = [(6, f"buffer_load_dword v{VCW}, v{VPE}, s[{SCN}:{SCN+3}], 0 offen sc1 ; tag=CW")]
        if k == 59: ex = [(NS - 3, f"WAITV ; cover=CW\nv_cmp_gt_u32 vcc, v{VTH}, v{VCW}\ns_cbranch_vccnz L_espin{sfx}\nL_eok{sfx}:")]
        if k >= 60:
            for g in (3, 7, 11, 17, 23, 45 if LM else 44):
                ex.append((g, early.pop(0)))
                while early and early[0].startswith("s_"): ex.append((g + 1, early.pop(0)))
        attn_stage(b, k, nq, ex)
    assert not early
    p2 = []
    for s_ in (2, 3): p2 += p2_w(s_) + p2_o(s_) + p2_adv(s_)
    st = lsum([0, 1]) + onorm(0, False, f1)
    drain(st, p2)
    stamp(b, 4)
    body = st + zipper(onorm(1, True, f1), lsum(hi), 2, 1)
    for q in hi: body += onorm(q, True, f1)
    body = [x + " ; tag=OS" if x.startswith("buffer_store") else x for x in body]
    nld = sum(1 for x in p2 if x.startswith("buffer_"))
    per = max(1, len(body) // (nld + 2))
    seq = []
    while body or p2:
        if p2:
            seq.append(p2.pop(0))
            while p2 and p2[0].startswith("s_"): seq.append(p2.pop(0))
        for _ in range(per):
            if body: seq.append(body.pop(0))
    outst = 48 - nld
    for x in seq:
        if x.startswith("buffer_"):
            if outst >= 62: b("s_waitcnt vmcnt(52)"); outst = 52
            outst += 1
        b(x)
    b.ext(vote_write())
    stamp(b)
    b(f"L_p2s{sfx}:")
    for s_ in range(4): p2_step(b, s_, s_ == 0, True, f"WAITV ; cover=P{s_} cap=51")
    b("WAITV lgkmcnt(0) ; cover=OS")
    b("s_branch L_vote")
    b(f"""L_espin{sfx}:
    s_mov_b32 s{sLATE}, 1
    s_mov_b32 s{SO2+2}, 0
    s_mov_b32 s{SW2+2}, 0
    s_branch L_eok{sfx}""")
    if nq == 3:
        b(f"""L_sig:
        v_mov_b32 v4, {131072+7168}
        ds_read_b128 v[4:7], v4
        s_waitcnt lgkmcnt(0)
        v_or_b32 v4, v4, v5
        v_or3_b32 v4, v4, v6, v7
        v_readfirstlane_b32 s{sT}, v4
        s_mov_b64 exec, 1
        s_cmp_lg_u32 s{sSAFE}, 0
        s_cselect_b32 s{sT}, 0, s{sT}
        s_cbranch_scc1 L_sig1
        buffer_atomic_add v{VONE}, off, s[{SCN}:{SCN+3}], s{sCW} sc1
        L_sig1:
        s_or_b32 s{sT}, s{sT}, s{sSIG}
        s_cbranch_scc1 L_sig2
        s_add_u32 s{sT}, s{sCO}, 16384
        s_mov_b32 s{sSIG}, 1
        buffer_atomic_add v{VONE}, off, s[{SCN}:{SCN+3}], s{sT} sc1
        L_sig2:
        s_mov_b64 exec, -1
        s_branch L_nosig""")
        b(f"""L_hspin:
        s_mov_b32 s{sCNT}, 0
        L_hsp:
        s_sleep 8
        buffer_load_dword v{VHS}, off, s[{SDB}:{SDB+3}], 0 sc1
        s_waitcnt vmcnt(0)
        v_readfirstlane_b32 s{sT}, v{VHS}
        s_add_u32 s{sCNT}, s{sCNT}, 1
        s_lshr_b32 s{sT+1}, s{sCNT}, 17
        s_or_b32 s{sT}, s{sT}, s{sT+1}
        s_cmp_eq_u32 s{sT}, 0
        s_cbranch_scc1 L_hsp
        s_branch L_hsok""")
    for uid in SPINS:
        b(f"""L_fs{uid}:
        ds_read_b128 {vr(FQ,4)}, v{VFB}
        s_waitcnt lgkmcnt(0)
        v_min3_u32 v{FQ}, v{FQ}, v{FQ+1}, v{FQ+2}
        v_min_u32 v{FQ}, v{FQ}, v{FQ+3}
        v_cmp_gt_u32 vcc, s{sFV}, v{FQ}
        s_cbranch_vccnz L_fs{uid}
        s_branch L_fr{uid}""")
    SPINS.clear()
    b(f"L_maxpass{sfx}:")
    for q in range(nq): b(f"v_mov_b32 v{T0+8+q}, 0xff800000")
    for s2 in range(4): b(f"v_add_u32 v{T0+12+s2}, 147456, v{KA+s2}")
    b(f"s_lshl_b32 s{sT}, s{sHEAD}, 18\ns_mov_b32 s{sCNT}, 0")
    b(f"L_mp{sfx}:")
    b(f"s_barrier\ns_add_u32 m0, s{sKB}, 147456")
    b(dma(DK0, SK, f"s{sT}", 0, "", "MP")); b(dma(DK1, SK, f"s{sT}", 1024, "", "MP"))
    b("s_waitcnt vmcnt(0)\ns_barrier")
    for kt in range(2):
        for s in range(4):
            b(f"ds_read_b128 {ar(ASP+4*(4*kt+s),4)}, v{T0+12+s} offset:{kt*4096}")
    b("s_waitcnt lgkmcnt(0)")
    for q in range(nq):
        for kt in range(2):
            for s in range(4):
                d = vr(S_ + 8 * q + 4 * kt, 4)
                b(f"{MF} {d}, {ar(ASP+4*(4*kt+s),4)}, {ar(AQ(q)+4*s,4)}, {d if s else '0'}")
    for q in range(nq):
        for e in range(0, 8, 2): b(f"v_max3_f32 v{T0+8+q}, v{T0+8+q}, v{S_+8*q+e}, v{S_+8*q+e+1}")
    b(f"s_add_u32 s{sT}, s{sT}, 8192\ns_add_u32 s{sCNT}, s{sCNT}, 1\ns_cmp_lt_u32 s{sCNT}, 32\ns_cbranch_scc1 L_mp{sfx}")
    b("s_barrier")
    xlane_reduce_multi(b, [T0 + 8 + q for q in range(nq)], [T0 + q for q in range(nq)], "v_max_f32")
    for q in range(nq):
        for r in range(4): b(f"v_sub_f32 v{CI+4*q+r}, 0, v{T0+8+q}")
    b(f"s_cmp_eq_u32 s{sHEAD}, 0\ns_cbranch_scc1 L_maxdone0{sfx}\ns_branch L_maxdone1{sfx}")

FA = [144, 192, 0, 96]
def p2_reg(slot, i): return FA[slot] + 4 * i
VPW = 2; VPO = 8
def p2_w(slot): return [f"buffer_load_dwordx4 {ar(p2_reg(slot, i),4)}, v{VPW + i//3}, s[{SW2}:{SW2+3}], s{sW2} offen offset:{1024*(i%3)}{K2F[OPT.get('p2f', 2)]} ; tag=P{slot}" for i in range(6)]
def p2_o(slot): return [f"buffer_load_dwordx4 {ar(p2_reg(slot, 6+i),4)}, v{VPO + i//3}, s[{SO2}:{SO2+3}], s{sO2} offen offset:{1024*(i%3)}{K2F[OPT.get('p2f', 2)]} ; tag=P{slot}" for i in range(6)]
def p2_adv(slot):
    m = 5 if slot == 3 else 1
    return [f"s_add_u32 s{sO2}, s{sO2}, {m*122880}", f"s_add_u32 s{sW2}, s{sW2}, {m*36864}"]

def vote_write():
    return [f"v_mov_b32 v4, s{sFLAG}", f"s_lshl_b32 s{sT}, s{sWAVE}, 2", f"s_add_u32 s{sT}, s{sT}, {131072+7168}",
            f"v_mov_b32 v5, s{sT}", "ds_write_b32 v5, v4"]

P2ACC = 112
def p2_acc(q, n): return P2ACC + 4 * (6 * q + n)
def p2_step(b, slot, first, prefetch, wait, order=None, extra=None):
    b(wait)
    order = order or [(q, n) for q in range(6) for n in range(6)]
    slots = []; gaps = [[] for _ in range(36)]
    for q, n in order:
        a_ = vr(p2_acc(q, n), 4)
        slots.append(f"{MF} {a_}, {ar(p2_reg(slot, n),4)}, {ar(p2_reg(slot, 6+q),4)}, {'0' if first else a_}")
    if prefetch:
        o_, w_ = p2_o(slot), p2_w(slot)
        for q in range(6): gaps[6 * q + 5].append(o_[q])
        for n in range(6): gaps[30 + n].append(w_[n])
        gaps[35] += p2_adv(slot)
    for g, x in (extra or []): gaps[g].append(x)
    emit_slots(b, slots, gaps)

def phase2(b):
    D = 4
    acc = p2_acc
    def step(slot, first, prefetch, N, order=None, extra=None): p2_step(b, slot, first, prefetch, f"s_waitcnt vmcnt({N})", order, extra)
    b(f"""L_vote:
    s_cmp_eq_u32 s{sLATE}, 2
    s_cbranch_scc1 L_go
    v_mov_b32 v5, {131072+7168}
    s_barrier
    ds_read_b128 v[16:19], v5
    s_waitcnt lgkmcnt(0)
    v_or_b32 v16, v16, v17
    v_or3_b32 v16, v16, v18, v19
    v_readfirstlane_b32 s{sT}, v16
    s_cmp_lg_u32 s{sSAFE}, 0
    s_cselect_b32 s{sT}, 0, s{sT}
    s_cmp_lg_u32 s{sT}, 0
    s_cbranch_scc1 L_redo
    s_cmp_eq_u32 s{sWAVE}, 3
    s_cbranch_scc0 L_nosig2
    s_mov_b64 exec, 1
    buffer_atomic_add v{VONE}, off, s[{SCN}:{SCN+3}], s{sCO} sc1
    s_mov_b64 exec, -1
    L_nosig2:""")
    stamp(b)
    b(f"""s_cmp_eq_u32 s{sIDLE}, 1
    s_cbranch_scc1 L_fini
    s_cmp_eq_u32 s{sLATE}, 1
    s_cbranch_scc1 L_lateld
    L_go:
    s_xor_b32 s70, s{sWAVE}, 1
    s_mul_i32 s70, s70, 27648
    v_add_u32 v16, s70, v{VLN}
    s_xor_b32 s70, s{sWAVE}, 2
    s_mul_i32 s70, s70, 27648
    s_add_u32 s70, s70, 9216
    v_add_u32 v17, s70, v{VLN}
    s_xor_b32 s70, s{sWAVE}, 3
    s_mul_i32 s70, s70, 27648
    s_add_u32 s70, s70, 18432
    v_add_u32 v18, s70, v{VLN}
    s_mul_i32 s70, s{sWAVE}, 27648
    v_add_u32 v19, s70, v{VLN}
    v_and_b32 v20, 15, v0
    v_mul_u32_u24 v20, 96, v20
    v_bfe_u32 v21, v0, 4, 2
    v_lshl_add_u32 v20, v21, 3, v20
    v_add_u32 v20, s70, v20            ; bf16 staging write address: row*96 + g*8
    v_and_b32 v21, 63, v0
    s_mov_b32 s71, 0x2aab""")
    for r in range(5):
        b(f"""v_add_u32 v22, {64*r}, v21
        v_mul_u32_u24 v23, s71, v22
        v_lshrrev_b32 v23, 16, v23
        v_mul_u32_u24 v{42+r}, {2304 - 96}, v23
        v_lshl_add_u32 v{42+r}, v22, 4, v{42+r}""")
    b(f"""v_cmp_gt_u32 vcc, 32, v21
    v_mov_b32 v22, 0x7f000000
    v_cndmask_b32 v46, v22, v46, vcc
    s_mov_b32 s88, s{sOUT}
    s_mov_b32 s89, s{sOUT+1}
    s_mov_b32 s90, {8*240*1152*2}
    s_mov_b32 s91, 0x20000
    s_mov_b32 s36, 0
    .p2align 3
    L_k2:""")
    for s_ in range(D):
        ex = [(0, f"buffer_load_dword v6, v{VP2}, s[{SCN}:{SCN+3}], 0 offen sc1")] if s_ == 0 else None
        step(s_, False, True, 36, extra=ex)
    b("""s_add_u32 s36, s36, 1
    s_cmp_eq_u32 s36, 2
    s_cbranch_scc1 L_chk
    L_chkd:
    s_cmp_lt_u32 s36, 6
    s_cbranch_scc1 L_k2""")
    b("L_tail:")
    for s_ in range(D - 1): step(s_, False, False, 12 * (D - 1 - s_))
    stamp(b)
    quad = lambda q, n: (q // 3) * 2 + (n // 3)
    oth = [(q, n) for d in (1, 2, 3) for q in range(6) for n in range(6) if quad(q, n) == d]
    mine = [(q, n) for q in range(3) for n in range(3)]
    wr = [(min(i_ + 5, 35), f"ds_write_b128 v{15 + quad(q, n)}, {vr(acc(q, n),4)} offset:{((q % 3) * 3 + n % 3) * 1024}") for i_, (q, n) in enumerate(oth)]
    step(D - 1, False, False, 0, order=oth + mine, extra=wr)
    if OPT.get('rstamps'): stamp(b)
    b("s_waitcnt lgkmcnt(0)\ns_barrier")
    if OPT.get('rstamps'): stamp(b)
    for t in range(9):
        for src in range(3):
            b(f"ds_read_b128 {vr(acc(*oth[3*t+src]),4)}, v19 offset:{src * 9216 + t * 1024}")
    for t, (q, n) in enumerate(mine):
        r0, r1, r2, m = acc(*oth[3*t]), acc(*oth[3*t+1]), acc(*oth[3*t+2]), acc(q, n)
        b(f"s_waitcnt lgkmcnt({min(15, 3 * (8 - t))})")
        for x_, y_ in ((r0, r1), (m, r2), (m, r0)):
            for r in (0, 2): b(f"v_pk_add_f32 v[{x_+r}:{x_+r+1}], v[{x_+r}:{x_+r+1}], v[{y_+r}:{y_+r+1}]")
        b(f"v_cvt_pk_bf16_f32 v{24+2*t}, v{m}, v{m+1}\nv_cvt_pk_bf16_f32 v{25+2*t}, v{m+2}, v{m+3}")
    for t, (q, n) in enumerate(mine):
        b(f"ds_write_b64 v20, v[{24+2*t}:{25+2*t}] offset:{q * 1536 + n * 32}")
    b("s_waitcnt lgkmcnt(0)")
    for r in range(5): b(f"ds_read_b128 {vr(48+4*r,4)}, v19 offset:{1024*r}")
    for r in range(5):
        b(f"s_waitcnt lgkmcnt({4-r})")
        b(f"buffer_store_dwordx4 {vr(48+4*r,4)}, v{42+r}, s[88:91], s{sOUTO} offen{K2F[OPT.get('outf', 0)]}")
    if OPT.get('rstamps'): stamp(b)
    b("L_fini:")
    if OPT.get('fixspan'):
        b(f"""s_waitcnt vmcnt(0)
        L_fix:
        s_memrealtime s[74:75]
        s_waitcnt lgkmcnt(0)
        s_sub_u32 s74, s74, s72
        s_cmp_lt_u32 s74, {OPT['fixspan'] * 100}
        s_cbranch_scc1 L_fix""")
    stamp_dump(b, 0, sWAVE)
    b("s_endpgm")
    b(f"""L_chk:
    s_waitcnt vmcnt(48)
    s_sub_u32 s{sO2}, s{sO2}, {28*122880}
    s_sub_u32 s{sW2}, s{sW2}, {28*36864}
    v_cmp_gt_u32 vcc, 4, v6
    s_cbranch_vccz L_chkd
    s_mov_b32 s37, 0
    L_poll:
    s_sleep 4
    buffer_load_dword v6, v{VP2}, s[{SCN}:{SCN+3}], 0 offen sc1
    s_add_u32 s37, s37, 1
    s_waitcnt vmcnt(0)
    v_cmp_gt_u32 vcc, 4, v6
    s_cbranch_vccz L_chkd
    s_cmp_lt_u32 s37, 0x20000
    s_cbranch_scc1 L_poll
    s_branch L_chkd
    L_lateld:
    s_mov_b32 s{SO2+2}, s100
    s_mov_b32 s{SW2+2}, s101
    s_mul_i32 s{sO2}, s{sWAVE}, {32*122880}
    s_mul_i32 s{sW2}, s{sWAVE}, {32*36864}
    s_mov_b32 s{sLATE}, 2
    s_mov_b32 s37, 0
    L_esp:
    s_sleep 4
    buffer_load_dword v{VCW}, v{VPE}, s[{SCN}:{SCN+3}], 0 offen sc1
    s_add_u32 s37, s37, 1
    s_waitcnt vmcnt(0)
    v_cmp_gt_u32 vcc, v{VTH}, v{VCW}
    s_cbranch_vccz L_espd
    s_cmp_lt_u32 s37, 0x20000
    s_cbranch_scc1 L_esp
    L_espd:""")
    for s_ in range(4): b.ext(p2_w(s_) + p2_o(s_) + p2_adv(s_))
    b(f"""s_waitcnt vmcnt(0)
    s_cmp_eq_u32 s{sWAVE}, 3
    s_cbranch_scc1 L_p2s3
    s_branch L_p2s4
    L_redo:
    s_mov_b32 s{sSAFE}, 1
    s_waitcnt vmcnt(0)
    s_barrier""")
    prologue_a(b)
    b.ext(x_dma(0, 4)); b.ext(w_dma(0, 4))
    b("s_branch L_late")

def kernel1():
    b = B()
    b("attn_kernel:")
    b("s_cmp_ge_u32 s2, 256\ns_cbranch_scc1 L_end1")
    if OPT['stamps']: b("s_mov_b32 s96, 0\nv_mov_b32 v14, 0\nv_mov_b32 v15, 0")
    stamp(b)
    if OPT.get('fixspan'): b("s_memrealtime s[72:73]\ns_waitcnt lgkmcnt(0)")
    b("s_load_dwordx16 s[48:63], s[0:1], 0\ns_load_dwordx4 s[64:67], s[0:1], 64\ns_load_dwordx2 s[100:101], s[0:1], 96\ns_load_dwordx4 s[76:79], s[0:1], 80")
    b(f"""s_mov_b32 s97, s2
    s_and_b32 s3, s2, 7
    s_lshr_b32 s2, s2, 3""")
    warm_code(b)
    b(f"""v_lshrrev_b32 v1, 6, v0
    s_bfe_u32 s68, s3, {0x10001 if OPT.get('map') else 0x10000}
    s_lshl_b32 s68, s68, 2
    s_and_b32 s69, s2, 3
    s_add_u32 s68, s68, s69        ; b
    v_readfirstlane_b32 s{sWAVE}, v1
    s_bfe_u32 s69, s3, {0x10000 if OPT.get('map') else 0x10001}
    s_lshl_b32 s69, s69, 3
    s_lshr_b32 s70, s2, 2
    s_add_u32 s69, s69, s70        ; hp
    s_lshr_b32 s3, s3, 2           ; blk
    s_lshl_b32 s{sWB}, s{sWAVE}, 12
    s_lshl_b32 s{sXB}, s{sWAVE}, 13
    s_mov_b32 s{sC}, {CSCALE}
    s_mov_b32 s{sC+1}, {CSCALE}
    s_mov_b32 s{sSAFE}, 0
    s_mov_b32 s{sFLAG}, 0""")
    prologue_a(b)
    b(f"""s_cmp_eq_u32 s3, 0
    s_waitcnt lgkmcnt(0)
    s_cselect_b64 s[48:49], s[48:49], s[58:59]
    s_cselect_b64 s[50:51], s[50:51], s[60:61]
    s_cselect_b64 s[52:53], s[52:53], s[62:63]
    s_cselect_b64 s[54:55], s[54:55], s[64:65]
    s_cselect_b64 s[56:57], s[56:57], s[66:67]""")
    if OPT.get('sstamps'): stamp(b)
    b(f"""s_mul_i32 s71, s68, 276480
    s_add_u32 s{SX}, s48, s71
    s_addc_u32 s{SX+1}, s49, 0
    s_mov_b32 s{SX+2}, 276480
    s_mov_b32 s{SX+3}, 0x20000
    s_lshl_b32 s71, s69, 9
    s_add_u32 s{SW}, s54, s71
    s_addc_u32 s{SW+1}, s55, 0
    s_sub_u32 s{SW+2}, 4718592, s71
    s_mov_b32 s{SW+3}, 0x20000""")
    b("L_srdok:")
    prologue_b(b)
    b(f"""s_cmp_eq_u32 s{sWAVE}, 3
    s_cbranch_scc1 L_begin3""")
    wave_code(b, 4, "4")
    b(".p2align 6")
    wave_code(b, 3, "3")
    b("L_phase2:")
    phase2(b)
    b("L_end1:\ns_endpgm\nL_codeend:")
    return b.L

def resolve_waits(L):
    out = []
    for i, x in enumerate(L):
        if x.startswith("WAITL"):
            tag = x.split()[1]
            n, T = tag[1:].split('.'); T = int(T)
            dst = set(range(AW + 8 * (T % 4), AW + 8 * (T % 4) + 8))
            cnt = 0; found = False
            for y in reversed(out):
                if y.startswith(("s_waitcnt", "WAITV")) and "lgkmcnt(0)" in y:
                    found = True; cnt = None; break
                if y.startswith("ds_"):
                    I = Ins(y)
                    if any(k == 'a' and r in dst for k, r in I.wr) or (T == 0 and 'need=X' in y):
                        found = True; break
                    cnt += 1
            assert found, x
            if cnt is not None:
                cnt = min(cnt, 15)
                out.append(f"s_waitcnt lgkmcnt({cnt})")
        else: out.append(x)
    return out

def expand_trace(L):
    def shift(line, name, it, step):
        if it == 0: return line
        def rep(m):
            k, n = m.group(1), int(m.group(2))
            if name == 'qp':
                if k == 'W': return f"W{n + step*it}"
                if k == 'X': return f"X{n + step*it//2}"
                return m.group(0)
            if k == 'KV': return f"KV{n + step*it}"
            return m.group(0)
        if ';' not in line: return line
        a, c = line.split(';', 1)
        return a + ';' + re.sub(r'\b(KV|W|X)(\d+)\b', rep, c)
    bodies = {}
    def go(i, stop):
        res = []
        while i < len(L):
            x = L[i]
            if x.startswith("LOOPBEGIN"):
                _, name, cnt, step = x.split(); cnt = int(cnt); step = int(step)
                body, j = go(i + 1, name)
                bodies[name] = (body, cnt, step)
                for it in range(cnt):
                    for y in body:
                        if y == f"LOOPEXIT {name}":
                            if it == cnt - 1: break
                            continue
                        res.append(shift(y, name, it, step))
                i = j + 1; continue
            if x.startswith("REPLAY"):
                _, name, off, cnt = x.split(); cnt = int(cnt); body, _, step = bodies[name]
                for it in range(cnt):
                    for y in body: res.append(shift(shift(y, name, it, step), name, 1, int(off)))
                i += 1; continue
            if x.startswith("LOOPEND") and x.split()[1] == stop: return res, i
            res.append(x); i += 1
        return res, i
    return go(0, None)[0]

def resolve_vm(L):
    idx = [f"{x} ;#{i}" if x.startswith("WAITV") else x for i, x in enumerate(L)]
    tr = expand_trace(idx)
    q = []; best = {}
    for x in tr:
        if x.startswith(("L_maxpass", "L_hspin", "L_espin")): break
        c = x.split(';', 1)[1] if ';' in x else ''
        if x.startswith(("buffer_", "global_")):
            if 'cond' in c: continue
            m = re.search(r'tag=(\w+)', c); q.append(m.group(1) if m else 'other')
        elif x.startswith("WAITV"):
            tags = set(re.search(r'cover=([\w,]*)', c).group(1).split(','))
            i = int(x.rsplit('#', 1)[1])
            n = 0
            for t in reversed(q):
                if t in tags: break
                n += 1
            else: n = 63
            m = re.search(r'cap=(\d+)', c)
            best[i] = min(best.get(i, 63), n, int(m.group(1)) if m else 63)
    out = []
    for i, x in enumerate(L):
        if x.startswith("WAITV"):
            a, c = x.split(';', 1)
            out.append(f"s_waitcnt vmcnt({best[i]}) {a[5:].strip()} ;{c}")
        else: out.append(x)
    return out

def check_protocol(L, label):
    tr = expand_trace(L)
    q = []; done = set(); issued = {}; pub = set(); errs = 0
    for x in tr:
        if x.startswith(("L_maxpass", "L_hspin", "L_espin")): break
        c = x.split(';', 1)[1] if ';' in x else ''
        if x.startswith("buffer_") or x.startswith("global_"):
            if 'cond' in c: continue
            m = re.search(r'tag=(\w+)', c); q.append(m.group(1) if m else 'other')
        elif x.startswith("s_waitcnt"):
            m = re.search(r'vmcnt\((\d+)\)', x)
            if m:
                n = int(m.group(1))
                while len(q) > n: done.add(q.pop(0))
            m = re.search(r'needtag=(\w+)', c)
            if m and m.group(1) in q: print(label, "ERR needtag", x); errs += 1
        elif x.startswith("s_barrier") or 'SYNC' in c:
            m = re.search(r'pub=([\w,]*)', c)
            if m:
                for t in m.group(1).split(','):
                    if not t: continue
                    if t in q or (t not in done and not (label == 'w3' and t[0] in 'XW')): print(label, "ERR publish not landed", t, x); errs += 1
                    pub.add(t)
        elif x.startswith("ds_read"):
            m = re.search(r'need=(\w+)', c)
            if m and m.group(1) not in pub : print(label, "ERR read unpublished", x); errs += 1
        assert len(q) <= 63, ("vmcnt overflow", x)
    return errs

def burn(L):
    out = []; on = False; c = 0; k = 0
    for x in L:
        if x == 'BURNON': on = True; c = 0; continue
        if x == 'BURNOFF': on = False; continue
        out.append(x)
        if on and OPT.get('burn'):
            if x.startswith('v_mfma'): c = 0
            elif x.startswith('v_'):
                c += 1
                if c >= OPT['burn']:
                    c = 0; k += 1
                    out.append(f"{MF} v[4:7], a[{32+4*(k%8)}:{35+4*(k%8)}], a[{96+4*(k%7)}:{99+4*(k%7)}], v[4:7]")
    return out

def check_lgkm(L, label):
    dq = []; vq = []; errs = 0; cache = {}
    for x in expand_trace(L):
        if x.startswith(("L_maxpass", "L_hspin", "L_espin")): break
        t = x.split(';')[0].strip()
        I = cache.get(t)
        if I is None: I = cache[t] = Ins(t)
        if I.kind == 'label': continue
        if I.op == 's_waitcnt':
            m = re.search(r'lgkmcnt\((\d+)\)', t)
            if m:
                while len(dq) > int(m.group(1)): dq.pop(0)
            m = re.search(r'vmcnt\((\d+)\)', t)
            if m:
                while len(vq) > int(m.group(1)): vq.pop(0)
            continue
        use = I.rd | I.srcc | I.wr
        for w in dq + vq:
            if w & use: print(label, "ERR uncovered", x); errs += 1; break
        if I.kind in ('dsr', 'dsw'): dq.append(I.wr)
        if I.kind in ('vload', 'vstore', 'dma') and 'cond' not in x: vq.append(I.wr)
    return errs

def finish(L):
    L = burn(L)
    L = resolve_waits(L)
    return L

def strip_markers(L):
    return [x for x in L if not x.startswith(("LOOPBEGIN", "LOOPEND", "LOOPEXIT", "REPLAY"))]

DESC = """.section .rodata,"a"
.p2align 6
.amdhsa_kernel {name}
  .amdhsa_next_free_vgpr {vgpr}
  .amdhsa_next_free_sgpr 102
  .amdhsa_accum_offset 256
  .amdhsa_group_segment_fixed_size 0
  .amdhsa_kernarg_size 104
  .amdhsa_user_sgpr_count 2
  .amdhsa_user_sgpr_kernarg_segment_ptr 1
  .amdhsa_system_sgpr_workgroup_id_x 1
  .amdhsa_float_denorm_mode_32 3
.end_amdhsa_kernel
"""

def build(**kw):
    OPT.update(kw)
    k1 = finish(kernel1())
    i4 = k1.index("L_begin4:"); i3 = k1.index("L_begin3:"); iv = k1.index("L_phase2:")
    ip = k1.index("L_srdok:"); pre = k1[ip:i4]
    k1 = k1[:i4] + resolve_vm(pre + k1[i4:i3])[len(pre):] + resolve_vm(pre + k1[i3:iv])[len(pre):] + k1[iv:]
    e = check_protocol(pre + k1[i4:i3], "w4") + check_protocol(pre + k1[i3:], "w3")
    e += check_lgkm(pre + k1[i4:i3], "w4") + check_lgkm(pre + k1[i3:], "w3")
    assert e == 0 or OPT.get('nocheck')
    k1 = strip_markers(k1)
    k1, n1, p1 = fix_hazards(k1)
    for p in p1: print("BRANCH HAZARD", p)
    assert not p1
    hdr = open("ref.txt").read().split("; Override")[0]
    KN = NAME + "_kernel"
    k1 = [x.replace("attn_kernel", KN) for x in k1]
    out = hdr
    out += "; generated by my own schedule generator: q-projection + attention (2 heads per workgroup), hand-off, output projection\n"
    out += ("; @launch kernel=%s grid=(256,1,1) block=(256,1,1) lds=163840\n" % KN) if OPT.get('list') else "; @launch grid=(256,1,1) block=(256,1,1) lds=163840\n"
    out += '.amdgcn_target "amdgcn-amd-amdhsa--gfx950"\n.text\n'
    out += ".globl %s\n.p2align 8\n.type %s,@function\n" % (KN, KN) + "\n".join(k1) + "\n"
    out += DESC.format(name=KN, vgpr=512)
    return out, n1

if __name__ == "__main__":
    kw = {}
    for a in sys.argv[2:]:
        k, v = a.split('='); kw[k] = int(v)
    s, info = build(**kw)
    open(sys.argv[1], "w").write(s)
    print("nops inserted", info, "bytes", len(s))
```

```python
import sys, re
from asmlib import fix_hazards, Ins

NAME = "concat_heads__mha_block_cached__mha_block_cached__near_ridge"
MF = "v_mfma_f32_16x16x32_bf16"
CSCALE = 0x3e0293ee
LTHR = 0x4e800000

O_BLK = 128 * 122880
WOT_OFF = 2 * O_BLK
WOT_BLK = 128 * 36864
CNT_OFF = WOT_OFF + 2 * WOT_BLK

class B:
    def __init__(self): self.L = []
    def __call__(self, s):
        for x in s.split("\n"):
            x = x.strip()
            if x: self.L.append(x)
    def ext(self, l): self.L.extend(l)

def vr(b, n): return f"v[{b}:{b+n-1}]"
def ar(b, n): return f"a[{b}:{b+n-1}]"

def emit_slots(b, slots, gaps):
    for i, s in enumerate(slots):
        if s: b(s)
        nv = [x for x in gaps[i] if not x.startswith('v_')]
        v = [x for x in gaps[i] if x.startswith('v_')]
        for x in nv + v: b(x)

S_ = 16; P_ = 48; CI = 64; LS = 80
KA = 84
VA = 88
VWA = 105
DK0 = 96; DK1 = 97; DV0 = 98; DV1 = 99
VO = 100
VWO = 101
VWX = 102
VLN = 103
VPF = 104
VPD = 105
T0 = 108
O_ = 128
XA = 16; WA = 28; DX = 20; DW = 24
WSLOT = [49152, 114688, 131072, 147456]; sKB = 69
def AQ(q): return 32 + 64 * (q // 2) + 16 * (q % 2)
def AQ2(q): return 128 + 16 * q
AK = 0; AV = 64; ASP = 64
AX = 0; AW = 64
SX = 4; SW = 8; SK = 12; SV = 16; SO = 20; SWO = 24; SWT = 28
sWAVE = 32; sWB = 33; sKV = 34; sCNT = 35; sHEAD = 36; sSAFE = 37; sFLAG = 38
sXO = 39; sXO2 = 40; sWOFF = 41; sXB = 42; sOO = 43; sC = 44
sT = 46
sH0 = 68; sWOS = 64; sWTS = 65; sSTAMP = 72; SPF = 76; sPF = 68; sWXS = 67; sROT = 80; sLIN = 81
SCN = 48; SDB = 52; SO2 = 56; sCO = 60; sCW = 61; SIN = 84; SIF = 88; sOUT = 76; VHS = 106; VCW = 107; VONE = 104
SW2 = 80; sO2 = 98; sW2 = 99; sOUTO = 66; sOP = 41; VPE = 11; VTH = 12; VP2 = 13; VWE = 10; AST = 192; sSIG = 78; sLATE = 79; sIDLE = 67; sFV = 39; VFA = 1; VFB = 101; FQ = 80; FLAGS = 131072 + 7168 + 32

OPT = dict(nt_kv=1, nt_w=1, nt_x=1, nt_wo=1, stamps=0, warm=1, of=2, of0=2, e67=1, bal=0, wts=1, sw2=2)

K2F = ['', ' nt', ' sc1', ' sc0 sc1', ' sc0', ' sc1 nt', ' sc0 sc1 nt']
def fl(k): return ["", " nt", " sc1 nt", " sc0 sc1 nt", " sc0 nt"][OPT[k]]

def dma(voff, srd, soff, off, flag, tag):
    return f"buffer_load_dwordx4 v{voff}, s[{srd}:{srd+3}], {soff} offen offset:{off}{flag} lds ; tag={tag}"

def kv_adv():
    if not OPT.get('rot'): return [f"s_add_u32 s{sKV}, s{sKV}, 8192"]
    return [f"s_add_u32 s{sLIN}, s{sLIN}, 8192", f"s_add_u32 s{sKV}, s{sLIN}, s{sROT}",
            f"s_and_b32 s{sKV}, s{sKV}, 0x3ffff", f"s_and_b32 s{sT+1}, s{sLIN}, 0xfffc0000", f"s_or_b32 s{sKV}, s{sKV}, s{sT+1}"]

def k_dma(tile, so=None):
    so = so or f"s{sKV}"
    return [f"s_add_u32 m0, s{sKB}, {(tile % 8) * 8192}",
            dma(DK0, SK, so, 0, fl('nt_kv'), f"KV{tile}"), dma(DK1, SK, so, 1024, fl('nt_kv'), f"KV{tile}")]
def v_dma(tile, so=None):
    so = so or f"s{sKV}"
    return [f"s_add_u32 m0, s{sKB}, {65536 + (tile % 8) * 8192}",
            dma(DV0, SV, so, 0, fl('nt_kv'), f"KV{tile}"), dma(DV1, SV, so, 1024, fl('nt_kv'), f"KV{tile}")]

def x_dma(m, nq):
    slot = 16384 if m % 2 else 81920
    out = []
    out.append(f"s_add_u32 m0, s{sXB}, {slot}")
    for j in range(4): out.append(dma(DX + j, SX, f"s{sXO}", 1024 * j, fl('nt_x'), f"X{m}"))
    out.append(f"s_add_u32 m0, s{sXB}, {slot + 4096}")
    for j in range(4 if nq == 4 else 2): out.append(dma(DX + j, SX, f"s{sXO2}", 1024 * j, fl('nt_x'), f"X{m}"))
    out.append(f"s_add_u32 s{sXO}, s{sXO}, 128")
    out.append(f"s_add_u32 s{sXO2}, s{sXO2}, 128")
    return out

def w_dma(n, nq):
    out = [f"s_add_u32 m0, s{sWB}, {WSLOT[n % 4]}"]
    for j in range(4): out.append(dma(DW + j, SW, f"s{sWOFF}", 1024 * j, fl('nt_w'), f"W{n}"))
    if n % 2 == 0: out.append(f"s_add_u32 s{sWOFF}, s{sWOFF}, 256")
    else: out.append(f"s_add_u32 s{sWOFF}, s{sWOFF}, {524288 - 256}")
    return out

def w_reads(n, T):
    sp_, a = T // 2, T % 2
    hl, sp = sp_ // 2, sp_ % 2
    out = []
    for s in range(2):
        for a2 in range(2):
            d = AW + 8 * (T % 4) + 4 * s + 2 * a2
            off = max(n % 4 - 1, 0) * 16384 + hl * 8192 + (32 * s + 4 * a2) * 128 + 8 * a
            out.append(f"ds_read_b64_tr_b16 {ar(d,2)}, v{WA + sp + (2 if n % 4 else 0)} offset:{off} ; need=W{n}")
    return out

def x_reads(m, nq):
    out = []
    for q in range(nq):
        for s in range(2):
            d = AX + 32 * (m % 2) + 8 * q + 4 * s
            out.append(f"ds_read_b128 {ar(d,4)}, v{XA + s + (0 if m % 2 else 2)} offset:{q * 2048} ; need=X{m}")
    return out

def qacc(hd, q, T):
    r = 128 + 32 * q + 4 * T
    return vr(r, 4) if hd == 0 else ar(r, 4)

def pf_load():
    return f"buffer_load_dword v{VPD}, v{VPF}, s[{SPF}:{SPF+3}], s{sPF} offen nt ; tag=PF"

def wo_dma():
    out = []
    for r in range(2):
        out.append(f"s_add_u32 m0, s{sWOS}, {4096*r}")
        for j in range(4):
            out += [f"PRE s_mov_b32 s{sT}, {8192*j + 512*r}", dma(VWO, SWO, f"s{sT}", 1024 * j, fl('nt_wo'), "WO")]
    out += [f"s_mov_b32 m0, s{sWTS}", dma(VWX, SWO, "0", 0, fl('nt_wo'), "WO")]
    return out
WOF = 32
def wo_reads():
    out = [f"ds_read_b64_tr_b16 {vr(WOF+16*r+4*tl+2*a,2)}, v{VWA} offset:{4096*r + 2048*a + 32*tl}" for r in range(2) for tl in range(4) for a in range(2)]
    return out + [f"ds_read_b64_tr_b16 {vr(WOF+32+2*a,2)}, v{VWE} offset:{512*a}" for a in range(2)]
def wo_stores():
    out = []
    for r in range(2):
        out.append(f"PRE s_add_u32 s{sT}, s{sWB}, {16384*r}")
        out += [f"buffer_store_dwordx4 {vr(WOF+16*r+4*tl,4)}, v{VLN}, s[{SWT}:{SWT+3}], s{sT} offen offset:{1024*tl} sc1 ; tag=WT" for tl in range(4)]
    out += [f"PRE s_lshl_b32 s{sT}, s{sWAVE}, 10", f"PRE s_add_u32 s{sT}, s{sT}, 32768",
            f"buffer_store_dwordx4 {vr(WOF+32,4)}, v{VLN}, s[{SWT}:{SWT+3}], s{sT} offen sc1 ; tag=WT"]
    return out

QSPINS = []; QF = 68; QFA = 72; QFB = 73; sFQ = 35; QFLAGS = 112640
def qproj_stage(b, n, nq, fill=None):
    hd, m = n % 2, n // 2
    nx = 8 if nq == 4 else 6
    slots = []; gaps = [[] for _ in range(64)]
    for T in range(8):
        for q in range(4):
            for s in range(2):
                if q >= nq: slots.append(None); continue
                acc = qacc(hd, q, T)
                c = "0" if (m == 0 and s == 0) else acc
                slots.append(f"{MF} {acc}, {ar(AW+8*(T%4)+4*s,4)}, {ar(AX+32*(m%2)+8*q+4*s,4)}, {c}")
    start = {3: 5, 4: 12, 5: 19, 6: 26, 7: 33}
    rd = w_reads(n, 2); gaps[0].append(rd[3])
    for T, g in start.items():
        for i, x in enumerate(w_reads(n, T)): gaps[g + i].append(x)
    FSQ = OPT.get('fsq') and n < 15
    if n < 17:
        for T, g in (((0, 53), (1, 57)) if FSQ else ((0, 45), (1, 53))):
            for i, x in enumerate(w_reads(n + 1, T)): gaps[g + i].append(x)
        for i, x in enumerate(w_reads(n + 1, 2)[:3]): gaps[61 + i].append(x)
    xr = []
    if n % 2 == 1 and m + 1 <= 8:
        xr = x_reads(m + 1, nq)
        for x, g in zip(xr, (9, 10, 16, 17, 23, 24, 30, 31) if not (n == 1 and OPT.get('x1late')) else (49, 50, 51, 52, 57, 58, 59, 60)): gaps[g].append(x)
    for T in range(1, 8): gaps[8 * T - 1].append(f"WAITL W{n}.{T}")
    if n < 17: gaps[63].append(f"WAITL W{n+1}.0")
    req = []
    if n + 1 <= 17: req.append(f"W{n+1}")
    if n % 2 == 0 and m + 1 <= 8 and not (n == 0 and OPT.get('x1late')): req.append(f"X{m+1}")
    if n == 1 and OPT.get('x1late'): req.append("X1")
    if n == 17: req += ["KV0", "KV1"]
    cov = list(req)
    if nq == 3 and n == 2:
        cov.append("INIT")
        gaps[55].append(f"buffer_store_dword v{VONE}, v{VLN}, s[{SIF}:{SIF+3}], 0 offen sc1 ; tag=FLAG")
    if nq == 3 and n == 12:
        gaps[45].append(f"buffer_load_dword v{VHS}, off, s[{SDB}:{SDB+3}], 0 ; tag=HS")
    if n == 17 and OPT.get('fsa'):
        gaps[36] += [f"s_mov_b32 s{sFV}, 0", f"v_mov_b32 v{VFB}, {FLAGS}", f"v_mov_b32 v{FQ}, 0"]
        gaps[37] += [f"v_lshl_add_u32 v{VFA}, s{sWAVE}, 2, v{VFB}"]
        gaps[39] += [f"ds_write_b32 v{VFA}, v{FQ}"]
    if FSQ:
        uid = f"q{n}_{nq}"
        gaps[42] += [f"s_add_u32 s{sFQ}, s{sFQ}, 1", f"v_mov_b32 v{QF}, s{sFQ}"]
        gaps[43] += ["WAITV lgkmcnt(0) ; cover=" + ",".join(cov), f"ds_write_b32 v{QFA}, v{QF}"]
        gaps[47].append(f"ds_read_b128 {vr(QF,4)}, v{QFB}")
        gaps[50] += ["s_waitcnt lgkmcnt(0)", f"v_min3_u32 v{QF}, v{QF}, v{QF+1}, v{QF+2}"]
        gaps[51].append(f"v_min_u32 v{QF}, v{QF}, v{QF+3}")
        gaps[52].append(f"v_cmp_gt_u32 vcc, s{sFQ}, v{QF}\ns_cbranch_vccnz L_fs{uid}\nL_fr{uid}: ; SYNC pub=" + ",".join(req))
        QSPINS.append(uid)
    else:
        gaps[43].append("WAITV lgkmcnt(0) ; cover=" + ",".join(cov))
        gaps[44].append("s_barrier ; pub=" + ",".join(req))
    def place(seq, first, step):
        g = first
        for x in seq:
            if x.startswith("buffer_"): gaps[g].append(x); g += step
            elif x.startswith(("s_add_u32 m0", "s_mov_b32 m0")): gaps[g - 1].append(x)
            elif x.startswith("PRE "): gaps[g - 1].append(x[4:])
            else: gaps[min(g - step + 1, 63)].append(x)
    if n == 0 and OPT.get('x2late'): place(w_dma(2, nq) + w_dma(3, nq), 2, 5)
    elif n == 1 and OPT.get('x2late'): place(x_dma(2, nq), 2, 4)
    elif n == 0: place(w_dma(2, nq) + w_dma(3, nq) + x_dma(2, nq), 1, 2)
    elif n % 2 == 0 and m + 2 <= 8: place(x_dma(m + 2, nq), 2, 5)
    def single(kind, i_):
        if kind == 'wo':
            if i_ == 8: return [f"s_mov_b32 m0, s{sWTS}", None, dma(VWX, SWO, "0", 0, fl('nt_wo'), "WO")]
            r, j_ = i_ // 4, i_ % 4
            return [f"s_add_u32 m0, s{sWOS}, {4096*r}", f"s_mov_b32 s{sT}, {8192*j_ + 512*r}", dma(VWO, SWO, f"s{sT}", 1024 * j_, fl('nt_wo'), "WO")]
        t, j_ = i_ // 4, i_ % 4
        d_ = (k_dma if j_ < 2 else v_dma)(t, f"s{sT}")
        return [d_[0], f"s_mov_b32 s{sT}, {8192*t}", d_[1 + j_ % 2]]
    if OPT.get('slowpos', 0):
        R0 = 9
        sched_ = {2: [('wo', 0), ('wo', 1), ('wo', 2)], 4: [('wo', 3), ('wo', 4), ('wo', 5)], 6: [('wo', 6), ('wo', 7), ('wo', 8)],
                  10: [('kv', i_) for i_ in range(4)], 12: [('kv', i_) for i_ in range(4, 8)]}
        for (kind, i_) in sched_.get(n, []):
            gaps[63] += [x for x in single(kind, i_) if x]
    else:
        W0 = 1; R0 = W0 + 7
        sched_ = {W0 + i_ // 2: [] for i_ in range(9)}
        for i_ in range(8 if OPT.get('fsq') else 9): sched_[W0 + i_ // 2].append(('wo', i_))
        if not OPT.get('late'):
            for i_ in range(8): sched_.setdefault(R0 + 2 + i_ // 2, []).append(('kv', i_))
        for (kind, i_), g in zip(sched_.get(n, []), (39, 42) if (n % 2 == 0 or OPT.get('stpos', 0) or (n == 1 and OPT.get('x2late'))) else (12, 32)):
            m0_, so_, ld_ = single(kind, i_)
            gaps[g - 1].append(m0_)
            if so_: gaps[g - 1].append(so_)
            gaps[g].append(ld_)
    if n == 13: gaps[62].append(f"s_mov_b32 s{sKV}, 16384")
    if n in (R0, R0 + 1):
        rd = wo_reads()
        if OPT.get('fsq'): rd = rd[:16]
        if n == R0:
            gaps[44].append("WAITV ; cover=WO")
            for x, g in zip(rd[:8], [44, 45, 46, 48, 49, 51, 52, 52] if FSQ else [49, 50, 51, 52, 57, 58, 59, 60]): gaps[g].append(x)
        else:
            for x, g in zip(rd[8:], [1, 2, 3, 4, 11, 18, 25, 37, 38, 39]): gaps[g].append(x)
    for i_ in range(0 if OPT.get('wts') else 9):
        if OPT.get('slowpos', 0):
            if n != (10, 10, 12, 12, 14, 14, 14, 16, 16)[i_]: continue
            t_ = [f"s_add_u32 s{sT+1}, s{sWB}, {16384*(i_//4)}"] if i_ < 8 else [f"s_lshl_b32 s{sT+1}, s{sWAVE}, 10", f"s_add_u32 s{sT+1}, s{sT+1}, 32768"]
            gaps[62] += t_ + [f"buffer_store_dwordx4 {vr(WOF+4*i_,4)}, v{VLN}, s[{SWT}:{SWT+3}], s{sT+1} offen offset:{1024*(i_%4) if i_ < 8 else 0} sc1 ; tag=WT"]
            continue
        r, tl = i_ // 4, i_ % 4
        if OPT.get('stpos', 0):
            if n != (9, 9, 11, 11, 13, 13, 15, 15, 15)[i_]: continue
            g = (8, 10, 2, 4, 2, 4, 2, 4, 7)[i_]
        else:
            if n != min(R0 + 1 + i_, 17 - (1 if i_ < 8 else 0)) : continue
            g = 62 if not any('tag=WT' in x for x in gaps[62]) else 48
        if i_ < 8: gaps[g - 1].append(f"s_add_u32 s{sT+1}, s{sWB}, {16384*r}")
        else: gaps[g - 2].append(f"s_lshl_b32 s{sT+1}, s{sWAVE}, 10"); gaps[g - 1].append(f"s_add_u32 s{sT+1}, s{sT+1}, 32768")
        gaps[g].append(f"buffer_store_dwordx4 {vr(WOF+4*i_,4)}, v{VLN}, s[{SWT}:{SWT+3}], s{sT+1} offen offset:{1024*tl if i_ < 8 else 0}{K2F[OPT.get('wtf', 2)]} ; tag=WT")
    if n == 14 and OPT.get('late'):
        place([f"PRE s_mov_b32 s{sT}, 0"] + k_dma(0, f"s{sT}") + v_dma(0, f"s{sT}") + [f"PRE s_mov_b32 s{sT}, 8192"] + k_dma(1, f"s{sT}") + v_dma(1, f"s{sT}"), 2, 5)
    if n in ((15, 16) if OPT.get('late') else (14, 16)):
        seq = []
        for t in range(2, 6):
            seq += [f"PRE s_add_u32 s{sT}, s{sKV}, {(t - 2) * 8192}"] + (k_dma if n < 16 else v_dma)(t, f"s{sT}")
        if n == 16: seq.append(f"s_add_u32 s{sKV}, s{sKV}, 32768")
        place(seq, 2, 5)
    if n == 17 and OPT.get('e67'):
        place(k_dma(6) + [f"PRE s_add_u32 s{sT}, s{sKV}, 8192"] + k_dma(7, f"s{sT}"), 4, 9)
        place(v_dma(6) + v_dma(7, f"s{sT}") + [f"s_add_u32 s{sKV}, s{sKV}, 16384"], 47, 4)
    if OPT.get('awake') and n % 2 == 1 and 3 <= n <= 11:
        seq = []
        for t in range(OPT['awake']):
            seq += [f"PRE s_add_u32 s{sPF}, s{sPF}, 8192"] + k_dma(t % 2, f"s{sPF}") + v_dma(t % 2, f"s{sPF}")
        seq = [x.replace('tag=KV0', 'tag=DUM').replace('tag=KV1', 'tag=DUM') for x in seq]
        place(seq, 2, 40 // (4 * OPT['awake']))
    if OPT.get('awake') and n == 13:
        place([f"PRE s_mov_b32 s{sPF}, 0"] + k_dma(0, f"s{sPF}") + v_dma(0, f"s{sPF}") + [f"PRE s_mov_b32 s{sPF}, 8192"] + k_dma(1, f"s{sPF}") + v_dma(1, f"s{sPF}"), 2, 5)
    if n + 4 <= 17: place(w_dma(n + 4, nq), *((54, 3) if FSQ else (46, 5)))
    for i_ in range(OPT.get('qslow', 0)): gaps[2 + 2 * i_].append('v_nop\nv_nop\nv_nop\nv_nop\nv_nop\nv_nop')
    if fill is not None:
        for g in range(20 if n == 16 else 0, 64):
            if slots[g] is None: continue
            for _ in range(2):
                if fill: gaps[g].append(fill.pop(0))
    emit_slots(b, slots, gaps)
    if OPT.get('qstamps'): stamp(b)

def k_reads(unit, tile):
    out = []
    for kt in range(2):
        for s in range(4):
            f = 4 * kt + s
            out.append(f"ds_read_b128 {ar(AK+4*f,4)}, v{KA + s} offset:{unit * 8192 + kt * 4096} ; need=KV{tile}")
    return out

def v_reads(unit, tile):
    out = []
    for T in range(8):
        th, tl = T // 4, T % 4
        for a in range(2):
            out.append(f"ds_read_b64_tr_b16 {ar(AV+4*T+2*a,2)}, v{VA + T} offset:{unit * 8192 + a * 4096} ; need=KV{tile}")
    return out

import sched, sched2
LM = 1
for a_ in sys.argv[2:]:
    if a_.startswith('lm='): LM = int(a_[3:])
if LM:
    NS = 68
    V_GAPS = list(range(26, 42)); K_GAPS = list(range(50, 58)); D_GAPS = [3, 11, 17, 23]
    SM = sched2.schedule(V_GAPS + K_GAPS, D_GAPS)
    for a_ in sys.argv[2:]:
        if a_.startswith('dg='): D_GAPS = {1: [3, 7, 33, 38], 2: [4, 8, 34, 40], 3: [3, 8, 36, 56]}[int(a_[3:])]
else:
    NS = 64
    V_GAPS = list(range(25, 41)); K_GAPS = list(range(48, 56)); D_GAPS = [1, 9, 17, 23]
    SM = sched.schedule(4, V_GAPS + K_GAPS, D_GAPS)
BG = K_GAPS[0] - 1
LA = 108; ONES = 124
def sm_text(kind, q, e):
    s = S_ + 8 * q + e
    if kind == 'exp': return f"v_exp_f32 v{s}, v{s}"
    if kind == 'add': return f"v_add_f32 v{LS+q}, v{LS+q}, v{s}"
    return f"v_cvt_pk_bf16_f32 v{P_+4*q+e//2}, v{s-1}, v{s}"
def sm_items(nq, lo, hi):
    it = [(g, k[0] == 'exp', k) for k, g in SM.items() if k[1] < nq and lo <= g < hi]
    it.sort(key=lambda t: (t[0] % NS, t[1], -t[0]))
    return [(g, k) for g, _, k in it]

def qk(q, kt, s, czero=False):
    d = vr(S_ + 8 * q + 4 * kt, 4)
    c = d if s else ("0" if czero else vr(CI + 4 * q, 4))
    return f"{MF} {d}, {ar(AK+4*(4*kt+s),4)}, {ar(AQ(q)+4*s,4)}, {c}"

def pv(q, T, czero=False):
    d = vr(O_ + 32 * q + 4 * T, 4)
    return f"{MF} {d}, {ar(AV+4*T,4)}, {vr(P_+4*q,4)}, {'0' if czero else d}"

def lsm(q, czero=False):
    d = vr(LA + 4 * q, 4)
    return f"{MF} {d}, {vr(ONES,4)}, {vr(P_+4*q,4)}, {'0' if czero else d}"

SPINS = []
def attn_stage(b, k, nq, extra=None, fill=None):
    kk = k % 32; u = k % 8
    slots = []; gaps = [[] for _ in range(NS)]
    for q in (0, 1):
        for kt in range(2):
            for s in range(4): slots.append(qk(q, kt, s))
    for q in (2, 3):
        for T in range(8): slots.append(pv(q, T, kk == 1) if (q < nq and kk > 0) else None)
        if LM: slots.append(lsm(q, kk == 1) if (q < nq and kk > 0) else None)
    for q in (2, 3):
        for kt in range(2):
            for s in range(4): slots.append(qk(q, kt, s) if q < nq else None)
    for q in (0, 1):
        for T in range(8): slots.append(pv(q, T, kk == 0))
        if LM: slots.append(lsm(q, kk == 0))
    for g, key in sm_items(nq, 0, 2 * NS if kk > 0 else NS): gaps[g % NS].append(sm_text(*key))
    for g, x in zip(V_GAPS, v_reads(u, k)): gaps[g].append(x)
    DIST = 7 if OPT.get('d7') else OPT.get('dist', 5 if OPT.get('fsa') else 6)
    if DIST == 7 and k < 63:
        gaps[BG - 1].append(f"WAITV lgkmcnt(0) ; cover=KV{k+1}" + (",WT" if kk == 11 else ""))
        gaps[BG].append(f"s_barrier ; pub=KV{k+1}")
    elif k % 2 == 1 and k < 63 and OPT.get('fsa'):
        uid = f"{k}_{nq}"
        pg = OPT.get('fsp', 30); rg = OPT.get('fsr', 36)
        gaps[pg - 2].append(f"s_add_u32 s{sFV}, s{sFV}, 1")
        gaps[pg - 1].append(f"v_mov_b32 v{FQ}, s{sFV}") if pg - 1 >= 30 or pg < 26 else gaps[pg].append(f"v_mov_b32 v{FQ}, s{sFV}")
        gaps[pg + 1].insert(0, f"WAITV ; cover=KV{k+1},KV{k+2}" + (",WT" if kk == 11 else ""))
        gaps[pg + 1].append(f"ds_write_b32 v{VFA}, v{FQ}")
        gaps[rg].append(f"ds_read_b128 {vr(FQ,4)}, v{VFB}")
        gaps[rg + 3].insert(0, "s_waitcnt lgkmcnt(2)")
        gaps[rg + 3].append(f"v_min3_u32 v{FQ}, v{FQ}, v{FQ+1}, v{FQ+2}")
        gaps[rg + 4].append(f"v_min_u32 v{FQ}, v{FQ}, v{FQ+3}")
        gaps[rg + 5].append(f"v_cmp_gt_u32 vcc, s{sFV}, v{FQ}")
        gaps[rg + 6].insert(0, f"s_cbranch_vccnz L_fs{uid}\nL_fr{uid}: ; SYNC pub=KV{k+1},KV{k+2}")
        gaps[BG].append("s_waitcnt lgkmcnt(0)")
        SPINS.append(uid)
    elif k % 2 == 1 and k < 63:
        gaps[BG - 1].append(f"WAITV lgkmcnt(0) ; cover=KV{k+1},KV{k+2}" + (",WT" if kk == 11 else ""))
        gaps[BG].append(f"s_barrier ; pub=KV{k+1},KV{k+2}")
    else:
        gaps[BG].append("s_waitcnt lgkmcnt(0)")
    if k < 63:
        for g, x in zip(K_GAPS, k_reads((u + 1) % 8, k + 1)): gaps[g].append(x)
        gaps[NS - 1].append("s_waitcnt lgkmcnt(0)")
    if k + DIST < 64 and not (OPT.get('e67') and k + DIST < 8) and not (OPT.get('sw2') and k in (32, 33)):
        kd, vd = k_dma(k + DIST), v_dma(k + DIST)
        gaps[D_GAPS[0] - 1].append(kd[0]); gaps[D_GAPS[2] - 1].append(vd[0])
        for x, g in zip(kd[1:] + vd[1:], D_GAPS): gaps[g].append(x)
        gaps[44] += kv_adv()
    for i_ in range(OPT.get('slow', 0)): gaps[2 + 2 * i_].append('v_nop\nv_nop\nv_nop\nv_nop')
    if extra:
        for g, x in extra: gaps[g].append(x)
    if fill:
        cost = lambda x: 2 if x.startswith('v_exp') else (1 if x.startswith(('v_', 'ds_', 'buffer_')) else 0)
        room = [max(0, 2 - sum(cost(x) for x in gaps[g])) if slots[g] else 0 for g in range(NS)]
        left = len(fill) - sum(room)
        live = [g for g in range(NS) if slots[g]]
        for i_ in range(max(left, 0)): room[live[(i_ * len(live)) // left]] += 1
        for g in range(NS):
            for _ in range(room[g]):
                if fill: gaps[g].append(fill.pop(0))
        assert not fill
    for key, pre in (('nobar', ('s_barrier',)), ('nodma', ('buffer_load_dwordx4 v9',)), ('nolds', ('ds_read',)), ('noexp', ('v_exp',))):
        if OPT.get(key) and 8 <= k < 16: gaps = [[x if not x.startswith(pre) else 's_nop 0 ;' + x.split(';', 1)[-1] for x in g] for g in gaps]
    if OPT.get('astamps') and k % 2 == 0: stamp(b)
    if OPT.get('dmaonly'):
        slots = [None] * NS
        gaps = [[x for x in g if not x.startswith(('v_', 'ds_'))] for g in gaps]
    emit_slots(b, slots, gaps)

def xlane_reduce(b, reg, tmp, op):
    b(f"v_mov_b32 v{tmp}, v{reg}")
    b(f"v_permlane32_swap_b32 v{reg}, v{tmp}")
    b(f"{op} v{reg}, v{reg}, v{tmp}")
    b(f"v_mov_b32 v{tmp}, v{reg}")
    b(f"v_permlane16_swap_b32 v{reg}, v{tmp}")
    b(f"{op} v{reg}, v{reg}, v{tmp}")

def xlane_reduce_multi(b, regs, tmps, op):
    for sw in ("v_permlane32_swap_b32", "v_permlane16_swap_b32"):
        for r, t in zip(regs, tmps): b(f"v_mov_b32 v{t}, v{r}")
        for r, t in zip(regs, tmps): b(f"{sw} v{r}, v{t}")
        for r, t in zip(regs, tmps): b(f"{op} v{r}, v{r}, v{t}")

def stamp(b, idx=None):
    if not OPT['stamps']: return
    b(f"s_memtime s[{sSTAMP}:{sSTAMP+1}]\ns_memrealtime s[{sSTAMP+2}:{sSTAMP+3}]\ns_waitcnt lgkmcnt(0)")
    b(f"s_mov_b32 s95, m0\ns_mov_b32 m0, s96\nv_writelane_b32 v14, s{sSTAMP}, m0\nv_writelane_b32 v15, s{sSTAMP+2}, m0\ns_mov_b32 m0, s95\ns_add_u32 s96, s96, 1")

def stamp_dump(b, k, wave):
    if not OPT['stamps']: return
    b("s_waitcnt vmcnt(0)")
    stamp(b)
    if OPT['stamps'] == 2:
        b("s_load_dwordx2 s[92:93], s[0:1], 88\ns_waitcnt lgkmcnt(0)")
        b(f"s_cmp_lg_u32 s{wave}, 0\ns_cbranch_scc1 L_end{k+1}\ns_and_b32 s94, s97, 31\ns_cmp_lg_u32 s94, 5\ns_cbranch_scc1 L_end{k+1}")
        b(f"s_add_u32 s88, s92, {OPT.get('dbgoff',0)*(1-k)}\ns_addc_u32 s89, s93, 0\ns_mov_b32 s90, 256\ns_mov_b32 s91, 0x20000")
        sel = [0, 2, 3, 6, 7, 9, 10, 11] if k == 0 else [0, 1, 2, 3]
        b("s_mov_b64 exec, 1")
        for i, ix in enumerate(sel):
            b(f"v_readlane_b32 s94, v15, {ix}\ns_nop 3")
            if i == 0 and k == 0: b("s_not_b32 s94, s94")
            b(f"v_mov_b32 v1, s94\nv_mov_b32 v2, {4*(i + (0 if k == 0 else 8))}\nbuffer_atomic_umax v1, v2, s[88:91], 0 offen")
        return
    b("s_getreg_b32 s94, hwreg(HW_REG_XCC_ID)\nv_writelane_b32 v14, s94, 63")
    b("s_load_dwordx2 s[92:93], s[0:1], 96\ns_waitcnt lgkmcnt(0)")
    b(f"s_add_u32 s88, s92, {(48+k)*1024*1024}\ns_addc_u32 s89, s93, 0\ns_mov_b32 s90, 0x100000\ns_mov_b32 s91, 0x20000")
    b(f"s_lshl_b32 s94, s97, 2\ns_add_u32 s94, s94, s{wave}\ns_lshl_b32 s94, s94, 9")
    b("v_and_b32 v1, 63, v0\nv_lshlrev_b32 v1, 3, v1")
    b("buffer_store_dwordx2 v[14:15], v1, s[88:91], s94 offen")

def persist_regs(b):
    lane = T0; t1 = T0 + 1; t2 = T0 + 2; t3 = T0 + 3; g_ = T0 + 4; ihi = T0 + 5; i8 = T0 + 6; i16 = T0 + 7; r_ = T0 + 8; c4 = T0 + 9
    b(f"""v_and_b32 v{lane}, 63, v0
    v_lshrrev_b32 v{g_}, 4, v{lane}
    v_lshrrev_b32 v{ihi}, 3, v{lane}
    v_and_b32 v{i8}, 7, v{lane}
    v_and_b32 v{i16}, 15, v{lane}
    v_lshrrev_b32 v{r_}, 2, v{i16}
    v_and_b32 v{c4}, 3, v{lane}
    v_lshlrev_b32 v{VLN}, 4, v{lane}
    s_add_u32 s71, s63, s{sWB}
    v_add_u32 v{VO}, s71, v{VLN}""")
    b(f"""s_lshl_b32 s70, s{sWAVE}, 11
    v_lshlrev_b32 v{t1}, 8, v{g_}
    v_add_u32 v{t1}, s70, v{t1}
    s_and_b32 s70, s{sWAVE}, 1
    s_lshl_b32 s70, s70, 3
    v_xor_b32 v{t2}, v{i16}, v{g_}
    v_xor_b32 v{t2}, s70, v{t2}
    v_lshl_add_u32 v{DK0}, v{t2}, 4, v{t1}
    v_xor_b32 v{DK1}, 64, v{DK0}
    v_lshlrev_b32 v{t2}, 1, v{g_}
    v_xor_b32 v{t3}, v{t2}, v{i16}
    v_lshl_add_u32 v{DV0}, v{t3}, 4, v{t1}
    v_xor_b32 v{DV1}, 128, v{DV0}""")
    b(f"""v_mul_u32_u24 v{t1}, 1152, v{ihi}
    v_lshl_add_u32 v{t1}, v{i8}, 4, v{t1}
    s_lshl_b32 s70, s{sWAVE}, 7
    v_add_u32 v{VWO}, s70, v{t1}
    v_lshrrev_b32 v{t1}, 1, v{lane}
    v_mul_u32_u24 v{t1}, 1152, v{t1}
    v_and_b32 v{t2}, 1, v{lane}
    v_lshl_add_u32 v{t1}, v{t2}, 4, v{t1}
    s_lshl_b32 s70, s{sWAVE}, 5
    s_add_u32 s70, s70, 1024
    v_add_u32 v{VWX}, s70, v{t1}""")
    b(f"""v_xor_b32 v{t2}, v{g_}, v{i16}
    v_lshlrev_b32 v{t2}, 4, v{t2}
    v_lshl_add_u32 v{KA}, v{i16}, 8, v{t2}""")
    for s_ in range(1, 4): b(f"v_xor_b32 v{KA+s_}, {64*s_}, v{KA}")
    b(f"""v_lshl_add_u32 v{t2}, v{g_}, 2, v{r_}
    v_lshlrev_b32 v{t1}, 8, v{t2}
    v_and_b32 v{t2}, 7, v{t2}
    v_lshl_add_u32 v{t1}, v{t2}, 5, v{t1}
    v_lshl_add_u32 v{t1}, v{c4}, 3, v{t1}
    v_add_u32 v{VA}, 0x10000, v{t1}""")
    for T in range(1, 8): b(f"v_xor_b32 v{VA+T}, {32*T}, v{VA}")
    b(f"""v_lshl_add_u32 v{t2}, v{g_}, 2, v{r_}
    v_lshlrev_b32 v{t1}, 7, v{t2}
    v_lshl_add_u32 v{t1}, v{c4}, 3, v{t1}
    s_lshr_b32 s70, s{sWAVE}, 1
    s_lshl_b32 s70, s70, 16
    s_and_b32 s71, s{sWAVE}, 1
    s_lshl_b32 s{sWOS}, s71, 13
    s_add_u32 s{sWOS}, s{sWOS}, s70
    s_lshl_b32 s{sWTS}, s71, 10
    s_add_u32 s{sWTS}, s{sWTS}, s70
    s_add_u32 s{sWTS}, s{sWTS}, 47104
    {f"s_lshl_b32 s{sWTS}, s{sWAVE}, 10" if OPT.get('fsq') else ""}
    {f"s_add_u32 s{sWTS}, s{sWTS}, 147456" if OPT.get('fsq') else ""}
    v_add_u32 v{VWA}, s{sWOS}, v{t1}
    v_lshlrev_b32 v{t1}, 3, v{lane}
    v_add_u32 v{VWE}, s{sWTS}, v{t1}""")

def late_setup(b, sfx):
    b(f"""s_lshl_b32 s71, s68, 4
    s_add_u32 s71, s71, s69
    s_lshl_b32 s70, s71, 19
    s_add_u32 s{SK}, s50, s70
    s_addc_u32 s{SK+1}, s51, 0
    s_mov_b32 s{SK+2}, 524288
    s_mov_b32 s{SK+3}, 0x20000
    s_add_u32 s{SV}, s52, s70
    s_addc_u32 s{SV+1}, s53, 0
    s_mov_b32 s{SV+2}, 524288
    s_mov_b32 s{SV+3}, 0x20000
    s_mul_i32 s70, s3, {O_BLK}
    s_add_u32 s{SO}, s100, s70
    s_addc_u32 s{SO+1}, s101, 0
    s_mov_b32 s{SO+2}, {O_BLK}
    s_mov_b32 s{SO+3}, 0x20000
    s_mul_i32 s70, s71, 36864
    s_add_u32 s{SWO}, s56, s70
    s_addc_u32 s{SWO+1}, s57, 0
    s_mov_b32 s{SWO+2}, 36864
    s_mov_b32 s{SWO+3}, 0x20000
    s_mul_i32 s71, s3, {WOT_BLK}
    s_add_u32 s70, s70, s71
    s_add_u32 s70, s70, {WOT_OFF}
    s_add_u32 s{SWT}, s100, s70
    s_addc_u32 s{SWT+1}, s101, 0
    s_mov_b32 s{SWT+2}, 36864
    s_mov_b32 s{SWT+3}, 0x20000
    s_mul_i32 s62, s69, {8*122880}
    s_mul_i32 s63, s68, 15360        ; b*15*1024
    s_add_u32 s{SCN}, s100, {CNT_OFF}
    s_addc_u32 s{SCN+1}, s101, 0
    s_mov_b32 s{SCN+2}, 24576
    s_mov_b32 s{SCN+3}, 0x20000
    s_mov_b64 s[{SDB}:{SDB+1}], s[78:79]
    s_mov_b32 s{SDB+2}, 256
    s_mov_b32 s{SDB+3}, 0x20000
    s_mov_b64 s[{SIN}:{SIN+1}], s[{SCN}:{SCN+1}]
    s_mov_b32 s{SIN+3}, 0x20000
    s_mov_b64 s[{SIF}:{SIF+1}], s[78:79]
    s_mov_b32 s{SIF+3}, 0x20000
    s_lshl_b32 s70, s3, 3
    s_add_u32 s70, s70, s68
    s_lshl_b32 s{sCO}, s70, 2
    s_lshr_b32 s71, s69, 2
    s_add_u32 s{sCO}, s{sCO}, s71
    s_lshl_b32 s{sCO}, s{sCO}, 7
    s_lshr_b32 s{sCW}, s70, 1
    s_lshl_b32 s{sCW}, s{sCW}, 7
    s_add_u32 s{sCW}, s{sCW}, 8192
    s_and_b32 s70, s97, 1
    s_mul_i32 s70, s70, {30 + OPT.get('bal', 0)}
    s_add_u32 s2, s2, s70              ; tile number inside the pair of workgroup classes (0..59 real)
    s_cmp_eq_u32 s70, 0
    s_cselect_b32 s71, {30 + OPT.get('bal', 0)}, 60
    s_cmp_ge_u32 s2, s71
    s_cselect_b32 s{sIDLE}, 1, 0       ; no output tile for this workgroup
    s_mul_i32 s68, s2, 43
    s_lshr_b32 s68, s68, 8
    s_mul_i32 s69, s68, 6
    s_sub_u32 s69, s2, s69             ; nt
    s_bfe_u32 s70, s97, 0x10001
    s_mul_i32 s70, s70, 10
    s_add_u32 s68, s68, s70            ; mt
    s_mul_i32 s79, s68, 103
    s_lshr_b32 s79, s79, 8
    s_mul_i32 s78, s68, 96
    s_add_u32 s78, s78, 95
    s_mul_i32 s78, s78, 4370
    s_lshr_b32 s78, s78, 20
    s_lshl_b32 s70, s3, 3
    s_add_u32 s78, s78, s70
    s_add_u32 s79, s79, s70
    s_lshl_b32 s78, s78, 2
    s_lshl_b32 s79, s79, 2
    s_add_u32 s78, s78, s{sWAVE}
    s_add_u32 s79, s79, s{sWAVE}
    s_lshl_b32 s78, s78, 7
    s_lshl_b32 s79, s79, 7
    s_mul_i32 s70, s3, {O_BLK}
    s_mul_i32 s71, s68, 6144
    s_add_u32 s70, s70, s71
    s_add_u32 s{SO2}, s100, s70
    s_addc_u32 s{SO2+1}, s101, 0
    s_sub_u32 s{SO2+2}, {O_BLK}, s71
    s_mov_b32 s{SO2+3}, 0x20000
    s_mul_i32 s70, s3, {WOT_BLK}
    s_mul_i32 s71, s69, 6144
    s_add_u32 s70, s70, s71
    s_add_u32 s70, s70, {WOT_OFF}
    s_add_u32 s{SW2}, s100, s70
    s_addc_u32 s{SW2+1}, s101, 0
    s_sub_u32 s{SW2+2}, {WOT_BLK}, s71
    s_mov_b32 s{SW2+3}, 0x20000
    s_cmp_eq_u32 s{sIDLE}, 1
    s_cselect_b32 s{SO2+2}, 0, s{SO2+2}   ; workgroups without an output tile load nothing
    s_cselect_b32 s{SW2+2}, 0, s{SW2+2}
    s_mov_b32 s100, s{SO2+2}
    s_mov_b32 s101, s{SW2+2}
    s_lshr_b32 s70, s{sWAVE}, 1
    s_mul_i32 s70, s70, {48*2304}
    s_mul_i32 s{sOUTO}, s68, {96*2304}
    s_add_u32 s{sOUTO}, s{sOUTO}, s70
    s_mul_i32 s70, s3, 1152
    s_add_u32 s{sOUTO}, s{sOUTO}, s70
    s_mul_i32 s70, s69, 192
    s_add_u32 s{sOUTO}, s{sOUTO}, s70
    s_and_b32 s70, s{sWAVE}, 1
    s_mul_i32 s70, s70, 96
    s_add_u32 s{sOUTO}, s{sOUTO}, s70
    s_lshl_b32 s70, s3, 2
    s_add_u32 s70, s70, s{sWAVE}
    s_lshl_b32 s70, s70, 7
    s_add_u32 s70, s70, 8192
    v_and_b32 v1, 1, v0
    v_mov_b32 v{VP2}, s78
    v_mov_b32 v2, s79
    v_cmp_eq_u32 vcc, 1, v1
    v_and_b32 v1, 2, v0
    v_mov_b32 v3, s70
    v_cndmask_b32 v{VP2}, v{VP2}, v2, vcc
    v_cmp_eq_u32 vcc, 2, v1
    v_add_u32 v{VPE}, 16384, v{VP2}
    v_mov_b32 v{VTH}, 4
    v_cndmask_b32 v{VPE}, v{VPE}, v3, vcc
    v_mov_b32 v3, 32
    v_cndmask_b32 v{VTH}, v{VTH}, v3, vcc
    s_mov_b32 s{sSIG}, 0""")
    b(f"L_late{sfx}:")
    b(f"""s_or_b32 s70, s97, s{sSAFE}
    s_cmp_eq_u32 s70, 0
    s_cselect_b32 s{SIN+2}, 24576, 0   ; only workgroup 0 (first pass) really initialises the counters
    s_cselect_b32 s{SIF+2}, 4, 0
    s_mov_b32 s{sOO}, s62
    s_mov_b32 s{sLATE}, 0
    s_mov_b32 s{SO2+2}, s100
    s_mov_b32 s{SW2+2}, s101
    s_mul_i32 s{sO2}, s{sWAVE}, {32*122880}
    s_mul_i32 s{sW2}, s{sWAVE}, {32*36864}
    s_mov_b32 s{sPF}, 0x40000
    s_lshl_b32 s{sKB}, s{sWAVE}, 11""")

def warm_code(b):
    if not OPT.get('warm'): return
    b(f"""s_getpc_b64 s[70:71]
    L_pc:
    s_sub_u32 s70, s70, L_pc-attn_kernel
    s_subb_u32 s71, s71, 0
    v_lshrrev_b32 v2, 3, v0
    v_and_b32 v2, 31, v2
    v_lshl_add_u32 v2, s2, 5, v2
    v_lshlrev_b32 v2, 7, v2
    v_min_u32 v2, L_codeend-attn_kernel-4, v2
    v_mov_b32 v3, s71
    v_add_co_u32 v2, vcc, s70, v2
    v_addc_co_u32 v3, vcc, 0, v3, vcc
    global_load_dword v4, v[2:3], off""")

def prologue_a(b):
    lane = T0; t1 = T0 + 1; t2 = T0 + 2; t3 = T0 + 3; g_ = T0 + 4; ihi = T0 + 5; i8 = T0 + 6
    b(f"""v_and_b32 v{lane}, 63, v0
    v_lshrrev_b32 v{g_}, 4, v{lane}
    v_lshrrev_b32 v{ihi}, 3, v{lane}
    v_and_b32 v{i8}, 7, v{lane}""")
    b(f"s_lshl_b32 s{sT}, s{sWAVE}, 6")
    b(f"v_add_u32 v{t1}, s{sT}, v{ihi}")
    b(f"v_mul_u32_u24 v{t1}, 1152, v{t1}")
    for j in range(4):
        b(f"v_xor_b32 v{t2}, {4*(j%2)}, v{g_}")
        b(f"v_xor_b32 v{t2}, v{t2}, v{i8}")
        b(f"v_lshl_add_u32 v{t2}, v{t2}, 4, v{t1}")
        b(f"v_add_u32 v{DX+j}, {8*j*1152 - 1024*j}, v{t2}")
    b(f"""s_and_b32 s{sT}, s{sWAVE}, 1
    s_lshl_b32 s{sT}, s{sT}, 18
    s_lshr_b32 s{sT+1}, s{sWAVE}, 1
    s_lshl_b32 s{sT+1}, s{sT+1}, 7
    s_add_u32 s{sT}, s{sT}, s{sT+1}
    v_lshlrev_b32 v{t1}, 13, v{ihi}
    v_add_u32 v{t1}, s{sT}, v{t1}
    v_lshrrev_b32 v{t2}, 2, v{i8}
    v_xor_b32 v{t2}, v{t2}, v{g_}
    v_and_b32 v{t2}, 1, v{t2}
    v_lshl_add_u32 v{t1}, v{t2}, 6, v{t1}
    v_and_b32 v{t2}, 3, v{i8}
    v_lshl_add_u32 v{t1}, v{t2}, 4, v{t1}""")
    for j in range(4): b(f"v_add_u32 v{DW+j}, {8*j*8192 - 1024*j}, v{t1}")
    b(f"""s_mov_b32 s{sXO}, 0
    s_mov_b32 s{sXO2}, 36864
    s_mov_b32 s{sWOFF}, 0
    s_mov_b32 s{sKV}, 0
    s_mov_b32 s{sHEAD}, 0""")

def prologue_b(b):
    lane = T0; t1 = T0 + 1; t2 = T0 + 2; t3 = T0 + 3; g_ = T0 + 4; ihi = T0 + 5; i8 = T0 + 6
    if OPT.get('sstamps'): stamp(b)
    b.ext(x_dma(0, 4)); b.ext(w_dma(0, 4))
    if OPT.get('ord') == 1: b.ext(w_dma(1, 4)); b.ext(x_dma(1, 4))
    if OPT.get('ord') == 2: b.ext(w_dma(1, 4))
    if OPT.get('sstamps'): stamp(b)
    if OPT.get('xw'):
        pf = K2F[OPT.get('xwf', 0)]
        b(f"""s_lshr_b32 s70, s2, 2
        s_mul_i32 s70, s70, 270
        s_mul_i32 s71, s{sWAVE}, 68
        s_add_u32 s70, s70, s71
        s_lshl_b32 s70, s70, 7
        v_lshlrev_b32 v5, 7, v{lane}
        buffer_load_dword v6, v5, s[{SX}:{SX+3}], s70 offen{pf}
        s_and_b32 s70, s2, 3
        s_lshl_b32 s70, s70, 2
        s_add_u32 s70, s70, s{sWAVE}
        s_lshl_b32 s70, s70, 13
        v_lshrrev_b32 v5, 2, v{lane}
        v_lshlrev_b32 v5, 17, v5
        v_and_b32 v7, 3, v{lane}
        v_lshl_add_u32 v5, v7, 7, v5
        buffer_load_dword v6, v5, s[{SW}:{SW+3}], s70 offen{pf}
        s_add_u32 s70, s70, {256*8192}
        buffer_load_dword v6, v5, s[{SW}:{SW+3}], s70 offen{pf}
        s_add_u32 s70, s70, {256*8192}
        buffer_load_dword v6, v5, s[{SW}:{SW+3}], s70 offen{pf}""")
    late_setup(b, "")
    if OPT.get('tlb'):
        for srd in (SK, SV, SWO): b(f"buffer_load_dword v1, off, s[{srd}:{srd+3}], 0 nt")
        if OPT['tlb'] > 1:
            b(f"s_mov_b64 exec, 1\nbuffer_store_dword v1, off, s[{SWT}:{SWT+3}], s{sWB} sc1\ns_mov_b64 exec, -1")
    persist_regs(b)
    b(f"""v_mov_b32 v{VONE}, 1
    s_and_b32 s70, s{sWAVE}, 1
    s_mul_i32 s70, s70, 3072
    s_sub_u32 s71, 3072, s70
    v_add_u32 v{VPW}, s70, v{VLN}
    v_add_u32 v{VPW+1}, s71, v{VLN}
    s_lshr_b32 s70, s{sWAVE}, 1
    s_mul_i32 s70, s70, 3072
    s_sub_u32 s71, 3072, s70
    v_add_u32 v{VPO}, s70, v{VLN}
    v_add_u32 v{VPO+1}, s71, v{VLN}""")
    i16 = T0 + 7; r_ = T0 + 8; c4 = T0 + 9
    b(f"""v_and_b32 v{i16}, 15, v{lane}
    v_lshrrev_b32 v{r_}, 2, v{i16}
    v_and_b32 v{c4}, 3, v{lane}
    v_lshlrev_b32 v{t1}, 7, v{i16}
    v_add_u32 v{t1}, s{sXB}, v{t1}
    v_add_u32 v{t1}, 16384, v{t1}
    v_lshrrev_b32 v{t3}, 1, v{i16}""")
    for s in range(2):
        b(f"v_xor_b32 v{t2}, {4*s}, v{g_}")
        b(f"v_xor_b32 v{t2}, v{t2}, v{t3}")
        b(f"v_lshl_add_u32 v{XA+s}, v{t2}, 4, v{t1}\nv_add_u32 v{XA+2+s}, 65536, v{XA+s}")
    b(f"""v_lshl_add_u32 v{t1}, v{g_}, 3, v{r_}
    v_lshlrev_b32 v{t1}, 7, v{t1}
    v_lshl_add_u32 v{t1}, v{c4}, 4, v{t1}
    v_add_u32 v{t1}, 49152, v{t1}
    v_lshrrev_b32 v{t3}, 1, v{r_}""")
    for sp in range(2):
        b(f"v_xor_b32 v{t2}, {sp}, v{t3}")
        b(f"v_lshl_add_u32 v{WA+sp}, v{t2}, 6, v{t1}\nv_add_u32 v{WA+2+sp}, 65536, v{WA+sp}")
    if OPT.get('sstamps'): stamp(b)
    if not OPT.get('ord'): b.ext(w_dma(1, 4))
    if OPT.get('ord') != 1: b.ext(x_dma(1, 4))

def wave_code(b, nq, sfx):
    nx = 8 if nq == 4 else 6
    b(f"L_begin{sfx}:")
    if nq == 3:
        b(f"v_mov_b32 v{VHS}, 0\nv_lshlrev_b32 v{VCW}, 3, v{VLN}")
        b(f"buffer_store_dword v{VHS}, v{VCW}, s[{SIN}:{SIN+3}], 0 offen sc1 ; tag=INIT")
        b(f"s_mov_b32 s{sT}, 8192\nbuffer_store_dword v{VHS}, v{VCW}, s[{SIN}:{SIN+3}], s{sT} offen sc1 ; tag=INIT")
        b(f"s_mov_b32 s{sT}, 16384\nbuffer_store_dword v{VHS}, v{VCW}, s[{SIN}:{SIN+3}], s{sT} offen sc1 ; tag=INIT")
    stamp(b, 0)
    if OPT.get('fsq'):
        b(f"s_mov_b32 s{sFQ}, 0\nv_mov_b32 v{QFB}, {QFLAGS}\nv_lshl_add_u32 v{QFA}, s{sWAVE}, 2, v{QFB}")
    b("WAITV ; cover=X0,W0")
    b("s_barrier ; pub=X0,W0")
    b.ext(x_reads(0, nq))
    for T in (0, 1): b.ext(w_reads(0, T))
    b.ext(w_reads(0, 2)[:3])
    b("WAITL W0.0")
    stamp(b, 1)
    for n in range(0, 12): qproj_stage(b, n, nq)
    fill = []; post = []
    for sp in range(4):
        for q in range(nq):
            rs = [128 + 32 * q + 8 * sp + 2 * i_ for i_ in range(4)]
            for r in rs: fill += [f"v_mul_f32 v{r}, s{sC}, v{r}", f"v_mul_f32 v{r+1}, s{sC}, v{r+1}"]
            for r in rs: fill.append(f"v_cvt_pk_bf16_f32 v{r}, v{r}, v{r+1}")
            for i_, r in enumerate(rs): fill.append(f"v_accvgpr_write_b32 a{AQ(q) + 4*sp + i_}, v{r}")
    for n in range(12, 18): qproj_stage(b, n, nq, fill if n >= 16 else None)
    stamp(b, 2)
    conv2 = []
    for q in range(nq):
        for h in range(8):
            r = 128 + 32 * q + 4 * h
            conv2 += [f"v_accvgpr_read_b32 v{4+i_}, a{r+i_}" for i_ in range(4)]
            conv2 += [f"v_mul_f32 v{4+i_}, s{sC}, v{4+i_}" for i_ in range(4)]
            conv2 += ["v_cvt_pk_bf16_f32 v4, v4, v5", "v_cvt_pk_bf16_f32 v6, v6, v7",
                      f"v_accvgpr_write_b32 a{AQ2(q)+2*h}, v4", f"v_accvgpr_write_b32 a{AQ2(q)+2*h+1}, v6"]
    def pre_mfma(): return [qk(q, 0, s_, czero=True) for q in range(nq) for s_ in range(4)]
    def pre_max():
        t = B()
        for q in range(nq):
            s_ = S_ + 8 * q
            t(f"v_max3_f32 v{s_}, v{s_}, v{s_+1}, v{s_+2}")
        for q in range(nq):
            s_ = S_ + 8 * q
            t(f"v_max_f32 v{s_}, v{s_}, v{s_+3}")
        xlane_reduce_multi(t, [S_ + 8 * q for q in range(nq)], [T0 + q for q in range(nq)], "v_max_f32")
        for q in range(nq):
            for r in range(4): t(f"v_sub_f32 v{CI+4*q+r}, 0, v{S_+8*q}")
        return t.L
    def weave(mf, st, per):
        for x in mf:
            b(x)
            for _ in range(per):
                if st: b(st.pop(0))
    def zipper(a_, b_, ra, rb):
        out = []
        while a_ or b_:
            for _ in range(ra):
                if a_: out.append(a_.pop(0))
            for _ in range(rb):
                if b_: out.append(b_.pop(0))
        return out
    b.ext(k_reads(0, 0))
    b.ext(fill)
    b(f"v_and_b32 v4, 3, v0\nv_mov_b32 v5, 0x3f803f80\nv_cmp_eq_u32 vcc, 0, v4")
    for i_ in range(4): b(f"v_cndmask_b32 v{ONES+i_}, 0, v5, vcc")
    b("s_waitcnt lgkmcnt(0)")
    if OPT.get('wts'):
        mv = [f"v_mov_b32 v{192+i_}, v{WOF+i_}" for i_ in range(36)]
        b.ext(mv[:8])
        mv = mv[8:]
        weave(pre_mfma()[:8], mv, 4)
        b.ext(mv); b.ext(pre_mfma()[8:])
    else: b.ext(pre_mfma())
    b.ext(pre_max())
    stamp(b, 3)
    for i_ in range(OPT.get('pause', 0)): b('s_sleep 32')
    if OPT.get('skew'):
        b(f"s_lshr_b32 s{sT}, s97, 3\ns_and_b32 s{sT}, s{sT}, 7\nL_skew{sfx}:\ns_cmp_eq_u32 s{sT}, 0\ns_cbranch_scc1 L_skewd{sfx}\ns_sleep {OPT['skew']}\ns_sub_u32 s{sT}, s{sT}, 1\ns_branch L_skew{sfx}\nL_skewd{sfx}:")
    adv8 = lambda x: x
    def head_start(hd):
        b(f"s_cmp_lg_u32 s{sSAFE}, 0\ns_cbranch_scc1 L_maxpass{sfx}\nL_maxdone{hd}{sfx}:")
        if not LM:
            for q in range(nq): b(f"v_mov_b32 v{LS+q}, 0")
        stamp(b)
    if OPT.get('wtp') == 2 and nq == 3: b("WAITV ; cover=WT\nbuffer_wbl2 sc1 ; tag=WT")
    head_start(0)
    per = -(-len(conv2) // 8); tot_ = len(conv2)
    for k in range(8):
        ex = []
        if k == 0 and OPT.get('wts'):
            for i_ in range(8 if OPT.get('fsq') else 9):
                g = 2 + 7 * i_
                if i_ < 8: ex.append((g - 1, f"s_add_u32 s{sT+1}, s{sWB}, {16384*(i_//4)}"))
                else: ex += [(g - 2, f"s_lshl_b32 s{sT+1}, s{sWAVE}, 10"), (g - 1, f"s_add_u32 s{sT+1}, s{sT+1}, 32768")]
                ex.append((g, f"buffer_store_dwordx4 {vr(192+4*i_,4)}, v{VLN}, s[{SWT}:{SWT+3}], s{sT+1} offen offset:{1024*(i_%4) if i_ < 8 else 0} sc1 ; tag=WT"))
        if OPT.get('fsq'):
            A9 = 192 if nq == 4 else 224
            if k == 1: ex += [(5, f"s_mov_b32 m0, s{sWTS}"), (6, dma(VWX, SWO, "0", 0, fl('nt_wo'), "W9X"))]
            if k == 6: ex += [(3, "WAITV ; cover=W9X"), (4, f"ds_read_b64_tr_b16 {ar(A9,2)}, v{VWE} offset:0"), (5, f"ds_read_b64_tr_b16 {ar(A9+2,2)}, v{VWE} offset:512")]
            if k == 7: ex += [(4, f"s_lshl_b32 s{sT+1}, s{sWAVE}, 10"), (5, f"s_add_u32 s{sT+1}, s{sT+1}, 32768"),
                              (25, f"buffer_store_dwordx4 {ar(A9,4)}, v{VLN}, s[{SWT}:{SWT+3}], s{sT+1} offen sc1 ; tag=WT")]
        if k == 6 and nq == 3:
            ex += [(46, "WAITV ; cover=HS"), (47, f"v_readfirstlane_b32 s{sT}, v{VHS}\ns_cmp_eq_u32 s{sT}, 0\ns_cbranch_scc1 L_hspin\nL_hsok:")]
        cnt_ = per
        if OPT.get('front'): cnt_ = -(-tot_ * {1: (8, 8, 7, 7, 6, 5, 4, 3), 2: (3, 4, 5, 6, 7, 7, 8, 8), 3: (12, 12, 12, 12, 0, 0, 0, 0)}[OPT['front']][k] // 48)
        attn_stage(b, k, nq, ex, fill=[conv2.pop(0) for _ in range(min(cnt_, len(conv2)))])
    b(f"L_atin{sfx}:")
    b(f"s_mov_b32 s{sCNT}, 0")
    b(f".p2align 3\nL_at{sfx}:")
    b("LOOPBEGIN at 3 8")
    for k in range(8, 16):
        ex = []
        if k == 11 and nq == 3:
            ex = [(59, f"""s_xor_b32 s{sT+1}, s{sHEAD}, 1
            s_or_b32 s{sT}, s{sCNT}, s{sT+1}
            s_cbranch_scc0 L_sig
            L_nosig:""")]
        if k == 15: ex = [(NS - 6, f"s_add_u32 s{sCNT}, s{sCNT}, 1"), (NS - 4, f"s_add_u32 s{sT}, s{sCNT}, s{sHEAD}"), (NS - 2, f"s_cmp_lt_u32 s{sT}, 3")]
        attn_stage(b, k, nq, ex)
    if OPT.get('midgap'):
        b(f"s_cselect_b32 s{sT+1}, 1, 0\ns_lshl_b32 s{sT}, s{sHEAD}, 4\ns_add_u32 s{sT}, s{sT}, s{sCNT}\ns_cmp_eq_u32 s{sT}, {OPT.get('midat', 1)}\ns_cbranch_scc0 L_ng{sfx}")
        for i_ in range(OPT['midgap']): b("s_sleep 16")
        b(f"L_ng{sfx}:\ns_cmp_eq_u32 s{sT+1}, 1")
    b(f"s_cbranch_scc1 L_at{sfx}")
    b("LOOPEND at")
    b(f"L_atx{sfx}:")
    b(f"s_cmp_lg_u32 s{sHEAD}, 0\ns_cbranch_scc1 L_fin{sfx}")

    def lsum(qs):
        t = B()
        if not LM: xlane_reduce_multi(t, [LS + q for q in qs], [T0 + 4 + q for q in qs], "v_add_f32")
        for q in qs:
            src = LA + 4 * q if LM else LS + q
            t(f"v_cmp_ngt_f32 vcc, {LTHR}, v{src}")
            t(f"v_rcp_f32 v{LS+q}, v{src}")
            t(f"s_or_b32 s{sFLAG}, s{sFLAG}, vcc_lo\ns_or_b32 s{sFLAG}, s{sFLAG}, vcc_hi")
        return t.L
    cnt = [0]
    def onorm(q, pk, flag, inplace=False, so=None):
        out = []
        for sp in range(4):
            d = P_ + 4 * (cnt[0] % 2); cnt[0] += 1
            if inplace: d = O_ + 32 * q + 8 * sp
            rs = [O_ + 32 * q + 8 * sp + 2 * i_ for i_ in range(4)]
            for r in rs:
                if pk and OPT.get('pk', 1): out.append(f"v_pk_mul_f32 v[{r}:{r+1}], v[{r}:{r+1}], v[{LS+q-(q%2)}:{LS+q-(q%2)+1}] op_sel:[0,{q%2}] op_sel_hi:[1,{q%2}]")
                else: out += [f"v_mul_f32 v{r}, v{r}, v{LS+q}", f"v_mul_f32 v{r+1}, v{r+1}, v{LS+q}"]
            for i_, r in enumerate(rs): out.append(f"v_cvt_pk_bf16_f32 v{d+i_}, v{r}, v{r+1}")
            if flag is None:
                for i_ in range(4): out.append(f"v_accvgpr_write_b32 a{AST+16*q+4*sp+i_}, v{d+i_}")
                continue
            if so:
                out[-1] += f"\ns_add_u32 s{sT+1}, s{so}, {sp*122880}\nbuffer_store_dwordx4 {vr(d,4)}, v{VO}, s[{SO}:{SO+3}], s{sT+1} offen offset:{1024*q}{flag}"
                continue
            out.append(f"s_add_u32 s{sT}, s{sOO}, {sp*122880}")
            out.append(f"buffer_store_dwordx4 {vr(d,4)}, v{VO}, s[{SO}:{SO+3}], s{sT} offen offset:{1024*q}{flag}")
        return out
    def drain(st, ld=None, every=1):
        slots = []; gaps = [[] for _ in range(18)]
        for q in (2, 3):
            for T in range(8): slots.append(pv(q, T) if q < nq else None)
            slots.append(lsm(q) if (q < nq and LM) else None)
        rem = sorted(sm_items(nq, NS, 2 * NS), key=lambda t: t[0])
        b.ext([sm_text(*k_) for g, k_ in rem if k_[1] == 2 and k_[0] != 'add'])
        crit = sorted([k_ for g, k_ in rem if k_[1] == 3 and k_[0] != 'add'], key=lambda k_: (k_[2], k_[0] == 'cvt'))
        g = 0
        for k_ in crit:
            if k_[0] == 'exp' and gaps[min(g, 6)]: g += 1
            gaps[min(g, 6)].append(sm_text(*k_))
            if k_[0] == 'exp' or len(gaps[min(g, 6)]) == 2: g += 1
        late = [sm_text(*k_) for g_, k_ in rem if k_[0] == 'add']
        for i_, x in enumerate(late): gaps[min(9 + i_ // 2, 16) if nq == 4 else 0].append(x)
        for g in range(18):
            if slots[g] is None: continue
            room = 2 - sum(2 if 'exp' in x else 1 for x in gaps[g])
            while room > 0 and st: gaps[g].append(st.pop(0)); room -= 1
        for i_, s_ in enumerate(slots):
            if s_: b(s_)
            if s_ and ld and (i_ % every == 0 or nq == 3):
                b(ld.pop(0))
                while ld and ld[0].startswith("s_"): b(ld.pop(0))
            b.ext(gaps[i_])
    hi = list(range(2, nq))
    movs = [f"v_accvgpr_mov_b32 a{AQ(q)+i_}, a{AQ2(q)+i_}" for q in range(nq) for i_ in range(16)]
    f0 = None if OPT.get('defer') else K2F[OPT.get('of0', 2)] + ' ; tag=WT'
    if OPT.get('wtp') == 1 and nq == 3: b("buffer_wbl2 sc1 ; tag=WT")
    st = lsum([0, 1]) + onorm(0, False, f0)
    SW2_ = OPT.get('sw2', 0)
    if SW2_:
        ld = []
        for t in (38, 39): ld += k_dma(t) + v_dma(t) + kv_adv()
        b(ld.pop(0))
        ld2 = []
        for x in ld: ld2 += [x] if x.startswith('s_') else [x, 'v_nop']
        ld2 = [x for x in ld]
        drain(st, ld2, 2)
    else: drain(st)
    stamp(b, 4)
    b.ext(zipper(st, lsum(hi), 2, 1))
    b.ext(movs)
    st = onorm(1, False, f0)
    weave(pre_mfma(), st, 3 if nq == 4 else 4)
    b.ext(st)
    rest = []; late_ = []
    for q in hi:
        if SW2_ >= 2: late_ += onorm(q, False, f0, inplace=True, so=sOP)
        else: rest += onorm(q, True, f0)
    b.ext(zipper(rest, pre_max(), 2, 1))
    b.ext(vote_write())
    b(f"s_mov_b32 s{sOP}, s{sOO}\ns_add_u32 s{sOO}, s{sOO}, {4*122880}\ns_mov_b32 s{sHEAD}, 1")
    if OPT.get('emub'):
        b(f"s_and_b32 s{sT}, s97, 3\ns_cmp_eq_u32 s{sT}, s{sCNT}" if False else "")
        b(f"s_mov_b32 s{sT}, 0\nL_duma{sfx}:")
        for i_ in range(64):
            if (i_ // 2) % 4 >= nq: continue
            b(f"{MF} a[{192+4*(i_//2%16)}:{195+4*(i_//2%16)}], a[{4*(i_%8)}:{4*(i_%8)+3}], a[{32+4*(i_%7)}:{35+4*(i_%7)}], a[{192+4*(i_//2%16)}:{195+4*(i_//2%16)}]")
            if i_ % 2 == 0: b(f"ds_read_b64_tr_b16 v[4:5], v{VA + i_ % 8} offset:{(i_ % 16) * 4096}")
        b(f"s_waitcnt lgkmcnt(0)\ns_barrier\ns_add_u32 s{sT}, s{sT}, 1\ns_cmp_lt_u32 s{sT}, 8\ns_cbranch_scc1 L_duma{sfx}")
    head_start(1)
    dst = [(q, sp) for q in range(nq) for sp in range(4)] if OPT.get('defer') else []
    for k in range(32, 40):
        ex = []
        for g in (24, 25):
            if dst:
                q, sp = dst.pop(0)
                ex += [(g, f"s_add_u32 s{sT+1}, s{sOP}, {sp*122880}"),
                       (g, f"buffer_store_dwordx4 {ar(AST+16*q+4*sp,4)}, v{VO}, s[{SO}:{SO+3}], s{sT+1} offen offset:{1024*q} sc1 ; tag=WT")]
        attn_stage(b, k, nq, ex, fill=late_ if k == 32 else None)
    b(f"s_branch L_atin{sfx}")
    b("REPLAY at 32 2")
    b(f"L_fin{sfx}:")
    f1 = K2F[OPT.get('of', 0)]
    early = p2_w(0) + p2_o(0) + p2_adv(0) + p2_w(1) + p2_o(1) + p2_adv(1)
    for k in range(56, 64):
        ex = []
        if k == 56: ex = [(6, f"buffer_load_dword v{VCW}, v{VPE}, s[{SCN}:{SCN+3}], 0 offen sc1 ; tag=CW")]
        if k == 59: ex = [(NS - 3, f"WAITV ; cover=CW\nv_cmp_gt_u32 vcc, v{VTH}, v{VCW}\ns_cbranch_vccnz L_espin{sfx}\nL_eok{sfx}:")]
        if k >= 60:
            for g in (3, 7, 11, 17, 23, 45 if LM else 44):
                ex.append((g, early.pop(0)))
                while early and early[0].startswith("s_"): ex.append((g + 1, early.pop(0)))
        attn_stage(b, k, nq, ex)
    assert not early
    p2 = []
    for s_ in (2, 3): p2 += p2_w(s_) + p2_o(s_) + p2_adv(s_)
    st = lsum([0, 1]) + onorm(0, False, f1)
    drain(st, p2)
    stamp(b, 4)
    body = st + zipper(onorm(1, True, f1), lsum(hi), 2, 1)
    for q in hi: body += onorm(q, True, f1)
    body = [x + " ; tag=OS" if x.startswith("buffer_store") else x for x in body]
    nld = sum(1 for x in p2 if x.startswith("buffer_"))
    per = max(1, len(body) // (nld + 2))
    seq = []
    while body or p2:
        if p2:
            seq.append(p2.pop(0))
            while p2 and p2[0].startswith("s_"): seq.append(p2.pop(0))
        for _ in range(per):
            if body: seq.append(body.pop(0))
    outst = 48 - nld
    for x in seq:
        if x.startswith("buffer_"):
            if outst >= 62: b("s_waitcnt vmcnt(52)"); outst = 52
            outst += 1
        b(x)
    b.ext(vote_write())
    stamp(b)
    b(f"L_p2s{sfx}:")
    for s_ in range(4): p2_step(b, s_, s_ == 0, True, f"WAITV ; cover=P{s_} cap=51")
    b("WAITV lgkmcnt(0) ; cover=OS")
    b("s_branch L_vote")
    b(f"""L_espin{sfx}:
    s_mov_b32 s{sLATE}, 1
    s_mov_b32 s{SO2+2}, 0
    s_mov_b32 s{SW2+2}, 0
    s_branch L_eok{sfx}""")
    if nq == 3:
        b(f"""L_sig:
        v_mov_b32 v4, {131072+7168}
        ds_read_b128 v[4:7], v4
        s_waitcnt lgkmcnt(0)
        v_or_b32 v4, v4, v5
        v_or3_b32 v4, v4, v6, v7
        v_readfirstlane_b32 s{sT}, v4
        s_mov_b64 exec, 1
        s_cmp_lg_u32 s{sSAFE}, 0
        s_cselect_b32 s{sT}, 0, s{sT}
        s_cbranch_scc1 L_sig1
        buffer_atomic_add v{VONE}, off, s[{SCN}:{SCN+3}], s{sCW} sc1
        L_sig1:
        s_or_b32 s{sT}, s{sT}, s{sSIG}
        s_cbranch_scc1 L_sig2
        s_add_u32 s{sT}, s{sCO}, 16384
        s_mov_b32 s{sSIG}, 1
        buffer_atomic_add v{VONE}, off, s[{SCN}:{SCN+3}], s{sT} sc1
        L_sig2:
        s_mov_b64 exec, -1
        s_branch L_nosig""")
        b(f"""L_hspin:
        s_mov_b32 s{sCNT}, 0
        L_hsp:
        s_sleep 8
        buffer_load_dword v{VHS}, off, s[{SDB}:{SDB+3}], 0 sc1
        s_waitcnt vmcnt(0)
        v_readfirstlane_b32 s{sT}, v{VHS}
        s_add_u32 s{sCNT}, s{sCNT}, 1
        s_lshr_b32 s{sT+1}, s{sCNT}, 17
        s_or_b32 s{sT}, s{sT}, s{sT+1}
        s_cmp_eq_u32 s{sT}, 0
        s_cbranch_scc1 L_hsp
        s_branch L_hsok""")
    for uid in QSPINS:
        b(f"""L_fs{uid}:
        ds_read_b128 {vr(QF,4)}, v{QFB}
        s_waitcnt lgkmcnt(0)
        v_min3_u32 v{QF}, v{QF}, v{QF+1}, v{QF+2}
        v_min_u32 v{QF}, v{QF}, v{QF+3}
        v_cmp_gt_u32 vcc, s{sFQ}, v{QF}
        s_cbranch_vccnz L_fs{uid}
        s_branch L_fr{uid}""")
    QSPINS.clear()
    for uid in SPINS:
        b(f"""L_fs{uid}:
        ds_read_b128 {vr(FQ,4)}, v{VFB}
        s_waitcnt lgkmcnt(0)
        v_min3_u32 v{FQ}, v{FQ}, v{FQ+1}, v{FQ+2}
        v_min_u32 v{FQ}, v{FQ}, v{FQ+3}
        v_cmp_gt_u32 vcc, s{sFV}, v{FQ}
        s_cbranch_vccnz L_fs{uid}
        s_branch L_fr{uid}""")
    SPINS.clear()
    b(f"L_maxpass{sfx}:")
    for q in range(nq): b(f"v_mov_b32 v{T0+8+q}, 0xff800000")
    for s2 in range(4): b(f"v_add_u32 v{T0+12+s2}, 147456, v{KA+s2}")
    b(f"s_lshl_b32 s{sT}, s{sHEAD}, 18\ns_mov_b32 s{sCNT}, 0")
    b(f"L_mp{sfx}:")
    b(f"s_barrier\ns_add_u32 m0, s{sKB}, 147456")
    b(dma(DK0, SK, f"s{sT}", 0, "", "MP")); b(dma(DK1, SK, f"s{sT}", 1024, "", "MP"))
    b("s_waitcnt vmcnt(0)\ns_barrier")
    for kt in range(2):
        for s in range(4):
            b(f"ds_read_b128 {ar(ASP+4*(4*kt+s),4)}, v{T0+12+s} offset:{kt*4096}")
    b("s_waitcnt lgkmcnt(0)")
    for q in range(nq):
        for kt in range(2):
            for s in range(4):
                d = vr(S_ + 8 * q + 4 * kt, 4)
                b(f"{MF} {d}, {ar(ASP+4*(4*kt+s),4)}, {ar(AQ(q)+4*s,4)}, {d if s else '0'}")
    for q in range(nq):
        for e in range(0, 8, 2): b(f"v_max3_f32 v{T0+8+q}, v{T0+8+q}, v{S_+8*q+e}, v{S_+8*q+e+1}")
    b(f"s_add_u32 s{sT}, s{sT}, 8192\ns_add_u32 s{sCNT}, s{sCNT}, 1\ns_cmp_lt_u32 s{sCNT}, 32\ns_cbranch_scc1 L_mp{sfx}")
    b("s_barrier")
    xlane_reduce_multi(b, [T0 + 8 + q for q in range(nq)], [T0 + q for q in range(nq)], "v_max_f32")
    for q in range(nq):
        for r in range(4): b(f"v_sub_f32 v{CI+4*q+r}, 0, v{T0+8+q}")
    b(f"s_cmp_eq_u32 s{sHEAD}, 0\ns_cbranch_scc1 L_maxdone0{sfx}\ns_branch L_maxdone1{sfx}")

FA = [144, 192, 0, 96]
def p2_reg(slot, i): return FA[slot] + 4 * i
VPW = 2; VPO = 8
def p2_w(slot): return [f"buffer_load_dwordx4 {ar(p2_reg(slot, i),4)}, v{VPW + i//3}, s[{SW2}:{SW2+3}], s{sW2} offen offset:{1024*(i%3)}{K2F[OPT.get('p2f', 2)]} ; tag=P{slot}" for i in range(6)]
def p2_o(slot): return [f"buffer_load_dwordx4 {ar(p2_reg(slot, 6+i),4)}, v{VPO + i//3}, s[{SO2}:{SO2+3}], s{sO2} offen offset:{1024*(i%3)}{K2F[OPT.get('p2f', 2)]} ; tag=P{slot}" for i in range(6)]
def p2_adv(slot):
    m = 5 if slot == 3 else 1
    return [f"s_add_u32 s{sO2}, s{sO2}, {m*122880}", f"s_add_u32 s{sW2}, s{sW2}, {m*36864}"]

def vote_write():
    return [f"v_mov_b32 v4, s{sFLAG}", f"s_lshl_b32 s{sT}, s{sWAVE}, 2", f"s_add_u32 s{sT}, s{sT}, {131072+7168}",
            f"v_mov_b32 v5, s{sT}", "ds_write_b32 v5, v4"]

P2ACC = 112
def p2_acc(q, n): return P2ACC + 4 * (6 * q + n)
def p2_step(b, slot, first, prefetch, wait, order=None, extra=None):
    b(wait)
    order = order or [(q, n) for q in range(6) for n in range(6)]
    slots = []; gaps = [[] for _ in range(36)]
    for q, n in order:
        a_ = vr(p2_acc(q, n), 4)
        slots.append(f"{MF} {a_}, {ar(p2_reg(slot, n),4)}, {ar(p2_reg(slot, 6+q),4)}, {'0' if first else a_}")
    if prefetch:
        o_, w_ = p2_o(slot), p2_w(slot)
        for q in range(6): gaps[6 * q + 5].append(o_[q])
        for n in range(6): gaps[30 + n].append(w_[n])
        gaps[35] += p2_adv(slot)
    for g, x in (extra or []): gaps[g].append(x)
    emit_slots(b, slots, gaps)

def phase2(b):
    D = 4
    acc = p2_acc
    def step(slot, first, prefetch, N, order=None, extra=None): p2_step(b, slot, first, prefetch, f"s_waitcnt vmcnt({N})", order, extra)
    b(f"""L_vote:
    s_cmp_eq_u32 s{sLATE}, 2
    s_cbranch_scc1 L_go
    v_mov_b32 v5, {131072+7168}
    s_barrier
    ds_read_b128 v[16:19], v5
    s_waitcnt lgkmcnt(0)
    v_or_b32 v16, v16, v17
    v_or3_b32 v16, v16, v18, v19
    v_readfirstlane_b32 s{sT}, v16
    s_cmp_lg_u32 s{sSAFE}, 0
    s_cselect_b32 s{sT}, 0, s{sT}
    s_cmp_lg_u32 s{sT}, 0
    s_cbranch_scc1 L_redo
    s_cmp_eq_u32 s{sWAVE}, 3
    s_cbranch_scc0 L_nosig2
    s_mov_b64 exec, 1
    buffer_atomic_add v{VONE}, off, s[{SCN}:{SCN+3}], s{sCO} sc1
    s_mov_b64 exec, -1
    L_nosig2:""")
    stamp(b)
    b(f"""s_cmp_eq_u32 s{sIDLE}, 1
    s_cbranch_scc1 L_fini
    s_cmp_eq_u32 s{sLATE}, 1
    s_cbranch_scc1 L_lateld
    L_go:
    s_xor_b32 s70, s{sWAVE}, 1
    s_mul_i32 s70, s70, 27648
    v_add_u32 v16, s70, v{VLN}
    s_xor_b32 s70, s{sWAVE}, 2
    s_mul_i32 s70, s70, 27648
    s_add_u32 s70, s70, 9216
    v_add_u32 v17, s70, v{VLN}
    s_xor_b32 s70, s{sWAVE}, 3
    s_mul_i32 s70, s70, 27648
    s_add_u32 s70, s70, 18432
    v_add_u32 v18, s70, v{VLN}
    s_mul_i32 s70, s{sWAVE}, 27648
    v_add_u32 v19, s70, v{VLN}
    v_and_b32 v20, 15, v0
    v_mul_u32_u24 v20, 96, v20
    v_bfe_u32 v21, v0, 4, 2
    v_lshl_add_u32 v20, v21, 3, v20
    v_add_u32 v20, s70, v20            ; bf16 staging write address: row*96 + g*8
    v_and_b32 v21, 63, v0
    s_mov_b32 s71, 0x2aab""")
    for r in range(5):
        b(f"""v_add_u32 v22, {64*r}, v21
        v_mul_u32_u24 v23, s71, v22
        v_lshrrev_b32 v23, 16, v23
        v_mul_u32_u24 v{42+r}, {2304 - 96}, v23
        v_lshl_add_u32 v{42+r}, v22, 4, v{42+r}""")
    b(f"""v_cmp_gt_u32 vcc, 32, v21
    v_mov_b32 v22, 0x7f000000
    v_cndmask_b32 v46, v22, v46, vcc
    s_mov_b32 s88, s{sOUT}
    s_mov_b32 s89, s{sOUT+1}
    s_mov_b32 s90, {8*240*1152*2}
    s_mov_b32 s91, 0x20000
    s_mov_b32 s36, 0
    .p2align 3
    L_k2:""")
    for s_ in range(D):
        ex = [(0, f"buffer_load_dword v6, v{VP2}, s[{SCN}:{SCN+3}], 0 offen sc1")] if s_ == 0 else None
        step(s_, False, True, 36, extra=ex)
    b("""s_add_u32 s36, s36, 1
    s_cmp_eq_u32 s36, 2
    s_cbranch_scc1 L_chk
    L_chkd:
    s_cmp_lt_u32 s36, 6
    s_cbranch_scc1 L_k2""")
    b("L_tail:")
    for s_ in range(D - 1): step(s_, False, False, 12 * (D - 1 - s_))
    stamp(b)
    quad = lambda q, n: (q // 3) * 2 + (n // 3)
    oth = [(q, n) for d in (1, 2, 3) for q in range(6) for n in range(6) if quad(q, n) == d]
    mine = [(q, n) for q in range(3) for n in range(3)]
    wr = [(min(i_ + 5, 35), f"ds_write_b128 v{15 + quad(q, n)}, {vr(acc(q, n),4)} offset:{((q % 3) * 3 + n % 3) * 1024}") for i_, (q, n) in enumerate(oth)]
    step(D - 1, False, False, 0, order=oth + mine, extra=wr)
    if OPT.get('rstamps'): stamp(b)
    b("s_waitcnt lgkmcnt(0)\ns_barrier")
    if OPT.get('rstamps'): stamp(b)
    for t in range(9):
        for src in range(3):
            b(f"ds_read_b128 {vr(acc(*oth[3*t+src]),4)}, v19 offset:{src * 9216 + t * 1024}")
    for t, (q, n) in enumerate(mine):
        r0, r1, r2, m = acc(*oth[3*t]), acc(*oth[3*t+1]), acc(*oth[3*t+2]), acc(q, n)
        b(f"s_waitcnt lgkmcnt({min(15, 3 * (8 - t))})")
        for x_, y_ in ((r0, r1), (m, r2), (m, r0)):
            for r in (0, 2): b(f"v_pk_add_f32 v[{x_+r}:{x_+r+1}], v[{x_+r}:{x_+r+1}], v[{y_+r}:{y_+r+1}]")
        b(f"v_cvt_pk_bf16_f32 v{24+2*t}, v{m}, v{m+1}\nv_cvt_pk_bf16_f32 v{25+2*t}, v{m+2}, v{m+3}")
    for t, (q, n) in enumerate(mine):
        b(f"ds_write_b64 v20, v[{24+2*t}:{25+2*t}] offset:{q * 1536 + n * 32}")
    b("s_waitcnt lgkmcnt(0)")
    for r in range(5): b(f"ds_read_b128 {vr(48+4*r,4)}, v19 offset:{1024*r}")
    for r in range(5):
        b(f"s_waitcnt lgkmcnt({4-r})")
        b(f"buffer_store_dwordx4 {vr(48+4*r,4)}, v{42+r}, s[88:91], s{sOUTO} offen{K2F[OPT.get('outf', 0)]}")
    if OPT.get('rstamps'): stamp(b)
    b("L_fini:")
    if OPT.get('fixspan'):
        b(f"""s_waitcnt vmcnt(0)
        L_fix:
        s_memrealtime s[74:75]
        s_waitcnt lgkmcnt(0)
        s_sub_u32 s74, s74, s72
        s_cmp_lt_u32 s74, {OPT['fixspan'] * 100}
        s_cbranch_scc1 L_fix""")
    stamp_dump(b, 0, sWAVE)
    b("s_endpgm")
    b(f"""L_chk:
    s_waitcnt vmcnt(48)
    s_sub_u32 s{sO2}, s{sO2}, {28*122880}
    s_sub_u32 s{sW2}, s{sW2}, {28*36864}
    v_cmp_gt_u32 vcc, 4, v6
    s_cbranch_vccz L_chkd
    s_mov_b32 s37, 0
    L_poll:
    s_sleep 4
    buffer_load_dword v6, v{VP2}, s[{SCN}:{SCN+3}], 0 offen sc1
    s_add_u32 s37, s37, 1
    s_waitcnt vmcnt(0)
    v_cmp_gt_u32 vcc, 4, v6
    s_cbranch_vccz L_chkd
    s_cmp_lt_u32 s37, 0x20000
    s_cbranch_scc1 L_poll
    s_branch L_chkd
    L_lateld:
    s_mov_b32 s{SO2+2}, s100
    s_mov_b32 s{SW2+2}, s101
    s_mul_i32 s{sO2}, s{sWAVE}, {32*122880}
    s_mul_i32 s{sW2}, s{sWAVE}, {32*36864}
    s_mov_b32 s{sLATE}, 2
    s_mov_b32 s37, 0
    L_esp:
    s_sleep 4
    buffer_load_dword v{VCW}, v{VPE}, s[{SCN}:{SCN+3}], 0 offen sc1
    s_add_u32 s37, s37, 1
    s_waitcnt vmcnt(0)
    v_cmp_gt_u32 vcc, v{VTH}, v{VCW}
    s_cbranch_vccz L_espd
    s_cmp_lt_u32 s37, 0x20000
    s_cbranch_scc1 L_esp
    L_espd:""")
    for s_ in range(4): b.ext(p2_w(s_) + p2_o(s_) + p2_adv(s_))
    b(f"""s_waitcnt vmcnt(0)
    s_cmp_eq_u32 s{sWAVE}, 3
    s_cbranch_scc1 L_p2s3
    s_branch L_p2s4
    L_redo:
    s_mov_b32 s{sSAFE}, 1
    s_waitcnt vmcnt(0)
    s_barrier""")
    prologue_a(b)
    b.ext(x_dma(0, 4)); b.ext(w_dma(0, 4))
    b("s_branch L_late")

def kernel1():
    b = B()
    b("attn_kernel:")
    b("s_cmp_ge_u32 s2, 256\ns_cbranch_scc1 L_end1")
    if OPT['stamps']: b("s_mov_b32 s96, 0\nv_mov_b32 v14, 0\nv_mov_b32 v15, 0")
    stamp(b)
    if OPT.get('fixspan'): b("s_memrealtime s[72:73]\ns_waitcnt lgkmcnt(0)")
    b("s_load_dwordx16 s[48:63], s[0:1], 0\ns_load_dwordx4 s[64:67], s[0:1], 64\ns_load_dwordx2 s[100:101], s[0:1], 96\ns_load_dwordx4 s[76:79], s[0:1], 80")
    b(f"""s_mov_b32 s97, s2
    s_and_b32 s3, s2, 7
    s_lshr_b32 s2, s2, 3""")
    warm_code(b)
    b(f"""v_lshrrev_b32 v1, 6, v0
    s_bfe_u32 s68, s3, {0x10001 if OPT.get('map') else 0x10000}
    s_lshl_b32 s68, s68, 2
    s_and_b32 s69, s2, 3
    s_add_u32 s68, s68, s69        ; b
    v_readfirstlane_b32 s{sWAVE}, v1
    s_bfe_u32 s69, s3, {0x10000 if OPT.get('map') else 0x10001}
    s_lshl_b32 s69, s69, 3
    s_lshr_b32 s70, s2, 2
    s_add_u32 s69, s69, s70        ; hp
    s_lshr_b32 s3, s3, 2           ; blk
    s_lshl_b32 s{sWB}, s{sWAVE}, 12
    s_lshl_b32 s{sXB}, s{sWAVE}, 13
    s_mov_b32 s{sC}, {CSCALE}
    s_mov_b32 s{sC+1}, {CSCALE}
    s_mov_b32 s{sSAFE}, 0
    s_mov_b32 s{sFLAG}, 0""")
    prologue_a(b)
    b(f"""s_cmp_eq_u32 s3, 0
    s_waitcnt lgkmcnt(0)
    s_cselect_b64 s[48:49], s[48:49], s[58:59]
    s_cselect_b64 s[50:51], s[50:51], s[60:61]
    s_cselect_b64 s[52:53], s[52:53], s[62:63]
    s_cselect_b64 s[54:55], s[54:55], s[64:65]
    s_cselect_b64 s[56:57], s[56:57], s[66:67]""")
    if OPT.get('sstamps'): stamp(b)
    b(f"""s_mul_i32 s71, s68, 276480
    s_add_u32 s{SX}, s48, s71
    s_addc_u32 s{SX+1}, s49, 0
    s_mov_b32 s{SX+2}, 276480
    s_mov_b32 s{SX+3}, 0x20000
    s_lshl_b32 s71, s69, 9
    s_add_u32 s{SW}, s54, s71
    s_addc_u32 s{SW+1}, s55, 0
    s_sub_u32 s{SW+2}, 4718592, s71
    s_mov_b32 s{SW+3}, 0x20000""")
    b("L_srdok:")
    prologue_b(b)
    b(f"""s_cmp_eq_u32 s{sWAVE}, 3
    s_cbranch_scc1 L_begin3""")
    wave_code(b, 4, "4")
    b(".p2align 6")
    wave_code(b, 3, "3")
    b("L_phase2:")
    phase2(b)
    b("L_end1:\ns_endpgm\nL_codeend:")
    return b.L

def resolve_waits(L):
    out = []
    for i, x in enumerate(L):
        if x.startswith("WAITL"):
            tag = x.split()[1]
            n, T = tag[1:].split('.'); T = int(T)
            dst = set(range(AW + 8 * (T % 4), AW + 8 * (T % 4) + 8))
            cnt = 0; found = False
            for y in reversed(out):
                if y.startswith(("s_waitcnt", "WAITV")) and "lgkmcnt(0)" in y:
                    found = True; cnt = None; break
                if y.startswith("ds_"):
                    I = Ins(y)
                    if any(k == 'a' and r in dst for k, r in I.wr) or (T == 0 and 'need=X' in y):
                        found = True; break
                    cnt += 1
            assert found, x
            if cnt is not None:
                cnt = min(cnt, 15)
                out.append(f"s_waitcnt lgkmcnt({cnt})")
        else: out.append(x)
    return out

def expand_trace(L):
    def shift(line, name, it, step):
        if it == 0: return line
        def rep(m):
            k, n = m.group(1), int(m.group(2))
            if name == 'qp':
                if k == 'W': return f"W{n + step*it}"
                if k == 'X': return f"X{n + step*it//2}"
                return m.group(0)
            if k == 'KV': return f"KV{n + step*it}"
            return m.group(0)
        if ';' not in line: return line
        a, c = line.split(';', 1)
        return a + ';' + re.sub(r'\b(KV|W|X)(\d+)\b', rep, c)
    bodies = {}
    def go(i, stop):
        res = []
        while i < len(L):
            x = L[i]
            if x.startswith("LOOPBEGIN"):
                _, name, cnt, step = x.split(); cnt = int(cnt); step = int(step)
                body, j = go(i + 1, name)
                bodies[name] = (body, cnt, step)
                for it in range(cnt):
                    for y in body:
                        if y == f"LOOPEXIT {name}":
                            if it == cnt - 1: break
                            continue
                        res.append(shift(y, name, it, step))
                i = j + 1; continue
            if x.startswith("REPLAY"):
                _, name, off, cnt = x.split(); cnt = int(cnt); body, _, step = bodies[name]
                for it in range(cnt):
                    for y in body: res.append(shift(shift(y, name, it, step), name, 1, int(off)))
                i += 1; continue
            if x.startswith("LOOPEND") and x.split()[1] == stop: return res, i
            res.append(x); i += 1
        return res, i
    return go(0, None)[0]

def resolve_vm(L):
    idx = [f"{x} ;#{i}" if x.startswith("WAITV") else x for i, x in enumerate(L)]
    tr = expand_trace(idx)
    q = []; best = {}
    for x in tr:
        if x.startswith(("L_maxpass", "L_hspin", "L_espin")): break
        c = x.split(';', 1)[1] if ';' in x else ''
        if x.startswith(("buffer_", "global_")):
            if 'cond' in c: continue
            m = re.search(r'tag=(\w+)', c); q.append(m.group(1) if m else 'other')
        elif x.startswith("WAITV"):
            tags = set(re.search(r'cover=([\w,]*)', c).group(1).split(','))
            i = int(x.rsplit('#', 1)[1])
            n = 0
            for t in reversed(q):
                if t in tags: break
                n += 1
            else: n = 63
            m = re.search(r'cap=(\d+)', c)
            best[i] = min(best.get(i, 63), n, int(m.group(1)) if m else 63)
    out = []
    for i, x in enumerate(L):
        if x.startswith("WAITV"):
            a, c = x.split(';', 1)
            out.append(f"s_waitcnt vmcnt({best[i]}) {a[5:].strip()} ;{c}")
        else: out.append(x)
    return out

def check_protocol(L, label):
    tr = expand_trace(L)
    q = []; done = set(); issued = {}; pub = set(); errs = 0
    for x in tr:
        if x.startswith(("L_maxpass", "L_hspin", "L_espin")): break
        c = x.split(';', 1)[1] if ';' in x else ''
        if x.startswith("buffer_") or x.startswith("global_"):
            if 'cond' in c: continue
            m = re.search(r'tag=(\w+)', c); q.append(m.group(1) if m else 'other')
        elif x.startswith("s_waitcnt"):
            m = re.search(r'vmcnt\((\d+)\)', x)
            if m:
                n = int(m.group(1))
                while len(q) > n: done.add(q.pop(0))
            m = re.search(r'needtag=(\w+)', c)
            if m and m.group(1) in q: print(label, "ERR needtag", x); errs += 1
        elif x.startswith("s_barrier") or 'SYNC' in c:
            m = re.search(r'pub=([\w,]*)', c)
            if m:
                for t in m.group(1).split(','):
                    if not t: continue
                    if t in q or (t not in done and not (label == 'w3' and t[0] in 'XW')): print(label, "ERR publish not landed", t, x); errs += 1
                    pub.add(t)
        elif x.startswith("ds_read"):
            m = re.search(r'need=(\w+)', c)
            if m and m.group(1) not in pub : print(label, "ERR read unpublished", x); errs += 1
        assert len(q) <= 63, ("vmcnt overflow", x)
    return errs

def burn(L):
    out = []; on = False; c = 0; k = 0
    for x in L:
        if x == 'BURNON': on = True; c = 0; continue
        if x == 'BURNOFF': on = False; continue
        out.append(x)
        if on and OPT.get('burn'):
            if x.startswith('v_mfma'): c = 0
            elif x.startswith('v_'):
                c += 1
                if c >= OPT['burn']:
                    c = 0; k += 1
                    out.append(f"{MF} v[4:7], a[{32+4*(k%8)}:{35+4*(k%8)}], a[{96+4*(k%7)}:{99+4*(k%7)}], v[4:7]")
    return out

def check_lgkm(L, label):
    dq = []; vq = []; errs = 0; cache = {}
    for x in expand_trace(L):
        if x.startswith(("L_maxpass", "L_hspin", "L_espin")): break
        t = x.split(';')[0].strip()
        I = cache.get(t)
        if I is None: I = cache[t] = Ins(t)
        if I.kind == 'label': continue
        if I.op == 's_waitcnt':
            m = re.search(r'lgkmcnt\((\d+)\)', t)
            if m:
                while len(dq) > int(m.group(1)): dq.pop(0)
            m = re.search(r'vmcnt\((\d+)\)', t)
            if m:
                while len(vq) > int(m.group(1)): vq.pop(0)
            continue
        use = I.rd | I.srcc | I.wr
        for w in dq + vq:
            if w & use: print(label, "ERR uncovered", x); errs += 1; break
        if I.kind in ('dsr', 'dsw'): dq.append(I.wr)
        if I.kind in ('vload', 'vstore', 'dma') and 'cond' not in x: vq.append(I.wr)
    return errs

def finish(L):
    L = burn(L)
    L = resolve_waits(L)
    return L

def strip_markers(L):
    return [x for x in L if not x.startswith(("LOOPBEGIN", "LOOPEND", "LOOPEXIT", "REPLAY"))]

DESC = """.section .rodata,"a"
.p2align 6
.amdhsa_kernel {name}
  .amdhsa_next_free_vgpr {vgpr}
  .amdhsa_next_free_sgpr 102
  .amdhsa_accum_offset 256
  .amdhsa_group_segment_fixed_size 0
  .amdhsa_kernarg_size 104
  .amdhsa_user_sgpr_count 2
  .amdhsa_user_sgpr_kernarg_segment_ptr 1
  .amdhsa_system_sgpr_workgroup_id_x 1
  .amdhsa_float_denorm_mode_32 3
.end_amdhsa_kernel
"""

def build(**kw):
    OPT.update(kw)
    k1 = finish(kernel1())
    i4 = k1.index("L_begin4:"); i3 = k1.index("L_begin3:"); iv = k1.index("L_phase2:")
    ip = k1.index("L_srdok:"); pre = k1[ip:i4]
    k1 = k1[:i4] + resolve_vm(pre + k1[i4:i3])[len(pre):] + resolve_vm(pre + k1[i3:iv])[len(pre):] + k1[iv:]
    e = check_protocol(pre + k1[i4:i3], "w4") + check_protocol(pre + k1[i3:], "w3")
    e += check_lgkm(pre + k1[i4:i3], "w4") + check_lgkm(pre + k1[i3:], "w3")
    assert e == 0 or OPT.get('nocheck')
    k1 = strip_markers(k1)
    k1, n1, p1 = fix_hazards(k1)
    for p in p1: print("BRANCH HAZARD", p)
    assert not p1
    hdr = open("ref.txt").read().split("; Override")[0]
    KN = NAME + "_kernel"
    k1 = [x.replace("attn_kernel", KN) for x in k1]
    out = hdr
    out += "; generated by my own schedule generator: q-projection + attention (2 heads per workgroup), hand-off, output projection\n"
    out += ("; @launch kernel=%s grid=(256,1,1) block=(256,1,1) lds=163840\n" % KN) if OPT.get('list') else "; @launch grid=(256,1,1) block=(256,1,1) lds=163840\n"
    out += '.amdgcn_target "amdgcn-amd-amdhsa--gfx950"\n.text\n'
    out += ".globl %s\n.p2align 8\n.type %s,@function\n" % (KN, KN) + "\n".join(k1) + "\n"
    out += DESC.format(name=KN, vgpr=512)
    return out, n1

if __name__ == "__main__":
    kw = {}
    for a in sys.argv[2:]:
        k, v = a.split('='); kw[k] = int(v)
    s, info = build(**kw)
    open(sys.argv[1], "w").write(s)
    print("nops inserted", info, "bytes", len(s))
```

```python
import sys, re
from asmlib import fix_hazards, Ins

NAME = "concat_heads__mha_block_cached__mha_block_cached__near_ridge"
MF = "v_mfma_f32_16x16x32_bf16"
CSCALE = 0x3e0293ee
LTHR = 0x4e800000

O_BLK = 128 * 122880
WOT_OFF = 2 * O_BLK
WOT_BLK = 128 * 36864
CNT_OFF = WOT_OFF + 2 * WOT_BLK

class B:
    def __init__(self): self.L = []
    def __call__(self, s):
        for x in s.split("\n"):
            x = x.strip()
            if x: self.L.append(x)
    def ext(self, l): self.L.extend(l)

def vr(b, n): return f"v[{b}:{b+n-1}]"
def ar(b, n): return f"a[{b}:{b+n-1}]"

def emit_slots(b, slots, gaps):
    for i, s in enumerate(slots):
        if s: b(s)
        nv = [x for x in gaps[i] if not x.startswith('v_')]
        v = [x for x in gaps[i] if x.startswith('v_')]
        for x in nv + v: b(x)

S_ = 16; P_ = 48; CI = 64; LS = 80
KA = 84
VA = 88
VWA = 105
DK0 = 96; DK1 = 97; DV0 = 98; DV1 = 99
VO = 100
VWO = 101
VWX = 102
VLN = 103
VPF = 104
VPD = 105
T0 = 108
O_ = 128
XA = 16; WA = 28; DX = 20; DW = 24
WSLOT = [49152, 114688, 131072, 147456]; sKB = 69
def AQ(q): return 32 + 64 * (q // 2) + 16 * (q % 2)
def AQ2(q): return 128 + 16 * q
AK = 0; AV = 64; ASP = 64
AX = 0; AW = 64
SX = 4; SW = 8; SK = 12; SV = 16; SO = 20; SWO = 24; SWT = 28
sWAVE = 32; sWB = 33; sKV = 34; sCNT = 35; sHEAD = 36; sSAFE = 37; sFLAG = 38
sXO = 39; sXO2 = 40; sWOFF = 41; sXB = 42; sOO = 43; sC = 44
sT = 46
sH0 = 68; sWOS = 64; sWTS = 65; sSTAMP = 72; SPF = 76; sPF = 68; sWXS = 67; sROT = 80; sLIN = 81
SCN = 48; SDB = 52; SO2 = 56; sCO = 60; sCW = 61; SIN = 84; SIF = 88; sOUT = 76; VHS = 106; VCW = 107; VONE = 104
SW2 = 80; sO2 = 98; sW2 = 99; sOUTO = 66; sOP = 41; VPE = 11; VTH = 12; VP2 = 13; VWE = 10; AST = 192; sSIG = 78; sLATE = 79; sIDLE = 67; sFV = 39; VFA = 1; VFB = 101; FQ = 80; FLAGS = 131072 + 7168 + 32

OPT = dict(nt_kv=1, nt_w=0, nt_x=0, nt_wo=0, stamps=0, warm=1, of=2, of0=2, e67=1, bal=0, wts=1, sw2=2)

K2F = ['', ' nt', ' sc1', ' sc0 sc1', ' sc0', ' sc1 nt', ' sc0 sc1 nt']
def fl(k): return ["", " nt", " sc1 nt", " sc0 sc1 nt", " sc0 nt"][OPT[k]]

def dma(voff, srd, soff, off, flag, tag):
    return f"buffer_load_dwordx4 v{voff}, s[{srd}:{srd+3}], {soff} offen offset:{off}{flag} lds ; tag={tag}"

def kv_adv():
    if not OPT.get('rot'): return [f"s_add_u32 s{sKV}, s{sKV}, 8192"]
    return [f"s_add_u32 s{sLIN}, s{sLIN}, 8192", f"s_add_u32 s{sKV}, s{sLIN}, s{sROT}",
            f"s_and_b32 s{sKV}, s{sKV}, 0x3ffff", f"s_and_b32 s{sT+1}, s{sLIN}, 0xfffc0000", f"s_or_b32 s{sKV}, s{sKV}, s{sT+1}"]

def k_dma(tile, so=None):
    so = so or f"s{sKV}"
    return [f"s_add_u32 m0, s{sKB}, {(tile % 8) * 8192}",
            dma(DK0, SK, so, 0, fl('nt_kv'), f"KV{tile}"), dma(DK1, SK, so, 1024, fl('nt_kv'), f"KV{tile}")]
def v_dma(tile, so=None):
    so = so or f"s{sKV}"
    return [f"s_add_u32 m0, s{sKB}, {65536 + (tile % 8) * 8192}",
            dma(DV0, SV, so, 0, fl('nt_kv'), f"KV{tile}"), dma(DV1, SV, so, 1024, fl('nt_kv'), f"KV{tile}")]

def x_dma(m, nq):
    slot = 16384 if m % 2 else 81920
    out = []
    out.append(f"s_add_u32 m0, s{sXB}, {slot}")
    for j in range(4): out.append(dma(DX + j, SX, f"s{sXO}", 1024 * j, fl('nt_x'), f"X{m}"))
    out.append(f"s_add_u32 m0, s{sXB}, {slot + 4096}")
    for j in range(4 if nq == 4 else 2): out.append(dma(DX + j, SX, f"s{sXO2}", 1024 * j, fl('nt_x'), f"X{m}"))
    out.append(f"s_add_u32 s{sXO}, s{sXO}, 128")
    out.append(f"s_add_u32 s{sXO2}, s{sXO2}, 128")
    return out

def w_dma(n, nq):
    out = [f"s_add_u32 m0, s{sWB}, {WSLOT[n % 4]}"]
    for j in range(4): out.append(dma(DW + j, SW, f"s{sWOFF}", 1024 * j, fl('nt_w'), f"W{n}"))
    if n % 2 == 0: out.append(f"s_add_u32 s{sWOFF}, s{sWOFF}, 256")
    else: out.append(f"s_add_u32 s{sWOFF}, s{sWOFF}, {524288 - 256}")
    return out

def w_reads(n, T):
    sp_, a = T // 2, T % 2
    hl, sp = sp_ // 2, sp_ % 2
    out = []
    for s in range(2):
        for a2 in range(2):
            d = AW + 8 * (T % 4) + 4 * s + 2 * a2
            off = max(n % 4 - 1, 0) * 16384 + hl * 8192 + (32 * s + 4 * a2) * 128 + 8 * a
            out.append(f"ds_read_b64_tr_b16 {ar(d,2)}, v{WA + sp + (2 if n % 4 else 0)} offset:{off} ; need=W{n}")
    return out

def x_reads(m, nq):
    out = []
    for q in range(nq):
        for s in range(2):
            d = AX + 32 * (m % 2) + 8 * q + 4 * s
            out.append(f"ds_read_b128 {ar(d,4)}, v{XA + s + (0 if m % 2 else 2)} offset:{q * 2048} ; need=X{m}")
    return out

def qacc(hd, q, T):
    r = 128 + 32 * q + 4 * T
    return vr(r, 4) if hd == 0 else ar(r, 4)

def pf_load():
    return f"buffer_load_dword v{VPD}, v{VPF}, s[{SPF}:{SPF+3}], s{sPF} offen nt ; tag=PF"

def wo_dma():
    out = []
    for r in range(2):
        out.append(f"s_add_u32 m0, s{sWOS}, {4096*r}")
        for j in range(4):
            out += [f"PRE s_mov_b32 s{sT}, {8192*j + 512*r}", dma(VWO, SWO, f"s{sT}", 1024 * j, fl('nt_wo'), "WO")]
    out += [f"s_mov_b32 m0, s{sWTS}", dma(VWX, SWO, "0", 0, fl('nt_wo'), "WO")]
    return out
WOF = 32
def wo_reads():
    out = [f"ds_read_b64_tr_b16 {vr(WOF+16*r+4*tl+2*a,2)}, v{VWA} offset:{4096*r + 2048*a + 32*tl}" for r in range(2) for tl in range(4) for a in range(2)]
    return out + [f"ds_read_b64_tr_b16 {vr(WOF+32+2*a,2)}, v{VWE} offset:{512*a}" for a in range(2)]
def wo_stores():
    out = []
    for r in range(2):
        out.append(f"PRE s_add_u32 s{sT}, s{sWB}, {16384*r}")
        out += [f"buffer_store_dwordx4 {vr(WOF+16*r+4*tl,4)}, v{VLN}, s[{SWT}:{SWT+3}], s{sT} offen offset:{1024*tl} sc1 ; tag=WT" for tl in range(4)]
    out += [f"PRE s_lshl_b32 s{sT}, s{sWAVE}, 10", f"PRE s_add_u32 s{sT}, s{sT}, 32768",
            f"buffer_store_dwordx4 {vr(WOF+32,4)}, v{VLN}, s[{SWT}:{SWT+3}], s{sT} offen sc1 ; tag=WT"]
    return out

QSPINS = []; QF = 68; QFA = 72; QFB = 73; sFQ = 35; QFLAGS = 112640
def qproj_stage(b, n, nq, fill=None):
    hd, m = n % 2, n // 2
    nx = 8 if nq == 4 else 6
    slots = []; gaps = [[] for _ in range(64)]
    for T in range(8):
        for q in range(4):
            for s in range(2):
                if q >= nq: slots.append(None); continue
                acc = qacc(hd, q, T)
                c = "0" if (m == 0 and s == 0) else acc
                slots.append(f"{MF} {acc}, {ar(AW+8*(T%4)+4*s,4)}, {ar(AX+32*(m%2)+8*q+4*s,4)}, {c}")
    start = {3: 5, 4: 12, 5: 19, 6: 26, 7: 33}
    rd = w_reads(n, 2); gaps[0].append(rd[3])
    for T, g in start.items():
        for i, x in enumerate(w_reads(n, T)): gaps[g + i].append(x)
    FSQ = OPT.get('fsq') and n < 15
    if n < 17:
        for T, g in (((0, 53), (1, 57)) if FSQ else ((0, 45), (1, 53))):
            for i, x in enumerate(w_reads(n + 1, T)): gaps[g + i].append(x)
        for i, x in enumerate(w_reads(n + 1, 2)[:3]): gaps[61 + i].append(x)
    xr = []
    if n % 2 == 1 and m + 1 <= 8:
        xr = x_reads(m + 1, nq)
        for x, g in zip(xr, (9, 10, 16, 17, 23, 24, 30, 31) if not (n == 1 and OPT.get('x1late')) else (49, 50, 51, 52, 57, 58, 59, 60)): gaps[g].append(x)
    for T in range(1, 8): gaps[8 * T - 1].append(f"WAITL W{n}.{T}")
    if n < 17: gaps[63].append(f"WAITL W{n+1}.0")
    req = []
    if n + 1 <= 17: req.append(f"W{n+1}")
    if n % 2 == 0 and m + 1 <= 8 and not (n == 0 and OPT.get('x1late')): req.append(f"X{m+1}")
    if n == 1 and OPT.get('x1late'): req.append("X1")
    if n == 17: req += ["KV0", "KV1"]
    cov = list(req)
    if nq == 3 and n == 2:
        cov.append("INIT")
        gaps[55].append(f"buffer_store_dword v{VONE}, v{VLN}, s[{SIF}:{SIF+3}], 0 offen sc1 ; tag=FLAG")
    if nq == 3 and n == 12:
        gaps[45].append(f"buffer_load_dword v{VHS}, off, s[{SDB}:{SDB+3}], 0 ; tag=HS")
    if n == 17 and OPT.get('fsa'):
        gaps[36] += [f"s_mov_b32 s{sFV}, 0", f"v_mov_b32 v{VFB}, {FLAGS}", f"v_mov_b32 v{FQ}, 0"]
        gaps[37] += [f"v_lshl_add_u32 v{VFA}, s{sWAVE}, 2, v{VFB}"]
        gaps[39] += [f"ds_write_b32 v{VFA}, v{FQ}"]
    if FSQ:
        uid = f"q{n}_{nq}"
        gaps[42] += [f"s_add_u32 s{sFQ}, s{sFQ}, 1", f"v_mov_b32 v{QF}, s{sFQ}"]
        gaps[43] += ["WAITV lgkmcnt(0) ; cover=" + ",".join(cov), f"ds_write_b32 v{QFA}, v{QF}"]
        gaps[47].append(f"ds_read_b128 {vr(QF,4)}, v{QFB}")
        gaps[50] += ["s_waitcnt lgkmcnt(0)", f"v_min3_u32 v{QF}, v{QF}, v{QF+1}, v{QF+2}"]
        gaps[51].append(f"v_min_u32 v{QF}, v{QF}, v{QF+3}")
        gaps[52].append(f"v_cmp_gt_u32 vcc, s{sFQ}, v{QF}\ns_cbranch_vccnz L_fs{uid}\nL_fr{uid}: ; SYNC pub=" + ",".join(req))
        QSPINS.append(uid)
    else:
        gaps[43].append("WAITV lgkmcnt(0) ; cover=" + ",".join(cov))
        gaps[44].append("s_barrier ; pub=" + ",".join(req))
    def place(seq, first, step):
        g = first
        for x in seq:
            if x.startswith("buffer_"): gaps[g].append(x); g += step
            elif x.startswith(("s_add_u32 m0", "s_mov_b32 m0")): gaps[g - 1].append(x)
            elif x.startswith("PRE "): gaps[g - 1].append(x[4:])
            else: gaps[min(g - step + 1, 63)].append(x)
    if n == 0 and OPT.get('x2late'): place(w_dma(2, nq) + w_dma(3, nq), 2, 5)
    elif n == 1 and OPT.get('x2late'): place(x_dma(2, nq), 2, 4)
    elif n == 0: place(w_dma(2, nq) + w_dma(3, nq) + x_dma(2, nq), 1, 2)
    elif n % 2 == 0 and m + 2 <= 8: place(x_dma(m + 2, nq), 2, 5)
    def single(kind, i_):
        if kind == 'wo':
            if i_ == 8: return [f"s_mov_b32 m0, s{sWTS}", None, dma(VWX, SWO, "0", 0, fl('nt_wo'), "WO")]
            r, j_ = i_ // 4, i_ % 4
            return [f"s_add_u32 m0, s{sWOS}, {4096*r}", f"s_mov_b32 s{sT}, {8192*j_ + 512*r}", dma(VWO, SWO, f"s{sT}", 1024 * j_, fl('nt_wo'), "WO")]
        t, j_ = i_ // 4, i_ % 4
        d_ = (k_dma if j_ < 2 else v_dma)(t, f"s{sT}")
        return [d_[0], f"s_mov_b32 s{sT}, {8192*t}", d_[1 + j_ % 2]]
    if OPT.get('slowpos', 0):
        R0 = 9
        sched_ = {2: [('wo', 0), ('wo', 1), ('wo', 2)], 4: [('wo', 3), ('wo', 4), ('wo', 5)], 6: [('wo', 6), ('wo', 7), ('wo', 8)],
                  10: [('kv', i_) for i_ in range(4)], 12: [('kv', i_) for i_ in range(4, 8)]}
        for (kind, i_) in sched_.get(n, []):
            gaps[63] += [x for x in single(kind, i_) if x]
    else:
        W0 = 1; R0 = W0 + 7
        sched_ = {W0 + i_ // 2: [] for i_ in range(9)}
        for i_ in range(8 if OPT.get('fsq') else 9): sched_[W0 + i_ // 2].append(('wo', i_))
        if not OPT.get('late'):
            for i_ in range(8): sched_.setdefault(R0 + 2 + i_ // 2, []).append(('kv', i_))
        for (kind, i_), g in zip(sched_.get(n, []), (39, 42) if (n % 2 == 0 or OPT.get('stpos', 0) or (n == 1 and OPT.get('x2late'))) else (12, 32)):
            m0_, so_, ld_ = single(kind, i_)
            gaps[g - 1].append(m0_)
            if so_: gaps[g - 1].append(so_)
            gaps[g].append(ld_)
    if n == 13: gaps[62].append(f"s_mov_b32 s{sKV}, 16384")
    if n in (R0, R0 + 1):
        rd = wo_reads()
        if OPT.get('fsq'): rd = rd[:16]
        if n == R0:
            gaps[44].append("WAITV ; cover=WO")
            for x, g in zip(rd[:8], [44, 45, 46, 48, 49, 51, 52, 52] if FSQ else [49, 50, 51, 52, 57, 58, 59, 60]): gaps[g].append(x)
        else:
            for x, g in zip(rd[8:], [1, 2, 3, 4, 11, 18, 25, 37, 38, 39]): gaps[g].append(x)
    for i_ in range(0 if OPT.get('wts') else 9):
        if OPT.get('slowpos', 0):
            if n != (10, 10, 12, 12, 14, 14, 14, 16, 16)[i_]: continue
            t_ = [f"s_add_u32 s{sT+1}, s{sWB}, {16384*(i_//4)}"] if i_ < 8 else [f"s_lshl_b32 s{sT+1}, s{sWAVE}, 10", f"s_add_u32 s{sT+1}, s{sT+1}, 32768"]
            gaps[62] += t_ + [f"buffer_store_dwordx4 {vr(WOF+4*i_,4)}, v{VLN}, s[{SWT}:{SWT+3}], s{sT+1} offen offset:{1024*(i_%4) if i_ < 8 else 0} sc1 ; tag=WT"]
            continue
        r, tl = i_ // 4, i_ % 4
        if OPT.get('stpos', 0):
            if n != (9, 9, 11, 11, 13, 13, 15, 15, 15)[i_]: continue
            g = (8, 10, 2, 4, 2, 4, 2, 4, 7)[i_]
        else:
            if n != min(R0 + 1 + i_, 17 - (1 if i_ < 8 else 0)) : continue
            g = 62 if not any('tag=WT' in x for x in gaps[62]) else 48
        if i_ < 8: gaps[g - 1].append(f"s_add_u32 s{sT+1}, s{sWB}, {16384*r}")
        else: gaps[g - 2].append(f"s_lshl_b32 s{sT+1}, s{sWAVE}, 10"); gaps[g - 1].append(f"s_add_u32 s{sT+1}, s{sT+1}, 32768")
        gaps[g].append(f"buffer_store_dwordx4 {vr(WOF+4*i_,4)}, v{VLN}, s[{SWT}:{SWT+3}], s{sT+1} offen offset:{1024*tl if i_ < 8 else 0}{K2F[OPT.get('wtf', 2)]} ; tag=WT")
    if n == 14 and OPT.get('late'):
        place([f"PRE s_mov_b32 s{sT}, 0"] + k_dma(0, f"s{sT}") + v_dma(0, f"s{sT}") + [f"PRE s_mov_b32 s{sT}, 8192"] + k_dma(1, f"s{sT}") + v_dma(1, f"s{sT}"), 2, 5)
    if n in ((15, 16) if OPT.get('late') else (14, 16)):
        seq = []
        for t in range(2, 6):
            seq += [f"PRE s_add_u32 s{sT}, s{sKV}, {(t - 2) * 8192}"] + (k_dma if n < 16 else v_dma)(t, f"s{sT}")
        if n == 16: seq.append(f"s_add_u32 s{sKV}, s{sKV}, 32768")
        place(seq, 2, 5)
    if n == 17 and OPT.get('e67'):
        place(k_dma(6) + [f"PRE s_add_u32 s{sT}, s{sKV}, 8192"] + k_dma(7, f"s{sT}"), 4, 9)
        place(v_dma(6) + v_dma(7, f"s{sT}") + [f"s_add_u32 s{sKV}, s{sKV}, 16384"], 47, 4)
    if OPT.get('awake') and n % 2 == 1 and 3 <= n <= 11:
        seq = []
        for t in range(OPT['awake']):
            seq += [f"PRE s_add_u32 s{sPF}, s{sPF}, 8192"] + k_dma(t % 2, f"s{sPF}") + v_dma(t % 2, f"s{sPF}")
        seq = [x.replace('tag=KV0', 'tag=DUM').replace('tag=KV1', 'tag=DUM') for x in seq]
        place(seq, 2, 40 // (4 * OPT['awake']))
    if OPT.get('awake') and n == 13:
        place([f"PRE s_mov_b32 s{sPF}, 0"] + k_dma(0, f"s{sPF}") + v_dma(0, f"s{sPF}") + [f"PRE s_mov_b32 s{sPF}, 8192"] + k_dma(1, f"s{sPF}") + v_dma(1, f"s{sPF}"), 2, 5)
    if n + 4 <= 17: place(w_dma(n + 4, nq), *((54, 3) if FSQ else (46, 5)))
    for i_ in range(OPT.get('qslow', 0)): gaps[2 + 2 * i_].append('v_nop\nv_nop\nv_nop\nv_nop\nv_nop\nv_nop')
    if fill is not None:
        for g in range(20 if n == 16 else 0, 64):
            if slots[g] is None: continue
            for _ in range(2):
                if fill: gaps[g].append(fill.pop(0))
    emit_slots(b, slots, gaps)
    if OPT.get('qstamps'): stamp(b)

def k_reads(unit, tile):
    out = []
    for kt in range(2):
        for s in range(4):
            f = 4 * kt + s
            out.append(f"ds_read_b128 {ar(AK+4*f,4)}, v{KA + s} offset:{unit * 8192 + kt * 4096} ; need=KV{tile}")
    return out

def v_reads(unit, tile):
    out = []
    for T in range(8):
        th, tl = T // 4, T % 4
        for a in range(2):
            out.append(f"ds_read_b64_tr_b16 {ar(AV+4*T+2*a,2)}, v{VA + T} offset:{unit * 8192 + a * 4096} ; need=KV{tile}")
    return out

import sched, sched2
LM = 1
for a_ in sys.argv[2:]:
    if a_.startswith('lm='): LM = int(a_[3:])
if LM:
    NS = 68
    V_GAPS = list(range(26, 42)); K_GAPS = list(range(50, 58)); D_GAPS = [3, 11, 17, 23]
    SM = sched2.schedule(V_GAPS + K_GAPS, D_GAPS)
    for a_ in sys.argv[2:]:
        if a_.startswith('dg='): D_GAPS = {1: [3, 7, 33, 38], 2: [4, 8, 34, 40], 3: [3, 8, 36, 56]}[int(a_[3:])]
else:
    NS = 64
    V_GAPS = list(range(25, 41)); K_GAPS = list(range(48, 56)); D_GAPS = [1, 9, 17, 23]
    SM = sched.schedule(4, V_GAPS + K_GAPS, D_GAPS)
BG = K_GAPS[0] - 1
LA = 108; ONES = 124
def sm_text(kind, q, e):
    s = S_ + 8 * q + e
    if kind == 'exp': return f"v_exp_f32 v{s}, v{s}"
    if kind == 'add': return f"v_add_f32 v{LS+q}, v{LS+q}, v{s}"
    return f"v_cvt_pk_bf16_f32 v{P_+4*q+e//2}, v{s-1}, v{s}"
def sm_items(nq, lo, hi):
    it = [(g, k[0] == 'exp', k) for k, g in SM.items() if k[1] < nq and lo <= g < hi]
    it.sort(key=lambda t: (t[0] % NS, t[1], -t[0]))
    return [(g, k) for g, _, k in it]

def qk(q, kt, s, czero=False):
    d = vr(S_ + 8 * q + 4 * kt, 4)
    c = d if s else ("0" if czero else vr(CI + 4 * q, 4))
    return f"{MF} {d}, {ar(AK+4*(4*kt+s),4)}, {ar(AQ(q)+4*s,4)}, {c}"

def pv(q, T, czero=False):
    d = vr(O_ + 32 * q + 4 * T, 4)
    return f"{MF} {d}, {ar(AV+4*T,4)}, {vr(P_+4*q,4)}, {'0' if czero else d}"

def lsm(q, czero=False):
    d = vr(LA + 4 * q, 4)
    return f"{MF} {d}, {vr(ONES,4)}, {vr(P_+4*q,4)}, {'0' if czero else d}"

SPINS = []
def attn_stage(b, k, nq, extra=None, fill=None):
    kk = k % 32; u = k % 8
    slots = []; gaps = [[] for _ in range(NS)]
    for q in (0, 1):
        for kt in range(2):
            for s in range(4): slots.append(qk(q, kt, s))
    for q in (2, 3):
        for T in range(8): slots.append(pv(q, T, kk == 1) if (q < nq and kk > 0) else None)
        if LM: slots.append(lsm(q, kk == 1) if (q < nq and kk > 0) else None)
    for q in (2, 3):
        for kt in range(2):
            for s in range(4): slots.append(qk(q, kt, s) if q < nq else None)
    for q in (0, 1):
        for T in range(8): slots.append(pv(q, T, kk == 0))
        if LM: slots.append(lsm(q, kk == 0))
    for g, key in sm_items(nq, 0, 2 * NS if kk > 0 else NS): gaps[g % NS].append(sm_text(*key))
    for g, x in zip(V_GAPS, v_reads(u, k)): gaps[g].append(x)
    DIST = 7 if OPT.get('d7') else OPT.get('dist', 5 if OPT.get('fsa') else 6)
    if DIST == 7 and k < 63:
        gaps[BG - 1].append(f"WAITV lgkmcnt(0) ; cover=KV{k+1}" + (",WT" if kk == 11 else ""))
        gaps[BG].append(f"s_barrier ; pub=KV{k+1}")
    elif k % 2 == 1 and k < 63 and OPT.get('fsa'):
        uid = f"{k}_{nq}"
        pg = OPT.get('fsp', 30); rg = OPT.get('fsr', 36)
        gaps[pg - 2].append(f"s_add_u32 s{sFV}, s{sFV}, 1")
        gaps[pg - 1].append(f"v_mov_b32 v{FQ}, s{sFV}") if pg - 1 >= 30 or pg < 26 else gaps[pg].append(f"v_mov_b32 v{FQ}, s{sFV}")
        gaps[pg + 1].insert(0, f"WAITV ; cover=KV{k+1},KV{k+2}" + (",WT" if kk == 11 else ""))
        gaps[pg + 1].append(f"ds_write_b32 v{VFA}, v{FQ}")
        gaps[rg].append(f"ds_read_b128 {vr(FQ,4)}, v{VFB}")
        gaps[rg + 3].insert(0, "s_waitcnt lgkmcnt(2)")
        gaps[rg + 3].append(f"v_min3_u32 v{FQ}, v{FQ}, v{FQ+1}, v{FQ+2}")
        gaps[rg + 4].append(f"v_min_u32 v{FQ}, v{FQ}, v{FQ+3}")
        gaps[rg + 5].append(f"v_cmp_gt_u32 vcc, s{sFV}, v{FQ}")
        gaps[rg + 6].insert(0, f"s_cbranch_vccnz L_fs{uid}\nL_fr{uid}: ; SYNC pub=KV{k+1},KV{k+2}")
        gaps[BG].append("s_waitcnt lgkmcnt(0)")
        SPINS.append(uid)
    elif k % 2 == 1 and k < 63:
        gaps[BG - 1].append(f"WAITV lgkmcnt(0) ; cover=KV{k+1},KV{k+2}" + (",WT" if kk == 11 else ""))
        gaps[BG].append(f"s_barrier ; pub=KV{k+1},KV{k+2}")
    else:
        gaps[BG].append("s_waitcnt lgkmcnt(0)")
    if k < 63:
        for g, x in zip(K_GAPS, k_reads((u + 1) % 8, k + 1)): gaps[g].append(x)
        gaps[NS - 1].append("s_waitcnt lgkmcnt(0)")
    if k + DIST < 64 and not (OPT.get('e67') and k + DIST < 8) and not (OPT.get('sw2') and k in (32, 33)):
        kd, vd = k_dma(k + DIST), v_dma(k + DIST)
        gaps[D_GAPS[0] - 1].append(kd[0]); gaps[D_GAPS[2] - 1].append(vd[0])
        for x, g in zip(kd[1:] + vd[1:], D_GAPS): gaps[g].append(x)
        gaps[44] += kv_adv()
    for i_ in range(OPT.get('slow', 0)): gaps[2 + 2 * i_].append('v_nop\nv_nop\nv_nop\nv_nop')
    if extra:
        for g, x in extra: gaps[g].append(x)
    if fill:
        cost = lambda x: 2 if x.startswith('v_exp') else (1 if x.startswith(('v_', 'ds_', 'buffer_')) else 0)
        room = [max(0, 2 - sum(cost(x) for x in gaps[g])) if slots[g] else 0 for g in range(NS)]
        left = len(fill) - sum(room)
        live = [g for g in range(NS) if slots[g]]
        for i_ in range(max(left, 0)): room[live[(i_ * len(live)) // left]] += 1
        for g in range(NS):
            for _ in range(room[g]):
                if fill: gaps[g].append(fill.pop(0))
        assert not fill
    for key, pre in (('nobar', ('s_barrier',)), ('nodma', ('buffer_load_dwordx4 v9',)), ('nolds', ('ds_read',)), ('noexp', ('v_exp',))):
        if OPT.get(key) and 8 <= k < 16: gaps = [[x if not x.startswith(pre) else 's_nop 0 ;' + x.split(';', 1)[-1] for x in g] for g in gaps]
    if OPT.get('astamps') and k % 2 == 0: stamp(b)
    if OPT.get('dmaonly'):
        slots = [None] * NS
        gaps = [[x for x in g if not x.startswith(('v_', 'ds_'))] for g in gaps]
    emit_slots(b, slots, gaps)

def xlane_reduce(b, reg, tmp, op):
    b(f"v_mov_b32 v{tmp}, v{reg}")
    b(f"v_permlane32_swap_b32 v{reg}, v{tmp}")
    b(f"{op} v{reg}, v{reg}, v{tmp}")
    b(f"v_mov_b32 v{tmp}, v{reg}")
    b(f"v_permlane16_swap_b32 v{reg}, v{tmp}")
    b(f"{op} v{reg}, v{reg}, v{tmp}")

def xlane_reduce_multi(b, regs, tmps, op):
    for sw in ("v_permlane32_swap_b32", "v_permlane16_swap_b32"):
        for r, t in zip(regs, tmps): b(f"v_mov_b32 v{t}, v{r}")
        for r, t in zip(regs, tmps): b(f"{sw} v{r}, v{t}")
        for r, t in zip(regs, tmps): b(f"{op} v{r}, v{r}, v{t}")

def stamp(b, idx=None):
    if not OPT['stamps']: return
    b(f"s_memtime s[{sSTAMP}:{sSTAMP+1}]\ns_memrealtime s[{sSTAMP+2}:{sSTAMP+3}]\ns_waitcnt lgkmcnt(0)")
    b(f"s_mov_b32 s95, m0\ns_mov_b32 m0, s96\nv_writelane_b32 v14, s{sSTAMP}, m0\nv_writelane_b32 v15, s{sSTAMP+2}, m0\ns_mov_b32 m0, s95\ns_add_u32 s96, s96, 1")

def stamp_dump(b, k, wave):
    if not OPT['stamps']: return
    b("s_waitcnt vmcnt(0)")
    stamp(b)
    if OPT['stamps'] == 2:
        b("s_load_dwordx2 s[92:93], s[0:1], 88\ns_waitcnt lgkmcnt(0)")
        b(f"s_cmp_lg_u32 s{wave}, 0\ns_cbranch_scc1 L_end{k+1}\ns_lshr_b32 s94, s97, 3\ns_cmp_lg_u32 s94, 5\ns_cbranch_scc1 L_end{k+1}")
        b(f"s_add_u32 s88, s92, {OPT.get('dbgoff',0)*(1-k)}\ns_addc_u32 s89, s93, 0\ns_mov_b32 s90, 256\ns_mov_b32 s91, 0x20000")
        sel = [0, 2, 3, 5, 6, 7, 8, 9, 10, 11, 12]
        b("s_mov_b64 exec, 1")
        for i, ix in enumerate(sel):
            b(f"v_readlane_b32 s94, v15, {ix}\ns_nop 3")
            if i == 0 and k == 0: b("s_not_b32 s94, s94")
            b(f"v_mov_b32 v1, s94\nv_mov_b32 v2, {4*(i + 1)}\nbuffer_atomic_umax v1, v2, s[88:91], 0 offen")
        return
    b("s_getreg_b32 s94, hwreg(HW_REG_XCC_ID)\nv_writelane_b32 v14, s94, 63")
    b("s_load_dwordx2 s[92:93], s[0:1], 96\ns_waitcnt lgkmcnt(0)")
    b(f"s_add_u32 s88, s92, {(48+k)*1024*1024}\ns_addc_u32 s89, s93, 0\ns_mov_b32 s90, 0x100000\ns_mov_b32 s91, 0x20000")
    b(f"s_lshl_b32 s94, s97, 2\ns_add_u32 s94, s94, s{wave}\ns_lshl_b32 s94, s94, 9")
    b("v_and_b32 v1, 63, v0\nv_lshlrev_b32 v1, 3, v1")
    b("buffer_store_dwordx2 v[14:15], v1, s[88:91], s94 offen")

def persist_regs(b):
    lane = T0; t1 = T0 + 1; t2 = T0 + 2; t3 = T0 + 3; g_ = T0 + 4; ihi = T0 + 5; i8 = T0 + 6; i16 = T0 + 7; r_ = T0 + 8; c4 = T0 + 9
    b(f"""v_and_b32 v{lane}, 63, v0
    v_lshrrev_b32 v{g_}, 4, v{lane}
    v_lshrrev_b32 v{ihi}, 3, v{lane}
    v_and_b32 v{i8}, 7, v{lane}
    v_and_b32 v{i16}, 15, v{lane}
    v_lshrrev_b32 v{r_}, 2, v{i16}
    v_and_b32 v{c4}, 3, v{lane}
    v_lshlrev_b32 v{VLN}, 4, v{lane}
    s_add_u32 s71, s63, s{sWB}
    v_add_u32 v{VO}, s71, v{VLN}""")
    b(f"""s_lshl_b32 s70, s{sWAVE}, 11
    v_lshlrev_b32 v{t1}, 8, v{g_}
    v_add_u32 v{t1}, s70, v{t1}
    s_and_b32 s70, s{sWAVE}, 1
    s_lshl_b32 s70, s70, 3
    v_xor_b32 v{t2}, v{i16}, v{g_}
    v_xor_b32 v{t2}, s70, v{t2}
    v_lshl_add_u32 v{DK0}, v{t2}, 4, v{t1}
    v_xor_b32 v{DK1}, 64, v{DK0}
    v_lshlrev_b32 v{t2}, 1, v{g_}
    v_xor_b32 v{t3}, v{t2}, v{i16}
    v_lshl_add_u32 v{DV0}, v{t3}, 4, v{t1}
    v_xor_b32 v{DV1}, 128, v{DV0}""")
    b(f"""v_mul_u32_u24 v{t1}, 1152, v{ihi}
    v_lshl_add_u32 v{t1}, v{i8}, 4, v{t1}
    s_lshl_b32 s70, s{sWAVE}, 7
    v_add_u32 v{VWO}, s70, v{t1}
    v_lshrrev_b32 v{t1}, 1, v{lane}
    v_mul_u32_u24 v{t1}, 1152, v{t1}
    v_and_b32 v{t2}, 1, v{lane}
    v_lshl_add_u32 v{t1}, v{t2}, 4, v{t1}
    s_lshl_b32 s70, s{sWAVE}, 5
    s_add_u32 s70, s70, 1024
    v_add_u32 v{VWX}, s70, v{t1}""")
    b(f"""v_xor_b32 v{t2}, v{g_}, v{i16}
    v_lshlrev_b32 v{t2}, 4, v{t2}
    v_lshl_add_u32 v{KA}, v{i16}, 8, v{t2}""")
    for s_ in range(1, 4): b(f"v_xor_b32 v{KA+s_}, {64*s_}, v{KA}")
    b(f"""v_lshl_add_u32 v{t2}, v{g_}, 2, v{r_}
    v_lshlrev_b32 v{t1}, 8, v{t2}
    v_and_b32 v{t2}, 7, v{t2}
    v_lshl_add_u32 v{t1}, v{t2}, 5, v{t1}
    v_lshl_add_u32 v{t1}, v{c4}, 3, v{t1}
    v_add_u32 v{VA}, 0x10000, v{t1}""")
    for T in range(1, 8): b(f"v_xor_b32 v{VA+T}, {32*T}, v{VA}")
    b(f"""v_lshl_add_u32 v{t2}, v{g_}, 2, v{r_}
    v_lshlrev_b32 v{t1}, 7, v{t2}
    v_lshl_add_u32 v{t1}, v{c4}, 3, v{t1}
    s_lshr_b32 s70, s{sWAVE}, 1
    s_lshl_b32 s70, s70, 16
    s_and_b32 s71, s{sWAVE}, 1
    s_lshl_b32 s{sWOS}, s71, 13
    s_add_u32 s{sWOS}, s{sWOS}, s70
    s_lshl_b32 s{sWTS}, s71, 10
    s_add_u32 s{sWTS}, s{sWTS}, s70
    s_add_u32 s{sWTS}, s{sWTS}, 47104
    {f"s_lshl_b32 s{sWTS}, s{sWAVE}, 10" if OPT.get('fsq') else ""}
    {f"s_add_u32 s{sWTS}, s{sWTS}, 147456" if OPT.get('fsq') else ""}
    v_add_u32 v{VWA}, s{sWOS}, v{t1}
    v_lshlrev_b32 v{t1}, 3, v{lane}
    v_add_u32 v{VWE}, s{sWTS}, v{t1}""")

def late_setup(b, sfx):
    b(f"""s_lshl_b32 s71, s68, 4
    s_add_u32 s71, s71, s69
    s_lshl_b32 s70, s71, 19
    s_add_u32 s{SK}, s50, s70
    s_addc_u32 s{SK+1}, s51, 0
    s_mov_b32 s{SK+2}, 524288
    s_mov_b32 s{SK+3}, 0x20000
    s_add_u32 s{SV}, s52, s70
    s_addc_u32 s{SV+1}, s53, 0
    s_mov_b32 s{SV+2}, 524288
    s_mov_b32 s{SV+3}, 0x20000
    s_mul_i32 s70, s3, {O_BLK}
    s_add_u32 s{SO}, s100, s70
    s_addc_u32 s{SO+1}, s101, 0
    s_mov_b32 s{SO+2}, {O_BLK}
    s_mov_b32 s{SO+3}, 0x20000
    s_mul_i32 s70, s71, 36864
    s_add_u32 s{SWO}, s56, s70
    s_addc_u32 s{SWO+1}, s57, 0
    s_mov_b32 s{SWO+2}, 36864
    s_mov_b32 s{SWO+3}, 0x20000
    s_mul_i32 s71, s3, {WOT_BLK}
    s_add_u32 s70, s70, s71
    s_add_u32 s70, s70, {WOT_OFF}
    s_add_u32 s{SWT}, s100, s70
    s_addc_u32 s{SWT+1}, s101, 0
    s_mov_b32 s{SWT+2}, 36864
    s_mov_b32 s{SWT+3}, 0x20000
    s_mul_i32 s62, s69, {8*122880}
    s_mul_i32 s63, s68, 15360        ; b*15*1024
    s_add_u32 s{SCN}, s100, {CNT_OFF}
    s_addc_u32 s{SCN+1}, s101, 0
    s_mov_b32 s{SCN+2}, 24576
    s_mov_b32 s{SCN+3}, 0x20000
    s_mov_b64 s[{SDB}:{SDB+1}], s[78:79]
    s_mov_b32 s{SDB+2}, 256
    s_mov_b32 s{SDB+3}, 0x20000
    s_mov_b64 s[{SIN}:{SIN+1}], s[{SCN}:{SCN+1}]
    s_mov_b32 s{SIN+3}, 0x20000
    s_mov_b64 s[{SIF}:{SIF+1}], s[78:79]
    s_mov_b32 s{SIF+3}, 0x20000
    s_lshl_b32 s70, s3, 3
    s_add_u32 s70, s70, s68
    s_lshl_b32 s{sCO}, s70, 2
    s_lshr_b32 s71, s69, 2
    s_add_u32 s{sCO}, s{sCO}, s71
    s_lshl_b32 s{sCO}, s{sCO}, 7
    s_lshr_b32 s{sCW}, s70, 1
    s_lshl_b32 s{sCW}, s{sCW}, 7
    s_add_u32 s{sCW}, s{sCW}, 8192
    s_and_b32 s70, s97, 1
    s_mul_i32 s70, s70, {30 + OPT.get('bal', 0)}
    s_add_u32 s2, s2, s70              ; tile number inside the pair of workgroup classes (0..59 real)
    s_cmp_eq_u32 s70, 0
    s_cselect_b32 s71, {30 + OPT.get('bal', 0)}, 60
    s_cmp_ge_u32 s2, s71
    s_cselect_b32 s{sIDLE}, 1, 0       ; no output tile for this workgroup
    s_mul_i32 s68, s2, 43
    s_lshr_b32 s68, s68, 8
    s_mul_i32 s69, s68, 6
    s_sub_u32 s69, s2, s69             ; nt
    s_bfe_u32 s70, s97, 0x10001
    s_mul_i32 s70, s70, 10
    s_add_u32 s68, s68, s70            ; mt
    s_mul_i32 s79, s68, 103
    s_lshr_b32 s79, s79, 8
    s_mul_i32 s78, s68, 96
    s_add_u32 s78, s78, 95
    s_mul_i32 s78, s78, 4370
    s_lshr_b32 s78, s78, 20
    s_lshl_b32 s70, s3, 3
    s_add_u32 s78, s78, s70
    s_add_u32 s79, s79, s70
    s_lshl_b32 s78, s78, 2
    s_lshl_b32 s79, s79, 2
    s_add_u32 s78, s78, s{sWAVE}
    s_add_u32 s79, s79, s{sWAVE}
    s_lshl_b32 s78, s78, 7
    s_lshl_b32 s79, s79, 7
    s_mul_i32 s70, s3, {O_BLK}
    s_mul_i32 s71, s68, 6144
    s_add_u32 s70, s70, s71
    s_add_u32 s{SO2}, s100, s70
    s_addc_u32 s{SO2+1}, s101, 0
    s_sub_u32 s{SO2+2}, {O_BLK}, s71
    s_mov_b32 s{SO2+3}, 0x20000
    s_mul_i32 s70, s3, {WOT_BLK}
    s_mul_i32 s71, s69, 6144
    s_add_u32 s70, s70, s71
    s_add_u32 s70, s70, {WOT_OFF}
    s_add_u32 s{SW2}, s100, s70
    s_addc_u32 s{SW2+1}, s101, 0
    s_sub_u32 s{SW2+2}, {WOT_BLK}, s71
    s_mov_b32 s{SW2+3}, 0x20000
    s_cmp_eq_u32 s{sIDLE}, 1
    s_cselect_b32 s{SO2+2}, 0, s{SO2+2}   ; workgroups without an output tile load nothing
    s_cselect_b32 s{SW2+2}, 0, s{SW2+2}
    s_mov_b32 s100, s{SO2+2}
    s_mov_b32 s101, s{SW2+2}
    s_lshr_b32 s70, s{sWAVE}, 1
    s_mul_i32 s70, s70, {48*2304}
    s_mul_i32 s{sOUTO}, s68, {96*2304}
    s_add_u32 s{sOUTO}, s{sOUTO}, s70
    s_mul_i32 s70, s3, 1152
    s_add_u32 s{sOUTO}, s{sOUTO}, s70
    s_mul_i32 s70, s69, 192
    s_add_u32 s{sOUTO}, s{sOUTO}, s70
    s_and_b32 s70, s{sWAVE}, 1
    s_mul_i32 s70, s70, 96
    s_add_u32 s{sOUTO}, s{sOUTO}, s70
    s_lshl_b32 s70, s3, 2
    s_add_u32 s70, s70, s{sWAVE}
    s_lshl_b32 s70, s70, 7
    s_add_u32 s70, s70, 8192
    v_and_b32 v1, 1, v0
    v_mov_b32 v{VP2}, s78
    v_mov_b32 v2, s79
    v_cmp_eq_u32 vcc, 1, v1
    v_and_b32 v1, 2, v0
    v_mov_b32 v3, s70
    v_cndmask_b32 v{VP2}, v{VP2}, v2, vcc
    v_cmp_eq_u32 vcc, 2, v1
    v_add_u32 v{VPE}, 16384, v{VP2}
    v_mov_b32 v{VTH}, 4
    v_cndmask_b32 v{VPE}, v{VPE}, v3, vcc
    v_mov_b32 v3, 32
    v_cndmask_b32 v{VTH}, v{VTH}, v3, vcc
    s_mov_b32 s{sSIG}, 0""")
    b(f"L_late{sfx}:")
    b(f"""s_or_b32 s70, s97, s{sSAFE}
    s_cmp_eq_u32 s70, 0
    s_cselect_b32 s{SIN+2}, 24576, 0   ; only workgroup 0 (first pass) really initialises the counters
    s_cselect_b32 s{SIF+2}, 4, 0
    s_mov_b32 s{sOO}, s62
    s_mov_b32 s{sLATE}, 0
    s_mov_b32 s{SO2+2}, s100
    s_mov_b32 s{SW2+2}, s101
    s_mul_i32 s{sO2}, s{sWAVE}, {32*122880}
    s_mul_i32 s{sW2}, s{sWAVE}, {32*36864}
    s_mov_b32 s{sPF}, 0x40000
    s_lshl_b32 s{sKB}, s{sWAVE}, 11""")

def warm_code(b):
    if not OPT.get('warm'): return
    b(f"""s_getpc_b64 s[70:71]
    L_pc:
    s_sub_u32 s70, s70, L_pc-attn_kernel
    s_subb_u32 s71, s71, 0
    v_lshrrev_b32 v2, 3, v0
    v_and_b32 v2, 31, v2
    v_lshl_add_u32 v2, s2, 5, v2
    v_lshlrev_b32 v2, 7, v2
    v_min_u32 v2, L_codeend-attn_kernel-4, v2
    v_mov_b32 v3, s71
    v_add_co_u32 v2, vcc, s70, v2
    v_addc_co_u32 v3, vcc, 0, v3, vcc
    global_load_dword v4, v[2:3], off""")

def prologue_a(b):
    lane = T0; t1 = T0 + 1; t2 = T0 + 2; t3 = T0 + 3; g_ = T0 + 4; ihi = T0 + 5; i8 = T0 + 6
    b(f"""v_and_b32 v{lane}, 63, v0
    v_lshrrev_b32 v{g_}, 4, v{lane}
    v_lshrrev_b32 v{ihi}, 3, v{lane}
    v_and_b32 v{i8}, 7, v{lane}""")
    b(f"s_lshl_b32 s{sT}, s{sWAVE}, 6")
    b(f"v_add_u32 v{t1}, s{sT}, v{ihi}")
    b(f"v_mul_u32_u24 v{t1}, 1152, v{t1}")
    for j in range(4):
        b(f"v_xor_b32 v{t2}, {4*(j%2)}, v{g_}")
        b(f"v_xor_b32 v{t2}, v{t2}, v{i8}")
        b(f"v_lshl_add_u32 v{t2}, v{t2}, 4, v{t1}")
        b(f"v_add_u32 v{DX+j}, {8*j*1152 - 1024*j}, v{t2}")
    b(f"""s_and_b32 s{sT}, s{sWAVE}, 1
    s_lshl_b32 s{sT}, s{sT}, 18
    s_lshr_b32 s{sT+1}, s{sWAVE}, 1
    s_lshl_b32 s{sT+1}, s{sT+1}, 7
    s_add_u32 s{sT}, s{sT}, s{sT+1}
    v_lshlrev_b32 v{t1}, 13, v{ihi}
    v_add_u32 v{t1}, s{sT}, v{t1}
    v_lshrrev_b32 v{t2}, 2, v{i8}
    v_xor_b32 v{t2}, v{t2}, v{g_}
    v_and_b32 v{t2}, 1, v{t2}
    v_lshl_add_u32 v{t1}, v{t2}, 6, v{t1}
    v_and_b32 v{t2}, 3, v{i8}
    v_lshl_add_u32 v{t1}, v{t2}, 4, v{t1}""")
    for j in range(4): b(f"v_add_u32 v{DW+j}, {8*j*8192 - 1024*j}, v{t1}")
    b(f"""s_mov_b32 s{sXO}, 0
    s_mov_b32 s{sXO2}, 36864
    s_mov_b32 s{sWOFF}, 0
    s_mov_b32 s{sKV}, 0
    s_mov_b32 s{sHEAD}, 0""")

def prologue_b(b):
    lane = T0; t1 = T0 + 1; t2 = T0 + 2; t3 = T0 + 3; g_ = T0 + 4; ihi = T0 + 5; i8 = T0 + 6
    if OPT.get('sstamps'): stamp(b)
    b.ext(x_dma(0, 4)); b.ext(w_dma(0, 4))
    if OPT.get('ord') == 1: b.ext(w_dma(1, 4)); b.ext(x_dma(1, 4))
    if OPT.get('ord') == 2: b.ext(w_dma(1, 4))
    if OPT.get('sstamps'): stamp(b)
    if OPT.get('xw'):
        pf = K2F[OPT.get('xwf', 0)]
        b(f"""s_lshr_b32 s70, s2, 2
        s_mul_i32 s70, s70, 270
        s_mul_i32 s71, s{sWAVE}, 68
        s_add_u32 s70, s70, s71
        s_lshl_b32 s70, s70, 7
        v_lshlrev_b32 v5, 7, v{lane}
        buffer_load_dword v6, v5, s[{SX}:{SX+3}], s70 offen{pf}
        s_and_b32 s70, s2, 3
        s_lshl_b32 s70, s70, 2
        s_add_u32 s70, s70, s{sWAVE}
        s_lshl_b32 s70, s70, 13
        v_lshrrev_b32 v5, 2, v{lane}
        v_lshlrev_b32 v5, 17, v5
        v_and_b32 v7, 3, v{lane}
        v_lshl_add_u32 v5, v7, 7, v5
        buffer_load_dword v6, v5, s[{SW}:{SW+3}], s70 offen{pf}
        s_add_u32 s70, s70, {256*8192}
        buffer_load_dword v6, v5, s[{SW}:{SW+3}], s70 offen{pf}
        s_add_u32 s70, s70, {256*8192}
        buffer_load_dword v6, v5, s[{SW}:{SW+3}], s70 offen{pf}""")
    late_setup(b, "")
    if OPT.get('tlb'):
        for srd in (SK, SV, SWO): b(f"buffer_load_dword v1, off, s[{srd}:{srd+3}], 0 nt")
        if OPT['tlb'] > 1:
            b(f"s_mov_b64 exec, 1\nbuffer_store_dword v1, off, s[{SWT}:{SWT+3}], s{sWB} sc1\ns_mov_b64 exec, -1")
    persist_regs(b)
    b(f"""v_mov_b32 v{VONE}, 1
    s_and_b32 s70, s{sWAVE}, 1
    s_mul_i32 s70, s70, 3072
    s_sub_u32 s71, 3072, s70
    v_add_u32 v{VPW}, s70, v{VLN}
    v_add_u32 v{VPW+1}, s71, v{VLN}
    s_lshr_b32 s70, s{sWAVE}, 1
    s_mul_i32 s70, s70, 3072
    s_sub_u32 s71, 3072, s70
    v_add_u32 v{VPO}, s70, v{VLN}
    v_add_u32 v{VPO+1}, s71, v{VLN}""")
    i16 = T0 + 7; r_ = T0 + 8; c4 = T0 + 9
    b(f"""v_and_b32 v{i16}, 15, v{lane}
    v_lshrrev_b32 v{r_}, 2, v{i16}
    v_and_b32 v{c4}, 3, v{lane}
    v_lshlrev_b32 v{t1}, 7, v{i16}
    v_add_u32 v{t1}, s{sXB}, v{t1}
    v_add_u32 v{t1}, 16384, v{t1}
    v_lshrrev_b32 v{t3}, 1, v{i16}""")
    for s in range(2):
        b(f"v_xor_b32 v{t2}, {4*s}, v{g_}")
        b(f"v_xor_b32 v{t2}, v{t2}, v{t3}")
        b(f"v_lshl_add_u32 v{XA+s}, v{t2}, 4, v{t1}\nv_add_u32 v{XA+2+s}, 65536, v{XA+s}")
    b(f"""v_lshl_add_u32 v{t1}, v{g_}, 3, v{r_}
    v_lshlrev_b32 v{t1}, 7, v{t1}
    v_lshl_add_u32 v{t1}, v{c4}, 4, v{t1}
    v_add_u32 v{t1}, 49152, v{t1}
    v_lshrrev_b32 v{t3}, 1, v{r_}""")
    for sp in range(2):
        b(f"v_xor_b32 v{t2}, {sp}, v{t3}")
        b(f"v_lshl_add_u32 v{WA+sp}, v{t2}, 6, v{t1}\nv_add_u32 v{WA+2+sp}, 65536, v{WA+sp}")
    if OPT.get('sstamps'): stamp(b)
    if not OPT.get('ord'): b.ext(w_dma(1, 4))
    if OPT.get('ord') != 1: b.ext(x_dma(1, 4))

def wave_code(b, nq, sfx):
    nx = 8 if nq == 4 else 6
    b(f"L_begin{sfx}:")
    if nq == 3:
        b(f"v_mov_b32 v{VHS}, 0\nv_lshlrev_b32 v{VCW}, 3, v{VLN}")
        b(f"buffer_store_dword v{VHS}, v{VCW}, s[{SIN}:{SIN+3}], 0 offen sc1 ; tag=INIT")
        b(f"s_mov_b32 s{sT}, 8192\nbuffer_store_dword v{VHS}, v{VCW}, s[{SIN}:{SIN+3}], s{sT} offen sc1 ; tag=INIT")
        b(f"s_mov_b32 s{sT}, 16384\nbuffer_store_dword v{VHS}, v{VCW}, s[{SIN}:{SIN+3}], s{sT} offen sc1 ; tag=INIT")
    stamp(b, 0)
    if OPT.get('fsq'):
        b(f"s_mov_b32 s{sFQ}, 0\nv_mov_b32 v{QFB}, {QFLAGS}\nv_lshl_add_u32 v{QFA}, s{sWAVE}, 2, v{QFB}")
    b("WAITV ; cover=X0,W0")
    b("s_barrier ; pub=X0,W0")
    b.ext(x_reads(0, nq))
    for T in (0, 1): b.ext(w_reads(0, T))
    b.ext(w_reads(0, 2)[:3])
    b("WAITL W0.0")
    stamp(b, 1)
    for n in range(0, 12): qproj_stage(b, n, nq)
    fill = []; post = []
    for sp in range(4):
        for q in range(nq):
            rs = [128 + 32 * q + 8 * sp + 2 * i_ for i_ in range(4)]
            for r in rs: fill += [f"v_mul_f32 v{r}, s{sC}, v{r}", f"v_mul_f32 v{r+1}, s{sC}, v{r+1}"]
            for r in rs: fill.append(f"v_cvt_pk_bf16_f32 v{r}, v{r}, v{r+1}")
            for i_, r in enumerate(rs): fill.append(f"v_accvgpr_write_b32 a{AQ(q) + 4*sp + i_}, v{r}")
    for n in range(12, 18): qproj_stage(b, n, nq, fill if n >= 16 else None)
    stamp(b, 2)
    conv2 = []
    for q in range(nq):
        for h in range(8):
            r = 128 + 32 * q + 4 * h
            conv2 += [f"v_accvgpr_read_b32 v{4+i_}, a{r+i_}" for i_ in range(4)]
            conv2 += [f"v_mul_f32 v{4+i_}, s{sC}, v{4+i_}" for i_ in range(4)]
            conv2 += ["v_cvt_pk_bf16_f32 v4, v4, v5", "v_cvt_pk_bf16_f32 v6, v6, v7",
                      f"v_accvgpr_write_b32 a{AQ2(q)+2*h}, v4", f"v_accvgpr_write_b32 a{AQ2(q)+2*h+1}, v6"]
    def pre_mfma(): return [qk(q, 0, s_, czero=True) for q in range(nq) for s_ in range(4)]
    def pre_max():
        t = B()
        for q in range(nq):
            s_ = S_ + 8 * q
            t(f"v_max3_f32 v{s_}, v{s_}, v{s_+1}, v{s_+2}")
        for q in range(nq):
            s_ = S_ + 8 * q
            t(f"v_max_f32 v{s_}, v{s_}, v{s_+3}")
        xlane_reduce_multi(t, [S_ + 8 * q for q in range(nq)], [T0 + q for q in range(nq)], "v_max_f32")
        for q in range(nq):
            for r in range(4): t(f"v_sub_f32 v{CI+4*q+r}, 0, v{S_+8*q}")
        return t.L
    def weave(mf, st, per):
        for x in mf:
            b(x)
            for _ in range(per):
                if st: b(st.pop(0))
    def zipper(a_, b_, ra, rb):
        out = []
        while a_ or b_:
            for _ in range(ra):
                if a_: out.append(a_.pop(0))
            for _ in range(rb):
                if b_: out.append(b_.pop(0))
        return out
    b.ext(k_reads(0, 0))
    b.ext(fill)
    b(f"v_and_b32 v4, 3, v0\nv_mov_b32 v5, 0x3f803f80\nv_cmp_eq_u32 vcc, 0, v4")
    for i_ in range(4): b(f"v_cndmask_b32 v{ONES+i_}, 0, v5, vcc")
    b("s_waitcnt lgkmcnt(0)")
    if OPT.get('wts'):
        mv = [f"v_mov_b32 v{192+i_}, v{WOF+i_}" for i_ in range(36)]
        b.ext(mv[:8])
        mv = mv[8:]
        weave(pre_mfma()[:8], mv, 4)
        b.ext(mv); b.ext(pre_mfma()[8:])
    else: b.ext(pre_mfma())
    b.ext(pre_max())
    stamp(b, 3)
    for i_ in range(OPT.get('pause', 0)): b('s_sleep 32')
    if OPT.get('skew'):
        b(f"s_lshr_b32 s{sT}, s97, 3\ns_and_b32 s{sT}, s{sT}, 7\nL_skew{sfx}:\ns_cmp_eq_u32 s{sT}, 0\ns_cbranch_scc1 L_skewd{sfx}\ns_sleep {OPT['skew']}\ns_sub_u32 s{sT}, s{sT}, 1\ns_branch L_skew{sfx}\nL_skewd{sfx}:")
    adv8 = lambda x: x
    def head_start(hd):
        b(f"s_cmp_lg_u32 s{sSAFE}, 0\ns_cbranch_scc1 L_maxpass{sfx}\nL_maxdone{hd}{sfx}:")
        if not LM:
            for q in range(nq): b(f"v_mov_b32 v{LS+q}, 0")
        stamp(b)
    if OPT.get('wtp') == 2 and nq == 3: b("WAITV ; cover=WT\nbuffer_wbl2 sc1 ; tag=WT")
    head_start(0)
    per = -(-len(conv2) // 8); tot_ = len(conv2)
    for k in range(8):
        ex = []
        if k == 0 and OPT.get('wts'):
            for i_ in range(8 if OPT.get('fsq') else 9):
                g = 2 + 7 * i_
                if i_ < 8: ex.append((g - 1, f"s_add_u32 s{sT+1}, s{sWB}, {16384*(i_//4)}"))
                else: ex += [(g - 2, f"s_lshl_b32 s{sT+1}, s{sWAVE}, 10"), (g - 1, f"s_add_u32 s{sT+1}, s{sT+1}, 32768")]
                ex.append((g, f"buffer_store_dwordx4 {vr(192+4*i_,4)}, v{VLN}, s[{SWT}:{SWT+3}], s{sT+1} offen offset:{1024*(i_%4) if i_ < 8 else 0} sc1 ; tag=WT"))
        if OPT.get('fsq'):
            A9 = 192 if nq == 4 else 224
            if k == 1: ex += [(5, f"s_mov_b32 m0, s{sWTS}"), (6, dma(VWX, SWO, "0", 0, fl('nt_wo'), "W9X"))]
            if k == 6: ex += [(3, "WAITV ; cover=W9X"), (4, f"ds_read_b64_tr_b16 {ar(A9,2)}, v{VWE} offset:0"), (5, f"ds_read_b64_tr_b16 {ar(A9+2,2)}, v{VWE} offset:512")]
            if k == 7: ex += [(4, f"s_lshl_b32 s{sT+1}, s{sWAVE}, 10"), (5, f"s_add_u32 s{sT+1}, s{sT+1}, 32768"),
                              (25, f"buffer_store_dwordx4 {ar(A9,4)}, v{VLN}, s[{SWT}:{SWT+3}], s{sT+1} offen sc1 ; tag=WT")]
        if k == 6 and nq == 3:
            ex += [(46, "WAITV ; cover=HS"), (47, f"v_readfirstlane_b32 s{sT}, v{VHS}\ns_cmp_eq_u32 s{sT}, 0\ns_cbranch_scc1 L_hspin\nL_hsok:")]
        cnt_ = per
        if OPT.get('front'): cnt_ = -(-tot_ * {1: (8, 8, 7, 7, 6, 5, 4, 3), 2: (3, 4, 5, 6, 7, 7, 8, 8), 3: (12, 12, 12, 12, 0, 0, 0, 0)}[OPT['front']][k] // 48)
        attn_stage(b, k, nq, ex, fill=[conv2.pop(0) for _ in range(min(cnt_, len(conv2)))])
    b(f"L_atin{sfx}:")
    b(f"s_mov_b32 s{sCNT}, 0")
    b(f".p2align 3\nL_at{sfx}:")
    b("LOOPBEGIN at 3 8")
    for k in range(8, 16):
        ex = []
        if k == 11 and nq == 3:
            ex = [(59, f"""s_xor_b32 s{sT+1}, s{sHEAD}, 1
            s_or_b32 s{sT}, s{sCNT}, s{sT+1}
            s_cbranch_scc0 L_sig
            L_nosig:""")]
        if k == 15: ex = [(NS - 6, f"s_add_u32 s{sCNT}, s{sCNT}, 1"), (NS - 4, f"s_add_u32 s{sT}, s{sCNT}, s{sHEAD}"), (NS - 2, f"s_cmp_lt_u32 s{sT}, 3")]
        attn_stage(b, k, nq, ex)
    if OPT.get('midgap'):
        b(f"s_cselect_b32 s{sT+1}, 1, 0\ns_lshl_b32 s{sT}, s{sHEAD}, 4\ns_add_u32 s{sT}, s{sT}, s{sCNT}\ns_cmp_eq_u32 s{sT}, {OPT.get('midat', 1)}\ns_cbranch_scc0 L_ng{sfx}")
        for i_ in range(OPT['midgap']): b("s_sleep 16")
        b(f"L_ng{sfx}:\ns_cmp_eq_u32 s{sT+1}, 1")
    b(f"s_cbranch_scc1 L_at{sfx}")
    b("LOOPEND at")
    b(f"L_atx{sfx}:")
    b(f"s_cmp_lg_u32 s{sHEAD}, 0\ns_cbranch_scc1 L_fin{sfx}")

    def lsum(qs):
        t = B()
        if not LM: xlane_reduce_multi(t, [LS + q for q in qs], [T0 + 4 + q for q in qs], "v_add_f32")
        for q in qs:
            src = LA + 4 * q if LM else LS + q
            t(f"v_cmp_ngt_f32 vcc, {LTHR}, v{src}")
            t(f"v_rcp_f32 v{LS+q}, v{src}")
            t(f"s_or_b32 s{sFLAG}, s{sFLAG}, vcc_lo\ns_or_b32 s{sFLAG}, s{sFLAG}, vcc_hi")
        return t.L
    cnt = [0]
    def onorm(q, pk, flag, inplace=False, so=None):
        out = []
        for sp in range(4):
            d = P_ + 4 * (cnt[0] % 2); cnt[0] += 1
            if inplace: d = O_ + 32 * q + 8 * sp
            rs = [O_ + 32 * q + 8 * sp + 2 * i_ for i_ in range(4)]
            for r in rs:
                if pk and OPT.get('pk', 1): out.append(f"v_pk_mul_f32 v[{r}:{r+1}], v[{r}:{r+1}], v[{LS+q-(q%2)}:{LS+q-(q%2)+1}] op_sel:[0,{q%2}] op_sel_hi:[1,{q%2}]")
                else: out += [f"v_mul_f32 v{r}, v{r}, v{LS+q}", f"v_mul_f32 v{r+1}, v{r+1}, v{LS+q}"]
            for i_, r in enumerate(rs): out.append(f"v_cvt_pk_bf16_f32 v{d+i_}, v{r}, v{r+1}")
            if flag is None:
                for i_ in range(4): out.append(f"v_accvgpr_write_b32 a{AST+16*q+4*sp+i_}, v{d+i_}")
                continue
            if so:
                out[-1] += f"\ns_add_u32 s{sT+1}, s{so}, {sp*122880}\nbuffer_store_dwordx4 {vr(d,4)}, v{VO}, s[{SO}:{SO+3}], s{sT+1} offen offset:{1024*q}{flag}"
                continue
            out.append(f"s_add_u32 s{sT}, s{sOO}, {sp*122880}")
            out.append(f"buffer_store_dwordx4 {vr(d,4)}, v{VO}, s[{SO}:{SO+3}], s{sT} offen offset:{1024*q}{flag}")
        return out
    def drain(st, ld=None, every=1):
        slots = []; gaps = [[] for _ in range(18)]
        for q in (2, 3):
            for T in range(8): slots.append(pv(q, T) if q < nq else None)
            slots.append(lsm(q) if (q < nq and LM) else None)
        rem = sorted(sm_items(nq, NS, 2 * NS), key=lambda t: t[0])
        b.ext([sm_text(*k_) for g, k_ in rem if k_[1] == 2 and k_[0] != 'add'])
        crit = sorted([k_ for g, k_ in rem if k_[1] == 3 and k_[0] != 'add'], key=lambda k_: (k_[2], k_[0] == 'cvt'))
        g = 0
        for k_ in crit:
            if k_[0] == 'exp' and gaps[min(g, 6)]: g += 1
            gaps[min(g, 6)].append(sm_text(*k_))
            if k_[0] == 'exp' or len(gaps[min(g, 6)]) == 2: g += 1
        late = [sm_text(*k_) for g_, k_ in rem if k_[0] == 'add']
        for i_, x in enumerate(late): gaps[min(9 + i_ // 2, 16) if nq == 4 else 0].append(x)
        for g in range(18):
            if slots[g] is None: continue
            room = 2 - sum(2 if 'exp' in x else 1 for x in gaps[g])
            while room > 0 and st: gaps[g].append(st.pop(0)); room -= 1
        for i_, s_ in enumerate(slots):
            if s_: b(s_)
            if s_ and ld and (i_ % every == 0 or nq == 3):
                b(ld.pop(0))
                while ld and ld[0].startswith("s_"): b(ld.pop(0))
            b.ext(gaps[i_])
    hi = list(range(2, nq))
    movs = [f"v_accvgpr_mov_b32 a{AQ(q)+i_}, a{AQ2(q)+i_}" for q in range(nq) for i_ in range(16)]
    f0 = None if OPT.get('defer') else K2F[OPT.get('of0', 2)] + ' ; tag=WT'
    if OPT.get('wtp') == 1 and nq == 3: b("buffer_wbl2 sc1 ; tag=WT")
    st = lsum([0, 1]) + onorm(0, False, f0)
    SW2_ = OPT.get('sw2', 0)
    if SW2_:
        ld = []
        for t in (38, 39): ld += k_dma(t) + v_dma(t) + kv_adv()
        b(ld.pop(0))
        ld2 = []
        for x in ld: ld2 += [x] if x.startswith('s_') else [x, 'v_nop']
        ld2 = [x for x in ld]
        drain(st, ld2, 2)
    else: drain(st)
    stamp(b, 4)
    b.ext(zipper(st, lsum(hi), 2, 1))
    b.ext(movs)
    st = onorm(1, False, f0)
    weave(pre_mfma(), st, 3 if nq == 4 else 4)
    b.ext(st)
    rest = []; late_ = []
    for q in hi:
        if SW2_ >= 2: late_ += onorm(q, False, f0, inplace=True, so=sOP)
        else: rest += onorm(q, True, f0)
    b.ext(zipper(rest, pre_max(), 2, 1))
    b.ext(vote_write())
    b(f"s_mov_b32 s{sOP}, s{sOO}\ns_add_u32 s{sOO}, s{sOO}, {4*122880}\ns_mov_b32 s{sHEAD}, 1")
    if OPT.get('emub'):
        b(f"s_and_b32 s{sT}, s97, 3\ns_cmp_eq_u32 s{sT}, s{sCNT}" if False else "")
        b(f"s_mov_b32 s{sT}, 0\nL_duma{sfx}:")
        for i_ in range(64):
            if (i_ // 2) % 4 >= nq: continue
            b(f"{MF} a[{192+4*(i_//2%16)}:{195+4*(i_//2%16)}], a[{4*(i_%8)}:{4*(i_%8)+3}], a[{32+4*(i_%7)}:{35+4*(i_%7)}], a[{192+4*(i_//2%16)}:{195+4*(i_//2%16)}]")
            if i_ % 2 == 0: b(f"ds_read_b64_tr_b16 v[4:5], v{VA + i_ % 8} offset:{(i_ % 16) * 4096}")
        b(f"s_waitcnt lgkmcnt(0)\ns_barrier\ns_add_u32 s{sT}, s{sT}, 1\ns_cmp_lt_u32 s{sT}, 8\ns_cbranch_scc1 L_duma{sfx}")
    head_start(1)
    dst = [(q, sp) for q in range(nq) for sp in range(4)] if OPT.get('defer') else []
    for k in range(32, 40):
        ex = []
        for g in (24, 25):
            if dst:
                q, sp = dst.pop(0)
                ex += [(g, f"s_add_u32 s{sT+1}, s{sOP}, {sp*122880}"),
                       (g, f"buffer_store_dwordx4 {ar(AST+16*q+4*sp,4)}, v{VO}, s[{SO}:{SO+3}], s{sT+1} offen offset:{1024*q} sc1 ; tag=WT")]
        attn_stage(b, k, nq, ex, fill=late_ if k == 32 else None)
    b(f"s_branch L_atin{sfx}")
    b("REPLAY at 32 2")
    b(f"L_fin{sfx}:")
    f1 = K2F[OPT.get('of', 0)]
    early = p2_w(0) + p2_o(0) + p2_adv(0) + p2_w(1) + p2_o(1) + p2_adv(1)
    for k in range(56, 64):
        ex = []
        if k == 56: ex = [(6, f"buffer_load_dword v{VCW}, v{VPE}, s[{SCN}:{SCN+3}], 0 offen sc1 ; tag=CW")]
        if k == 59: ex = [(NS - 3, f"WAITV ; cover=CW\nv_cmp_gt_u32 vcc, v{VTH}, v{VCW}\ns_cbranch_vccnz L_espin{sfx}\nL_eok{sfx}:")]
        if k >= 60:
            for g in (3, 7, 11, 17, 23, 45 if LM else 44):
                ex.append((g, early.pop(0)))
                while early and early[0].startswith("s_"): ex.append((g + 1, early.pop(0)))
        attn_stage(b, k, nq, ex)
    assert not early
    p2 = []
    for s_ in (2, 3): p2 += p2_w(s_) + p2_o(s_) + p2_adv(s_)
    st = lsum([0, 1]) + onorm(0, False, f1)
    drain(st, p2)
    stamp(b, 4)
    body = st + zipper(onorm(1, True, f1), lsum(hi), 2, 1)
    for q in hi: body += onorm(q, True, f1)
    body = [x + " ; tag=OS" if x.startswith("buffer_store") else x for x in body]
    nld = sum(1 for x in p2 if x.startswith("buffer_"))
    per = max(1, len(body) // (nld + 2))
    seq = []
    while body or p2:
        if p2:
            seq.append(p2.pop(0))
            while p2 and p2[0].startswith("s_"): seq.append(p2.pop(0))
        for _ in range(per):
            if body: seq.append(body.pop(0))
    outst = 48 - nld
    for x in seq:
        if x.startswith("buffer_"):
            if outst >= 62: b("s_waitcnt vmcnt(52)"); outst = 52
            outst += 1
        b(x)
    b.ext(vote_write())
    stamp(b)
    b(f"L_p2s{sfx}:")
    for s_ in range(4): p2_step(b, s_, s_ == 0, True, f"WAITV ; cover=P{s_} cap=51")
    b("WAITV lgkmcnt(0) ; cover=OS")
    b("s_branch L_vote")
    b(f"""L_espin{sfx}:
    s_mov_b32 s{sLATE}, 1
    s_mov_b32 s{SO2+2}, 0
    s_mov_b32 s{SW2+2}, 0
    s_branch L_eok{sfx}""")
    if nq == 3:
        b(f"""L_sig:
        v_mov_b32 v4, {131072+7168}
        ds_read_b128 v[4:7], v4
        s_waitcnt lgkmcnt(0)
        v_or_b32 v4, v4, v5
        v_or3_b32 v4, v4, v6, v7
        v_readfirstlane_b32 s{sT}, v4
        s_mov_b64 exec, 1
        s_cmp_lg_u32 s{sSAFE}, 0
        s_cselect_b32 s{sT}, 0, s{sT}
        s_cbranch_scc1 L_sig1
        buffer_atomic_add v{VONE}, off, s[{SCN}:{SCN+3}], s{sCW} sc1
        L_sig1:
        s_or_b32 s{sT}, s{sT}, s{sSIG}
        s_cbranch_scc1 L_sig2
        s_add_u32 s{sT}, s{sCO}, 16384
        s_mov_b32 s{sSIG}, 1
        buffer_atomic_add v{VONE}, off, s[{SCN}:{SCN+3}], s{sT} sc1
        L_sig2:
        s_mov_b64 exec, -1
        s_branch L_nosig""")
        b(f"""L_hspin:
        s_mov_b32 s{sCNT}, 0
        L_hsp:
        s_sleep 8
        buffer_load_dword v{VHS}, off, s[{SDB}:{SDB+3}], 0 sc1
        s_waitcnt vmcnt(0)
        v_readfirstlane_b32 s{sT}, v{VHS}
        s_add_u32 s{sCNT}, s{sCNT}, 1
        s_lshr_b32 s{sT+1}, s{sCNT}, 17
        s_or_b32 s{sT}, s{sT}, s{sT+1}
        s_cmp_eq_u32 s{sT}, 0
        s_cbranch_scc1 L_hsp
        s_branch L_hsok""")
    for uid in QSPINS:
        b(f"""L_fs{uid}:
        ds_read_b128 {vr(QF,4)}, v{QFB}
        s_waitcnt lgkmcnt(0)
        v_min3_u32 v{QF}, v{QF}, v{QF+1}, v{QF+2}
        v_min_u32 v{QF}, v{QF}, v{QF+3}
        v_cmp_gt_u32 vcc, s{sFQ}, v{QF}
        s_cbranch_vccnz L_fs{uid}
        s_branch L_fr{uid}""")
    QSPINS.clear()
    for uid in SPINS:
        b(f"""L_fs{uid}:
        ds_read_b128 {vr(FQ,4)}, v{VFB}
        s_waitcnt lgkmcnt(0)
        v_min3_u32 v{FQ}, v{FQ}, v{FQ+1}, v{FQ+2}
        v_min_u32 v{FQ}, v{FQ}, v{FQ+3}
        v_cmp_gt_u32 vcc, s{sFV}, v{FQ}
        s_cbranch_vccnz L_fs{uid}
        s_branch L_fr{uid}""")
    SPINS.clear()
    b(f"L_maxpass{sfx}:")
    for q in range(nq): b(f"v_mov_b32 v{T0+8+q}, 0xff800000")
    for s2 in range(4): b(f"v_add_u32 v{T0+12+s2}, 147456, v{KA+s2}")
    b(f"s_lshl_b32 s{sT}, s{sHEAD}, 18\ns_mov_b32 s{sCNT}, 0")
    b(f"L_mp{sfx}:")
    b(f"s_barrier\ns_add_u32 m0, s{sKB}, 147456")
    b(dma(DK0, SK, f"s{sT}", 0, "", "MP")); b(dma(DK1, SK, f"s{sT}", 1024, "", "MP"))
    b("s_waitcnt vmcnt(0)\ns_barrier")
    for kt in range(2):
        for s in range(4):
            b(f"ds_read_b128 {ar(ASP+4*(4*kt+s),4)}, v{T0+12+s} offset:{kt*4096}")
    b("s_waitcnt lgkmcnt(0)")
    for q in range(nq):
        for kt in range(2):
            for s in range(4):
                d = vr(S_ + 8 * q + 4 * kt, 4)
                b(f"{MF} {d}, {ar(ASP+4*(4*kt+s),4)}, {ar(AQ(q)+4*s,4)}, {d if s else '0'}")
    for q in range(nq):
        for e in range(0, 8, 2): b(f"v_max3_f32 v{T0+8+q}, v{T0+8+q}, v{S_+8*q+e}, v{S_+8*q+e+1}")
    b(f"s_add_u32 s{sT}, s{sT}, 8192\ns_add_u32 s{sCNT}, s{sCNT}, 1\ns_cmp_lt_u32 s{sCNT}, 32\ns_cbranch_scc1 L_mp{sfx}")
    b("s_barrier")
    xlane_reduce_multi(b, [T0 + 8 + q for q in range(nq)], [T0 + q for q in range(nq)], "v_max_f32")
    for q in range(nq):
        for r in range(4): b(f"v_sub_f32 v{CI+4*q+r}, 0, v{T0+8+q}")
    b(f"s_cmp_eq_u32 s{sHEAD}, 0\ns_cbranch_scc1 L_maxdone0{sfx}\ns_branch L_maxdone1{sfx}")

FA = [144, 192, 0, 96]
def p2_reg(slot, i): return FA[slot] + 4 * i
VPW = 2; VPO = 8
def p2_w(slot): return [f"buffer_load_dwordx4 {ar(p2_reg(slot, i),4)}, v{VPW + i//3}, s[{SW2}:{SW2+3}], s{sW2} offen offset:{1024*(i%3)}{K2F[OPT.get('p2f', 2)]} ; tag=P{slot}" for i in range(6)]
def p2_o(slot): return [f"buffer_load_dwordx4 {ar(p2_reg(slot, 6+i),4)}, v{VPO + i//3}, s[{SO2}:{SO2+3}], s{sO2} offen offset:{1024*(i%3)}{K2F[OPT.get('p2f', 2)]} ; tag=P{slot}" for i in range(6)]
def p2_adv(slot):
    m = 5 if slot == 3 else 1
    return [f"s_add_u32 s{sO2}, s{sO2}, {m*122880}", f"s_add_u32 s{sW2}, s{sW2}, {m*36864}"]

def vote_write():
    return [f"v_mov_b32 v4, s{sFLAG}", f"s_lshl_b32 s{sT}, s{sWAVE}, 2", f"s_add_u32 s{sT}, s{sT}, {131072+7168}",
            f"v_mov_b32 v5, s{sT}", "ds_write_b32 v5, v4"]

P2ACC = 112
def p2_acc(q, n): return P2ACC + 4 * (6 * q + n)
def p2_step(b, slot, first, prefetch, wait, order=None, extra=None):
    b(wait)
    order = order or [(q, n) for q in range(6) for n in range(6)]
    slots = []; gaps = [[] for _ in range(36)]
    for q, n in order:
        a_ = vr(p2_acc(q, n), 4)
        slots.append(f"{MF} {a_}, {ar(p2_reg(slot, n),4)}, {ar(p2_reg(slot, 6+q),4)}, {'0' if first else a_}")
    if prefetch:
        o_, w_ = p2_o(slot), p2_w(slot)
        for q in range(6): gaps[6 * q + 5].append(o_[q])
        for n in range(6): gaps[30 + n].append(w_[n])
        gaps[35] += p2_adv(slot)
    for g, x in (extra or []): gaps[g].append(x)
    emit_slots(b, slots, gaps)

def phase2(b):
    D = 4
    acc = p2_acc
    def step(slot, first, prefetch, N, order=None, extra=None): p2_step(b, slot, first, prefetch, f"s_waitcnt vmcnt({N})", order, extra)
    b(f"""L_vote:
    s_cmp_eq_u32 s{sLATE}, 2
    s_cbranch_scc1 L_go
    v_mov_b32 v5, {131072+7168}
    s_barrier
    ds_read_b128 v[16:19], v5
    s_waitcnt lgkmcnt(0)
    v_or_b32 v16, v16, v17
    v_or3_b32 v16, v16, v18, v19
    v_readfirstlane_b32 s{sT}, v16
    s_cmp_lg_u32 s{sSAFE}, 0
    s_cselect_b32 s{sT}, 0, s{sT}
    s_cmp_lg_u32 s{sT}, 0
    s_cbranch_scc1 L_redo
    s_cmp_eq_u32 s{sWAVE}, 3
    s_cbranch_scc0 L_nosig2
    s_mov_b64 exec, 1
    buffer_atomic_add v{VONE}, off, s[{SCN}:{SCN+3}], s{sCO} sc1
    s_mov_b64 exec, -1
    L_nosig2:""")
    stamp(b)
    b(f"""s_cmp_eq_u32 s{sIDLE}, 1
    s_cbranch_scc1 L_fini
    s_cmp_eq_u32 s{sLATE}, 1
    s_cbranch_scc1 L_lateld
    L_go:
    s_xor_b32 s70, s{sWAVE}, 1
    s_mul_i32 s70, s70, 27648
    v_add_u32 v16, s70, v{VLN}
    s_xor_b32 s70, s{sWAVE}, 2
    s_mul_i32 s70, s70, 27648
    s_add_u32 s70, s70, 9216
    v_add_u32 v17, s70, v{VLN}
    s_xor_b32 s70, s{sWAVE}, 3
    s_mul_i32 s70, s70, 27648
    s_add_u32 s70, s70, 18432
    v_add_u32 v18, s70, v{VLN}
    s_mul_i32 s70, s{sWAVE}, 27648
    v_add_u32 v19, s70, v{VLN}
    v_and_b32 v20, 15, v0
    v_mul_u32_u24 v20, 96, v20
    v_bfe_u32 v21, v0, 4, 2
    v_lshl_add_u32 v20, v21, 3, v20
    v_add_u32 v20, s70, v20            ; bf16 staging write address: row*96 + g*8
    v_and_b32 v21, 63, v0
    s_mov_b32 s71, 0x2aab""")
    for r in range(5):
        b(f"""v_add_u32 v22, {64*r}, v21
        v_mul_u32_u24 v23, s71, v22
        v_lshrrev_b32 v23, 16, v23
        v_mul_u32_u24 v{42+r}, {2304 - 96}, v23
        v_lshl_add_u32 v{42+r}, v22, 4, v{42+r}""")
    b(f"""v_cmp_gt_u32 vcc, 32, v21
    v_mov_b32 v22, 0x7f000000
    v_cndmask_b32 v46, v22, v46, vcc
    s_mov_b32 s88, s{sOUT}
    s_mov_b32 s89, s{sOUT+1}
    s_mov_b32 s90, {8*240*1152*2}
    s_mov_b32 s91, 0x20000
    s_mov_b32 s36, 0
    .p2align 3
    L_k2:""")
    for s_ in range(D):
        ex = [(0, f"buffer_load_dword v6, v{VP2}, s[{SCN}:{SCN+3}], 0 offen sc1")] if s_ == 0 else None
        step(s_, False, True, 36, extra=ex)
    b("""s_add_u32 s36, s36, 1
    s_cmp_eq_u32 s36, 2
    s_cbranch_scc1 L_chk
    L_chkd:
    s_cmp_lt_u32 s36, 6
    s_cbranch_scc1 L_k2""")
    b("L_tail:")
    for s_ in range(D - 1): step(s_, False, False, 12 * (D - 1 - s_))
    stamp(b)
    quad = lambda q, n: (q // 3) * 2 + (n // 3)
    oth = [(q, n) for d in (1, 2, 3) for q in range(6) for n in range(6) if quad(q, n) == d]
    mine = [(q, n) for q in range(3) for n in range(3)]
    wr = [(min(i_ + 5, 35), f"ds_write_b128 v{15 + quad(q, n)}, {vr(acc(q, n),4)} offset:{((q % 3) * 3 + n % 3) * 1024}") for i_, (q, n) in enumerate(oth)]
    step(D - 1, False, False, 0, order=oth + mine, extra=wr)
    if OPT.get('rstamps'): stamp(b)
    b("s_waitcnt lgkmcnt(0)\ns_barrier")
    if OPT.get('rstamps'): stamp(b)
    for t in range(9):
        for src in range(3):
            b(f"ds_read_b128 {vr(acc(*oth[3*t+src]),4)}, v19 offset:{src * 9216 + t * 1024}")
    for t, (q, n) in enumerate(mine):
        r0, r1, r2, m = acc(*oth[3*t]), acc(*oth[3*t+1]), acc(*oth[3*t+2]), acc(q, n)
        b(f"s_waitcnt lgkmcnt({min(15, 3 * (8 - t))})")
        for x_, y_ in ((r0, r1), (m, r2), (m, r0)):
            for r in (0, 2): b(f"v_pk_add_f32 v[{x_+r}:{x_+r+1}], v[{x_+r}:{x_+r+1}], v[{y_+r}:{y_+r+1}]")
        b(f"v_cvt_pk_bf16_f32 v{24+2*t}, v{m}, v{m+1}\nv_cvt_pk_bf16_f32 v{25+2*t}, v{m+2}, v{m+3}")
    for t, (q, n) in enumerate(mine):
        b(f"ds_write_b64 v20, v[{24+2*t}:{25+2*t}] offset:{q * 1536 + n * 32}")
    b("s_waitcnt lgkmcnt(0)")
    for r in range(5): b(f"ds_read_b128 {vr(48+4*r,4)}, v19 offset:{1024*r}")
    for r in range(5):
        b(f"s_waitcnt lgkmcnt({4-r})")
        b(f"buffer_store_dwordx4 {vr(48+4*r,4)}, v{42+r}, s[88:91], s{sOUTO} offen{K2F[OPT.get('outf', 0)]}")
    if OPT.get('rstamps'): stamp(b)
    b("L_fini:")
    if OPT.get('fixspan'):
        b(f"""s_waitcnt vmcnt(0)
        L_fix:
        s_memrealtime s[74:75]
        s_waitcnt lgkmcnt(0)
        s_sub_u32 s74, s74, s72
        s_cmp_lt_u32 s74, {OPT['fixspan'] * 100}
        s_cbranch_scc1 L_fix""")
    stamp_dump(b, 0, sWAVE)
    b("s_endpgm")
    b(f"""L_chk:
    s_waitcnt vmcnt(48)
    s_sub_u32 s{sO2}, s{sO2}, {28*122880}
    s_sub_u32 s{sW2}, s{sW2}, {28*36864}
    v_cmp_gt_u32 vcc, 4, v6
    s_cbranch_vccz L_chkd
    s_mov_b32 s37, 0
    L_poll:
    s_sleep 4
    buffer_load_dword v6, v{VP2}, s[{SCN}:{SCN+3}], 0 offen sc1
    s_add_u32 s37, s37, 1
    s_waitcnt vmcnt(0)
    v_cmp_gt_u32 vcc, 4, v6
    s_cbranch_vccz L_chkd
    s_cmp_lt_u32 s37, 0x20000
    s_cbranch_scc1 L_poll
    s_branch L_chkd
    L_lateld:
    s_mov_b32 s{SO2+2}, s100
    s_mov_b32 s{SW2+2}, s101
    s_mul_i32 s{sO2}, s{sWAVE}, {32*122880}
    s_mul_i32 s{sW2}, s{sWAVE}, {32*36864}
    s_mov_b32 s{sLATE}, 2
    s_mov_b32 s37, 0
    L_esp:
    s_sleep 4
    buffer_load_dword v{VCW}, v{VPE}, s[{SCN}:{SCN+3}], 0 offen sc1
    s_add_u32 s37, s37, 1
    s_waitcnt vmcnt(0)
    v_cmp_gt_u32 vcc, v{VTH}, v{VCW}
    s_cbranch_vccz L_espd
    s_cmp_lt_u32 s37, 0x20000
    s_cbranch_scc1 L_esp
    L_espd:""")
    for s_ in range(4): b.ext(p2_w(s_) + p2_o(s_) + p2_adv(s_))
    b(f"""s_waitcnt vmcnt(0)
    s_cmp_eq_u32 s{sWAVE}, 3
    s_cbranch_scc1 L_p2s3
    s_branch L_p2s4
    L_redo:
    s_mov_b32 s{sSAFE}, 1
    s_waitcnt vmcnt(0)
    s_barrier""")
    prologue_a(b)
    b.ext(x_dma(0, 4)); b.ext(w_dma(0, 4))
    b("s_branch L_late")

def kernel1():
    b = B()
    b("attn_kernel:")
    b("s_cmp_ge_u32 s2, 256\ns_cbranch_scc1 L_end1")
    if OPT['stamps']: b("s_mov_b32 s96, 0\nv_mov_b32 v14, 0\nv_mov_b32 v15, 0")
    stamp(b)
    if OPT.get('fixspan'): b("s_memrealtime s[72:73]\ns_waitcnt lgkmcnt(0)")
    b("s_load_dwordx16 s[48:63], s[0:1], 0\ns_load_dwordx4 s[64:67], s[0:1], 64\ns_load_dwordx2 s[100:101], s[0:1], 96\ns_load_dwordx4 s[76:79], s[0:1], 80")
    b(f"""s_mov_b32 s97, s2
    s_and_b32 s3, s2, 7
    s_lshr_b32 s2, s2, 3""")
    warm_code(b)
    b(f"""v_lshrrev_b32 v1, 6, v0
    s_bfe_u32 s68, s3, {0x10001 if OPT.get('map') else 0x10000}
    s_lshl_b32 s68, s68, 2
    s_and_b32 s69, s2, 3
    s_add_u32 s68, s68, s69        ; b
    v_readfirstlane_b32 s{sWAVE}, v1
    s_bfe_u32 s69, s3, {0x10000 if OPT.get('map') else 0x10001}
    s_lshl_b32 s69, s69, 3
    s_lshr_b32 s70, s2, 2
    s_add_u32 s69, s69, s70        ; hp
    s_lshr_b32 s3, s3, 2           ; blk
    s_lshl_b32 s{sWB}, s{sWAVE}, 12
    s_lshl_b32 s{sXB}, s{sWAVE}, 13
    s_mov_b32 s{sC}, {CSCALE}
    s_mov_b32 s{sC+1}, {CSCALE}
    s_mov_b32 s{sSAFE}, 0
    s_mov_b32 s{sFLAG}, 0""")
    prologue_a(b)
    b(f"""s_cmp_eq_u32 s3, 0
    s_waitcnt lgkmcnt(0)
    s_cselect_b64 s[48:49], s[48:49], s[58:59]
    s_cselect_b64 s[50:51], s[50:51], s[60:61]
    s_cselect_b64 s[52:53], s[52:53], s[62:63]
    s_cselect_b64 s[54:55], s[54:55], s[64:65]
    s_cselect_b64 s[56:57], s[56:57], s[66:67]""")
    if OPT.get('sstamps'): stamp(b)
    b(f"""s_mul_i32 s71, s68, 276480
    s_add_u32 s{SX}, s48, s71
    s_addc_u32 s{SX+1}, s49, 0
    s_mov_b32 s{SX+2}, 276480
    s_mov_b32 s{SX+3}, 0x20000
    s_lshl_b32 s71, s69, 9
    s_add_u32 s{SW}, s54, s71
    s_addc_u32 s{SW+1}, s55, 0
    s_sub_u32 s{SW+2}, 4718592, s71
    s_mov_b32 s{SW+3}, 0x20000""")
    b("L_srdok:")
    prologue_b(b)
    b(f"""s_cmp_eq_u32 s{sWAVE}, 3
    s_cbranch_scc1 L_begin3""")
    wave_code(b, 4, "4")
    b(".p2align 6")
    wave_code(b, 3, "3")
    b("L_phase2:")
    phase2(b)
    b("L_end1:\ns_endpgm\nL_codeend:")
    return b.L

def resolve_waits(L):
    out = []
    for i, x in enumerate(L):
        if x.startswith("WAITL"):
            tag = x.split()[1]
            n, T = tag[1:].split('.'); T = int(T)
            dst = set(range(AW + 8 * (T % 4), AW + 8 * (T % 4) + 8))
            cnt = 0; found = False
            for y in reversed(out):
                if y.startswith(("s_waitcnt", "WAITV")) and "lgkmcnt(0)" in y:
                    found = True; cnt = None; break
                if y.startswith("ds_"):
                    I = Ins(y)
                    if any(k == 'a' and r in dst for k, r in I.wr) or (T == 0 and 'need=X' in y):
                        found = True; break
                    cnt += 1
            assert found, x
            if cnt is not None:
                cnt = min(cnt, 15)
                out.append(f"s_waitcnt lgkmcnt({cnt})")
        else: out.append(x)
    return out

def expand_trace(L):
    def shift(line, name, it, step):
        if it == 0: return line
        def rep(m):
            k, n = m.group(1), int(m.group(2))
            if name == 'qp':
                if k == 'W': return f"W{n + step*it}"
                if k == 'X': return f"X{n + step*it//2}"
                return m.group(0)
            if k == 'KV': return f"KV{n + step*it}"
            return m.group(0)
        if ';' not in line: return line
        a, c = line.split(';', 1)
        return a + ';' + re.sub(r'\b(KV|W|X)(\d+)\b', rep, c)
    bodies = {}
    def go(i, stop):
        res = []
        while i < len(L):
            x = L[i]
            if x.startswith("LOOPBEGIN"):
                _, name, cnt, step = x.split(); cnt = int(cnt); step = int(step)
                body, j = go(i + 1, name)
                bodies[name] = (body, cnt, step)
                for it in range(cnt):
                    for y in body:
                        if y == f"LOOPEXIT {name}":
                            if it == cnt - 1: break
                            continue
                        res.append(shift(y, name, it, step))
                i = j + 1; continue
            if x.startswith("REPLAY"):
                _, name, off, cnt = x.split(); cnt = int(cnt); body, _, step = bodies[name]
                for it in range(cnt):
                    for y in body: res.append(shift(shift(y, name, it, step), name, 1, int(off)))
                i += 1; continue
            if x.startswith("LOOPEND") and x.split()[1] == stop: return res, i
            res.append(x); i += 1
        return res, i
    return go(0, None)[0]

def resolve_vm(L):
    idx = [f"{x} ;#{i}" if x.startswith("WAITV") else x for i, x in enumerate(L)]
    tr = expand_trace(idx)
    q = []; best = {}
    for x in tr:
        if x.startswith(("L_maxpass", "L_hspin", "L_espin")): break
        c = x.split(';', 1)[1] if ';' in x else ''
        if x.startswith(("buffer_", "global_")):
            if 'cond' in c: continue
            m = re.search(r'tag=(\w+)', c); q.append(m.group(1) if m else 'other')
        elif x.startswith("WAITV"):
            tags = set(re.search(r'cover=([\w,]*)', c).group(1).split(','))
            i = int(x.rsplit('#', 1)[1])
            n = 0
            for t in reversed(q):
                if t in tags: break
                n += 1
            else: n = 63
            m = re.search(r'cap=(\d+)', c)
            best[i] = min(best.get(i, 63), n, int(m.group(1)) if m else 63)
    out = []
    for i, x in enumerate(L):
        if x.startswith("WAITV"):
            a, c = x.split(';', 1)
            out.append(f"s_waitcnt vmcnt({best[i]}) {a[5:].strip()} ;{c}")
        else: out.append(x)
    return out

def check_protocol(L, label):
    tr = expand_trace(L)
    q = []; done = set(); issued = {}; pub = set(); errs = 0
    for x in tr:
        if x.startswith(("L_maxpass", "L_hspin", "L_espin")): break
        c = x.split(';', 1)[1] if ';' in x else ''
        if x.startswith("buffer_") or x.startswith("global_"):
            if 'cond' in c: continue
            m = re.search(r'tag=(\w+)', c); q.append(m.group(1) if m else 'other')
        elif x.startswith("s_waitcnt"):
            m = re.search(r'vmcnt\((\d+)\)', x)
            if m:
                n = int(m.group(1))
                while len(q) > n: done.add(q.pop(0))
            m = re.search(r'needtag=(\w+)', c)
            if m and m.group(1) in q: print(label, "ERR needtag", x); errs += 1
        elif x.startswith("s_barrier") or 'SYNC' in c:
            m = re.search(r'pub=([\w,]*)', c)
            if m:
                for t in m.group(1).split(','):
                    if not t: continue
                    if t in q or (t not in done and not (label == 'w3' and t[0] in 'XW')): print(label, "ERR publish not landed", t, x); errs += 1
                    pub.add(t)
        elif x.startswith("ds_read"):
            m = re.search(r'need=(\w+)', c)
            if m and m.group(1) not in pub : print(label, "ERR read unpublished", x); errs += 1
        assert len(q) <= 63, ("vmcnt overflow", x)
    return errs

def burn(L):
    out = []; on = False; c = 0; k = 0
    for x in L:
        if x == 'BURNON': on = True; c = 0; continue
        if x == 'BURNOFF': on = False; continue
        out.append(x)
        if on and OPT.get('burn'):
            if x.startswith('v_mfma'): c = 0
            elif x.startswith('v_'):
                c += 1
                if c >= OPT['burn']:
                    c = 0; k += 1
                    out.append(f"{MF} v[4:7], a[{32+4*(k%8)}:{35+4*(k%8)}], a[{96+4*(k%7)}:{99+4*(k%7)}], v[4:7]")
    return out

def check_lgkm(L, label):
    dq = []; vq = []; errs = 0; cache = {}
    for x in expand_trace(L):
        if x.startswith(("L_maxpass", "L_hspin", "L_espin")): break
        t = x.split(';')[0].strip()
        I = cache.get(t)
        if I is None: I = cache[t] = Ins(t)
        if I.kind == 'label': continue
        if I.op == 's_waitcnt':
            m = re.search(r'lgkmcnt\((\d+)\)', t)
            if m:
                while len(dq) > int(m.group(1)): dq.pop(0)
            m = re.search(r'vmcnt\((\d+)\)', t)
            if m:
                while len(vq) > int(m.group(1)): vq.pop(0)
            continue
        use = I.rd | I.srcc | I.wr
        for w in dq + vq:
            if w & use: print(label, "ERR uncovered", x); errs += 1; break
        if I.kind in ('dsr', 'dsw'): dq.append(I.wr)
        if I.kind in ('vload', 'vstore', 'dma') and 'cond' not in x: vq.append(I.wr)
    return errs

def finish(L):
    L = burn(L)
    L = resolve_waits(L)
    return L

def strip_markers(L):
    return [x for x in L if not x.startswith(("LOOPBEGIN", "LOOPEND", "LOOPEXIT", "REPLAY"))]

DESC = """.section .rodata,"a"
.p2align 6
.amdhsa_kernel {name}
  .amdhsa_next_free_vgpr {vgpr}
  .amdhsa_next_free_sgpr 102
  .amdhsa_accum_offset 256
  .amdhsa_group_segment_fixed_size 0
  .amdhsa_kernarg_size 104
  .amdhsa_user_sgpr_count 2
  .amdhsa_user_sgpr_kernarg_segment_ptr 1
  .amdhsa_system_sgpr_workgroup_id_x 1
  .amdhsa_float_denorm_mode_32 3
.end_amdhsa_kernel
"""

def build(**kw):
    OPT.update(kw)
    k1 = finish(kernel1())
    i4 = k1.index("L_begin4:"); i3 = k1.index("L_begin3:"); iv = k1.index("L_phase2:")
    ip = k1.index("L_srdok:"); pre = k1[ip:i4]
    k1 = k1[:i4] + resolve_vm(pre + k1[i4:i3])[len(pre):] + resolve_vm(pre + k1[i3:iv])[len(pre):] + k1[iv:]
    e = check_protocol(pre + k1[i4:i3], "w4") + check_protocol(pre + k1[i3:], "w3")
    e += check_lgkm(pre + k1[i4:i3], "w4") + check_lgkm(pre + k1[i3:], "w3")
    assert e == 0 or OPT.get('nocheck')
    k1 = strip_markers(k1)
    k1, n1, p1 = fix_hazards(k1)
    for p in p1: print("BRANCH HAZARD", p)
    assert not p1
    hdr = open("ref.txt").read().split("; Override")[0]
    KN = NAME + "_kernel"
    k1 = [x.replace("attn_kernel", KN) for x in k1]
    out = hdr
    out += "; generated by my own schedule generator: q-projection + attention (2 heads per workgroup), hand-off, output projection\n"
    out += ("; @launch kernel=%s grid=(256,1,1) block=(256,1,1) lds=163840\n" % KN) if OPT.get('list') else "; @launch grid=(256,1,1) block=(256,1,1) lds=163840\n"
    out += '.amdgcn_target "amdgcn-amd-amdhsa--gfx950"\n.text\n'
    out += ".globl %s\n.p2align 8\n.type %s,@function\n" % (KN, KN) + "\n".join(k1) + "\n"
    out += DESC.format(name=KN, vgpr=512)
    return out, n1

if __name__ == "__main__":
    kw = {}
    for a in sys.argv[2:]:
        k, v = a.split('='); kw[k] = int(v)
    s, info = build(**kw)
    open(sys.argv[1], "w").write(s)
    print("nops inserted", info, "bytes", len(s))
```

```python
import sys, re
from asmlib import fix_hazards, Ins

NAME = "concat_heads__mha_block_cached__mha_block_cached__near_ridge"
MF = "v_mfma_f32_16x16x32_bf16"
CSCALE = 0x3e0293ee
LTHR = 0x4e800000

O_BLK = 128 * 122880
WOT_OFF = 2 * O_BLK
WOT_BLK = 128 * 36864
CNT_OFF = WOT_OFF + 2 * WOT_BLK

class B:
    def __init__(self): self.L = []
    def __call__(self, s):
        for x in s.split("\n"):
            x = x.strip()
            if x: self.L.append(x)
    def ext(self, l): self.L.extend(l)

def vr(b, n): return f"v[{b}:{b+n-1}]"
def ar(b, n): return f"a[{b}:{b+n-1}]"

def emit_slots(b, slots, gaps):
    for i, s in enumerate(slots):
        if s: b(s)
        nv = [x for x in gaps[i] if not x.startswith('v_')]
        v = [x for x in gaps[i] if x.startswith('v_')]
        for x in nv + v: b(x)

S_ = 16; P_ = 48; CI = 64; LS = 80
KA = 84
VA = 88
VWA = 105
DK0 = 96; DK1 = 97; DV0 = 98; DV1 = 99
VO = 100
VWO = 101
VWX = 102
VLN = 103
VPF = 104
VPD = 105
T0 = 108
O_ = 128
XA = 16; WA = 28; DX = 20; DW = 24
WSLOT = [49152, 114688, 131072, 147456]; sKB = 69
def AQ(q): return 32 + 64 * (q // 2) + 16 * (q % 2)
def AQ2(q): return 128 + 16 * q
AK = 0; AV = 64; ASP = 64
AX = 0; AW = 64
SX = 4; SW = 8; SK = 12; SV = 16; SO = 20; SWO = 24; SWT = 28
sWAVE = 32; sWB = 33; sKV = 34; sCNT = 35; sHEAD = 36; sSAFE = 37; sFLAG = 38
sXO = 39; sXO2 = 40; sWOFF = 41; sXB = 42; sOO = 43; sC = 44
sT = 46
sH0 = 68; sWOS = 64; sWTS = 65; sSTAMP = 72; SPF = 76; sPF = 68; sWXS = 67; sROT = 80; sLIN = 81
SCN = 48; SDB = 52; SO2 = 56; sCO = 60; sCW = 61; SIN = 84; SIF = 88; sOUT = 76; VHS = 106; VCW = 107; VONE = 104
SW2 = 80; sO2 = 98; sW2 = 99; sOUTO = 66; sOP = 41; VPE = 11; VTH = 12; VP2 = 13; VWE = 10; AST = 192; sSIG = 78; sLATE = 79; sIDLE = 67; sPW = 40; sPZ = 64; sST = 65; VPA = 102; DEC = 131072 + 7168 + 64; sFV = 39; VFA = 1; VFB = 101; FQ = 80; FLAGS = 131072 + 7168 + 32

OPT = dict(nt_kv=1, nt_w=0, nt_x=0, nt_wo=0, stamps=0, warm=1, of=2, of0=2, e67=1, bal=0, wts=1, sw2=2)

K2F = ['', ' nt', ' sc1', ' sc0 sc1', ' sc0', ' sc1 nt', ' sc0 sc1 nt']
def fl(k): return ["", " nt", " sc1 nt", " sc0 sc1 nt", " sc0 nt"][OPT[k]]

def dma(voff, srd, soff, off, flag, tag):
    return f"buffer_load_dwordx4 v{voff}, s[{srd}:{srd+3}], {soff} offen offset:{off}{flag} lds ; tag={tag}"

def kv_adv():
    if not OPT.get('rot'): return [f"s_add_u32 s{sKV}, s{sKV}, 8192"]
    return [f"s_add_u32 s{sLIN}, s{sLIN}, 8192", f"s_add_u32 s{sKV}, s{sLIN}, s{sROT}",
            f"s_and_b32 s{sKV}, s{sKV}, 0x3ffff", f"s_and_b32 s{sT+1}, s{sLIN}, 0xfffc0000", f"s_or_b32 s{sKV}, s{sKV}, s{sT+1}"]

def k_dma(tile, so=None):
    so = so or f"s{sKV}"
    return [f"s_add_u32 m0, s{sKB}, {(tile % 8) * 8192}",
            dma(DK0, SK, so, 0, fl('nt_kv'), f"KV{tile}"), dma(DK1, SK, so, 1024, fl('nt_kv'), f"KV{tile}")]
def v_dma(tile, so=None):
    so = so or f"s{sKV}"
    return [f"s_add_u32 m0, s{sKB}, {65536 + (tile % 8) * 8192}",
            dma(DV0, SV, so, 0, fl('nt_kv'), f"KV{tile}"), dma(DV1, SV, so, 1024, fl('nt_kv'), f"KV{tile}")]

def x_dma(m, nq):
    slot = 16384 if m % 2 else 81920
    out = []
    out.append(f"s_add_u32 m0, s{sXB}, {slot}")
    for j in range(4): out.append(dma(DX + j, SX, f"s{sXO}", 1024 * j, fl('nt_x'), f"X{m}"))
    out.append(f"s_add_u32 m0, s{sXB}, {slot + 4096}")
    for j in range(4 if nq == 4 else 2): out.append(dma(DX + j, SX, f"s{sXO2}", 1024 * j, fl('nt_x'), f"X{m}"))
    out.append(f"s_add_u32 s{sXO}, s{sXO}, 128")
    out.append(f"s_add_u32 s{sXO2}, s{sXO2}, 128")
    return out

def w_dma(n, nq):
    out = [f"s_add_u32 m0, s{sWB}, {WSLOT[n % 4]}"]
    for j in range(4): out.append(dma(DW + j, SW, f"s{sWOFF}", 1024 * j, fl('nt_w'), f"W{n}"))
    if n % 2 == 0: out.append(f"s_add_u32 s{sWOFF}, s{sWOFF}, 256")
    else: out.append(f"s_add_u32 s{sWOFF}, s{sWOFF}, {524288 - 256}")
    return out

def w_reads(n, T):
    sp_, a = T // 2, T % 2
    hl, sp = sp_ // 2, sp_ % 2
    out = []
    for s in range(2):
        for a2 in range(2):
            d = AW + 8 * (T % 4) + 4 * s + 2 * a2
            off = max(n % 4 - 1, 0) * 16384 + hl * 8192 + (32 * s + 4 * a2) * 128 + 8 * a
            out.append(f"ds_read_b64_tr_b16 {ar(d,2)}, v{WA + sp + (2 if n % 4 else 0)} offset:{off} ; need=W{n}")
    return out

def x_reads(m, nq):
    out = []
    for q in range(nq):
        for s in range(2):
            d = AX + 32 * (m % 2) + 8 * q + 4 * s
            out.append(f"ds_read_b128 {ar(d,4)}, v{XA + s + (0 if m % 2 else 2)} offset:{q * 2048} ; need=X{m}")
    return out

def qacc(hd, q, T):
    r = 128 + 32 * q + 4 * T
    return vr(r, 4) if hd == 0 else ar(r, 4)

def pf_load():
    return f"buffer_load_dword v{VPD}, v{VPF}, s[{SPF}:{SPF+3}], s{sPF} offen nt ; tag=PF"

def wo_dma():
    out = []
    for r in range(2):
        out.append(f"s_add_u32 m0, s{sWOS}, {4096*r}")
        for j in range(4):
            out += [f"PRE s_mov_b32 s{sT}, {8192*j + 512*r}", dma(VWO, SWO, f"s{sT}", 1024 * j, fl('nt_wo'), "WO")]
    out += [f"s_mov_b32 m0, s{sWTS}", dma(VWX, SWO, "0", 0, fl('nt_wo'), "WO")]
    return out
WOF = 32
def wo_reads():
    out = [f"ds_read_b64_tr_b16 {vr(WOF+16*r+4*tl+2*a,2)}, v{VWA} offset:{4096*r + 2048*a + 32*tl}" for r in range(2) for tl in range(4) for a in range(2)]
    return out + [f"ds_read_b64_tr_b16 {vr(WOF+32+2*a,2)}, v{VWE} offset:{512*a}" for a in range(2)]
def wo_stores():
    out = []
    for r in range(2):
        out.append(f"PRE s_add_u32 s{sT}, s{sWB}, {16384*r}")
        out += [f"buffer_store_dwordx4 {vr(WOF+16*r+4*tl,4)}, v{VLN}, s[{SWT}:{SWT+3}], s{sT} offen offset:{1024*tl} sc1 ; tag=WT" for tl in range(4)]
    out += [f"PRE s_lshl_b32 s{sT}, s{sWAVE}, 10", f"PRE s_add_u32 s{sT}, s{sT}, 32768",
            f"buffer_store_dwordx4 {vr(WOF+32,4)}, v{VLN}, s[{SWT}:{SWT+3}], s{sT} offen sc1 ; tag=WT"]
    return out

QSPINS = []; QF = 68; QFA = 72; QFB = 73; sFQ = 35; QFLAGS = 112640
def qproj_stage(b, n, nq, fill=None):
    hd, m = n % 2, n // 2
    nx = 8 if nq == 4 else 6
    slots = []; gaps = [[] for _ in range(64)]
    for T in range(8):
        for q in range(4):
            for s in range(2):
                if q >= nq: slots.append(None); continue
                acc = qacc(hd, q, T)
                c = "0" if (m == 0 and s == 0) else acc
                slots.append(f"{MF} {acc}, {ar(AW+8*(T%4)+4*s,4)}, {ar(AX+32*(m%2)+8*q+4*s,4)}, {c}")
    start = {3: 5, 4: 12, 5: 19, 6: 26, 7: 33}
    rd = w_reads(n, 2); gaps[0].append(rd[3])
    for T, g in start.items():
        for i, x in enumerate(w_reads(n, T)): gaps[g + i].append(x)
    FSQ = OPT.get('fsq') and n < 15
    if n < 17:
        for T, g in (((0, 53), (1, 57)) if FSQ else ((0, 45), (1, 53))):
            for i, x in enumerate(w_reads(n + 1, T)): gaps[g + i].append(x)
        for i, x in enumerate(w_reads(n + 1, 2)[:3]): gaps[61 + i].append(x)
    xr = []
    if n % 2 == 1 and m + 1 <= 8:
        xr = x_reads(m + 1, nq)
        for x, g in zip(xr, (9, 10, 16, 17, 23, 24, 30, 31) if not (n == 1 and OPT.get('x1late')) else (49, 50, 51, 52, 57, 58, 59, 60)): gaps[g].append(x)
    for T in range(1, 8): gaps[8 * T - 1].append(f"WAITL W{n}.{T}")
    if n < 17: gaps[63].append(f"WAITL W{n+1}.0")
    req = []
    if n + 1 <= 17: req.append(f"W{n+1}")
    if n % 2 == 0 and m + 1 <= 8 and not (n == 0 and OPT.get('x1late')): req.append(f"X{m+1}")
    if n == 1 and OPT.get('x1late'): req.append("X1")
    if n == 17: req += ["KV0", "KV1"]
    cov = list(req)
    if nq == 3 and n == 2:
        cov.append("INIT")
        gaps[55].append(f"buffer_store_dword v{VONE}, v{VLN}, s[{SIF}:{SIF+3}], 0 offen sc1 ; tag=FLAG")
    if nq == 3 and n == 12:
        gaps[45].append(f"buffer_load_dword v{VHS}, off, s[{SDB}:{SDB+3}], 0 ; tag=HS")
    if n == 17 and OPT.get('fsa'):
        gaps[36] += [f"s_mov_b32 s{sFV}, 0", f"v_mov_b32 v{VFB}, {FLAGS}", f"v_mov_b32 v{FQ}, 0"]
        gaps[37] += [f"v_lshl_add_u32 v{VFA}, s{sWAVE}, 2, v{VFB}"]
        gaps[39] += [f"ds_write_b32 v{VFA}, v{FQ}"]
    if FSQ:
        uid = f"q{n}_{nq}"
        gaps[42] += [f"s_add_u32 s{sFQ}, s{sFQ}, 1", f"v_mov_b32 v{QF}, s{sFQ}"]
        gaps[43] += ["WAITV lgkmcnt(0) ; cover=" + ",".join(cov), f"ds_write_b32 v{QFA}, v{QF}"]
        gaps[47].append(f"ds_read_b128 {vr(QF,4)}, v{QFB}")
        gaps[50] += ["s_waitcnt lgkmcnt(0)", f"v_min3_u32 v{QF}, v{QF}, v{QF+1}, v{QF+2}"]
        gaps[51].append(f"v_min_u32 v{QF}, v{QF}, v{QF+3}")
        gaps[52].append(f"v_cmp_gt_u32 vcc, s{sFQ}, v{QF}\ns_cbranch_vccnz L_fs{uid}\nL_fr{uid}: ; SYNC pub=" + ",".join(req))
        QSPINS.append(uid)
    else:
        gaps[43].append("WAITV lgkmcnt(0) ; cover=" + ",".join(cov))
        gaps[44].append("s_barrier ; pub=" + ",".join(req))
    def place(seq, first, step):
        g = first
        for x in seq:
            if x.startswith("buffer_"): gaps[g].append(x); g += step
            elif x.startswith(("s_add_u32 m0", "s_mov_b32 m0")): gaps[g - 1].append(x)
            elif x.startswith("PRE "): gaps[g - 1].append(x[4:])
            else: gaps[min(g - step + 1, 63)].append(x)
    if n == 0 and OPT.get('x2late'): place(w_dma(2, nq) + w_dma(3, nq), 2, 5)
    elif n == 1 and OPT.get('x2late'): place(x_dma(2, nq), 2, 4)
    elif n == 0: place(w_dma(2, nq) + w_dma(3, nq) + x_dma(2, nq), 1, 2)
    elif n % 2 == 0 and m + 2 <= 8: place(x_dma(m + 2, nq), 2, 5)
    def single(kind, i_):
        if kind == 'wo':
            if i_ == 8: return [f"s_mov_b32 m0, s{sWTS}", None, dma(VWX, SWO, "0", 0, fl('nt_wo'), "WO")]
            r, j_ = i_ // 4, i_ % 4
            return [f"s_add_u32 m0, s{sWOS}, {4096*r}", f"s_mov_b32 s{sT}, {8192*j_ + 512*r}", dma(VWO, SWO, f"s{sT}", 1024 * j_, fl('nt_wo'), "WO")]
        t, j_ = i_ // 4, i_ % 4
        d_ = (k_dma if j_ < 2 else v_dma)(t, f"s{sT}")
        return [d_[0], f"s_mov_b32 s{sT}, {8192*t}", d_[1 + j_ % 2]]
    if OPT.get('slowpos', 0):
        R0 = 9
        sched_ = {2: [('wo', 0), ('wo', 1), ('wo', 2)], 4: [('wo', 3), ('wo', 4), ('wo', 5)], 6: [('wo', 6), ('wo', 7), ('wo', 8)],
                  10: [('kv', i_) for i_ in range(4)], 12: [('kv', i_) for i_ in range(4, 8)]}
        for (kind, i_) in sched_.get(n, []):
            gaps[63] += [x for x in single(kind, i_) if x]
    else:
        W0 = 1; R0 = W0 + 7
        sched_ = {W0 + i_ // 2: [] for i_ in range(9)}
        for i_ in range(8 if OPT.get('fsq') else 9): sched_[W0 + i_ // 2].append(('wo', i_))
        if not OPT.get('late'):
            for i_ in range(8): sched_.setdefault(R0 + 2 + i_ // 2, []).append(('kv', i_))
        for (kind, i_), g in zip(sched_.get(n, []), (39, 42) if (n % 2 == 0 or OPT.get('stpos', 0) or (n == 1 and OPT.get('x2late'))) else (12, 32)):
            m0_, so_, ld_ = single(kind, i_)
            gaps[g - 1].append(m0_)
            if so_: gaps[g - 1].append(so_)
            gaps[g].append(ld_)
    if n == 13: gaps[62].append(f"s_mov_b32 s{sKV}, 16384")
    if n in (R0, R0 + 1):
        rd = wo_reads()
        if OPT.get('fsq'): rd = rd[:16]
        if n == R0:
            gaps[44].append("WAITV ; cover=WO")
            for x, g in zip(rd[:8], [44, 45, 46, 48, 49, 51, 52, 52] if FSQ else [49, 50, 51, 52, 57, 58, 59, 60]): gaps[g].append(x)
        else:
            for x, g in zip(rd[8:], [1, 2, 3, 4, 11, 18, 25, 37, 38, 39]): gaps[g].append(x)
    for i_ in range(0 if OPT.get('wts') else 9):
        if OPT.get('slowpos', 0):
            if n != (10, 10, 12, 12, 14, 14, 14, 16, 16)[i_]: continue
            t_ = [f"s_add_u32 s{sT+1}, s{sWB}, {16384*(i_//4)}"] if i_ < 8 else [f"s_lshl_b32 s{sT+1}, s{sWAVE}, 10", f"s_add_u32 s{sT+1}, s{sT+1}, 32768"]
            gaps[62] += t_ + [f"buffer_store_dwordx4 {vr(WOF+4*i_,4)}, v{VLN}, s[{SWT}:{SWT+3}], s{sT+1} offen offset:{1024*(i_%4) if i_ < 8 else 0} sc1 ; tag=WT"]
            continue
        r, tl = i_ // 4, i_ % 4
        if OPT.get('stpos', 0):
            if n != (9, 9, 11, 11, 13, 13, 15, 15, 15)[i_]: continue
            g = (8, 10, 2, 4, 2, 4, 2, 4, 7)[i_]
        else:
            if n != min(R0 + 1 + i_, 17 - (1 if i_ < 8 else 0)) : continue
            g = 62 if not any('tag=WT' in x for x in gaps[62]) else 48
        if i_ < 8: gaps[g - 1].append(f"s_add_u32 s{sT+1}, s{sWB}, {16384*r}")
        else: gaps[g - 2].append(f"s_lshl_b32 s{sT+1}, s{sWAVE}, 10"); gaps[g - 1].append(f"s_add_u32 s{sT+1}, s{sT+1}, 32768")
        gaps[g].append(f"buffer_store_dwordx4 {vr(WOF+4*i_,4)}, v{VLN}, s[{SWT}:{SWT+3}], s{sT+1} offen offset:{1024*tl if i_ < 8 else 0}{K2F[OPT.get('wtf', 2)]} ; tag=WT")
    if n == 14 and OPT.get('late'):
        place([f"PRE s_mov_b32 s{sT}, 0"] + k_dma(0, f"s{sT}") + v_dma(0, f"s{sT}") + [f"PRE s_mov_b32 s{sT}, 8192"] + k_dma(1, f"s{sT}") + v_dma(1, f"s{sT}"), 2, 5)
    if n in ((15, 16) if OPT.get('late') else (14, 16)):
        seq = []
        for t in range(2, 6):
            seq += [f"PRE s_add_u32 s{sT}, s{sKV}, {(t - 2) * 8192}"] + (k_dma if n < 16 else v_dma)(t, f"s{sT}")
        if n == 16: seq.append(f"s_add_u32 s{sKV}, s{sKV}, 32768")
        place(seq, 2, 5)
    if n == 17 and OPT.get('e67'):
        place(k_dma(6) + [f"PRE s_add_u32 s{sT}, s{sKV}, 8192"] + k_dma(7, f"s{sT}"), 4, 9)
        place(v_dma(6) + v_dma(7, f"s{sT}") + [f"s_add_u32 s{sKV}, s{sKV}, 16384"], 47, 4)
    if OPT.get('awake') and n % 2 == 1 and 3 <= n <= 11:
        seq = []
        for t in range(OPT['awake']):
            seq += [f"PRE s_add_u32 s{sPF}, s{sPF}, 8192"] + k_dma(t % 2, f"s{sPF}") + v_dma(t % 2, f"s{sPF}")
        seq = [x.replace('tag=KV0', 'tag=DUM').replace('tag=KV1', 'tag=DUM') for x in seq]
        place(seq, 2, 40 // (4 * OPT['awake']))
    if OPT.get('awake') and n == 13:
        place([f"PRE s_mov_b32 s{sPF}, 0"] + k_dma(0, f"s{sPF}") + v_dma(0, f"s{sPF}") + [f"PRE s_mov_b32 s{sPF}, 8192"] + k_dma(1, f"s{sPF}") + v_dma(1, f"s{sPF}"), 2, 5)
    if n + 4 <= 17: place(w_dma(n + 4, nq), *((54, 3) if FSQ else (46, 5)))
    for i_ in range(OPT.get('qslow', 0)): gaps[2 + 2 * i_].append('v_nop\nv_nop\nv_nop\nv_nop\nv_nop\nv_nop')
    if fill is not None:
        for g in range(20 if n == 16 else 0, 64):
            if slots[g] is None: continue
            for _ in range(2):
                if fill: gaps[g].append(fill.pop(0))
    emit_slots(b, slots, gaps)
    if OPT.get('qstamps'): stamp(b)

def k_reads(unit, tile):
    out = []
    for kt in range(2):
        for s in range(4):
            f = 4 * kt + s
            out.append(f"ds_read_b128 {ar(AK+4*f,4)}, v{KA + s} offset:{unit * 8192 + kt * 4096} ; need=KV{tile}")
    return out

def v_reads(unit, tile):
    out = []
    for T in range(8):
        th, tl = T // 4, T % 4
        for a in range(2):
            out.append(f"ds_read_b64_tr_b16 {ar(AV+4*T+2*a,2)}, v{VA + T} offset:{unit * 8192 + a * 4096} ; need=KV{tile}")
    return out

import sched, sched2
LM = 1
for a_ in sys.argv[2:]:
    if a_.startswith('lm='): LM = int(a_[3:])
if LM:
    NS = 68
    V_GAPS = list(range(26, 42)); K_GAPS = list(range(50, 58)); D_GAPS = [3, 11, 17, 23]
    SM = sched2.schedule(V_GAPS + K_GAPS, D_GAPS)
    for a_ in sys.argv[2:]:
        if a_.startswith('dg='): D_GAPS = {1: [3, 7, 33, 38], 2: [4, 8, 34, 40], 3: [3, 8, 36, 56]}[int(a_[3:])]
else:
    NS = 64
    V_GAPS = list(range(25, 41)); K_GAPS = list(range(48, 56)); D_GAPS = [1, 9, 17, 23]
    SM = sched.schedule(4, V_GAPS + K_GAPS, D_GAPS)
BG = K_GAPS[0] - 1
LA = 108; ONES = 124
def sm_text(kind, q, e):
    s = S_ + 8 * q + e
    if kind == 'exp': return f"v_exp_f32 v{s}, v{s}"
    if kind == 'add': return f"v_add_f32 v{LS+q}, v{LS+q}, v{s}"
    return f"v_cvt_pk_bf16_f32 v{P_+4*q+e//2}, v{s-1}, v{s}"
def sm_items(nq, lo, hi):
    it = [(g, k[0] == 'exp', k) for k, g in SM.items() if k[1] < nq and lo <= g < hi]
    it.sort(key=lambda t: (t[0] % NS, t[1], -t[0]))
    return [(g, k) for g, _, k in it]

def qk(q, kt, s, czero=False):
    d = vr(S_ + 8 * q + 4 * kt, 4)
    c = d if s else ("0" if czero else vr(CI + 4 * q, 4))
    return f"{MF} {d}, {ar(AK+4*(4*kt+s),4)}, {ar(AQ(q)+4*s,4)}, {c}"

def pv(q, T, czero=False):
    d = vr(O_ + 32 * q + 4 * T, 4)
    return f"{MF} {d}, {ar(AV+4*T,4)}, {vr(P_+4*q,4)}, {'0' if czero else d}"

def lsm(q, czero=False):
    d = vr(LA + 4 * q, 4)
    return f"{MF} {d}, {vr(ONES,4)}, {vr(P_+4*q,4)}, {'0' if czero else d}"

SPINS = []
def attn_stage(b, k, nq, extra=None, fill=None, resume=False):
    kk = k % 32; u = k % 8
    if resume: kk = 0
    slots = []; gaps = [[] for _ in range(NS)]
    for q in (0, 1):
        for kt in range(2):
            for s in range(4): slots.append(qk(q, kt, s))
    for q in (2, 3):
        for T in range(8): slots.append(pv(q, T, kk == 1) if (q < nq and kk > 0) else None)
        if LM: slots.append(lsm(q, kk == 1) if (q < nq and kk > 0) else None)
    for q in (2, 3):
        for kt in range(2):
            for s in range(4): slots.append(qk(q, kt, s) if q < nq else None)
    for q in (0, 1):
        for T in range(8): slots.append(pv(q, T, kk == 0 and not resume))
        if LM: slots.append(lsm(q, kk == 0 and not resume))
    for g, key in sm_items(nq, 0, 2 * NS if kk > 0 else NS): gaps[g % NS].append(sm_text(*key))
    for g, x in zip(V_GAPS, v_reads(u, k)): gaps[g].append(x)
    DIST = 7 if OPT.get('d7') else OPT.get('dist', 5 if OPT.get('fsa') else 6)
    if DIST == 7 and k < 63:
        gaps[BG - 1].append(f"WAITV lgkmcnt(0) ; cover=KV{k+1}" + (",WT" if kk == 11 else ""))
        gaps[BG].append(f"s_barrier ; pub=KV{k+1}")
    elif k % 2 == 1 and k < 63 and OPT.get('fsa'):
        uid = f"{k}_{nq}"
        pg = OPT.get('fsp', 30); rg = OPT.get('fsr', 36)
        gaps[pg - 2].append(f"s_add_u32 s{sFV}, s{sFV}, 1")
        gaps[pg - 1].append(f"v_mov_b32 v{FQ}, s{sFV}") if pg - 1 >= 30 or pg < 26 else gaps[pg].append(f"v_mov_b32 v{FQ}, s{sFV}")
        gaps[pg + 1].insert(0, f"WAITV ; cover=KV{k+1},KV{k+2}" + (",WT" if kk == 11 else ""))
        gaps[pg + 1].append(f"ds_write_b32 v{VFA}, v{FQ}")
        gaps[rg].append(f"ds_read_b128 {vr(FQ,4)}, v{VFB}")
        gaps[rg + 3].insert(0, "s_waitcnt lgkmcnt(2)")
        gaps[rg + 3].append(f"v_min3_u32 v{FQ}, v{FQ}, v{FQ+1}, v{FQ+2}")
        gaps[rg + 4].append(f"v_min_u32 v{FQ}, v{FQ}, v{FQ+3}")
        gaps[rg + 5].append(f"v_cmp_gt_u32 vcc, s{sFV}, v{FQ}")
        gaps[rg + 6].insert(0, f"s_cbranch_vccnz L_fs{uid}\nL_fr{uid}: ; SYNC pub=KV{k+1},KV{k+2}")
        gaps[BG].append("s_waitcnt lgkmcnt(0)")
        SPINS.append(uid)
    elif k % 2 == 1 and k < 63:
        gaps[BG - 1].append(f"WAITV lgkmcnt(0) ; cover=KV{k+1},KV{k+2}" + (",WT" if k == (39 if OPT.get('pz') else 11) else ""))
        gaps[BG].append(f"s_barrier ; pub=KV{k+1},KV{k+2}")
    else:
        gaps[BG].append("s_waitcnt lgkmcnt(0)")
    if k < 63:
        for g, x in zip(K_GAPS, k_reads((u + 1) % 8, k + 1)): gaps[g].append(x)
        gaps[NS - 1].append("s_waitcnt lgkmcnt(0)")
    if k + DIST < 64 and not (OPT.get('e67') and k + DIST < 8) and not (OPT.get('sw2') and k in (32, 33)):
        kd, vd = k_dma(k + DIST), v_dma(k + DIST)
        gaps[D_GAPS[0] - 1].append(kd[0]); gaps[D_GAPS[2] - 1].append(vd[0])
        for x, g in zip(kd[1:] + vd[1:], D_GAPS): gaps[g].append(x)
        gaps[44] += kv_adv()
    for i_ in range(OPT.get('slow', 0)): gaps[2 + 2 * i_].append('v_nop\nv_nop\nv_nop\nv_nop')
    if extra:
        for g, x in extra: gaps[g].append(x)
    if fill:
        cost = lambda x: 2 if x.startswith('v_exp') else (1 if x.startswith(('v_', 'ds_', 'buffer_')) else 0)
        room = [max(0, 2 - sum(cost(x) for x in gaps[g])) if slots[g] else 0 for g in range(NS)]
        left = len(fill) - sum(room)
        live = [g for g in range(NS) if slots[g]]
        for i_ in range(max(left, 0)): room[live[(i_ * len(live)) // left]] += 1
        for g in range(NS):
            for _ in range(room[g]):
                if fill: gaps[g].append(fill.pop(0))
        assert not fill
    for key, pre in (('nobar', ('s_barrier',)), ('nodma', ('buffer_load_dwordx4 v9',)), ('nolds', ('ds_read',)), ('noexp', ('v_exp',))):
        if OPT.get(key) and 8 <= k < 16: gaps = [[x if not x.startswith(pre) else 's_nop 0 ;' + x.split(';', 1)[-1] for x in g] for g in gaps]
    if OPT.get('astamps') and k % 2 == 0: stamp(b)
    if OPT.get('dmaonly'):
        slots = [None] * NS
        gaps = [[x for x in g if not x.startswith(('v_', 'ds_'))] for g in gaps]
    emit_slots(b, slots, gaps)

def xlane_reduce(b, reg, tmp, op):
    b(f"v_mov_b32 v{tmp}, v{reg}")
    b(f"v_permlane32_swap_b32 v{reg}, v{tmp}")
    b(f"{op} v{reg}, v{reg}, v{tmp}")
    b(f"v_mov_b32 v{tmp}, v{reg}")
    b(f"v_permlane16_swap_b32 v{reg}, v{tmp}")
    b(f"{op} v{reg}, v{reg}, v{tmp}")

def xlane_reduce_multi(b, regs, tmps, op):
    for sw in ("v_permlane32_swap_b32", "v_permlane16_swap_b32"):
        for r, t in zip(regs, tmps): b(f"v_mov_b32 v{t}, v{r}")
        for r, t in zip(regs, tmps): b(f"{sw} v{r}, v{t}")
        for r, t in zip(regs, tmps): b(f"{op} v{r}, v{r}, v{t}")

def stamp(b, idx=None):
    if not OPT['stamps']: return
    b(f"s_memtime s[{sSTAMP}:{sSTAMP+1}]\ns_memrealtime s[{sSTAMP+2}:{sSTAMP+3}]\ns_waitcnt lgkmcnt(0)")
    b(f"s_mov_b32 s95, m0\ns_mov_b32 m0, s96\nv_writelane_b32 v14, s{sSTAMP}, m0\nv_writelane_b32 v15, s{sSTAMP+2}, m0\ns_mov_b32 m0, s95\ns_add_u32 s96, s96, 1")

def stamp_dump(b, k, wave):
    if not OPT['stamps']: return
    b("s_waitcnt vmcnt(0)")
    stamp(b)
    if OPT['stamps'] == 2:
        b("s_load_dwordx2 s[92:93], s[0:1], 88\ns_waitcnt lgkmcnt(0)")
        b(f"s_cmp_lg_u32 s{wave}, 0\ns_cbranch_scc1 L_end{k+1}\ns_lshr_b32 s94, s97, 3\ns_cmp_lg_u32 s94, 5\ns_cbranch_scc1 L_end{k+1}")
        b(f"s_add_u32 s88, s92, {OPT.get('dbgoff',0)*(1-k)}\ns_addc_u32 s89, s93, 0\ns_mov_b32 s90, 256\ns_mov_b32 s91, 0x20000")
        sel = [0, 2, 3, 5, 6, 7, 8, 9, 10, 11, 12]
        b("s_mov_b64 exec, 1")
        for i, ix in enumerate(sel):
            b(f"v_readlane_b32 s94, v15, {ix}\ns_nop 3")
            if i == 0 and k == 0: b("s_not_b32 s94, s94")
            b(f"v_mov_b32 v1, s94\nv_mov_b32 v2, {4*(i + 1)}\nbuffer_atomic_umax v1, v2, s[88:91], 0 offen")
        return
    b("s_getreg_b32 s94, hwreg(HW_REG_XCC_ID)\nv_writelane_b32 v14, s94, 63\nv_writelane_b32 v14, s65, 62\nv_writelane_b32 v14, s64, 61")
    b("s_load_dwordx2 s[92:93], s[0:1], 96\ns_waitcnt lgkmcnt(0)")
    b(f"s_add_u32 s88, s92, {(48+k)*1024*1024}\ns_addc_u32 s89, s93, 0\ns_mov_b32 s90, 0x100000\ns_mov_b32 s91, 0x20000")
    b(f"s_lshl_b32 s94, s97, 2\ns_add_u32 s94, s94, s{wave}\ns_lshl_b32 s94, s94, 9")
    b("v_and_b32 v1, 63, v0\nv_lshlrev_b32 v1, 3, v1")
    b("buffer_store_dwordx2 v[14:15], v1, s[88:91], s94 offen")

def persist_regs(b):
    lane = T0; t1 = T0 + 1; t2 = T0 + 2; t3 = T0 + 3; g_ = T0 + 4; ihi = T0 + 5; i8 = T0 + 6; i16 = T0 + 7; r_ = T0 + 8; c4 = T0 + 9
    b(f"""v_and_b32 v{lane}, 63, v0
    v_lshrrev_b32 v{g_}, 4, v{lane}
    v_lshrrev_b32 v{ihi}, 3, v{lane}
    v_and_b32 v{i8}, 7, v{lane}
    v_and_b32 v{i16}, 15, v{lane}
    v_lshrrev_b32 v{r_}, 2, v{i16}
    v_and_b32 v{c4}, 3, v{lane}
    v_lshlrev_b32 v{VLN}, 4, v{lane}
    s_add_u32 s71, s63, s{sWB}
    v_add_u32 v{VO}, s71, v{VLN}""")
    b(f"""s_lshl_b32 s70, s{sWAVE}, 11
    v_lshlrev_b32 v{t1}, 8, v{g_}
    v_add_u32 v{t1}, s70, v{t1}
    s_and_b32 s70, s{sWAVE}, 1
    s_lshl_b32 s70, s70, 3
    v_xor_b32 v{t2}, v{i16}, v{g_}
    v_xor_b32 v{t2}, s70, v{t2}
    v_lshl_add_u32 v{DK0}, v{t2}, 4, v{t1}
    v_xor_b32 v{DK1}, 64, v{DK0}
    v_lshlrev_b32 v{t2}, 1, v{g_}
    v_xor_b32 v{t3}, v{t2}, v{i16}
    v_lshl_add_u32 v{DV0}, v{t3}, 4, v{t1}
    v_xor_b32 v{DV1}, 128, v{DV0}""")
    b(f"""v_mul_u32_u24 v{t1}, 1152, v{ihi}
    v_lshl_add_u32 v{t1}, v{i8}, 4, v{t1}
    s_lshl_b32 s70, s{sWAVE}, 7
    v_add_u32 v{VWO}, s70, v{t1}
    v_lshrrev_b32 v{t1}, 1, v{lane}
    v_mul_u32_u24 v{t1}, 1152, v{t1}
    v_and_b32 v{t2}, 1, v{lane}
    v_lshl_add_u32 v{t1}, v{t2}, 4, v{t1}
    s_lshl_b32 s70, s{sWAVE}, 5
    s_add_u32 s70, s70, 1024
    v_add_u32 v{VWX}, s70, v{t1}""")
    b(f"""v_xor_b32 v{t2}, v{g_}, v{i16}
    v_lshlrev_b32 v{t2}, 4, v{t2}
    v_lshl_add_u32 v{KA}, v{i16}, 8, v{t2}""")
    for s_ in range(1, 4): b(f"v_xor_b32 v{KA+s_}, {64*s_}, v{KA}")
    b(f"""v_lshl_add_u32 v{t2}, v{g_}, 2, v{r_}
    v_lshlrev_b32 v{t1}, 8, v{t2}
    v_and_b32 v{t2}, 7, v{t2}
    v_lshl_add_u32 v{t1}, v{t2}, 5, v{t1}
    v_lshl_add_u32 v{t1}, v{c4}, 3, v{t1}
    v_add_u32 v{VA}, 0x10000, v{t1}""")
    for T in range(1, 8): b(f"v_xor_b32 v{VA+T}, {32*T}, v{VA}")
    b(f"""v_lshl_add_u32 v{t2}, v{g_}, 2, v{r_}
    v_lshlrev_b32 v{t1}, 7, v{t2}
    v_lshl_add_u32 v{t1}, v{c4}, 3, v{t1}
    s_lshr_b32 s70, s{sWAVE}, 1
    s_lshl_b32 s70, s70, 16
    s_and_b32 s71, s{sWAVE}, 1
    s_lshl_b32 s{sWOS}, s71, 13
    s_add_u32 s{sWOS}, s{sWOS}, s70
    s_lshl_b32 s{sWTS}, s71, 10
    s_add_u32 s{sWTS}, s{sWTS}, s70
    s_add_u32 s{sWTS}, s{sWTS}, 47104
    {f"s_lshl_b32 s{sWTS}, s{sWAVE}, 10" if OPT.get('fsq') else ""}
    {f"s_add_u32 s{sWTS}, s{sWTS}, 147456" if OPT.get('fsq') else ""}
    v_add_u32 v{VWA}, s{sWOS}, v{t1}
    v_lshlrev_b32 v{t1}, 3, v{lane}
    v_add_u32 v{VWE}, s{sWTS}, v{t1}""")

def late_setup(b, sfx):
    b(f"""s_lshl_b32 s71, s68, 4
    s_add_u32 s71, s71, s69
    s_lshl_b32 s70, s71, 19
    s_add_u32 s{SK}, s50, s70
    s_addc_u32 s{SK+1}, s51, 0
    s_mov_b32 s{SK+2}, 524288
    s_mov_b32 s{SK+3}, 0x20000
    s_add_u32 s{SV}, s52, s70
    s_addc_u32 s{SV+1}, s53, 0
    s_mov_b32 s{SV+2}, 524288
    s_mov_b32 s{SV+3}, 0x20000
    s_mul_i32 s70, s3, {O_BLK}
    s_add_u32 s{SO}, s100, s70
    s_addc_u32 s{SO+1}, s101, 0
    s_mov_b32 s{SO+2}, {O_BLK}
    s_mov_b32 s{SO+3}, 0x20000
    s_mul_i32 s70, s71, 36864
    s_add_u32 s{SWO}, s56, s70
    s_addc_u32 s{SWO+1}, s57, 0
    s_mov_b32 s{SWO+2}, 36864
    s_mov_b32 s{SWO+3}, 0x20000
    s_mul_i32 s71, s3, {WOT_BLK}
    s_add_u32 s70, s70, s71
    s_add_u32 s70, s70, {WOT_OFF}
    s_add_u32 s{SWT}, s100, s70
    s_addc_u32 s{SWT+1}, s101, 0
    s_mov_b32 s{SWT+2}, 36864
    s_mov_b32 s{SWT+3}, 0x20000
    s_mul_i32 s62, s69, {8*122880}
    s_mul_i32 s63, s68, 15360        ; b*15*1024
    s_add_u32 s{SCN}, s100, {CNT_OFF}
    s_addc_u32 s{SCN+1}, s101, 0
    s_mov_b32 s{SCN+2}, 24576
    s_mov_b32 s{SCN+3}, 0x20000
    s_mov_b64 s[{SDB}:{SDB+1}], s[78:79]
    s_mov_b32 s{SDB+2}, 256
    s_mov_b32 s{SDB+3}, 0x20000
    s_mov_b64 s[{SIN}:{SIN+1}], s[{SCN}:{SCN+1}]
    s_mov_b32 s{SIN+3}, 0x20000
    s_mov_b64 s[{SIF}:{SIF+1}], s[78:79]
    s_mov_b32 s{SIF+3}, 0x20000
    s_lshl_b32 s70, s3, 3
    s_add_u32 s70, s70, s68
    s_lshl_b32 s{sCO}, s70, 2
    s_lshr_b32 s71, s69, 2
    s_add_u32 s{sCO}, s{sCO}, s71
    s_lshl_b32 s{sCO}, s{sCO}, 7
    s_lshr_b32 s{sCW}, s70, 1
    s_lshl_b32 s{sCW}, s{sCW}, 7
    s_add_u32 s{sCW}, s{sCW}, 8192
    s_and_b32 s70, s97, 1
    s_mul_i32 s70, s70, {30 + OPT.get('bal', 0)}
    s_add_u32 s2, s2, s70              ; tile number inside the pair of workgroup classes (0..59 real)
    s_cmp_eq_u32 s70, 0
    s_cselect_b32 s71, {30 + OPT.get('bal', 0)}, 60
    s_cmp_ge_u32 s2, s71
    s_cselect_b32 s{sIDLE}, 1, 0       ; no output tile for this workgroup
    s_mul_i32 s68, s2, 43
    s_lshr_b32 s68, s68, 8
    s_mul_i32 s69, s68, 6
    s_sub_u32 s69, s2, s69             ; nt
    s_bfe_u32 s70, s97, 0x10001
    s_mul_i32 s70, s70, 10
    s_add_u32 s68, s68, s70            ; mt
    s_mul_i32 s79, s68, 103
    s_lshr_b32 s79, s79, 8
    s_mul_i32 s78, s68, 96
    s_add_u32 s78, s78, 95
    s_mul_i32 s78, s78, 4370
    s_lshr_b32 s78, s78, 20
    s_lshl_b32 s70, s3, 3
    s_add_u32 s78, s78, s70
    s_add_u32 s79, s79, s70
    s_lshl_b32 s78, s78, 2
    s_lshl_b32 s79, s79, 2
    s_add_u32 s78, s78, s{sWAVE}
    s_add_u32 s79, s79, s{sWAVE}
    s_lshl_b32 s78, s78, 7
    s_lshl_b32 s79, s79, 7
    s_mul_i32 s70, s3, {O_BLK}
    s_mul_i32 s71, s68, 6144
    s_add_u32 s70, s70, s71
    s_add_u32 s{SO2}, s100, s70
    s_addc_u32 s{SO2+1}, s101, 0
    s_sub_u32 s{SO2+2}, {O_BLK}, s71
    s_mov_b32 s{SO2+3}, 0x20000
    s_mul_i32 s70, s3, {WOT_BLK}
    s_mul_i32 s71, s69, 6144
    s_add_u32 s70, s70, s71
    s_add_u32 s70, s70, {WOT_OFF}
    s_add_u32 s{SW2}, s100, s70
    s_addc_u32 s{SW2+1}, s101, 0
    s_sub_u32 s{SW2+2}, {WOT_BLK}, s71
    s_mov_b32 s{SW2+3}, 0x20000
    s_cmp_eq_u32 s{sIDLE}, 1
    s_cselect_b32 s{SO2+2}, 0, s{SO2+2}   ; workgroups without an output tile load nothing
    s_cselect_b32 s{SW2+2}, 0, s{SW2+2}
    s_mov_b32 s100, s{SO2+2}
    s_mov_b32 s101, s{SW2+2}
    s_lshr_b32 s70, s{sWAVE}, 1
    s_mul_i32 s70, s70, {48*2304}
    s_mul_i32 s{sOUTO}, s68, {96*2304}
    s_add_u32 s{sOUTO}, s{sOUTO}, s70
    s_mul_i32 s70, s3, 1152
    s_add_u32 s{sOUTO}, s{sOUTO}, s70
    s_mul_i32 s70, s69, 192
    s_add_u32 s{sOUTO}, s{sOUTO}, s70
    s_and_b32 s70, s{sWAVE}, 1
    s_mul_i32 s70, s70, 96
    s_add_u32 s{sOUTO}, s{sOUTO}, s70
    s_lshl_b32 s70, s3, 2
    s_add_u32 s70, s70, s{sWAVE}
    s_lshl_b32 s70, s70, 7
    s_add_u32 s70, s70, 8192
    v_and_b32 v1, 1, v0
    v_mov_b32 v{VP2}, s78
    v_mov_b32 v2, s79
    v_cmp_eq_u32 vcc, 1, v1
    v_and_b32 v1, 2, v0
    v_mov_b32 v3, s70
    v_cndmask_b32 v{VP2}, v{VP2}, v2, vcc
    v_cmp_eq_u32 vcc, 2, v1
    v_add_u32 v{VPE}, 16384, v{VP2}
    v_mov_b32 v{VTH}, 4
    v_cndmask_b32 v{VPE}, v{VPE}, v3, vcc
    v_mov_b32 v3, 32
    v_cndmask_b32 v{VTH}, v{VTH}, v3, vcc
    s_mov_b32 s{sSIG}, 0""")
    b(f"L_late{sfx}:")
    b(f"""s_or_b32 s70, s97, s{sSAFE}
    s_cmp_eq_u32 s70, 0
    s_cselect_b32 s{SIN+2}, 24576, 0   ; only workgroup 0 (first pass) really initialises the counters
    s_cselect_b32 s{SIF+2}, 4, 0
    s_mov_b32 s{sOO}, s62
    s_mov_b32 s{sLATE}, 0
    s_mov_b32 s{SO2+2}, s100
    s_mov_b32 s{SW2+2}, s101
    s_mul_i32 s{sO2}, s{sWAVE}, {32*122880}
    s_mul_i32 s{sW2}, s{sWAVE}, {32*36864}
    s_mov_b32 s{sPF}, 0x40000
    s_lshl_b32 s{sKB}, s{sWAVE}, 11""")

def warm_code(b):
    if not OPT.get('warm'): return
    b(f"""s_getpc_b64 s[70:71]
    L_pc:
    s_sub_u32 s70, s70, L_pc-attn_kernel
    s_subb_u32 s71, s71, 0
    v_mul_u32_u24 v2, 40, v0
    v_lshrrev_b32 v2, 8, v2
    s_mul_i32 s68, s2, 40
    v_add_u32 v2, s68, v2
    v_lshlrev_b32 v2, 7, v2
    v_min_u32 v2, L_codeend-attn_kernel-4, v2
    v_mov_b32 v3, s71
    v_add_co_u32 v2, vcc, s70, v2
    v_addc_co_u32 v3, vcc, 0, v3, vcc
    global_load_dword v4, v[2:3], off""")

def prologue_a(b):
    lane = T0; t1 = T0 + 1; t2 = T0 + 2; t3 = T0 + 3; g_ = T0 + 4; ihi = T0 + 5; i8 = T0 + 6
    b(f"""v_and_b32 v{lane}, 63, v0
    v_lshrrev_b32 v{g_}, 4, v{lane}
    v_lshrrev_b32 v{ihi}, 3, v{lane}
    v_and_b32 v{i8}, 7, v{lane}""")
    b(f"s_lshl_b32 s{sT}, s{sWAVE}, 6")
    b(f"v_add_u32 v{t1}, s{sT}, v{ihi}")
    b(f"v_mul_u32_u24 v{t1}, 1152, v{t1}")
    for j in range(4):
        b(f"v_xor_b32 v{t2}, {4*(j%2)}, v{g_}")
        b(f"v_xor_b32 v{t2}, v{t2}, v{i8}")
        b(f"v_lshl_add_u32 v{t2}, v{t2}, 4, v{t1}")
        b(f"v_add_u32 v{DX+j}, {8*j*1152 - 1024*j}, v{t2}")
    b(f"""s_and_b32 s{sT}, s{sWAVE}, 1
    s_lshl_b32 s{sT}, s{sT}, 18
    s_lshr_b32 s{sT+1}, s{sWAVE}, 1
    s_lshl_b32 s{sT+1}, s{sT+1}, 7
    s_add_u32 s{sT}, s{sT}, s{sT+1}
    v_lshlrev_b32 v{t1}, 13, v{ihi}
    v_add_u32 v{t1}, s{sT}, v{t1}
    v_lshrrev_b32 v{t2}, 2, v{i8}
    v_xor_b32 v{t2}, v{t2}, v{g_}
    v_and_b32 v{t2}, 1, v{t2}
    v_lshl_add_u32 v{t1}, v{t2}, 6, v{t1}
    v_and_b32 v{t2}, 3, v{i8}
    v_lshl_add_u32 v{t1}, v{t2}, 4, v{t1}""")
    for j in range(4): b(f"v_add_u32 v{DW+j}, {8*j*8192 - 1024*j}, v{t1}")
    b(f"""s_mov_b32 s{sXO}, 0
    s_mov_b32 s{sXO2}, 36864
    s_mov_b32 s{sWOFF}, 0
    s_mov_b32 s{sKV}, 0
    s_mov_b32 s{sHEAD}, 0""")

def prologue_b(b):
    lane = T0; t1 = T0 + 1; t2 = T0 + 2; t3 = T0 + 3; g_ = T0 + 4; ihi = T0 + 5; i8 = T0 + 6
    if OPT.get('sstamps'): stamp(b)
    b.ext(x_dma(0, 4)); b.ext(w_dma(0, 4))
    if OPT.get('ord') == 1: b.ext(w_dma(1, 4)); b.ext(x_dma(1, 4))
    if OPT.get('ord') == 2: b.ext(w_dma(1, 4))
    if OPT.get('sstamps'): stamp(b)
    if OPT.get('xw'):
        pf = K2F[OPT.get('xwf', 0)]
        b(f"""s_lshr_b32 s70, s2, 2
        s_mul_i32 s70, s70, 270
        s_mul_i32 s71, s{sWAVE}, 68
        s_add_u32 s70, s70, s71
        s_lshl_b32 s70, s70, 7
        v_lshlrev_b32 v5, 7, v{lane}
        buffer_load_dword v6, v5, s[{SX}:{SX+3}], s70 offen{pf}
        s_and_b32 s70, s2, 3
        s_lshl_b32 s70, s70, 2
        s_add_u32 s70, s70, s{sWAVE}
        s_lshl_b32 s70, s70, 13
        v_lshrrev_b32 v5, 2, v{lane}
        v_lshlrev_b32 v5, 17, v5
        v_and_b32 v7, 3, v{lane}
        v_lshl_add_u32 v5, v7, 7, v5
        buffer_load_dword v6, v5, s[{SW}:{SW+3}], s70 offen{pf}
        s_add_u32 s70, s70, {256*8192}
        buffer_load_dword v6, v5, s[{SW}:{SW+3}], s70 offen{pf}
        s_add_u32 s70, s70, {256*8192}
        buffer_load_dword v6, v5, s[{SW}:{SW+3}], s70 offen{pf}""")
    late_setup(b, "")
    if OPT.get('tlb'):
        for srd in (SK, SV, SWO): b(f"buffer_load_dword v1, off, s[{srd}:{srd+3}], 0 nt")
        if OPT['tlb'] > 1:
            b(f"s_mov_b64 exec, 1\nbuffer_store_dword v1, off, s[{SWT}:{SWT+3}], s{sWB} sc1\ns_mov_b64 exec, -1")
    persist_regs(b)
    b(f"""v_mov_b32 v{VONE}, 1
    s_and_b32 s70, s{sWAVE}, 1
    s_mul_i32 s70, s70, 3072
    s_sub_u32 s71, 3072, s70
    v_add_u32 v{VPW}, s70, v{VLN}
    v_add_u32 v{VPW+1}, s71, v{VLN}
    s_lshr_b32 s70, s{sWAVE}, 1
    s_mul_i32 s70, s70, 3072
    s_sub_u32 s71, 3072, s70
    v_add_u32 v{VPO}, s70, v{VLN}
    v_add_u32 v{VPO+1}, s71, v{VLN}""")
    i16 = T0 + 7; r_ = T0 + 8; c4 = T0 + 9
    b(f"""v_and_b32 v{i16}, 15, v{lane}
    v_lshrrev_b32 v{r_}, 2, v{i16}
    v_and_b32 v{c4}, 3, v{lane}
    v_lshlrev_b32 v{t1}, 7, v{i16}
    v_add_u32 v{t1}, s{sXB}, v{t1}
    v_add_u32 v{t1}, 16384, v{t1}
    v_lshrrev_b32 v{t3}, 1, v{i16}""")
    for s in range(2):
        b(f"v_xor_b32 v{t2}, {4*s}, v{g_}")
        b(f"v_xor_b32 v{t2}, v{t2}, v{t3}")
        b(f"v_lshl_add_u32 v{XA+s}, v{t2}, 4, v{t1}\nv_add_u32 v{XA+2+s}, 65536, v{XA+s}")
    b(f"""v_lshl_add_u32 v{t1}, v{g_}, 3, v{r_}
    v_lshlrev_b32 v{t1}, 7, v{t1}
    v_lshl_add_u32 v{t1}, v{c4}, 4, v{t1}
    v_add_u32 v{t1}, 49152, v{t1}
    v_lshrrev_b32 v{t3}, 1, v{r_}""")
    for sp in range(2):
        b(f"v_xor_b32 v{t2}, {sp}, v{t3}")
        b(f"v_lshl_add_u32 v{WA+sp}, v{t2}, 6, v{t1}\nv_add_u32 v{WA+2+sp}, 65536, v{WA+sp}")
    if OPT.get('sstamps'): stamp(b)
    if not OPT.get('ord'): b.ext(w_dma(1, 4))
    if OPT.get('ord') != 1: b.ext(x_dma(1, 4))

def wave_code(b, nq, sfx):
    nx = 8 if nq == 4 else 6
    b(f"L_begin{sfx}:")
    if nq == 3:
        b(f"v_mov_b32 v{VHS}, 0\nv_lshlrev_b32 v{VCW}, 3, v{VLN}")
        b(f"buffer_store_dword v{VHS}, v{VCW}, s[{SIN}:{SIN+3}], 0 offen sc1 ; tag=INIT")
        b(f"s_mov_b32 s{sT}, 8192\nbuffer_store_dword v{VHS}, v{VCW}, s[{SIN}:{SIN+3}], s{sT} offen sc1 ; tag=INIT")
        b(f"s_mov_b32 s{sT}, 16384\nbuffer_store_dword v{VHS}, v{VCW}, s[{SIN}:{SIN+3}], s{sT} offen sc1 ; tag=INIT")
    stamp(b, 0)
    if OPT.get('fsq'):
        b(f"s_mov_b32 s{sFQ}, 0\nv_mov_b32 v{QFB}, {QFLAGS}\nv_lshl_add_u32 v{QFA}, s{sWAVE}, 2, v{QFB}")
    b("WAITV ; cover=X0,W0")
    b("s_barrier ; pub=X0,W0")
    b.ext(x_reads(0, nq))
    for T in (0, 1): b.ext(w_reads(0, T))
    b.ext(w_reads(0, 2)[:3])
    b("WAITL W0.0")
    stamp(b, 1)
    for n in range(0, 12): qproj_stage(b, n, nq)
    fill = []; post = []
    for sp in range(4):
        for q in range(nq):
            rs = [128 + 32 * q + 8 * sp + 2 * i_ for i_ in range(4)]
            for r in rs: fill += [f"v_mul_f32 v{r}, s{sC}, v{r}", f"v_mul_f32 v{r+1}, s{sC}, v{r+1}"]
            for r in rs: fill.append(f"v_cvt_pk_bf16_f32 v{r}, v{r}, v{r+1}")
            for i_, r in enumerate(rs): fill.append(f"v_accvgpr_write_b32 a{AQ(q) + 4*sp + i_}, v{r}")
    for n in range(12, 18): qproj_stage(b, n, nq, fill if n >= 16 else None)
    stamp(b, 2)
    conv2 = []
    for q in range(nq):
        for h in range(8):
            r = 128 + 32 * q + 4 * h
            conv2 += [f"v_accvgpr_read_b32 v{4+i_}, a{r+i_}" for i_ in range(4)]
            conv2 += [f"v_mul_f32 v{4+i_}, s{sC}, v{4+i_}" for i_ in range(4)]
            conv2 += ["v_cvt_pk_bf16_f32 v4, v4, v5", "v_cvt_pk_bf16_f32 v6, v6, v7",
                      f"v_accvgpr_write_b32 a{AQ2(q)+2*h}, v4", f"v_accvgpr_write_b32 a{AQ2(q)+2*h+1}, v6"]
    def pre_mfma(): return [qk(q, 0, s_, czero=True) for q in range(nq) for s_ in range(4)]
    def pre_max():
        t = B()
        for q in range(nq):
            s_ = S_ + 8 * q
            t(f"v_max3_f32 v{s_}, v{s_}, v{s_+1}, v{s_+2}")
        for q in range(nq):
            s_ = S_ + 8 * q
            t(f"v_max_f32 v{s_}, v{s_}, v{s_+3}")
        xlane_reduce_multi(t, [S_ + 8 * q for q in range(nq)], [T0 + q for q in range(nq)], "v_max_f32")
        for q in range(nq):
            for r in range(4): t(f"v_sub_f32 v{CI+4*q+r}, 0, v{S_+8*q}")
        return t.L
    def weave(mf, st, per):
        for x in mf:
            b(x)
            for _ in range(per):
                if st: b(st.pop(0))
    def zipper(a_, b_, ra, rb):
        out = []
        while a_ or b_:
            for _ in range(ra):
                if a_: out.append(a_.pop(0))
            for _ in range(rb):
                if b_: out.append(b_.pop(0))
        return out
    b.ext(k_reads(0, 0))
    b.ext(fill)
    b(f"v_and_b32 v4, 3, v0\nv_mov_b32 v5, 0x3f803f80\nv_cmp_eq_u32 vcc, 0, v4")
    for i_ in range(4): b(f"v_cndmask_b32 v{ONES+i_}, 0, v5, vcc")
    b("s_waitcnt lgkmcnt(0)")
    if OPT.get('wts'):
        mv = [f"v_mov_b32 v{192+i_}, v{WOF+i_}" for i_ in range(36)]
        b.ext(mv[:8])
        mv = mv[8:]
        weave(pre_mfma()[:8], mv, 4)
        b.ext(mv); b.ext(pre_mfma()[8:])
    else: b.ext(pre_mfma())
    b.ext(pre_max())
    stamp(b, 3)
    for i_ in range(OPT.get('pause', 0)): b('s_sleep 32')
    if OPT.get('skew'):
        b(f"s_lshr_b32 s{sT}, s97, 3\ns_and_b32 s{sT}, s{sT}, 7\nL_skew{sfx}:\ns_cmp_eq_u32 s{sT}, 0\ns_cbranch_scc1 L_skewd{sfx}\ns_sleep {OPT['skew']}\ns_sub_u32 s{sT}, s{sT}, 1\ns_branch L_skew{sfx}\nL_skewd{sfx}:")
    adv8 = lambda x: x
    def head_start(hd):
        b(f"s_cmp_lg_u32 s{sSAFE}, 0\ns_cbranch_scc1 L_maxpass{sfx}\nL_maxdone{hd}{sfx}:")
        if not LM:
            for q in range(nq): b(f"v_mov_b32 v{LS+q}, 0")
        stamp(b)
    if OPT.get('wtp') == 2 and nq == 3: b("WAITV ; cover=WT\nbuffer_wbl2 sc1 ; tag=WT")
    if OPT.get('pz'): b(f"s_mov_b32 s{sPW}, 99\ns_mov_b32 s{sPZ}, 0")
    if OPT.get('pz') and nq == 3: b(f"v_bfe_u32 v{VPA}, v0, 2, 2\nv_xor_b32 v{VPA}, 3, v{VPA}\nv_lshlrev_b32 v{VPA}, 7, v{VPA}\nv_sub_u32 v{VPA}, v{VPE}, v{VPA}")
    head_start(0)
    per = -(-len(conv2) // 8); tot_ = len(conv2)
    for k in range(8):
        ex = []
        if k == 0 and OPT.get('wts'):
            for i_ in range(8 if OPT.get('fsq') else 9):
                g = 2 + 7 * i_
                if i_ < 8: ex.append((g - 1, f"s_add_u32 s{sT+1}, s{sWB}, {16384*(i_//4)}"))
                else: ex += [(g - 2, f"s_lshl_b32 s{sT+1}, s{sWAVE}, 10"), (g - 1, f"s_add_u32 s{sT+1}, s{sT+1}, 32768")]
                ex.append((g, f"buffer_store_dwordx4 {vr(192+4*i_,4)}, v{VLN}, s[{SWT}:{SWT+3}], s{sT+1} offen offset:{1024*(i_%4) if i_ < 8 else 0} sc1 ; tag=WT"))
        if OPT.get('fsq'):
            A9 = 192 if nq == 4 else 224
            if k == 1: ex += [(5, f"s_mov_b32 m0, s{sWTS}"), (6, dma(VWX, SWO, "0", 0, fl('nt_wo'), "W9X"))]
            if k == 6: ex += [(3, "WAITV ; cover=W9X"), (4, f"ds_read_b64_tr_b16 {ar(A9,2)}, v{VWE} offset:0"), (5, f"ds_read_b64_tr_b16 {ar(A9+2,2)}, v{VWE} offset:512")]
            if k == 7: ex += [(4, f"s_lshl_b32 s{sT+1}, s{sWAVE}, 10"), (5, f"s_add_u32 s{sT+1}, s{sT+1}, 32768"),
                              (25, f"buffer_store_dwordx4 {ar(A9,4)}, v{VLN}, s[{SWT}:{SWT+3}], s{sT+1} offen sc1 ; tag=WT")]
        if k == 6 and nq == 3:
            ex += [(46, "WAITV ; cover=HS"), (47, f"v_readfirstlane_b32 s{sT}, v{VHS}\ns_cmp_eq_u32 s{sT}, 0\ns_cbranch_scc1 L_hspin\nL_hsok:")]
        cnt_ = per
        if OPT.get('front'): cnt_ = -(-tot_ * {1: (8, 8, 7, 7, 6, 5, 4, 3), 2: (3, 4, 5, 6, 7, 7, 8, 8), 3: (12, 12, 12, 12, 0, 0, 0, 0)}[OPT['front']][k] // 48)
        attn_stage(b, k, nq, ex, fill=[conv2.pop(0) for _ in range(min(cnt_, len(conv2)))])
    b(f"L_atin{sfx}:")
    b(f"s_mov_b32 s{sCNT}, 0")
    b(f".p2align 3\nL_at{sfx}:")
    b("LOOPBEGIN at 3 8")
    for k in range(8, 16):
        ex = []
        if k == 11 and nq == 3 and not OPT.get('pz'):
            ex = [(59, f"""s_xor_b32 s{sT+1}, s{sHEAD}, 1
            s_or_b32 s{sT}, s{sCNT}, s{sT+1}
            s_cbranch_scc0 L_sig
            L_nosig:""")]
        if OPT.get('pz') and nq == 3:
            if k == 11: ex = [(58, f"s_cmp_eq_u32 s{sPW}, 99"), (60, f"s_cbranch_scc1 L_nop3\nbuffer_load_dword v{VCW}, v{VPA}, s[{SCN}:{SCN+3}], 0 offen sc1 ; cond\nL_nop3:")]
            if k == 13: ex = [(BG + 1, f"s_getreg_b32 s{sST}, hwreg(HW_REG_IB_STS)")]
            if k == 15:
                ex = [(BG - 1, f"""v_cmp_gt_u32 vcc, v{VTH}, v{VCW}
                v_mov_b32 v5, {DEC}
                s_and_b32 s{sT}, s{sST}, 15
                s_lshr_b32 s{sT+1}, s{sST}, 30
                s_lshl_b32 s{sT+1}, s{sT+1}, 4
                s_or_b32 s{sT}, s{sT}, s{sT+1}
                s_cmp_ge_u32 s{sT}, {OPT.get('pzt', 0)}
                s_cselect_b32 s{sT}, 1, 0
                s_cmp_eq_u64 vcc, 0
                s_cselect_b32 s{sT}, s{sT}, 0
                v_mov_b32 v4, s{sT}
                ds_write_b32 v5, v4
                s_waitcnt lgkmcnt(0)""")]
        if k == 9 and OPT.get('pz'): b(f"L_at1{sfx}:")
        if k == 15:
            if OPT.get('pz'): ex += [(NS - 4, f"s_add_u32 s{sCNT}, s{sCNT}, 1"), (NS - 2, f"s_cmp_ge_u32 s{sCNT}, s{sPW}")]
            else: ex += [(NS - 6, f"s_add_u32 s{sCNT}, s{sCNT}, 1"), (NS - 4, f"s_add_u32 s{sT}, s{sCNT}, s{sHEAD}"), (NS - 2, f"s_cmp_lt_u32 s{sT}, 3")]
        attn_stage(b, k, nq, ex)
    if OPT.get('pz'): b(f"s_cbranch_scc1 L_pchk{sfx}\nL_pret{sfx}:\ns_add_u32 s{sT}, s{sCNT}, s{sHEAD}\ns_cmp_lt_u32 s{sT}, 3")
    if OPT.get('midgap'):
        b(f"s_cselect_b32 s{sT+1}, 1, 0\ns_lshl_b32 s{sT}, s{sHEAD}, 4\ns_add_u32 s{sT}, s{sT}, s{sCNT}\ns_cmp_eq_u32 s{sT}, {OPT.get('midat', 1)}\ns_cbranch_scc0 L_ng{sfx}")
        for i_ in range(OPT['midgap']): b("s_sleep 16")
        b(f"L_ng{sfx}:\ns_cmp_eq_u32 s{sT+1}, 1")
    b(f"s_cbranch_scc1 L_at{sfx}")
    b("LOOPEND at")
    b(f"L_atx{sfx}:")
    b(f"s_cmp_lg_u32 s{sHEAD}, 0\ns_cbranch_scc1 L_fin{sfx}")

    def lsum(qs):
        t = B()
        if not LM: xlane_reduce_multi(t, [LS + q for q in qs], [T0 + 4 + q for q in qs], "v_add_f32")
        for q in qs:
            src = LA + 4 * q if LM else LS + q
            t(f"v_cmp_ngt_f32 vcc, {LTHR}, v{src}")
            t(f"v_rcp_f32 v{LS+q}, v{src}")
            t(f"s_or_b32 s{sFLAG}, s{sFLAG}, vcc_lo\ns_or_b32 s{sFLAG}, s{sFLAG}, vcc_hi")
        return t.L
    cnt = [0]
    def onorm(q, pk, flag, inplace=False, so=None):
        out = []
        for sp in range(4):
            d = P_ + 4 * (cnt[0] % 2); cnt[0] += 1
            if inplace: d = O_ + 32 * q + 8 * sp
            rs = [O_ + 32 * q + 8 * sp + 2 * i_ for i_ in range(4)]
            for r in rs:
                if pk and OPT.get('pk', 1): out.append(f"v_pk_mul_f32 v[{r}:{r+1}], v[{r}:{r+1}], v[{LS+q-(q%2)}:{LS+q-(q%2)+1}] op_sel:[0,{q%2}] op_sel_hi:[1,{q%2}]")
                else: out += [f"v_mul_f32 v{r}, v{r}, v{LS+q}", f"v_mul_f32 v{r+1}, v{r+1}, v{LS+q}"]
            for i_, r in enumerate(rs): out.append(f"v_cvt_pk_bf16_f32 v{d+i_}, v{r}, v{r+1}")
            if flag is None:
                for i_ in range(4): out.append(f"v_accvgpr_write_b32 a{AST+16*q+4*sp+i_}, v{d+i_}")
                continue
            if so:
                out[-1] += f"\ns_add_u32 s{sT+1}, s{so}, {sp*122880}\nbuffer_store_dwordx4 {vr(d,4)}, v{VO}, s[{SO}:{SO+3}], s{sT+1} offen offset:{1024*q}{flag}"
                continue
            out.append(f"s_add_u32 s{sT}, s{sOO}, {sp*122880}")
            out.append(f"buffer_store_dwordx4 {vr(d,4)}, v{VO}, s[{SO}:{SO+3}], s{sT} offen offset:{1024*q}{flag}")
        return out
    def drain(st, ld=None, every=1):
        slots = []; gaps = [[] for _ in range(18)]
        for q in (2, 3):
            for T in range(8): slots.append(pv(q, T) if q < nq else None)
            slots.append(lsm(q) if (q < nq and LM) else None)
        rem = sorted(sm_items(nq, NS, 2 * NS), key=lambda t: t[0])
        b.ext([sm_text(*k_) for g, k_ in rem if k_[1] == 2 and k_[0] != 'add'])
        crit = sorted([k_ for g, k_ in rem if k_[1] == 3 and k_[0] != 'add'], key=lambda k_: (k_[2], k_[0] == 'cvt'))
        g = 0
        for k_ in crit:
            if k_[0] == 'exp' and gaps[min(g, 6)]: g += 1
            gaps[min(g, 6)].append(sm_text(*k_))
            if k_[0] == 'exp' or len(gaps[min(g, 6)]) == 2: g += 1
        late = [sm_text(*k_) for g_, k_ in rem if k_[0] == 'add']
        for i_, x in enumerate(late): gaps[min(9 + i_ // 2, 16) if nq == 4 else 0].append(x)
        for g in range(18):
            if slots[g] is None: continue
            room = 2 - sum(2 if 'exp' in x else 1 for x in gaps[g])
            while room > 0 and st: gaps[g].append(st.pop(0)); room -= 1
        for i_, s_ in enumerate(slots):
            if s_: b(s_)
            if s_ and ld and (i_ % every == 0 or nq == 3):
                b(ld.pop(0))
                while ld and ld[0].startswith("s_"): b(ld.pop(0))
            b.ext(gaps[i_])
    hi = list(range(2, nq))
    movs = [f"v_accvgpr_mov_b32 a{AQ(q)+i_}, a{AQ2(q)+i_}" for q in range(nq) for i_ in range(16)]
    f0 = None if OPT.get('defer') else K2F[OPT.get('of0', 2)] + ' ; tag=WT'
    if OPT.get('wtp') == 1 and nq == 3: b("buffer_wbl2 sc1 ; tag=WT")
    st = lsum([0, 1]) + onorm(0, False, f0)
    SW2_ = OPT.get('sw2', 0)
    if SW2_:
        ld = []
        D_ = OPT.get('dist', 5 if OPT.get('fsa') else 6)
        for t in (32 + D_, 33 + D_): ld += k_dma(t) + v_dma(t) + kv_adv()
        b(ld.pop(0))
        ld2 = []
        for x in ld: ld2 += [x] if x.startswith('s_') else [x, 'v_nop']
        ld2 = [x for x in ld]
        drain(st, ld2, 2)
    else: drain(st)
    stamp(b, 4)
    b.ext(zipper(st, lsum(hi), 2, 1))
    b.ext(movs)
    st = onorm(1, False, f0)
    weave(pre_mfma(), st, 3 if nq == 4 else 4)
    b.ext(st)
    rest = []; late_ = []
    for q in hi:
        if SW2_ >= 2: late_ += onorm(q, False, f0, inplace=True, so=sOP)
        else: rest += onorm(q, True, f0)
    b.ext(zipper(rest, pre_max(), 2, 1))
    b.ext(vote_write())
    b(f"s_mov_b32 s{sOP}, s{sOO}\ns_add_u32 s{sOO}, s{sOO}, {4*122880}\ns_mov_b32 s{sHEAD}, 1")
    if OPT.get('emub'):
        b(f"s_and_b32 s{sT}, s97, 3\ns_cmp_eq_u32 s{sT}, s{sCNT}" if False else "")
        b(f"s_mov_b32 s{sT}, 0\nL_duma{sfx}:")
        for i_ in range(64):
            if (i_ // 2) % 4 >= nq: continue
            b(f"{MF} a[{192+4*(i_//2%16)}:{195+4*(i_//2%16)}], a[{4*(i_%8)}:{4*(i_%8)+3}], a[{32+4*(i_%7)}:{35+4*(i_%7)}], a[{192+4*(i_//2%16)}:{195+4*(i_//2%16)}]")
            if i_ % 2 == 0: b(f"ds_read_b64_tr_b16 v[4:5], v{VA + i_ % 8} offset:{(i_ % 16) * 4096}")
        b(f"s_waitcnt lgkmcnt(0)\ns_barrier\ns_add_u32 s{sT}, s{sT}, 1\ns_cmp_lt_u32 s{sT}, 8\ns_cbranch_scc1 L_duma{sfx}")
    if OPT.get('pz'):
        b(f"""s_and_b32 s{sT}, s97, 7
        s_lshl_b32 s{sT}, s{sT}, 2
        s_lshr_b32 s{sPW}, {OPT.get('pzc', 0x10210210):#x}, s{sT}
        s_and_b32 s{sPW}, s{sPW}, 15
        s_or_b32 s{sT}, s{sIDLE}, s{sSAFE}
        s_cselect_b32 s{sPW}, 0, s{sPW}
        s_cmp_eq_u32 s{sPW}, 0
        s_cselect_b32 s{sPW}, 99, s{sPW}""")
    head_start(1)
    dst = [(q, sp) for q in range(nq) for sp in range(4)] if OPT.get('defer') else []
    for k in range(32, 40):
        ex = []
        for g in (24, 25):
            if dst:
                q, sp = dst.pop(0)
                ex += [(g, f"s_add_u32 s{sT+1}, s{sOP}, {sp*122880}"),
                       (g, f"buffer_store_dwordx4 {ar(AST+16*q+4*sp,4)}, v{VO}, s[{SO}:{SO+3}], s{sT+1} offen offset:{1024*q} sc1 ; tag=WT")]
        if k == 39 and nq == 3 and OPT.get('pz'): ex.append((59, "s_branch L_sig\nL_nosig:"))
        attn_stage(b, k, nq, ex, fill=late_ if k == 32 else None)
    b(f"s_branch L_atin{sfx}")
    b("REPLAY at 32 2")
    b(f"L_fin{sfx}:")
    f1 = K2F[OPT.get('of', 0)]
    early = p2_w(0) + p2_o(0) + p2_adv(0) + p2_w(1) + p2_o(1) + p2_adv(1)
    for k in range(56, 64):
        ex = []
        if k == 56: ex = [(6, f"buffer_load_dword v{VCW}, v{VPE}, s[{SCN}:{SCN+3}], 0 offen sc1 ; tag=CW")]
        if k == 59: ex = [(NS - 3, f"WAITV ; cover=CW\nv_cmp_gt_u32 vcc, v{VTH}, v{VCW}\ns_cbranch_vccnz L_espin{sfx}\nL_eok{sfx}:" + (f"\ns_cmp_eq_u32 s{sPZ}, 0\ns_cselect_b64 vcc, -1, 0" if OPT.get('pz') else ""))]
        if k == 57 and OPT.get('pz'): b(f"L_t57{sfx}:")
        if k >= 60:
            for g in (3, 7, 11, 17, 23, 45 if LM else 44):
                if OPT.get('pz'):
                    t_ = [early.pop(0) + " condp"]
                    while early and early[0].startswith("s_"): t_.append(early.pop(0))
                    ex.append((g, f"s_cbranch_vccz L_sk{k}_{g}{sfx}\n" + "\n".join(t_) + f"\nL_sk{k}_{g}{sfx}:"))
                    continue
                ex.append((g, early.pop(0)))
                while early and early[0].startswith("s_"): ex.append((g + 1, early.pop(0)))
        attn_stage(b, k, nq, ex)
    assert not early
    p2 = []
    for s_ in (2, 3): p2 += p2_w(s_) + p2_o(s_) + p2_adv(s_)
    st = lsum([0, 1]) + onorm(0, False, f1)
    drain(st, p2)
    stamp(b, 4)
    body = st + zipper(onorm(1, True, f1), lsum(hi), 2, 1)
    for q in hi: body += onorm(q, True, f1)
    body = [x + " ; tag=OS" if x.startswith("buffer_store") else x for x in body]
    nld = sum(1 for x in p2 if x.startswith("buffer_"))
    per = max(1, len(body) // (nld + 2))
    seq = []
    while body or p2:
        if p2:
            seq.append(p2.pop(0))
            while p2 and p2[0].startswith("s_"): seq.append(p2.pop(0))
        for _ in range(per):
            if body: seq.append(body.pop(0))
    outst = 48 - nld
    for x in seq:
        if x.startswith("buffer_"):
            if outst >= 62: b("s_waitcnt vmcnt(52)"); outst = 52
            outst += 1
        b(x)
    b.ext(vote_write())
    stamp(b)
    if OPT.get('pz'): b(f"s_cmp_eq_u32 s{sPZ}, 1\ns_cbranch_scc1 L_p2p{sfx}\nALTFROM p")
    b(f"L_p2s{sfx}:")
    for s_ in range(4): p2_step(b, s_, s_ == 0, True, f"WAITV ; cover=P{s_} cap=51")
    b("WAITV lgkmcnt(0) ; cover=OS")
    b("s_branch L_vote")
    b(f"""L_espin{sfx}:
    s_mov_b32 s{sLATE}, 1
    s_mov_b32 s{SO2+2}, 0
    s_mov_b32 s{SW2+2}, 0
    s_branch L_eok{sfx}""")
    if nq == 3:
        b(f"""L_sig:
        v_mov_b32 v4, {131072+7168}
        ds_read_b128 v[4:7], v4
        s_waitcnt lgkmcnt(0)
        v_or_b32 v4, v4, v5
        v_or3_b32 v4, v4, v6, v7
        v_readfirstlane_b32 s{sT}, v4
        s_mov_b64 exec, 1
        s_cmp_lg_u32 s{sSAFE}, 0
        s_cselect_b32 s{sT}, 0, s{sT}
        s_cbranch_scc1 L_sig1
        buffer_atomic_add v{VONE}, off, s[{SCN}:{SCN+3}], s{sCW} sc1
        L_sig1:
        s_or_b32 s{sT}, s{sT}, s{sSIG}
        s_cbranch_scc1 L_sig2
        s_add_u32 s{sT}, s{sCO}, 16384
        s_mov_b32 s{sSIG}, 1
        buffer_atomic_add v{VONE}, off, s[{SCN}:{SCN+3}], s{sT} sc1
        L_sig2:
        s_mov_b64 exec, -1
        s_branch L_nosig""")
        b(f"""L_hspin:
        s_mov_b32 s{sCNT}, 0
        L_hsp:
        s_sleep 8
        buffer_load_dword v{VHS}, off, s[{SDB}:{SDB+3}], 0 sc1
        s_waitcnt vmcnt(0)
        v_readfirstlane_b32 s{sT}, v{VHS}
        s_add_u32 s{sCNT}, s{sCNT}, 1
        s_lshr_b32 s{sT+1}, s{sCNT}, 17
        s_or_b32 s{sT}, s{sT}, s{sT+1}
        s_cmp_eq_u32 s{sT}, 0
        s_cbranch_scc1 L_hsp
        s_branch L_hsok""")
    for uid in QSPINS:
        b(f"""L_fs{uid}:
        ds_read_b128 {vr(QF,4)}, v{QFB}
        s_waitcnt lgkmcnt(0)
        v_min3_u32 v{QF}, v{QF}, v{QF+1}, v{QF+2}
        v_min_u32 v{QF}, v{QF}, v{QF+3}
        v_cmp_gt_u32 vcc, s{sFQ}, v{QF}
        s_cbranch_vccnz L_fs{uid}
        s_branch L_fr{uid}""")
    QSPINS.clear()
    for uid in SPINS:
        b(f"""L_fs{uid}:
        ds_read_b128 {vr(FQ,4)}, v{VFB}
        s_waitcnt lgkmcnt(0)
        v_min3_u32 v{FQ}, v{FQ}, v{FQ+1}, v{FQ+2}
        v_min_u32 v{FQ}, v{FQ}, v{FQ+3}
        v_cmp_gt_u32 vcc, s{sFV}, v{FQ}
        s_cbranch_vccnz L_fs{uid}
        s_branch L_fr{uid}""")
    SPINS.clear()
    if OPT.get('pz'):
        b(f"""L_pchk{sfx}:
        v_mov_b32 v5, {DEC}
        ds_read_b32 v4, v5
        s_waitcnt lgkmcnt(0)
        v_readfirstlane_b32 s{sT}, v4
        s_cmp_eq_u32 s{sT}, 0
        s_cbranch_scc1 L_pret{sfx}
        s_mov_b32 s{sPW}, 99
        s_mov_b32 s{sPZ}, 1""")
        w_, o_, a_ = pz_loads(0, 0)
        ld = w_ + o_ + a_
        drain([], ld)
        b.ext(ld)
        w_, o_, a_ = pz_loads(1, 1)
        b.ext(w_ + o_ + a_)
        b("s_branch L_pz")
        b(f"L_pzr{sfx}:")
        b.ext([x.split(';')[0] for x in k_reads(0, 0)])
        b("s_waitcnt lgkmcnt(0)")
        t_ = B(); attn_stage(t_, 8, nq, resume=True); b.ext([x.split(';')[0] for x in t_.L])
        b(f"s_cmp_eq_u32 s{sCNT}, 1\ns_cbranch_scc1 L_at1{sfx}\ns_branch L_t57{sfx}")
        b(f"ALTBEGIN p\nL_p2p{sfx}:")
        b(f"s_add_u32 s{sT}, s{sXB}, 131072\nv_add_u32 v5, s{sT}, v{VLN}")
        for i_ in range(4): b(f"ds_read_b128 {vr(240+4*i_,4)}, v5 offset:{1024*i_}")
        l0 = p2_w(0) + p2_o(0) + p2_adv(0); l1 = p2_w(1) + p2_o(1) + p2_adv(1)
        for i_ in range(128):
            b(f"v_accvgpr_read_b32 v{112+i_}, a{128+i_}")
            if i_ >= 64 and i_ % 4 == 3 and l0:
                b(l0.pop(0))
                while l0 and l0[0].startswith("s_"): b(l0.pop(0))
        b("WAITV ; cover=P2 cap=40")
        b.ext(l1)
        b("s_waitcnt lgkmcnt(0)")
        for s_ in (2, 3): p2_step(b, s_, False, True, f"WAITV ; cover=P{s_} cap=51")
        b("WAITV lgkmcnt(0) ; cover=OS")
        b("s_branch L_vote\nALTEND p")
    b(f"L_maxpass{sfx}:")
    for q in range(nq): b(f"v_mov_b32 v{T0+8+q}, 0xff800000")
    for s2 in range(4): b(f"v_add_u32 v{T0+12+s2}, 147456, v{KA+s2}")
    b(f"s_lshl_b32 s{sT}, s{sHEAD}, 18\ns_mov_b32 s{sCNT}, 0")
    b(f"L_mp{sfx}:")
    b(f"s_barrier\ns_add_u32 m0, s{sKB}, 147456")
    b(dma(DK0, SK, f"s{sT}", 0, "", "MP")); b(dma(DK1, SK, f"s{sT}", 1024, "", "MP"))
    b("s_waitcnt vmcnt(0)\ns_barrier")
    for kt in range(2):
        for s in range(4):
            b(f"ds_read_b128 {ar(ASP+4*(4*kt+s),4)}, v{T0+12+s} offset:{kt*4096}")
    b("s_waitcnt lgkmcnt(0)")
    for q in range(nq):
        for kt in range(2):
            for s in range(4):
                d = vr(S_ + 8 * q + 4 * kt, 4)
                b(f"{MF} {d}, {ar(ASP+4*(4*kt+s),4)}, {ar(AQ(q)+4*s,4)}, {d if s else '0'}")
    for q in range(nq):
        for e in range(0, 8, 2): b(f"v_max3_f32 v{T0+8+q}, v{T0+8+q}, v{S_+8*q+e}, v{S_+8*q+e+1}")
    b(f"s_add_u32 s{sT}, s{sT}, 8192\ns_add_u32 s{sCNT}, s{sCNT}, 1\ns_cmp_lt_u32 s{sCNT}, 32\ns_cbranch_scc1 L_mp{sfx}")
    b("s_barrier")
    xlane_reduce_multi(b, [T0 + 8 + q for q in range(nq)], [T0 + q for q in range(nq)], "v_max_f32")
    for q in range(nq):
        for r in range(4): b(f"v_sub_f32 v{CI+4*q+r}, 0, v{T0+8+q}")
    b(f"s_cmp_eq_u32 s{sHEAD}, 0\ns_cbranch_scc1 L_maxdone0{sfx}\ns_branch L_maxdone1{sfx}")

FA = [144, 192, 0, 96]
def p2_reg(slot, i):
    if slot == 3: return 48 + 4 * i if i < 4 else 96 + 4 * (i - 4)
    return FA[slot] + 4 * i
def pz_reg(slot, i):
    return ar((0, 64)[slot] + 4 * i, 4) if i < 8 else vr((32, 48)[slot] + 4 * (i - 8), 4)
def pz_acc(t): return ar(128 + 4 * t, 4) if t < 32 else vr(16 + 4 * (t - 32), 4)
def pz_loads(slot, L):
    f = K2F[OPT.get('p2f', 2)]
    w = [f"buffer_load_dwordx4 {pz_reg(slot, i)}, v{VPW + i//3}, s[{SW2}:{SW2+3}], s{sW2} offen offset:{1024*(i%3)}{f}" for i in range(6)]
    o = [f"buffer_load_dwordx4 {pz_reg(slot, 6+i)}, v{VPO + i//3}, s[{SO2}:{SO2+3}], s{sO2} offen offset:{1024*(i%3)}{f}" for i in range(6)]
    return w, o, p2_adv(L % 4)
VPW = 2; VPO = 8
def p2_w(slot): return [f"buffer_load_dwordx4 {ar(p2_reg(slot, i),4)}, v{VPW + i//3}, s[{SW2}:{SW2+3}], s{sW2} offen offset:{1024*(i%3)}{K2F[OPT.get('p2f', 2)]} ; tag=P{slot}" for i in range(6)]
def p2_o(slot): return [f"buffer_load_dwordx4 {ar(p2_reg(slot, 6+i),4)}, v{VPO + i//3}, s[{SO2}:{SO2+3}], s{sO2} offen offset:{1024*(i%3)}{K2F[OPT.get('p2f', 2)]} ; tag=P{slot}" for i in range(6)]
def p2_adv(slot):
    m = 5 if slot == 3 else 1
    return [f"s_add_u32 s{sO2}, s{sO2}, {m*122880}", f"s_add_u32 s{sW2}, s{sW2}, {m*36864}"]

def vote_write():
    return [f"v_mov_b32 v4, s{sFLAG}", f"s_lshl_b32 s{sT}, s{sWAVE}, 2", f"s_add_u32 s{sT}, s{sT}, {131072+7168}",
            f"v_mov_b32 v5, s{sT}", "ds_write_b32 v5, v4"]

P2ACC = 112
def p2_acc(q, n): return P2ACC + 4 * (6 * q + n)
def p2_step(b, slot, first, prefetch, wait, order=None, extra=None):
    b(wait)
    order = order or [(q, n) for q in range(6) for n in range(6)]
    slots = []; gaps = [[] for _ in range(36)]
    for q, n in order:
        a_ = vr(p2_acc(q, n), 4)
        slots.append(f"{MF} {a_}, {ar(p2_reg(slot, n),4)}, {ar(p2_reg(slot, 6+q),4)}, {'0' if first else a_}")
    if prefetch:
        o_, w_ = p2_o(slot), p2_w(slot)
        for q in range(6): gaps[6 * q + 5].append(o_[q])
        for n in range(6): gaps[30 + n].append(w_[n])
        gaps[35] += p2_adv(slot)
    for g, x in (extra or []): gaps[g].append(x)
    emit_slots(b, slots, gaps)

def phase2(b):
    D = 4
    acc = p2_acc
    def step(slot, first, prefetch, N, order=None, extra=None): p2_step(b, slot, first, prefetch, f"s_waitcnt vmcnt({N})", order, extra)
    b(f"""L_vote:
    s_cmp_eq_u32 s{sLATE}, 2
    s_cbranch_scc1 L_go
    v_mov_b32 v5, {131072+7168}
    s_barrier
    ds_read_b128 v[16:19], v5
    s_waitcnt lgkmcnt(0)
    v_or_b32 v16, v16, v17
    v_or3_b32 v16, v16, v18, v19
    v_readfirstlane_b32 s{sT}, v16
    s_cmp_lg_u32 s{sSAFE}, 0
    s_cselect_b32 s{sT}, 0, s{sT}
    s_cmp_lg_u32 s{sT}, 0
    s_cbranch_scc1 L_redo
    s_cmp_eq_u32 s{sWAVE}, 3
    s_cbranch_scc0 L_nosig2
    s_mov_b64 exec, 1
    buffer_atomic_add v{VONE}, off, s[{SCN}:{SCN+3}], s{sCO} sc1
    s_mov_b64 exec, -1
    L_nosig2:""")
    stamp(b)
    b(f"""s_cmp_eq_u32 s{sIDLE}, 1
    s_cbranch_scc1 L_fini
    s_cmp_eq_u32 s{sLATE}, 1
    s_cbranch_scc1 L_lateld
    L_go:
    s_xor_b32 s70, s{sWAVE}, 1
    s_mul_i32 s70, s70, 27648
    v_add_u32 v16, s70, v{VLN}
    s_xor_b32 s70, s{sWAVE}, 2
    s_mul_i32 s70, s70, 27648
    s_add_u32 s70, s70, 9216
    v_add_u32 v17, s70, v{VLN}
    s_xor_b32 s70, s{sWAVE}, 3
    s_mul_i32 s70, s70, 27648
    s_add_u32 s70, s70, 18432
    v_add_u32 v18, s70, v{VLN}
    s_mul_i32 s70, s{sWAVE}, 27648
    v_add_u32 v19, s70, v{VLN}
    v_and_b32 v20, 15, v0
    v_mul_u32_u24 v20, 96, v20
    v_bfe_u32 v21, v0, 4, 2
    v_lshl_add_u32 v20, v21, 3, v20
    v_add_u32 v20, s70, v20            ; bf16 staging write address: row*96 + g*8
    v_and_b32 v21, 63, v0
    s_mov_b32 s71, 0x2aab""")
    for r in range(5):
        b(f"""v_add_u32 v22, {64*r}, v21
        v_mul_u32_u24 v23, s71, v22
        v_lshrrev_b32 v23, 16, v23
        v_mul_u32_u24 v{42+r}, {2304 - 96}, v23
        v_lshl_add_u32 v{42+r}, v22, 4, v{42+r}""")
    b(f"""v_cmp_gt_u32 vcc, 32, v21
    v_mov_b32 v22, 0x7f000000
    v_cndmask_b32 v46, v22, v46, vcc
    s_mov_b32 s88, s{sOUT}
    s_mov_b32 s89, s{sOUT+1}
    s_mov_b32 s90, {8*240*1152*2}
    s_mov_b32 s91, 0x20000
    s_mov_b32 s36, 0
    {f"s_cmp_eq_u32 s{sPZ}, 1" if OPT.get('pz') else ""}
    {"s_cbranch_scc1 L_chk2" if OPT.get('pz') else ""}
    .p2align 3
    L_k2:""")
    for s_ in range(D):
        ex = [(0, f"buffer_load_dword v6, v{VP2}, s[{SCN}:{SCN+3}], 0 offen sc1")] if s_ == 0 else None
        step(s_, False, True, 36, extra=ex)
    b("""s_add_u32 s36, s36, 1
    s_cmp_eq_u32 s36, 2
    s_cbranch_scc1 L_chk
    L_chkd:
    s_cmp_lt_u32 s36, 6
    s_cbranch_scc1 L_k2""")
    b("L_tail:")
    for s_ in range(D - 1): step(s_, False, False, 12 * (D - 1 - s_))
    stamp(b)
    quad = lambda q, n: (q // 3) * 2 + (n // 3)
    oth = [(q, n) for d in (1, 2, 3) for q in range(6) for n in range(6) if quad(q, n) == d]
    mine = [(q, n) for q in range(3) for n in range(3)]
    wr = [(min(i_ + 5, 35), f"ds_write_b128 v{15 + quad(q, n)}, {vr(acc(q, n),4)} offset:{((q % 3) * 3 + n % 3) * 1024}") for i_, (q, n) in enumerate(oth)]
    step(D - 1, False, False, 0, order=oth + mine, extra=wr)
    if OPT.get('rstamps'): stamp(b)
    b("s_waitcnt lgkmcnt(0)\ns_barrier")
    if OPT.get('rstamps'): stamp(b)
    for t in range(9):
        for src in range(3):
            b(f"ds_read_b128 {vr(acc(*oth[3*t+src]),4)}, v19 offset:{src * 9216 + t * 1024}")
    for t, (q, n) in enumerate(mine):
        r0, r1, r2, m = acc(*oth[3*t]), acc(*oth[3*t+1]), acc(*oth[3*t+2]), acc(q, n)
        b(f"s_waitcnt lgkmcnt({min(15, 3 * (8 - t))})")
        for x_, y_ in ((r0, r1), (m, r2), (m, r0)):
            for r in (0, 2): b(f"v_pk_add_f32 v[{x_+r}:{x_+r+1}], v[{x_+r}:{x_+r+1}], v[{y_+r}:{y_+r+1}]")
        b(f"v_cvt_pk_bf16_f32 v{24+2*t}, v{m}, v{m+1}\nv_cvt_pk_bf16_f32 v{25+2*t}, v{m+2}, v{m+3}")
    for t, (q, n) in enumerate(mine):
        b(f"ds_write_b64 v20, v[{24+2*t}:{25+2*t}] offset:{q * 1536 + n * 32}")
    b("s_waitcnt lgkmcnt(0)")
    for r in range(5): b(f"ds_read_b128 {vr(48+4*r,4)}, v19 offset:{1024*r}")
    for r in range(5):
        b(f"s_waitcnt lgkmcnt({4-r})")
        b(f"buffer_store_dwordx4 {vr(48+4*r,4)}, v{42+r}, s[88:91], s{sOUTO} offen{K2F[OPT.get('outf', 0)]}")
    if OPT.get('rstamps'): stamp(b)
    b("L_fini:")
    if OPT.get('fixspan'):
        b(f"""s_waitcnt vmcnt(0)
        L_fix:
        s_memrealtime s[74:75]
        s_waitcnt lgkmcnt(0)
        s_sub_u32 s74, s74, s72
        s_cmp_lt_u32 s74, {OPT['fixspan'] * 100}
        s_cbranch_scc1 L_fix""")
    stamp_dump(b, 0, sWAVE)
    b("s_endpgm")
    if OPT.get('pz'):
        b("L_pz:")
        for j in range(10):
            sl = j % 2
            b(f"s_waitcnt vmcnt({12 if j < 9 else 0})")
            slots = []; gaps = [[] for _ in range(36)]
            for q in range(6):
                for n in range(6):
                    a_ = pz_acc(6 * q + n)
                    slots.append(f"{MF} {a_}, {pz_reg(sl, n)}, {pz_reg(sl, 6+q)}, {'0' if j == 0 else a_}")
            if j < 8:
                w_, o_, ad = pz_loads(sl, j + 2)
                for q in range(6): gaps[6 * q + 5].append(o_[q])
                for n in range(6): gaps[30 + n].append(w_[n])
                gaps[35] += ad
            emit_slots(b, slots, gaps)
        b(f"s_add_u32 s{sT}, s{sXB}, 131072\nv_add_u32 v5, s{sT}, v{VLN}\nv_mov_b32 v{VCW}, v{VTH}")
        for i_ in range(4): b(f"ds_write_b128 v5, {vr(16+4*i_,4)} offset:{1024*i_}")
        b(f"s_cmp_eq_u32 s{sWAVE}, 3\ns_cbranch_scc1 L_pzr3\ns_branch L_pzr4")
        b(f"""L_chk2:
        s_mov_b32 s36, 2
        buffer_load_dword v6, v{VP2}, s[{SCN}:{SCN+3}], 0 offen sc1
        s_waitcnt vmcnt(0)""")
    b(f"""L_chk:
    s_waitcnt vmcnt(48)
    s_sub_u32 s{sO2}, s{sO2}, {28*122880}
    s_sub_u32 s{sW2}, s{sW2}, {28*36864}
    v_cmp_gt_u32 vcc, 4, v6
    s_cbranch_vccz L_chkd
    s_mov_b32 s37, 0
    L_poll:
    s_sleep 4
    buffer_load_dword v6, v{VP2}, s[{SCN}:{SCN+3}], 0 offen sc1
    s_add_u32 s37, s37, 1
    s_waitcnt vmcnt(0)
    v_cmp_gt_u32 vcc, 4, v6
    s_cbranch_vccz L_chkd
    s_cmp_lt_u32 s37, 0x20000
    s_cbranch_scc1 L_poll
    s_branch L_chkd
    L_lateld:
    s_mov_b32 s{SO2+2}, s100
    s_mov_b32 s{SW2+2}, s101
    s_mul_i32 s{sO2}, s{sWAVE}, {32*122880}
    s_mul_i32 s{sW2}, s{sWAVE}, {32*36864}
    s_mov_b32 s{sLATE}, 2
    s_mov_b32 s37, 0
    L_esp:
    s_sleep 4
    buffer_load_dword v{VCW}, v{VPE}, s[{SCN}:{SCN+3}], 0 offen sc1
    s_add_u32 s37, s37, 1
    s_waitcnt vmcnt(0)
    v_cmp_gt_u32 vcc, v{VTH}, v{VCW}
    s_cbranch_vccz L_espd
    s_cmp_lt_u32 s37, 0x20000
    s_cbranch_scc1 L_esp
    L_espd:""")
    for s_ in range(4): b.ext(p2_w(s_) + p2_o(s_) + p2_adv(s_))
    b(f"""s_waitcnt vmcnt(0)
    s_cmp_eq_u32 s{sWAVE}, 3
    s_cbranch_scc1 L_p2s3
    s_branch L_p2s4
    L_redo:
    s_mov_b32 s{sSAFE}, 1
    s_waitcnt vmcnt(0)
    s_barrier""")
    prologue_a(b)
    b.ext(x_dma(0, 4)); b.ext(w_dma(0, 4))
    b("s_branch L_tramp")

def kernel1():
    b = B()
    b("attn_kernel:")
    b("s_cmp_lt_u32 s2, 256\ns_cbranch_scc1 L_work\ns_endpgm\nL_work:")
    if OPT['stamps']: b("s_mov_b32 s96, 0\nv_mov_b32 v14, 0\nv_mov_b32 v15, 0")
    stamp(b)
    if OPT.get('fixspan'): b("s_memrealtime s[72:73]\ns_waitcnt lgkmcnt(0)")
    b("s_load_dwordx16 s[48:63], s[0:1], 0\ns_load_dwordx4 s[64:67], s[0:1], 64\ns_load_dwordx2 s[100:101], s[0:1], 96\ns_load_dwordx4 s[76:79], s[0:1], 80")
    b(f"""s_mov_b32 s97, s2
    s_and_b32 s3, s2, 7
    s_lshr_b32 s2, s2, 3""")
    warm_code(b)
    b(f"""v_lshrrev_b32 v1, 6, v0
    s_bfe_u32 s68, s3, {0x10001 if OPT.get('map') else 0x10000}
    s_lshl_b32 s68, s68, 2
    s_and_b32 s69, s2, 3
    s_add_u32 s68, s68, s69        ; b
    v_readfirstlane_b32 s{sWAVE}, v1
    s_bfe_u32 s69, s3, {0x10000 if OPT.get('map') else 0x10001}
    s_lshl_b32 s69, s69, 3
    s_lshr_b32 s70, s2, 2
    s_add_u32 s69, s69, s70        ; hp
    s_lshr_b32 s3, s3, 2           ; blk
    s_lshl_b32 s{sWB}, s{sWAVE}, 12
    s_lshl_b32 s{sXB}, s{sWAVE}, 13
    s_mov_b32 s{sC}, {CSCALE}
    s_mov_b32 s{sC+1}, {CSCALE}
    s_mov_b32 s{sSAFE}, 0
    s_mov_b32 s{sFLAG}, 0""")
    prologue_a(b)
    b(f"""s_cmp_eq_u32 s3, 0
    s_waitcnt lgkmcnt(0)
    s_cselect_b64 s[48:49], s[48:49], s[58:59]
    s_cselect_b64 s[50:51], s[50:51], s[60:61]
    s_cselect_b64 s[52:53], s[52:53], s[62:63]
    s_cselect_b64 s[54:55], s[54:55], s[64:65]
    s_cselect_b64 s[56:57], s[56:57], s[66:67]""")
    if OPT.get('sstamps'): stamp(b)
    b(f"""s_mul_i32 s71, s68, 276480
    s_add_u32 s{SX}, s48, s71
    s_addc_u32 s{SX+1}, s49, 0
    s_mov_b32 s{SX+2}, 276480
    s_mov_b32 s{SX+3}, 0x20000
    s_lshl_b32 s71, s69, 9
    s_add_u32 s{SW}, s54, s71
    s_addc_u32 s{SW+1}, s55, 0
    s_sub_u32 s{SW+2}, 4718592, s71
    s_mov_b32 s{SW+3}, 0x20000""")
    b("L_srdok:")
    prologue_b(b)
    b(f"""s_cmp_eq_u32 s{sWAVE}, 3
    s_cbranch_scc1 L_begin3""")
    wave_code(b, 4, "4")
    b("L_tramp:\ns_branch L_late")
    b(".p2align 6")
    wave_code(b, 3, "3")
    b("L_phase2:")
    phase2(b)
    b("L_end1:\ns_endpgm\nL_codeend:")
    return b.L

def resolve_waits(L):
    out = []
    for i, x in enumerate(L):
        if x.startswith("WAITL"):
            tag = x.split()[1]
            n, T = tag[1:].split('.'); T = int(T)
            dst = set(range(AW + 8 * (T % 4), AW + 8 * (T % 4) + 8))
            cnt = 0; found = False
            for y in reversed(out):
                if y.startswith(("s_waitcnt", "WAITV")) and "lgkmcnt(0)" in y:
                    found = True; cnt = None; break
                if y.startswith("ds_"):
                    I = Ins(y)
                    if any(k == 'a' and r in dst for k, r in I.wr) or (T == 0 and 'need=X' in y):
                        found = True; break
                    cnt += 1
            assert found, x
            if cnt is not None:
                cnt = min(cnt, 15)
                out.append(f"s_waitcnt lgkmcnt({cnt})")
        else: out.append(x)
    return out

def expand_trace(L):
    def shift(line, name, it, step):
        if it == 0: return line
        def rep(m):
            k, n = m.group(1), int(m.group(2))
            if name == 'qp':
                if k == 'W': return f"W{n + step*it}"
                if k == 'X': return f"X{n + step*it//2}"
                return m.group(0)
            if k == 'KV': return f"KV{n + step*it}"
            return m.group(0)
        if ';' not in line: return line
        a, c = line.split(';', 1)
        return a + ';' + re.sub(r'\b(KV|W|X)(\d+)\b', rep, c)
    bodies = {}
    def go(i, stop):
        res = []
        while i < len(L):
            x = L[i]
            if x.startswith("LOOPBEGIN"):
                _, name, cnt, step = x.split(); cnt = int(cnt); step = int(step)
                body, j = go(i + 1, name)
                bodies[name] = (body, cnt, step)
                for it in range(cnt):
                    for y in body:
                        if y == f"LOOPEXIT {name}":
                            if it == cnt - 1: break
                            continue
                        res.append(shift(y, name, it, step))
                i = j + 1; continue
            if x.startswith("REPLAY"):
                _, name, off, cnt = x.split(); cnt = int(cnt); body, _, step = bodies[name]
                for it in range(cnt):
                    for y in body: res.append(shift(shift(y, name, it, step), name, 1, int(off)))
                i += 1; continue
            if x.startswith("LOOPEND") and x.split()[1] == stop: return res, i
            res.append(x); i += 1
        return res, i
    return go(0, None)[0]

STOPS = ("L_maxpass", "L_hspin", "L_espin")
def traces(L):
    tr = expand_trace(L)
    main = []
    for x in tr:
        if x.startswith(STOPS): break
        main.append(x)
    alt = None
    if "ALTFROM p" in main:
        i = tr.index("ALTBEGIN p"); j = tr.index("ALTEND p")
        alt = [x for x in main[:main.index("ALTFROM p")] if 'condp' not in x] + tr[i + 1:j]
    drop = lambda t: [x for x in t if not x.startswith("ALT")]
    return drop(main), drop([x for x in main if 'condp' not in x]), alt

def resolve_vm(L):
    idx = [f"{x} ;#{i}" if x.startswith("WAITV") else x for i, x in enumerate(L)]
    best = {}
    main, lean, alt = traces(idx)
    for which, tr in (("main", main), ("lean", lean), ("alt", alt or [])):
        q = []
        for x in tr:
            c = x.split(';', 1)[1] if ';' in x else ''
            if x.startswith(("buffer_", "global_")):
                if 'cond' in c and 'condp' not in c: continue
                m = re.search(r'tag=(\w+)', c); q.append(m.group(1) if m else 'other')
            elif x.startswith("WAITV"):
                tags = set(re.search(r'cover=([\w,]*)', c).group(1).split(','))
                if which == "lean" and any(t[:1] == 'P' or t == 'OS' for t in tags): continue
                i = int(x.rsplit('#', 1)[1])
                n = 0
                for t in reversed(q):
                    if t in tags: break
                    n += 1
                else: n = 63
                m = re.search(r'cap=(\d+)', c)
                best[i] = min(best.get(i, 63), n, int(m.group(1)) if m else 63)
    out = []
    for i, x in enumerate(L):
        if x.startswith("WAITV"):
            a, c = x.split(';', 1) if ';' in x else (x, '')
            out.append(f"s_waitcnt vmcnt({best[i]}) {a[5:].strip()} ;{c}")
        else: out.append(x)
    return out

def check_protocol(L, label):
    q = []; done = set(); issued = {}; pub = set(); errs = 0
    for x in L:
        c = x.split(';', 1)[1] if ';' in x else ''
        if x.startswith("buffer_") or x.startswith("global_"):
            if 'cond' in c and 'condp' not in c: continue
            m = re.search(r'tag=(\w+)', c); q.append(m.group(1) if m else 'other')
        elif x.startswith("s_waitcnt"):
            m = re.search(r'vmcnt\((\d+)\)', x)
            if m:
                n = int(m.group(1))
                while len(q) > n: done.add(q.pop(0))
            m = re.search(r'needtag=(\w+)', c)
            if m and m.group(1) in q: print(label, "ERR needtag", x); errs += 1
        elif x.startswith("s_barrier") or 'SYNC' in c:
            m = re.search(r'pub=([\w,]*)', c)
            if m:
                for t in m.group(1).split(','):
                    if not t: continue
                    if t in q or (t not in done and not (label[:2] == 'w3' and t[0] in 'XW')): print(label, "ERR publish not landed", t, x); errs += 1
                    pub.add(t)
        elif x.startswith("ds_read"):
            m = re.search(r'need=(\w+)', c)
            if m and m.group(1) not in pub : print(label, "ERR read unpublished", x); errs += 1
        assert len(q) <= 63, ("vmcnt overflow", x)
    return errs

def burn(L):
    out = []; on = False; c = 0; k = 0
    for x in L:
        if x == 'BURNON': on = True; c = 0; continue
        if x == 'BURNOFF': on = False; continue
        out.append(x)
        if on and OPT.get('burn'):
            if x.startswith('v_mfma'): c = 0
            elif x.startswith('v_'):
                c += 1
                if c >= OPT['burn']:
                    c = 0; k += 1
                    out.append(f"{MF} v[4:7], a[{32+4*(k%8)}:{35+4*(k%8)}], a[{96+4*(k%7)}:{99+4*(k%7)}], v[4:7]")
    return out

def check_lgkm(L, label):
    dq = []; vq = []; errs = 0; cache = {}
    for x in L:
        t = x.split(';')[0].strip()
        I = cache.get(t)
        if I is None: I = cache[t] = Ins(t)
        if I.kind == 'label': continue
        if I.op == 's_waitcnt':
            m = re.search(r'lgkmcnt\((\d+)\)', t)
            if m:
                while len(dq) > int(m.group(1)): dq.pop(0)
            m = re.search(r'vmcnt\((\d+)\)', t)
            if m:
                while len(vq) > int(m.group(1)): vq.pop(0)
            continue
        use = I.rd | I.srcc | I.wr
        for w in dq + vq:
            if w & use: print(label, "ERR uncovered", x); errs += 1; break
        if I.kind in ('dsr', 'dsw'): dq.append(I.wr)
        if I.kind in ('vload', 'vstore', 'dma') and not ('cond' in x and 'condp' not in x): vq.append(I.wr)
    return errs

def finish(L):
    L = burn(L)
    L = resolve_waits(L)
    return L

def strip_markers(L):
    return [x for x in L if not x.startswith(("LOOPBEGIN", "LOOPEND", "LOOPEXIT", "REPLAY", "ALT"))]

DESC = """.section .rodata,"a"
.p2align 6
.amdhsa_kernel {name}
  .amdhsa_next_free_vgpr {vgpr}
  .amdhsa_next_free_sgpr 102
  .amdhsa_accum_offset 256
  .amdhsa_group_segment_fixed_size 0
  .amdhsa_kernarg_size 104
  .amdhsa_user_sgpr_count 2
  .amdhsa_user_sgpr_kernarg_segment_ptr 1
  .amdhsa_system_sgpr_workgroup_id_x 1
  .amdhsa_float_denorm_mode_32 3
.end_amdhsa_kernel
"""

def build(**kw):
    OPT.update(kw)
    k1 = finish(kernel1())
    i4 = k1.index("L_begin4:"); i3 = k1.index("L_begin3:"); iv = k1.index("L_phase2:")
    ip = k1.index("L_srdok:"); pre = k1[ip:i4]
    k1 = k1[:i4] + resolve_vm(pre + k1[i4:i3])[len(pre):] + resolve_vm(pre + k1[i3:iv])[len(pre):] + k1[iv:]
    e = 0
    for lab, part in (("w4", pre + k1[i4:i3]), ("w3", pre + k1[i3:])):
        main, lean, alt = traces(part)
        e += check_protocol(main, lab) + check_lgkm(main, lab)
        if alt: e += check_protocol(alt, lab + "alt") + check_lgkm(alt, lab + "alt")
    assert e == 0 or OPT.get('nocheck')
    k1 = strip_markers(k1)
    k1, n1, p1 = fix_hazards(k1)
    for p in p1: print("BRANCH HAZARD", p)
    assert not p1
    hdr = open("ref.txt").read().split("; Override")[0]
    KN = NAME + "_kernel"
    k1 = [x.replace("attn_kernel", KN) for x in k1]
    out = hdr
    out += "; generated by my own schedule generator: q-projection + attention (2 heads per workgroup), hand-off, output projection\n"
    out += ("; @launch kernel=%s grid=(256,1,1) block=(256,1,1) lds=163840\n" % KN) if OPT.get('list') else "; @launch grid=(256,1,1) block=(256,1,1) lds=163840\n"
    out += '.amdgcn_target "amdgcn-amd-amdhsa--gfx950"\n.text\n'
    out += ".globl %s\n.p2align 8\n.type %s,@function\n" % (KN, KN) + "\n".join(k1) + "\n"
    out += DESC.format(name=KN, vgpr=512)
    return out, n1

if __name__ == "__main__":
    kw = {}
    for a in sys.argv[2:]:
        k, v = a.split('='); kw[k] = int(v)
    s, info = build(**kw)
    open(sys.argv[1], "w").write(s)
    print("nops inserted", info, "bytes", len(s))
```

```python
import sys, re
from asmlib import fix_hazards, Ins

NAME = "concat_heads__mha_block_cached__mha_block_cached__near_ridge"
MF = "v_mfma_f32_16x16x32_bf16"
CSCALE = 0x3e0293ee
LTHR = 0x4e800000

O_BLK = 128 * 122880
WOT_OFF = 2 * O_BLK
WOT_BLK = 128 * 36864
CNT_OFF = WOT_OFF + 2 * WOT_BLK

class B:
    def __init__(self): self.L = []
    def __call__(self, s):
        for x in s.split("\n"):
            x = x.strip()
            if x: self.L.append(x)
    def ext(self, l): self.L.extend(l)

def vr(b, n): return f"v[{b}:{b+n-1}]"
def ar(b, n): return f"a[{b}:{b+n-1}]"

def emit_slots(b, slots, gaps):
    for i, s in enumerate(slots):
        if s: b(s)
        nv = [x for x in gaps[i] if not x.startswith('v_')]
        v = [x for x in gaps[i] if x.startswith('v_')]
        for x in nv + v: b(x)

S_ = 16; P_ = 48; CI = 64; LS = 80
KA = 84
VA = 88
VWA = 105
DK0 = 96; DK1 = 97; DV0 = 98; DV1 = 99
VO = 100
VWO = 101
VWX = 102
VLN = 103
VPF = 104
VPD = 105
T0 = 108
O_ = 128
XA = 16; WA = 28; DX = 20; DW = 24
WSLOT = [49152, 114688, 131072, 147456]; sKB = 69
def AQ(q): return 32 + 64 * (q // 2) + 16 * (q % 2)
def AQ2(q): return 128 + 16 * q
AK = 0; AV = 64; ASP = 64
AX = 0; AW = 64
SX = 4; SW = 8; SK = 12; SV = 16; SO = 20; SWO = 24; SWT = 28
sWAVE = 32; sWB = 33; sKV = 34; sCNT = 35; sHEAD = 36; sSAFE = 37; sFLAG = 38
sXO = 39; sXO2 = 40; sWOFF = 41; sXB = 42; sOO = 43; sC = 44
sT = 46
sH0 = 68; sWOS = 64; sWTS = 65; sSTAMP = 72; SPF = 76; sPF = 68; sWXS = 67; sROT = 80; sLIN = 81
SCN = 48; SDB = 52; SO2 = 56; sCO = 60; sCW = 61; SIN = 84; SIF = 88; sOUT = 76; VHS = 106; VCW = 107; VONE = 104
SW2 = 80; sO2 = 98; sW2 = 99; sOUTO = 66; sOP = 41; VPE = 11; VTH = 12; VP2 = 13; VWE = 10; AST = 192; sSIG = 78; sLATE = 79; sIDLE = 67; sRT = 68; sLN = 71; sPW = 40; sPZ = 64; sST = 65; VPA = 102; DEC = 131072 + 7168 + 64; sFV = 39; VFA = 1; VFB = 101; FQ = 80; FLAGS = 131072 + 7168 + 32

OPT = dict(nt_kv=1, nt_w=0, nt_x=0, nt_wo=0, stamps=0, warm=1, of=2, of0=2, e67=1, bal=0, pair=1, wts=1, sw2=2)

K2F = ['', ' nt', ' sc1', ' sc0 sc1', ' sc0', ' sc1 nt', ' sc0 sc1 nt']
def fl(k): return ["", " nt", " sc1 nt", " sc0 sc1 nt", " sc0 nt"][OPT[k]]

def dma(voff, srd, soff, off, flag, tag):
    return f"buffer_load_dwordx4 v{voff}, s[{srd}:{srd+3}], {soff} offen offset:{off}{flag} lds ; tag={tag}"

def kv_adv():
    if not OPT.get('rot'): return [f"s_add_u32 s{sKV}, s{sKV}, 8192"]
    return [f"s_add_u32 s{sLIN}, s{sLIN}, 8192", f"s_add_u32 s{sKV}, s{sLIN}, s{sROT}",
            f"s_and_b32 s{sKV}, s{sKV}, 0x3ffff", f"s_and_b32 s{sT+1}, s{sLIN}, 0xfffc0000", f"s_or_b32 s{sKV}, s{sKV}, s{sT+1}"]

def adv2(tmp):
    if not OPT.get('rot'): return [f"s_add_u32 s{sKV}, s{sKV}, 16384"]
    return [f"s_add_u32 s{sLN}, s{sLN}, 16384", f"s_add_u32 s{sKV}, s{sLN}, s{sRT}", f"s_and_b32 s{sKV}, s{sKV}, 0x3ffff",
            f"s_and_b32 s{tmp}, s{sLN}, 0x40000", f"s_or_b32 s{sKV}, s{sKV}, s{tmp}"]

def k_dma(tile, so=None):
    so = so or f"s{sKV}"
    return [f"s_add_u32 m0, s{sKB}, {(tile % 8) * 8192}",
            dma(DK0, SK, so, 0, fl('nt_kv'), f"KV{tile}"), dma(DK1, SK, so, 1024, fl('nt_kv'), f"KV{tile}")]
def v_dma(tile, so=None):
    so = so or f"s{sKV}"
    return [f"s_add_u32 m0, s{sKB}, {65536 + (tile % 8) * 8192}",
            dma(DV0, SV, so, 0, fl('nt_kv'), f"KV{tile}"), dma(DV1, SV, so, 1024, fl('nt_kv'), f"KV{tile}")]

def x_dma(m, nq):
    slot = 16384 if m % 2 else 81920
    out = []
    out.append(f"s_add_u32 m0, s{sXB}, {slot}")
    for j in range(4): out.append(dma(DX + j, SX, f"s{sXO}", 1024 * j, fl('nt_x'), f"X{m}"))
    out.append(f"s_add_u32 m0, s{sXB}, {slot + 4096}")
    for j in range(4 if nq == 4 else 2): out.append(dma(DX + j, SX, f"s{sXO2}", 1024 * j, fl('nt_x'), f"X{m}"))
    out.append(f"s_add_u32 s{sXO}, s{sXO}, 128")
    out.append(f"s_add_u32 s{sXO2}, s{sXO2}, 128")
    return out

def w_dma(n, nq):
    out = [f"s_add_u32 m0, s{sWB}, {WSLOT[n % 4]}"]
    for j in range(4): out.append(dma(DW + j, SW, f"s{sWOFF}", 1024 * j, fl('nt_w'), f"W{n}"))
    if n % 2 == 0: out.append(f"s_add_u32 s{sWOFF}, s{sWOFF}, 256")
    else: out.append(f"s_add_u32 s{sWOFF}, s{sWOFF}, {524288 - 256}")
    return out

def w_reads(n, T):
    sp_, a = T // 2, T % 2
    hl, sp = sp_ // 2, sp_ % 2
    out = []
    for s in range(2):
        for a2 in range(2):
            d = AW + 8 * (T % 4) + 4 * s + 2 * a2
            off = max(n % 4 - 1, 0) * 16384 + hl * 8192 + (32 * s + 4 * a2) * 128 + 8 * a
            out.append(f"ds_read_b64_tr_b16 {ar(d,2)}, v{WA + sp + (2 if n % 4 else 0)} offset:{off} ; need=W{n}")
    return out

def x_reads(m, nq):
    out = []
    for q in range(nq):
        for s in range(2):
            d = AX + 32 * (m % 2) + 8 * q + 4 * s
            out.append(f"ds_read_b128 {ar(d,4)}, v{XA + s + (0 if m % 2 else 2)} offset:{q * 2048} ; need=X{m}")
    return out

def qacc(hd, q, T):
    r = 128 + 32 * q + 4 * T
    return vr(r, 4) if hd == 0 else ar(r, 4)

def pf_load():
    return f"buffer_load_dword v{VPD}, v{VPF}, s[{SPF}:{SPF+3}], s{sPF} offen nt ; tag=PF"

def wo_dma():
    out = []
    for r in range(2):
        out.append(f"s_add_u32 m0, s{sWOS}, {4096*r}")
        for j in range(4):
            out += [f"PRE s_mov_b32 s{sT}, {8192*j + 512*r}", dma(VWO, SWO, f"s{sT}", 1024 * j, fl('nt_wo'), "WO")]
    out += [f"s_mov_b32 m0, s{sWTS}", dma(VWX, SWO, "0", 0, fl('nt_wo'), "WO")]
    return out
WOF = 32
def wo_reads():
    out = [f"ds_read_b64_tr_b16 {vr(WOF+16*r+4*tl+2*a,2)}, v{VWA} offset:{4096*r + 2048*a + 32*tl}" for r in range(2) for tl in range(4) for a in range(2)]
    return out + [f"ds_read_b64_tr_b16 {vr(WOF+32+2*a,2)}, v{VWE} offset:{512*a}" for a in range(2)]
def wo_stores():
    out = []
    for r in range(2):
        out.append(f"PRE s_add_u32 s{sT}, s{sWB}, {16384*r}")
        out += [f"buffer_store_dwordx4 {vr(WOF+16*r+4*tl,4)}, v{VLN}, s[{SWT}:{SWT+3}], s{sT} offen offset:{1024*tl} sc1 ; tag=WT" for tl in range(4)]
    out += [f"PRE s_lshl_b32 s{sT}, s{sWAVE}, 10", f"PRE s_add_u32 s{sT}, s{sT}, 32768",
            f"buffer_store_dwordx4 {vr(WOF+32,4)}, v{VLN}, s[{SWT}:{SWT+3}], s{sT} offen sc1 ; tag=WT"]
    return out

QSPINS = []; QF = 68; QFA = 72; QFB = 73; sFQ = 35; QFLAGS = 112640
def qproj_stage(b, n, nq, fill=None):
    hd, m = n % 2, n // 2
    nx = 8 if nq == 4 else 6
    slots = []; gaps = [[] for _ in range(64)]
    for T in range(8):
        for q in range(4):
            for s in range(2):
                if q >= nq: slots.append(None); continue
                acc = qacc(hd, q, T)
                c = "0" if (m == 0 and s == 0) else acc
                slots.append(f"{MF} {acc}, {ar(AW+8*(T%4)+4*s,4)}, {ar(AX+32*(m%2)+8*q+4*s,4)}, {c}")
    start = {3: 5, 4: 12, 5: 19, 6: 26, 7: 33}
    rd = w_reads(n, 2); gaps[0].append(rd[3])
    for T, g in start.items():
        for i, x in enumerate(w_reads(n, T)): gaps[g + i].append(x)
    FSQ = OPT.get('fsq') and n < 15
    if n < 17:
        for T, g in (((0, 53), (1, 57)) if FSQ else ((0, 45), (1, 53))):
            for i, x in enumerate(w_reads(n + 1, T)): gaps[g + i].append(x)
        for i, x in enumerate(w_reads(n + 1, 2)[:3]): gaps[61 + i].append(x)
    xr = []
    if n % 2 == 1 and m + 1 <= 8:
        xr = x_reads(m + 1, nq)
        for x, g in zip(xr, (9, 10, 16, 17, 23, 24, 30, 31) if not (n == 1 and OPT.get('x1late')) else (49, 50, 51, 52, 57, 58, 59, 60)): gaps[g].append(x)
    for T in range(1, 8): gaps[8 * T - 1].append(f"WAITL W{n}.{T}")
    if n < 17: gaps[63].append(f"WAITL W{n+1}.0")
    req = []
    if n + 1 <= 17: req.append(f"W{n+1}")
    if n % 2 == 0 and m + 1 <= 8 and not (n == 0 and OPT.get('x1late')): req.append(f"X{m+1}")
    if n == 1 and OPT.get('x1late'): req.append("X1")
    if n == 17: req += ["KV0", "KV1"]
    cov = list(req)
    if nq == 3 and n == 2:
        cov.append("INIT")
        gaps[55].append(f"buffer_store_dword v{VONE}, v{VLN}, s[{SIF}:{SIF+3}], 0 offen sc1 ; tag=FLAG")
    if nq == 3 and n == 12:
        gaps[45].append(f"buffer_load_dword v{VHS}, off, s[{SDB}:{SDB+3}], 0 ; tag=HS")
    if n == 17 and OPT.get('fsa'):
        gaps[36] += [f"s_mov_b32 s{sFV}, 0", f"v_mov_b32 v{VFB}, {FLAGS}", f"v_mov_b32 v{FQ}, 0"]
        gaps[37] += [f"v_lshl_add_u32 v{VFA}, s{sWAVE}, 2, v{VFB}"]
        gaps[39] += [f"ds_write_b32 v{VFA}, v{FQ}"]
    if FSQ:
        uid = f"q{n}_{nq}"
        gaps[42] += [f"s_add_u32 s{sFQ}, s{sFQ}, 1", f"v_mov_b32 v{QF}, s{sFQ}"]
        gaps[43] += ["WAITV lgkmcnt(0) ; cover=" + ",".join(cov), f"ds_write_b32 v{QFA}, v{QF}"]
        gaps[47].append(f"ds_read_b128 {vr(QF,4)}, v{QFB}")
        gaps[50] += ["s_waitcnt lgkmcnt(0)", f"v_min3_u32 v{QF}, v{QF}, v{QF+1}, v{QF+2}"]
        gaps[51].append(f"v_min_u32 v{QF}, v{QF}, v{QF+3}")
        gaps[52].append(f"v_cmp_gt_u32 vcc, s{sFQ}, v{QF}\ns_cbranch_vccnz L_fs{uid}\nL_fr{uid}: ; SYNC pub=" + ",".join(req))
        QSPINS.append(uid)
    else:
        gaps[43].append("WAITV lgkmcnt(0) ; cover=" + ",".join(cov))
        gaps[44].append("s_barrier ; pub=" + ",".join(req))
    def place(seq, first, step):
        g = first
        for x in seq:
            if x.startswith("buffer_"): gaps[g].append(x); g += step
            elif x.startswith(("s_add_u32 m0", "s_mov_b32 m0")): gaps[g - 1].append(x)
            elif x.startswith("PRE "): gaps[g - 1].append(x[4:])
            else: gaps[min(g - step + 1, 63)].append(x)
    if n == 0 and OPT.get('x2late'): place(w_dma(2, nq) + w_dma(3, nq), 2, 5)
    elif n == 1 and OPT.get('x2late'): place(x_dma(2, nq), 2, 4)
    elif n == 0: place(w_dma(2, nq) + w_dma(3, nq) + x_dma(2, nq), 1, 2)
    elif n % 2 == 0 and m + 2 <= 8: place(x_dma(m + 2, nq), 2, 5)
    def single(kind, i_):
        if kind == 'wo':
            if i_ == 8: return [f"s_mov_b32 m0, s{sWTS}", None, dma(VWX, SWO, "0", 0, fl('nt_wo'), "WO")]
            r, j_ = i_ // 4, i_ % 4
            return [f"s_add_u32 m0, s{sWOS}, {4096*r}", f"s_mov_b32 s{sT}, {8192*j_ + 512*r}", dma(VWO, SWO, f"s{sT}", 1024 * j_, fl('nt_wo'), "WO")]
        t, j_ = i_ // 4, i_ % 4
        d_ = (k_dma if j_ < 2 else v_dma)(t, f"s{sT}")
        return [d_[0], f"s_add_u32 s{sT}, s{sRT}, {8192*t}" if OPT.get('rot') else f"s_mov_b32 s{sT}, {8192*t}", d_[1 + j_ % 2]]
    if OPT.get('slowpos', 0):
        R0 = 9
        sched_ = {2: [('wo', 0), ('wo', 1), ('wo', 2)], 4: [('wo', 3), ('wo', 4), ('wo', 5)], 6: [('wo', 6), ('wo', 7), ('wo', 8)],
                  10: [('kv', i_) for i_ in range(4)], 12: [('kv', i_) for i_ in range(4, 8)]}
        for (kind, i_) in sched_.get(n, []):
            gaps[63] += [x for x in single(kind, i_) if x]
    else:
        W0 = 1; R0 = W0 + 7
        sched_ = {W0 + i_ // 2: [] for i_ in range(9)}
        for i_ in range(8 if OPT.get('fsq') else 9): sched_[W0 + i_ // 2].append(('wo', i_))
        if not OPT.get('late'):
            for i_ in range(8): sched_.setdefault(R0 + 2 + i_ // 2, []).append(('kv', i_))
        for (kind, i_), g in zip(sched_.get(n, []), (39, 42) if (n % 2 == 0 or OPT.get('stpos', 0) or (n == 1 and OPT.get('x2late'))) else (12, 32)):
            m0_, so_, ld_ = single(kind, i_)
            gaps[g - 1].append(m0_)
            if so_: gaps[g - 1].append(so_)
            gaps[g].append(ld_)
    if n == 13: gaps[62] += [f"s_add_u32 s{sKV}, s{sRT}, 16384", f"s_mov_b32 s{sLN}, 49152"] if OPT.get('rot') else [f"s_mov_b32 s{sKV}, 16384"]
    if n in (R0, R0 + 1):
        rd = wo_reads()
        if OPT.get('fsq'): rd = rd[:16]
        if n == R0:
            gaps[44].append("WAITV ; cover=WO")
            for x, g in zip(rd[:8], [44, 45, 46, 48, 49, 51, 52, 52] if FSQ else [49, 50, 51, 52, 57, 58, 59, 60]): gaps[g].append(x)
        else:
            for x, g in zip(rd[8:], [1, 2, 3, 4, 11, 18, 25, 37, 38, 39]): gaps[g].append(x)
    for i_ in range(0 if OPT.get('wts') else 9):
        if OPT.get('slowpos', 0):
            if n != (10, 10, 12, 12, 14, 14, 14, 16, 16)[i_]: continue
            t_ = [f"s_add_u32 s{sT+1}, s{sWB}, {16384*(i_//4)}"] if i_ < 8 else [f"s_lshl_b32 s{sT+1}, s{sWAVE}, 10", f"s_add_u32 s{sT+1}, s{sT+1}, 32768"]
            gaps[62] += t_ + [f"buffer_store_dwordx4 {vr(WOF+4*i_,4)}, v{VLN}, s[{SWT}:{SWT+3}], s{sT+1} offen offset:{1024*(i_%4) if i_ < 8 else 0} sc1 ; tag=WT"]
            continue
        r, tl = i_ // 4, i_ % 4
        if OPT.get('stpos', 0):
            if n != (9, 9, 11, 11, 13, 13, 15, 15, 15)[i_]: continue
            g = (8, 10, 2, 4, 2, 4, 2, 4, 7)[i_]
        else:
            if n != min(R0 + 1 + i_, 17 - (1 if i_ < 8 else 0)) : continue
            g = 62 if not any('tag=WT' in x for x in gaps[62]) else 48
        if i_ < 8: gaps[g - 1].append(f"s_add_u32 s{sT+1}, s{sWB}, {16384*r}")
        else: gaps[g - 2].append(f"s_lshl_b32 s{sT+1}, s{sWAVE}, 10"); gaps[g - 1].append(f"s_add_u32 s{sT+1}, s{sT+1}, 32768")
        gaps[g].append(f"buffer_store_dwordx4 {vr(WOF+4*i_,4)}, v{VLN}, s[{SWT}:{SWT+3}], s{sT+1} offen offset:{1024*tl if i_ < 8 else 0}{K2F[OPT.get('wtf', 2)]} ; tag=WT")
    if n == 14 and OPT.get('late'):
        place([f"PRE s_mov_b32 s{sT}, 0"] + k_dma(0, f"s{sT}") + v_dma(0, f"s{sT}") + [f"PRE s_mov_b32 s{sT}, 8192"] + k_dma(1, f"s{sT}") + v_dma(1, f"s{sT}"), 2, 5)
    if n in ((15, 16) if OPT.get('late') else (14, 16)):
        seq = []
        for t in range(2, 6):
            seq += [f"PRE s_add_u32 s{sT}, s{sKV}, {(t - 2) * 8192}"] + (k_dma if n < 16 else v_dma)(t, f"s{sT}")
        if n == 16: seq.append(f"s_add_u32 s{sKV}, s{sKV}, 32768")
        place(seq, 2, 5)
    if n == 17 and OPT.get('e67'):
        place(k_dma(6) + [f"PRE s_add_u32 s{sT}, s{sKV}, 8192"] + k_dma(7, f"s{sT}"), 4, 9)
        place(v_dma(6) + v_dma(7, f"s{sT}") + adv2(sT + 1), 47, 4)
    if OPT.get('awake') and n % 2 == 1 and 3 <= n <= 11:
        seq = []
        for t in range(OPT['awake']):
            seq += [f"PRE s_add_u32 s{sPF}, s{sPF}, 8192"] + k_dma(t % 2, f"s{sPF}") + v_dma(t % 2, f"s{sPF}")
        seq = [x.replace('tag=KV0', 'tag=DUM').replace('tag=KV1', 'tag=DUM') for x in seq]
        place(seq, 2, 40 // (4 * OPT['awake']))
    if OPT.get('awake') and n == 13:
        place([f"PRE s_mov_b32 s{sPF}, 0"] + k_dma(0, f"s{sPF}") + v_dma(0, f"s{sPF}") + [f"PRE s_mov_b32 s{sPF}, 8192"] + k_dma(1, f"s{sPF}") + v_dma(1, f"s{sPF}"), 2, 5)
    if n + 4 <= 17: place(w_dma(n + 4, nq), *((54, 3) if FSQ else (46, 5)))
    for i_ in range(OPT.get('qslow', 0)): gaps[2 + 2 * i_].append('v_nop\nv_nop\nv_nop\nv_nop\nv_nop\nv_nop')
    if fill is not None:
        for g in range(20 if n == 16 else 0, 64):
            if slots[g] is None: continue
            for _ in range(2):
                if fill: gaps[g].append(fill.pop(0))
    emit_slots(b, slots, gaps)
    if OPT.get('qstamps'): stamp(b)

def k_reads(unit, tile):
    out = []
    for kt in range(2):
        for s in range(4):
            f = 4 * kt + s
            out.append(f"ds_read_b128 {ar(AK+4*f,4)}, v{KA + s} offset:{unit * 8192 + kt * 4096} ; need=KV{tile}")
    return out

def v_reads(unit, tile):
    out = []
    for T in range(8):
        th, tl = T // 4, T % 4
        for a in range(2):
            out.append(f"ds_read_b64_tr_b16 {ar(AV+4*T+2*a,2)}, v{VA + T} offset:{unit * 8192 + a * 4096} ; need=KV{tile}")
    return out

import sched, sched2
LM = 1
for a_ in sys.argv[2:]:
    if a_.startswith('lm='): LM = int(a_[3:])
if LM:
    NS = 68
    V_GAPS = list(range(26, 42)); K_GAPS = list(range(50, 58)); D_GAPS = [3, 11, 17, 23]
    SM = sched2.schedule(V_GAPS + K_GAPS, D_GAPS)
    for a_ in sys.argv[2:]:
        if a_.startswith('dg='): D_GAPS = {1: [3, 7, 33, 38], 2: [4, 8, 34, 40], 3: [3, 8, 36, 56]}[int(a_[3:])]
else:
    NS = 64
    V_GAPS = list(range(25, 41)); K_GAPS = list(range(48, 56)); D_GAPS = [1, 9, 17, 23]
    SM = sched.schedule(4, V_GAPS + K_GAPS, D_GAPS)
BG = K_GAPS[0] - 1
LA = 108; ONES = 124
def sm_text(kind, q, e):
    s = S_ + 8 * q + e
    if kind == 'exp': return f"v_exp_f32 v{s}, v{s}"
    if kind == 'add': return f"v_add_f32 v{LS+q}, v{LS+q}, v{s}"
    return f"v_cvt_pk_bf16_f32 v{P_+4*q+e//2}, v{s-1}, v{s}"
def sm_items(nq, lo, hi):
    it = [(g, k[0] == 'exp', k) for k, g in SM.items() if k[1] < nq and lo <= g < hi]
    it.sort(key=lambda t: (t[0] % NS, t[1], -t[0]))
    return [(g, k) for g, _, k in it]

def qk(q, kt, s, czero=False):
    d = vr(S_ + 8 * q + 4 * kt, 4)
    c = d if s else ("0" if czero else vr(CI + 4 * q, 4))
    return f"{MF} {d}, {ar(AK+4*(4*kt+s),4)}, {ar(AQ(q)+4*s,4)}, {c}"

def pv(q, T, czero=False):
    d = vr(O_ + 32 * q + 4 * T, 4)
    return f"{MF} {d}, {ar(AV+4*T,4)}, {vr(P_+4*q,4)}, {'0' if czero else d}"

def lsm(q, czero=False):
    d = vr(LA + 4 * q, 4)
    return f"{MF} {d}, {vr(ONES,4)}, {vr(P_+4*q,4)}, {'0' if czero else d}"

SPINS = []
def attn_stage(b, k, nq, extra=None, fill=None, resume=False):
    kk = k % 32; u = k % 8
    if resume: kk = 0
    slots = []; gaps = [[] for _ in range(NS)]
    for q in (0, 1):
        for kt in range(2):
            for s in range(4): slots.append(qk(q, kt, s))
    for q in (2, 3):
        for T in range(8): slots.append(pv(q, T, kk == 1) if (q < nq and kk > 0) else None)
        if LM: slots.append(lsm(q, kk == 1) if (q < nq and kk > 0) else None)
    for q in (2, 3):
        for kt in range(2):
            for s in range(4): slots.append(qk(q, kt, s) if q < nq else None)
    for q in (0, 1):
        for T in range(8): slots.append(pv(q, T, kk == 0 and not resume))
        if LM: slots.append(lsm(q, kk == 0 and not resume))
    for g, key in sm_items(nq, 0, 2 * NS if kk > 0 else NS): gaps[g % NS].append(sm_text(*key))
    for g, x in zip(V_GAPS, v_reads(u, k)): gaps[g].append(x)
    DIST = 7 if OPT.get('d7') else OPT.get('dist', 5 if OPT.get('fsa') else 6)
    if DIST == 7 and k < 63:
        gaps[BG - 1].append(f"WAITV lgkmcnt(0) ; cover=KV{k+1}" + (",WT" if kk == 11 else ""))
        gaps[BG].append(f"s_barrier ; pub=KV{k+1}")
    elif k % 2 == 1 and k < 63 and OPT.get('fsa'):
        uid = f"{k}_{nq}"
        pg = OPT.get('fsp', 30); rg = OPT.get('fsr', 36)
        gaps[pg - 2].append(f"s_add_u32 s{sFV}, s{sFV}, 1")
        gaps[pg - 1].append(f"v_mov_b32 v{FQ}, s{sFV}") if pg - 1 >= 30 or pg < 26 else gaps[pg].append(f"v_mov_b32 v{FQ}, s{sFV}")
        gaps[pg + 1].insert(0, f"WAITV ; cover=KV{k+1},KV{k+2}" + (",WT" if kk == 11 else ""))
        gaps[pg + 1].append(f"ds_write_b32 v{VFA}, v{FQ}")
        gaps[rg].append(f"ds_read_b128 {vr(FQ,4)}, v{VFB}")
        gaps[rg + 3].insert(0, "s_waitcnt lgkmcnt(2)")
        gaps[rg + 3].append(f"v_min3_u32 v{FQ}, v{FQ}, v{FQ+1}, v{FQ+2}")
        gaps[rg + 4].append(f"v_min_u32 v{FQ}, v{FQ}, v{FQ+3}")
        gaps[rg + 5].append(f"v_cmp_gt_u32 vcc, s{sFV}, v{FQ}")
        gaps[rg + 6].insert(0, f"s_cbranch_vccnz L_fs{uid}\nL_fr{uid}: ; SYNC pub=KV{k+1},KV{k+2}")
        gaps[BG].append("s_waitcnt lgkmcnt(0)")
        SPINS.append(uid)
    elif k % 2 == 1 and k < 63:
        gaps[BG - 1].append(f"WAITV lgkmcnt(0) ; cover=KV{k+1},KV{k+2}" + (",WT" if k == (39 if OPT.get('pz') else 11) else ""))
        gaps[BG].append(f"s_barrier ; pub=KV{k+1},KV{k+2}")
    else:
        gaps[BG].append("s_waitcnt lgkmcnt(0)")
    if k < 63:
        for g, x in zip(K_GAPS, k_reads((u + 1) % 8, k + 1)): gaps[g].append(x)
        gaps[NS - 1].append("s_waitcnt lgkmcnt(0)")
    if k + DIST < 64 and not (OPT.get('e67') and k + DIST < 8) and not (OPT.get('sw2') and k in (32, 33)):
        if OPT.get('pair'):
            t0 = k + DIST - (k % 2); fn = v_dma if k % 2 else k_dma
            kd, vd = fn(t0), fn(t0 + 1, f"s{sT}")
            gaps[D_GAPS[2] - 2].append(f"s_add_u32 s{sT}, s{sKV}, 8192")
            if k % 2:
                for i_, x in enumerate(adv2(sT)): gaps[42 + i_].append(x)
        else:
            kd, vd = k_dma(k + DIST), v_dma(k + DIST)
            gaps[44] += kv_adv()
        gaps[D_GAPS[0] - 1].append(kd[0]); gaps[D_GAPS[2] - 1].append(vd[0])
        for x, g in zip(kd[1:] + vd[1:], D_GAPS): gaps[g].append(x)
    for i_ in range(OPT.get('slow', 0)): gaps[2 + 2 * i_].append('v_nop\nv_nop\nv_nop\nv_nop')
    if extra:
        for g, x in extra: gaps[g].append(x)
    if fill:
        cost = lambda x: 2 if x.startswith('v_exp') else (1 if x.startswith(('v_', 'ds_', 'buffer_')) else 0)
        room = [max(0, 2 - sum(cost(x) for x in gaps[g])) if slots[g] else 0 for g in range(NS)]
        left = len(fill) - sum(room)
        live = [g for g in range(NS) if slots[g]]
        for i_ in range(max(left, 0)): room[live[(i_ * len(live)) // left]] += 1
        for g in range(NS):
            for _ in range(room[g]):
                if fill: gaps[g].append(fill.pop(0))
        assert not fill
    for key, pre in (('nobar', ('s_barrier',)), ('nodma', ('buffer_load_dwordx4 v9',)), ('nolds', ('ds_read',)), ('noexp', ('v_exp',))):
        if OPT.get(key) and 8 <= k < 16: gaps = [[x if not x.startswith(pre) else 's_nop 0 ;' + x.split(';', 1)[-1] for x in g] for g in gaps]
    if OPT.get('astamps') and k % 2 == 0: stamp(b)
    if OPT.get('dmaonly'):
        slots = [None] * NS
        gaps = [[x for x in g if not x.startswith(('v_', 'ds_'))] for g in gaps]
    emit_slots(b, slots, gaps)

def xlane_reduce(b, reg, tmp, op):
    b(f"v_mov_b32 v{tmp}, v{reg}")
    b(f"v_permlane32_swap_b32 v{reg}, v{tmp}")
    b(f"{op} v{reg}, v{reg}, v{tmp}")
    b(f"v_mov_b32 v{tmp}, v{reg}")
    b(f"v_permlane16_swap_b32 v{reg}, v{tmp}")
    b(f"{op} v{reg}, v{reg}, v{tmp}")

def xlane_reduce_multi(b, regs, tmps, op):
    for sw in ("v_permlane32_swap_b32", "v_permlane16_swap_b32"):
        for r, t in zip(regs, tmps): b(f"v_mov_b32 v{t}, v{r}")
        for r, t in zip(regs, tmps): b(f"{sw} v{r}, v{t}")
        for r, t in zip(regs, tmps): b(f"{op} v{r}, v{r}, v{t}")

def stamp(b, idx=None):
    if not OPT['stamps']: return
    b(f"s_memtime s[{sSTAMP}:{sSTAMP+1}]\ns_memrealtime s[{sSTAMP+2}:{sSTAMP+3}]\ns_waitcnt lgkmcnt(0)")
    b(f"s_mov_b32 s95, m0\ns_mov_b32 m0, s96\nv_writelane_b32 v14, s{sSTAMP}, m0\nv_writelane_b32 v15, s{sSTAMP+2}, m0\ns_mov_b32 m0, s95\ns_add_u32 s96, s96, 1")

def stamp_dump(b, k, wave):
    if not OPT['stamps']: return
    b("s_waitcnt vmcnt(0)")
    stamp(b)
    if OPT['stamps'] == 2:
        b("s_load_dwordx2 s[92:93], s[0:1], 88\ns_waitcnt lgkmcnt(0)")
        b(f"s_cmp_lg_u32 s{wave}, 0\ns_cbranch_scc1 L_end{k+1}\ns_lshr_b32 s94, s97, 3\ns_cmp_lg_u32 s94, 5\ns_cbranch_scc1 L_end{k+1}")
        b(f"s_add_u32 s88, s92, {OPT.get('dbgoff',0)*(1-k)}\ns_addc_u32 s89, s93, 0\ns_mov_b32 s90, 256\ns_mov_b32 s91, 0x20000")
        sel = [0, 2, 3, 5, 6, 7, 8, 9, 10, 11, 12]
        b("s_mov_b64 exec, 1")
        for i, ix in enumerate(sel):
            b(f"v_readlane_b32 s94, v15, {ix}\ns_nop 3")
            if i == 0 and k == 0: b("s_not_b32 s94, s94")
            b(f"v_mov_b32 v1, s94\nv_mov_b32 v2, {4*(i + 1)}\nbuffer_atomic_umax v1, v2, s[88:91], 0 offen")
        return
    b("s_getreg_b32 s94, hwreg(HW_REG_XCC_ID)\nv_writelane_b32 v14, s94, 63\nv_writelane_b32 v14, s65, 62\nv_writelane_b32 v14, s64, 61")
    b("s_load_dwordx2 s[92:93], s[0:1], 96\ns_waitcnt lgkmcnt(0)")
    b(f"s_add_u32 s88, s92, {(48+k)*1024*1024}\ns_addc_u32 s89, s93, 0\ns_mov_b32 s90, 0x100000\ns_mov_b32 s91, 0x20000")
    b(f"s_lshl_b32 s94, s97, 2\ns_add_u32 s94, s94, s{wave}\ns_lshl_b32 s94, s94, 9")
    b("v_and_b32 v1, 63, v0\nv_lshlrev_b32 v1, 3, v1")
    b("buffer_store_dwordx2 v[14:15], v1, s[88:91], s94 offen")

def persist_regs(b):
    lane = T0; t1 = T0 + 1; t2 = T0 + 2; t3 = T0 + 3; g_ = T0 + 4; ihi = T0 + 5; i8 = T0 + 6; i16 = T0 + 7; r_ = T0 + 8; c4 = T0 + 9
    b(f"""v_and_b32 v{lane}, 63, v0
    v_lshrrev_b32 v{g_}, 4, v{lane}
    v_lshrrev_b32 v{ihi}, 3, v{lane}
    v_and_b32 v{i8}, 7, v{lane}
    v_and_b32 v{i16}, 15, v{lane}
    v_lshrrev_b32 v{r_}, 2, v{i16}
    v_and_b32 v{c4}, 3, v{lane}
    v_lshlrev_b32 v{VLN}, 4, v{lane}
    s_add_u32 s71, s63, s{sWB}
    v_add_u32 v{VO}, s71, v{VLN}""")
    b(f"""s_lshl_b32 s70, s{sWAVE}, 11
    v_lshlrev_b32 v{t1}, 8, v{g_}
    v_add_u32 v{t1}, s70, v{t1}
    s_and_b32 s70, s{sWAVE}, 1
    s_lshl_b32 s70, s70, 3
    v_xor_b32 v{t2}, v{i16}, v{g_}
    v_xor_b32 v{t2}, s70, v{t2}
    v_lshl_add_u32 v{DK0}, v{t2}, 4, v{t1}
    v_xor_b32 v{DK1}, 64, v{DK0}
    v_lshlrev_b32 v{t2}, 1, v{g_}
    v_xor_b32 v{t3}, v{t2}, v{i16}
    v_lshl_add_u32 v{DV0}, v{t3}, 4, v{t1}
    v_xor_b32 v{DV1}, 128, v{DV0}""")
    b(f"""v_mul_u32_u24 v{t1}, 1152, v{ihi}
    v_lshl_add_u32 v{t1}, v{i8}, 4, v{t1}
    s_lshl_b32 s70, s{sWAVE}, 7
    v_add_u32 v{VWO}, s70, v{t1}
    v_lshrrev_b32 v{t1}, 1, v{lane}
    v_mul_u32_u24 v{t1}, 1152, v{t1}
    v_and_b32 v{t2}, 1, v{lane}
    v_lshl_add_u32 v{t1}, v{t2}, 4, v{t1}
    s_lshl_b32 s70, s{sWAVE}, 5
    s_add_u32 s70, s70, 1024
    v_add_u32 v{VWX}, s70, v{t1}""")
    b(f"""v_xor_b32 v{t2}, v{g_}, v{i16}
    v_lshlrev_b32 v{t2}, 4, v{t2}
    v_lshl_add_u32 v{KA}, v{i16}, 8, v{t2}""")
    for s_ in range(1, 4): b(f"v_xor_b32 v{KA+s_}, {64*s_}, v{KA}")
    b(f"""v_lshl_add_u32 v{t2}, v{g_}, 2, v{r_}
    v_lshlrev_b32 v{t1}, 8, v{t2}
    v_and_b32 v{t2}, 7, v{t2}
    v_lshl_add_u32 v{t1}, v{t2}, 5, v{t1}
    v_lshl_add_u32 v{t1}, v{c4}, 3, v{t1}
    v_add_u32 v{VA}, 0x10000, v{t1}""")
    for T in range(1, 8): b(f"v_xor_b32 v{VA+T}, {32*T}, v{VA}")
    b(f"""v_lshl_add_u32 v{t2}, v{g_}, 2, v{r_}
    v_lshlrev_b32 v{t1}, 7, v{t2}
    v_lshl_add_u32 v{t1}, v{c4}, 3, v{t1}
    s_lshr_b32 s70, s{sWAVE}, 1
    s_lshl_b32 s70, s70, 16
    s_and_b32 s71, s{sWAVE}, 1
    s_lshl_b32 s{sWOS}, s71, 13
    s_add_u32 s{sWOS}, s{sWOS}, s70
    s_lshl_b32 s{sWTS}, s71, 10
    s_add_u32 s{sWTS}, s{sWTS}, s70
    s_add_u32 s{sWTS}, s{sWTS}, 47104
    {f"s_lshl_b32 s{sWTS}, s{sWAVE}, 10" if OPT.get('fsq') else ""}
    {f"s_add_u32 s{sWTS}, s{sWTS}, 147456" if OPT.get('fsq') else ""}
    v_add_u32 v{VWA}, s{sWOS}, v{t1}
    v_lshlrev_b32 v{t1}, 3, v{lane}
    v_add_u32 v{VWE}, s{sWTS}, v{t1}""")

def late_setup(b, sfx):
    b(f"""s_lshl_b32 s71, s68, 4
    s_add_u32 s71, s71, s69
    s_lshl_b32 s70, s71, 19
    s_add_u32 s{SK}, s50, s70
    s_addc_u32 s{SK+1}, s51, 0
    s_mov_b32 s{SK+2}, 524288
    s_mov_b32 s{SK+3}, 0x20000
    s_add_u32 s{SV}, s52, s70
    s_addc_u32 s{SV+1}, s53, 0
    s_mov_b32 s{SV+2}, 524288
    s_mov_b32 s{SV+3}, 0x20000
    s_mul_i32 s70, s3, {O_BLK}
    s_add_u32 s{SO}, s100, s70
    s_addc_u32 s{SO+1}, s101, 0
    s_mov_b32 s{SO+2}, {O_BLK}
    s_mov_b32 s{SO+3}, 0x20000
    s_mul_i32 s70, s71, 36864
    s_add_u32 s{SWO}, s56, s70
    s_addc_u32 s{SWO+1}, s57, 0
    s_mov_b32 s{SWO+2}, 36864
    s_mov_b32 s{SWO+3}, 0x20000
    s_mul_i32 s71, s3, {WOT_BLK}
    s_add_u32 s70, s70, s71
    s_add_u32 s70, s70, {WOT_OFF}
    s_add_u32 s{SWT}, s100, s70
    s_addc_u32 s{SWT+1}, s101, 0
    s_mov_b32 s{SWT+2}, 36864
    s_mov_b32 s{SWT+3}, 0x20000
    s_mul_i32 s62, s69, {8*122880}
    s_mul_i32 s63, s68, 15360        ; b*15*1024
    s_add_u32 s{SCN}, s100, {CNT_OFF}
    s_addc_u32 s{SCN+1}, s101, 0
    s_mov_b32 s{SCN+2}, 24576
    s_mov_b32 s{SCN+3}, 0x20000
    s_mov_b64 s[{SDB}:{SDB+1}], s[78:79]
    s_mov_b32 s{SDB+2}, 256
    s_mov_b32 s{SDB+3}, 0x20000
    s_mov_b64 s[{SIN}:{SIN+1}], s[{SCN}:{SCN+1}]
    s_mov_b32 s{SIN+3}, 0x20000
    s_mov_b64 s[{SIF}:{SIF+1}], s[78:79]
    s_mov_b32 s{SIF+3}, 0x20000
    s_lshl_b32 s70, s3, 3
    s_add_u32 s70, s70, s68
    s_lshl_b32 s{sCO}, s70, 2
    s_lshr_b32 s71, s69, 2
    s_add_u32 s{sCO}, s{sCO}, s71
    s_lshl_b32 s{sCO}, s{sCO}, 7
    s_lshr_b32 s{sCW}, s70, 1
    s_lshl_b32 s{sCW}, s{sCW}, 7
    s_add_u32 s{sCW}, s{sCW}, 8192
    s_and_b32 s70, s97, 1
    s_mul_i32 s70, s70, {30 + OPT.get('bal', 0)}
    s_add_u32 s2, s2, s70              ; tile number inside the pair of workgroup classes (0..59 real)
    s_cmp_eq_u32 s70, 0
    s_cselect_b32 s71, {30 + OPT.get('bal', 0)}, 60
    s_cmp_ge_u32 s2, s71
    s_cselect_b32 s{sIDLE}, 1, 0       ; no output tile for this workgroup
    s_mul_i32 s68, s2, 43
    s_lshr_b32 s68, s68, 8
    s_mul_i32 s69, s68, 6
    s_sub_u32 s69, s2, s69             ; nt
    s_bfe_u32 s70, s97, 0x10001
    s_mul_i32 s70, s70, 10
    s_add_u32 s68, s68, s70            ; mt
    s_mul_i32 s79, s68, 103
    s_lshr_b32 s79, s79, 8
    s_mul_i32 s78, s68, 96
    s_add_u32 s78, s78, 95
    s_mul_i32 s78, s78, 4370
    s_lshr_b32 s78, s78, 20
    s_lshl_b32 s70, s3, 3
    s_add_u32 s78, s78, s70
    s_add_u32 s79, s79, s70
    s_lshl_b32 s78, s78, 2
    s_lshl_b32 s79, s79, 2
    s_add_u32 s78, s78, s{sWAVE}
    s_add_u32 s79, s79, s{sWAVE}
    s_lshl_b32 s78, s78, 7
    s_lshl_b32 s79, s79, 7
    s_mul_i32 s70, s3, {O_BLK}
    s_mul_i32 s71, s68, 6144
    s_add_u32 s70, s70, s71
    s_add_u32 s{SO2}, s100, s70
    s_addc_u32 s{SO2+1}, s101, 0
    s_sub_u32 s{SO2+2}, {O_BLK}, s71
    s_mov_b32 s{SO2+3}, 0x20000
    s_mul_i32 s70, s3, {WOT_BLK}
    s_mul_i32 s71, s69, 6144
    s_add_u32 s70, s70, s71
    s_add_u32 s70, s70, {WOT_OFF}
    s_add_u32 s{SW2}, s100, s70
    s_addc_u32 s{SW2+1}, s101, 0
    s_sub_u32 s{SW2+2}, {WOT_BLK}, s71
    s_mov_b32 s{SW2+3}, 0x20000
    s_cmp_eq_u32 s{sIDLE}, 1
    s_cselect_b32 s{SO2+2}, 0, s{SO2+2}   ; workgroups without an output tile load nothing
    s_cselect_b32 s{SW2+2}, 0, s{SW2+2}
    s_mov_b32 s100, s{SO2+2}
    s_mov_b32 s101, s{SW2+2}
    s_lshr_b32 s70, s{sWAVE}, 1
    s_mul_i32 s70, s70, {48*2304}
    s_mul_i32 s{sOUTO}, s68, {96*2304}
    s_add_u32 s{sOUTO}, s{sOUTO}, s70
    s_mul_i32 s70, s3, 1152
    s_add_u32 s{sOUTO}, s{sOUTO}, s70
    s_mul_i32 s70, s69, 192
    s_add_u32 s{sOUTO}, s{sOUTO}, s70
    s_and_b32 s70, s{sWAVE}, 1
    s_mul_i32 s70, s70, 96
    s_add_u32 s{sOUTO}, s{sOUTO}, s70
    s_lshl_b32 s70, s3, 2
    s_add_u32 s70, s70, s{sWAVE}
    s_lshl_b32 s70, s70, 7
    s_add_u32 s70, s70, 8192
    v_and_b32 v1, 1, v0
    v_mov_b32 v{VP2}, s78
    v_mov_b32 v2, s79
    v_cmp_eq_u32 vcc, 1, v1
    v_and_b32 v1, 2, v0
    v_mov_b32 v3, s70
    v_cndmask_b32 v{VP2}, v{VP2}, v2, vcc
    v_cmp_eq_u32 vcc, 2, v1
    v_add_u32 v{VPE}, 16384, v{VP2}
    v_mov_b32 v{VTH}, 4
    v_cndmask_b32 v{VPE}, v{VPE}, v3, vcc
    v_mov_b32 v3, 32
    v_cndmask_b32 v{VTH}, v{VTH}, v3, vcc
    s_mov_b32 s{sSIG}, 0""")
    b(f"L_late{sfx}:")
    b(f"""s_or_b32 s70, s97, s{sSAFE}
    s_cmp_eq_u32 s70, 0
    s_cselect_b32 s{SIN+2}, 24576, 0   ; only workgroup 0 (first pass) really initialises the counters
    s_cselect_b32 s{SIF+2}, 4, 0
    s_mov_b32 s{sOO}, s62
    s_mov_b32 s{sLATE}, 0
    s_mov_b32 s{SO2+2}, s100
    s_mov_b32 s{SW2+2}, s101
    s_mul_i32 s{sO2}, s{sWAVE}, {32*122880}
    s_mul_i32 s{sW2}, s{sWAVE}, {32*36864}
    s_lshr_b32 s{sRT}, s97, {OPT.get('rsh', 3)}
    s_mul_i32 s{sRT}, s{sRT}, {OPT.get('rot', 0) or 1}
    s_mul_i32 s70, s{sRT}, 5042
    s_lshr_b32 s70, s70, 16
    s_mul_i32 s70, s70, 13
    s_sub_u32 s{sRT}, s{sRT}, s70
    s_lshl_b32 s{sRT}, s{sRT}, 14
    s_lshl_b32 s{sKB}, s{sWAVE}, 11""")

def warm_code(b):
    if not OPT.get('warm'): return
    b(f"""s_getpc_b64 s[70:71]
    L_pc:
    s_sub_u32 s70, s70, L_pc-attn_kernel
    s_subb_u32 s71, s71, 0
    v_mul_u32_u24 v2, 40, v0
    v_lshrrev_b32 v2, 8, v2
    s_mul_i32 s68, s2, 40
    v_add_u32 v2, s68, v2
    v_lshlrev_b32 v2, 7, v2
    v_min_u32 v2, L_codeend-attn_kernel-4, v2
    v_mov_b32 v3, s71
    v_add_co_u32 v2, vcc, s70, v2
    v_addc_co_u32 v3, vcc, 0, v3, vcc
    global_load_dword v4, v[2:3], off""")

def prologue_a(b):
    lane = T0; t1 = T0 + 1; t2 = T0 + 2; t3 = T0 + 3; g_ = T0 + 4; ihi = T0 + 5; i8 = T0 + 6
    b(f"""v_and_b32 v{lane}, 63, v0
    v_lshrrev_b32 v{g_}, 4, v{lane}
    v_lshrrev_b32 v{ihi}, 3, v{lane}
    v_and_b32 v{i8}, 7, v{lane}""")
    b(f"s_lshl_b32 s{sT}, s{sWAVE}, 6")
    b(f"v_add_u32 v{t1}, s{sT}, v{ihi}")
    b(f"v_mul_u32_u24 v{t1}, 1152, v{t1}")
    for j in range(4):
        b(f"v_xor_b32 v{t2}, {4*(j%2)}, v{g_}")
        b(f"v_xor_b32 v{t2}, v{t2}, v{i8}")
        b(f"v_lshl_add_u32 v{t2}, v{t2}, 4, v{t1}")
        b(f"v_add_u32 v{DX+j}, {8*j*1152 - 1024*j}, v{t2}")
    b(f"""s_and_b32 s{sT}, s{sWAVE}, 1
    s_lshl_b32 s{sT}, s{sT}, 18
    s_lshr_b32 s{sT+1}, s{sWAVE}, 1
    s_lshl_b32 s{sT+1}, s{sT+1}, 7
    s_add_u32 s{sT}, s{sT}, s{sT+1}
    v_lshlrev_b32 v{t1}, 13, v{ihi}
    v_add_u32 v{t1}, s{sT}, v{t1}
    v_lshrrev_b32 v{t2}, 2, v{i8}
    v_xor_b32 v{t2}, v{t2}, v{g_}
    v_and_b32 v{t2}, 1, v{t2}
    v_lshl_add_u32 v{t1}, v{t2}, 6, v{t1}
    v_and_b32 v{t2}, 3, v{i8}
    v_lshl_add_u32 v{t1}, v{t2}, 4, v{t1}""")
    for j in range(4): b(f"v_add_u32 v{DW+j}, {8*j*8192 - 1024*j}, v{t1}")
    b(f"""s_mov_b32 s{sXO}, 0
    s_mov_b32 s{sXO2}, 36864
    s_mov_b32 s{sWOFF}, 0
    s_mov_b32 s{sKV}, 0
    s_mov_b32 s{sHEAD}, 0""")

def prologue_b(b):
    lane = T0; t1 = T0 + 1; t2 = T0 + 2; t3 = T0 + 3; g_ = T0 + 4; ihi = T0 + 5; i8 = T0 + 6
    if OPT.get('sstamps'): stamp(b)
    b.ext(x_dma(0, 4)); b.ext(w_dma(0, 4))
    if OPT.get('ord') == 1: b.ext(w_dma(1, 4)); b.ext(x_dma(1, 4))
    if OPT.get('ord') == 2: b.ext(w_dma(1, 4))
    if OPT.get('sstamps'): stamp(b)
    if OPT.get('xw'):
        pf = K2F[OPT.get('xwf', 0)]
        b(f"""s_lshr_b32 s70, s2, 2
        s_mul_i32 s70, s70, 270
        s_mul_i32 s71, s{sWAVE}, 68
        s_add_u32 s70, s70, s71
        s_lshl_b32 s70, s70, 7
        v_lshlrev_b32 v5, 7, v{lane}
        buffer_load_dword v6, v5, s[{SX}:{SX+3}], s70 offen{pf}
        s_and_b32 s70, s2, 3
        s_lshl_b32 s70, s70, 2
        s_add_u32 s70, s70, s{sWAVE}
        s_lshl_b32 s70, s70, 13
        v_lshrrev_b32 v5, 2, v{lane}
        v_lshlrev_b32 v5, 17, v5
        v_and_b32 v7, 3, v{lane}
        v_lshl_add_u32 v5, v7, 7, v5
        buffer_load_dword v6, v5, s[{SW}:{SW+3}], s70 offen{pf}
        s_add_u32 s70, s70, {256*8192}
        buffer_load_dword v6, v5, s[{SW}:{SW+3}], s70 offen{pf}
        s_add_u32 s70, s70, {256*8192}
        buffer_load_dword v6, v5, s[{SW}:{SW+3}], s70 offen{pf}""")
    late_setup(b, "")
    if OPT.get('tlb'):
        for srd in (SK, SV, SWO): b(f"buffer_load_dword v1, off, s[{srd}:{srd+3}], 0 nt")
        if OPT['tlb'] > 1:
            b(f"s_mov_b64 exec, 1\nbuffer_store_dword v1, off, s[{SWT}:{SWT+3}], s{sWB} sc1\ns_mov_b64 exec, -1")
    persist_regs(b)
    b(f"""v_mov_b32 v{VONE}, 1
    s_and_b32 s70, s{sWAVE}, 1
    s_mul_i32 s70, s70, 3072
    s_sub_u32 s71, 3072, s70
    v_add_u32 v{VPW}, s70, v{VLN}
    v_add_u32 v{VPW+1}, s71, v{VLN}
    s_lshr_b32 s70, s{sWAVE}, 1
    s_mul_i32 s70, s70, 3072
    s_sub_u32 s71, 3072, s70
    v_add_u32 v{VPO}, s70, v{VLN}
    v_add_u32 v{VPO+1}, s71, v{VLN}""")
    i16 = T0 + 7; r_ = T0 + 8; c4 = T0 + 9
    b(f"""v_and_b32 v{i16}, 15, v{lane}
    v_lshrrev_b32 v{r_}, 2, v{i16}
    v_and_b32 v{c4}, 3, v{lane}
    v_lshlrev_b32 v{t1}, 7, v{i16}
    v_add_u32 v{t1}, s{sXB}, v{t1}
    v_add_u32 v{t1}, 16384, v{t1}
    v_lshrrev_b32 v{t3}, 1, v{i16}""")
    for s in range(2):
        b(f"v_xor_b32 v{t2}, {4*s}, v{g_}")
        b(f"v_xor_b32 v{t2}, v{t2}, v{t3}")
        b(f"v_lshl_add_u32 v{XA+s}, v{t2}, 4, v{t1}\nv_add_u32 v{XA+2+s}, 65536, v{XA+s}")
    b(f"""v_lshl_add_u32 v{t1}, v{g_}, 3, v{r_}
    v_lshlrev_b32 v{t1}, 7, v{t1}
    v_lshl_add_u32 v{t1}, v{c4}, 4, v{t1}
    v_add_u32 v{t1}, 49152, v{t1}
    v_lshrrev_b32 v{t3}, 1, v{r_}""")
    for sp in range(2):
        b(f"v_xor_b32 v{t2}, {sp}, v{t3}")
        b(f"v_lshl_add_u32 v{WA+sp}, v{t2}, 6, v{t1}\nv_add_u32 v{WA+2+sp}, 65536, v{WA+sp}")
    if OPT.get('sstamps'): stamp(b)
    if not OPT.get('ord'): b.ext(w_dma(1, 4))
    if OPT.get('ord') != 1: b.ext(x_dma(1, 4))

def wave_code(b, nq, sfx):
    nx = 8 if nq == 4 else 6
    b(f"L_begin{sfx}:")
    if nq == 3:
        b(f"v_mov_b32 v{VHS}, 0\nv_lshlrev_b32 v{VCW}, 3, v{VLN}")
        b(f"buffer_store_dword v{VHS}, v{VCW}, s[{SIN}:{SIN+3}], 0 offen sc1 ; tag=INIT")
        b(f"s_mov_b32 s{sT}, 8192\nbuffer_store_dword v{VHS}, v{VCW}, s[{SIN}:{SIN+3}], s{sT} offen sc1 ; tag=INIT")
        b(f"s_mov_b32 s{sT}, 16384\nbuffer_store_dword v{VHS}, v{VCW}, s[{SIN}:{SIN+3}], s{sT} offen sc1 ; tag=INIT")
    stamp(b, 0)
    if OPT.get('fsq'):
        b(f"s_mov_b32 s{sFQ}, 0\nv_mov_b32 v{QFB}, {QFLAGS}\nv_lshl_add_u32 v{QFA}, s{sWAVE}, 2, v{QFB}")
    b("WAITV ; cover=X0,W0")
    b("s_barrier ; pub=X0,W0")
    b.ext(x_reads(0, nq))
    for T in (0, 1): b.ext(w_reads(0, T))
    b.ext(w_reads(0, 2)[:3])
    b("WAITL W0.0")
    stamp(b, 1)
    for n in range(0, 12): qproj_stage(b, n, nq)
    fill = []; post = []
    for sp in range(4):
        for q in range(nq):
            rs = [128 + 32 * q + 8 * sp + 2 * i_ for i_ in range(4)]
            for r in rs: fill += [f"v_mul_f32 v{r}, s{sC}, v{r}", f"v_mul_f32 v{r+1}, s{sC}, v{r+1}"]
            for r in rs: fill.append(f"v_cvt_pk_bf16_f32 v{r}, v{r}, v{r+1}")
            for i_, r in enumerate(rs): fill.append(f"v_accvgpr_write_b32 a{AQ(q) + 4*sp + i_}, v{r}")
    for n in range(12, 18): qproj_stage(b, n, nq, fill if n >= 16 else None)
    stamp(b, 2)
    conv2 = []
    for q in range(nq):
        for h in range(8):
            r = 128 + 32 * q + 4 * h
            conv2 += [f"v_accvgpr_read_b32 v{4+i_}, a{r+i_}" for i_ in range(4)]
            conv2 += [f"v_mul_f32 v{4+i_}, s{sC}, v{4+i_}" for i_ in range(4)]
            conv2 += ["v_cvt_pk_bf16_f32 v4, v4, v5", "v_cvt_pk_bf16_f32 v6, v6, v7",
                      f"v_accvgpr_write_b32 a{AQ2(q)+2*h}, v4", f"v_accvgpr_write_b32 a{AQ2(q)+2*h+1}, v6"]
    def pre_mfma(): return [qk(q, 0, s_, czero=True) for q in range(nq) for s_ in range(4)]
    def pre_max():
        t = B()
        for q in range(nq):
            s_ = S_ + 8 * q
            t(f"v_max3_f32 v{s_}, v{s_}, v{s_+1}, v{s_+2}")
        for q in range(nq):
            s_ = S_ + 8 * q
            t(f"v_max_f32 v{s_}, v{s_}, v{s_+3}")
        xlane_reduce_multi(t, [S_ + 8 * q for q in range(nq)], [T0 + q for q in range(nq)], "v_max_f32")
        for q in range(nq):
            for r in range(4): t(f"v_sub_f32 v{CI+4*q+r}, 0, v{S_+8*q}")
        return t.L
    def weave(mf, st, per):
        for x in mf:
            b(x)
            for _ in range(per):
                if st: b(st.pop(0))
    def zipper(a_, b_, ra, rb):
        out = []
        while a_ or b_:
            for _ in range(ra):
                if a_: out.append(a_.pop(0))
            for _ in range(rb):
                if b_: out.append(b_.pop(0))
        return out
    b.ext(k_reads(0, 0))
    b.ext(fill)
    b(f"v_and_b32 v4, 3, v0\nv_mov_b32 v5, 0x3f803f80\nv_cmp_eq_u32 vcc, 0, v4")
    for i_ in range(4): b(f"v_cndmask_b32 v{ONES+i_}, 0, v5, vcc")
    b("s_waitcnt lgkmcnt(0)")
    if OPT.get('wts'):
        mv = [f"v_mov_b32 v{192+i_}, v{WOF+i_}" for i_ in range(36)]
        b.ext(mv[:8])
        mv = mv[8:]
        weave(pre_mfma()[:8], mv, 4)
        b.ext(mv); b.ext(pre_mfma()[8:])
    else: b.ext(pre_mfma())
    b.ext(pre_max())
    stamp(b, 3)
    for i_ in range(OPT.get('pause', 0)): b('s_sleep 32')
    if OPT.get('skew'):
        b(f"s_lshr_b32 s{sT}, s97, 3\ns_and_b32 s{sT}, s{sT}, 7\nL_skew{sfx}:\ns_cmp_eq_u32 s{sT}, 0\ns_cbranch_scc1 L_skewd{sfx}\ns_sleep {OPT['skew']}\ns_sub_u32 s{sT}, s{sT}, 1\ns_branch L_skew{sfx}\nL_skewd{sfx}:")
    adv8 = lambda x: x
    def head_start(hd):
        b(f"s_cmp_lg_u32 s{sSAFE}, 0\ns_cbranch_scc1 L_maxpass{sfx}\nL_maxdone{hd}{sfx}:")
        if not LM:
            for q in range(nq): b(f"v_mov_b32 v{LS+q}, 0")
        stamp(b)
    if OPT.get('wtp') == 2 and nq == 3: b("WAITV ; cover=WT\nbuffer_wbl2 sc1 ; tag=WT")
    if OPT.get('pz'): b(f"s_mov_b32 s{sPW}, 99\ns_mov_b32 s{sPZ}, 0")
    if OPT.get('pz') and nq == 3: b(f"v_bfe_u32 v{VPA}, v0, 2, 2\nv_xor_b32 v{VPA}, 3, v{VPA}\nv_lshlrev_b32 v{VPA}, 7, v{VPA}\nv_sub_u32 v{VPA}, v{VPE}, v{VPA}")
    head_start(0)
    per = -(-len(conv2) // 8); tot_ = len(conv2)
    for k in range(8):
        ex = []
        if k == 0 and OPT.get('wts'):
            for i_ in range(8 if OPT.get('fsq') else 9):
                g = 2 + 7 * i_
                if i_ < 8: ex.append((g - 1, f"s_add_u32 s{sT+1}, s{sWB}, {16384*(i_//4)}"))
                else: ex += [(g - 2, f"s_lshl_b32 s{sT+1}, s{sWAVE}, 10"), (g - 1, f"s_add_u32 s{sT+1}, s{sT+1}, 32768")]
                ex.append((g, f"buffer_store_dwordx4 {vr(192+4*i_,4)}, v{VLN}, s[{SWT}:{SWT+3}], s{sT+1} offen offset:{1024*(i_%4) if i_ < 8 else 0} sc1 ; tag=WT"))
        if OPT.get('fsq'):
            A9 = 192 if nq == 4 else 224
            if k == 1: ex += [(5, f"s_mov_b32 m0, s{sWTS}"), (6, dma(VWX, SWO, "0", 0, fl('nt_wo'), "W9X"))]
            if k == 6: ex += [(3, "WAITV ; cover=W9X"), (4, f"ds_read_b64_tr_b16 {ar(A9,2)}, v{VWE} offset:0"), (5, f"ds_read_b64_tr_b16 {ar(A9+2,2)}, v{VWE} offset:512")]
            if k == 7: ex += [(4, f"s_lshl_b32 s{sT+1}, s{sWAVE}, 10"), (5, f"s_add_u32 s{sT+1}, s{sT+1}, 32768"),
                              (25, f"buffer_store_dwordx4 {ar(A9,4)}, v{VLN}, s[{SWT}:{SWT+3}], s{sT+1} offen sc1 ; tag=WT")]
        if k == 6 and nq == 3:
            ex += [(46, "WAITV ; cover=HS"), (47, f"v_readfirstlane_b32 s{sT}, v{VHS}\ns_cmp_eq_u32 s{sT}, 0\ns_cbranch_scc1 L_hspin\nL_hsok:")]
        cnt_ = per
        if OPT.get('front'): cnt_ = -(-tot_ * {1: (8, 8, 7, 7, 6, 5, 4, 3), 2: (3, 4, 5, 6, 7, 7, 8, 8), 3: (12, 12, 12, 12, 0, 0, 0, 0)}[OPT['front']][k] // 48)
        attn_stage(b, k, nq, ex, fill=[conv2.pop(0) for _ in range(min(cnt_, len(conv2)))])
    b(f"L_atin{sfx}:")
    b(f"s_mov_b32 s{sCNT}, 0")
    b(f".p2align 3\nL_at{sfx}:")
    b("LOOPBEGIN at 3 8")
    for k in range(8, 16):
        ex = []
        if k == 11 and nq == 3 and not OPT.get('pz'):
            ex = [(59, f"""s_xor_b32 s{sT+1}, s{sHEAD}, 1
            s_or_b32 s{sT}, s{sCNT}, s{sT+1}
            s_cbranch_scc0 L_sig
            L_nosig:""")]
        if OPT.get('pz') and nq == 3:
            if k == 11: ex = [(58, f"s_cmp_eq_u32 s{sPW}, 99"), (60, f"s_cbranch_scc1 L_nop3\nbuffer_load_dword v{VCW}, v{VPA}, s[{SCN}:{SCN+3}], 0 offen sc1 ; cond\nL_nop3:")]
            if k == 13: ex = [(BG + 1, f"s_getreg_b32 s{sST}, hwreg(HW_REG_IB_STS)")]
            if k == 15:
                ex = [(BG - 1, f"""v_cmp_gt_u32 vcc, v{VTH}, v{VCW}
                v_mov_b32 v5, {DEC}
                s_and_b32 s{sT}, s{sST}, 15
                s_lshr_b32 s{sT+1}, s{sST}, 30
                s_lshl_b32 s{sT+1}, s{sT+1}, 4
                s_or_b32 s{sT}, s{sT}, s{sT+1}
                s_cmp_ge_u32 s{sT}, {OPT.get('pzt', 0)}
                s_cselect_b32 s{sT}, 1, 0
                s_cmp_eq_u64 vcc, 0
                s_cselect_b32 s{sT}, s{sT}, 0
                v_mov_b32 v4, s{sT}
                ds_write_b32 v5, v4
                s_waitcnt lgkmcnt(0)""")]
        if k == 9 and OPT.get('pz'): b(f"L_at1{sfx}:")
        if k == 15:
            if OPT.get('pz'): ex += [(NS - 4, f"s_add_u32 s{sCNT}, s{sCNT}, 1"), (NS - 2, f"s_cmp_ge_u32 s{sCNT}, s{sPW}")]
            else: ex += [(NS - 6, f"s_add_u32 s{sCNT}, s{sCNT}, 1"), (NS - 4, f"s_add_u32 s{sT}, s{sCNT}, s{sHEAD}"), (NS - 2, f"s_cmp_lt_u32 s{sT}, 3")]
        attn_stage(b, k, nq, ex)
    if OPT.get('pz'): b(f"s_cbranch_scc1 L_pchk{sfx}\nL_pret{sfx}:\ns_add_u32 s{sT}, s{sCNT}, s{sHEAD}\ns_cmp_lt_u32 s{sT}, 3")
    if OPT.get('midgap'):
        b(f"s_cselect_b32 s{sT+1}, 1, 0\ns_lshl_b32 s{sT}, s{sHEAD}, 4\ns_add_u32 s{sT}, s{sT}, s{sCNT}\ns_cmp_eq_u32 s{sT}, {OPT.get('midat', 1)}\ns_cbranch_scc0 L_ng{sfx}")
        for i_ in range(OPT['midgap']): b("s_sleep 16")
        b(f"L_ng{sfx}:\ns_cmp_eq_u32 s{sT+1}, 1")
    b(f"s_cbranch_scc1 L_at{sfx}")
    b("LOOPEND at")
    b(f"L_atx{sfx}:")
    b(f"s_cmp_lg_u32 s{sHEAD}, 0\ns_cbranch_scc1 L_fin{sfx}")

    def lsum(qs):
        t = B()
        if not LM: xlane_reduce_multi(t, [LS + q for q in qs], [T0 + 4 + q for q in qs], "v_add_f32")
        for q in qs:
            src = LA + 4 * q if LM else LS + q
            t(f"v_cmp_ngt_f32 vcc, {LTHR}, v{src}")
            t(f"v_rcp_f32 v{LS+q}, v{src}")
            t(f"s_or_b32 s{sFLAG}, s{sFLAG}, vcc_lo\ns_or_b32 s{sFLAG}, s{sFLAG}, vcc_hi")
        return t.L
    cnt = [0]
    def onorm(q, pk, flag, inplace=False, so=None):
        out = []
        for sp in range(4):
            d = P_ + 4 * (cnt[0] % 2); cnt[0] += 1
            if inplace: d = O_ + 32 * q + 8 * sp
            rs = [O_ + 32 * q + 8 * sp + 2 * i_ for i_ in range(4)]
            for r in rs:
                if pk and OPT.get('pk', 1): out.append(f"v_pk_mul_f32 v[{r}:{r+1}], v[{r}:{r+1}], v[{LS+q-(q%2)}:{LS+q-(q%2)+1}] op_sel:[0,{q%2}] op_sel_hi:[1,{q%2}]")
                else: out += [f"v_mul_f32 v{r}, v{r}, v{LS+q}", f"v_mul_f32 v{r+1}, v{r+1}, v{LS+q}"]
            for i_, r in enumerate(rs): out.append(f"v_cvt_pk_bf16_f32 v{d+i_}, v{r}, v{r+1}")
            if flag is None:
                for i_ in range(4): out.append(f"v_accvgpr_write_b32 a{AST+16*q+4*sp+i_}, v{d+i_}")
                continue
            if so:
                out[-1] += f"\ns_add_u32 s{sT+1}, s{so}, {sp*122880}\nbuffer_store_dwordx4 {vr(d,4)}, v{VO}, s[{SO}:{SO+3}], s{sT+1} offen offset:{1024*q}{flag}"
                continue
            out.append(f"s_add_u32 s{sT}, s{sOO}, {sp*122880}")
            out.append(f"buffer_store_dwordx4 {vr(d,4)}, v{VO}, s[{SO}:{SO+3}], s{sT} offen offset:{1024*q}{flag}")
        return out
    def drain(st, ld=None, every=1):
        slots = []; gaps = [[] for _ in range(18)]
        for q in (2, 3):
            for T in range(8): slots.append(pv(q, T) if q < nq else None)
            slots.append(lsm(q) if (q < nq and LM) else None)
        rem = sorted(sm_items(nq, NS, 2 * NS), key=lambda t: t[0])
        b.ext([sm_text(*k_) for g, k_ in rem if k_[1] == 2 and k_[0] != 'add'])
        crit = sorted([k_ for g, k_ in rem if k_[1] == 3 and k_[0] != 'add'], key=lambda k_: (k_[2], k_[0] == 'cvt'))
        g = 0
        for k_ in crit:
            if k_[0] == 'exp' and gaps[min(g, 6)]: g += 1
            gaps[min(g, 6)].append(sm_text(*k_))
            if k_[0] == 'exp' or len(gaps[min(g, 6)]) == 2: g += 1
        late = [sm_text(*k_) for g_, k_ in rem if k_[0] == 'add']
        for i_, x in enumerate(late): gaps[min(9 + i_ // 2, 16) if nq == 4 else 0].append(x)
        for g in range(18):
            if slots[g] is None: continue
            room = 2 - sum(2 if 'exp' in x else 1 for x in gaps[g])
            while room > 0 and st: gaps[g].append(st.pop(0)); room -= 1
        for i_, s_ in enumerate(slots):
            if s_: b(s_)
            if s_ and ld and (i_ % every == 0 or nq == 3):
                b(ld.pop(0))
                while ld and ld[0].startswith("s_"): b(ld.pop(0))
            b.ext(gaps[i_])
    hi = list(range(2, nq))
    movs = [f"v_accvgpr_mov_b32 a{AQ(q)+i_}, a{AQ2(q)+i_}" for q in range(nq) for i_ in range(16)]
    f0 = None if OPT.get('defer') else K2F[OPT.get('of0', 2)] + ' ; tag=WT'
    if OPT.get('wtp') == 1 and nq == 3: b("buffer_wbl2 sc1 ; tag=WT")
    st = lsum([0, 1]) + onorm(0, False, f0)
    SW2_ = OPT.get('sw2', 0)
    if SW2_:
        ld = []
        D_ = OPT.get('dist', 5 if OPT.get('fsa') else 6)
        if OPT.get('pair'):
            b(f"s_add_u32 s{sT+1}, s{sKV}, 8192")
            ld = k_dma(38) + k_dma(39, f"s{sT+1}") + v_dma(38) + v_dma(39, f"s{sT+1}") + adv2(sT + 1)
        else:
            for t in (32 + D_, 33 + D_): ld += k_dma(t) + v_dma(t) + kv_adv()
        b(ld.pop(0))
        ld2 = []
        for x in ld: ld2 += [x] if x.startswith('s_') else [x, 'v_nop']
        ld2 = [x for x in ld]
        drain(st, ld2, 2)
    else: drain(st)
    stamp(b, 4)
    b.ext(zipper(st, lsum(hi), 2, 1))
    b.ext(movs)
    st = onorm(1, False, f0)
    weave(pre_mfma(), st, 3 if nq == 4 else 4)
    b.ext(st)
    rest = []; late_ = []
    for q in hi:
        if SW2_ >= 2: late_ += onorm(q, False, f0, inplace=True, so=sOP)
        else: rest += onorm(q, True, f0)
    b.ext(zipper(rest, pre_max(), 2, 1))
    b.ext(vote_write())
    b(f"s_mov_b32 s{sOP}, s{sOO}\ns_add_u32 s{sOO}, s{sOO}, {4*122880}\ns_mov_b32 s{sHEAD}, 1")
    if OPT.get('emub'):
        b(f"s_and_b32 s{sT}, s97, 3\ns_cmp_eq_u32 s{sT}, s{sCNT}" if False else "")
        b(f"s_mov_b32 s{sT}, 0\nL_duma{sfx}:")
        for i_ in range(64):
            if (i_ // 2) % 4 >= nq: continue
            b(f"{MF} a[{192+4*(i_//2%16)}:{195+4*(i_//2%16)}], a[{4*(i_%8)}:{4*(i_%8)+3}], a[{32+4*(i_%7)}:{35+4*(i_%7)}], a[{192+4*(i_//2%16)}:{195+4*(i_//2%16)}]")
            if i_ % 2 == 0: b(f"ds_read_b64_tr_b16 v[4:5], v{VA + i_ % 8} offset:{(i_ % 16) * 4096}")
        b(f"s_waitcnt lgkmcnt(0)\ns_barrier\ns_add_u32 s{sT}, s{sT}, 1\ns_cmp_lt_u32 s{sT}, 8\ns_cbranch_scc1 L_duma{sfx}")
    if OPT.get('pz'):
        b(f"""s_and_b32 s{sT}, s97, 7
        s_lshl_b32 s{sT}, s{sT}, 2
        s_lshr_b32 s{sPW}, {OPT.get('pzc', 0x10210210):#x}, s{sT}
        s_and_b32 s{sPW}, s{sPW}, 15
        s_or_b32 s{sT}, s{sIDLE}, s{sSAFE}
        s_cselect_b32 s{sPW}, 0, s{sPW}
        s_cmp_eq_u32 s{sPW}, 0
        s_cselect_b32 s{sPW}, 99, s{sPW}""")
    head_start(1)
    dst = [(q, sp) for q in range(nq) for sp in range(4)] if OPT.get('defer') else []
    for k in range(32, 40):
        ex = []
        for g in (24, 25):
            if dst:
                q, sp = dst.pop(0)
                ex += [(g, f"s_add_u32 s{sT+1}, s{sOP}, {sp*122880}"),
                       (g, f"buffer_store_dwordx4 {ar(AST+16*q+4*sp,4)}, v{VO}, s[{SO}:{SO+3}], s{sT+1} offen offset:{1024*q} sc1 ; tag=WT")]
        if k == 39 and nq == 3 and OPT.get('pz'): ex.append((59, "s_branch L_sig\nL_nosig:"))
        attn_stage(b, k, nq, ex, fill=late_ if k == 32 else None)
    b(f"s_branch L_atin{sfx}")
    b("REPLAY at 32 2")
    b(f"L_fin{sfx}:")
    f1 = K2F[OPT.get('of', 0)]
    early = p2_w(0) + p2_o(0) + p2_adv(0) + p2_w(1) + p2_o(1) + p2_adv(1)
    for k in range(56, 64):
        ex = []
        if k == 56: ex = [(6, f"buffer_load_dword v{VCW}, v{VPE}, s[{SCN}:{SCN+3}], 0 offen sc1 ; tag=CW")]
        if k == 59: ex = [(NS - 3, f"WAITV ; cover=CW\nv_cmp_gt_u32 vcc, v{VTH}, v{VCW}\ns_cbranch_vccnz L_espin{sfx}\nL_eok{sfx}:" + (f"\ns_cmp_eq_u32 s{sPZ}, 0\ns_cselect_b64 vcc, -1, 0" if OPT.get('pz') else ""))]
        if k == 57 and OPT.get('pz'): b(f"L_t57{sfx}:")
        if k >= 60:
            for g in (3, 7, 11, 17, 23, 45 if LM else 44):
                if OPT.get('pz'):
                    t_ = [early.pop(0) + " condp"]
                    while early and early[0].startswith("s_"): t_.append(early.pop(0))
                    ex.append((g, f"s_cbranch_vccz L_sk{k}_{g}{sfx}\n" + "\n".join(t_) + f"\nL_sk{k}_{g}{sfx}:"))
                    continue
                ex.append((g, early.pop(0)))
                while early and early[0].startswith("s_"): ex.append((g + 1, early.pop(0)))
        attn_stage(b, k, nq, ex)
    assert not early
    p2 = []
    for s_ in (2, 3): p2 += p2_w(s_) + p2_o(s_) + p2_adv(s_)
    st = lsum([0, 1]) + onorm(0, False, f1)
    drain(st, p2)
    stamp(b, 4)
    body = st + zipper(onorm(1, True, f1), lsum(hi), 2, 1)
    for q in hi: body += onorm(q, True, f1)
    body = [x + " ; tag=OS" if x.startswith("buffer_store") else x for x in body]
    nld = sum(1 for x in p2 if x.startswith("buffer_"))
    per = max(1, len(body) // (nld + 2))
    seq = []
    while body or p2:
        if p2:
            seq.append(p2.pop(0))
            while p2 and p2[0].startswith("s_"): seq.append(p2.pop(0))
        for _ in range(per):
            if body: seq.append(body.pop(0))
    outst = 48 - nld
    for x in seq:
        if x.startswith("buffer_"):
            if outst >= 62: b("s_waitcnt vmcnt(52)"); outst = 52
            outst += 1
        b(x)
    b.ext(vote_write())
    stamp(b)
    if OPT.get('pz'): b(f"s_cmp_eq_u32 s{sPZ}, 1\ns_cbranch_scc1 L_p2p{sfx}\nALTFROM p")
    b(f"L_p2s{sfx}:")
    for s_ in range(4): p2_step(b, s_, s_ == 0, True, f"WAITV ; cover=P{s_} cap=51")
    b("WAITV lgkmcnt(0) ; cover=OS")
    b("s_branch L_vote")
    b(f"""L_espin{sfx}:
    s_mov_b32 s{sLATE}, 1
    s_mov_b32 s{SO2+2}, 0
    s_mov_b32 s{SW2+2}, 0
    s_branch L_eok{sfx}""")
    if nq == 3:
        b(f"""L_sig:
        v_mov_b32 v4, {131072+7168}
        ds_read_b128 v[4:7], v4
        s_waitcnt lgkmcnt(0)
        v_or_b32 v4, v4, v5
        v_or3_b32 v4, v4, v6, v7
        v_readfirstlane_b32 s{sT}, v4
        s_mov_b64 exec, 1
        s_cmp_lg_u32 s{sSAFE}, 0
        s_cselect_b32 s{sT}, 0, s{sT}
        s_cbranch_scc1 L_sig1
        buffer_atomic_add v{VONE}, off, s[{SCN}:{SCN+3}], s{sCW} sc1
        L_sig1:
        s_or_b32 s{sT}, s{sT}, s{sSIG}
        s_cbranch_scc1 L_sig2
        s_add_u32 s{sT}, s{sCO}, 16384
        s_mov_b32 s{sSIG}, 1
        buffer_atomic_add v{VONE}, off, s[{SCN}:{SCN+3}], s{sT} sc1
        L_sig2:
        s_mov_b64 exec, -1
        s_branch L_nosig""")
        b(f"""L_hspin:
        s_mov_b32 s{sCNT}, 0
        L_hsp:
        s_sleep 8
        buffer_load_dword v{VHS}, off, s[{SDB}:{SDB+3}], 0 sc1
        s_waitcnt vmcnt(0)
        v_readfirstlane_b32 s{sT}, v{VHS}
        s_add_u32 s{sCNT}, s{sCNT}, 1
        s_lshr_b32 s{sT+1}, s{sCNT}, 17
        s_or_b32 s{sT}, s{sT}, s{sT+1}
        s_cmp_eq_u32 s{sT}, 0
        s_cbranch_scc1 L_hsp
        s_branch L_hsok""")
    for uid in QSPINS:
        b(f"""L_fs{uid}:
        ds_read_b128 {vr(QF,4)}, v{QFB}
        s_waitcnt lgkmcnt(0)
        v_min3_u32 v{QF}, v{QF}, v{QF+1}, v{QF+2}
        v_min_u32 v{QF}, v{QF}, v{QF+3}
        v_cmp_gt_u32 vcc, s{sFQ}, v{QF}
        s_cbranch_vccnz L_fs{uid}
        s_branch L_fr{uid}""")
    QSPINS.clear()
    for uid in SPINS:
        b(f"""L_fs{uid}:
        ds_read_b128 {vr(FQ,4)}, v{VFB}
        s_waitcnt lgkmcnt(0)
        v_min3_u32 v{FQ}, v{FQ}, v{FQ+1}, v{FQ+2}
        v_min_u32 v{FQ}, v{FQ}, v{FQ+3}
        v_cmp_gt_u32 vcc, s{sFV}, v{FQ}
        s_cbranch_vccnz L_fs{uid}
        s_branch L_fr{uid}""")
    SPINS.clear()
    if OPT.get('pz'):
        b(f"""L_pchk{sfx}:
        v_mov_b32 v5, {DEC}
        ds_read_b32 v4, v5
        s_waitcnt lgkmcnt(0)
        v_readfirstlane_b32 s{sT}, v4
        s_cmp_eq_u32 s{sT}, 0
        s_cbranch_scc1 L_pret{sfx}
        s_mov_b32 s{sPW}, 99
        s_mov_b32 s{sPZ}, 1""")
        w_, o_, a_ = pz_loads(0, 0)
        ld = w_ + o_ + a_
        drain([], ld)
        b.ext(ld)
        w_, o_, a_ = pz_loads(1, 1)
        b.ext(w_ + o_ + a_)
        b("s_branch L_pz")
        b(f"L_pzr{sfx}:")
        b.ext([x.split(';')[0] for x in k_reads(0, 0)])
        b("s_waitcnt lgkmcnt(0)")
        t_ = B(); attn_stage(t_, 8, nq, resume=True); b.ext([x.split(';')[0] for x in t_.L])
        b(f"s_cmp_eq_u32 s{sCNT}, 1\ns_cbranch_scc1 L_at1{sfx}\ns_branch L_t57{sfx}")
        b(f"ALTBEGIN p\nL_p2p{sfx}:")
        b(f"s_add_u32 s{sT}, s{sXB}, 131072\nv_add_u32 v5, s{sT}, v{VLN}")
        for i_ in range(4): b(f"ds_read_b128 {vr(240+4*i_,4)}, v5 offset:{1024*i_}")
        l0 = p2_w(0) + p2_o(0) + p2_adv(0); l1 = p2_w(1) + p2_o(1) + p2_adv(1)
        for i_ in range(128):
            b(f"v_accvgpr_read_b32 v{112+i_}, a{128+i_}")
            if i_ >= 64 and i_ % 4 == 3 and l0:
                b(l0.pop(0))
                while l0 and l0[0].startswith("s_"): b(l0.pop(0))
        b("WAITV ; cover=P2 cap=40")
        b.ext(l1)
        b("s_waitcnt lgkmcnt(0)")
        for s_ in (2, 3): p2_step(b, s_, False, True, f"WAITV ; cover=P{s_} cap=51")
        b("WAITV lgkmcnt(0) ; cover=OS")
        b("s_branch L_vote\nALTEND p")
    b(f"L_maxpass{sfx}:")
    for q in range(nq): b(f"v_mov_b32 v{T0+8+q}, 0xff800000")
    for s2 in range(4): b(f"v_add_u32 v{T0+12+s2}, 147456, v{KA+s2}")
    b(f"s_lshl_b32 s{sT}, s{sHEAD}, 18\ns_mov_b32 s{sCNT}, 0")
    b(f"L_mp{sfx}:")
    b(f"s_barrier\ns_add_u32 m0, s{sKB}, 147456")
    b(dma(DK0, SK, f"s{sT}", 0, "", "MP")); b(dma(DK1, SK, f"s{sT}", 1024, "", "MP"))
    b("s_waitcnt vmcnt(0)\ns_barrier")
    for kt in range(2):
        for s in range(4):
            b(f"ds_read_b128 {ar(ASP+4*(4*kt+s),4)}, v{T0+12+s} offset:{kt*4096}")
    b("s_waitcnt lgkmcnt(0)")
    for q in range(nq):
        for kt in range(2):
            for s in range(4):
                d = vr(S_ + 8 * q + 4 * kt, 4)
                b(f"{MF} {d}, {ar(ASP+4*(4*kt+s),4)}, {ar(AQ(q)+4*s,4)}, {d if s else '0'}")
    for q in range(nq):
        for e in range(0, 8, 2): b(f"v_max3_f32 v{T0+8+q}, v{T0+8+q}, v{S_+8*q+e}, v{S_+8*q+e+1}")
    b(f"s_add_u32 s{sT}, s{sT}, 8192\ns_add_u32 s{sCNT}, s{sCNT}, 1\ns_cmp_lt_u32 s{sCNT}, 32\ns_cbranch_scc1 L_mp{sfx}")
    b("s_barrier")
    xlane_reduce_multi(b, [T0 + 8 + q for q in range(nq)], [T0 + q for q in range(nq)], "v_max_f32")
    for q in range(nq):
        for r in range(4): b(f"v_sub_f32 v{CI+4*q+r}, 0, v{T0+8+q}")
    b(f"s_cmp_eq_u32 s{sHEAD}, 0\ns_cbranch_scc1 L_maxdone0{sfx}\ns_branch L_maxdone1{sfx}")

FA = [144, 192, 0, 96]
def p2_reg(slot, i):
    if slot == 3: return 48 + 4 * i if i < 4 else 96 + 4 * (i - 4)
    return FA[slot] + 4 * i
def pz_reg(slot, i):
    return ar((0, 64)[slot] + 4 * i, 4) if i < 8 else vr((32, 48)[slot] + 4 * (i - 8), 4)
def pz_acc(t): return ar(128 + 4 * t, 4) if t < 32 else vr(16 + 4 * (t - 32), 4)
def pz_loads(slot, L):
    f = K2F[OPT.get('p2f', 2)]
    w = [f"buffer_load_dwordx4 {pz_reg(slot, i)}, v{VPW + i//3}, s[{SW2}:{SW2+3}], s{sW2} offen offset:{1024*(i%3)}{f}" for i in range(6)]
    o = [f"buffer_load_dwordx4 {pz_reg(slot, 6+i)}, v{VPO + i//3}, s[{SO2}:{SO2+3}], s{sO2} offen offset:{1024*(i%3)}{f}" for i in range(6)]
    return w, o, p2_adv(L % 4)
VPW = 2; VPO = 8
def p2_w(slot): return [f"buffer_load_dwordx4 {ar(p2_reg(slot, i),4)}, v{VPW + i//3}, s[{SW2}:{SW2+3}], s{sW2} offen offset:{1024*(i%3)}{K2F[OPT.get('p2f', 2)]} ; tag=P{slot}" for i in range(6)]
def p2_o(slot): return [f"buffer_load_dwordx4 {ar(p2_reg(slot, 6+i),4)}, v{VPO + i//3}, s[{SO2}:{SO2+3}], s{sO2} offen offset:{1024*(i%3)}{K2F[OPT.get('p2f', 2)]} ; tag=P{slot}" for i in range(6)]
def p2_adv(slot):
    m = 5 if slot == 3 else 1
    return [f"s_add_u32 s{sO2}, s{sO2}, {m*122880}", f"s_add_u32 s{sW2}, s{sW2}, {m*36864}"]

def vote_write():
    return [f"v_mov_b32 v4, s{sFLAG}", f"s_lshl_b32 s{sT}, s{sWAVE}, 2", f"s_add_u32 s{sT}, s{sT}, {131072+7168}",
            f"v_mov_b32 v5, s{sT}", "ds_write_b32 v5, v4"]

P2ACC = 112
def p2_acc(q, n): return P2ACC + 4 * (6 * q + n)
def p2_step(b, slot, first, prefetch, wait, order=None, extra=None):
    b(wait)
    order = order or [(q, n) for q in range(6) for n in range(6)]
    slots = []; gaps = [[] for _ in range(36)]
    for q, n in order:
        a_ = vr(p2_acc(q, n), 4)
        slots.append(f"{MF} {a_}, {ar(p2_reg(slot, n),4)}, {ar(p2_reg(slot, 6+q),4)}, {'0' if first else a_}")
    if prefetch:
        o_, w_ = p2_o(slot), p2_w(slot)
        for q in range(6): gaps[6 * q + 5].append(o_[q])
        for n in range(6): gaps[30 + n].append(w_[n])
        gaps[35] += p2_adv(slot)
    for g, x in (extra or []): gaps[g].append(x)
    emit_slots(b, slots, gaps)

def phase2(b):
    D = 4
    acc = p2_acc
    def step(slot, first, prefetch, N, order=None, extra=None): p2_step(b, slot, first, prefetch, f"s_waitcnt vmcnt({N})", order, extra)
    b(f"""L_vote:
    s_cmp_eq_u32 s{sLATE}, 2
    s_cbranch_scc1 L_go
    v_mov_b32 v5, {131072+7168}
    s_barrier
    ds_read_b128 v[16:19], v5
    s_waitcnt lgkmcnt(0)
    v_or_b32 v16, v16, v17
    v_or3_b32 v16, v16, v18, v19
    v_readfirstlane_b32 s{sT}, v16
    s_cmp_lg_u32 s{sSAFE}, 0
    s_cselect_b32 s{sT}, 0, s{sT}
    s_cmp_lg_u32 s{sT}, 0
    s_cbranch_scc1 L_redo
    s_cmp_eq_u32 s{sWAVE}, 3
    s_cbranch_scc0 L_nosig2
    s_mov_b64 exec, 1
    buffer_atomic_add v{VONE}, off, s[{SCN}:{SCN+3}], s{sCO} sc1
    s_mov_b64 exec, -1
    L_nosig2:""")
    stamp(b)
    b(f"""s_cmp_eq_u32 s{sIDLE}, 1
    s_cbranch_scc1 L_fini
    s_cmp_eq_u32 s{sLATE}, 1
    s_cbranch_scc1 L_lateld
    L_go:
    s_xor_b32 s70, s{sWAVE}, 1
    s_mul_i32 s70, s70, 27648
    v_add_u32 v16, s70, v{VLN}
    s_xor_b32 s70, s{sWAVE}, 2
    s_mul_i32 s70, s70, 27648
    s_add_u32 s70, s70, 9216
    v_add_u32 v17, s70, v{VLN}
    s_xor_b32 s70, s{sWAVE}, 3
    s_mul_i32 s70, s70, 27648
    s_add_u32 s70, s70, 18432
    v_add_u32 v18, s70, v{VLN}
    s_mul_i32 s70, s{sWAVE}, 27648
    v_add_u32 v19, s70, v{VLN}
    v_and_b32 v20, 15, v0
    v_mul_u32_u24 v20, 96, v20
    v_bfe_u32 v21, v0, 4, 2
    v_lshl_add_u32 v20, v21, 3, v20
    v_add_u32 v20, s70, v20            ; bf16 staging write address: row*96 + g*8
    v_and_b32 v21, 63, v0
    s_mov_b32 s71, 0x2aab""")
    for r in range(5):
        b(f"""v_add_u32 v22, {64*r}, v21
        v_mul_u32_u24 v23, s71, v22
        v_lshrrev_b32 v23, 16, v23
        v_mul_u32_u24 v{42+r}, {2304 - 96}, v23
        v_lshl_add_u32 v{42+r}, v22, 4, v{42+r}""")
    b(f"""v_cmp_gt_u32 vcc, 32, v21
    v_mov_b32 v22, 0x7f000000
    v_cndmask_b32 v46, v22, v46, vcc
    s_mov_b32 s88, s{sOUT}
    s_mov_b32 s89, s{sOUT+1}
    s_mov_b32 s90, {8*240*1152*2}
    s_mov_b32 s91, 0x20000
    s_mov_b32 s36, 0
    {f"s_cmp_eq_u32 s{sPZ}, 1" if OPT.get('pz') else ""}
    {"s_cbranch_scc1 L_chk2" if OPT.get('pz') else ""}
    .p2align 3
    L_k2:""")
    for s_ in range(D):
        ex = [(0, f"buffer_load_dword v6, v{VP2}, s[{SCN}:{SCN+3}], 0 offen sc1")] if s_ == 0 else None
        step(s_, False, True, 36, extra=ex)
    b("""s_add_u32 s36, s36, 1
    s_cmp_eq_u32 s36, 2
    s_cbranch_scc1 L_chk
    L_chkd:
    s_cmp_lt_u32 s36, 6
    s_cbranch_scc1 L_k2""")
    b("L_tail:")
    for s_ in range(D - 1): step(s_, False, False, 12 * (D - 1 - s_))
    stamp(b)
    quad = lambda q, n: (q // 3) * 2 + (n // 3)
    oth = [(q, n) for d in (1, 2, 3) for q in range(6) for n in range(6) if quad(q, n) == d]
    mine = [(q, n) for q in range(3) for n in range(3)]
    wr = [(min(i_ + 5, 35), f"ds_write_b128 v{15 + quad(q, n)}, {vr(acc(q, n),4)} offset:{((q % 3) * 3 + n % 3) * 1024}") for i_, (q, n) in enumerate(oth)]
    step(D - 1, False, False, 0, order=oth + mine, extra=wr)
    if OPT.get('rstamps'): stamp(b)
    b("s_waitcnt lgkmcnt(0)\ns_barrier")
    if OPT.get('rstamps'): stamp(b)
    for t in range(9):
        for src in range(3):
            b(f"ds_read_b128 {vr(acc(*oth[3*t+src]),4)}, v19 offset:{src * 9216 + t * 1024}")
    for t, (q, n) in enumerate(mine):
        r0, r1, r2, m = acc(*oth[3*t]), acc(*oth[3*t+1]), acc(*oth[3*t+2]), acc(q, n)
        b(f"s_waitcnt lgkmcnt({min(15, 3 * (8 - t))})")
        for x_, y_ in ((r0, r1), (m, r2), (m, r0)):
            for r in (0, 2): b(f"v_pk_add_f32 v[{x_+r}:{x_+r+1}], v[{x_+r}:{x_+r+1}], v[{y_+r}:{y_+r+1}]")
        b(f"v_cvt_pk_bf16_f32 v{24+2*t}, v{m}, v{m+1}\nv_cvt_pk_bf16_f32 v{25+2*t}, v{m+2}, v{m+3}")
    for t, (q, n) in enumerate(mine):
        b(f"ds_write_b64 v20, v[{24+2*t}:{25+2*t}] offset:{q * 1536 + n * 32}")
    b("s_waitcnt lgkmcnt(0)")
    for r in range(5): b(f"ds_read_b128 {vr(48+4*r,4)}, v19 offset:{1024*r}")
    for r in range(5):
        b(f"s_waitcnt lgkmcnt({4-r})")
        b(f"buffer_store_dwordx4 {vr(48+4*r,4)}, v{42+r}, s[88:91], s{sOUTO} offen{K2F[OPT.get('outf', 0)]}")
    if OPT.get('rstamps'): stamp(b)
    b("L_fini:")
    if OPT.get('fixspan'):
        b(f"""s_waitcnt vmcnt(0)
        L_fix:
        s_memrealtime s[74:75]
        s_waitcnt lgkmcnt(0)
        s_sub_u32 s74, s74, s72
        s_cmp_lt_u32 s74, {OPT['fixspan'] * 100}
        s_cbranch_scc1 L_fix""")
    stamp_dump(b, 0, sWAVE)
    b("s_endpgm")
    if OPT.get('pz'):
        b("L_pz:")
        for j in range(10):
            sl = j % 2
            b(f"s_waitcnt vmcnt({12 if j < 9 else 0})")
            slots = []; gaps = [[] for _ in range(36)]
            for q in range(6):
                for n in range(6):
                    a_ = pz_acc(6 * q + n)
                    slots.append(f"{MF} {a_}, {pz_reg(sl, n)}, {pz_reg(sl, 6+q)}, {'0' if j == 0 else a_}")
            if j < 8:
                w_, o_, ad = pz_loads(sl, j + 2)
                for q in range(6): gaps[6 * q + 5].append(o_[q])
                for n in range(6): gaps[30 + n].append(w_[n])
                gaps[35] += ad
            emit_slots(b, slots, gaps)
        b(f"s_add_u32 s{sT}, s{sXB}, 131072\nv_add_u32 v5, s{sT}, v{VLN}\nv_mov_b32 v{VCW}, v{VTH}")
        for i_ in range(4): b(f"ds_write_b128 v5, {vr(16+4*i_,4)} offset:{1024*i_}")
        b(f"s_cmp_eq_u32 s{sWAVE}, 3\ns_cbranch_scc1 L_pzr3\ns_branch L_pzr4")
        b(f"""L_chk2:
        s_mov_b32 s36, 2
        buffer_load_dword v6, v{VP2}, s[{SCN}:{SCN+3}], 0 offen sc1
        s_waitcnt vmcnt(0)""")
    b(f"""L_chk:
    s_waitcnt vmcnt(48)
    s_sub_u32 s{sO2}, s{sO2}, {28*122880}
    s_sub_u32 s{sW2}, s{sW2}, {28*36864}
    v_cmp_gt_u32 vcc, 4, v6
    s_cbranch_vccz L_chkd
    s_mov_b32 s37, 0
    L_poll:
    s_sleep 4
    buffer_load_dword v6, v{VP2}, s[{SCN}:{SCN+3}], 0 offen sc1
    s_add_u32 s37, s37, 1
    s_waitcnt vmcnt(0)
    v_cmp_gt_u32 vcc, 4, v6
    s_cbranch_vccz L_chkd
    s_cmp_lt_u32 s37, 0x20000
    s_cbranch_scc1 L_poll
    s_branch L_chkd
    L_lateld:
    s_mov_b32 s{SO2+2}, s100
    s_mov_b32 s{SW2+2}, s101
    s_mul_i32 s{sO2}, s{sWAVE}, {32*122880}
    s_mul_i32 s{sW2}, s{sWAVE}, {32*36864}
    s_mov_b32 s{sLATE}, 2
    s_mov_b32 s37, 0
    L_esp:
    s_sleep 4
    buffer_load_dword v{VCW}, v{VPE}, s[{SCN}:{SCN+3}], 0 offen sc1
    s_add_u32 s37, s37, 1
    s_waitcnt vmcnt(0)
    v_cmp_gt_u32 vcc, v{VTH}, v{VCW}
    s_cbranch_vccz L_espd
    s_cmp_lt_u32 s37, 0x20000
    s_cbranch_scc1 L_esp
    L_espd:""")
    for s_ in range(4): b.ext(p2_w(s_) + p2_o(s_) + p2_adv(s_))
    b(f"""s_waitcnt vmcnt(0)
    s_cmp_eq_u32 s{sWAVE}, 3
    s_cbranch_scc1 L_p2s3
    s_branch L_p2s4
    L_redo:
    s_mov_b32 s{sSAFE}, 1
    s_waitcnt vmcnt(0)
    s_barrier""")
    prologue_a(b)
    b.ext(x_dma(0, 4)); b.ext(w_dma(0, 4))
    b("s_branch L_tramp")

def kernel1():
    b = B()
    b("attn_kernel:")
    b("s_cmp_lt_u32 s2, 256\ns_cbranch_scc1 L_work\ns_endpgm\nL_work:")
    if OPT['stamps']: b("s_mov_b32 s96, 0\nv_mov_b32 v14, 0\nv_mov_b32 v15, 0")
    stamp(b)
    if OPT.get('fixspan'): b("s_memrealtime s[72:73]\ns_waitcnt lgkmcnt(0)")
    b("s_load_dwordx16 s[48:63], s[0:1], 0\ns_load_dwordx4 s[64:67], s[0:1], 64\ns_load_dwordx2 s[100:101], s[0:1], 96\ns_load_dwordx4 s[76:79], s[0:1], 80")
    b(f"""s_mov_b32 s97, s2
    s_and_b32 s3, s2, 7
    s_lshr_b32 s2, s2, 3""")
    warm_code(b)
    b(f"""v_lshrrev_b32 v1, 6, v0
    s_bfe_u32 s68, s3, {0x10001 if OPT.get('map') else 0x10000}
    s_lshl_b32 s68, s68, 2
    s_and_b32 s69, s2, 3
    s_add_u32 s68, s68, s69        ; b
    v_readfirstlane_b32 s{sWAVE}, v1
    s_bfe_u32 s69, s3, {0x10000 if OPT.get('map') else 0x10001}
    s_lshl_b32 s69, s69, 3
    s_lshr_b32 s70, s2, 2
    s_add_u32 s69, s69, s70        ; hp
    s_lshr_b32 s3, s3, 2           ; blk
    s_lshl_b32 s{sWB}, s{sWAVE}, 12
    s_lshl_b32 s{sXB}, s{sWAVE}, 13
    s_mov_b32 s{sC}, {CSCALE}
    s_mov_b32 s{sC+1}, {CSCALE}
    s_mov_b32 s{sSAFE}, 0
    s_mov_b32 s{sFLAG}, 0""")
    prologue_a(b)
    b(f"""s_cmp_eq_u32 s3, 0
    s_waitcnt lgkmcnt(0)
    s_cselect_b64 s[48:49], s[48:49], s[58:59]
    s_cselect_b64 s[50:51], s[50:51], s[60:61]
    s_cselect_b64 s[52:53], s[52:53], s[62:63]
    s_cselect_b64 s[54:55], s[54:55], s[64:65]
    s_cselect_b64 s[56:57], s[56:57], s[66:67]""")
    if OPT.get('sstamps'): stamp(b)
    b(f"""s_mul_i32 s71, s68, 276480
    s_add_u32 s{SX}, s48, s71
    s_addc_u32 s{SX+1}, s49, 0
    s_mov_b32 s{SX+2}, 276480
    s_mov_b32 s{SX+3}, 0x20000
    s_lshl_b32 s71, s69, 9
    s_add_u32 s{SW}, s54, s71
    s_addc_u32 s{SW+1}, s55, 0
    s_sub_u32 s{SW+2}, 4718592, s71
    s_mov_b32 s{SW+3}, 0x20000""")
    b("L_srdok:")
    prologue_b(b)
    b(f"""s_cmp_eq_u32 s{sWAVE}, 3
    s_cbranch_scc1 L_begin3""")
    wave_code(b, 4, "4")
    b("L_tramp:\ns_branch L_late")
    b(".p2align 6")
    wave_code(b, 3, "3")
    b("L_phase2:")
    phase2(b)
    b("L_end1:\ns_endpgm\nL_codeend:")
    return b.L

def resolve_waits(L):
    out = []
    for i, x in enumerate(L):
        if x.startswith("WAITL"):
            tag = x.split()[1]
            n, T = tag[1:].split('.'); T = int(T)
            dst = set(range(AW + 8 * (T % 4), AW + 8 * (T % 4) + 8))
            cnt = 0; found = False
            for y in reversed(out):
                if y.startswith(("s_waitcnt", "WAITV")) and "lgkmcnt(0)" in y:
                    found = True; cnt = None; break
                if y.startswith("ds_"):
                    I = Ins(y)
                    if any(k == 'a' and r in dst for k, r in I.wr) or (T == 0 and 'need=X' in y):
                        found = True; break
                    cnt += 1
            assert found, x
            if cnt is not None:
                cnt = min(cnt, 15)
                out.append(f"s_waitcnt lgkmcnt({cnt})")
        else: out.append(x)
    return out

def expand_trace(L):
    def shift(line, name, it, step):
        if it == 0: return line
        def rep(m):
            k, n = m.group(1), int(m.group(2))
            if name == 'qp':
                if k == 'W': return f"W{n + step*it}"
                if k == 'X': return f"X{n + step*it//2}"
                return m.group(0)
            if k == 'KV': return f"KV{n + step*it}"
            return m.group(0)
        if ';' not in line: return line
        a, c = line.split(';', 1)
        return a + ';' + re.sub(r'\b(KV|W|X)(\d+)\b', rep, c)
    bodies = {}
    def go(i, stop):
        res = []
        while i < len(L):
            x = L[i]
            if x.startswith("LOOPBEGIN"):
                _, name, cnt, step = x.split(); cnt = int(cnt); step = int(step)
                body, j = go(i + 1, name)
                bodies[name] = (body, cnt, step)
                for it in range(cnt):
                    for y in body:
                        if y == f"LOOPEXIT {name}":
                            if it == cnt - 1: break
                            continue
                        res.append(shift(y, name, it, step))
                i = j + 1; continue
            if x.startswith("REPLAY"):
                _, name, off, cnt = x.split(); cnt = int(cnt); body, _, step = bodies[name]
                for it in range(cnt):
                    for y in body: res.append(shift(shift(y, name, it, step), name, 1, int(off)))
                i += 1; continue
            if x.startswith("LOOPEND") and x.split()[1] == stop: return res, i
            res.append(x); i += 1
        return res, i
    return go(0, None)[0]

STOPS = ("L_maxpass", "L_hspin", "L_espin")
def traces(L):
    tr = expand_trace(L)
    main = []
    for x in tr:
        if x.startswith(STOPS): break
        main.append(x)
    alt = None
    if "ALTFROM p" in main:
        i = tr.index("ALTBEGIN p"); j = tr.index("ALTEND p")
        alt = [x for x in main[:main.index("ALTFROM p")] if 'condp' not in x] + tr[i + 1:j]
    drop = lambda t: [x for x in t if not x.startswith("ALT")]
    return drop(main), drop([x for x in main if 'condp' not in x]), alt

def resolve_vm(L):
    idx = [f"{x} ;#{i}" if x.startswith("WAITV") else x for i, x in enumerate(L)]
    best = {}
    main, lean, alt = traces(idx)
    for which, tr in (("main", main), ("lean", lean), ("alt", alt or [])):
        q = []
        for x in tr:
            c = x.split(';', 1)[1] if ';' in x else ''
            if x.startswith(("buffer_", "global_")):
                if 'cond' in c and 'condp' not in c: continue
                m = re.search(r'tag=(\w+)', c); q.append(m.group(1) if m else 'other')
            elif x.startswith("WAITV"):
                tags = set(re.search(r'cover=([\w,]*)', c).group(1).split(','))
                if which == "lean" and any(t[:1] == 'P' or t == 'OS' for t in tags): continue
                i = int(x.rsplit('#', 1)[1])
                n = 0
                for t in reversed(q):
                    if t in tags: break
                    n += 1
                else: n = 63
                m = re.search(r'cap=(\d+)', c)
                best[i] = min(best.get(i, 63), n, int(m.group(1)) if m else 63)
    out = []
    for i, x in enumerate(L):
        if x.startswith("WAITV"):
            a, c = x.split(';', 1) if ';' in x else (x, '')
            out.append(f"s_waitcnt vmcnt({best[i]}) {a[5:].strip()} ;{c}")
        else: out.append(x)
    return out

def check_protocol(L, label):
    q = []; done = set(); issued = {}; pub = set(); errs = 0
    for x in L:
        c = x.split(';', 1)[1] if ';' in x else ''
        if x.startswith("buffer_") or x.startswith("global_"):
            if 'cond' in c and 'condp' not in c: continue
            m = re.search(r'tag=(\w+)', c); q.append(m.group(1) if m else 'other')
        elif x.startswith("s_waitcnt"):
            m = re.search(r'vmcnt\((\d+)\)', x)
            if m:
                n = int(m.group(1))
                while len(q) > n: done.add(q.pop(0))
            m = re.search(r'needtag=(\w+)', c)
            if m and m.group(1) in q: print(label, "ERR needtag", x); errs += 1
        elif x.startswith("s_barrier") or 'SYNC' in c:
            m = re.search(r'pub=([\w,]*)', c)
            if m:
                for t in m.group(1).split(','):
                    if not t: continue
                    if t in q or (t not in done and not (label[:2] == 'w3' and t[0] in 'XW')): print(label, "ERR publish not landed", t, x); errs += 1
                    pub.add(t)
        elif x.startswith("ds_read"):
            m = re.search(r'need=(\w+)', c)
            if m and m.group(1) not in pub : print(label, "ERR read unpublished", x); errs += 1
        assert len(q) <= 63, ("vmcnt overflow", x)
    return errs

def burn(L):
    out = []; on = False; c = 0; k = 0
    for x in L:
        if x == 'BURNON': on = True; c = 0; continue
        if x == 'BURNOFF': on = False; continue
        out.append(x)
        if on and OPT.get('burn'):
            if x.startswith('v_mfma'): c = 0
            elif x.startswith('v_'):
                c += 1
                if c >= OPT['burn']:
                    c = 0; k += 1
                    out.append(f"{MF} v[4:7], a[{32+4*(k%8)}:{35+4*(k%8)}], a[{96+4*(k%7)}:{99+4*(k%7)}], v[4:7]")
    return out

def check_lgkm(L, label):
    dq = []; vq = []; errs = 0; cache = {}
    for x in L:
        t = x.split(';')[0].strip()
        I = cache.get(t)
        if I is None: I = cache[t] = Ins(t)
        if I.kind == 'label': continue
        if I.op == 's_waitcnt':
            m = re.search(r'lgkmcnt\((\d+)\)', t)
            if m:
                while len(dq) > int(m.group(1)): dq.pop(0)
            m = re.search(r'vmcnt\((\d+)\)', t)
            if m:
                while len(vq) > int(m.group(1)): vq.pop(0)
            continue
        use = I.rd | I.srcc | I.wr
        for w in dq + vq:
            if w & use: print(label, "ERR uncovered", x); errs += 1; break
        if I.kind in ('dsr', 'dsw'): dq.append(I.wr)
        if I.kind in ('vload', 'vstore', 'dma') and not ('cond' in x and 'condp' not in x): vq.append(I.wr)
    return errs

def finish(L):
    L = burn(L)
    L = resolve_waits(L)
    return L

def strip_markers(L):
    return [x for x in L if not x.startswith(("LOOPBEGIN", "LOOPEND", "LOOPEXIT", "REPLAY", "ALT"))]

DESC = """.section .rodata,"a"
.p2align 6
.amdhsa_kernel {name}
  .amdhsa_next_free_vgpr {vgpr}
  .amdhsa_next_free_sgpr 102
  .amdhsa_accum_offset 256
  .amdhsa_group_segment_fixed_size 0
  .amdhsa_kernarg_size 104
  .amdhsa_user_sgpr_count 2
  .amdhsa_user_sgpr_kernarg_segment_ptr 1
  .amdhsa_system_sgpr_workgroup_id_x 1
  .amdhsa_float_denorm_mode_32 3
.end_amdhsa_kernel
"""

def build(**kw):
    OPT.update(kw)
    k1 = finish(kernel1())
    i4 = k1.index("L_begin4:"); i3 = k1.index("L_begin3:"); iv = k1.index("L_phase2:")
    ip = k1.index("L_srdok:"); pre = k1[ip:i4]
    k1 = k1[:i4] + resolve_vm(pre + k1[i4:i3])[len(pre):] + resolve_vm(pre + k1[i3:iv])[len(pre):] + k1[iv:]
    e = 0
    for lab, part in (("w4", pre + k1[i4:i3]), ("w3", pre + k1[i3:])):
        main, lean, alt = traces(part)
        e += check_protocol(main, lab) + check_lgkm(main, lab)
        if alt: e += check_protocol(alt, lab + "alt") + check_lgkm(alt, lab + "alt")
    assert e == 0 or OPT.get('nocheck')
    k1 = strip_markers(k1)
    k1, n1, p1 = fix_hazards(k1)
    for p in p1: print("BRANCH HAZARD", p)
    assert not p1
    hdr = open("ref.txt").read().split("; Override")[0]
    KN = NAME + "_kernel"
    k1 = [x.replace("attn_kernel", KN) for x in k1]
    out = hdr
    out += "; generated by my own schedule generator: q-projection + attention (2 heads per workgroup), hand-off, output projection\n"
    out += ("; @launch kernel=%s grid=(256,1,1) block=(256,1,1) lds=163840\n" % KN) if OPT.get('list') else "; @launch grid=(256,1,1) block=(256,1,1) lds=163840\n"
    out += '.amdgcn_target "amdgcn-amd-amdhsa--gfx950"\n.text\n'
    out += ".globl %s\n.p2align 8\n.type %s,@function\n" % (KN, KN) + "\n".join(k1) + "\n"
    out += DESC.format(name=KN, vgpr=512)
    return out, n1

if __name__ == "__main__":
    kw = {}
    for a in sys.argv[2:]:
        k, v = a.split('='); kw[k] = int(v)
    s, info = build(**kw)
    open(sys.argv[1], "w").write(s)
    print("nops inserted", info, "bytes", len(s))
```

```python
import sys, re
from asmlib import fix_hazards, Ins

NAME = "concat_heads__mha_block_cached__mha_block_cached__near_ridge"
MF = "v_mfma_f32_16x16x32_bf16"
CSCALE = 0x3e0293ee
LTHR = 0x4e800000

O_BLK = 128 * 122880
WOT_OFF = 2 * O_BLK
WOT_BLK = 128 * 36864
CNT_OFF = WOT_OFF + 2 * WOT_BLK

class B:
    def __init__(self): self.L = []
    def __call__(self, s):
        for x in s.split("\n"):
            x = x.strip()
            if x: self.L.append(x)
    def ext(self, l): self.L.extend(l)

def vr(b, n): return f"v[{b}:{b+n-1}]"
def ar(b, n): return f"a[{b}:{b+n-1}]"

def emit_slots(b, slots, gaps):
    for i, s in enumerate(slots):
        if s: b(s)
        nv = [x for x in gaps[i] if not x.startswith('v_')]
        v = [x for x in gaps[i] if x.startswith('v_')]
        for x in nv + v: b(x)

S_ = 16; P_ = 48; CI = 64; LS = 80
KA = 84
VA = 88
VWA = 105
DK0 = 96; DK1 = 97; DV0 = 98; DV1 = 99
VO = 100
VWO = 101
VWX = 102
VLN = 103
VPF = 104
VPD = 105
T0 = 108
O_ = 128
XA = 16; WA = 28; DX = 20; DW = 24
WSLOT = [49152, 114688, 131072, 147456]; sKB = 69
def AQ(q): return 32 + 64 * (q // 2) + 16 * (q % 2)
def AQ2(q): return 128 + 16 * q
AK = 0; AV = 64; ASP = 64
AX = 0; AW = 64
SX = 4; SW = 8; SK = 12; SV = 16; SO = 20; SWO = 24; SWT = 28
sWAVE = 32; sWB = 33; sKV = 34; sCNT = 35; sHEAD = 36; sSAFE = 37; sFLAG = 38
sXO = 39; sXO2 = 40; sWOFF = 41; sXB = 42; sOO = 43; sC = 44
sT = 46
sH0 = 68; sWOS = 64; sWTS = 65; sSTAMP = 72; SPF = 76; sPF = 68; sWXS = 67; sROT = 80; sLIN = 81
SCN = 48; SDB = 52; SO2 = 56; sCO = 60; sCW = 61; SIN = 84; SIF = 88; sOUT = 76; VHS = 106; VCW = 107; VONE = 104
SW2 = 80; sO2 = 98; sW2 = 99; sOUTO = 66; sOP = 41; VPE = 11; VTH = 12; VP2 = 13; VWE = 10; AST = 192; sSIG = 78; sLATE = 79; sIDLE = 67; sRT = 68; sLN = 71; sPW = 40; sPZ = 64; sST = 65; VPA = 102; DEC = 131072 + 7168 + 64; sFV = 39; VFA = 1; VFB = 101; FQ = 80; FLAGS = 131072 + 7168 + 32

OPT = dict(nt_kv=1, nt_w=0, nt_x=0, nt_wo=0, stamps=0, warm=1, of=2, of0=2, e67=1, bal=0, pair=1, pre8=1, wts=1, sw2=2)

K2F = ['', ' nt', ' sc1', ' sc0 sc1', ' sc0', ' sc1 nt', ' sc0 sc1 nt']
def fl(k): return ["", " nt", " sc1 nt", " sc0 sc1 nt", " sc0 nt"][OPT[k]]

def dma(voff, srd, soff, off, flag, tag):
    return f"buffer_load_dwordx4 v{voff}, s[{srd}:{srd+3}], {soff} offen offset:{off}{flag} lds ; tag={tag}"

def kv_adv():
    if not OPT.get('rot'): return [f"s_add_u32 s{sKV}, s{sKV}, 8192"]
    return [f"s_add_u32 s{sLIN}, s{sLIN}, 8192", f"s_add_u32 s{sKV}, s{sLIN}, s{sROT}",
            f"s_and_b32 s{sKV}, s{sKV}, 0x3ffff", f"s_and_b32 s{sT+1}, s{sLIN}, 0xfffc0000", f"s_or_b32 s{sKV}, s{sKV}, s{sT+1}"]

def adv2(tmp):
    if not OPT.get('rot'): return [f"s_add_u32 s{sKV}, s{sKV}, 16384"]
    return [f"s_add_u32 s{sLN}, s{sLN}, 16384", f"s_add_u32 s{sKV}, s{sLN}, s{sRT}", f"s_and_b32 s{sKV}, s{sKV}, 0x3ffff",
            f"s_and_b32 s{tmp}, s{sLN}, 0x40000", f"s_or_b32 s{sKV}, s{sKV}, s{tmp}"]

def k_dma(tile, so=None):
    so = so or f"s{sKV}"
    return [f"s_add_u32 m0, s{sKB}, {(tile % 8) * 8192}",
            dma(DK0, SK, so, 0, fl('nt_kv'), f"KV{tile}"), dma(DK1, SK, so, 1024, fl('nt_kv'), f"KV{tile}")]
def v_dma(tile, so=None):
    so = so or f"s{sKV}"
    return [f"s_add_u32 m0, s{sKB}, {65536 + (tile % 8) * 8192}",
            dma(DV0, SV, so, 0, fl('nt_kv'), f"KV{tile}"), dma(DV1, SV, so, 1024, fl('nt_kv'), f"KV{tile}")]

def x_dma(m, nq):
    slot = 16384 if m % 2 else 81920
    out = []
    out.append(f"s_add_u32 m0, s{sXB}, {slot}")
    for j in range(4): out.append(dma(DX + j, SX, f"s{sXO}", 1024 * j, fl('nt_x'), f"X{m}"))
    out.append(f"s_add_u32 m0, s{sXB}, {slot + 4096}")
    for j in range(4 if nq == 4 else 2): out.append(dma(DX + j, SX, f"s{sXO2}", 1024 * j, fl('nt_x'), f"X{m}"))
    out.append(f"s_add_u32 s{sXO}, s{sXO}, 128")
    out.append(f"s_add_u32 s{sXO2}, s{sXO2}, 128")
    return out

def w_dma(n, nq):
    out = [f"s_add_u32 m0, s{sWB}, {WSLOT[n % 4]}"]
    for j in range(4): out.append(dma(DW + j, SW, f"s{sWOFF}", 1024 * j, fl('nt_w'), f"W{n}"))
    if n % 2 == 0: out.append(f"s_add_u32 s{sWOFF}, s{sWOFF}, 256")
    else: out.append(f"s_add_u32 s{sWOFF}, s{sWOFF}, {524288 - 256}")
    return out

def w_reads(n, T):
    sp_, a = T // 2, T % 2
    hl, sp = sp_ // 2, sp_ % 2
    out = []
    for s in range(2):
        for a2 in range(2):
            d = AW + 8 * (T % 4) + 4 * s + 2 * a2
            off = max(n % 4 - 1, 0) * 16384 + hl * 8192 + (32 * s + 4 * a2) * 128 + 8 * a
            out.append(f"ds_read_b64_tr_b16 {ar(d,2)}, v{WA + sp + (2 if n % 4 else 0)} offset:{off} ; need=W{n}")
    return out

def x_reads(m, nq):
    out = []
    for q in range(nq):
        for s in range(2):
            d = AX + 32 * (m % 2) + 8 * q + 4 * s
            out.append(f"ds_read_b128 {ar(d,4)}, v{XA + s + (0 if m % 2 else 2)} offset:{q * 2048} ; need=X{m}")
    return out

def qacc(hd, q, T):
    r = 128 + 32 * q + 4 * T
    return vr(r, 4) if hd == 0 else ar(r, 4)

def pf_load():
    return f"buffer_load_dword v{VPD}, v{VPF}, s[{SPF}:{SPF+3}], s{sPF} offen nt ; tag=PF"

def wo_dma():
    out = []
    for r in range(2):
        out.append(f"s_add_u32 m0, s{sWOS}, {4096*r}")
        for j in range(4):
            out += [f"PRE s_mov_b32 s{sT}, {8192*j + 512*r}", dma(VWO, SWO, f"s{sT}", 1024 * j, fl('nt_wo'), "WO")]
    out += [f"s_mov_b32 m0, s{sWTS}", dma(VWX, SWO, "0", 0, fl('nt_wo'), "WO")]
    return out
WOF = 32
def wo_reads():
    out = [f"ds_read_b64_tr_b16 {vr(WOF+16*r+4*tl+2*a,2)}, v{VWA} offset:{4096*r + 2048*a + 32*tl}" for r in range(2) for tl in range(4) for a in range(2)]
    return out + [f"ds_read_b64_tr_b16 {vr(WOF+32+2*a,2)}, v{VWE} offset:{512*a}" for a in range(2)]
def wo_stores():
    out = []
    for r in range(2):
        out.append(f"PRE s_add_u32 s{sT}, s{sWB}, {16384*r}")
        out += [f"buffer_store_dwordx4 {vr(WOF+16*r+4*tl,4)}, v{VLN}, s[{SWT}:{SWT+3}], s{sT} offen offset:{1024*tl} sc1 ; tag=WT" for tl in range(4)]
    out += [f"PRE s_lshl_b32 s{sT}, s{sWAVE}, 10", f"PRE s_add_u32 s{sT}, s{sT}, 32768",
            f"buffer_store_dwordx4 {vr(WOF+32,4)}, v{VLN}, s[{SWT}:{SWT+3}], s{sT} offen sc1 ; tag=WT"]
    return out

QSPINS = []; QF = 68; QFA = 72; QFB = 73; sFQ = 35; QFLAGS = 112640
def qproj_stage(b, n, nq, fill=None):
    hd, m = n % 2, n // 2
    nx = 8 if nq == 4 else 6
    slots = []; gaps = [[] for _ in range(64)]
    for T in range(8):
        for q in range(4):
            for s in range(2):
                if q >= nq: slots.append(None); continue
                acc = qacc(hd, q, T)
                c = "0" if (m == 0 and s == 0) else acc
                slots.append(f"{MF} {acc}, {ar(AW+8*(T%4)+4*s,4)}, {ar(AX+32*(m%2)+8*q+4*s,4)}, {c}")
    start = {3: 5, 4: 12, 5: 19, 6: 26, 7: 33}
    rd = w_reads(n, 2); gaps[0].append(rd[3])
    for T, g in start.items():
        for i, x in enumerate(w_reads(n, T)): gaps[g + i].append(x)
    FSQ = OPT.get('fsq') and n < 15
    if n < 17:
        for T, g in (((0, 53), (1, 57)) if FSQ else ((0, 45), (1, 53))):
            for i, x in enumerate(w_reads(n + 1, T)): gaps[g + i].append(x)
        for i, x in enumerate(w_reads(n + 1, 2)[:3]): gaps[61 + i].append(x)
    xr = []
    if n % 2 == 1 and m + 1 <= 8:
        xr = x_reads(m + 1, nq)
        for x, g in zip(xr, (9, 10, 16, 17, 23, 24, 30, 31) if not (n == 1 and OPT.get('x1late')) else (49, 50, 51, 52, 57, 58, 59, 60)): gaps[g].append(x)
    for T in range(1, 8): gaps[8 * T - 1].append(f"WAITL W{n}.{T}")
    if n < 17: gaps[63].append(f"WAITL W{n+1}.0")
    req = []
    if n + 1 <= 17: req.append(f"W{n+1}")
    if n % 2 == 0 and m + 1 <= 8 and not (n == 0 and OPT.get('x1late')): req.append(f"X{m+1}")
    if n == 1 and OPT.get('x1late'): req.append("X1")
    if n == 17: req += ["KV0", "KV1"]
    cov = list(req)
    if nq == 3 and n == 2:
        cov.append("INIT")
        gaps[55].append(f"buffer_store_dword v{VONE}, v{VLN}, s[{SIF}:{SIF+3}], 0 offen sc1 ; tag=FLAG")
    if nq == 3 and n == 12:
        gaps[45].append(f"buffer_load_dword v{VHS}, off, s[{SDB}:{SDB+3}], 0 ; tag=HS")
    if n == 17 and OPT.get('fsa'):
        gaps[36] += [f"s_mov_b32 s{sFV}, 0", f"v_mov_b32 v{VFB}, {FLAGS}", f"v_mov_b32 v{FQ}, 0"]
        gaps[37] += [f"v_lshl_add_u32 v{VFA}, s{sWAVE}, 2, v{VFB}"]
        gaps[39] += [f"ds_write_b32 v{VFA}, v{FQ}"]
    if FSQ:
        uid = f"q{n}_{nq}"
        gaps[42] += [f"s_add_u32 s{sFQ}, s{sFQ}, 1", f"v_mov_b32 v{QF}, s{sFQ}"]
        gaps[43] += ["WAITV lgkmcnt(0) ; cover=" + ",".join(cov), f"ds_write_b32 v{QFA}, v{QF}"]
        gaps[47].append(f"ds_read_b128 {vr(QF,4)}, v{QFB}")
        gaps[50] += ["s_waitcnt lgkmcnt(0)", f"v_min3_u32 v{QF}, v{QF}, v{QF+1}, v{QF+2}"]
        gaps[51].append(f"v_min_u32 v{QF}, v{QF}, v{QF+3}")
        gaps[52].append(f"v_cmp_gt_u32 vcc, s{sFQ}, v{QF}\ns_cbranch_vccnz L_fs{uid}\nL_fr{uid}: ; SYNC pub=" + ",".join(req))
        QSPINS.append(uid)
    else:
        gaps[43].append("WAITV lgkmcnt(0) ; cover=" + ",".join(cov))
        gaps[44].append("s_barrier ; pub=" + ",".join(req))
    def place(seq, first, step):
        g = first
        for x in seq:
            if x.startswith("buffer_"): gaps[g].append(x); g += step
            elif x.startswith(("s_add_u32 m0", "s_mov_b32 m0")): gaps[g - 1].append(x)
            elif x.startswith("PRE "): gaps[g - 1].append(x[4:])
            else: gaps[min(g - step + 1, 63)].append(x)
    if n == 0 and OPT.get('x2late'): place(w_dma(2, nq) + w_dma(3, nq), 2, 5)
    elif n == 1 and OPT.get('x2late'): place(x_dma(2, nq), 2, 4)
    elif n == 0: place(w_dma(2, nq) + w_dma(3, nq) + x_dma(2, nq), 1, 2)
    elif n % 2 == 0 and m + 2 <= 8: place(x_dma(m + 2, nq), 2, 5)
    def single(kind, i_):
        if kind == 'wo':
            if i_ == 8: return [f"s_mov_b32 m0, s{sWTS}", None, dma(VWX, SWO, "0", 0, fl('nt_wo'), "WO")]
            r, j_ = i_ // 4, i_ % 4
            return [f"s_add_u32 m0, s{sWOS}, {4096*r}", f"s_mov_b32 s{sT}, {8192*j_ + 512*r}", dma(VWO, SWO, f"s{sT}", 1024 * j_, fl('nt_wo'), "WO")]
        t, j_ = i_ // 4, i_ % 4
        d_ = (k_dma if j_ < 2 else v_dma)(t, f"s{sT}")
        return [d_[0], f"s_add_u32 s{sT}, s{sRT}, {8192*t}" if OPT.get('rot') else f"s_mov_b32 s{sT}, {8192*t}", d_[1 + j_ % 2]]
    if OPT.get('slowpos', 0):
        R0 = 9
        sched_ = {2: [('wo', 0), ('wo', 1), ('wo', 2)], 4: [('wo', 3), ('wo', 4), ('wo', 5)], 6: [('wo', 6), ('wo', 7), ('wo', 8)],
                  10: [('kv', i_) for i_ in range(4)], 12: [('kv', i_) for i_ in range(4, 8)]}
        for (kind, i_) in sched_.get(n, []):
            gaps[63] += [x for x in single(kind, i_) if x]
    else:
        W0 = 1; R0 = W0 + 7
        sched_ = {W0 + i_ // 2: [] for i_ in range(9)}
        for i_ in range(8 if OPT.get('fsq') else 9): sched_[W0 + i_ // 2].append(('wo', i_))
        if not OPT.get('late'):
            for i_ in range(8): sched_.setdefault(R0 + 2 + i_ // 2, []).append(('kv', i_))
        for (kind, i_), g in zip(sched_.get(n, []), (39, 42) if (n % 2 == 0 or OPT.get('stpos', 0) or (n == 1 and OPT.get('x2late'))) else (12, 32)):
            m0_, so_, ld_ = single(kind, i_)
            gaps[g - 1].append(m0_)
            if so_: gaps[g - 1].append(so_)
            gaps[g].append(ld_)
    if n == 13: gaps[62] += [f"s_add_u32 s{sKV}, s{sRT}, 16384", f"s_mov_b32 s{sLN}, 49152"] if OPT.get('rot') else [f"s_mov_b32 s{sKV}, 16384"]
    if n in (R0, R0 + 1):
        rd = wo_reads()
        if OPT.get('fsq'): rd = rd[:16]
        if n == R0:
            gaps[44].append("WAITV ; cover=WO")
            for x, g in zip(rd[:8], [44, 45, 46, 48, 49, 51, 52, 52] if FSQ else [49, 50, 51, 52, 57, 58, 59, 60]): gaps[g].append(x)
        else:
            for x, g in zip(rd[8:], [1, 2, 3, 4, 11, 18, 25, 37, 38, 39]): gaps[g].append(x)
    for i_ in range(0 if OPT.get('wts') else 9):
        if OPT.get('slowpos', 0):
            if n != (10, 10, 12, 12, 14, 14, 14, 16, 16)[i_]: continue
            t_ = [f"s_add_u32 s{sT+1}, s{sWB}, {16384*(i_//4)}"] if i_ < 8 else [f"s_lshl_b32 s{sT+1}, s{sWAVE}, 10", f"s_add_u32 s{sT+1}, s{sT+1}, 32768"]
            gaps[62] += t_ + [f"buffer_store_dwordx4 {vr(WOF+4*i_,4)}, v{VLN}, s[{SWT}:{SWT+3}], s{sT+1} offen offset:{1024*(i_%4) if i_ < 8 else 0} sc1 ; tag=WT"]
            continue
        r, tl = i_ // 4, i_ % 4
        if OPT.get('stpos', 0):
            if n != (9, 9, 11, 11, 13, 13, 15, 15, 15)[i_]: continue
            g = (8, 10, 2, 4, 2, 4, 2, 4, 7)[i_]
        else:
            if n != min(R0 + 1 + i_, 17 - (1 if i_ < 8 else 0)) : continue
            g = 62 if not any('tag=WT' in x for x in gaps[62]) else 48
        if i_ < 8: gaps[g - 1].append(f"s_add_u32 s{sT+1}, s{sWB}, {16384*r}")
        else: gaps[g - 2].append(f"s_lshl_b32 s{sT+1}, s{sWAVE}, 10"); gaps[g - 1].append(f"s_add_u32 s{sT+1}, s{sT+1}, 32768")
        gaps[g].append(f"buffer_store_dwordx4 {vr(WOF+4*i_,4)}, v{VLN}, s[{SWT}:{SWT+3}], s{sT+1} offen offset:{1024*tl if i_ < 8 else 0}{K2F[OPT.get('wtf', 2)]} ; tag=WT")
    if n == 14 and OPT.get('late'):
        place([f"PRE s_mov_b32 s{sT}, 0"] + k_dma(0, f"s{sT}") + v_dma(0, f"s{sT}") + [f"PRE s_mov_b32 s{sT}, 8192"] + k_dma(1, f"s{sT}") + v_dma(1, f"s{sT}"), 2, 5)
    if n in ((15, 16) if OPT.get('late') else (14, 16)):
        seq = []
        for t in range(2, 6):
            seq += [f"PRE s_add_u32 s{sT}, s{sKV}, {(t - 2) * 8192}"] + (k_dma if n < 16 else v_dma)(t, f"s{sT}")
        if n == 16: seq.append(f"s_add_u32 s{sKV}, s{sKV}, 32768")
        place(seq, 2, 5)
    if n == 17 and OPT.get('e67'):
        place(k_dma(6) + [f"PRE s_add_u32 s{sT}, s{sKV}, 8192"] + k_dma(7, f"s{sT}"), 4, 9)
        place(v_dma(6) + v_dma(7, f"s{sT}") + adv2(sT + 1), 47, 4)
    if OPT.get('awake') and n % 2 == 1 and 3 <= n <= 11:
        seq = []
        for t in range(OPT['awake']):
            seq += [f"PRE s_add_u32 s{sPF}, s{sPF}, 8192"] + k_dma(t % 2, f"s{sPF}") + v_dma(t % 2, f"s{sPF}")
        seq = [x.replace('tag=KV0', 'tag=DUM').replace('tag=KV1', 'tag=DUM') for x in seq]
        place(seq, 2, 40 // (4 * OPT['awake']))
    if OPT.get('awake') and n == 13:
        place([f"PRE s_mov_b32 s{sPF}, 0"] + k_dma(0, f"s{sPF}") + v_dma(0, f"s{sPF}") + [f"PRE s_mov_b32 s{sPF}, 8192"] + k_dma(1, f"s{sPF}") + v_dma(1, f"s{sPF}"), 2, 5)
    if n + 4 <= 17: place(w_dma(n + 4, nq), *((54, 3) if FSQ else (46, 5)))
    for i_ in range(OPT.get('qslow', 0)): gaps[2 + 2 * i_].append('v_nop\nv_nop\nv_nop\nv_nop\nv_nop\nv_nop')
    if fill is not None:
        for g in range(20 if n == 16 else 0, 64):
            if slots[g] is None: continue
            for _ in range(2):
                if fill: gaps[g].append(fill.pop(0))
    emit_slots(b, slots, gaps)
    if OPT.get('qstamps'): stamp(b)

def k_reads(unit, tile):
    out = []
    for kt in range(2):
        for s in range(4):
            f = 4 * kt + s
            out.append(f"ds_read_b128 {ar(AK+4*f,4)}, v{KA + s} offset:{unit * 8192 + kt * 4096} ; need=KV{tile}")
    return out

def v_reads(unit, tile):
    out = []
    for T in range(8):
        th, tl = T // 4, T % 4
        for a in range(2):
            out.append(f"ds_read_b64_tr_b16 {ar(AV+4*T+2*a,2)}, v{VA + T} offset:{unit * 8192 + a * 4096} ; need=KV{tile}")
    return out

import sched, sched2
LM = 1
for a_ in sys.argv[2:]:
    if a_.startswith('lm='): LM = int(a_[3:])
if LM:
    NS = 68
    V_GAPS = list(range(26, 42)); K_GAPS = list(range(50, 58)); D_GAPS = [3, 11, 17, 23]
    SM = sched2.schedule(V_GAPS + K_GAPS, D_GAPS)
    for a_ in sys.argv[2:]:
        if a_.startswith('dg='): D_GAPS = {1: [3, 7, 33, 38], 2: [4, 8, 34, 40], 3: [3, 8, 36, 56]}[int(a_[3:])]
else:
    NS = 64
    V_GAPS = list(range(25, 41)); K_GAPS = list(range(48, 56)); D_GAPS = [1, 9, 17, 23]
    SM = sched.schedule(4, V_GAPS + K_GAPS, D_GAPS)
BG = K_GAPS[0] - 1
LA = 108; ONES = 124
def sm_text(kind, q, e):
    s = S_ + 8 * q + e
    if kind == 'exp': return f"v_exp_f32 v{s}, v{s}"
    if kind == 'add': return f"v_add_f32 v{LS+q}, v{LS+q}, v{s}"
    return f"v_cvt_pk_bf16_f32 v{P_+4*q+e//2}, v{s-1}, v{s}"
def sm_items(nq, lo, hi):
    it = [(g, k[0] == 'exp', k) for k, g in SM.items() if k[1] < nq and lo <= g < hi]
    it.sort(key=lambda t: (t[0] % NS, t[1], -t[0]))
    return [(g, k) for g, _, k in it]

def qk(q, kt, s, czero=False):
    d = vr(S_ + 8 * q + 4 * kt, 4)
    c = d if s else ("0" if czero else vr(CI + 4 * q, 4))
    return f"{MF} {d}, {ar(AK+4*(4*kt+s),4)}, {ar(AQ(q)+4*s,4)}, {c}"

def pv(q, T, czero=False):
    d = vr(O_ + 32 * q + 4 * T, 4)
    return f"{MF} {d}, {ar(AV+4*T,4)}, {vr(P_+4*q,4)}, {'0' if czero else d}"

def lsm(q, czero=False):
    d = vr(LA + 4 * q, 4)
    return f"{MF} {d}, {vr(ONES,4)}, {vr(P_+4*q,4)}, {'0' if czero else d}"

SPINS = []
def attn_stage(b, k, nq, extra=None, fill=None, resume=False):
    kk = k % 32; u = k % 8
    if resume: kk = 0
    slots = []; gaps = [[] for _ in range(NS)]
    for q in (0, 1):
        for kt in range(2):
            for s in range(4): slots.append(qk(q, kt, s))
    for q in (2, 3):
        for T in range(8): slots.append(pv(q, T, kk == 1) if (q < nq and kk > 0) else None)
        if LM: slots.append(lsm(q, kk == 1) if (q < nq and kk > 0) else None)
    for q in (2, 3):
        for kt in range(2):
            for s in range(4): slots.append(qk(q, kt, s) if q < nq else None)
    for q in (0, 1):
        for T in range(8): slots.append(pv(q, T, kk == 0 and not resume))
        if LM: slots.append(lsm(q, kk == 0 and not resume))
    for g, key in sm_items(nq, 0, 2 * NS if kk > 0 else NS): gaps[g % NS].append(sm_text(*key))
    for g, x in zip(V_GAPS, v_reads(u, k)): gaps[g].append(x)
    DIST = 7 if OPT.get('d7') else OPT.get('dist', 5 if OPT.get('fsa') else 6)
    if DIST == 7 and k < 63:
        gaps[BG - 1].append(f"WAITV lgkmcnt(0) ; cover=KV{k+1}" + (",WT" if kk == 11 else ""))
        gaps[BG].append(f"s_barrier ; pub=KV{k+1}")
    elif k % 2 == 1 and k < 63 and OPT.get('fsa'):
        uid = f"{k}_{nq}"
        pg = OPT.get('fsp', 30); rg = OPT.get('fsr', 36)
        gaps[pg - 2].append(f"s_add_u32 s{sFV}, s{sFV}, 1")
        gaps[pg - 1].append(f"v_mov_b32 v{FQ}, s{sFV}") if pg - 1 >= 30 or pg < 26 else gaps[pg].append(f"v_mov_b32 v{FQ}, s{sFV}")
        gaps[pg + 1].insert(0, f"WAITV ; cover=KV{k+1},KV{k+2}" + (",WT" if kk == 11 else ""))
        gaps[pg + 1].append(f"ds_write_b32 v{VFA}, v{FQ}")
        gaps[rg].append(f"ds_read_b128 {vr(FQ,4)}, v{VFB}")
        gaps[rg + 3].insert(0, "s_waitcnt lgkmcnt(2)")
        gaps[rg + 3].append(f"v_min3_u32 v{FQ}, v{FQ}, v{FQ+1}, v{FQ+2}")
        gaps[rg + 4].append(f"v_min_u32 v{FQ}, v{FQ}, v{FQ+3}")
        gaps[rg + 5].append(f"v_cmp_gt_u32 vcc, s{sFV}, v{FQ}")
        gaps[rg + 6].insert(0, f"s_cbranch_vccnz L_fs{uid}\nL_fr{uid}: ; SYNC pub=KV{k+1},KV{k+2}")
        gaps[BG].append("s_waitcnt lgkmcnt(0)")
        SPINS.append(uid)
    elif k % 2 == 1 and k < 63:
        gaps[BG - 1].append(f"WAITV lgkmcnt(0) ; cover=KV{k+1},KV{k+2}" + (",WT" if k == (39 if OPT.get('pz') else 11) else ""))
        gaps[BG].append(f"s_barrier ; pub=KV{k+1},KV{k+2}")
    else:
        gaps[BG].append("s_waitcnt lgkmcnt(0)")
    if k < 63:
        for g, x in zip(K_GAPS, k_reads((u + 1) % 8, k + 1)): gaps[g].append(x)
        gaps[NS - 1].append("s_waitcnt lgkmcnt(0)")
    if k + DIST < 64 and not (OPT.get('e67') and k + DIST < 8) and not (OPT.get('sw2') and k in (32, 33)):
        if OPT.get('pair'):
            t0 = k + DIST - (k % 2); fn = v_dma if k % 2 else k_dma
            kd, vd = fn(t0), fn(t0 + 1, f"s{sT}")
            gaps[D_GAPS[2] - 2].append(f"s_add_u32 s{sT}, s{sKV}, 8192")
            if k % 2:
                for i_, x in enumerate(adv2(sT)): gaps[42 + i_].append(x)
        else:
            kd, vd = k_dma(k + DIST), v_dma(k + DIST)
            gaps[44] += kv_adv()
        gaps[D_GAPS[0] - 1].append(kd[0]); gaps[D_GAPS[2] - 1].append(vd[0])
        for x, g in zip(kd[1:] + vd[1:], D_GAPS): gaps[g].append(x)
    for i_ in range(OPT.get('slow', 0)): gaps[2 + 2 * i_].append('v_nop\nv_nop\nv_nop\nv_nop')
    if extra:
        for g, x in extra: gaps[g].append(x)
    if fill:
        cost = lambda x: 2 if x.startswith('v_exp') else (1 if x.startswith(('v_', 'ds_', 'buffer_')) else 0)
        room = [max(0, 2 - sum(cost(x) for x in gaps[g])) if slots[g] else 0 for g in range(NS)]
        left = len(fill) - sum(room)
        live = [g for g in range(NS) if slots[g]]
        for i_ in range(max(left, 0)): room[live[(i_ * len(live)) // left]] += 1
        for g in range(NS):
            for _ in range(room[g]):
                if fill: gaps[g].append(fill.pop(0))
        assert not fill
    for key, pre in (('nobar', ('s_barrier',)), ('nodma', ('buffer_load_dwordx4 v9',)), ('nolds', ('ds_read',)), ('noexp', ('v_exp',))):
        if OPT.get(key) and 8 <= k < 16: gaps = [[x if not x.startswith(pre) else 's_nop 0 ;' + x.split(';', 1)[-1] for x in g] for g in gaps]
    if OPT.get('astamps') and k % 2 == 0: stamp(b)
    if OPT.get('dmaonly'):
        slots = [None] * NS
        gaps = [[x for x in g if not x.startswith(('v_', 'ds_'))] for g in gaps]
    emit_slots(b, slots, gaps)

def xlane_reduce(b, reg, tmp, op):
    b(f"v_mov_b32 v{tmp}, v{reg}")
    b(f"v_permlane32_swap_b32 v{reg}, v{tmp}")
    b(f"{op} v{reg}, v{reg}, v{tmp}")
    b(f"v_mov_b32 v{tmp}, v{reg}")
    b(f"v_permlane16_swap_b32 v{reg}, v{tmp}")
    b(f"{op} v{reg}, v{reg}, v{tmp}")

def xlane_reduce_multi(b, regs, tmps, op):
    for sw in ("v_permlane32_swap_b32", "v_permlane16_swap_b32"):
        for r, t in zip(regs, tmps): b(f"v_mov_b32 v{t}, v{r}")
        for r, t in zip(regs, tmps): b(f"{sw} v{r}, v{t}")
        for r, t in zip(regs, tmps): b(f"{op} v{r}, v{r}, v{t}")

def stamp(b, idx=None):
    if not OPT['stamps']: return
    b(f"s_memtime s[{sSTAMP}:{sSTAMP+1}]\ns_memrealtime s[{sSTAMP+2}:{sSTAMP+3}]\ns_waitcnt lgkmcnt(0)")
    b(f"s_mov_b32 s95, m0\ns_mov_b32 m0, s96\nv_writelane_b32 v14, s{sSTAMP}, m0\nv_writelane_b32 v15, s{sSTAMP+2}, m0\ns_mov_b32 m0, s95\ns_add_u32 s96, s96, 1")

def stamp_dump(b, k, wave):
    if not OPT['stamps']: return
    b("s_waitcnt vmcnt(0)")
    stamp(b)
    if OPT['stamps'] == 2:
        b("s_load_dwordx2 s[92:93], s[0:1], 88\ns_waitcnt lgkmcnt(0)")
        b(f"s_cmp_lg_u32 s{wave}, 0\ns_cbranch_scc1 L_end{k+1}\ns_lshr_b32 s94, s97, 3\ns_cmp_lg_u32 s94, 5\ns_cbranch_scc1 L_end{k+1}")
        b(f"s_add_u32 s88, s92, {OPT.get('dbgoff',0)*(1-k)}\ns_addc_u32 s89, s93, 0\ns_mov_b32 s90, 256\ns_mov_b32 s91, 0x20000")
        sel = [0, 2, 3, 5, 6, 7, 8, 9, 10, 11, 12]
        b("s_mov_b64 exec, 1")
        for i, ix in enumerate(sel):
            b(f"v_readlane_b32 s94, v15, {ix}\ns_nop 3")
            if i == 0 and k == 0: b("s_not_b32 s94, s94")
            b(f"v_mov_b32 v1, s94\nv_mov_b32 v2, {4*(i + 1)}\nbuffer_atomic_umax v1, v2, s[88:91], 0 offen")
        return
    b("s_getreg_b32 s94, hwreg(HW_REG_XCC_ID)\nv_writelane_b32 v14, s94, 63\nv_writelane_b32 v14, s65, 62\nv_writelane_b32 v14, s64, 61")
    b("s_load_dwordx2 s[92:93], s[0:1], 96\ns_waitcnt lgkmcnt(0)")
    b(f"s_add_u32 s88, s92, {(48+k)*1024*1024}\ns_addc_u32 s89, s93, 0\ns_mov_b32 s90, 0x100000\ns_mov_b32 s91, 0x20000")
    b(f"s_lshl_b32 s94, s97, 2\ns_add_u32 s94, s94, s{wave}\ns_lshl_b32 s94, s94, 9")
    b("v_and_b32 v1, 63, v0\nv_lshlrev_b32 v1, 3, v1")
    b("buffer_store_dwordx2 v[14:15], v1, s[88:91], s94 offen")

def persist_regs(b):
    lane = T0; t1 = T0 + 1; t2 = T0 + 2; t3 = T0 + 3; g_ = T0 + 4; ihi = T0 + 5; i8 = T0 + 6; i16 = T0 + 7; r_ = T0 + 8; c4 = T0 + 9
    b(f"""v_and_b32 v{lane}, 63, v0
    v_lshrrev_b32 v{g_}, 4, v{lane}
    v_lshrrev_b32 v{ihi}, 3, v{lane}
    v_and_b32 v{i8}, 7, v{lane}
    v_and_b32 v{i16}, 15, v{lane}
    v_lshrrev_b32 v{r_}, 2, v{i16}
    v_and_b32 v{c4}, 3, v{lane}
    v_lshlrev_b32 v{VLN}, 4, v{lane}
    s_add_u32 s71, s63, s{sWB}
    v_add_u32 v{VO}, s71, v{VLN}""")
    b(f"""s_lshl_b32 s70, s{sWAVE}, 11
    v_lshlrev_b32 v{t1}, 8, v{g_}
    v_add_u32 v{t1}, s70, v{t1}
    s_and_b32 s70, s{sWAVE}, 1
    s_lshl_b32 s70, s70, 3
    v_xor_b32 v{t2}, v{i16}, v{g_}
    v_xor_b32 v{t2}, s70, v{t2}
    v_lshl_add_u32 v{DK0}, v{t2}, 4, v{t1}
    v_xor_b32 v{DK1}, 64, v{DK0}
    v_lshlrev_b32 v{t2}, 1, v{g_}
    v_xor_b32 v{t3}, v{t2}, v{i16}
    v_lshl_add_u32 v{DV0}, v{t3}, 4, v{t1}
    v_xor_b32 v{DV1}, 128, v{DV0}""")
    b(f"""v_mul_u32_u24 v{t1}, 1152, v{ihi}
    v_lshl_add_u32 v{t1}, v{i8}, 4, v{t1}
    s_lshl_b32 s70, s{sWAVE}, 7
    v_add_u32 v{VWO}, s70, v{t1}
    v_lshrrev_b32 v{t1}, 1, v{lane}
    v_mul_u32_u24 v{t1}, 1152, v{t1}
    v_and_b32 v{t2}, 1, v{lane}
    v_lshl_add_u32 v{t1}, v{t2}, 4, v{t1}
    s_lshl_b32 s70, s{sWAVE}, 5
    s_add_u32 s70, s70, 1024
    v_add_u32 v{VWX}, s70, v{t1}""")
    b(f"""v_xor_b32 v{t2}, v{g_}, v{i16}
    v_lshlrev_b32 v{t2}, 4, v{t2}
    v_lshl_add_u32 v{KA}, v{i16}, 8, v{t2}""")
    for s_ in range(1, 4): b(f"v_xor_b32 v{KA+s_}, {64*s_}, v{KA}")
    b(f"""v_lshl_add_u32 v{t2}, v{g_}, 2, v{r_}
    v_lshlrev_b32 v{t1}, 8, v{t2}
    v_and_b32 v{t2}, 7, v{t2}
    v_lshl_add_u32 v{t1}, v{t2}, 5, v{t1}
    v_lshl_add_u32 v{t1}, v{c4}, 3, v{t1}
    v_add_u32 v{VA}, 0x10000, v{t1}""")
    for T in range(1, 8): b(f"v_xor_b32 v{VA+T}, {32*T}, v{VA}")
    b(f"""v_lshl_add_u32 v{t2}, v{g_}, 2, v{r_}
    v_lshlrev_b32 v{t1}, 7, v{t2}
    v_lshl_add_u32 v{t1}, v{c4}, 3, v{t1}
    s_lshr_b32 s70, s{sWAVE}, 1
    s_lshl_b32 s70, s70, 16
    s_and_b32 s71, s{sWAVE}, 1
    s_lshl_b32 s{sWOS}, s71, 13
    s_add_u32 s{sWOS}, s{sWOS}, s70
    s_lshl_b32 s{sWTS}, s71, 10
    s_add_u32 s{sWTS}, s{sWTS}, s70
    s_add_u32 s{sWTS}, s{sWTS}, 47104
    {f"s_lshl_b32 s{sWTS}, s{sWAVE}, 10" if OPT.get('fsq') else ""}
    {f"s_add_u32 s{sWTS}, s{sWTS}, 147456" if OPT.get('fsq') else ""}
    v_add_u32 v{VWA}, s{sWOS}, v{t1}
    v_lshlrev_b32 v{t1}, 3, v{lane}
    v_add_u32 v{VWE}, s{sWTS}, v{t1}""")

def late_setup(b, sfx):
    b(f"""s_lshl_b32 s71, s68, 4
    s_add_u32 s71, s71, s69
    s_lshl_b32 s70, s71, 19
    s_add_u32 s{SK}, s50, s70
    s_addc_u32 s{SK+1}, s51, 0
    s_mov_b32 s{SK+2}, 524288
    s_mov_b32 s{SK+3}, 0x20000
    s_add_u32 s{SV}, s52, s70
    s_addc_u32 s{SV+1}, s53, 0
    s_mov_b32 s{SV+2}, 524288
    s_mov_b32 s{SV+3}, 0x20000
    s_mul_i32 s70, s3, {O_BLK}
    s_add_u32 s{SO}, s100, s70
    s_addc_u32 s{SO+1}, s101, 0
    s_mov_b32 s{SO+2}, {O_BLK}
    s_mov_b32 s{SO+3}, 0x20000
    s_mul_i32 s70, s71, 36864
    s_add_u32 s{SWO}, s56, s70
    s_addc_u32 s{SWO+1}, s57, 0
    s_mov_b32 s{SWO+2}, 36864
    s_mov_b32 s{SWO+3}, 0x20000
    s_mul_i32 s71, s3, {WOT_BLK}
    s_add_u32 s70, s70, s71
    s_add_u32 s70, s70, {WOT_OFF}
    s_add_u32 s{SWT}, s100, s70
    s_addc_u32 s{SWT+1}, s101, 0
    s_mov_b32 s{SWT+2}, 36864
    s_mov_b32 s{SWT+3}, 0x20000
    s_mul_i32 s62, s69, {8*122880}
    s_mul_i32 s63, s68, 15360        ; b*15*1024
    s_add_u32 s{SCN}, s100, {CNT_OFF}
    s_addc_u32 s{SCN+1}, s101, 0
    s_mov_b32 s{SCN+2}, 24576
    s_mov_b32 s{SCN+3}, 0x20000
    s_mov_b64 s[{SDB}:{SDB+1}], s[78:79]
    s_mov_b32 s{SDB+2}, 256
    s_mov_b32 s{SDB+3}, 0x20000
    s_mov_b64 s[{SIN}:{SIN+1}], s[{SCN}:{SCN+1}]
    s_mov_b32 s{SIN+3}, 0x20000
    s_mov_b64 s[{SIF}:{SIF+1}], s[78:79]
    s_mov_b32 s{SIF+3}, 0x20000
    s_lshl_b32 s70, s3, 3
    s_add_u32 s70, s70, s68
    s_lshl_b32 s{sCO}, s70, 2
    s_lshr_b32 s71, s69, 2
    s_add_u32 s{sCO}, s{sCO}, s71
    s_lshl_b32 s{sCO}, s{sCO}, 7
    s_lshr_b32 s{sCW}, s70, 1
    s_lshl_b32 s{sCW}, s{sCW}, 7
    s_add_u32 s{sCW}, s{sCW}, 8192
    s_and_b32 s70, s97, 1
    s_mul_i32 s70, s70, {30 + OPT.get('bal', 0)}
    s_add_u32 s2, s2, s70              ; tile number inside the pair of workgroup classes (0..59 real)
    s_cmp_eq_u32 s70, 0
    s_cselect_b32 s71, {30 + OPT.get('bal', 0)}, 60
    s_cmp_ge_u32 s2, s71
    s_cselect_b32 s{sIDLE}, 1, 0       ; no output tile for this workgroup
    s_mul_i32 s68, s2, 43
    s_lshr_b32 s68, s68, 8
    s_mul_i32 s69, s68, 6
    s_sub_u32 s69, s2, s69             ; nt
    s_bfe_u32 s70, s97, 0x10001
    s_mul_i32 s70, s70, 10
    s_add_u32 s68, s68, s70            ; mt
    s_mul_i32 s92, s69, {OPT.get('krot', 0)}
    s_add_u32 s92, s92, s68
    s_and_b32 s92, s92, 3""")
    if OPT.get('s2t'):
        b(f"""s_lshr_b32 s2, s97, 3
        s_mul_i32 s68, s2, 86
        s_lshr_b32 s68, s68, 8
        s_mul_i32 s69, s68, 3
        s_sub_u32 s69, s2, s69
        s_and_b32 s70, s97, 1
        s_mul_i32 s70, s70, 3
        s_add_u32 s69, s69, s70
        s_bfe_u32 s70, s97, 0x10001
        s_mul_i32 s70, s70, 10
        s_add_u32 s68, s68, s70""")
        if OPT['s2t'] >= 2:
            b(f"""s_and_b32 s92, s68, 1
            s_lshl_b32 s92, s92, 1
            s_lshr_b32 s70, s{sWAVE}, 1
            s_add_u32 s92, s92, s70
            s_and_b32 s68, s68, 30
            s_and_b32 s70, s{sWAVE}, 1
            s_add_u32 s68, s68, s70""")
        else: b(f"s_mov_b32 s92, s{sWAVE}")
    KQ = 92 if OPT.get('s2t') else sWAVE
    b(f"""
    s_mul_i32 s79, s68, 103
    s_lshr_b32 s79, s79, 8
    s_mul_i32 s78, s68, 96
    s_add_u32 s78, s78, 95
    s_mul_i32 s78, s78, 4370
    s_lshr_b32 s78, s78, 20
    s_lshl_b32 s70, s3, 3
    s_add_u32 s78, s78, s70
    s_add_u32 s79, s79, s70
    s_lshl_b32 s78, s78, 2
    s_lshl_b32 s79, s79, 2
    s_add_u32 s78, s78, s{KQ}
    s_add_u32 s79, s79, s{KQ}
    s_lshl_b32 s78, s78, 7
    s_lshl_b32 s79, s79, 7
    s_mul_i32 s70, s3, {O_BLK}
    s_mul_i32 s71, s68, 6144
    s_add_u32 s70, s70, s71
    s_add_u32 s{SO2}, s100, s70
    s_addc_u32 s{SO2+1}, s101, 0
    s_sub_u32 s{SO2+2}, {O_BLK}, s71
    s_mov_b32 s{SO2+3}, 0x20000
    s_mul_i32 s70, s3, {WOT_BLK}
    s_mul_i32 s71, s69, 6144
    s_add_u32 s70, s70, s71
    s_add_u32 s70, s70, {WOT_OFF}
    s_add_u32 s{SW2}, s100, s70
    s_addc_u32 s{SW2+1}, s101, 0
    s_sub_u32 s{SW2+2}, {WOT_BLK}, s71
    s_mov_b32 s{SW2+3}, 0x20000
    s_cmp_eq_u32 s{sIDLE}, 1
    s_cselect_b32 s{SO2+2}, 0, s{SO2+2}   ; workgroups without an output tile load nothing
    s_cselect_b32 s{SW2+2}, 0, s{SW2+2}
    s_mov_b32 s100, s{SO2+2}
    s_mov_b32 s101, s{SW2+2}
    s_lshr_b32 s70, s{sWAVE}, 1
    s_mul_i32 s70, s70, {48*2304}
    s_mul_i32 s{sOUTO}, s68, {96*2304}
    s_add_u32 s{sOUTO}, s{sOUTO}, s70
    s_mul_i32 s70, s3, 1152
    s_add_u32 s{sOUTO}, s{sOUTO}, s70
    s_mul_i32 s70, s69, 192
    s_add_u32 s{sOUTO}, s{sOUTO}, s70
    s_and_b32 s70, s{sWAVE}, 1
    s_mul_i32 s70, s70, 96
    s_add_u32 s{sOUTO}, s{sOUTO}, s70
    s_lshl_b32 s70, s3, 2
    s_add_u32 s70, s70, s{KQ}
    s_lshl_b32 s70, s70, 7
    s_add_u32 s70, s70, 8192
    v_and_b32 v1, 1, v0
    v_mov_b32 v{VP2}, s78
    v_mov_b32 v2, s79
    v_cmp_eq_u32 vcc, 1, v1
    v_and_b32 v1, 2, v0
    v_mov_b32 v3, s70
    v_cndmask_b32 v{VP2}, v{VP2}, v2, vcc
    v_cmp_eq_u32 vcc, 2, v1
    v_add_u32 v{VPE}, 16384, v{VP2}
    v_mov_b32 v{VTH}, 4
    v_cndmask_b32 v{VPE}, v{VPE}, v3, vcc
    v_mov_b32 v3, 32
    v_cndmask_b32 v{VTH}, v{VTH}, v3, vcc
    s_mov_b32 s{sSIG}, 0""")
    b(f"L_late{sfx}:")
    b(f"""s_or_b32 s70, s97, s{sSAFE}
    s_cmp_eq_u32 s70, 0
    s_cselect_b32 s{SIN+2}, 24576, 0   ; only workgroup 0 (first pass) really initialises the counters
    s_cselect_b32 s{SIF+2}, 4, 0
    s_mov_b32 s{sOO}, s62
    s_mov_b32 s{sLATE}, 0
    s_mov_b32 s{SO2+2}, s100
    s_mov_b32 s{SW2+2}, s101
    {p2_init()}
    s_lshr_b32 s{sRT}, s97, {OPT.get('rsh', 3)}
    s_mul_i32 s{sRT}, s{sRT}, {OPT.get('rot', 0) or 1}
    s_mul_i32 s70, s{sRT}, 5042
    s_lshr_b32 s70, s70, 16
    s_mul_i32 s70, s70, 13
    s_sub_u32 s{sRT}, s{sRT}, s70
    s_lshl_b32 s{sRT}, s{sRT}, 14
    s_lshl_b32 s{sKB}, s{sWAVE}, 11""")

def warm_code(b):
    if not OPT.get('warm'): return
    b(f"""s_getpc_b64 s[70:71]
    L_pc:
    s_sub_u32 s70, s70, L_pc-attn_kernel
    s_subb_u32 s71, s71, 0
    v_mul_u32_u24 v2, 40, v0
    v_lshrrev_b32 v2, 8, v2
    s_mul_i32 s68, s2, 40
    v_add_u32 v2, s68, v2
    v_lshlrev_b32 v2, 7, v2
    v_min_u32 v2, L_codeend-attn_kernel-4, v2
    v_mov_b32 v3, s71
    v_add_co_u32 v2, vcc, s70, v2
    v_addc_co_u32 v3, vcc, 0, v3, vcc
    global_load_dword v4, v[2:3], off""")

def prologue_a(b):
    lane = T0; t1 = T0 + 1; t2 = T0 + 2; t3 = T0 + 3; g_ = T0 + 4; ihi = T0 + 5; i8 = T0 + 6
    b(f"""v_and_b32 v{lane}, 63, v0
    v_lshrrev_b32 v{g_}, 4, v{lane}
    v_lshrrev_b32 v{ihi}, 3, v{lane}
    v_and_b32 v{i8}, 7, v{lane}""")
    b(f"s_lshl_b32 s{sT}, s{sWAVE}, 6")
    b(f"v_add_u32 v{t1}, s{sT}, v{ihi}")
    b(f"v_mul_u32_u24 v{t1}, 1152, v{t1}")
    for j in range(4):
        b(f"v_xor_b32 v{t2}, {4*(j%2)}, v{g_}")
        b(f"v_xor_b32 v{t2}, v{t2}, v{i8}")
        b(f"v_lshl_add_u32 v{t2}, v{t2}, 4, v{t1}")
        b(f"v_add_u32 v{DX+j}, {8*j*1152 - 1024*j}, v{t2}")
    b(f"""s_and_b32 s{sT}, s{sWAVE}, 1
    s_lshl_b32 s{sT}, s{sT}, 18
    s_lshr_b32 s{sT+1}, s{sWAVE}, 1
    s_lshl_b32 s{sT+1}, s{sT+1}, 7
    s_add_u32 s{sT}, s{sT}, s{sT+1}
    v_lshlrev_b32 v{t1}, 13, v{ihi}
    v_add_u32 v{t1}, s{sT}, v{t1}
    v_lshrrev_b32 v{t2}, 2, v{i8}
    v_xor_b32 v{t2}, v{t2}, v{g_}
    v_and_b32 v{t2}, 1, v{t2}
    v_lshl_add_u32 v{t1}, v{t2}, 6, v{t1}
    v_and_b32 v{t2}, 3, v{i8}
    v_lshl_add_u32 v{t1}, v{t2}, 4, v{t1}""")
    for j in range(4): b(f"v_add_u32 v{DW+j}, {8*j*8192 - 1024*j}, v{t1}")
    b(f"""s_mov_b32 s{sXO}, 0
    s_mov_b32 s{sXO2}, 36864
    s_mov_b32 s{sWOFF}, 0
    s_mov_b32 s{sKV}, 0
    s_mov_b32 s{sHEAD}, 0""")

def prologue_b(b):
    lane = T0; t1 = T0 + 1; t2 = T0 + 2; t3 = T0 + 3; g_ = T0 + 4; ihi = T0 + 5; i8 = T0 + 6
    if OPT.get('sstamps'): stamp(b)
    b.ext(x_dma(0, 4)); b.ext(w_dma(0, 4))
    if OPT.get('ord') == 1: b.ext(w_dma(1, 4)); b.ext(x_dma(1, 4))
    if OPT.get('ord') == 2: b.ext(w_dma(1, 4))
    if OPT.get('sstamps'): stamp(b)
    if OPT.get('xw'):
        pf = K2F[OPT.get('xwf', 0)]
        b(f"""s_lshr_b32 s70, s2, 2
        s_mul_i32 s70, s70, 270
        s_mul_i32 s71, s{sWAVE}, 68
        s_add_u32 s70, s70, s71
        s_lshl_b32 s70, s70, 7
        v_lshlrev_b32 v5, 7, v{lane}
        buffer_load_dword v6, v5, s[{SX}:{SX+3}], s70 offen{pf}
        s_and_b32 s70, s2, 3
        s_lshl_b32 s70, s70, 2
        s_add_u32 s70, s70, s{sWAVE}
        s_lshl_b32 s70, s70, 13
        v_lshrrev_b32 v5, 2, v{lane}
        v_lshlrev_b32 v5, 17, v5
        v_and_b32 v7, 3, v{lane}
        v_lshl_add_u32 v5, v7, 7, v5
        buffer_load_dword v6, v5, s[{SW}:{SW+3}], s70 offen{pf}
        s_add_u32 s70, s70, {256*8192}
        buffer_load_dword v6, v5, s[{SW}:{SW+3}], s70 offen{pf}
        s_add_u32 s70, s70, {256*8192}
        buffer_load_dword v6, v5, s[{SW}:{SW+3}], s70 offen{pf}""")
    late_setup(b, "")
    if OPT.get('tlb'):
        for srd in (SK, SV, SWO): b(f"buffer_load_dword v1, off, s[{srd}:{srd+3}], 0 nt")
        if OPT['tlb'] > 1:
            b(f"s_mov_b64 exec, 1\nbuffer_store_dword v1, off, s[{SWT}:{SWT+3}], s{sWB} sc1\ns_mov_b64 exec, -1")
    persist_regs(b)
    b(f"""v_mov_b32 v{VONE}, 1
    s_and_b32 s70, s{sWAVE}, 1
    s_mul_i32 s70, s70, 3072
    s_sub_u32 s71, 3072, s70
    v_add_u32 v{VPW}, s70, v{VLN}
    v_add_u32 v{VPW+1}, s71, v{VLN}
    s_lshr_b32 s70, s{sWAVE}, 1
    s_mul_i32 s70, s70, 3072
    s_sub_u32 s71, 3072, s70
    v_add_u32 v{VPO}, s70, v{VLN}
    v_add_u32 v{VPO+1}, s71, v{VLN}""")
    i16 = T0 + 7; r_ = T0 + 8; c4 = T0 + 9
    b(f"""v_and_b32 v{i16}, 15, v{lane}
    v_lshrrev_b32 v{r_}, 2, v{i16}
    v_and_b32 v{c4}, 3, v{lane}
    v_lshlrev_b32 v{t1}, 7, v{i16}
    v_add_u32 v{t1}, s{sXB}, v{t1}
    v_add_u32 v{t1}, 16384, v{t1}
    v_lshrrev_b32 v{t3}, 1, v{i16}""")
    for s in range(2):
        b(f"v_xor_b32 v{t2}, {4*s}, v{g_}")
        b(f"v_xor_b32 v{t2}, v{t2}, v{t3}")
        b(f"v_lshl_add_u32 v{XA+s}, v{t2}, 4, v{t1}\nv_add_u32 v{XA+2+s}, 65536, v{XA+s}")
    b(f"""v_lshl_add_u32 v{t1}, v{g_}, 3, v{r_}
    v_lshlrev_b32 v{t1}, 7, v{t1}
    v_lshl_add_u32 v{t1}, v{c4}, 4, v{t1}
    v_add_u32 v{t1}, 49152, v{t1}
    v_lshrrev_b32 v{t3}, 1, v{r_}""")
    for sp in range(2):
        b(f"v_xor_b32 v{t2}, {sp}, v{t3}")
        b(f"v_lshl_add_u32 v{WA+sp}, v{t2}, 6, v{t1}\nv_add_u32 v{WA+2+sp}, 65536, v{WA+sp}")
    if OPT.get('sstamps'): stamp(b)
    if not OPT.get('ord'): b.ext(w_dma(1, 4))
    if OPT.get('ord') != 1: b.ext(x_dma(1, 4))

def wave_code(b, nq, sfx):
    nx = 8 if nq == 4 else 6
    b(f"L_begin{sfx}:")
    if nq == 3:
        b(f"v_mov_b32 v{VHS}, 0\nv_lshlrev_b32 v{VCW}, 3, v{VLN}")
        b(f"buffer_store_dword v{VHS}, v{VCW}, s[{SIN}:{SIN+3}], 0 offen sc1 ; tag=INIT")
        b(f"s_mov_b32 s{sT}, 8192\nbuffer_store_dword v{VHS}, v{VCW}, s[{SIN}:{SIN+3}], s{sT} offen sc1 ; tag=INIT")
        b(f"s_mov_b32 s{sT}, 16384\nbuffer_store_dword v{VHS}, v{VCW}, s[{SIN}:{SIN+3}], s{sT} offen sc1 ; tag=INIT")
    stamp(b, 0)
    if OPT.get('fsq'):
        b(f"s_mov_b32 s{sFQ}, 0\nv_mov_b32 v{QFB}, {QFLAGS}\nv_lshl_add_u32 v{QFA}, s{sWAVE}, 2, v{QFB}")
    b("WAITV ; cover=X0,W0")
    b("s_barrier ; pub=X0,W0")
    b.ext(x_reads(0, nq))
    for T in (0, 1): b.ext(w_reads(0, T))
    b.ext(w_reads(0, 2)[:3])
    b("WAITL W0.0")
    stamp(b, 1)
    for n in range(0, 12): qproj_stage(b, n, nq)
    fill = []; post = []
    for sp in range(4):
        for q in range(nq):
            rs = [128 + 32 * q + 8 * sp + 2 * i_ for i_ in range(4)]
            for r in rs: fill += [f"v_mul_f32 v{r}, s{sC}, v{r}", f"v_mul_f32 v{r+1}, s{sC}, v{r+1}"]
            for r in rs: fill.append(f"v_cvt_pk_bf16_f32 v{r}, v{r}, v{r+1}")
            for i_, r in enumerate(rs): fill.append(f"v_accvgpr_write_b32 a{AQ(q) + 4*sp + i_}, v{r}")
    for n in range(12, 18): qproj_stage(b, n, nq, fill if n >= 16 else None)
    stamp(b, 2)
    conv2 = []
    for q in range(nq):
        for h in range(8):
            r = 128 + 32 * q + 4 * h
            conv2 += [f"v_accvgpr_read_b32 v{4+i_}, a{r+i_}" for i_ in range(4)]
            conv2 += [f"v_mul_f32 v{4+i_}, s{sC}, v{4+i_}" for i_ in range(4)]
            conv2 += ["v_cvt_pk_bf16_f32 v4, v4, v5", "v_cvt_pk_bf16_f32 v6, v6, v7",
                      f"v_accvgpr_write_b32 a{AQ2(q)+2*h}, v4", f"v_accvgpr_write_b32 a{AQ2(q)+2*h+1}, v6"]
    def pre_mfma(): return [qk(q, 0, s_, czero=True) for q in range(nq) for s_ in range(4)]
    def pre_max():
        t = B()
        for q in range(nq):
            s_ = S_ + 8 * q
            t(f"v_max3_f32 v{s_}, v{s_}, v{s_+1}, v{s_+2}")
        for q in range(nq):
            s_ = S_ + 8 * q
            t(f"v_max_f32 v{s_}, v{s_}, v{s_+3}")
        xlane_reduce_multi(t, [S_ + 8 * q for q in range(nq)], [T0 + q for q in range(nq)], "v_max_f32")
        for q in range(nq):
            for r in range(4): t(f"v_sub_f32 v{CI+4*q+r}, 0, v{S_+8*q}")
        return t.L
    def weave(mf, st, per):
        for x in mf:
            b(x)
            for _ in range(per):
                if st: b(st.pop(0))
    def zipper(a_, b_, ra, rb):
        out = []
        while a_ or b_:
            for _ in range(ra):
                if a_: out.append(a_.pop(0))
            for _ in range(rb):
                if b_: out.append(b_.pop(0))
        return out
    b.ext(k_reads(0, 0))
    b.ext(fill)
    b(f"v_and_b32 v4, 3, v0\nv_mov_b32 v5, 0x3f803f80\nv_cmp_eq_u32 vcc, 0, v4")
    for i_ in range(4): b(f"v_cndmask_b32 v{ONES+i_}, 0, v5, vcc")
    b("s_waitcnt lgkmcnt(0)")
    if OPT.get('wts'):
        mv = [f"v_mov_b32 v{192+i_}, v{WOF+i_}" for i_ in range(36)]
        b.ext(mv[:8])
        mv = mv[8:]
        weave(pre_mfma()[:8], mv, 4)
        b.ext(mv); b.ext(pre_mfma()[8:])
    else: b.ext(pre_mfma())
    b.ext(pre_max())
    stamp(b, 3)
    for i_ in range(OPT.get('pause', 0)): b('s_sleep 32')
    if OPT.get('skew'):
        b(f"s_lshr_b32 s{sT}, s97, 3\ns_and_b32 s{sT}, s{sT}, 7\nL_skew{sfx}:\ns_cmp_eq_u32 s{sT}, 0\ns_cbranch_scc1 L_skewd{sfx}\ns_sleep {OPT['skew']}\ns_sub_u32 s{sT}, s{sT}, 1\ns_branch L_skew{sfx}\nL_skewd{sfx}:")
    adv8 = lambda x: x
    def head_start(hd):
        b(f"s_cmp_lg_u32 s{sSAFE}, 0\ns_cbranch_scc1 L_maxpass{sfx}\nL_maxdone{hd}{sfx}:")
        if not LM:
            for q in range(nq): b(f"v_mov_b32 v{LS+q}, 0")
        stamp(b)
    if OPT.get('wtp') == 2 and nq == 3: b("WAITV ; cover=WT\nbuffer_wbl2 sc1 ; tag=WT")
    if OPT.get('pz'): b(f"s_mov_b32 s{sPW}, 99\ns_mov_b32 s{sPZ}, 0")
    if OPT.get('pz') and nq == 3: b(f"v_bfe_u32 v{VPA}, v0, 2, 2\nv_xor_b32 v{VPA}, 3, v{VPA}\nv_lshlrev_b32 v{VPA}, 7, v{VPA}\nv_sub_u32 v{VPA}, v{VPE}, v{VPA}")
    head_start(0)
    per = -(-len(conv2) // 8); tot_ = len(conv2)
    for k in range(8):
        ex = []
        if k == 0 and OPT.get('wts'):
            for i_ in range(8 if OPT.get('fsq') else 9):
                g = 2 + 7 * i_
                if i_ < 8: ex.append((g - 1, f"s_add_u32 s{sT+1}, s{sWB}, {16384*(i_//4)}"))
                else: ex += [(g - 2, f"s_lshl_b32 s{sT+1}, s{sWAVE}, 10"), (g - 1, f"s_add_u32 s{sT+1}, s{sT+1}, 32768")]
                ex.append((g, f"buffer_store_dwordx4 {vr(192+4*i_,4)}, v{VLN}, s[{SWT}:{SWT+3}], s{sT+1} offen offset:{1024*(i_%4) if i_ < 8 else 0} sc1 ; tag=WT"))
        if OPT.get('fsq'):
            A9 = 192 if nq == 4 else 224
            if k == 1: ex += [(5, f"s_mov_b32 m0, s{sWTS}"), (6, dma(VWX, SWO, "0", 0, fl('nt_wo'), "W9X"))]
            if k == 6: ex += [(3, "WAITV ; cover=W9X"), (4, f"ds_read_b64_tr_b16 {ar(A9,2)}, v{VWE} offset:0"), (5, f"ds_read_b64_tr_b16 {ar(A9+2,2)}, v{VWE} offset:512")]
            if k == 7: ex += [(4, f"s_lshl_b32 s{sT+1}, s{sWAVE}, 10"), (5, f"s_add_u32 s{sT+1}, s{sT+1}, 32768"),
                              (25, f"buffer_store_dwordx4 {ar(A9,4)}, v{VLN}, s[{SWT}:{SWT+3}], s{sT+1} offen sc1 ; tag=WT")]
        if k == 6 and nq == 3:
            ex += [(46, "WAITV ; cover=HS"), (47, f"v_readfirstlane_b32 s{sT}, v{VHS}\ns_cmp_eq_u32 s{sT}, 0\ns_cbranch_scc1 L_hspin\nL_hsok:")]
        cnt_ = per
        if OPT.get('front'): cnt_ = -(-tot_ * {1: (8, 8, 7, 7, 6, 5, 4, 3), 2: (3, 4, 5, 6, 7, 7, 8, 8), 3: (12, 12, 12, 12, 0, 0, 0, 0)}[OPT['front']][k] // 48)
        attn_stage(b, k, nq, ex, fill=[conv2.pop(0) for _ in range(min(cnt_, len(conv2)))])
    b(f"L_atin{sfx}:")
    b(f"s_mov_b32 s{sCNT}, 0")
    b(f".p2align 3\nL_at{sfx}:")
    b("LOOPBEGIN at 3 8")
    for k in range(8, 16):
        ex = []
        if k == 11 and nq == 3 and not OPT.get('pz'):
            ex = [(59, f"""s_xor_b32 s{sT+1}, s{sHEAD}, 1
            s_or_b32 s{sT}, s{sCNT}, s{sT+1}
            s_cbranch_scc0 L_sig
            L_nosig:""")]
        if OPT.get('pz') and nq == 3:
            if k == 11: ex = [(58, f"s_cmp_eq_u32 s{sPW}, 99"), (60, f"s_cbranch_scc1 L_nop3\nbuffer_load_dword v{VCW}, v{VPA}, s[{SCN}:{SCN+3}], 0 offen sc1 ; cond\nL_nop3:")]
            if k == 13: ex = [(BG + 1, f"s_getreg_b32 s{sST}, hwreg(HW_REG_IB_STS)")]
            if k == 15:
                ex = [(BG - 1, f"""v_cmp_gt_u32 vcc, v{VTH}, v{VCW}
                v_mov_b32 v5, {DEC}
                s_and_b32 s{sT}, s{sST}, 15
                s_lshr_b32 s{sT+1}, s{sST}, 30
                s_lshl_b32 s{sT+1}, s{sT+1}, 4
                s_or_b32 s{sT}, s{sT}, s{sT+1}
                s_cmp_ge_u32 s{sT}, {OPT.get('pzt', 0)}
                s_cselect_b32 s{sT}, 1, 0
                s_cmp_eq_u64 vcc, 0
                s_cselect_b32 s{sT}, s{sT}, 0
                v_mov_b32 v4, s{sT}
                ds_write_b32 v5, v4
                s_waitcnt lgkmcnt(0)""")]
        if k == 9 and OPT.get('pz'): b(f"L_at1{sfx}:")
        if k == 15:
            if OPT.get('pz'): ex += [(NS - 4, f"s_add_u32 s{sCNT}, s{sCNT}, 1"), (NS - 2, f"s_cmp_ge_u32 s{sCNT}, s{sPW}")]
            else: ex += [(NS - 6, f"s_add_u32 s{sCNT}, s{sCNT}, 1"), (NS - 4, f"s_add_u32 s{sT}, s{sCNT}, s{sHEAD}"), (NS - 2, f"s_cmp_lt_u32 s{sT}, 3")]
        attn_stage(b, k, nq, ex)
    if OPT.get('pz'): b(f"s_cbranch_scc1 L_pchk{sfx}\nL_pret{sfx}:\ns_add_u32 s{sT}, s{sCNT}, s{sHEAD}\ns_cmp_lt_u32 s{sT}, 3")
    if OPT.get('midgap'):
        b(f"s_cselect_b32 s{sT+1}, 1, 0\ns_lshl_b32 s{sT}, s{sHEAD}, 4\ns_add_u32 s{sT}, s{sT}, s{sCNT}\ns_cmp_eq_u32 s{sT}, {OPT.get('midat', 1)}\ns_cbranch_scc0 L_ng{sfx}")
        for i_ in range(OPT['midgap']): b("s_sleep 16")
        b(f"L_ng{sfx}:\ns_cmp_eq_u32 s{sT+1}, 1")
    b(f"s_cbranch_scc1 L_at{sfx}")
    b("LOOPEND at")
    b(f"L_atx{sfx}:")
    b(f"s_cmp_lg_u32 s{sHEAD}, 0\ns_cbranch_scc1 L_fin{sfx}")

    def lsum(qs):
        t = B()
        if not LM: xlane_reduce_multi(t, [LS + q for q in qs], [T0 + 4 + q for q in qs], "v_add_f32")
        for q in qs:
            src = LA + 4 * q if LM else LS + q
            t(f"v_cmp_ngt_f32 vcc, {LTHR}, v{src}")
            t(f"v_rcp_f32 v{LS+q}, v{src}")
            t(f"s_or_b32 s{sFLAG}, s{sFLAG}, vcc_lo\ns_or_b32 s{sFLAG}, s{sFLAG}, vcc_hi")
        return t.L
    cnt = [0]
    def onorm(q, pk, flag, inplace=False, so=None):
        out = []
        for sp in range(4):
            d = P_ + 4 * (cnt[0] % 2); cnt[0] += 1
            if inplace: d = O_ + 32 * q + 8 * sp
            rs = [O_ + 32 * q + 8 * sp + 2 * i_ for i_ in range(4)]
            for r in rs:
                if pk and OPT.get('pk', 1): out.append(f"v_pk_mul_f32 v[{r}:{r+1}], v[{r}:{r+1}], v[{LS+q-(q%2)}:{LS+q-(q%2)+1}] op_sel:[0,{q%2}] op_sel_hi:[1,{q%2}]")
                else: out += [f"v_mul_f32 v{r}, v{r}, v{LS+q}", f"v_mul_f32 v{r+1}, v{r+1}, v{LS+q}"]
            for i_, r in enumerate(rs): out.append(f"v_cvt_pk_bf16_f32 v{d+i_}, v{r}, v{r+1}")
            if flag is None:
                for i_ in range(4): out.append(f"v_accvgpr_write_b32 a{AST+16*q+4*sp+i_}, v{d+i_}")
                continue
            if so:
                out[-1] += f"\ns_add_u32 s{sT+1}, s{so}, {sp*122880}\nbuffer_store_dwordx4 {vr(d,4)}, v{VO}, s[{SO}:{SO+3}], s{sT+1} offen offset:{1024*q}{flag}"
                continue
            out.append(f"s_add_u32 s{sT}, s{sOO}, {sp*122880}")
            out.append(f"buffer_store_dwordx4 {vr(d,4)}, v{VO}, s[{SO}:{SO+3}], s{sT} offen offset:{1024*q}{flag}")
        return out
    def drain(st, ld=None, every=1):
        slots = []; gaps = [[] for _ in range(18)]
        for q in (2, 3):
            for T in range(8): slots.append(pv(q, T) if q < nq else None)
            slots.append(lsm(q) if (q < nq and LM) else None)
        rem = sorted(sm_items(nq, NS, 2 * NS), key=lambda t: t[0])
        b.ext([sm_text(*k_) for g, k_ in rem if k_[1] == 2 and k_[0] != 'add'])
        crit = sorted([k_ for g, k_ in rem if k_[1] == 3 and k_[0] != 'add'], key=lambda k_: (k_[2], k_[0] == 'cvt'))
        g = 0
        for k_ in crit:
            if k_[0] == 'exp' and gaps[min(g, 6)]: g += 1
            gaps[min(g, 6)].append(sm_text(*k_))
            if k_[0] == 'exp' or len(gaps[min(g, 6)]) == 2: g += 1
        late = [sm_text(*k_) for g_, k_ in rem if k_[0] == 'add']
        for i_, x in enumerate(late): gaps[min(9 + i_ // 2, 16) if nq == 4 else 0].append(x)
        for g in range(18):
            if slots[g] is None: continue
            room = 2 - sum(2 if 'exp' in x else 1 for x in gaps[g])
            while room > 0 and st: gaps[g].append(st.pop(0)); room -= 1
        for i_, s_ in enumerate(slots):
            if s_: b(s_)
            if s_ and ld and (i_ % every == 0 or nq == 3):
                b(ld.pop(0))
                while ld and ld[0].startswith("s_"): b(ld.pop(0))
            b.ext(gaps[i_])
    hi = list(range(2, nq))
    movs = [f"v_accvgpr_mov_b32 a{AQ(q)+i_}, a{AQ2(q)+i_}" for q in range(nq) for i_ in range(16)]
    f0 = None if OPT.get('defer') else K2F[OPT.get('of0', 2)] + ' ; tag=WT'
    if OPT.get('wtp') == 1 and nq == 3: b("buffer_wbl2 sc1 ; tag=WT")
    st = lsum([0, 1]) + onorm(0, False, f0)
    SW2_ = OPT.get('sw2', 0)
    if SW2_:
        ld = []
        D_ = OPT.get('dist', 5 if OPT.get('fsa') else 6)
        if OPT.get('pair'):
            b(f"s_add_u32 s{sT+1}, s{sKV}, 8192")
            ld = k_dma(38) + k_dma(39, f"s{sT+1}") + v_dma(38) + v_dma(39, f"s{sT+1}") + adv2(sT + 1)
        else:
            for t in (32 + D_, 33 + D_): ld += k_dma(t) + v_dma(t) + kv_adv()
        b(ld.pop(0))
        ld2 = []
        for x in ld: ld2 += [x] if x.startswith('s_') else [x, 'v_nop']
        ld2 = [x for x in ld]
        drain(st, ld2, 2)
    else: drain(st)
    stamp(b, 4)
    b.ext(zipper(st, lsum(hi), 2, 1))
    b.ext(movs)
    st = onorm(1, False, f0)
    weave(pre_mfma(), st, 3 if nq == 4 else 4)
    b.ext(st)
    rest = []; late_ = []
    for q in hi:
        if SW2_ >= 2: late_ += onorm(q, False, f0, inplace=True, so=sOP)
        else: rest += onorm(q, True, f0)
    b.ext(zipper(rest, pre_max(), 2, 1))
    b.ext(vote_write())
    b(f"s_mov_b32 s{sOP}, s{sOO}\ns_add_u32 s{sOO}, s{sOO}, {4*122880}\ns_mov_b32 s{sHEAD}, 1")
    if OPT.get('emub'):
        b(f"s_and_b32 s{sT}, s97, 3\ns_cmp_eq_u32 s{sT}, s{sCNT}" if False else "")
        b(f"s_mov_b32 s{sT}, 0\nL_duma{sfx}:")
        for i_ in range(64):
            if (i_ // 2) % 4 >= nq: continue
            b(f"{MF} a[{192+4*(i_//2%16)}:{195+4*(i_//2%16)}], a[{4*(i_%8)}:{4*(i_%8)+3}], a[{32+4*(i_%7)}:{35+4*(i_%7)}], a[{192+4*(i_//2%16)}:{195+4*(i_//2%16)}]")
            if i_ % 2 == 0: b(f"ds_read_b64_tr_b16 v[4:5], v{VA + i_ % 8} offset:{(i_ % 16) * 4096}")
        b(f"s_waitcnt lgkmcnt(0)\ns_barrier\ns_add_u32 s{sT}, s{sT}, 1\ns_cmp_lt_u32 s{sT}, 8\ns_cbranch_scc1 L_duma{sfx}")
    if OPT.get('pz'):
        b(f"""s_and_b32 s{sT}, s97, 7
        s_lshl_b32 s{sT}, s{sT}, 2
        s_lshr_b32 s{sPW}, {OPT.get('pzc', 0x10210210):#x}, s{sT}
        s_and_b32 s{sPW}, s{sPW}, 15
        s_or_b32 s{sT}, s{sIDLE}, s{sSAFE}
        s_cselect_b32 s{sPW}, 0, s{sPW}
        s_cmp_eq_u32 s{sPW}, 0
        s_cselect_b32 s{sPW}, 99, s{sPW}""")
    head_start(1)
    dst = [(q, sp) for q in range(nq) for sp in range(4)] if OPT.get('defer') else []
    for k in range(32, 40):
        ex = []
        for g in (24, 25):
            if dst:
                q, sp = dst.pop(0)
                ex += [(g, f"s_add_u32 s{sT+1}, s{sOP}, {sp*122880}"),
                       (g, f"buffer_store_dwordx4 {ar(AST+16*q+4*sp,4)}, v{VO}, s[{SO}:{SO+3}], s{sT+1} offen offset:{1024*q} sc1 ; tag=WT")]
        if k == 39 and nq == 3 and OPT.get('pz'): ex.append((59, "s_branch L_sig\nL_nosig:"))
        attn_stage(b, k, nq, ex, fill=late_ if k == 32 else None)
    b(f"s_branch L_atin{sfx}")
    b("REPLAY at 32 2")
    b(f"L_fin{sfx}:")
    f1 = K2F[OPT.get('of', 0)]
    early = p2_w(0) + p2_o(0) + p2_adv(0) + p2_w(1) + p2_o(1) + p2_adv(1)
    if OPT.get('pre8'): early += (p2_w(2) + p2_o(2))[:8]
    for k in range(56, 64):
        ex = []
        if k == 56: ex = [(6, f"buffer_load_dword v{VCW}, v{VPE}, s[{SCN}:{SCN+3}], 0 offen sc1 ; tag=CW")]
        if k == 59: ex = [(NS - 3, f"WAITV ; cover=CW\nv_cmp_gt_u32 vcc, v{VTH}, v{VCW}\ns_cbranch_vccnz L_espin{sfx}\nL_eok{sfx}:" + (f"\ns_cmp_eq_u32 s{sPZ}, 0\ns_cselect_b64 vcc, -1, 0" if OPT.get('pz') else ""))]
        if k == 57 and OPT.get('pz'): b(f"L_t57{sfx}:")
        if k >= 60:
            for g in ((3, 7, 11, 17, 23, 33, 38, 55) if OPT.get('pre8') else (3, 7, 11, 17, 23, 45 if LM else 44)):
                if OPT.get('pz'):
                    t_ = [early.pop(0) + " condp"]
                    while early and early[0].startswith("s_"): t_.append(early.pop(0))
                    ex.append((g, f"s_cbranch_vccz L_sk{k}_{g}{sfx}\n" + "\n".join(t_) + f"\nL_sk{k}_{g}{sfx}:"))
                    continue
                ex.append((g, early.pop(0)))
                while early and early[0].startswith("s_"): ex.append((g + 1, early.pop(0)))
        attn_stage(b, k, nq, ex)
    assert not early
    p2 = []
    for s_ in (2, 3): p2 += p2_w(s_) + p2_o(s_) + p2_adv(s_)
    if OPT.get('pre8'): p2 = p2[8:]
    st = lsum([0, 1]) + onorm(0, False, f1)
    drain(st, p2)
    stamp(b, 4)
    body = st + zipper(onorm(1, True, f1), lsum(hi), 2, 1)
    for q in hi: body += onorm(q, True, f1)
    body = [x + " ; tag=OS" if x.startswith("buffer_store") else x for x in body]
    nld = sum(1 for x in p2 if x.startswith("buffer_"))
    per = max(1, len(body) // (nld + 2))
    seq = []
    while body or p2:
        if p2:
            seq.append(p2.pop(0))
            while p2 and p2[0].startswith("s_"): seq.append(p2.pop(0))
        for _ in range(per):
            if body: seq.append(body.pop(0))
    outst = 48 - nld
    for x in seq:
        if x.startswith("buffer_"):
            if outst >= 62: b("s_waitcnt vmcnt(52)"); outst = 52
            outst += 1
        b(x)
    b.ext(vote_write())
    stamp(b)
    if OPT.get('pz'): b(f"s_cmp_eq_u32 s{sPZ}, 1\ns_cbranch_scc1 L_p2p{sfx}\nALTFROM p")
    b(f"L_p2s{sfx}:")
    for s_ in range(4): p2_step(b, s_, s_ == 0, True, f"WAITV ; cover=P{s_} cap=51")
    b("WAITV lgkmcnt(0) ; cover=OS")
    b("s_branch L_vote")
    b(f"""L_espin{sfx}:
    s_mov_b32 s{sLATE}, 1
    s_mov_b32 s{SO2+2}, 0
    s_mov_b32 s{SW2+2}, 0
    s_branch L_eok{sfx}""")
    if nq == 3:
        b(f"""L_sig:
        v_mov_b32 v4, {131072+7168}
        ds_read_b128 v[4:7], v4
        s_waitcnt lgkmcnt(0)
        v_or_b32 v4, v4, v5
        v_or3_b32 v4, v4, v6, v7
        v_readfirstlane_b32 s{sT}, v4
        s_mov_b64 exec, 1
        s_cmp_lg_u32 s{sSAFE}, 0
        s_cselect_b32 s{sT}, 0, s{sT}
        s_cbranch_scc1 L_sig1
        buffer_atomic_add v{VONE}, off, s[{SCN}:{SCN+3}], s{sCW} sc1
        L_sig1:
        s_or_b32 s{sT}, s{sT}, s{sSIG}
        s_cbranch_scc1 L_sig2
        s_add_u32 s{sT}, s{sCO}, 16384
        s_mov_b32 s{sSIG}, 1
        buffer_atomic_add v{VONE}, off, s[{SCN}:{SCN+3}], s{sT} sc1
        L_sig2:
        s_mov_b64 exec, -1
        s_branch L_nosig""")
        b(f"""L_hspin:
        s_mov_b32 s{sCNT}, 0
        L_hsp:
        s_sleep 8
        buffer_load_dword v{VHS}, off, s[{SDB}:{SDB+3}], 0 sc1
        s_waitcnt vmcnt(0)
        v_readfirstlane_b32 s{sT}, v{VHS}
        s_add_u32 s{sCNT}, s{sCNT}, 1
        s_lshr_b32 s{sT+1}, s{sCNT}, 17
        s_or_b32 s{sT}, s{sT}, s{sT+1}
        s_cmp_eq_u32 s{sT}, 0
        s_cbranch_scc1 L_hsp
        s_branch L_hsok""")
    for uid in QSPINS:
        b(f"""L_fs{uid}:
        ds_read_b128 {vr(QF,4)}, v{QFB}
        s_waitcnt lgkmcnt(0)
        v_min3_u32 v{QF}, v{QF}, v{QF+1}, v{QF+2}
        v_min_u32 v{QF}, v{QF}, v{QF+3}
        v_cmp_gt_u32 vcc, s{sFQ}, v{QF}
        s_cbranch_vccnz L_fs{uid}
        s_branch L_fr{uid}""")
    QSPINS.clear()
    for uid in SPINS:
        b(f"""L_fs{uid}:
        ds_read_b128 {vr(FQ,4)}, v{VFB}
        s_waitcnt lgkmcnt(0)
        v_min3_u32 v{FQ}, v{FQ}, v{FQ+1}, v{FQ+2}
        v_min_u32 v{FQ}, v{FQ}, v{FQ+3}
        v_cmp_gt_u32 vcc, s{sFV}, v{FQ}
        s_cbranch_vccnz L_fs{uid}
        s_branch L_fr{uid}""")
    SPINS.clear()
    if OPT.get('pz'):
        b(f"""L_pchk{sfx}:
        v_mov_b32 v5, {DEC}
        ds_read_b32 v4, v5
        s_waitcnt lgkmcnt(0)
        v_readfirstlane_b32 s{sT}, v4
        s_cmp_eq_u32 s{sT}, 0
        s_cbranch_scc1 L_pret{sfx}
        s_mov_b32 s{sPW}, 99
        s_mov_b32 s{sPZ}, 1""")
        w_, o_, a_ = pz_loads(0, 0)
        ld = w_ + o_ + a_
        drain([], ld)
        b.ext(ld)
        w_, o_, a_ = pz_loads(1, 1)
        b.ext(w_ + o_ + a_)
        b("s_branch L_pz")
        b(f"L_pzr{sfx}:")
        b.ext([x.split(';')[0] for x in k_reads(0, 0)])
        b("s_waitcnt lgkmcnt(0)")
        t_ = B(); attn_stage(t_, 8, nq, resume=True); b.ext([x.split(';')[0] for x in t_.L])
        b(f"s_cmp_eq_u32 s{sCNT}, 1\ns_cbranch_scc1 L_at1{sfx}\ns_branch L_t57{sfx}")
        b(f"ALTBEGIN p\nL_p2p{sfx}:")
        b(f"s_add_u32 s{sT}, s{sXB}, 131072\nv_add_u32 v5, s{sT}, v{VLN}")
        for i_ in range(4): b(f"ds_read_b128 {vr(240+4*i_,4)}, v5 offset:{1024*i_}")
        l0 = p2_w(0) + p2_o(0) + p2_adv(0); l1 = p2_w(1) + p2_o(1) + p2_adv(1)
        for i_ in range(128):
            b(f"v_accvgpr_read_b32 v{112+i_}, a{128+i_}")
            if i_ >= 64 and i_ % 4 == 3 and l0:
                b(l0.pop(0))
                while l0 and l0[0].startswith("s_"): b(l0.pop(0))
        b("WAITV ; cover=P2 cap=40")
        b.ext(l1)
        b("s_waitcnt lgkmcnt(0)")
        for s_ in (2, 3): p2_step(b, s_, False, True, f"WAITV ; cover=P{s_} cap=51")
        b("WAITV lgkmcnt(0) ; cover=OS")
        b("s_branch L_vote\nALTEND p")
    b(f"L_maxpass{sfx}:")
    for q in range(nq): b(f"v_mov_b32 v{T0+8+q}, 0xff800000")
    for s2 in range(4): b(f"v_add_u32 v{T0+12+s2}, 147456, v{KA+s2}")
    b(f"s_lshl_b32 s{sT}, s{sHEAD}, 18\ns_mov_b32 s{sCNT}, 0")
    b(f"L_mp{sfx}:")
    b(f"s_barrier\ns_add_u32 m0, s{sKB}, 147456")
    b(dma(DK0, SK, f"s{sT}", 0, "", "MP")); b(dma(DK1, SK, f"s{sT}", 1024, "", "MP"))
    b("s_waitcnt vmcnt(0)\ns_barrier")
    for kt in range(2):
        for s in range(4):
            b(f"ds_read_b128 {ar(ASP+4*(4*kt+s),4)}, v{T0+12+s} offset:{kt*4096}")
    b("s_waitcnt lgkmcnt(0)")
    for q in range(nq):
        for kt in range(2):
            for s in range(4):
                d = vr(S_ + 8 * q + 4 * kt, 4)
                b(f"{MF} {d}, {ar(ASP+4*(4*kt+s),4)}, {ar(AQ(q)+4*s,4)}, {d if s else '0'}")
    for q in range(nq):
        for e in range(0, 8, 2): b(f"v_max3_f32 v{T0+8+q}, v{T0+8+q}, v{S_+8*q+e}, v{S_+8*q+e+1}")
    b(f"s_add_u32 s{sT}, s{sT}, 8192\ns_add_u32 s{sCNT}, s{sCNT}, 1\ns_cmp_lt_u32 s{sCNT}, 32\ns_cbranch_scc1 L_mp{sfx}")
    b("s_barrier")
    xlane_reduce_multi(b, [T0 + 8 + q for q in range(nq)], [T0 + q for q in range(nq)], "v_max_f32")
    for q in range(nq):
        for r in range(4): b(f"v_sub_f32 v{CI+4*q+r}, 0, v{T0+8+q}")
    b(f"s_cmp_eq_u32 s{sHEAD}, 0\ns_cbranch_scc1 L_maxdone0{sfx}\ns_branch L_maxdone1{sfx}")

FA = [144, 192, 0, 96]
def p2_reg(slot, i):
    if OPT.get('pre8'):
        if slot == 2: return 128 + 4 * i if i < 4 else (240 + 4 * (i - 4) if i < 8 else 4 * (i - 8))
        if slot == 3: return 16 + 4 * i
    if slot == 3: return 48 + 4 * i if i < 4 else 96 + 4 * (i - 4)
    return FA[slot] + 4 * i
def pz_reg(slot, i):
    return ar((0, 64)[slot] + 4 * i, 4) if i < 8 else vr((32, 48)[slot] + 4 * (i - 8), 4)
def pz_acc(t): return ar(128 + 4 * t, 4) if t < 32 else vr(16 + 4 * (t - 32), 4)
def pz_loads(slot, L):
    f = K2F[OPT.get('p2f', 2)]
    w = [f"buffer_load_dwordx4 {pz_reg(slot, i)}, v{VPW + i//3}, s[{SW2}:{SW2+3}], s{sW2} offen offset:{1024*(i%3)}{f}" for i in range(6)]
    o = [f"buffer_load_dwordx4 {pz_reg(slot, 6+i)}, v{VPO + i//3}, s[{SO2}:{SO2+3}], s{sO2} offen offset:{1024*(i%3)}{f}" for i in range(6)]
    return w, o, p2_adv(L % 4)
VPW = 2; VPO = 8
def p2_w(slot): return [f"buffer_load_dwordx4 {ar(p2_reg(slot, i),4)}, v{VPW + i//3}, s[{SW2}:{SW2+3}], s{sW2} offen offset:{1024*(i%3)}{K2F[OPT.get('p2wf', OPT.get('p2f', 2))]} ; tag=P{slot}" for i in range(6)]
def p2_o(slot): return [f"buffer_load_dwordx4 {ar(p2_reg(slot, 6+i),4)}, v{VPO + i//3}, s[{SO2}:{SO2+3}], s{sO2} offen offset:{1024*(i%3)}{K2F[OPT.get('p2f', 2)]} ; tag=P{slot}" for i in range(6)]
def p2_adv(slot):
    m = 5 if slot == 3 else 1
    out = [f"s_add_u32 s{sO2}, s{sO2}, {m*122880}", f"s_add_u32 s{sW2}, s{sW2}, {m*36864}"]
    if slot == 3 and OPT.get('krot'):
        out += ["s_add_u32 s93, s93, 1", "s_and_b32 s93, s93, 3", "s_cselect_b32 s94, 0, 32", "s_mul_i32 s95, s94, 122880",
                f"s_sub_u32 s{sO2}, s{sO2}, s95", "s_mul_i32 s95, s94, 36864", f"s_sub_u32 s{sW2}, s{sW2}, s95"]
    return out
def p2_init():
    if OPT.get('s2t'): return f"s_mul_i32 s{sO2}, s92, {32*122880}\ns_mul_i32 s{sW2}, s92, {32*36864}"
    if not OPT.get('krot'): return f"s_mul_i32 s{sO2}, s{sWAVE}, {32*122880}\ns_mul_i32 s{sW2}, s{sWAVE}, {32*36864}"
    return f"s_lshl_b32 s93, s{sWAVE}, 2\ns_add_u32 s93, s93, s92\ns_mul_i32 s{sO2}, s93, {8*122880}\ns_mul_i32 s{sW2}, s93, {8*36864}\ns_mov_b32 s93, s92"

def vote_write():
    return [f"v_mov_b32 v4, s{sFLAG}", f"s_lshl_b32 s{sT}, s{sWAVE}, 2", f"s_add_u32 s{sT}, s{sT}, {131072+7168}",
            f"v_mov_b32 v5, s{sT}", "ds_write_b32 v5, v4"]

P2ACC = 112
def p2_acc(q, n): return P2ACC + 4 * (6 * q + n)
def p2_step(b, slot, first, prefetch, wait, order=None, extra=None):
    b(wait)
    order = order or [(q, n) for q in range(6) for n in range(6)]
    slots = []; gaps = [[] for _ in range(36)]
    for q, n in order:
        a_ = vr(p2_acc(q, n), 4)
        slots.append(f"{MF} {a_}, {ar(p2_reg(slot, n),4)}, {ar(p2_reg(slot, 6+q),4)}, {'0' if first else a_}")
    if prefetch:
        o_, w_ = p2_o(slot), p2_w(slot)
        for q in range(6): gaps[6 * q + 5].append(o_[q])
        for n in range(6): gaps[30 + n].append(w_[n])
        gaps[35] += p2_adv(slot)
    for g, x in (extra or []): gaps[g].append(x)
    emit_slots(b, slots, gaps)

def phase2(b):
    D = 4
    acc = p2_acc
    def step(slot, first, prefetch, N, order=None, extra=None): p2_step(b, slot, first, prefetch, f"s_waitcnt vmcnt({N})", order, extra)
    b(f"""L_vote:
    s_cmp_eq_u32 s{sLATE}, 2
    s_cbranch_scc1 L_go
    v_mov_b32 v5, {131072+7168}
    s_barrier
    ds_read_b128 v[16:19], v5
    s_waitcnt lgkmcnt(0)
    v_or_b32 v16, v16, v17
    v_or3_b32 v16, v16, v18, v19
    v_readfirstlane_b32 s{sT}, v16
    s_cmp_lg_u32 s{sSAFE}, 0
    s_cselect_b32 s{sT}, 0, s{sT}
    s_cmp_lg_u32 s{sT}, 0
    s_cbranch_scc1 L_redo
    s_cmp_eq_u32 s{sWAVE}, 3
    s_cbranch_scc0 L_nosig2
    s_mov_b64 exec, 1
    buffer_atomic_add v{VONE}, off, s[{SCN}:{SCN+3}], s{sCO} sc1
    s_mov_b64 exec, -1
    L_nosig2:""")
    stamp(b)
    b(f"""s_cmp_eq_u32 s{sIDLE}, 1
    s_cbranch_scc1 L_fini
    s_cmp_eq_u32 s{sLATE}, 1
    s_cbranch_scc1 L_lateld
    L_go:
    s_xor_b32 s70, s{sWAVE}, 1
    s_mul_i32 s70, s70, 27648
    v_add_u32 v16, s70, v{VLN}
    s_xor_b32 s70, s{sWAVE}, 2
    s_mul_i32 s70, s70, 27648
    s_add_u32 s70, s70, 9216
    v_add_u32 v17, s70, v{VLN}
    s_xor_b32 s70, s{sWAVE}, 3
    s_mul_i32 s70, s70, 27648
    s_add_u32 s70, s70, 18432
    v_add_u32 v18, s70, v{VLN}
    s_mul_i32 s70, s{sWAVE}, 27648
    v_add_u32 v19, s70, v{VLN}
    v_and_b32 v20, 15, v0
    v_mul_u32_u24 v20, 96, v20
    v_bfe_u32 v21, v0, 4, 2
    v_lshl_add_u32 v20, v21, 3, v20
    v_add_u32 v20, s70, v20            ; bf16 staging write address: row*96 + g*8
    v_and_b32 v21, 63, v0
    s_mov_b32 s71, 0x2aab""")
    for r in range(5):
        b(f"""v_add_u32 v22, {64*r}, v21
        v_mul_u32_u24 v23, s71, v22
        v_lshrrev_b32 v23, 16, v23
        v_mul_u32_u24 v{42+r}, {2304 - 96}, v23
        v_lshl_add_u32 v{42+r}, v22, 4, v{42+r}""")
    b(f"""v_cmp_gt_u32 vcc, 32, v21
    v_mov_b32 v22, 0x7f000000
    v_cndmask_b32 v46, v22, v46, vcc
    s_mov_b32 s88, s{sOUT}
    s_mov_b32 s89, s{sOUT+1}
    s_mov_b32 s90, {8*240*1152*2}
    s_mov_b32 s91, 0x20000
    s_mov_b32 s36, 0
    {f"s_cmp_eq_u32 s{sPZ}, 1" if OPT.get('pz') else ""}
    {"s_cbranch_scc1 L_chk2" if OPT.get('pz') else ""}
    .p2align 3
    L_k2:""")
    for s_ in range(D):
        ex = [(0, f"buffer_load_dword v6, v{VP2}, s[{SCN}:{SCN+3}], 0 offen sc1")] if s_ == 0 else None
        step(s_, False, True, 36, extra=ex)
    b("""s_add_u32 s36, s36, 1
    s_cmp_eq_u32 s36, 2
    s_cbranch_scc1 L_chk
    L_chkd:
    s_cmp_lt_u32 s36, 6
    s_cbranch_scc1 L_k2""")
    b("L_tail:")
    for s_ in range(D - 1): step(s_, False, False, 12 * (D - 1 - s_))
    stamp(b)
    quad = lambda q, n: (q // 3) * 2 + (n // 3)
    oth = [(q, n) for d in (1, 2, 3) for q in range(6) for n in range(6) if quad(q, n) == d]
    mine = [(q, n) for q in range(3) for n in range(3)]
    wr = [(min(i_ + 5, 35), f"ds_write_b128 v{15 + quad(q, n)}, {vr(acc(q, n),4)} offset:{((q % 3) * 3 + n % 3) * 1024}") for i_, (q, n) in enumerate(oth)]
    step(D - 1, False, False, 0, order=oth + mine, extra=wr)
    if OPT.get('rstamps'): stamp(b)
    b("s_waitcnt lgkmcnt(0)\ns_barrier")
    if OPT.get('rstamps'): stamp(b)
    for t in range(9):
        for src in range(3):
            b(f"ds_read_b128 {vr(acc(*oth[3*t+src]),4)}, v19 offset:{src * 9216 + t * 1024}")
    for t, (q, n) in enumerate(mine):
        r0, r1, r2, m = acc(*oth[3*t]), acc(*oth[3*t+1]), acc(*oth[3*t+2]), acc(q, n)
        b(f"s_waitcnt lgkmcnt({min(15, 3 * (8 - t))})")
        for x_, y_ in ((r0, r1), (m, r2), (m, r0)):
            for r in (0, 2): b(f"v_pk_add_f32 v[{x_+r}:{x_+r+1}], v[{x_+r}:{x_+r+1}], v[{y_+r}:{y_+r+1}]")
        b(f"v_cvt_pk_bf16_f32 v{24+2*t}, v{m}, v{m+1}\nv_cvt_pk_bf16_f32 v{25+2*t}, v{m+2}, v{m+3}")
    for t, (q, n) in enumerate(mine):
        b(f"ds_write_b64 v20, v[{24+2*t}:{25+2*t}] offset:{q * 1536 + n * 32}")
    b("s_waitcnt lgkmcnt(0)")
    for r in range(5): b(f"ds_read_b128 {vr(48+4*r,4)}, v19 offset:{1024*r}")
    for r in range(5):
        b(f"s_waitcnt lgkmcnt({4-r})")
        b(f"buffer_store_dwordx4 {vr(48+4*r,4)}, v{42+r}, s[88:91], s{sOUTO} offen{K2F[OPT.get('outf', 0)]}")
    if OPT.get('rstamps'): stamp(b)
    b("L_fini:")
    if OPT.get('fixspan'):
        b(f"""s_waitcnt vmcnt(0)
        L_fix:
        s_memrealtime s[74:75]
        s_waitcnt lgkmcnt(0)
        s_sub_u32 s74, s74, s72
        s_cmp_lt_u32 s74, {OPT['fixspan'] * 100}
        s_cbranch_scc1 L_fix""")
    stamp_dump(b, 0, sWAVE)
    b("s_endpgm")
    if OPT.get('pz'):
        b("L_pz:")
        for j in range(10):
            sl = j % 2
            b(f"s_waitcnt vmcnt({12 if j < 9 else 0})")
            slots = []; gaps = [[] for _ in range(36)]
            for q in range(6):
                for n in range(6):
                    a_ = pz_acc(6 * q + n)
                    slots.append(f"{MF} {a_}, {pz_reg(sl, n)}, {pz_reg(sl, 6+q)}, {'0' if j == 0 else a_}")
            if j < 8:
                w_, o_, ad = pz_loads(sl, j + 2)
                for q in range(6): gaps[6 * q + 5].append(o_[q])
                for n in range(6): gaps[30 + n].append(w_[n])
                gaps[35] += ad
            emit_slots(b, slots, gaps)
        b(f"s_add_u32 s{sT}, s{sXB}, 131072\nv_add_u32 v5, s{sT}, v{VLN}\nv_mov_b32 v{VCW}, v{VTH}")
        for i_ in range(4): b(f"ds_write_b128 v5, {vr(16+4*i_,4)} offset:{1024*i_}")
        b(f"s_cmp_eq_u32 s{sWAVE}, 3\ns_cbranch_scc1 L_pzr3\ns_branch L_pzr4")
        b(f"""L_chk2:
        s_mov_b32 s36, 2
        buffer_load_dword v6, v{VP2}, s[{SCN}:{SCN+3}], 0 offen sc1
        s_waitcnt vmcnt(0)""")
    b(f"""L_chk:
    s_waitcnt vmcnt(48)
    s_{"add" if OPT.get('krot') else "sub"}_u32 s{sO2}, s{sO2}, {(4 if OPT.get('krot') else 28)*122880}
    s_{"add" if OPT.get('krot') else "sub"}_u32 s{sW2}, s{sW2}, {(4 if OPT.get('krot') else 28)*36864}
    v_cmp_gt_u32 vcc, 4, v6
    s_cbranch_vccz L_chkd
    s_mov_b32 s37, 0
    L_poll:
    s_sleep 4
    buffer_load_dword v6, v{VP2}, s[{SCN}:{SCN+3}], 0 offen sc1
    s_add_u32 s37, s37, 1
    s_waitcnt vmcnt(0)
    v_cmp_gt_u32 vcc, 4, v6
    s_cbranch_vccz L_chkd
    s_cmp_lt_u32 s37, 0x20000
    s_cbranch_scc1 L_poll
    s_branch L_chkd
    L_lateld:
    s_mov_b32 s{SO2+2}, s100
    s_mov_b32 s{SW2+2}, s101
    {p2_init()}
    s_mov_b32 s{sLATE}, 2
    s_mov_b32 s37, 0
    L_esp:
    s_sleep 4
    buffer_load_dword v{VCW}, v{VPE}, s[{SCN}:{SCN+3}], 0 offen sc1
    s_add_u32 s37, s37, 1
    s_waitcnt vmcnt(0)
    v_cmp_gt_u32 vcc, v{VTH}, v{VCW}
    s_cbranch_vccz L_espd
    s_cmp_lt_u32 s37, 0x20000
    s_cbranch_scc1 L_esp
    L_espd:""")
    for s_ in range(4): b.ext(p2_w(s_) + p2_o(s_) + p2_adv(s_))
    b(f"""s_waitcnt vmcnt(0)
    s_cmp_eq_u32 s{sWAVE}, 3
    s_cbranch_scc1 L_p2s3
    s_branch L_p2s4
    L_redo:
    s_mov_b32 s{sSAFE}, 1
    s_waitcnt vmcnt(0)
    s_barrier""")
    prologue_a(b)
    b.ext(x_dma(0, 4)); b.ext(w_dma(0, 4))
    b("s_branch L_tramp")

def kernel1():
    b = B()
    b("attn_kernel:")
    b("s_cmp_lt_u32 s2, 256\ns_cbranch_scc1 L_work\ns_endpgm\nL_work:")
    if OPT['stamps']: b("s_mov_b32 s96, 0\nv_mov_b32 v14, 0\nv_mov_b32 v15, 0")
    stamp(b)
    if OPT.get('fixspan'): b("s_memrealtime s[72:73]\ns_waitcnt lgkmcnt(0)")
    b("s_load_dwordx16 s[48:63], s[0:1], 0\ns_load_dwordx4 s[64:67], s[0:1], 64\ns_load_dwordx2 s[100:101], s[0:1], 96\ns_load_dwordx4 s[76:79], s[0:1], 80")
    b(f"""s_mov_b32 s97, s2
    s_and_b32 s3, s2, 7
    s_lshr_b32 s2, s2, 3""")
    warm_code(b)
    b(f"""v_lshrrev_b32 v1, 6, v0
    s_bfe_u32 s68, s3, {0x10001 if OPT.get('map') else 0x10000}
    s_lshl_b32 s68, s68, 2
    s_and_b32 s69, s2, 3
    s_add_u32 s68, s68, s69        ; b
    v_readfirstlane_b32 s{sWAVE}, v1
    s_bfe_u32 s69, s3, {0x10000 if OPT.get('map') else 0x10001}
    s_lshl_b32 s69, s69, 3
    s_lshr_b32 s70, s2, 2
    s_add_u32 s69, s69, s70        ; hp
    s_lshr_b32 s3, s3, 2           ; blk
    s_lshl_b32 s{sWB}, s{sWAVE}, 12
    s_lshl_b32 s{sXB}, s{sWAVE}, 13
    s_mov_b32 s{sC}, {CSCALE}
    s_mov_b32 s{sC+1}, {CSCALE}
    s_mov_b32 s{sSAFE}, 0
    s_mov_b32 s{sFLAG}, 0""")
    prologue_a(b)
    b(f"""s_cmp_eq_u32 s3, 0
    s_waitcnt lgkmcnt(0)
    s_cselect_b64 s[48:49], s[48:49], s[58:59]
    s_cselect_b64 s[50:51], s[50:51], s[60:61]
    s_cselect_b64 s[52:53], s[52:53], s[62:63]
    s_cselect_b64 s[54:55], s[54:55], s[64:65]
    s_cselect_b64 s[56:57], s[56:57], s[66:67]""")
    if OPT.get('sstamps'): stamp(b)
    b(f"""s_mul_i32 s71, s68, 276480
    s_add_u32 s{SX}, s48, s71
    s_addc_u32 s{SX+1}, s49, 0
    s_mov_b32 s{SX+2}, 276480
    s_mov_b32 s{SX+3}, 0x20000
    s_lshl_b32 s71, s69, 9
    s_add_u32 s{SW}, s54, s71
    s_addc_u32 s{SW+1}, s55, 0
    s_sub_u32 s{SW+2}, 4718592, s71
    s_mov_b32 s{SW+3}, 0x20000""")
    b("L_srdok:")
    prologue_b(b)
    b(f"""s_cmp_eq_u32 s{sWAVE}, 3
    s_cbranch_scc1 L_begin3""")
    wave_code(b, 4, "4")
    b("L_tramp:\ns_branch L_late")
    b(".p2align 6")
    wave_code(b, 3, "3")
    b("L_phase2:")
    phase2(b)
    b("L_end1:\ns_endpgm\nL_codeend:")
    return b.L

def resolve_waits(L):
    out = []
    for i, x in enumerate(L):
        if x.startswith("WAITL"):
            tag = x.split()[1]
            n, T = tag[1:].split('.'); T = int(T)
            dst = set(range(AW + 8 * (T % 4), AW + 8 * (T % 4) + 8))
            cnt = 0; found = False
            for y in reversed(out):
                if y.startswith(("s_waitcnt", "WAITV")) and "lgkmcnt(0)" in y:
                    found = True; cnt = None; break
                if y.startswith("ds_"):
                    I = Ins(y)
                    if any(k == 'a' and r in dst for k, r in I.wr) or (T == 0 and 'need=X' in y):
                        found = True; break
                    cnt += 1
            assert found, x
            if cnt is not None:
                cnt = min(cnt, 15)
                out.append(f"s_waitcnt lgkmcnt({cnt})")
        else: out.append(x)
    return out

def expand_trace(L):
    def shift(line, name, it, step):
        if it == 0: return line
        def rep(m):
            k, n = m.group(1), int(m.group(2))
            if name == 'qp':
                if k == 'W': return f"W{n + step*it}"
                if k == 'X': return f"X{n + step*it//2}"
                return m.group(0)
            if k == 'KV': return f"KV{n + step*it}"
            return m.group(0)
        if ';' not in line: return line
        a, c = line.split(';', 1)
        return a + ';' + re.sub(r'\b(KV|W|X)(\d+)\b', rep, c)
    bodies = {}
    def go(i, stop):
        res = []
        while i < len(L):
            x = L[i]
            if x.startswith("LOOPBEGIN"):
                _, name, cnt, step = x.split(); cnt = int(cnt); step = int(step)
                body, j = go(i + 1, name)
                bodies[name] = (body, cnt, step)
                for it in range(cnt):
                    for y in body:
                        if y == f"LOOPEXIT {name}":
                            if it == cnt - 1: break
                            continue
                        res.append(shift(y, name, it, step))
                i = j + 1; continue
            if x.startswith("REPLAY"):
                _, name, off, cnt = x.split(); cnt = int(cnt); body, _, step = bodies[name]
                for it in range(cnt):
                    for y in body: res.append(shift(shift(y, name, it, step), name, 1, int(off)))
                i += 1; continue
            if x.startswith("LOOPEND") and x.split()[1] == stop: return res, i
            res.append(x); i += 1
        return res, i
    return go(0, None)[0]

STOPS = ("L_maxpass", "L_hspin", "L_espin")
def traces(L):
    tr = expand_trace(L)
    main = []
    for x in tr:
        if x.startswith(STOPS): break
        main.append(x)
    alt = None
    if "ALTFROM p" in main:
        i = tr.index("ALTBEGIN p"); j = tr.index("ALTEND p")
        alt = [x for x in main[:main.index("ALTFROM p")] if 'condp' not in x] + tr[i + 1:j]
    drop = lambda t: [x for x in t if not x.startswith("ALT")]
    return drop(main), drop([x for x in main if 'condp' not in x]), alt

def resolve_vm(L):
    idx = [f"{x} ;#{i}" if x.startswith("WAITV") else x for i, x in enumerate(L)]
    best = {}
    main, lean, alt = traces(idx)
    for which, tr in (("main", main), ("lean", lean), ("alt", alt or [])):
        q = []
        for x in tr:
            c = x.split(';', 1)[1] if ';' in x else ''
            if x.startswith(("buffer_", "global_")):
                if 'cond' in c and 'condp' not in c: continue
                m = re.search(r'tag=(\w+)', c); q.append(m.group(1) if m else 'other')
            elif x.startswith("WAITV"):
                tags = set(re.search(r'cover=([\w,]*)', c).group(1).split(','))
                if which == "lean" and any(t[:1] == 'P' or t == 'OS' for t in tags): continue
                i = int(x.rsplit('#', 1)[1])
                n = 0
                for t in reversed(q):
                    if t in tags: break
                    n += 1
                else: n = 63
                m = re.search(r'cap=(\d+)', c)
                best[i] = min(best.get(i, 63), n, int(m.group(1)) if m else 63)
    out = []
    for i, x in enumerate(L):
        if x.startswith("WAITV"):
            a, c = x.split(';', 1) if ';' in x else (x, '')
            out.append(f"s_waitcnt vmcnt({best[i]}) {a[5:].strip()} ;{c}")
        else: out.append(x)
    return out

def check_protocol(L, label):
    q = []; done = set(); issued = {}; pub = set(); errs = 0
    for x in L:
        c = x.split(';', 1)[1] if ';' in x else ''
        if x.startswith("buffer_") or x.startswith("global_"):
            if 'cond' in c and 'condp' not in c: continue
            m = re.search(r'tag=(\w+)', c); q.append(m.group(1) if m else 'other')
        elif x.startswith("s_waitcnt"):
            m = re.search(r'vmcnt\((\d+)\)', x)
            if m:
                n = int(m.group(1))
                while len(q) > n: done.add(q.pop(0))
            m = re.search(r'needtag=(\w+)', c)
            if m and m.group(1) in q: print(label, "ERR needtag", x); errs += 1
        elif x.startswith("s_barrier") or 'SYNC' in c:
            m = re.search(r'pub=([\w,]*)', c)
            if m:
                for t in m.group(1).split(','):
                    if not t: continue
                    if t in q or (t not in done and not (label[:2] == 'w3' and t[0] in 'XW')): print(label, "ERR publish not landed", t, x); errs += 1
                    pub.add(t)
        elif x.startswith("ds_read"):
            m = re.search(r'need=(\w+)', c)
            if m and m.group(1) not in pub : print(label, "ERR read unpublished", x); errs += 1
        assert len(q) <= 63, ("vmcnt overflow", x)
    return errs

def burn(L):
    out = []; on = False; c = 0; k = 0
    for x in L:
        if x == 'BURNON': on = True; c = 0; continue
        if x == 'BURNOFF': on = False; continue
        out.append(x)
        if on and OPT.get('burn'):
            if x.startswith('v_mfma'): c = 0
            elif x.startswith('v_'):
                c += 1
                if c >= OPT['burn']:
                    c = 0; k += 1
                    out.append(f"{MF} v[4:7], a[{32+4*(k%8)}:{35+4*(k%8)}], a[{96+4*(k%7)}:{99+4*(k%7)}], v[4:7]")
    return out

def check_lgkm(L, label):
    dq = []; vq = []; errs = 0; cache = {}
    for x in L:
        t = x.split(';')[0].strip()
        I = cache.get(t)
        if I is None: I = cache[t] = Ins(t)
        if I.kind == 'label': continue
        if I.op == 's_waitcnt':
            m = re.search(r'lgkmcnt\((\d+)\)', t)
            if m:
                while len(dq) > int(m.group(1)): dq.pop(0)
            m = re.search(r'vmcnt\((\d+)\)', t)
            if m:
                while len(vq) > int(m.group(1)): vq.pop(0)
            continue
        use = I.rd | I.srcc | I.wr
        for w in dq + vq:
            if w & use: print(label, "ERR uncovered", x); errs += 1; break
        if I.kind in ('dsr', 'dsw'): dq.append(I.wr)
        if I.kind in ('vload', 'vstore', 'dma') and not ('cond' in x and 'condp' not in x): vq.append(I.wr)
    return errs

def finish(L):
    L = burn(L)
    L = resolve_waits(L)
    return L

def strip_markers(L):
    return [x for x in L if not x.startswith(("LOOPBEGIN", "LOOPEND", "LOOPEXIT", "REPLAY", "ALT"))]

DESC = """.section .rodata,"a"
.p2align 6
.amdhsa_kernel {name}
  .amdhsa_next_free_vgpr {vgpr}
  .amdhsa_next_free_sgpr 102
  .amdhsa_accum_offset 256
  .amdhsa_group_segment_fixed_size 0
  .amdhsa_kernarg_size 104
  .amdhsa_user_sgpr_count 2
  .amdhsa_user_sgpr_kernarg_segment_ptr 1
  .amdhsa_system_sgpr_workgroup_id_x 1
  .amdhsa_float_denorm_mode_32 3
.end_amdhsa_kernel
"""

def build(**kw):
    OPT.update(kw)
    k1 = finish(kernel1())
    i4 = k1.index("L_begin4:"); i3 = k1.index("L_begin3:"); iv = k1.index("L_phase2:")
    ip = k1.index("L_srdok:"); pre = k1[ip:i4]
    k1 = k1[:i4] + resolve_vm(pre + k1[i4:i3])[len(pre):] + resolve_vm(pre + k1[i3:iv])[len(pre):] + k1[iv:]
    e = 0
    for lab, part in (("w4", pre + k1[i4:i3]), ("w3", pre + k1[i3:])):
        main, lean, alt = traces(part)
        e += check_protocol(main, lab) + check_lgkm(main, lab)
        if alt: e += check_protocol(alt, lab + "alt") + check_lgkm(alt, lab + "alt")
    assert e == 0 or OPT.get('nocheck')
    k1 = strip_markers(k1)
    k1, n1, p1 = fix_hazards(k1)
    for p in p1: print("BRANCH HAZARD", p)
    assert not p1
    hdr = open("ref.txt").read().split("; Override")[0]
    KN = NAME + "_kernel"
    k1 = [x.replace("attn_kernel", KN) for x in k1]
    out = hdr
    out += """; Written with my own schedule generator (no compiler output).  One launch, 256 workgroups (one per CU), 4 waves each:
;  1. q-projection of two heads (x and Wq staged by LDS-DMA, 16x16x32 bf16 MFMA), scale log2(e)/sqrt(128) applied in fp32;
;  2. attention for the two heads, K/V streamed through an 8-tile LDS ring.  The softmax offset is the row maximum over the first
;     the workgroup starts over and uses the true row maximum over all 1024 keys (L_maxpass*).
;     hand it to the output projection, which the same workgroups run as 96x96 tiles (even heads first, odd heads after their hand-off).
; Waves 0-2 own four 16-query tiles (labels *4), wave 3 owns three (labels *3).
"""
    out += ("; @launch kernel=%s grid=(256,1,1) block=(256,1,1) lds=163840\n" % KN) if OPT.get('list') else "; @launch grid=(256,1,1) block=(256,1,1) lds=163840\n"
    out += '.amdgcn_target "amdgcn-amd-amdhsa--gfx950"\n.text\n'
    out += ".globl %s\n.p2align 8\n.type %s,@function\n" % (KN, KN) + "\n".join(k1) + "\n"
    out += DESC.format(name=KN, vgpr=512)
    return out, n1

if __name__ == "__main__":
    kw = {}
    for a in sys.argv[2:]:
        k, v = a.split('='); kw[k] = int(v)
    s, info = build(**kw)
    open(sys.argv[1], "w").write(s)
    print("nops inserted", info, "bytes", len(s))
```

```python
import sys, re
from asmlib import fix_hazards, Ins

NAME = "concat_heads__mha_block_cached__mha_block_cached__near_ridge"
MF = "v_mfma_f32_16x16x32_bf16"
CSCALE = 0x3e0293ee
LTHR = 0x4e800000

O_BLK = 128 * 122880
WOT_OFF = 2 * O_BLK
WOT_BLK = 128 * 36864
CNT_OFF = WOT_OFF + 2 * WOT_BLK

class B:
    def __init__(self): self.L = []
    def __call__(self, s):
        for x in s.split("\n"):
            x = x.strip()
            if x: self.L.append(x)
    def ext(self, l): self.L.extend(l)

def vr(b, n): return f"v[{b}:{b+n-1}]"
def ar(b, n): return f"a[{b}:{b+n-1}]"

def emit_slots(b, slots, gaps):
    for i, s in enumerate(slots):
        if s: b(s)
        nv = [x for x in gaps[i] if not x.startswith('v_')]
        v = [x for x in gaps[i] if x.startswith('v_')]
        for x in nv + v: b(x)

S_ = 16; P_ = 48; CI = 64; LS = 80
KA = 84
VA = 88
VWA = 105
DK0 = 96; DK1 = 97; DV0 = 98; DV1 = 99
VO = 100
VWO = 101
VWX = 102
VLN = 103
VPF = 104
VPD = 105
T0 = 108
O_ = 128
XA = 16; WA = 28; DX = 20; DW = 24
WSLOT = [49152, 114688, 131072, 147456]; sKB = 69
def AQ(q): return 32 + 64 * (q // 2) + 16 * (q % 2)
def AQ2(q): return 128 + 16 * q
AK = 0; AV = 64; ASP = 64
AX = 0; AW = 64
SX = 4; SW = 8; SK = 12; SV = 16; SO = 20; SWO = 24; SWT = 28
sWAVE = 32; sWB = 33; sKV = 34; sCNT = 35; sHEAD = 36; sSAFE = 37; sFLAG = 38
sXO = 39; sXO2 = 40; sWOFF = 41; sXB = 42; sOO = 43; sC = 44
sT = 46
sH0 = 68; sWOS = 64; sWTS = 65; sSTAMP = 72; SPF = 76; sPF = 68; sWXS = 67; sROT = 80; sLIN = 81
SCN = 48; SDB = 52; SO2 = 56; sCO = 60; sCW = 61; SIN = 84; SIF = 88; sOUT = 76; VHS = 106; VCW = 107; VONE = 104
SW2 = 80; sO2 = 98; sW2 = 99; sOUTO = 66; sOP = 41; VPE = 11; VTH = 12; VP2 = 13; VWE = 10; AST = 192; sSIG = 78; sLATE = 79; sIDLE = 67; sRT = 68; sLN = 71; sPW = 40; sPZ = 64; sST = 65; VPA = 102; DEC = 131072 + 7168 + 64; sFV = 39; VFA = 1; VFB = 101; FQ = 80; FLAGS = 131072 + 7168 + 32

OPT = dict(nt_kv=1, nt_w=0, nt_x=0, nt_wo=0, stamps=0, warm=1, of=2, of0=2, e67=1, bal=0, pair=1, pre8=1, wts=1, sw2=2)

K2F = ['', ' nt', ' sc1', ' sc0 sc1', ' sc0', ' sc1 nt', ' sc0 sc1 nt']
def fl(k): return ["", " nt", " sc1 nt", " sc0 sc1 nt", " sc0 nt"][OPT[k]]

def dma(voff, srd, soff, off, flag, tag):
    return f"buffer_load_dwordx4 v{voff}, s[{srd}:{srd+3}], {soff} offen offset:{off}{flag} lds ; tag={tag}"

def kv_adv():
    if not OPT.get('rot'): return [f"s_add_u32 s{sKV}, s{sKV}, 8192"]
    return [f"s_add_u32 s{sLIN}, s{sLIN}, 8192", f"s_add_u32 s{sKV}, s{sLIN}, s{sROT}",
            f"s_and_b32 s{sKV}, s{sKV}, 0x3ffff", f"s_and_b32 s{sT+1}, s{sLIN}, 0xfffc0000", f"s_or_b32 s{sKV}, s{sKV}, s{sT+1}"]

def adv2(tmp):
    if not OPT.get('rot'): return [f"s_add_u32 s{sKV}, s{sKV}, 16384"]
    return [f"s_add_u32 s{sLN}, s{sLN}, 16384", f"s_add_u32 s{sKV}, s{sLN}, s{sRT}", f"s_and_b32 s{sKV}, s{sKV}, 0x3ffff",
            f"s_and_b32 s{tmp}, s{sLN}, 0x40000", f"s_or_b32 s{sKV}, s{sKV}, s{tmp}"]

def k_dma(tile, so=None):
    so = so or f"s{sKV}"
    return [f"s_add_u32 m0, s{sKB}, {(tile % 8) * 8192}",
            dma(DK0, SK, so, 0, fl('nt_kv'), f"KV{tile}"), dma(DK1, SK, so, 1024, fl('nt_kv'), f"KV{tile}")]
def v_dma(tile, so=None):
    so = so or f"s{sKV}"
    return [f"s_add_u32 m0, s{sKB}, {65536 + (tile % 8) * 8192}",
            dma(DV0, SV, so, 0, fl('nt_kv'), f"KV{tile}"), dma(DV1, SV, so, 1024, fl('nt_kv'), f"KV{tile}")]

def x_dma(m, nq):
    slot = 16384 if m % 2 else 81920
    out = []
    out.append(f"s_add_u32 m0, s{sXB}, {slot}")
    for j in range(4): out.append(dma(DX + j, SX, f"s{sXO}", 1024 * j, fl('nt_x'), f"X{m}"))
    out.append(f"s_add_u32 m0, s{sXB}, {slot + 4096}")
    for j in range(4 if nq == 4 else 2): out.append(dma(DX + j, SX, f"s{sXO2}", 1024 * j, fl('nt_x'), f"X{m}"))
    out.append(f"s_add_u32 s{sXO}, s{sXO}, 128")
    out.append(f"s_add_u32 s{sXO2}, s{sXO2}, 128")
    return out

def w_dma(n, nq):
    out = [f"s_add_u32 m0, s{sWB}, {WSLOT[n % 4]}"]
    for j in range(4): out.append(dma(DW + j, SW, f"s{sWOFF}", 1024 * j, fl('nt_w'), f"W{n}"))
    if n % 2 == 0: out.append(f"s_add_u32 s{sWOFF}, s{sWOFF}, 256")
    else: out.append(f"s_add_u32 s{sWOFF}, s{sWOFF}, {524288 - 256}")
    return out

def w_reads(n, T):
    sp_, a = T // 2, T % 2
    hl, sp = sp_ // 2, sp_ % 2
    out = []
    for s in range(2):
        for a2 in range(2):
            d = AW + 8 * (T % 4) + 4 * s + 2 * a2
            off = max(n % 4 - 1, 0) * 16384 + hl * 8192 + (32 * s + 4 * a2) * 128 + 8 * a
            out.append(f"ds_read_b64_tr_b16 {ar(d,2)}, v{WA + sp + (2 if n % 4 else 0)} offset:{off} ; need=W{n}")
    return out

def x_reads(m, nq):
    out = []
    for q in range(nq):
        for s in range(2):
            d = AX + 32 * (m % 2) + 8 * q + 4 * s
            out.append(f"ds_read_b128 {ar(d,4)}, v{XA + s + (0 if m % 2 else 2)} offset:{q * 2048} ; need=X{m}")
    return out

def qacc(hd, q, T):
    r = 128 + 32 * q + 4 * T
    return vr(r, 4) if hd == 0 else ar(r, 4)

def pf_load():
    return f"buffer_load_dword v{VPD}, v{VPF}, s[{SPF}:{SPF+3}], s{sPF} offen nt ; tag=PF"

def wo_dma():
    out = []
    for r in range(2):
        out.append(f"s_add_u32 m0, s{sWOS}, {4096*r}")
        for j in range(4):
            out += [f"PRE s_mov_b32 s{sT}, {8192*j + 512*r}", dma(VWO, SWO, f"s{sT}", 1024 * j, fl('nt_wo'), "WO")]
    out += [f"s_mov_b32 m0, s{sWTS}", dma(VWX, SWO, "0", 0, fl('nt_wo'), "WO")]
    return out
WOF = 32
def wo_reads():
    out = [f"ds_read_b64_tr_b16 {vr(WOF+16*r+4*tl+2*a,2)}, v{VWA} offset:{4096*r + 2048*a + 32*tl}" for r in range(2) for tl in range(4) for a in range(2)]
    return out + [f"ds_read_b64_tr_b16 {vr(WOF+32+2*a,2)}, v{VWE} offset:{512*a}" for a in range(2)]
def wo_stores():
    out = []
    for r in range(2):
        out.append(f"PRE s_add_u32 s{sT}, s{sWB}, {16384*r}")
        out += [f"buffer_store_dwordx4 {vr(WOF+16*r+4*tl,4)}, v{VLN}, s[{SWT}:{SWT+3}], s{sT} offen offset:{1024*tl} sc1 ; tag=WT" for tl in range(4)]
    out += [f"PRE s_lshl_b32 s{sT}, s{sWAVE}, 10", f"PRE s_add_u32 s{sT}, s{sT}, 32768",
            f"buffer_store_dwordx4 {vr(WOF+32,4)}, v{VLN}, s[{SWT}:{SWT+3}], s{sT} offen sc1 ; tag=WT"]
    return out

QSPINS = []; QF = 68; QFA = 72; QFB = 73; sFQ = 35; QFLAGS = 112640
def qproj_stage(b, n, nq, fill=None):
    hd, m = n % 2, n // 2
    nx = 8 if nq == 4 else 6
    slots = []; gaps = [[] for _ in range(64)]
    for T in range(8):
        for q in range(4):
            for s in range(2):
                if q >= nq: slots.append(None); continue
                acc = qacc(hd, q, T)
                c = "0" if (m == 0 and s == 0) else acc
                slots.append(f"{MF} {acc}, {ar(AW+8*(T%4)+4*s,4)}, {ar(AX+32*(m%2)+8*q+4*s,4)}, {c}")
    start = {3: 5, 4: 12, 5: 19, 6: 26, 7: 33}
    rd = w_reads(n, 2); gaps[0].append(rd[3])
    for T, g in start.items():
        for i, x in enumerate(w_reads(n, T)): gaps[g + i].append(x)
    FSQ = OPT.get('fsq') and n < 15
    if n < 17:
        for T, g in (((0, 53), (1, 57)) if FSQ else ((0, 45), (1, 53))):
            for i, x in enumerate(w_reads(n + 1, T)): gaps[g + i].append(x)
        for i, x in enumerate(w_reads(n + 1, 2)[:3]): gaps[61 + i].append(x)
    xr = []
    if n % 2 == 1 and m + 1 <= 8:
        xr = x_reads(m + 1, nq)
        for x, g in zip(xr, (9, 10, 16, 17, 23, 24, 30, 31) if not (n == 1 and OPT.get('x1late')) else (49, 50, 51, 52, 57, 58, 59, 60)): gaps[g].append(x)
    for T in range(1, 8): gaps[8 * T - 1].append(f"WAITL W{n}.{T}")
    if n < 17: gaps[63].append(f"WAITL W{n+1}.0")
    req = []
    if n + 1 <= 17: req.append(f"W{n+1}")
    if n % 2 == 0 and m + 1 <= 8 and not (n == 0 and OPT.get('x1late')): req.append(f"X{m+1}")
    if n == 1 and OPT.get('x1late'): req.append("X1")
    if n == 17: req += ["KV0", "KV1"]
    cov = list(req)
    if nq == 3 and n == 2:
        cov.append("INIT")
        gaps[55].append(f"buffer_store_dword v{VONE}, v{VLN}, s[{SIF}:{SIF+3}], 0 offen sc1 ; tag=FLAG")
    if nq == 3 and n == 12:
        gaps[45].append(f"buffer_load_dword v{VHS}, off, s[{SDB}:{SDB+3}], 0 ; tag=HS")
    if n == 17 and OPT.get('fsa'):
        gaps[36] += [f"s_mov_b32 s{sFV}, 0", f"v_mov_b32 v{VFB}, {FLAGS}", f"v_mov_b32 v{FQ}, 0"]
        gaps[37] += [f"v_lshl_add_u32 v{VFA}, s{sWAVE}, 2, v{VFB}"]
        gaps[39] += [f"ds_write_b32 v{VFA}, v{FQ}"]
    if FSQ:
        uid = f"q{n}_{nq}"
        gaps[42] += [f"s_add_u32 s{sFQ}, s{sFQ}, 1", f"v_mov_b32 v{QF}, s{sFQ}"]
        gaps[43] += ["WAITV lgkmcnt(0) ; cover=" + ",".join(cov), f"ds_write_b32 v{QFA}, v{QF}"]
        gaps[47].append(f"ds_read_b128 {vr(QF,4)}, v{QFB}")
        gaps[50] += ["s_waitcnt lgkmcnt(0)", f"v_min3_u32 v{QF}, v{QF}, v{QF+1}, v{QF+2}"]
        gaps[51].append(f"v_min_u32 v{QF}, v{QF}, v{QF+3}")
        gaps[52].append(f"v_cmp_gt_u32 vcc, s{sFQ}, v{QF}\ns_cbranch_vccnz L_fs{uid}\nL_fr{uid}: ; SYNC pub=" + ",".join(req))
        QSPINS.append(uid)
    else:
        gaps[43].append("WAITV lgkmcnt(0) ; cover=" + ",".join(cov))
        gaps[44].append("s_barrier ; pub=" + ",".join(req))
    def place(seq, first, step):
        g = first
        for x in seq:
            if x.startswith("buffer_"): gaps[g].append(x); g += step
            elif x.startswith(("s_add_u32 m0", "s_mov_b32 m0")): gaps[g - 1].append(x)
            elif x.startswith("PRE "): gaps[g - 1].append(x[4:])
            else: gaps[min(g - step + 1, 63)].append(x)
    if n == 0 and OPT.get('x2late'): place(w_dma(2, nq) + w_dma(3, nq), 2, 5)
    elif n == 1 and OPT.get('x2late'): place(x_dma(2, nq), 2, 4)
    elif n == 0: place(w_dma(2, nq) + w_dma(3, nq) + x_dma(2, nq), 1, 2)
    elif n % 2 == 0 and m + 2 <= 8: place(x_dma(m + 2, nq), 2, 5)
    def single(kind, i_):
        if kind == 'wo':
            if i_ == 8: return [f"s_mov_b32 m0, s{sWTS}", None, dma(VWX, SWO, "0", 0, fl('nt_wo'), "WO")]
            r, j_ = i_ // 4, i_ % 4
            return [f"s_add_u32 m0, s{sWOS}, {4096*r}", f"s_mov_b32 s{sT}, {8192*j_ + 512*r}", dma(VWO, SWO, f"s{sT}", 1024 * j_, fl('nt_wo'), "WO")]
        t, j_ = i_ // 4, i_ % 4
        d_ = (k_dma if j_ < 2 else v_dma)(t, f"s{sT}")
        return [d_[0], f"s_add_u32 s{sT}, s{sRT}, {8192*t}" if OPT.get('rot') else f"s_mov_b32 s{sT}, {8192*t}", d_[1 + j_ % 2]]
    if OPT.get('slowpos', 0):
        R0 = 9
        sched_ = {2: [('wo', 0), ('wo', 1), ('wo', 2)], 4: [('wo', 3), ('wo', 4), ('wo', 5)], 6: [('wo', 6), ('wo', 7), ('wo', 8)],
                  10: [('kv', i_) for i_ in range(4)], 12: [('kv', i_) for i_ in range(4, 8)]}
        for (kind, i_) in sched_.get(n, []):
            gaps[63] += [x for x in single(kind, i_) if x]
    else:
        W0 = 1; R0 = W0 + 7
        sched_ = {W0 + i_ // 2: [] for i_ in range(9)}
        for i_ in range(8 if OPT.get('fsq') else 9): sched_[W0 + i_ // 2].append(('wo', i_))
        if not OPT.get('late'):
            for i_ in range(8): sched_.setdefault(R0 + 2 + i_ // 2, []).append(('kv', i_))
        for (kind, i_), g in zip(sched_.get(n, []), (39, 42) if (n % 2 == 0 or OPT.get('stpos', 0) or (n == 1 and OPT.get('x2late'))) else (12, 32)):
            m0_, so_, ld_ = single(kind, i_)
            gaps[g - 1].append(m0_)
            if so_: gaps[g - 1].append(so_)
            gaps[g].append(ld_)
    if n == 13: gaps[62] += [f"s_add_u32 s{sKV}, s{sRT}, 16384", f"s_mov_b32 s{sLN}, 49152"] if OPT.get('rot') else [f"s_mov_b32 s{sKV}, 16384"]
    if n in (R0, R0 + 1):
        rd = wo_reads()
        if OPT.get('fsq'): rd = rd[:16]
        if n == R0:
            gaps[44].append("WAITV ; cover=WO")
            for x, g in zip(rd[:8], [44, 45, 46, 48, 49, 51, 52, 52] if FSQ else [49, 50, 51, 52, 57, 58, 59, 60]): gaps[g].append(x)
        else:
            for x, g in zip(rd[8:], [1, 2, 3, 4, 11, 18, 25, 37, 38, 39]): gaps[g].append(x)
    for i_ in range(0 if OPT.get('wts') else 9):
        if OPT.get('slowpos', 0):
            if n != (10, 10, 12, 12, 14, 14, 14, 16, 16)[i_]: continue
            t_ = [f"s_add_u32 s{sT+1}, s{sWB}, {16384*(i_//4)}"] if i_ < 8 else [f"s_lshl_b32 s{sT+1}, s{sWAVE}, 10", f"s_add_u32 s{sT+1}, s{sT+1}, 32768"]
            gaps[62] += t_ + [f"buffer_store_dwordx4 {vr(WOF+4*i_,4)}, v{VLN}, s[{SWT}:{SWT+3}], s{sT+1} offen offset:{1024*(i_%4) if i_ < 8 else 0} sc1 ; tag=WT"]
            continue
        r, tl = i_ // 4, i_ % 4
        if OPT.get('stpos', 0):
            if n != (9, 9, 11, 11, 13, 13, 15, 15, 15)[i_]: continue
            g = (8, 10, 2, 4, 2, 4, 2, 4, 7)[i_]
        else:
            if n != min(R0 + 1 + i_, 17 - (1 if i_ < 8 else 0)) : continue
            g = 62 if not any('tag=WT' in x for x in gaps[62]) else 48
        if i_ < 8: gaps[g - 1].append(f"s_add_u32 s{sT+1}, s{sWB}, {16384*r}")
        else: gaps[g - 2].append(f"s_lshl_b32 s{sT+1}, s{sWAVE}, 10"); gaps[g - 1].append(f"s_add_u32 s{sT+1}, s{sT+1}, 32768")
        gaps[g].append(f"buffer_store_dwordx4 {vr(WOF+4*i_,4)}, v{VLN}, s[{SWT}:{SWT+3}], s{sT+1} offen offset:{1024*tl if i_ < 8 else 0}{K2F[OPT.get('wtf', 2)]} ; tag=WT")
    if n == 14 and OPT.get('late'):
        place([f"PRE s_mov_b32 s{sT}, 0"] + k_dma(0, f"s{sT}") + v_dma(0, f"s{sT}") + [f"PRE s_mov_b32 s{sT}, 8192"] + k_dma(1, f"s{sT}") + v_dma(1, f"s{sT}"), 2, 5)
    if n in ((15, 16) if OPT.get('late') else (14, 16)):
        seq = []
        for t in range(2, 6):
            seq += [f"PRE s_add_u32 s{sT}, s{sKV}, {(t - 2) * 8192}"] + (k_dma if n < 16 else v_dma)(t, f"s{sT}")
        if n == 16: seq.append(f"s_add_u32 s{sKV}, s{sKV}, 32768")
        place(seq, 2, 5)
    if n == 17 and OPT.get('e67'):
        place(k_dma(6) + [f"PRE s_add_u32 s{sT}, s{sKV}, 8192"] + k_dma(7, f"s{sT}"), 4, 9)
        place(v_dma(6) + v_dma(7, f"s{sT}") + adv2(sT + 1), 47, 4)
    if OPT.get('awake') and n % 2 == 1 and 3 <= n <= 11:
        seq = []
        for t in range(OPT['awake']):
            seq += [f"PRE s_add_u32 s{sPF}, s{sPF}, 8192"] + k_dma(t % 2, f"s{sPF}") + v_dma(t % 2, f"s{sPF}")
        seq = [x.replace('tag=KV0', 'tag=DUM').replace('tag=KV1', 'tag=DUM') for x in seq]
        place(seq, 2, 40 // (4 * OPT['awake']))
    if OPT.get('awake') and n == 13:
        place([f"PRE s_mov_b32 s{sPF}, 0"] + k_dma(0, f"s{sPF}") + v_dma(0, f"s{sPF}") + [f"PRE s_mov_b32 s{sPF}, 8192"] + k_dma(1, f"s{sPF}") + v_dma(1, f"s{sPF}"), 2, 5)
    if n + 4 <= 17: place(w_dma(n + 4, nq), *((54, 3) if FSQ else (46, 5)))
    for i_ in range(OPT.get('qslow', 0)): gaps[2 + 2 * i_].append('v_nop\nv_nop\nv_nop\nv_nop\nv_nop\nv_nop')
    if fill is not None:
        for g in range(20 if n == 16 else 0, 64):
            if slots[g] is None: continue
            for _ in range(2):
                if fill: gaps[g].append(fill.pop(0))
    emit_slots(b, slots, gaps)
    if OPT.get('qstamps'): stamp(b)

def k_reads(unit, tile):
    out = []
    for kt in range(2):
        for s in range(4):
            f = 4 * kt + s
            out.append(f"ds_read_b128 {ar(AK+4*f,4)}, v{KA + s} offset:{unit * 8192 + kt * 4096} ; need=KV{tile}")
    return out

def v_reads(unit, tile):
    out = []
    for T in range(8):
        th, tl = T // 4, T % 4
        for a in range(2):
            out.append(f"ds_read_b64_tr_b16 {ar(AV+4*T+2*a,2)}, v{VA + T} offset:{unit * 8192 + a * 4096} ; need=KV{tile}")
    return out

import sched, sched2
LM = 1
for a_ in sys.argv[2:]:
    if a_.startswith('lm='): LM = int(a_[3:])
if LM:
    NS = 68
    V_GAPS = list(range(26, 42)); K_GAPS = list(range(50, 58)); D_GAPS = [3, 11, 17, 23]
    SM = sched2.schedule(V_GAPS + K_GAPS, D_GAPS)
    for a_ in sys.argv[2:]:
        if a_.startswith('dg='): D_GAPS = {1: [3, 7, 33, 38], 2: [4, 8, 34, 40], 3: [3, 8, 36, 56]}[int(a_[3:])]
else:
    NS = 64
    V_GAPS = list(range(25, 41)); K_GAPS = list(range(48, 56)); D_GAPS = [1, 9, 17, 23]
    SM = sched.schedule(4, V_GAPS + K_GAPS, D_GAPS)
BG = K_GAPS[0] - 1
LA = 108; ONES = 124
def sm_text(kind, q, e):
    s = S_ + 8 * q + e
    if kind == 'exp': return f"v_exp_f32 v{s}, v{s}"
    if kind == 'add': return f"v_add_f32 v{LS+q}, v{LS+q}, v{s}"
    return f"v_cvt_pk_bf16_f32 v{P_+4*q+e//2}, v{s-1}, v{s}"
def sm_items(nq, lo, hi):
    it = [(g, k[0] == 'exp', k) for k, g in SM.items() if k[1] < nq and lo <= g < hi]
    it.sort(key=lambda t: (t[0] % NS, t[1], -t[0]))
    return [(g, k) for g, _, k in it]

def qk(q, kt, s, czero=False):
    d = vr(S_ + 8 * q + 4 * kt, 4)
    c = d if s else ("0" if czero else vr(CI + 4 * q, 4))
    return f"{MF} {d}, {ar(AK+4*(4*kt+s),4)}, {ar(AQ(q)+4*s,4)}, {c}"

def pv(q, T, czero=False):
    d = vr(O_ + 32 * q + 4 * T, 4)
    return f"{MF} {d}, {ar(AV+4*T,4)}, {vr(P_+4*q,4)}, {'0' if czero else d}"

def lsm(q, czero=False):
    d = vr(LA + 4 * q, 4)
    return f"{MF} {d}, {vr(ONES,4)}, {vr(P_+4*q,4)}, {'0' if czero else d}"

SPINS = []
def attn_stage(b, k, nq, extra=None, fill=None, resume=False):
    kk = k % 32; u = k % 8
    if resume: kk = 0
    slots = []; gaps = [[] for _ in range(NS)]
    for q in (0, 1):
        for kt in range(2):
            for s in range(4): slots.append(qk(q, kt, s))
    for q in (2, 3):
        for T in range(8): slots.append(pv(q, T, kk == 1) if (q < nq and kk > 0) else None)
        if LM: slots.append(lsm(q, kk == 1) if (q < nq and kk > 0) else None)
    for q in (2, 3):
        for kt in range(2):
            for s in range(4): slots.append(qk(q, kt, s) if q < nq else None)
    for q in (0, 1):
        for T in range(8): slots.append(pv(q, T, kk == 0 and not resume))
        if LM: slots.append(lsm(q, kk == 0 and not resume))
    for g, key in sm_items(nq, 0, 2 * NS if kk > 0 else NS): gaps[g % NS].append(sm_text(*key))
    for g, x in zip(V_GAPS, v_reads(u, k)): gaps[g].append(x)
    DIST = 7 if OPT.get('d7') else OPT.get('dist', 5 if OPT.get('fsa') else 6)
    if DIST == 7 and k < 63:
        gaps[BG - 1].append(f"WAITV lgkmcnt(0) ; cover=KV{k+1}" + (",WT" if kk == 11 else ""))
        gaps[BG].append(f"s_barrier ; pub=KV{k+1}")
    elif k % 2 == 1 and k < 63 and OPT.get('fsa'):
        uid = f"{k}_{nq}"
        pg = OPT.get('fsp', 30); rg = OPT.get('fsr', 36)
        gaps[pg - 2].append(f"s_add_u32 s{sFV}, s{sFV}, 1")
        gaps[pg - 1].append(f"v_mov_b32 v{FQ}, s{sFV}") if pg - 1 >= 30 or pg < 26 else gaps[pg].append(f"v_mov_b32 v{FQ}, s{sFV}")
        gaps[pg + 1].insert(0, f"WAITV ; cover=KV{k+1},KV{k+2}" + (",WT" if kk == 11 else ""))
        gaps[pg + 1].append(f"ds_write_b32 v{VFA}, v{FQ}")
        gaps[rg].append(f"ds_read_b128 {vr(FQ,4)}, v{VFB}")
        gaps[rg + 3].insert(0, "s_waitcnt lgkmcnt(2)")
        gaps[rg + 3].append(f"v_min3_u32 v{FQ}, v{FQ}, v{FQ+1}, v{FQ+2}")
        gaps[rg + 4].append(f"v_min_u32 v{FQ}, v{FQ}, v{FQ+3}")
        gaps[rg + 5].append(f"v_cmp_gt_u32 vcc, s{sFV}, v{FQ}")
        gaps[rg + 6].insert(0, f"s_cbranch_vccnz L_fs{uid}\nL_fr{uid}: ; SYNC pub=KV{k+1},KV{k+2}")
        gaps[BG].append("s_waitcnt lgkmcnt(0)")
        SPINS.append(uid)
    elif k % 2 == 1 and k < 63:
        gaps[BG - 1].append(f"WAITV lgkmcnt(0) ; cover=KV{k+1},KV{k+2}" + (",WT" if k == (39 if OPT.get('pz') else 11) else ""))
        gaps[BG].append(f"s_barrier ; pub=KV{k+1},KV{k+2}")
    else:
        gaps[BG].append("s_waitcnt lgkmcnt(0)")
    if k < 63:
        for g, x in zip(K_GAPS, k_reads((u + 1) % 8, k + 1)): gaps[g].append(x)
        gaps[NS - 1].append("s_waitcnt lgkmcnt(0)")
    FP = OPT.get('fsa') and OPT.get('pair')
    t0 = (k + 4 + k % 2) if FP else (k + DIST - (k % 2) if OPT.get('pair') else k + DIST)
    if t0 < 64 and not (OPT.get('e67') and t0 < 8) and not (OPT.get('sw2') and k in (32, 33)):
        if OPT.get('pair'):
            isv = (k % 2 == 0) if FP else (k % 2 == 1)
            fn = v_dma if isv else k_dma
            kd, vd = fn(t0), fn(t0 + 1, f"s{sT}")
            gaps[D_GAPS[2] - 2].append(f"s_add_u32 s{sT}, s{sKV}, 8192")
            if isv:
                for i_, x in enumerate(adv2(sT)): gaps[44 + i_].append(x)
        else:
            kd, vd = k_dma(k + DIST), v_dma(k + DIST)
            gaps[44] += kv_adv()
        gaps[D_GAPS[0] - 1].append(kd[0]); gaps[D_GAPS[2] - 1].append(vd[0])
        for x, g in zip(kd[1:] + vd[1:], D_GAPS): gaps[g].append(x)
    for i_ in range(OPT.get('slow', 0)): gaps[2 + 2 * i_].append('v_nop\nv_nop\nv_nop\nv_nop')
    if extra:
        for g, x in extra: gaps[g].append(x)
    if fill:
        cost = lambda x: 2 if x.startswith('v_exp') else (1 if x.startswith(('v_', 'ds_', 'buffer_')) else 0)
        room = [max(0, 2 - sum(cost(x) for x in gaps[g])) if slots[g] else 0 for g in range(NS)]
        left = len(fill) - sum(room)
        live = [g for g in range(NS) if slots[g]]
        for i_ in range(max(left, 0)): room[live[(i_ * len(live)) // left]] += 1
        for g in range(NS):
            for _ in range(room[g]):
                if fill: gaps[g].append(fill.pop(0))
        assert not fill
    for key, pre in (('nobar', ('s_barrier',)), ('nodma', ('buffer_load_dwordx4 v9',)), ('nolds', ('ds_read',)), ('noexp', ('v_exp',))):
        if OPT.get(key) and 8 <= k < 16: gaps = [[x if not x.startswith(pre) else 's_nop 0 ;' + x.split(';', 1)[-1] for x in g] for g in gaps]
    if OPT.get('astamps') and k % 2 == 0: stamp(b)
    if OPT.get('dmaonly'):
        slots = [None] * NS
        gaps = [[x for x in g if not x.startswith(('v_', 'ds_'))] for g in gaps]
    emit_slots(b, slots, gaps)

def xlane_reduce(b, reg, tmp, op):
    b(f"v_mov_b32 v{tmp}, v{reg}")
    b(f"v_permlane32_swap_b32 v{reg}, v{tmp}")
    b(f"{op} v{reg}, v{reg}, v{tmp}")
    b(f"v_mov_b32 v{tmp}, v{reg}")
    b(f"v_permlane16_swap_b32 v{reg}, v{tmp}")
    b(f"{op} v{reg}, v{reg}, v{tmp}")

def xlane_reduce_multi(b, regs, tmps, op):
    for sw in ("v_permlane32_swap_b32", "v_permlane16_swap_b32"):
        for r, t in zip(regs, tmps): b(f"v_mov_b32 v{t}, v{r}")
        for r, t in zip(regs, tmps): b(f"{sw} v{r}, v{t}")
        for r, t in zip(regs, tmps): b(f"{op} v{r}, v{r}, v{t}")

def stamp(b, idx=None):
    if OPT.get('fixat') and idx == OPT['fixat']: b("s_memrealtime s[72:73]\ns_waitcnt lgkmcnt(0)")
    if not OPT['stamps']: return
    b(f"s_memtime s[{sSTAMP}:{sSTAMP+1}]\ns_memrealtime s[{sSTAMP+2}:{sSTAMP+3}]\ns_waitcnt lgkmcnt(0)")
    b(f"s_mov_b32 s95, m0\ns_mov_b32 m0, s96\nv_writelane_b32 v14, s{sSTAMP}, m0\nv_writelane_b32 v15, s{sSTAMP+2}, m0\ns_mov_b32 m0, s95\ns_add_u32 s96, s96, 1")

def stamp_dump(b, k, wave):
    if not OPT['stamps']: return
    b("s_waitcnt vmcnt(0)")
    stamp(b)
    if OPT['stamps'] == 2:
        b("s_load_dwordx2 s[92:93], s[0:1], 88\ns_waitcnt lgkmcnt(0)")
        b(f"s_cmp_lg_u32 s{wave}, 0\ns_cbranch_scc1 L_end{k+1}\ns_lshr_b32 s94, s97, 3\ns_cmp_lg_u32 s94, 5\ns_cbranch_scc1 L_end{k+1}")
        b(f"s_add_u32 s88, s92, {OPT.get('dbgoff',0)*(1-k)}\ns_addc_u32 s89, s93, 0\ns_mov_b32 s90, 256\ns_mov_b32 s91, 0x20000")
        sel = [0, 2, 3, 5, 6, 7, 8, 9, 10, 11, 12]
        b("s_mov_b64 exec, 1")
        for i, ix in enumerate(sel):
            b(f"v_readlane_b32 s94, v15, {ix}\ns_nop 3")
            if i == 0 and k == 0: b("s_not_b32 s94, s94")
            b(f"v_mov_b32 v1, s94\nv_mov_b32 v2, {4*(i + 1)}\nbuffer_atomic_umax v1, v2, s[88:91], 0 offen")
        return
    b("s_getreg_b32 s94, hwreg(HW_REG_XCC_ID)\nv_writelane_b32 v14, s94, 63\nv_writelane_b32 v14, s65, 62\nv_writelane_b32 v14, s64, 61")
    b("s_load_dwordx2 s[92:93], s[0:1], 96\ns_waitcnt lgkmcnt(0)")
    b(f"s_add_u32 s88, s92, {(48+k)*1024*1024}\ns_addc_u32 s89, s93, 0\ns_mov_b32 s90, 0x100000\ns_mov_b32 s91, 0x20000")
    b(f"s_lshl_b32 s94, s97, 2\ns_add_u32 s94, s94, s{wave}\ns_lshl_b32 s94, s94, 9")
    b("v_and_b32 v1, 63, v0\nv_lshlrev_b32 v1, 3, v1")
    b("buffer_store_dwordx2 v[14:15], v1, s[88:91], s94 offen")

def persist_regs(b):
    lane = T0; t1 = T0 + 1; t2 = T0 + 2; t3 = T0 + 3; g_ = T0 + 4; ihi = T0 + 5; i8 = T0 + 6; i16 = T0 + 7; r_ = T0 + 8; c4 = T0 + 9
    b(f"""v_and_b32 v{lane}, 63, v0
    v_lshrrev_b32 v{g_}, 4, v{lane}
    v_lshrrev_b32 v{ihi}, 3, v{lane}
    v_and_b32 v{i8}, 7, v{lane}
    v_and_b32 v{i16}, 15, v{lane}
    v_lshrrev_b32 v{r_}, 2, v{i16}
    v_and_b32 v{c4}, 3, v{lane}
    v_lshlrev_b32 v{VLN}, 4, v{lane}
    s_add_u32 s71, s63, s{sWB}
    v_add_u32 v{VO}, s71, v{VLN}""")
    b(f"""s_lshl_b32 s70, s{sWAVE}, 11
    v_lshlrev_b32 v{t1}, 8, v{g_}
    v_add_u32 v{t1}, s70, v{t1}
    s_and_b32 s70, s{sWAVE}, 1
    s_lshl_b32 s70, s70, 3
    v_xor_b32 v{t2}, v{i16}, v{g_}
    v_xor_b32 v{t2}, s70, v{t2}
    v_lshl_add_u32 v{DK0}, v{t2}, 4, v{t1}
    v_xor_b32 v{DK1}, 64, v{DK0}
    v_lshlrev_b32 v{t2}, 1, v{g_}
    v_xor_b32 v{t3}, v{t2}, v{i16}
    v_lshl_add_u32 v{DV0}, v{t3}, 4, v{t1}
    v_xor_b32 v{DV1}, 128, v{DV0}""")
    b(f"""v_mul_u32_u24 v{t1}, 1152, v{ihi}
    v_lshl_add_u32 v{t1}, v{i8}, 4, v{t1}
    s_lshl_b32 s70, s{sWAVE}, 7
    v_add_u32 v{VWO}, s70, v{t1}
    v_lshrrev_b32 v{t1}, 1, v{lane}
    v_mul_u32_u24 v{t1}, 1152, v{t1}
    v_and_b32 v{t2}, 1, v{lane}
    v_lshl_add_u32 v{t1}, v{t2}, 4, v{t1}
    s_lshl_b32 s70, s{sWAVE}, 5
    s_add_u32 s70, s70, 1024
    v_add_u32 v{VWX}, s70, v{t1}""")
    b(f"""v_xor_b32 v{t2}, v{g_}, v{i16}
    v_lshlrev_b32 v{t2}, 4, v{t2}
    v_lshl_add_u32 v{KA}, v{i16}, 8, v{t2}""")
    for s_ in range(1, 4): b(f"v_xor_b32 v{KA+s_}, {64*s_}, v{KA}")
    b(f"""v_lshl_add_u32 v{t2}, v{g_}, 2, v{r_}
    v_lshlrev_b32 v{t1}, 8, v{t2}
    v_and_b32 v{t2}, 7, v{t2}
    v_lshl_add_u32 v{t1}, v{t2}, 5, v{t1}
    v_lshl_add_u32 v{t1}, v{c4}, 3, v{t1}
    v_add_u32 v{VA}, 0x10000, v{t1}""")
    for T in range(1, 8): b(f"v_xor_b32 v{VA+T}, {32*T}, v{VA}")
    b(f"""v_lshl_add_u32 v{t2}, v{g_}, 2, v{r_}
    v_lshlrev_b32 v{t1}, 7, v{t2}
    v_lshl_add_u32 v{t1}, v{c4}, 3, v{t1}
    s_lshr_b32 s70, s{sWAVE}, 1
    s_lshl_b32 s70, s70, 16
    s_and_b32 s71, s{sWAVE}, 1
    s_lshl_b32 s{sWOS}, s71, 13
    s_add_u32 s{sWOS}, s{sWOS}, s70
    s_lshl_b32 s{sWTS}, s71, 10
    s_add_u32 s{sWTS}, s{sWTS}, s70
    s_add_u32 s{sWTS}, s{sWTS}, 47104
    {f"s_lshl_b32 s{sWTS}, s{sWAVE}, 10" if OPT.get('fsq') else ""}
    {f"s_add_u32 s{sWTS}, s{sWTS}, 147456" if OPT.get('fsq') else ""}
    v_add_u32 v{VWA}, s{sWOS}, v{t1}
    v_lshlrev_b32 v{t1}, 3, v{lane}
    v_add_u32 v{VWE}, s{sWTS}, v{t1}""")

def late_setup(b, sfx):
    b(f"""s_lshl_b32 s71, s68, 4
    s_add_u32 s71, s71, s69
    s_lshl_b32 s70, s71, 19
    s_add_u32 s{SK}, s50, s70
    s_addc_u32 s{SK+1}, s51, 0
    s_mov_b32 s{SK+2}, 524288
    s_mov_b32 s{SK+3}, 0x20000
    s_add_u32 s{SV}, s52, s70
    s_addc_u32 s{SV+1}, s53, 0
    s_mov_b32 s{SV+2}, 524288
    s_mov_b32 s{SV+3}, 0x20000
    s_mul_i32 s70, s3, {O_BLK}
    s_add_u32 s{SO}, s100, s70
    s_addc_u32 s{SO+1}, s101, 0
    s_mov_b32 s{SO+2}, {O_BLK}
    s_mov_b32 s{SO+3}, 0x20000
    s_mul_i32 s70, s71, 36864
    s_add_u32 s{SWO}, s56, s70
    s_addc_u32 s{SWO+1}, s57, 0
    s_mov_b32 s{SWO+2}, 36864
    s_mov_b32 s{SWO+3}, 0x20000
    s_mul_i32 s71, s3, {WOT_BLK}
    s_add_u32 s70, s70, s71
    s_add_u32 s70, s70, {WOT_OFF}
    s_add_u32 s{SWT}, s100, s70
    s_addc_u32 s{SWT+1}, s101, 0
    s_mov_b32 s{SWT+2}, 36864
    s_mov_b32 s{SWT+3}, 0x20000
    s_mul_i32 s62, s69, {8*122880}
    s_mul_i32 s63, s68, 15360        ; b*15*1024
    s_add_u32 s{SCN}, s100, {CNT_OFF}
    s_addc_u32 s{SCN+1}, s101, 0
    s_mov_b32 s{SCN+2}, 24576
    s_mov_b32 s{SCN+3}, 0x20000
    s_mov_b64 s[{SDB}:{SDB+1}], s[78:79]
    s_mov_b32 s{SDB+2}, 256
    s_mov_b32 s{SDB+3}, 0x20000
    s_mov_b64 s[{SIN}:{SIN+1}], s[{SCN}:{SCN+1}]
    s_mov_b32 s{SIN+3}, 0x20000
    s_mov_b64 s[{SIF}:{SIF+1}], s[78:79]
    s_mov_b32 s{SIF+3}, 0x20000
    s_lshl_b32 s70, s3, 3
    s_add_u32 s70, s70, s68
    s_lshl_b32 s{sCO}, s70, 2
    s_lshr_b32 s71, s69, 2
    s_add_u32 s{sCO}, s{sCO}, s71
    s_lshl_b32 s{sCO}, s{sCO}, 7
    s_lshr_b32 s{sCW}, s70, 1
    s_lshl_b32 s{sCW}, s{sCW}, 7
    s_add_u32 s{sCW}, s{sCW}, 8192
    s_and_b32 s70, s97, 1
    s_mul_i32 s70, s70, {30 + OPT.get('bal', 0)}
    s_add_u32 s2, s2, s70              ; tile number inside the pair of workgroup classes (0..59 real)
    s_cmp_eq_u32 s70, 0
    s_cselect_b32 s71, {30 + OPT.get('bal', 0)}, 60
    s_cmp_ge_u32 s2, s71
    s_cselect_b32 s{sIDLE}, 1, 0       ; no output tile for this workgroup
    s_mul_i32 s68, s2, 43
    s_lshr_b32 s68, s68, 8
    s_mul_i32 s69, s68, 6
    s_sub_u32 s69, s2, s69             ; nt
    s_bfe_u32 s70, s97, 0x10001
    s_mul_i32 s70, s70, 10
    s_add_u32 s68, s68, s70            ; mt
    s_mul_i32 s92, s69, {OPT.get('krot', 0)}
    s_add_u32 s92, s92, s68
    s_and_b32 s92, s92, 3""")
    if OPT.get('s2t'):
        b(f"""s_lshr_b32 s2, s97, 3
        s_mul_i32 s68, s2, 86
        s_lshr_b32 s68, s68, 8
        s_mul_i32 s69, s68, 3
        s_sub_u32 s69, s2, s69
        s_and_b32 s70, s97, 1
        s_mul_i32 s70, s70, 3
        s_add_u32 s69, s69, s70
        s_bfe_u32 s70, s97, 0x10001
        s_mul_i32 s70, s70, 10
        s_add_u32 s68, s68, s70""")
        if OPT['s2t'] >= 2:
            b(f"""s_and_b32 s92, s68, 1
            s_lshl_b32 s92, s92, 1
            s_lshr_b32 s70, s{sWAVE}, 1
            s_add_u32 s92, s92, s70
            s_and_b32 s68, s68, 30
            s_and_b32 s70, s{sWAVE}, 1
            s_add_u32 s68, s68, s70""")
        else: b(f"s_mov_b32 s92, s{sWAVE}")
    KQ = 92 if OPT.get('s2t') else sWAVE
    b(f"""
    s_mul_i32 s79, s68, 103
    s_lshr_b32 s79, s79, 8
    s_mul_i32 s78, s68, 96
    s_add_u32 s78, s78, 95
    s_mul_i32 s78, s78, 4370
    s_lshr_b32 s78, s78, 20
    s_lshl_b32 s70, s3, 3
    s_add_u32 s78, s78, s70
    s_add_u32 s79, s79, s70
    s_lshl_b32 s78, s78, 2
    s_lshl_b32 s79, s79, 2
    s_add_u32 s78, s78, s{KQ}
    s_add_u32 s79, s79, s{KQ}
    s_lshl_b32 s78, s78, 7
    s_lshl_b32 s79, s79, 7
    s_mul_i32 s70, s3, {O_BLK}
    s_mul_i32 s71, s68, 6144
    s_add_u32 s70, s70, s71
    s_add_u32 s{SO2}, s100, s70
    s_addc_u32 s{SO2+1}, s101, 0
    s_sub_u32 s{SO2+2}, {O_BLK}, s71
    s_mov_b32 s{SO2+3}, 0x20000
    s_mul_i32 s70, s3, {WOT_BLK}
    s_mul_i32 s71, s69, 6144
    s_add_u32 s70, s70, s71
    s_add_u32 s70, s70, {WOT_OFF}
    s_add_u32 s{SW2}, s100, s70
    s_addc_u32 s{SW2+1}, s101, 0
    s_sub_u32 s{SW2+2}, {WOT_BLK}, s71
    s_mov_b32 s{SW2+3}, 0x20000
    s_cmp_eq_u32 s{sIDLE}, 1
    s_cselect_b32 s{SO2+2}, 0, s{SO2+2}   ; workgroups without an output tile load nothing
    s_cselect_b32 s{SW2+2}, 0, s{SW2+2}
    s_mov_b32 s100, s{SO2+2}
    s_mov_b32 s101, s{SW2+2}
    s_lshr_b32 s70, s{sWAVE}, 1
    s_mul_i32 s70, s70, {48*2304}
    s_mul_i32 s{sOUTO}, s68, {96*2304}
    s_add_u32 s{sOUTO}, s{sOUTO}, s70
    s_mul_i32 s70, s3, 1152
    s_add_u32 s{sOUTO}, s{sOUTO}, s70
    s_mul_i32 s70, s69, 192
    s_add_u32 s{sOUTO}, s{sOUTO}, s70
    s_and_b32 s70, s{sWAVE}, 1
    s_mul_i32 s70, s70, 96
    s_add_u32 s{sOUTO}, s{sOUTO}, s70
    s_lshl_b32 s70, s3, 2
    s_add_u32 s70, s70, s{KQ}
    s_lshl_b32 s70, s70, 7
    s_add_u32 s70, s70, 8192
    v_and_b32 v1, 1, v0
    v_mov_b32 v{VP2}, s78
    v_mov_b32 v2, s79
    v_cmp_eq_u32 vcc, 1, v1
    v_and_b32 v1, 2, v0
    v_mov_b32 v3, s70
    v_cndmask_b32 v{VP2}, v{VP2}, v2, vcc
    v_cmp_eq_u32 vcc, 2, v1
    v_add_u32 v{VPE}, 16384, v{VP2}
    v_mov_b32 v{VTH}, 4
    v_cndmask_b32 v{VPE}, v{VPE}, v3, vcc
    v_mov_b32 v3, 32
    v_cndmask_b32 v{VTH}, v{VTH}, v3, vcc
    s_mov_b32 s{sSIG}, 0""")
    b(f"L_late{sfx}:")
    b(f"""s_or_b32 s70, s97, s{sSAFE}
    s_cmp_eq_u32 s70, 0
    s_cselect_b32 s{SIN+2}, 24576, 0   ; only workgroup 0 (first pass) really initialises the counters
    s_cselect_b32 s{SIF+2}, 4, 0
    s_mov_b32 s{sOO}, s62
    s_mov_b32 s{sLATE}, 0
    s_mov_b32 s{SO2+2}, s100
    s_mov_b32 s{SW2+2}, s101
    {p2_init()}
    s_lshr_b32 s{sRT}, s97, {OPT.get('rsh', 3)}
    s_mul_i32 s{sRT}, s{sRT}, {OPT.get('rot', 0) or 1}
    s_mul_i32 s70, s{sRT}, 5042
    s_lshr_b32 s70, s70, 16
    s_mul_i32 s70, s70, 13
    s_sub_u32 s{sRT}, s{sRT}, s70
    s_lshl_b32 s{sRT}, s{sRT}, 14
    s_lshl_b32 s{sKB}, s{sWAVE}, 11""")

def warm_code(b):
    if not OPT.get('warm'): return
    b(f"""s_getpc_b64 s[70:71]
    L_pc:
    s_sub_u32 s70, s70, L_pc-attn_kernel
    s_subb_u32 s71, s71, 0
    v_mul_u32_u24 v2, 40, v0
    v_lshrrev_b32 v2, 8, v2
    s_mul_i32 s68, s2, 40
    v_add_u32 v2, s68, v2
    v_lshlrev_b32 v2, 7, v2
    v_min_u32 v2, L_codeend-attn_kernel-4, v2
    v_mov_b32 v3, s71
    v_add_co_u32 v2, vcc, s70, v2
    v_addc_co_u32 v3, vcc, 0, v3, vcc
    global_load_dword v4, v[2:3], off""")

def prologue_a(b):
    lane = T0; t1 = T0 + 1; t2 = T0 + 2; t3 = T0 + 3; g_ = T0 + 4; ihi = T0 + 5; i8 = T0 + 6
    b(f"""v_and_b32 v{lane}, 63, v0
    v_lshrrev_b32 v{g_}, 4, v{lane}
    v_lshrrev_b32 v{ihi}, 3, v{lane}
    v_and_b32 v{i8}, 7, v{lane}""")
    b(f"s_lshl_b32 s{sT}, s{sWAVE}, 6")
    b(f"v_add_u32 v{t1}, s{sT}, v{ihi}")
    b(f"v_mul_u32_u24 v{t1}, 1152, v{t1}")
    for j in range(4):
        b(f"v_xor_b32 v{t2}, {4*(j%2)}, v{g_}")
        b(f"v_xor_b32 v{t2}, v{t2}, v{i8}")
        b(f"v_lshl_add_u32 v{t2}, v{t2}, 4, v{t1}")
        b(f"v_add_u32 v{DX+j}, {8*j*1152 - 1024*j}, v{t2}")
    b(f"""s_and_b32 s{sT}, s{sWAVE}, 1
    s_lshl_b32 s{sT}, s{sT}, 18
    s_lshr_b32 s{sT+1}, s{sWAVE}, 1
    s_lshl_b32 s{sT+1}, s{sT+1}, 7
    s_add_u32 s{sT}, s{sT}, s{sT+1}
    v_lshlrev_b32 v{t1}, 13, v{ihi}
    v_add_u32 v{t1}, s{sT}, v{t1}
    v_lshrrev_b32 v{t2}, 2, v{i8}
    v_xor_b32 v{t2}, v{t2}, v{g_}
    v_and_b32 v{t2}, 1, v{t2}
    v_lshl_add_u32 v{t1}, v{t2}, 6, v{t1}
    v_and_b32 v{t2}, 3, v{i8}
    v_lshl_add_u32 v{t1}, v{t2}, 4, v{t1}""")
    for j in range(4): b(f"v_add_u32 v{DW+j}, {8*j*8192 - 1024*j}, v{t1}")
    b(f"""s_mov_b32 s{sXO}, 0
    s_mov_b32 s{sXO2}, 36864
    s_mov_b32 s{sWOFF}, 0
    s_mov_b32 s{sKV}, 0
    s_mov_b32 s{sHEAD}, 0""")

def prologue_b(b):
    lane = T0; t1 = T0 + 1; t2 = T0 + 2; t3 = T0 + 3; g_ = T0 + 4; ihi = T0 + 5; i8 = T0 + 6
    if OPT.get('sstamps'): stamp(b)
    b.ext(x_dma(0, 4)); b.ext(w_dma(0, 4))
    if OPT.get('ord') == 1: b.ext(w_dma(1, 4)); b.ext(x_dma(1, 4))
    if OPT.get('ord') == 2: b.ext(w_dma(1, 4))
    if OPT.get('sstamps'): stamp(b)
    if OPT.get('xw'):
        pf = K2F[OPT.get('xwf', 0)]
        b(f"""s_lshr_b32 s70, s2, 2
        s_mul_i32 s70, s70, 270
        s_mul_i32 s71, s{sWAVE}, 68
        s_add_u32 s70, s70, s71
        s_lshl_b32 s70, s70, 7
        v_lshlrev_b32 v5, 7, v{lane}
        buffer_load_dword v6, v5, s[{SX}:{SX+3}], s70 offen{pf}
        s_and_b32 s70, s2, 3
        s_lshl_b32 s70, s70, 2
        s_add_u32 s70, s70, s{sWAVE}
        s_lshl_b32 s70, s70, 13
        v_lshrrev_b32 v5, 2, v{lane}
        v_lshlrev_b32 v5, 17, v5
        v_and_b32 v7, 3, v{lane}
        v_lshl_add_u32 v5, v7, 7, v5
        buffer_load_dword v6, v5, s[{SW}:{SW+3}], s70 offen{pf}
        s_add_u32 s70, s70, {256*8192}
        buffer_load_dword v6, v5, s[{SW}:{SW+3}], s70 offen{pf}
        s_add_u32 s70, s70, {256*8192}
        buffer_load_dword v6, v5, s[{SW}:{SW+3}], s70 offen{pf}""")
    late_setup(b, "")
    if OPT.get('tlb'):
        for srd in (SK, SV, SWO): b(f"buffer_load_dword v1, off, s[{srd}:{srd+3}], 0 nt")
        if OPT['tlb'] > 1:
            b(f"s_mov_b64 exec, 1\nbuffer_store_dword v1, off, s[{SWT}:{SWT+3}], s{sWB} sc1\ns_mov_b64 exec, -1")
    persist_regs(b)
    b(f"""v_mov_b32 v{VONE}, 1
    s_and_b32 s70, s{sWAVE}, 1
    s_mul_i32 s70, s70, 3072
    s_sub_u32 s71, 3072, s70
    v_add_u32 v{VPW}, s70, v{VLN}
    v_add_u32 v{VPW+1}, s71, v{VLN}
    s_lshr_b32 s70, s{sWAVE}, 1
    s_mul_i32 s70, s70, 3072
    s_sub_u32 s71, 3072, s70
    v_add_u32 v{VPO}, s70, v{VLN}
    v_add_u32 v{VPO+1}, s71, v{VLN}""")
    i16 = T0 + 7; r_ = T0 + 8; c4 = T0 + 9
    b(f"""v_and_b32 v{i16}, 15, v{lane}
    v_lshrrev_b32 v{r_}, 2, v{i16}
    v_and_b32 v{c4}, 3, v{lane}
    v_lshlrev_b32 v{t1}, 7, v{i16}
    v_add_u32 v{t1}, s{sXB}, v{t1}
    v_add_u32 v{t1}, 16384, v{t1}
    v_lshrrev_b32 v{t3}, 1, v{i16}""")
    for s in range(2):
        b(f"v_xor_b32 v{t2}, {4*s}, v{g_}")
        b(f"v_xor_b32 v{t2}, v{t2}, v{t3}")
        b(f"v_lshl_add_u32 v{XA+s}, v{t2}, 4, v{t1}\nv_add_u32 v{XA+2+s}, 65536, v{XA+s}")
    b(f"""v_lshl_add_u32 v{t1}, v{g_}, 3, v{r_}
    v_lshlrev_b32 v{t1}, 7, v{t1}
    v_lshl_add_u32 v{t1}, v{c4}, 4, v{t1}
    v_add_u32 v{t1}, 49152, v{t1}
    v_lshrrev_b32 v{t3}, 1, v{r_}""")
    for sp in range(2):
        b(f"v_xor_b32 v{t2}, {sp}, v{t3}")
        b(f"v_lshl_add_u32 v{WA+sp}, v{t2}, 6, v{t1}\nv_add_u32 v{WA+2+sp}, 65536, v{WA+sp}")
    if OPT.get('sstamps'): stamp(b)
    if not OPT.get('ord'): b.ext(w_dma(1, 4))
    if OPT.get('ord') != 1: b.ext(x_dma(1, 4))

def wave_code(b, nq, sfx):
    nx = 8 if nq == 4 else 6
    b(f"L_begin{sfx}:")
    if nq == 3:
        b(f"v_mov_b32 v{VHS}, 0\nv_lshlrev_b32 v{VCW}, 3, v{VLN}")
        b(f"buffer_store_dword v{VHS}, v{VCW}, s[{SIN}:{SIN+3}], 0 offen sc1 ; tag=INIT")
        b(f"s_mov_b32 s{sT}, 8192\nbuffer_store_dword v{VHS}, v{VCW}, s[{SIN}:{SIN+3}], s{sT} offen sc1 ; tag=INIT")
        b(f"s_mov_b32 s{sT}, 16384\nbuffer_store_dword v{VHS}, v{VCW}, s[{SIN}:{SIN+3}], s{sT} offen sc1 ; tag=INIT")
    stamp(b, 0)
    if OPT.get('fsq'):
        b(f"s_mov_b32 s{sFQ}, 0\nv_mov_b32 v{QFB}, {QFLAGS}\nv_lshl_add_u32 v{QFA}, s{sWAVE}, 2, v{QFB}")
    b("WAITV ; cover=X0,W0")
    b("s_barrier ; pub=X0,W0")
    b.ext(x_reads(0, nq))
    for T in (0, 1): b.ext(w_reads(0, T))
    b.ext(w_reads(0, 2)[:3])
    b("WAITL W0.0")
    stamp(b, 1)
    for n in range(0, 12): qproj_stage(b, n, nq)
    fill = []; post = []
    for sp in range(4):
        for q in range(nq):
            rs = [128 + 32 * q + 8 * sp + 2 * i_ for i_ in range(4)]
            for r in rs: fill += [f"v_mul_f32 v{r}, s{sC}, v{r}", f"v_mul_f32 v{r+1}, s{sC}, v{r+1}"]
            for r in rs: fill.append(f"v_cvt_pk_bf16_f32 v{r}, v{r}, v{r+1}")
            for i_, r in enumerate(rs): fill.append(f"v_accvgpr_write_b32 a{AQ(q) + 4*sp + i_}, v{r}")
    for n in range(12, 18): qproj_stage(b, n, nq, fill if n >= 16 else None)
    stamp(b, 2)
    conv2 = []
    for q in range(nq):
        for h in range(8):
            r = 128 + 32 * q + 4 * h
            conv2 += [f"v_accvgpr_read_b32 v{4+i_}, a{r+i_}" for i_ in range(4)]
            conv2 += [f"v_mul_f32 v{4+i_}, s{sC}, v{4+i_}" for i_ in range(4)]
            conv2 += ["v_cvt_pk_bf16_f32 v4, v4, v5", "v_cvt_pk_bf16_f32 v6, v6, v7",
                      f"v_accvgpr_write_b32 a{AQ2(q)+2*h}, v4", f"v_accvgpr_write_b32 a{AQ2(q)+2*h+1}, v6"]
    def pre_mfma(): return [qk(q, 0, s_, czero=True) for q in range(nq) for s_ in range(4)]
    def pre_max():
        t = B()
        for q in range(nq):
            s_ = S_ + 8 * q
            t(f"v_max3_f32 v{s_}, v{s_}, v{s_+1}, v{s_+2}")
        for q in range(nq):
            s_ = S_ + 8 * q
            t(f"v_max_f32 v{s_}, v{s_}, v{s_+3}")
        xlane_reduce_multi(t, [S_ + 8 * q for q in range(nq)], [T0 + q for q in range(nq)], "v_max_f32")
        for q in range(nq):
            for r in range(4): t(f"v_sub_f32 v{CI+4*q+r}, 0, v{S_+8*q}")
        return t.L
    def weave(mf, st, per):
        for x in mf:
            b(x)
            for _ in range(per):
                if st: b(st.pop(0))
    def zipper(a_, b_, ra, rb):
        out = []
        while a_ or b_:
            for _ in range(ra):
                if a_: out.append(a_.pop(0))
            for _ in range(rb):
                if b_: out.append(b_.pop(0))
        return out
    b.ext(k_reads(0, 0))
    b.ext(fill)
    b(f"v_and_b32 v4, 3, v0\nv_mov_b32 v5, 0x3f803f80\nv_cmp_eq_u32 vcc, 0, v4")
    for i_ in range(4): b(f"v_cndmask_b32 v{ONES+i_}, 0, v5, vcc")
    b("s_waitcnt lgkmcnt(0)")
    if OPT.get('wts'):
        mv = [f"v_mov_b32 v{192+i_}, v{WOF+i_}" for i_ in range(36)]
        b.ext(mv[:8])
        mv = mv[8:]
        weave(pre_mfma()[:8], mv, 4)
        b.ext(mv); b.ext(pre_mfma()[8:])
    else: b.ext(pre_mfma())
    b.ext(pre_max())
    stamp(b, 3)
    for i_ in range(OPT.get('pause', 0)): b('s_sleep 32')
    if OPT.get('skew'):
        b(f"s_lshr_b32 s{sT}, s97, 3\ns_and_b32 s{sT}, s{sT}, 7\nL_skew{sfx}:\ns_cmp_eq_u32 s{sT}, 0\ns_cbranch_scc1 L_skewd{sfx}\ns_sleep {OPT['skew']}\ns_sub_u32 s{sT}, s{sT}, 1\ns_branch L_skew{sfx}\nL_skewd{sfx}:")
    adv8 = lambda x: x
    def head_start(hd):
        b(f"s_cmp_lg_u32 s{sSAFE}, 0\ns_cbranch_scc1 L_maxpass{sfx}\nL_maxdone{hd}{sfx}:")
        if not LM:
            for q in range(nq): b(f"v_mov_b32 v{LS+q}, 0")
        stamp(b)
    if OPT.get('wtp') == 2 and nq == 3: b("WAITV ; cover=WT\nbuffer_wbl2 sc1 ; tag=WT")
    if OPT.get('pz'): b(f"s_mov_b32 s{sPW}, 99\ns_mov_b32 s{sPZ}, 0")
    if OPT.get('pz') and nq == 3: b(f"v_bfe_u32 v{VPA}, v0, 2, 2\nv_xor_b32 v{VPA}, 3, v{VPA}\nv_lshlrev_b32 v{VPA}, 7, v{VPA}\nv_sub_u32 v{VPA}, v{VPE}, v{VPA}")
    head_start(0)
    per = -(-len(conv2) // 8); tot_ = len(conv2)
    for k in range(8):
        ex = []
        if k == 0 and OPT.get('wts'):
            for i_ in range(8 if OPT.get('fsq') else 9):
                g = 2 + 7 * i_
                if i_ < 8: ex.append((g - 1, f"s_add_u32 s{sT+1}, s{sWB}, {16384*(i_//4)}"))
                else: ex += [(g - 2, f"s_lshl_b32 s{sT+1}, s{sWAVE}, 10"), (g - 1, f"s_add_u32 s{sT+1}, s{sT+1}, 32768")]
                ex.append((g, f"buffer_store_dwordx4 {vr(192+4*i_,4)}, v{VLN}, s[{SWT}:{SWT+3}], s{sT+1} offen offset:{1024*(i_%4) if i_ < 8 else 0} sc1 ; tag=WT"))
        if OPT.get('fsq'):
            A9 = 192 if nq == 4 else 224
            if k == 1: ex += [(5, f"s_mov_b32 m0, s{sWTS}"), (6, dma(VWX, SWO, "0", 0, fl('nt_wo'), "W9X"))]
            if k == 6: ex += [(3, "WAITV ; cover=W9X"), (4, f"ds_read_b64_tr_b16 {ar(A9,2)}, v{VWE} offset:0"), (5, f"ds_read_b64_tr_b16 {ar(A9+2,2)}, v{VWE} offset:512")]
            if k == 7: ex += [(4, f"s_lshl_b32 s{sT+1}, s{sWAVE}, 10"), (5, f"s_add_u32 s{sT+1}, s{sT+1}, 32768"),
                              (25, f"buffer_store_dwordx4 {ar(A9,4)}, v{VLN}, s[{SWT}:{SWT+3}], s{sT+1} offen sc1 ; tag=WT")]
        if k == 6 and nq == 3:
            ex += [(46, "WAITV ; cover=HS"), (47, f"v_readfirstlane_b32 s{sT}, v{VHS}\ns_cmp_eq_u32 s{sT}, 0\ns_cbranch_scc1 L_hspin\nL_hsok:")]
        cnt_ = per
        if OPT.get('front'): cnt_ = -(-tot_ * {1: (8, 8, 7, 7, 6, 5, 4, 3), 2: (3, 4, 5, 6, 7, 7, 8, 8), 3: (12, 12, 12, 12, 0, 0, 0, 0)}[OPT['front']][k] // 48)
        attn_stage(b, k, nq, ex, fill=[conv2.pop(0) for _ in range(min(cnt_, len(conv2)))])
    b(f"L_atin{sfx}:")
    b(f"s_mov_b32 s{sCNT}, 0")
    b(f".p2align 3\nL_at{sfx}:")
    b("LOOPBEGIN at 3 8")
    for k in range(8, 16):
        ex = []
        if k == 11 and nq == 3 and not OPT.get('pz'):
            ex = [(59, f"""s_xor_b32 s{sT+1}, s{sHEAD}, 1
            s_or_b32 s{sT}, s{sCNT}, s{sT+1}
            s_cbranch_scc0 L_sig
            L_nosig:""")]
        if OPT.get('pz') and nq == 3:
            if k == 11: ex = [(58, f"s_cmp_eq_u32 s{sPW}, 99"), (60, f"s_cbranch_scc1 L_nop3\nbuffer_load_dword v{VCW}, v{VPA}, s[{SCN}:{SCN+3}], 0 offen sc1 ; cond\nL_nop3:")]
            if k == 13: ex = [(BG + 1, f"s_getreg_b32 s{sST}, hwreg(HW_REG_IB_STS)")]
            if k == 15:
                ex = [(BG - 1, f"""v_cmp_gt_u32 vcc, v{VTH}, v{VCW}
                v_mov_b32 v5, {DEC}
                s_and_b32 s{sT}, s{sST}, 15
                s_lshr_b32 s{sT+1}, s{sST}, 30
                s_lshl_b32 s{sT+1}, s{sT+1}, 4
                s_or_b32 s{sT}, s{sT}, s{sT+1}
                s_cmp_ge_u32 s{sT}, {OPT.get('pzt', 0)}
                s_cselect_b32 s{sT}, 1, 0
                s_cmp_eq_u64 vcc, 0
                s_cselect_b32 s{sT}, s{sT}, 0
                v_mov_b32 v4, s{sT}
                ds_write_b32 v5, v4
                s_waitcnt lgkmcnt(0)""")]
        if k == 9 and OPT.get('pz'): b(f"L_at1{sfx}:")
        if k == 15:
            if OPT.get('pz'): ex += [(NS - 4, f"s_add_u32 s{sCNT}, s{sCNT}, 1"), (NS - 2, f"s_cmp_ge_u32 s{sCNT}, s{sPW}")]
            else: ex += [(NS - 6, f"s_add_u32 s{sCNT}, s{sCNT}, 1"), (NS - 4, f"s_add_u32 s{sT}, s{sCNT}, s{sHEAD}"), (NS - 2, f"s_cmp_lt_u32 s{sT}, 3")]
        attn_stage(b, k, nq, ex)
    if OPT.get('pz'): b(f"s_cbranch_scc1 L_pchk{sfx}\nL_pret{sfx}:\ns_add_u32 s{sT}, s{sCNT}, s{sHEAD}\ns_cmp_lt_u32 s{sT}, 3")
    if OPT.get('midgap'):
        b(f"s_cselect_b32 s{sT+1}, 1, 0\ns_lshl_b32 s{sT}, s{sHEAD}, 4\ns_add_u32 s{sT}, s{sT}, s{sCNT}\ns_cmp_eq_u32 s{sT}, {OPT.get('midat', 1)}\ns_cbranch_scc0 L_ng{sfx}")
        for i_ in range(OPT['midgap']): b("s_sleep 16")
        b(f"L_ng{sfx}:\ns_cmp_eq_u32 s{sT+1}, 1")
    b(f"s_cbranch_scc1 L_at{sfx}")
    b("LOOPEND at")
    b(f"L_atx{sfx}:")
    b(f"s_cmp_lg_u32 s{sHEAD}, 0\ns_cbranch_scc1 L_fin{sfx}")

    def lsum(qs):
        t = B()
        if not LM: xlane_reduce_multi(t, [LS + q for q in qs], [T0 + 4 + q for q in qs], "v_add_f32")
        for q in qs:
            src = LA + 4 * q if LM else LS + q
            t(f"v_cmp_ngt_f32 vcc, {LTHR}, v{src}")
            t(f"v_rcp_f32 v{LS+q}, v{src}")
            t(f"s_or_b32 s{sFLAG}, s{sFLAG}, vcc_lo\ns_or_b32 s{sFLAG}, s{sFLAG}, vcc_hi")
        return t.L
    cnt = [0]
    def onorm(q, pk, flag, inplace=False, so=None):
        out = []
        for sp in range(4):
            d = P_ + 4 * (cnt[0] % 2); cnt[0] += 1
            if inplace: d = O_ + 32 * q + 8 * sp
            rs = [O_ + 32 * q + 8 * sp + 2 * i_ for i_ in range(4)]
            for r in rs:
                if pk and OPT.get('pk', 1): out.append(f"v_pk_mul_f32 v[{r}:{r+1}], v[{r}:{r+1}], v[{LS+q-(q%2)}:{LS+q-(q%2)+1}] op_sel:[0,{q%2}] op_sel_hi:[1,{q%2}]")
                else: out += [f"v_mul_f32 v{r}, v{r}, v{LS+q}", f"v_mul_f32 v{r+1}, v{r+1}, v{LS+q}"]
            for i_, r in enumerate(rs): out.append(f"v_cvt_pk_bf16_f32 v{d+i_}, v{r}, v{r+1}")
            if flag is None:
                for i_ in range(4): out.append(f"v_accvgpr_write_b32 a{AST+16*q+4*sp+i_}, v{d+i_}")
                continue
            if so:
                out[-1] += f"\ns_add_u32 s{sT+1}, s{so}, {sp*122880}\nbuffer_store_dwordx4 {vr(d,4)}, v{VO}, s[{SO}:{SO+3}], s{sT+1} offen offset:{1024*q}{flag}"
                continue
            out.append(f"s_add_u32 s{sT}, s{sOO}, {sp*122880}")
            out.append(f"buffer_store_dwordx4 {vr(d,4)}, v{VO}, s[{SO}:{SO+3}], s{sT} offen offset:{1024*q}{flag}")
        return out
    def drain(st, ld=None, every=1):
        slots = []; gaps = [[] for _ in range(18)]
        for q in (2, 3):
            for T in range(8): slots.append(pv(q, T) if q < nq else None)
            slots.append(lsm(q) if (q < nq and LM) else None)
        rem = sorted(sm_items(nq, NS, 2 * NS), key=lambda t: t[0])
        b.ext([sm_text(*k_) for g, k_ in rem if k_[1] == 2 and k_[0] != 'add'])
        crit = sorted([k_ for g, k_ in rem if k_[1] == 3 and k_[0] != 'add'], key=lambda k_: (k_[2], k_[0] == 'cvt'))
        g = 0
        for k_ in crit:
            if k_[0] == 'exp' and gaps[min(g, 6)]: g += 1
            gaps[min(g, 6)].append(sm_text(*k_))
            if k_[0] == 'exp' or len(gaps[min(g, 6)]) == 2: g += 1
        late = [sm_text(*k_) for g_, k_ in rem if k_[0] == 'add']
        for i_, x in enumerate(late): gaps[min(9 + i_ // 2, 16) if nq == 4 else 0].append(x)
        for g in range(18):
            if slots[g] is None: continue
            room = 2 - sum(2 if 'exp' in x else 1 for x in gaps[g])
            while room > 0 and st: gaps[g].append(st.pop(0)); room -= 1
        for i_, s_ in enumerate(slots):
            if s_: b(s_)
            if s_ and ld and (i_ % every == 0 or nq == 3):
                b(ld.pop(0))
                while ld and ld[0].startswith("s_"): b(ld.pop(0))
            b.ext(gaps[i_])
    hi = list(range(2, nq))
    movs = [f"v_accvgpr_mov_b32 a{AQ(q)+i_}, a{AQ2(q)+i_}" for q in range(nq) for i_ in range(16)]
    f0 = None if OPT.get('defer') else K2F[OPT.get('of0', 2)] + ' ; tag=WT'
    if OPT.get('wtp') == 1 and nq == 3: b("buffer_wbl2 sc1 ; tag=WT")
    st = lsum([0, 1]) + onorm(0, False, f0)
    SW2_ = OPT.get('sw2', 0)
    if SW2_:
        ld = []
        D_ = OPT.get('dist', 5 if OPT.get('fsa') else 6)
        if OPT.get('pair'):
            b(f"s_add_u32 s{sT+1}, s{sKV}, 8192")
            if OPT.get('fsa'): ld = v_dma(36) + v_dma(37, f"s{sT+1}") + adv2(sT + 1) + [f"s_add_u32 s{sT+1}, s{sKV}, 8192"] + k_dma(38) + k_dma(39, f"s{sT+1}")
            else: ld = k_dma(38) + k_dma(39, f"s{sT+1}") + v_dma(38) + v_dma(39, f"s{sT+1}") + adv2(sT + 1)
        else:
            for t in (32 + D_, 33 + D_): ld += k_dma(t) + v_dma(t) + kv_adv()
        b(ld.pop(0))
        ld2 = []
        for x in ld: ld2 += [x] if x.startswith('s_') else [x, 'v_nop']
        ld2 = [x for x in ld]
        drain(st, ld2, 2)
    else: drain(st)
    stamp(b, 4)
    b.ext(zipper(st, lsum(hi), 2, 1))
    b.ext(movs)
    st = onorm(1, False, f0)
    weave(pre_mfma(), st, 3 if nq == 4 else 4)
    b.ext(st)
    rest = []; late_ = []
    for q in hi:
        if SW2_ >= 2: late_ += onorm(q, False, f0, inplace=True, so=sOP)
        else: rest += onorm(q, True, f0)
    b.ext(zipper(rest, pre_max(), 2, 1))
    b.ext(vote_write())
    b(f"s_mov_b32 s{sOP}, s{sOO}\ns_add_u32 s{sOO}, s{sOO}, {4*122880}\ns_mov_b32 s{sHEAD}, 1")
    if OPT.get('emub'):
        b(f"s_and_b32 s{sT}, s97, 3\ns_cmp_eq_u32 s{sT}, s{sCNT}" if False else "")
        b(f"s_mov_b32 s{sT}, 0\nL_duma{sfx}:")
        for i_ in range(64):
            if (i_ // 2) % 4 >= nq: continue
            b(f"{MF} a[{192+4*(i_//2%16)}:{195+4*(i_//2%16)}], a[{4*(i_%8)}:{4*(i_%8)+3}], a[{32+4*(i_%7)}:{35+4*(i_%7)}], a[{192+4*(i_//2%16)}:{195+4*(i_//2%16)}]")
            if i_ % 2 == 0: b(f"ds_read_b64_tr_b16 v[4:5], v{VA + i_ % 8} offset:{(i_ % 16) * 4096}")
        b(f"s_waitcnt lgkmcnt(0)\ns_barrier\ns_add_u32 s{sT}, s{sT}, 1\ns_cmp_lt_u32 s{sT}, 8\ns_cbranch_scc1 L_duma{sfx}")
    if OPT.get('pz'):
        b(f"""s_and_b32 s{sT}, s97, 7
        s_lshl_b32 s{sT}, s{sT}, 2
        s_lshr_b32 s{sPW}, {OPT.get('pzc', 0x10210210):#x}, s{sT}
        s_and_b32 s{sPW}, s{sPW}, 15
        s_or_b32 s{sT}, s{sIDLE}, s{sSAFE}
        s_cselect_b32 s{sPW}, 0, s{sPW}
        s_cmp_eq_u32 s{sPW}, 0
        s_cselect_b32 s{sPW}, 99, s{sPW}""")
    head_start(1)
    dst = [(q, sp) for q in range(nq) for sp in range(4)] if OPT.get('defer') else []
    for k in range(32, 40):
        ex = []
        for g in (24, 25):
            if dst:
                q, sp = dst.pop(0)
                ex += [(g, f"s_add_u32 s{sT+1}, s{sOP}, {sp*122880}"),
                       (g, f"buffer_store_dwordx4 {ar(AST+16*q+4*sp,4)}, v{VO}, s[{SO}:{SO+3}], s{sT+1} offen offset:{1024*q} sc1 ; tag=WT")]
        if k == 39 and nq == 3 and OPT.get('pz'): ex.append((59, "s_branch L_sig\nL_nosig:"))
        attn_stage(b, k, nq, ex, fill=late_ if k == 32 else None)
    b(f"s_branch L_atin{sfx}")
    b("REPLAY at 32 2")
    b(f"L_fin{sfx}:")
    f1 = K2F[OPT.get('of', 0)]
    early = p2_w(0) + p2_o(0) + p2_adv(0) + p2_w(1) + p2_o(1) + p2_adv(1)
    if OPT.get('pre8'): early += (p2_w(2) + p2_o(2))[:8]
    for k in range(56, 64):
        ex = []
        if k == 56: ex = [(6, f"buffer_load_dword v{VCW}, v{VPE}, s[{SCN}:{SCN+3}], 0 offen sc1 ; tag=CW")]
        if k == 59: ex = [(NS - 3, f"WAITV ; cover=CW\nv_cmp_gt_u32 vcc, v{VTH}, v{VCW}\ns_cbranch_vccnz L_espin{sfx}\nL_eok{sfx}:" + (f"\ns_cmp_eq_u32 s{sPZ}, 0\ns_cselect_b64 vcc, -1, 0" if OPT.get('pz') else ""))]
        if k == 57 and OPT.get('pz'): b(f"L_t57{sfx}:")
        if k >= 60:
            for g in ((3, 7, 11, 17, 23, 33, 38, 55) if OPT.get('pre8') else (3, 7, 11, 17, 23, 45 if LM else 44)):
                if OPT.get('pz'):
                    t_ = [early.pop(0) + " condp"]
                    while early and early[0].startswith("s_"): t_.append(early.pop(0))
                    ex.append((g, f"s_cbranch_vccz L_sk{k}_{g}{sfx}\n" + "\n".join(t_) + f"\nL_sk{k}_{g}{sfx}:"))
                    continue
                ex.append((g, early.pop(0)))
                while early and early[0].startswith("s_"): ex.append((g + 1, early.pop(0)))
        attn_stage(b, k, nq, ex)
    assert not early
    p2 = []
    for s_ in (2, 3): p2 += p2_w(s_) + p2_o(s_) + p2_adv(s_)
    if OPT.get('pre8'): p2 = p2[8:]
    st = lsum([0, 1]) + onorm(0, False, f1)
    drain(st, p2)
    stamp(b, 5)
    body = st + zipper(onorm(1, True, f1), lsum(hi), 2, 1)
    for q in hi: body += onorm(q, True, f1)
    body = [x + " ; tag=OS" if x.startswith("buffer_store") else x for x in body]
    nld = sum(1 for x in p2 if x.startswith("buffer_"))
    per = max(1, len(body) // (nld + 2))
    seq = []
    while body or p2:
        if p2:
            seq.append(p2.pop(0))
            while p2 and p2[0].startswith("s_"): seq.append(p2.pop(0))
        for _ in range(per):
            if body: seq.append(body.pop(0))
    outst = 48 - nld
    for x in seq:
        if x.startswith("buffer_"):
            if outst >= 62: b("s_waitcnt vmcnt(52)"); outst = 52
            outst += 1
        b(x)
    b.ext(vote_write())
    stamp(b)
    if OPT.get('pz'): b(f"s_cmp_eq_u32 s{sPZ}, 1\ns_cbranch_scc1 L_p2p{sfx}\nALTFROM p")
    b(f"L_p2s{sfx}:")
    for s_ in range(4): p2_step(b, s_, s_ == 0, True, f"WAITV ; cover=P{s_} cap=51")
    b("WAITV lgkmcnt(0) ; cover=OS")
    b("s_branch L_vote")
    b(f"""L_espin{sfx}:
    s_mov_b32 s{sLATE}, 1
    s_mov_b32 s{SO2+2}, 0
    s_mov_b32 s{SW2+2}, 0
    s_branch L_eok{sfx}""")
    if nq == 3:
        b(f"""L_sig:
        v_mov_b32 v4, {131072+7168}
        ds_read_b128 v[4:7], v4
        s_waitcnt lgkmcnt(0)
        v_or_b32 v4, v4, v5
        v_or3_b32 v4, v4, v6, v7
        v_readfirstlane_b32 s{sT}, v4
        s_mov_b64 exec, 1
        s_cmp_lg_u32 s{sSAFE}, 0
        s_cselect_b32 s{sT}, 0, s{sT}
        s_cbranch_scc1 L_sig1
        buffer_atomic_add v{VONE}, off, s[{SCN}:{SCN+3}], s{sCW} sc1
        L_sig1:
        s_or_b32 s{sT}, s{sT}, s{sSIG}
        s_cbranch_scc1 L_sig2
        s_add_u32 s{sT}, s{sCO}, 16384
        s_mov_b32 s{sSIG}, 1
        buffer_atomic_add v{VONE}, off, s[{SCN}:{SCN+3}], s{sT} sc1
        L_sig2:
        s_mov_b64 exec, -1
        s_branch L_nosig""")
        b(f"""L_hspin:
        s_mov_b32 s{sCNT}, 0
        L_hsp:
        s_sleep 8
        buffer_load_dword v{VHS}, off, s[{SDB}:{SDB+3}], 0 sc1
        s_waitcnt vmcnt(0)
        v_readfirstlane_b32 s{sT}, v{VHS}
        s_add_u32 s{sCNT}, s{sCNT}, 1
        s_lshr_b32 s{sT+1}, s{sCNT}, 17
        s_or_b32 s{sT}, s{sT}, s{sT+1}
        s_cmp_eq_u32 s{sT}, 0
        s_cbranch_scc1 L_hsp
        s_branch L_hsok""")
    for uid in QSPINS:
        b(f"""L_fs{uid}:
        ds_read_b128 {vr(QF,4)}, v{QFB}
        s_waitcnt lgkmcnt(0)
        v_min3_u32 v{QF}, v{QF}, v{QF+1}, v{QF+2}
        v_min_u32 v{QF}, v{QF}, v{QF+3}
        v_cmp_gt_u32 vcc, s{sFQ}, v{QF}
        s_cbranch_vccnz L_fs{uid}
        s_branch L_fr{uid}""")
    QSPINS.clear()
    for uid in SPINS:
        b(f"""L_fs{uid}:
        ds_read_b128 {vr(FQ,4)}, v{VFB}
        s_waitcnt lgkmcnt(0)
        v_min3_u32 v{FQ}, v{FQ}, v{FQ+1}, v{FQ+2}
        v_min_u32 v{FQ}, v{FQ}, v{FQ+3}
        v_cmp_gt_u32 vcc, s{sFV}, v{FQ}
        s_cbranch_vccnz L_fs{uid}
        s_branch L_fr{uid}""")
    SPINS.clear()
    if OPT.get('pz'):
        b(f"""L_pchk{sfx}:
        v_mov_b32 v5, {DEC}
        ds_read_b32 v4, v5
        s_waitcnt lgkmcnt(0)
        v_readfirstlane_b32 s{sT}, v4
        s_cmp_eq_u32 s{sT}, 0
        s_cbranch_scc1 L_pret{sfx}
        s_mov_b32 s{sPW}, 99
        s_mov_b32 s{sPZ}, 1""")
        w_, o_, a_ = pz_loads(0, 0)
        ld = w_ + o_ + a_
        drain([], ld)
        b.ext(ld)
        w_, o_, a_ = pz_loads(1, 1)
        b.ext(w_ + o_ + a_)
        b("s_branch L_pz")
        b(f"L_pzr{sfx}:")
        b.ext([x.split(';')[0] for x in k_reads(0, 0)])
        b("s_waitcnt lgkmcnt(0)")
        t_ = B(); attn_stage(t_, 8, nq, resume=True); b.ext([x.split(';')[0] for x in t_.L])
        b(f"s_cmp_eq_u32 s{sCNT}, 1\ns_cbranch_scc1 L_at1{sfx}\ns_branch L_t57{sfx}")
        b(f"ALTBEGIN p\nL_p2p{sfx}:")
        b(f"s_add_u32 s{sT}, s{sXB}, 131072\nv_add_u32 v5, s{sT}, v{VLN}")
        for i_ in range(4): b(f"ds_read_b128 {vr(240+4*i_,4)}, v5 offset:{1024*i_}")
        l0 = p2_w(0) + p2_o(0) + p2_adv(0); l1 = p2_w(1) + p2_o(1) + p2_adv(1)
        for i_ in range(128):
            b(f"v_accvgpr_read_b32 v{112+i_}, a{128+i_}")
            if i_ >= 64 and i_ % 4 == 3 and l0:
                b(l0.pop(0))
                while l0 and l0[0].startswith("s_"): b(l0.pop(0))
        b("WAITV ; cover=P2 cap=40")
        b.ext(l1)
        b("s_waitcnt lgkmcnt(0)")
        for s_ in (2, 3): p2_step(b, s_, False, True, f"WAITV ; cover=P{s_} cap=51")
        b("WAITV lgkmcnt(0) ; cover=OS")
        b("s_branch L_vote\nALTEND p")
    b(f"L_maxpass{sfx}:")
    for q in range(nq): b(f"v_mov_b32 v{T0+8+q}, 0xff800000")
    for s2 in range(4): b(f"v_add_u32 v{T0+12+s2}, 147456, v{KA+s2}")
    b(f"s_lshl_b32 s{sT}, s{sHEAD}, 18\ns_mov_b32 s{sCNT}, 0")
    b(f"L_mp{sfx}:")
    b(f"s_barrier\ns_add_u32 m0, s{sKB}, 147456")
    b(dma(DK0, SK, f"s{sT}", 0, "", "MP")); b(dma(DK1, SK, f"s{sT}", 1024, "", "MP"))
    b("s_waitcnt vmcnt(0)\ns_barrier")
    for kt in range(2):
        for s in range(4):
            b(f"ds_read_b128 {ar(ASP+4*(4*kt+s),4)}, v{T0+12+s} offset:{kt*4096}")
    b("s_waitcnt lgkmcnt(0)")
    for q in range(nq):
        for kt in range(2):
            for s in range(4):
                d = vr(S_ + 8 * q + 4 * kt, 4)
                b(f"{MF} {d}, {ar(ASP+4*(4*kt+s),4)}, {ar(AQ(q)+4*s,4)}, {d if s else '0'}")
    for q in range(nq):
        for e in range(0, 8, 2): b(f"v_max3_f32 v{T0+8+q}, v{T0+8+q}, v{S_+8*q+e}, v{S_+8*q+e+1}")
    b(f"s_add_u32 s{sT}, s{sT}, 8192\ns_add_u32 s{sCNT}, s{sCNT}, 1\ns_cmp_lt_u32 s{sCNT}, 32\ns_cbranch_scc1 L_mp{sfx}")
    b("s_barrier")
    xlane_reduce_multi(b, [T0 + 8 + q for q in range(nq)], [T0 + q for q in range(nq)], "v_max_f32")
    for q in range(nq):
        for r in range(4): b(f"v_sub_f32 v{CI+4*q+r}, 0, v{T0+8+q}")
    b(f"s_cmp_eq_u32 s{sHEAD}, 0\ns_cbranch_scc1 L_maxdone0{sfx}\ns_branch L_maxdone1{sfx}")

FA = [144, 192, 0, 96]
def p2_reg(slot, i):
    if OPT.get('pre8'):
        if slot == 2: return 128 + 4 * i if i < 4 else (240 + 4 * (i - 4) if i < 8 else 4 * (i - 8))
        if slot == 3: return 16 + 4 * i
    if slot == 3: return 48 + 4 * i if i < 4 else 96 + 4 * (i - 4)
    return FA[slot] + 4 * i
def pz_reg(slot, i):
    return ar((0, 64)[slot] + 4 * i, 4) if i < 8 else vr((32, 48)[slot] + 4 * (i - 8), 4)
def pz_acc(t): return ar(128 + 4 * t, 4) if t < 32 else vr(16 + 4 * (t - 32), 4)
def pz_loads(slot, L):
    f = K2F[OPT.get('p2f', 2)]
    w = [f"buffer_load_dwordx4 {pz_reg(slot, i)}, v{VPW + i//3}, s[{SW2}:{SW2+3}], s{sW2} offen offset:{1024*(i%3)}{f}" for i in range(6)]
    o = [f"buffer_load_dwordx4 {pz_reg(slot, 6+i)}, v{VPO + i//3}, s[{SO2}:{SO2+3}], s{sO2} offen offset:{1024*(i%3)}{f}" for i in range(6)]
    return w, o, p2_adv(L % 4)
VPW = 2; VPO = 8
def p2_w(slot): return [f"buffer_load_dwordx4 {ar(p2_reg(slot, i),4)}, v{VPW + i//3}, s[{SW2}:{SW2+3}], s{sW2} offen offset:{1024*(i%3)}{K2F[OPT.get('p2wf', OPT.get('p2f', 2))]} ; tag=P{slot}" for i in range(6)]
def p2_o(slot): return [f"buffer_load_dwordx4 {ar(p2_reg(slot, 6+i),4)}, v{VPO + i//3}, s[{SO2}:{SO2+3}], s{sO2} offen offset:{1024*(i%3)}{K2F[OPT.get('p2f', 2)]} ; tag=P{slot}" for i in range(6)]
def p2_adv(slot):
    m = 5 if slot == 3 else 1
    out = [f"s_add_u32 s{sO2}, s{sO2}, {m*122880}", f"s_add_u32 s{sW2}, s{sW2}, {m*36864}"]
    if slot == 3 and OPT.get('krot'):
        out += ["s_add_u32 s93, s93, 1", "s_and_b32 s93, s93, 3", "s_cselect_b32 s94, 0, 32", "s_mul_i32 s95, s94, 122880",
                f"s_sub_u32 s{sO2}, s{sO2}, s95", "s_mul_i32 s95, s94, 36864", f"s_sub_u32 s{sW2}, s{sW2}, s95"]
    return out
def p2_init():
    if OPT.get('s2t'): return f"s_mul_i32 s{sO2}, s92, {32*122880}\ns_mul_i32 s{sW2}, s92, {32*36864}"
    if not OPT.get('krot'): return f"s_mul_i32 s{sO2}, s{sWAVE}, {32*122880}\ns_mul_i32 s{sW2}, s{sWAVE}, {32*36864}"
    return f"s_lshl_b32 s93, s{sWAVE}, 2\ns_add_u32 s93, s93, s92\ns_mul_i32 s{sO2}, s93, {8*122880}\ns_mul_i32 s{sW2}, s93, {8*36864}\ns_mov_b32 s93, s92"

def vote_write():
    return [f"v_mov_b32 v4, s{sFLAG}", f"s_lshl_b32 s{sT}, s{sWAVE}, 2", f"s_add_u32 s{sT}, s{sT}, {131072+7168}",
            f"v_mov_b32 v5, s{sT}", "ds_write_b32 v5, v4"]

P2ACC = 112
def p2_acc(q, n): return P2ACC + 4 * (6 * q + n)
def p2_step(b, slot, first, prefetch, wait, order=None, extra=None):
    b(wait)
    order = order or [(q, n) for q in range(6) for n in range(6)]
    slots = []; gaps = [[] for _ in range(36)]
    for q, n in order:
        a_ = vr(p2_acc(q, n), 4)
        slots.append(f"{MF} {a_}, {ar(p2_reg(slot, n),4)}, {ar(p2_reg(slot, 6+q),4)}, {'0' if first else a_}")
    if prefetch:
        o_, w_ = p2_o(slot), p2_w(slot)
        for q in range(6): gaps[6 * q + 5].append(o_[q])
        for n in range(6): gaps[30 + n].append(w_[n])
        gaps[35] += p2_adv(slot)
    for g, x in (extra or []): gaps[g].append(x)
    emit_slots(b, slots, gaps)

def phase2(b):
    D = 4
    acc = p2_acc
    def step(slot, first, prefetch, N, order=None, extra=None): p2_step(b, slot, first, prefetch, f"s_waitcnt vmcnt({N})", order, extra)
    b(f"""L_vote:
    s_cmp_eq_u32 s{sLATE}, 2
    s_cbranch_scc1 L_go
    v_mov_b32 v5, {131072+7168}
    s_barrier
    ds_read_b128 v[16:19], v5
    s_waitcnt lgkmcnt(0)
    v_or_b32 v16, v16, v17
    v_or3_b32 v16, v16, v18, v19
    v_readfirstlane_b32 s{sT}, v16
    s_cmp_lg_u32 s{sSAFE}, 0
    s_cselect_b32 s{sT}, 0, s{sT}
    s_cmp_lg_u32 s{sT}, 0
    s_cbranch_scc1 L_redo
    s_cmp_eq_u32 s{sWAVE}, 3
    s_cbranch_scc0 L_nosig2
    s_mov_b64 exec, 1
    buffer_atomic_add v{VONE}, off, s[{SCN}:{SCN+3}], s{sCO} sc1
    s_mov_b64 exec, -1
    L_nosig2:""")
    stamp(b)
    b(f"""s_cmp_eq_u32 s{sIDLE}, 1
    s_cbranch_scc1 L_fini
    s_cmp_eq_u32 s{sLATE}, 1
    s_cbranch_scc1 L_lateld
    L_go:
    s_xor_b32 s70, s{sWAVE}, 1
    s_mul_i32 s70, s70, 27648
    v_add_u32 v16, s70, v{VLN}
    s_xor_b32 s70, s{sWAVE}, 2
    s_mul_i32 s70, s70, 27648
    s_add_u32 s70, s70, 9216
    v_add_u32 v17, s70, v{VLN}
    s_xor_b32 s70, s{sWAVE}, 3
    s_mul_i32 s70, s70, 27648
    s_add_u32 s70, s70, 18432
    v_add_u32 v18, s70, v{VLN}
    s_mul_i32 s70, s{sWAVE}, 27648
    v_add_u32 v19, s70, v{VLN}
    v_and_b32 v20, 15, v0
    v_mul_u32_u24 v20, 96, v20
    v_bfe_u32 v21, v0, 4, 2
    v_lshl_add_u32 v20, v21, 3, v20
    v_add_u32 v20, s70, v20            ; bf16 staging write address: row*96 + g*8
    v_and_b32 v21, 63, v0
    s_mov_b32 s71, 0x2aab""")
    for r in range(5):
        b(f"""v_add_u32 v22, {64*r}, v21
        v_mul_u32_u24 v23, s71, v22
        v_lshrrev_b32 v23, 16, v23
        v_mul_u32_u24 v{42+r}, {2304 - 96}, v23
        v_lshl_add_u32 v{42+r}, v22, 4, v{42+r}""")
    b(f"""v_cmp_gt_u32 vcc, 32, v21
    v_mov_b32 v22, 0x7f000000
    v_cndmask_b32 v46, v22, v46, vcc
    s_mov_b32 s88, s{sOUT}
    s_mov_b32 s89, s{sOUT+1}
    s_mov_b32 s90, {8*240*1152*2}
    s_mov_b32 s91, 0x20000
    s_mov_b32 s36, 0
    {f"s_cmp_eq_u32 s{sPZ}, 1" if OPT.get('pz') else ""}
    {"s_cbranch_scc1 L_chk2" if OPT.get('pz') else ""}
    .p2align 3
    L_k2:""")
    for s_ in range(D):
        ex = [(0, f"buffer_load_dword v6, v{VP2}, s[{SCN}:{SCN+3}], 0 offen sc1")] if s_ == 0 else None
        step(s_, False, True, 36, extra=ex)
    b("""s_add_u32 s36, s36, 1
    s_cmp_eq_u32 s36, 2
    s_cbranch_scc1 L_chk
    L_chkd:
    s_cmp_lt_u32 s36, 6
    s_cbranch_scc1 L_k2""")
    b("L_tail:")
    for s_ in range(D - 1): step(s_, False, False, 12 * (D - 1 - s_))
    stamp(b)
    quad = lambda q, n: (q // 3) * 2 + (n // 3)
    oth = [(q, n) for d in (1, 2, 3) for q in range(6) for n in range(6) if quad(q, n) == d]
    mine = [(q, n) for q in range(3) for n in range(3)]
    wr = [(min(i_ + 5, 35), f"ds_write_b128 v{15 + quad(q, n)}, {vr(acc(q, n),4)} offset:{((q % 3) * 3 + n % 3) * 1024}") for i_, (q, n) in enumerate(oth)]
    step(D - 1, False, False, 0, order=oth + mine, extra=wr)
    if OPT.get('rstamps'): stamp(b)
    b("s_waitcnt lgkmcnt(0)\ns_barrier")
    if OPT.get('rstamps'): stamp(b)
    for t in range(9):
        for src in range(3):
            b(f"ds_read_b128 {vr(acc(*oth[3*t+src]),4)}, v19 offset:{src * 9216 + t * 1024}")
    for t, (q, n) in enumerate(mine):
        r0, r1, r2, m = acc(*oth[3*t]), acc(*oth[3*t+1]), acc(*oth[3*t+2]), acc(q, n)
        b(f"s_waitcnt lgkmcnt({min(15, 3 * (8 - t))})")
        for x_, y_ in ((r0, r1), (m, r2), (m, r0)):
            for r in (0, 2): b(f"v_pk_add_f32 v[{x_+r}:{x_+r+1}], v[{x_+r}:{x_+r+1}], v[{y_+r}:{y_+r+1}]")
        b(f"v_cvt_pk_bf16_f32 v{24+2*t}, v{m}, v{m+1}\nv_cvt_pk_bf16_f32 v{25+2*t}, v{m+2}, v{m+3}")
    for t, (q, n) in enumerate(mine):
        b(f"ds_write_b64 v20, v[{24+2*t}:{25+2*t}] offset:{q * 1536 + n * 32}")
    b("s_waitcnt lgkmcnt(0)")
    for r in range(5): b(f"ds_read_b128 {vr(48+4*r,4)}, v19 offset:{1024*r}")
    for r in range(5):
        b(f"s_waitcnt lgkmcnt({4-r})")
        b(f"buffer_store_dwordx4 {vr(48+4*r,4)}, v{42+r}, s[88:91], s{sOUTO} offen{K2F[OPT.get('outf', 0)]}")
    if OPT.get('rstamps'): stamp(b)
    b("L_fini:")
    if OPT.get('fixspan'):
        b(f"""s_waitcnt vmcnt(0)
        L_fix:
        s_memrealtime s[74:75]
        s_waitcnt lgkmcnt(0)
        s_sub_u32 s74, s74, s72
        s_cmp_lt_u32 s74, {OPT['fixspan'] * 100}
        s_cbranch_scc1 L_fix""")
    stamp_dump(b, 0, sWAVE)
    b("s_endpgm")
    if OPT.get('pz'):
        b("L_pz:")
        for j in range(10):
            sl = j % 2
            b(f"s_waitcnt vmcnt({12 if j < 9 else 0})")
            slots = []; gaps = [[] for _ in range(36)]
            for q in range(6):
                for n in range(6):
                    a_ = pz_acc(6 * q + n)
                    slots.append(f"{MF} {a_}, {pz_reg(sl, n)}, {pz_reg(sl, 6+q)}, {'0' if j == 0 else a_}")
            if j < 8:
                w_, o_, ad = pz_loads(sl, j + 2)
                for q in range(6): gaps[6 * q + 5].append(o_[q])
                for n in range(6): gaps[30 + n].append(w_[n])
                gaps[35] += ad
            emit_slots(b, slots, gaps)
        b(f"s_add_u32 s{sT}, s{sXB}, 131072\nv_add_u32 v5, s{sT}, v{VLN}\nv_mov_b32 v{VCW}, v{VTH}")
        for i_ in range(4): b(f"ds_write_b128 v5, {vr(16+4*i_,4)} offset:{1024*i_}")
        b(f"s_cmp_eq_u32 s{sWAVE}, 3\ns_cbranch_scc1 L_pzr3\ns_branch L_pzr4")
        b(f"""L_chk2:
        s_mov_b32 s36, 2
        buffer_load_dword v6, v{VP2}, s[{SCN}:{SCN+3}], 0 offen sc1
        s_waitcnt vmcnt(0)""")
    b(f"""L_chk:
    s_waitcnt vmcnt(48)
    s_{"add" if OPT.get('krot') else "sub"}_u32 s{sO2}, s{sO2}, {(4 if OPT.get('krot') else 28)*122880}
    s_{"add" if OPT.get('krot') else "sub"}_u32 s{sW2}, s{sW2}, {(4 if OPT.get('krot') else 28)*36864}
    v_cmp_gt_u32 vcc, 4, v6
    s_cbranch_vccz L_chkd
    s_mov_b32 s37, 0
    L_poll:
    s_sleep 4
    buffer_load_dword v6, v{VP2}, s[{SCN}:{SCN+3}], 0 offen sc1
    s_add_u32 s37, s37, 1
    s_waitcnt vmcnt(0)
    v_cmp_gt_u32 vcc, 4, v6
    s_cbranch_vccz L_chkd
    s_cmp_lt_u32 s37, 0x20000
    s_cbranch_scc1 L_poll
    s_branch L_chkd
    L_lateld:
    s_mov_b32 s{SO2+2}, s100
    s_mov_b32 s{SW2+2}, s101
    {p2_init()}
    s_mov_b32 s{sLATE}, 2
    s_mov_b32 s37, 0
    L_esp:
    s_sleep 4
    buffer_load_dword v{VCW}, v{VPE}, s[{SCN}:{SCN+3}], 0 offen sc1
    s_add_u32 s37, s37, 1
    s_waitcnt vmcnt(0)
    v_cmp_gt_u32 vcc, v{VTH}, v{VCW}
    s_cbranch_vccz L_espd
    s_cmp_lt_u32 s37, 0x20000
    s_cbranch_scc1 L_esp
    L_espd:""")
    for s_ in range(4): b.ext(p2_w(s_) + p2_o(s_) + p2_adv(s_))
    b(f"""s_waitcnt vmcnt(0)
    s_cmp_eq_u32 s{sWAVE}, 3
    s_cbranch_scc1 L_p2s3
    s_branch L_p2s4
    L_redo:
    s_mov_b32 s{sSAFE}, 1
    s_waitcnt vmcnt(0)
    s_barrier""")
    prologue_a(b)
    b.ext(x_dma(0, 4)); b.ext(w_dma(0, 4))
    b("s_branch L_tramp")

def kernel1():
    b = B()
    b("attn_kernel:")
    b("s_cmp_lt_u32 s2, 256\ns_cbranch_scc1 L_work\ns_endpgm\nL_work:")
    if OPT['stamps']: b("s_mov_b32 s96, 0\nv_mov_b32 v14, 0\nv_mov_b32 v15, 0")
    stamp(b)
    if OPT.get('fixspan') and not OPT.get('fixat'): b("s_memrealtime s[72:73]\ns_waitcnt lgkmcnt(0)")
    b("s_load_dwordx16 s[48:63], s[0:1], 0\ns_load_dwordx4 s[64:67], s[0:1], 64\ns_load_dwordx2 s[100:101], s[0:1], 96\ns_load_dwordx4 s[76:79], s[0:1], 80")
    b(f"""s_mov_b32 s97, s2
    s_and_b32 s3, s2, 7
    s_lshr_b32 s2, s2, 3""")
    warm_code(b)
    b(f"""v_lshrrev_b32 v1, 6, v0
    s_bfe_u32 s68, s3, {0x10001 if OPT.get('map') else 0x10000}
    s_lshl_b32 s68, s68, 2
    s_and_b32 s69, s2, 3
    s_add_u32 s68, s68, s69        ; b
    v_readfirstlane_b32 s{sWAVE}, v1
    s_bfe_u32 s69, s3, {0x10000 if OPT.get('map') else 0x10001}
    s_lshl_b32 s69, s69, 3
    s_lshr_b32 s70, s2, 2
    s_add_u32 s69, s69, s70        ; hp
    s_lshr_b32 s3, s3, 2           ; blk
    s_lshl_b32 s{sWB}, s{sWAVE}, 12
    s_lshl_b32 s{sXB}, s{sWAVE}, 13
    s_mov_b32 s{sC}, {CSCALE}
    s_mov_b32 s{sC+1}, {CSCALE}
    s_mov_b32 s{sSAFE}, 0
    s_mov_b32 s{sFLAG}, 0""")
    prologue_a(b)
    b(f"""s_cmp_eq_u32 s3, 0
    s_waitcnt lgkmcnt(0)
    s_cselect_b64 s[48:49], s[48:49], s[58:59]
    s_cselect_b64 s[50:51], s[50:51], s[60:61]
    s_cselect_b64 s[52:53], s[52:53], s[62:63]
    s_cselect_b64 s[54:55], s[54:55], s[64:65]
    s_cselect_b64 s[56:57], s[56:57], s[66:67]""")
    if OPT.get('sstamps'): stamp(b)
    b(f"""s_mul_i32 s71, s68, 276480
    s_add_u32 s{SX}, s48, s71
    s_addc_u32 s{SX+1}, s49, 0
    s_mov_b32 s{SX+2}, 276480
    s_mov_b32 s{SX+3}, 0x20000
    s_lshl_b32 s71, s69, 9
    s_add_u32 s{SW}, s54, s71
    s_addc_u32 s{SW+1}, s55, 0
    s_sub_u32 s{SW+2}, 4718592, s71
    s_mov_b32 s{SW+3}, 0x20000""")
    b("L_srdok:")
    prologue_b(b)
    b(f"""s_cmp_eq_u32 s{sWAVE}, 3
    s_cbranch_scc1 L_begin3""")
    wave_code(b, 4, "4")
    b("L_tramp:\ns_branch L_late")
    b(".p2align 6")
    wave_code(b, 3, "3")
    b("L_phase2:")
    phase2(b)
    b("L_end1:\ns_endpgm\nL_codeend:")
    return b.L

def resolve_waits(L):
    out = []
    for i, x in enumerate(L):
        if x.startswith("WAITL"):
            tag = x.split()[1]
            n, T = tag[1:].split('.'); T = int(T)
            dst = set(range(AW + 8 * (T % 4), AW + 8 * (T % 4) + 8))
            cnt = 0; found = False
            for y in reversed(out):
                if y.startswith(("s_waitcnt", "WAITV")) and "lgkmcnt(0)" in y:
                    found = True; cnt = None; break
                if y.startswith("ds_"):
                    I = Ins(y)
                    if any(k == 'a' and r in dst for k, r in I.wr) or (T == 0 and 'need=X' in y):
                        found = True; break
                    cnt += 1
            assert found, x
            if cnt is not None:
                cnt = min(cnt, 15)
                out.append(f"s_waitcnt lgkmcnt({cnt})")
        else: out.append(x)
    return out

def expand_trace(L):
    def shift(line, name, it, step):
        if it == 0: return line
        def rep(m):
            k, n = m.group(1), int(m.group(2))
            if name == 'qp':
                if k == 'W': return f"W{n + step*it}"
                if k == 'X': return f"X{n + step*it//2}"
                return m.group(0)
            if k == 'KV': return f"KV{n + step*it}"
            return m.group(0)
        if ';' not in line: return line
        a, c = line.split(';', 1)
        return a + ';' + re.sub(r'\b(KV|W|X)(\d+)\b', rep, c)
    bodies = {}
    def go(i, stop):
        res = []
        while i < len(L):
            x = L[i]
            if x.startswith("LOOPBEGIN"):
                _, name, cnt, step = x.split(); cnt = int(cnt); step = int(step)
                body, j = go(i + 1, name)
                bodies[name] = (body, cnt, step)
                for it in range(cnt):
                    for y in body:
                        if y == f"LOOPEXIT {name}":
                            if it == cnt - 1: break
                            continue
                        res.append(shift(y, name, it, step))
                i = j + 1; continue
            if x.startswith("REPLAY"):
                _, name, off, cnt = x.split(); cnt = int(cnt); body, _, step = bodies[name]
                for it in range(cnt):
                    for y in body: res.append(shift(shift(y, name, it, step), name, 1, int(off)))
                i += 1; continue
            if x.startswith("LOOPEND") and x.split()[1] == stop: return res, i
            res.append(x); i += 1
        return res, i
    return go(0, None)[0]

STOPS = ("L_maxpass", "L_hspin", "L_espin")
def traces(L):
    tr = expand_trace(L)
    main = []
    for x in tr:
        if x.startswith(STOPS): break
        main.append(x)
    alt = None
    if "ALTFROM p" in main:
        i = tr.index("ALTBEGIN p"); j = tr.index("ALTEND p")
        alt = [x for x in main[:main.index("ALTFROM p")] if 'condp' not in x] + tr[i + 1:j]
    drop = lambda t: [x for x in t if not x.startswith("ALT")]
    return drop(main), drop([x for x in main if 'condp' not in x]), alt

def resolve_vm(L):
    idx = [f"{x} ;#{i}" if x.startswith("WAITV") else x for i, x in enumerate(L)]
    best = {}
    main, lean, alt = traces(idx)
    for which, tr in (("main", main), ("lean", lean), ("alt", alt or [])):
        q = []
        for x in tr:
            c = x.split(';', 1)[1] if ';' in x else ''
            if x.startswith(("buffer_", "global_")):
                if 'cond' in c and 'condp' not in c: continue
                m = re.search(r'tag=(\w+)', c); q.append(m.group(1) if m else 'other')
            elif x.startswith("WAITV"):
                tags = set(re.search(r'cover=([\w,]*)', c).group(1).split(','))
                if which == "lean" and any(t[:1] == 'P' or t == 'OS' for t in tags): continue
                i = int(x.rsplit('#', 1)[1])
                n = 0
                for t in reversed(q):
                    if t in tags: break
                    n += 1
                else: n = 63
                m = re.search(r'cap=(\d+)', c)
                best[i] = min(best.get(i, 63), n, int(m.group(1)) if m else 63)
    out = []
    for i, x in enumerate(L):
        if x.startswith("WAITV"):
            a, c = x.split(';', 1) if ';' in x else (x, '')
            out.append(f"s_waitcnt vmcnt({best[i]}) {a[5:].strip()} ;{c}")
        else: out.append(x)
    return out

def check_protocol(L, label):
    q = []; done = set(); issued = {}; pub = set(); errs = 0
    for x in L:
        c = x.split(';', 1)[1] if ';' in x else ''
        if x.startswith("buffer_") or x.startswith("global_"):
            if 'cond' in c and 'condp' not in c: continue
            m = re.search(r'tag=(\w+)', c); q.append(m.group(1) if m else 'other')
        elif x.startswith("s_waitcnt"):
            m = re.search(r'vmcnt\((\d+)\)', x)
            if m:
                n = int(m.group(1))
                while len(q) > n: done.add(q.pop(0))
            m = re.search(r'needtag=(\w+)', c)
            if m and m.group(1) in q: print(label, "ERR needtag", x); errs += 1
        elif x.startswith("s_barrier") or 'SYNC' in c:
            m = re.search(r'pub=([\w,]*)', c)
            if m:
                for t in m.group(1).split(','):
                    if not t: continue
                    if t in q or (t not in done and not (label[:2] == 'w3' and t[0] in 'XW')): print(label, "ERR publish not landed", t, x); errs += 1
                    pub.add(t)
        elif x.startswith("ds_read"):
            m = re.search(r'need=(\w+)', c)
            if m and m.group(1) not in pub : print(label, "ERR read unpublished", x); errs += 1
        assert len(q) <= 63, ("vmcnt overflow", x)
    return errs

def burn(L):
    out = []; on = False; c = 0; k = 0
    for x in L:
        if x == 'BURNON': on = True; c = 0; continue
        if x == 'BURNOFF': on = False; continue
        out.append(x)
        if on and OPT.get('burn'):
            if x.startswith('v_mfma'): c = 0
            elif x.startswith('v_'):
                c += 1
                if c >= OPT['burn']:
                    c = 0; k += 1
                    out.append(f"{MF} v[4:7], a[{32+4*(k%8)}:{35+4*(k%8)}], a[{96+4*(k%7)}:{99+4*(k%7)}], v[4:7]")
    return out

def check_lgkm(L, label):
    dq = []; vq = []; errs = 0; cache = {}
    for x in L:
        t = x.split(';')[0].strip()
        I = cache.get(t)
        if I is None: I = cache[t] = Ins(t)
        if I.kind == 'label': continue
        if I.op == 's_waitcnt':
            m = re.search(r'lgkmcnt\((\d+)\)', t)
            if m:
                while len(dq) > int(m.group(1)): dq.pop(0)
            m = re.search(r'vmcnt\((\d+)\)', t)
            if m:
                while len(vq) > int(m.group(1)): vq.pop(0)
            continue
        use = I.rd | I.srcc | I.wr
        for w in dq + vq:
            if w & use: print(label, "ERR uncovered", x); errs += 1; break
        if I.kind in ('dsr', 'dsw'): dq.append(I.wr)
        if I.kind in ('vload', 'vstore', 'dma') and not ('cond' in x and 'condp' not in x): vq.append(I.wr)
    return errs

def finish(L):
    L = burn(L)
    L = resolve_waits(L)
    return L

def strip_markers(L):
    return [x for x in L if not x.startswith(("LOOPBEGIN", "LOOPEND", "LOOPEXIT", "REPLAY", "ALT"))]

DESC = """.section .rodata,"a"
.p2align 6
.amdhsa_kernel {name}
  .amdhsa_next_free_vgpr {vgpr}
  .amdhsa_next_free_sgpr 102
  .amdhsa_accum_offset 256
  .amdhsa_group_segment_fixed_size 0
  .amdhsa_kernarg_size 104
  .amdhsa_user_sgpr_count 2
  .amdhsa_user_sgpr_kernarg_segment_ptr 1
  .amdhsa_system_sgpr_workgroup_id_x 1
  .amdhsa_float_denorm_mode_32 3
.end_amdhsa_kernel
"""

def build(**kw):
    OPT.update(kw)
    k1 = finish(kernel1())
    i4 = k1.index("L_begin4:"); i3 = k1.index("L_begin3:"); iv = k1.index("L_phase2:")
    ip = k1.index("L_srdok:"); pre = k1[ip:i4]
    k1 = k1[:i4] + resolve_vm(pre + k1[i4:i3])[len(pre):] + resolve_vm(pre + k1[i3:iv])[len(pre):] + k1[iv:]
    e = 0
    for lab, part in (("w4", pre + k1[i4:i3]), ("w3", pre + k1[i3:])):
        main, lean, alt = traces(part)
        e += check_protocol(main, lab) + check_lgkm(main, lab)
        if alt: e += check_protocol(alt, lab + "alt") + check_lgkm(alt, lab + "alt")
    assert e == 0 or OPT.get('nocheck')
    k1 = strip_markers(k1)
    k1, n1, p1 = fix_hazards(k1)
    for p in p1: print("BRANCH HAZARD", p)
    assert not p1
    hdr = open("ref.txt").read().split("; Override")[0]
    KN = NAME + "_kernel"
    k1 = [x.replace("attn_kernel", KN) for x in k1]
    out = hdr
    out += """; Written with my own schedule generator (no compiler output).  One launch, 256 workgroups (one per CU), 4 waves each:
;  1. q-projection of two heads (x and Wq staged by LDS-DMA, 16x16x32 bf16 MFMA), scale log2(e)/sqrt(128) applied in fp32;
;  2. attention for the two heads, K/V streamed through an 8-tile LDS ring.  The softmax offset is the row maximum over the first
;     the workgroup starts over and uses the true row maximum over all 1024 keys (L_maxpass*).
;     hand it to the output projection, which the same workgroups run as 96x96 tiles (even heads first, odd heads after their hand-off).
; Waves 0-2 own four 16-query tiles (labels *4), wave 3 owns three (labels *3).
"""
    out += ("; @launch kernel=%s grid=(256,1,1) block=(256,1,1) lds=163840\n" % KN) if OPT.get('list') else "; @launch grid=(256,1,1) block=(256,1,1) lds=163840\n"
    out += '.amdgcn_target "amdgcn-amd-amdhsa--gfx950"\n.text\n'
    out += ".globl %s\n.p2align 8\n.type %s,@function\n" % (KN, KN) + "\n".join(k1) + "\n"
    out += DESC.format(name=KN, vgpr=512)
    return out, n1

if __name__ == "__main__":
    kw = {}
    for a in sys.argv[2:]:
        k, v = a.split('='); kw[k] = int(v)
    s, info = build(**kw)
    open(sys.argv[1], "w").write(s)
    print("nops inserted", info, "bytes", len(s))
```

```python
import sys, re
from asmlib import fix_hazards, Ins

NAME = "concat_heads__mha_block_cached__mha_block_cached__near_ridge"
MF = "v_mfma_f32_16x16x32_bf16"
CSCALE = 0x3e0293ee
LTHR = 0x4e800000

O_BLK = 128 * 122880
WOT_OFF = 2 * O_BLK
WOT_BLK = 128 * 36864
CNT_OFF = WOT_OFF + 2 * WOT_BLK

class B:
    def __init__(self): self.L = []
    def __call__(self, s):
        for x in s.split("\n"):
            x = x.strip()
            if x: self.L.append(x)
    def ext(self, l): self.L.extend(l)

def vr(b, n): return f"v[{b}:{b+n-1}]"
def ar(b, n): return f"a[{b}:{b+n-1}]"

def emit_slots(b, slots, gaps):
    for i, s in enumerate(slots):
        if s: b(s)
        nv = [x for x in gaps[i] if not x.startswith('v_')]
        v = [x for x in gaps[i] if x.startswith('v_')]
        for x in nv + v: b(x)

S_ = 16; P_ = 48; CI = 64; LS = 80
KA = 84
VA = 88
VWA = 105
DK0 = 96; DK1 = 97; DV0 = 98; DV1 = 99
VO = 100
VWO = 101
VWX = 102
VLN = 103
VPF = 104
VPD = 105
T0 = 108
O_ = 128
XA = 16; WA = 28; DX = 20; DW = 24
WSLOT = [49152, 114688, 131072, 147456]; sKB = 69
def AQ(q): return 32 + 64 * (q // 2) + 16 * (q % 2)
def AQ2(q): return 128 + 16 * q
AK = 0; AV = 64; ASP = 64
AX = 0; AW = 64
SX = 4; SW = 8; SK = 12; SV = 16; SO = 20; SWO = 24; SWT = 28
sWAVE = 32; sWB = 33; sKV = 34; sCNT = 35; sHEAD = 36; sSAFE = 37; sFLAG = 38
sXO = 39; sXO2 = 40; sWOFF = 41; sXB = 42; sOO = 43; sC = 44
sT = 46
sH0 = 68; sWOS = 64; sWTS = 65; sSTAMP = 72; SPF = 76; sPF = 68; sWXS = 67; sROT = 80; sLIN = 81
SCN = 48; SDB = 52; SO2 = 56; sCO = 60; sCW = 61; SIN = 84; SIF = 88; sOUT = 76; VHS = 106; VCW = 107; VONE = 104
SW2 = 80; sO2 = 98; sW2 = 99; sOUTO = 66; sOP = 41; VPE = 11; VTH = 12; VP2 = 13; VWE = 10; AST = 192; sSIG = 78; sLATE = 79; sIDLE = 67; sRT = 68; sLN = 71; sPW = 40; sPZ = 64; sST = 65; VPA = 102; DEC = 131072 + 7168 + 64; sFV = 39; VFA = 1; VFB = 101; FQ = 80; FLAGS = 131072 + 7168 + 32

OPT = dict(nt_kv=1, nt_w=0, nt_x=0, nt_wo=0, stamps=0, warm=1, of=2, of0=2, e67=1, bal=0, pair=1, pre8=1, wts=1, sw2=2)

K2F = ['', ' nt', ' sc1', ' sc0 sc1', ' sc0', ' sc1 nt', ' sc0 sc1 nt']
def fl(k): return ["", " nt", " sc1 nt", " sc0 sc1 nt", " sc0 nt"][OPT[k]]

def dma(voff, srd, soff, off, flag, tag):
    return f"buffer_load_dwordx4 v{voff}, s[{srd}:{srd+3}], {soff} offen offset:{off}{flag} lds ; tag={tag}"

def kv_adv():
    if not OPT.get('rot'): return [f"s_add_u32 s{sKV}, s{sKV}, 8192"]
    return [f"s_add_u32 s{sLIN}, s{sLIN}, 8192", f"s_add_u32 s{sKV}, s{sLIN}, s{sROT}",
            f"s_and_b32 s{sKV}, s{sKV}, 0x3ffff", f"s_and_b32 s{sT+1}, s{sLIN}, 0xfffc0000", f"s_or_b32 s{sKV}, s{sKV}, s{sT+1}"]

def adv2(tmp):
    if not OPT.get('rot'): return [f"s_add_u32 s{sKV}, s{sKV}, 16384"]
    return [f"s_add_u32 s{sLN}, s{sLN}, 16384", f"s_add_u32 s{sKV}, s{sLN}, s{sRT}", f"s_and_b32 s{sKV}, s{sKV}, 0x3ffff",
            f"s_and_b32 s{tmp}, s{sLN}, 0x40000", f"s_or_b32 s{sKV}, s{sKV}, s{tmp}"]

def k_dma(tile, so=None):
    so = so or f"s{sKV}"
    return [f"s_add_u32 m0, s{sKB}, {(tile % 8) * 8192}",
            dma(DK0, SK, so, 0, fl('nt_kv'), f"KV{tile}"), dma(DK1, SK, so, 1024, fl('nt_kv'), f"KV{tile}")]
def v_dma(tile, so=None):
    so = so or f"s{sKV}"
    return [f"s_add_u32 m0, s{sKB}, {65536 + (tile % 8) * 8192}",
            dma(DV0, SV, so, 0, fl('nt_kv'), f"KV{tile}"), dma(DV1, SV, so, 1024, fl('nt_kv'), f"KV{tile}")]

def x_dma(m, nq):
    slot = 16384 if m % 2 else 81920
    out = []
    out.append(f"s_add_u32 m0, s{sXB}, {slot}")
    for j in range(4): out.append(dma(DX + j, SX, f"s{sXO}", 1024 * j, fl('nt_x'), f"X{m}"))
    out.append(f"s_add_u32 m0, s{sXB}, {slot + 4096}")
    for j in range(4 if nq == 4 else 2): out.append(dma(DX + j, SX, f"s{sXO2}", 1024 * j, fl('nt_x'), f"X{m}"))
    out.append(f"s_add_u32 s{sXO}, s{sXO}, 128")
    if OPT.get('qrot'):
        out += [f"s_cmp_eq_u32 s{sXO}, 1152", f"s_cselect_b32 s{sXO}, 0, s{sXO}", f"s_add_u32 s{sXO2}, s{sXO}, 36864"]
    else: out.append(f"s_add_u32 s{sXO2}, s{sXO2}, 128")
    return out

def w_dma(n, nq):
    out = [f"s_add_u32 m0, s{sWB}, {WSLOT[n % 4]}"]
    for j in range(4): out.append(dma(DW + j, SW, f"s{sWOFF}", 1024 * j, fl('nt_w'), f"W{n}"))
    if n % 2 == 0: out.append(f"s_add_u32 s{sWOFF}, s{sWOFF}, 256")
    else:
        out.append(f"s_add_u32 s{sWOFF}, s{sWOFF}, {524288 - 256}")
        if OPT.get('qrot'): out += [f"s_cmp_eq_u32 s{sWOFF}, {9*524288}", f"s_cselect_b32 s{sWOFF}, 0, s{sWOFF}"]
    return out

def w_reads(n, T):
    sp_, a = T // 2, T % 2
    hl, sp = sp_ // 2, sp_ % 2
    out = []
    for s in range(2):
        for a2 in range(2):
            d = AW + 8 * (T % 4) + 4 * s + 2 * a2
            off = max(n % 4 - 1, 0) * 16384 + hl * 8192 + (32 * s + 4 * a2) * 128 + (0 if OPT.get('wnc') else 8 * a)
            out.append(f"ds_read_b64_tr_b16 {ar(d,2)}, v{WA + sp + (2 if n % 4 else 0)} offset:{off} ; need=W{n}")
    return out

def x_reads(m, nq):
    out = []
    for q in range(nq):
        for s in range(2):
            d = AX + 32 * (m % 2) + 8 * q + 4 * s
            out.append(f"ds_read_b128 {ar(d,4)}, v{XA + s + (0 if m % 2 else 2)} offset:{q * 2048} ; need=X{m}")
    return out

def qacc(hd, q, T):
    r = 128 + 32 * q + 4 * T
    return vr(r, 4) if hd == 0 else ar(r, 4)

def pf_load():
    return f"buffer_load_dword v{VPD}, v{VPF}, s[{SPF}:{SPF+3}], s{sPF} offen nt ; tag=PF"

def wo_dma():
    out = []
    for r in range(2):
        out.append(f"s_add_u32 m0, s{sWOS}, {4096*r}")
        for j in range(4):
            out += [f"PRE s_mov_b32 s{sT}, {8192*j + 512*r}", dma(VWO, SWO, f"s{sT}", 1024 * j, fl('nt_wo'), "WO")]
    out += [f"s_mov_b32 m0, s{sWTS}", dma(VWX, SWO, "0", 0, fl('nt_wo'), "WO")]
    return out
WOF = 32
def wo_reads():
    out = [f"ds_read_b64_tr_b16 {vr(WOF+16*r+4*tl+2*a,2)}, v{VWA} offset:{4096*r + 2048*a + 32*tl}" for r in range(2) for tl in range(4) for a in range(2)]
    return out + [f"ds_read_b64_tr_b16 {vr(WOF+32+2*a,2)}, v{VWE} offset:{512*a}" for a in range(2)]
def wo_stores():
    out = []
    for r in range(2):
        out.append(f"PRE s_add_u32 s{sT}, s{sWB}, {16384*r}")
        out += [f"buffer_store_dwordx4 {vr(WOF+16*r+4*tl,4)}, v{VLN}, s[{SWT}:{SWT+3}], s{sT} offen offset:{1024*tl} sc1 ; tag=WT" for tl in range(4)]
    out += [f"PRE s_lshl_b32 s{sT}, s{sWAVE}, 10", f"PRE s_add_u32 s{sT}, s{sT}, 32768",
            f"buffer_store_dwordx4 {vr(WOF+32,4)}, v{VLN}, s[{SWT}:{SWT+3}], s{sT} offen sc1 ; tag=WT"]
    return out

QSPINS = []; QF = 68; QFA = 72; QFB = 73; sFQ = 35; QFLAGS = 112640
def qproj_stage(b, n, nq, fill=None):
    hd, m = n % 2, n // 2
    nx = 8 if nq == 4 else 6
    slots = []; gaps = [[] for _ in range(64)]
    for T in range(8):
        for q in range(4):
            for s in range(2):
                if q >= nq: slots.append(None); continue
                acc = qacc(hd, q, T)
                c = "0" if (m == 0 and s == 0) else acc
                slots.append(f"{MF} {acc}, {ar(AW+8*(T%4)+4*s,4)}, {ar(AX+32*(m%2)+8*q+4*s,4)}, {c}")
    start = {3: 5, 4: 12, 5: 19, 6: 26, 7: 33}
    rd = w_reads(n, 2); gaps[0].append(rd[3])
    for T, g in start.items():
        for i, x in enumerate(w_reads(n, T)): gaps[g + i].append(x)
    FSQ = OPT.get('fsq') and n < 15
    if n < 17:
        for T, g in (((0, 53), (1, 57)) if FSQ else ((0, 45), (1, 53))):
            for i, x in enumerate(w_reads(n + 1, T)): gaps[g + i].append(x)
        for i, x in enumerate(w_reads(n + 1, 2)[:3]): gaps[61 + i].append(x)
    xr = []
    if n % 2 == 1 and m + 1 <= 8:
        xr = x_reads(m + 1, nq)
        for x, g in zip(xr, (9, 10, 16, 17, 23, 24, 30, 31) if not (n == 1 and OPT.get('x1late')) else (49, 50, 51, 52, 57, 58, 59, 60)): gaps[g].append(x)
    for T in range(1, 8): gaps[8 * T - 1].append(f"WAITL W{n}.{T}")
    if n < 17: gaps[63].append(f"WAITL W{n+1}.0")
    req = []
    if n + 1 <= 17: req.append(f"W{n+1}")
    if n % 2 == 0 and m + 1 <= 8 and not (n == 0 and OPT.get('x1late')): req.append(f"X{m+1}")
    if n == 1 and OPT.get('x1late'): req.append("X1")
    if n == 17: req += ["KV0", "KV1"]
    cov = list(req)
    if nq == 3 and n == 2:
        cov.append("INIT")
        gaps[55].append(f"buffer_store_dword v{VONE}, v{VLN}, s[{SIF}:{SIF+3}], 0 offen sc1 ; tag=FLAG")
    if nq == 3 and n == 12:
        gaps[45].append(f"buffer_load_dword v{VHS}, off, s[{SDB}:{SDB+3}], 0 ; tag=HS")
    if n == 17 and OPT.get('fsa'):
        gaps[36] += [f"s_mov_b32 s{sFV}, 0", f"v_mov_b32 v{VFB}, {FLAGS}", f"v_mov_b32 v{FQ}, 0"]
        gaps[37] += [f"v_lshl_add_u32 v{VFA}, s{sWAVE}, 2, v{VFB}"]
        gaps[39] += [f"ds_write_b32 v{VFA}, v{FQ}"]
    if FSQ:
        uid = f"q{n}_{nq}"
        gaps[42] += [f"s_add_u32 s{sFQ}, s{sFQ}, 1", f"v_mov_b32 v{QF}, s{sFQ}"]
        gaps[43] += ["WAITV lgkmcnt(0) ; cover=" + ",".join(cov), f"ds_write_b32 v{QFA}, v{QF}"]
        gaps[47].append(f"ds_read_b128 {vr(QF,4)}, v{QFB}")
        gaps[50] += ["s_waitcnt lgkmcnt(0)", f"v_min3_u32 v{QF}, v{QF}, v{QF+1}, v{QF+2}"]
        gaps[51].append(f"v_min_u32 v{QF}, v{QF}, v{QF+3}")
        gaps[52].append(f"v_cmp_gt_u32 vcc, s{sFQ}, v{QF}\ns_cbranch_vccnz L_fs{uid}\nL_fr{uid}: ; SYNC pub=" + ",".join(req))
        QSPINS.append(uid)
    else:
        gaps[43].append("WAITV lgkmcnt(0) ; cover=" + ",".join(cov))
        gaps[44].append("s_barrier ; pub=" + ",".join(req))
    def place(seq, first, step):
        g = first
        for x in seq:
            if x.startswith("buffer_"): gaps[g].append(x); g += step
            elif x.startswith(("s_add_u32 m0", "s_mov_b32 m0")): gaps[g - 1].append(x)
            elif x.startswith("PRE "): gaps[g - 1].append(x[4:])
            else: gaps[min(g - step + 1, 63)].append(x)
    if n == 0 and OPT.get('x2late'): place(w_dma(2, nq) + w_dma(3, nq), 2, 5)
    elif n == 1 and OPT.get('x2late'): place(x_dma(2, nq), 2, 4)
    elif n == 0: place(w_dma(2, nq) + w_dma(3, nq) + x_dma(2, nq), 1, 2)
    elif n % 2 == 0 and m + 2 <= 8: place(x_dma(m + 2, nq), 2, 5)
    def single(kind, i_):
        if kind == 'wo':
            if i_ == 8: return [f"s_mov_b32 m0, s{sWTS}", None, dma(VWX, SWO, "0", 0, fl('nt_wo'), "WO")]
            r, j_ = i_ // 4, i_ % 4
            return [f"s_add_u32 m0, s{sWOS}, {4096*r}", f"s_mov_b32 s{sT}, {8192*j_ + 512*r}", dma(VWO, SWO, f"s{sT}", 1024 * j_, fl('nt_wo'), "WO")]
        t, j_ = i_ // 4, i_ % 4
        d_ = (k_dma if j_ < 2 else v_dma)(t, f"s{sT}")
        return [d_[0], f"s_add_u32 s{sT}, s{sRT}, {8192*t}" if OPT.get('rot') else f"s_mov_b32 s{sT}, {8192*t}", d_[1 + j_ % 2]]
    if OPT.get('slowpos', 0):
        R0 = 9
        sched_ = {2: [('wo', 0), ('wo', 1), ('wo', 2)], 4: [('wo', 3), ('wo', 4), ('wo', 5)], 6: [('wo', 6), ('wo', 7), ('wo', 8)],
                  10: [('kv', i_) for i_ in range(4)], 12: [('kv', i_) for i_ in range(4, 8)]}
        for (kind, i_) in sched_.get(n, []):
            gaps[63] += [x for x in single(kind, i_) if x]
    else:
        W0 = 1; R0 = W0 + 7
        sched_ = {W0 + i_ // 2: [] for i_ in range(9)}
        for i_ in range(8 if OPT.get('fsq') else 9): sched_[W0 + i_ // 2].append(('wo', i_))
        if not OPT.get('late'):
            for i_ in range(8): sched_.setdefault(R0 + 2 + i_ // 2, []).append(('kv', i_))
        for (kind, i_), g in zip(sched_.get(n, []), (39, 42) if (n % 2 == 0 or OPT.get('stpos', 0) or (n == 1 and OPT.get('x2late'))) else (12, 32)):
            m0_, so_, ld_ = single(kind, i_)
            gaps[g - 1].append(m0_)
            if so_: gaps[g - 1].append(so_)
            gaps[g].append(ld_)
    if n == OPT.get("rew", 13): gaps[41].append("global_load_dword v1, v[76:77], off")
    if n == 13: gaps[62] += [f"s_add_u32 s{sKV}, s{sRT}, 16384", f"s_mov_b32 s{sLN}, 49152"] if OPT.get('rot') else [f"s_mov_b32 s{sKV}, 16384"]
    if n in (R0, R0 + 1):
        rd = wo_reads()
        if OPT.get('fsq'): rd = rd[:16]
        if n == R0:
            gaps[44].append("WAITV ; cover=WO")
            for x, g in zip(rd[:8], [44, 45, 46, 48, 49, 51, 52, 52] if FSQ else [49, 50, 51, 52, 57, 58, 59, 60]): gaps[g].append(x)
        else:
            for x, g in zip(rd[8:], [1, 2, 3, 4, 11, 18, 25, 37, 38, 39]): gaps[g].append(x)
    for i_ in range(0 if OPT.get('wts') else 9):
        if OPT.get('slowpos', 0):
            if n != (10, 10, 12, 12, 14, 14, 14, 16, 16)[i_]: continue
            t_ = [f"s_add_u32 s{sT+1}, s{sWB}, {16384*(i_//4)}"] if i_ < 8 else [f"s_lshl_b32 s{sT+1}, s{sWAVE}, 10", f"s_add_u32 s{sT+1}, s{sT+1}, 32768"]
            gaps[62] += t_ + [f"buffer_store_dwordx4 {vr(WOF+4*i_,4)}, v{VLN}, s[{SWT}:{SWT+3}], s{sT+1} offen offset:{1024*(i_%4) if i_ < 8 else 0} sc1 ; tag=WT"]
            continue
        r, tl = i_ // 4, i_ % 4
        if OPT.get('stpos', 0):
            if n != (9, 9, 11, 11, 13, 13, 15, 15, 15)[i_]: continue
            g = (8, 10, 2, 4, 2, 4, 2, 4, 7)[i_]
        else:
            if n != min(R0 + 1 + i_, 17 - (1 if i_ < 8 else 0)) : continue
            g = 62 if not any('tag=WT' in x for x in gaps[62]) else 48
        if i_ < 8: gaps[g - 1].append(f"s_add_u32 s{sT+1}, s{sWB}, {16384*r}")
        else: gaps[g - 2].append(f"s_lshl_b32 s{sT+1}, s{sWAVE}, 10"); gaps[g - 1].append(f"s_add_u32 s{sT+1}, s{sT+1}, 32768")
        gaps[g].append(f"buffer_store_dwordx4 {vr(WOF+4*i_,4)}, v{VLN}, s[{SWT}:{SWT+3}], s{sT+1} offen offset:{1024*tl if i_ < 8 else 0}{K2F[OPT.get('wtf', 2)]} ; tag=WT")
    if n == 14 and OPT.get('late'):
        place([f"PRE s_mov_b32 s{sT}, 0"] + k_dma(0, f"s{sT}") + v_dma(0, f"s{sT}") + [f"PRE s_mov_b32 s{sT}, 8192"] + k_dma(1, f"s{sT}") + v_dma(1, f"s{sT}"), 2, 5)
    if n in ((15, 16) if OPT.get('late') else (14, 16)):
        seq = []
        for t in range(2, 6):
            seq += [f"PRE s_add_u32 s{sT}, s{sKV}, {(t - 2) * 8192}"] + (k_dma if n < 16 else v_dma)(t, f"s{sT}")
        if n == 16: seq.append(f"s_add_u32 s{sKV}, s{sKV}, 32768")
        place(seq, 2, 5)
    if n == 17 and OPT.get('e67'):
        place(k_dma(6) + [f"PRE s_add_u32 s{sT}, s{sKV}, 8192"] + k_dma(7, f"s{sT}"), 4, 9)
        place(v_dma(6) + v_dma(7, f"s{sT}") + adv2(sT + 1), 47, 4)
    if OPT.get('awake') and n % 2 == 1 and 3 <= n <= 11:
        seq = []
        for t in range(OPT['awake']):
            seq += [f"PRE s_add_u32 s{sPF}, s{sPF}, 8192"] + k_dma(t % 2, f"s{sPF}") + v_dma(t % 2, f"s{sPF}")
        seq = [x.replace('tag=KV0', 'tag=DUM').replace('tag=KV1', 'tag=DUM') for x in seq]
        place(seq, 2, 40 // (4 * OPT['awake']))
    if OPT.get('awake') and n == 13:
        place([f"PRE s_mov_b32 s{sPF}, 0"] + k_dma(0, f"s{sPF}") + v_dma(0, f"s{sPF}") + [f"PRE s_mov_b32 s{sPF}, 8192"] + k_dma(1, f"s{sPF}") + v_dma(1, f"s{sPF}"), 2, 5)
    if n + 4 <= 17: place(w_dma(n + 4, nq), *((54, 3) if FSQ else (46, 5)))
    for i_ in range(OPT.get('qslow', 0)): gaps[2 + 2 * i_].append('v_nop\nv_nop\nv_nop\nv_nop\nv_nop\nv_nop')
    if fill is not None:
        for g in range(20 if n == 16 else 0, 64):
            if slots[g] is None: continue
            for _ in range(2):
                if fill: gaps[g].append(fill.pop(0))
    emit_slots(b, slots, gaps)
    if OPT.get('qstamps'): stamp(b)

def k_reads(unit, tile):
    out = []
    for kt in range(2):
        for s in range(4):
            f = 4 * kt + s
            out.append(f"ds_read_b128 {ar(AK+4*f,4)}, v{KA + s} offset:{unit * 8192 + kt * 4096} ; need=KV{tile}")
    return out

def v_reads(unit, tile):
    out = []
    for T in range(8):
        th, tl = T // 4, T % 4
        for a in range(2):
            out.append(f"ds_read_b64_tr_b16 {ar(AV+4*T+2*a,2)}, v{VA + T} offset:{unit * 8192 + a * 4096} ; need=KV{tile}")
    return out

import sched, sched2
LM = 1
for a_ in sys.argv[2:]:
    if a_.startswith('lm='): LM = int(a_[3:])
if LM:
    NS = 68
    V_GAPS = list(range(26, 42)); K_GAPS = list(range(50, 58)); D_GAPS = [3, 11, 17, 23]
    SM = sched2.schedule(V_GAPS + K_GAPS, D_GAPS)
    for a_ in sys.argv[2:]:
        if a_.startswith('dg='): D_GAPS = {1: [3, 7, 33, 38], 2: [4, 8, 34, 40], 3: [3, 8, 36, 56]}[int(a_[3:])]
else:
    NS = 64
    V_GAPS = list(range(25, 41)); K_GAPS = list(range(48, 56)); D_GAPS = [1, 9, 17, 23]
    SM = sched.schedule(4, V_GAPS + K_GAPS, D_GAPS)
BG = K_GAPS[0] - 1
LA = 108; ONES = 124
def sm_text(kind, q, e):
    s = S_ + 8 * q + e
    if kind == 'exp': return f"v_exp_f32 v{s}, v{s}"
    if kind == 'add': return f"v_add_f32 v{LS+q}, v{LS+q}, v{s}"
    return f"v_cvt_pk_bf16_f32 v{P_+4*q+e//2}, v{s-1}, v{s}"
def sm_items(nq, lo, hi):
    it = [(g, k[0] == 'exp', k) for k, g in SM.items() if k[1] < nq and lo <= g < hi]
    it.sort(key=lambda t: (t[0] % NS, t[1], -t[0]))
    return [(g, k) for g, _, k in it]

def qk(q, kt, s, czero=False):
    d = vr(S_ + 8 * q + 4 * kt, 4)
    c = d if s else ("0" if czero else vr(CI + 4 * q, 4))
    return f"{MF} {d}, {ar(AK+4*(4*kt+s),4)}, {ar(AQ(q)+4*s,4)}, {c}"

def pv(q, T, czero=False):
    d = vr(O_ + 32 * q + 4 * T, 4)
    return f"{MF} {d}, {ar(AV+4*T,4)}, {vr(P_+4*q,4)}, {'0' if czero else d}"

def lsm(q, czero=False):
    d = vr(LA + 4 * q, 4)
    return f"{MF} {d}, {vr(ONES,4)}, {vr(P_+4*q,4)}, {'0' if czero else d}"

SPINS = []
def attn_stage(b, k, nq, extra=None, fill=None, resume=False):
    kk = k % 32; u = k % 8
    if resume: kk = 0
    slots = []; gaps = [[] for _ in range(NS)]
    for q in (0, 1):
        for kt in range(2):
            for s in range(4): slots.append(qk(q, kt, s))
    for q in (2, 3):
        for T in range(8): slots.append(pv(q, T, kk == 1) if (q < nq and kk > 0) else None)
        if LM: slots.append(lsm(q, kk == 1) if (q < nq and kk > 0) else None)
    for q in (2, 3):
        for kt in range(2):
            for s in range(4): slots.append(qk(q, kt, s) if q < nq else None)
    for q in (0, 1):
        for T in range(8): slots.append(pv(q, T, kk == 0 and not resume))
        if LM: slots.append(lsm(q, kk == 0 and not resume))
    for g, key in sm_items(nq, 0, 2 * NS if kk > 0 else NS): gaps[g % NS].append(sm_text(*key))
    for g, x in zip(V_GAPS, v_reads(u, k)): gaps[g].append(x)
    DIST = 7 if OPT.get('d7') else OPT.get('dist', 5 if OPT.get('fsa') else 6)
    if DIST == 7 and k < 63:
        gaps[BG - 1].append(f"WAITV lgkmcnt(0) ; cover=KV{k+1}" + (",WT" if kk == 11 else ""))
        gaps[BG].append(f"s_barrier ; pub=KV{k+1}")
    elif k % 2 == 1 and k < 63 and OPT.get('fsa'):
        uid = f"{k}_{nq}"
        pg = OPT.get('fsp', 30); rg = OPT.get('fsr', 36)
        gaps[pg - 2].append(f"s_add_u32 s{sFV}, s{sFV}, 1")
        gaps[pg - 1].append(f"v_mov_b32 v{FQ}, s{sFV}") if pg - 1 >= 30 or pg < 26 else gaps[pg].append(f"v_mov_b32 v{FQ}, s{sFV}")
        gaps[pg + 1].insert(0, f"WAITV ; cover=KV{k+1},KV{k+2}" + (",WT" if kk == 11 else ""))
        gaps[pg + 1].append(f"ds_write_b32 v{VFA}, v{FQ}")
        gaps[rg].append(f"ds_read_b128 {vr(FQ,4)}, v{VFB}")
        gaps[rg + 3].insert(0, "s_waitcnt lgkmcnt(2)")
        gaps[rg + 3].append(f"v_min3_u32 v{FQ}, v{FQ}, v{FQ+1}, v{FQ+2}")
        gaps[rg + 4].append(f"v_min_u32 v{FQ}, v{FQ}, v{FQ+3}")
        gaps[rg + 5].append(f"v_cmp_gt_u32 vcc, s{sFV}, v{FQ}")
        gaps[rg + 6].insert(0, f"s_cbranch_vccnz L_fs{uid}\nL_fr{uid}: ; SYNC pub=KV{k+1},KV{k+2}")
        gaps[BG].append("s_waitcnt lgkmcnt(0)")
        SPINS.append(uid)
    elif k % 2 == 1 and k < 63:
        gaps[BG - 1].append(f"WAITV lgkmcnt(0) ; cover=KV{k+1},KV{k+2}" + (",WT" if k == (39 if OPT.get('pz') else 11) else ""))
        gaps[BG].append(f"s_barrier ; pub=KV{k+1},KV{k+2}")
    else:
        gaps[BG].append("s_waitcnt lgkmcnt(0)")
    if k < 63:
        for g, x in zip(K_GAPS, k_reads((u + 1) % 8, k + 1)): gaps[g].append(x)
        gaps[NS - 1].append("s_waitcnt lgkmcnt(0)")
    FP = OPT.get('fsa') and OPT.get('pair')
    t0 = (k + 4 + k % 2) if FP else (k + DIST - (k % 2) if OPT.get('pair') else k + DIST)
    if t0 < 64 and not (OPT.get('e67') and t0 < 8) and not (OPT.get('sw2') and k in (32, 33)):
        if OPT.get('pair'):
            isv = (k % 2 == 0) if FP else (k % 2 == 1)
            fn = v_dma if isv else k_dma
            kd, vd = fn(t0), fn(t0 + 1, f"s{sT}")
            gaps[D_GAPS[2] - 2].append(f"s_add_u32 s{sT}, s{sKV}, 8192")
            if isv:
                for i_, x in enumerate(adv2(sT)): gaps[44 + i_].append(x)
        else:
            kd, vd = k_dma(k + DIST), v_dma(k + DIST)
            gaps[44] += kv_adv()
        gaps[D_GAPS[0] - 1].append(kd[0]); gaps[D_GAPS[2] - 1].append(vd[0])
        for x, g in zip(kd[1:] + vd[1:], D_GAPS): gaps[g].append(x)
    for i_ in range(OPT.get('slow', 0)): gaps[2 + 2 * i_].append('v_nop\nv_nop\nv_nop\nv_nop')
    if extra:
        for g, x in extra: gaps[g].append(x)
    if fill:
        cost = lambda x: 2 if x.startswith('v_exp') else (1 if x.startswith(('v_', 'ds_', 'buffer_')) else 0)
        room = [max(0, 2 - sum(cost(x) for x in gaps[g])) if slots[g] else 0 for g in range(NS)]
        left = len(fill) - sum(room)
        live = [g for g in range(NS) if slots[g]]
        for i_ in range(max(left, 0)): room[live[(i_ * len(live)) // left]] += 1
        for g in range(NS):
            for _ in range(room[g]):
                if fill: gaps[g].append(fill.pop(0))
        assert not fill
    for key, pre in (('nobar', ('s_barrier',)), ('nodma', ('buffer_load_dwordx4 v9',)), ('nolds', ('ds_read',)), ('noexp', ('v_exp',))):
        if OPT.get(key) and 8 <= k < 16: gaps = [[x if not x.startswith(pre) else 's_nop 0 ;' + x.split(';', 1)[-1] for x in g] for g in gaps]
    if OPT.get('astamps') and k % 2 == 0: stamp(b)
    if OPT.get('dmaonly'):
        slots = [None] * NS
        gaps = [[x for x in g if not x.startswith(('v_', 'ds_'))] for g in gaps]
    emit_slots(b, slots, gaps)

def xlane_reduce(b, reg, tmp, op):
    b(f"v_mov_b32 v{tmp}, v{reg}")
    b(f"v_permlane32_swap_b32 v{reg}, v{tmp}")
    b(f"{op} v{reg}, v{reg}, v{tmp}")
    b(f"v_mov_b32 v{tmp}, v{reg}")
    b(f"v_permlane16_swap_b32 v{reg}, v{tmp}")
    b(f"{op} v{reg}, v{reg}, v{tmp}")

def xlane_reduce_multi(b, regs, tmps, op):
    for sw in ("v_permlane32_swap_b32", "v_permlane16_swap_b32"):
        for r, t in zip(regs, tmps): b(f"v_mov_b32 v{t}, v{r}")
        for r, t in zip(regs, tmps): b(f"{sw} v{r}, v{t}")
        for r, t in zip(regs, tmps): b(f"{op} v{r}, v{r}, v{t}")

def stamp(b, idx=None):
    if OPT.get('fixat') and idx == OPT['fixat']: b("s_memrealtime s[72:73]\ns_waitcnt lgkmcnt(0)")
    if not OPT['stamps']: return
    b(f"s_memtime s[{sSTAMP}:{sSTAMP+1}]\ns_memrealtime s[{sSTAMP+2}:{sSTAMP+3}]\ns_waitcnt lgkmcnt(0)")
    b(f"s_mov_b32 s95, m0\ns_mov_b32 m0, s96\nv_writelane_b32 v14, s{sSTAMP}, m0\nv_writelane_b32 v15, s{sSTAMP+2}, m0\ns_mov_b32 m0, s95\ns_add_u32 s96, s96, 1")

def stamp_dump(b, k, wave):
    if not OPT['stamps']: return
    b("s_waitcnt vmcnt(0)")
    stamp(b)
    if OPT['stamps'] == 2:
        b("s_load_dwordx2 s[92:93], s[0:1], 88\ns_waitcnt lgkmcnt(0)")
        b(f"s_cmp_lg_u32 s{wave}, 0\ns_cbranch_scc1 L_end{k+1}\ns_lshr_b32 s94, s97, 3\ns_cmp_lg_u32 s94, 5\ns_cbranch_scc1 L_end{k+1}")
        b(f"s_add_u32 s88, s92, {OPT.get('dbgoff',0)*(1-k)}\ns_addc_u32 s89, s93, 0\ns_mov_b32 s90, 256\ns_mov_b32 s91, 0x20000")
        sel = [0, 2, 3, 5, 6, 7, 8, 9, 10, 11, 12]
        b("s_mov_b64 exec, 1")
        for i, ix in enumerate(sel):
            b(f"v_readlane_b32 s94, v15, {ix}\ns_nop 3")
            if i == 0 and k == 0: b("s_not_b32 s94, s94")
            b(f"v_mov_b32 v1, s94\nv_mov_b32 v2, {4*(i + 1)}\nbuffer_atomic_umax v1, v2, s[88:91], 0 offen")
        return
    b("s_getreg_b32 s94, hwreg(HW_REG_XCC_ID)\nv_writelane_b32 v14, s94, 63\nv_writelane_b32 v14, s65, 62\nv_writelane_b32 v14, s64, 61")
    b("s_load_dwordx2 s[92:93], s[0:1], 96\ns_waitcnt lgkmcnt(0)")
    b(f"s_add_u32 s88, s92, {(48+k)*1024*1024}\ns_addc_u32 s89, s93, 0\ns_mov_b32 s90, 0x100000\ns_mov_b32 s91, 0x20000")
    b(f"s_lshl_b32 s94, s97, 2\ns_add_u32 s94, s94, s{wave}\ns_lshl_b32 s94, s94, 9")
    b("v_and_b32 v1, 63, v0\nv_lshlrev_b32 v1, 3, v1")
    b("buffer_store_dwordx2 v[14:15], v1, s[88:91], s94 offen")

def persist_regs(b):
    lane = T0; t1 = T0 + 1; t2 = T0 + 2; t3 = T0 + 3; g_ = T0 + 4; ihi = T0 + 5; i8 = T0 + 6; i16 = T0 + 7; r_ = T0 + 8; c4 = T0 + 9
    b(f"""v_and_b32 v{lane}, 63, v0
    v_lshrrev_b32 v{g_}, 4, v{lane}
    v_lshrrev_b32 v{ihi}, 3, v{lane}
    v_and_b32 v{i8}, 7, v{lane}
    v_and_b32 v{i16}, 15, v{lane}
    v_lshrrev_b32 v{r_}, 2, v{i16}
    v_and_b32 v{c4}, 3, v{lane}
    v_lshlrev_b32 v{VLN}, 4, v{lane}
    s_add_u32 s71, s63, s{sWB}
    v_add_u32 v{VO}, s71, v{VLN}""")
    b(f"""s_lshl_b32 s70, s{sWAVE}, 11
    v_lshlrev_b32 v{t1}, 8, v{g_}
    v_add_u32 v{t1}, s70, v{t1}
    s_and_b32 s70, s{sWAVE}, 1
    s_lshl_b32 s70, s70, 3
    v_xor_b32 v{t2}, v{i16}, v{g_}
    v_xor_b32 v{t2}, s70, v{t2}
    v_lshl_add_u32 v{DK0}, v{t2}, 4, v{t1}
    v_xor_b32 v{DK1}, 64, v{DK0}
    v_lshlrev_b32 v{t2}, 1, v{g_}
    v_xor_b32 v{t3}, v{t2}, v{i16}
    v_lshl_add_u32 v{DV0}, v{t3}, 4, v{t1}
    v_xor_b32 v{DV1}, 128, v{DV0}""")
    b(f"""v_mul_u32_u24 v{t1}, 1152, v{ihi}
    v_lshl_add_u32 v{t1}, v{i8}, 4, v{t1}
    s_lshl_b32 s70, s{sWAVE}, 7
    v_add_u32 v{VWO}, s70, v{t1}
    v_lshrrev_b32 v{t1}, 1, v{lane}
    v_mul_u32_u24 v{t1}, 1152, v{t1}
    v_and_b32 v{t2}, 1, v{lane}
    v_lshl_add_u32 v{t1}, v{t2}, 4, v{t1}
    s_lshl_b32 s70, s{sWAVE}, 5
    s_add_u32 s70, s70, 1024
    v_add_u32 v{VWX}, s70, v{t1}""")
    b(f"""v_xor_b32 v{t2}, v{g_}, v{i16}
    v_lshlrev_b32 v{t2}, 4, v{t2}
    v_lshl_add_u32 v{KA}, v{i16}, 8, v{t2}""")
    for s_ in range(1, 4): b(f"v_xor_b32 v{KA+s_}, {64*s_}, v{KA}")
    b(f"""v_lshl_add_u32 v{t2}, v{g_}, 2, v{r_}
    v_lshlrev_b32 v{t1}, 8, v{t2}
    v_and_b32 v{t2}, 7, v{t2}
    v_lshl_add_u32 v{t1}, v{t2}, 5, v{t1}
    v_lshl_add_u32 v{t1}, v{c4}, 3, v{t1}
    v_add_u32 v{VA}, 0x10000, v{t1}""")
    for T in range(1, 8): b(f"v_xor_b32 v{VA+T}, {32*T}, v{VA}")
    b(f"""v_lshl_add_u32 v{t2}, v{g_}, 2, v{r_}
    v_lshlrev_b32 v{t1}, 7, v{t2}
    v_lshl_add_u32 v{t1}, v{c4}, 3, v{t1}
    s_lshr_b32 s70, s{sWAVE}, 1
    s_lshl_b32 s70, s70, 16
    s_and_b32 s71, s{sWAVE}, 1
    s_lshl_b32 s{sWOS}, s71, 13
    s_add_u32 s{sWOS}, s{sWOS}, s70
    s_lshl_b32 s{sWTS}, s71, 10
    s_add_u32 s{sWTS}, s{sWTS}, s70
    s_add_u32 s{sWTS}, s{sWTS}, 47104
    {f"s_lshl_b32 s{sWTS}, s{sWAVE}, 10" if OPT.get('fsq') else ""}
    {f"s_add_u32 s{sWTS}, s{sWTS}, 147456" if OPT.get('fsq') else ""}
    v_add_u32 v{VWA}, s{sWOS}, v{t1}
    v_lshlrev_b32 v{t1}, 3, v{lane}
    v_add_u32 v{VWE}, s{sWTS}, v{t1}""")

def late_setup(b, sfx):
    b(f"""s_lshl_b32 s71, s68, 4
    s_add_u32 s71, s71, s69
    s_lshl_b32 s70, s71, 19
    s_add_u32 s{SK}, s50, s70
    s_addc_u32 s{SK+1}, s51, 0
    s_mov_b32 s{SK+2}, 524288
    s_mov_b32 s{SK+3}, 0x20000
    s_add_u32 s{SV}, s52, s70
    s_addc_u32 s{SV+1}, s53, 0
    s_mov_b32 s{SV+2}, 524288
    s_mov_b32 s{SV+3}, 0x20000
    s_mul_i32 s70, s3, {O_BLK}
    s_add_u32 s{SO}, s100, s70
    s_addc_u32 s{SO+1}, s101, 0
    s_mov_b32 s{SO+2}, {O_BLK}
    s_mov_b32 s{SO+3}, 0x20000
    s_mul_i32 s70, s71, 36864
    s_add_u32 s{SWO}, s56, s70
    s_addc_u32 s{SWO+1}, s57, 0
    s_mov_b32 s{SWO+2}, 36864
    s_mov_b32 s{SWO+3}, 0x20000
    s_mul_i32 s71, s3, {WOT_BLK}
    s_add_u32 s70, s70, s71
    s_add_u32 s70, s70, {WOT_OFF}
    s_add_u32 s{SWT}, s100, s70
    s_addc_u32 s{SWT+1}, s101, 0
    s_mov_b32 s{SWT+2}, 36864
    s_mov_b32 s{SWT+3}, 0x20000
    s_mul_i32 s62, s69, {8*122880}
    s_mul_i32 s63, s68, 15360        ; b*15*1024
    s_add_u32 s{SCN}, s100, {CNT_OFF}
    s_addc_u32 s{SCN+1}, s101, 0
    s_mov_b32 s{SCN+2}, 24576
    s_mov_b32 s{SCN+3}, 0x20000
    s_mov_b64 s[{SDB}:{SDB+1}], s[78:79]
    s_mov_b32 s{SDB+2}, 256
    s_mov_b32 s{SDB+3}, 0x20000
    s_mov_b64 s[{SIN}:{SIN+1}], s[{SCN}:{SCN+1}]
    s_mov_b32 s{SIN+3}, 0x20000
    s_mov_b64 s[{SIF}:{SIF+1}], s[78:79]
    s_mov_b32 s{SIF+3}, 0x20000
    s_lshl_b32 s70, s3, 3
    s_add_u32 s70, s70, s68
    s_lshl_b32 s{sCO}, s70, 2
    s_lshr_b32 s71, s69, 2
    s_add_u32 s{sCO}, s{sCO}, s71
    s_lshl_b32 s{sCO}, s{sCO}, 7
    s_lshr_b32 s{sCW}, s70, 1
    s_lshl_b32 s{sCW}, s{sCW}, 7
    s_add_u32 s{sCW}, s{sCW}, 8192
    s_and_b32 s70, s97, 1
    s_mul_i32 s70, s70, {30 + OPT.get('bal', 0)}
    s_add_u32 s2, s2, s70              ; tile number inside the pair of workgroup classes (0..59 real)
    s_cmp_eq_u32 s70, 0
    s_cselect_b32 s71, {30 + OPT.get('bal', 0)}, 60
    s_cmp_ge_u32 s2, s71
    s_cselect_b32 s{sIDLE}, 1, 0       ; no output tile for this workgroup
    s_mul_i32 s68, s2, 43
    s_lshr_b32 s68, s68, 8
    s_mul_i32 s69, s68, 6
    s_sub_u32 s69, s2, s69             ; nt
    s_bfe_u32 s70, s97, 0x10001
    s_mul_i32 s70, s70, 10
    s_add_u32 s68, s68, s70            ; mt
    s_mul_i32 s92, s69, {OPT.get('krot', 0)}
    s_add_u32 s92, s92, s68
    s_and_b32 s92, s92, 3""")
    if OPT.get('s2t'):
        b(f"""s_lshr_b32 s2, s97, 3
        s_mul_i32 s68, s2, 86
        s_lshr_b32 s68, s68, 8
        s_mul_i32 s69, s68, 3
        s_sub_u32 s69, s2, s69
        s_and_b32 s70, s97, 1
        s_mul_i32 s70, s70, 3
        s_add_u32 s69, s69, s70
        s_bfe_u32 s70, s97, 0x10001
        s_mul_i32 s70, s70, 10
        s_add_u32 s68, s68, s70""")
        if OPT['s2t'] >= 2:
            b(f"""s_and_b32 s92, s68, 1
            s_lshl_b32 s92, s92, 1
            s_lshr_b32 s70, s{sWAVE}, 1
            s_add_u32 s92, s92, s70
            s_and_b32 s68, s68, 30
            s_and_b32 s70, s{sWAVE}, 1
            s_add_u32 s68, s68, s70""")
        else: b(f"s_mov_b32 s92, s{sWAVE}")
    KQ = 92 if OPT.get('s2t') else sWAVE
    b(f"""
    s_mul_i32 s79, s68, 103
    s_lshr_b32 s79, s79, 8
    s_mul_i32 s78, s68, 96
    s_add_u32 s78, s78, 95
    s_mul_i32 s78, s78, 4370
    s_lshr_b32 s78, s78, 20
    s_lshl_b32 s70, s3, 3
    s_add_u32 s78, s78, s70
    s_add_u32 s79, s79, s70
    s_lshl_b32 s78, s78, 2
    s_lshl_b32 s79, s79, 2
    s_add_u32 s78, s78, s{KQ}
    s_add_u32 s79, s79, s{KQ}
    s_lshl_b32 s78, s78, 7
    s_lshl_b32 s79, s79, 7
    s_mul_i32 s70, s3, {O_BLK}
    s_mul_i32 s71, s68, 6144
    s_add_u32 s70, s70, s71
    s_add_u32 s{SO2}, s100, s70
    s_addc_u32 s{SO2+1}, s101, 0
    s_sub_u32 s{SO2+2}, {O_BLK}, s71
    s_mov_b32 s{SO2+3}, 0x20000
    s_mul_i32 s70, s3, {WOT_BLK}
    s_mul_i32 s71, s69, 6144
    s_add_u32 s70, s70, s71
    s_add_u32 s70, s70, {WOT_OFF}
    s_add_u32 s{SW2}, s100, s70
    s_addc_u32 s{SW2+1}, s101, 0
    s_sub_u32 s{SW2+2}, {WOT_BLK}, s71
    s_mov_b32 s{SW2+3}, 0x20000
    s_cmp_eq_u32 s{sIDLE}, 1
    s_cselect_b32 s{SO2+2}, 0, s{SO2+2}   ; workgroups without an output tile load nothing
    s_cselect_b32 s{SW2+2}, 0, s{SW2+2}
    s_mov_b32 s100, s{SO2+2}
    s_mov_b32 s101, s{SW2+2}
    s_lshr_b32 s70, s{sWAVE}, 1
    s_mul_i32 s70, s70, {48*2304}
    s_mul_i32 s{sOUTO}, s68, {96*2304}
    s_add_u32 s{sOUTO}, s{sOUTO}, s70
    s_mul_i32 s70, s3, 1152
    s_add_u32 s{sOUTO}, s{sOUTO}, s70
    s_mul_i32 s70, s69, 192
    s_add_u32 s{sOUTO}, s{sOUTO}, s70
    s_and_b32 s70, s{sWAVE}, 1
    s_mul_i32 s70, s70, 96
    s_add_u32 s{sOUTO}, s{sOUTO}, s70
    s_lshl_b32 s70, s3, 2
    s_add_u32 s70, s70, s{KQ}
    s_lshl_b32 s70, s70, 7
    s_add_u32 s70, s70, 8192
    v_and_b32 v1, 1, v0
    v_mov_b32 v{VP2}, s78
    v_mov_b32 v2, s79
    v_cmp_eq_u32 vcc, 1, v1
    v_and_b32 v1, 2, v0
    v_mov_b32 v3, s70
    v_cndmask_b32 v{VP2}, v{VP2}, v2, vcc
    v_cmp_eq_u32 vcc, 2, v1
    v_add_u32 v{VPE}, 16384, v{VP2}
    v_mov_b32 v{VTH}, 4
    v_cndmask_b32 v{VPE}, v{VPE}, v3, vcc
    v_mov_b32 v3, 32
    v_cndmask_b32 v{VTH}, v{VTH}, v3, vcc
    s_mov_b32 s{sSIG}, 0""")
    b(f"L_late{sfx}:")
    b(f"""s_or_b32 s70, s97, s{sSAFE}
    s_cmp_eq_u32 s70, 0
    s_cselect_b32 s{SIN+2}, 24576, 0   ; only workgroup 0 (first pass) really initialises the counters
    s_cselect_b32 s{SIF+2}, 4, 0
    s_mov_b32 s{sOO}, s62
    s_mov_b32 s{sLATE}, 0
    s_mov_b32 s{SO2+2}, s100
    s_mov_b32 s{SW2+2}, s101
    {p2_init()}
    s_lshr_b32 s{sRT}, s97, {OPT.get('rsh', 3)}
    s_mul_i32 s{sRT}, s{sRT}, {OPT.get('rot', 0) or 1}
    s_mul_i32 s70, s{sRT}, 5042
    s_lshr_b32 s70, s70, 16
    s_mul_i32 s70, s70, 13
    s_sub_u32 s{sRT}, s{sRT}, s70
    s_lshl_b32 s{sRT}, s{sRT}, 14
    s_lshl_b32 s{sKB}, s{sWAVE}, 11""")

def warm_code(b):
    if not OPT.get('warm'): return
    b(f"""s_getpc_b64 s[70:71]
    L_pc:
    s_sub_u32 s70, s70, L_pc-attn_kernel
    s_subb_u32 s71, s71, 0
    v_mul_u32_u24 v2, 40, v0
    v_lshrrev_b32 v2, 8, v2
    s_mul_i32 s68, s2, 40
    v_add_u32 v2, s68, v2
    v_lshlrev_b32 v2, 7, v2
    v_min_u32 v2, L_codeend-attn_kernel-4, v2
    v_mov_b32 v3, s71
    v_add_co_u32 v2, vcc, s70, v2
    v_addc_co_u32 v3, vcc, 0, v3, vcc
    global_load_dword v4, v[2:3], off
    v_mov_b32 v76, v2
    v_mov_b32 v77, v3""")

def prologue_a(b):
    lane = T0; t1 = T0 + 1; t2 = T0 + 2; t3 = T0 + 3; g_ = T0 + 4; ihi = T0 + 5; i8 = T0 + 6
    b(f"""v_and_b32 v{lane}, 63, v0
    v_lshrrev_b32 v{g_}, 4, v{lane}
    v_lshrrev_b32 v{ihi}, 3, v{lane}
    v_and_b32 v{i8}, 7, v{lane}""")
    b(f"s_lshl_b32 s{sT}, s{sWAVE}, 6")
    b(f"v_add_u32 v{t1}, s{sT}, v{ihi}")
    b(f"v_mul_u32_u24 v{t1}, 1152, v{t1}")
    for j in range(4):
        b(f"v_xor_b32 v{t2}, {4*(j%2)}, v{g_}")
        b(f"v_xor_b32 v{t2}, v{t2}, v{i8}")
        b(f"v_lshl_add_u32 v{t2}, v{t2}, 4, v{t1}")
        b(f"v_add_u32 v{DX+j}, {8*j*1152 - 1024*j}, v{t2}")
    b(f"""s_and_b32 s{sT}, s{sWAVE}, 1
    s_lshl_b32 s{sT}, s{sT}, 18
    s_lshr_b32 s{sT+1}, s{sWAVE}, 1
    s_lshl_b32 s{sT+1}, s{sT+1}, 7
    s_add_u32 s{sT}, s{sT}, s{sT+1}
    v_lshlrev_b32 v{t1}, 13, v{ihi}
    v_add_u32 v{t1}, s{sT}, v{t1}
    v_lshrrev_b32 v{t2}, 2, v{i8}
    v_xor_b32 v{t2}, v{t2}, v{g_}
    v_and_b32 v{t2}, 1, v{t2}
    v_lshl_add_u32 v{t1}, v{t2}, 6, v{t1}
    v_and_b32 v{t2}, 3, v{i8}
    v_lshl_add_u32 v{t1}, v{t2}, 4, v{t1}""")
    for j in range(4): b(f"v_add_u32 v{DW+j}, {8*j*8192 - 1024*j}, v{t1}")
    b(f"""s_mov_b32 s{sXO}, 0
    s_mov_b32 s{sXO2}, 36864
    s_mov_b32 s{sWOFF}, 0
    s_mov_b32 s{sKV}, 0
    s_mov_b32 s{sHEAD}, 0""")
    if OPT.get('qrot'):
        if OPT['qrot'] == 10:
            b(f"s_lshr_b32 s{sT}, s97, 5\ns_lshr_b32 s{sT+1}, s97, 3\ns_xor_b32 s{sT}, s{sT}, s{sT+1}\ns_and_b32 s{sT}, s{sT}, 1\ns_mul_i32 s{sT}, s{sT}, {OPT.get('qro', 4)}")
        elif OPT['qrot'] == 11:
            b(f"s_lshr_b32 s{sT}, s97, 5\ns_bfe_u32 s{sT+1}, s97, 0x20003\ns_add_u32 s{sT}, s{sT}, s{sT+1}\ns_mul_i32 s{sT+1}, s{sT}, 86\ns_lshr_b32 s{sT+1}, s{sT+1}, 8\ns_mul_i32 s{sT+1}, s{sT+1}, 3\ns_sub_u32 s{sT}, s{sT}, s{sT+1}\ns_mul_i32 s{sT}, s{sT}, 3")
        else:
            b(f"""s_lshr_b32 s{sT}, s97, 5
            s_bfe_u32 s{sT+1}, s97, 0x20003
            s_mul_i32 s{sT+1}, s{sT+1}, {OPT['qrot']}
            s_add_u32 s{sT}, s{sT}, s{sT+1}
            s_sub_u32 s{sT+1}, s{sT}, 9
            s_cselect_b32 s{sT}, s{sT}, s{sT+1}""")
        b(f"""
        s_lshl_b32 s{sXO}, s{sT}, 7
        s_add_u32 s{sXO2}, s{sXO}, 36864
        s_lshl_b32 s{sWOFF}, s{sT}, 19""")

def prologue_b(b):
    lane = T0; t1 = T0 + 1; t2 = T0 + 2; t3 = T0 + 3; g_ = T0 + 4; ihi = T0 + 5; i8 = T0 + 6
    if OPT.get('sstamps'): stamp(b)
    b.ext(x_dma(0, 4)); b.ext(w_dma(0, 4))
    if OPT.get('ord') == 1: b.ext(w_dma(1, 4)); b.ext(x_dma(1, 4))
    if OPT.get('ord') == 2: b.ext(w_dma(1, 4))
    if OPT.get('sstamps'): stamp(b)
    if OPT.get('xw'):
        pf = K2F[OPT.get('xwf', 0)]
        b(f"""s_lshr_b32 s70, s2, 2
        s_mul_i32 s70, s70, 270
        s_mul_i32 s71, s{sWAVE}, 68
        s_add_u32 s70, s70, s71
        s_lshl_b32 s70, s70, 7
        v_lshlrev_b32 v5, 7, v{lane}
        buffer_load_dword v6, v5, s[{SX}:{SX+3}], s70 offen{pf}
        s_and_b32 s70, s2, 3
        s_lshl_b32 s70, s70, 2
        s_add_u32 s70, s70, s{sWAVE}
        s_lshl_b32 s70, s70, 13
        v_lshrrev_b32 v5, 2, v{lane}
        v_lshlrev_b32 v5, 17, v5
        v_and_b32 v7, 3, v{lane}
        v_lshl_add_u32 v5, v7, 7, v5
        buffer_load_dword v6, v5, s[{SW}:{SW+3}], s70 offen{pf}
        s_add_u32 s70, s70, {256*8192}
        buffer_load_dword v6, v5, s[{SW}:{SW+3}], s70 offen{pf}
        s_add_u32 s70, s70, {256*8192}
        buffer_load_dword v6, v5, s[{SW}:{SW+3}], s70 offen{pf}""")
    late_setup(b, "")
    if OPT.get('tlb'):
        for srd in (SK, SV, SWO): b(f"buffer_load_dword v1, off, s[{srd}:{srd+3}], 0 nt")
        if OPT['tlb'] > 1:
            b(f"s_mov_b64 exec, 1\nbuffer_store_dword v1, off, s[{SWT}:{SWT+3}], s{sWB} sc1\ns_mov_b64 exec, -1")
    persist_regs(b)
    b(f"""v_mov_b32 v{VONE}, 1
    s_and_b32 s70, s{sWAVE}, 1
    s_mul_i32 s70, s70, 3072
    s_sub_u32 s71, 3072, s70
    v_add_u32 v{VPW}, s70, v{VLN}
    v_add_u32 v{VPW+1}, s71, v{VLN}
    s_lshr_b32 s70, s{sWAVE}, 1
    s_mul_i32 s70, s70, 3072
    s_sub_u32 s71, 3072, s70
    v_add_u32 v{VPO}, s70, v{VLN}
    v_add_u32 v{VPO+1}, s71, v{VLN}""")
    i16 = T0 + 7; r_ = T0 + 8; c4 = T0 + 9
    b(f"""v_and_b32 v{i16}, 15, v{lane}
    v_lshrrev_b32 v{r_}, 2, v{i16}
    v_and_b32 v{c4}, 3, v{lane}
    v_lshlrev_b32 v{t1}, 7, v{i16}
    v_add_u32 v{t1}, s{sXB}, v{t1}
    v_add_u32 v{t1}, 16384, v{t1}
    v_lshrrev_b32 v{t3}, 1, v{i16}""")
    for s in range(2):
        b(f"v_xor_b32 v{t2}, {4*s}, v{g_}")
        b(f"v_xor_b32 v{t2}, v{t2}, v{t3}")
        b(f"v_lshl_add_u32 v{XA+s}, v{t2}, 4, v{t1}\nv_add_u32 v{XA+2+s}, 65536, v{XA+s}")
    b(f"""v_lshl_add_u32 v{t1}, v{g_}, 3, v{r_}
    v_lshlrev_b32 v{t1}, 7, v{t1}
    v_lshl_add_u32 v{t1}, v{c4}, 4, v{t1}
    v_add_u32 v{t1}, 49152, v{t1}
    v_lshrrev_b32 v{t3}, 1, v{r_}""")
    if OPT.get('wnc'): b(f"v_and_b32 v{t2}, 1, v{g_}\nv_lshl_add_u32 v{t1}, v{t2}, 3, v{t1}")
    for sp in range(2):
        b(f"v_xor_b32 v{t2}, {sp}, v{t3}")
        b(f"v_lshl_add_u32 v{WA+sp}, v{t2}, 6, v{t1}\nv_add_u32 v{WA+2+sp}, 65536, v{WA+sp}")
    if OPT.get('sstamps'): stamp(b)
    if not OPT.get('ord'): b.ext(w_dma(1, 4))
    if OPT.get('ord') != 1: b.ext(x_dma(1, 4))

def wave_code(b, nq, sfx):
    nx = 8 if nq == 4 else 6
    b(f"L_begin{sfx}:")
    if nq == 3:
        b(f"v_mov_b32 v{VHS}, 0\nv_lshlrev_b32 v{VCW}, 3, v{VLN}")
        b(f"buffer_store_dword v{VHS}, v{VCW}, s[{SIN}:{SIN+3}], 0 offen sc1 ; tag=INIT")
        b(f"s_mov_b32 s{sT}, 8192\nbuffer_store_dword v{VHS}, v{VCW}, s[{SIN}:{SIN+3}], s{sT} offen sc1 ; tag=INIT")
        b(f"s_mov_b32 s{sT}, 16384\nbuffer_store_dword v{VHS}, v{VCW}, s[{SIN}:{SIN+3}], s{sT} offen sc1 ; tag=INIT")
    stamp(b, 0)
    if OPT.get('fsq'):
        b(f"s_mov_b32 s{sFQ}, 0\nv_mov_b32 v{QFB}, {QFLAGS}\nv_lshl_add_u32 v{QFA}, s{sWAVE}, 2, v{QFB}")
    b("WAITV ; cover=X0,W0")
    b("s_barrier ; pub=X0,W0")
    b.ext(x_reads(0, nq))
    for T in (0, 1): b.ext(w_reads(0, T))
    b.ext(w_reads(0, 2)[:3])
    b("WAITL W0.0")
    stamp(b, 1)
    for n in range(0, 12): qproj_stage(b, n, nq)
    fill = []; post = []
    for sp in range(4):
        for q in range(nq):
            rs = [128 + 32 * q + 8 * sp + 2 * i_ for i_ in range(4)]
            for r in rs: fill += [f"v_mul_f32 v{r}, s{sC}, v{r}", f"v_mul_f32 v{r+1}, s{sC}, v{r+1}"]
            for r in rs: fill.append(f"v_cvt_pk_bf16_f32 v{r}, v{r}, v{r+1}")
            for i_, r in enumerate(rs): fill.append(f"v_accvgpr_write_b32 a{AQ(q) + 4*sp + i_}, v{r}")
    for n in range(12, 18): qproj_stage(b, n, nq, fill if n >= 16 else None)
    stamp(b, 2)
    conv2 = []
    for q in range(nq):
        for h in range(8):
            r = 128 + 32 * q + 4 * h
            conv2 += [f"v_accvgpr_read_b32 v{4+i_}, a{r+i_}" for i_ in range(4)]
            conv2 += [f"v_mul_f32 v{4+i_}, s{sC}, v{4+i_}" for i_ in range(4)]
            conv2 += ["v_cvt_pk_bf16_f32 v4, v4, v5", "v_cvt_pk_bf16_f32 v6, v6, v7",
                      f"v_accvgpr_write_b32 a{AQ2(q)+2*h}, v4", f"v_accvgpr_write_b32 a{AQ2(q)+2*h+1}, v6"]
    def pre_mfma(): return [qk(q, 0, s_, czero=True) for q in range(nq) for s_ in range(4)]
    def pre_max():
        t = B()
        for q in range(nq):
            s_ = S_ + 8 * q
            t(f"v_max3_f32 v{s_}, v{s_}, v{s_+1}, v{s_+2}")
        for q in range(nq):
            s_ = S_ + 8 * q
            t(f"v_max_f32 v{s_}, v{s_}, v{s_+3}")
        xlane_reduce_multi(t, [S_ + 8 * q for q in range(nq)], [T0 + q for q in range(nq)], "v_max_f32")
        for q in range(nq):
            for r in range(4): t(f"v_sub_f32 v{CI+4*q+r}, 0, v{S_+8*q}")
        return t.L
    def weave(mf, st, per):
        for x in mf:
            b(x)
            for _ in range(per):
                if st: b(st.pop(0))
    def zipper(a_, b_, ra, rb):
        out = []
        while a_ or b_:
            for _ in range(ra):
                if a_: out.append(a_.pop(0))
            for _ in range(rb):
                if b_: out.append(b_.pop(0))
        return out
    b.ext(k_reads(0, 0))
    b.ext(fill)
    b(f"v_and_b32 v4, 3, v0\nv_mov_b32 v5, 0x3f803f80\nv_cmp_eq_u32 vcc, 0, v4")
    for i_ in range(4): b(f"v_cndmask_b32 v{ONES+i_}, 0, v5, vcc")
    b("s_waitcnt lgkmcnt(0)")
    if OPT.get('wts'):
        mv = [f"v_mov_b32 v{192+i_}, v{WOF+i_}" for i_ in range(36)]
        b.ext(mv[:8])
        mv = mv[8:]
        weave(pre_mfma()[:8], mv, 4)
        b.ext(mv); b.ext(pre_mfma()[8:])
    else: b.ext(pre_mfma())
    b.ext(pre_max())
    stamp(b, 3)
    for i_ in range(OPT.get('pause', 0)): b('s_sleep 32')
    if OPT.get('skew'):
        b(f"s_lshr_b32 s{sT}, s97, 3\ns_and_b32 s{sT}, s{sT}, 7\nL_skew{sfx}:\ns_cmp_eq_u32 s{sT}, 0\ns_cbranch_scc1 L_skewd{sfx}\ns_sleep {OPT['skew']}\ns_sub_u32 s{sT}, s{sT}, 1\ns_branch L_skew{sfx}\nL_skewd{sfx}:")
    adv8 = lambda x: x
    def head_start(hd):
        b(f"s_cmp_lg_u32 s{sSAFE}, 0\ns_cbranch_scc1 L_maxpass{sfx}\nL_maxdone{hd}{sfx}:")
        if not LM:
            for q in range(nq): b(f"v_mov_b32 v{LS+q}, 0")
        stamp(b)
    if OPT.get('wtp') == 2 and nq == 3: b("WAITV ; cover=WT\nbuffer_wbl2 sc1 ; tag=WT")
    if OPT.get('pz'): b(f"s_mov_b32 s{sPW}, 99\ns_mov_b32 s{sPZ}, 0")
    if OPT.get('pz') and nq == 3: b(f"v_bfe_u32 v{VPA}, v0, 2, 2\nv_xor_b32 v{VPA}, 3, v{VPA}\nv_lshlrev_b32 v{VPA}, 7, v{VPA}\nv_sub_u32 v{VPA}, v{VPE}, v{VPA}")
    head_start(0)
    per = -(-len(conv2) // 8); tot_ = len(conv2)
    for k in range(8):
        ex = []
        if k == 0 and OPT.get('wts'):
            for i_ in range(8 if OPT.get('fsq') else 9):
                g = 2 + 7 * i_
                if i_ < 8: ex.append((g - 1, f"s_add_u32 s{sT+1}, s{sWB}, {16384*(i_//4)}"))
                else: ex += [(g - 2, f"s_lshl_b32 s{sT+1}, s{sWAVE}, 10"), (g - 1, f"s_add_u32 s{sT+1}, s{sT+1}, 32768")]
                ex.append((g, f"buffer_store_dwordx4 {vr(192+4*i_,4)}, v{VLN}, s[{SWT}:{SWT+3}], s{sT+1} offen offset:{1024*(i_%4) if i_ < 8 else 0} sc1 ; tag=WT"))
        if OPT.get('fsq'):
            A9 = 192 if nq == 4 else 224
            if k == 1: ex += [(5, f"s_mov_b32 m0, s{sWTS}"), (6, dma(VWX, SWO, "0", 0, fl('nt_wo'), "W9X"))]
            if k == 6: ex += [(3, "WAITV ; cover=W9X"), (4, f"ds_read_b64_tr_b16 {ar(A9,2)}, v{VWE} offset:0"), (5, f"ds_read_b64_tr_b16 {ar(A9+2,2)}, v{VWE} offset:512")]
            if k == 7: ex += [(4, f"s_lshl_b32 s{sT+1}, s{sWAVE}, 10"), (5, f"s_add_u32 s{sT+1}, s{sT+1}, 32768"),
                              (25, f"buffer_store_dwordx4 {ar(A9,4)}, v{VLN}, s[{SWT}:{SWT+3}], s{sT+1} offen sc1 ; tag=WT")]
        if k == 6 and nq == 3:
            ex += [(46, "WAITV ; cover=HS"), (47, f"v_readfirstlane_b32 s{sT}, v{VHS}\ns_cmp_eq_u32 s{sT}, 0\ns_cbranch_scc1 L_hspin\nL_hsok:")]
        cnt_ = per
        if OPT.get('front'): cnt_ = -(-tot_ * {1: (8, 8, 7, 7, 6, 5, 4, 3), 2: (3, 4, 5, 6, 7, 7, 8, 8), 3: (12, 12, 12, 12, 0, 0, 0, 0)}[OPT['front']][k] // 48)
        attn_stage(b, k, nq, ex, fill=[conv2.pop(0) for _ in range(min(cnt_, len(conv2)))])
    b(f"L_atin{sfx}:")
    b(f"s_mov_b32 s{sCNT}, 0")
    b(f".p2align 3\nL_at{sfx}:")
    b("LOOPBEGIN at 3 8")
    for k in range(8, 16):
        ex = []
        if k == 11 and nq == 3 and not OPT.get('pz'):
            ex = [(59, f"""s_xor_b32 s{sT+1}, s{sHEAD}, 1
            s_or_b32 s{sT}, s{sCNT}, s{sT+1}
            s_cbranch_scc0 L_sig
            L_nosig:""")]
        if OPT.get('pz') and nq == 3:
            if k == 11: ex = [(58, f"s_cmp_eq_u32 s{sPW}, 99"), (60, f"s_cbranch_scc1 L_nop3\nbuffer_load_dword v{VCW}, v{VPA}, s[{SCN}:{SCN+3}], 0 offen sc1 ; cond\nL_nop3:")]
            if k == 13: ex = [(BG + 1, f"s_getreg_b32 s{sST}, hwreg(HW_REG_IB_STS)")]
            if k == 15:
                ex = [(BG - 1, f"""v_cmp_gt_u32 vcc, v{VTH}, v{VCW}
                v_mov_b32 v5, {DEC}
                s_and_b32 s{sT}, s{sST}, 15
                s_lshr_b32 s{sT+1}, s{sST}, 30
                s_lshl_b32 s{sT+1}, s{sT+1}, 4
                s_or_b32 s{sT}, s{sT}, s{sT+1}
                s_cmp_ge_u32 s{sT}, {OPT.get('pzt', 0)}
                s_cselect_b32 s{sT}, 1, 0
                s_cmp_eq_u64 vcc, 0
                s_cselect_b32 s{sT}, s{sT}, 0
                v_mov_b32 v4, s{sT}
                ds_write_b32 v5, v4
                s_waitcnt lgkmcnt(0)""")]
        if k == 9 and OPT.get('pz'): b(f"L_at1{sfx}:")
        if k == 15:
            if OPT.get('pz'): ex += [(NS - 4, f"s_add_u32 s{sCNT}, s{sCNT}, 1"), (NS - 2, f"s_cmp_ge_u32 s{sCNT}, s{sPW}")]
            else: ex += [(NS - 6, f"s_add_u32 s{sCNT}, s{sCNT}, 1"), (NS - 4, f"s_add_u32 s{sT}, s{sCNT}, s{sHEAD}"), (NS - 2, f"s_cmp_lt_u32 s{sT}, 3")]
        attn_stage(b, k, nq, ex)
    if OPT.get('pz'): b(f"s_cbranch_scc1 L_pchk{sfx}\nL_pret{sfx}:\ns_add_u32 s{sT}, s{sCNT}, s{sHEAD}\ns_cmp_lt_u32 s{sT}, 3")
    if OPT.get('midgap'):
        b(f"s_cselect_b32 s{sT+1}, 1, 0\ns_lshl_b32 s{sT}, s{sHEAD}, 4\ns_add_u32 s{sT}, s{sT}, s{sCNT}\ns_cmp_eq_u32 s{sT}, {OPT.get('midat', 1)}\ns_cbranch_scc0 L_ng{sfx}")
        for i_ in range(OPT['midgap']): b("s_sleep 16")
        b(f"L_ng{sfx}:\ns_cmp_eq_u32 s{sT+1}, 1")
    b(f"s_cbranch_scc1 L_at{sfx}")
    b("LOOPEND at")
    b(f"L_atx{sfx}:")
    b(f"s_cmp_lg_u32 s{sHEAD}, 0\ns_cbranch_scc1 L_fin{sfx}")

    def lsum(qs):
        t = B()
        if not LM: xlane_reduce_multi(t, [LS + q for q in qs], [T0 + 4 + q for q in qs], "v_add_f32")
        for q in qs:
            src = LA + 4 * q if LM else LS + q
            t(f"v_cmp_ngt_f32 vcc, {LTHR}, v{src}")
            t(f"v_rcp_f32 v{LS+q}, v{src}")
            t(f"s_or_b32 s{sFLAG}, s{sFLAG}, vcc_lo\ns_or_b32 s{sFLAG}, s{sFLAG}, vcc_hi")
        return t.L
    cnt = [0]
    def onorm(q, pk, flag, inplace=False, so=None):
        out = []
        for sp in range(4):
            d = P_ + 4 * (cnt[0] % 2); cnt[0] += 1
            if inplace: d = O_ + 32 * q + 8 * sp
            rs = [O_ + 32 * q + 8 * sp + 2 * i_ for i_ in range(4)]
            for r in rs:
                if pk and OPT.get('pk', 1): out.append(f"v_pk_mul_f32 v[{r}:{r+1}], v[{r}:{r+1}], v[{LS+q-(q%2)}:{LS+q-(q%2)+1}] op_sel:[0,{q%2}] op_sel_hi:[1,{q%2}]")
                else: out += [f"v_mul_f32 v{r}, v{r}, v{LS+q}", f"v_mul_f32 v{r+1}, v{r+1}, v{LS+q}"]
            for i_, r in enumerate(rs): out.append(f"v_cvt_pk_bf16_f32 v{d+i_}, v{r}, v{r+1}")
            if flag is None:
                for i_ in range(4): out.append(f"v_accvgpr_write_b32 a{AST+16*q+4*sp+i_}, v{d+i_}")
                continue
            if so:
                out[-1] += f"\ns_add_u32 s{sT+1}, s{so}, {sp*122880}\nbuffer_store_dwordx4 {vr(d,4)}, v{VO}, s[{SO}:{SO+3}], s{sT+1} offen offset:{1024*q}{flag}"
                continue
            out.append(f"s_add_u32 s{sT}, s{sOO}, {sp*122880}")
            out.append(f"buffer_store_dwordx4 {vr(d,4)}, v{VO}, s[{SO}:{SO+3}], s{sT} offen offset:{1024*q}{flag}")
        return out
    def drain(st, ld=None, every=1):
        slots = []; gaps = [[] for _ in range(18)]
        for q in (2, 3):
            for T in range(8): slots.append(pv(q, T) if q < nq else None)
            slots.append(lsm(q) if (q < nq and LM) else None)
        rem = sorted(sm_items(nq, NS, 2 * NS), key=lambda t: t[0])
        b.ext([sm_text(*k_) for g, k_ in rem if k_[1] == 2 and k_[0] != 'add'])
        crit = sorted([k_ for g, k_ in rem if k_[1] == 3 and k_[0] != 'add'], key=lambda k_: (k_[2], k_[0] == 'cvt'))
        g = 0
        for k_ in crit:
            if k_[0] == 'exp' and gaps[min(g, 6)]: g += 1
            gaps[min(g, 6)].append(sm_text(*k_))
            if k_[0] == 'exp' or len(gaps[min(g, 6)]) == 2: g += 1
        late = [sm_text(*k_) for g_, k_ in rem if k_[0] == 'add']
        for i_, x in enumerate(late): gaps[min(9 + i_ // 2, 16) if nq == 4 else 0].append(x)
        for g in range(18):
            if slots[g] is None: continue
            room = 2 - sum(2 if 'exp' in x else 1 for x in gaps[g])
            while room > 0 and st: gaps[g].append(st.pop(0)); room -= 1
        for i_, s_ in enumerate(slots):
            if s_: b(s_)
            if s_ and ld and (i_ % every == 0 or nq == 3):
                b(ld.pop(0))
                while ld and ld[0].startswith("s_"): b(ld.pop(0))
            b.ext(gaps[i_])
    hi = list(range(2, nq))
    movs = [f"v_accvgpr_mov_b32 a{AQ(q)+i_}, a{AQ2(q)+i_}" for q in range(nq) for i_ in range(16)]
    f0 = None if OPT.get('defer') else K2F[OPT.get('of0', 2)] + ' ; tag=WT'
    if OPT.get('wtp') == 1 and nq == 3: b("buffer_wbl2 sc1 ; tag=WT")
    st = lsum([0, 1]) + onorm(0, False, f0)
    SW2_ = OPT.get('sw2', 0)
    if SW2_:
        ld = []
        D_ = OPT.get('dist', 5 if OPT.get('fsa') else 6)
        if OPT.get('pair'):
            b(f"s_add_u32 s{sT+1}, s{sKV}, 8192")
            if OPT.get('fsa'): ld = v_dma(36) + v_dma(37, f"s{sT+1}") + adv2(sT + 1) + [f"s_add_u32 s{sT+1}, s{sKV}, 8192"] + k_dma(38) + k_dma(39, f"s{sT+1}")
            else: ld = k_dma(38) + k_dma(39, f"s{sT+1}") + v_dma(38) + v_dma(39, f"s{sT+1}") + adv2(sT + 1)
        else:
            for t in (32 + D_, 33 + D_): ld += k_dma(t) + v_dma(t) + kv_adv()
        b(ld.pop(0))
        ld2 = []
        for x in ld: ld2 += [x] if x.startswith('s_') else [x, 'v_nop']
        ld2 = [x for x in ld]
        drain(st, ld2, 2)
    else: drain(st)
    stamp(b, 4)
    b.ext(zipper(st, lsum(hi), 2, 1))
    b.ext(movs)
    st = onorm(1, False, f0)
    weave(pre_mfma(), st, 3 if nq == 4 else 4)
    b.ext(st)
    rest = []; late_ = []
    for q in hi:
        if SW2_ >= 2: late_ += onorm(q, False, f0, inplace=True, so=sOP)
        else: rest += onorm(q, True, f0)
    b.ext(zipper(rest, pre_max(), 2, 1))
    b.ext(vote_write())
    b(f"s_mov_b32 s{sOP}, s{sOO}\ns_add_u32 s{sOO}, s{sOO}, {4*122880}\ns_mov_b32 s{sHEAD}, 1")
    if OPT.get('emub'):
        b(f"s_and_b32 s{sT}, s97, 3\ns_cmp_eq_u32 s{sT}, s{sCNT}" if False else "")
        b(f"s_mov_b32 s{sT}, 0\nL_duma{sfx}:")
        for i_ in range(64):
            if (i_ // 2) % 4 >= nq: continue
            b(f"{MF} a[{192+4*(i_//2%16)}:{195+4*(i_//2%16)}], a[{4*(i_%8)}:{4*(i_%8)+3}], a[{32+4*(i_%7)}:{35+4*(i_%7)}], a[{192+4*(i_//2%16)}:{195+4*(i_//2%16)}]")
            if i_ % 2 == 0: b(f"ds_read_b64_tr_b16 v[4:5], v{VA + i_ % 8} offset:{(i_ % 16) * 4096}")
        b(f"s_waitcnt lgkmcnt(0)\ns_barrier\ns_add_u32 s{sT}, s{sT}, 1\ns_cmp_lt_u32 s{sT}, 8\ns_cbranch_scc1 L_duma{sfx}")
    if OPT.get('pz'):
        b(f"""s_and_b32 s{sT}, s97, 7
        s_lshl_b32 s{sT}, s{sT}, 2
        s_lshr_b32 s{sPW}, {OPT.get('pzc', 0x10210210):#x}, s{sT}
        s_and_b32 s{sPW}, s{sPW}, 15
        s_or_b32 s{sT}, s{sIDLE}, s{sSAFE}
        s_cselect_b32 s{sPW}, 0, s{sPW}
        s_cmp_eq_u32 s{sPW}, 0
        s_cselect_b32 s{sPW}, 99, s{sPW}""")
    head_start(1)
    dst = [(q, sp) for q in range(nq) for sp in range(4)] if OPT.get('defer') else []
    for k in range(32, 40):
        ex = []
        for g in (24, 25):
            if dst:
                q, sp = dst.pop(0)
                ex += [(g, f"s_add_u32 s{sT+1}, s{sOP}, {sp*122880}"),
                       (g, f"buffer_store_dwordx4 {ar(AST+16*q+4*sp,4)}, v{VO}, s[{SO}:{SO+3}], s{sT+1} offen offset:{1024*q} sc1 ; tag=WT")]
        if k == 39 and nq == 3 and OPT.get('pz'): ex.append((59, "s_branch L_sig\nL_nosig:"))
        attn_stage(b, k, nq, ex, fill=late_ if k == 32 else None)
    b(f"s_branch L_atin{sfx}")
    b("REPLAY at 32 2")
    b(f"L_fin{sfx}:")
    f1 = K2F[OPT.get('of', 0)]
    early = p2_w(0) + p2_o(0) + p2_adv(0) + p2_w(1) + p2_o(1) + p2_adv(1)
    if OPT.get('pre8'): early += (p2_w(2) + p2_o(2))[:8]
    for k in range(56, 64):
        ex = []
        if k == 56: ex = [(6, f"buffer_load_dword v{VCW}, v{VPE}, s[{SCN}:{SCN+3}], 0 offen sc1 ; tag=CW")]
        if k == 59: ex = [(NS - 3, f"WAITV ; cover=CW\nv_cmp_gt_u32 vcc, v{VTH}, v{VCW}\ns_cbranch_vccnz L_espin{sfx}\nL_eok{sfx}:" + (f"\ns_cmp_eq_u32 s{sPZ}, 0\ns_cselect_b64 vcc, -1, 0" if OPT.get('pz') else ""))]
        if k == 57 and OPT.get('pz'): b(f"L_t57{sfx}:")
        if k >= 60:
            for g in ((3, 7, 11, 17, 23, 33, 38, 55) if OPT.get('pre8') else (3, 7, 11, 17, 23, 45 if LM else 44)):
                if OPT.get('pz'):
                    t_ = [early.pop(0) + " condp"]
                    while early and early[0].startswith("s_"): t_.append(early.pop(0))
                    ex.append((g, f"s_cbranch_vccz L_sk{k}_{g}{sfx}\n" + "\n".join(t_) + f"\nL_sk{k}_{g}{sfx}:"))
                    continue
                ex.append((g, early.pop(0)))
                while early and early[0].startswith("s_"): ex.append((g + 1, early.pop(0)))
        attn_stage(b, k, nq, ex)
    assert not early
    p2 = []
    for s_ in (2, 3): p2 += p2_w(s_) + p2_o(s_) + p2_adv(s_)
    if OPT.get('pre8'): p2 = p2[8:]
    st = lsum([0, 1]) + onorm(0, False, f1)
    drain(st, p2)
    stamp(b, 5)
    body = st + zipper(onorm(1, True, f1), lsum(hi), 2, 1)
    for q in hi: body += onorm(q, True, f1)
    body = [x + " ; tag=OS" if x.startswith("buffer_store") else x for x in body]
    nld = sum(1 for x in p2 if x.startswith("buffer_"))
    per = max(1, len(body) // (nld + 2))
    seq = []
    while body or p2:
        if p2:
            seq.append(p2.pop(0))
            while p2 and p2[0].startswith("s_"): seq.append(p2.pop(0))
        for _ in range(per):
            if body: seq.append(body.pop(0))
    outst = 48 - nld
    for x in seq:
        if x.startswith("buffer_"):
            if outst >= 62: b("s_waitcnt vmcnt(52)"); outst = 52
            outst += 1
        b(x)
    b.ext(vote_write())
    stamp(b)
    if OPT.get('pz'): b(f"s_cmp_eq_u32 s{sPZ}, 1\ns_cbranch_scc1 L_p2p{sfx}\nALTFROM p")
    b(f"L_p2s{sfx}:")
    for s_ in range(4): p2_step(b, s_, s_ == 0, True, f"WAITV ; cover=P{s_} cap=51")
    b("WAITV lgkmcnt(0) ; cover=OS")
    b("s_branch L_vote")
    b(f"""L_espin{sfx}:
    s_mov_b32 s{sLATE}, 1
    s_mov_b32 s{SO2+2}, 0
    s_mov_b32 s{SW2+2}, 0
    s_branch L_eok{sfx}""")
    if nq == 3:
        b(f"""L_sig:
        v_mov_b32 v4, {131072+7168}
        ds_read_b128 v[4:7], v4
        s_waitcnt lgkmcnt(0)
        v_or_b32 v4, v4, v5
        v_or3_b32 v4, v4, v6, v7
        v_readfirstlane_b32 s{sT}, v4
        s_mov_b64 exec, 1
        s_cmp_lg_u32 s{sSAFE}, 0
        s_cselect_b32 s{sT}, 0, s{sT}
        s_cbranch_scc1 L_sig1
        buffer_atomic_add v{VONE}, off, s[{SCN}:{SCN+3}], s{sCW} sc1
        L_sig1:
        s_or_b32 s{sT}, s{sT}, s{sSIG}
        s_cbranch_scc1 L_sig2
        s_add_u32 s{sT}, s{sCO}, 16384
        s_mov_b32 s{sSIG}, 1
        buffer_atomic_add v{VONE}, off, s[{SCN}:{SCN+3}], s{sT} sc1
        L_sig2:
        s_mov_b64 exec, -1
        s_branch L_nosig""")
        b(f"""L_hspin:
        s_mov_b32 s{sCNT}, 0
        L_hsp:
        s_sleep 8
        buffer_load_dword v{VHS}, off, s[{SDB}:{SDB+3}], 0 sc1
        s_waitcnt vmcnt(0)
        v_readfirstlane_b32 s{sT}, v{VHS}
        s_add_u32 s{sCNT}, s{sCNT}, 1
        s_lshr_b32 s{sT+1}, s{sCNT}, 17
        s_or_b32 s{sT}, s{sT}, s{sT+1}
        s_cmp_eq_u32 s{sT}, 0
        s_cbranch_scc1 L_hsp
        s_branch L_hsok""")
    for uid in QSPINS:
        b(f"""L_fs{uid}:
        ds_read_b128 {vr(QF,4)}, v{QFB}
        s_waitcnt lgkmcnt(0)
        v_min3_u32 v{QF}, v{QF}, v{QF+1}, v{QF+2}
        v_min_u32 v{QF}, v{QF}, v{QF+3}
        v_cmp_gt_u32 vcc, s{sFQ}, v{QF}
        s_cbranch_vccnz L_fs{uid}
        s_branch L_fr{uid}""")
    QSPINS.clear()
    for uid in SPINS:
        b(f"""L_fs{uid}:
        ds_read_b128 {vr(FQ,4)}, v{VFB}
        s_waitcnt lgkmcnt(0)
        v_min3_u32 v{FQ}, v{FQ}, v{FQ+1}, v{FQ+2}
        v_min_u32 v{FQ}, v{FQ}, v{FQ+3}
        v_cmp_gt_u32 vcc, s{sFV}, v{FQ}
        s_cbranch_vccnz L_fs{uid}
        s_branch L_fr{uid}""")
    SPINS.clear()
    if OPT.get('pz'):
        b(f"""L_pchk{sfx}:
        v_mov_b32 v5, {DEC}
        ds_read_b32 v4, v5
        s_waitcnt lgkmcnt(0)
        v_readfirstlane_b32 s{sT}, v4
        s_cmp_eq_u32 s{sT}, 0
        s_cbranch_scc1 L_pret{sfx}
        s_mov_b32 s{sPW}, 99
        s_mov_b32 s{sPZ}, 1""")
        w_, o_, a_ = pz_loads(0, 0)
        ld = w_ + o_ + a_
        drain([], ld)
        b.ext(ld)
        w_, o_, a_ = pz_loads(1, 1)
        b.ext(w_ + o_ + a_)
        b("s_branch L_pz")
        b(f"L_pzr{sfx}:")
        b.ext([x.split(';')[0] for x in k_reads(0, 0)])
        b("s_waitcnt lgkmcnt(0)")
        t_ = B(); attn_stage(t_, 8, nq, resume=True); b.ext([x.split(';')[0] for x in t_.L])
        b(f"s_cmp_eq_u32 s{sCNT}, 1\ns_cbranch_scc1 L_at1{sfx}\ns_branch L_t57{sfx}")
        b(f"ALTBEGIN p\nL_p2p{sfx}:")
        b(f"s_add_u32 s{sT}, s{sXB}, 131072\nv_add_u32 v5, s{sT}, v{VLN}")
        for i_ in range(4): b(f"ds_read_b128 {vr(240+4*i_,4)}, v5 offset:{1024*i_}")
        l0 = p2_w(0) + p2_o(0) + p2_adv(0); l1 = p2_w(1) + p2_o(1) + p2_adv(1)
        for i_ in range(128):
            b(f"v_accvgpr_read_b32 v{112+i_}, a{128+i_}")
            if i_ >= 64 and i_ % 4 == 3 and l0:
                b(l0.pop(0))
                while l0 and l0[0].startswith("s_"): b(l0.pop(0))
        b("WAITV ; cover=P2 cap=40")
        b.ext(l1)
        b("s_waitcnt lgkmcnt(0)")
        for s_ in (2, 3): p2_step(b, s_, False, True, f"WAITV ; cover=P{s_} cap=51")
        b("WAITV lgkmcnt(0) ; cover=OS")
        b("s_branch L_vote\nALTEND p")
    b(f"L_maxpass{sfx}:")
    for q in range(nq): b(f"v_mov_b32 v{T0+8+q}, 0xff800000")
    for s2 in range(4): b(f"v_add_u32 v{T0+12+s2}, 147456, v{KA+s2}")
    b(f"s_lshl_b32 s{sT}, s{sHEAD}, 18\ns_mov_b32 s{sCNT}, 0")
    b(f"L_mp{sfx}:")
    b(f"s_barrier\ns_add_u32 m0, s{sKB}, 147456")
    b(dma(DK0, SK, f"s{sT}", 0, "", "MP")); b(dma(DK1, SK, f"s{sT}", 1024, "", "MP"))
    b("s_waitcnt vmcnt(0)\ns_barrier")
    for kt in range(2):
        for s in range(4):
            b(f"ds_read_b128 {ar(ASP+4*(4*kt+s),4)}, v{T0+12+s} offset:{kt*4096}")
    b("s_waitcnt lgkmcnt(0)")
    for q in range(nq):
        for kt in range(2):
            for s in range(4):
                d = vr(S_ + 8 * q + 4 * kt, 4)
                b(f"{MF} {d}, {ar(ASP+4*(4*kt+s),4)}, {ar(AQ(q)+4*s,4)}, {d if s else '0'}")
    for q in range(nq):
        for e in range(0, 8, 2): b(f"v_max3_f32 v{T0+8+q}, v{T0+8+q}, v{S_+8*q+e}, v{S_+8*q+e+1}")
    b(f"s_add_u32 s{sT}, s{sT}, 8192\ns_add_u32 s{sCNT}, s{sCNT}, 1\ns_cmp_lt_u32 s{sCNT}, 32\ns_cbranch_scc1 L_mp{sfx}")
    b("s_barrier")
    xlane_reduce_multi(b, [T0 + 8 + q for q in range(nq)], [T0 + q for q in range(nq)], "v_max_f32")
    for q in range(nq):
        for r in range(4): b(f"v_sub_f32 v{CI+4*q+r}, 0, v{T0+8+q}")
    b(f"s_cmp_eq_u32 s{sHEAD}, 0\ns_cbranch_scc1 L_maxdone0{sfx}\ns_branch L_maxdone1{sfx}")

FA = [144, 192, 0, 96]
def p2_reg(slot, i):
    if OPT.get('pre8'):
        if slot == 2: return 128 + 4 * i if i < 4 else (240 + 4 * (i - 4) if i < 8 else 4 * (i - 8))
        if slot == 3: return 16 + 4 * i
    if slot == 3: return 48 + 4 * i if i < 4 else 96 + 4 * (i - 4)
    return FA[slot] + 4 * i
def pz_reg(slot, i):
    return ar((0, 64)[slot] + 4 * i, 4) if i < 8 else vr((32, 48)[slot] + 4 * (i - 8), 4)
def pz_acc(t): return ar(128 + 4 * t, 4) if t < 32 else vr(16 + 4 * (t - 32), 4)
def pz_loads(slot, L):
    f = K2F[OPT.get('p2f', 2)]
    w = [f"buffer_load_dwordx4 {pz_reg(slot, i)}, v{VPW + i//3}, s[{SW2}:{SW2+3}], s{sW2} offen offset:{1024*(i%3)}{f}" for i in range(6)]
    o = [f"buffer_load_dwordx4 {pz_reg(slot, 6+i)}, v{VPO + i//3}, s[{SO2}:{SO2+3}], s{sO2} offen offset:{1024*(i%3)}{f}" for i in range(6)]
    return w, o, p2_adv(L % 4)
VPW = 2; VPO = 8
def p2_w(slot): return [f"buffer_load_dwordx4 {ar(p2_reg(slot, i),4)}, v{VPW + i//3}, s[{SW2}:{SW2+3}], s{sW2} offen offset:{1024*(i%3)}{K2F[OPT.get('p2wf', OPT.get('p2f', 2))]} ; tag=P{slot}" for i in range(6)]
def p2_o(slot): return [f"buffer_load_dwordx4 {ar(p2_reg(slot, 6+i),4)}, v{VPO + i//3}, s[{SO2}:{SO2+3}], s{sO2} offen offset:{1024*(i%3)}{K2F[OPT.get('p2f', 2)]} ; tag=P{slot}" for i in range(6)]
def p2_adv(slot):
    m = 5 if slot == 3 else 1
    out = [f"s_add_u32 s{sO2}, s{sO2}, {m*122880}", f"s_add_u32 s{sW2}, s{sW2}, {m*36864}"]
    if slot == 3 and OPT.get('krot'):
        out += ["s_add_u32 s93, s93, 1", "s_and_b32 s93, s93, 3", "s_cselect_b32 s94, 0, 32", "s_mul_i32 s95, s94, 122880",
                f"s_sub_u32 s{sO2}, s{sO2}, s95", "s_mul_i32 s95, s94, 36864", f"s_sub_u32 s{sW2}, s{sW2}, s95"]
    return out
def p2_init():
    if OPT.get('s2t'): return f"s_mul_i32 s{sO2}, s92, {32*122880}\ns_mul_i32 s{sW2}, s92, {32*36864}"
    if not OPT.get('krot'): return f"s_mul_i32 s{sO2}, s{sWAVE}, {32*122880}\ns_mul_i32 s{sW2}, s{sWAVE}, {32*36864}"
    return f"s_lshl_b32 s93, s{sWAVE}, 2\ns_add_u32 s93, s93, s92\ns_mul_i32 s{sO2}, s93, {8*122880}\ns_mul_i32 s{sW2}, s93, {8*36864}\ns_mov_b32 s93, s92"

def vote_write():
    return [f"v_mov_b32 v4, s{sFLAG}", f"s_lshl_b32 s{sT}, s{sWAVE}, 2", f"s_add_u32 s{sT}, s{sT}, {131072+7168}",
            f"v_mov_b32 v5, s{sT}", "ds_write_b32 v5, v4"]

P2ACC = 112
def p2_acc(q, n): return P2ACC + 4 * (6 * q + n)
def p2_step(b, slot, first, prefetch, wait, order=None, extra=None):
    b(wait)
    order = order or [(q, n) for q in range(6) for n in range(6)]
    slots = []; gaps = [[] for _ in range(36)]
    for q, n in order:
        a_ = vr(p2_acc(q, n), 4)
        slots.append(f"{MF} {a_}, {ar(p2_reg(slot, n),4)}, {ar(p2_reg(slot, 6+q),4)}, {'0' if first else a_}")
    if prefetch:
        o_, w_ = p2_o(slot), p2_w(slot)
        for q in range(6): gaps[6 * q + 5].append(o_[q])
        for n in range(6): gaps[30 + n].append(w_[n])
        gaps[35] += p2_adv(slot)
    for g, x in (extra or []): gaps[g].append(x)
    emit_slots(b, slots, gaps)

def phase2(b):
    D = 4
    acc = p2_acc
    def step(slot, first, prefetch, N, order=None, extra=None): p2_step(b, slot, first, prefetch, f"s_waitcnt vmcnt({N})", order, extra)
    b(f"""L_vote:
    s_cmp_eq_u32 s{sLATE}, 2
    s_cbranch_scc1 L_go
    v_mov_b32 v5, {131072+7168}
    s_barrier
    ds_read_b128 v[16:19], v5
    s_waitcnt lgkmcnt(0)
    v_or_b32 v16, v16, v17
    v_or3_b32 v16, v16, v18, v19
    v_readfirstlane_b32 s{sT}, v16
    s_cmp_lg_u32 s{sSAFE}, 0
    s_cselect_b32 s{sT}, 0, s{sT}
    s_cmp_lg_u32 s{sT}, 0
    s_cbranch_scc1 L_redo
    s_cmp_eq_u32 s{sWAVE}, 3
    s_cbranch_scc0 L_nosig2
    s_mov_b64 exec, 1
    buffer_atomic_add v{VONE}, off, s[{SCN}:{SCN+3}], s{sCO} sc1
    s_mov_b64 exec, -1
    L_nosig2:""")
    stamp(b)
    b(f"""s_cmp_eq_u32 s{sIDLE}, 1
    s_cbranch_scc1 L_fini
    s_cmp_eq_u32 s{sLATE}, 1
    s_cbranch_scc1 L_lateld
    L_go:
    s_xor_b32 s70, s{sWAVE}, 1
    s_mul_i32 s70, s70, 27648
    v_add_u32 v16, s70, v{VLN}
    s_xor_b32 s70, s{sWAVE}, 2
    s_mul_i32 s70, s70, 27648
    s_add_u32 s70, s70, 9216
    v_add_u32 v17, s70, v{VLN}
    s_xor_b32 s70, s{sWAVE}, 3
    s_mul_i32 s70, s70, 27648
    s_add_u32 s70, s70, 18432
    v_add_u32 v18, s70, v{VLN}
    s_mul_i32 s70, s{sWAVE}, 27648
    v_add_u32 v19, s70, v{VLN}
    v_and_b32 v20, 15, v0
    v_mul_u32_u24 v20, 96, v20
    v_bfe_u32 v21, v0, 4, 2
    v_lshl_add_u32 v20, v21, 3, v20
    v_add_u32 v20, s70, v20            ; bf16 staging write address: row*96 + g*8
    v_and_b32 v21, 63, v0
    s_mov_b32 s71, 0x2aab""")
    for r in range(5):
        b(f"""v_add_u32 v22, {64*r}, v21
        v_mul_u32_u24 v23, s71, v22
        v_lshrrev_b32 v23, 16, v23
        v_mul_u32_u24 v{42+r}, {2304 - 96}, v23
        v_lshl_add_u32 v{42+r}, v22, 4, v{42+r}""")
    b(f"""v_cmp_gt_u32 vcc, 32, v21
    v_mov_b32 v22, 0x7f000000
    v_cndmask_b32 v46, v22, v46, vcc
    s_mov_b32 s88, s{sOUT}
    s_mov_b32 s89, s{sOUT+1}
    s_mov_b32 s90, {8*240*1152*2}
    s_mov_b32 s91, 0x20000
    s_mov_b32 s36, 0
    {f"s_cmp_eq_u32 s{sPZ}, 1" if OPT.get('pz') else ""}
    {"s_cbranch_scc1 L_chk2" if OPT.get('pz') else ""}
    .p2align 3
    L_k2:""")
    for s_ in range(D):
        ex = [(0, f"buffer_load_dword v6, v{VP2}, s[{SCN}:{SCN+3}], 0 offen sc1")] if s_ == 0 else None
        step(s_, False, True, 36, extra=ex)
    b("""s_add_u32 s36, s36, 1
    s_cmp_eq_u32 s36, 2
    s_cbranch_scc1 L_chk
    L_chkd:
    s_cmp_lt_u32 s36, 6
    s_cbranch_scc1 L_k2""")
    b("L_tail:")
    for s_ in range(D - 1): step(s_, False, False, 12 * (D - 1 - s_))
    stamp(b)
    quad = lambda q, n: (q // 3) * 2 + (n // 3)
    oth = [(q, n) for d in (1, 2, 3) for q in range(6) for n in range(6) if quad(q, n) == d]
    mine = [(q, n) for q in range(3) for n in range(3)]
    wr = [(min(i_ + 5, 35), f"ds_write_b128 v{15 + quad(q, n)}, {vr(acc(q, n),4)} offset:{((q % 3) * 3 + n % 3) * 1024}") for i_, (q, n) in enumerate(oth)]
    step(D - 1, False, False, 0, order=oth + mine, extra=wr)
    if OPT.get('rstamps'): stamp(b)
    b("s_waitcnt lgkmcnt(0)\ns_barrier")
    if OPT.get('rstamps'): stamp(b)
    for t in range(9):
        for src in range(3):
            b(f"ds_read_b128 {vr(acc(*oth[3*t+src]),4)}, v19 offset:{src * 9216 + t * 1024}")
    for t, (q, n) in enumerate(mine):
        r0, r1, r2, m = acc(*oth[3*t]), acc(*oth[3*t+1]), acc(*oth[3*t+2]), acc(q, n)
        b(f"s_waitcnt lgkmcnt({min(15, 3 * (8 - t))})")
        for x_, y_ in ((r0, r1), (m, r2), (m, r0)):
            for r in (0, 2): b(f"v_pk_add_f32 v[{x_+r}:{x_+r+1}], v[{x_+r}:{x_+r+1}], v[{y_+r}:{y_+r+1}]")
        b(f"v_cvt_pk_bf16_f32 v{24+2*t}, v{m}, v{m+1}\nv_cvt_pk_bf16_f32 v{25+2*t}, v{m+2}, v{m+3}")
    for t, (q, n) in enumerate(mine):
        b(f"ds_write_b64 v20, v[{24+2*t}:{25+2*t}] offset:{q * 1536 + n * 32}")
    b("s_waitcnt lgkmcnt(0)")
    for r in range(5): b(f"ds_read_b128 {vr(48+4*r,4)}, v19 offset:{1024*r}")
    for r in range(5):
        b(f"s_waitcnt lgkmcnt({4-r})")
        b(f"buffer_store_dwordx4 {vr(48+4*r,4)}, v{42+r}, s[88:91], s{sOUTO} offen{K2F[OPT.get('outf', 0)]}")
    if OPT.get('rstamps'): stamp(b)
    b("L_fini:")
    if OPT.get('fixspan'):
        b(f"""s_waitcnt vmcnt(0)
        L_fix:
        s_memrealtime s[74:75]
        s_waitcnt lgkmcnt(0)
        s_sub_u32 s74, s74, s72
        s_cmp_lt_u32 s74, {OPT['fixspan'] * 100}
        s_cbranch_scc1 L_fix""")
    stamp_dump(b, 0, sWAVE)
    b("s_endpgm")
    if OPT.get('pz'):
        b("L_pz:")
        for j in range(10):
            sl = j % 2
            b(f"s_waitcnt vmcnt({12 if j < 9 else 0})")
            slots = []; gaps = [[] for _ in range(36)]
            for q in range(6):
                for n in range(6):
                    a_ = pz_acc(6 * q + n)
                    slots.append(f"{MF} {a_}, {pz_reg(sl, n)}, {pz_reg(sl, 6+q)}, {'0' if j == 0 else a_}")
            if j < 8:
                w_, o_, ad = pz_loads(sl, j + 2)
                for q in range(6): gaps[6 * q + 5].append(o_[q])
                for n in range(6): gaps[30 + n].append(w_[n])
                gaps[35] += ad
            emit_slots(b, slots, gaps)
        b(f"s_add_u32 s{sT}, s{sXB}, 131072\nv_add_u32 v5, s{sT}, v{VLN}\nv_mov_b32 v{VCW}, v{VTH}")
        for i_ in range(4): b(f"ds_write_b128 v5, {vr(16+4*i_,4)} offset:{1024*i_}")
        b(f"s_cmp_eq_u32 s{sWAVE}, 3\ns_cbranch_scc1 L_pzr3\ns_branch L_pzr4")
        b(f"""L_chk2:
        s_mov_b32 s36, 2
        buffer_load_dword v6, v{VP2}, s[{SCN}:{SCN+3}], 0 offen sc1
        s_waitcnt vmcnt(0)""")
    b(f"""L_chk:
    s_waitcnt vmcnt(48)
    s_{"add" if OPT.get('krot') else "sub"}_u32 s{sO2}, s{sO2}, {(4 if OPT.get('krot') else 28)*122880}
    s_{"add" if OPT.get('krot') else "sub"}_u32 s{sW2}, s{sW2}, {(4 if OPT.get('krot') else 28)*36864}
    v_cmp_gt_u32 vcc, 4, v6
    s_cbranch_vccz L_chkd
    s_mov_b32 s37, 0
    L_poll:
    s_sleep 4
    buffer_load_dword v6, v{VP2}, s[{SCN}:{SCN+3}], 0 offen sc1
    s_add_u32 s37, s37, 1
    s_waitcnt vmcnt(0)
    v_cmp_gt_u32 vcc, 4, v6
    s_cbranch_vccz L_chkd
    s_cmp_lt_u32 s37, 0x20000
    s_cbranch_scc1 L_poll
    s_branch L_chkd
    L_lateld:
    s_mov_b32 s{SO2+2}, s100
    s_mov_b32 s{SW2+2}, s101
    {p2_init()}
    s_mov_b32 s{sLATE}, 2
    s_mov_b32 s37, 0
    L_esp:
    s_sleep 4
    buffer_load_dword v{VCW}, v{VPE}, s[{SCN}:{SCN+3}], 0 offen sc1
    s_add_u32 s37, s37, 1
    s_waitcnt vmcnt(0)
    v_cmp_gt_u32 vcc, v{VTH}, v{VCW}
    s_cbranch_vccz L_espd
    s_cmp_lt_u32 s37, 0x20000
    s_cbranch_scc1 L_esp
    L_espd:""")
    for s_ in range(4): b.ext(p2_w(s_) + p2_o(s_) + p2_adv(s_))
    b(f"""s_waitcnt vmcnt(0)
    s_cmp_eq_u32 s{sWAVE}, 3
    s_cbranch_scc1 L_p2s3
    s_branch L_p2s4
    L_redo:
    s_mov_b32 s{sSAFE}, 1
    s_waitcnt vmcnt(0)
    s_barrier""")
    prologue_a(b)
    b.ext(x_dma(0, 4)); b.ext(w_dma(0, 4))
    b("s_branch L_tramp")

def kernel1():
    b = B()
    b("attn_kernel:")
    b("s_cmp_lt_u32 s2, 256\ns_cbranch_scc1 L_work\ns_endpgm\nL_work:")
    if OPT['stamps']: b("s_mov_b32 s96, 0\nv_mov_b32 v14, 0\nv_mov_b32 v15, 0")
    stamp(b)
    if OPT.get('fixspan') and not OPT.get('fixat'): b("s_memrealtime s[72:73]\ns_waitcnt lgkmcnt(0)")
    b("s_load_dwordx16 s[48:63], s[0:1], 0\ns_load_dwordx4 s[64:67], s[0:1], 64\ns_load_dwordx2 s[100:101], s[0:1], 96\ns_load_dwordx4 s[76:79], s[0:1], 80")
    b(f"""s_mov_b32 s97, s2
    s_and_b32 s3, s2, 7
    s_lshr_b32 s2, s2, 3""")
    warm_code(b)
    b(f"""v_lshrrev_b32 v1, 6, v0
    s_bfe_u32 s68, s3, {0x10001 if OPT.get('map') else 0x10000}
    s_lshl_b32 s68, s68, 2
    s_and_b32 s69, s2, 3
    s_add_u32 s68, s68, s69        ; b
    v_readfirstlane_b32 s{sWAVE}, v1
    s_bfe_u32 s69, s3, {0x10000 if OPT.get('map') else 0x10001}
    s_lshl_b32 s69, s69, 3
    s_lshr_b32 s70, s2, 2
    s_add_u32 s69, s69, s70        ; hp
    s_lshr_b32 s3, s3, 2           ; blk
    s_lshl_b32 s{sWB}, s{sWAVE}, 12
    s_lshl_b32 s{sXB}, s{sWAVE}, 13
    s_mov_b32 s{sC}, {CSCALE}
    s_mov_b32 s{sC+1}, {CSCALE}
    s_mov_b32 s{sSAFE}, 0
    s_mov_b32 s{sFLAG}, 0""")
    prologue_a(b)
    b(f"""s_cmp_eq_u32 s3, 0
    s_waitcnt lgkmcnt(0)
    s_cselect_b64 s[48:49], s[48:49], s[58:59]
    s_cselect_b64 s[50:51], s[50:51], s[60:61]
    s_cselect_b64 s[52:53], s[52:53], s[62:63]
    s_cselect_b64 s[54:55], s[54:55], s[64:65]
    s_cselect_b64 s[56:57], s[56:57], s[66:67]""")
    if OPT.get('sstamps'): stamp(b)
    b(f"""s_mul_i32 s71, s68, 276480
    s_add_u32 s{SX}, s48, s71
    s_addc_u32 s{SX+1}, s49, 0
    s_mov_b32 s{SX+2}, 276480
    s_mov_b32 s{SX+3}, 0x20000
    s_lshl_b32 s71, s69, 9
    s_add_u32 s{SW}, s54, s71
    s_addc_u32 s{SW+1}, s55, 0
    s_sub_u32 s{SW+2}, 4718592, s71
    s_mov_b32 s{SW+3}, 0x20000""")
    b("L_srdok:")
    prologue_b(b)
    b(f"""s_cmp_eq_u32 s{sWAVE}, 3
    s_cbranch_scc1 L_begin3""")
    wave_code(b, 4, "4")
    b("L_tramp:\ns_branch L_late")
    b(".p2align 6")
    wave_code(b, 3, "3")
    b("L_phase2:")
    phase2(b)
    b("L_end1:\ns_endpgm\nL_codeend:")
    return b.L

def resolve_waits(L):
    out = []
    for i, x in enumerate(L):
        if x.startswith("WAITL"):
            tag = x.split()[1]
            n, T = tag[1:].split('.'); T = int(T)
            dst = set(range(AW + 8 * (T % 4), AW + 8 * (T % 4) + 8))
            cnt = 0; found = False
            for y in reversed(out):
                if y.startswith(("s_waitcnt", "WAITV")) and "lgkmcnt(0)" in y:
                    found = True; cnt = None; break
                if y.startswith("ds_"):
                    I = Ins(y)
                    if any(k == 'a' and r in dst for k, r in I.wr) or (T == 0 and 'need=X' in y):
                        found = True; break
                    cnt += 1
            assert found, x
            if cnt is not None:
                cnt = min(cnt, 15)
                out.append(f"s_waitcnt lgkmcnt({cnt})")
        else: out.append(x)
    return out

def expand_trace(L):
    def shift(line, name, it, step):
        if it == 0: return line
        def rep(m):
            k, n = m.group(1), int(m.group(2))
            if name == 'qp':
                if k == 'W': return f"W{n + step*it}"
                if k == 'X': return f"X{n + step*it//2}"
                return m.group(0)
            if k == 'KV': return f"KV{n + step*it}"
            return m.group(0)
        if ';' not in line: return line
        a, c = line.split(';', 1)
        return a + ';' + re.sub(r'\b(KV|W|X)(\d+)\b', rep, c)
    bodies = {}
    def go(i, stop):
        res = []
        while i < len(L):
            x = L[i]
            if x.startswith("LOOPBEGIN"):
                _, name, cnt, step = x.split(); cnt = int(cnt); step = int(step)
                body, j = go(i + 1, name)
                bodies[name] = (body, cnt, step)
                for it in range(cnt):
                    for y in body:
                        if y == f"LOOPEXIT {name}":
                            if it == cnt - 1: break
                            continue
                        res.append(shift(y, name, it, step))
                i = j + 1; continue
            if x.startswith("REPLAY"):
                _, name, off, cnt = x.split(); cnt = int(cnt); body, _, step = bodies[name]
                for it in range(cnt):
                    for y in body: res.append(shift(shift(y, name, it, step), name, 1, int(off)))
                i += 1; continue
            if x.startswith("LOOPEND") and x.split()[1] == stop: return res, i
            res.append(x); i += 1
        return res, i
    return go(0, None)[0]

STOPS = ("L_maxpass", "L_hspin", "L_espin")
def traces(L):
    tr = expand_trace(L)
    main = []
    for x in tr:
        if x.startswith(STOPS): break
        main.append(x)
    alt = None
    if "ALTFROM p" in main:
        i = tr.index("ALTBEGIN p"); j = tr.index("ALTEND p")
        alt = [x for x in main[:main.index("ALTFROM p")] if 'condp' not in x] + tr[i + 1:j]
    drop = lambda t: [x for x in t if not x.startswith("ALT")]
    return drop(main), drop([x for x in main if 'condp' not in x]), alt

def resolve_vm(L):
    idx = [f"{x} ;#{i}" if x.startswith("WAITV") else x for i, x in enumerate(L)]
    best = {}
    main, lean, alt = traces(idx)
    for which, tr in (("main", main), ("lean", lean), ("alt", alt or [])):
        q = []
        for x in tr:
            c = x.split(';', 1)[1] if ';' in x else ''
            if x.startswith(("buffer_", "global_")):
                if 'cond' in c and 'condp' not in c: continue
                m = re.search(r'tag=(\w+)', c); q.append(m.group(1) if m else 'other')
            elif x.startswith("WAITV"):
                tags = set(re.search(r'cover=([\w,]*)', c).group(1).split(','))
                if which == "lean" and any(t[:1] == 'P' or t == 'OS' for t in tags): continue
                i = int(x.rsplit('#', 1)[1])
                n = 0
                for t in reversed(q):
                    if t in tags: break
                    n += 1
                else: n = 63
                m = re.search(r'cap=(\d+)', c)
                best[i] = min(best.get(i, 63), n, int(m.group(1)) if m else 63)
    out = []
    for i, x in enumerate(L):
        if x.startswith("WAITV"):
            a, c = x.split(';', 1) if ';' in x else (x, '')
            out.append(f"s_waitcnt vmcnt({best[i]}) {a[5:].strip()} ;{c}")
        else: out.append(x)
    return out

def check_protocol(L, label):
    q = []; done = set(); issued = {}; pub = set(); errs = 0
    for x in L:
        c = x.split(';', 1)[1] if ';' in x else ''
        if x.startswith("buffer_") or x.startswith("global_"):
            if 'cond' in c and 'condp' not in c: continue
            m = re.search(r'tag=(\w+)', c); q.append(m.group(1) if m else 'other')
        elif x.startswith("s_waitcnt"):
            m = re.search(r'vmcnt\((\d+)\)', x)
            if m:
                n = int(m.group(1))
                while len(q) > n: done.add(q.pop(0))
            m = re.search(r'needtag=(\w+)', c)
            if m and m.group(1) in q: print(label, "ERR needtag", x); errs += 1
        elif x.startswith("s_barrier") or 'SYNC' in c:
            m = re.search(r'pub=([\w,]*)', c)
            if m:
                for t in m.group(1).split(','):
                    if not t: continue
                    if t in q or (t not in done and not (label[:2] == 'w3' and t[0] in 'XW')): print(label, "ERR publish not landed", t, x); errs += 1
                    pub.add(t)
        elif x.startswith("ds_read"):
            m = re.search(r'need=(\w+)', c)
            if m and m.group(1) not in pub : print(label, "ERR read unpublished", x); errs += 1
        assert len(q) <= 63, ("vmcnt overflow", x)
    return errs

def burn(L):
    out = []; on = False; c = 0; k = 0
    for x in L:
        if x == 'BURNON': on = True; c = 0; continue
        if x == 'BURNOFF': on = False; continue
        out.append(x)
        if on and OPT.get('burn'):
            if x.startswith('v_mfma'): c = 0
            elif x.startswith('v_'):
                c += 1
                if c >= OPT['burn']:
                    c = 0; k += 1
                    out.append(f"{MF} v[4:7], a[{32+4*(k%8)}:{35+4*(k%8)}], a[{96+4*(k%7)}:{99+4*(k%7)}], v[4:7]")
    return out

def check_lgkm(L, label):
    dq = []; vq = []; errs = 0; cache = {}
    for x in L:
        t = x.split(';')[0].strip()
        I = cache.get(t)
        if I is None: I = cache[t] = Ins(t)
        if I.kind == 'label': continue
        if I.op == 's_waitcnt':
            m = re.search(r'lgkmcnt\((\d+)\)', t)
            if m:
                while len(dq) > int(m.group(1)): dq.pop(0)
            m = re.search(r'vmcnt\((\d+)\)', t)
            if m:
                while len(vq) > int(m.group(1)): vq.pop(0)
            continue
        use = I.rd | I.srcc | I.wr
        for w in dq + vq:
            if w & use: print(label, "ERR uncovered", x); errs += 1; break
        if I.kind in ('dsr', 'dsw'): dq.append(I.wr)
        if I.kind in ('vload', 'vstore', 'dma') and not ('cond' in x and 'condp' not in x): vq.append(I.wr)
    return errs

def finish(L):
    L = burn(L)
    L = resolve_waits(L)
    return L

def strip_markers(L):
    return [x for x in L if not x.startswith(("LOOPBEGIN", "LOOPEND", "LOOPEXIT", "REPLAY", "ALT"))]

DESC = """.section .rodata,"a"
.p2align 6
.amdhsa_kernel {name}
  .amdhsa_next_free_vgpr {vgpr}
  .amdhsa_next_free_sgpr 102
  .amdhsa_accum_offset 256
  .amdhsa_group_segment_fixed_size 0
  .amdhsa_kernarg_size 104
  .amdhsa_user_sgpr_count 2
  .amdhsa_user_sgpr_kernarg_segment_ptr 1
  .amdhsa_system_sgpr_workgroup_id_x 1
  .amdhsa_float_denorm_mode_32 3
.end_amdhsa_kernel
"""

def build(**kw):
    OPT.update(kw)
    k1 = finish(kernel1())
    i4 = k1.index("L_begin4:"); i3 = k1.index("L_begin3:"); iv = k1.index("L_phase2:")
    ip = k1.index("L_srdok:"); pre = k1[ip:i4]
    k1 = k1[:i4] + resolve_vm(pre + k1[i4:i3])[len(pre):] + resolve_vm(pre + k1[i3:iv])[len(pre):] + k1[iv:]
    e = 0
    for lab, part in (("w4", pre + k1[i4:i3]), ("w3", pre + k1[i3:])):
        main, lean, alt = traces(part)
        e += check_protocol(main, lab) + check_lgkm(main, lab)
        if alt: e += check_protocol(alt, lab + "alt") + check_lgkm(alt, lab + "alt")
    assert e == 0 or OPT.get('nocheck')
    k1 = strip_markers(k1)
    k1, n1, p1 = fix_hazards(k1)
    for p in p1: print("BRANCH HAZARD", p)
    assert not p1
    hdr = open("ref.txt").read().split("; Override")[0]
    KN = NAME + "_kernel"
    k1 = [x.replace("attn_kernel", KN) for x in k1]
    out = hdr
    out += """; Written with my own schedule generator (no compiler output).  One launch, 256 workgroups (one per CU), 4 waves each:
;  1. q-projection of two heads (x and Wq staged by LDS-DMA, 16x16x32 bf16 MFMA), scale log2(e)/sqrt(128) applied in fp32;
;  2. attention for the two heads, K/V streamed through an 8-tile LDS ring.  The softmax offset is the row maximum over the first
;     the workgroup starts over and uses the true row maximum over all 1024 keys (L_maxpass*).
;     hand it to the output projection, which the same workgroups run as 96x96 tiles (even heads first, odd heads after their hand-off).
; Waves 0-2 own four 16-query tiles (labels *4), wave 3 owns three (labels *3).
"""
    out += ("; @launch kernel=%s grid=(256,1,1) block=(256,1,1) lds=163840\n" % KN) if OPT.get('list') else "; @launch grid=(256,1,1) block=(256,1,1) lds=163840\n"
    out += '.amdgcn_target "amdgcn-amd-amdhsa--gfx950"\n.text\n'
    out += ".globl %s\n.p2align 8\n.type %s,@function\n" % (KN, KN) + "\n".join(k1) + "\n"
    out += DESC.format(name=KN, vgpr=512)
    return out, n1

if __name__ == "__main__":
    kw = {}
    for a in sys.argv[2:]:
        k, v = a.split('='); kw[k] = int(v)
    s, info = build(**kw)
    open(sys.argv[1], "w").write(s)
    print("nops inserted", info, "bytes", len(s))
```

```python
import sys, re
from asmlib import fix_hazards, Ins

NAME = "concat_heads__mha_block_cached__mha_block_cached__near_ridge"
MF = "v_mfma_f32_16x16x32_bf16"
CSCALE = 0x3e0293ee
LTHR = 0x4e800000

O_BLK = 128 * 122880
WOT_OFF = 2 * O_BLK
WOT_BLK = 128 * 36864
CNT_OFF = WOT_OFF + 2 * WOT_BLK

class B:
    def __init__(self): self.L = []
    def __call__(self, s):
        for x in s.split("\n"):
            x = x.strip()
            if x: self.L.append(x)
    def ext(self, l): self.L.extend(l)

def vr(b, n): return f"v[{b}:{b+n-1}]"
def ar(b, n): return f"a[{b}:{b+n-1}]"

def emit_slots(b, slots, gaps):
    for i, s in enumerate(slots):
        if s: b(s)
        nv = [x for x in gaps[i] if not x.startswith('v_')]
        v = [x for x in gaps[i] if x.startswith('v_')]
        for x in nv + v: b(x)

S_ = 16; P_ = 48; CI = 64; LS = 80
KA = 84
VA = 88
VWA = 105
DK0 = 96; DK1 = 97; DV0 = 98; DV1 = 99
VO = 100
VWO = 101
VWX = 102
VLN = 103
VPF = 104
VPD = 105
T0 = 108
O_ = 128
XA = 16; WA = 28; DX = 20; DW = 24
WSLOT = [49152, 114688, 131072, 147456]; sKB = 69
def AQ(q): return 32 + 64 * (q // 2) + 16 * (q % 2)
def AQ2(q): return 128 + 16 * q
AK = 0; AV = 64; ASP = 64
AX = 0; AW = 64
SX = 4; SW = 8; SK = 12; SV = 16; SO = 20; SWO = 24; SWT = 28
sWAVE = 32; sWB = 33; sKV = 34; sCNT = 35; sHEAD = 36; sSAFE = 37; sFLAG = 38
sXO = 39; sXO2 = 40; sWOFF = 41; sXB = 42; sOO = 43; sC = 44
sT = 46
sH0 = 68; sWOS = 64; sWTS = 65; sSTAMP = 72; SPF = 76; sPF = 68; sWXS = 67; sROT = 80; sLIN = 81
SCN = 48; SDB = 52; SO2 = 56; sCO = 60; sCW = 61; SIN = 84; SIF = 88; sOUT = 76; VHS = 106; VCW = 107; VONE = 104
SW2 = 80; sO2 = 98; sW2 = 99; sOUTO = 66; sOP = 41; VPE = 11; VTH = 12; VP2 = 13; VWE = 10; AST = 192; sSIG = 78; sLATE = 79; sIDLE = 67; sRT = 68; sLN = 71; sPW = 40; sPZ = 64; sST = 65; VPA = 102; DEC = 131072 + 7168 + 64; sFV = 39; VFA = 1; VFB = 101; FQ = 80; FLAGS = 131072 + 7168 + 32

OPT = dict(nt_kv=1, nt_w=0, nt_x=0, nt_wo=0, stamps=0, warm=1, of=2, of0=2, e67=1, bal=0, pair=1, pre8=1, wts=1, sw2=2)

K2F = ['', ' nt', ' sc1', ' sc0 sc1', ' sc0', ' sc1 nt', ' sc0 sc1 nt']
def fl(k): return ["", " nt", " sc1 nt", " sc0 sc1 nt", " sc0 nt"][OPT[k]]

def dma(voff, srd, soff, off, flag, tag):
    return f"buffer_load_dwordx4 v{voff}, s[{srd}:{srd+3}], {soff} offen offset:{off}{flag} lds ; tag={tag}"

def kv_adv():
    if not OPT.get('rot'): return [f"s_add_u32 s{sKV}, s{sKV}, 8192"]
    return [f"s_add_u32 s{sLIN}, s{sLIN}, 8192", f"s_add_u32 s{sKV}, s{sLIN}, s{sROT}",
            f"s_and_b32 s{sKV}, s{sKV}, 0x3ffff", f"s_and_b32 s{sT+1}, s{sLIN}, 0xfffc0000", f"s_or_b32 s{sKV}, s{sKV}, s{sT+1}"]

def adv2(tmp):
    if not OPT.get('rot'): return [f"s_add_u32 s{sKV}, s{sKV}, 16384"]
    return [f"s_add_u32 s{sLN}, s{sLN}, 16384", f"s_add_u32 s{sKV}, s{sLN}, s{sRT}", f"s_and_b32 s{sKV}, s{sKV}, 0x3ffff",
            f"s_and_b32 s{tmp}, s{sLN}, 0x40000", f"s_or_b32 s{sKV}, s{sKV}, s{tmp}"]

def k_dma(tile, so=None):
    so = so or f"s{sKV}"
    return [f"s_add_u32 m0, s{sKB}, {(tile % 8) * 8192}",
            dma(DK0, SK, so, 0, fl('nt_kv'), f"KV{tile}"), dma(DK1, SK, so, 1024, fl('nt_kv'), f"KV{tile}")]
def v_dma(tile, so=None):
    so = so or f"s{sKV}"
    return [f"s_add_u32 m0, s{sKB}, {65536 + (tile % 8) * 8192}",
            dma(DV0, SV, so, 0, fl('nt_kv'), f"KV{tile}"), dma(DV1, SV, so, 1024, fl('nt_kv'), f"KV{tile}")]

def x_dma(m, nq):
    slot = 16384 if m % 2 else 81920
    out = []
    out.append(f"s_add_u32 m0, s{sXB}, {slot}")
    for j in range(4): out.append(dma(DX + j, SX, f"s{sXO}", 1024 * j, fl('nt_x'), f"X{m}"))
    out.append(f"s_add_u32 m0, s{sXB}, {slot + 4096}")
    for j in range(4 if nq == 4 else 2): out.append(dma(DX + j, SX, f"s{sXO2}", 1024 * j, fl('nt_x'), f"X{m}"))
    out.append(f"s_add_u32 s{sXO}, s{sXO}, 128")
    if OPT.get('qrot'):
        out += [f"s_cmp_eq_u32 s{sXO}, 1152", f"s_cselect_b32 s{sXO}, 0, s{sXO}", f"s_add_u32 s{sXO2}, s{sXO}, 36864"]
    else: out.append(f"s_add_u32 s{sXO2}, s{sXO2}, 128")
    return out

def w_dma(n, nq):
    out = [f"s_add_u32 m0, s{sWB}, {WSLOT[n % 4]}"]
    for j in range(4): out.append(dma(DW + j, SW, f"s{sWOFF}", 1024 * j, fl('nt_w'), f"W{n}"))
    if n % 2 == 0: out.append(f"s_add_u32 s{sWOFF}, s{sWOFF}, 256")
    else:
        out.append(f"s_add_u32 s{sWOFF}, s{sWOFF}, {524288 - 256}")
        if OPT.get('qrot'): out += [f"s_cmp_eq_u32 s{sWOFF}, {9*524288}", f"s_cselect_b32 s{sWOFF}, 0, s{sWOFF}"]
    return out

def w_reads(n, T):
    sp_, a = T // 2, T % 2
    hl, sp = sp_ // 2, sp_ % 2
    out = []
    for s in range(2):
        for a2 in range(2):
            d = AW + 8 * (T % 4) + 4 * s + 2 * a2
            off = max(n % 4 - 1, 0) * 16384 + hl * 8192 + (32 * s + 4 * a2) * 128 + (0 if OPT.get('wnc') else 8 * a)
            out.append(f"ds_read_b64_tr_b16 {ar(d,2)}, v{WA + sp + (2 if n % 4 else 0)} offset:{off} ; need=W{n}")
    return out

def x_reads(m, nq):
    out = []
    for q in range(nq):
        for s in range(2):
            d = AX + 32 * (m % 2) + 8 * q + 4 * s
            out.append(f"ds_read_b128 {ar(d,4)}, v{XA + s + (0 if m % 2 else 2)} offset:{q * 2048} ; need=X{m}")
    return out

def qacc(hd, q, T):
    r = 128 + 32 * q + 4 * T
    return vr(r, 4) if hd == 0 else ar(r, 4)

def pf_load():
    return f"buffer_load_dword v{VPD}, v{VPF}, s[{SPF}:{SPF+3}], s{sPF} offen nt ; tag=PF"

def wo_dma():
    out = []
    for r in range(2):
        out.append(f"s_add_u32 m0, s{sWOS}, {4096*r}")
        for j in range(4):
            out += [f"PRE s_mov_b32 s{sT}, {8192*j + 512*r}", dma(VWO, SWO, f"s{sT}", 1024 * j, fl('nt_wo'), "WO")]
    out += [f"s_mov_b32 m0, s{sWTS}", dma(VWX, SWO, "0", 0, fl('nt_wo'), "WO")]
    return out
WOF = 32
def wo_reads():
    out = [f"ds_read_b64_tr_b16 {vr(WOF+16*r+4*tl+2*a,2)}, v{VWA} offset:{4096*r + 2048*a + 32*tl}" for r in range(2) for tl in range(4) for a in range(2)]
    return out + [f"ds_read_b64_tr_b16 {vr(WOF+32+2*a,2)}, v{VWE} offset:{512*a}" for a in range(2)]
def wo_stores():
    out = []
    for r in range(2):
        out.append(f"PRE s_add_u32 s{sT}, s{sWB}, {16384*r}")
        out += [f"buffer_store_dwordx4 {vr(WOF+16*r+4*tl,4)}, v{VLN}, s[{SWT}:{SWT+3}], s{sT} offen offset:{1024*tl} sc1 ; tag=WT" for tl in range(4)]
    out += [f"PRE s_lshl_b32 s{sT}, s{sWAVE}, 10", f"PRE s_add_u32 s{sT}, s{sT}, 32768",
            f"buffer_store_dwordx4 {vr(WOF+32,4)}, v{VLN}, s[{SWT}:{SWT+3}], s{sT} offen sc1 ; tag=WT"]
    return out

QSPINS = []; QF = 68; QFA = 72; QFB = 73; sFQ = 35; QFLAGS = 112640
def qproj_stage(b, n, nq, fill=None):
    hd, m = n % 2, n // 2
    nx = 8 if nq == 4 else 6
    slots = []; gaps = [[] for _ in range(64)]
    for T in range(8):
        for q in range(4):
            for s in range(2):
                if q >= nq: slots.append(None); continue
                acc = qacc(hd, q, T)
                c = "0" if (m == 0 and s == 0) else acc
                slots.append(f"{MF} {acc}, {ar(AW+8*(T%4)+4*s,4)}, {ar(AX+32*(m%2)+8*q+4*s,4)}, {c}")
    start = {3: 5, 4: 12, 5: 19, 6: 26, 7: 33}
    rd = w_reads(n, 2); gaps[0].append(rd[3])
    for T, g in start.items():
        for i, x in enumerate(w_reads(n, T)): gaps[g + i].append(x)
    FSQ = OPT.get('fsq') and n < 15
    if n < 17:
        for T, g in (((0, 53), (1, 57)) if FSQ else ((0, 45), (1, 53))):
            for i, x in enumerate(w_reads(n + 1, T)): gaps[g + i].append(x)
        for i, x in enumerate(w_reads(n + 1, 2)[:3]): gaps[61 + i].append(x)
    xr = []
    if n % 2 == 1 and m + 1 <= 8:
        xr = x_reads(m + 1, nq)
        for x, g in zip(xr, (9, 10, 16, 17, 23, 24, 30, 31) if not (n == 1 and OPT.get('x1late')) else (49, 50, 51, 52, 57, 58, 59, 60)): gaps[g].append(x)
    for T in range(1, 8): gaps[8 * T - 1].append(f"WAITL W{n}.{T}")
    if n < 17: gaps[63].append(f"WAITL W{n+1}.0")
    req = []
    if n + 1 <= 17: req.append(f"W{n+1}")
    if n % 2 == 0 and m + 1 <= 8 and not (n == 0 and OPT.get('x1late')): req.append(f"X{m+1}")
    if n == 1 and OPT.get('x1late'): req.append("X1")
    if n == 17: req += ["KV0", "KV1"]
    cov = list(req)
    if nq == 3 and n == 2:
        cov.append("INIT")
        gaps[55].append(f"buffer_store_dword v{VONE}, v{VLN}, s[{SIF}:{SIF+3}], 0 offen sc1 ; tag=FLAG")
    if nq == 3 and n == 12:
        gaps[45].append(f"buffer_load_dword v{VHS}, off, s[{SDB}:{SDB+3}], 0 ; tag=HS")
    if n == 17 and OPT.get('fsa'):
        gaps[36] += [f"s_mov_b32 s{sFV}, 0", f"v_mov_b32 v{VFB}, {FLAGS}", f"v_mov_b32 v{FQ}, 0"]
        gaps[37] += [f"v_lshl_add_u32 v{VFA}, s{sWAVE}, 2, v{VFB}"]
        gaps[39] += [f"ds_write_b32 v{VFA}, v{FQ}"]
    if FSQ:
        uid = f"q{n}_{nq}"
        gaps[42] += [f"s_add_u32 s{sFQ}, s{sFQ}, 1", f"v_mov_b32 v{QF}, s{sFQ}"]
        gaps[43] += ["WAITV lgkmcnt(0) ; cover=" + ",".join(cov), f"ds_write_b32 v{QFA}, v{QF}"]
        gaps[47].append(f"ds_read_b128 {vr(QF,4)}, v{QFB}")
        gaps[50] += ["s_waitcnt lgkmcnt(0)", f"v_min3_u32 v{QF}, v{QF}, v{QF+1}, v{QF+2}"]
        gaps[51].append(f"v_min_u32 v{QF}, v{QF}, v{QF+3}")
        gaps[52].append(f"v_cmp_gt_u32 vcc, s{sFQ}, v{QF}\ns_cbranch_vccnz L_fs{uid}\nL_fr{uid}: ; SYNC pub=" + ",".join(req))
        QSPINS.append(uid)
    else:
        gaps[43].append("WAITV lgkmcnt(0) ; cover=" + ",".join(cov))
        gaps[44].append("s_barrier ; pub=" + ",".join(req))
    def place(seq, first, step):
        g = first
        for x in seq:
            if x.startswith("buffer_"): gaps[g].append(x); g += step
            elif x.startswith(("s_add_u32 m0", "s_mov_b32 m0")): gaps[g - 1].append(x)
            elif x.startswith("PRE "): gaps[g - 1].append(x[4:])
            else: gaps[min(g - step + 1, 63)].append(x)
    if n == 0 and OPT.get('x2late'): place(w_dma(2, nq) + w_dma(3, nq), 2, 5)
    elif n == 1 and OPT.get('x2late'): place(x_dma(2, nq), 2, 4)
    elif n == 0: place(w_dma(2, nq) + w_dma(3, nq) + x_dma(2, nq), 1, 2)
    elif n % 2 == 0 and m + 2 <= 8: place(x_dma(m + 2, nq), 2, 5)
    def single(kind, i_):
        if kind == 'wo':
            if i_ == 8: return [f"s_mov_b32 m0, s{sWTS}", None, dma(VWX, SWO, "0", 0, fl('nt_wo'), "WO")]
            r, j_ = i_ // 4, i_ % 4
            return [f"s_add_u32 m0, s{sWOS}, {4096*r}", f"s_mov_b32 s{sT}, {8192*j_ + 512*r}", dma(VWO, SWO, f"s{sT}", 1024 * j_, fl('nt_wo'), "WO")]
        t, j_ = i_ // 4, i_ % 4
        d_ = (k_dma if j_ < 2 else v_dma)(t, f"s{sT}")
        return [d_[0], f"s_add_u32 s{sT}, s{sRT}, {8192*t}" if OPT.get('rot') else f"s_mov_b32 s{sT}, {8192*t}", d_[1 + j_ % 2]]
    if OPT.get('slowpos', 0):
        R0 = 9
        sched_ = {2: [('wo', 0), ('wo', 1), ('wo', 2)], 4: [('wo', 3), ('wo', 4), ('wo', 5)], 6: [('wo', 6), ('wo', 7), ('wo', 8)],
                  10: [('kv', i_) for i_ in range(4)], 12: [('kv', i_) for i_ in range(4, 8)]}
        for (kind, i_) in sched_.get(n, []):
            gaps[63] += [x for x in single(kind, i_) if x]
    else:
        W0 = 1; R0 = W0 + 7
        sched_ = {W0 + i_ // 2: [] for i_ in range(9)}
        for i_ in range(8 if OPT.get('fsq') else 9): sched_[W0 + i_ // 2].append(('wo', i_))
        if not OPT.get('late'):
            for i_ in range(8): sched_.setdefault(R0 + 2 + i_ // 2, []).append(('kv', i_))
        for (kind, i_), g in zip(sched_.get(n, []), (39, 42) if (n % 2 == 0 or OPT.get('stpos', 0) or (n == 1 and OPT.get('x2late'))) else (12, 32)):
            m0_, so_, ld_ = single(kind, i_)
            gaps[g - 1].append(m0_)
            if so_: gaps[g - 1].append(so_)
            gaps[g].append(ld_)
    if n in (OPT.get("rew", 13), OPT.get("rew2", 99)): gaps[41].append("global_load_dword v1, v[76:77], off")
    if n == 13: gaps[62] += [f"s_add_u32 s{sKV}, s{sRT}, 16384", f"s_mov_b32 s{sLN}, 49152"] if OPT.get('rot') else [f"s_mov_b32 s{sKV}, 16384"]
    if n in (R0, R0 + 1):
        rd = wo_reads()
        if OPT.get('fsq'): rd = rd[:16]
        if n == R0:
            gaps[44].append("WAITV ; cover=WO")
            for x, g in zip(rd[:8], [44, 45, 46, 48, 49, 51, 52, 52] if FSQ else [49, 50, 51, 52, 57, 58, 59, 60]): gaps[g].append(x)
        else:
            for x, g in zip(rd[8:], [1, 2, 3, 4, 11, 18, 25, 37, 38, 39]): gaps[g].append(x)
    for i_ in range(0 if OPT.get('wts') else 9):
        if OPT.get('slowpos', 0):
            if n != (10, 10, 12, 12, 14, 14, 14, 16, 16)[i_]: continue
            t_ = [f"s_add_u32 s{sT+1}, s{sWB}, {16384*(i_//4)}"] if i_ < 8 else [f"s_lshl_b32 s{sT+1}, s{sWAVE}, 10", f"s_add_u32 s{sT+1}, s{sT+1}, 32768"]
            gaps[62] += t_ + [f"buffer_store_dwordx4 {vr(WOF+4*i_,4)}, v{VLN}, s[{SWT}:{SWT+3}], s{sT+1} offen offset:{1024*(i_%4) if i_ < 8 else 0} sc1 ; tag=WT"]
            continue
        r, tl = i_ // 4, i_ % 4
        if OPT.get('stpos', 0):
            if n != (9, 9, 11, 11, 13, 13, 15, 15, 15)[i_]: continue
            g = (8, 10, 2, 4, 2, 4, 2, 4, 7)[i_]
        else:
            if n != min(R0 + 1 + i_, 17 - (1 if i_ < 8 else 0)) : continue
            g = 62 if not any('tag=WT' in x for x in gaps[62]) else 48
        if i_ < 8: gaps[g - 1].append(f"s_add_u32 s{sT+1}, s{sWB}, {16384*r}")
        else: gaps[g - 2].append(f"s_lshl_b32 s{sT+1}, s{sWAVE}, 10"); gaps[g - 1].append(f"s_add_u32 s{sT+1}, s{sT+1}, 32768")
        gaps[g].append(f"buffer_store_dwordx4 {vr(WOF+4*i_,4)}, v{VLN}, s[{SWT}:{SWT+3}], s{sT+1} offen offset:{1024*tl if i_ < 8 else 0}{K2F[OPT.get('wtf', 2)]} ; tag=WT")
    if n == 14 and OPT.get('late'):
        place([f"PRE s_mov_b32 s{sT}, 0"] + k_dma(0, f"s{sT}") + v_dma(0, f"s{sT}") + [f"PRE s_mov_b32 s{sT}, 8192"] + k_dma(1, f"s{sT}") + v_dma(1, f"s{sT}"), 2, 5)
    if n in ((15, 16) if OPT.get('late') else (14, 16)):
        seq = []
        for t in range(2, 6):
            seq += [f"PRE s_add_u32 s{sT}, s{sKV}, {(t - 2) * 8192}"] + (k_dma if n < 16 else v_dma)(t, f"s{sT}")
        if n == 16: seq.append(f"s_add_u32 s{sKV}, s{sKV}, 32768")
        place(seq, 2, 5)
    if n == 17 and OPT.get('e67'):
        place(k_dma(6) + [f"PRE s_add_u32 s{sT}, s{sKV}, 8192"] + k_dma(7, f"s{sT}"), 4, 9)
        place(v_dma(6) + v_dma(7, f"s{sT}") + adv2(sT + 1), 47, 4)
    if OPT.get('awake') and n % 2 == 1 and 3 <= n <= 11:
        seq = []
        for t in range(OPT['awake']):
            seq += [f"PRE s_add_u32 s{sPF}, s{sPF}, 8192"] + k_dma(t % 2, f"s{sPF}") + v_dma(t % 2, f"s{sPF}")
        seq = [x.replace('tag=KV0', 'tag=DUM').replace('tag=KV1', 'tag=DUM') for x in seq]
        place(seq, 2, 40 // (4 * OPT['awake']))
    if OPT.get('awake') and n == 13:
        place([f"PRE s_mov_b32 s{sPF}, 0"] + k_dma(0, f"s{sPF}") + v_dma(0, f"s{sPF}") + [f"PRE s_mov_b32 s{sPF}, 8192"] + k_dma(1, f"s{sPF}") + v_dma(1, f"s{sPF}"), 2, 5)
    if n + 4 <= 17: place(w_dma(n + 4, nq), *((54, 3) if FSQ else (46, 5)))
    for i_ in range(OPT.get('qslow', 0)): gaps[2 + 2 * i_].append('v_nop\nv_nop\nv_nop\nv_nop\nv_nop\nv_nop')
    if fill is not None:
        for g in range(20 if n == 16 else 0, 64):
            if slots[g] is None: continue
            for _ in range(2):
                if fill: gaps[g].append(fill.pop(0))
    emit_slots(b, slots, gaps)
    if OPT.get('qstamps'): stamp(b)

def k_reads(unit, tile):
    out = []
    for kt in range(2):
        for s in range(4):
            f = 4 * kt + s
            out.append(f"ds_read_b128 {ar(AK+4*f,4)}, v{KA + s} offset:{unit * 8192 + kt * 4096} ; need=KV{tile}")
    return out

def v_reads(unit, tile):
    out = []
    for T in range(8):
        th, tl = T // 4, T % 4
        for a in range(2):
            out.append(f"ds_read_b64_tr_b16 {ar(AV+4*T+2*a,2)}, v{VA + T} offset:{unit * 8192 + a * 4096} ; need=KV{tile}")
    return out

import sched, sched2
LM = 1
for a_ in sys.argv[2:]:
    if a_.startswith('lm='): LM = int(a_[3:])
if LM:
    NS = 68
    V_GAPS = list(range(26, 42)); K_GAPS = list(range(50, 58)); D_GAPS = [3, 11, 17, 23]
    SM = sched2.schedule(V_GAPS + K_GAPS, D_GAPS)
    for a_ in sys.argv[2:]:
        if a_.startswith('dg='): D_GAPS = {1: [3, 7, 33, 38], 2: [4, 8, 34, 40], 3: [3, 8, 36, 56]}[int(a_[3:])]
else:
    NS = 64
    V_GAPS = list(range(25, 41)); K_GAPS = list(range(48, 56)); D_GAPS = [1, 9, 17, 23]
    SM = sched.schedule(4, V_GAPS + K_GAPS, D_GAPS)
BG = K_GAPS[0] - 1
LA = 108; ONES = 124
def sm_text(kind, q, e):
    s = S_ + 8 * q + e
    if kind == 'exp': return f"v_exp_f32 v{s}, v{s}"
    if kind == 'add': return f"v_add_f32 v{LS+q}, v{LS+q}, v{s}"
    return f"v_cvt_pk_bf16_f32 v{P_+4*q+e//2}, v{s-1}, v{s}"
def sm_items(nq, lo, hi):
    it = [(g, k[0] == 'exp', k) for k, g in SM.items() if k[1] < nq and lo <= g < hi]
    it.sort(key=lambda t: (t[0] % NS, t[1], -t[0]))
    return [(g, k) for g, _, k in it]

def qk(q, kt, s, czero=False):
    d = vr(S_ + 8 * q + 4 * kt, 4)
    c = d if s else ("0" if czero else vr(CI + 4 * q, 4))
    return f"{MF} {d}, {ar(AK+4*(4*kt+s),4)}, {ar(AQ(q)+4*s,4)}, {c}"

def pv(q, T, czero=False):
    d = vr(O_ + 32 * q + 4 * T, 4)
    return f"{MF} {d}, {ar(AV+4*T,4)}, {vr(P_+4*q,4)}, {'0' if czero else d}"

def lsm(q, czero=False):
    d = vr(LA + 4 * q, 4)
    return f"{MF} {d}, {vr(ONES,4)}, {vr(P_+4*q,4)}, {'0' if czero else d}"

SPINS = []
def attn_stage(b, k, nq, extra=None, fill=None, resume=False):
    kk = k % 32; u = k % 8
    if resume: kk = 0
    slots = []; gaps = [[] for _ in range(NS)]
    for q in (0, 1):
        for kt in range(2):
            for s in range(4): slots.append(qk(q, kt, s))
    for q in (2, 3):
        for T in range(8): slots.append(pv(q, T, kk == 1) if (q < nq and kk > 0) else None)
        if LM: slots.append(lsm(q, kk == 1) if (q < nq and kk > 0) else None)
    for q in (2, 3):
        for kt in range(2):
            for s in range(4): slots.append(qk(q, kt, s) if q < nq else None)
    for q in (0, 1):
        for T in range(8): slots.append(pv(q, T, kk == 0 and not resume))
        if LM: slots.append(lsm(q, kk == 0 and not resume))
    for g, key in sm_items(nq, 0, 2 * NS if kk > 0 else NS): gaps[g % NS].append(sm_text(*key))
    for g, x in zip(V_GAPS, v_reads(u, k)): gaps[g].append(x)
    DIST = 7 if OPT.get('d7') else OPT.get('dist', 5 if OPT.get('fsa') else 6)
    if DIST == 7 and k < 63:
        gaps[BG - 1].append(f"WAITV lgkmcnt(0) ; cover=KV{k+1}" + (",WT" if kk == 11 else ""))
        gaps[BG].append(f"s_barrier ; pub=KV{k+1}")
    elif k % 2 == 1 and k < 63 and OPT.get('fsa'):
        uid = f"{k}_{nq}"
        pg = OPT.get('fsp', 30); rg = OPT.get('fsr', 36)
        gaps[pg - 2].append(f"s_add_u32 s{sFV}, s{sFV}, 1")
        gaps[pg - 1].append(f"v_mov_b32 v{FQ}, s{sFV}") if pg - 1 >= 30 or pg < 26 else gaps[pg].append(f"v_mov_b32 v{FQ}, s{sFV}")
        gaps[pg + 1].insert(0, f"WAITV ; cover=KV{k+1},KV{k+2}" + (",WT" if kk == 11 else ""))
        gaps[pg + 1].append(f"ds_write_b32 v{VFA}, v{FQ}")
        gaps[rg].append(f"ds_read_b128 {vr(FQ,4)}, v{VFB}")
        gaps[rg + 3].insert(0, "s_waitcnt lgkmcnt(2)")
        gaps[rg + 3].append(f"v_min3_u32 v{FQ}, v{FQ}, v{FQ+1}, v{FQ+2}")
        gaps[rg + 4].append(f"v_min_u32 v{FQ}, v{FQ}, v{FQ+3}")
        gaps[rg + 5].append(f"v_cmp_gt_u32 vcc, s{sFV}, v{FQ}")
        gaps[rg + 6].insert(0, f"s_cbranch_vccnz L_fs{uid}\nL_fr{uid}: ; SYNC pub=KV{k+1},KV{k+2}")
        gaps[BG].append("s_waitcnt lgkmcnt(0)")
        SPINS.append(uid)
    elif k % 2 == 1 and k < 63:
        gaps[BG - 1].append(f"WAITV lgkmcnt(0) ; cover=KV{k+1},KV{k+2}" + (",WT" if k == (39 if OPT.get('pz') else 11) else ""))
        gaps[BG].append(f"s_barrier ; pub=KV{k+1},KV{k+2}")
    else:
        gaps[BG].append("s_waitcnt lgkmcnt(0)")
    if k < 63:
        for g, x in zip(K_GAPS, k_reads((u + 1) % 8, k + 1)): gaps[g].append(x)
        gaps[NS - 1].append("s_waitcnt lgkmcnt(0)")
    FP = OPT.get('fsa') and OPT.get('pair')
    t0 = (k + 4 + k % 2) if FP else (k + DIST - (k % 2) if OPT.get('pair') else k + DIST)
    if t0 < 64 and not (OPT.get('e67') and t0 < 8) and not (OPT.get('sw2') and k in (32, 33)):
        if OPT.get('pair'):
            isv = (k % 2 == 0) if FP else (k % 2 == 1)
            fn = v_dma if isv else k_dma
            kd, vd = fn(t0), fn(t0 + 1, f"s{sT}")
            gaps[D_GAPS[2] - 2].append(f"s_add_u32 s{sT}, s{sKV}, 8192")
            if isv:
                for i_, x in enumerate(adv2(sT)): gaps[44 + i_].append(x)
        else:
            kd, vd = k_dma(k + DIST), v_dma(k + DIST)
            gaps[44] += kv_adv()
        gaps[D_GAPS[0] - 1].append(kd[0]); gaps[D_GAPS[2] - 1].append(vd[0])
        for x, g in zip(kd[1:] + vd[1:], D_GAPS): gaps[g].append(x)
    for i_ in range(OPT.get('slow', 0)): gaps[2 + 2 * i_].append('v_nop\nv_nop\nv_nop\nv_nop')
    if extra:
        for g, x in extra: gaps[g].append(x)
    if fill:
        cost = lambda x: 2 if x.startswith('v_exp') else (1 if x.startswith(('v_', 'ds_', 'buffer_')) else 0)
        room = [max(0, 2 - sum(cost(x) for x in gaps[g])) if slots[g] else 0 for g in range(NS)]
        left = len(fill) - sum(room)
        live = [g for g in range(NS) if slots[g]]
        for i_ in range(max(left, 0)): room[live[(i_ * len(live)) // left]] += 1
        for g in range(NS):
            for _ in range(room[g]):
                if fill: gaps[g].append(fill.pop(0))
        assert not fill
    for key, pre in (('nobar', ('s_barrier',)), ('nodma', ('buffer_load_dwordx4 v9',)), ('nolds', ('ds_read',)), ('noexp', ('v_exp',))):
        if OPT.get(key) and 8 <= k < 16: gaps = [[x if not x.startswith(pre) else 's_nop 0 ;' + x.split(';', 1)[-1] for x in g] for g in gaps]
    if OPT.get('astamps') and k % 2 == 0: stamp(b)
    if OPT.get('dmaonly'):
        slots = [None] * NS
        gaps = [[x for x in g if not x.startswith(('v_', 'ds_'))] for g in gaps]
    emit_slots(b, slots, gaps)

def xlane_reduce(b, reg, tmp, op):
    b(f"v_mov_b32 v{tmp}, v{reg}")
    b(f"v_permlane32_swap_b32 v{reg}, v{tmp}")
    b(f"{op} v{reg}, v{reg}, v{tmp}")
    b(f"v_mov_b32 v{tmp}, v{reg}")
    b(f"v_permlane16_swap_b32 v{reg}, v{tmp}")
    b(f"{op} v{reg}, v{reg}, v{tmp}")

def xlane_reduce_multi(b, regs, tmps, op):
    for sw in ("v_permlane32_swap_b32", "v_permlane16_swap_b32"):
        for r, t in zip(regs, tmps): b(f"v_mov_b32 v{t}, v{r}")
        for r, t in zip(regs, tmps): b(f"{sw} v{r}, v{t}")
        for r, t in zip(regs, tmps): b(f"{op} v{r}, v{r}, v{t}")

def stamp(b, idx=None):
    if OPT.get('fixat') and idx == OPT['fixat']: b("s_memrealtime s[72:73]\ns_waitcnt lgkmcnt(0)")
    if not OPT['stamps']: return
    b(f"s_memtime s[{sSTAMP}:{sSTAMP+1}]\ns_memrealtime s[{sSTAMP+2}:{sSTAMP+3}]\ns_waitcnt lgkmcnt(0)")
    b(f"s_mov_b32 s93, m0\ns_mov_b32 m0, s96\nv_writelane_b32 v14, s{sSTAMP}, m0\nv_writelane_b32 v15, s{sSTAMP+2}, m0\ns_mov_b32 m0, s93\ns_add_u32 s96, s96, 1")

def stamp_dump(b, k, wave):
    if not OPT['stamps']: return
    b("s_waitcnt vmcnt(0)")
    stamp(b)
    if OPT['stamps'] == 2:
        b("s_load_dwordx2 s[92:93], s[0:1], 88\ns_waitcnt lgkmcnt(0)")
        b(f"s_cmp_lg_u32 s{wave}, 0\ns_cbranch_scc1 L_end{k+1}\ns_lshr_b32 s94, s97, 3\ns_cmp_lg_u32 s94, 5\ns_cbranch_scc1 L_end{k+1}")
        b(f"s_add_u32 s88, s92, {OPT.get('dbgoff',0)*(1-k)}\ns_addc_u32 s89, s93, 0\ns_mov_b32 s90, 256\ns_mov_b32 s91, 0x20000")
        sel = [0, 2, 3, 5, 6, 7, 8, 9, 10, 11, 12]
        b("s_mov_b64 exec, 1")
        for i, ix in enumerate(sel):
            b(f"v_readlane_b32 s94, v15, {ix}\ns_nop 3")
            if i == 0 and k == 0: b("s_not_b32 s94, s94")
            b(f"v_mov_b32 v1, s94\nv_mov_b32 v2, {4*(i + 1)}\nbuffer_atomic_umax v1, v2, s[88:91], 0 offen")
        return
    b("s_getreg_b32 s94, hwreg(HW_REG_XCC_ID)\nv_writelane_b32 v14, s94, 63\nv_writelane_b32 v14, s65, 62\nv_writelane_b32 v14, s64, 61")
    b("s_load_dwordx2 s[92:93], s[0:1], 96\ns_waitcnt lgkmcnt(0)")
    b(f"s_add_u32 s88, s92, {(48+k)*1024*1024}\ns_addc_u32 s89, s93, 0\ns_mov_b32 s90, 0x100000\ns_mov_b32 s91, 0x20000")
    b(f"s_lshl_b32 s94, s97, 2\ns_add_u32 s94, s94, s{wave}\ns_lshl_b32 s94, s94, 9")
    b("v_and_b32 v1, 63, v0\nv_lshlrev_b32 v1, 3, v1")
    b("buffer_store_dwordx2 v[14:15], v1, s[88:91], s94 offen")

def persist_regs(b):
    lane = T0; t1 = T0 + 1; t2 = T0 + 2; t3 = T0 + 3; g_ = T0 + 4; ihi = T0 + 5; i8 = T0 + 6; i16 = T0 + 7; r_ = T0 + 8; c4 = T0 + 9
    b(f"""v_and_b32 v{lane}, 63, v0
    v_lshrrev_b32 v{g_}, 4, v{lane}
    v_lshrrev_b32 v{ihi}, 3, v{lane}
    v_and_b32 v{i8}, 7, v{lane}
    v_and_b32 v{i16}, 15, v{lane}
    v_lshrrev_b32 v{r_}, 2, v{i16}
    v_and_b32 v{c4}, 3, v{lane}
    v_lshlrev_b32 v{VLN}, 4, v{lane}
    s_add_u32 s71, s63, s{sWB}
    v_add_u32 v{VO}, s71, v{VLN}""")
    b(f"""s_lshl_b32 s70, s{sWAVE}, 11
    v_lshlrev_b32 v{t1}, 8, v{g_}
    v_add_u32 v{t1}, s70, v{t1}
    s_and_b32 s70, s{sWAVE}, 1
    s_lshl_b32 s70, s70, 3
    v_xor_b32 v{t2}, v{i16}, v{g_}
    v_xor_b32 v{t2}, s70, v{t2}
    v_lshl_add_u32 v{DK0}, v{t2}, 4, v{t1}
    v_xor_b32 v{DK1}, 64, v{DK0}
    v_lshlrev_b32 v{t2}, 1, v{g_}
    v_xor_b32 v{t3}, v{t2}, v{i16}
    v_lshl_add_u32 v{DV0}, v{t3}, 4, v{t1}
    v_xor_b32 v{DV1}, 128, v{DV0}""")
    b(f"""v_mul_u32_u24 v{t1}, 1152, v{ihi}
    v_lshl_add_u32 v{t1}, v{i8}, 4, v{t1}
    s_lshl_b32 s70, s{sWAVE}, 7
    v_add_u32 v{VWO}, s70, v{t1}
    v_lshrrev_b32 v{t1}, 1, v{lane}
    v_mul_u32_u24 v{t1}, 1152, v{t1}
    v_and_b32 v{t2}, 1, v{lane}
    v_lshl_add_u32 v{t1}, v{t2}, 4, v{t1}
    s_lshl_b32 s70, s{sWAVE}, 5
    s_add_u32 s70, s70, 1024
    v_add_u32 v{VWX}, s70, v{t1}""")
    b(f"""v_xor_b32 v{t2}, v{g_}, v{i16}
    v_lshlrev_b32 v{t2}, 4, v{t2}
    v_lshl_add_u32 v{KA}, v{i16}, 8, v{t2}""")
    for s_ in range(1, 4): b(f"v_xor_b32 v{KA+s_}, {64*s_}, v{KA}")
    b(f"""v_lshl_add_u32 v{t2}, v{g_}, 2, v{r_}
    v_lshlrev_b32 v{t1}, 8, v{t2}
    v_and_b32 v{t2}, 7, v{t2}
    v_lshl_add_u32 v{t1}, v{t2}, 5, v{t1}
    v_lshl_add_u32 v{t1}, v{c4}, 3, v{t1}
    v_add_u32 v{VA}, 0x10000, v{t1}""")
    for T in range(1, 8): b(f"v_xor_b32 v{VA+T}, {32*T}, v{VA}")
    b(f"""v_lshl_add_u32 v{t2}, v{g_}, 2, v{r_}
    v_lshlrev_b32 v{t1}, 7, v{t2}
    v_lshl_add_u32 v{t1}, v{c4}, 3, v{t1}
    s_lshr_b32 s70, s{sWAVE}, 1
    s_lshl_b32 s70, s70, 16
    s_and_b32 s71, s{sWAVE}, 1
    s_lshl_b32 s{sWOS}, s71, 13
    s_add_u32 s{sWOS}, s{sWOS}, s70
    s_lshl_b32 s{sWTS}, s71, 10
    s_add_u32 s{sWTS}, s{sWTS}, s70
    s_add_u32 s{sWTS}, s{sWTS}, 47104
    {f"s_lshl_b32 s{sWTS}, s{sWAVE}, 10" if OPT.get('fsq') else ""}
    {f"s_add_u32 s{sWTS}, s{sWTS}, 147456" if OPT.get('fsq') else ""}
    v_add_u32 v{VWA}, s{sWOS}, v{t1}
    v_lshlrev_b32 v{t1}, 3, v{lane}
    v_add_u32 v{VWE}, s{sWTS}, v{t1}""")

def late_setup(b, sfx):
    b(f"""s_lshl_b32 s71, s68, 4
    s_add_u32 s71, s71, s69
    s_lshl_b32 s70, s71, 19
    s_add_u32 s{SK}, s50, s70
    s_addc_u32 s{SK+1}, s51, 0
    s_mov_b32 s{SK+2}, 524288
    s_mov_b32 s{SK+3}, 0x20000
    s_add_u32 s{SV}, s52, s70
    s_addc_u32 s{SV+1}, s53, 0
    s_mov_b32 s{SV+2}, 524288
    s_mov_b32 s{SV+3}, 0x20000
    s_mul_i32 s70, s3, {O_BLK}
    s_add_u32 s{SO}, s100, s70
    s_addc_u32 s{SO+1}, s101, 0
    s_mov_b32 s{SO+2}, {O_BLK}
    s_mov_b32 s{SO+3}, 0x20000
    s_mul_i32 s70, s71, 36864
    s_add_u32 s{SWO}, s56, s70
    s_addc_u32 s{SWO+1}, s57, 0
    s_mov_b32 s{SWO+2}, 36864
    s_mov_b32 s{SWO+3}, 0x20000
    s_mul_i32 s71, s3, {WOT_BLK}
    s_add_u32 s70, s70, s71
    s_add_u32 s70, s70, {WOT_OFF}
    s_add_u32 s{SWT}, s100, s70
    s_addc_u32 s{SWT+1}, s101, 0
    s_mov_b32 s{SWT+2}, 36864
    s_mov_b32 s{SWT+3}, 0x20000
    s_mul_i32 s62, s69, {8*122880}
    s_mul_i32 s63, s68, 15360        ; b*15*1024
    s_add_u32 s{SCN}, s100, {CNT_OFF}
    s_addc_u32 s{SCN+1}, s101, 0
    s_mov_b32 s{SCN+2}, 24576
    s_mov_b32 s{SCN+3}, 0x20000
    s_mov_b64 s[{SDB}:{SDB+1}], s[78:79]
    s_mov_b32 s{SDB+2}, 256
    s_mov_b32 s{SDB+3}, 0x20000
    s_mov_b64 s[{SIN}:{SIN+1}], s[{SCN}:{SCN+1}]
    s_mov_b32 s{SIN+3}, 0x20000
    s_mov_b64 s[{SIF}:{SIF+1}], s[78:79]
    s_mov_b32 s{SIF+3}, 0x20000
    s_lshl_b32 s70, s3, 3
    s_add_u32 s70, s70, s68
    s_lshl_b32 s{sCO}, s70, 2
    s_lshr_b32 s71, s69, 2
    s_add_u32 s{sCO}, s{sCO}, s71
    s_lshl_b32 s{sCO}, s{sCO}, 7
    s_lshr_b32 s{sCW}, s70, 1
    s_lshl_b32 s{sCW}, s{sCW}, 7
    s_add_u32 s{sCW}, s{sCW}, 8192
    s_and_b32 s70, s97, 1
    s_mul_i32 s70, s70, {30 + OPT.get('bal', 0)}
    s_add_u32 s2, s2, s70              ; tile number inside the pair of workgroup classes (0..59 real)
    s_cmp_eq_u32 s70, 0
    s_cselect_b32 s71, {30 + OPT.get('bal', 0)}, 60
    s_cmp_ge_u32 s2, s71
    s_cselect_b32 s{sIDLE}, 1, 0       ; no output tile for this workgroup
    s_mul_i32 s68, s2, 43
    s_lshr_b32 s68, s68, 8
    s_mul_i32 s69, s68, 6
    s_sub_u32 s69, s2, s69             ; nt
    s_bfe_u32 s70, s97, 0x10001
    s_mul_i32 s70, s70, 10
    s_add_u32 s68, s68, s70            ; mt
    s_mul_i32 s92, s69, {OPT.get('krot', 0)}
    s_add_u32 s92, s92, s68
    s_and_b32 s92, s92, 3""")
    if OPT.get('s2t'):
        b(f"""s_lshr_b32 s2, s97, 3
        s_mul_i32 s68, s2, 86
        s_lshr_b32 s68, s68, 8
        s_mul_i32 s69, s68, 3
        s_sub_u32 s69, s2, s69
        s_and_b32 s70, s97, 1
        s_mul_i32 s70, s70, 3
        s_add_u32 s69, s69, s70
        s_bfe_u32 s70, s97, 0x10001
        s_mul_i32 s70, s70, 10
        s_add_u32 s68, s68, s70""")
        if OPT['s2t'] >= 2:
            b(f"""s_and_b32 s92, s68, 1
            s_lshl_b32 s92, s92, 1
            s_lshr_b32 s70, s{sWAVE}, 1
            s_add_u32 s92, s92, s70
            s_and_b32 s68, s68, 30
            s_and_b32 s70, s{sWAVE}, 1
            s_add_u32 s68, s68, s70""")
        else: b(f"s_mov_b32 s92, s{sWAVE}")
    KQ = 92 if OPT.get('s2t') else sWAVE
    b(f"""
    s_mul_i32 s79, s68, 103
    s_lshr_b32 s79, s79, 8
    s_mul_i32 s78, s68, 96
    s_add_u32 s78, s78, 95
    s_mul_i32 s78, s78, 4370
    s_lshr_b32 s78, s78, 20
    s_lshl_b32 s70, s3, 3
    s_add_u32 s78, s78, s70
    s_add_u32 s79, s79, s70
    s_lshl_b32 s78, s78, 2
    s_lshl_b32 s79, s79, 2
    s_add_u32 s78, s78, s{KQ}
    s_add_u32 s79, s79, s{KQ}
    s_lshl_b32 s78, s78, 7
    s_lshl_b32 s79, s79, 7
    s_mul_i32 s70, s3, {O_BLK}
    s_mul_i32 s71, s68, 6144
    s_add_u32 s70, s70, s71
    s_add_u32 s{SO2}, s100, s70
    s_addc_u32 s{SO2+1}, s101, 0
    s_sub_u32 s{SO2+2}, {O_BLK}, s71
    s_mov_b32 s{SO2+3}, 0x20000
    s_mul_i32 s70, s3, {WOT_BLK}
    s_mul_i32 s71, s69, 6144
    s_add_u32 s70, s70, s71
    s_add_u32 s70, s70, {WOT_OFF}
    s_add_u32 s{SW2}, s100, s70
    s_addc_u32 s{SW2+1}, s101, 0
    s_sub_u32 s{SW2+2}, {WOT_BLK}, s71
    s_mov_b32 s{SW2+3}, 0x20000
    s_cmp_eq_u32 s{sIDLE}, 1
    s_cselect_b32 s{SO2+2}, 0, s{SO2+2}   ; workgroups without an output tile load nothing
    s_cselect_b32 s{SW2+2}, 0, s{SW2+2}
    s_mov_b32 s100, s{SO2+2}
    s_mov_b32 s101, s{SW2+2}
    s_lshr_b32 s70, s{sWAVE}, 1
    s_mul_i32 s70, s70, {48*2304}
    s_mul_i32 s{sOUTO}, s68, {96*2304}
    s_add_u32 s{sOUTO}, s{sOUTO}, s70
    s_mul_i32 s70, s3, 1152
    s_add_u32 s{sOUTO}, s{sOUTO}, s70
    s_mul_i32 s70, s69, 192
    s_add_u32 s{sOUTO}, s{sOUTO}, s70
    s_and_b32 s70, s{sWAVE}, 1
    s_mul_i32 s70, s70, 96
    s_add_u32 s{sOUTO}, s{sOUTO}, s70
    s_lshl_b32 s70, s3, 2
    s_add_u32 s70, s70, s{KQ}
    s_lshl_b32 s70, s70, 7
    s_add_u32 s70, s70, 8192
    v_and_b32 v1, 1, v0
    v_mov_b32 v{VP2}, s78
    v_mov_b32 v2, s79
    v_cmp_eq_u32 vcc, 1, v1
    v_and_b32 v1, 2, v0
    v_mov_b32 v3, s70
    v_cndmask_b32 v{VP2}, v{VP2}, v2, vcc
    v_cmp_eq_u32 vcc, 2, v1
    v_add_u32 v{VPE}, 16384, v{VP2}
    v_mov_b32 v{VTH}, 4
    v_cndmask_b32 v{VPE}, v{VPE}, v3, vcc
    v_mov_b32 v3, 32
    v_cndmask_b32 v{VTH}, v{VTH}, v3, vcc
    s_mov_b32 s{sSIG}, 0""")
    b(f"L_late{sfx}:")
    b(f"""s_or_b32 s70, s97, s{sSAFE}
    s_cmp_eq_u32 s70, 0
    s_cselect_b32 s{SIN+2}, 24576, 0   ; only workgroup 0 (first pass) really initialises the counters
    s_cselect_b32 s{SIF+2}, 4, 0
    s_mov_b32 s{sOO}, s62
    s_mov_b32 s{sLATE}, 0
    s_mov_b32 s{SO2+2}, s100
    s_mov_b32 s{SW2+2}, s101
    {p2_init()}
    s_lshr_b32 s{sRT}, s97, {OPT.get('rsh', 3)}
    s_mul_i32 s{sRT}, s{sRT}, {OPT.get('rot', 0) or 1}
    s_mul_i32 s70, s{sRT}, 5042
    s_lshr_b32 s70, s70, 16
    s_mul_i32 s70, s70, 13
    s_sub_u32 s{sRT}, s{sRT}, s70
    s_lshl_b32 s{sRT}, s{sRT}, 14
    s_lshl_b32 s{sKB}, s{sWAVE}, 11""")

def warm_base(b):
    b("""s_getpc_b64 s[94:95]
    L_pc:
    s_sub_u32 s94, s94, L_pc-attn_kernel
    s_subb_u32 s95, s95, 0""")

def warm_addr(b):
    b("""v_mul_u32_u24 v76, 40, v0
    v_lshrrev_b32 v76, 8, v76
    s_lshr_b32 s70, s97, 3
    s_mul_i32 s70, s70, 40
    v_add_u32 v76, s70, v76
    v_lshlrev_b32 v76, 7, v76
    v_min_u32 v76, L_codeend-attn_kernel-4, v76
    v_mov_b32 v77, s95
    v_add_co_u32 v76, vcc, s94, v76
    v_addc_co_u32 v77, vcc, 0, v77, vcc""")

def warm_code(b):
    warm_base(b); warm_addr(b)
    if OPT.get('warm'): b("global_load_dword v4, v[76:77], off")

def prologue_a(b):
    lane = T0; t1 = T0 + 1; t2 = T0 + 2; t3 = T0 + 3; g_ = T0 + 4; ihi = T0 + 5; i8 = T0 + 6
    b(f"""v_and_b32 v{lane}, 63, v0
    v_lshrrev_b32 v{g_}, 4, v{lane}
    v_lshrrev_b32 v{ihi}, 3, v{lane}
    v_and_b32 v{i8}, 7, v{lane}""")
    b(f"s_lshl_b32 s{sT}, s{sWAVE}, 6")
    b(f"v_add_u32 v{t1}, s{sT}, v{ihi}")
    b(f"v_mul_u32_u24 v{t1}, 1152, v{t1}")
    for j in range(4):
        b(f"v_xor_b32 v{t2}, {4*(j%2)}, v{g_}")
        b(f"v_xor_b32 v{t2}, v{t2}, v{i8}")
        b(f"v_lshl_add_u32 v{t2}, v{t2}, 4, v{t1}")
        b(f"v_add_u32 v{DX+j}, {8*j*1152 - 1024*j}, v{t2}")
    b(f"""s_and_b32 s{sT}, s{sWAVE}, 1
    s_lshl_b32 s{sT}, s{sT}, 18
    s_lshr_b32 s{sT+1}, s{sWAVE}, 1
    s_lshl_b32 s{sT+1}, s{sT+1}, 7
    s_add_u32 s{sT}, s{sT}, s{sT+1}
    v_lshlrev_b32 v{t1}, 13, v{ihi}
    v_add_u32 v{t1}, s{sT}, v{t1}
    v_lshrrev_b32 v{t2}, 2, v{i8}
    v_xor_b32 v{t2}, v{t2}, v{g_}
    v_and_b32 v{t2}, 1, v{t2}
    v_lshl_add_u32 v{t1}, v{t2}, 6, v{t1}
    v_and_b32 v{t2}, 3, v{i8}
    v_lshl_add_u32 v{t1}, v{t2}, 4, v{t1}""")
    for j in range(4): b(f"v_add_u32 v{DW+j}, {8*j*8192 - 1024*j}, v{t1}")
    b(f"""s_mov_b32 s{sXO}, 0
    s_mov_b32 s{sXO2}, 36864
    s_mov_b32 s{sWOFF}, 0
    s_mov_b32 s{sKV}, 0
    s_mov_b32 s{sHEAD}, 0""")
    if OPT.get('qrot'):
        if OPT['qrot'] == 10:
            b(f"s_lshr_b32 s{sT}, s97, 5\ns_lshr_b32 s{sT+1}, s97, 3\ns_xor_b32 s{sT}, s{sT}, s{sT+1}\ns_and_b32 s{sT}, s{sT}, 1\ns_mul_i32 s{sT}, s{sT}, {OPT.get('qro', 4)}")
        elif OPT['qrot'] == 11:
            b(f"s_lshr_b32 s{sT}, s97, 5\ns_bfe_u32 s{sT+1}, s97, 0x20003\ns_add_u32 s{sT}, s{sT}, s{sT+1}\ns_mul_i32 s{sT+1}, s{sT}, 86\ns_lshr_b32 s{sT+1}, s{sT+1}, 8\ns_mul_i32 s{sT+1}, s{sT+1}, 3\ns_sub_u32 s{sT}, s{sT}, s{sT+1}\ns_mul_i32 s{sT}, s{sT}, 3")
        else:
            b(f"""s_lshr_b32 s{sT}, s97, 5
            s_bfe_u32 s{sT+1}, s97, 0x20003
            s_mul_i32 s{sT+1}, s{sT+1}, {OPT['qrot']}
            s_add_u32 s{sT}, s{sT}, s{sT+1}
            s_sub_u32 s{sT+1}, s{sT}, 9
            s_cselect_b32 s{sT}, s{sT}, s{sT+1}""")
        b(f"""
        s_lshl_b32 s{sXO}, s{sT}, 7
        s_add_u32 s{sXO2}, s{sXO}, 36864
        s_lshl_b32 s{sWOFF}, s{sT}, 19""")

def prologue_b(b):
    lane = T0; t1 = T0 + 1; t2 = T0 + 2; t3 = T0 + 3; g_ = T0 + 4; ihi = T0 + 5; i8 = T0 + 6
    if OPT.get('sstamps'): stamp(b)
    b.ext(x_dma(0, 4)); b.ext(w_dma(0, 4))
    if OPT.get('ord') == 1: b.ext(w_dma(1, 4)); b.ext(x_dma(1, 4))
    if OPT.get('ord') == 2: b.ext(w_dma(1, 4))
    if OPT.get('sstamps'): stamp(b)
    if OPT.get('xw'):
        pf = K2F[OPT.get('xwf', 0)]
        b(f"""s_lshr_b32 s70, s2, 2
        s_mul_i32 s70, s70, 270
        s_mul_i32 s71, s{sWAVE}, 68
        s_add_u32 s70, s70, s71
        s_lshl_b32 s70, s70, 7
        v_lshlrev_b32 v5, 7, v{lane}
        buffer_load_dword v6, v5, s[{SX}:{SX+3}], s70 offen{pf}
        s_and_b32 s70, s2, 3
        s_lshl_b32 s70, s70, 2
        s_add_u32 s70, s70, s{sWAVE}
        s_lshl_b32 s70, s70, 13
        v_lshrrev_b32 v5, 2, v{lane}
        v_lshlrev_b32 v5, 17, v5
        v_and_b32 v7, 3, v{lane}
        v_lshl_add_u32 v5, v7, 7, v5
        buffer_load_dword v6, v5, s[{SW}:{SW+3}], s70 offen{pf}
        s_add_u32 s70, s70, {256*8192}
        buffer_load_dword v6, v5, s[{SW}:{SW+3}], s70 offen{pf}
        s_add_u32 s70, s70, {256*8192}
        buffer_load_dword v6, v5, s[{SW}:{SW+3}], s70 offen{pf}""")
    late_setup(b, "")
    if OPT.get('tlb'):
        for srd in (SK, SV, SWO): b(f"buffer_load_dword v1, off, s[{srd}:{srd+3}], 0 nt")
        if OPT['tlb'] > 1:
            b(f"s_mov_b64 exec, 1\nbuffer_store_dword v1, off, s[{SWT}:{SWT+3}], s{sWB} sc1\ns_mov_b64 exec, -1")
    persist_regs(b)
    b(f"""v_mov_b32 v{VONE}, 1
    s_and_b32 s70, s{sWAVE}, 1
    s_mul_i32 s70, s70, 3072
    s_sub_u32 s71, 3072, s70
    v_add_u32 v{VPW}, s70, v{VLN}
    v_add_u32 v{VPW+1}, s71, v{VLN}
    s_lshr_b32 s70, s{sWAVE}, 1
    s_mul_i32 s70, s70, 3072
    s_sub_u32 s71, 3072, s70
    v_add_u32 v{VPO}, s70, v{VLN}
    v_add_u32 v{VPO+1}, s71, v{VLN}""")
    i16 = T0 + 7; r_ = T0 + 8; c4 = T0 + 9
    b(f"""v_and_b32 v{i16}, 15, v{lane}
    v_lshrrev_b32 v{r_}, 2, v{i16}
    v_and_b32 v{c4}, 3, v{lane}
    v_lshlrev_b32 v{t1}, 7, v{i16}
    v_add_u32 v{t1}, s{sXB}, v{t1}
    v_add_u32 v{t1}, 16384, v{t1}
    v_lshrrev_b32 v{t3}, 1, v{i16}""")
    for s in range(2):
        b(f"v_xor_b32 v{t2}, {4*s}, v{g_}")
        b(f"v_xor_b32 v{t2}, v{t2}, v{t3}")
        b(f"v_lshl_add_u32 v{XA+s}, v{t2}, 4, v{t1}\nv_add_u32 v{XA+2+s}, 65536, v{XA+s}")
    b(f"""v_lshl_add_u32 v{t1}, v{g_}, 3, v{r_}
    v_lshlrev_b32 v{t1}, 7, v{t1}
    v_lshl_add_u32 v{t1}, v{c4}, 4, v{t1}
    v_add_u32 v{t1}, 49152, v{t1}
    v_lshrrev_b32 v{t3}, 1, v{r_}""")
    if OPT.get('wnc'): b(f"v_and_b32 v{t2}, 1, v{g_}\nv_lshl_add_u32 v{t1}, v{t2}, 3, v{t1}")
    for sp in range(2):
        b(f"v_xor_b32 v{t2}, {sp}, v{t3}")
        b(f"v_lshl_add_u32 v{WA+sp}, v{t2}, 6, v{t1}\nv_add_u32 v{WA+2+sp}, 65536, v{WA+sp}")
    if OPT.get('sstamps'): stamp(b)
    if not OPT.get('ord'): b.ext(w_dma(1, 4))
    if OPT.get('ord') != 1: b.ext(x_dma(1, 4))

def wave_code(b, nq, sfx):
    nx = 8 if nq == 4 else 6
    b(f"L_begin{sfx}:")
    if nq == 3:
        b(f"v_mov_b32 v{VHS}, 0\nv_lshlrev_b32 v{VCW}, 3, v{VLN}")
        b(f"buffer_store_dword v{VHS}, v{VCW}, s[{SIN}:{SIN+3}], 0 offen sc1 ; tag=INIT")
        b(f"s_mov_b32 s{sT}, 8192\nbuffer_store_dword v{VHS}, v{VCW}, s[{SIN}:{SIN+3}], s{sT} offen sc1 ; tag=INIT")
        b(f"s_mov_b32 s{sT}, 16384\nbuffer_store_dword v{VHS}, v{VCW}, s[{SIN}:{SIN+3}], s{sT} offen sc1 ; tag=INIT")
    stamp(b, 0)
    if OPT.get('fsq'):
        b(f"s_mov_b32 s{sFQ}, 0\nv_mov_b32 v{QFB}, {QFLAGS}\nv_lshl_add_u32 v{QFA}, s{sWAVE}, 2, v{QFB}")
    b("WAITV ; cover=X0,W0")
    b("s_barrier ; pub=X0,W0")
    b.ext(x_reads(0, nq))
    for T in (0, 1): b.ext(w_reads(0, T))
    b.ext(w_reads(0, 2)[:3])
    b("WAITL W0.0")
    stamp(b, 1)
    for n in range(0, 12): qproj_stage(b, n, nq)
    fill = []; post = []
    for sp in range(4):
        for q in range(nq):
            rs = [128 + 32 * q + 8 * sp + 2 * i_ for i_ in range(4)]
            for r in rs: fill += [f"v_mul_f32 v{r}, s{sC}, v{r}", f"v_mul_f32 v{r+1}, s{sC}, v{r+1}"]
            for r in rs: fill.append(f"v_cvt_pk_bf16_f32 v{r}, v{r}, v{r+1}")
            for i_, r in enumerate(rs): fill.append(f"v_accvgpr_write_b32 a{AQ(q) + 4*sp + i_}, v{r}")
    for n in range(12, 18): qproj_stage(b, n, nq, fill if n >= 16 else None)
    stamp(b, 2)
    conv2 = []
    for q in range(nq):
        for h in range(8):
            r = 128 + 32 * q + 4 * h
            conv2 += [f"v_accvgpr_read_b32 v{4+i_}, a{r+i_}" for i_ in range(4)]
            conv2 += [f"v_mul_f32 v{4+i_}, s{sC}, v{4+i_}" for i_ in range(4)]
            conv2 += ["v_cvt_pk_bf16_f32 v4, v4, v5", "v_cvt_pk_bf16_f32 v6, v6, v7",
                      f"v_accvgpr_write_b32 a{AQ2(q)+2*h}, v4", f"v_accvgpr_write_b32 a{AQ2(q)+2*h+1}, v6"]
    def pre_mfma(): return [qk(q, 0, s_, czero=True) for q in range(nq) for s_ in range(4)]
    def pre_max():
        t = B()
        for q in range(nq):
            s_ = S_ + 8 * q
            t(f"v_max3_f32 v{s_}, v{s_}, v{s_+1}, v{s_+2}")
        for q in range(nq):
            s_ = S_ + 8 * q
            t(f"v_max_f32 v{s_}, v{s_}, v{s_+3}")
        xlane_reduce_multi(t, [S_ + 8 * q for q in range(nq)], [T0 + q for q in range(nq)], "v_max_f32")
        for q in range(nq):
            for r in range(4): t(f"v_sub_f32 v{CI+4*q+r}, 0, v{S_+8*q}")
        return t.L
    def weave(mf, st, per):
        for x in mf:
            b(x)
            for _ in range(per):
                if st: b(st.pop(0))
    def zipper(a_, b_, ra, rb):
        out = []
        while a_ or b_:
            for _ in range(ra):
                if a_: out.append(a_.pop(0))
            for _ in range(rb):
                if b_: out.append(b_.pop(0))
        return out
    b.ext(k_reads(0, 0))
    b.ext(fill)
    b(f"v_and_b32 v4, 3, v0\nv_mov_b32 v5, 0x3f803f80\nv_cmp_eq_u32 vcc, 0, v4")
    for i_ in range(4): b(f"v_cndmask_b32 v{ONES+i_}, 0, v5, vcc")
    b("s_waitcnt lgkmcnt(0)")
    if OPT.get('wts'):
        mv = [f"v_mov_b32 v{192+i_}, v{WOF+i_}" for i_ in range(36)]
        b.ext(mv[:8])
        mv = mv[8:]
        weave(pre_mfma()[:8], mv, 4)
        b.ext(mv); b.ext(pre_mfma()[8:])
    else: b.ext(pre_mfma())
    b.ext(pre_max())
    stamp(b, 3)
    for i_ in range(OPT.get('pause', 0)): b('s_sleep 32')
    if OPT.get('skew'):
        b(f"s_lshr_b32 s{sT}, s97, 3\ns_and_b32 s{sT}, s{sT}, 7\nL_skew{sfx}:\ns_cmp_eq_u32 s{sT}, 0\ns_cbranch_scc1 L_skewd{sfx}\ns_sleep {OPT['skew']}\ns_sub_u32 s{sT}, s{sT}, 1\ns_branch L_skew{sfx}\nL_skewd{sfx}:")
    adv8 = lambda x: x
    def head_start(hd):
        b(f"s_cmp_lg_u32 s{sSAFE}, 0\ns_cbranch_scc1 L_maxpass{sfx}\nL_maxdone{hd}{sfx}:")
        if not LM:
            for q in range(nq): b(f"v_mov_b32 v{LS+q}, 0")
        stamp(b)
    if OPT.get('wtp') == 2 and nq == 3: b("WAITV ; cover=WT\nbuffer_wbl2 sc1 ; tag=WT")
    if OPT.get('pz'): b(f"s_mov_b32 s{sPW}, 99\ns_mov_b32 s{sPZ}, 0")
    if OPT.get('pz') and nq == 3: b(f"v_bfe_u32 v{VPA}, v0, 2, 2\nv_xor_b32 v{VPA}, 3, v{VPA}\nv_lshlrev_b32 v{VPA}, 7, v{VPA}\nv_sub_u32 v{VPA}, v{VPE}, v{VPA}")
    head_start(0)
    per = -(-len(conv2) // 8); tot_ = len(conv2)
    for k in range(8):
        ex = []
        if k == 0 and OPT.get('wts'):
            for i_ in range(8 if OPT.get('fsq') else 9):
                g = 2 + 7 * i_
                if i_ < 8: ex.append((g - 1, f"s_add_u32 s{sT+1}, s{sWB}, {16384*(i_//4)}"))
                else: ex += [(g - 2, f"s_lshl_b32 s{sT+1}, s{sWAVE}, 10"), (g - 1, f"s_add_u32 s{sT+1}, s{sT+1}, 32768")]
                ex.append((g, f"buffer_store_dwordx4 {vr(192+4*i_,4)}, v{VLN}, s[{SWT}:{SWT+3}], s{sT+1} offen offset:{1024*(i_%4) if i_ < 8 else 0} sc1 ; tag=WT"))
        if OPT.get('fsq'):
            A9 = 192 if nq == 4 else 224
            if k == 1: ex += [(5, f"s_mov_b32 m0, s{sWTS}"), (6, dma(VWX, SWO, "0", 0, fl('nt_wo'), "W9X"))]
            if k == 6: ex += [(3, "WAITV ; cover=W9X"), (4, f"ds_read_b64_tr_b16 {ar(A9,2)}, v{VWE} offset:0"), (5, f"ds_read_b64_tr_b16 {ar(A9+2,2)}, v{VWE} offset:512")]
            if k == 7: ex += [(4, f"s_lshl_b32 s{sT+1}, s{sWAVE}, 10"), (5, f"s_add_u32 s{sT+1}, s{sT+1}, 32768"),
                              (25, f"buffer_store_dwordx4 {ar(A9,4)}, v{VLN}, s[{SWT}:{SWT+3}], s{sT+1} offen sc1 ; tag=WT")]
        if k == 6 and nq == 3:
            ex += [(46, "WAITV ; cover=HS"), (47, f"v_readfirstlane_b32 s{sT}, v{VHS}\ns_cmp_eq_u32 s{sT}, 0\ns_cbranch_scc1 L_hspin\nL_hsok:")]
        cnt_ = per
        if OPT.get('front'): cnt_ = -(-tot_ * {1: (8, 8, 7, 7, 6, 5, 4, 3), 2: (3, 4, 5, 6, 7, 7, 8, 8), 3: (12, 12, 12, 12, 0, 0, 0, 0)}[OPT['front']][k] // 48)
        attn_stage(b, k, nq, ex, fill=[conv2.pop(0) for _ in range(min(cnt_, len(conv2)))])
    b(f"L_atin{sfx}:")
    b(f"s_mov_b32 s{sCNT}, 0")
    b(f".p2align 3\nL_at{sfx}:")
    b("LOOPBEGIN at 3 8")
    for k in range(8, 16):
        ex = []
        if k == 11 and nq == 3 and not OPT.get('pz'):
            ex = [(59, f"""s_xor_b32 s{sT+1}, s{sHEAD}, 1
            s_or_b32 s{sT}, s{sCNT}, s{sT+1}
            s_cbranch_scc0 L_sig
            L_nosig:""")]
        if OPT.get('pz') and nq == 3:
            if k == 11: ex = [(58, f"s_cmp_eq_u32 s{sPW}, 99"), (60, f"s_cbranch_scc1 L_nop3\nbuffer_load_dword v{VCW}, v{VPA}, s[{SCN}:{SCN+3}], 0 offen sc1 ; cond\nL_nop3:")]
            if k == 13: ex = [(BG + 1, f"s_getreg_b32 s{sST}, hwreg(HW_REG_IB_STS)")]
            if k == 15:
                ex = [(BG - 1, f"""v_cmp_gt_u32 vcc, v{VTH}, v{VCW}
                v_mov_b32 v5, {DEC}
                s_and_b32 s{sT}, s{sST}, 15
                s_lshr_b32 s{sT+1}, s{sST}, 30
                s_lshl_b32 s{sT+1}, s{sT+1}, 4
                s_or_b32 s{sT}, s{sT}, s{sT+1}
                s_cmp_ge_u32 s{sT}, {OPT.get('pzt', 0)}
                s_cselect_b32 s{sT}, 1, 0
                s_cmp_eq_u64 vcc, 0
                s_cselect_b32 s{sT}, s{sT}, 0
                v_mov_b32 v4, s{sT}
                ds_write_b32 v5, v4
                s_waitcnt lgkmcnt(0)""")]
        if k == 9 and OPT.get('pz'): b(f"L_at1{sfx}:")
        if k == 15:
            if OPT.get('pz'): ex += [(NS - 4, f"s_add_u32 s{sCNT}, s{sCNT}, 1"), (NS - 2, f"s_cmp_ge_u32 s{sCNT}, s{sPW}")]
            else: ex += [(NS - 6, f"s_add_u32 s{sCNT}, s{sCNT}, 1"), (NS - 4, f"s_add_u32 s{sT}, s{sCNT}, s{sHEAD}"), (NS - 2, f"s_cmp_lt_u32 s{sT}, 3")]
        attn_stage(b, k, nq, ex)
    if OPT.get('pz'): b(f"s_cbranch_scc1 L_pchk{sfx}\nL_pret{sfx}:\ns_add_u32 s{sT}, s{sCNT}, s{sHEAD}\ns_cmp_lt_u32 s{sT}, 3")
    if OPT.get('midgap'):
        b(f"s_cselect_b32 s{sT+1}, 1, 0\ns_lshl_b32 s{sT}, s{sHEAD}, 4\ns_add_u32 s{sT}, s{sT}, s{sCNT}\ns_cmp_eq_u32 s{sT}, {OPT.get('midat', 1)}\ns_cbranch_scc0 L_ng{sfx}")
        for i_ in range(OPT['midgap']): b("s_sleep 16")
        b(f"L_ng{sfx}:\ns_cmp_eq_u32 s{sT+1}, 1")
    b(f"s_cbranch_scc1 L_at{sfx}")
    b("LOOPEND at")
    b(f"L_atx{sfx}:")
    b(f"s_cmp_lg_u32 s{sHEAD}, 0\ns_cbranch_scc1 L_fin{sfx}")

    def lsum(qs):
        t = B()
        if not LM: xlane_reduce_multi(t, [LS + q for q in qs], [T0 + 4 + q for q in qs], "v_add_f32")
        for q in qs:
            src = LA + 4 * q if LM else LS + q
            t(f"v_cmp_ngt_f32 vcc, {LTHR}, v{src}")
            t(f"v_rcp_f32 v{LS+q}, v{src}")
            t(f"s_or_b32 s{sFLAG}, s{sFLAG}, vcc_lo\ns_or_b32 s{sFLAG}, s{sFLAG}, vcc_hi")
        return t.L
    cnt = [0]
    def onorm(q, pk, flag, inplace=False, so=None):
        out = []
        for sp in range(4):
            d = P_ + 4 * (cnt[0] % 2); cnt[0] += 1
            if inplace: d = O_ + 32 * q + 8 * sp
            rs = [O_ + 32 * q + 8 * sp + 2 * i_ for i_ in range(4)]
            for r in rs:
                if pk and OPT.get('pk', 1): out.append(f"v_pk_mul_f32 v[{r}:{r+1}], v[{r}:{r+1}], v[{LS+q-(q%2)}:{LS+q-(q%2)+1}] op_sel:[0,{q%2}] op_sel_hi:[1,{q%2}]")
                else: out += [f"v_mul_f32 v{r}, v{r}, v{LS+q}", f"v_mul_f32 v{r+1}, v{r+1}, v{LS+q}"]
            for i_, r in enumerate(rs): out.append(f"v_cvt_pk_bf16_f32 v{d+i_}, v{r}, v{r+1}")
            if flag is None:
                for i_ in range(4): out.append(f"v_accvgpr_write_b32 a{AST+16*q+4*sp+i_}, v{d+i_}")
                continue
            if so:
                out[-1] += f"\ns_add_u32 s{sT+1}, s{so}, {sp*122880}\nbuffer_store_dwordx4 {vr(d,4)}, v{VO}, s[{SO}:{SO+3}], s{sT+1} offen offset:{1024*q}{flag}"
                continue
            out.append(f"s_add_u32 s{sT}, s{sOO}, {sp*122880}")
            out.append(f"buffer_store_dwordx4 {vr(d,4)}, v{VO}, s[{SO}:{SO+3}], s{sT} offen offset:{1024*q}{flag}")
        return out
    def drain(st, ld=None, every=1):
        slots = []; gaps = [[] for _ in range(18)]
        for q in (2, 3):
            for T in range(8): slots.append(pv(q, T) if q < nq else None)
            slots.append(lsm(q) if (q < nq and LM) else None)
        rem = sorted(sm_items(nq, NS, 2 * NS), key=lambda t: t[0])
        b.ext([sm_text(*k_) for g, k_ in rem if k_[1] == 2 and k_[0] != 'add'])
        crit = sorted([k_ for g, k_ in rem if k_[1] == 3 and k_[0] != 'add'], key=lambda k_: (k_[2], k_[0] == 'cvt'))
        g = 0
        for k_ in crit:
            if k_[0] == 'exp' and gaps[min(g, 6)]: g += 1
            gaps[min(g, 6)].append(sm_text(*k_))
            if k_[0] == 'exp' or len(gaps[min(g, 6)]) == 2: g += 1
        late = [sm_text(*k_) for g_, k_ in rem if k_[0] == 'add']
        for i_, x in enumerate(late): gaps[min(9 + i_ // 2, 16) if nq == 4 else 0].append(x)
        for g in range(18):
            if slots[g] is None: continue
            room = 2 - sum(2 if 'exp' in x else 1 for x in gaps[g])
            while room > 0 and st: gaps[g].append(st.pop(0)); room -= 1
        for i_, s_ in enumerate(slots):
            if s_: b(s_)
            if s_ and ld and (i_ % every == 0 or nq == 3):
                b(ld.pop(0))
                while ld and ld[0].startswith("s_"): b(ld.pop(0))
            b.ext(gaps[i_])
    hi = list(range(2, nq))
    movs = [f"v_accvgpr_mov_b32 a{AQ(q)+i_}, a{AQ2(q)+i_}" for q in range(nq) for i_ in range(16)]
    f0 = None if OPT.get('defer') else K2F[OPT.get('of0', 2)] + ' ; tag=WT'
    if OPT.get('wtp') == 1 and nq == 3: b("buffer_wbl2 sc1 ; tag=WT")
    st = lsum([0, 1]) + onorm(0, False, f0)
    SW2_ = OPT.get('sw2', 0)
    if SW2_:
        ld = []
        D_ = OPT.get('dist', 5 if OPT.get('fsa') else 6)
        if OPT.get('pair'):
            b(f"s_add_u32 s{sT+1}, s{sKV}, 8192")
            if OPT.get('fsa'): ld = v_dma(36) + v_dma(37, f"s{sT+1}") + adv2(sT + 1) + [f"s_add_u32 s{sT+1}, s{sKV}, 8192"] + k_dma(38) + k_dma(39, f"s{sT+1}")
            else: ld = k_dma(38) + k_dma(39, f"s{sT+1}") + v_dma(38) + v_dma(39, f"s{sT+1}") + adv2(sT + 1)
        else:
            for t in (32 + D_, 33 + D_): ld += k_dma(t) + v_dma(t) + kv_adv()
        b(ld.pop(0))
        ld2 = []
        for x in ld: ld2 += [x] if x.startswith('s_') else [x, 'v_nop']
        ld2 = [x for x in ld]
        drain(st, ld2, 2)
    else: drain(st)
    stamp(b, 4)
    b.ext(zipper(st, lsum(hi), 2, 1))
    b.ext(movs)
    st = onorm(1, False, f0)
    weave(pre_mfma(), st, 3 if nq == 4 else 4)
    b.ext(st)
    rest = []; late_ = []
    for q in hi:
        if SW2_ >= 2: late_ += onorm(q, False, f0, inplace=True, so=sOP)
        else: rest += onorm(q, True, f0)
    b.ext(zipper(rest, pre_max(), 2, 1))
    b.ext(vote_write())
    b(f"s_mov_b32 s{sOP}, s{sOO}\ns_add_u32 s{sOO}, s{sOO}, {4*122880}\ns_mov_b32 s{sHEAD}, 1")
    if OPT.get('emub'):
        b(f"s_and_b32 s{sT}, s97, 3\ns_cmp_eq_u32 s{sT}, s{sCNT}" if False else "")
        b(f"s_mov_b32 s{sT}, 0\nL_duma{sfx}:")
        for i_ in range(64):
            if (i_ // 2) % 4 >= nq: continue
            b(f"{MF} a[{192+4*(i_//2%16)}:{195+4*(i_//2%16)}], a[{4*(i_%8)}:{4*(i_%8)+3}], a[{32+4*(i_%7)}:{35+4*(i_%7)}], a[{192+4*(i_//2%16)}:{195+4*(i_//2%16)}]")
            if i_ % 2 == 0: b(f"ds_read_b64_tr_b16 v[4:5], v{VA + i_ % 8} offset:{(i_ % 16) * 4096}")
        b(f"s_waitcnt lgkmcnt(0)\ns_barrier\ns_add_u32 s{sT}, s{sT}, 1\ns_cmp_lt_u32 s{sT}, 8\ns_cbranch_scc1 L_duma{sfx}")
    if OPT.get('pz'):
        b(f"""s_and_b32 s{sT}, s97, 7
        s_lshl_b32 s{sT}, s{sT}, 2
        s_lshr_b32 s{sPW}, {OPT.get('pzc', 0x10210210):#x}, s{sT}
        s_and_b32 s{sPW}, s{sPW}, 15
        s_or_b32 s{sT}, s{sIDLE}, s{sSAFE}
        s_cselect_b32 s{sPW}, 0, s{sPW}
        s_cmp_eq_u32 s{sPW}, 0
        s_cselect_b32 s{sPW}, 99, s{sPW}""")
    head_start(1)
    dst = [(q, sp) for q in range(nq) for sp in range(4)] if OPT.get('defer') else []
    for k in range(32, 40):
        ex = []
        for g in (24, 25):
            if dst:
                q, sp = dst.pop(0)
                ex += [(g, f"s_add_u32 s{sT+1}, s{sOP}, {sp*122880}"),
                       (g, f"buffer_store_dwordx4 {ar(AST+16*q+4*sp,4)}, v{VO}, s[{SO}:{SO+3}], s{sT+1} offen offset:{1024*q} sc1 ; tag=WT")]
        if k == 39 and nq == 3 and OPT.get('pz'): ex.append((59, "s_branch L_sig\nL_nosig:"))
        attn_stage(b, k, nq, ex, fill=late_ if k == 32 else None)
    b(f"s_branch L_atin{sfx}")
    b("REPLAY at 32 2")
    b(f"L_fin{sfx}:")
    f1 = K2F[OPT.get('of', 0)]
    early = p2_w(0) + p2_o(0) + p2_adv(0) + p2_w(1) + p2_o(1) + p2_adv(1)
    if OPT.get('pre8'): early += (p2_w(2) + p2_o(2))[:8]
    for k in range(56, 64):
        ex = []
        if k == 56: ex = [(6, f"buffer_load_dword v{VCW}, v{VPE}, s[{SCN}:{SCN+3}], 0 offen sc1 ; tag=CW")]
        if k == 59: ex = [(NS - 3, f"WAITV ; cover=CW\nv_cmp_gt_u32 vcc, v{VTH}, v{VCW}\ns_cbranch_vccnz L_espin{sfx}\nL_eok{sfx}:" + (f"\ns_cmp_eq_u32 s{sPZ}, 0\ns_cselect_b64 vcc, -1, 0" if OPT.get('pz') else ""))]
        if k == 57 and OPT.get('pz'): b(f"L_t57{sfx}:")
        if k >= 60:
            for g in ((3, 7, 11, 17, 23, 33, 38, 55) if OPT.get('pre8') else (3, 7, 11, 17, 23, 45 if LM else 44)):
                if OPT.get('pz'):
                    t_ = [early.pop(0) + " condp"]
                    while early and early[0].startswith("s_"): t_.append(early.pop(0))
                    ex.append((g, f"s_cbranch_vccz L_sk{k}_{g}{sfx}\n" + "\n".join(t_) + f"\nL_sk{k}_{g}{sfx}:"))
                    continue
                ex.append((g, early.pop(0)))
                while early and early[0].startswith("s_"): ex.append((g + 1, early.pop(0)))
        attn_stage(b, k, nq, ex)
    assert not early
    p2 = []
    for s_ in (2, 3): p2 += p2_w(s_) + p2_o(s_) + p2_adv(s_)
    if OPT.get('pre8'): p2 = p2[8:]
    st = lsum([0, 1]) + onorm(0, False, f1)
    drain(st, p2)
    stamp(b, 5)
    body = st + zipper(onorm(1, True, f1), lsum(hi), 2, 1)
    for q in hi: body += onorm(q, True, f1)
    body = [x + " ; tag=OS" if x.startswith("buffer_store") else x for x in body]
    nld = sum(1 for x in p2 if x.startswith("buffer_"))
    per = max(1, len(body) // (nld + 2))
    seq = []
    while body or p2:
        if p2:
            seq.append(p2.pop(0))
            while p2 and p2[0].startswith("s_"): seq.append(p2.pop(0))
        for _ in range(per):
            if body: seq.append(body.pop(0))
    outst = 48 - nld
    for x in seq:
        if x.startswith("buffer_"):
            if outst >= 62: b("s_waitcnt vmcnt(52)"); outst = 52
            outst += 1
        b(x)
    b.ext(vote_write())
    stamp(b)
    if OPT.get('pz'): b(f"s_cmp_eq_u32 s{sPZ}, 1\ns_cbranch_scc1 L_p2p{sfx}\nALTFROM p")
    b(f"L_p2s{sfx}:")
    for s_ in range(4): p2_step(b, s_, s_ == 0, True, f"WAITV ; cover=P{s_} cap=51")
    b("WAITV lgkmcnt(0) ; cover=OS")
    b("s_branch L_vote")
    b(f"""L_espin{sfx}:
    s_mov_b32 s{sLATE}, 1
    s_mov_b32 s{SO2+2}, 0
    s_mov_b32 s{SW2+2}, 0
    s_branch L_eok{sfx}""")
    if nq == 3:
        b(f"""L_sig:
        v_mov_b32 v4, {131072+7168}
        ds_read_b128 v[4:7], v4
        s_waitcnt lgkmcnt(0)
        v_or_b32 v4, v4, v5
        v_or3_b32 v4, v4, v6, v7
        v_readfirstlane_b32 s{sT}, v4
        s_mov_b64 exec, 1
        s_cmp_lg_u32 s{sSAFE}, 0
        s_cselect_b32 s{sT}, 0, s{sT}
        s_cbranch_scc1 L_sig1
        buffer_atomic_add v{VONE}, off, s[{SCN}:{SCN+3}], s{sCW} sc1
        L_sig1:
        s_or_b32 s{sT}, s{sT}, s{sSIG}
        s_cbranch_scc1 L_sig2
        s_add_u32 s{sT}, s{sCO}, 16384
        s_mov_b32 s{sSIG}, 1
        buffer_atomic_add v{VONE}, off, s[{SCN}:{SCN+3}], s{sT} sc1
        L_sig2:
        s_mov_b64 exec, -1
        s_branch L_nosig""")
        b(f"""L_hspin:
        s_mov_b32 s{sCNT}, 0
        L_hsp:
        s_sleep 8
        buffer_load_dword v{VHS}, off, s[{SDB}:{SDB+3}], 0 sc1
        s_waitcnt vmcnt(0)
        v_readfirstlane_b32 s{sT}, v{VHS}
        s_add_u32 s{sCNT}, s{sCNT}, 1
        s_lshr_b32 s{sT+1}, s{sCNT}, 17
        s_or_b32 s{sT}, s{sT}, s{sT+1}
        s_cmp_eq_u32 s{sT}, 0
        s_cbranch_scc1 L_hsp
        s_branch L_hsok""")
    for uid in QSPINS:
        b(f"""L_fs{uid}:
        ds_read_b128 {vr(QF,4)}, v{QFB}
        s_waitcnt lgkmcnt(0)
        v_min3_u32 v{QF}, v{QF}, v{QF+1}, v{QF+2}
        v_min_u32 v{QF}, v{QF}, v{QF+3}
        v_cmp_gt_u32 vcc, s{sFQ}, v{QF}
        s_cbranch_vccnz L_fs{uid}
        s_branch L_fr{uid}""")
    QSPINS.clear()
    for uid in SPINS:
        b(f"""L_fs{uid}:
        ds_read_b128 {vr(FQ,4)}, v{VFB}
        s_waitcnt lgkmcnt(0)
        v_min3_u32 v{FQ}, v{FQ}, v{FQ+1}, v{FQ+2}
        v_min_u32 v{FQ}, v{FQ}, v{FQ+3}
        v_cmp_gt_u32 vcc, s{sFV}, v{FQ}
        s_cbranch_vccnz L_fs{uid}
        s_branch L_fr{uid}""")
    SPINS.clear()
    if OPT.get('pz'):
        b(f"""L_pchk{sfx}:
        v_mov_b32 v5, {DEC}
        ds_read_b32 v4, v5
        s_waitcnt lgkmcnt(0)
        v_readfirstlane_b32 s{sT}, v4
        s_cmp_eq_u32 s{sT}, 0
        s_cbranch_scc1 L_pret{sfx}
        s_mov_b32 s{sPW}, 99
        s_mov_b32 s{sPZ}, 1""")
        w_, o_, a_ = pz_loads(0, 0)
        ld = w_ + o_ + a_
        drain([], ld)
        b.ext(ld)
        w_, o_, a_ = pz_loads(1, 1)
        b.ext(w_ + o_ + a_)
        b("s_branch L_pz")
        b(f"L_pzr{sfx}:")
        b.ext([x.split(';')[0] for x in k_reads(0, 0)])
        b("s_waitcnt lgkmcnt(0)")
        t_ = B(); attn_stage(t_, 8, nq, resume=True); b.ext([x.split(';')[0] for x in t_.L])
        b(f"s_cmp_eq_u32 s{sCNT}, 1\ns_cbranch_scc1 L_at1{sfx}\ns_branch L_t57{sfx}")
        b(f"ALTBEGIN p\nL_p2p{sfx}:")
        b(f"s_add_u32 s{sT}, s{sXB}, 131072\nv_add_u32 v5, s{sT}, v{VLN}")
        for i_ in range(4): b(f"ds_read_b128 {vr(240+4*i_,4)}, v5 offset:{1024*i_}")
        l0 = p2_w(0) + p2_o(0) + p2_adv(0); l1 = p2_w(1) + p2_o(1) + p2_adv(1)
        for i_ in range(128):
            b(f"v_accvgpr_read_b32 v{112+i_}, a{128+i_}")
            if i_ >= 64 and i_ % 4 == 3 and l0:
                b(l0.pop(0))
                while l0 and l0[0].startswith("s_"): b(l0.pop(0))
        b("WAITV ; cover=P2 cap=40")
        b.ext(l1)
        b("s_waitcnt lgkmcnt(0)")
        for s_ in (2, 3): p2_step(b, s_, False, True, f"WAITV ; cover=P{s_} cap=51")
        b("WAITV lgkmcnt(0) ; cover=OS")
        b("s_branch L_vote\nALTEND p")
    b(f"L_maxpass{sfx}:")
    for q in range(nq): b(f"v_mov_b32 v{T0+8+q}, 0xff800000")
    for s2 in range(4): b(f"v_add_u32 v{T0+12+s2}, 147456, v{KA+s2}")
    b(f"s_lshl_b32 s{sT}, s{sHEAD}, 18\ns_mov_b32 s{sCNT}, 0")
    b(f"L_mp{sfx}:")
    b(f"s_barrier\ns_add_u32 m0, s{sKB}, 147456")
    b(dma(DK0, SK, f"s{sT}", 0, "", "MP")); b(dma(DK1, SK, f"s{sT}", 1024, "", "MP"))
    b("s_waitcnt vmcnt(0)\ns_barrier")
    for kt in range(2):
        for s in range(4):
            b(f"ds_read_b128 {ar(ASP+4*(4*kt+s),4)}, v{T0+12+s} offset:{kt*4096}")
    b("s_waitcnt lgkmcnt(0)")
    for q in range(nq):
        for kt in range(2):
            for s in range(4):
                d = vr(S_ + 8 * q + 4 * kt, 4)
                b(f"{MF} {d}, {ar(ASP+4*(4*kt+s),4)}, {ar(AQ(q)+4*s,4)}, {d if s else '0'}")
    for q in range(nq):
        for e in range(0, 8, 2): b(f"v_max3_f32 v{T0+8+q}, v{T0+8+q}, v{S_+8*q+e}, v{S_+8*q+e+1}")
    b(f"s_add_u32 s{sT}, s{sT}, 8192\ns_add_u32 s{sCNT}, s{sCNT}, 1\ns_cmp_lt_u32 s{sCNT}, 32\ns_cbranch_scc1 L_mp{sfx}")
    b("s_barrier")
    xlane_reduce_multi(b, [T0 + 8 + q for q in range(nq)], [T0 + q for q in range(nq)], "v_max_f32")
    for q in range(nq):
        for r in range(4): b(f"v_sub_f32 v{CI+4*q+r}, 0, v{T0+8+q}")
    b(f"s_cmp_eq_u32 s{sHEAD}, 0\ns_cbranch_scc1 L_maxdone0{sfx}\ns_branch L_maxdone1{sfx}")

FA = [144, 192, 0, 96]
def p2_reg(slot, i):
    if OPT.get('pre8'):
        if slot == 2: return 128 + 4 * i if i < 4 else (240 + 4 * (i - 4) if i < 8 else 4 * (i - 8))
        if slot == 3: return 16 + 4 * i
    if slot == 3: return 48 + 4 * i if i < 4 else 96 + 4 * (i - 4)
    return FA[slot] + 4 * i
def pz_reg(slot, i):
    return ar((0, 64)[slot] + 4 * i, 4) if i < 8 else vr((32, 48)[slot] + 4 * (i - 8), 4)
def pz_acc(t): return ar(128 + 4 * t, 4) if t < 32 else vr(16 + 4 * (t - 32), 4)
def pz_loads(slot, L):
    f = K2F[OPT.get('p2f', 2)]
    w = [f"buffer_load_dwordx4 {pz_reg(slot, i)}, v{VPW + i//3}, s[{SW2}:{SW2+3}], s{sW2} offen offset:{1024*(i%3)}{f}" for i in range(6)]
    o = [f"buffer_load_dwordx4 {pz_reg(slot, 6+i)}, v{VPO + i//3}, s[{SO2}:{SO2+3}], s{sO2} offen offset:{1024*(i%3)}{f}" for i in range(6)]
    return w, o, p2_adv(L % 4)
VPW = 2; VPO = 8
def p2_w(slot): return [f"buffer_load_dwordx4 {ar(p2_reg(slot, i),4)}, v{VPW + i//3}, s[{SW2}:{SW2+3}], s{sW2} offen offset:{1024*(i%3)}{K2F[OPT.get('p2wf', OPT.get('p2f', 2))]} ; tag=P{slot}" for i in range(6)]
def p2_o(slot): return [f"buffer_load_dwordx4 {ar(p2_reg(slot, 6+i),4)}, v{VPO + i//3}, s[{SO2}:{SO2+3}], s{sO2} offen offset:{1024*(i%3)}{K2F[OPT.get('p2f', 2)]} ; tag=P{slot}" for i in range(6)]
def p2_adv(slot):
    m = 5 if slot == 3 else 1
    out = [f"s_add_u32 s{sO2}, s{sO2}, {m*122880}", f"s_add_u32 s{sW2}, s{sW2}, {m*36864}"]
    if slot == 3 and OPT.get('krot'):
        out += ["s_add_u32 s93, s93, 1", "s_and_b32 s93, s93, 3", "s_cselect_b32 s94, 0, 32", "s_mul_i32 s95, s94, 122880",
                f"s_sub_u32 s{sO2}, s{sO2}, s95", "s_mul_i32 s95, s94, 36864", f"s_sub_u32 s{sW2}, s{sW2}, s95"]
    return out
def p2_init():
    if OPT.get('s2t'): return f"s_mul_i32 s{sO2}, s92, {32*122880}\ns_mul_i32 s{sW2}, s92, {32*36864}"
    if not OPT.get('krot'): return f"s_mul_i32 s{sO2}, s{sWAVE}, {32*122880}\ns_mul_i32 s{sW2}, s{sWAVE}, {32*36864}"
    return f"s_lshl_b32 s93, s{sWAVE}, 2\ns_add_u32 s93, s93, s92\ns_mul_i32 s{sO2}, s93, {8*122880}\ns_mul_i32 s{sW2}, s93, {8*36864}\ns_mov_b32 s93, s92"

def vote_write():
    return [f"v_mov_b32 v4, s{sFLAG}", f"s_lshl_b32 s{sT}, s{sWAVE}, 2", f"s_add_u32 s{sT}, s{sT}, {131072+7168}",
            f"v_mov_b32 v5, s{sT}", "ds_write_b32 v5, v4"]

P2ACC = 112
def p2_acc(q, n): return P2ACC + 4 * (6 * q + n)
def p2_step(b, slot, first, prefetch, wait, order=None, extra=None):
    b(wait)
    order = order or [(q, n) for q in range(6) for n in range(6)]
    slots = []; gaps = [[] for _ in range(36)]
    for q, n in order:
        a_ = vr(p2_acc(q, n), 4)
        slots.append(f"{MF} {a_}, {ar(p2_reg(slot, n),4)}, {ar(p2_reg(slot, 6+q),4)}, {'0' if first else a_}")
    if prefetch:
        o_, w_ = p2_o(slot), p2_w(slot)
        for q in range(6): gaps[6 * q + 5].append(o_[q])
        for n in range(6): gaps[30 + n].append(w_[n])
        gaps[35] += p2_adv(slot)
    for g, x in (extra or []): gaps[g].append(x)
    emit_slots(b, slots, gaps)

def phase2(b):
    D = 4
    acc = p2_acc
    def step(slot, first, prefetch, N, order=None, extra=None): p2_step(b, slot, first, prefetch, f"s_waitcnt vmcnt({N})", order, extra)
    b(f"""L_vote:
    s_cmp_eq_u32 s{sLATE}, 2
    s_cbranch_scc1 L_go
    v_mov_b32 v5, {131072+7168}
    s_barrier
    ds_read_b128 v[16:19], v5
    s_waitcnt lgkmcnt(0)
    v_or_b32 v16, v16, v17
    v_or3_b32 v16, v16, v18, v19
    v_readfirstlane_b32 s{sT}, v16
    s_cmp_lg_u32 s{sSAFE}, 0
    s_cselect_b32 s{sT}, 0, s{sT}
    s_cmp_lg_u32 s{sT}, 0
    s_cbranch_scc1 L_redo
    s_cmp_eq_u32 s{sWAVE}, 3
    s_cbranch_scc0 L_nosig2
    s_mov_b64 exec, 1
    buffer_atomic_add v{VONE}, off, s[{SCN}:{SCN+3}], s{sCO} sc1
    s_mov_b64 exec, -1
    L_nosig2:""")
    stamp(b)
    b(f"""s_cmp_eq_u32 s{sIDLE}, 1
    s_cbranch_scc1 L_fini
    s_cmp_eq_u32 s{sLATE}, 1
    s_cbranch_scc1 L_lateld
    L_go:
    s_xor_b32 s70, s{sWAVE}, 1
    s_mul_i32 s70, s70, 27648
    v_add_u32 v16, s70, v{VLN}
    s_xor_b32 s70, s{sWAVE}, 2
    s_mul_i32 s70, s70, 27648
    s_add_u32 s70, s70, 9216
    v_add_u32 v17, s70, v{VLN}
    s_xor_b32 s70, s{sWAVE}, 3
    s_mul_i32 s70, s70, 27648
    s_add_u32 s70, s70, 18432
    v_add_u32 v18, s70, v{VLN}
    s_mul_i32 s70, s{sWAVE}, 27648
    v_add_u32 v19, s70, v{VLN}
    v_and_b32 v20, 15, v0
    v_mul_u32_u24 v20, 112, v20
    v_bfe_u32 v21, v0, 4, 2
    v_lshl_add_u32 v20, v21, 3, v20
    v_add_u32 v20, s70, v20            ; bf16 staging write address: row*96 + g*8
    v_and_b32 v21, 63, v0
    s_mov_b32 s71, 0x2aab""")
    for r in range(5):
        b(f"""v_add_u32 v22, {64*r}, v21
        v_mul_u32_u24 v23, s71, v22
        v_lshrrev_b32 v23, 16, v23
        v_mul_u32_u24 v{42+r}, {2304 - 96}, v23
        v_lshl_add_u32 v{42+r}, v22, 4, v{42+r}
        v_add_u32 v23, v23, v22
        v_lshlrev_b32 v23, 4, v23
        v_add_u32 v{68+r}, s70, v23""")
    b(f"""v_cmp_gt_u32 vcc, 32, v21
    v_mov_b32 v22, 0x7f000000
    v_cndmask_b32 v46, v22, v46, vcc
    s_mov_b32 s88, s{sOUT}
    s_mov_b32 s89, s{sOUT+1}
    s_mov_b32 s90, {8*240*1152*2}
    s_mov_b32 s91, 0x20000
    v_lshlrev_b32 v76, 3, v{VLN}
    v_min_u32 v76, L_fini-L_tail, v76
    v_add_u32 v76, L_tail-attn_kernel, v76
    v_mov_b32 v77, s95
    v_add_co_u32 v76, vcc, s94, v76
    v_addc_co_u32 v77, vcc, 0, v77, vcc
    s_mov_b32 s36, 0
    {f"s_cmp_eq_u32 s{sPZ}, 1" if OPT.get('pz') else ""}
    {"s_cbranch_scc1 L_chk2" if OPT.get('pz') else ""}
    .p2align 3
    L_k2:""")
    for s_ in range(D):
        ex = [(0, f"buffer_load_dword v6, v{VP2}, s[{SCN}:{SCN+3}], 0 offen sc1")] if s_ == 0 else None
        if s_ == 2 and OPT.get('rewt'): ex = [(0, "global_load_dword v78, v[76:77], off")]
        step(s_, False, True, 36, extra=ex)
    b("""s_add_u32 s36, s36, 1
    s_cmp_eq_u32 s36, 2
    s_cbranch_scc1 L_chk
    L_chkd:
    s_cmp_lt_u32 s36, 6
    s_cbranch_scc1 L_k2""")
    b("L_tail:")
    for s_ in range(D - 1): step(s_, False, False, 12 * (D - 1 - s_))
    stamp(b)
    quad = lambda q, n: (q // 3) * 2 + (n // 3)
    oth = [(q, n) for d in (1, 2, 3) for q in range(6) for n in range(6) if quad(q, n) == d]
    mine = [(q, n) for q in range(3) for n in range(3)]
    wr = [(min(i_ + 5, 35), f"ds_write_b128 v{15 + quad(q, n)}, {vr(acc(q, n),4)} offset:{((q % 3) * 3 + n % 3) * 1024}") for i_, (q, n) in enumerate(oth)]
    step(D - 1, False, False, 0, order=oth + mine, extra=wr)
    if OPT.get('rstamps'): stamp(b)
    b("s_waitcnt lgkmcnt(0)\ns_barrier")
    if OPT.get('rstamps'): stamp(b)
    for t in range(9):
        for src in range(3):
            b(f"ds_read_b128 {vr(acc(*oth[3*t+src]),4)}, v19 offset:{src * 9216 + t * 1024}")
    nw = 0
    for t0 in range(0, 9, 3):
        ts = range(t0, t0 + 3)
        b(f"s_waitcnt lgkmcnt({min(15, 3 * (6 - t0) + nw)})")
        for ph in range(3):
            for t in ts:
                r0, r1, r2, m = acc(*oth[3*t]), acc(*oth[3*t+1]), acc(*oth[3*t+2]), acc(*mine[t])
                x_, y_ = ((r0, r1), (m, r2), (m, r0))[ph]
                for r in (0, 2): b(f"v_pk_add_f32 v[{x_+r}:{x_+r+1}], v[{x_+r}:{x_+r+1}], v[{y_+r}:{y_+r+1}]")
        for t in ts:
            m = acc(*mine[t])
            b(f"v_cvt_pk_bf16_f32 v{24+2*t}, v{m}, v{m+1}\nv_cvt_pk_bf16_f32 v{25+2*t}, v{m+2}, v{m+3}")
        for t in ts:
            q, n = mine[t]
            b(f"ds_write_b64 v20, v[{24+2*t}:{25+2*t}] offset:{q * 1792 + n * 32}"); nw += 1
    for r in range(5): b(f"ds_read_b128 {vr(48+4*r,4)}, v{68+r}")
    for r in range(5):
        b(f"s_waitcnt lgkmcnt({4-r})")
        b(f"buffer_store_dwordx4 {vr(48+4*r,4)}, v{42+r}, s[88:91], s{sOUTO} offen{K2F[OPT.get('outf', 0)]}")
    if OPT.get('rstamps'): stamp(b)
    b("L_fini:")
    if OPT.get('fixspan'):
        b(f"""s_waitcnt vmcnt(0)
        L_fix:
        s_memrealtime s[74:75]
        s_waitcnt lgkmcnt(0)
        s_sub_u32 s74, s74, s72
        s_cmp_lt_u32 s74, {OPT['fixspan'] * 100}
        s_cbranch_scc1 L_fix""")
    stamp_dump(b, 0, sWAVE)
    b("s_endpgm")
    if OPT.get('pz'):
        b("L_pz:")
        for j in range(10):
            sl = j % 2
            b(f"s_waitcnt vmcnt({12 if j < 9 else 0})")
            slots = []; gaps = [[] for _ in range(36)]
            for q in range(6):
                for n in range(6):
                    a_ = pz_acc(6 * q + n)
                    slots.append(f"{MF} {a_}, {pz_reg(sl, n)}, {pz_reg(sl, 6+q)}, {'0' if j == 0 else a_}")
            if j < 8:
                w_, o_, ad = pz_loads(sl, j + 2)
                for q in range(6): gaps[6 * q + 5].append(o_[q])
                for n in range(6): gaps[30 + n].append(w_[n])
                gaps[35] += ad
            emit_slots(b, slots, gaps)
        b(f"s_add_u32 s{sT}, s{sXB}, 131072\nv_add_u32 v5, s{sT}, v{VLN}\nv_mov_b32 v{VCW}, v{VTH}")
        for i_ in range(4): b(f"ds_write_b128 v5, {vr(16+4*i_,4)} offset:{1024*i_}")
        b(f"s_cmp_eq_u32 s{sWAVE}, 3\ns_cbranch_scc1 L_pzr3\ns_branch L_pzr4")
        b(f"""L_chk2:
        s_mov_b32 s36, 2
        buffer_load_dword v6, v{VP2}, s[{SCN}:{SCN+3}], 0 offen sc1
        s_waitcnt vmcnt(0)""")
    b(f"""L_chk:
    s_waitcnt vmcnt(48)
    s_{"add" if OPT.get('krot') else "sub"}_u32 s{sO2}, s{sO2}, {(4 if OPT.get('krot') else 28)*122880}
    s_{"add" if OPT.get('krot') else "sub"}_u32 s{sW2}, s{sW2}, {(4 if OPT.get('krot') else 28)*36864}
    v_cmp_gt_u32 vcc, 4, v6
    s_cbranch_vccz L_chkd
    s_mov_b32 s37, 0
    L_poll:
    s_sleep 4
    buffer_load_dword v6, v{VP2}, s[{SCN}:{SCN+3}], 0 offen sc1
    s_add_u32 s37, s37, 1
    s_waitcnt vmcnt(0)
    v_cmp_gt_u32 vcc, 4, v6
    s_cbranch_vccz L_chkd
    s_cmp_lt_u32 s37, 0x20000
    s_cbranch_scc1 L_poll
    s_branch L_chkd
    L_lateld:
    s_mov_b32 s{SO2+2}, s100
    s_mov_b32 s{SW2+2}, s101
    {p2_init()}
    s_mov_b32 s{sLATE}, 2
    s_mov_b32 s37, 0
    L_esp:
    s_sleep 4
    buffer_load_dword v{VCW}, v{VPE}, s[{SCN}:{SCN+3}], 0 offen sc1
    s_add_u32 s37, s37, 1
    s_waitcnt vmcnt(0)
    v_cmp_gt_u32 vcc, v{VTH}, v{VCW}
    s_cbranch_vccz L_espd
    s_cmp_lt_u32 s37, 0x20000
    s_cbranch_scc1 L_esp
    L_espd:""")
    for s_ in range(4): b.ext(p2_w(s_) + p2_o(s_) + p2_adv(s_))
    b(f"""s_waitcnt vmcnt(0)
    s_cmp_eq_u32 s{sWAVE}, 3
    s_cbranch_scc1 L_p2s3
    s_branch L_p2s4
    L_redo:
    s_mov_b32 s{sSAFE}, 1
    s_waitcnt vmcnt(0)
    s_barrier""")
    warm_addr(b)
    prologue_a(b)
    b.ext(x_dma(0, 4)); b.ext(w_dma(0, 4))
    b("s_branch L_tramp")

def kernel1():
    b = B()
    b("attn_kernel:")
    b("s_cmp_lt_u32 s2, 256\ns_cbranch_scc1 L_work\ns_endpgm\nL_work:")
    if OPT['stamps']: b("s_mov_b32 s96, 0\nv_mov_b32 v14, 0\nv_mov_b32 v15, 0")
    stamp(b)
    if OPT.get('fixspan') and not OPT.get('fixat'): b("s_memrealtime s[72:73]\ns_waitcnt lgkmcnt(0)")
    b("s_load_dwordx16 s[48:63], s[0:1], 0\ns_load_dwordx4 s[64:67], s[0:1], 64\ns_load_dwordx2 s[100:101], s[0:1], 96\ns_load_dwordx4 s[76:79], s[0:1], 80")
    b(f"""s_mov_b32 s97, s2
    s_and_b32 s3, s2, 7
    s_lshr_b32 s2, s2, 3""")
    warm_code(b)
    b(f"""v_lshrrev_b32 v1, 6, v0
    s_bfe_u32 s68, s3, {0x10001 if OPT.get('map') else 0x10000}
    s_lshl_b32 s68, s68, 2
    s_and_b32 s69, s2, 3
    s_add_u32 s68, s68, s69        ; b
    v_readfirstlane_b32 s{sWAVE}, v1
    s_bfe_u32 s69, s3, {0x10000 if OPT.get('map') else 0x10001}
    s_lshl_b32 s69, s69, 3
    s_lshr_b32 s70, s2, 2
    s_add_u32 s69, s69, s70        ; hp
    s_lshr_b32 s3, s3, 2           ; blk
    s_lshl_b32 s{sWB}, s{sWAVE}, 12
    s_lshl_b32 s{sXB}, s{sWAVE}, 13
    s_mov_b32 s{sC}, {CSCALE}
    s_mov_b32 s{sC+1}, {CSCALE}
    s_mov_b32 s{sSAFE}, 0
    s_mov_b32 s{sFLAG}, 0""")
    prologue_a(b)
    b(f"""s_cmp_eq_u32 s3, 0
    s_waitcnt lgkmcnt(0)
    s_cselect_b64 s[48:49], s[48:49], s[58:59]
    s_cselect_b64 s[50:51], s[50:51], s[60:61]
    s_cselect_b64 s[52:53], s[52:53], s[62:63]
    s_cselect_b64 s[54:55], s[54:55], s[64:65]
    s_cselect_b64 s[56:57], s[56:57], s[66:67]""")
    if OPT.get('sstamps'): stamp(b)
    b(f"""s_mul_i32 s71, s68, 276480
    s_add_u32 s{SX}, s48, s71
    s_addc_u32 s{SX+1}, s49, 0
    s_mov_b32 s{SX+2}, 276480
    s_mov_b32 s{SX+3}, 0x20000
    s_lshl_b32 s71, s69, 9
    s_add_u32 s{SW}, s54, s71
    s_addc_u32 s{SW+1}, s55, 0
    s_sub_u32 s{SW+2}, 4718592, s71
    s_mov_b32 s{SW+3}, 0x20000""")
    b("L_srdok:")
    prologue_b(b)
    b(f"""s_cmp_eq_u32 s{sWAVE}, 3
    s_cbranch_scc1 L_begin3""")
    wave_code(b, 4, "4")
    b("L_tramp:\ns_branch L_late")
    b(".p2align 6")
    wave_code(b, 3, "3")
    b("L_phase2:")
    phase2(b)
    b("L_end1:\ns_endpgm\nL_codeend:")
    return b.L

def resolve_waits(L):
    out = []
    for i, x in enumerate(L):
        if x.startswith("WAITL"):
            tag = x.split()[1]
            n, T = tag[1:].split('.'); T = int(T)
            dst = set(range(AW + 8 * (T % 4), AW + 8 * (T % 4) + 8))
            cnt = 0; found = False
            for y in reversed(out):
                if y.startswith(("s_waitcnt", "WAITV")) and "lgkmcnt(0)" in y:
                    found = True; cnt = None; break
                if y.startswith("ds_"):
                    I = Ins(y)
                    if any(k == 'a' and r in dst for k, r in I.wr) or (T == 0 and 'need=X' in y):
                        found = True; break
                    cnt += 1
            assert found, x
            if cnt is not None:
                cnt = min(cnt, 15)
                out.append(f"s_waitcnt lgkmcnt({cnt})")
        else: out.append(x)
    return out

def expand_trace(L):
    def shift(line, name, it, step):
        if it == 0: return line
        def rep(m):
            k, n = m.group(1), int(m.group(2))
            if name == 'qp':
                if k == 'W': return f"W{n + step*it}"
                if k == 'X': return f"X{n + step*it//2}"
                return m.group(0)
            if k == 'KV': return f"KV{n + step*it}"
            return m.group(0)
        if ';' not in line: return line
        a, c = line.split(';', 1)
        return a + ';' + re.sub(r'\b(KV|W|X)(\d+)\b', rep, c)
    bodies = {}
    def go(i, stop):
        res = []
        while i < len(L):
            x = L[i]
            if x.startswith("LOOPBEGIN"):
                _, name, cnt, step = x.split(); cnt = int(cnt); step = int(step)
                body, j = go(i + 1, name)
                bodies[name] = (body, cnt, step)
                for it in range(cnt):
                    for y in body:
                        if y == f"LOOPEXIT {name}":
                            if it == cnt - 1: break
                            continue
                        res.append(shift(y, name, it, step))
                i = j + 1; continue
            if x.startswith("REPLAY"):
                _, name, off, cnt = x.split(); cnt = int(cnt); body, _, step = bodies[name]
                for it in range(cnt):
                    for y in body: res.append(shift(shift(y, name, it, step), name, 1, int(off)))
                i += 1; continue
            if x.startswith("LOOPEND") and x.split()[1] == stop: return res, i
            res.append(x); i += 1
        return res, i
    return go(0, None)[0]

STOPS = ("L_maxpass", "L_hspin", "L_espin")
def traces(L):
    tr = expand_trace(L)
    main = []
    for x in tr:
        if x.startswith(STOPS): break
        main.append(x)
    alt = None
    if "ALTFROM p" in main:
        i = tr.index("ALTBEGIN p"); j = tr.index("ALTEND p")
        alt = [x for x in main[:main.index("ALTFROM p")] if 'condp' not in x] + tr[i + 1:j]
    drop = lambda t: [x for x in t if not x.startswith("ALT")]
    return drop(main), drop([x for x in main if 'condp' not in x]), alt

def resolve_vm(L):
    idx = [f"{x} ;#{i}" if x.startswith("WAITV") else x for i, x in enumerate(L)]
    best = {}
    main, lean, alt = traces(idx)
    for which, tr in (("main", main), ("lean", lean), ("alt", alt or [])):
        q = []
        for x in tr:
            c = x.split(';', 1)[1] if ';' in x else ''
            if x.startswith(("buffer_", "global_")):
                if 'cond' in c and 'condp' not in c: continue
                m = re.search(r'tag=(\w+)', c); q.append(m.group(1) if m else 'other')
            elif x.startswith("WAITV"):
                tags = set(re.search(r'cover=([\w,]*)', c).group(1).split(','))
                if which == "lean" and any(t[:1] == 'P' or t == 'OS' for t in tags): continue
                i = int(x.rsplit('#', 1)[1])
                n = 0
                for t in reversed(q):
                    if t in tags: break
                    n += 1
                else: n = 63
                m = re.search(r'cap=(\d+)', c)
                best[i] = min(best.get(i, 63), n, int(m.group(1)) if m else 63)
    out = []
    for i, x in enumerate(L):
        if x.startswith("WAITV"):
            a, c = x.split(';', 1) if ';' in x else (x, '')
            out.append(f"s_waitcnt vmcnt({best[i]}) {a[5:].strip()} ;{c}")
        else: out.append(x)
    return out

def check_protocol(L, label):
    q = []; done = set(); issued = {}; pub = set(); errs = 0
    for x in L:
        c = x.split(';', 1)[1] if ';' in x else ''
        if x.startswith("buffer_") or x.startswith("global_"):
            if 'cond' in c and 'condp' not in c: continue
            m = re.search(r'tag=(\w+)', c); q.append(m.group(1) if m else 'other')
        elif x.startswith("s_waitcnt"):
            m = re.search(r'vmcnt\((\d+)\)', x)
            if m:
                n = int(m.group(1))
                while len(q) > n: done.add(q.pop(0))
            m = re.search(r'needtag=(\w+)', c)
            if m and m.group(1) in q: print(label, "ERR needtag", x); errs += 1
        elif x.startswith("s_barrier") or 'SYNC' in c:
            m = re.search(r'pub=([\w,]*)', c)
            if m:
                for t in m.group(1).split(','):
                    if not t: continue
                    if t in q or (t not in done and not (label[:2] == 'w3' and t[0] in 'XW')): print(label, "ERR publish not landed", t, x); errs += 1
                    pub.add(t)
        elif x.startswith("ds_read"):
            m = re.search(r'need=(\w+)', c)
            if m and m.group(1) not in pub : print(label, "ERR read unpublished", x); errs += 1
        assert len(q) <= 63, ("vmcnt overflow", x)
    return errs

def burn(L):
    out = []; on = False; c = 0; k = 0
    for x in L:
        if x == 'BURNON': on = True; c = 0; continue
        if x == 'BURNOFF': on = False; continue
        out.append(x)
        if on and OPT.get('burn'):
            if x.startswith('v_mfma'): c = 0
            elif x.startswith('v_'):
                c += 1
                if c >= OPT['burn']:
                    c = 0; k += 1
                    out.append(f"{MF} v[4:7], a[{32+4*(k%8)}:{35+4*(k%8)}], a[{96+4*(k%7)}:{99+4*(k%7)}], v[4:7]")
    return out

def check_lgkm(L, label):
    dq = []; vq = []; errs = 0; cache = {}
    for x in L:
        t = x.split(';')[0].strip()
        I = cache.get(t)
        if I is None: I = cache[t] = Ins(t)
        if I.kind == 'label': continue
        if I.op == 's_waitcnt':
            m = re.search(r'lgkmcnt\((\d+)\)', t)
            if m:
                while len(dq) > int(m.group(1)): dq.pop(0)
            m = re.search(r'vmcnt\((\d+)\)', t)
            if m:
                while len(vq) > int(m.group(1)): vq.pop(0)
            continue
        use = I.rd | I.srcc | I.wr
        for w in dq + vq:
            if w & use: print(label, "ERR uncovered", x); errs += 1; break
        if I.kind in ('dsr', 'dsw'): dq.append(I.wr)
        if I.kind in ('vload', 'vstore', 'dma') and not ('cond' in x and 'condp' not in x): vq.append(I.wr)
    return errs

def finish(L):
    L = burn(L)
    L = resolve_waits(L)
    return L

def strip_markers(L):
    return [x for x in L if not x.startswith(("LOOPBEGIN", "LOOPEND", "LOOPEXIT", "REPLAY", "ALT"))]

DESC = """.section .rodata,"a"
.p2align 6
.amdhsa_kernel {name}
  .amdhsa_next_free_vgpr {vgpr}
  .amdhsa_next_free_sgpr 102
  .amdhsa_accum_offset 256
  .amdhsa_group_segment_fixed_size 0
  .amdhsa_kernarg_size 104
  .amdhsa_user_sgpr_count 2
  .amdhsa_user_sgpr_kernarg_segment_ptr 1
  .amdhsa_system_sgpr_workgroup_id_x 1
  .amdhsa_float_denorm_mode_32 3
.end_amdhsa_kernel
"""

def build(**kw):
    OPT.update(kw)
    k1 = finish(kernel1())
    i4 = k1.index("L_begin4:"); i3 = k1.index("L_begin3:"); iv = k1.index("L_phase2:")
    ip = k1.index("L_srdok:"); pre = k1[ip:i4]
    k1 = k1[:i4] + resolve_vm(pre + k1[i4:i3])[len(pre):] + resolve_vm(pre + k1[i3:iv])[len(pre):] + k1[iv:]
    e = 0
    for lab, part in (("w4", pre + k1[i4:i3]), ("w3", pre + k1[i3:])):
        main, lean, alt = traces(part)
        e += check_protocol(main, lab) + check_lgkm(main, lab)
        if alt: e += check_protocol(alt, lab + "alt") + check_lgkm(alt, lab + "alt")
    assert e == 0 or OPT.get('nocheck')
    k1 = strip_markers(k1)
    k1, n1, p1 = fix_hazards(k1)
    for p in p1: print("BRANCH HAZARD", p)
    assert not p1
    hdr = open("ref.txt").read().split("; Override")[0]
    KN = NAME + "_kernel"
    k1 = [x.replace("attn_kernel", KN) for x in k1]
    out = hdr
    out += """; Written with my own schedule generator (no compiler output).  One launch, 256 workgroups (one per CU), 4 waves each:
;  1. q-projection of two heads (x and Wq staged by LDS-DMA, 16x16x32 bf16 MFMA), scale log2(e)/sqrt(128) applied in fp32;
;  2. attention for the two heads, K/V streamed through an 8-tile LDS ring.  The softmax offset is the row maximum over the first
;     the workgroup starts over and uses the true row maximum over all 1024 keys (L_maxpass*).
;     hand it to the output projection, which the same workgroups run as 96x96 tiles (even heads first, odd heads after their hand-off).
; Waves 0-2 own four 16-query tiles (labels *4), wave 3 owns three (labels *3).
"""
    out += ("; @launch kernel=%s grid=(256,1,1) block=(256,1,1) lds=163840\n" % KN) if OPT.get('list') else "; @launch grid=(256,1,1) block=(256,1,1) lds=163840\n"
    out += '.amdgcn_target "amdgcn-amd-amdhsa--gfx950"\n.text\n'
    out += ".globl %s\n.p2align 8\n.type %s,@function\n" % (KN, KN) + "\n".join(k1) + "\n"
    out += DESC.format(name=KN, vgpr=512)
    return out, n1

if __name__ == "__main__":
    kw = {}
    for a in sys.argv[2:]:
        k, v = a.split('='); kw[k] = int(v)
    s, info = build(**kw)
    open(sys.argv[1], "w").write(s)
    print("nops inserted", info, "bytes", len(s))
```

```python
import sys, re
from asmlib import fix_hazards, Ins

NAME = "concat_heads__mha_block_cached__mha_block_cached__near_ridge"
MF = "v_mfma_f32_16x16x32_bf16"
CSCALE = 0x3e0293ee
LTHR = 0x4e800000

O_BLK = 128 * 122880
WOT_OFF = 2 * O_BLK
WOT_BLK = 128 * 36864
CNT_OFF = WOT_OFF + 2 * WOT_BLK

class B:
    def __init__(self): self.L = []
    def __call__(self, s):
        for x in s.split("\n"):
            x = x.strip()
            if x: self.L.append(x)
    def ext(self, l): self.L.extend(l)

def vr(b, n): return f"v[{b}:{b+n-1}]"
def ar(b, n): return f"a[{b}:{b+n-1}]"

def emit_slots(b, slots, gaps):
    for i, s in enumerate(slots):
        if s: b(s)
        nv = [x for x in gaps[i] if not x.startswith('v_')]
        v = [x for x in gaps[i] if x.startswith('v_')]
        for x in nv + v: b(x)

S_ = 16; P_ = 48; CI = 64; LS = 80
KA = 84
VA = 88
VWA = 105
DK0 = 96; DK1 = 97; DV0 = 98; DV1 = 99
VO = 100
VWO = 101
VWX = 102
VLN = 103
VPF = 104
VPD = 105
T0 = 108
O_ = 128
XA = 16; WA = 28; DX = 20; DW = 24
WSLOT = [49152, 114688, 131072, 147456]; sKB = 69
def AQ(q): return 32 + 64 * (q // 2) + 16 * (q % 2)
def AQ2(q): return 128 + 16 * q
AK = 0; AV = 64; ASP = 64
AX = 0; AW = 64
SX = 4; SW = 8; SK = 12; SV = 16; SO = 20; SWO = 24; SWT = 28
sWAVE = 32; sWB = 33; sKV = 34; sCNT = 35; sHEAD = 36; sSAFE = 37; sFLAG = 38
sXO = 39; sXO2 = 40; sWOFF = 41; sXB = 42; sOO = 43; sC = 44
sT = 46
sH0 = 68; sWOS = 64; sWTS = 65; sSTAMP = 72; SPF = 76; sPF = 68; sWXS = 67; sROT = 80; sLIN = 81
SCN = 48; SDB = 52; SO2 = 56; sCO = 60; sCW = 61; SIN = 84; SIF = 88; sOUT = 76; VHS = 106; VCW = 107; VONE = 104
SW2 = 80; sO2 = 98; sW2 = 99; sOUTO = 66; sOP = 41; VPE = 11; VTH = 12; VP2 = 13; VWE = 10; AST = 192; sSIG = 78; sLATE = 79; sIDLE = 67; sSB = 69; VSB = 4; sRT = 68; sLN = 71; sPW = 40; sPZ = 64; sST = 65; VPA = 102; DEC = 131072 + 7168 + 64; sFV = 39; VFA = 1; VFB = 101; FQ = 80; FLAGS = 131072 + 7168 + 32

OPT = dict(nt_kv=1, nt_w=0, nt_x=0, nt_wo=0, stamps=0, warm=1, of=2, of0=2, e67=1, bal=0, pair=1, pre8=1, wts=1, sw2=2)

K2F = ['', ' nt', ' sc1', ' sc0 sc1', ' sc0', ' sc1 nt', ' sc0 sc1 nt']
def fl(k): return ["", " nt", " sc1 nt", " sc0 sc1 nt", " sc0 nt"][OPT[k]]

def dma(voff, srd, soff, off, flag, tag):
    return f"buffer_load_dwordx4 v{voff}, s[{srd}:{srd+3}], {soff} offen offset:{off}{flag} lds ; tag={tag}"

def kv_adv():
    if not OPT.get('rot'): return [f"s_add_u32 s{sKV}, s{sKV}, 8192"]
    return [f"s_add_u32 s{sLIN}, s{sLIN}, 8192", f"s_add_u32 s{sKV}, s{sLIN}, s{sROT}",
            f"s_and_b32 s{sKV}, s{sKV}, 0x3ffff", f"s_and_b32 s{sT+1}, s{sLIN}, 0xfffc0000", f"s_or_b32 s{sKV}, s{sKV}, s{sT+1}"]

def adv2(tmp):
    if not OPT.get('rot'): return [f"s_add_u32 s{sKV}, s{sKV}, 16384"]
    return [f"s_add_u32 s{sLN}, s{sLN}, 16384", f"s_add_u32 s{sKV}, s{sLN}, s{sRT}", f"s_and_b32 s{sKV}, s{sKV}, 0x3ffff",
            f"s_and_b32 s{tmp}, s{sLN}, 0x40000", f"s_or_b32 s{sKV}, s{sKV}, s{tmp}"]

def k_dma(tile, so=None):
    so = so or f"s{sKV}"
    return [f"s_add_u32 m0, s{sKB}, {(tile % 8) * 8192}",
            dma(DK0, SK, so, 0, fl('nt_kv'), f"KV{tile} reg=K{tile%8}"), dma(DK1, SK, so, 1024, fl('nt_kv'), f"KV{tile} reg=K{tile%8}")]
def v_dma(tile, so=None):
    so = so or f"s{sKV}"
    return [f"s_add_u32 m0, s{sKB}, {65536 + (tile % 8) * 8192}",
            dma(DV0, SV, so, 0, fl('nt_kv'), f"KV{tile} reg=V{tile%8}"), dma(DV1, SV, so, 1024, fl('nt_kv'), f"KV{tile} reg=V{tile%8}")]

def x_dma(m, nq):
    slot = 16384 if m % 2 else 81920
    out = []
    out.append(f"s_add_u32 m0, s{sXB}, {slot}")
    for j in range(4): out.append(dma(DX + j, SX, f"s{sXO}", 1024 * j, fl('nt_x'), f"X{m} reg=" + ("K2,K3,K4,K5" if m % 2 else "V2,V3,V4,V5")))
    out.append(f"s_add_u32 m0, s{sXB}, {slot + 4096}")
    for j in range(4 if nq == 4 else 2): out.append(dma(DX + j, SX, f"s{sXO2}", 1024 * j, fl('nt_x'), f"X{m} reg=" + ("K2,K3,K4,K5" if m % 2 else "V2,V3,V4,V5")))
    out.append(f"s_add_u32 s{sXO}, s{sXO}, 128")
    if OPT.get('qrot'):
        out += [f"s_cmp_eq_u32 s{sXO}, 1152", f"s_cselect_b32 s{sXO}, 0, s{sXO}", f"s_add_u32 s{sXO2}, s{sXO}, 36864"]
    else: out.append(f"s_add_u32 s{sXO2}, s{sXO2}, 128")
    return out

def w_dma(n, nq):
    out = [f"s_add_u32 m0, s{sWB}, {WSLOT[n % 4]}"]
    for j in range(4): out.append(dma(DW + j, SW, f"s{sWOFF}", 1024 * j, fl('nt_w'), f"W{n} reg=" + ("K6,K7", "V6,V7", "S2", "S3")[n % 4]))
    if n % 2 == 0: out.append(f"s_add_u32 s{sWOFF}, s{sWOFF}, 256")
    else:
        out.append(f"s_add_u32 s{sWOFF}, s{sWOFF}, {524288 - 256}")
        if OPT.get('qrot'): out += [f"s_cmp_eq_u32 s{sWOFF}, {9*524288}", f"s_cselect_b32 s{sWOFF}, 0, s{sWOFF}"]
    return out

def w_reads(n, T):
    sp_, a = T // 2, T % 2
    hl, sp = sp_ // 2, sp_ % 2
    out = []
    for s in range(2):
        for a2 in range(2):
            d = AW + 8 * (T % 4) + 4 * s + 2 * a2
            off = max(n % 4 - 1, 0) * 16384 + hl * 8192 + (32 * s + 4 * a2) * 128 + (0 if OPT.get('wnc') else 8 * a)
            out.append(f"ds_read_b64_tr_b16 {ar(d,2)}, v{WA + sp + (2 if n % 4 else 0)} offset:{off} ; need=W{n}")
    return out

def x_reads(m, nq):
    out = []
    for q in range(nq):
        for s in range(2):
            d = AX + 32 * (m % 2) + 8 * q + 4 * s
            out.append(f"ds_read_b128 {ar(d,4)}, v{XA + s + (0 if m % 2 else 2)} offset:{q * 2048} ; need=X{m}")
    return out

def qacc(hd, q, T):
    r = 128 + 32 * q + 4 * T
    return vr(r, 4) if hd == 0 else ar(r, 4)

def pf_load():
    return f"buffer_load_dword v{VPD}, v{VPF}, s[{SPF}:{SPF+3}], s{sPF} offen nt ; tag=PF"

def wo_dma():
    out = []
    for r in range(2):
        out.append(f"s_add_u32 m0, s{sWOS}, {4096*r}")
        for j in range(4):
            out += [f"PRE s_mov_b32 s{sT}, {8192*j + 512*r}", dma(VWO, SWO, f"s{sT}", 1024 * j, fl('nt_wo'), "WO")]
    out += [f"s_mov_b32 m0, s{sWTS}", dma(VWX, SWO, "0", 0, fl('nt_wo'), "WO")]
    return out
WOF = 32
def wo_reads():
    out = [f"ds_read_b64_tr_b16 {vr(WOF+16*r+4*tl+2*a,2)}, v{VWA} offset:{4096*r + 2048*a + 32*tl} ; need=WO" for r in range(2) for tl in range(4) for a in range(2)]
    return out + [f"ds_read_b64_tr_b16 {vr(WOF+32+2*a,2)}, v{VWE} offset:{512*a}" for a in range(2)]
def wo_stores():
    out = []
    for r in range(2):
        out.append(f"PRE s_add_u32 s{sT}, s{sWB}, {16384*r}")
        out += [f"buffer_store_dwordx4 {vr(WOF+16*r+4*tl,4)}, v{VLN}, s[{SWT}:{SWT+3}], s{sT} offen offset:{1024*tl} sc1 ; tag=WT" for tl in range(4)]
    out += [f"PRE s_lshl_b32 s{sT}, s{sWAVE}, 10", f"PRE s_add_u32 s{sT}, s{sT}, 32768",
            f"buffer_store_dwordx4 {vr(WOF+32,4)}, v{VLN}, s[{SWT}:{SWT+3}], s{sT} offen sc1 ; tag=WT"]
    return out

QSPINS = []; QF = 68; QFA = 72; QFB = 73; sFQ = 35; QFLAGS = 112640
def qproj_stage(b, n, nq, fill=None):
    hd, m = n % 2, n // 2
    nx = 8 if nq == 4 else 6
    slots = []; gaps = [[] for _ in range(64)]
    for T in range(8):
        for q in range(4):
            for s in range(2):
                if q >= nq: slots.append(None); continue
                acc = qacc(hd, q, T)
                c = "0" if (m == 0 and s == 0) else acc
                slots.append(f"{MF} {acc}, {ar(AW+8*(T%4)+4*s,4)}, {ar(AX+32*(m%2)+8*q+4*s,4)}, {c}")
    start = {3: 5, 4: 12, 5: 19, 6: 26, 7: 33}
    rd = w_reads(n, 2); gaps[0].append(rd[3])
    for T, g in start.items():
        for i, x in enumerate(w_reads(n, T)): gaps[g + i].append(x)
    FSQ = OPT.get('fsq') and n < 15
    if n < 17:
        for T, g in (((0, 53), (1, 57)) if FSQ else ((0, 45), (1, 53))):
            for i, x in enumerate(w_reads(n + 1, T)): gaps[g + i].append(x)
        for i, x in enumerate(w_reads(n + 1, 2)[:3]): gaps[61 + i].append(x)
    xr = []
    if n % 2 == 1 and m + 1 <= 8:
        xr = x_reads(m + 1, nq)
        for x, g in zip(xr, (9, 10, 16, 17, 23, 24, 30, 31) if not (n == 1 and OPT.get('x1late')) else (49, 50, 51, 52, 57, 58, 59, 60)): gaps[g].append(x)
    for T in range(1, 8): gaps[8 * T - 1].append(f"WAITL W{n}.{T}")
    if n < 17: gaps[63].append(f"WAITL W{n+1}.0")
    req = []
    if n + 1 <= 17: req.append(f"W{n+1}")
    if n % 2 == 0 and m + 1 <= 8 and not (n == 0 and OPT.get('x1late')): req.append(f"X{m+1}")
    if n == 1 and OPT.get('x1late'): req.append("X1")
    if n == 17: req += ["KV0", "KV1"]
    cov = list(req)
    if nq == 3 and n == 2:
        cov.append("INIT")
        gaps[55].append(f"buffer_store_dword v{VONE}, v{VLN}, s[{SIF}:{SIF+3}], 0 offen sc1 ; tag=FLAG")
    if nq == 3 and n == 12:
        gaps[45].append(f"buffer_load_dword v{VHS}, off, s[{SDB}:{SDB+3}], 0 ; tag=HS")
    if n == 17 and OPT.get('fsa'):
        gaps[36] += [f"s_mov_b32 s{sFV}, 0", f"v_mov_b32 v{VFB}, {FLAGS}", f"v_mov_b32 v{FQ}, 0"]
        gaps[37] += [f"v_lshl_add_u32 v{VFA}, s{sWAVE}, 2, v{VFB}"]
        gaps[39] += [f"ds_write_b32 v{VFA}, v{FQ}"]
    if FSQ:
        uid = f"q{n}_{nq}"
        gaps[42] += [f"s_add_u32 s{sFQ}, s{sFQ}, 1", f"v_mov_b32 v{QF}, s{sFQ}"]
        gaps[43] += ["WAITV lgkmcnt(0) ; cover=" + ",".join(cov), f"ds_write_b32 v{QFA}, v{QF}"]
        gaps[47].append(f"ds_read_b128 {vr(QF,4)}, v{QFB}")
        gaps[50] += ["s_waitcnt lgkmcnt(0)", f"v_min3_u32 v{QF}, v{QF}, v{QF+1}, v{QF+2}"]
        gaps[51].append(f"v_min_u32 v{QF}, v{QF}, v{QF+3}")
        gaps[52].append(f"v_cmp_gt_u32 vcc, s{sFQ}, v{QF}\ns_cbranch_vccnz L_fs{uid}\nL_fr{uid}: ; SYNC pub=" + ",".join(req))
        QSPINS.append(uid)
    else:
        gaps[43].append("WAITV lgkmcnt(0) ; cover=" + ",".join(cov))
        gaps[44].append("s_barrier ; pub=" + ",".join(req))
    def place(seq, first, step):
        g = first
        for x in seq:
            if x.startswith("buffer_"): gaps[g].append(x); g += step
            elif x.startswith(("s_add_u32 m0", "s_mov_b32 m0")): gaps[g - 1].append(x)
            elif x.startswith("PRE "): gaps[g - 1].append(x[4:])
            else: gaps[min(g - step + 1, 63)].append(x)
    if n == 0 and OPT.get('x2late'): place(w_dma(2, nq) + w_dma(3, nq), 2, 5)
    elif n == 1 and OPT.get('x2late'): place(x_dma(2, nq), 2, 4)
    elif n == 0: place(w_dma(2, nq) + w_dma(3, nq) + x_dma(2, nq), 1, 2)
    elif n % 2 == 0 and m + 2 <= 8: place(x_dma(m + 2, nq), 2, 5)
    def single(kind, i_):
        if kind == 'wo':
            if i_ == 8: return [f"s_mov_b32 m0, s{sWTS}", None, dma(VWX, SWO, "0", 0, fl('nt_wo'), "WO")]
            r, j_ = i_ // 4, i_ % 4
            return [f"s_add_u32 m0, s{sWOS}, {4096*r}", f"s_mov_b32 s{sT}, {8192*j_ + 512*r}", dma(VWO, SWO, f"s{sT}", 1024 * j_, fl('nt_wo'), "WO reg=K0,K1,V0,V1")]
        t, j_ = i_ // 4, i_ % 4
        d_ = (k_dma if j_ < 2 else v_dma)(t, f"s{sT}")
        return [d_[0], f"s_add_u32 s{sT}, s{sRT}, {8192*t}" if OPT.get('rot') else f"s_mov_b32 s{sT}, {8192*t}", d_[1 + j_ % 2]]
    if OPT.get('slowpos', 0):
        R0 = 9
        sched_ = {2: [('wo', 0), ('wo', 1), ('wo', 2)], 4: [('wo', 3), ('wo', 4), ('wo', 5)], 6: [('wo', 6), ('wo', 7), ('wo', 8)],
                  10: [('kv', i_) for i_ in range(4)], 12: [('kv', i_) for i_ in range(4, 8)]}
        for (kind, i_) in sched_.get(n, []):
            gaps[63] += [x for x in single(kind, i_) if x]
    else:
        W0 = 1; R0 = W0 + 7
        sched_ = {W0 + i_ // 2: [] for i_ in range(9)}
        for i_ in range(8 if OPT.get('fsq') else 9): sched_[W0 + i_ // 2].append(('wo', i_))
        if not OPT.get('late'):
            for i_ in range(8): sched_.setdefault(R0 + 2 + i_ // 2, []).append(('kv', i_))
        for (kind, i_), g in zip(sched_.get(n, []), (39, 42) if (n % 2 == 0 or OPT.get('stpos', 0) or (n == 1 and OPT.get('x2late'))) else (12, 32)):
            m0_, so_, ld_ = single(kind, i_)
            gaps[g - 1].append(m0_)
            if so_: gaps[g - 1].append(so_)
            gaps[g].append(ld_)
    if n in (OPT.get("rew", 13), OPT.get("rew2", 99)): gaps[41].append("global_load_dword v1, v[76:77], off")
    if n == 13: gaps[62] += [f"s_add_u32 s{sKV}, s{sRT}, 16384", f"s_mov_b32 s{sLN}, 49152"] if OPT.get('rot') else [f"s_mov_b32 s{sKV}, 16384"]
    if n in (R0, R0 + 1):
        rd = wo_reads()
        if OPT.get('fsq'): rd = rd[:16]
        if n == R0:
            gaps[44].append("WAITV ; cover=WO")
            for x, g in zip(rd[:8], [44, 45, 46, 48, 49, 51, 52, 52] if FSQ else [49, 50, 51, 52, 57, 58, 59, 60]): gaps[g].append(x)
        else:
            for x, g in zip(rd[8:], [1, 2, 3, 4, 11, 18, 25, 37, 38, 39]): gaps[g].append(x)
    for i_ in range(0 if OPT.get('wts') else 9):
        if OPT.get('slowpos', 0):
            if n != (10, 10, 12, 12, 14, 14, 14, 16, 16)[i_]: continue
            t_ = [f"s_add_u32 s{sT+1}, s{sWB}, {16384*(i_//4)}"] if i_ < 8 else [f"s_lshl_b32 s{sT+1}, s{sWAVE}, 10", f"s_add_u32 s{sT+1}, s{sT+1}, 32768"]
            gaps[62] += t_ + [f"buffer_store_dwordx4 {vr(WOF+4*i_,4)}, v{VLN}, s[{SWT}:{SWT+3}], s{sT+1} offen offset:{1024*(i_%4) if i_ < 8 else 0} sc1 ; tag=WT"]
            continue
        r, tl = i_ // 4, i_ % 4
        if OPT.get('stpos', 0):
            if n != (9, 9, 11, 11, 13, 13, 15, 15, 15)[i_]: continue
            g = (8, 10, 2, 4, 2, 4, 2, 4, 7)[i_]
        else:
            if n != min(R0 + 1 + i_, 17 - (1 if i_ < 8 else 0)) : continue
            g = 62 if not any('tag=WT' in x for x in gaps[62]) else 48
        if i_ < 8: gaps[g - 1].append(f"s_add_u32 s{sT+1}, s{sWB}, {16384*r}")
        else: gaps[g - 2].append(f"s_lshl_b32 s{sT+1}, s{sWAVE}, 10"); gaps[g - 1].append(f"s_add_u32 s{sT+1}, s{sT+1}, 32768")
        gaps[g].append(f"buffer_store_dwordx4 {vr(WOF+4*i_,4)}, v{VLN}, s[{SWT}:{SWT+3}], s{sT+1} offen offset:{1024*tl if i_ < 8 else 0}{K2F[OPT.get('wtf', 2)]} ; tag=WT")
    if n == 14 and OPT.get('late'):
        place([f"PRE s_mov_b32 s{sT}, 0"] + k_dma(0, f"s{sT}") + v_dma(0, f"s{sT}") + [f"PRE s_mov_b32 s{sT}, 8192"] + k_dma(1, f"s{sT}") + v_dma(1, f"s{sT}"), 2, 5)
    if n in ((15, 16) if OPT.get('late') else (14, 16)):
        seq = []
        for t in range(2, 6):
            seq += [f"PRE s_add_u32 s{sT}, s{sKV}, {(t - 2) * 8192}"] + (k_dma if n < 16 else v_dma)(t, f"s{sT}")
        if n == 16: seq.append(f"s_add_u32 s{sKV}, s{sKV}, 32768")
        place(seq, 2, 5)
    if n == 17 and OPT.get('e67'):
        place(k_dma(6) + [f"PRE s_add_u32 s{sT}, s{sKV}, 8192"] + k_dma(7, f"s{sT}"), 4, 9)
        place(v_dma(6) + v_dma(7, f"s{sT}") + adv2(sT + 1), 47, 4)
    if OPT.get('awake') and n % 2 == 1 and 3 <= n <= 11:
        seq = []
        for t in range(OPT['awake']):
            seq += [f"PRE s_add_u32 s{sPF}, s{sPF}, 8192"] + k_dma(t % 2, f"s{sPF}") + v_dma(t % 2, f"s{sPF}")
        seq = [x.replace('tag=KV0', 'tag=DUM').replace('tag=KV1', 'tag=DUM') for x in seq]
        place(seq, 2, 40 // (4 * OPT['awake']))
    if OPT.get('awake') and n == 13:
        place([f"PRE s_mov_b32 s{sPF}, 0"] + k_dma(0, f"s{sPF}") + v_dma(0, f"s{sPF}") + [f"PRE s_mov_b32 s{sPF}, 8192"] + k_dma(1, f"s{sPF}") + v_dma(1, f"s{sPF}"), 2, 5)
    if n + 4 <= 17: place(w_dma(n + 4, nq), *((54, 3) if FSQ else (46, 5)))
    for i_ in range(OPT.get('qslow', 0)): gaps[2 + 2 * i_].append('v_nop\nv_nop\nv_nop\nv_nop\nv_nop\nv_nop')
    if fill is not None:
        for g in range(20 if n == 16 else 0, 64):
            if slots[g] is None: continue
            for _ in range(2):
                if fill: gaps[g].append(fill.pop(0))
    emit_slots(b, slots, gaps)
    if OPT.get('qstamps'): stamp(b)

def k_reads(unit, tile):
    out = []
    for kt in range(2):
        for s in range(4):
            f = 4 * kt + s
            out.append(f"ds_read_b128 {ar(AK+4*f,4)}, v{KA + s} offset:{unit * 8192 + kt * 4096} ; need=KV{tile}")
    return out

def v_reads(unit, tile):
    out = []
    for T in range(8):
        th, tl = T // 4, T % 4
        for a in range(2):
            out.append(f"ds_read_b64_tr_b16 {ar(AV+4*T+2*a,2)}, v{VA + T} offset:{unit * 8192 + a * 4096} ; need=KV{tile}")
    return out

import sched, sched2
LM = 1
for a_ in sys.argv[2:]:
    if a_.startswith('lm='): LM = int(a_[3:])
if LM:
    NS = 68
    V_GAPS = list(range(26, 42)); K_GAPS = list(range(50, 58)); D_GAPS = [3, 11, 17, 23]
    SM = sched2.schedule(V_GAPS + K_GAPS, D_GAPS)
    for a_ in sys.argv[2:]:
        if a_.startswith('dg='): D_GAPS = {1: [3, 7, 33, 38], 2: [4, 8, 34, 40], 3: [3, 8, 36, 56]}[int(a_[3:])]
else:
    NS = 64
    V_GAPS = list(range(25, 41)); K_GAPS = list(range(48, 56)); D_GAPS = [1, 9, 17, 23]
    SM = sched.schedule(4, V_GAPS + K_GAPS, D_GAPS)
BG = K_GAPS[0] - 1
LA = 108; ONES = 124
def sm_text(kind, q, e):
    s = S_ + 8 * q + e
    if kind == 'exp': return f"v_exp_f32 v{s}, v{s}"
    if kind == 'add': return f"v_add_f32 v{LS+q}, v{LS+q}, v{s}"
    return f"v_cvt_pk_bf16_f32 v{P_+4*q+e//2}, v{s-1}, v{s}"
def sm_items(nq, lo, hi):
    it = [(g, k[0] == 'exp', k) for k, g in SM.items() if k[1] < nq and lo <= g < hi]
    it.sort(key=lambda t: (t[0] % NS, t[1], -t[0]))
    return [(g, k) for g, _, k in it]

def qk(q, kt, s, czero=False):
    d = vr(S_ + 8 * q + 4 * kt, 4)
    c = d if s else ("0" if czero else vr(CI + 4 * q, 4))
    return f"{MF} {d}, {ar(AK+4*(4*kt+s),4)}, {ar(AQ(q)+4*s,4)}, {c}"

def pv(q, T, czero=False):
    d = vr(O_ + 32 * q + 4 * T, 4)
    return f"{MF} {d}, {ar(AV+4*T,4)}, {vr(P_+4*q,4)}, {'0' if czero else d}"

def lsm(q, czero=False):
    d = vr(LA + 4 * q, 4)
    return f"{MF} {d}, {vr(ONES,4)}, {vr(P_+4*q,4)}, {'0' if czero else d}"

SPINS = []
def attn_stage(b, k, nq, extra=None, fill=None, resume=False):
    kk = k % 32; u = k % 8
    if resume: kk = 0
    slots = []; gaps = [[] for _ in range(NS)]
    for q in (0, 1):
        for kt in range(2):
            for s in range(4): slots.append(qk(q, kt, s))
    for q in (2, 3):
        for T in range(8): slots.append(pv(q, T, kk == 1) if (q < nq and kk > 0) else None)
        if LM: slots.append(lsm(q, kk == 1) if (q < nq and kk > 0) else None)
    for q in (2, 3):
        for kt in range(2):
            for s in range(4): slots.append(qk(q, kt, s) if q < nq else None)
    for q in (0, 1):
        for T in range(8): slots.append(pv(q, T, kk == 0 and not resume))
        if LM: slots.append(lsm(q, kk == 0 and not resume))
    for g, key in sm_items(nq, 0, 2 * NS if kk > 0 else NS): gaps[g % NS].append(sm_text(*key))
    for g, x in zip(V_GAPS, v_reads(u, k)): gaps[g].append(x)
    DIST = 7 if OPT.get('d7') else OPT.get('dist', 5 if OPT.get('fsa') else 6)
    if DIST == 7 and k < 63:
        gaps[BG - 1].append(f"WAITV lgkmcnt(0) ; cover=KV{k+1}" + (",WT" if kk == 11 else ""))
        gaps[BG].append(f"s_barrier ; pub=KV{k+1}")
    elif k % 2 == 1 and k < 63 and OPT.get('fsa'):
        uid = f"{k}_{nq}"
        pg = OPT.get('fsp', 30); rg = OPT.get('fsr', 36)
        gaps[pg - 2].append(f"s_add_u32 s{sFV}, s{sFV}, 1")
        gaps[pg - 1].append(f"v_mov_b32 v{FQ}, s{sFV}") if pg - 1 >= 30 or pg < 26 else gaps[pg].append(f"v_mov_b32 v{FQ}, s{sFV}")
        gaps[pg + 1].insert(0, f"WAITV ; cover=KV{k+1},KV{k+2}" + (",WT" if kk == 11 else ""))
        gaps[pg + 1].append(f"ds_write_b32 v{VFA}, v{FQ} ; PUB")
        gaps[rg].append(f"ds_read_b128 {vr(FQ,4)}, v{VFB}")
        gaps[rg + 3].insert(0, "s_waitcnt lgkmcnt(2)")
        gaps[rg + 3].append(f"v_min3_u32 v{FQ}, v{FQ}, v{FQ+1}, v{FQ+2}")
        gaps[rg + 4].append(f"v_min_u32 v{FQ}, v{FQ}, v{FQ+3}")
        gaps[rg + 5].append(f"v_cmp_gt_u32 vcc, s{sFV}, v{FQ}")
        gaps[rg + 6].insert(0, f"s_cbranch_vccnz L_fs{uid}\nL_fr{uid}: ; SYNC pub=KV{k+1},KV{k+2}")
        gaps[BG].append("s_waitcnt lgkmcnt(0)")
        SPINS.append(uid)
    elif k % 2 == 1 and k < 63:
        gaps[BG - 1].append(f"WAITV lgkmcnt(0) ; cover=KV{k+1},KV{k+2}" + (",WT" if k == (39 if OPT.get('pz') else 11) else ""))
        gaps[BG].append(f"s_barrier ; pub=KV{k+1},KV{k+2}")
    else:
        gaps[BG].append("s_waitcnt lgkmcnt(0)")
    if k < 63:
        for g, x in zip(K_GAPS, k_reads((u + 1) % 8, k + 1)): gaps[g].append(x)
        gaps[NS - 1].append("s_waitcnt lgkmcnt(0)")
    FP = (OPT.get('fsa') or OPT.get('fp')) and OPT.get('pair')
    t0 = (k + 4 + k % 2) if FP else (k + DIST - (k % 2) if OPT.get('pair') else k + DIST)
    if t0 < 64 and not (OPT.get('e67') and t0 < 8) and not (OPT.get('sw2') and k in (32, 33)):
        if OPT.get('pair'):
            isv = (k % 2 == 0) if FP else (k % 2 == 1)
            fn = v_dma if isv else k_dma
            kd, vd = fn(t0), fn(t0 + 1, f"s{sT}")
            gaps[D_GAPS[2] - 2].append(f"s_add_u32 s{sT}, s{sKV}, 8192")
            if isv:
                for i_, x in enumerate(adv2(sT)): gaps[44 + i_].append(x)
        else:
            kd, vd = k_dma(k + DIST), v_dma(k + DIST)
            gaps[44] += kv_adv()
        gaps[D_GAPS[0] - 1].append(kd[0]); gaps[D_GAPS[2] - 1].append(vd[0])
        for x, g in zip(kd[1:] + vd[1:], D_GAPS): gaps[g].append(x)
    for i_ in range(OPT.get('slow', 0)): gaps[2 + 2 * i_].append('v_nop\nv_nop\nv_nop\nv_nop')
    if extra:
        for g, x in extra: gaps[g].append(x)
    if fill:
        cost = lambda x: 2 if x.startswith('v_exp') else (1 if x.startswith(('v_', 'ds_', 'buffer_')) else 0)
        room = [max(0, 2 - sum(cost(x) for x in gaps[g])) if slots[g] else 0 for g in range(NS)]
        left = len(fill) - sum(room)
        live = [g for g in range(NS) if slots[g]]
        for i_ in range(max(left, 0)): room[live[(i_ * len(live)) // left]] += 1
        for g in range(NS):
            for _ in range(room[g]):
                if fill: gaps[g].append(fill.pop(0))
        assert not fill
    for key, pre in (('nobar', ('s_barrier',)), ('nodma', ('buffer_load_dwordx4 v9',)), ('nolds', ('ds_read',)), ('noexp', ('v_exp',))):
        if OPT.get(key) and 8 <= k < 16: gaps = [[x if not x.startswith(pre) else 's_nop 0 ;' + x.split(';', 1)[-1] for x in g] for g in gaps]
    if OPT.get('astamps') and k % 2 == 0: stamp(b)
    if OPT.get('dmaonly'):
        slots = [None] * NS
        gaps = [[x for x in g if not x.startswith(('v_', 'ds_'))] for g in gaps]
    emit_slots(b, slots, gaps)

def xlane_reduce(b, reg, tmp, op):
    b(f"v_mov_b32 v{tmp}, v{reg}")
    b(f"v_permlane32_swap_b32 v{reg}, v{tmp}")
    b(f"{op} v{reg}, v{reg}, v{tmp}")
    b(f"v_mov_b32 v{tmp}, v{reg}")
    b(f"v_permlane16_swap_b32 v{reg}, v{tmp}")
    b(f"{op} v{reg}, v{reg}, v{tmp}")

def xlane_reduce_multi(b, regs, tmps, op):
    for sw in ("v_permlane32_swap_b32", "v_permlane16_swap_b32"):
        for r, t in zip(regs, tmps): b(f"v_mov_b32 v{t}, v{r}")
        for r, t in zip(regs, tmps): b(f"{sw} v{r}, v{t}")
        for r, t in zip(regs, tmps): b(f"{op} v{r}, v{r}, v{t}")

def stamp(b, idx=None):
    if OPT.get('fixat') and idx == OPT['fixat']: b("s_memrealtime s[72:73]\ns_waitcnt lgkmcnt(0)")
    if not OPT['stamps']: return
    b(f"s_memtime s[{sSTAMP}:{sSTAMP+1}]\ns_memrealtime s[{sSTAMP+2}:{sSTAMP+3}]\ns_waitcnt lgkmcnt(0)")
    b(f"s_mov_b32 s93, m0\ns_mov_b32 m0, s96\nv_writelane_b32 v14, s{sSTAMP}, m0\nv_writelane_b32 v15, s{sSTAMP+2}, m0\ns_mov_b32 m0, s93\ns_add_u32 s96, s96, 1")

def stamp_dump(b, k, wave):
    if not OPT['stamps']: return
    b("s_waitcnt vmcnt(0)")
    stamp(b)
    if OPT['stamps'] == 2:
        b("s_load_dwordx2 s[92:93], s[0:1], 88\ns_waitcnt lgkmcnt(0)")
        b(f"s_cmp_lg_u32 s{wave}, 0\ns_cbranch_scc1 L_end{k+1}\ns_lshr_b32 s94, s97, 3\ns_cmp_lg_u32 s94, 5\ns_cbranch_scc1 L_end{k+1}")
        b(f"s_add_u32 s88, s92, {OPT.get('dbgoff',0)*(1-k)}\ns_addc_u32 s89, s93, 0\ns_mov_b32 s90, 256\ns_mov_b32 s91, 0x20000")
        sel = [0, 2, 3, 5, 6, 7, 8, 9, 10, 11, 12]
        b("s_mov_b64 exec, 1")
        for i, ix in enumerate(sel):
            b(f"v_readlane_b32 s94, v15, {ix}\ns_nop 3")
            if i == 0 and k == 0: b("s_not_b32 s94, s94")
            b(f"v_mov_b32 v1, s94\nv_mov_b32 v2, {4*(i + 1)}\nbuffer_atomic_umax v1, v2, s[88:91], 0 offen")
        return
    b("s_getreg_b32 s94, hwreg(HW_REG_XCC_ID)\nv_writelane_b32 v14, s94, 63\nv_writelane_b32 v14, s65, 62\nv_writelane_b32 v14, s64, 61")
    b("s_load_dwordx2 s[92:93], s[0:1], 96\ns_waitcnt lgkmcnt(0)")
    b(f"s_add_u32 s88, s92, {(48+k)*1024*1024}\ns_addc_u32 s89, s93, 0\ns_mov_b32 s90, 0x100000\ns_mov_b32 s91, 0x20000")
    b(f"s_lshl_b32 s94, s97, 2\ns_add_u32 s94, s94, s{wave}\ns_lshl_b32 s94, s94, 9")
    b("v_and_b32 v1, 63, v0\nv_lshlrev_b32 v1, 3, v1")
    b("buffer_store_dwordx2 v[14:15], v1, s[88:91], s94 offen")

def persist_regs(b):
    lane = T0; t1 = T0 + 1; t2 = T0 + 2; t3 = T0 + 3; g_ = T0 + 4; ihi = T0 + 5; i8 = T0 + 6; i16 = T0 + 7; r_ = T0 + 8; c4 = T0 + 9
    b(f"""v_and_b32 v{lane}, 63, v0
    v_lshrrev_b32 v{g_}, 4, v{lane}
    v_lshrrev_b32 v{ihi}, 3, v{lane}
    v_and_b32 v{i8}, 7, v{lane}
    v_and_b32 v{i16}, 15, v{lane}
    v_lshrrev_b32 v{r_}, 2, v{i16}
    v_and_b32 v{c4}, 3, v{lane}
    v_lshlrev_b32 v{VLN}, 4, v{lane}
    s_add_u32 s71, s63, s{sWB}
    v_add_u32 v{VO}, s71, v{VLN}""")
    b(f"""s_lshl_b32 s70, s{sWAVE}, 11
    v_lshlrev_b32 v{t1}, 8, v{g_}
    v_add_u32 v{t1}, s70, v{t1}
    s_and_b32 s70, s{sWAVE}, 1
    s_lshl_b32 s70, s70, 3
    v_xor_b32 v{t2}, v{i16}, v{g_}
    v_xor_b32 v{t2}, s70, v{t2}
    v_lshl_add_u32 v{DK0}, v{t2}, 4, v{t1}
    v_xor_b32 v{DK1}, 64, v{DK0}
    v_lshlrev_b32 v{t2}, 1, v{g_}
    v_xor_b32 v{t3}, v{t2}, v{i16}
    v_lshl_add_u32 v{DV0}, v{t3}, 4, v{t1}
    v_xor_b32 v{DV1}, 128, v{DV0}""")
    b(f"""v_mul_u32_u24 v{t1}, 1152, v{ihi}
    v_lshl_add_u32 v{t1}, v{i8}, 4, v{t1}
    s_lshl_b32 s70, s{sWAVE}, 7
    v_add_u32 v{VWO}, s70, v{t1}
    v_lshrrev_b32 v{t1}, 1, v{lane}
    v_mul_u32_u24 v{t1}, 1152, v{t1}
    v_and_b32 v{t2}, 1, v{lane}
    v_lshl_add_u32 v{t1}, v{t2}, 4, v{t1}
    s_lshl_b32 s70, s{sWAVE}, 5
    s_add_u32 s70, s70, 1024
    v_add_u32 v{VWX}, s70, v{t1}""")
    b(f"""v_xor_b32 v{t2}, v{g_}, v{i16}
    v_lshlrev_b32 v{t2}, 4, v{t2}
    v_lshl_add_u32 v{KA}, v{i16}, 8, v{t2}""")
    for s_ in range(1, 4): b(f"v_xor_b32 v{KA+s_}, {64*s_}, v{KA}")
    b(f"""v_lshl_add_u32 v{t2}, v{g_}, 2, v{r_}
    v_lshlrev_b32 v{t1}, 8, v{t2}
    v_and_b32 v{t2}, 7, v{t2}
    v_lshl_add_u32 v{t1}, v{t2}, 5, v{t1}
    v_lshl_add_u32 v{t1}, v{c4}, 3, v{t1}
    v_add_u32 v{VA}, 0x10000, v{t1}""")
    for T in range(1, 8): b(f"v_xor_b32 v{VA+T}, {32*T}, v{VA}")
    b(f"""v_lshl_add_u32 v{t2}, v{g_}, 2, v{r_}
    v_lshlrev_b32 v{t1}, 7, v{t2}
    v_lshl_add_u32 v{t1}, v{c4}, 3, v{t1}
    s_lshr_b32 s70, s{sWAVE}, 1
    s_lshl_b32 s70, s70, 16
    s_and_b32 s71, s{sWAVE}, 1
    s_lshl_b32 s{sWOS}, s71, 13
    s_add_u32 s{sWOS}, s{sWOS}, s70
    s_lshl_b32 s{sWTS}, s71, 10
    s_add_u32 s{sWTS}, s{sWTS}, s70
    s_add_u32 s{sWTS}, s{sWTS}, 47104
    {f"s_lshl_b32 s{sWTS}, s{sWAVE}, 10" if OPT.get('fsq') else ""}
    {f"s_add_u32 s{sWTS}, s{sWTS}, 147456" if OPT.get('fsq') else ""}
    v_add_u32 v{VWA}, s{sWOS}, v{t1}
    v_lshlrev_b32 v{t1}, 3, v{lane}
    v_add_u32 v{VWE}, s{sWTS}, v{t1}""")

def late_setup(b, sfx):
    b(f"""s_lshl_b32 s71, s68, 4
    s_add_u32 s71, s71, s69
    s_lshl_b32 s70, s71, 19
    s_add_u32 s{SK}, s50, s70
    s_addc_u32 s{SK+1}, s51, 0
    s_mov_b32 s{SK+2}, 524288
    s_mov_b32 s{SK+3}, 0x20000
    s_add_u32 s{SV}, s52, s70
    s_addc_u32 s{SV+1}, s53, 0
    s_mov_b32 s{SV+2}, 524288
    s_mov_b32 s{SV+3}, 0x20000
    s_mul_i32 s70, s3, {O_BLK}
    s_add_u32 s{SO}, s100, s70
    s_addc_u32 s{SO+1}, s101, 0
    s_mov_b32 s{SO+2}, {O_BLK}
    s_mov_b32 s{SO+3}, 0x20000
    s_mul_i32 s70, s71, 36864
    s_add_u32 s{SWO}, s56, s70
    s_addc_u32 s{SWO+1}, s57, 0
    s_mov_b32 s{SWO+2}, 36864
    s_mov_b32 s{SWO+3}, 0x20000
    s_mul_i32 s71, s3, {WOT_BLK}
    s_add_u32 s70, s70, s71
    s_add_u32 s70, s70, {WOT_OFF}
    s_add_u32 s{SWT}, s100, s70
    s_addc_u32 s{SWT+1}, s101, 0
    s_mov_b32 s{SWT+2}, 36864
    s_mov_b32 s{SWT+3}, 0x20000
    s_mul_i32 s62, s69, {8*122880}
    s_mul_i32 s63, s68, 15360        ; b*15*1024
    s_add_u32 s{SCN}, s100, {CNT_OFF}
    s_addc_u32 s{SCN+1}, s101, 0
    s_mov_b32 s{SCN+2}, 24576
    s_mov_b32 s{SCN+3}, 0x20000
    s_mov_b64 s[{SDB}:{SDB+1}], s[78:79]
    s_mov_b32 s{SDB+2}, 256
    s_mov_b32 s{SDB+3}, 0x20000
    s_mov_b64 s[{SIN}:{SIN+1}], s[{SCN}:{SCN+1}]
    s_mov_b32 s{SIN+3}, 0x20000
    s_mov_b64 s[{SIF}:{SIF+1}], s[78:79]
    s_mov_b32 s{SIF+3}, 0x20000
    s_lshl_b32 s70, s3, 3
    s_add_u32 s70, s70, s68
    s_lshl_b32 s{sCO}, s70, 2
    s_lshr_b32 s71, s69, 2
    s_add_u32 s{sCO}, s{sCO}, s71
    s_lshl_b32 s{sCO}, s{sCO}, 7
    s_lshr_b32 s{sCW}, s70, 1
    s_lshl_b32 s{sCW}, s{sCW}, 7
    s_add_u32 s{sCW}, s{sCW}, 8192
    s_and_b32 s70, s97, 1
    s_mul_i32 s70, s70, {30 + OPT.get('bal', 0)}
    s_add_u32 s2, s2, s70              ; tile number inside the pair of workgroup classes (0..59 real)
    s_cmp_eq_u32 s70, 0
    s_cselect_b32 s71, {30 + OPT.get('bal', 0)}, 60
    s_cmp_ge_u32 s2, s71
    s_cselect_b32 s{sIDLE}, 1, 0       ; no output tile for this workgroup
    s_mul_i32 s68, s2, 43
    s_lshr_b32 s68, s68, 8
    s_mul_i32 s69, s68, 6
    s_sub_u32 s69, s2, s69             ; nt
    s_bfe_u32 s70, s97, 0x10001
    s_mul_i32 s70, s70, 10
    s_add_u32 s68, s68, s70            ; mt
    s_mul_i32 s92, s69, {OPT.get('krot', 0)}
    s_add_u32 s92, s92, s68
    s_and_b32 s92, s92, 3""")
    if OPT.get('s2t'):
        b(f"""s_lshr_b32 s2, s97, 3
        s_mul_i32 s68, s2, 86
        s_lshr_b32 s68, s68, 8
        s_mul_i32 s69, s68, 3
        s_sub_u32 s69, s2, s69
        s_and_b32 s70, s97, 1
        s_mul_i32 s70, s70, 3
        s_add_u32 s69, s69, s70
        s_bfe_u32 s70, s97, 0x10001
        s_mul_i32 s70, s70, 10
        s_add_u32 s68, s68, s70""")
        if OPT['s2t'] >= 2:
            b(f"""s_and_b32 s92, s68, 1
            s_lshl_b32 s92, s92, 1
            s_lshr_b32 s70, s{sWAVE}, 1
            s_add_u32 s92, s92, s70
            s_and_b32 s68, s68, 30
            s_and_b32 s70, s{sWAVE}, 1
            s_add_u32 s68, s68, s70""")
        else: b(f"s_mov_b32 s92, s{sWAVE}")
    KQ = 92 if OPT.get('s2t') else sWAVE
    b(f"""
    s_mul_i32 s79, s68, 103
    s_lshr_b32 s79, s79, 8
    s_mul_i32 s78, s68, 96
    s_add_u32 s78, s78, 95
    s_mul_i32 s78, s78, 4370
    s_lshr_b32 s78, s78, 20
    s_lshl_b32 s70, s3, 3
    s_add_u32 s78, s78, s70
    s_add_u32 s79, s79, s70
    s_lshl_b32 s78, s78, 2
    s_lshl_b32 s79, s79, 2
    s_add_u32 s78, s78, s{KQ}
    s_add_u32 s79, s79, s{KQ}
    s_lshl_b32 s78, s78, 7
    s_lshl_b32 s79, s79, 7
    s_mul_i32 s70, s3, {O_BLK}
    s_mul_i32 s71, s68, 6144
    s_add_u32 s70, s70, s71
    s_add_u32 s{SO2}, s100, s70
    s_addc_u32 s{SO2+1}, s101, 0
    s_sub_u32 s{SO2+2}, {O_BLK}, s71
    s_mov_b32 s{SO2+3}, 0x20000
    s_mul_i32 s70, s3, {WOT_BLK}
    s_mul_i32 s71, s69, 6144
    s_add_u32 s70, s70, s71
    s_add_u32 s70, s70, {WOT_OFF}
    s_add_u32 s{SW2}, s100, s70
    s_addc_u32 s{SW2+1}, s101, 0
    s_sub_u32 s{SW2+2}, {WOT_BLK}, s71
    s_mov_b32 s{SW2+3}, 0x20000
    s_cmp_eq_u32 s{sIDLE}, 1
    s_cselect_b32 s{SO2+2}, 0, s{SO2+2}   ; workgroups without an output tile load nothing
    s_cselect_b32 s{SW2+2}, 0, s{SW2+2}
    s_mov_b32 s100, s{SO2+2}
    s_mov_b32 s101, s{SW2+2}
    s_lshr_b32 s70, s{sWAVE}, 1
    s_mul_i32 s70, s70, {48*2304}
    s_mul_i32 s{sOUTO}, s68, {96*2304}
    s_add_u32 s{sOUTO}, s{sOUTO}, s70
    s_mul_i32 s70, s3, 1152
    s_add_u32 s{sOUTO}, s{sOUTO}, s70
    s_mul_i32 s70, s69, 192
    s_add_u32 s{sOUTO}, s{sOUTO}, s70
    s_and_b32 s70, s{sWAVE}, 1
    s_mul_i32 s70, s70, 96
    s_add_u32 s{sOUTO}, s{sOUTO}, s70
    s_lshl_b32 s70, s3, 2
    s_add_u32 s70, s70, s{KQ}
    s_lshl_b32 s70, s70, 7
    s_add_u32 s70, s70, 8192
    v_and_b32 v1, 1, v0
    v_mov_b32 v{VP2}, s78
    v_mov_b32 v2, s79
    v_cmp_eq_u32 vcc, 1, v1
    v_and_b32 v1, 2, v0
    v_mov_b32 v3, s70
    v_cndmask_b32 v{VP2}, v{VP2}, v2, vcc
    v_cmp_eq_u32 vcc, 2, v1
    v_add_u32 v{VPE}, 16384, v{VP2}
    v_mov_b32 v{VTH}, 4
    v_cndmask_b32 v{VPE}, v{VPE}, v3, vcc
    v_mov_b32 v3, 32
    v_cndmask_b32 v{VTH}, v{VTH}, v3, vcc
    s_mov_b32 s{sSIG}, 0""")
    b(f"L_late{sfx}:")
    b(f"""s_or_b32 s70, s97, s{sSAFE}
    s_cmp_eq_u32 s70, 0
    s_cselect_b32 s{SIN+2}, 24576, 0   ; only workgroup 0 (first pass) really initialises the counters
    s_cselect_b32 s{SIF+2}, 4, 0
    s_mov_b32 s{sOO}, s62
    s_mov_b32 s{sLATE}, 0
    s_mov_b32 s{SO2+2}, s100
    s_mov_b32 s{SW2+2}, s101
    {p2_init()}
    s_lshr_b32 s{sRT}, s97, {OPT.get('rsh', 3)}
    s_mul_i32 s{sRT}, s{sRT}, {OPT.get('rot', 0) or 1}
    s_mul_i32 s70, s{sRT}, 5042
    s_lshr_b32 s70, s70, 16
    s_mul_i32 s70, s70, 13
    s_sub_u32 s{sRT}, s{sRT}, s70
    s_lshl_b32 s{sRT}, s{sRT}, 14
    s_lshl_b32 s{sKB}, s{sWAVE}, 11""")

def warm_base(b):
    b("""s_getpc_b64 s[94:95]
    L_pc:
    s_sub_u32 s94, s94, L_pc-attn_kernel
    s_subb_u32 s95, s95, 0""")

def warm_addr(b):
    b("""v_mul_u32_u24 v76, 40, v0
    v_lshrrev_b32 v76, 8, v76
    s_lshr_b32 s70, s97, 3
    s_mul_i32 s70, s70, 40
    v_add_u32 v76, s70, v76
    v_lshlrev_b32 v76, 7, v76
    v_min_u32 v76, L_codeend-attn_kernel-4, v76
    v_mov_b32 v77, s95
    v_add_co_u32 v76, vcc, s94, v76
    v_addc_co_u32 v77, vcc, 0, v77, vcc""")

def warm_code(b):
    warm_base(b); warm_addr(b)
    if OPT.get('warm'): b("global_load_dword v4, v[76:77], off")

def prologue_a(b):
    lane = T0; t1 = T0 + 1; t2 = T0 + 2; t3 = T0 + 3; g_ = T0 + 4; ihi = T0 + 5; i8 = T0 + 6
    b(f"""v_and_b32 v{lane}, 63, v0
    v_lshrrev_b32 v{g_}, 4, v{lane}
    v_lshrrev_b32 v{ihi}, 3, v{lane}
    v_and_b32 v{i8}, 7, v{lane}""")
    b(f"s_lshl_b32 s{sT}, s{sWAVE}, 6")
    b(f"v_add_u32 v{t1}, s{sT}, v{ihi}")
    b(f"v_mul_u32_u24 v{t1}, 1152, v{t1}")
    for j in range(4):
        b(f"v_xor_b32 v{t2}, {4*(j%2)}, v{g_}")
        b(f"v_xor_b32 v{t2}, v{t2}, v{i8}")
        b(f"v_lshl_add_u32 v{t2}, v{t2}, 4, v{t1}")
        b(f"v_add_u32 v{DX+j}, {8*j*1152 - 1024*j}, v{t2}")
    b(f"""s_and_b32 s{sT}, s{sWAVE}, 1
    s_lshl_b32 s{sT}, s{sT}, 18
    s_lshr_b32 s{sT+1}, s{sWAVE}, 1
    s_lshl_b32 s{sT+1}, s{sT+1}, 7
    s_add_u32 s{sT}, s{sT}, s{sT+1}
    v_lshlrev_b32 v{t1}, 13, v{ihi}
    v_add_u32 v{t1}, s{sT}, v{t1}
    v_lshrrev_b32 v{t2}, 2, v{i8}
    v_xor_b32 v{t2}, v{t2}, v{g_}
    v_and_b32 v{t2}, 1, v{t2}
    v_lshl_add_u32 v{t1}, v{t2}, 6, v{t1}
    v_and_b32 v{t2}, 3, v{i8}
    v_lshl_add_u32 v{t1}, v{t2}, 4, v{t1}""")
    for j in range(4): b(f"v_add_u32 v{DW+j}, {8*j*8192 - 1024*j}, v{t1}")
    b(f"""s_mov_b32 s{sXO}, 0
    s_mov_b32 s{sXO2}, 36864
    s_mov_b32 s{sWOFF}, 0
    s_mov_b32 s{sKV}, 0
    s_mov_b32 s{sHEAD}, 0""")
    if OPT.get('qrot'):
        if OPT['qrot'] == 10:
            b(f"s_lshr_b32 s{sT}, s97, 5\ns_lshr_b32 s{sT+1}, s97, 3\ns_xor_b32 s{sT}, s{sT}, s{sT+1}\ns_and_b32 s{sT}, s{sT}, 1\ns_mul_i32 s{sT}, s{sT}, {OPT.get('qro', 4)}")
        elif OPT['qrot'] == 11:
            b(f"s_lshr_b32 s{sT}, s97, 5\ns_bfe_u32 s{sT+1}, s97, 0x20003\ns_add_u32 s{sT}, s{sT}, s{sT+1}\ns_mul_i32 s{sT+1}, s{sT}, 86\ns_lshr_b32 s{sT+1}, s{sT+1}, 8\ns_mul_i32 s{sT+1}, s{sT+1}, 3\ns_sub_u32 s{sT}, s{sT}, s{sT+1}\ns_mul_i32 s{sT}, s{sT}, 3")
        else:
            b(f"""s_lshr_b32 s{sT}, s97, 5
            s_bfe_u32 s{sT+1}, s97, 0x20003
            s_mul_i32 s{sT+1}, s{sT+1}, {OPT['qrot']}
            s_add_u32 s{sT}, s{sT}, s{sT+1}
            s_sub_u32 s{sT+1}, s{sT}, 9
            s_cselect_b32 s{sT}, s{sT}, s{sT+1}""")
        b(f"""
        s_lshl_b32 s{sXO}, s{sT}, 7
        s_add_u32 s{sXO2}, s{sXO}, 36864
        s_lshl_b32 s{sWOFF}, s{sT}, 19""")

def prologue_b(b):
    lane = T0; t1 = T0 + 1; t2 = T0 + 2; t3 = T0 + 3; g_ = T0 + 4; ihi = T0 + 5; i8 = T0 + 6
    if OPT.get('sstamps'): stamp(b)
    b.ext(x_dma(0, 4)); b.ext(w_dma(0, 4))
    if OPT.get('ord') == 1: b.ext(w_dma(1, 4)); b.ext(x_dma(1, 4))
    if OPT.get('ord') == 2: b.ext(w_dma(1, 4))
    if OPT.get('sstamps'): stamp(b)
    if OPT.get('xw'):
        pf = K2F[OPT.get('xwf', 0)]
        b(f"""s_lshr_b32 s70, s2, 2
        s_mul_i32 s70, s70, 270
        s_mul_i32 s71, s{sWAVE}, 68
        s_add_u32 s70, s70, s71
        s_lshl_b32 s70, s70, 7
        v_lshlrev_b32 v5, 7, v{lane}
        buffer_load_dword v6, v5, s[{SX}:{SX+3}], s70 offen{pf}
        s_and_b32 s70, s2, 3
        s_lshl_b32 s70, s70, 2
        s_add_u32 s70, s70, s{sWAVE}
        s_lshl_b32 s70, s70, 13
        v_lshrrev_b32 v5, 2, v{lane}
        v_lshlrev_b32 v5, 17, v5
        v_and_b32 v7, 3, v{lane}
        v_lshl_add_u32 v5, v7, 7, v5
        buffer_load_dword v6, v5, s[{SW}:{SW+3}], s70 offen{pf}
        s_add_u32 s70, s70, {256*8192}
        buffer_load_dword v6, v5, s[{SW}:{SW+3}], s70 offen{pf}
        s_add_u32 s70, s70, {256*8192}
        buffer_load_dword v6, v5, s[{SW}:{SW+3}], s70 offen{pf}""")
    late_setup(b, "")
    if OPT.get('tlb'):
        for srd in (SK, SV, SWO): b(f"buffer_load_dword v1, off, s[{srd}:{srd+3}], 0 nt")
        if OPT['tlb'] > 1:
            b(f"s_mov_b64 exec, 1\nbuffer_store_dword v1, off, s[{SWT}:{SWT+3}], s{sWB} sc1\ns_mov_b64 exec, -1")
    persist_regs(b)
    b(f"""v_mov_b32 v{VONE}, 1
    s_and_b32 s70, s{sWAVE}, 1
    s_mul_i32 s70, s70, 3072
    s_sub_u32 s71, 3072, s70
    v_add_u32 v{VPW}, s70, v{VLN}
    v_add_u32 v{VPW+1}, s71, v{VLN}
    s_lshr_b32 s70, s{sWAVE}, 1
    s_mul_i32 s70, s70, 3072
    s_sub_u32 s71, 3072, s70
    v_add_u32 v{VPO}, s70, v{VLN}
    v_add_u32 v{VPO+1}, s71, v{VLN}""")
    i16 = T0 + 7; r_ = T0 + 8; c4 = T0 + 9
    b(f"""v_and_b32 v{i16}, 15, v{lane}
    v_lshrrev_b32 v{r_}, 2, v{i16}
    v_and_b32 v{c4}, 3, v{lane}
    v_lshlrev_b32 v{t1}, 7, v{i16}
    v_add_u32 v{t1}, s{sXB}, v{t1}
    v_add_u32 v{t1}, 16384, v{t1}
    v_lshrrev_b32 v{t3}, 1, v{i16}""")
    for s in range(2):
        b(f"v_xor_b32 v{t2}, {4*s}, v{g_}")
        b(f"v_xor_b32 v{t2}, v{t2}, v{t3}")
        b(f"v_lshl_add_u32 v{XA+s}, v{t2}, 4, v{t1}\nv_add_u32 v{XA+2+s}, 65536, v{XA+s}")
    b(f"""v_lshl_add_u32 v{t1}, v{g_}, 3, v{r_}
    v_lshlrev_b32 v{t1}, 7, v{t1}
    v_lshl_add_u32 v{t1}, v{c4}, 4, v{t1}
    v_add_u32 v{t1}, 49152, v{t1}
    v_lshrrev_b32 v{t3}, 1, v{r_}""")
    if OPT.get('wnc'): b(f"v_and_b32 v{t2}, 1, v{g_}\nv_lshl_add_u32 v{t1}, v{t2}, 3, v{t1}")
    for sp in range(2):
        b(f"v_xor_b32 v{t2}, {sp}, v{t3}")
        b(f"v_lshl_add_u32 v{WA+sp}, v{t2}, 6, v{t1}\nv_add_u32 v{WA+2+sp}, 65536, v{WA+sp}")
    if OPT.get('sstamps'): stamp(b)
    if not OPT.get('ord'): b.ext(w_dma(1, 4))
    if OPT.get('ord') != 1: b.ext(x_dma(1, 4))

def wave_code(b, nq, sfx):
    nx = 8 if nq == 4 else 6
    b(f"L_begin{sfx}:")
    if nq == 3:
        b(f"v_mov_b32 v{VHS}, 0\nv_lshlrev_b32 v{VCW}, 3, v{VLN}")
        b(f"buffer_store_dword v{VHS}, v{VCW}, s[{SIN}:{SIN+3}], 0 offen sc1 ; tag=INIT")
        b(f"s_mov_b32 s{sT}, 8192\nbuffer_store_dword v{VHS}, v{VCW}, s[{SIN}:{SIN+3}], s{sT} offen sc1 ; tag=INIT")
        b(f"s_mov_b32 s{sT}, 16384\nbuffer_store_dword v{VHS}, v{VCW}, s[{SIN}:{SIN+3}], s{sT} offen sc1 ; tag=INIT")
    stamp(b, 0)
    if OPT.get('fsq'):
        b(f"s_mov_b32 s{sFQ}, 0\nv_mov_b32 v{QFB}, {QFLAGS}\nv_lshl_add_u32 v{QFA}, s{sWAVE}, 2, v{QFB}")
    b("WAITV ; cover=X0,W0")
    b("s_barrier ; pub=X0,W0")
    b.ext(x_reads(0, nq))
    for T in (0, 1): b.ext(w_reads(0, T))
    b.ext(w_reads(0, 2)[:3])
    b("WAITL W0.0")
    stamp(b, 1)
    for n in range(0, 12): qproj_stage(b, n, nq)
    fill = []; post = []
    for sp in range(4):
        for q in range(nq):
            rs = [128 + 32 * q + 8 * sp + 2 * i_ for i_ in range(4)]
            for r in rs: fill += [f"v_mul_f32 v{r}, s{sC}, v{r}", f"v_mul_f32 v{r+1}, s{sC}, v{r+1}"]
            for r in rs: fill.append(f"v_cvt_pk_bf16_f32 v{r}, v{r}, v{r+1}")
            for i_, r in enumerate(rs): fill.append(f"v_accvgpr_write_b32 a{AQ(q) + 4*sp + i_}, v{r}")
    for n in range(12, 18): qproj_stage(b, n, nq, fill if n >= 16 else None)
    stamp(b, 2)
    conv2 = []
    for q in range(nq):
        for h in range(8):
            r = 128 + 32 * q + 4 * h
            conv2 += [f"v_accvgpr_read_b32 v{4+i_}, a{r+i_}" for i_ in range(4)]
            conv2 += [f"v_mul_f32 v{4+i_}, s{sC}, v{4+i_}" for i_ in range(4)]
            conv2 += ["v_cvt_pk_bf16_f32 v4, v4, v5", "v_cvt_pk_bf16_f32 v6, v6, v7",
                      f"v_accvgpr_write_b32 a{AQ2(q)+2*h}, v4", f"v_accvgpr_write_b32 a{AQ2(q)+2*h+1}, v6"]
    def pre_mfma(): return [qk(q, 0, s_, czero=True) for q in range(nq) for s_ in range(4)]
    def pre_max():
        t = B()
        for q in range(nq):
            s_ = S_ + 8 * q
            t(f"v_max3_f32 v{s_}, v{s_}, v{s_+1}, v{s_+2}")
        for q in range(nq):
            s_ = S_ + 8 * q
            t(f"v_max_f32 v{s_}, v{s_}, v{s_+3}")
        xlane_reduce_multi(t, [S_ + 8 * q for q in range(nq)], [T0 + q for q in range(nq)], "v_max_f32")
        for q in range(nq):
            for r in range(4): t(f"v_sub_f32 v{CI+4*q+r}, 0, v{S_+8*q}")
        return t.L
    def weave(mf, st, per):
        for x in mf:
            b(x)
            for _ in range(per):
                if st: b(st.pop(0))
    def zipper(a_, b_, ra, rb):
        out = []
        while a_ or b_:
            for _ in range(ra):
                if a_: out.append(a_.pop(0))
            for _ in range(rb):
                if b_: out.append(b_.pop(0))
        return out
    b.ext(k_reads(0, 0))
    b.ext(fill)
    b(f"v_and_b32 v4, 3, v0\nv_mov_b32 v5, 0x3f803f80\nv_cmp_eq_u32 vcc, 0, v4")
    for i_ in range(4): b(f"v_cndmask_b32 v{ONES+i_}, 0, v5, vcc")
    b("s_waitcnt lgkmcnt(0)")
    if OPT.get('wts'):
        mv = [f"v_mov_b32 v{192+i_}, v{WOF+i_}" for i_ in range(36)]
        b.ext(mv[:8])
        mv = mv[8:]
        weave(pre_mfma()[:8], mv, 4)
        b.ext(mv); b.ext(pre_mfma()[8:])
    else: b.ext(pre_mfma())
    b.ext(pre_max())
    stamp(b, 3)
    for i_ in range(OPT.get('pause', 0)): b('s_sleep 32')
    if OPT.get('skew'):
        b(f"s_lshr_b32 s{sT}, s97, 3\ns_and_b32 s{sT}, s{sT}, 7\nL_skew{sfx}:\ns_cmp_eq_u32 s{sT}, 0\ns_cbranch_scc1 L_skewd{sfx}\ns_sleep {OPT['skew']}\ns_sub_u32 s{sT}, s{sT}, 1\ns_branch L_skew{sfx}\nL_skewd{sfx}:")
    adv8 = lambda x: x
    def head_start(hd):
        b(f"s_cmp_lg_u32 s{sSAFE}, 0\ns_cbranch_scc1 L_maxpass{sfx}\nL_maxdone{hd}{sfx}:")
        if not LM:
            for q in range(nq): b(f"v_mov_b32 v{LS+q}, 0")
        stamp(b)
    if OPT.get('wtp') == 2 and nq == 3: b("WAITV ; cover=WT\nbuffer_wbl2 sc1 ; tag=WT")
    if OPT.get('pz'): b(f"s_mov_b32 s{sPW}, 99\ns_mov_b32 s{sPZ}, 0")
    if OPT.get('pz') and nq == 3: b(f"v_bfe_u32 v{VPA}, v0, 2, 2\nv_xor_b32 v{VPA}, 3, v{VPA}\nv_lshlrev_b32 v{VPA}, 7, v{VPA}\nv_sub_u32 v{VPA}, v{VPE}, v{VPA}")
    head_start(0)
    per = -(-len(conv2) // 8); tot_ = len(conv2)
    for k in range(8):
        ex = []
        if k == 0 and OPT.get('wts'):
            for i_ in range(8 if OPT.get('fsq') else 9):
                g = 2 + 7 * i_
                if i_ < 8: ex.append((g - 1, f"s_add_u32 s{sT+1}, s{sWB}, {16384*(i_//4)}"))
                else: ex += [(g - 2, f"s_lshl_b32 s{sT+1}, s{sWAVE}, 10"), (g - 1, f"s_add_u32 s{sT+1}, s{sT+1}, 32768")]
                ex.append((g, f"buffer_store_dwordx4 {vr(192+4*i_,4)}, v{VLN}, s[{SWT}:{SWT+3}], s{sT+1} offen offset:{1024*(i_%4) if i_ < 8 else 0} sc1 ; tag=WT"))
        if OPT.get('fsq'):
            A9 = 192 if nq == 4 else 224
            if k == 1: ex += [(5, f"s_mov_b32 m0, s{sWTS}"), (6, dma(VWX, SWO, "0", 0, fl('nt_wo'), "W9X"))]
            if k == 6: ex += [(3, "WAITV ; cover=W9X"), (4, f"ds_read_b64_tr_b16 {ar(A9,2)}, v{VWE} offset:0"), (5, f"ds_read_b64_tr_b16 {ar(A9+2,2)}, v{VWE} offset:512")]
            if k == 7: ex += [(4, f"s_lshl_b32 s{sT+1}, s{sWAVE}, 10"), (5, f"s_add_u32 s{sT+1}, s{sT+1}, 32768"),
                              (25, f"buffer_store_dwordx4 {ar(A9,4)}, v{VLN}, s[{SWT}:{SWT+3}], s{sT+1} offen sc1 ; tag=WT")]
        if k == 6 and nq == 3:
            ex += [(46, "WAITV ; cover=HS"), (47, f"v_readfirstlane_b32 s{sT}, v{VHS}\ns_cmp_eq_u32 s{sT}, 0\ns_cbranch_scc1 L_hspin\nL_hsok:")]
        cnt_ = per
        if OPT.get('front'): cnt_ = -(-tot_ * {1: (8, 8, 7, 7, 6, 5, 4, 3), 2: (3, 4, 5, 6, 7, 7, 8, 8), 3: (12, 12, 12, 12, 0, 0, 0, 0)}[OPT['front']][k] // 48)
        attn_stage(b, k, nq, ex, fill=[conv2.pop(0) for _ in range(min(cnt_, len(conv2)))])
    b(f"L_atin{sfx}:")
    b(f"s_mov_b32 s{sCNT}, 0")
    b(f".p2align 3\nL_at{sfx}:")
    b("LOOPBEGIN at 3 8")
    for k in range(8, 16):
        ex = []
        if k == 11 and nq == 3 and not OPT.get('pz'):
            ex = [(59, f"""s_xor_b32 s{sT+1}, s{sHEAD}, 1
            s_or_b32 s{sT}, s{sCNT}, s{sT+1}
            s_cbranch_scc0 L_sig
            L_nosig:""")]
        if OPT.get('pz') and nq == 3:
            if k == 11: ex = [(58, f"s_cmp_eq_u32 s{sPW}, 99"), (60, f"s_cbranch_scc1 L_nop3\nbuffer_load_dword v{VCW}, v{VPA}, s[{SCN}:{SCN+3}], 0 offen sc1 ; cond\nL_nop3:")]
            if k == 13: ex = [(BG + 1, f"s_getreg_b32 s{sST}, hwreg(HW_REG_IB_STS)")]
            if k == 15:
                ex = [(BG - 1, f"""v_cmp_gt_u32 vcc, v{VTH}, v{VCW}
                v_mov_b32 v5, {DEC}
                s_and_b32 s{sT}, s{sST}, 15
                s_lshr_b32 s{sT+1}, s{sST}, 30
                s_lshl_b32 s{sT+1}, s{sT+1}, 4
                s_or_b32 s{sT}, s{sT}, s{sT+1}
                s_cmp_ge_u32 s{sT}, {OPT.get('pzt', 0)}
                s_cselect_b32 s{sT}, 1, 0
                s_cmp_eq_u64 vcc, 0
                s_cselect_b32 s{sT}, s{sT}, 0
                v_mov_b32 v4, s{sT}
                ds_write_b32 v5, v4
                s_waitcnt lgkmcnt(0)""")]
        if k == 9 and OPT.get('pz'): b(f"L_at1{sfx}:")
        if k == 15:
            if OPT.get('pz'): ex += [(NS - 4, f"s_add_u32 s{sCNT}, s{sCNT}, 1"), (NS - 2, f"s_cmp_ge_u32 s{sCNT}, s{sPW}")]
            else: ex += [(NS - 6, f"s_add_u32 s{sCNT}, s{sCNT}, 1"), (NS - 4, f"s_add_u32 s{sT}, s{sCNT}, s{sHEAD}"), (NS - 2, f"s_cmp_lt_u32 s{sT}, 3")]
        attn_stage(b, k, nq, ex)
    if OPT.get('pz'): b(f"s_cbranch_scc1 L_pchk{sfx}\nL_pret{sfx}:\ns_add_u32 s{sT}, s{sCNT}, s{sHEAD}\ns_cmp_lt_u32 s{sT}, 3")
    if OPT.get('midgap'):
        b(f"s_cselect_b32 s{sT+1}, 1, 0\ns_lshl_b32 s{sT}, s{sHEAD}, 4\ns_add_u32 s{sT}, s{sT}, s{sCNT}\ns_cmp_eq_u32 s{sT}, {OPT.get('midat', 1)}\ns_cbranch_scc0 L_ng{sfx}")
        for i_ in range(OPT['midgap']): b("s_sleep 16")
        b(f"L_ng{sfx}:\ns_cmp_eq_u32 s{sT+1}, 1")
    b(f"s_cbranch_scc1 L_at{sfx}")
    b("LOOPEND at")
    b(f"L_atx{sfx}:")
    b(f"s_cmp_lg_u32 s{sHEAD}, 0\ns_cbranch_scc1 L_fin{sfx}")

    def lsum(qs):
        t = B()
        if not LM: xlane_reduce_multi(t, [LS + q for q in qs], [T0 + 4 + q for q in qs], "v_add_f32")
        for q in qs:
            src = LA + 4 * q if LM else LS + q
            t(f"v_cmp_ngt_f32 vcc, {LTHR}, v{src}")
            t(f"v_rcp_f32 v{LS+q}, v{src}")
            t(f"s_or_b32 s{sFLAG}, s{sFLAG}, vcc_lo\ns_or_b32 s{sFLAG}, s{sFLAG}, vcc_hi")
        return t.L
    cnt = [0]
    def onorm(q, pk, flag, inplace=False, so=None):
        out = []
        for sp in range(4):
            d = P_ + 4 * (cnt[0] % 2); cnt[0] += 1
            if inplace: d = O_ + 32 * q + 8 * sp
            rs = [O_ + 32 * q + 8 * sp + 2 * i_ for i_ in range(4)]
            for r in rs:
                if pk and OPT.get('pk', 1): out.append(f"v_pk_mul_f32 v[{r}:{r+1}], v[{r}:{r+1}], v[{LS+q-(q%2)}:{LS+q-(q%2)+1}] op_sel:[0,{q%2}] op_sel_hi:[1,{q%2}]")
                else: out += [f"v_mul_f32 v{r}, v{r}, v{LS+q}", f"v_mul_f32 v{r+1}, v{r+1}, v{LS+q}"]
            for i_, r in enumerate(rs): out.append(f"v_cvt_pk_bf16_f32 v{d+i_}, v{r}, v{r+1}")
            if flag is None:
                for i_ in range(4): out.append(f"v_accvgpr_write_b32 a{AST+16*q+4*sp+i_}, v{d+i_}")
                continue
            if so:
                out[-1] += f"\ns_add_u32 s{sT+1}, s{so}, {sp*122880}\nbuffer_store_dwordx4 {vr(d,4)}, v{VO}, s[{SO}:{SO+3}], s{sT+1} offen offset:{1024*q}{flag}"
                continue
            out.append(f"s_add_u32 s{sT}, s{sOO}, {sp*122880}")
            out.append(f"buffer_store_dwordx4 {vr(d,4)}, v{VO}, s[{SO}:{SO+3}], s{sT} offen offset:{1024*q}{flag}")
        return out
    def drain(st, ld=None, every=1):
        slots = []; gaps = [[] for _ in range(18)]
        for q in (2, 3):
            for T in range(8): slots.append(pv(q, T) if q < nq else None)
            slots.append(lsm(q) if (q < nq and LM) else None)
        rem = sorted(sm_items(nq, NS, 2 * NS), key=lambda t: t[0])
        b.ext([sm_text(*k_) for g, k_ in rem if k_[1] == 2 and k_[0] != 'add'])
        crit = sorted([k_ for g, k_ in rem if k_[1] == 3 and k_[0] != 'add'], key=lambda k_: (k_[2], k_[0] == 'cvt'))
        g = 0
        for k_ in crit:
            if k_[0] == 'exp' and gaps[min(g, 6)]: g += 1
            gaps[min(g, 6)].append(sm_text(*k_))
            if k_[0] == 'exp' or len(gaps[min(g, 6)]) == 2: g += 1
        late = [sm_text(*k_) for g_, k_ in rem if k_[0] == 'add']
        for i_, x in enumerate(late): gaps[min(9 + i_ // 2, 16) if nq == 4 else 0].append(x)
        for g in range(18):
            if slots[g] is None: continue
            room = 2 - sum(2 if 'exp' in x else 1 for x in gaps[g])
            while room > 0 and st: gaps[g].append(st.pop(0)); room -= 1
        for i_, s_ in enumerate(slots):
            if s_: b(s_)
            if s_ and ld and (i_ % every == 0 or nq == 3):
                b(ld.pop(0))
                while ld and ld[0].startswith("s_"): b(ld.pop(0))
            b.ext(gaps[i_])
    hi = list(range(2, nq))
    movs = [f"v_accvgpr_mov_b32 a{AQ(q)+i_}, a{AQ2(q)+i_}" for q in range(nq) for i_ in range(16)]
    f0 = None if OPT.get('defer') else K2F[OPT.get('of0', 2)] + ' ; tag=WT'
    if OPT.get('wtp') == 1 and nq == 3: b("buffer_wbl2 sc1 ; tag=WT")
    st = lsum([0, 1]) + onorm(0, False, f0)
    SW2_ = OPT.get('sw2', 0)
    if SW2_:
        ld = []
        D_ = OPT.get('dist', 5 if OPT.get('fsa') else 6)
        if OPT.get('pair'):
            b(f"s_add_u32 s{sT+1}, s{sKV}, 8192")
            if OPT.get('fsa') or OPT.get('fp'): ld = v_dma(36) + v_dma(37, f"s{sT+1}") + adv2(sT + 1) + [f"s_add_u32 s{sT+1}, s{sKV}, 8192"] + k_dma(38) + k_dma(39, f"s{sT+1}")
            else: ld = k_dma(38) + k_dma(39, f"s{sT+1}") + v_dma(38) + v_dma(39, f"s{sT+1}") + adv2(sT + 1)
        else:
            for t in (32 + D_, 33 + D_): ld += k_dma(t) + v_dma(t) + kv_adv()
        b(ld.pop(0))
        ld2 = []
        for x in ld: ld2 += [x] if x.startswith('s_') else [x, 'v_nop']
        ld2 = [x for x in ld]
        drain(st, ld2, 2)
    else: drain(st)
    stamp(b, 4)
    b.ext(zipper(st, lsum(hi), 2, 1))
    b.ext(movs)
    st = onorm(1, False, f0)
    weave(pre_mfma(), st, 3 if nq == 4 else 4)
    b.ext(st)
    rest = []; late_ = []
    for q in hi:
        if SW2_ >= 2: late_ += onorm(q, False, f0, inplace=True, so=sOP)
        else: rest += onorm(q, True, f0)
    b.ext(zipper(rest, pre_max(), 2, 1))
    b.ext(vote_write())
    b(f"s_mov_b32 s{sOP}, s{sOO}\ns_add_u32 s{sOO}, s{sOO}, {4*122880}\ns_mov_b32 s{sHEAD}, 1")
    if OPT.get('emub'):
        b(f"s_and_b32 s{sT}, s97, 3\ns_cmp_eq_u32 s{sT}, s{sCNT}" if False else "")
        b(f"s_mov_b32 s{sT}, 0\nL_duma{sfx}:")
        for i_ in range(64):
            if (i_ // 2) % 4 >= nq: continue
            b(f"{MF} a[{192+4*(i_//2%16)}:{195+4*(i_//2%16)}], a[{4*(i_%8)}:{4*(i_%8)+3}], a[{32+4*(i_%7)}:{35+4*(i_%7)}], a[{192+4*(i_//2%16)}:{195+4*(i_//2%16)}]")
            if i_ % 2 == 0: b(f"ds_read_b64_tr_b16 v[4:5], v{VA + i_ % 8} offset:{(i_ % 16) * 4096}")
        b(f"s_waitcnt lgkmcnt(0)\ns_barrier\ns_add_u32 s{sT}, s{sT}, 1\ns_cmp_lt_u32 s{sT}, 8\ns_cbranch_scc1 L_duma{sfx}")
    if OPT.get('pz'):
        b(f"""s_and_b32 s{sT}, s97, 7
        s_lshl_b32 s{sT}, s{sT}, 2
        s_lshr_b32 s{sPW}, {OPT.get('pzc', 0x10210210):#x}, s{sT}
        s_and_b32 s{sPW}, s{sPW}, 15
        s_or_b32 s{sT}, s{sIDLE}, s{sSAFE}
        s_cselect_b32 s{sPW}, 0, s{sPW}
        s_cmp_eq_u32 s{sPW}, 0
        s_cselect_b32 s{sPW}, 99, s{sPW}""")
    head_start(1)
    dst = [(q, sp) for q in range(nq) for sp in range(4)] if OPT.get('defer') else []
    for k in range(32, 40):
        ex = []
        for g in (24, 25):
            if dst:
                q, sp = dst.pop(0)
                ex += [(g, f"s_add_u32 s{sT+1}, s{sOP}, {sp*122880}"),
                       (g, f"buffer_store_dwordx4 {ar(AST+16*q+4*sp,4)}, v{VO}, s[{SO}:{SO+3}], s{sT+1} offen offset:{1024*q} sc1 ; tag=WT")]
        if k == 39 and nq == 3 and OPT.get('pz'): ex.append((59, "s_branch L_sig\nL_nosig:"))
        attn_stage(b, k, nq, ex, fill=late_ if k == 32 else None)
    b(f"s_branch L_atin{sfx}")
    b("REPLAY at 32 2")
    b(f"L_fin{sfx}:")
    f1 = K2F[OPT.get('of', 0)]
    early = p2_w(0) + p2_o(0) + p2_adv(0) + p2_w(1) + p2_o(1) + p2_adv(1)
    if OPT.get('pre8'): early += (p2_w(2) + p2_o(2))[:8]
    for k in range(56, 64):
        ex = []
        CK = 57 if OPT.get('stg') == 2 else 59
        if k == 56: ex = [(1 if CK == 57 else 6, f"buffer_load_dword v{VCW}, v{VPE}, s[{SCN}:{SCN+3}], 0 offen sc1 ; tag=CW")]
        if k == CK: ex = [(NS - 3, f"WAITV ; cover=CW\nv_cmp_gt_u32 vcc, v{VTH}, v{VCW}\ns_cbranch_vccnz L_espin{sfx}\nL_eok{sfx}:" + ("\nbuffer_inv sc1" if OPT.get('acq') else "") + (f"\ns_cmp_eq_u32 s{sPZ}, 0\ns_cselect_b64 vcc, -1, 0" if OPT.get('pz') else ""))]
        if k == 57 and OPT.get('pz'): b(f"L_t57{sfx}:")
        if k > CK and OPT.get('stg'):
            pos = (3, 5, 7, 11, 17, 23, 31, 34, 37, 40, 54, 57) if k < 62 else (3, 5, 7, 11)
            if CK == 57: pos = (3, 7, 11, 17, 23, 33, 38, 55) if k < 62 else ()
            for g in pos:
                ex.append((g, early.pop(0)))
                while early and early[0].startswith("s_"): ex.append((g + 1, early.pop(0)))
            if k == 61: ex += [(58 + i_, x) for i_, x in enumerate(p2_stage_init())]
            if k >= 62:
                gs = iter((17, 23, 30, 32, 34, 36, 38, 40, 54, 55, 56, 57) if k == 62 else (17, 23, 30, 33, 36, 39, 50, 52, 54, 55, 56, 57))
                g = 15
                if CK == 57: gs = iter((3, 5, 7, 11, 17, 23, 30, 33, 36, 39, 54, 57)); g = 1
                seq_ = p2_stage(k - 62)
                for i_, x in enumerate(seq_):
                    if x.startswith("buffer_"): g = next(gs); ex.append((g, x))
                    elif x.startswith("s_add_u32 m0"): ex.append((g + 1, x))
                    else: ex.append((g + 1, x))
        elif k >= 60:
            for g in ((3, 7, 11, 17, 23, 33, 38, 55) if OPT.get('pre8') else (3, 7, 11, 17, 23, 45 if LM else 44)):
                if OPT.get('pz'):
                    t_ = [early.pop(0) + " condp"]
                    while early and early[0].startswith("s_"): t_.append(early.pop(0))
                    ex.append((g, f"s_cbranch_vccz L_sk{k}_{g}{sfx}\n" + "\n".join(t_) + f"\nL_sk{k}_{g}{sfx}:"))
                    continue
                ex.append((g, early.pop(0)))
                while early and early[0].startswith("s_"): ex.append((g + 1, early.pop(0)))
        attn_stage(b, k, nq, ex)
    assert not early
    p2 = []
    for s_ in (2, 3): p2 += p2_w(s_) + p2_o(s_) + p2_adv(s_)
    if OPT.get('pre8'): p2 = p2[8:]
    st = lsum([0, 1]) + onorm(0, False, f1)
    if OPT.get('stg'): b('s_waitcnt vmcnt(32)')
    drain(st, p2)
    stamp(b, 5)
    body = st + zipper(onorm(1, True, f1), lsum(hi), 2, 1)
    for q in hi: body += onorm(q, True, f1)
    body = [x + " ; tag=OS" if x.startswith("buffer_store") else x for x in body]
    nld = sum(1 for x in p2 if x.startswith("buffer_"))
    per = max(1, len(body) // (nld + 2))
    seq = []
    while body or p2:
        if p2:
            seq.append(p2.pop(0))
            while p2 and p2[0].startswith("s_"): seq.append(p2.pop(0))
        for _ in range(per):
            if body: seq.append(body.pop(0))
    outst = 48 - nld
    for x in seq:
        if x.startswith("buffer_"):
            if outst >= 62: b("s_waitcnt vmcnt(52)"); outst = 52
            outst += 1
        b(x)
    b.ext(vote_write())
    stamp(b)
    if OPT.get('pz'): b(f"s_cmp_eq_u32 s{sPZ}, 1\ns_cbranch_scc1 L_p2p{sfx}\nALTFROM p")
    b(f"L_p2s{sfx}:")
    if OPT.get('stg'):
        b(f"v_add_u32 v{VSB}, s{sSB}, v{VLN}\nv_add_u32 v{VSB+1}, 0x10000, v{VSB}")
        for s_ in range(4): p2_step(b, s_, s_ == 0, 'lds' if s_ < 2 else True, f"WAITV ; cover=P{s_}{',L%d' % (4 + s_) if s_ < 2 else ''} cap=51")
    else:
        for s_ in range(4): p2_step(b, s_, s_ == 0, s_ >= OPT.get('skip2', 0), f"WAITV ; cover=P{s_} cap=51")
    b("WAITV lgkmcnt(0) ; cover=OS")
    b("s_branch L_vote")
    b(f"""L_espin{sfx}:
    s_mov_b32 s{sLATE}, 1
    s_mov_b32 s{SO2+2}, 0
    s_mov_b32 s{SW2+2}, 0
    s_branch L_eok{sfx}""")
    if nq == 3:
        b(f"""L_sig:
        v_mov_b32 v4, {131072+7168}
        ds_read_b128 v[4:7], v4
        s_waitcnt lgkmcnt(0)
        v_or_b32 v4, v4, v5
        v_or3_b32 v4, v4, v6, v7
        v_readfirstlane_b32 s{sT}, v4
        s_mov_b64 exec, 1
        s_cmp_lg_u32 s{sSAFE}, 0
        s_cselect_b32 s{sT}, 0, s{sT}
        s_cbranch_scc1 L_sig1
        buffer_atomic_add v{VONE}, off, s[{SCN}:{SCN+3}], s{sCW} sc1
        L_sig1:
        s_or_b32 s{sT}, s{sT}, s{sSIG}
        s_cbranch_scc1 L_sig2
        s_add_u32 s{sT}, s{sCO}, 16384
        s_mov_b32 s{sSIG}, 1
        buffer_atomic_add v{VONE}, off, s[{SCN}:{SCN+3}], s{sT} sc1
        L_sig2:
        s_mov_b64 exec, -1
        s_branch L_nosig""")
        b(f"""L_hspin:
        s_mov_b32 s{sCNT}, 0
        L_hsp:
        s_sleep 8
        buffer_load_dword v{VHS}, off, s[{SDB}:{SDB+3}], 0 sc1
        s_waitcnt vmcnt(0)
        v_readfirstlane_b32 s{sT}, v{VHS}
        s_add_u32 s{sCNT}, s{sCNT}, 1
        s_lshr_b32 s{sT+1}, s{sCNT}, 17
        s_or_b32 s{sT}, s{sT}, s{sT+1}
        s_cmp_eq_u32 s{sT}, 0
        s_cbranch_scc1 L_hsp
        s_branch L_hsok""")
    for uid in QSPINS:
        b(f"""L_fs{uid}:
        ds_read_b128 {vr(QF,4)}, v{QFB}
        s_waitcnt lgkmcnt(0)
        v_min3_u32 v{QF}, v{QF}, v{QF+1}, v{QF+2}
        v_min_u32 v{QF}, v{QF}, v{QF+3}
        v_cmp_gt_u32 vcc, s{sFQ}, v{QF}
        s_cbranch_vccnz L_fs{uid}
        s_branch L_fr{uid}""")
    QSPINS.clear()
    for uid in SPINS:
        b(f"""L_fs{uid}:
        {"s_sleep %d" % OPT['fss'] if OPT.get('fss') else ""}
        ds_read_b128 {vr(FQ,4)}, v{VFB}
        s_waitcnt lgkmcnt(0)
        v_min3_u32 v{FQ}, v{FQ}, v{FQ+1}, v{FQ+2}
        v_min_u32 v{FQ}, v{FQ}, v{FQ+3}
        v_cmp_gt_u32 vcc, s{sFV}, v{FQ}
        s_cbranch_vccnz L_fs{uid}
        s_branch L_fr{uid}""")
    SPINS.clear()
    if OPT.get('pz'):
        b(f"""L_pchk{sfx}:
        v_mov_b32 v5, {DEC}
        ds_read_b32 v4, v5
        s_waitcnt lgkmcnt(0)
        v_readfirstlane_b32 s{sT}, v4
        s_cmp_eq_u32 s{sT}, 0
        s_cbranch_scc1 L_pret{sfx}
        s_mov_b32 s{sPW}, 99
        s_mov_b32 s{sPZ}, 1""")
        w_, o_, a_ = pz_loads(0, 0)
        ld = w_ + o_ + a_
        drain([], ld)
        b.ext(ld)
        w_, o_, a_ = pz_loads(1, 1)
        b.ext(w_ + o_ + a_)
        b("s_branch L_pz")
        b(f"L_pzr{sfx}:")
        b.ext([x.split(';')[0] for x in k_reads(0, 0)])
        b("s_waitcnt lgkmcnt(0)")
        t_ = B(); attn_stage(t_, 8, nq, resume=True); b.ext([x.split(';')[0] for x in t_.L])
        b(f"s_cmp_eq_u32 s{sCNT}, 1\ns_cbranch_scc1 L_at1{sfx}\ns_branch L_t57{sfx}")
        b(f"ALTBEGIN p\nL_p2p{sfx}:")
        b(f"s_add_u32 s{sT}, s{sXB}, 131072\nv_add_u32 v5, s{sT}, v{VLN}")
        for i_ in range(4): b(f"ds_read_b128 {vr(240+4*i_,4)}, v5 offset:{1024*i_}")
        l0 = p2_w(0) + p2_o(0) + p2_adv(0); l1 = p2_w(1) + p2_o(1) + p2_adv(1)
        for i_ in range(128):
            b(f"v_accvgpr_read_b32 v{112+i_}, a{128+i_}")
            if i_ >= 64 and i_ % 4 == 3 and l0:
                b(l0.pop(0))
                while l0 and l0[0].startswith("s_"): b(l0.pop(0))
        b("WAITV ; cover=P2 cap=40")
        b.ext(l1)
        b("s_waitcnt lgkmcnt(0)")
        for s_ in (2, 3): p2_step(b, s_, False, True, f"WAITV ; cover=P{s_} cap=51")
        b("WAITV lgkmcnt(0) ; cover=OS")
        b("s_branch L_vote\nALTEND p")
    b(f"L_maxpass{sfx}:")
    for q in range(nq): b(f"v_mov_b32 v{T0+8+q}, 0xff800000")
    for s2 in range(4): b(f"v_add_u32 v{T0+12+s2}, 147456, v{KA+s2}")
    b(f"s_lshl_b32 s{sT}, s{sHEAD}, 18\ns_mov_b32 s{sCNT}, 0")
    b(f"L_mp{sfx}:")
    b(f"s_barrier\ns_add_u32 m0, s{sKB}, 147456")
    b(dma(DK0, SK, f"s{sT}", 0, "", "MP")); b(dma(DK1, SK, f"s{sT}", 1024, "", "MP"))
    b("s_waitcnt vmcnt(0)\ns_barrier")
    for kt in range(2):
        for s in range(4):
            b(f"ds_read_b128 {ar(ASP+4*(4*kt+s),4)}, v{T0+12+s} offset:{kt*4096}")
    b("s_waitcnt lgkmcnt(0)")
    for q in range(nq):
        for kt in range(2):
            for s in range(4):
                d = vr(S_ + 8 * q + 4 * kt, 4)
                b(f"{MF} {d}, {ar(ASP+4*(4*kt+s),4)}, {ar(AQ(q)+4*s,4)}, {d if s else '0'}")
    for q in range(nq):
        for e in range(0, 8, 2): b(f"v_max3_f32 v{T0+8+q}, v{T0+8+q}, v{S_+8*q+e}, v{S_+8*q+e+1}")
    b(f"s_add_u32 s{sT}, s{sT}, 8192\ns_add_u32 s{sCNT}, s{sCNT}, 1\ns_cmp_lt_u32 s{sCNT}, 32\ns_cbranch_scc1 L_mp{sfx}")
    b("s_barrier")
    xlane_reduce_multi(b, [T0 + 8 + q for q in range(nq)], [T0 + q for q in range(nq)], "v_max_f32")
    for q in range(nq):
        for r in range(4): b(f"v_sub_f32 v{CI+4*q+r}, 0, v{T0+8+q}")
    b(f"s_cmp_eq_u32 s{sHEAD}, 0\ns_cbranch_scc1 L_maxdone0{sfx}\ns_branch L_maxdone1{sfx}")

FA = [144, 192, 0, 96]
def p2_reg(slot, i):
    if OPT.get('pre8'):
        if slot == 2: return 128 + 4 * i if i < 4 else (240 + 4 * (i - 4) if i < 8 else 4 * (i - 8))
        if slot == 3: return 16 + 4 * i
    if slot == 3: return 48 + 4 * i if i < 4 else 96 + 4 * (i - 4)
    return FA[slot] + 4 * i
def pz_reg(slot, i):
    return ar((0, 64)[slot] + 4 * i, 4) if i < 8 else vr((32, 48)[slot] + 4 * (i - 8), 4)
def pz_acc(t): return ar(128 + 4 * t, 4) if t < 32 else vr(16 + 4 * (t - 32), 4)
def pz_loads(slot, L):
    f = K2F[OPT.get('p2f', 2)]
    w = [f"buffer_load_dwordx4 {pz_reg(slot, i)}, v{VPW + i//3}, s[{SW2}:{SW2+3}], s{sW2} offen offset:{1024*(i%3)}{f}" for i in range(6)]
    o = [f"buffer_load_dwordx4 {pz_reg(slot, 6+i)}, v{VPO + i//3}, s[{SO2}:{SO2+3}], s{sO2} offen offset:{1024*(i%3)}{f}" for i in range(6)]
    return w, o, p2_adv(L % 4)
VPW = 2; VPO = 8
def p2_w(slot): return [f"buffer_load_dwordx4 {ar(p2_reg(slot, i),4)}, v{VPW + i//3}, s[{SW2}:{SW2+3}], s{sW2} offen offset:{1024*(i%3)}{K2F[OPT.get('p2wf', OPT.get('p2f', 2))]} ; tag=P{slot}" for i in range(6)]
def p2_o(slot): return [f"buffer_load_dwordx4 {ar(p2_reg(slot, 6+i),4)}, v{VPO + i//3}, s[{SO2}:{SO2+3}], s{sO2} offen offset:{1024*(i%3)}{K2F[OPT.get('p2f', 2)]} ; tag=P{slot}" for i in range(6)]
def p2_adv(slot):
    m = 5 if slot == 3 else 1
    out = [f"s_add_u32 s{sO2}, s{sO2}, {m*122880}", f"s_add_u32 s{sW2}, s{sW2}, {m*36864}"]
    if slot == 3 and OPT.get('krot'):
        out += ["s_add_u32 s93, s93, 1", "s_and_b32 s93, s93, 3", "s_cselect_b32 s94, 0, 32", "s_mul_i32 s95, s94, 122880",
                f"s_sub_u32 s{sO2}, s{sO2}, s95", "s_mul_i32 s95, s94, 36864", f"s_sub_u32 s{sW2}, s{sW2}, s95"]
    return out
def p2_init():
    if OPT.get('s2t'): return f"s_mul_i32 s{sO2}, s92, {32*122880}\ns_mul_i32 s{sW2}, s92, {32*36864}"
    if not OPT.get('krot'): return f"s_mul_i32 s{sO2}, s{sWAVE}, {32*122880}\ns_mul_i32 s{sW2}, s{sWAVE}, {32*36864}"
    return f"s_lshl_b32 s93, s{sWAVE}, 2\ns_add_u32 s93, s93, s92\ns_mul_i32 s{sO2}, s93, {8*122880}\ns_mul_i32 s{sW2}, s93, {8*36864}\ns_mov_b32 s93, s92"

def p2_stage(i):
    f = K2F[OPT.get('p2f', 2)]; out = []
    for grp, (v_, srd, so) in enumerate(((VPW, SW2, 93), (VPW + 1, SW2, 93), (VPO, SO2, 92), (VPO + 1, SO2, 92))):
        out.append(f"s_add_u32 m0, s{sSB}, {65536 * i + 3072 * grp}")
        out += [f"buffer_load_dwordx4 v{v_}, s[{srd}:{srd+3}], s{so} offen offset:{1024*j}{f} lds ; tag=L{4+i}" for j in range(3)]
    out += ["s_add_u32 s92, s92, 122880", "s_add_u32 s93, s93, 36864"]
    return out
def p2_stage_init():
    return [f"s_mul_i32 s{sSB}, s{sWAVE}, 12288", f"s_mul_i32 s92, s{sWAVE}, {32*122880}", f"s_add_u32 s92, s92, {8*122880}",
            f"s_mul_i32 s93, s{sWAVE}, {32*36864}", f"s_add_u32 s93, s93, {8*36864}"]

def vote_write():
    return [f"v_mov_b32 v4, s{sFLAG}", f"s_lshl_b32 s{sT}, s{sWAVE}, 2", f"s_add_u32 s{sT}, s{sT}, {131072+7168}",
            f"v_mov_b32 v5, s{sT}", "ds_write_b32 v5, v4"]

P2ACC = 112
def p2_acc(q, n): return P2ACC + 4 * (6 * q + n)
def p2_step(b, slot, first, prefetch, wait, order=None, extra=None):
    b(wait)
    order = order or [(q, n) for q in range(6) for n in range(6)]
    slots = []; gaps = [[] for _ in range(36)]
    for q, n in order:
        a_ = vr(p2_acc(q, n), 4)
        slots.append(f"{MF} {a_}, {ar(p2_reg(slot, n),4)}, {ar(p2_reg(slot, 6+q),4)}, {'0' if first else a_}")
    if prefetch:
        o_, w_ = p2_o(slot), p2_w(slot)
        if prefetch == 'lds':
            w_ = [f"ds_read_b128 {ar(p2_reg(slot, i),4)}, v{VSB + slot} offset:{1024*i}" for i in range(6)]
            o_ = [f"ds_read_b128 {ar(p2_reg(slot, 6+i),4)}, v{VSB + slot} offset:{1024*(6+i)}" for i in range(6)]
        for q in range(6): gaps[6 * q + 5].append(o_[q])
        for n in range(6): gaps[30 + n].append(w_[n])
        gaps[35] += p2_adv(slot)
    for g, x in (extra or []): gaps[g].append(x)
    emit_slots(b, slots, gaps)

def phase2(b):
    D = 4
    acc = p2_acc
    def step(slot, first, prefetch, N, order=None, extra=None): p2_step(b, slot, first, prefetch, f"s_waitcnt vmcnt({N})", order, extra)
    b(f"""L_vote:
    s_cmp_eq_u32 s{sLATE}, 2
    s_cbranch_scc1 L_go
    v_mov_b32 v5, {131072+7168}
    s_barrier
    ds_read_b128 v[16:19], v5
    s_waitcnt lgkmcnt(0)
    v_or_b32 v16, v16, v17
    v_or3_b32 v16, v16, v18, v19
    v_readfirstlane_b32 s{sT}, v16
    s_cmp_lg_u32 s{sSAFE}, 0
    s_cselect_b32 s{sT}, 0, s{sT}
    s_cmp_lg_u32 s{sT}, 0
    s_cbranch_scc1 L_redo
    s_cmp_eq_u32 s{sWAVE}, 3
    s_cbranch_scc0 L_nosig2
    s_mov_b64 exec, 1
    buffer_atomic_add v{VONE}, off, s[{SCN}:{SCN+3}], s{sCO} sc1
    s_mov_b64 exec, -1
    L_nosig2:""")
    stamp(b)
    b(f"""s_cmp_eq_u32 s{sIDLE}, 1
    s_cbranch_scc1 L_fini
    s_cmp_eq_u32 s{sLATE}, 1
    s_cbranch_scc1 L_lateld
    L_go:
    s_xor_b32 s70, s{sWAVE}, 1
    s_mul_i32 s70, s70, 27648
    v_add_u32 v16, s70, v{VLN}
    s_xor_b32 s70, s{sWAVE}, 2
    s_mul_i32 s70, s70, 27648
    s_add_u32 s70, s70, 9216
    v_add_u32 v17, s70, v{VLN}
    s_xor_b32 s70, s{sWAVE}, 3
    s_mul_i32 s70, s70, 27648
    s_add_u32 s70, s70, 18432
    v_add_u32 v18, s70, v{VLN}
    s_mul_i32 s70, s{sWAVE}, 27648
    v_add_u32 v19, s70, v{VLN}
    v_and_b32 v20, 15, v0
    v_mul_u32_u24 v20, 112, v20
    v_bfe_u32 v21, v0, 4, 2
    v_lshl_add_u32 v20, v21, 3, v20
    v_add_u32 v20, s70, v20            ; bf16 staging write address: row*96 + g*8
    v_and_b32 v21, 63, v0
    s_mov_b32 s71, 0x2aab""")
    for r in range(5):
        b(f"""v_add_u32 v22, {64*r}, v21
        v_mul_u32_u24 v23, s71, v22
        v_lshrrev_b32 v23, 16, v23
        v_mul_u32_u24 v{42+r}, {2304 - 96}, v23
        v_lshl_add_u32 v{42+r}, v22, 4, v{42+r}
        v_add_u32 v23, v23, v22
        v_lshlrev_b32 v23, 4, v23
        v_add_u32 v{68+r}, s70, v23""")
    b(f"""v_cmp_gt_u32 vcc, 32, v21
    v_mov_b32 v22, 0x7f000000
    v_cndmask_b32 v46, v22, v46, vcc
    s_mov_b32 s88, s{sOUT}
    s_mov_b32 s89, s{sOUT+1}
    s_mov_b32 s90, {8*240*1152*2}
    s_mov_b32 s91, 0x20000
    v_lshlrev_b32 v76, 3, v{VLN}
    v_min_u32 v76, L_fini-L_tail, v76
    v_add_u32 v76, L_tail-attn_kernel, v76
    v_mov_b32 v77, s95
    v_add_co_u32 v76, vcc, s94, v76
    v_addc_co_u32 v77, vcc, 0, v77, vcc
    s_mov_b32 s36, 0
    {f"s_cmp_eq_u32 s{sPZ}, 1" if OPT.get('pz') else ""}
    {"s_cbranch_scc1 L_chk2" if OPT.get('pz') else ""}
    .p2align 3
    L_k2:""")
    for s_ in range(D):
        ex = [(0, f"buffer_load_dword v6, v{VP2}, s[{SCN}:{SCN+3}], 0 offen sc1")] if s_ == 0 else None
        if s_ == 2 and OPT.get('rewt'): ex = [(0, "global_load_dword v78, v[76:77], off")]
        step(s_, False, True, 36, extra=ex)
    b("""s_add_u32 s36, s36, 1
    s_cmp_eq_u32 s36, 2
    s_cbranch_scc1 L_chk
    L_chkd:
    s_cmp_lt_u32 s36, 6
    s_cbranch_scc1 L_k2""")
    b("L_tail:")
    for s_ in range(D - 1): step(s_, False, False, 12 * (D - 1 - s_))
    stamp(b)
    quad = lambda q, n: (q // 3) * 2 + (n // 3)
    oth = [(q, n) for d in (1, 2, 3) for q in range(6) for n in range(6) if quad(q, n) == d]
    mine = [(q, n) for q in range(3) for n in range(3)]
    wr = [(min(i_ + 5, 35), f"ds_write_b128 v{15 + quad(q, n)}, {vr(acc(q, n),4)} offset:{((q % 3) * 3 + n % 3) * 1024}") for i_, (q, n) in enumerate(oth)]
    if OPT.get('stg'): b("s_barrier")
    step(D - 1, False, False, 0, order=oth + mine, extra=wr)
    if OPT.get('rstamps'): stamp(b)
    b("s_waitcnt lgkmcnt(0)\ns_barrier")
    if OPT.get('rstamps'): stamp(b)
    for t in range(9):
        for src in range(3):
            b(f"ds_read_b128 {vr(acc(*oth[3*t+src]),4)}, v19 offset:{src * 9216 + t * 1024}")
    nw = 0
    for t0 in range(0, 9, 3):
        ts = range(t0, t0 + 3)
        b(f"s_waitcnt lgkmcnt({min(15, 3 * (6 - t0) + nw)})")
        for ph in range(3):
            for t in ts:
                r0, r1, r2, m = acc(*oth[3*t]), acc(*oth[3*t+1]), acc(*oth[3*t+2]), acc(*mine[t])
                x_, y_ = ((r0, r1), (m, r2), (m, r0))[ph]
                for r in (0, 2): b(f"v_pk_add_f32 v[{x_+r}:{x_+r+1}], v[{x_+r}:{x_+r+1}], v[{y_+r}:{y_+r+1}]")
        for t in ts:
            m = acc(*mine[t])
            b(f"v_cvt_pk_bf16_f32 v{24+2*t}, v{m}, v{m+1}\nv_cvt_pk_bf16_f32 v{25+2*t}, v{m+2}, v{m+3}")
        for t in ts:
            q, n = mine[t]
            b(f"ds_write_b64 v20, v[{24+2*t}:{25+2*t}] offset:{q * 1792 + n * 32}"); nw += 1
    for r in range(5): b(f"ds_read_b128 {vr(48+4*r,4)}, v{68+r}")
    for r in range(5):
        b(f"s_waitcnt lgkmcnt({4-r})")
        b(f"buffer_store_dwordx4 {vr(48+4*r,4)}, v{42+r}, s[88:91], s{sOUTO} offen{K2F[OPT.get('outf', 0)]}")
    if OPT.get('rstamps'): stamp(b)
    b("L_fini:")
    if OPT.get('fixspan'):
        b(f"""s_waitcnt vmcnt(0)
        L_fix:
        s_memrealtime s[74:75]
        s_waitcnt lgkmcnt(0)
        s_sub_u32 s74, s74, s72
        s_cmp_lt_u32 s74, {OPT['fixspan'] * 100}
        s_cbranch_scc1 L_fix""")
    stamp_dump(b, 0, sWAVE)
    b("s_endpgm")
    if OPT.get('pz'):
        b("L_pz:")
        for j in range(10):
            sl = j % 2
            b(f"s_waitcnt vmcnt({12 if j < 9 else 0})")
            slots = []; gaps = [[] for _ in range(36)]
            for q in range(6):
                for n in range(6):
                    a_ = pz_acc(6 * q + n)
                    slots.append(f"{MF} {a_}, {pz_reg(sl, n)}, {pz_reg(sl, 6+q)}, {'0' if j == 0 else a_}")
            if j < 8:
                w_, o_, ad = pz_loads(sl, j + 2)
                for q in range(6): gaps[6 * q + 5].append(o_[q])
                for n in range(6): gaps[30 + n].append(w_[n])
                gaps[35] += ad
            emit_slots(b, slots, gaps)
        b(f"s_add_u32 s{sT}, s{sXB}, 131072\nv_add_u32 v5, s{sT}, v{VLN}\nv_mov_b32 v{VCW}, v{VTH}")
        for i_ in range(4): b(f"ds_write_b128 v5, {vr(16+4*i_,4)} offset:{1024*i_}")
        b(f"s_cmp_eq_u32 s{sWAVE}, 3\ns_cbranch_scc1 L_pzr3\ns_branch L_pzr4")
        b(f"""L_chk2:
        s_mov_b32 s36, 2
        buffer_load_dword v6, v{VP2}, s[{SCN}:{SCN+3}], 0 offen sc1
        s_waitcnt vmcnt(0)""")
    b(f"""L_chk:
    s_waitcnt vmcnt(48)
    s_{"add" if OPT.get('krot') else "sub"}_u32 s{sO2}, s{sO2}, {(4 if OPT.get('krot') else 28)*122880}
    s_{"add" if OPT.get('krot') else "sub"}_u32 s{sW2}, s{sW2}, {(4 if OPT.get('krot') else 28)*36864}
    v_cmp_gt_u32 vcc, 4, v6
    s_cbranch_vccz L_chkd
    s_mov_b32 s37, 0
    L_poll:
    s_sleep 4
    buffer_load_dword v6, v{VP2}, s[{SCN}:{SCN+3}], 0 offen sc1
    s_add_u32 s37, s37, 1
    s_waitcnt vmcnt(0)
    v_cmp_gt_u32 vcc, 4, v6
    s_cbranch_vccz L_chkd
    s_cmp_lt_u32 s37, 0x20000
    s_cbranch_scc1 L_poll
    s_branch L_chkd
    L_lateld:
    s_mov_b32 s{SO2+2}, s100
    s_mov_b32 s{SW2+2}, s101
    {p2_init()}
    s_mov_b32 s{sLATE}, 2
    s_mov_b32 s37, 0
    L_esp:
    s_sleep 4
    buffer_load_dword v{VCW}, v{VPE}, s[{SCN}:{SCN+3}], 0 offen sc1
    s_add_u32 s37, s37, 1
    s_waitcnt vmcnt(0)
    v_cmp_gt_u32 vcc, v{VTH}, v{VCW}
    s_cbranch_vccz L_espd
    s_cmp_lt_u32 s37, 0x20000
    s_cbranch_scc1 L_esp
    L_espd:
    {"buffer_inv sc1" if OPT.get('acq') else ""}""")
    for s_ in range(4): b.ext(p2_w(s_) + p2_o(s_) + p2_adv(s_))
    if OPT.get('stg'):
        b("s_waitcnt vmcnt(0)"); b.ext(p2_stage_init() + p2_stage(0) + p2_stage(1))
    b(f"""s_waitcnt vmcnt(0)
    s_cmp_eq_u32 s{sWAVE}, 3
    s_cbranch_scc1 L_p2s3
    s_branch L_p2s4
    L_redo:
    s_mov_b32 s{sSAFE}, 1
    s_waitcnt vmcnt(0)
    s_barrier""")
    warm_addr(b)
    prologue_a(b)
    b.ext(x_dma(0, 4)); b.ext(w_dma(0, 4))
    b("s_branch L_tramp")

def kernel1():
    b = B()
    b("attn_kernel:")
    b("s_cmp_lt_u32 s2, 256\ns_cbranch_scc1 L_work\ns_endpgm\nL_work:")
    if OPT['stamps']: b("s_mov_b32 s96, 0\nv_mov_b32 v14, 0\nv_mov_b32 v15, 0")
    stamp(b)
    if OPT.get('fixspan') and not OPT.get('fixat'): b("s_memrealtime s[72:73]\ns_waitcnt lgkmcnt(0)")
    b("s_load_dwordx16 s[48:63], s[0:1], 0\ns_load_dwordx4 s[64:67], s[0:1], 64\ns_load_dwordx2 s[100:101], s[0:1], 96\ns_load_dwordx4 s[76:79], s[0:1], 80")
    b(f"""s_mov_b32 s97, s2
    s_and_b32 s3, s2, 7
    s_lshr_b32 s2, s2, 3""")
    warm_code(b)
    b(f"""v_lshrrev_b32 v1, 6, v0
    s_bfe_u32 s68, s3, {0x10001 if OPT.get('map') else 0x10000}
    s_lshl_b32 s68, s68, 2
    s_and_b32 s69, s2, 3
    s_add_u32 s68, s68, s69        ; b
    v_readfirstlane_b32 s{sWAVE}, v1
    s_bfe_u32 s69, s3, {0x10000 if OPT.get('map') else 0x10001}
    s_lshl_b32 s69, s69, 3
    s_lshr_b32 s70, s2, 2
    s_add_u32 s69, s69, s70        ; hp
    s_lshr_b32 s3, s3, 2           ; blk
    s_lshl_b32 s{sWB}, s{sWAVE}, 12
    s_lshl_b32 s{sXB}, s{sWAVE}, 13
    s_mov_b32 s{sC}, {CSCALE}
    s_mov_b32 s{sC+1}, {CSCALE}
    s_mov_b32 s{sSAFE}, 0
    s_mov_b32 s{sFLAG}, 0""")
    prologue_a(b)
    b(f"""s_cmp_eq_u32 s3, 0
    s_waitcnt lgkmcnt(0)
    s_cselect_b64 s[48:49], s[48:49], s[58:59]
    s_cselect_b64 s[50:51], s[50:51], s[60:61]
    s_cselect_b64 s[52:53], s[52:53], s[62:63]
    s_cselect_b64 s[54:55], s[54:55], s[64:65]
    s_cselect_b64 s[56:57], s[56:57], s[66:67]""")
    if OPT.get('sstamps'): stamp(b)
    b(f"""s_mul_i32 s71, s68, 276480
    s_add_u32 s{SX}, s48, s71
    s_addc_u32 s{SX+1}, s49, 0
    s_mov_b32 s{SX+2}, 276480
    s_mov_b32 s{SX+3}, 0x20000
    s_lshl_b32 s71, s69, 9
    s_add_u32 s{SW}, s54, s71
    s_addc_u32 s{SW+1}, s55, 0
    s_sub_u32 s{SW+2}, 4718592, s71
    s_mov_b32 s{SW+3}, 0x20000""")
    b("L_srdok:")
    prologue_b(b)
    b(f"""s_cmp_eq_u32 s{sWAVE}, 3
    s_cbranch_scc1 L_begin3""")
    wave_code(b, 4, "4")
    b("L_tramp:\ns_branch L_late")
    b(".p2align 6")
    wave_code(b, 3, "3")
    b("L_phase2:")
    phase2(b)
    b("L_end1:\ns_endpgm\nL_codeend:")
    return b.L

def resolve_waits(L):
    out = []
    for i, x in enumerate(L):
        if x.startswith("WAITL"):
            tag = x.split()[1]
            n, T = tag[1:].split('.'); T = int(T)
            dst = set(range(AW + 8 * (T % 4), AW + 8 * (T % 4) + 8))
            cnt = 0; found = False
            for y in reversed(out):
                if y.startswith(("s_waitcnt", "WAITV")) and "lgkmcnt(0)" in y:
                    found = True; cnt = None; break
                if y.startswith("ds_"):
                    I = Ins(y)
                    if any(k == 'a' and r in dst for k, r in I.wr) or (T == 0 and 'need=X' in y):
                        found = True; break
                    cnt += 1
            assert found, x
            if cnt is not None:
                cnt = min(cnt, 15)
                out.append(f"s_waitcnt lgkmcnt({cnt})")
        else: out.append(x)
    return out

def expand_trace(L):
    def shift(line, name, it, step):
        if it == 0: return line
        def rep(m):
            k, n = m.group(1), int(m.group(2))
            if name == 'qp':
                if k == 'W': return f"W{n + step*it}"
                if k == 'X': return f"X{n + step*it//2}"
                return m.group(0)
            if k == 'KV': return f"KV{n + step*it}"
            return m.group(0)
        if ';' not in line: return line
        a, c = line.split(';', 1)
        return a + ';' + re.sub(r'\b(KV|W|X)(\d+)\b', rep, c)
    bodies = {}
    def go(i, stop):
        res = []
        while i < len(L):
            x = L[i]
            if x.startswith("LOOPBEGIN"):
                _, name, cnt, step = x.split(); cnt = int(cnt); step = int(step)
                body, j = go(i + 1, name)
                bodies[name] = (body, cnt, step)
                for it in range(cnt):
                    for y in body:
                        if y == f"LOOPEXIT {name}":
                            if it == cnt - 1: break
                            continue
                        res.append(shift(y, name, it, step))
                i = j + 1; continue
            if x.startswith("REPLAY"):
                _, name, off, cnt = x.split(); cnt = int(cnt); body, _, step = bodies[name]
                for it in range(cnt):
                    for y in body: res.append(shift(shift(y, name, it, step), name, 1, int(off)))
                i += 1; continue
            if x.startswith("LOOPEND") and x.split()[1] == stop: return res, i
            res.append(x); i += 1
        return res, i
    return go(0, None)[0]

STOPS = ("L_maxpass", "L_hspin", "L_espin")
def traces(L):
    tr = expand_trace(L)
    main = []
    for x in tr:
        if x.startswith(STOPS): break
        main.append(x)
    alt = None
    if "ALTFROM p" in main:
        i = tr.index("ALTBEGIN p"); j = tr.index("ALTEND p")
        alt = [x for x in main[:main.index("ALTFROM p")] if 'condp' not in x] + tr[i + 1:j]
    drop = lambda t: [x for x in t if not x.startswith("ALT")]
    return drop(main), drop([x for x in main if 'condp' not in x]), alt

def resolve_vm(L):
    idx = [f"{x} ;#{i}" if x.startswith("WAITV") else x for i, x in enumerate(L)]
    best = {}
    main, lean, alt = traces(idx)
    for which, tr in (("main", main), ("lean", lean), ("alt", alt or [])):
        q = []
        for x in tr:
            c = x.split(';', 1)[1] if ';' in x else ''
            if x.startswith(("buffer_", "global_")):
                if 'cond' in c and 'condp' not in c: continue
                m = re.search(r'tag=(\w+)', c); q.append(m.group(1) if m else 'other')
            elif x.startswith("WAITV"):
                tags = set(re.search(r'cover=([\w,]*)', c).group(1).split(','))
                if which == "lean" and any(t[:1] == 'P' or t == 'OS' for t in tags): continue
                i = int(x.rsplit('#', 1)[1])
                n = 0
                for t in reversed(q):
                    if t in tags: break
                    n += 1
                else: n = 63
                m = re.search(r'cap=(\d+)', c)
                best[i] = min(best.get(i, 63), n, int(m.group(1)) if m else 63)
    out = []
    for i, x in enumerate(L):
        if x.startswith("WAITV"):
            a, c = x.split(';', 1) if ';' in x else (x, '')
            out.append(f"s_waitcnt vmcnt({best[i]}) {a[5:].strip()} ;{c}")
        else: out.append(x)
    return out

def check_protocol(L, label):
    q = []; done = set(); issued = {}; pub = set(); errs = 0
    holder = {}; lastread = {}; lg0 = -1; bar = -1; dq = []; snap = -1; qsnap = None
    for pos, x in enumerate(L):
        cc = x.split(';', 1)[1] if ';' in x else ''
        if 'PUB' in cc: snap = lg0; qsnap = list(q)
        if x.startswith("ds_"): dq.append(pos)
        m = re.search(r'lgkmcnt\((\d+)\)', x) if x.startswith("s_waitcnt") else None
        if m:
            while len(dq) > int(m.group(1)): dq.pop(0)
            lg0 = dq[0] - 1 if dq else pos
        if x.startswith("s_barrier"): bar = lg0
        if 'SYNC' in cc:
            bar = max(bar, snap)
            for t in re.search(r'pub=([\w,]*)', cc).group(1).split(','):
                if qsnap is not None and t in qsnap: print(label, "ERR published before landed", t); errs += 1
        m = re.search(r'need=(\w+)', cc)
        if m and x.startswith("ds_read"):
            lastread[(m.group(1), ('K' if 'b128' in x else 'V') if m.group(1).startswith('KV') else '')] = pos
        m = re.search(r'tag=(\w+) reg=([\w,]+)', cc)
        if m:
            for r in m.group(2).split(','):
                old_ = holder.get(r)
                if old_ and old_ != m.group(1):
                    lr = lastread.get((old_, r[0] if old_.startswith('KV') else ''), -1)
                    private = old_[0] == 'X' and m.group(1)[0] == 'X'
                    if lr > (lg0 if private else bar): print(label, "ERR overwrite", r, old_, x); errs += 1
                holder[r] = m.group(1)
        c = x.split(';', 1)[1] if ';' in x else ''
        if x.startswith("buffer_") or x.startswith("global_"):
            if 'cond' in c and 'condp' not in c: continue
            m = re.search(r'tag=(\w+)', c); q.append(m.group(1) if m else 'other')
        elif x.startswith("s_waitcnt"):
            m = re.search(r'vmcnt\((\d+)\)', x)
            if m:
                n = int(m.group(1))
                while len(q) > n: done.add(q.pop(0))
            m = re.search(r'needtag=(\w+)', c)
            if m and m.group(1) in q: print(label, "ERR needtag", x); errs += 1
        elif x.startswith("s_barrier") or 'SYNC' in c:
            m = re.search(r'pub=([\w,]*)', c)
            if m:
                for t in m.group(1).split(','):
                    if not t: continue
                    if t in q or (t not in done and not (label[:2] == 'w3' and t[0] in 'XW')): print(label, "ERR publish not landed", t, x); errs += 1
                    pub.add(t)
        elif x.startswith("ds_read"):
            m = re.search(r'need=(\w+)', c)
            if m and m.group(1) not in pub and m.group(1) != 'WO': print(label, "ERR read unpublished", x); errs += 1
        assert len(q) <= 63, ("vmcnt overflow", x)
    return errs

def burn(L):
    out = []; on = False; c = 0; k = 0
    for x in L:
        if x == 'BURNON': on = True; c = 0; continue
        if x == 'BURNOFF': on = False; continue
        out.append(x)
        if on and OPT.get('burn'):
            if x.startswith('v_mfma'): c = 0
            elif x.startswith('v_'):
                c += 1
                if c >= OPT['burn']:
                    c = 0; k += 1
                    out.append(f"{MF} v[4:7], a[{32+4*(k%8)}:{35+4*(k%8)}], a[{96+4*(k%7)}:{99+4*(k%7)}], v[4:7]")
    return out

def check_lgkm(L, label):
    dq = []; vq = []; errs = 0; cache = {}
    for x in L:
        t = x.split(';')[0].strip()
        I = cache.get(t)
        if I is None: I = cache[t] = Ins(t)
        if I.kind == 'label': continue
        if I.op == 's_waitcnt':
            m = re.search(r'lgkmcnt\((\d+)\)', t)
            if m:
                while len(dq) > int(m.group(1)): dq.pop(0)
            m = re.search(r'vmcnt\((\d+)\)', t)
            if m:
                while len(vq) > int(m.group(1)): vq.pop(0)
            continue
        use = I.rd | I.srcc | I.wr
        for w in dq + vq:
            if w & use: print(label, "ERR uncovered", x); errs += 1; break
        if I.kind in ('dsr', 'dsw'): dq.append(I.wr)
        if I.kind in ('vload', 'vstore', 'dma') and not ('cond' in x and 'condp' not in x): vq.append(I.wr)
    return errs

def finish(L):
    L = burn(L)
    L = resolve_waits(L)
    return L

def strip_markers(L):
    return [x for x in L if not x.startswith(("LOOPBEGIN", "LOOPEND", "LOOPEXIT", "REPLAY", "ALT"))]

DESC = """.section .rodata,"a"
.p2align 6
.amdhsa_kernel {name}
  .amdhsa_next_free_vgpr {vgpr}
  .amdhsa_next_free_sgpr 102
  .amdhsa_accum_offset 256
  .amdhsa_group_segment_fixed_size 0
  .amdhsa_kernarg_size 104
  .amdhsa_user_sgpr_count 2
  .amdhsa_user_sgpr_kernarg_segment_ptr 1
  .amdhsa_system_sgpr_workgroup_id_x 1
  .amdhsa_float_denorm_mode_32 3
.end_amdhsa_kernel
"""

def build(**kw):
    OPT.update(kw)
    k1 = finish(kernel1())
    i4 = k1.index("L_begin4:"); i3 = k1.index("L_begin3:"); iv = k1.index("L_phase2:")
    ip = k1.index("L_srdok:"); pre = k1[ip:i4]
    k1 = k1[:i4] + resolve_vm(pre + k1[i4:i3])[len(pre):] + resolve_vm(pre + k1[i3:iv])[len(pre):] + k1[iv:]
    e = 0
    for lab, part in (("w4", pre + k1[i4:i3]), ("w3", pre + k1[i3:])):
        main, lean, alt = traces(part)
        e += check_protocol(main, lab) + check_lgkm(main, lab)
        if alt: e += check_protocol(alt, lab + "alt") + check_lgkm(alt, lab + "alt")
    assert e == 0 or OPT.get('nocheck')
    k1 = strip_markers(k1)
    k1, n1, p1 = fix_hazards(k1)
    for p in p1: print("BRANCH HAZARD", p)
    assert not p1
    hdr = open("ref.txt").read().split("; Override")[0]
    KN = NAME + "_kernel"
    k1 = [x.replace("attn_kernel", KN) for x in k1]
    out = hdr
    out += """; Written with my own schedule generator (no compiler output).  One launch, 256 workgroups (one per CU), 4 waves each:
;  1. q-projection of two heads (x and Wq staged by LDS-DMA, 16x16x32 bf16 MFMA), scale log2(e)/sqrt(128) applied in fp32;
;  2. attention for the two heads, K/V streamed through an 8-tile LDS ring.  The softmax offset is the row maximum over the first
;     the workgroup starts over and uses the true row maximum over all 1024 keys (L_maxpass*).
;     hand it to the output projection, which the same workgroups run as 96x96 tiles (even heads first, odd heads after their hand-off).
; Waves 0-2 own four 16-query tiles (labels *4), wave 3 owns three (labels *3).
"""
    out += ("; @launch kernel=%s grid=(256,1,1) block=(256,1,1) lds=163840\n" % KN) if OPT.get('list') else "; @launch grid=(256,1,1) block=(256,1,1) lds=163840\n"
    out += '.amdgcn_target "amdgcn-amd-amdhsa--gfx950"\n.text\n'
    out += ".globl %s\n.p2align 8\n.type %s,@function\n" % (KN, KN) + "\n".join(k1) + "\n"
    out += DESC.format(name=KN, vgpr=512)
    return out, n1

if __name__ == "__main__":
    kw = {}
    for a in sys.argv[2:]:
        k, v = a.split('='); kw[k] = int(v)
    s, info = build(**kw)
    open(sys.argv[1], "w").write(s)
    print("nops inserted", info, "bytes", len(s))
```

```python
import sys, re
from asmlib import fix_hazards, Ins

NAME = "concat_heads__mha_block_cached__mha_block_cached__near_ridge"
MF = "v_mfma_f32_16x16x32_bf16"
CSCALE = 0x3e0293ee
LTHR = 0x4e800000

O_BLK = 128 * 122880
WOT_OFF = 2 * O_BLK
WOT_BLK = 128 * 36864
CNT_OFF = WOT_OFF + 2 * WOT_BLK

class B:
    def __init__(self): self.L = []
    def __call__(self, s):
        for x in s.split("\n"):
            x = x.strip()
            if x: self.L.append(x)
    def ext(self, l): self.L.extend(l)

def vr(b, n): return f"v[{b}:{b+n-1}]"
def ar(b, n): return f"a[{b}:{b+n-1}]"

def emit_slots(b, slots, gaps):
    for i, s in enumerate(slots):
        if s: b(s)
        nv = [x for x in gaps[i] if not x.startswith('v_')]
        v = [x for x in gaps[i] if x.startswith('v_')]
        for x in nv + v: b(x)

S_ = 16; P_ = 48; CI = 64; LS = 80
KA = 84
VA = 88
VWA = 105
DK0 = 96; DK1 = 97; DV0 = 98; DV1 = 99
VO = 100
VWO = 101
VWX = 102
VLN = 103
VPF = 104
VPD = 105
T0 = 108
O_ = 128
XA = 16; WA = 28; DX = 20; DW = 24
WSLOT = [49152, 114688, 131072, 147456]; sKB = 69
def AQ(q): return 32 + 64 * (q // 2) + 16 * (q % 2)
def AQ2(q): return 128 + 16 * q
AK = 0; AV = 64; ASP = 64
AX = 0; AW = 64
SX = 4; SW = 8; SK = 12; SV = 16; SO = 20; SWO = 24; SWT = 28
sWAVE = 32; sWB = 33; sKV = 34; sCNT = 35; sHEAD = 36; sSAFE = 37; sFLAG = 38
sXO = 39; sXO2 = 40; sWOFF = 41; sXB = 42; sOO = 43; sC = 44
sT = 46
sH0 = 68; sWOS = 64; sWTS = 65; sSTAMP = 72; SPF = 76; sPF = 68; sWXS = 67; sROT = 80; sLIN = 81
SCN = 48; SDB = 52; SO2 = 56; sCO = 60; sCW = 61; SIN = 84; SIF = 88; sOUT = 76; VHS = 106; VCW = 107; VONE = 104
SW2 = 80; sO2 = 98; sW2 = 99; sOUTO = 66; sOP = 41; VPE = 11; VTH = 12; VP2 = 13; VWE = 10; AST = 192; sSIG = 78; sLATE = 79; sIDLE = 67; sSB = 69; VSB = 4; sRT = 68; sLN = 71; sPW = 40; sPZ = 64; sST = 65; VPA = 102; DEC = 131072 + 7168 + 64; sFV = 39; VFA = 1; VFB = 101; FQ = 80; FLAGS = 131072 + 7168 + 32

OPT = dict(nt_kv=1, nt_w=0, nt_x=0, nt_wo=0, stamps=0, warm=1, of=2, of0=2, e67=1, bal=0, pair=1, pre8=1, fsa=1, fss=1, fsp=7, fsr=35, wts=1, sw2=2)

K2F = ['', ' nt', ' sc1', ' sc0 sc1', ' sc0', ' sc1 nt', ' sc0 sc1 nt']
def fl(k): return ["", " nt", " sc1 nt", " sc0 sc1 nt", " sc0 nt"][OPT[k]]

def dma(voff, srd, soff, off, flag, tag):
    return f"buffer_load_dwordx4 v{voff}, s[{srd}:{srd+3}], {soff} offen offset:{off}{flag} lds ; tag={tag}"

def kv_adv():
    if not OPT.get('rot'): return [f"s_add_u32 s{sKV}, s{sKV}, 8192"]
    return [f"s_add_u32 s{sLIN}, s{sLIN}, 8192", f"s_add_u32 s{sKV}, s{sLIN}, s{sROT}",
            f"s_and_b32 s{sKV}, s{sKV}, 0x3ffff", f"s_and_b32 s{sT+1}, s{sLIN}, 0xfffc0000", f"s_or_b32 s{sKV}, s{sKV}, s{sT+1}"]

def adv2(tmp):
    if not OPT.get('rot'): return [f"s_add_u32 s{sKV}, s{sKV}, 16384"]
    return [f"s_add_u32 s{sLN}, s{sLN}, 16384", f"s_add_u32 s{sKV}, s{sLN}, s{sRT}", f"s_and_b32 s{sKV}, s{sKV}, 0x3ffff",
            f"s_and_b32 s{tmp}, s{sLN}, 0x40000", f"s_or_b32 s{sKV}, s{sKV}, s{tmp}"]

def k_dma(tile, so=None):
    so = so or f"s{sKV}"
    return [f"s_add_u32 m0, s{sKB}, {(tile % 8) * 8192}",
            dma(DK0, SK, so, 0, fl('nt_kv'), f"KV{tile} reg=K{tile%8}"), dma(DK1, SK, so, 1024, fl('nt_kv'), f"KV{tile} reg=K{tile%8}")]
def v_dma(tile, so=None):
    so = so or f"s{sKV}"
    return [f"s_add_u32 m0, s{sKB}, {65536 + (tile % 8) * 8192}",
            dma(DV0, SV, so, 0, fl('nt_kv'), f"KV{tile} reg=V{tile%8}"), dma(DV1, SV, so, 1024, fl('nt_kv'), f"KV{tile} reg=V{tile%8}")]

DK2 = 232; DK3 = 233; DKA = 234; DKB = 235; DVA = 236; DVB = 237
def pair_dma3(isv, t0, tmp):
    out = []
    for t in (t0, t0 + 1):
        for h in range(2):
            out.append(f"s_mov_b32 m0, {(65536 if isv else 0) + (t % 8) * 8192 + 4096 * h}")
            if (t, h) != (t0, 0): out.append(f"s_add_u32 s{tmp}, s{sKV}, {(t - t0) * 8192 + 4096 * h}")
            so = f"s{sKV}" if (t, h) == (t0, 0) else f"s{tmp}"
            regs = (DVA, DVB, DVA, DVB) if isv else (DKA, DKB, DK2, DK3)
            for j in range(4):
                out.append(dma(regs[j], SV if isv else SK, so, 1024 * j, fl('nt_kv'), f"KV{t} reg={'V' if isv else 'K'}{t % 8}"))
    return out

def x_dma(m, nq):
    slot = 16384 if m % 2 else 81920
    out = []
    out.append(f"s_add_u32 m0, s{sXB}, {slot}")
    for j in range(4): out.append(dma(DX + j, SX, f"s{sXO}", 1024 * j, fl('nt_x'), f"X{m} reg=" + ("K2,K3,K4,K5" if m % 2 else "V2,V3,V4,V5")))
    out.append(f"s_add_u32 m0, s{sXB}, {slot + 4096}")
    for j in range(4 if nq == 4 else 2): out.append(dma(DX + j, SX, f"s{sXO2}", 1024 * j, fl('nt_x'), f"X{m} reg=" + ("K2,K3,K4,K5" if m % 2 else "V2,V3,V4,V5")))
    out.append(f"s_add_u32 s{sXO}, s{sXO}, 128")
    if OPT.get('qrot'):
        out += [f"s_cmp_eq_u32 s{sXO}, 1152", f"s_cselect_b32 s{sXO}, 0, s{sXO}", f"s_add_u32 s{sXO2}, s{sXO}, 36864"]
    else: out.append(f"s_add_u32 s{sXO2}, s{sXO2}, 128")
    return out

def w_dma(n, nq):
    out = [f"s_add_u32 m0, s{sWB}, {WSLOT[n % 4]}"]
    for j in range(4): out.append(dma(DW + j, SW, f"s{sWOFF}", 1024 * j, fl('nt_w'), f"W{n} reg=" + ("K6,K7", "V6,V7", "S2", "S3")[n % 4]))
    if n % 2 == 0: out.append(f"s_add_u32 s{sWOFF}, s{sWOFF}, 256")
    else:
        out.append(f"s_add_u32 s{sWOFF}, s{sWOFF}, {524288 - 256}")
        if OPT.get('qrot'): out += [f"s_cmp_eq_u32 s{sWOFF}, {9*524288}", f"s_cselect_b32 s{sWOFF}, 0, s{sWOFF}"]
    return out

def w_reads(n, T):
    sp_, a = T // 2, T % 2
    hl, sp = sp_ // 2, sp_ % 2
    out = []
    for s in range(2):
        for a2 in range(2):
            d = AW + 8 * (T % 4) + 4 * s + 2 * a2
            off = max(n % 4 - 1, 0) * 16384 + hl * 8192 + (32 * s + 4 * a2) * 128 + (0 if OPT.get('wnc') else 8 * a)
            out.append(f"ds_read_b64_tr_b16 {ar(d,2)}, v{WA + sp + (2 if n % 4 else 0)} offset:{off} ; need=W{n}")
    return out

def x_reads(m, nq):
    out = []
    for q in range(nq):
        for s in range(2):
            d = AX + 32 * (m % 2) + 8 * q + 4 * s
            out.append(f"ds_read_b128 {ar(d,4)}, v{XA + s + (0 if m % 2 else 2)} offset:{q * 2048} ; need=X{m}")
    return out

def qacc(hd, q, T):
    r = 128 + 32 * q + 4 * T
    return vr(r, 4) if hd == 0 else ar(r, 4)

def pf_load():
    return f"buffer_load_dword v{VPD}, v{VPF}, s[{SPF}:{SPF+3}], s{sPF} offen nt ; tag=PF"

def wo_dma():
    out = []
    for r in range(2):
        out.append(f"s_add_u32 m0, s{sWOS}, {4096*r}")
        for j in range(4):
            out += [f"PRE s_mov_b32 s{sT}, {8192*j + 512*r}", dma(VWO, SWO, f"s{sT}", 1024 * j, fl('nt_wo'), "WO")]
    out += [f"s_mov_b32 m0, s{sWTS}", dma(VWX, SWO, "0", 0, fl('nt_wo'), "WO")]
    return out
WOF = 32
def wo_reads():
    out = [f"ds_read_b64_tr_b16 {vr(WOF+16*r+4*tl+2*a,2)}, v{VWA} offset:{4096*r + 2048*a + 32*tl} ; need=WO" for r in range(2) for tl in range(4) for a in range(2)]
    return out + [f"ds_read_b64_tr_b16 {vr(WOF+32+2*a,2)}, v{VWE} offset:{512*a}" for a in range(2)]
def wo_stores():
    out = []
    for r in range(2):
        out.append(f"PRE s_add_u32 s{sT}, s{sWB}, {16384*r}")
        out += [f"buffer_store_dwordx4 {vr(WOF+16*r+4*tl,4)}, v{VLN}, s[{SWT}:{SWT+3}], s{sT} offen offset:{1024*tl} sc1 ; tag=WT" for tl in range(4)]
    out += [f"PRE s_lshl_b32 s{sT}, s{sWAVE}, 10", f"PRE s_add_u32 s{sT}, s{sT}, 32768",
            f"buffer_store_dwordx4 {vr(WOF+32,4)}, v{VLN}, s[{SWT}:{SWT+3}], s{sT} offen sc1 ; tag=WT"]
    return out

QSPINS = []; QF = 68; QFA = 72; QFB = 73; sFQ = 35; QFLAGS = 112640
def qproj_stage(b, n, nq, fill=None):
    hd, m = n % 2, n // 2
    nx = 8 if nq == 4 else 6
    slots = []; gaps = [[] for _ in range(64)]
    for T in range(8):
        for q in range(4):
            for s in range(2):
                if q >= nq: slots.append(None); continue
                acc = qacc(hd, q, T)
                c = "0" if (m == 0 and s == 0) else acc
                slots.append(f"{MF} {acc}, {ar(AW+8*(T%4)+4*s,4)}, {ar(AX+32*(m%2)+8*q+4*s,4)}, {c}")
    start = {3: 5, 4: 12, 5: 19, 6: 26, 7: 33}
    rd = w_reads(n, 2); gaps[0].append(rd[3])
    for T, g in start.items():
        for i, x in enumerate(w_reads(n, T)): gaps[g + i].append(x)
    FSQ = OPT.get('fsq') and n < 15
    if n < 17:
        for T, g in (((0, 53), (1, 57)) if FSQ else ((0, 45), (1, 53))):
            for i, x in enumerate(w_reads(n + 1, T)): gaps[g + i].append(x)
        for i, x in enumerate(w_reads(n + 1, 2)[:3]): gaps[61 + i].append(x)
    xr = []
    if n % 2 == 1 and m + 1 <= 8:
        xr = x_reads(m + 1, nq)
        for x, g in zip(xr, (9, 10, 16, 17, 23, 24, 30, 31) if not (n == 1 and OPT.get('x1late')) else (49, 50, 51, 52, 57, 58, 59, 60)): gaps[g].append(x)
    for T in range(1, 8): gaps[8 * T - 1].append(f"WAITL W{n}.{T}")
    if n < 17: gaps[63].append(f"WAITL W{n+1}.0")
    req = []
    if n + 1 <= 17: req.append(f"W{n+1}")
    if n % 2 == 0 and m + 1 <= 8 and not (n == 0 and OPT.get('x1late')): req.append(f"X{m+1}")
    if n == 1 and OPT.get('x1late'): req.append("X1")
    if n == 17: req += ["KV0", "KV1"]
    cov = list(req)
    if nq == 3 and n == 2:
        cov.append("INIT")
        gaps[55].append(f"buffer_store_dword v{VONE}, v{VLN}, s[{SIF}:{SIF+3}], 0 offen sc1 ; tag=FLAG")
    if nq == 3 and n == 12:
        gaps[45].append(f"buffer_load_dword v{VHS}, off, s[{SDB}:{SDB+3}], 0 ; tag=HS")
    if n == 17 and OPT.get('fsa'):
        gaps[36] += [f"s_mov_b32 s{sFV}, 0", f"v_mov_b32 v{VFB}, {FLAGS}", f"v_mov_b32 v{FQ}, 0"]
        gaps[37] += [f"v_lshl_add_u32 v{VFA}, s{sWAVE}, 2, v{VFB}"]
        gaps[39] += [f"ds_write_b32 v{VFA}, v{FQ}"]
    if FSQ:
        uid = f"q{n}_{nq}"
        gaps[42] += [f"s_add_u32 s{sFQ}, s{sFQ}, 1", f"v_mov_b32 v{QF}, s{sFQ}"]
        gaps[43] += ["WAITV lgkmcnt(0) ; cover=" + ",".join(cov), f"ds_write_b32 v{QFA}, v{QF}"]
        gaps[47].append(f"ds_read_b128 {vr(QF,4)}, v{QFB}")
        gaps[50] += ["s_waitcnt lgkmcnt(0)", f"v_min3_u32 v{QF}, v{QF}, v{QF+1}, v{QF+2}"]
        gaps[51].append(f"v_min_u32 v{QF}, v{QF}, v{QF+3}")
        gaps[52].append(f"v_cmp_gt_u32 vcc, s{sFQ}, v{QF}\ns_cbranch_vccnz L_fs{uid}\nL_fr{uid}: ; SYNC pub=" + ",".join(req))
        QSPINS.append(uid)
    else:
        gaps[43].append("WAITV lgkmcnt(0) ; cover=" + ",".join(cov))
        gaps[44].append("s_barrier ; pub=" + ",".join(req))
    def place(seq, first, step):
        g = first
        for x in seq:
            if x.startswith("buffer_"): gaps[g].append(x); g += step
            elif x.startswith(("s_add_u32 m0", "s_mov_b32 m0")): gaps[g - 1].append(x)
            elif x.startswith("PRE "): gaps[g - 1].append(x[4:])
            else: gaps[min(g - step + 1, 63)].append(x)
    if n == 0 and OPT.get('x2late'): place(w_dma(2, nq) + w_dma(3, nq), 2, 5)
    elif n == 1 and OPT.get('x2late'): place(x_dma(2, nq), 2, 4)
    elif n == 0: place(w_dma(2, nq) + w_dma(3, nq) + x_dma(2, nq), 1, 2)
    elif n % 2 == 0 and m + 2 <= 8: place(x_dma(m + 2, nq), 2, 5)
    def single(kind, i_):
        if kind == 'wo':
            if i_ == 8: return [f"s_mov_b32 m0, s{sWTS}", None, dma(VWX, SWO, "0", 0, fl('nt_wo'), "WO")]
            r, j_ = i_ // 4, i_ % 4
            return [f"s_add_u32 m0, s{sWOS}, {4096*r}", f"s_mov_b32 s{sT}, {8192*j_ + 512*r}", dma(VWO, SWO, f"s{sT}", 1024 * j_, fl('nt_wo'), "WO reg=K0,K1,V0,V1")]
        t, j_ = i_ // 4, i_ % 4
        d_ = (k_dma if j_ < 2 else v_dma)(t, f"s{sT}")
        return [d_[0], f"s_add_u32 s{sT}, s{sRT}, {8192*t}" if OPT.get('rot') else f"s_mov_b32 s{sT}, {8192*t}", d_[1 + j_ % 2]]
    if OPT.get('slowpos', 0):
        R0 = 9
        sched_ = {2: [('wo', 0), ('wo', 1), ('wo', 2)], 4: [('wo', 3), ('wo', 4), ('wo', 5)], 6: [('wo', 6), ('wo', 7), ('wo', 8)],
                  10: [('kv', i_) for i_ in range(4)], 12: [('kv', i_) for i_ in range(4, 8)]}
        for (kind, i_) in sched_.get(n, []):
            gaps[63] += [x for x in single(kind, i_) if x]
    else:
        W0 = 1; R0 = W0 + 7
        sched_ = {W0 + i_ // 2: [] for i_ in range(9)}
        for i_ in range(8 if OPT.get('fsq') else 9): sched_[W0 + i_ // 2].append(('wo', i_))
        if not OPT.get('late'):
            for i_ in range(8): sched_.setdefault(R0 + 2 + i_ // 2, []).append(('kv', i_))
        for (kind, i_), g in zip(sched_.get(n, []), (39, 42) if (n % 2 == 0 or OPT.get('stpos', 0) or (n == 1 and OPT.get('x2late'))) else (12, 32)):
            m0_, so_, ld_ = single(kind, i_)
            gaps[g - 1].append(m0_)
            if so_: gaps[g - 1].append(so_)
            gaps[g].append(ld_)
    if n in (OPT.get("rew", 13), OPT.get("rew2", 99)): gaps[41].append("global_load_dword v1, v[76:77], off")
    NP = OPT.get('l2p', 0)
    if NP and 14 - NP <= n < 14:
        i_ = n - (14 - NP)
        gaps[26].append(f"s_mov_b32 s{sT+1}, {(8 + OPT.get('l2s', 1) * (i_ // 2)) * 8192}")
        gaps[27].append(f"buffer_load_dword v{68 + i_ % 5}, v74, s[{(SK, SV)[i_ % 2]}:{(SK, SV)[i_ % 2]+3}], s{sT+1} offen")
    if n == 13: gaps[62] += [f"s_add_u32 s{sKV}, s{sRT}, 16384", f"s_mov_b32 s{sLN}, 49152"] if OPT.get('rot') else [f"s_mov_b32 s{sKV}, 16384"]
    if n in (R0, R0 + 1):
        rd = wo_reads()
        if OPT.get('fsq'): rd = rd[:16]
        if n == R0:
            gaps[44].append("WAITV ; cover=WO")
            for x, g in zip(rd[:8], [44, 45, 46, 48, 49, 51, 52, 52] if FSQ else [49, 50, 51, 52, 57, 58, 59, 60]): gaps[g].append(x)
        else:
            for x, g in zip(rd[8:], [1, 2, 3, 4, 11, 18, 25, 37, 38, 39]): gaps[g].append(x)
    for i_ in range(0 if OPT.get('wts') else 9):
        if OPT.get('slowpos', 0):
            if n != (10, 10, 12, 12, 14, 14, 14, 16, 16)[i_]: continue
            t_ = [f"s_add_u32 s{sT+1}, s{sWB}, {16384*(i_//4)}"] if i_ < 8 else [f"s_lshl_b32 s{sT+1}, s{sWAVE}, 10", f"s_add_u32 s{sT+1}, s{sT+1}, 32768"]
            gaps[62] += t_ + [f"buffer_store_dwordx4 {vr(WOF+4*i_,4)}, v{VLN}, s[{SWT}:{SWT+3}], s{sT+1} offen offset:{1024*(i_%4) if i_ < 8 else 0} sc1 ; tag=WT"]
            continue
        r, tl = i_ // 4, i_ % 4
        if OPT.get('stpos', 0):
            if n != (9, 9, 11, 11, 13, 13, 15, 15, 15)[i_]: continue
            g = (8, 10, 2, 4, 2, 4, 2, 4, 7)[i_]
        else:
            if n != min(R0 + 1 + i_, 17 - (1 if i_ < 8 else 0)) : continue
            g = 62 if not any('tag=WT' in x for x in gaps[62]) else 48
        if i_ < 8: gaps[g - 1].append(f"s_add_u32 s{sT+1}, s{sWB}, {16384*r}")
        else: gaps[g - 2].append(f"s_lshl_b32 s{sT+1}, s{sWAVE}, 10"); gaps[g - 1].append(f"s_add_u32 s{sT+1}, s{sT+1}, 32768")
        gaps[g].append(f"buffer_store_dwordx4 {vr(WOF+4*i_,4)}, v{VLN}, s[{SWT}:{SWT+3}], s{sT+1} offen offset:{1024*tl if i_ < 8 else 0}{K2F[OPT.get('wtf', 2)]} ; tag=WT")
    if n == 14 and OPT.get('late'):
        place([f"PRE s_mov_b32 s{sT}, 0"] + k_dma(0, f"s{sT}") + v_dma(0, f"s{sT}") + [f"PRE s_mov_b32 s{sT}, 8192"] + k_dma(1, f"s{sT}") + v_dma(1, f"s{sT}"), 2, 5)
    if n in ((15, 16) if OPT.get('late') else (14, 16)):
        seq = []
        for t in range(2, 6):
            seq += [f"PRE s_add_u32 s{sT}, s{sKV}, {(t - 2) * 8192}"] + (k_dma if n < 16 else v_dma)(t, f"s{sT}")
        if n == 16: seq.append(f"s_add_u32 s{sKV}, s{sKV}, 32768")
        place(seq, 2, 5)
    if n == 17 and OPT.get('e67'):
        place(k_dma(6) + [f"PRE s_add_u32 s{sT}, s{sKV}, 8192"] + k_dma(7, f"s{sT}"), 4, 9)
        place(v_dma(6) + v_dma(7, f"s{sT}") + adv2(sT + 1), 47, 4)
    if OPT.get('awake') and n % 2 == 1 and 3 <= n <= 11:
        seq = []
        for t in range(OPT['awake']):
            seq += [f"PRE s_add_u32 s{sPF}, s{sPF}, 8192"] + k_dma(t % 2, f"s{sPF}") + v_dma(t % 2, f"s{sPF}")
        seq = [x.replace('tag=KV0', 'tag=DUM').replace('tag=KV1', 'tag=DUM') for x in seq]
        place(seq, 2, 40 // (4 * OPT['awake']))
    if OPT.get('awake') and n == 13:
        place([f"PRE s_mov_b32 s{sPF}, 0"] + k_dma(0, f"s{sPF}") + v_dma(0, f"s{sPF}") + [f"PRE s_mov_b32 s{sPF}, 8192"] + k_dma(1, f"s{sPF}") + v_dma(1, f"s{sPF}"), 2, 5)
    if n + 4 <= 17: place(w_dma(n + 4, nq), *((54, 3) if FSQ else (46, 5)))
    for i_ in range(OPT.get('qslow', 0)): gaps[2 + 2 * i_].append('v_nop\nv_nop\nv_nop\nv_nop\nv_nop\nv_nop')
    if fill is not None:
        for g in range(20 if n == 16 else 0, 64):
            if slots[g] is None: continue
            for _ in range(2):
                if fill: gaps[g].append(fill.pop(0))
    emit_slots(b, slots, gaps)
    if OPT.get('qstamps'): stamp(b)

def k_reads(unit, tile):
    out = []
    for kt in range(2):
        for s in range(4):
            f = 4 * kt + s
            out.append(f"ds_read_b128 {ar(AK+4*f,4)}, v{KA + s} offset:{unit * 8192 + kt * 4096} ; need=KV{tile}")
    return out

def v_reads(unit, tile):
    out = []
    for T in range(8):
        th, tl = T // 4, T % 4
        for a in range(2):
            out.append(f"ds_read_b64_tr_b16 {ar(AV+4*T+2*a,2)}, v{VA + T} offset:{unit * 8192 + a * 4096} ; need=KV{tile}")
    return out

import sched, sched2
LM = 1
for a_ in sys.argv[2:]:
    if a_.startswith('lm='): LM = int(a_[3:])
if LM:
    NS = 68
    V_GAPS = list(range(26, 42)); K_GAPS = list(range(50, 58)); D_GAPS = [3, 11, 17, 23]
    SM = sched2.schedule(V_GAPS + K_GAPS, D_GAPS)
    for a_ in sys.argv[2:]:
        if a_.startswith('dg='): D_GAPS = {1: [3, 7, 33, 38], 2: [4, 8, 34, 40], 3: [3, 8, 36, 56]}[int(a_[3:])]
else:
    NS = 64
    V_GAPS = list(range(25, 41)); K_GAPS = list(range(48, 56)); D_GAPS = [1, 9, 17, 23]
    SM = sched.schedule(4, V_GAPS + K_GAPS, D_GAPS)
BG = K_GAPS[0] - 1
LA = 108; ONES = 124
def sm_text(kind, q, e):
    s = S_ + 8 * q + e
    if kind == 'exp': return f"v_exp_f32 v{s}, v{s}"
    if kind == 'add': return f"v_add_f32 v{LS+q}, v{LS+q}, v{s}"
    return f"v_cvt_pk_bf16_f32 v{P_+4*q+e//2}, v{s-1}, v{s}"
def sm_items(nq, lo, hi):
    it = [(g, k[0] == 'exp', k) for k, g in SM.items() if k[1] < nq and lo <= g < hi]
    it.sort(key=lambda t: (t[0] % NS, t[1], -t[0]))
    return [(g, k) for g, _, k in it]

def qk(q, kt, s, czero=False):
    d = vr(S_ + 8 * q + 4 * kt, 4)
    c = d if s else ("0" if czero else vr(CI + 4 * q, 4))
    return f"{MF} {d}, {ar(AK+4*(4*kt+s),4)}, {ar(AQ(q)+4*s,4)}, {c}"

def pv(q, T, czero=False):
    d = vr(O_ + 32 * q + 4 * T, 4)
    return f"{MF} {d}, {ar(AV+4*T,4)}, {vr(P_+4*q,4)}, {'0' if czero else d}"

def lsm(q, czero=False):
    d = vr(LA + 4 * q, 4)
    return f"{MF} {d}, {vr(ONES,4)}, {vr(P_+4*q,4)}, {'0' if czero else d}"

SPINS = []
def attn_stage(b, k, nq, extra=None, fill=None, resume=False):
    kk = k % 32; u = k % 8
    if resume: kk = 0
    slots = []; gaps = [[] for _ in range(NS)]
    for q in (0, 1):
        for kt in range(2):
            for s in range(4): slots.append(qk(q, kt, s))
    for q in (2, 3):
        for T in range(8): slots.append(pv(q, T, kk == 1) if (q < nq and kk > 0) else None)
        if LM: slots.append(lsm(q, kk == 1) if (q < nq and kk > 0) else None)
    for q in (2, 3):
        for kt in range(2):
            for s in range(4): slots.append(qk(q, kt, s) if q < nq else None)
    for q in (0, 1):
        for T in range(8): slots.append(pv(q, T, kk == 0 and not resume))
        if LM: slots.append(lsm(q, kk == 0 and not resume))
    for g, key in sm_items(nq, 0, 2 * NS if kk > 0 else NS): gaps[g % NS].append(sm_text(*key))
    for g, x in zip(V_GAPS, v_reads(u, k)): gaps[g].append(x)
    DIST = 7 if OPT.get('d7') else OPT.get('dist', 5 if OPT.get('fsa') else 6)
    if DIST == 7 and k < 63:
        gaps[BG - 1].append(f"WAITV lgkmcnt(0) ; cover=KV{k+1}" + (",WT" if kk == 11 else ""))
        gaps[BG].append(f"s_barrier ; pub=KV{k+1}")
    elif k % 2 == 1 and k < 63 and OPT.get('fsa'):
        uid = f"{k}_{nq}"
        pg = OPT.get('fsp', 30); rg = OPT.get('fsr', 36)
        gaps[pg - 2].append(f"s_add_u32 s{sFV}, s{sFV}, 1")
        gaps[pg - 1].append(f"v_mov_b32 v{FQ}, s{sFV}") if pg - 1 >= 30 or pg < 26 else gaps[pg].append(f"v_mov_b32 v{FQ}, s{sFV}")
        gaps[pg + 1].insert(0, f"WAITV ; cover=KV{k+1},KV{k+2}" + (",WT" if kk == 11 else ""))
        gaps[pg + 1].append(f"ds_write_b32 v{VFA}, v{FQ} ; PUB")
        gaps[rg].append(f"ds_read_b128 {vr(FQ,4)}, v{VFB}")
        gaps[rg + 3].insert(0, "s_waitcnt lgkmcnt(2)")
        gaps[rg + 3].append(f"v_min3_u32 v{FQ}, v{FQ}, v{FQ+1}, v{FQ+2}")
        gaps[rg + 4].append(f"v_min_u32 v{FQ}, v{FQ}, v{FQ+3}")
        gaps[rg + 5].append(f"v_cmp_gt_u32 vcc, s{sFV}, v{FQ}")
        gaps[rg + 6].insert(0, f"s_cbranch_vccnz L_fs{uid}\nL_fr{uid}: ; SYNC pub=KV{k+1},KV{k+2}")
        gaps[BG].append("s_waitcnt lgkmcnt(0)")
        SPINS.append(uid)
    elif k % 2 == 1 and k < 63:
        gaps[BG - 1].append(f"WAITV lgkmcnt(0) ; cover=KV{k+1},KV{k+2}" + (",WT" if k == (39 if OPT.get('pz') else 11) else ""))
        gaps[BG].append(f"s_barrier ; pub=KV{k+1},KV{k+2}")
    else:
        gaps[BG].append("s_waitcnt lgkmcnt(0)")
    if k < 63:
        for g, x in zip(K_GAPS, k_reads((u + 1) % 8, k + 1)): gaps[g].append(x)
        gaps[NS - 1].append("s_waitcnt lgkmcnt(0)")
    FP = (OPT.get('fsa') or OPT.get('fp')) and OPT.get('pair')
    t0 = (k + 4 + k % 2) if FP else (k + DIST - (k % 2) if OPT.get('pair') else k + DIST)
    if t0 < 64 and not (OPT.get('e67') and t0 < 8) and not (OPT.get('sw2') and k in (32, 33)):
        if OPT.get('dw3'):
            isv = k % 2 == 0
            if nq == 3:
                live = [g for g in range(NS) if slots[g] or kk == 0]
                gs = iter([g for g in live if g >= 2][::3]); g = 0; pend = []
                for x in pair_dma3(isv, t0, 92):
                    if x.startswith("buffer_"):
                        g = next(gs)
                        gaps[g - 1 if g - 1 in live else g] += pend; pend = []
                        gaps[g].append(x)
                    else: pend.append(x)
                if isv:
                    gaps[min(g + 1, NS - 5)].append(f"s_add_u32 s{sKV}, s{sKV}, 16384")
                    gaps[0].append("s_waitcnt vmcnt(44)")
        else:
            if OPT.get('pair'):
                isv = (k % 2 == 0) if FP else (k % 2 == 1)
                fn = v_dma if isv else k_dma
                kd, vd = fn(t0), fn(t0 + 1, f"s{sT}")
                gaps[D_GAPS[2] - 2].append(f"s_add_u32 s{sT}, s{sKV}, 8192")
                if isv:
                    for i_, x in enumerate(adv2(sT)): gaps[44 + i_].append(x)
            else:
                kd, vd = k_dma(k + DIST), v_dma(k + DIST)
                gaps[44] += kv_adv()
            gaps[D_GAPS[0] - 1].append(kd[0]); gaps[D_GAPS[2] - 1].append(vd[0])
            for x, g in zip(kd[1:] + vd[1:], D_GAPS): gaps[g].append(x)
    for i_ in range(OPT.get('slow', 0)): gaps[2 + 2 * i_].append('v_nop\nv_nop\nv_nop\nv_nop')
    if extra:
        for g, x in extra: gaps[g].append(x)
    if fill:
        cost = lambda x: 2 if x.startswith('v_exp') else (1 if x.startswith(('v_', 'ds_', 'buffer_')) else 0)
        room = [max(0, 2 - sum(cost(x) for x in gaps[g])) if slots[g] else 0 for g in range(NS)]
        left = len(fill) - sum(room)
        live = [g for g in range(NS) if slots[g]]
        for i_ in range(max(left, 0)): room[live[(i_ * len(live)) // left]] += 1
        for g in range(NS):
            for _ in range(room[g]):
                if fill: gaps[g].append(fill.pop(0))
        assert not fill
    for key, pre in (('nobar', ('s_barrier',)), ('nodma', ('buffer_load_dwordx4 v9',)), ('nolds', ('ds_read',)), ('noexp', ('v_exp',))):
        if OPT.get(key) and 8 <= k < 16: gaps = [[x if not x.startswith(pre) else 's_nop 0 ;' + x.split(';', 1)[-1] for x in g] for g in gaps]
    if OPT.get('astamps') and k % 2 == 0: stamp(b)
    if OPT.get('dmaonly'):
        slots = [None] * NS
        gaps = [[x for x in g if not x.startswith(('v_', 'ds_'))] for g in gaps]
    emit_slots(b, slots, gaps)

def xlane_reduce(b, reg, tmp, op):
    b(f"v_mov_b32 v{tmp}, v{reg}")
    b(f"v_permlane32_swap_b32 v{reg}, v{tmp}")
    b(f"{op} v{reg}, v{reg}, v{tmp}")
    b(f"v_mov_b32 v{tmp}, v{reg}")
    b(f"v_permlane16_swap_b32 v{reg}, v{tmp}")
    b(f"{op} v{reg}, v{reg}, v{tmp}")

def xlane_reduce_multi(b, regs, tmps, op):
    for sw in ("v_permlane32_swap_b32", "v_permlane16_swap_b32"):
        for r, t in zip(regs, tmps): b(f"v_mov_b32 v{t}, v{r}")
        for r, t in zip(regs, tmps): b(f"{sw} v{r}, v{t}")
        for r, t in zip(regs, tmps): b(f"{op} v{r}, v{r}, v{t}")

def stamp(b, idx=None):
    if OPT.get('fixat') and idx == OPT['fixat']: b("s_memrealtime s[72:73]\ns_waitcnt lgkmcnt(0)")
    if not OPT['stamps']: return
    b(f"s_memtime s[{sSTAMP}:{sSTAMP+1}]\ns_memrealtime s[{sSTAMP+2}:{sSTAMP+3}]\ns_waitcnt lgkmcnt(0)")
    b(f"s_mov_b32 s93, m0\ns_mov_b32 m0, s96\nv_writelane_b32 v14, s{sSTAMP}, m0\nv_writelane_b32 v15, s{sSTAMP+2}, m0\ns_mov_b32 m0, s93\ns_add_u32 s96, s96, 1")

def stamp_dump(b, k, wave):
    if not OPT['stamps']: return
    b("s_waitcnt vmcnt(0)")
    stamp(b)
    if OPT['stamps'] == 2:
        b("s_load_dwordx2 s[92:93], s[0:1], 88\ns_waitcnt lgkmcnt(0)")
        b(f"s_cmp_lg_u32 s{wave}, 0\ns_cbranch_scc1 L_end{k+1}\ns_lshr_b32 s94, s97, 3\ns_cmp_lg_u32 s94, 5\ns_cbranch_scc1 L_end{k+1}")
        b(f"s_add_u32 s88, s92, {OPT.get('dbgoff',0)*(1-k)}\ns_addc_u32 s89, s93, 0\ns_mov_b32 s90, 256\ns_mov_b32 s91, 0x20000")
        sel = [0, 2, 3, 5, 6, 7, 8, 9, 10, 11, 12]
        b("s_mov_b64 exec, 1")
        for i, ix in enumerate(sel):
            b(f"v_readlane_b32 s94, v15, {ix}\ns_nop 3")
            if i == 0 and k == 0: b("s_not_b32 s94, s94")
            b(f"v_mov_b32 v1, s94\nv_mov_b32 v2, {4*(i + 1)}\nbuffer_atomic_umax v1, v2, s[88:91], 0 offen")
        return
    b("s_getreg_b32 s94, hwreg(HW_REG_XCC_ID)\nv_writelane_b32 v14, s94, 63\nv_writelane_b32 v14, s65, 62\nv_writelane_b32 v14, s64, 61")
    b("s_load_dwordx2 s[92:93], s[0:1], 96\ns_waitcnt lgkmcnt(0)")
    b(f"s_add_u32 s88, s92, {(48+k)*1024*1024}\ns_addc_u32 s89, s93, 0\ns_mov_b32 s90, 0x100000\ns_mov_b32 s91, 0x20000")
    b(f"s_lshl_b32 s94, s97, 2\ns_add_u32 s94, s94, s{wave}\ns_lshl_b32 s94, s94, 9")
    b("v_and_b32 v1, 63, v0\nv_lshlrev_b32 v1, 3, v1")
    b("buffer_store_dwordx2 v[14:15], v1, s[88:91], s94 offen")

def persist_regs(b):
    lane = T0; t1 = T0 + 1; t2 = T0 + 2; t3 = T0 + 3; g_ = T0 + 4; ihi = T0 + 5; i8 = T0 + 6; i16 = T0 + 7; r_ = T0 + 8; c4 = T0 + 9
    b(f"""v_and_b32 v{lane}, 63, v0
    v_lshrrev_b32 v{g_}, 4, v{lane}
    v_lshrrev_b32 v{ihi}, 3, v{lane}
    v_and_b32 v{i8}, 7, v{lane}
    v_and_b32 v{i16}, 15, v{lane}
    v_lshrrev_b32 v{r_}, 2, v{i16}
    v_and_b32 v{c4}, 3, v{lane}
    v_lshlrev_b32 v{VLN}, 4, v{lane}
    s_add_u32 s71, s63, s{sWB}
    v_add_u32 v{VO}, s71, v{VLN}""")
    b(f"""s_lshl_b32 s70, s{sWAVE}, 11
    v_lshlrev_b32 v{t1}, 8, v{g_}
    v_add_u32 v{t1}, s70, v{t1}
    s_and_b32 s70, s{sWAVE}, 1
    s_lshl_b32 s70, s70, 3
    v_xor_b32 v{t2}, v{i16}, v{g_}
    v_xor_b32 v{t2}, s70, v{t2}
    v_lshl_add_u32 v{DK0}, v{t2}, 4, v{t1}
    v_xor_b32 v{DK1}, 64, v{DK0}
    v_lshlrev_b32 v{t2}, 1, v{g_}
    v_xor_b32 v{t3}, v{t2}, v{i16}
    v_lshl_add_u32 v{DV0}, v{t3}, 4, v{t1}
    v_xor_b32 v{DV1}, 128, v{DV0}""")
    b(f"""v_mul_u32_u24 v{t1}, 1152, v{ihi}
    v_lshl_add_u32 v{t1}, v{i8}, 4, v{t1}
    s_lshl_b32 s70, s{sWAVE}, 7
    v_add_u32 v{VWO}, s70, v{t1}
    v_lshrrev_b32 v{t1}, 1, v{lane}
    v_mul_u32_u24 v{t1}, 1152, v{t1}
    v_and_b32 v{t2}, 1, v{lane}
    v_lshl_add_u32 v{t1}, v{t2}, 4, v{t1}
    s_lshl_b32 s70, s{sWAVE}, 5
    s_add_u32 s70, s70, 1024
    v_add_u32 v{VWX}, s70, v{t1}""")
    b(f"""v_xor_b32 v{t2}, v{g_}, v{i16}
    v_lshlrev_b32 v{t2}, 4, v{t2}
    v_lshl_add_u32 v{KA}, v{i16}, 8, v{t2}""")
    for s_ in range(1, 4): b(f"v_xor_b32 v{KA+s_}, {64*s_}, v{KA}")
    b(f"""v_lshl_add_u32 v{t2}, v{g_}, 2, v{r_}
    v_lshlrev_b32 v{t1}, 8, v{t2}
    v_and_b32 v{t2}, 7, v{t2}
    v_lshl_add_u32 v{t1}, v{t2}, 5, v{t1}
    v_lshl_add_u32 v{t1}, v{c4}, 3, v{t1}
    v_add_u32 v{VA}, 0x10000, v{t1}""")
    for T in range(1, 8): b(f"v_xor_b32 v{VA+T}, {32*T}, v{VA}")
    b(f"v_lshrrev_b32 v74, 2, v{lane}\nv_lshlrev_b32 v74, 7, v74\nv_lshl_add_u32 v74, s{sWAVE}, 11, v74")
    b(f"""v_lshl_add_u32 v{t2}, v{g_}, 2, v{r_}
    v_lshlrev_b32 v{t1}, 7, v{t2}
    v_lshl_add_u32 v{t1}, v{c4}, 3, v{t1}
    s_lshr_b32 s70, s{sWAVE}, 1
    s_lshl_b32 s70, s70, 16
    s_and_b32 s71, s{sWAVE}, 1
    s_lshl_b32 s{sWOS}, s71, 13
    s_add_u32 s{sWOS}, s{sWOS}, s70
    s_lshl_b32 s{sWTS}, s71, 10
    s_add_u32 s{sWTS}, s{sWTS}, s70
    s_add_u32 s{sWTS}, s{sWTS}, 47104
    {f"s_lshl_b32 s{sWTS}, s{sWAVE}, 10" if OPT.get('fsq') else ""}
    {f"s_add_u32 s{sWTS}, s{sWTS}, 147456" if OPT.get('fsq') else ""}
    v_add_u32 v{VWA}, s{sWOS}, v{t1}
    v_lshlrev_b32 v{t1}, 3, v{lane}
    v_add_u32 v{VWE}, s{sWTS}, v{t1}""")

def late_setup(b, sfx):
    b(f"""s_lshl_b32 s71, s68, 4
    s_add_u32 s71, s71, s69
    s_lshl_b32 s70, s71, 19
    s_add_u32 s{SK}, s50, s70
    s_addc_u32 s{SK+1}, s51, 0
    s_mov_b32 s{SK+2}, 524288
    s_mov_b32 s{SK+3}, 0x20000
    s_add_u32 s{SV}, s52, s70
    s_addc_u32 s{SV+1}, s53, 0
    s_mov_b32 s{SV+2}, 524288
    s_mov_b32 s{SV+3}, 0x20000
    s_mul_i32 s70, s3, {O_BLK}
    s_add_u32 s{SO}, s100, s70
    s_addc_u32 s{SO+1}, s101, 0
    s_mov_b32 s{SO+2}, {O_BLK}
    s_mov_b32 s{SO+3}, 0x20000
    s_mul_i32 s70, s71, 36864
    s_add_u32 s{SWO}, s56, s70
    s_addc_u32 s{SWO+1}, s57, 0
    s_mov_b32 s{SWO+2}, 36864
    s_mov_b32 s{SWO+3}, 0x20000
    s_mul_i32 s71, s3, {WOT_BLK}
    s_add_u32 s70, s70, s71
    s_add_u32 s70, s70, {WOT_OFF}
    s_add_u32 s{SWT}, s100, s70
    s_addc_u32 s{SWT+1}, s101, 0
    s_mov_b32 s{SWT+2}, 36864
    s_mov_b32 s{SWT+3}, 0x20000
    s_mul_i32 s62, s69, {8*122880}
    s_mul_i32 s63, s68, 15360        ; b*15*1024
    s_add_u32 s{SCN}, s100, {CNT_OFF}
    s_addc_u32 s{SCN+1}, s101, 0
    s_mov_b32 s{SCN+2}, 24576
    s_mov_b32 s{SCN+3}, 0x20000
    s_mov_b64 s[{SDB}:{SDB+1}], s[78:79]
    s_mov_b32 s{SDB+2}, 256
    s_mov_b32 s{SDB+3}, 0x20000
    s_mov_b64 s[{SIN}:{SIN+1}], s[{SCN}:{SCN+1}]
    s_mov_b32 s{SIN+3}, 0x20000
    s_mov_b64 s[{SIF}:{SIF+1}], s[78:79]
    s_mov_b32 s{SIF+3}, 0x20000
    s_lshl_b32 s70, s3, 3
    s_add_u32 s70, s70, s68
    s_lshl_b32 s{sCO}, s70, 2
    s_lshr_b32 s71, s69, 2
    s_add_u32 s{sCO}, s{sCO}, s71
    s_lshl_b32 s{sCO}, s{sCO}, 7
    s_lshr_b32 s{sCW}, s70, 1
    s_lshl_b32 s{sCW}, s{sCW}, 7
    s_add_u32 s{sCW}, s{sCW}, 8192
    s_and_b32 s70, s97, 1
    s_mul_i32 s70, s70, {30 + OPT.get('bal', 0)}
    s_add_u32 s2, s2, s70              ; tile number inside the pair of workgroup classes (0..59 real)
    s_cmp_eq_u32 s70, 0
    s_cselect_b32 s71, {30 + OPT.get('bal', 0)}, 60
    s_cmp_ge_u32 s2, s71
    s_cselect_b32 s{sIDLE}, 1, 0       ; no output tile for this workgroup
    s_mul_i32 s68, s2, 43
    s_lshr_b32 s68, s68, 8
    s_mul_i32 s69, s68, 6
    s_sub_u32 s69, s2, s69             ; nt
    s_bfe_u32 s70, s97, 0x10001
    s_mul_i32 s70, s70, 10
    s_add_u32 s68, s68, s70            ; mt
    s_mul_i32 s92, s69, {OPT.get('krot', 0)}
    s_add_u32 s92, s92, s68
    s_and_b32 s92, s92, 3""")
    if OPT.get('s2t'):
        b(f"""s_lshr_b32 s2, s97, 3
        s_mul_i32 s68, s2, 86
        s_lshr_b32 s68, s68, 8
        s_mul_i32 s69, s68, 3
        s_sub_u32 s69, s2, s69
        s_and_b32 s70, s97, 1
        s_mul_i32 s70, s70, 3
        s_add_u32 s69, s69, s70
        s_bfe_u32 s70, s97, 0x10001
        s_mul_i32 s70, s70, 10
        s_add_u32 s68, s68, s70""")
        if OPT['s2t'] >= 2:
            b(f"""s_and_b32 s92, s68, 1
            s_lshl_b32 s92, s92, 1
            s_lshr_b32 s70, s{sWAVE}, 1
            s_add_u32 s92, s92, s70
            s_and_b32 s68, s68, 30
            s_and_b32 s70, s{sWAVE}, 1
            s_add_u32 s68, s68, s70""")
        else: b(f"s_mov_b32 s92, s{sWAVE}")
    KQ = 92 if OPT.get('s2t') else sWAVE
    b(f"""
    s_mul_i32 s79, s68, 103
    s_lshr_b32 s79, s79, 8
    s_mul_i32 s78, s68, 96
    s_add_u32 s78, s78, 95
    s_mul_i32 s78, s78, 4370
    s_lshr_b32 s78, s78, 20
    s_lshl_b32 s70, s3, 3
    s_add_u32 s78, s78, s70
    s_add_u32 s79, s79, s70
    s_lshl_b32 s78, s78, 2
    s_lshl_b32 s79, s79, 2
    s_add_u32 s78, s78, s{KQ}
    s_add_u32 s79, s79, s{KQ}
    s_lshl_b32 s78, s78, 7
    s_lshl_b32 s79, s79, 7
    s_mul_i32 s70, s3, {O_BLK}
    s_mul_i32 s71, s68, 6144
    s_add_u32 s70, s70, s71
    s_add_u32 s{SO2}, s100, s70
    s_addc_u32 s{SO2+1}, s101, 0
    s_sub_u32 s{SO2+2}, {O_BLK}, s71
    s_mov_b32 s{SO2+3}, 0x20000
    s_mul_i32 s70, s3, {WOT_BLK}
    s_mul_i32 s71, s69, 6144
    s_add_u32 s70, s70, s71
    s_add_u32 s70, s70, {WOT_OFF}
    s_add_u32 s{SW2}, s100, s70
    s_addc_u32 s{SW2+1}, s101, 0
    s_sub_u32 s{SW2+2}, {WOT_BLK}, s71
    s_mov_b32 s{SW2+3}, 0x20000
    s_cmp_eq_u32 s{sIDLE}, 1
    s_cselect_b32 s{SO2+2}, 0, s{SO2+2}   ; workgroups without an output tile load nothing
    s_cselect_b32 s{SW2+2}, 0, s{SW2+2}
    s_mov_b32 s100, s{SO2+2}
    s_mov_b32 s101, s{SW2+2}
    s_lshr_b32 s70, s{sWAVE}, 1
    s_mul_i32 s70, s70, {48*2304}
    s_mul_i32 s{sOUTO}, s68, {96*2304}
    s_add_u32 s{sOUTO}, s{sOUTO}, s70
    s_mul_i32 s70, s3, 1152
    s_add_u32 s{sOUTO}, s{sOUTO}, s70
    s_mul_i32 s70, s69, 192
    s_add_u32 s{sOUTO}, s{sOUTO}, s70
    s_and_b32 s70, s{sWAVE}, 1
    s_mul_i32 s70, s70, 96
    s_add_u32 s{sOUTO}, s{sOUTO}, s70
    s_lshl_b32 s70, s3, 2
    s_add_u32 s70, s70, s{KQ}
    s_lshl_b32 s70, s70, 7
    s_add_u32 s70, s70, 8192
    v_and_b32 v1, 1, v0
    v_mov_b32 v{VP2}, s78
    v_mov_b32 v2, s79
    v_cmp_eq_u32 vcc, 1, v1
    v_and_b32 v1, 2, v0
    v_mov_b32 v3, s70
    v_cndmask_b32 v{VP2}, v{VP2}, v2, vcc
    v_cmp_eq_u32 vcc, 2, v1
    v_add_u32 v{VPE}, 16384, v{VP2}
    v_mov_b32 v{VTH}, 4
    v_cndmask_b32 v{VPE}, v{VPE}, v3, vcc
    v_mov_b32 v3, 32
    v_cndmask_b32 v{VTH}, v{VTH}, v3, vcc
    s_mov_b32 s{sSIG}, 0""")
    b(f"L_late{sfx}:")
    b(f"""s_or_b32 s70, s97, s{sSAFE}
    s_cmp_eq_u32 s70, 0
    s_cselect_b32 s{SIN+2}, 24576, 0   ; only workgroup 0 (first pass) really initialises the counters
    s_cselect_b32 s{SIF+2}, 4, 0
    s_mov_b32 s{sOO}, s62
    s_mov_b32 s{sLATE}, 0
    s_mov_b32 s{SO2+2}, s100
    s_mov_b32 s{SW2+2}, s101
    {p2_init()}
    s_lshr_b32 s{sRT}, s97, {OPT.get('rsh', 3)}
    s_mul_i32 s{sRT}, s{sRT}, {OPT.get('rot', 0) or 1}
    s_mul_i32 s70, s{sRT}, 5042
    s_lshr_b32 s70, s70, 16
    s_mul_i32 s70, s70, 13
    s_sub_u32 s{sRT}, s{sRT}, s70
    s_lshl_b32 s{sRT}, s{sRT}, 14
    s_lshl_b32 s{sKB}, s{sWAVE}, 11""")

def warm_base(b):
    b("""s_getpc_b64 s[94:95]
    L_pc:
    s_sub_u32 s94, s94, L_pc-attn_kernel
    s_subb_u32 s95, s95, 0""")

def warm_addr(b):
    b("""v_mul_u32_u24 v76, 40, v0
    v_lshrrev_b32 v76, 8, v76
    s_lshr_b32 s70, s97, 3
    s_mul_i32 s70, s70, 40
    v_add_u32 v76, s70, v76
    v_lshlrev_b32 v76, 7, v76
    v_min_u32 v76, L_codeend-attn_kernel-4, v76
    v_mov_b32 v77, s95
    v_add_co_u32 v76, vcc, s94, v76
    v_addc_co_u32 v77, vcc, 0, v77, vcc""")

def warm_code(b):
    warm_base(b); warm_addr(b)
    if OPT.get('warm'): b("global_load_dword v4, v[76:77], off")

def prologue_a(b):
    lane = T0; t1 = T0 + 1; t2 = T0 + 2; t3 = T0 + 3; g_ = T0 + 4; ihi = T0 + 5; i8 = T0 + 6
    b(f"""v_and_b32 v{lane}, 63, v0
    v_lshrrev_b32 v{g_}, 4, v{lane}
    v_lshrrev_b32 v{ihi}, 3, v{lane}
    v_and_b32 v{i8}, 7, v{lane}""")
    b(f"s_lshl_b32 s{sT}, s{sWAVE}, 6")
    b(f"v_add_u32 v{t1}, s{sT}, v{ihi}")
    b(f"v_mul_u32_u24 v{t1}, 1152, v{t1}")
    for j in range(4):
        b(f"v_xor_b32 v{t2}, {4*(j%2)}, v{g_}")
        b(f"v_xor_b32 v{t2}, v{t2}, v{i8}")
        b(f"v_lshl_add_u32 v{t2}, v{t2}, 4, v{t1}")
        b(f"v_add_u32 v{DX+j}, {8*j*1152 - 1024*j}, v{t2}")
    b(f"""s_and_b32 s{sT}, s{sWAVE}, 1
    s_lshl_b32 s{sT}, s{sT}, 18
    s_lshr_b32 s{sT+1}, s{sWAVE}, 1
    s_lshl_b32 s{sT+1}, s{sT+1}, 7
    s_add_u32 s{sT}, s{sT}, s{sT+1}
    v_lshlrev_b32 v{t1}, 13, v{ihi}
    v_add_u32 v{t1}, s{sT}, v{t1}
    v_lshrrev_b32 v{t2}, 2, v{i8}
    v_xor_b32 v{t2}, v{t2}, v{g_}
    v_and_b32 v{t2}, 1, v{t2}
    v_lshl_add_u32 v{t1}, v{t2}, 6, v{t1}
    v_and_b32 v{t2}, 3, v{i8}
    v_lshl_add_u32 v{t1}, v{t2}, 4, v{t1}""")
    for j in range(4): b(f"v_add_u32 v{DW+j}, {8*j*8192 - 1024*j}, v{t1}")
    b(f"""s_mov_b32 s{sXO}, 0
    s_mov_b32 s{sXO2}, 36864
    s_mov_b32 s{sWOFF}, 0
    s_mov_b32 s{sKV}, 0
    s_mov_b32 s{sHEAD}, 0""")
    if OPT.get('qrot'):
        if OPT['qrot'] == 10:
            b(f"s_lshr_b32 s{sT}, s97, 5\ns_lshr_b32 s{sT+1}, s97, 3\ns_xor_b32 s{sT}, s{sT}, s{sT+1}\ns_and_b32 s{sT}, s{sT}, 1\ns_mul_i32 s{sT}, s{sT}, {OPT.get('qro', 4)}")
        elif OPT['qrot'] == 11:
            b(f"s_lshr_b32 s{sT}, s97, 5\ns_bfe_u32 s{sT+1}, s97, 0x20003\ns_add_u32 s{sT}, s{sT}, s{sT+1}\ns_mul_i32 s{sT+1}, s{sT}, 86\ns_lshr_b32 s{sT+1}, s{sT+1}, 8\ns_mul_i32 s{sT+1}, s{sT+1}, 3\ns_sub_u32 s{sT}, s{sT}, s{sT+1}\ns_mul_i32 s{sT}, s{sT}, 3")
        else:
            b(f"""s_lshr_b32 s{sT}, s97, 5
            s_bfe_u32 s{sT+1}, s97, 0x20003
            s_mul_i32 s{sT+1}, s{sT+1}, {OPT['qrot']}
            s_add_u32 s{sT}, s{sT}, s{sT+1}
            s_sub_u32 s{sT+1}, s{sT}, 9
            s_cselect_b32 s{sT}, s{sT}, s{sT+1}""")
        b(f"""
        s_lshl_b32 s{sXO}, s{sT}, 7
        s_add_u32 s{sXO2}, s{sXO}, 36864
        s_lshl_b32 s{sWOFF}, s{sT}, 19""")

def prologue_b(b):
    lane = T0; t1 = T0 + 1; t2 = T0 + 2; t3 = T0 + 3; g_ = T0 + 4; ihi = T0 + 5; i8 = T0 + 6
    if OPT.get('sstamps'): stamp(b)
    b.ext(x_dma(0, 4)); b.ext(w_dma(0, 4))
    if OPT.get('ord') == 1: b.ext(w_dma(1, 4)); b.ext(x_dma(1, 4))
    if OPT.get('ord') == 2: b.ext(w_dma(1, 4))
    if OPT.get('sstamps'): stamp(b)
    if OPT.get('xw'):
        pf = K2F[OPT.get('xwf', 0)]
        b(f"""s_lshr_b32 s70, s2, 2
        s_mul_i32 s70, s70, 270
        s_mul_i32 s71, s{sWAVE}, 68
        s_add_u32 s70, s70, s71
        s_lshl_b32 s70, s70, 7
        v_lshlrev_b32 v5, 7, v{lane}
        buffer_load_dword v6, v5, s[{SX}:{SX+3}], s70 offen{pf}
        s_and_b32 s70, s2, 3
        s_lshl_b32 s70, s70, 2
        s_add_u32 s70, s70, s{sWAVE}
        s_lshl_b32 s70, s70, 13
        v_lshrrev_b32 v5, 2, v{lane}
        v_lshlrev_b32 v5, 17, v5
        v_and_b32 v7, 3, v{lane}
        v_lshl_add_u32 v5, v7, 7, v5
        buffer_load_dword v6, v5, s[{SW}:{SW+3}], s70 offen{pf}
        s_add_u32 s70, s70, {256*8192}
        buffer_load_dword v6, v5, s[{SW}:{SW+3}], s70 offen{pf}
        s_add_u32 s70, s70, {256*8192}
        buffer_load_dword v6, v5, s[{SW}:{SW+3}], s70 offen{pf}""")
    late_setup(b, "")
    if OPT.get('tlb'):
        for srd in (SK, SV, SWO): b(f"buffer_load_dword v1, off, s[{srd}:{srd+3}], 0 nt")
        if OPT['tlb'] > 1:
            b(f"s_mov_b64 exec, 1\nbuffer_store_dword v1, off, s[{SWT}:{SWT+3}], s{sWB} sc1\ns_mov_b64 exec, -1")
    persist_regs(b)
    b(f"""v_mov_b32 v{VONE}, 1
    s_and_b32 s70, s{sWAVE}, 1
    s_mul_i32 s70, s70, 3072
    s_sub_u32 s71, 3072, s70
    v_add_u32 v{VPW}, s70, v{VLN}
    v_add_u32 v{VPW+1}, s71, v{VLN}
    s_lshr_b32 s70, s{sWAVE}, 1
    s_mul_i32 s70, s70, 3072
    s_sub_u32 s71, 3072, s70
    v_add_u32 v{VPO}, s70, v{VLN}
    v_add_u32 v{VPO+1}, s71, v{VLN}""")
    i16 = T0 + 7; r_ = T0 + 8; c4 = T0 + 9
    b(f"""v_and_b32 v{i16}, 15, v{lane}
    v_lshrrev_b32 v{r_}, 2, v{i16}
    v_and_b32 v{c4}, 3, v{lane}
    v_lshlrev_b32 v{t1}, 7, v{i16}
    v_add_u32 v{t1}, s{sXB}, v{t1}
    v_add_u32 v{t1}, 16384, v{t1}
    v_lshrrev_b32 v{t3}, 1, v{i16}""")
    for s in range(2):
        b(f"v_xor_b32 v{t2}, {4*s}, v{g_}")
        b(f"v_xor_b32 v{t2}, v{t2}, v{t3}")
        b(f"v_lshl_add_u32 v{XA+s}, v{t2}, 4, v{t1}\nv_add_u32 v{XA+2+s}, 65536, v{XA+s}")
    b(f"""v_lshl_add_u32 v{t1}, v{g_}, 3, v{r_}
    v_lshlrev_b32 v{t1}, 7, v{t1}
    v_lshl_add_u32 v{t1}, v{c4}, 4, v{t1}
    v_add_u32 v{t1}, 49152, v{t1}
    v_lshrrev_b32 v{t3}, 1, v{r_}""")
    if OPT.get('wnc'): b(f"v_and_b32 v{t2}, 1, v{g_}\nv_lshl_add_u32 v{t1}, v{t2}, 3, v{t1}")
    for sp in range(2):
        b(f"v_xor_b32 v{t2}, {sp}, v{t3}")
        b(f"v_lshl_add_u32 v{WA+sp}, v{t2}, 6, v{t1}\nv_add_u32 v{WA+2+sp}, 65536, v{WA+sp}")
    if OPT.get('sstamps'): stamp(b)
    if not OPT.get('ord'): b.ext(w_dma(1, 4))
    if OPT.get('ord') != 1: b.ext(x_dma(1, 4))

def wave_code(b, nq, sfx):
    nx = 8 if nq == 4 else 6
    b(f"L_begin{sfx}:")
    if nq == 3:
        b(f"v_mov_b32 v{VHS}, 0\nv_lshlrev_b32 v{VCW}, 3, v{VLN}")
        b(f"buffer_store_dword v{VHS}, v{VCW}, s[{SIN}:{SIN+3}], 0 offen sc1 ; tag=INIT")
        b(f"s_mov_b32 s{sT}, 8192\nbuffer_store_dword v{VHS}, v{VCW}, s[{SIN}:{SIN+3}], s{sT} offen sc1 ; tag=INIT")
        b(f"s_mov_b32 s{sT}, 16384\nbuffer_store_dword v{VHS}, v{VCW}, s[{SIN}:{SIN+3}], s{sT} offen sc1 ; tag=INIT")
    stamp(b, 0)
    if OPT.get('fsq'):
        b(f"s_mov_b32 s{sFQ}, 0\nv_mov_b32 v{QFB}, {QFLAGS}\nv_lshl_add_u32 v{QFA}, s{sWAVE}, 2, v{QFB}")
    b("WAITV ; cover=X0,W0")
    b("s_barrier ; pub=X0,W0")
    b.ext(x_reads(0, nq))
    for T in (0, 1): b.ext(w_reads(0, T))
    b.ext(w_reads(0, 2)[:3])
    b("WAITL W0.0")
    stamp(b, 1)
    for n in range(0, 12): qproj_stage(b, n, nq)
    fill = []; post = []
    for sp in range(4):
        for q in range(nq):
            rs = [128 + 32 * q + 8 * sp + 2 * i_ for i_ in range(4)]
            for r in rs: fill += [f"v_mul_f32 v{r}, s{sC}, v{r}", f"v_mul_f32 v{r+1}, s{sC}, v{r+1}"]
            for r in rs: fill.append(f"v_cvt_pk_bf16_f32 v{r}, v{r}, v{r+1}")
            for i_, r in enumerate(rs): fill.append(f"v_accvgpr_write_b32 a{AQ(q) + 4*sp + i_}, v{r}")
    for n in range(12, 18): qproj_stage(b, n, nq, fill if n >= 16 else None)
    stamp(b, 2)
    conv2 = []
    for q in range(nq):
        for h in range(8):
            r = 128 + 32 * q + 4 * h
            conv2 += [f"v_accvgpr_read_b32 v{4+i_}, a{r+i_}" for i_ in range(4)]
            conv2 += [f"v_mul_f32 v{4+i_}, s{sC}, v{4+i_}" for i_ in range(4)]
            conv2 += ["v_cvt_pk_bf16_f32 v4, v4, v5", "v_cvt_pk_bf16_f32 v6, v6, v7",
                      f"v_accvgpr_write_b32 a{AQ2(q)+2*h}, v4", f"v_accvgpr_write_b32 a{AQ2(q)+2*h+1}, v6"]
    def pre_mfma(): return [qk(q, 0, s_, czero=True) for q in range(nq) for s_ in range(4)]
    def pre_max():
        t = B()
        for q in range(nq):
            s_ = S_ + 8 * q
            t(f"v_max3_f32 v{s_}, v{s_}, v{s_+1}, v{s_+2}")
        for q in range(nq):
            s_ = S_ + 8 * q
            t(f"v_max_f32 v{s_}, v{s_}, v{s_+3}")
        xlane_reduce_multi(t, [S_ + 8 * q for q in range(nq)], [T0 + q for q in range(nq)], "v_max_f32")
        for q in range(nq):
            for r in range(4): t(f"v_sub_f32 v{CI+4*q+r}, 0, v{S_+8*q}")
        return t.L
    def weave(mf, st, per):
        for x in mf:
            b(x)
            for _ in range(per):
                if st: b(st.pop(0))
    def zipper(a_, b_, ra, rb):
        out = []
        while a_ or b_:
            for _ in range(ra):
                if a_: out.append(a_.pop(0))
            for _ in range(rb):
                if b_: out.append(b_.pop(0))
        return out
    b.ext(k_reads(0, 0))
    b.ext(fill)
    b(f"v_and_b32 v4, 3, v0\nv_mov_b32 v5, 0x3f803f80\nv_cmp_eq_u32 vcc, 0, v4")
    for i_ in range(4): b(f"v_cndmask_b32 v{ONES+i_}, 0, v5, vcc")
    b("s_waitcnt lgkmcnt(0)")
    if OPT.get('wts'):
        mv = [f"v_mov_b32 v{192+i_}, v{WOF+i_}" for i_ in range(36)]
        b.ext(mv[:8])
        mv = mv[8:]
        weave(pre_mfma()[:8], mv, 4)
        b.ext(mv); b.ext(pre_mfma()[8:])
    else: b.ext(pre_mfma())
    b.ext(pre_max())
    stamp(b, 3)
    for i_ in range(OPT.get('pause', 0)): b('s_sleep 32')
    if OPT.get('skew'):
        b(f"s_lshr_b32 s{sT}, s97, 3\ns_and_b32 s{sT}, s{sT}, 7\nL_skew{sfx}:\ns_cmp_eq_u32 s{sT}, 0\ns_cbranch_scc1 L_skewd{sfx}\ns_sleep {OPT['skew']}\ns_sub_u32 s{sT}, s{sT}, 1\ns_branch L_skew{sfx}\nL_skewd{sfx}:")
    adv8 = lambda x: x
    def head_start(hd):
        b(f"s_cmp_lg_u32 s{sSAFE}, 0\ns_cbranch_scc1 L_maxpass{sfx}\nL_maxdone{hd}{sfx}:")
        if not LM:
            for q in range(nq): b(f"v_mov_b32 v{LS+q}, 0")
        stamp(b)
    if OPT.get('wtp') == 2 and nq == 3: b("WAITV ; cover=WT\nbuffer_wbl2 sc1 ; tag=WT")
    if OPT.get('pz'): b(f"s_mov_b32 s{sPW}, 99\ns_mov_b32 s{sPZ}, 0")
    if OPT.get('pz') and nq == 3: b(f"v_bfe_u32 v{VPA}, v0, 2, 2\nv_xor_b32 v{VPA}, 3, v{VPA}\nv_lshlrev_b32 v{VPA}, 7, v{VPA}\nv_sub_u32 v{VPA}, v{VPE}, v{VPA}")
    if OPT.get('dw3') and nq == 3:
        b(f"""v_subrev_u32 v{DK2}, 6144, v{DK0}
        v_subrev_u32 v{DK3}, 6144, v{DK1}
        v_xor_b32 v{DKA}, 128, v{DK2}
        v_xor_b32 v{DKB}, 128, v{DK3}
        v_subrev_u32 v{DVA}, 6144, v{DV0}
        v_subrev_u32 v{DVB}, 6144, v{DV1}""")
    head_start(0)
    per = -(-len(conv2) // 8); tot_ = len(conv2)
    for k in range(8):
        ex = []
        if k == 0 and OPT.get('wts'):
            for i_ in range(8 if OPT.get('fsq') else 9):
                g = 2 + 7 * i_
                if i_ < 8: ex.append((g - 1, f"s_add_u32 s{sT+1}, s{sWB}, {16384*(i_//4)}"))
                else: ex += [(g - 2, f"s_lshl_b32 s{sT+1}, s{sWAVE}, 10"), (g - 1, f"s_add_u32 s{sT+1}, s{sT+1}, 32768")]
                ex.append((g, f"buffer_store_dwordx4 {vr(192+4*i_,4)}, v{VLN}, s[{SWT}:{SWT+3}], s{sT+1} offen offset:{1024*(i_%4) if i_ < 8 else 0} sc1 ; tag=WT"))
        if OPT.get('fsq'):
            A9 = 192 if nq == 4 else 224
            if k == 1: ex += [(5, f"s_mov_b32 m0, s{sWTS}"), (6, dma(VWX, SWO, "0", 0, fl('nt_wo'), "W9X"))]
            if k == 6: ex += [(3, "WAITV ; cover=W9X"), (4, f"ds_read_b64_tr_b16 {ar(A9,2)}, v{VWE} offset:0"), (5, f"ds_read_b64_tr_b16 {ar(A9+2,2)}, v{VWE} offset:512")]
            if k == 7: ex += [(4, f"s_lshl_b32 s{sT+1}, s{sWAVE}, 10"), (5, f"s_add_u32 s{sT+1}, s{sT+1}, 32768"),
                              (25, f"buffer_store_dwordx4 {ar(A9,4)}, v{VLN}, s[{SWT}:{SWT+3}], s{sT+1} offen sc1 ; tag=WT")]
        if k == 6 and nq == 3:
            ex += [(46, "WAITV ; cover=HS"), (47, f"v_readfirstlane_b32 s{sT}, v{VHS}\ns_cmp_eq_u32 s{sT}, 0\ns_cbranch_scc1 L_hspin\nL_hsok:")]
        cnt_ = per
        if OPT.get('front'): cnt_ = -(-tot_ * {1: (8, 8, 7, 7, 6, 5, 4, 3), 2: (3, 4, 5, 6, 7, 7, 8, 8), 3: (12, 12, 12, 12, 0, 0, 0, 0)}[OPT['front']][k] // 48)
        attn_stage(b, k, nq, ex, fill=[conv2.pop(0) for _ in range(min(cnt_, len(conv2)))])
    b(f"L_atin{sfx}:")
    b(f"s_mov_b32 s{sCNT}, 0")
    b(f".p2align 3\nL_at{sfx}:")
    b("LOOPBEGIN at 3 8")
    for k in range(8, 16):
        ex = []
        if k == 11 and nq == 3 and not OPT.get('pz'):
            ex = [(59, f"""s_xor_b32 s{sT+1}, s{sHEAD}, 1
            s_or_b32 s{sT}, s{sCNT}, s{sT+1}
            s_cbranch_scc0 L_sig
            L_nosig:""")]
        if OPT.get('pz') and nq == 3:
            if k == 11: ex = [(58, f"s_cmp_eq_u32 s{sPW}, 99"), (60, f"s_cbranch_scc1 L_nop3\nbuffer_load_dword v{VCW}, v{VPA}, s[{SCN}:{SCN+3}], 0 offen sc1 ; cond\nL_nop3:")]
            if k == 13: ex = [(BG + 1, f"s_getreg_b32 s{sST}, hwreg(HW_REG_IB_STS)")]
            if k == 15:
                ex = [(BG - 1, f"""v_cmp_gt_u32 vcc, v{VTH}, v{VCW}
                v_mov_b32 v5, {DEC}
                s_and_b32 s{sT}, s{sST}, 15
                s_lshr_b32 s{sT+1}, s{sST}, 30
                s_lshl_b32 s{sT+1}, s{sT+1}, 4
                s_or_b32 s{sT}, s{sT}, s{sT+1}
                s_cmp_ge_u32 s{sT}, {OPT.get('pzt', 0)}
                s_cselect_b32 s{sT}, 1, 0
                s_cmp_eq_u64 vcc, 0
                s_cselect_b32 s{sT}, s{sT}, 0
                v_mov_b32 v4, s{sT}
                ds_write_b32 v5, v4
                s_waitcnt lgkmcnt(0)""")]
        if k == 9 and OPT.get('pz'): b(f"L_at1{sfx}:")
        if k == 15:
            if OPT.get('pz'): ex += [(NS - 4, f"s_add_u32 s{sCNT}, s{sCNT}, 1"), (NS - 2, f"s_cmp_ge_u32 s{sCNT}, s{sPW}")]
            else: ex += [(NS - 6, f"s_add_u32 s{sCNT}, s{sCNT}, 1"), (NS - 4, f"s_add_u32 s{sT}, s{sCNT}, s{sHEAD}"), (NS - 2, f"s_cmp_lt_u32 s{sT}, 3")]
        attn_stage(b, k, nq, ex)
    if OPT.get('pz'): b(f"s_cbranch_scc1 L_pchk{sfx}\nL_pret{sfx}:\ns_add_u32 s{sT}, s{sCNT}, s{sHEAD}\ns_cmp_lt_u32 s{sT}, 3")
    if OPT.get('midgap'):
        b(f"s_cselect_b32 s{sT+1}, 1, 0\ns_lshl_b32 s{sT}, s{sHEAD}, 4\ns_add_u32 s{sT}, s{sT}, s{sCNT}\ns_cmp_eq_u32 s{sT}, {OPT.get('midat', 1)}\ns_cbranch_scc0 L_ng{sfx}")
        for i_ in range(OPT['midgap']): b("s_sleep 16")
        b(f"L_ng{sfx}:\ns_cmp_eq_u32 s{sT+1}, 1")
    b(f"s_cbranch_scc1 L_at{sfx}")
    b("LOOPEND at")
    b(f"L_atx{sfx}:")
    b(f"s_cmp_lg_u32 s{sHEAD}, 0\ns_cbranch_scc1 L_fin{sfx}")

    def lsum(qs):
        t = B()
        if not LM: xlane_reduce_multi(t, [LS + q for q in qs], [T0 + 4 + q for q in qs], "v_add_f32")
        for q in qs:
            src = LA + 4 * q if LM else LS + q
            t(f"v_cmp_ngt_f32 vcc, {LTHR}, v{src}")
            t(f"v_rcp_f32 v{LS+q}, v{src}")
            t(f"s_or_b32 s{sFLAG}, s{sFLAG}, vcc_lo\ns_or_b32 s{sFLAG}, s{sFLAG}, vcc_hi")
        return t.L
    cnt = [0]
    def onorm(q, pk, flag, inplace=False, so=None):
        out = []
        for sp in range(4):
            d = P_ + 4 * (cnt[0] % 2); cnt[0] += 1
            if inplace: d = O_ + 32 * q + 8 * sp
            rs = [O_ + 32 * q + 8 * sp + 2 * i_ for i_ in range(4)]
            for r in rs:
                if pk and OPT.get('pk', 1): out.append(f"v_pk_mul_f32 v[{r}:{r+1}], v[{r}:{r+1}], v[{LS+q-(q%2)}:{LS+q-(q%2)+1}] op_sel:[0,{q%2}] op_sel_hi:[1,{q%2}]")
                else: out += [f"v_mul_f32 v{r}, v{r}, v{LS+q}", f"v_mul_f32 v{r+1}, v{r+1}, v{LS+q}"]
            for i_, r in enumerate(rs): out.append(f"v_cvt_pk_bf16_f32 v{d+i_}, v{r}, v{r+1}")
            if flag is None:
                for i_ in range(4): out.append(f"v_accvgpr_write_b32 a{AST+16*q+4*sp+i_}, v{d+i_}")
                continue
            if so:
                out[-1] += f"\ns_add_u32 s{sT+1}, s{so}, {sp*122880}\nbuffer_store_dwordx4 {vr(d,4)}, v{VO}, s[{SO}:{SO+3}], s{sT+1} offen offset:{1024*q}{flag}"
                continue
            out.append(f"s_add_u32 s{sT}, s{sOO}, {sp*122880}")
            out.append(f"buffer_store_dwordx4 {vr(d,4)}, v{VO}, s[{SO}:{SO+3}], s{sT} offen offset:{1024*q}{flag}")
        return out
    def drain(st, ld=None, every=1):
        slots = []; gaps = [[] for _ in range(18)]
        for q in (2, 3):
            for T in range(8): slots.append(pv(q, T) if q < nq else None)
            slots.append(lsm(q) if (q < nq and LM) else None)
        rem = sorted(sm_items(nq, NS, 2 * NS), key=lambda t: t[0])
        b.ext([sm_text(*k_) for g, k_ in rem if k_[1] == 2 and k_[0] != 'add'])
        crit = sorted([k_ for g, k_ in rem if k_[1] == 3 and k_[0] != 'add'], key=lambda k_: (k_[2], k_[0] == 'cvt'))
        g = 0
        for k_ in crit:
            if k_[0] == 'exp' and gaps[min(g, 6)]: g += 1
            gaps[min(g, 6)].append(sm_text(*k_))
            if k_[0] == 'exp' or len(gaps[min(g, 6)]) == 2: g += 1
        late = [sm_text(*k_) for g_, k_ in rem if k_[0] == 'add']
        for i_, x in enumerate(late): gaps[min(9 + i_ // 2, 16) if nq == 4 else 0].append(x)
        for g in range(18):
            if slots[g] is None: continue
            room = 2 - sum(2 if 'exp' in x else 1 for x in gaps[g])
            while room > 0 and st: gaps[g].append(st.pop(0)); room -= 1
        for i_, s_ in enumerate(slots):
            if s_: b(s_)
            if s_ and ld and (i_ % every == 0 or nq == 3):
                b(ld.pop(0))
                while ld and ld[0].startswith("s_"): b(ld.pop(0))
            b.ext(gaps[i_])
    hi = list(range(2, nq))
    movs = [f"v_accvgpr_mov_b32 a{AQ(q)+i_}, a{AQ2(q)+i_}" for q in range(nq) for i_ in range(16)]
    f0 = None if OPT.get('defer') else K2F[OPT.get('of0', 2)] + ' ; tag=WT'
    if OPT.get('wtp') == 1 and nq == 3: b("buffer_wbl2 sc1 ; tag=WT")
    st = lsum([0, 1]) + onorm(0, False, f0)
    SW2_ = OPT.get('sw2', 0)
    if SW2_:
        ld = []
        D_ = OPT.get('dist', 5 if OPT.get('fsa') else 6)
        if OPT.get('pair'):
            b(f"s_add_u32 s{sT+1}, s{sKV}, 8192")
            if OPT.get('fsa') or OPT.get('fp'): ld = v_dma(36) + v_dma(37, f"s{sT+1}") + adv2(sT + 1) + [f"s_add_u32 s{sT+1}, s{sKV}, 8192"] + k_dma(38) + k_dma(39, f"s{sT+1}")
            else: ld = k_dma(38) + k_dma(39, f"s{sT+1}") + v_dma(38) + v_dma(39, f"s{sT+1}") + adv2(sT + 1)
        else:
            for t in (32 + D_, 33 + D_): ld += k_dma(t) + v_dma(t) + kv_adv()
        if OPT.get('dw3'):
            ld = (pair_dma3(True, 36, 92) + [f"s_add_u32 s{sKV}, s{sKV}, 16384"] + pair_dma3(False, 38, 92)) if nq == 3 else ["s_nop 0"]
        b(ld.pop(0))
        ld2 = []
        for x in ld: ld2 += [x] if x.startswith('s_') else [x, 'v_nop']
        ld2 = [x for x in ld]
        drain(st, ld2, 2)
        if OPT.get('dw3'): st[:] = ["s_waitcnt vmcnt(24)"] + zipper(st, ld2, 3, 1)
    else: drain(st)
    stamp(b, 4)
    b.ext(zipper(st, lsum(hi), 2, 1))
    b.ext(movs)
    st = onorm(1, False, f0)
    weave(pre_mfma(), st, 3 if nq == 4 else 4)
    b.ext(st)
    rest = []; late_ = []
    for q in hi:
        if SW2_ >= 2: late_ += onorm(q, False, f0, inplace=True, so=sOP)
        else: rest += onorm(q, True, f0)
    b.ext(zipper(rest, pre_max(), 2, 1))
    b.ext(vote_write())
    b(f"s_mov_b32 s{sOP}, s{sOO}\ns_add_u32 s{sOO}, s{sOO}, {4*122880}\ns_mov_b32 s{sHEAD}, 1")
    if OPT.get('emub'):
        b(f"s_and_b32 s{sT}, s97, 3\ns_cmp_eq_u32 s{sT}, s{sCNT}" if False else "")
        b(f"s_mov_b32 s{sT}, 0\nL_duma{sfx}:")
        for i_ in range(64):
            if (i_ // 2) % 4 >= nq: continue
            b(f"{MF} a[{192+4*(i_//2%16)}:{195+4*(i_//2%16)}], a[{4*(i_%8)}:{4*(i_%8)+3}], a[{32+4*(i_%7)}:{35+4*(i_%7)}], a[{192+4*(i_//2%16)}:{195+4*(i_//2%16)}]")
            if i_ % 2 == 0: b(f"ds_read_b64_tr_b16 v[4:5], v{VA + i_ % 8} offset:{(i_ % 16) * 4096}")
        b(f"s_waitcnt lgkmcnt(0)\ns_barrier\ns_add_u32 s{sT}, s{sT}, 1\ns_cmp_lt_u32 s{sT}, 8\ns_cbranch_scc1 L_duma{sfx}")
    if OPT.get('pz'):
        b(f"""s_and_b32 s{sT}, s97, 7
        s_lshl_b32 s{sT}, s{sT}, 2
        s_lshr_b32 s{sPW}, {OPT.get('pzc', 0x10210210):#x}, s{sT}
        s_and_b32 s{sPW}, s{sPW}, 15
        s_or_b32 s{sT}, s{sIDLE}, s{sSAFE}
        s_cselect_b32 s{sPW}, 0, s{sPW}
        s_cmp_eq_u32 s{sPW}, 0
        s_cselect_b32 s{sPW}, 99, s{sPW}""")
    head_start(1)
    dst = [(q, sp) for q in range(nq) for sp in range(4)] if OPT.get('defer') else []
    for k in range(32, 40):
        ex = []
        for g in (24, 25):
            if dst:
                q, sp = dst.pop(0)
                ex += [(g, f"s_add_u32 s{sT+1}, s{sOP}, {sp*122880}"),
                       (g, f"buffer_store_dwordx4 {ar(AST+16*q+4*sp,4)}, v{VO}, s[{SO}:{SO+3}], s{sT+1} offen offset:{1024*q} sc1 ; tag=WT")]
        if k == 39 and nq == 3 and OPT.get('pz'): ex.append((59, "s_branch L_sig\nL_nosig:"))
        attn_stage(b, k, nq, ex, fill=late_ if k == 32 else None)
    b(f"s_branch L_atin{sfx}")
    b("REPLAY at 32 2")
    b(f"L_fin{sfx}:")
    f1 = K2F[OPT.get('of', 0)]
    early = p2_w(0) + p2_o(0) + p2_adv(0) + p2_w(1) + p2_o(1) + p2_adv(1)
    if OPT.get('pre8'): early += (p2_w(2) + p2_o(2))[:8]
    for k in range(56, 64):
        ex = []
        CK = 57 if OPT.get('stg') == 2 else 59
        if k == 56: ex = [(1 if CK == 57 else 6, f"buffer_load_dword v{VCW}, v{VPE}, s[{SCN}:{SCN+3}], 0 offen sc1 ; tag=CW")]
        if k == CK: ex = [(NS - 3, f"WAITV ; cover=CW\nv_cmp_gt_u32 vcc, v{VTH}, v{VCW}\ns_cbranch_vccnz L_espin{sfx}\nL_eok{sfx}:" + ("\nbuffer_inv sc1" if OPT.get('acq') else "") + (f"\ns_cmp_eq_u32 s{sPZ}, 0\ns_cselect_b64 vcc, -1, 0" if OPT.get('pz') else ""))]
        if k == 57 and OPT.get('pz'): b(f"L_t57{sfx}:")
        if k > CK and OPT.get('stg'):
            pos = (3, 5, 7, 11, 17, 23, 31, 34, 37, 40, 54, 57) if k < 62 else (3, 5, 7, 11)
            if CK == 57: pos = (3, 7, 11, 17, 23, 33, 38, 55) if k < 62 else ()
            for g in pos:
                ex.append((g, early.pop(0)))
                while early and early[0].startswith("s_"): ex.append((g + 1, early.pop(0)))
            if k == 61: ex += [(58 + i_, x) for i_, x in enumerate(p2_stage_init())]
            if k >= 62:
                gs = iter((17, 23, 30, 32, 34, 36, 38, 40, 54, 55, 56, 57) if k == 62 else (17, 23, 30, 33, 36, 39, 50, 52, 54, 55, 56, 57))
                g = 15
                if CK == 57: gs = iter((3, 5, 7, 11, 17, 23, 30, 33, 36, 39, 54, 57)); g = 1
                seq_ = p2_stage(k - 62)
                for i_, x in enumerate(seq_):
                    if x.startswith("buffer_"): g = next(gs); ex.append((g, x))
                    elif x.startswith("s_add_u32 m0"): ex.append((g + 1, x))
                    else: ex.append((g + 1, x))
        elif k >= 60:
            for g in ((3, 7, 11, 17, 23, 33, 38, 55) if OPT.get('pre8') else (3, 7, 11, 17, 23, 45 if LM else 44)):
                if OPT.get('pz'):
                    t_ = [early.pop(0) + " condp"]
                    while early and early[0].startswith("s_"): t_.append(early.pop(0))
                    ex.append((g, f"s_cbranch_vccz L_sk{k}_{g}{sfx}\n" + "\n".join(t_) + f"\nL_sk{k}_{g}{sfx}:"))
                    continue
                ex.append((g, early.pop(0)))
                while early and early[0].startswith("s_"): ex.append((g + 1, early.pop(0)))
        attn_stage(b, k, nq, ex)
    assert not early
    p2 = []
    for s_ in (2, 3): p2 += p2_w(s_) + p2_o(s_) + p2_adv(s_)
    if OPT.get('pre8'): p2 = p2[8:]
    st = lsum([0, 1]) + onorm(0, False, f1)
    if OPT.get('stg'): b('s_waitcnt vmcnt(32)')
    drain(st, p2)
    stamp(b, 5)
    body = st + zipper(onorm(1, True, f1), lsum(hi), 2, 1)
    for q in hi: body += onorm(q, True, f1)
    body = [x + " ; tag=OS" if x.startswith("buffer_store") else x for x in body]
    nld = sum(1 for x in p2 if x.startswith("buffer_"))
    per = max(1, len(body) // (nld + 2))
    seq = []
    while body or p2:
        if p2:
            seq.append(p2.pop(0))
            while p2 and p2[0].startswith("s_"): seq.append(p2.pop(0))
        for _ in range(per):
            if body: seq.append(body.pop(0))
    outst = 48 - nld
    for x in seq:
        if x.startswith("buffer_"):
            if outst >= 62: b("s_waitcnt vmcnt(52)"); outst = 52
            outst += 1
        b(x)
    b.ext(vote_write())
    stamp(b)
    if OPT.get('pz'): b(f"s_cmp_eq_u32 s{sPZ}, 1\ns_cbranch_scc1 L_p2p{sfx}\nALTFROM p")
    b(f"L_p2s{sfx}:")
    if OPT.get('stg'):
        b(f"v_add_u32 v{VSB}, s{sSB}, v{VLN}\nv_add_u32 v{VSB+1}, 0x10000, v{VSB}")
        for s_ in range(4): p2_step(b, s_, s_ == 0, 'lds' if s_ < 2 else True, f"WAITV ; cover=P{s_}{',L%d' % (4 + s_) if s_ < 2 else ''} cap=51")
    else:
        for s_ in range(4): p2_step(b, s_, s_ == 0, s_ >= OPT.get('skip2', 0), f"WAITV ; cover=P{s_} cap=51")
    b("WAITV lgkmcnt(0) ; cover=OS")
    b("s_branch L_vote")
    b(f"""L_espin{sfx}:
    s_mov_b32 s{sLATE}, 1
    s_mov_b32 s{SO2+2}, 0
    s_mov_b32 s{SW2+2}, 0
    s_branch L_eok{sfx}""")
    if nq == 3:
        b(f"""L_sig:
        v_mov_b32 v4, {131072+7168}
        ds_read_b128 v[4:7], v4
        s_waitcnt lgkmcnt(0)
        v_or_b32 v4, v4, v5
        v_or3_b32 v4, v4, v6, v7
        v_readfirstlane_b32 s{sT}, v4
        s_mov_b64 exec, 1
        s_cmp_lg_u32 s{sSAFE}, 0
        s_cselect_b32 s{sT}, 0, s{sT}
        s_cbranch_scc1 L_sig1
        buffer_atomic_add v{VONE}, off, s[{SCN}:{SCN+3}], s{sCW} sc1
        L_sig1:
        s_or_b32 s{sT}, s{sT}, s{sSIG}
        s_cbranch_scc1 L_sig2
        s_add_u32 s{sT}, s{sCO}, 16384
        s_mov_b32 s{sSIG}, 1
        buffer_atomic_add v{VONE}, off, s[{SCN}:{SCN+3}], s{sT} sc1
        L_sig2:
        s_mov_b64 exec, -1
        s_branch L_nosig""")
        b(f"""L_hspin:
        s_mov_b32 s{sCNT}, 0
        L_hsp:
        s_sleep 8
        buffer_load_dword v{VHS}, off, s[{SDB}:{SDB+3}], 0 sc1
        s_waitcnt vmcnt(0)
        v_readfirstlane_b32 s{sT}, v{VHS}
        s_add_u32 s{sCNT}, s{sCNT}, 1
        s_lshr_b32 s{sT+1}, s{sCNT}, 17
        s_or_b32 s{sT}, s{sT}, s{sT+1}
        s_cmp_eq_u32 s{sT}, 0
        s_cbranch_scc1 L_hsp
        s_branch L_hsok""")
    for uid in QSPINS:
        b(f"""L_fs{uid}:
        ds_read_b128 {vr(QF,4)}, v{QFB}
        s_waitcnt lgkmcnt(0)
        v_min3_u32 v{QF}, v{QF}, v{QF+1}, v{QF+2}
        v_min_u32 v{QF}, v{QF}, v{QF+3}
        v_cmp_gt_u32 vcc, s{sFQ}, v{QF}
        s_cbranch_vccnz L_fs{uid}
        s_branch L_fr{uid}""")
    QSPINS.clear()
    for uid in SPINS:
        b(f"""L_fs{uid}:
        {"s_sleep %d" % OPT['fss'] if OPT.get('fss') else ""}
        ds_read_b128 {vr(FQ,4)}, v{VFB}
        s_waitcnt lgkmcnt(0)
        v_min3_u32 v{FQ}, v{FQ}, v{FQ+1}, v{FQ+2}
        v_min_u32 v{FQ}, v{FQ}, v{FQ+3}
        v_cmp_gt_u32 vcc, s{sFV}, v{FQ}
        s_cbranch_vccnz L_fs{uid}
        s_branch L_fr{uid}""")
    SPINS.clear()
    if OPT.get('pz'):
        b(f"""L_pchk{sfx}:
        v_mov_b32 v5, {DEC}
        ds_read_b32 v4, v5
        s_waitcnt lgkmcnt(0)
        v_readfirstlane_b32 s{sT}, v4
        s_cmp_eq_u32 s{sT}, 0
        s_cbranch_scc1 L_pret{sfx}
        s_mov_b32 s{sPW}, 99
        s_mov_b32 s{sPZ}, 1""")
        w_, o_, a_ = pz_loads(0, 0)
        ld = w_ + o_ + a_
        drain([], ld)
        b.ext(ld)
        w_, o_, a_ = pz_loads(1, 1)
        b.ext(w_ + o_ + a_)
        b("s_branch L_pz")
        b(f"L_pzr{sfx}:")
        b.ext([x.split(';')[0] for x in k_reads(0, 0)])
        b("s_waitcnt lgkmcnt(0)")
        t_ = B(); attn_stage(t_, 8, nq, resume=True); b.ext([x.split(';')[0] for x in t_.L])
        b(f"s_cmp_eq_u32 s{sCNT}, 1\ns_cbranch_scc1 L_at1{sfx}\ns_branch L_t57{sfx}")
        b(f"ALTBEGIN p\nL_p2p{sfx}:")
        b(f"s_add_u32 s{sT}, s{sXB}, 131072\nv_add_u32 v5, s{sT}, v{VLN}")
        for i_ in range(4): b(f"ds_read_b128 {vr(240+4*i_,4)}, v5 offset:{1024*i_}")
        l0 = p2_w(0) + p2_o(0) + p2_adv(0); l1 = p2_w(1) + p2_o(1) + p2_adv(1)
        for i_ in range(128):
            b(f"v_accvgpr_read_b32 v{112+i_}, a{128+i_}")
            if i_ >= 64 and i_ % 4 == 3 and l0:
                b(l0.pop(0))
                while l0 and l0[0].startswith("s_"): b(l0.pop(0))
        b("WAITV ; cover=P2 cap=40")
        b.ext(l1)
        b("s_waitcnt lgkmcnt(0)")
        for s_ in (2, 3): p2_step(b, s_, False, True, f"WAITV ; cover=P{s_} cap=51")
        b("WAITV lgkmcnt(0) ; cover=OS")
        b("s_branch L_vote\nALTEND p")
    b(f"L_maxpass{sfx}:")
    for q in range(nq): b(f"v_mov_b32 v{T0+8+q}, 0xff800000")
    for s2 in range(4): b(f"v_add_u32 v{T0+12+s2}, 147456, v{KA+s2}")
    b(f"s_lshl_b32 s{sT}, s{sHEAD}, 18\ns_mov_b32 s{sCNT}, 0")
    b(f"L_mp{sfx}:")
    b(f"s_barrier\ns_add_u32 m0, s{sKB}, 147456")
    b(dma(DK0, SK, f"s{sT}", 0, "", "MP")); b(dma(DK1, SK, f"s{sT}", 1024, "", "MP"))
    b("s_waitcnt vmcnt(0)\ns_barrier")
    for kt in range(2):
        for s in range(4):
            b(f"ds_read_b128 {ar(ASP+4*(4*kt+s),4)}, v{T0+12+s} offset:{kt*4096}")
    b("s_waitcnt lgkmcnt(0)")
    for q in range(nq):
        for kt in range(2):
            for s in range(4):
                d = vr(S_ + 8 * q + 4 * kt, 4)
                b(f"{MF} {d}, {ar(ASP+4*(4*kt+s),4)}, {ar(AQ(q)+4*s,4)}, {d if s else '0'}")
    for q in range(nq):
        for e in range(0, 8, 2): b(f"v_max3_f32 v{T0+8+q}, v{T0+8+q}, v{S_+8*q+e}, v{S_+8*q+e+1}")
    b(f"s_add_u32 s{sT}, s{sT}, 8192\ns_add_u32 s{sCNT}, s{sCNT}, 1\ns_cmp_lt_u32 s{sCNT}, 32\ns_cbranch_scc1 L_mp{sfx}")
    b("s_barrier")
    xlane_reduce_multi(b, [T0 + 8 + q for q in range(nq)], [T0 + q for q in range(nq)], "v_max_f32")
    for q in range(nq):
        for r in range(4): b(f"v_sub_f32 v{CI+4*q+r}, 0, v{T0+8+q}")
    b(f"s_cmp_eq_u32 s{sHEAD}, 0\ns_cbranch_scc1 L_maxdone0{sfx}\ns_branch L_maxdone1{sfx}")

FA = [144, 192, 0, 96]
def p2_reg(slot, i):
    if OPT.get('pre8'):
        if slot == 2: return 128 + 4 * i if i < 4 else (240 + 4 * (i - 4) if i < 8 else 4 * (i - 8))
        if slot == 3: return 16 + 4 * i
    if slot == 3: return 48 + 4 * i if i < 4 else 96 + 4 * (i - 4)
    return FA[slot] + 4 * i
def pz_reg(slot, i):
    return ar((0, 64)[slot] + 4 * i, 4) if i < 8 else vr((32, 48)[slot] + 4 * (i - 8), 4)
def pz_acc(t): return ar(128 + 4 * t, 4) if t < 32 else vr(16 + 4 * (t - 32), 4)
def pz_loads(slot, L):
    f = K2F[OPT.get('p2f', 2)]
    w = [f"buffer_load_dwordx4 {pz_reg(slot, i)}, v{VPW + i//3}, s[{SW2}:{SW2+3}], s{sW2} offen offset:{1024*(i%3)}{f}" for i in range(6)]
    o = [f"buffer_load_dwordx4 {pz_reg(slot, 6+i)}, v{VPO + i//3}, s[{SO2}:{SO2+3}], s{sO2} offen offset:{1024*(i%3)}{f}" for i in range(6)]
    return w, o, p2_adv(L % 4)
VPW = 2; VPO = 8
def p2_w(slot): return [f"buffer_load_dwordx4 {ar(p2_reg(slot, i),4)}, v{VPW + i//3}, s[{SW2}:{SW2+3}], s{sW2} offen offset:{1024*(i%3)}{K2F[OPT.get('p2wf', OPT.get('p2f', 2))]} ; tag=P{slot}" for i in range(6)]
def p2_o(slot): return [f"buffer_load_dwordx4 {ar(p2_reg(slot, 6+i),4)}, v{VPO + i//3}, s[{SO2}:{SO2+3}], s{sO2} offen offset:{1024*(i%3)}{K2F[OPT.get('p2f', 2)]} ; tag=P{slot}" for i in range(6)]
def p2_adv(slot):
    m = 5 if slot == 3 else 1
    out = [f"s_add_u32 s{sO2}, s{sO2}, {m*122880}", f"s_add_u32 s{sW2}, s{sW2}, {m*36864}"]
    if slot == 3 and OPT.get('krot'):
        out += ["s_add_u32 s93, s93, 1", "s_and_b32 s93, s93, 3", "s_cselect_b32 s94, 0, 32", "s_mul_i32 s95, s94, 122880",
                f"s_sub_u32 s{sO2}, s{sO2}, s95", "s_mul_i32 s95, s94, 36864", f"s_sub_u32 s{sW2}, s{sW2}, s95"]
    return out
def p2_init():
    if OPT.get('s2t'): return f"s_mul_i32 s{sO2}, s92, {32*122880}\ns_mul_i32 s{sW2}, s92, {32*36864}"
    if not OPT.get('krot'): return f"s_mul_i32 s{sO2}, s{sWAVE}, {32*122880}\ns_mul_i32 s{sW2}, s{sWAVE}, {32*36864}"
    return f"s_lshl_b32 s93, s{sWAVE}, 2\ns_add_u32 s93, s93, s92\ns_mul_i32 s{sO2}, s93, {8*122880}\ns_mul_i32 s{sW2}, s93, {8*36864}\ns_mov_b32 s93, s92"

def p2_stage(i):
    f = K2F[OPT.get('p2f', 2)]; out = []
    for grp, (v_, srd, so) in enumerate(((VPW, SW2, 93), (VPW + 1, SW2, 93), (VPO, SO2, 92), (VPO + 1, SO2, 92))):
        out.append(f"s_add_u32 m0, s{sSB}, {65536 * i + 3072 * grp}")
        out += [f"buffer_load_dwordx4 v{v_}, s[{srd}:{srd+3}], s{so} offen offset:{1024*j}{f} lds ; tag=L{4+i}" for j in range(3)]
    out += ["s_add_u32 s92, s92, 122880", "s_add_u32 s93, s93, 36864"]
    return out
def p2_stage_init():
    return [f"s_mul_i32 s{sSB}, s{sWAVE}, 12288", f"s_mul_i32 s92, s{sWAVE}, {32*122880}", f"s_add_u32 s92, s92, {8*122880}",
            f"s_mul_i32 s93, s{sWAVE}, {32*36864}", f"s_add_u32 s93, s93, {8*36864}"]

def vote_write():
    return [f"v_mov_b32 v4, s{sFLAG}", f"s_lshl_b32 s{sT}, s{sWAVE}, 2", f"s_add_u32 s{sT}, s{sT}, {131072+7168}",
            f"v_mov_b32 v5, s{sT}", "ds_write_b32 v5, v4"]

P2ACC = 112
def p2_acc(q, n): return P2ACC + 4 * (6 * q + n)
def p2_step(b, slot, first, prefetch, wait, order=None, extra=None):
    b(wait)
    order = order or [(q, n) for q in range(6) for n in range(6)]
    slots = []; gaps = [[] for _ in range(36)]
    for q, n in order:
        a_ = vr(p2_acc(q, n), 4)
        slots.append(f"{MF} {a_}, {ar(p2_reg(slot, n),4)}, {ar(p2_reg(slot, 6+q),4)}, {'0' if first else a_}")
    if prefetch:
        o_, w_ = p2_o(slot), p2_w(slot)
        if prefetch == 'lds':
            w_ = [f"ds_read_b128 {ar(p2_reg(slot, i),4)}, v{VSB + slot} offset:{1024*i}" for i in range(6)]
            o_ = [f"ds_read_b128 {ar(p2_reg(slot, 6+i),4)}, v{VSB + slot} offset:{1024*(6+i)}" for i in range(6)]
        for q in range(6): gaps[6 * q + 5].append(o_[q])
        for n in range(6): gaps[30 + n].append(w_[n])
        gaps[35] += p2_adv(slot)
    for g, x in (extra or []): gaps[g].append(x)
    emit_slots(b, slots, gaps)

def phase2(b):
    D = 4
    acc = p2_acc
    def step(slot, first, prefetch, N, order=None, extra=None): p2_step(b, slot, first, prefetch, f"s_waitcnt vmcnt({N})", order, extra)
    b(f"""L_vote:
    s_cmp_eq_u32 s{sLATE}, 2
    s_cbranch_scc1 L_go
    v_mov_b32 v5, {131072+7168}
    s_barrier
    ds_read_b128 v[16:19], v5
    s_waitcnt lgkmcnt(0)
    v_or_b32 v16, v16, v17
    v_or3_b32 v16, v16, v18, v19
    v_readfirstlane_b32 s{sT}, v16
    s_cmp_lg_u32 s{sSAFE}, 0
    s_cselect_b32 s{sT}, 0, s{sT}
    s_cmp_lg_u32 s{sT}, 0
    s_cbranch_scc1 L_redo
    s_cmp_eq_u32 s{sWAVE}, 3
    s_cbranch_scc0 L_nosig2
    s_mov_b64 exec, 1
    buffer_atomic_add v{VONE}, off, s[{SCN}:{SCN+3}], s{sCO} sc1
    s_mov_b64 exec, -1
    L_nosig2:""")
    stamp(b)
    b(f"""s_cmp_eq_u32 s{sIDLE}, 1
    s_cbranch_scc1 L_fini
    s_cmp_eq_u32 s{sLATE}, 1
    s_cbranch_scc1 L_lateld
    L_go:
    s_xor_b32 s70, s{sWAVE}, 1
    s_mul_i32 s70, s70, 27648
    v_add_u32 v16, s70, v{VLN}
    s_xor_b32 s70, s{sWAVE}, 2
    s_mul_i32 s70, s70, 27648
    s_add_u32 s70, s70, 9216
    v_add_u32 v17, s70, v{VLN}
    s_xor_b32 s70, s{sWAVE}, 3
    s_mul_i32 s70, s70, 27648
    s_add_u32 s70, s70, 18432
    v_add_u32 v18, s70, v{VLN}
    s_mul_i32 s70, s{sWAVE}, 27648
    v_add_u32 v19, s70, v{VLN}
    v_and_b32 v20, 15, v0
    v_mul_u32_u24 v20, 112, v20
    v_bfe_u32 v21, v0, 4, 2
    v_lshl_add_u32 v20, v21, 3, v20
    v_add_u32 v20, s70, v20            ; bf16 staging write address: row*96 + g*8
    v_and_b32 v21, 63, v0
    s_mov_b32 s71, 0x2aab""")
    for r in range(5):
        b(f"""v_add_u32 v22, {64*r}, v21
        v_mul_u32_u24 v23, s71, v22
        v_lshrrev_b32 v23, 16, v23
        v_mul_u32_u24 v{42+r}, {2304 - 96}, v23
        v_lshl_add_u32 v{42+r}, v22, 4, v{42+r}
        v_add_u32 v23, v23, v22
        v_lshlrev_b32 v23, 4, v23
        v_add_u32 v{68+r}, s70, v23""")
    b(f"""v_cmp_gt_u32 vcc, 32, v21
    v_mov_b32 v22, 0x7f000000
    v_cndmask_b32 v46, v22, v46, vcc
    s_mov_b32 s88, s{sOUT}
    s_mov_b32 s89, s{sOUT+1}
    s_mov_b32 s90, {8*240*1152*2}
    s_mov_b32 s91, 0x20000
    v_lshlrev_b32 v76, 3, v{VLN}
    v_min_u32 v76, L_fini-L_tail, v76
    v_add_u32 v76, L_tail-attn_kernel, v76
    v_mov_b32 v77, s95
    v_add_co_u32 v76, vcc, s94, v76
    v_addc_co_u32 v77, vcc, 0, v77, vcc
    s_mov_b32 s36, 0
    {f"s_cmp_eq_u32 s{sPZ}, 1" if OPT.get('pz') else ""}
    {"s_cbranch_scc1 L_chk2" if OPT.get('pz') else ""}
    .p2align 3
    L_k2:""")
    for s_ in range(D):
        ex = [(0, f"buffer_load_dword v6, v{VP2}, s[{SCN}:{SCN+3}], 0 offen sc1")] if s_ == 0 else None
        if s_ == 2 and OPT.get('rewt'): ex = [(0, "global_load_dword v78, v[76:77], off")]
        step(s_, False, True, 36, extra=ex)
    b("""s_add_u32 s36, s36, 1
    s_cmp_eq_u32 s36, 2
    s_cbranch_scc1 L_chk
    L_chkd:
    s_cmp_lt_u32 s36, 6
    s_cbranch_scc1 L_k2""")
    b("L_tail:")
    for s_ in range(D - 1): step(s_, False, False, 12 * (D - 1 - s_))
    stamp(b)
    quad = lambda q, n: (q // 3) * 2 + (n // 3)
    oth = [(q, n) for d in (1, 2, 3) for q in range(6) for n in range(6) if quad(q, n) == d]
    mine = [(q, n) for q in range(3) for n in range(3)]
    wr = [(min(i_ + 5, 35), f"ds_write_b128 v{15 + quad(q, n)}, {vr(acc(q, n),4)} offset:{((q % 3) * 3 + n % 3) * 1024}") for i_, (q, n) in enumerate(oth)]
    if OPT.get('stg'): b("s_barrier")
    step(D - 1, False, False, 0, order=oth + mine, extra=wr)
    if OPT.get('rstamps'): stamp(b)
    b("s_waitcnt lgkmcnt(0)\ns_barrier")
    if OPT.get('rstamps'): stamp(b)
    for t in range(9):
        for src in range(3):
            b(f"ds_read_b128 {vr(acc(*oth[3*t+src]),4)}, v19 offset:{src * 9216 + t * 1024}")
    nw = 0
    for t0 in range(0, 9, 3):
        ts = range(t0, t0 + 3)
        b(f"s_waitcnt lgkmcnt({min(15, 3 * (6 - t0) + nw)})")
        for ph in range(3):
            for t in ts:
                r0, r1, r2, m = acc(*oth[3*t]), acc(*oth[3*t+1]), acc(*oth[3*t+2]), acc(*mine[t])
                x_, y_ = ((r0, r1), (m, r2), (m, r0))[ph]
                for r in (0, 2): b(f"v_pk_add_f32 v[{x_+r}:{x_+r+1}], v[{x_+r}:{x_+r+1}], v[{y_+r}:{y_+r+1}]")
        for t in ts:
            m = acc(*mine[t])
            b(f"v_cvt_pk_bf16_f32 v{24+2*t}, v{m}, v{m+1}\nv_cvt_pk_bf16_f32 v{25+2*t}, v{m+2}, v{m+3}")
        for t in ts:
            q, n = mine[t]
            b(f"ds_write_b64 v20, v[{24+2*t}:{25+2*t}] offset:{q * 1792 + n * 32}"); nw += 1
    for r in range(5): b(f"ds_read_b128 {vr(48+4*r,4)}, v{68+r}")
    for r in range(5):
        b(f"s_waitcnt lgkmcnt({4-r})")
        b(f"buffer_store_dwordx4 {vr(48+4*r,4)}, v{42+r}, s[88:91], s{sOUTO} offen{K2F[OPT.get('outf', 0)]}")
    if OPT.get('rstamps'): stamp(b)
    b("L_fini:")
    if OPT.get('fixspan'):
        b(f"""s_waitcnt vmcnt(0)
        L_fix:
        s_memrealtime s[74:75]
        s_waitcnt lgkmcnt(0)
        s_sub_u32 s74, s74, s72
        s_cmp_lt_u32 s74, {OPT['fixspan'] * 100}
        s_cbranch_scc1 L_fix""")
    stamp_dump(b, 0, sWAVE)
    b("s_endpgm")
    if OPT.get('pz'):
        b("L_pz:")
        for j in range(10):
            sl = j % 2
            b(f"s_waitcnt vmcnt({12 if j < 9 else 0})")
            slots = []; gaps = [[] for _ in range(36)]
            for q in range(6):
                for n in range(6):
                    a_ = pz_acc(6 * q + n)
                    slots.append(f"{MF} {a_}, {pz_reg(sl, n)}, {pz_reg(sl, 6+q)}, {'0' if j == 0 else a_}")
            if j < 8:
                w_, o_, ad = pz_loads(sl, j + 2)
                for q in range(6): gaps[6 * q + 5].append(o_[q])
                for n in range(6): gaps[30 + n].append(w_[n])
                gaps[35] += ad
            emit_slots(b, slots, gaps)
        b(f"s_add_u32 s{sT}, s{sXB}, 131072\nv_add_u32 v5, s{sT}, v{VLN}\nv_mov_b32 v{VCW}, v{VTH}")
        for i_ in range(4): b(f"ds_write_b128 v5, {vr(16+4*i_,4)} offset:{1024*i_}")
        b(f"s_cmp_eq_u32 s{sWAVE}, 3\ns_cbranch_scc1 L_pzr3\ns_branch L_pzr4")
        b(f"""L_chk2:
        s_mov_b32 s36, 2
        buffer_load_dword v6, v{VP2}, s[{SCN}:{SCN+3}], 0 offen sc1
        s_waitcnt vmcnt(0)""")
    b(f"""L_chk:
    s_waitcnt vmcnt(48)
    s_{"add" if OPT.get('krot') else "sub"}_u32 s{sO2}, s{sO2}, {(4 if OPT.get('krot') else 28)*122880}
    s_{"add" if OPT.get('krot') else "sub"}_u32 s{sW2}, s{sW2}, {(4 if OPT.get('krot') else 28)*36864}
    v_cmp_gt_u32 vcc, 4, v6
    s_cbranch_vccz L_chkd
    s_mov_b32 s37, 0
    L_poll:
    s_sleep 4
    buffer_load_dword v6, v{VP2}, s[{SCN}:{SCN+3}], 0 offen sc1
    s_add_u32 s37, s37, 1
    s_waitcnt vmcnt(0)
    v_cmp_gt_u32 vcc, 4, v6
    s_cbranch_vccz L_chkd
    s_cmp_lt_u32 s37, 0x20000
    s_cbranch_scc1 L_poll
    s_branch L_chkd
    L_lateld:
    s_mov_b32 s{SO2+2}, s100
    s_mov_b32 s{SW2+2}, s101
    {p2_init()}
    s_mov_b32 s{sLATE}, 2
    s_mov_b32 s37, 0
    L_esp:
    s_sleep 4
    buffer_load_dword v{VCW}, v{VPE}, s[{SCN}:{SCN+3}], 0 offen sc1
    s_add_u32 s37, s37, 1
    s_waitcnt vmcnt(0)
    v_cmp_gt_u32 vcc, v{VTH}, v{VCW}
    s_cbranch_vccz L_espd
    s_cmp_lt_u32 s37, 0x20000
    s_cbranch_scc1 L_esp
    L_espd:
    {"buffer_inv sc1" if OPT.get('acq') else ""}""")
    for s_ in range(4): b.ext(p2_w(s_) + p2_o(s_) + p2_adv(s_))
    if OPT.get('stg'):
        b("s_waitcnt vmcnt(0)"); b.ext(p2_stage_init() + p2_stage(0) + p2_stage(1))
    b(f"""s_waitcnt vmcnt(0)
    s_cmp_eq_u32 s{sWAVE}, 3
    s_cbranch_scc1 L_p2s3
    s_branch L_p2s4
    L_redo:
    s_mov_b32 s{sSAFE}, 1
    s_waitcnt vmcnt(0)
    s_barrier""")
    warm_addr(b)
    prologue_a(b)
    b.ext(x_dma(0, 4)); b.ext(w_dma(0, 4))
    b("s_branch L_tramp")

def kernel1():
    b = B()
    b("attn_kernel:")
    b("s_cmp_lt_u32 s2, 256\ns_cbranch_scc1 L_work\ns_endpgm\nL_work:")
    if OPT['stamps']: b("s_mov_b32 s96, 0\nv_mov_b32 v14, 0\nv_mov_b32 v15, 0")
    stamp(b)
    if OPT.get('fixspan') and not OPT.get('fixat'): b("s_memrealtime s[72:73]\ns_waitcnt lgkmcnt(0)")
    b("s_load_dwordx16 s[48:63], s[0:1], 0\ns_load_dwordx4 s[64:67], s[0:1], 64\ns_load_dwordx2 s[100:101], s[0:1], 96\ns_load_dwordx4 s[76:79], s[0:1], 80")
    b(f"""s_mov_b32 s97, s2
    s_and_b32 s3, s2, 7
    s_lshr_b32 s2, s2, 3""")
    warm_code(b)
    b(f"""v_lshrrev_b32 v1, 6, v0
    s_bfe_u32 s68, s3, {0x10001 if OPT.get('map') else 0x10000}
    s_lshl_b32 s68, s68, 2
    s_and_b32 s69, s2, 3
    s_add_u32 s68, s68, s69        ; b
    v_readfirstlane_b32 s{sWAVE}, v1
    s_bfe_u32 s69, s3, {0x10000 if OPT.get('map') else 0x10001}
    s_lshl_b32 s69, s69, 3
    s_lshr_b32 s70, s2, 2
    s_add_u32 s69, s69, s70        ; hp
    s_lshr_b32 s3, s3, 2           ; blk
    s_lshl_b32 s{sWB}, s{sWAVE}, 12
    s_lshl_b32 s{sXB}, s{sWAVE}, 13
    s_mov_b32 s{sC}, {CSCALE}
    s_mov_b32 s{sC+1}, {CSCALE}
    s_mov_b32 s{sSAFE}, 0
    s_mov_b32 s{sFLAG}, 0""")
    prologue_a(b)
    b(f"""s_cmp_eq_u32 s3, 0
    s_waitcnt lgkmcnt(0)
    s_cselect_b64 s[48:49], s[48:49], s[58:59]
    s_cselect_b64 s[50:51], s[50:51], s[60:61]
    s_cselect_b64 s[52:53], s[52:53], s[62:63]
    s_cselect_b64 s[54:55], s[54:55], s[64:65]
    s_cselect_b64 s[56:57], s[56:57], s[66:67]""")
    if OPT.get('sstamps'): stamp(b)
    b(f"""s_mul_i32 s71, s68, 276480
    s_add_u32 s{SX}, s48, s71
    s_addc_u32 s{SX+1}, s49, 0
    s_mov_b32 s{SX+2}, 276480
    s_mov_b32 s{SX+3}, 0x20000
    s_lshl_b32 s71, s69, 9
    s_add_u32 s{SW}, s54, s71
    s_addc_u32 s{SW+1}, s55, 0
    s_sub_u32 s{SW+2}, 4718592, s71
    s_mov_b32 s{SW+3}, 0x20000""")
    b("L_srdok:")
    prologue_b(b)
    b(f"""s_cmp_eq_u32 s{sWAVE}, 3
    s_cbranch_scc1 L_begin3""")
    wave_code(b, 4, "4")
    b("L_tramp:\ns_branch L_late")
    b(".p2align 6")
    wave_code(b, 3, "3")
    b("L_phase2:")
    phase2(b)
    b("L_end1:\ns_endpgm\nL_codeend:")
    return b.L

def resolve_waits(L):
    out = []
    for i, x in enumerate(L):
        if x.startswith("WAITL"):
            tag = x.split()[1]
            n, T = tag[1:].split('.'); T = int(T)
            dst = set(range(AW + 8 * (T % 4), AW + 8 * (T % 4) + 8))
            cnt = 0; found = False
            for y in reversed(out):
                if y.startswith(("s_waitcnt", "WAITV")) and "lgkmcnt(0)" in y:
                    found = True; cnt = None; break
                if y.startswith("ds_"):
                    I = Ins(y)
                    if any(k == 'a' and r in dst for k, r in I.wr) or (T == 0 and 'need=X' in y):
                        found = True; break
                    cnt += 1
            assert found, x
            if cnt is not None:
                cnt = min(cnt, 15)
                out.append(f"s_waitcnt lgkmcnt({cnt})")
        else: out.append(x)
    return out

def expand_trace(L):
    def shift(line, name, it, step):
        if it == 0: return line
        def rep(m):
            k, n = m.group(1), int(m.group(2))
            if name == 'qp':
                if k == 'W': return f"W{n + step*it}"
                if k == 'X': return f"X{n + step*it//2}"
                return m.group(0)
            if k == 'KV': return f"KV{n + step*it}"
            return m.group(0)
        if ';' not in line: return line
        a, c = line.split(';', 1)
        return a + ';' + re.sub(r'\b(KV|W|X)(\d+)\b', rep, c)
    bodies = {}
    def go(i, stop):
        res = []
        while i < len(L):
            x = L[i]
            if x.startswith("LOOPBEGIN"):
                _, name, cnt, step = x.split(); cnt = int(cnt); step = int(step)
                body, j = go(i + 1, name)
                bodies[name] = (body, cnt, step)
                for it in range(cnt):
                    for y in body:
                        if y == f"LOOPEXIT {name}":
                            if it == cnt - 1: break
                            continue
                        res.append(shift(y, name, it, step))
                i = j + 1; continue
            if x.startswith("REPLAY"):
                _, name, off, cnt = x.split(); cnt = int(cnt); body, _, step = bodies[name]
                for it in range(cnt):
                    for y in body: res.append(shift(shift(y, name, it, step), name, 1, int(off)))
                i += 1; continue
            if x.startswith("LOOPEND") and x.split()[1] == stop: return res, i
            res.append(x); i += 1
        return res, i
    return go(0, None)[0]

STOPS = ("L_maxpass", "L_hspin", "L_espin")
def traces(L):
    tr = expand_trace(L)
    main = []
    for x in tr:
        if x.startswith(STOPS): break
        main.append(x)
    alt = None
    if "ALTFROM p" in main:
        i = tr.index("ALTBEGIN p"); j = tr.index("ALTEND p")
        alt = [x for x in main[:main.index("ALTFROM p")] if 'condp' not in x] + tr[i + 1:j]
    drop = lambda t: [x for x in t if not x.startswith("ALT")]
    return drop(main), drop([x for x in main if 'condp' not in x]), alt

def resolve_vm(L):
    idx = [f"{x} ;#{i}" if x.startswith("WAITV") else x for i, x in enumerate(L)]
    best = {}
    main, lean, alt = traces(idx)
    for which, tr in (("main", main), ("lean", lean), ("alt", alt or [])):
        q = []
        for x in tr:
            c = x.split(';', 1)[1] if ';' in x else ''
            if x.startswith(("buffer_", "global_")):
                if 'cond' in c and 'condp' not in c: continue
                m = re.search(r'tag=(\w+)', c); q.append(m.group(1) if m else 'other')
            elif x.startswith("WAITV"):
                tags = set(re.search(r'cover=([\w,]*)', c).group(1).split(','))
                if which == "lean" and any(t[:1] == 'P' or t == 'OS' for t in tags): continue
                i = int(x.rsplit('#', 1)[1])
                n = 0
                for t in reversed(q):
                    if t in tags: break
                    n += 1
                else: n = 63
                m = re.search(r'cap=(\d+)', c)
                best[i] = min(best.get(i, 63), n, int(m.group(1)) if m else 63)
    out = []
    for i, x in enumerate(L):
        if x.startswith("WAITV"):
            a, c = x.split(';', 1) if ';' in x else (x, '')
            out.append(f"s_waitcnt vmcnt({best[i]}) {a[5:].strip()} ;{c}")
        else: out.append(x)
    return out

def check_protocol(L, label):
    q = []; done = set(); issued = {}; pub = set(); errs = 0
    holder = {}; lastread = {}; lg0 = -1; bar = -1; dq = []; snap = -1; qsnap = None
    for pos, x in enumerate(L):
        cc = x.split(';', 1)[1] if ';' in x else ''
        if 'PUB' in cc: snap = lg0; qsnap = list(q)
        if x.startswith("ds_"): dq.append(pos)
        m = re.search(r'lgkmcnt\((\d+)\)', x) if x.startswith("s_waitcnt") else None
        if m:
            while len(dq) > int(m.group(1)): dq.pop(0)
            lg0 = dq[0] - 1 if dq else pos
        if x.startswith("s_barrier"): bar = lg0
        if 'SYNC' in cc:
            bar = max(bar, snap)
            for t in re.search(r'pub=([\w,]*)', cc).group(1).split(','):
                if qsnap is not None and t in qsnap: print(label, "ERR published before landed", t); errs += 1
        m = re.search(r'need=(\w+)', cc)
        if m and x.startswith("ds_read"):
            lastread[(m.group(1), ('K' if 'b128' in x else 'V') if m.group(1).startswith('KV') else '')] = pos
        m = re.search(r'tag=(\w+) reg=([\w,]+)', cc)
        if m:
            for r in m.group(2).split(','):
                old_ = holder.get(r)
                if old_ and old_ != m.group(1):
                    lr = lastread.get((old_, r[0] if old_.startswith('KV') else ''), -1)
                    private = old_[0] == 'X' and m.group(1)[0] == 'X'
                    if lr > (lg0 if private else bar): print(label, "ERR overwrite", r, old_, x); errs += 1
                holder[r] = m.group(1)
        c = x.split(';', 1)[1] if ';' in x else ''
        if x.startswith("buffer_") or x.startswith("global_"):
            if 'cond' in c and 'condp' not in c: continue
            m = re.search(r'tag=(\w+)', c); q.append(m.group(1) if m else 'other')
        elif x.startswith("s_waitcnt"):
            m = re.search(r'vmcnt\((\d+)\)', x)
            if m:
                n = int(m.group(1))
                while len(q) > n: done.add(q.pop(0))
            m = re.search(r'needtag=(\w+)', c)
            if m and m.group(1) in q: print(label, "ERR needtag", x); errs += 1
        elif x.startswith("s_barrier") or 'SYNC' in c:
            m = re.search(r'pub=([\w,]*)', c)
            if m:
                for t in m.group(1).split(','):
                    if not t: continue
                    if t in q or (t not in done and not (label[:2] == 'w4' and OPT.get('dw3') and t[:2] == 'KV')): print(label, "ERR publish not landed", t, x); errs += 1
                    pub.add(t)
        elif x.startswith("ds_read"):
            m = re.search(r'need=(\w+)', c)
            if m and m.group(1) not in pub and m.group(1) != 'WO': print(label, "ERR read unpublished", x); errs += 1
        assert len(q) <= 63, ("vmcnt overflow", x)
    return errs

def burn(L):
    out = []; on = False; c = 0; k = 0
    for x in L:
        if x == 'BURNON': on = True; c = 0; continue
        if x == 'BURNOFF': on = False; continue
        out.append(x)
        if on and OPT.get('burn'):
            if x.startswith('v_mfma'): c = 0
            elif x.startswith('v_'):
                c += 1
                if c >= OPT['burn']:
                    c = 0; k += 1
                    out.append(f"{MF} v[4:7], a[{32+4*(k%8)}:{35+4*(k%8)}], a[{96+4*(k%7)}:{99+4*(k%7)}], v[4:7]")
    return out

def check_lgkm(L, label):
    dq = []; vq = []; errs = 0; cache = {}
    for x in L:
        t = x.split(';')[0].strip()
        I = cache.get(t)
        if I is None: I = cache[t] = Ins(t)
        if I.kind == 'label': continue
        if I.op == 's_waitcnt':
            m = re.search(r'lgkmcnt\((\d+)\)', t)
            if m:
                while len(dq) > int(m.group(1)): dq.pop(0)
            m = re.search(r'vmcnt\((\d+)\)', t)
            if m:
                while len(vq) > int(m.group(1)): vq.pop(0)
            continue
        use = I.rd | I.srcc | I.wr
        for w in dq + vq:
            if w & use: print(label, "ERR uncovered", x); errs += 1; break
        if I.kind in ('dsr', 'dsw'): dq.append(I.wr)
        if I.kind in ('vload', 'vstore', 'dma') and not ('cond' in x and 'condp' not in x): vq.append(I.wr)
    return errs

def finish(L):
    L = burn(L)
    L = resolve_waits(L)
    return L

def strip_markers(L):
    return [x for x in L if not x.startswith(("LOOPBEGIN", "LOOPEND", "LOOPEXIT", "REPLAY", "ALT"))]

DESC = """.section .rodata,"a"
.p2align 6
.amdhsa_kernel {name}
  .amdhsa_next_free_vgpr {vgpr}
  .amdhsa_next_free_sgpr 102
  .amdhsa_accum_offset 256
  .amdhsa_group_segment_fixed_size 0
  .amdhsa_kernarg_size 104
  .amdhsa_user_sgpr_count 2
  .amdhsa_user_sgpr_kernarg_segment_ptr 1
  .amdhsa_system_sgpr_workgroup_id_x 1
  .amdhsa_float_denorm_mode_32 3
.end_amdhsa_kernel
"""

def build(**kw):
    OPT.update(kw)
    k1 = finish(kernel1())
    i4 = k1.index("L_begin4:"); i3 = k1.index("L_begin3:"); iv = k1.index("L_phase2:")
    ip = k1.index("L_srdok:"); pre = k1[ip:i4]
    k1 = k1[:i4] + resolve_vm(pre + k1[i4:i3])[len(pre):] + resolve_vm(pre + k1[i3:iv])[len(pre):] + k1[iv:]
    e = 0
    for lab, part in (("w4", pre + k1[i4:i3]), ("w3", pre + k1[i3:])):
        main, lean, alt = traces(part)
        e += check_protocol(main, lab) + check_lgkm(main, lab)
        if alt: e += check_protocol(alt, lab + "alt") + check_lgkm(alt, lab + "alt")
    assert e == 0 or OPT.get('nocheck')
    k1 = strip_markers(k1)
    k1, n1, p1 = fix_hazards(k1)
    for p in p1: print("BRANCH HAZARD", p)
    assert not p1
    hdr = open("ref.txt").read().split("; Override")[0]
    KN = NAME + "_kernel"
    k1 = [x.replace("attn_kernel", KN) for x in k1]
    out = hdr
    out += """; Written with my own schedule generator (no compiler output).  One launch, 256 workgroups (one per CU), 4 waves each:
;  1. q-projection of two heads (x and Wq staged by LDS-DMA, 16x16x32 bf16 MFMA), scale log2(e)/sqrt(128) applied in fp32;
;  2. attention for the two heads, K/V streamed through an 8-tile LDS ring (waves hand tiles over with counters in LDS).  The softmax offset is the row maximum over the first
;     the workgroup starts over and uses the true row maximum over all 1024 keys (L_maxpass*).
;     hand it to the output projection, which the same workgroups run as 96x96 tiles (even heads first, odd heads after their hand-off).
; Waves 0-2 own four 16-query tiles (labels *4), wave 3 owns three (labels *3).
"""
    out += ("; @launch kernel=%s grid=(256,1,1) block=(256,1,1) lds=163840\n" % KN) if OPT.get('list') else "; @launch grid=(256,1,1) block=(256,1,1) lds=163840\n"
    out += '.amdgcn_target "amdgcn-amd-amdhsa--gfx950"\n.text\n'
    out += ".globl %s\n.p2align 8\n.type %s,@function\n" % (KN, KN) + "\n".join(k1) + "\n"
    out += DESC.format(name=KN, vgpr=512)
    return out, n1

if __name__ == "__main__":
    kw = {}
    for a in sys.argv[2:]:
        k, v = a.split('='); kw[k] = int(v)
    s, info = build(**kw)
    open(sys.argv[1], "w").write(s)
    print("nops inserted", info, "bytes", len(s))
```

```python
import sys, re
from asmlib import fix_hazards, Ins

NAME = "concat_heads__mha_block_cached__mha_block_cached__near_ridge"
MF = "v_mfma_f32_16x16x32_bf16"
CSCALE = 0x3e0293ee
LTHR = 0x4e800000

O_BLK = 128 * 122880
WOT_OFF = 2 * O_BLK
WOT_BLK = 128 * 36864
CNT_OFF = WOT_OFF + 2 * WOT_BLK

class B:
    def __init__(self): self.L = []
    def __call__(self, s):
        for x in s.split("\n"):
            x = x.strip()
            if x: self.L.append(x)
    def ext(self, l): self.L.extend(l)

def vr(b, n): return f"v[{b}:{b+n-1}]"
def ar(b, n): return f"a[{b}:{b+n-1}]"

def emit_slots(b, slots, gaps):
    for i, s in enumerate(slots):
        if s: b(s)
        nv = [x for x in gaps[i] if not x.startswith('v_')]
        v = [x for x in gaps[i] if x.startswith('v_')]
        for x in nv + v: b(x)

S_ = 16; P_ = 48; CI = 64; LS = 80
KA = 84
VA = 88
VWA = 105
DK0 = 96; DK1 = 97; DV0 = 98; DV1 = 99
VO = 100
VWO = 101
VWX = 102
VLN = 103
VPF = 104
VPD = 105
T0 = 108
O_ = 128
XA = 16; WA = 28; DX = 20; DW = 24
WSLOT = [49152, 114688, 131072, 147456]; sKB = 69
def AQ(q): return 32 + 64 * (q // 2) + 16 * (q % 2)
def AQ2(q): return 128 + 16 * q
AK = 0; AV = 64; ASP = 64
AX = 0; AW = 64
SX = 4; SW = 8; SK = 12; SV = 16; SO = 20; SWO = 24; SWT = 28
sWAVE = 32; sWB = 33; sKV = 34; sCNT = 35; sHEAD = 36; sSAFE = 37; sFLAG = 38
sXO = 39; sXO2 = 40; sWOFF = 41; sXB = 42; sOO = 43; sC = 44
sT = 46
sH0 = 68; sWOS = 64; sWTS = 65; sSTAMP = 72; SPF = 76; sPF = 68; sWXS = 67; sROT = 80; sLIN = 81
SCN = 48; SDB = 52; SO2 = 56; sCO = 60; sCW = 61; SIN = 84; SIF = 88; sOUT = 76; VHS = 106; VCW = 107; VONE = 104
SW2 = 80; sO2 = 98; sW2 = 99; sOUTO = 66; sOP = 41; VPE = 11; VTH = 12; VP2 = 13; VWE = 10; AST = 192; sSIG = 78; sLATE = 79; sIDLE = 67; sSB = 69; VSB = 4; sRT = 68; sLN = 71; sPW = 40; sPZ = 64; sST = 65; VPA = 102; DEC = 131072 + 7168 + 64; sFV = 39; VFA = 1; VFB = 101; FQ = 80; FLAGS = 131072 + 7168 + 32

OPT = dict(nt_kv=1, nt_w=0, nt_x=0, nt_wo=0, stamps=0, warm=1, of=2, of0=2, e67=1, bal=0, pair=1, pre8=1, fsa=1, fss=1, fsp=7, fsr=35, dw3=1, wts=1, sw2=2)

K2F = ['', ' nt', ' sc1', ' sc0 sc1', ' sc0', ' sc1 nt', ' sc0 sc1 nt']
def fl(k): return ["", " nt", " sc1 nt", " sc0 sc1 nt", " sc0 nt"][OPT[k]]

def dma(voff, srd, soff, off, flag, tag):
    return f"buffer_load_dwordx4 v{voff}, s[{srd}:{srd+3}], {soff} offen offset:{off}{flag} lds ; tag={tag}"

def kv_adv():
    if not OPT.get('rot'): return [f"s_add_u32 s{sKV}, s{sKV}, 8192"]
    return [f"s_add_u32 s{sLIN}, s{sLIN}, 8192", f"s_add_u32 s{sKV}, s{sLIN}, s{sROT}",
            f"s_and_b32 s{sKV}, s{sKV}, 0x3ffff", f"s_and_b32 s{sT+1}, s{sLIN}, 0xfffc0000", f"s_or_b32 s{sKV}, s{sKV}, s{sT+1}"]

def adv2(tmp):
    if not OPT.get('rot'): return [f"s_add_u32 s{sKV}, s{sKV}, 16384"]
    return [f"s_add_u32 s{sLN}, s{sLN}, 16384", f"s_add_u32 s{sKV}, s{sLN}, s{sRT}", f"s_and_b32 s{sKV}, s{sKV}, 0x3ffff",
            f"s_and_b32 s{tmp}, s{sLN}, 0x40000", f"s_or_b32 s{sKV}, s{sKV}, s{tmp}"]

def k_dma(tile, so=None):
    so = so or f"s{sKV}"
    return [f"s_add_u32 m0, s{sKB}, {(tile % 8) * 8192}",
            dma(DK0, SK, so, 0, fl('nt_kv'), f"KV{tile} reg=K{tile%8}"), dma(DK1, SK, so, 1024, fl('nt_kv'), f"KV{tile} reg=K{tile%8}")]
def v_dma(tile, so=None):
    so = so or f"s{sKV}"
    return [f"s_add_u32 m0, s{sKB}, {65536 + (tile % 8) * 8192}",
            dma(DV0, SV, so, 0, fl('nt_kv'), f"KV{tile} reg=V{tile%8}"), dma(DV1, SV, so, 1024, fl('nt_kv'), f"KV{tile} reg=V{tile%8}")]

DK2 = 232; DK3 = 233; DKA = 234; DKB = 235; DVA = 236; DVB = 237
def pair_dma3(isv, t0, tmp):
    out = []
    for t in (t0, t0 + 1):
        for h in range(2):
            out.append(f"s_mov_b32 m0, {(65536 if isv else 0) + (t % 8) * 8192 + 4096 * h}")
            if (t, h) != (t0, 0): out.append(f"s_add_u32 s{tmp}, s{sKV}, {(t - t0) * 8192 + 4096 * h}")
            so = f"s{sKV}" if (t, h) == (t0, 0) else f"s{tmp}"
            regs = (DVA, DVB, DVA, DVB) if isv else (DKA, DKB, DK2, DK3)
            for j in range(4):
                out.append(dma(regs[j], SV if isv else SK, so, 1024 * j, fl('nt_kv'), f"KV{t} reg={'V' if isv else 'K'}{t % 8}"))
    return out

def x_dma(m, nq):
    slot = 16384 if m % 2 else 81920
    out = []
    out.append(f"s_add_u32 m0, s{sXB}, {slot}")
    for j in range(4): out.append(dma(DX + j, SX, f"s{sXO}", 1024 * j, fl('nt_x'), f"X{m} reg=" + ("K2,K3,K4,K5" if m % 2 else "V2,V3,V4,V5")))
    out.append(f"s_add_u32 m0, s{sXB}, {slot + 4096}")
    for j in range(4 if nq == 4 else 2): out.append(dma(DX + j, SX, f"s{sXO2}", 1024 * j, fl('nt_x'), f"X{m} reg=" + ("K2,K3,K4,K5" if m % 2 else "V2,V3,V4,V5")))
    out.append(f"s_add_u32 s{sXO}, s{sXO}, 128")
    if OPT.get('qrot'):
        out += [f"s_cmp_eq_u32 s{sXO}, 1152", f"s_cselect_b32 s{sXO}, 0, s{sXO}", f"s_add_u32 s{sXO2}, s{sXO}, 36864"]
    else: out.append(f"s_add_u32 s{sXO2}, s{sXO2}, 128")
    return out

def w_dma(n, nq):
    out = [f"s_add_u32 m0, s{sWB}, {WSLOT[n % 4]}"]
    for j in range(4): out.append(dma(DW + j, SW, f"s{sWOFF}", 1024 * j, fl('nt_w'), f"W{n} reg=" + ("K6,K7", "V6,V7", "S2", "S3")[n % 4]))
    if n % 2 == 0: out.append(f"s_add_u32 s{sWOFF}, s{sWOFF}, 256")
    else:
        out.append(f"s_add_u32 s{sWOFF}, s{sWOFF}, {524288 - 256}")
        if OPT.get('qrot'): out += [f"s_cmp_eq_u32 s{sWOFF}, {9*524288}", f"s_cselect_b32 s{sWOFF}, 0, s{sWOFF}"]
    return out

def w_reads(n, T):
    sp_, a = T // 2, T % 2
    hl, sp = sp_ // 2, sp_ % 2
    out = []
    for s in range(2):
        for a2 in range(2):
            d = AW + 8 * (T % 4) + 4 * s + 2 * a2
            off = max(n % 4 - 1, 0) * 16384 + hl * 8192 + (32 * s + 4 * a2) * 128 + (0 if OPT.get('wnc') else 8 * a)
            out.append(f"ds_read_b64_tr_b16 {ar(d,2)}, v{WA + sp + (2 if n % 4 else 0)} offset:{off} ; need=W{n}")
    return out

def x_reads(m, nq):
    out = []
    for q in range(nq):
        for s in range(2):
            d = AX + 32 * (m % 2) + 8 * q + 4 * s
            out.append(f"ds_read_b128 {ar(d,4)}, v{XA + s + (0 if m % 2 else 2)} offset:{q * 2048} ; need=X{m}")
    return out

def qacc(hd, q, T):
    r = 128 + 32 * q + 4 * T
    return vr(r, 4) if hd == 0 else ar(r, 4)

def pf_load():
    return f"buffer_load_dword v{VPD}, v{VPF}, s[{SPF}:{SPF+3}], s{sPF} offen nt ; tag=PF"

def wo_dma():
    out = []
    for r in range(2):
        out.append(f"s_add_u32 m0, s{sWOS}, {4096*r}")
        for j in range(4):
            out += [f"PRE s_mov_b32 s{sT}, {8192*j + 512*r}", dma(VWO, SWO, f"s{sT}", 1024 * j, fl('nt_wo'), "WO")]
    out += [f"s_mov_b32 m0, s{sWTS}", dma(VWX, SWO, "0", 0, fl('nt_wo'), "WO")]
    return out
WOF = 32
def wo_reads():
    out = [f"ds_read_b64_tr_b16 {vr(WOF+16*r+4*tl+2*a,2)}, v{VWA} offset:{4096*r + 2048*a + 32*tl} ; need=WO" for r in range(2) for tl in range(4) for a in range(2)]
    return out + [f"ds_read_b64_tr_b16 {vr(WOF+32+2*a,2)}, v{VWE} offset:{512*a}" for a in range(2)]
def wo_stores():
    out = []
    for r in range(2):
        out.append(f"PRE s_add_u32 s{sT}, s{sWB}, {16384*r}")
        out += [f"buffer_store_dwordx4 {vr(WOF+16*r+4*tl,4)}, v{VLN}, s[{SWT}:{SWT+3}], s{sT} offen offset:{1024*tl} sc1 ; tag=WT" for tl in range(4)]
    out += [f"PRE s_lshl_b32 s{sT}, s{sWAVE}, 10", f"PRE s_add_u32 s{sT}, s{sT}, 32768",
            f"buffer_store_dwordx4 {vr(WOF+32,4)}, v{VLN}, s[{SWT}:{SWT+3}], s{sT} offen sc1 ; tag=WT"]
    return out

QSPINS = []; QF = 68; QFA = 72; QFB = 73; sFQ = 35; QFLAGS = 112640
def qproj_stage(b, n, nq, fill=None):
    hd, m = n % 2, n // 2
    nx = 8 if nq == 4 else 6
    slots = []; gaps = [[] for _ in range(64)]
    for T in range(8):
        for q in range(4):
            for s in range(2):
                if q >= nq: slots.append(None); continue
                acc = qacc(hd, q, T)
                c = "0" if (m == 0 and s == 0) else acc
                slots.append(f"{MF} {acc}, {ar(AW+8*(T%4)+4*s,4)}, {ar(AX+32*(m%2)+8*q+4*s,4)}, {c}")
    start = {3: 5, 4: 12, 5: 19, 6: 26, 7: 33}
    rd = w_reads(n, 2); gaps[0].append(rd[3])
    for T, g in start.items():
        for i, x in enumerate(w_reads(n, T)): gaps[g + i].append(x)
    FSQ = OPT.get('fsq') and n < 15
    if n < 17:
        for T, g in (((0, 53), (1, 57)) if FSQ else ((0, 45), (1, 53))):
            for i, x in enumerate(w_reads(n + 1, T)): gaps[g + i].append(x)
        for i, x in enumerate(w_reads(n + 1, 2)[:3]): gaps[61 + i].append(x)
    xr = []
    if n % 2 == 1 and m + 1 <= 8:
        xr = x_reads(m + 1, nq)
        for x, g in zip(xr, (9, 10, 16, 17, 23, 24, 30, 31) if not (n == 1 and OPT.get('x1late')) else (49, 50, 51, 52, 57, 58, 59, 60)): gaps[g].append(x)
    for T in range(1, 8): gaps[8 * T - 1].append(f"WAITL W{n}.{T}")
    if n < 17: gaps[63].append(f"WAITL W{n+1}.0")
    req = []
    if n + 1 <= 17: req.append(f"W{n+1}")
    if n % 2 == 0 and m + 1 <= 8 and not (n == 0 and OPT.get('x1late')): req.append(f"X{m+1}")
    if n == 1 and OPT.get('x1late'): req.append("X1")
    if n == 17: req += ["KV0", "KV1"]
    cov = list(req)
    if nq == 3 and n == 2:
        cov.append("INIT")
        gaps[55].append(f"buffer_store_dword v{VONE}, v{VLN}, s[{SIF}:{SIF+3}], 0 offen sc1 ; tag=FLAG")
    if nq == 3 and n == 12:
        gaps[45].append(f"buffer_load_dword v{VHS}, off, s[{SDB}:{SDB+3}], 0 ; tag=HS")
    if n == 17 and OPT.get('fsa'):
        gaps[36] += [f"s_mov_b32 s{sFV}, 0", f"v_mov_b32 v{VFB}, {FLAGS}", f"v_mov_b32 v{FQ}, 0"]
        gaps[37] += [f"v_lshl_add_u32 v{VFA}, s{sWAVE}, 2, v{VFB}"]
        gaps[39] += [f"ds_write_b32 v{VFA}, v{FQ}"]
    if FSQ:
        uid = f"q{n}_{nq}"
        gaps[42] += [f"s_add_u32 s{sFQ}, s{sFQ}, 1", f"v_mov_b32 v{QF}, s{sFQ}"]
        gaps[43] += ["WAITV lgkmcnt(0) ; cover=" + ",".join(cov), f"ds_write_b32 v{QFA}, v{QF}"]
        gaps[47].append(f"ds_read_b128 {vr(QF,4)}, v{QFB}")
        gaps[50] += ["s_waitcnt lgkmcnt(0)", f"v_min3_u32 v{QF}, v{QF}, v{QF+1}, v{QF+2}"]
        gaps[51].append(f"v_min_u32 v{QF}, v{QF}, v{QF+3}")
        gaps[52].append(f"v_cmp_gt_u32 vcc, s{sFQ}, v{QF}\ns_cbranch_vccnz L_fs{uid}\nL_fr{uid}: ; SYNC pub=" + ",".join(req))
        QSPINS.append(uid)
    else:
        gaps[43].append("WAITV lgkmcnt(0) ; cover=" + ",".join(cov))
        gaps[44].append("s_barrier ; pub=" + ",".join(req))
    def place(seq, first, step):
        g = first
        for x in seq:
            if x.startswith("buffer_"): gaps[g].append(x); g += step
            elif x.startswith(("s_add_u32 m0", "s_mov_b32 m0")): gaps[g - 1].append(x)
            elif x.startswith("PRE "): gaps[g - 1].append(x[4:])
            else: gaps[min(g - step + 1, 63)].append(x)
    if n == 0 and OPT.get('x2late'): place(w_dma(2, nq) + w_dma(3, nq), 2, 5)
    elif n == 1 and OPT.get('x2late'): place(x_dma(2, nq), 2, 4)
    elif n == 0: place(w_dma(2, nq) + w_dma(3, nq) + x_dma(2, nq), 1, 2)
    elif n % 2 == 0 and m + 2 <= 8: place(x_dma(m + 2, nq), 2, 5)
    def single(kind, i_):
        if kind == 'wo':
            if i_ == 8: return [f"s_mov_b32 m0, s{sWTS}", None, dma(VWX, SWO, "0", 0, fl('nt_wo'), "WO")]
            r, j_ = i_ // 4, i_ % 4
            return [f"s_add_u32 m0, s{sWOS}, {4096*r}", f"s_mov_b32 s{sT}, {8192*j_ + 512*r}", dma(VWO, SWO, f"s{sT}", 1024 * j_, fl('nt_wo'), "WO reg=K0,K1,V0,V1")]
        t, j_ = i_ // 4, i_ % 4
        d_ = (k_dma if j_ < 2 else v_dma)(t, f"s{sT}")
        return [d_[0], f"s_add_u32 s{sT}, s{sRT}, {8192*t}" if OPT.get('rot') else f"s_mov_b32 s{sT}, {8192*t}", d_[1 + j_ % 2]]
    if OPT.get('slowpos', 0):
        R0 = 9
        sched_ = {2: [('wo', 0), ('wo', 1), ('wo', 2)], 4: [('wo', 3), ('wo', 4), ('wo', 5)], 6: [('wo', 6), ('wo', 7), ('wo', 8)],
                  10: [('kv', i_) for i_ in range(4)], 12: [('kv', i_) for i_ in range(4, 8)]}
        for (kind, i_) in sched_.get(n, []):
            gaps[63] += [x for x in single(kind, i_) if x]
    else:
        W0 = 1; R0 = W0 + 7
        sched_ = {W0 + i_ // 2: [] for i_ in range(9)}
        for i_ in range(8 if OPT.get('fsq') else 9): sched_[W0 + i_ // 2].append(('wo', i_))
        if not OPT.get('late'):
            for i_ in range(8): sched_.setdefault(R0 + 2 + i_ // 2, []).append(('kv', i_))
        for (kind, i_), g in zip(sched_.get(n, []), (39, 42) if (n % 2 == 0 or OPT.get('stpos', 0) or (n == 1 and OPT.get('x2late'))) else (12, 32)):
            m0_, so_, ld_ = single(kind, i_)
            gaps[g - 1].append(m0_)
            if so_: gaps[g - 1].append(so_)
            gaps[g].append(ld_)
    if n in (OPT.get("rew", 13), OPT.get("rew2", 99)): gaps[41].append("global_load_dword v1, v[76:77], off")
    NP = OPT.get('l2p', 0)
    if NP and 14 - NP <= n < 14:
        i_ = n - (14 - NP)
        gaps[26].append(f"s_mov_b32 s{sT+1}, {(8 + OPT.get('l2s', 1) * (i_ // 2)) * 8192}")
        gaps[27].append(f"buffer_load_dword v{68 + i_ % 5}, v74, s[{(SK, SV)[i_ % 2]}:{(SK, SV)[i_ % 2]+3}], s{sT+1} offen")
    if n == 13: gaps[62] += [f"s_add_u32 s{sKV}, s{sRT}, 16384", f"s_mov_b32 s{sLN}, 49152"] if OPT.get('rot') else [f"s_mov_b32 s{sKV}, 16384"]
    if n in (R0, R0 + 1):
        rd = wo_reads()
        if OPT.get('fsq'): rd = rd[:16]
        if n == R0:
            gaps[44].append("WAITV ; cover=WO")
            for x, g in zip(rd[:8], [44, 45, 46, 48, 49, 51, 52, 52] if FSQ else [49, 50, 51, 52, 57, 58, 59, 60]): gaps[g].append(x)
        else:
            for x, g in zip(rd[8:], [1, 2, 3, 4, 11, 18, 25, 37, 38, 39]): gaps[g].append(x)
    for i_ in range(0 if OPT.get('wts') else 9):
        if OPT.get('slowpos', 0):
            if n != (10, 10, 12, 12, 14, 14, 14, 16, 16)[i_]: continue
            t_ = [f"s_add_u32 s{sT+1}, s{sWB}, {16384*(i_//4)}"] if i_ < 8 else [f"s_lshl_b32 s{sT+1}, s{sWAVE}, 10", f"s_add_u32 s{sT+1}, s{sT+1}, 32768"]
            gaps[62] += t_ + [f"buffer_store_dwordx4 {vr(WOF+4*i_,4)}, v{VLN}, s[{SWT}:{SWT+3}], s{sT+1} offen offset:{1024*(i_%4) if i_ < 8 else 0} sc1 ; tag=WT"]
            continue
        r, tl = i_ // 4, i_ % 4
        if OPT.get('stpos', 0):
            if n != (9, 9, 11, 11, 13, 13, 15, 15, 15)[i_]: continue
            g = (8, 10, 2, 4, 2, 4, 2, 4, 7)[i_]
        else:
            if n != min(R0 + 1 + i_, 17 - (1 if i_ < 8 else 0)) : continue
            g = 62 if not any('tag=WT' in x for x in gaps[62]) else 48
        if i_ < 8: gaps[g - 1].append(f"s_add_u32 s{sT+1}, s{sWB}, {16384*r}")
        else: gaps[g - 2].append(f"s_lshl_b32 s{sT+1}, s{sWAVE}, 10"); gaps[g - 1].append(f"s_add_u32 s{sT+1}, s{sT+1}, 32768")
        gaps[g].append(f"buffer_store_dwordx4 {vr(WOF+4*i_,4)}, v{VLN}, s[{SWT}:{SWT+3}], s{sT+1} offen offset:{1024*tl if i_ < 8 else 0}{K2F[OPT.get('wtf', 2)]} ; tag=WT")
    if n == 14 and OPT.get('late'):
        place([f"PRE s_mov_b32 s{sT}, 0"] + k_dma(0, f"s{sT}") + v_dma(0, f"s{sT}") + [f"PRE s_mov_b32 s{sT}, 8192"] + k_dma(1, f"s{sT}") + v_dma(1, f"s{sT}"), 2, 5)
    if n in ((15, 16) if OPT.get('late') else (14, 16)):
        seq = []
        for t in range(2, 6):
            seq += [f"PRE s_add_u32 s{sT}, s{sKV}, {(t - 2) * 8192}"] + (k_dma if n < 16 else v_dma)(t, f"s{sT}")
        if n == 16: seq.append(f"s_add_u32 s{sKV}, s{sKV}, 32768")
        place(seq, 2, 5)
    if n == 17 and OPT.get('e67'):
        place(k_dma(6) + [f"PRE s_add_u32 s{sT}, s{sKV}, 8192"] + k_dma(7, f"s{sT}"), 4, 9)
        place(v_dma(6) + v_dma(7, f"s{sT}") + adv2(sT + 1), 47, 4)
    if OPT.get('awake') and n % 2 == 1 and 3 <= n <= 11:
        seq = []
        for t in range(OPT['awake']):
            seq += [f"PRE s_add_u32 s{sPF}, s{sPF}, 8192"] + k_dma(t % 2, f"s{sPF}") + v_dma(t % 2, f"s{sPF}")
        seq = [x.replace('tag=KV0', 'tag=DUM').replace('tag=KV1', 'tag=DUM') for x in seq]
        place(seq, 2, 40 // (4 * OPT['awake']))
    if OPT.get('awake') and n == 13:
        place([f"PRE s_mov_b32 s{sPF}, 0"] + k_dma(0, f"s{sPF}") + v_dma(0, f"s{sPF}") + [f"PRE s_mov_b32 s{sPF}, 8192"] + k_dma(1, f"s{sPF}") + v_dma(1, f"s{sPF}"), 2, 5)
    if n + 4 <= 17: place(w_dma(n + 4, nq), *((54, 3) if FSQ else (46, 5)))
    for i_ in range(OPT.get('qslow', 0)): gaps[2 + 2 * i_].append('v_nop\nv_nop\nv_nop\nv_nop\nv_nop\nv_nop')
    if fill is not None:
        for g in range(20 if n == 16 else 0, 64):
            if slots[g] is None: continue
            for _ in range(2):
                if fill: gaps[g].append(fill.pop(0))
    emit_slots(b, slots, gaps)
    if OPT.get('qstamps'): stamp(b)

def k_reads(unit, tile):
    out = []
    for kt in range(2):
        for s in range(4):
            f = 4 * kt + s
            out.append(f"ds_read_b128 {ar(AK+4*f,4)}, v{KA + s} offset:{unit * 8192 + kt * 4096} ; need=KV{tile}")
    return out

def v_reads(unit, tile):
    out = []
    for T in range(8):
        th, tl = T // 4, T % 4
        for a in range(2):
            out.append(f"ds_read_b64_tr_b16 {ar(AV+4*T+2*a,2)}, v{VA + T} offset:{unit * 8192 + a * 4096} ; need=KV{tile}")
    return out

import sched, sched2
LM = 1
for a_ in sys.argv[2:]:
    if a_.startswith('lm='): LM = int(a_[3:])
if LM:
    NS = 68
    V_GAPS = list(range(26, 42)); K_GAPS = list(range(50, 58)); D_GAPS = [3, 11, 17, 23]
    SM = sched2.schedule(V_GAPS + K_GAPS, D_GAPS)
    for a_ in sys.argv[2:]:
        if a_.startswith('dg='): D_GAPS = {1: [3, 7, 33, 38], 2: [4, 8, 34, 40], 3: [3, 8, 36, 56]}[int(a_[3:])]
else:
    NS = 64
    V_GAPS = list(range(25, 41)); K_GAPS = list(range(48, 56)); D_GAPS = [1, 9, 17, 23]
    SM = sched.schedule(4, V_GAPS + K_GAPS, D_GAPS)
BG = K_GAPS[0] - 1
LA = 108; ONES = 124
def sm_text(kind, q, e):
    s = S_ + 8 * q + e
    if kind == 'exp': return f"v_exp_f32 v{s}, v{s}"
    if kind == 'add': return f"v_add_f32 v{LS+q}, v{LS+q}, v{s}"
    return f"v_cvt_pk_bf16_f32 v{P_+4*q+e//2}, v{s-1}, v{s}"
def sm_items(nq, lo, hi):
    it = [(g, k[0] == 'exp', k) for k, g in SM.items() if k[1] < nq and lo <= g < hi]
    it.sort(key=lambda t: (t[0] % NS, t[1], -t[0]))
    return [(g, k) for g, _, k in it]

def qk(q, kt, s, czero=False):
    d = vr(S_ + 8 * q + 4 * kt, 4)
    c = d if s else ("0" if czero else vr(CI + 4 * q, 4))
    return f"{MF} {d}, {ar(AK+4*(4*kt+s),4)}, {ar(AQ(q)+4*s,4)}, {c}"

def pv(q, T, czero=False):
    d = vr(O_ + 32 * q + 4 * T, 4)
    return f"{MF} {d}, {ar(AV+4*T,4)}, {vr(P_+4*q,4)}, {'0' if czero else d}"

def lsm(q, czero=False):
    d = vr(LA + 4 * q, 4)
    return f"{MF} {d}, {vr(ONES,4)}, {vr(P_+4*q,4)}, {'0' if czero else d}"

SPINS = []
def attn_stage(b, k, nq, extra=None, fill=None, resume=False):
    kk = k % 32; u = k % 8
    if resume: kk = 0
    slots = []; gaps = [[] for _ in range(NS)]
    for q in (0, 1):
        for kt in range(2):
            for s in range(4): slots.append(qk(q, kt, s))
    for q in (2, 3):
        for T in range(8): slots.append(pv(q, T, kk == 1) if (q < nq and kk > 0) else None)
        if LM: slots.append(lsm(q, kk == 1) if (q < nq and kk > 0) else None)
    for q in (2, 3):
        for kt in range(2):
            for s in range(4): slots.append(qk(q, kt, s) if q < nq else None)
    for q in (0, 1):
        for T in range(8): slots.append(pv(q, T, kk == 0 and not resume))
        if LM: slots.append(lsm(q, kk == 0 and not resume))
    for g, key in sm_items(nq, 0, 2 * NS if kk > 0 else NS): gaps[g % NS].append(sm_text(*key))
    for g, x in zip(V_GAPS, v_reads(u, k)): gaps[g].append(x)
    DIST = 7 if OPT.get('d7') else OPT.get('dist', 5 if OPT.get('fsa') else 6)
    if DIST == 7 and k < 63:
        gaps[BG - 1].append(f"WAITV lgkmcnt(0) ; cover=KV{k+1}" + (",WT" if kk == 11 else ""))
        gaps[BG].append(f"s_barrier ; pub=KV{k+1}")
    elif k % 2 == 1 and k < 63 and OPT.get('fsa'):
        uid = f"{k}_{nq}"
        pg = OPT.get('fsp', 30); rg = OPT.get('fsr', 36)
        gaps[pg - 2].append(f"s_add_u32 s{sFV}, s{sFV}, 1")
        gaps[pg - 1].append(f"v_mov_b32 v{FQ}, s{sFV}") if pg - 1 >= 30 or pg < 26 else gaps[pg].append(f"v_mov_b32 v{FQ}, s{sFV}")
        gaps[pg + 1].insert(0, f"WAITV ; cover=KV{k+1},KV{k+2}" + (",WT" if kk == 11 else ""))
        gaps[pg + 1].append(f"ds_write_b32 v{VFA}, v{FQ} ; PUB")
        gaps[rg].append(f"ds_read_b128 {vr(FQ,4)}, v{VFB}")
        gaps[rg + 3].insert(0, "s_waitcnt lgkmcnt(2)")
        gaps[rg + 3].append(f"v_min3_u32 v{FQ}, v{FQ}, v{FQ+1}, v{FQ+2}")
        gaps[rg + 4].append(f"v_min_u32 v{FQ}, v{FQ}, v{FQ+3}")
        gaps[rg + 5].append(f"v_cmp_gt_u32 vcc, s{sFV}, v{FQ}")
        gaps[rg + 6].insert(0, f"s_cbranch_vccnz L_fs{uid}\nL_fr{uid}: ; SYNC pub=KV{k+1},KV{k+2}")
        gaps[BG].append("s_waitcnt lgkmcnt(0)")
        SPINS.append(uid)
    elif k % 2 == 1 and k < 63:
        gaps[BG - 1].append(f"WAITV lgkmcnt(0) ; cover=KV{k+1},KV{k+2}" + (",WT" if k == (39 if OPT.get('pz') else 11) else ""))
        gaps[BG].append(f"s_barrier ; pub=KV{k+1},KV{k+2}")
    else:
        gaps[BG].append("s_waitcnt lgkmcnt(0)")
    if k < 63:
        for g, x in zip(K_GAPS, k_reads((u + 1) % 8, k + 1)): gaps[g].append(x)
        gaps[NS - 1].append("s_waitcnt lgkmcnt(0)")
    FP = (OPT.get('fsa') or OPT.get('fp')) and OPT.get('pair')
    t0 = (k + 4 + k % 2) if FP else (k + DIST - (k % 2) if OPT.get('pair') else k + DIST)
    if t0 < 64 and not (OPT.get('e67') and t0 < 8) and not (OPT.get('sw2') and not OPT.get('noearly') and k in (32, 33)):
        if OPT.get('dw3'):
            isv = k % 2 == 0
            if nq == 3:
                live = [g for g in range(NS) if slots[g] or kk == 0]
                gs = iter([g for g in live if g >= 2][::3]); g = 0; pend = []
                for x in pair_dma3(isv, t0, 92):
                    if x.startswith("buffer_"):
                        g = next(gs)
                        gaps[g - 1 if g - 1 in live else g] += pend; pend = []
                        gaps[g].append(x)
                    else: pend.append(x)
                if isv:
                    gaps[min(g + 1, NS - 5)].append(f"s_add_u32 s{sKV}, s{sKV}, 16384")
                    gaps[0].append(f"s_waitcnt vmcnt({36 if 32 <= k < 40 else 44})")
        else:
            if OPT.get('pair'):
                isv = (k % 2 == 0) if FP else (k % 2 == 1)
                fn = v_dma if isv else k_dma
                kd, vd = fn(t0), fn(t0 + 1, f"s{sT}")
                gaps[D_GAPS[2] - 2].append(f"s_add_u32 s{sT}, s{sKV}, 8192")
                if isv:
                    for i_, x in enumerate(adv2(sT)): gaps[44 + i_].append(x)
            else:
                kd, vd = k_dma(k + DIST), v_dma(k + DIST)
                gaps[44] += kv_adv()
            gaps[D_GAPS[0] - 1].append(kd[0]); gaps[D_GAPS[2] - 1].append(vd[0])
            for x, g in zip(kd[1:] + vd[1:], D_GAPS): gaps[g].append(x)
    for i_ in range(OPT.get('slow', 0)): gaps[2 + 2 * i_].append('v_nop\nv_nop\nv_nop\nv_nop')
    if extra:
        for g, x in extra: gaps[g].append(x)
    if fill:
        cost = lambda x: 2 if x.startswith('v_exp') else (1 if x.startswith(('v_', 'ds_', 'buffer_')) else 0)
        room = [max(0, 2 - sum(cost(x) for x in gaps[g])) if slots[g] else 0 for g in range(NS)]
        left = len(fill) - sum(room)
        live = [g for g in range(NS) if slots[g]]
        for i_ in range(max(left, 0)): room[live[(i_ * len(live)) // left]] += 1
        for g in range(NS):
            for _ in range(room[g]):
                if fill: gaps[g].append(fill.pop(0))
        assert not fill
    for key, pre in (('nobar', ('s_barrier',)), ('nodma', ('buffer_load_dwordx4 v9',)), ('nolds', ('ds_read',)), ('noexp', ('v_exp',))):
        if OPT.get(key) and 8 <= k < 16: gaps = [[x if not x.startswith(pre) else 's_nop 0 ;' + x.split(';', 1)[-1] for x in g] for g in gaps]
    if OPT.get('astamps') and k % 2 == 0: stamp(b)
    if OPT.get('dmaonly'):
        slots = [None] * NS
        gaps = [[x for x in g if not x.startswith(('v_', 'ds_'))] for g in gaps]
    emit_slots(b, slots, gaps)

def xlane_reduce(b, reg, tmp, op):
    b(f"v_mov_b32 v{tmp}, v{reg}")
    b(f"v_permlane32_swap_b32 v{reg}, v{tmp}")
    b(f"{op} v{reg}, v{reg}, v{tmp}")
    b(f"v_mov_b32 v{tmp}, v{reg}")
    b(f"v_permlane16_swap_b32 v{reg}, v{tmp}")
    b(f"{op} v{reg}, v{reg}, v{tmp}")

def xlane_reduce_multi(b, regs, tmps, op):
    for sw in ("v_permlane32_swap_b32", "v_permlane16_swap_b32"):
        for r, t in zip(regs, tmps): b(f"v_mov_b32 v{t}, v{r}")
        for r, t in zip(regs, tmps): b(f"{sw} v{r}, v{t}")
        for r, t in zip(regs, tmps): b(f"{op} v{r}, v{r}, v{t}")

def stamp(b, idx=None):
    if OPT.get('fixat') and idx == OPT['fixat']: b("s_memrealtime s[72:73]\ns_waitcnt lgkmcnt(0)")
    if not OPT['stamps']: return
    b(f"s_memtime s[{sSTAMP}:{sSTAMP+1}]\ns_memrealtime s[{sSTAMP+2}:{sSTAMP+3}]\ns_waitcnt lgkmcnt(0)")
    b(f"s_mov_b32 s93, m0\ns_mov_b32 m0, s96\nv_writelane_b32 v14, s{sSTAMP}, m0\nv_writelane_b32 v15, s{sSTAMP+2}, m0\ns_mov_b32 m0, s93\ns_add_u32 s96, s96, 1")

def stamp_dump(b, k, wave):
    if not OPT['stamps']: return
    b("s_waitcnt vmcnt(0)")
    stamp(b)
    if OPT['stamps'] == 2:
        b("s_load_dwordx2 s[92:93], s[0:1], 88\ns_waitcnt lgkmcnt(0)")
        b(f"s_cmp_lg_u32 s{wave}, 0\ns_cbranch_scc1 L_end{k+1}\ns_lshr_b32 s94, s97, 3\ns_cmp_lg_u32 s94, 5\ns_cbranch_scc1 L_end{k+1}")
        b(f"s_add_u32 s88, s92, {OPT.get('dbgoff',0)*(1-k)}\ns_addc_u32 s89, s93, 0\ns_mov_b32 s90, 256\ns_mov_b32 s91, 0x20000")
        sel = [0, 2, 3, 5, 6, 7, 8, 9, 10, 11, 12]
        b("s_mov_b64 exec, 1")
        for i, ix in enumerate(sel):
            b(f"v_readlane_b32 s94, v15, {ix}\ns_nop 3")
            if i == 0 and k == 0: b("s_not_b32 s94, s94")
            b(f"v_mov_b32 v1, s94\nv_mov_b32 v2, {4*(i + 1)}\nbuffer_atomic_umax v1, v2, s[88:91], 0 offen")
        return
    b("s_getreg_b32 s94, hwreg(HW_REG_XCC_ID)\nv_writelane_b32 v14, s94, 63\nv_writelane_b32 v14, s65, 62\nv_writelane_b32 v14, s64, 61")
    b("s_load_dwordx2 s[92:93], s[0:1], 96\ns_waitcnt lgkmcnt(0)")
    b(f"s_add_u32 s88, s92, {(48+k)*1024*1024}\ns_addc_u32 s89, s93, 0\ns_mov_b32 s90, 0x100000\ns_mov_b32 s91, 0x20000")
    b(f"s_lshl_b32 s94, s97, 2\ns_add_u32 s94, s94, s{wave}\ns_lshl_b32 s94, s94, 9")
    b("v_and_b32 v1, 63, v0\nv_lshlrev_b32 v1, 3, v1")
    b("buffer_store_dwordx2 v[14:15], v1, s[88:91], s94 offen")

def persist_regs(b):
    lane = T0; t1 = T0 + 1; t2 = T0 + 2; t3 = T0 + 3; g_ = T0 + 4; ihi = T0 + 5; i8 = T0 + 6; i16 = T0 + 7; r_ = T0 + 8; c4 = T0 + 9
    b(f"""v_and_b32 v{lane}, 63, v0
    v_lshrrev_b32 v{g_}, 4, v{lane}
    v_lshrrev_b32 v{ihi}, 3, v{lane}
    v_and_b32 v{i8}, 7, v{lane}
    v_and_b32 v{i16}, 15, v{lane}
    v_lshrrev_b32 v{r_}, 2, v{i16}
    v_and_b32 v{c4}, 3, v{lane}
    v_lshlrev_b32 v{VLN}, 4, v{lane}
    s_add_u32 s71, s63, s{sWB}
    v_add_u32 v{VO}, s71, v{VLN}""")
    b(f"""s_lshl_b32 s70, s{sWAVE}, 11
    v_lshlrev_b32 v{t1}, 8, v{g_}
    v_add_u32 v{t1}, s70, v{t1}
    s_and_b32 s70, s{sWAVE}, 1
    s_lshl_b32 s70, s70, 3
    v_xor_b32 v{t2}, v{i16}, v{g_}
    v_xor_b32 v{t2}, s70, v{t2}
    v_lshl_add_u32 v{DK0}, v{t2}, 4, v{t1}
    v_xor_b32 v{DK1}, 64, v{DK0}
    v_lshlrev_b32 v{t2}, 1, v{g_}
    v_xor_b32 v{t3}, v{t2}, v{i16}
    v_lshl_add_u32 v{DV0}, v{t3}, 4, v{t1}
    v_xor_b32 v{DV1}, 128, v{DV0}""")
    b(f"""v_mul_u32_u24 v{t1}, 1152, v{ihi}
    v_lshl_add_u32 v{t1}, v{i8}, 4, v{t1}
    s_lshl_b32 s70, s{sWAVE}, 7
    v_add_u32 v{VWO}, s70, v{t1}
    v_lshrrev_b32 v{t1}, 1, v{lane}
    v_mul_u32_u24 v{t1}, 1152, v{t1}
    v_and_b32 v{t2}, 1, v{lane}
    v_lshl_add_u32 v{t1}, v{t2}, 4, v{t1}
    s_lshl_b32 s70, s{sWAVE}, 5
    s_add_u32 s70, s70, 1024
    v_add_u32 v{VWX}, s70, v{t1}""")
    b(f"""v_xor_b32 v{t2}, v{g_}, v{i16}
    v_lshlrev_b32 v{t2}, 4, v{t2}
    v_lshl_add_u32 v{KA}, v{i16}, 8, v{t2}""")
    for s_ in range(1, 4): b(f"v_xor_b32 v{KA+s_}, {64*s_}, v{KA}")
    b(f"""v_lshl_add_u32 v{t2}, v{g_}, 2, v{r_}
    v_lshlrev_b32 v{t1}, 8, v{t2}
    v_and_b32 v{t2}, 7, v{t2}
    v_lshl_add_u32 v{t1}, v{t2}, 5, v{t1}
    v_lshl_add_u32 v{t1}, v{c4}, 3, v{t1}
    v_add_u32 v{VA}, 0x10000, v{t1}""")
    for T in range(1, 8): b(f"v_xor_b32 v{VA+T}, {32*T}, v{VA}")
    b(f"v_lshrrev_b32 v74, 2, v{lane}\nv_lshlrev_b32 v74, 7, v74\nv_lshl_add_u32 v74, s{sWAVE}, 11, v74")
    b(f"""v_lshl_add_u32 v{t2}, v{g_}, 2, v{r_}
    v_lshlrev_b32 v{t1}, 7, v{t2}
    v_lshl_add_u32 v{t1}, v{c4}, 3, v{t1}
    s_lshr_b32 s70, s{sWAVE}, 1
    s_lshl_b32 s70, s70, 16
    s_and_b32 s71, s{sWAVE}, 1
    s_lshl_b32 s{sWOS}, s71, 13
    s_add_u32 s{sWOS}, s{sWOS}, s70
    s_lshl_b32 s{sWTS}, s71, 10
    s_add_u32 s{sWTS}, s{sWTS}, s70
    s_add_u32 s{sWTS}, s{sWTS}, 47104
    {f"s_lshl_b32 s{sWTS}, s{sWAVE}, 10" if OPT.get('fsq') else ""}
    {f"s_add_u32 s{sWTS}, s{sWTS}, 147456" if OPT.get('fsq') else ""}
    v_add_u32 v{VWA}, s{sWOS}, v{t1}
    v_lshlrev_b32 v{t1}, 3, v{lane}
    v_add_u32 v{VWE}, s{sWTS}, v{t1}""")

def late_setup(b, sfx):
    b(f"""s_lshl_b32 s71, s68, 4
    s_add_u32 s71, s71, s69
    s_lshl_b32 s70, s71, 19
    s_add_u32 s{SK}, s50, s70
    s_addc_u32 s{SK+1}, s51, 0
    s_mov_b32 s{SK+2}, 524288
    s_mov_b32 s{SK+3}, 0x20000
    s_add_u32 s{SV}, s52, s70
    s_addc_u32 s{SV+1}, s53, 0
    s_mov_b32 s{SV+2}, 524288
    s_mov_b32 s{SV+3}, 0x20000
    s_mul_i32 s70, s3, {O_BLK}
    s_add_u32 s{SO}, s100, s70
    s_addc_u32 s{SO+1}, s101, 0
    s_mov_b32 s{SO+2}, {O_BLK}
    s_mov_b32 s{SO+3}, 0x20000
    s_mul_i32 s70, s71, 36864
    s_add_u32 s{SWO}, s56, s70
    s_addc_u32 s{SWO+1}, s57, 0
    s_mov_b32 s{SWO+2}, 36864
    s_mov_b32 s{SWO+3}, 0x20000
    s_mul_i32 s71, s3, {WOT_BLK}
    s_add_u32 s70, s70, s71
    s_add_u32 s70, s70, {WOT_OFF}
    s_add_u32 s{SWT}, s100, s70
    s_addc_u32 s{SWT+1}, s101, 0
    s_mov_b32 s{SWT+2}, 36864
    s_mov_b32 s{SWT+3}, 0x20000
    s_mul_i32 s62, s69, {8*122880}
    s_mul_i32 s63, s68, 15360        ; b*15*1024
    s_add_u32 s{SCN}, s100, {CNT_OFF}
    s_addc_u32 s{SCN+1}, s101, 0
    s_mov_b32 s{SCN+2}, 24576
    s_mov_b32 s{SCN+3}, 0x20000
    s_mov_b64 s[{SDB}:{SDB+1}], s[78:79]
    s_mov_b32 s{SDB+2}, 256
    s_mov_b32 s{SDB+3}, 0x20000
    s_mov_b64 s[{SIN}:{SIN+1}], s[{SCN}:{SCN+1}]
    s_mov_b32 s{SIN+3}, 0x20000
    s_mov_b64 s[{SIF}:{SIF+1}], s[78:79]
    s_mov_b32 s{SIF+3}, 0x20000
    s_lshl_b32 s70, s3, 3
    s_add_u32 s70, s70, s68
    s_lshl_b32 s{sCO}, s70, 2
    s_lshr_b32 s71, s69, 2
    s_add_u32 s{sCO}, s{sCO}, s71
    s_lshl_b32 s{sCO}, s{sCO}, 7
    s_lshr_b32 s{sCW}, s70, 1
    s_lshl_b32 s{sCW}, s{sCW}, 7
    s_add_u32 s{sCW}, s{sCW}, 8192
    s_and_b32 s70, s97, 1
    s_mul_i32 s70, s70, {30 + OPT.get('bal', 0)}
    s_add_u32 s2, s2, s70              ; tile number inside the pair of workgroup classes (0..59 real)
    s_cmp_eq_u32 s70, 0
    s_cselect_b32 s71, {30 + OPT.get('bal', 0)}, 60
    s_cmp_ge_u32 s2, s71
    s_cselect_b32 s{sIDLE}, 1, 0       ; no output tile for this workgroup
    s_mul_i32 s68, s2, 43
    s_lshr_b32 s68, s68, 8
    s_mul_i32 s69, s68, 6
    s_sub_u32 s69, s2, s69             ; nt
    s_bfe_u32 s70, s97, 0x10001
    s_mul_i32 s70, s70, 10
    s_add_u32 s68, s68, s70            ; mt
    s_mul_i32 s92, s69, {OPT.get('krot', 0)}
    s_add_u32 s92, s92, s68
    s_and_b32 s92, s92, 3""")
    if OPT.get('s2t'):
        b(f"""s_lshr_b32 s2, s97, 3
        s_mul_i32 s68, s2, 86
        s_lshr_b32 s68, s68, 8
        s_mul_i32 s69, s68, 3
        s_sub_u32 s69, s2, s69
        s_and_b32 s70, s97, 1
        s_mul_i32 s70, s70, 3
        s_add_u32 s69, s69, s70
        s_bfe_u32 s70, s97, 0x10001
        s_mul_i32 s70, s70, 10
        s_add_u32 s68, s68, s70""")
        if OPT['s2t'] >= 2:
            b(f"""s_and_b32 s92, s68, 1
            s_lshl_b32 s92, s92, 1
            s_lshr_b32 s70, s{sWAVE}, 1
            s_add_u32 s92, s92, s70
            s_and_b32 s68, s68, 30
            s_and_b32 s70, s{sWAVE}, 1
            s_add_u32 s68, s68, s70""")
        else: b(f"s_mov_b32 s92, s{sWAVE}")
    KQ = 92 if OPT.get('s2t') else sWAVE
    b(f"""
    s_mul_i32 s79, s68, 103
    s_lshr_b32 s79, s79, 8
    s_mul_i32 s78, s68, 96
    s_add_u32 s78, s78, 95
    s_mul_i32 s78, s78, 4370
    s_lshr_b32 s78, s78, 20
    s_lshl_b32 s70, s3, 3
    s_add_u32 s78, s78, s70
    s_add_u32 s79, s79, s70
    s_lshl_b32 s78, s78, 2
    s_lshl_b32 s79, s79, 2
    s_add_u32 s78, s78, s{KQ}
    s_add_u32 s79, s79, s{KQ}
    s_lshl_b32 s78, s78, 7
    s_lshl_b32 s79, s79, 7
    s_mul_i32 s70, s3, {O_BLK}
    s_mul_i32 s71, s68, 6144
    s_add_u32 s70, s70, s71
    s_add_u32 s{SO2}, s100, s70
    s_addc_u32 s{SO2+1}, s101, 0
    s_sub_u32 s{SO2+2}, {O_BLK}, s71
    s_mov_b32 s{SO2+3}, 0x20000
    s_mul_i32 s70, s3, {WOT_BLK}
    s_mul_i32 s71, s69, 6144
    s_add_u32 s70, s70, s71
    s_add_u32 s70, s70, {WOT_OFF}
    s_add_u32 s{SW2}, s100, s70
    s_addc_u32 s{SW2+1}, s101, 0
    s_sub_u32 s{SW2+2}, {WOT_BLK}, s71
    s_mov_b32 s{SW2+3}, 0x20000
    s_cmp_eq_u32 s{sIDLE}, 1
    s_cselect_b32 s{SO2+2}, 0, s{SO2+2}   ; workgroups without an output tile load nothing
    s_cselect_b32 s{SW2+2}, 0, s{SW2+2}
    s_mov_b32 s100, s{SO2+2}
    s_mov_b32 s101, s{SW2+2}
    s_lshr_b32 s70, s{sWAVE}, 1
    s_mul_i32 s70, s70, {48*2304}
    s_mul_i32 s{sOUTO}, s68, {96*2304}
    s_add_u32 s{sOUTO}, s{sOUTO}, s70
    s_mul_i32 s70, s3, 1152
    s_add_u32 s{sOUTO}, s{sOUTO}, s70
    s_mul_i32 s70, s69, 192
    s_add_u32 s{sOUTO}, s{sOUTO}, s70
    s_and_b32 s70, s{sWAVE}, 1
    s_mul_i32 s70, s70, 96
    s_add_u32 s{sOUTO}, s{sOUTO}, s70
    s_lshl_b32 s70, s3, 2
    s_add_u32 s70, s70, s{KQ}
    s_lshl_b32 s70, s70, 7
    s_add_u32 s70, s70, 8192
    v_and_b32 v1, 1, v0
    v_mov_b32 v{VP2}, s78
    v_mov_b32 v2, s79
    v_cmp_eq_u32 vcc, 1, v1
    v_and_b32 v1, 2, v0
    v_mov_b32 v3, s70
    v_cndmask_b32 v{VP2}, v{VP2}, v2, vcc
    v_cmp_eq_u32 vcc, 2, v1
    v_add_u32 v{VPE}, 16384, v{VP2}
    v_mov_b32 v{VTH}, 4
    v_cndmask_b32 v{VPE}, v{VPE}, v3, vcc
    v_mov_b32 v3, 32
    v_cndmask_b32 v{VTH}, v{VTH}, v3, vcc
    s_mov_b32 s{sSIG}, 0""")
    b(f"L_late{sfx}:")
    b(f"""s_or_b32 s70, s97, s{sSAFE}
    s_cmp_eq_u32 s70, 0
    s_cselect_b32 s{SIN+2}, 24576, 0   ; only workgroup 0 (first pass) really initialises the counters
    s_cselect_b32 s{SIF+2}, 4, 0
    s_mov_b32 s{sOO}, s62
    s_mov_b32 s{sLATE}, 0
    s_mov_b32 s{SO2+2}, s100
    s_mov_b32 s{SW2+2}, s101
    {p2_init()}
    s_lshr_b32 s{sRT}, s97, {OPT.get('rsh', 3)}
    s_mul_i32 s{sRT}, s{sRT}, {OPT.get('rot', 0) or 1}
    s_mul_i32 s70, s{sRT}, 5042
    s_lshr_b32 s70, s70, 16
    s_mul_i32 s70, s70, 13
    s_sub_u32 s{sRT}, s{sRT}, s70
    s_lshl_b32 s{sRT}, s{sRT}, 14
    s_lshl_b32 s{sKB}, s{sWAVE}, 11""")

def warm_base(b):
    b("""s_getpc_b64 s[94:95]
    L_pc:
    s_sub_u32 s94, s94, L_pc-attn_kernel
    s_subb_u32 s95, s95, 0""")

def warm_addr(b):
    b("""v_mul_u32_u24 v76, 40, v0
    v_lshrrev_b32 v76, 8, v76
    s_lshr_b32 s70, s97, 3
    s_mul_i32 s70, s70, 40
    v_add_u32 v76, s70, v76
    v_lshlrev_b32 v76, 7, v76
    v_min_u32 v76, L_codeend-attn_kernel-4, v76
    v_mov_b32 v77, s95
    v_add_co_u32 v76, vcc, s94, v76
    v_addc_co_u32 v77, vcc, 0, v77, vcc""")

def warm_code(b):
    warm_base(b); warm_addr(b)
    if OPT.get('warm'): b("global_load_dword v4, v[76:77], off")

def prologue_a(b):
    lane = T0; t1 = T0 + 1; t2 = T0 + 2; t3 = T0 + 3; g_ = T0 + 4; ihi = T0 + 5; i8 = T0 + 6
    b(f"""v_and_b32 v{lane}, 63, v0
    v_lshrrev_b32 v{g_}, 4, v{lane}
    v_lshrrev_b32 v{ihi}, 3, v{lane}
    v_and_b32 v{i8}, 7, v{lane}""")
    b(f"s_lshl_b32 s{sT}, s{sWAVE}, 6")
    b(f"v_add_u32 v{t1}, s{sT}, v{ihi}")
    b(f"v_mul_u32_u24 v{t1}, 1152, v{t1}")
    for j in range(4):
        b(f"v_xor_b32 v{t2}, {4*(j%2)}, v{g_}")
        b(f"v_xor_b32 v{t2}, v{t2}, v{i8}")
        b(f"v_lshl_add_u32 v{t2}, v{t2}, 4, v{t1}")
        b(f"v_add_u32 v{DX+j}, {8*j*1152 - 1024*j}, v{t2}")
    b(f"""s_and_b32 s{sT}, s{sWAVE}, 1
    s_lshl_b32 s{sT}, s{sT}, 18
    s_lshr_b32 s{sT+1}, s{sWAVE}, 1
    s_lshl_b32 s{sT+1}, s{sT+1}, 7
    s_add_u32 s{sT}, s{sT}, s{sT+1}
    v_lshlrev_b32 v{t1}, 13, v{ihi}
    v_add_u32 v{t1}, s{sT}, v{t1}
    v_lshrrev_b32 v{t2}, 2, v{i8}
    v_xor_b32 v{t2}, v{t2}, v{g_}
    v_and_b32 v{t2}, 1, v{t2}
    v_lshl_add_u32 v{t1}, v{t2}, 6, v{t1}
    v_and_b32 v{t2}, 3, v{i8}
    v_lshl_add_u32 v{t1}, v{t2}, 4, v{t1}""")
    for j in range(4): b(f"v_add_u32 v{DW+j}, {8*j*8192 - 1024*j}, v{t1}")
    b(f"""s_mov_b32 s{sXO}, 0
    s_mov_b32 s{sXO2}, 36864
    s_mov_b32 s{sWOFF}, 0
    s_mov_b32 s{sKV}, 0
    s_mov_b32 s{sHEAD}, 0""")
    if OPT.get('qrot'):
        if OPT['qrot'] == 10:
            b(f"s_lshr_b32 s{sT}, s97, 5\ns_lshr_b32 s{sT+1}, s97, 3\ns_xor_b32 s{sT}, s{sT}, s{sT+1}\ns_and_b32 s{sT}, s{sT}, 1\ns_mul_i32 s{sT}, s{sT}, {OPT.get('qro', 4)}")
        elif OPT['qrot'] == 11:
            b(f"s_lshr_b32 s{sT}, s97, 5\ns_bfe_u32 s{sT+1}, s97, 0x20003\ns_add_u32 s{sT}, s{sT}, s{sT+1}\ns_mul_i32 s{sT+1}, s{sT}, 86\ns_lshr_b32 s{sT+1}, s{sT+1}, 8\ns_mul_i32 s{sT+1}, s{sT+1}, 3\ns_sub_u32 s{sT}, s{sT}, s{sT+1}\ns_mul_i32 s{sT}, s{sT}, 3")
        else:
            b(f"""s_lshr_b32 s{sT}, s97, 5
            s_bfe_u32 s{sT+1}, s97, 0x20003
            s_mul_i32 s{sT+1}, s{sT+1}, {OPT['qrot']}
            s_add_u32 s{sT}, s{sT}, s{sT+1}
            s_sub_u32 s{sT+1}, s{sT}, 9
            s_cselect_b32 s{sT}, s{sT}, s{sT+1}""")
        b(f"""
        s_lshl_b32 s{sXO}, s{sT}, 7
        s_add_u32 s{sXO2}, s{sXO}, 36864
        s_lshl_b32 s{sWOFF}, s{sT}, 19""")

def prologue_b(b):
    lane = T0; t1 = T0 + 1; t2 = T0 + 2; t3 = T0 + 3; g_ = T0 + 4; ihi = T0 + 5; i8 = T0 + 6
    if OPT.get('sstamps'): stamp(b)
    b.ext(x_dma(0, 4)); b.ext(w_dma(0, 4))
    if OPT.get('ord') == 1: b.ext(w_dma(1, 4)); b.ext(x_dma(1, 4))
    if OPT.get('ord') == 2: b.ext(w_dma(1, 4))
    if OPT.get('sstamps'): stamp(b)
    if OPT.get('xw'):
        pf = K2F[OPT.get('xwf', 0)]
        b(f"""s_lshr_b32 s70, s2, 2
        s_mul_i32 s70, s70, 270
        s_mul_i32 s71, s{sWAVE}, 68
        s_add_u32 s70, s70, s71
        s_lshl_b32 s70, s70, 7
        v_lshlrev_b32 v5, 7, v{lane}
        buffer_load_dword v6, v5, s[{SX}:{SX+3}], s70 offen{pf}
        s_and_b32 s70, s2, 3
        s_lshl_b32 s70, s70, 2
        s_add_u32 s70, s70, s{sWAVE}
        s_lshl_b32 s70, s70, 13
        v_lshrrev_b32 v5, 2, v{lane}
        v_lshlrev_b32 v5, 17, v5
        v_and_b32 v7, 3, v{lane}
        v_lshl_add_u32 v5, v7, 7, v5
        buffer_load_dword v6, v5, s[{SW}:{SW+3}], s70 offen{pf}
        s_add_u32 s70, s70, {256*8192}
        buffer_load_dword v6, v5, s[{SW}:{SW+3}], s70 offen{pf}
        s_add_u32 s70, s70, {256*8192}
        buffer_load_dword v6, v5, s[{SW}:{SW+3}], s70 offen{pf}""")
    late_setup(b, "")
    if OPT.get('tlb'):
        for srd in (SK, SV, SWO): b(f"buffer_load_dword v1, off, s[{srd}:{srd+3}], 0 nt")
        if OPT['tlb'] > 1:
            b(f"s_mov_b64 exec, 1\nbuffer_store_dword v1, off, s[{SWT}:{SWT+3}], s{sWB} sc1\ns_mov_b64 exec, -1")
    persist_regs(b)
    b(f"""v_mov_b32 v{VONE}, 1
    s_and_b32 s70, s{sWAVE}, 1
    s_mul_i32 s70, s70, 3072
    s_sub_u32 s71, 3072, s70
    v_add_u32 v{VPW}, s70, v{VLN}
    v_add_u32 v{VPW+1}, s71, v{VLN}
    s_lshr_b32 s70, s{sWAVE}, 1
    s_mul_i32 s70, s70, 3072
    s_sub_u32 s71, 3072, s70
    v_add_u32 v{VPO}, s70, v{VLN}
    v_add_u32 v{VPO+1}, s71, v{VLN}""")
    i16 = T0 + 7; r_ = T0 + 8; c4 = T0 + 9
    b(f"""v_and_b32 v{i16}, 15, v{lane}
    v_lshrrev_b32 v{r_}, 2, v{i16}
    v_and_b32 v{c4}, 3, v{lane}
    v_lshlrev_b32 v{t1}, 7, v{i16}
    v_add_u32 v{t1}, s{sXB}, v{t1}
    v_add_u32 v{t1}, 16384, v{t1}
    v_lshrrev_b32 v{t3}, 1, v{i16}""")
    for s in range(2):
        b(f"v_xor_b32 v{t2}, {4*s}, v{g_}")
        b(f"v_xor_b32 v{t2}, v{t2}, v{t3}")
        b(f"v_lshl_add_u32 v{XA+s}, v{t2}, 4, v{t1}\nv_add_u32 v{XA+2+s}, 65536, v{XA+s}")
    b(f"""v_lshl_add_u32 v{t1}, v{g_}, 3, v{r_}
    v_lshlrev_b32 v{t1}, 7, v{t1}
    v_lshl_add_u32 v{t1}, v{c4}, 4, v{t1}
    v_add_u32 v{t1}, 49152, v{t1}
    v_lshrrev_b32 v{t3}, 1, v{r_}""")
    if OPT.get('wnc'): b(f"v_and_b32 v{t2}, 1, v{g_}\nv_lshl_add_u32 v{t1}, v{t2}, 3, v{t1}")
    for sp in range(2):
        b(f"v_xor_b32 v{t2}, {sp}, v{t3}")
        b(f"v_lshl_add_u32 v{WA+sp}, v{t2}, 6, v{t1}\nv_add_u32 v{WA+2+sp}, 65536, v{WA+sp}")
    if OPT.get('sstamps'): stamp(b)
    if not OPT.get('ord'): b.ext(w_dma(1, 4))
    if OPT.get('ord') != 1: b.ext(x_dma(1, 4))

def wave_code(b, nq, sfx):
    nx = 8 if nq == 4 else 6
    b(f"L_begin{sfx}:")
    if nq == 3:
        b(f"v_mov_b32 v{VHS}, 0\nv_lshlrev_b32 v{VCW}, 3, v{VLN}")
        b(f"buffer_store_dword v{VHS}, v{VCW}, s[{SIN}:{SIN+3}], 0 offen sc1 ; tag=INIT")
        b(f"s_mov_b32 s{sT}, 8192\nbuffer_store_dword v{VHS}, v{VCW}, s[{SIN}:{SIN+3}], s{sT} offen sc1 ; tag=INIT")
        b(f"s_mov_b32 s{sT}, 16384\nbuffer_store_dword v{VHS}, v{VCW}, s[{SIN}:{SIN+3}], s{sT} offen sc1 ; tag=INIT")
    stamp(b, 0)
    if OPT.get('fsq'):
        b(f"s_mov_b32 s{sFQ}, 0\nv_mov_b32 v{QFB}, {QFLAGS}\nv_lshl_add_u32 v{QFA}, s{sWAVE}, 2, v{QFB}")
    b("WAITV ; cover=X0,W0")
    b("s_barrier ; pub=X0,W0")
    b.ext(x_reads(0, nq))
    for T in (0, 1): b.ext(w_reads(0, T))
    b.ext(w_reads(0, 2)[:3])
    b("WAITL W0.0")
    stamp(b, 1)
    for n in range(0, 12): qproj_stage(b, n, nq)
    fill = []; post = []
    for sp in range(4):
        for q in range(nq):
            rs = [128 + 32 * q + 8 * sp + 2 * i_ for i_ in range(4)]
            for r in rs: fill += [f"v_mul_f32 v{r}, s{sC}, v{r}", f"v_mul_f32 v{r+1}, s{sC}, v{r+1}"]
            for r in rs: fill.append(f"v_cvt_pk_bf16_f32 v{r}, v{r}, v{r+1}")
            for i_, r in enumerate(rs): fill.append(f"v_accvgpr_write_b32 a{AQ(q) + 4*sp + i_}, v{r}")
    for n in range(12, 18): qproj_stage(b, n, nq, fill if n >= 16 else None)
    stamp(b, 2)
    conv2 = []
    for q in range(nq):
        for h in range(8):
            r = 128 + 32 * q + 4 * h
            conv2 += [f"v_accvgpr_read_b32 v{4+i_}, a{r+i_}" for i_ in range(4)]
            conv2 += [f"v_mul_f32 v{4+i_}, s{sC}, v{4+i_}" for i_ in range(4)]
            conv2 += ["v_cvt_pk_bf16_f32 v4, v4, v5", "v_cvt_pk_bf16_f32 v6, v6, v7",
                      f"v_accvgpr_write_b32 a{AQ2(q)+2*h}, v4", f"v_accvgpr_write_b32 a{AQ2(q)+2*h+1}, v6"]
    def pre_mfma(): return [qk(q, 0, s_, czero=True) for q in range(nq) for s_ in range(4)]
    def pre_max():
        t = B()
        for q in range(nq):
            s_ = S_ + 8 * q
            t(f"v_max3_f32 v{s_}, v{s_}, v{s_+1}, v{s_+2}")
        for q in range(nq):
            s_ = S_ + 8 * q
            t(f"v_max_f32 v{s_}, v{s_}, v{s_+3}")
        xlane_reduce_multi(t, [S_ + 8 * q for q in range(nq)], [T0 + q for q in range(nq)], "v_max_f32")
        for q in range(nq):
            for r in range(4): t(f"v_sub_f32 v{CI+4*q+r}, 0, v{S_+8*q}")
        return t.L
    def weave(mf, st, per):
        for x in mf:
            b(x)
            for _ in range(per):
                if st: b(st.pop(0))
    def zipper(a_, b_, ra, rb):
        out = []
        while a_ or b_:
            for _ in range(ra):
                if a_: out.append(a_.pop(0))
            for _ in range(rb):
                if b_: out.append(b_.pop(0))
        return out
    b.ext(k_reads(0, 0))
    b.ext(fill)
    b(f"v_and_b32 v4, 3, v0\nv_mov_b32 v5, 0x3f803f80\nv_cmp_eq_u32 vcc, 0, v4")
    for i_ in range(4): b(f"v_cndmask_b32 v{ONES+i_}, 0, v5, vcc")
    b("s_waitcnt lgkmcnt(0)")
    if OPT.get('wts'):
        mv = [f"v_mov_b32 v{192+i_}, v{WOF+i_}" for i_ in range(36)]
        b.ext(mv[:8])
        mv = mv[8:]
        weave(pre_mfma()[:8], mv, 4)
        b.ext(mv); b.ext(pre_mfma()[8:])
    else: b.ext(pre_mfma())
    b.ext(pre_max())
    stamp(b, 3)
    for i_ in range(OPT.get('pause', 0)): b('s_sleep 32')
    if OPT.get('skew'):
        b(f"s_lshr_b32 s{sT}, s97, 3\ns_and_b32 s{sT}, s{sT}, 7\nL_skew{sfx}:\ns_cmp_eq_u32 s{sT}, 0\ns_cbranch_scc1 L_skewd{sfx}\ns_sleep {OPT['skew']}\ns_sub_u32 s{sT}, s{sT}, 1\ns_branch L_skew{sfx}\nL_skewd{sfx}:")
    adv8 = lambda x: x
    def head_start(hd):
        b(f"s_cmp_lg_u32 s{sSAFE}, 0\ns_cbranch_scc1 L_maxpass{sfx}\nL_maxdone{hd}{sfx}:")
        if not LM:
            for q in range(nq): b(f"v_mov_b32 v{LS+q}, 0")
        stamp(b)
    if OPT.get('wtp') == 2 and nq == 3: b("WAITV ; cover=WT\nbuffer_wbl2 sc1 ; tag=WT")
    if OPT.get('pz'): b(f"s_mov_b32 s{sPW}, 99\ns_mov_b32 s{sPZ}, 0")
    if OPT.get('pz') and nq == 3: b(f"v_bfe_u32 v{VPA}, v0, 2, 2\nv_xor_b32 v{VPA}, 3, v{VPA}\nv_lshlrev_b32 v{VPA}, 7, v{VPA}\nv_sub_u32 v{VPA}, v{VPE}, v{VPA}")
    if OPT.get('dw3') and nq == 3:
        b(f"""v_subrev_u32 v{DK2}, 6144, v{DK0}
        v_subrev_u32 v{DK3}, 6144, v{DK1}
        v_xor_b32 v{DKA}, 128, v{DK2}
        v_xor_b32 v{DKB}, 128, v{DK3}
        v_subrev_u32 v{DVA}, 6144, v{DV0}
        v_subrev_u32 v{DVB}, 6144, v{DV1}""")
    head_start(0)
    per = -(-len(conv2) // 8); tot_ = len(conv2)
    for k in range(8):
        ex = []
        if k == 0 and OPT.get('wts'):
            for i_ in range(8 if OPT.get('fsq') else 9):
                g = 2 + 7 * i_
                if i_ < 8: ex.append((g - 1, f"s_add_u32 s{sT+1}, s{sWB}, {16384*(i_//4)}"))
                else: ex += [(g - 2, f"s_lshl_b32 s{sT+1}, s{sWAVE}, 10"), (g - 1, f"s_add_u32 s{sT+1}, s{sT+1}, 32768")]
                ex.append((g, f"buffer_store_dwordx4 {vr(192+4*i_,4)}, v{VLN}, s[{SWT}:{SWT+3}], s{sT+1} offen offset:{1024*(i_%4) if i_ < 8 else 0} sc1 ; tag=WT"))
        if OPT.get('fsq'):
            A9 = 192 if nq == 4 else 224
            if k == 1: ex += [(5, f"s_mov_b32 m0, s{sWTS}"), (6, dma(VWX, SWO, "0", 0, fl('nt_wo'), "W9X"))]
            if k == 6: ex += [(3, "WAITV ; cover=W9X"), (4, f"ds_read_b64_tr_b16 {ar(A9,2)}, v{VWE} offset:0"), (5, f"ds_read_b64_tr_b16 {ar(A9+2,2)}, v{VWE} offset:512")]
            if k == 7: ex += [(4, f"s_lshl_b32 s{sT+1}, s{sWAVE}, 10"), (5, f"s_add_u32 s{sT+1}, s{sT+1}, 32768"),
                              (25, f"buffer_store_dwordx4 {ar(A9,4)}, v{VLN}, s[{SWT}:{SWT+3}], s{sT+1} offen sc1 ; tag=WT")]
        if k == 6 and nq == 3:
            ex += [(46, "WAITV ; cover=HS"), (47, f"v_readfirstlane_b32 s{sT}, v{VHS}\ns_cmp_eq_u32 s{sT}, 0\ns_cbranch_scc1 L_hspin\nL_hsok:")]
        cnt_ = per
        if OPT.get('front'): cnt_ = -(-tot_ * {1: (8, 8, 7, 7, 6, 5, 4, 3), 2: (3, 4, 5, 6, 7, 7, 8, 8), 3: (12, 12, 12, 12, 0, 0, 0, 0)}[OPT['front']][k] // 48)
        attn_stage(b, k, nq, ex, fill=[conv2.pop(0) for _ in range(min(cnt_, len(conv2)))])
    b(f"L_atin{sfx}:")
    b(f"s_mov_b32 s{sCNT}, 0")
    b(f".p2align 3\nL_at{sfx}:")
    b("LOOPBEGIN at 3 8")
    for k in range(8, 16):
        ex = []
        if k == 11 and nq == 3 and not OPT.get('pz'):
            ex = [(59, f"""s_xor_b32 s{sT+1}, s{sHEAD}, 1
            s_or_b32 s{sT}, s{sCNT}, s{sT+1}
            s_cbranch_scc0 L_sig
            L_nosig:""")]
        if OPT.get('pz') and nq == 3:
            if k == 11: ex = [(58, f"s_cmp_eq_u32 s{sPW}, 99"), (60, f"s_cbranch_scc1 L_nop3\nbuffer_load_dword v{VCW}, v{VPA}, s[{SCN}:{SCN+3}], 0 offen sc1 ; cond\nL_nop3:")]
            if k == 13: ex = [(BG + 1, f"s_getreg_b32 s{sST}, hwreg(HW_REG_IB_STS)")]
            if k == 15:
                ex = [(BG - 1, f"""v_cmp_gt_u32 vcc, v{VTH}, v{VCW}
                v_mov_b32 v5, {DEC}
                s_and_b32 s{sT}, s{sST}, 15
                s_lshr_b32 s{sT+1}, s{sST}, 30
                s_lshl_b32 s{sT+1}, s{sT+1}, 4
                s_or_b32 s{sT}, s{sT}, s{sT+1}
                s_cmp_ge_u32 s{sT}, {OPT.get('pzt', 0)}
                s_cselect_b32 s{sT}, 1, 0
                s_cmp_eq_u64 vcc, 0
                s_cselect_b32 s{sT}, s{sT}, 0
                v_mov_b32 v4, s{sT}
                ds_write_b32 v5, v4
                s_waitcnt lgkmcnt(0)""")]
        if k == 9 and OPT.get('pz'): b(f"L_at1{sfx}:")
        if k == 15:
            if OPT.get('pz'): ex += [(NS - 4, f"s_add_u32 s{sCNT}, s{sCNT}, 1"), (NS - 2, f"s_cmp_ge_u32 s{sCNT}, s{sPW}")]
            else: ex += [(NS - 6, f"s_add_u32 s{sCNT}, s{sCNT}, 1"), (NS - 4, f"s_add_u32 s{sT}, s{sCNT}, s{sHEAD}"), (NS - 2, f"s_cmp_lt_u32 s{sT}, 3")]
        attn_stage(b, k, nq, ex)
    if OPT.get('pz'): b(f"s_cbranch_scc1 L_pchk{sfx}\nL_pret{sfx}:\ns_add_u32 s{sT}, s{sCNT}, s{sHEAD}\ns_cmp_lt_u32 s{sT}, 3")
    if OPT.get('midgap'):
        b(f"s_cselect_b32 s{sT+1}, 1, 0\ns_lshl_b32 s{sT}, s{sHEAD}, 4\ns_add_u32 s{sT}, s{sT}, s{sCNT}\ns_cmp_eq_u32 s{sT}, {OPT.get('midat', 1)}\ns_cbranch_scc0 L_ng{sfx}")
        for i_ in range(OPT['midgap']): b("s_sleep 16")
        b(f"L_ng{sfx}:\ns_cmp_eq_u32 s{sT+1}, 1")
    b(f"s_cbranch_scc1 L_at{sfx}")
    b("LOOPEND at")
    b(f"L_atx{sfx}:")
    b(f"s_cmp_lg_u32 s{sHEAD}, 0\ns_cbranch_scc1 L_fin{sfx}")

    def lsum(qs):
        t = B()
        if not LM: xlane_reduce_multi(t, [LS + q for q in qs], [T0 + 4 + q for q in qs], "v_add_f32")
        for q in qs:
            src = LA + 4 * q if LM else LS + q
            t(f"v_cmp_ngt_f32 vcc, {LTHR}, v{src}")
            t(f"v_rcp_f32 v{LS+q}, v{src}")
            t(f"s_or_b32 s{sFLAG}, s{sFLAG}, vcc_lo\ns_or_b32 s{sFLAG}, s{sFLAG}, vcc_hi")
        return t.L
    cnt = [0]
    def onorm(q, pk, flag, inplace=False, so=None):
        out = []
        for sp in range(4):
            d = P_ + 4 * (cnt[0] % 2); cnt[0] += 1
            if inplace: d = O_ + 32 * q + 8 * sp
            rs = [O_ + 32 * q + 8 * sp + 2 * i_ for i_ in range(4)]
            for r in rs:
                if pk and OPT.get('pk', 1): out.append(f"v_pk_mul_f32 v[{r}:{r+1}], v[{r}:{r+1}], v[{LS+q-(q%2)}:{LS+q-(q%2)+1}] op_sel:[0,{q%2}] op_sel_hi:[1,{q%2}]")
                else: out += [f"v_mul_f32 v{r}, v{r}, v{LS+q}", f"v_mul_f32 v{r+1}, v{r+1}, v{LS+q}"]
            for i_, r in enumerate(rs): out.append(f"v_cvt_pk_bf16_f32 v{d+i_}, v{r}, v{r+1}")
            if flag is None:
                for i_ in range(4): out.append(f"v_accvgpr_write_b32 a{AST+16*q+4*sp+i_}, v{d+i_}")
                continue
            if so:
                out[-1] += f"\ns_add_u32 s{sT+1}, s{so}, {sp*122880}\nbuffer_store_dwordx4 {vr(d,4)}, v{VO}, s[{SO}:{SO+3}], s{sT+1} offen offset:{1024*q}{flag}"
                continue
            out.append(f"s_add_u32 s{sT}, s{sOO}, {sp*122880}")
            out.append(f"buffer_store_dwordx4 {vr(d,4)}, v{VO}, s[{SO}:{SO+3}], s{sT} offen offset:{1024*q}{flag}")
        return out
    def drain(st, ld=None, every=1):
        slots = []; gaps = [[] for _ in range(18)]
        for q in (2, 3):
            for T in range(8): slots.append(pv(q, T) if q < nq else None)
            slots.append(lsm(q) if (q < nq and LM) else None)
        rem = sorted(sm_items(nq, NS, 2 * NS), key=lambda t: t[0])
        b.ext([sm_text(*k_) for g, k_ in rem if k_[1] == 2 and k_[0] != 'add'])
        crit = sorted([k_ for g, k_ in rem if k_[1] == 3 and k_[0] != 'add'], key=lambda k_: (k_[2], k_[0] == 'cvt'))
        g = 0
        for k_ in crit:
            if k_[0] == 'exp' and gaps[min(g, 6)]: g += 1
            gaps[min(g, 6)].append(sm_text(*k_))
            if k_[0] == 'exp' or len(gaps[min(g, 6)]) == 2: g += 1
        late = [sm_text(*k_) for g_, k_ in rem if k_[0] == 'add']
        for i_, x in enumerate(late): gaps[min(9 + i_ // 2, 16) if nq == 4 else 0].append(x)
        for g in range(18):
            if slots[g] is None: continue
            room = 2 - sum(2 if 'exp' in x else 1 for x in gaps[g])
            while room > 0 and st: gaps[g].append(st.pop(0)); room -= 1
        for i_, s_ in enumerate(slots):
            if s_: b(s_)
            if s_ and ld and (i_ % every == 0 or nq == 3):
                b(ld.pop(0))
                while ld and ld[0].startswith("s_"): b(ld.pop(0))
            b.ext(gaps[i_])
    hi = list(range(2, nq))
    movs = [f"v_accvgpr_mov_b32 a{AQ(q)+i_}, a{AQ2(q)+i_}" for q in range(nq) for i_ in range(16)]
    f0 = None if OPT.get('defer') else K2F[OPT.get('of0', 2)] + ' ; tag=WT'
    if OPT.get('wtp') == 1 and nq == 3: b("buffer_wbl2 sc1 ; tag=WT")
    st = lsum([0, 1]) + onorm(0, False, f0)
    SW2_ = OPT.get('sw2', 0)
    if SW2_ and not OPT.get('noearly'):
        ld = []
        D_ = OPT.get('dist', 5 if OPT.get('fsa') else 6)
        if OPT.get('pair'):
            b(f"s_add_u32 s{sT+1}, s{sKV}, 8192")
            if OPT.get('fsa') or OPT.get('fp'): ld = v_dma(36) + v_dma(37, f"s{sT+1}") + adv2(sT + 1) + [f"s_add_u32 s{sT+1}, s{sKV}, 8192"] + k_dma(38) + k_dma(39, f"s{sT+1}")
            else: ld = k_dma(38) + k_dma(39, f"s{sT+1}") + v_dma(38) + v_dma(39, f"s{sT+1}") + adv2(sT + 1)
        else:
            for t in (32 + D_, 33 + D_): ld += k_dma(t) + v_dma(t) + kv_adv()
        if OPT.get('dw3'):
            ld = (pair_dma3(True, 36, 92) + [f"s_add_u32 s{sKV}, s{sKV}, 16384"] + pair_dma3(False, 38, 92)) if nq == 3 else ["s_nop 0"]
        b(ld.pop(0))
        ld2 = []
        for x in ld: ld2 += [x] if x.startswith('s_') else [x, 'v_nop']
        ld2 = [x for x in ld]
        drain(st, ld2, 2)
        if OPT.get('dw3'): st[:] = ["s_waitcnt vmcnt(24)"] + zipper(st, ld2, 3, 1)
    else: drain(st)
    stamp(b, 4)
    b.ext(zipper(st, lsum(hi), 2, 1))
    b.ext(movs)
    st = onorm(1, False, f0)
    weave(pre_mfma(), st, 3 if nq == 4 else 4)
    b.ext(st)
    rest = []; late_ = []
    for q in hi:
        if SW2_ >= 2: late_ += onorm(q, False, f0, inplace=True, so=sOP)
        else: rest += onorm(q, True, f0)
    b.ext(zipper(rest, pre_max(), 2, 1))
    b.ext(vote_write())
    b(f"s_mov_b32 s{sOP}, s{sOO}\ns_add_u32 s{sOO}, s{sOO}, {4*122880}\ns_mov_b32 s{sHEAD}, 1")
    if OPT.get('emub'):
        b(f"s_and_b32 s{sT}, s97, 3\ns_cmp_eq_u32 s{sT}, s{sCNT}" if False else "")
        b(f"s_mov_b32 s{sT}, 0\nL_duma{sfx}:")
        for i_ in range(64):
            if (i_ // 2) % 4 >= nq: continue
            b(f"{MF} a[{192+4*(i_//2%16)}:{195+4*(i_//2%16)}], a[{4*(i_%8)}:{4*(i_%8)+3}], a[{32+4*(i_%7)}:{35+4*(i_%7)}], a[{192+4*(i_//2%16)}:{195+4*(i_//2%16)}]")
            if i_ % 2 == 0: b(f"ds_read_b64_tr_b16 v[4:5], v{VA + i_ % 8} offset:{(i_ % 16) * 4096}")
        b(f"s_waitcnt lgkmcnt(0)\ns_barrier\ns_add_u32 s{sT}, s{sT}, 1\ns_cmp_lt_u32 s{sT}, 8\ns_cbranch_scc1 L_duma{sfx}")
    if OPT.get('pz'):
        b(f"""s_and_b32 s{sT}, s97, 7
        s_lshl_b32 s{sT}, s{sT}, 2
        s_lshr_b32 s{sPW}, {OPT.get('pzc', 0x10210210):#x}, s{sT}
        s_and_b32 s{sPW}, s{sPW}, 15
        s_or_b32 s{sT}, s{sIDLE}, s{sSAFE}
        s_cselect_b32 s{sPW}, 0, s{sPW}
        s_cmp_eq_u32 s{sPW}, 0
        s_cselect_b32 s{sPW}, 99, s{sPW}""")
    head_start(1)
    dst = [(q, sp) for q in range(nq) for sp in range(4)] if OPT.get('defer') else []
    for k in range(32, 40):
        ex = []
        for g in (24, 25):
            if dst:
                q, sp = dst.pop(0)
                ex += [(g, f"s_add_u32 s{sT+1}, s{sOP}, {sp*122880}"),
                       (g, f"buffer_store_dwordx4 {ar(AST+16*q+4*sp,4)}, v{VO}, s[{SO}:{SO+3}], s{sT+1} offen offset:{1024*q} sc1 ; tag=WT")]
        if k == 39 and nq == 3 and OPT.get('pz'): ex.append((59, "s_branch L_sig\nL_nosig:"))
        attn_stage(b, k, nq, ex, fill=late_ if k == 32 else None)
    b(f"s_branch L_atin{sfx}")
    b("REPLAY at 32 2")
    b(f"L_fin{sfx}:")
    f1 = K2F[OPT.get('of', 0)]
    early = p2_w(0) + p2_o(0) + p2_adv(0) + p2_w(1) + p2_o(1) + p2_adv(1)
    if OPT.get('pre8'): early += (p2_w(2) + p2_o(2))[:8]
    for k in range(56, 64):
        ex = []
        CK = 57 if OPT.get('stg') == 2 else 59
        if k == 56: ex = [(1 if CK == 57 else 6, f"buffer_load_dword v{VCW}, v{VPE}, s[{SCN}:{SCN+3}], 0 offen sc1 ; tag=CW")]
        if k == CK: ex = [(NS - 3, f"WAITV ; cover=CW\nv_cmp_gt_u32 vcc, v{VTH}, v{VCW}\ns_cbranch_vccnz L_espin{sfx}\nL_eok{sfx}:" + ("\nbuffer_inv sc1" if OPT.get('acq') else "") + (f"\ns_cmp_eq_u32 s{sPZ}, 0\ns_cselect_b64 vcc, -1, 0" if OPT.get('pz') else ""))]
        if k == 57 and OPT.get('pz'): b(f"L_t57{sfx}:")
        if k > CK and OPT.get('stg'):
            pos = (3, 5, 7, 11, 17, 23, 31, 34, 37, 40, 54, 57) if k < 62 else (3, 5, 7, 11)
            if CK == 57: pos = (3, 7, 11, 17, 23, 33, 38, 55) if k < 62 else ()
            for g in pos:
                ex.append((g, early.pop(0)))
                while early and early[0].startswith("s_"): ex.append((g + 1, early.pop(0)))
            if k == 61: ex += [(58 + i_, x) for i_, x in enumerate(p2_stage_init())]
            if k >= 62:
                gs = iter((17, 23, 30, 32, 34, 36, 38, 40, 54, 55, 56, 57) if k == 62 else (17, 23, 30, 33, 36, 39, 50, 52, 54, 55, 56, 57))
                g = 15
                if CK == 57: gs = iter((3, 5, 7, 11, 17, 23, 30, 33, 36, 39, 54, 57)); g = 1
                seq_ = p2_stage(k - 62)
                for i_, x in enumerate(seq_):
                    if x.startswith("buffer_"): g = next(gs); ex.append((g, x))
                    elif x.startswith("s_add_u32 m0"): ex.append((g + 1, x))
                    else: ex.append((g + 1, x))
        elif k >= 60:
            for g in ((3, 7, 11, 17, 23, 33, 38, 55) if OPT.get('pre8') else (3, 7, 11, 17, 23, 45 if LM else 44)):
                if OPT.get('pz'):
                    t_ = [early.pop(0) + " condp"]
                    while early and early[0].startswith("s_"): t_.append(early.pop(0))
                    ex.append((g, f"s_cbranch_vccz L_sk{k}_{g}{sfx}\n" + "\n".join(t_) + f"\nL_sk{k}_{g}{sfx}:"))
                    continue
                ex.append((g, early.pop(0)))
                while early and early[0].startswith("s_"): ex.append((g + 1, early.pop(0)))
        attn_stage(b, k, nq, ex)
    assert not early
    p2 = []
    for s_ in (2, 3): p2 += p2_w(s_) + p2_o(s_) + p2_adv(s_)
    if OPT.get('pre8'): p2 = p2[8:]
    st = lsum([0, 1]) + onorm(0, False, f1)
    if OPT.get('stg'): b('s_waitcnt vmcnt(32)')
    drain(st, p2)
    stamp(b, 5)
    body = st + zipper(onorm(1, True, f1), lsum(hi), 2, 1)
    for q in hi: body += onorm(q, True, f1)
    body = [x + " ; tag=OS" if x.startswith("buffer_store") else x for x in body]
    nld = sum(1 for x in p2 if x.startswith("buffer_"))
    per = max(1, len(body) // (nld + 2))
    seq = []
    while body or p2:
        if p2:
            seq.append(p2.pop(0))
            while p2 and p2[0].startswith("s_"): seq.append(p2.pop(0))
        for _ in range(per):
            if body: seq.append(body.pop(0))
    outst = 48 - nld
    for x in seq:
        if x.startswith("buffer_"):
            if outst >= 62: b("s_waitcnt vmcnt(52)"); outst = 52
            outst += 1
        b(x)
    b.ext(vote_write())
    stamp(b)
    if OPT.get('pz'): b(f"s_cmp_eq_u32 s{sPZ}, 1\ns_cbranch_scc1 L_p2p{sfx}\nALTFROM p")
    b(f"L_p2s{sfx}:")
    if OPT.get('stg'):
        b(f"v_add_u32 v{VSB}, s{sSB}, v{VLN}\nv_add_u32 v{VSB+1}, 0x10000, v{VSB}")
        for s_ in range(4): p2_step(b, s_, s_ == 0, 'lds' if s_ < 2 else True, f"WAITV ; cover=P{s_}{',L%d' % (4 + s_) if s_ < 2 else ''} cap=51")
    else:
        for s_ in range(4): p2_step(b, s_, s_ == 0, s_ >= OPT.get('skip2', 0), f"WAITV ; cover=P{s_} cap=51")
    b("WAITV lgkmcnt(0) ; cover=OS")
    b("s_branch L_vote")
    b(f"""L_espin{sfx}:
    s_mov_b32 s{sLATE}, 1
    s_mov_b32 s{SO2+2}, 0
    s_mov_b32 s{SW2+2}, 0
    s_branch L_eok{sfx}""")
    if nq == 3:
        b(f"""L_sig:
        v_mov_b32 v4, {131072+7168}
        ds_read_b128 v[4:7], v4
        s_waitcnt lgkmcnt(0)
        v_or_b32 v4, v4, v5
        v_or3_b32 v4, v4, v6, v7
        v_readfirstlane_b32 s{sT}, v4
        s_mov_b64 exec, 1
        s_cmp_lg_u32 s{sSAFE}, 0
        s_cselect_b32 s{sT}, 0, s{sT}
        s_cbranch_scc1 L_sig1
        buffer_atomic_add v{VONE}, off, s[{SCN}:{SCN+3}], s{sCW} sc1
        L_sig1:
        s_or_b32 s{sT}, s{sT}, s{sSIG}
        s_cbranch_scc1 L_sig2
        s_add_u32 s{sT}, s{sCO}, 16384
        s_mov_b32 s{sSIG}, 1
        buffer_atomic_add v{VONE}, off, s[{SCN}:{SCN+3}], s{sT} sc1
        L_sig2:
        s_mov_b64 exec, -1
        s_branch L_nosig""")
        b(f"""L_hspin:
        s_mov_b32 s{sCNT}, 0
        L_hsp:
        s_sleep 8
        buffer_load_dword v{VHS}, off, s[{SDB}:{SDB+3}], 0 sc1
        s_waitcnt vmcnt(0)
        v_readfirstlane_b32 s{sT}, v{VHS}
        s_add_u32 s{sCNT}, s{sCNT}, 1
        s_lshr_b32 s{sT+1}, s{sCNT}, 17
        s_or_b32 s{sT}, s{sT}, s{sT+1}
        s_cmp_eq_u32 s{sT}, 0
        s_cbranch_scc1 L_hsp
        s_branch L_hsok""")
    for uid in QSPINS:
        b(f"""L_fs{uid}:
        ds_read_b128 {vr(QF,4)}, v{QFB}
        s_waitcnt lgkmcnt(0)
        v_min3_u32 v{QF}, v{QF}, v{QF+1}, v{QF+2}
        v_min_u32 v{QF}, v{QF}, v{QF+3}
        v_cmp_gt_u32 vcc, s{sFQ}, v{QF}
        s_cbranch_vccnz L_fs{uid}
        s_branch L_fr{uid}""")
    QSPINS.clear()
    for uid in SPINS:
        b(f"""L_fs{uid}:
        {"s_sleep %d" % OPT['fss'] if OPT.get('fss') else ""}
        ds_read_b128 {vr(FQ,4)}, v{VFB}
        s_waitcnt lgkmcnt(0)
        v_min3_u32 v{FQ}, v{FQ}, v{FQ+1}, v{FQ+2}
        v_min_u32 v{FQ}, v{FQ}, v{FQ+3}
        v_cmp_gt_u32 vcc, s{sFV}, v{FQ}
        s_cbranch_vccnz L_fs{uid}
        s_branch L_fr{uid}""")
    SPINS.clear()
    if OPT.get('pz'):
        b(f"""L_pchk{sfx}:
        v_mov_b32 v5, {DEC}
        ds_read_b32 v4, v5
        s_waitcnt lgkmcnt(0)
        v_readfirstlane_b32 s{sT}, v4
        s_cmp_eq_u32 s{sT}, 0
        s_cbranch_scc1 L_pret{sfx}
        s_mov_b32 s{sPW}, 99
        s_mov_b32 s{sPZ}, 1""")
        w_, o_, a_ = pz_loads(0, 0)
        ld = w_ + o_ + a_
        drain([], ld)
        b.ext(ld)
        w_, o_, a_ = pz_loads(1, 1)
        b.ext(w_ + o_ + a_)
        b("s_branch L_pz")
        b(f"L_pzr{sfx}:")
        b.ext([x.split(';')[0] for x in k_reads(0, 0)])
        b("s_waitcnt lgkmcnt(0)")
        t_ = B(); attn_stage(t_, 8, nq, resume=True); b.ext([x.split(';')[0] for x in t_.L])
        b(f"s_cmp_eq_u32 s{sCNT}, 1\ns_cbranch_scc1 L_at1{sfx}\ns_branch L_t57{sfx}")
        b(f"ALTBEGIN p\nL_p2p{sfx}:")
        b(f"s_add_u32 s{sT}, s{sXB}, 131072\nv_add_u32 v5, s{sT}, v{VLN}")
        for i_ in range(4): b(f"ds_read_b128 {vr(240+4*i_,4)}, v5 offset:{1024*i_}")
        l0 = p2_w(0) + p2_o(0) + p2_adv(0); l1 = p2_w(1) + p2_o(1) + p2_adv(1)
        for i_ in range(128):
            b(f"v_accvgpr_read_b32 v{112+i_}, a{128+i_}")
            if i_ >= 64 and i_ % 4 == 3 and l0:
                b(l0.pop(0))
                while l0 and l0[0].startswith("s_"): b(l0.pop(0))
        b("WAITV ; cover=P2 cap=40")
        b.ext(l1)
        b("s_waitcnt lgkmcnt(0)")
        for s_ in (2, 3): p2_step(b, s_, False, True, f"WAITV ; cover=P{s_} cap=51")
        b("WAITV lgkmcnt(0) ; cover=OS")
        b("s_branch L_vote\nALTEND p")
    b(f"L_maxpass{sfx}:")
    for q in range(nq): b(f"v_mov_b32 v{T0+8+q}, 0xff800000")
    for s2 in range(4): b(f"v_add_u32 v{T0+12+s2}, 147456, v{KA+s2}")
    b(f"s_lshl_b32 s{sT}, s{sHEAD}, 18\ns_mov_b32 s{sCNT}, 0")
    b(f"L_mp{sfx}:")
    b(f"s_barrier\ns_add_u32 m0, s{sKB}, 147456")
    b(dma(DK0, SK, f"s{sT}", 0, "", "MP")); b(dma(DK1, SK, f"s{sT}", 1024, "", "MP"))
    b("s_waitcnt vmcnt(0)\ns_barrier")
    for kt in range(2):
        for s in range(4):
            b(f"ds_read_b128 {ar(ASP+4*(4*kt+s),4)}, v{T0+12+s} offset:{kt*4096}")
    b("s_waitcnt lgkmcnt(0)")
    for q in range(nq):
        for kt in range(2):
            for s in range(4):
                d = vr(S_ + 8 * q + 4 * kt, 4)
                b(f"{MF} {d}, {ar(ASP+4*(4*kt+s),4)}, {ar(AQ(q)+4*s,4)}, {d if s else '0'}")
    for q in range(nq):
        for e in range(0, 8, 2): b(f"v_max3_f32 v{T0+8+q}, v{T0+8+q}, v{S_+8*q+e}, v{S_+8*q+e+1}")
    b(f"s_add_u32 s{sT}, s{sT}, 8192\ns_add_u32 s{sCNT}, s{sCNT}, 1\ns_cmp_lt_u32 s{sCNT}, 32\ns_cbranch_scc1 L_mp{sfx}")
    b("s_barrier")
    xlane_reduce_multi(b, [T0 + 8 + q for q in range(nq)], [T0 + q for q in range(nq)], "v_max_f32")
    for q in range(nq):
        for r in range(4): b(f"v_sub_f32 v{CI+4*q+r}, 0, v{T0+8+q}")
    b(f"s_cmp_eq_u32 s{sHEAD}, 0\ns_cbranch_scc1 L_maxdone0{sfx}\ns_branch L_maxdone1{sfx}")

FA = [144, 192, 0, 96]
def p2_reg(slot, i):
    if OPT.get('pre8'):
        if slot == 2: return 128 + 4 * i if i < 4 else (240 + 4 * (i - 4) if i < 8 else 4 * (i - 8))
        if slot == 3: return 16 + 4 * i
    if slot == 3: return 48 + 4 * i if i < 4 else 96 + 4 * (i - 4)
    return FA[slot] + 4 * i
def pz_reg(slot, i):
    return ar((0, 64)[slot] + 4 * i, 4) if i < 8 else vr((32, 48)[slot] + 4 * (i - 8), 4)
def pz_acc(t): return ar(128 + 4 * t, 4) if t < 32 else vr(16 + 4 * (t - 32), 4)
def pz_loads(slot, L):
    f = K2F[OPT.get('p2f', 2)]
    w = [f"buffer_load_dwordx4 {pz_reg(slot, i)}, v{VPW + i//3}, s[{SW2}:{SW2+3}], s{sW2} offen offset:{1024*(i%3)}{f}" for i in range(6)]
    o = [f"buffer_load_dwordx4 {pz_reg(slot, 6+i)}, v{VPO + i//3}, s[{SO2}:{SO2+3}], s{sO2} offen offset:{1024*(i%3)}{f}" for i in range(6)]
    return w, o, p2_adv(L % 4)
VPW = 2; VPO = 8
def p2_w(slot): return [f"buffer_load_dwordx4 {ar(p2_reg(slot, i),4)}, v{VPW + i//3}, s[{SW2}:{SW2+3}], s{sW2} offen offset:{1024*(i%3)}{K2F[OPT.get('p2wf', OPT.get('p2f', 2))]} ; tag=P{slot}" for i in range(6)]
def p2_o(slot): return [f"buffer_load_dwordx4 {ar(p2_reg(slot, 6+i),4)}, v{VPO + i//3}, s[{SO2}:{SO2+3}], s{sO2} offen offset:{1024*(i%3)}{K2F[OPT.get('p2f', 2)]} ; tag=P{slot}" for i in range(6)]
def p2_adv(slot):
    m = 5 if slot == 3 else 1
    out = [f"s_add_u32 s{sO2}, s{sO2}, {m*122880}", f"s_add_u32 s{sW2}, s{sW2}, {m*36864}"]
    if slot == 3 and OPT.get('krot'):
        out += ["s_add_u32 s93, s93, 1", "s_and_b32 s93, s93, 3", "s_cselect_b32 s94, 0, 32", "s_mul_i32 s95, s94, 122880",
                f"s_sub_u32 s{sO2}, s{sO2}, s95", "s_mul_i32 s95, s94, 36864", f"s_sub_u32 s{sW2}, s{sW2}, s95"]
    return out
def p2_init():
    if OPT.get('s2t'): return f"s_mul_i32 s{sO2}, s92, {32*122880}\ns_mul_i32 s{sW2}, s92, {32*36864}"
    if not OPT.get('krot'): return f"s_mul_i32 s{sO2}, s{sWAVE}, {32*122880}\ns_mul_i32 s{sW2}, s{sWAVE}, {32*36864}"
    return f"s_lshl_b32 s93, s{sWAVE}, 2\ns_add_u32 s93, s93, s92\ns_mul_i32 s{sO2}, s93, {8*122880}\ns_mul_i32 s{sW2}, s93, {8*36864}\ns_mov_b32 s93, s92"

def p2_stage(i):
    f = K2F[OPT.get('p2f', 2)]; out = []
    for grp, (v_, srd, so) in enumerate(((VPW, SW2, 93), (VPW + 1, SW2, 93), (VPO, SO2, 92), (VPO + 1, SO2, 92))):
        out.append(f"s_add_u32 m0, s{sSB}, {65536 * i + 3072 * grp}")
        out += [f"buffer_load_dwordx4 v{v_}, s[{srd}:{srd+3}], s{so} offen offset:{1024*j}{f} lds ; tag=L{4+i}" for j in range(3)]
    out += ["s_add_u32 s92, s92, 122880", "s_add_u32 s93, s93, 36864"]
    return out
def p2_stage_init():
    return [f"s_mul_i32 s{sSB}, s{sWAVE}, 12288", f"s_mul_i32 s92, s{sWAVE}, {32*122880}", f"s_add_u32 s92, s92, {8*122880}",
            f"s_mul_i32 s93, s{sWAVE}, {32*36864}", f"s_add_u32 s93, s93, {8*36864}"]

def vote_write():
    return [f"v_mov_b32 v4, s{sFLAG}", f"s_lshl_b32 s{sT}, s{sWAVE}, 2", f"s_add_u32 s{sT}, s{sT}, {131072+7168}",
            f"v_mov_b32 v5, s{sT}", "ds_write_b32 v5, v4"]

P2ACC = 112
def p2_acc(q, n): return P2ACC + 4 * (6 * q + n)
def p2_step(b, slot, first, prefetch, wait, order=None, extra=None):
    b(wait)
    order = order or [(q, n) for q in range(6) for n in range(6)]
    slots = []; gaps = [[] for _ in range(36)]
    for q, n in order:
        a_ = vr(p2_acc(q, n), 4)
        slots.append(f"{MF} {a_}, {ar(p2_reg(slot, n),4)}, {ar(p2_reg(slot, 6+q),4)}, {'0' if first else a_}")
    if prefetch:
        o_, w_ = p2_o(slot), p2_w(slot)
        if prefetch == 'lds':
            w_ = [f"ds_read_b128 {ar(p2_reg(slot, i),4)}, v{VSB + slot} offset:{1024*i}" for i in range(6)]
            o_ = [f"ds_read_b128 {ar(p2_reg(slot, 6+i),4)}, v{VSB + slot} offset:{1024*(6+i)}" for i in range(6)]
        for q in range(6): gaps[6 * q + 5].append(o_[q])
        for n in range(6): gaps[30 + n].append(w_[n])
        gaps[35] += p2_adv(slot)
    for g, x in (extra or []): gaps[g].append(x)
    emit_slots(b, slots, gaps)

def phase2(b):
    D = 4
    acc = p2_acc
    def step(slot, first, prefetch, N, order=None, extra=None): p2_step(b, slot, first, prefetch, f"s_waitcnt vmcnt({N})", order, extra)
    b(f"""L_vote:
    s_cmp_eq_u32 s{sLATE}, 2
    s_cbranch_scc1 L_go
    v_mov_b32 v5, {131072+7168}
    s_barrier
    ds_read_b128 v[16:19], v5
    s_waitcnt lgkmcnt(0)
    v_or_b32 v16, v16, v17
    v_or3_b32 v16, v16, v18, v19
    v_readfirstlane_b32 s{sT}, v16
    s_cmp_lg_u32 s{sSAFE}, 0
    s_cselect_b32 s{sT}, 0, s{sT}
    s_cmp_lg_u32 s{sT}, 0
    s_cbranch_scc1 L_redo
    s_cmp_eq_u32 s{sWAVE}, 3
    s_cbranch_scc0 L_nosig2
    s_mov_b64 exec, 1
    buffer_atomic_add v{VONE}, off, s[{SCN}:{SCN+3}], s{sCO} sc1
    s_mov_b64 exec, -1
    L_nosig2:""")
    stamp(b)
    b(f"""s_cmp_eq_u32 s{sIDLE}, 1
    s_cbranch_scc1 L_fini
    s_cmp_eq_u32 s{sLATE}, 1
    s_cbranch_scc1 L_lateld
    L_go:
    s_xor_b32 s70, s{sWAVE}, 1
    s_mul_i32 s70, s70, 27648
    v_add_u32 v16, s70, v{VLN}
    s_xor_b32 s70, s{sWAVE}, 2
    s_mul_i32 s70, s70, 27648
    s_add_u32 s70, s70, 9216
    v_add_u32 v17, s70, v{VLN}
    s_xor_b32 s70, s{sWAVE}, 3
    s_mul_i32 s70, s70, 27648
    s_add_u32 s70, s70, 18432
    v_add_u32 v18, s70, v{VLN}
    s_mul_i32 s70, s{sWAVE}, 27648
    v_add_u32 v19, s70, v{VLN}
    v_and_b32 v20, 15, v0
    v_mul_u32_u24 v20, 112, v20
    v_bfe_u32 v21, v0, 4, 2
    v_lshl_add_u32 v20, v21, 3, v20
    v_add_u32 v20, s70, v20            ; bf16 staging write address: row*96 + g*8
    v_and_b32 v21, 63, v0
    s_mov_b32 s71, 0x2aab""")
    for r in range(5):
        b(f"""v_add_u32 v22, {64*r}, v21
        v_mul_u32_u24 v23, s71, v22
        v_lshrrev_b32 v23, 16, v23
        v_mul_u32_u24 v{42+r}, {2304 - 96}, v23
        v_lshl_add_u32 v{42+r}, v22, 4, v{42+r}
        v_add_u32 v23, v23, v22
        v_lshlrev_b32 v23, 4, v23
        v_add_u32 v{68+r}, s70, v23""")
    b(f"""v_cmp_gt_u32 vcc, 32, v21
    v_mov_b32 v22, 0x7f000000
    v_cndmask_b32 v46, v22, v46, vcc
    s_mov_b32 s88, s{sOUT}
    s_mov_b32 s89, s{sOUT+1}
    s_mov_b32 s90, {8*240*1152*2}
    s_mov_b32 s91, 0x20000
    v_lshlrev_b32 v76, 3, v{VLN}
    v_min_u32 v76, L_fini-L_tail, v76
    v_add_u32 v76, L_tail-attn_kernel, v76
    v_mov_b32 v77, s95
    v_add_co_u32 v76, vcc, s94, v76
    v_addc_co_u32 v77, vcc, 0, v77, vcc
    s_mov_b32 s36, 0
    {f"s_cmp_eq_u32 s{sPZ}, 1" if OPT.get('pz') else ""}
    {"s_cbranch_scc1 L_chk2" if OPT.get('pz') else ""}
    .p2align 3
    L_k2:""")
    for s_ in range(D):
        ex = [(0, f"buffer_load_dword v6, v{VP2}, s[{SCN}:{SCN+3}], 0 offen sc1")] if s_ == 0 else None
        if s_ == 2 and OPT.get('rewt'): ex = [(0, "global_load_dword v78, v[76:77], off")]
        step(s_, False, True, 36, extra=ex)
    b("""s_add_u32 s36, s36, 1
    s_cmp_eq_u32 s36, 2
    s_cbranch_scc1 L_chk
    L_chkd:
    s_cmp_lt_u32 s36, 6
    s_cbranch_scc1 L_k2""")
    b("L_tail:")
    for s_ in range(D - 1): step(s_, False, False, 12 * (D - 1 - s_))
    stamp(b)
    quad = lambda q, n: (q // 3) * 2 + (n // 3)
    oth = [(q, n) for d in (1, 2, 3) for q in range(6) for n in range(6) if quad(q, n) == d]
    mine = [(q, n) for q in range(3) for n in range(3)]
    wr = [(min(i_ + 5, 35), f"ds_write_b128 v{15 + quad(q, n)}, {vr(acc(q, n),4)} offset:{((q % 3) * 3 + n % 3) * 1024}") for i_, (q, n) in enumerate(oth)]
    if OPT.get('stg'): b("s_barrier")
    step(D - 1, False, False, 0, order=oth + mine, extra=wr)
    if OPT.get('rstamps'): stamp(b)
    b("s_waitcnt lgkmcnt(0)\ns_barrier")
    if OPT.get('rstamps'): stamp(b)
    for t in range(9):
        for src in range(3):
            b(f"ds_read_b128 {vr(acc(*oth[3*t+src]),4)}, v19 offset:{src * 9216 + t * 1024}")
    nw = 0
    for t0 in range(0, 9, 3):
        ts = range(t0, t0 + 3)
        b(f"s_waitcnt lgkmcnt({min(15, 3 * (6 - t0) + nw)})")
        for ph in range(3):
            for t in ts:
                r0, r1, r2, m = acc(*oth[3*t]), acc(*oth[3*t+1]), acc(*oth[3*t+2]), acc(*mine[t])
                x_, y_ = ((r0, r1), (m, r2), (m, r0))[ph]
                for r in (0, 2): b(f"v_pk_add_f32 v[{x_+r}:{x_+r+1}], v[{x_+r}:{x_+r+1}], v[{y_+r}:{y_+r+1}]")
        for t in ts:
            m = acc(*mine[t])
            b(f"v_cvt_pk_bf16_f32 v{24+2*t}, v{m}, v{m+1}\nv_cvt_pk_bf16_f32 v{25+2*t}, v{m+2}, v{m+3}")
        for t in ts:
            q, n = mine[t]
            b(f"ds_write_b64 v20, v[{24+2*t}:{25+2*t}] offset:{q * 1792 + n * 32}"); nw += 1
    for r in range(5): b(f"ds_read_b128 {vr(48+4*r,4)}, v{68+r}")
    for r in range(5):
        b(f"s_waitcnt lgkmcnt({4-r})")
        b(f"buffer_store_dwordx4 {vr(48+4*r,4)}, v{42+r}, s[88:91], s{sOUTO} offen{K2F[OPT.get('outf', 0)]}")
    if OPT.get('rstamps'): stamp(b)
    b("L_fini:")
    if OPT.get('fixspan'):
        b(f"""s_waitcnt vmcnt(0)
        L_fix:
        s_memrealtime s[74:75]
        s_waitcnt lgkmcnt(0)
        s_sub_u32 s74, s74, s72
        s_cmp_lt_u32 s74, {OPT['fixspan'] * 100}
        s_cbranch_scc1 L_fix""")
    stamp_dump(b, 0, sWAVE)
    b("s_endpgm")
    if OPT.get('pz'):
        b("L_pz:")
        for j in range(10):
            sl = j % 2
            b(f"s_waitcnt vmcnt({12 if j < 9 else 0})")
            slots = []; gaps = [[] for _ in range(36)]
            for q in range(6):
                for n in range(6):
                    a_ = pz_acc(6 * q + n)
                    slots.append(f"{MF} {a_}, {pz_reg(sl, n)}, {pz_reg(sl, 6+q)}, {'0' if j == 0 else a_}")
            if j < 8:
                w_, o_, ad = pz_loads(sl, j + 2)
                for q in range(6): gaps[6 * q + 5].append(o_[q])
                for n in range(6): gaps[30 + n].append(w_[n])
                gaps[35] += ad
            emit_slots(b, slots, gaps)
        b(f"s_add_u32 s{sT}, s{sXB}, 131072\nv_add_u32 v5, s{sT}, v{VLN}\nv_mov_b32 v{VCW}, v{VTH}")
        for i_ in range(4): b(f"ds_write_b128 v5, {vr(16+4*i_,4)} offset:{1024*i_}")
        b(f"s_cmp_eq_u32 s{sWAVE}, 3\ns_cbranch_scc1 L_pzr3\ns_branch L_pzr4")
        b(f"""L_chk2:
        s_mov_b32 s36, 2
        buffer_load_dword v6, v{VP2}, s[{SCN}:{SCN+3}], 0 offen sc1
        s_waitcnt vmcnt(0)""")
    b(f"""L_chk:
    s_waitcnt vmcnt(48)
    s_{"add" if OPT.get('krot') else "sub"}_u32 s{sO2}, s{sO2}, {(4 if OPT.get('krot') else 28)*122880}
    s_{"add" if OPT.get('krot') else "sub"}_u32 s{sW2}, s{sW2}, {(4 if OPT.get('krot') else 28)*36864}
    v_cmp_gt_u32 vcc, 4, v6
    s_cbranch_vccz L_chkd
    s_mov_b32 s37, 0
    L_poll:
    s_sleep 4
    buffer_load_dword v6, v{VP2}, s[{SCN}:{SCN+3}], 0 offen sc1
    s_add_u32 s37, s37, 1
    s_waitcnt vmcnt(0)
    v_cmp_gt_u32 vcc, 4, v6
    s_cbranch_vccz L_chkd
    s_cmp_lt_u32 s37, 0x20000
    s_cbranch_scc1 L_poll
    s_branch L_chkd
    L_lateld:
    s_mov_b32 s{SO2+2}, s100
    s_mov_b32 s{SW2+2}, s101
    {p2_init()}
    s_mov_b32 s{sLATE}, 2
    s_mov_b32 s37, 0
    L_esp:
    s_sleep 4
    buffer_load_dword v{VCW}, v{VPE}, s[{SCN}:{SCN+3}], 0 offen sc1
    s_add_u32 s37, s37, 1
    s_waitcnt vmcnt(0)
    v_cmp_gt_u32 vcc, v{VTH}, v{VCW}
    s_cbranch_vccz L_espd
    s_cmp_lt_u32 s37, 0x20000
    s_cbranch_scc1 L_esp
    L_espd:
    {"buffer_inv sc1" if OPT.get('acq') else ""}""")
    for s_ in range(4): b.ext(p2_w(s_) + p2_o(s_) + p2_adv(s_))
    if OPT.get('stg'):
        b("s_waitcnt vmcnt(0)"); b.ext(p2_stage_init() + p2_stage(0) + p2_stage(1))
    b(f"""s_waitcnt vmcnt(0)
    s_cmp_eq_u32 s{sWAVE}, 3
    s_cbranch_scc1 L_p2s3
    s_branch L_p2s4
    L_redo:
    s_mov_b32 s{sSAFE}, 1
    s_waitcnt vmcnt(0)
    s_barrier""")
    warm_addr(b)
    prologue_a(b)
    b.ext(x_dma(0, 4)); b.ext(w_dma(0, 4))
    b("s_branch L_tramp")

def kernel1():
    b = B()
    b("attn_kernel:")
    b("s_cmp_lt_u32 s2, 256\ns_cbranch_scc1 L_work\ns_endpgm\nL_work:")
    if OPT['stamps']: b("s_mov_b32 s96, 0\nv_mov_b32 v14, 0\nv_mov_b32 v15, 0")
    stamp(b)
    if OPT.get('fixspan') and not OPT.get('fixat'): b("s_memrealtime s[72:73]\ns_waitcnt lgkmcnt(0)")
    b("s_load_dwordx16 s[48:63], s[0:1], 0\ns_load_dwordx4 s[64:67], s[0:1], 64\ns_load_dwordx2 s[100:101], s[0:1], 96\ns_load_dwordx4 s[76:79], s[0:1], 80")
    b(f"""s_mov_b32 s97, s2
    s_and_b32 s3, s2, 7
    s_lshr_b32 s2, s2, 3""")
    warm_code(b)
    b(f"""v_lshrrev_b32 v1, 6, v0
    s_bfe_u32 s68, s3, {0x10001 if OPT.get('map') else 0x10000}
    s_lshl_b32 s68, s68, 2
    s_and_b32 s69, s2, 3
    s_add_u32 s68, s68, s69        ; b
    v_readfirstlane_b32 s{sWAVE}, v1
    s_bfe_u32 s69, s3, {0x10000 if OPT.get('map') else 0x10001}
    s_lshl_b32 s69, s69, 3
    s_lshr_b32 s70, s2, 2
    s_add_u32 s69, s69, s70        ; hp
    s_lshr_b32 s3, s3, 2           ; blk
    s_lshl_b32 s{sWB}, s{sWAVE}, 12
    s_lshl_b32 s{sXB}, s{sWAVE}, 13
    s_mov_b32 s{sC}, {CSCALE}
    s_mov_b32 s{sC+1}, {CSCALE}
    s_mov_b32 s{sSAFE}, 0
    s_mov_b32 s{sFLAG}, 0""")
    prologue_a(b)
    b(f"""s_cmp_eq_u32 s3, 0
    s_waitcnt lgkmcnt(0)
    s_cselect_b64 s[48:49], s[48:49], s[58:59]
    s_cselect_b64 s[50:51], s[50:51], s[60:61]
    s_cselect_b64 s[52:53], s[52:53], s[62:63]
    s_cselect_b64 s[54:55], s[54:55], s[64:65]
    s_cselect_b64 s[56:57], s[56:57], s[66:67]""")
    if OPT.get('sstamps'): stamp(b)
    b(f"""s_mul_i32 s71, s68, 276480
    s_add_u32 s{SX}, s48, s71
    s_addc_u32 s{SX+1}, s49, 0
    s_mov_b32 s{SX+2}, 276480
    s_mov_b32 s{SX+3}, 0x20000
    s_lshl_b32 s71, s69, 9
    s_add_u32 s{SW}, s54, s71
    s_addc_u32 s{SW+1}, s55, 0
    s_sub_u32 s{SW+2}, 4718592, s71
    s_mov_b32 s{SW+3}, 0x20000""")
    b("L_srdok:")
    prologue_b(b)
    b(f"""s_cmp_eq_u32 s{sWAVE}, 3
    s_cbranch_scc1 L_begin3""")
    wave_code(b, 4, "4")
    b("L_tramp:\ns_branch L_late")
    b(".p2align 6")
    wave_code(b, 3, "3")
    b("L_phase2:")
    phase2(b)
    b("L_end1:\ns_endpgm\nL_codeend:")
    return b.L

def resolve_waits(L):
    out = []
    for i, x in enumerate(L):
        if x.startswith("WAITL"):
            tag = x.split()[1]
            n, T = tag[1:].split('.'); T = int(T)
            dst = set(range(AW + 8 * (T % 4), AW + 8 * (T % 4) + 8))
            cnt = 0; found = False
            for y in reversed(out):
                if y.startswith(("s_waitcnt", "WAITV")) and "lgkmcnt(0)" in y:
                    found = True; cnt = None; break
                if y.startswith("ds_"):
                    I = Ins(y)
                    if any(k == 'a' and r in dst for k, r in I.wr) or (T == 0 and 'need=X' in y):
                        found = True; break
                    cnt += 1
            assert found, x
            if cnt is not None:
                cnt = min(cnt, 15)
                out.append(f"s_waitcnt lgkmcnt({cnt})")
        else: out.append(x)
    return out

def expand_trace(L):
    def shift(line, name, it, step):
        if it == 0: return line
        def rep(m):
            k, n = m.group(1), int(m.group(2))
            if name == 'qp':
                if k == 'W': return f"W{n + step*it}"
                if k == 'X': return f"X{n + step*it//2}"
                return m.group(0)
            if k == 'KV': return f"KV{n + step*it}"
            return m.group(0)
        if ';' not in line: return line
        a, c = line.split(';', 1)
        return a + ';' + re.sub(r'\b(KV|W|X)(\d+)\b', rep, c)
    bodies = {}
    def go(i, stop):
        res = []
        while i < len(L):
            x = L[i]
            if x.startswith("LOOPBEGIN"):
                _, name, cnt, step = x.split(); cnt = int(cnt); step = int(step)
                body, j = go(i + 1, name)
                bodies[name] = (body, cnt, step)
                for it in range(cnt):
                    for y in body:
                        if y == f"LOOPEXIT {name}":
                            if it == cnt - 1: break
                            continue
                        res.append(shift(y, name, it, step))
                i = j + 1; continue
            if x.startswith("REPLAY"):
                _, name, off, cnt = x.split(); cnt = int(cnt); body, _, step = bodies[name]
                for it in range(cnt):
                    for y in body: res.append(shift(shift(y, name, it, step), name, 1, int(off)))
                i += 1; continue
            if x.startswith("LOOPEND") and x.split()[1] == stop: return res, i
            res.append(x); i += 1
        return res, i
    return go(0, None)[0]

STOPS = ("L_maxpass", "L_hspin", "L_espin")
def traces(L):
    tr = expand_trace(L)
    main = []
    for x in tr:
        if x.startswith(STOPS): break
        main.append(x)
    alt = None
    if "ALTFROM p" in main:
        i = tr.index("ALTBEGIN p"); j = tr.index("ALTEND p")
        alt = [x for x in main[:main.index("ALTFROM p")] if 'condp' not in x] + tr[i + 1:j]
    drop = lambda t: [x for x in t if not x.startswith("ALT")]
    return drop(main), drop([x for x in main if 'condp' not in x]), alt

def resolve_vm(L):
    idx = [f"{x} ;#{i}" if x.startswith("WAITV") else x for i, x in enumerate(L)]
    best = {}
    main, lean, alt = traces(idx)
    for which, tr in (("main", main), ("lean", lean), ("alt", alt or [])):
        q = []
        for x in tr:
            c = x.split(';', 1)[1] if ';' in x else ''
            if x.startswith(("buffer_", "global_")):
                if 'cond' in c and 'condp' not in c: continue
                m = re.search(r'tag=(\w+)', c); q.append(m.group(1) if m else 'other')
            elif x.startswith("WAITV"):
                tags = set(re.search(r'cover=([\w,]*)', c).group(1).split(','))
                if which == "lean" and any(t[:1] == 'P' or t == 'OS' for t in tags): continue
                i = int(x.rsplit('#', 1)[1])
                n = 0
                for t in reversed(q):
                    if t in tags: break
                    n += 1
                else: n = 63
                m = re.search(r'cap=(\d+)', c)
                best[i] = min(best.get(i, 63), n, int(m.group(1)) if m else 63)
    out = []
    for i, x in enumerate(L):
        if x.startswith("WAITV"):
            a, c = x.split(';', 1) if ';' in x else (x, '')
            out.append(f"s_waitcnt vmcnt({best[i]}) {a[5:].strip()} ;{c}")
        else: out.append(x)
    return out

def check_protocol(L, label):
    q = []; done = set(); issued = {}; pub = set(); errs = 0
    holder = {}; lastread = {}; lg0 = -1; bar = -1; dq = []; snap = -1; qsnap = None
    for pos, x in enumerate(L):
        cc = x.split(';', 1)[1] if ';' in x else ''
        if 'PUB' in cc: snap = lg0; qsnap = list(q)
        if x.startswith("ds_"): dq.append(pos)
        m = re.search(r'lgkmcnt\((\d+)\)', x) if x.startswith("s_waitcnt") else None
        if m:
            while len(dq) > int(m.group(1)): dq.pop(0)
            lg0 = dq[0] - 1 if dq else pos
        if x.startswith("s_barrier"): bar = lg0
        if 'SYNC' in cc:
            bar = max(bar, snap)
            for t in re.search(r'pub=([\w,]*)', cc).group(1).split(','):
                if qsnap is not None and t in qsnap: print(label, "ERR published before landed", t); errs += 1
        m = re.search(r'need=(\w+)', cc)
        if m and x.startswith("ds_read"):
            lastread[(m.group(1), ('K' if 'b128' in x else 'V') if m.group(1).startswith('KV') else '')] = pos
        m = re.search(r'tag=(\w+) reg=([\w,]+)', cc)
        if m:
            for r in m.group(2).split(','):
                old_ = holder.get(r)
                if old_ and old_ != m.group(1):
                    lr = lastread.get((old_, r[0] if old_.startswith('KV') else ''), -1)
                    private = old_[0] == 'X' and m.group(1)[0] == 'X'
                    if lr > (lg0 if private else bar): print(label, "ERR overwrite", r, old_, x); errs += 1
                holder[r] = m.group(1)
        c = x.split(';', 1)[1] if ';' in x else ''
        if x.startswith("buffer_") or x.startswith("global_"):
            if 'cond' in c and 'condp' not in c: continue
            m = re.search(r'tag=(\w+)', c); q.append(m.group(1) if m else 'other')
        elif x.startswith("s_waitcnt"):
            m = re.search(r'vmcnt\((\d+)\)', x)
            if m:
                n = int(m.group(1))
                while len(q) > n: done.add(q.pop(0))
            m = re.search(r'needtag=(\w+)', c)
            if m and m.group(1) in q: print(label, "ERR needtag", x); errs += 1
        elif x.startswith("s_barrier") or 'SYNC' in c:
            m = re.search(r'pub=([\w,]*)', c)
            if m:
                for t in m.group(1).split(','):
                    if not t: continue
                    if t in q or (t not in done and not (label[:2] == 'w4' and OPT.get('dw3') and t[:2] == 'KV')): print(label, "ERR publish not landed", t, x); errs += 1
                    pub.add(t)
        elif x.startswith("ds_read"):
            m = re.search(r'need=(\w+)', c)
            if m and m.group(1) not in pub and m.group(1) != 'WO': print(label, "ERR read unpublished", x); errs += 1
        assert len(q) <= 63, ("vmcnt overflow", x)
    return errs

def burn(L):
    out = []; on = False; c = 0; k = 0
    for x in L:
        if x == 'BURNON': on = True; c = 0; continue
        if x == 'BURNOFF': on = False; continue
        out.append(x)
        if on and OPT.get('burn'):
            if x.startswith('v_mfma'): c = 0
            elif x.startswith('v_'):
                c += 1
                if c >= OPT['burn']:
                    c = 0; k += 1
                    out.append(f"{MF} v[4:7], a[{32+4*(k%8)}:{35+4*(k%8)}], a[{96+4*(k%7)}:{99+4*(k%7)}], v[4:7]")
    return out

def check_lgkm(L, label):
    dq = []; vq = []; errs = 0; cache = {}
    for x in L:
        t = x.split(';')[0].strip()
        I = cache.get(t)
        if I is None: I = cache[t] = Ins(t)
        if I.kind == 'label': continue
        if I.op == 's_waitcnt':
            m = re.search(r'lgkmcnt\((\d+)\)', t)
            if m:
                while len(dq) > int(m.group(1)): dq.pop(0)
            m = re.search(r'vmcnt\((\d+)\)', t)
            if m:
                while len(vq) > int(m.group(1)): vq.pop(0)
            continue
        use = I.rd | I.srcc | I.wr
        for w in dq + vq:
            if w & use: print(label, "ERR uncovered", x); errs += 1; break
        if I.kind in ('dsr', 'dsw'): dq.append(I.wr)
        if I.kind in ('vload', 'vstore', 'dma') and not ('cond' in x and 'condp' not in x): vq.append(I.wr)
    return errs

def finish(L):
    L = burn(L)
    L = resolve_waits(L)
    return L

def strip_markers(L):
    return [x for x in L if not x.startswith(("LOOPBEGIN", "LOOPEND", "LOOPEXIT", "REPLAY", "ALT"))]

DESC = """.section .rodata,"a"
.p2align 6
.amdhsa_kernel {name}
  .amdhsa_next_free_vgpr {vgpr}
  .amdhsa_next_free_sgpr 102
  .amdhsa_accum_offset 256
  .amdhsa_group_segment_fixed_size 0
  .amdhsa_kernarg_size 104
  .amdhsa_user_sgpr_count 2
  .amdhsa_user_sgpr_kernarg_segment_ptr 1
  .amdhsa_system_sgpr_workgroup_id_x 1
  .amdhsa_float_denorm_mode_32 3
.end_amdhsa_kernel
"""

def build(**kw):
    OPT.update(kw)
    k1 = finish(kernel1())
    i4 = k1.index("L_begin4:"); i3 = k1.index("L_begin3:"); iv = k1.index("L_phase2:")
    ip = k1.index("L_srdok:"); pre = k1[ip:i4]
    k1 = k1[:i4] + resolve_vm(pre + k1[i4:i3])[len(pre):] + resolve_vm(pre + k1[i3:iv])[len(pre):] + k1[iv:]
    e = 0
    for lab, part in (("w4", pre + k1[i4:i3]), ("w3", pre + k1[i3:])):
        main, lean, alt = traces(part)
        e += check_protocol(main, lab) + check_lgkm(main, lab)
        if alt: e += check_protocol(alt, lab + "alt") + check_lgkm(alt, lab + "alt")
    assert e == 0 or OPT.get('nocheck')
    k1 = strip_markers(k1)
    k1, n1, p1 = fix_hazards(k1)
    for p in p1: print("BRANCH HAZARD", p)
    assert not p1
    hdr = open("ref.txt").read().split("; Override")[0]
    KN = NAME + "_kernel"
    k1 = [x.replace("attn_kernel", KN) for x in k1]
    out = hdr
    out += """; Written with my own schedule generator (no compiler output).  One launch, 256 workgroups (one per CU), 4 waves each:
;  1. q-projection of two heads (x and Wq staged by LDS-DMA, 16x16x32 bf16 MFMA), scale log2(e)/sqrt(128) applied in fp32;
;  2. attention for the two heads, K/V streamed through an 8-tile LDS ring (waves hand tiles over with counters in LDS).  The softmax offset is the row maximum over the first
;     the workgroup starts over and uses the true row maximum over all 1024 keys (L_maxpass*).
;     hand it to the output projection, which the same workgroups run as 96x96 tiles (even heads first, odd heads after their hand-off).
; Waves 0-2 own four 16-query tiles (labels *4), wave 3 owns three (labels *3).
"""
    out += ("; @launch kernel=%s grid=(256,1,1) block=(256,1,1) lds=163840\n" % KN) if OPT.get('list') else "; @launch grid=(256,1,1) block=(256,1,1) lds=163840\n"
    out += '.amdgcn_target "amdgcn-amd-amdhsa--gfx950"\n.text\n'
    out += ".globl %s\n.p2align 8\n.type %s,@function\n" % (KN, KN) + "\n".join(k1) + "\n"
    out += DESC.format(name=KN, vgpr=512)
    return out, n1

if __name__ == "__main__":
    kw = {}
    for a in sys.argv[2:]:
        k, v = a.split('='); kw[k] = int(v)
    s, info = build(**kw)
    open(sys.argv[1], "w").write(s)
    print("nops inserted", info, "bytes", len(s))
```

```python
import sys, re
from asmlib import fix_hazards, Ins

NAME = "concat_heads__mha_block_cached__mha_block_cached__near_ridge"
MF = "v_mfma_f32_16x16x32_bf16"
CSCALE = 0x3e0293ee
LTHR = 0x4e800000

O_BLK = 128 * 122880
WOT_OFF = 2 * O_BLK
WOT_BLK = 128 * 36864
CNT_OFF = WOT_OFF + 2 * WOT_BLK

class B:
    def __init__(self): self.L = []
    def __call__(self, s):
        for x in s.split("\n"):
            x = x.strip()
            if x: self.L.append(x)
    def ext(self, l): self.L.extend(l)

def vr(b, n): return f"v[{b}:{b+n-1}]"
def ar(b, n): return f"a[{b}:{b+n-1}]"

def emit_slots(b, slots, gaps):
    for i, s in enumerate(slots):
        if s: b(s)
        nv = [x for x in gaps[i] if not x.startswith('v_')]
        v = [x for x in gaps[i] if x.startswith('v_')]
        for x in nv + v: b(x)

S_ = 16; P_ = 48; CI = 64; LS = 80
KA = 84
VA = 88
VWA = 105
DK0 = 96; DK1 = 97; DV0 = 98; DV1 = 99
VO = 100
VWO = 101
VWX = 102
VLN = 103
VPF = 104
VPD = 105
T0 = 108
O_ = 128
XA = 16; WA = 28; DX = 20; DW = 24
WSLOT = [49152, 114688, 131072, 147456]; sKB = 69
def AQ(q): return 32 + 64 * (q // 2) + 16 * (q % 2)
def AQ2(q): return 128 + 16 * q
AK = 0; AV = 64; ASP = 64
AX = 0; AW = 64
SX = 4; SW = 8; SK = 12; SV = 16; SO = 20; SWO = 24; SWT = 28
sWAVE = 32; sWB = 33; sKV = 34; sCNT = 35; sHEAD = 36; sSAFE = 37; sFLAG = 38
sXO = 39; sXO2 = 40; sWOFF = 41; sXB = 42; sOO = 43; sC = 44
sT = 46
sH0 = 68; sWOS = 64; sWTS = 65; sSTAMP = 72; SPF = 76; sPF = 68; sWXS = 67; sROT = 80; sLIN = 81
SCN = 48; SDB = 52; SO2 = 56; sCO = 60; sCW = 61; SIN = 84; SIF = 88; sOUT = 76; VHS = 106; VCW = 107; VONE = 104
SW2 = 80; sO2 = 98; sW2 = 99; sOUTO = 66; sOP = 41; VPE = 11; VTH = 12; VP2 = 13; VWE = 10; AST = 192; sSIG = 78; sLATE = 79; sIDLE = 67; sSB = 69; VSB = 4; sRT = 68; sLN = 71; sPW = 40; sPZ = 64; sST = 65; VPA = 102; DEC = 131072 + 7168 + 64; sFV = 39; VFA = 1; VFB = 101; FQ = 80; FLAGS = 131072 + 7168 + 32

OPT = dict(nt_kv=1, nt_w=0, nt_x=0, nt_wo=0, stamps=0, warm=1, of=2, of0=2, e67=1, bal=0, pair=1, pre8=1, fsa=1, fss=1, fsp=7, fsr=35, dw3=1, wtl=1, wts=1, sw2=2)

K2F = ['', ' nt', ' sc1', ' sc0 sc1', ' sc0', ' sc1 nt', ' sc0 sc1 nt']
def fl(k): return ["", " nt", " sc1 nt", " sc0 sc1 nt", " sc0 nt"][OPT[k]]

def dma(voff, srd, soff, off, flag, tag):
    return f"buffer_load_dwordx4 v{voff}, s[{srd}:{srd+3}], {soff} offen offset:{off}{flag} lds ; tag={tag}"

def kv_adv():
    if not OPT.get('rot'): return [f"s_add_u32 s{sKV}, s{sKV}, 8192"]
    return [f"s_add_u32 s{sLIN}, s{sLIN}, 8192", f"s_add_u32 s{sKV}, s{sLIN}, s{sROT}",
            f"s_and_b32 s{sKV}, s{sKV}, 0x3ffff", f"s_and_b32 s{sT+1}, s{sLIN}, 0xfffc0000", f"s_or_b32 s{sKV}, s{sKV}, s{sT+1}"]

def adv2(tmp):
    if not OPT.get('rot'): return [f"s_add_u32 s{sKV}, s{sKV}, 16384"]
    return [f"s_add_u32 s{sLN}, s{sLN}, 16384", f"s_add_u32 s{sKV}, s{sLN}, s{sRT}", f"s_and_b32 s{sKV}, s{sKV}, 0x3ffff",
            f"s_and_b32 s{tmp}, s{sLN}, 0x40000", f"s_or_b32 s{sKV}, s{sKV}, s{tmp}"]

def k_dma(tile, so=None):
    so = so or f"s{sKV}"
    return [f"s_add_u32 m0, s{sKB}, {(tile % 8) * 8192}",
            dma(DK0, SK, so, 0, fl('nt_kv'), f"KV{tile} reg=K{tile%8}"), dma(DK1, SK, so, 1024, fl('nt_kv'), f"KV{tile} reg=K{tile%8}")]
def v_dma(tile, so=None):
    so = so or f"s{sKV}"
    return [f"s_add_u32 m0, s{sKB}, {65536 + (tile % 8) * 8192}",
            dma(DV0, SV, so, 0, fl('nt_kv'), f"KV{tile} reg=V{tile%8}"), dma(DV1, SV, so, 1024, fl('nt_kv'), f"KV{tile} reg=V{tile%8}")]

DK2 = 232; DK3 = 233; DKA = 234; DKB = 235; DVA = 236; DVB = 237
def pair_dma3(isv, t0, tmp):
    out = []
    for t in (t0, t0 + 1):
        for h in range(2):
            out.append(f"s_mov_b32 m0, {(65536 if isv else 0) + (t % 8) * 8192 + 4096 * h}")
            if (t, h) != (t0, 0): out.append(f"s_add_u32 s{tmp}, s{sKV}, {(t - t0) * 8192 + 4096 * h}")
            so = f"s{sKV}" if (t, h) == (t0, 0) else f"s{tmp}"
            regs = (DVA, DVB, DVA, DVB) if isv else (DKA, DKB, DK2, DK3)
            for j in range(4):
                out.append(dma(regs[j], SV if isv else SK, so, 1024 * j, fl('nt_kv'), f"KV{t} reg={'V' if isv else 'K'}{t % 8}"))
    return out

def x_dma(m, nq):
    slot = 16384 if m % 2 else 81920
    out = []
    out.append(f"s_add_u32 m0, s{sXB}, {slot}")
    for j in range(4): out.append(dma(DX + j, SX, f"s{sXO}", 1024 * j, fl('nt_x'), f"X{m} reg=" + ("K2,K3,K4,K5" if m % 2 else "V2,V3,V4,V5")))
    out.append(f"s_add_u32 m0, s{sXB}, {slot + 4096}")
    for j in range(4 if nq == 4 else 2): out.append(dma(DX + j, SX, f"s{sXO2}", 1024 * j, fl('nt_x'), f"X{m} reg=" + ("K2,K3,K4,K5" if m % 2 else "V2,V3,V4,V5")))
    out.append(f"s_add_u32 s{sXO}, s{sXO}, 128")
    if OPT.get('qrot'):
        out += [f"s_cmp_eq_u32 s{sXO}, 1152", f"s_cselect_b32 s{sXO}, 0, s{sXO}", f"s_add_u32 s{sXO2}, s{sXO}, 36864"]
    else: out.append(f"s_add_u32 s{sXO2}, s{sXO2}, 128")
    return out

def w_dma(n, nq):
    out = [f"s_add_u32 m0, s{sWB}, {WSLOT[n % 4]}"]
    for j in range(4): out.append(dma(DW + j, SW, f"s{sWOFF}", 1024 * j, fl('nt_w'), f"W{n} reg=" + ("K6,K7", "V6,V7", "S2", "S3")[n % 4]))
    if n % 2 == 0: out.append(f"s_add_u32 s{sWOFF}, s{sWOFF}, 256")
    else:
        out.append(f"s_add_u32 s{sWOFF}, s{sWOFF}, {524288 - 256}")
        if OPT.get('qrot'): out += [f"s_cmp_eq_u32 s{sWOFF}, {9*524288}", f"s_cselect_b32 s{sWOFF}, 0, s{sWOFF}"]
    return out

def w_reads(n, T):
    sp_, a = T // 2, T % 2
    hl, sp = sp_ // 2, sp_ % 2
    out = []
    for s in range(2):
        for a2 in range(2):
            d = AW + 8 * (T % 4) + 4 * s + 2 * a2
            off = max(n % 4 - 1, 0) * 16384 + hl * 8192 + (32 * s + 4 * a2) * 128 + (0 if OPT.get('wnc') else 8 * a)
            out.append(f"ds_read_b64_tr_b16 {ar(d,2)}, v{WA + sp + (2 if n % 4 else 0)} offset:{off} ; need=W{n}")
    return out

def x_reads(m, nq):
    out = []
    for q in range(nq):
        for s in range(2):
            d = AX + 32 * (m % 2) + 8 * q + 4 * s
            out.append(f"ds_read_b128 {ar(d,4)}, v{XA + s + (0 if m % 2 else 2)} offset:{q * 2048} ; need=X{m}")
    return out

def qacc(hd, q, T):
    r = 128 + 32 * q + 4 * T
    return vr(r, 4) if hd == 0 else ar(r, 4)

def pf_load():
    return f"buffer_load_dword v{VPD}, v{VPF}, s[{SPF}:{SPF+3}], s{sPF} offen nt ; tag=PF"

def wo_dma():
    out = []
    for r in range(2):
        out.append(f"s_add_u32 m0, s{sWOS}, {4096*r}")
        for j in range(4):
            out += [f"PRE s_mov_b32 s{sT}, {8192*j + 512*r}", dma(VWO, SWO, f"s{sT}", 1024 * j, fl('nt_wo'), "WO")]
    out += [f"s_mov_b32 m0, s{sWTS}", dma(VWX, SWO, "0", 0, fl('nt_wo'), "WO")]
    return out
WOF = 32
def wo_reads():
    out = [f"ds_read_b64_tr_b16 {vr(WOF+16*r+4*tl+2*a,2)}, v{VWA} offset:{4096*r + 2048*a + 32*tl} ; need=WO" for r in range(2) for tl in range(4) for a in range(2)]
    return out + [f"ds_read_b64_tr_b16 {vr(WOF+32+2*a,2)}, v{VWE} offset:{512*a}" for a in range(2)]
def wo_stores():
    out = []
    for r in range(2):
        out.append(f"PRE s_add_u32 s{sT}, s{sWB}, {16384*r}")
        out += [f"buffer_store_dwordx4 {vr(WOF+16*r+4*tl,4)}, v{VLN}, s[{SWT}:{SWT+3}], s{sT} offen offset:{1024*tl} sc1 ; tag=WT" for tl in range(4)]
    out += [f"PRE s_lshl_b32 s{sT}, s{sWAVE}, 10", f"PRE s_add_u32 s{sT}, s{sT}, 32768",
            f"buffer_store_dwordx4 {vr(WOF+32,4)}, v{VLN}, s[{SWT}:{SWT+3}], s{sT} offen sc1 ; tag=WT"]
    return out

QSPINS = []; QF = 68; QFA = 72; QFB = 73; sFQ = 35; QFLAGS = 112640
def qproj_stage(b, n, nq, fill=None):
    hd, m = n % 2, n // 2
    nx = 8 if nq == 4 else 6
    slots = []; gaps = [[] for _ in range(64)]
    for T in range(8):
        for q in range(4):
            for s in range(2):
                if q >= nq: slots.append(None); continue
                acc = qacc(hd, q, T)
                c = "0" if (m == 0 and s == 0) else acc
                slots.append(f"{MF} {acc}, {ar(AW+8*(T%4)+4*s,4)}, {ar(AX+32*(m%2)+8*q+4*s,4)}, {c}")
    start = {3: 5, 4: 12, 5: 19, 6: 26, 7: 33}
    rd = w_reads(n, 2); gaps[0].append(rd[3])
    for T, g in start.items():
        for i, x in enumerate(w_reads(n, T)): gaps[g + i].append(x)
    FSQ = OPT.get('fsq') and n < 15
    if n < 17:
        for T, g in (((0, 53), (1, 57)) if FSQ else ((0, 45), (1, 53))):
            for i, x in enumerate(w_reads(n + 1, T)): gaps[g + i].append(x)
        for i, x in enumerate(w_reads(n + 1, 2)[:3]): gaps[61 + i].append(x)
    xr = []
    if n % 2 == 1 and m + 1 <= 8:
        xr = x_reads(m + 1, nq)
        for x, g in zip(xr, (9, 10, 16, 17, 23, 24, 30, 31) if not (n == 1 and OPT.get('x1late')) else (49, 50, 51, 52, 57, 58, 59, 60)): gaps[g].append(x)
    for T in range(1, 8): gaps[8 * T - 1].append(f"WAITL W{n}.{T}")
    if n < 17: gaps[63].append(f"WAITL W{n+1}.0")
    req = []
    if n + 1 <= 17: req.append(f"W{n+1}")
    if n % 2 == 0 and m + 1 <= 8 and not (n == 0 and OPT.get('x1late')): req.append(f"X{m+1}")
    if n == 1 and OPT.get('x1late'): req.append("X1")
    if n == 17: req += ["KV0", "KV1"]
    cov = list(req)
    if nq == 3 and n == 2:
        cov.append("INIT")
        gaps[55].append(f"buffer_store_dword v{VONE}, v{VLN}, s[{SIF}:{SIF+3}], 0 offen sc1 ; tag=FLAG")
    if nq == 3 and n == 12:
        gaps[45].append(f"buffer_load_dword v{VHS}, off, s[{SDB}:{SDB+3}], 0 ; tag=HS")
    if n == 17 and OPT.get('fsa'):
        gaps[36] += [f"s_mov_b32 s{sFV}, 0", f"v_mov_b32 v{VFB}, {FLAGS}", f"v_mov_b32 v{FQ}, 0"]
        gaps[37] += [f"v_lshl_add_u32 v{VFA}, s{sWAVE}, 2, v{VFB}"]
        gaps[39] += [f"ds_write_b32 v{VFA}, v{FQ}"]
    if FSQ:
        uid = f"q{n}_{nq}"
        gaps[42] += [f"s_add_u32 s{sFQ}, s{sFQ}, 1", f"v_mov_b32 v{QF}, s{sFQ}"]
        gaps[43] += ["WAITV lgkmcnt(0) ; cover=" + ",".join(cov), f"ds_write_b32 v{QFA}, v{QF}"]
        gaps[47].append(f"ds_read_b128 {vr(QF,4)}, v{QFB}")
        gaps[50] += ["s_waitcnt lgkmcnt(0)", f"v_min3_u32 v{QF}, v{QF}, v{QF+1}, v{QF+2}"]
        gaps[51].append(f"v_min_u32 v{QF}, v{QF}, v{QF+3}")
        gaps[52].append(f"v_cmp_gt_u32 vcc, s{sFQ}, v{QF}\ns_cbranch_vccnz L_fs{uid}\nL_fr{uid}: ; SYNC pub=" + ",".join(req))
        QSPINS.append(uid)
    else:
        gaps[43].append("WAITV lgkmcnt(0) ; cover=" + ",".join(cov))
        gaps[44].append("s_barrier ; pub=" + ",".join(req))
    def place(seq, first, step):
        g = first
        for x in seq:
            if x.startswith("buffer_"): gaps[g].append(x); g += step
            elif x.startswith(("s_add_u32 m0", "s_mov_b32 m0")): gaps[g - 1].append(x)
            elif x.startswith("PRE "): gaps[g - 1].append(x[4:])
            else: gaps[min(g - step + 1, 63)].append(x)
    if n == 0 and OPT.get('x2late'): place(w_dma(2, nq) + w_dma(3, nq), 2, 5)
    elif n == 1 and OPT.get('x2late'): place(x_dma(2, nq), 2, 4)
    elif n == 0: place(w_dma(2, nq) + w_dma(3, nq) + x_dma(2, nq), 1, 2)
    elif n % 2 == 0 and m + 2 <= 8: place(x_dma(m + 2, nq), 2, 5)
    def single(kind, i_):
        if kind == 'wo':
            if i_ == 8: return [f"s_mov_b32 m0, s{sWTS}", None, dma(VWX, SWO, "0", 0, fl('nt_wo'), "WO")]
            r, j_ = i_ // 4, i_ % 4
            return [f"s_add_u32 m0, s{sWOS}, {4096*r}", f"s_mov_b32 s{sT}, {8192*j_ + 512*r}", dma(VWO, SWO, f"s{sT}", 1024 * j_, fl('nt_wo'), "WO reg=K0,K1,V0,V1")]
        t, j_ = i_ // 4, i_ % 4
        d_ = (k_dma if j_ < 2 else v_dma)(t, f"s{sT}")
        return [d_[0], f"s_add_u32 s{sT}, s{sRT}, {8192*t}" if OPT.get('rot') else f"s_mov_b32 s{sT}, {8192*t}", d_[1 + j_ % 2]]
    if OPT.get('slowpos', 0):
        R0 = 9
        sched_ = {2: [('wo', 0), ('wo', 1), ('wo', 2)], 4: [('wo', 3), ('wo', 4), ('wo', 5)], 6: [('wo', 6), ('wo', 7), ('wo', 8)],
                  10: [('kv', i_) for i_ in range(4)], 12: [('kv', i_) for i_ in range(4, 8)]}
        for (kind, i_) in sched_.get(n, []):
            gaps[63] += [x for x in single(kind, i_) if x]
    else:
        W0 = 1; R0 = W0 + 7
        sched_ = {W0 + i_ // 2: [] for i_ in range(9)}
        for i_ in range(8 if OPT.get('fsq') else 9): sched_[W0 + i_ // 2].append(('wo', i_))
        if not OPT.get('late'):
            for i_ in range(8): sched_.setdefault(R0 + 2 + i_ // 2, []).append(('kv', i_))
        for (kind, i_), g in zip(sched_.get(n, []), (39, 42) if (n % 2 == 0 or OPT.get('stpos', 0) or (n == 1 and OPT.get('x2late'))) else (12, 32)):
            m0_, so_, ld_ = single(kind, i_)
            gaps[g - 1].append(m0_)
            if so_: gaps[g - 1].append(so_)
            gaps[g].append(ld_)
    if n in (OPT.get("rew", 13), OPT.get("rew2", 99)): gaps[41].append("global_load_dword v1, v[76:77], off")
    NP = OPT.get('l2p', 0)
    if NP and 14 - NP <= n < 14:
        i_ = n - (14 - NP)
        gaps[26].append(f"s_mov_b32 s{sT+1}, {(8 + OPT.get('l2s', 1) * (i_ // 2)) * 8192}")
        gaps[27].append(f"buffer_load_dword v{68 + i_ % 5}, v74, s[{(SK, SV)[i_ % 2]}:{(SK, SV)[i_ % 2]+3}], s{sT+1} offen")
    if n == 13: gaps[62] += [f"s_add_u32 s{sKV}, s{sRT}, 16384", f"s_mov_b32 s{sLN}, 49152"] if OPT.get('rot') else [f"s_mov_b32 s{sKV}, 16384"]
    if n in (R0, R0 + 1):
        rd = wo_reads()
        if OPT.get('fsq'): rd = rd[:16]
        if n == R0:
            gaps[44].append("WAITV ; cover=WO")
            for x, g in zip(rd[:8], [44, 45, 46, 48, 49, 51, 52, 52] if FSQ else [49, 50, 51, 52, 57, 58, 59, 60]): gaps[g].append(x)
        else:
            for x, g in zip(rd[8:], [1, 2, 3, 4, 11, 18, 25, 37, 38, 39]): gaps[g].append(x)
    for i_ in range(0 if OPT.get('wts') else 9):
        if OPT.get('slowpos', 0):
            if n != (10, 10, 12, 12, 14, 14, 14, 16, 16)[i_]: continue
            t_ = [f"s_add_u32 s{sT+1}, s{sWB}, {16384*(i_//4)}"] if i_ < 8 else [f"s_lshl_b32 s{sT+1}, s{sWAVE}, 10", f"s_add_u32 s{sT+1}, s{sT+1}, 32768"]
            gaps[62] += t_ + [f"buffer_store_dwordx4 {vr(WOF+4*i_,4)}, v{VLN}, s[{SWT}:{SWT+3}], s{sT+1} offen offset:{1024*(i_%4) if i_ < 8 else 0} sc1 ; tag=WT"]
            continue
        r, tl = i_ // 4, i_ % 4
        if OPT.get('stpos', 0):
            if n != (9, 9, 11, 11, 13, 13, 15, 15, 15)[i_]: continue
            g = (8, 10, 2, 4, 2, 4, 2, 4, 7)[i_]
        else:
            if n != min(R0 + 1 + i_, 17 - (1 if i_ < 8 else 0)) : continue
            g = 62 if not any('tag=WT' in x for x in gaps[62]) else 48
        if i_ < 8: gaps[g - 1].append(f"s_add_u32 s{sT+1}, s{sWB}, {16384*r}")
        else: gaps[g - 2].append(f"s_lshl_b32 s{sT+1}, s{sWAVE}, 10"); gaps[g - 1].append(f"s_add_u32 s{sT+1}, s{sT+1}, 32768")
        gaps[g].append(f"buffer_store_dwordx4 {vr(WOF+4*i_,4)}, v{VLN}, s[{SWT}:{SWT+3}], s{sT+1} offen offset:{1024*tl if i_ < 8 else 0}{K2F[OPT.get('wtf', 2)]} ; tag=WT")
    if n == 14 and OPT.get('late'):
        place([f"PRE s_mov_b32 s{sT}, 0"] + k_dma(0, f"s{sT}") + v_dma(0, f"s{sT}") + [f"PRE s_mov_b32 s{sT}, 8192"] + k_dma(1, f"s{sT}") + v_dma(1, f"s{sT}"), 2, 5)
    if n in ((15, 16) if OPT.get('late') else (14, 16)):
        seq = []
        for t in range(2, 6):
            seq += [f"PRE s_add_u32 s{sT}, s{sKV}, {(t - 2) * 8192}"] + (k_dma if n < 16 else v_dma)(t, f"s{sT}")
        if n == 16: seq.append(f"s_add_u32 s{sKV}, s{sKV}, 32768")
        place(seq, 2, 5)
    if n == 17 and OPT.get('e67'):
        place(k_dma(6) + [f"PRE s_add_u32 s{sT}, s{sKV}, 8192"] + k_dma(7, f"s{sT}"), 4, 9)
        place(v_dma(6) + v_dma(7, f"s{sT}") + adv2(sT + 1), 47, 4)
    if OPT.get('awake') and n % 2 == 1 and 3 <= n <= 11:
        seq = []
        for t in range(OPT['awake']):
            seq += [f"PRE s_add_u32 s{sPF}, s{sPF}, 8192"] + k_dma(t % 2, f"s{sPF}") + v_dma(t % 2, f"s{sPF}")
        seq = [x.replace('tag=KV0', 'tag=DUM').replace('tag=KV1', 'tag=DUM') for x in seq]
        place(seq, 2, 40 // (4 * OPT['awake']))
    if OPT.get('awake') and n == 13:
        place([f"PRE s_mov_b32 s{sPF}, 0"] + k_dma(0, f"s{sPF}") + v_dma(0, f"s{sPF}") + [f"PRE s_mov_b32 s{sPF}, 8192"] + k_dma(1, f"s{sPF}") + v_dma(1, f"s{sPF}"), 2, 5)
    if n + 4 <= 17: place(w_dma(n + 4, nq), *((54, 3) if FSQ else (46, 5)))
    for i_ in range(OPT.get('qslow', 0)): gaps[2 + 2 * i_].append('v_nop\nv_nop\nv_nop\nv_nop\nv_nop\nv_nop')
    if fill is not None:
        for g in range(20 if n == 16 else 0, 64):
            if slots[g] is None: continue
            for _ in range(2):
                if fill: gaps[g].append(fill.pop(0))
    emit_slots(b, slots, gaps)
    if OPT.get('qstamps'): stamp(b)

def k_reads(unit, tile):
    out = []
    for kt in range(2):
        for s in range(4):
            f = 4 * kt + s
            out.append(f"ds_read_b128 {ar(AK+4*f,4)}, v{KA + s} offset:{unit * 8192 + kt * 4096} ; need=KV{tile}")
    return out

def v_reads(unit, tile):
    out = []
    for T in range(8):
        th, tl = T // 4, T % 4
        for a in range(2):
            out.append(f"ds_read_b64_tr_b16 {ar(AV+4*T+2*a,2)}, v{VA + T} offset:{unit * 8192 + a * 4096} ; need=KV{tile}")
    return out

import sched, sched2
LM = 1
for a_ in sys.argv[2:]:
    if a_.startswith('lm='): LM = int(a_[3:])
if LM:
    NS = 68
    V_GAPS = list(range(26, 42)); K_GAPS = list(range(50, 58)); D_GAPS = [3, 11, 17, 23]
    SM = sched2.schedule(V_GAPS + K_GAPS, D_GAPS)
    for a_ in sys.argv[2:]:
        if a_.startswith('dg='): D_GAPS = {1: [3, 7, 33, 38], 2: [4, 8, 34, 40], 3: [3, 8, 36, 56]}[int(a_[3:])]
else:
    NS = 64
    V_GAPS = list(range(25, 41)); K_GAPS = list(range(48, 56)); D_GAPS = [1, 9, 17, 23]
    SM = sched.schedule(4, V_GAPS + K_GAPS, D_GAPS)
BG = K_GAPS[0] - 1
LA = 108; ONES = 124
def sm_text(kind, q, e):
    s = S_ + 8 * q + e
    if kind == 'exp': return f"v_exp_f32 v{s}, v{s}"
    if kind == 'add': return f"v_add_f32 v{LS+q}, v{LS+q}, v{s}"
    return f"v_cvt_pk_bf16_f32 v{P_+4*q+e//2}, v{s-1}, v{s}"
def sm_items(nq, lo, hi):
    it = [(g, k[0] == 'exp', k) for k, g in SM.items() if k[1] < nq and lo <= g < hi]
    it.sort(key=lambda t: (t[0] % NS, t[1], -t[0]))
    return [(g, k) for g, _, k in it]

def qk(q, kt, s, czero=False):
    d = vr(S_ + 8 * q + 4 * kt, 4)
    c = d if s else ("0" if czero else vr(CI + 4 * q, 4))
    return f"{MF} {d}, {ar(AK+4*(4*kt+s),4)}, {ar(AQ(q)+4*s,4)}, {c}"

def pv(q, T, czero=False):
    d = vr(O_ + 32 * q + 4 * T, 4)
    return f"{MF} {d}, {ar(AV+4*T,4)}, {vr(P_+4*q,4)}, {'0' if czero else d}"

def lsm(q, czero=False):
    d = vr(LA + 4 * q, 4)
    return f"{MF} {d}, {vr(ONES,4)}, {vr(P_+4*q,4)}, {'0' if czero else d}"

SPINS = []
def attn_stage(b, k, nq, extra=None, fill=None, resume=False):
    kk = k % 32; u = k % 8
    if resume: kk = 0
    slots = []; gaps = [[] for _ in range(NS)]
    for q in (0, 1):
        for kt in range(2):
            for s in range(4): slots.append(qk(q, kt, s))
    for q in (2, 3):
        for T in range(8): slots.append(pv(q, T, kk == 1) if (q < nq and kk > 0) else None)
        if LM: slots.append(lsm(q, kk == 1) if (q < nq and kk > 0) else None)
    for q in (2, 3):
        for kt in range(2):
            for s in range(4): slots.append(qk(q, kt, s) if q < nq else None)
    for q in (0, 1):
        for T in range(8): slots.append(pv(q, T, kk == 0 and not resume))
        if LM: slots.append(lsm(q, kk == 0 and not resume))
    for g, key in sm_items(nq, 0, 2 * NS if kk > 0 else NS): gaps[g % NS].append(sm_text(*key))
    for g, x in zip(V_GAPS, v_reads(u, k)): gaps[g].append(x)
    DIST = 7 if OPT.get('d7') else OPT.get('dist', 5 if OPT.get('fsa') else 6)
    if DIST == 7 and k < 63:
        gaps[BG - 1].append(f"WAITV lgkmcnt(0) ; cover=KV{k+1}" + (",WT" if kk == 11 else ""))
        gaps[BG].append(f"s_barrier ; pub=KV{k+1}")
    elif k % 2 == 1 and k < 63 and OPT.get('fsa'):
        uid = f"{k}_{nq}"
        pg = OPT.get('fsp', 30); rg = OPT.get('fsr', 36)
        gaps[pg - 2].append(f"s_add_u32 s{sFV}, s{sFV}, 1")
        gaps[pg - 1].append(f"v_mov_b32 v{FQ}, s{sFV}") if pg - 1 >= 30 or pg < 26 else gaps[pg].append(f"v_mov_b32 v{FQ}, s{sFV}")
        gaps[pg + 1].insert(0, f"WAITV ; cover=KV{k+1},KV{k+2}" + (",WT" if kk == 11 else ""))
        gaps[pg + 1].append(f"ds_write_b32 v{VFA}, v{FQ} ; PUB")
        gaps[rg].append(f"ds_read_b128 {vr(FQ,4)}, v{VFB}")
        gaps[rg + 3].insert(0, "s_waitcnt lgkmcnt(2)")
        gaps[rg + 3].append(f"v_min3_u32 v{FQ}, v{FQ}, v{FQ+1}, v{FQ+2}")
        gaps[rg + 4].append(f"v_min_u32 v{FQ}, v{FQ}, v{FQ+3}")
        gaps[rg + 5].append(f"v_cmp_gt_u32 vcc, s{sFV}, v{FQ}")
        gaps[rg + 6].insert(0, f"s_cbranch_vccnz L_fs{uid}\nL_fr{uid}: ; SYNC pub=KV{k+1},KV{k+2}")
        gaps[BG].append("s_waitcnt lgkmcnt(0)")
        SPINS.append(uid)
    elif k % 2 == 1 and k < 63:
        gaps[BG - 1].append(f"WAITV lgkmcnt(0) ; cover=KV{k+1},KV{k+2}" + (",WT" if k == (39 if OPT.get('pz') else 11) else ""))
        gaps[BG].append(f"s_barrier ; pub=KV{k+1},KV{k+2}")
    else:
        gaps[BG].append("s_waitcnt lgkmcnt(0)")
    if k < 63:
        for g, x in zip(K_GAPS, k_reads((u + 1) % 8, k + 1)): gaps[g].append(x)
        gaps[NS - 1].append("s_waitcnt lgkmcnt(0)")
    FP = (OPT.get('fsa') or OPT.get('fp')) and OPT.get('pair')
    t0 = (k + 4 + k % 2) if FP else (k + DIST - (k % 2) if OPT.get('pair') else k + DIST)
    if t0 < 64 and not (OPT.get('e67') and t0 < 8) and not (OPT.get('sw2') and not OPT.get('noearly') and k in (32, 33)):
        if OPT.get('dw3'):
            isv = k % 2 == 0
            if nq == 3:
                live = [g for g in range(NS) if slots[g] or kk == 0]
                gs = iter([g for g in live if g >= 2][::3]); g = 0; pend = []
                for x in pair_dma3(isv, t0, 92):
                    if x.startswith("buffer_"):
                        g = next(gs)
                        gaps[g - 1 if g - 1 in live else g] += pend; pend = []
                        gaps[g].append(x)
                    else: pend.append(x)
                if isv:
                    gaps[min(g + 1, NS - 5)].append(f"s_add_u32 s{sKV}, s{sKV}, 16384")
                    gaps[0].append(f"s_waitcnt vmcnt({36 if 32 <= k < 40 else 44})")
        else:
            if OPT.get('pair'):
                isv = (k % 2 == 0) if FP else (k % 2 == 1)
                fn = v_dma if isv else k_dma
                kd, vd = fn(t0), fn(t0 + 1, f"s{sT}")
                gaps[D_GAPS[2] - 2].append(f"s_add_u32 s{sT}, s{sKV}, 8192")
                if isv:
                    for i_, x in enumerate(adv2(sT)): gaps[44 + i_].append(x)
            else:
                kd, vd = k_dma(k + DIST), v_dma(k + DIST)
                gaps[44] += kv_adv()
            gaps[D_GAPS[0] - 1].append(kd[0]); gaps[D_GAPS[2] - 1].append(vd[0])
            for x, g in zip(kd[1:] + vd[1:], D_GAPS): gaps[g].append(x)
    for i_ in range(OPT.get('slow', 0)): gaps[2 + 2 * i_].append('v_nop\nv_nop\nv_nop\nv_nop')
    if extra:
        for g, x in extra: gaps[g].append(x)
    if fill:
        cost = lambda x: 2 if x.startswith('v_exp') else (1 if x.startswith(('v_', 'ds_', 'buffer_')) else 0)
        room = [max(0, 2 - sum(cost(x) for x in gaps[g])) if slots[g] else 0 for g in range(NS)]
        left = len(fill) - sum(room)
        live = [g for g in range(NS) if slots[g]]
        for i_ in range(max(left, 0)): room[live[(i_ * len(live)) // left]] += 1
        for g in range(NS):
            for _ in range(room[g]):
                if fill: gaps[g].append(fill.pop(0))
        assert not fill
    for key, pre in (('nobar', ('s_barrier',)), ('nodma', ('buffer_load_dwordx4 v9',)), ('nolds', ('ds_read',)), ('noexp', ('v_exp',))):
        if OPT.get(key) and 8 <= k < 16: gaps = [[x if not x.startswith(pre) else 's_nop 0 ;' + x.split(';', 1)[-1] for x in g] for g in gaps]
    if OPT.get('astamps') and k % 2 == 0: stamp(b)
    if OPT.get('dmaonly'):
        slots = [None] * NS
        gaps = [[x for x in g if not x.startswith(('v_', 'ds_'))] for g in gaps]
    emit_slots(b, slots, gaps)

def xlane_reduce(b, reg, tmp, op):
    b(f"v_mov_b32 v{tmp}, v{reg}")
    b(f"v_permlane32_swap_b32 v{reg}, v{tmp}")
    b(f"{op} v{reg}, v{reg}, v{tmp}")
    b(f"v_mov_b32 v{tmp}, v{reg}")
    b(f"v_permlane16_swap_b32 v{reg}, v{tmp}")
    b(f"{op} v{reg}, v{reg}, v{tmp}")

def xlane_reduce_multi(b, regs, tmps, op):
    for sw in ("v_permlane32_swap_b32", "v_permlane16_swap_b32"):
        for r, t in zip(regs, tmps): b(f"v_mov_b32 v{t}, v{r}")
        for r, t in zip(regs, tmps): b(f"{sw} v{r}, v{t}")
        for r, t in zip(regs, tmps): b(f"{op} v{r}, v{r}, v{t}")

def stamp(b, idx=None):
    if OPT.get('fixat') and idx == OPT['fixat']: b("s_memrealtime s[72:73]\ns_waitcnt lgkmcnt(0)")
    if not OPT['stamps']: return
    b(f"s_memtime s[{sSTAMP}:{sSTAMP+1}]\ns_memrealtime s[{sSTAMP+2}:{sSTAMP+3}]\ns_waitcnt lgkmcnt(0)")
    b(f"s_mov_b32 s93, m0\ns_mov_b32 m0, s96\nv_writelane_b32 v14, s{sSTAMP}, m0\nv_writelane_b32 v15, s{sSTAMP+2}, m0\ns_mov_b32 m0, s93\ns_add_u32 s96, s96, 1")

def stamp_dump(b, k, wave):
    if not OPT['stamps']: return
    b("s_waitcnt vmcnt(0)")
    stamp(b)
    if OPT['stamps'] == 2:
        b("s_load_dwordx2 s[92:93], s[0:1], 88\ns_waitcnt lgkmcnt(0)")
        b(f"s_cmp_lg_u32 s{wave}, 0\ns_cbranch_scc1 L_end{k+1}\ns_lshr_b32 s94, s97, 3\ns_cmp_lg_u32 s94, 5\ns_cbranch_scc1 L_end{k+1}")
        b(f"s_add_u32 s88, s92, {OPT.get('dbgoff',0)*(1-k)}\ns_addc_u32 s89, s93, 0\ns_mov_b32 s90, 256\ns_mov_b32 s91, 0x20000")
        sel = [0, 2, 3, 5, 6, 7, 8, 9, 10, 11, 12]
        b("s_mov_b64 exec, 1")
        for i, ix in enumerate(sel):
            b(f"v_readlane_b32 s94, v15, {ix}\ns_nop 3")
            if i == 0 and k == 0: b("s_not_b32 s94, s94")
            b(f"v_mov_b32 v1, s94\nv_mov_b32 v2, {4*(i + 1)}\nbuffer_atomic_umax v1, v2, s[88:91], 0 offen")
        return
    b("s_getreg_b32 s94, hwreg(HW_REG_XCC_ID)\nv_writelane_b32 v14, s94, 63\nv_writelane_b32 v14, s65, 62\nv_writelane_b32 v14, s64, 61")
    b("s_load_dwordx2 s[92:93], s[0:1], 96\ns_waitcnt lgkmcnt(0)")
    b(f"s_add_u32 s88, s92, {(48+k)*1024*1024}\ns_addc_u32 s89, s93, 0\ns_mov_b32 s90, 0x100000\ns_mov_b32 s91, 0x20000")
    b(f"s_lshl_b32 s94, s97, 2\ns_add_u32 s94, s94, s{wave}\ns_lshl_b32 s94, s94, 9")
    b("v_and_b32 v1, 63, v0\nv_lshlrev_b32 v1, 3, v1")
    b("buffer_store_dwordx2 v[14:15], v1, s[88:91], s94 offen")

def persist_regs(b):
    lane = T0; t1 = T0 + 1; t2 = T0 + 2; t3 = T0 + 3; g_ = T0 + 4; ihi = T0 + 5; i8 = T0 + 6; i16 = T0 + 7; r_ = T0 + 8; c4 = T0 + 9
    b(f"""v_and_b32 v{lane}, 63, v0
    v_lshrrev_b32 v{g_}, 4, v{lane}
    v_lshrrev_b32 v{ihi}, 3, v{lane}
    v_and_b32 v{i8}, 7, v{lane}
    v_and_b32 v{i16}, 15, v{lane}
    v_lshrrev_b32 v{r_}, 2, v{i16}
    v_and_b32 v{c4}, 3, v{lane}
    v_lshlrev_b32 v{VLN}, 4, v{lane}
    s_add_u32 s71, s63, s{sWB}
    v_add_u32 v{VO}, s71, v{VLN}""")
    b(f"""s_lshl_b32 s70, s{sWAVE}, 11
    v_lshlrev_b32 v{t1}, 8, v{g_}
    v_add_u32 v{t1}, s70, v{t1}
    s_and_b32 s70, s{sWAVE}, 1
    s_lshl_b32 s70, s70, 3
    v_xor_b32 v{t2}, v{i16}, v{g_}
    v_xor_b32 v{t2}, s70, v{t2}
    v_lshl_add_u32 v{DK0}, v{t2}, 4, v{t1}
    v_xor_b32 v{DK1}, 64, v{DK0}
    v_lshlrev_b32 v{t2}, 1, v{g_}
    v_xor_b32 v{t3}, v{t2}, v{i16}
    v_lshl_add_u32 v{DV0}, v{t3}, 4, v{t1}
    v_xor_b32 v{DV1}, 128, v{DV0}""")
    b(f"""v_mul_u32_u24 v{t1}, 1152, v{ihi}
    v_lshl_add_u32 v{t1}, v{i8}, 4, v{t1}
    s_lshl_b32 s70, s{sWAVE}, 7
    v_add_u32 v{VWO}, s70, v{t1}
    v_lshrrev_b32 v{t1}, 1, v{lane}
    v_mul_u32_u24 v{t1}, 1152, v{t1}
    v_and_b32 v{t2}, 1, v{lane}
    v_lshl_add_u32 v{t1}, v{t2}, 4, v{t1}
    s_lshl_b32 s70, s{sWAVE}, 5
    s_add_u32 s70, s70, 1024
    v_add_u32 v{VWX}, s70, v{t1}""")
    b(f"""v_xor_b32 v{t2}, v{g_}, v{i16}
    v_lshlrev_b32 v{t2}, 4, v{t2}
    v_lshl_add_u32 v{KA}, v{i16}, 8, v{t2}""")
    for s_ in range(1, 4): b(f"v_xor_b32 v{KA+s_}, {64*s_}, v{KA}")
    b(f"""v_lshl_add_u32 v{t2}, v{g_}, 2, v{r_}
    v_lshlrev_b32 v{t1}, 8, v{t2}
    v_and_b32 v{t2}, 7, v{t2}
    v_lshl_add_u32 v{t1}, v{t2}, 5, v{t1}
    v_lshl_add_u32 v{t1}, v{c4}, 3, v{t1}
    v_add_u32 v{VA}, 0x10000, v{t1}""")
    for T in range(1, 8): b(f"v_xor_b32 v{VA+T}, {32*T}, v{VA}")
    b(f"v_lshrrev_b32 v74, 2, v{lane}\nv_lshlrev_b32 v74, 7, v74\nv_lshl_add_u32 v74, s{sWAVE}, 11, v74")
    b(f"""v_lshl_add_u32 v{t2}, v{g_}, 2, v{r_}
    v_lshlrev_b32 v{t1}, 7, v{t2}
    v_lshl_add_u32 v{t1}, v{c4}, 3, v{t1}
    s_lshr_b32 s70, s{sWAVE}, 1
    s_lshl_b32 s70, s70, 16
    s_and_b32 s71, s{sWAVE}, 1
    s_lshl_b32 s{sWOS}, s71, 13
    s_add_u32 s{sWOS}, s{sWOS}, s70
    s_lshl_b32 s{sWTS}, s71, 10
    s_add_u32 s{sWTS}, s{sWTS}, s70
    s_add_u32 s{sWTS}, s{sWTS}, 47104
    {f"s_lshl_b32 s{sWTS}, s{sWAVE}, 10" if OPT.get('fsq') else ""}
    {f"s_add_u32 s{sWTS}, s{sWTS}, 147456" if OPT.get('fsq') else ""}
    v_add_u32 v{VWA}, s{sWOS}, v{t1}
    v_lshlrev_b32 v{t1}, 3, v{lane}
    v_add_u32 v{VWE}, s{sWTS}, v{t1}""")

def late_setup(b, sfx):
    b(f"""s_lshl_b32 s71, s68, 4
    s_add_u32 s71, s71, s69
    s_lshl_b32 s70, s71, 19
    s_add_u32 s{SK}, s50, s70
    s_addc_u32 s{SK+1}, s51, 0
    s_mov_b32 s{SK+2}, 524288
    s_mov_b32 s{SK+3}, 0x20000
    s_add_u32 s{SV}, s52, s70
    s_addc_u32 s{SV+1}, s53, 0
    s_mov_b32 s{SV+2}, 524288
    s_mov_b32 s{SV+3}, 0x20000
    s_mul_i32 s70, s3, {O_BLK}
    s_add_u32 s{SO}, s100, s70
    s_addc_u32 s{SO+1}, s101, 0
    s_mov_b32 s{SO+2}, {O_BLK}
    s_mov_b32 s{SO+3}, 0x20000
    s_mul_i32 s70, s71, 36864
    s_add_u32 s{SWO}, s56, s70
    s_addc_u32 s{SWO+1}, s57, 0
    s_mov_b32 s{SWO+2}, 36864
    s_mov_b32 s{SWO+3}, 0x20000
    s_mul_i32 s71, s3, {WOT_BLK}
    s_add_u32 s70, s70, s71
    s_add_u32 s70, s70, {WOT_OFF}
    s_add_u32 s{SWT}, s100, s70
    s_addc_u32 s{SWT+1}, s101, 0
    s_mov_b32 s{SWT+2}, 36864
    s_mov_b32 s{SWT+3}, 0x20000
    s_mul_i32 s62, s69, {8*122880}
    s_mul_i32 s63, s68, 15360        ; b*15*1024
    s_add_u32 s{SCN}, s100, {CNT_OFF}
    s_addc_u32 s{SCN+1}, s101, 0
    s_mov_b32 s{SCN+2}, 24576
    s_mov_b32 s{SCN+3}, 0x20000
    s_mov_b64 s[{SDB}:{SDB+1}], s[78:79]
    s_mov_b32 s{SDB+2}, 256
    s_mov_b32 s{SDB+3}, 0x20000
    s_mov_b64 s[{SIN}:{SIN+1}], s[{SCN}:{SCN+1}]
    s_mov_b32 s{SIN+3}, 0x20000
    s_mov_b64 s[{SIF}:{SIF+1}], s[78:79]
    s_mov_b32 s{SIF+3}, 0x20000
    s_lshl_b32 s70, s3, 3
    s_add_u32 s70, s70, s68
    s_lshl_b32 s{sCO}, s70, 2
    s_lshr_b32 s71, s69, 2
    s_add_u32 s{sCO}, s{sCO}, s71
    s_lshl_b32 s{sCO}, s{sCO}, 7
    s_lshr_b32 s{sCW}, s70, 1
    s_lshl_b32 s{sCW}, s{sCW}, 7
    s_add_u32 s{sCW}, s{sCW}, 8192
    s_and_b32 s70, s97, 1
    s_mul_i32 s70, s70, {30 + OPT.get('bal', 0)}
    s_add_u32 s2, s2, s70              ; tile number inside the pair of workgroup classes (0..59 real)
    s_cmp_eq_u32 s70, 0
    s_cselect_b32 s71, {30 + OPT.get('bal', 0)}, 60
    s_cmp_ge_u32 s2, s71
    s_cselect_b32 s{sIDLE}, 1, 0       ; no output tile for this workgroup
    s_mul_i32 s68, s2, 43
    s_lshr_b32 s68, s68, 8
    s_mul_i32 s69, s68, 6
    s_sub_u32 s69, s2, s69             ; nt
    s_bfe_u32 s70, s97, 0x10001
    s_mul_i32 s70, s70, 10
    s_add_u32 s68, s68, s70            ; mt
    s_mul_i32 s92, s69, {OPT.get('krot', 0)}
    s_add_u32 s92, s92, s68
    s_and_b32 s92, s92, 3""")
    if OPT.get('s2t'):
        b(f"""s_lshr_b32 s2, s97, 3
        s_mul_i32 s68, s2, 86
        s_lshr_b32 s68, s68, 8
        s_mul_i32 s69, s68, 3
        s_sub_u32 s69, s2, s69
        s_and_b32 s70, s97, 1
        s_mul_i32 s70, s70, 3
        s_add_u32 s69, s69, s70
        s_bfe_u32 s70, s97, 0x10001
        s_mul_i32 s70, s70, 10
        s_add_u32 s68, s68, s70""")
        if OPT['s2t'] >= 2:
            b(f"""s_and_b32 s92, s68, 1
            s_lshl_b32 s92, s92, 1
            s_lshr_b32 s70, s{sWAVE}, 1
            s_add_u32 s92, s92, s70
            s_and_b32 s68, s68, 30
            s_and_b32 s70, s{sWAVE}, 1
            s_add_u32 s68, s68, s70""")
        else: b(f"s_mov_b32 s92, s{sWAVE}")
    KQ = 92 if OPT.get('s2t') else sWAVE
    b(f"""
    s_mul_i32 s79, s68, 103
    s_lshr_b32 s79, s79, 8
    s_mul_i32 s78, s68, 96
    s_add_u32 s78, s78, 95
    s_mul_i32 s78, s78, 4370
    s_lshr_b32 s78, s78, 20
    s_lshl_b32 s70, s3, 3
    s_add_u32 s78, s78, s70
    s_add_u32 s79, s79, s70
    s_lshl_b32 s78, s78, 2
    s_lshl_b32 s79, s79, 2
    s_add_u32 s78, s78, s{KQ}
    s_add_u32 s79, s79, s{KQ}
    s_lshl_b32 s78, s78, 7
    s_lshl_b32 s79, s79, 7
    s_mul_i32 s70, s3, {O_BLK}
    s_mul_i32 s71, s68, 6144
    s_add_u32 s70, s70, s71
    s_add_u32 s{SO2}, s100, s70
    s_addc_u32 s{SO2+1}, s101, 0
    s_sub_u32 s{SO2+2}, {O_BLK}, s71
    s_mov_b32 s{SO2+3}, 0x20000
    s_mul_i32 s70, s3, {WOT_BLK}
    s_mul_i32 s71, s69, 6144
    s_add_u32 s70, s70, s71
    s_add_u32 s70, s70, {WOT_OFF}
    s_add_u32 s{SW2}, s100, s70
    s_addc_u32 s{SW2+1}, s101, 0
    s_sub_u32 s{SW2+2}, {WOT_BLK}, s71
    s_mov_b32 s{SW2+3}, 0x20000
    s_cmp_eq_u32 s{sIDLE}, 1
    s_cselect_b32 s{SO2+2}, 0, s{SO2+2}   ; workgroups without an output tile load nothing
    s_cselect_b32 s{SW2+2}, 0, s{SW2+2}
    s_mov_b32 s100, s{SO2+2}
    s_mov_b32 s101, s{SW2+2}
    s_lshr_b32 s70, s{sWAVE}, 1
    s_mul_i32 s70, s70, {48*2304}
    s_mul_i32 s{sOUTO}, s68, {96*2304}
    s_add_u32 s{sOUTO}, s{sOUTO}, s70
    s_mul_i32 s70, s3, 1152
    s_add_u32 s{sOUTO}, s{sOUTO}, s70
    s_mul_i32 s70, s69, 192
    s_add_u32 s{sOUTO}, s{sOUTO}, s70
    s_and_b32 s70, s{sWAVE}, 1
    s_mul_i32 s70, s70, 96
    s_add_u32 s{sOUTO}, s{sOUTO}, s70
    s_lshl_b32 s70, s3, 2
    s_add_u32 s70, s70, s{KQ}
    s_lshl_b32 s70, s70, 7
    s_add_u32 s70, s70, 8192
    v_and_b32 v1, 1, v0
    v_mov_b32 v{VP2}, s78
    v_mov_b32 v2, s79
    v_cmp_eq_u32 vcc, 1, v1
    v_and_b32 v1, 2, v0
    v_mov_b32 v3, s70
    v_cndmask_b32 v{VP2}, v{VP2}, v2, vcc
    v_cmp_eq_u32 vcc, 2, v1
    v_add_u32 v{VPE}, 16384, v{VP2}
    v_mov_b32 v{VTH}, 4
    v_cndmask_b32 v{VPE}, v{VPE}, v3, vcc
    v_mov_b32 v3, 32
    v_cndmask_b32 v{VTH}, v{VTH}, v3, vcc
    s_mov_b32 s{sSIG}, 0""")
    b(f"L_late{sfx}:")
    b(f"""s_or_b32 s70, s97, s{sSAFE}
    s_cmp_eq_u32 s70, 0
    s_cselect_b32 s{SIN+2}, 24576, 0   ; only workgroup 0 (first pass) really initialises the counters
    s_cselect_b32 s{SIF+2}, 4, 0
    s_mov_b32 s{sOO}, s62
    s_mov_b32 s{sLATE}, 0
    s_mov_b32 s{SO2+2}, s100
    s_mov_b32 s{SW2+2}, s101
    {p2_init()}
    s_lshr_b32 s{sRT}, s97, {OPT.get('rsh', 3)}
    s_mul_i32 s{sRT}, s{sRT}, {OPT.get('rot', 0) or 1}
    s_mul_i32 s70, s{sRT}, 5042
    s_lshr_b32 s70, s70, 16
    s_mul_i32 s70, s70, 13
    s_sub_u32 s{sRT}, s{sRT}, s70
    s_lshl_b32 s{sRT}, s{sRT}, 14
    s_lshl_b32 s{sKB}, s{sWAVE}, 11""")

def warm_base(b):
    b("""s_getpc_b64 s[94:95]
    L_pc:
    s_sub_u32 s94, s94, L_pc-attn_kernel
    s_subb_u32 s95, s95, 0""")

def warm_addr(b):
    b("""v_mul_u32_u24 v76, 40, v0
    v_lshrrev_b32 v76, 8, v76
    s_lshr_b32 s70, s97, 3
    s_mul_i32 s70, s70, 40
    v_add_u32 v76, s70, v76
    v_lshlrev_b32 v76, 7, v76
    v_min_u32 v76, L_codeend-attn_kernel-4, v76
    v_mov_b32 v77, s95
    v_add_co_u32 v76, vcc, s94, v76
    v_addc_co_u32 v77, vcc, 0, v77, vcc""")

def warm_code(b):
    warm_base(b); warm_addr(b)
    if OPT.get('warm'): b("global_load_dword v4, v[76:77], off")

def prologue_a(b):
    lane = T0; t1 = T0 + 1; t2 = T0 + 2; t3 = T0 + 3; g_ = T0 + 4; ihi = T0 + 5; i8 = T0 + 6
    b(f"""v_and_b32 v{lane}, 63, v0
    v_lshrrev_b32 v{g_}, 4, v{lane}
    v_lshrrev_b32 v{ihi}, 3, v{lane}
    v_and_b32 v{i8}, 7, v{lane}""")
    b(f"s_lshl_b32 s{sT}, s{sWAVE}, 6")
    b(f"v_add_u32 v{t1}, s{sT}, v{ihi}")
    b(f"v_mul_u32_u24 v{t1}, 1152, v{t1}")
    for j in range(4):
        b(f"v_xor_b32 v{t2}, {4*(j%2)}, v{g_}")
        b(f"v_xor_b32 v{t2}, v{t2}, v{i8}")
        b(f"v_lshl_add_u32 v{t2}, v{t2}, 4, v{t1}")
        b(f"v_add_u32 v{DX+j}, {8*j*1152 - 1024*j}, v{t2}")
    b(f"""s_and_b32 s{sT}, s{sWAVE}, 1
    s_lshl_b32 s{sT}, s{sT}, 18
    s_lshr_b32 s{sT+1}, s{sWAVE}, 1
    s_lshl_b32 s{sT+1}, s{sT+1}, 7
    s_add_u32 s{sT}, s{sT}, s{sT+1}
    v_lshlrev_b32 v{t1}, 13, v{ihi}
    v_add_u32 v{t1}, s{sT}, v{t1}
    v_lshrrev_b32 v{t2}, 2, v{i8}
    v_xor_b32 v{t2}, v{t2}, v{g_}
    v_and_b32 v{t2}, 1, v{t2}
    v_lshl_add_u32 v{t1}, v{t2}, 6, v{t1}
    v_and_b32 v{t2}, 3, v{i8}
    v_lshl_add_u32 v{t1}, v{t2}, 4, v{t1}""")
    for j in range(4): b(f"v_add_u32 v{DW+j}, {8*j*8192 - 1024*j}, v{t1}")
    b(f"""s_mov_b32 s{sXO}, 0
    s_mov_b32 s{sXO2}, 36864
    s_mov_b32 s{sWOFF}, 0
    s_mov_b32 s{sKV}, 0
    s_mov_b32 s{sHEAD}, 0""")
    if OPT.get('qrot'):
        if OPT['qrot'] == 10:
            b(f"s_lshr_b32 s{sT}, s97, 5\ns_lshr_b32 s{sT+1}, s97, 3\ns_xor_b32 s{sT}, s{sT}, s{sT+1}\ns_and_b32 s{sT}, s{sT}, 1\ns_mul_i32 s{sT}, s{sT}, {OPT.get('qro', 4)}")
        elif OPT['qrot'] == 11:
            b(f"s_lshr_b32 s{sT}, s97, 5\ns_bfe_u32 s{sT+1}, s97, 0x20003\ns_add_u32 s{sT}, s{sT}, s{sT+1}\ns_mul_i32 s{sT+1}, s{sT}, 86\ns_lshr_b32 s{sT+1}, s{sT+1}, 8\ns_mul_i32 s{sT+1}, s{sT+1}, 3\ns_sub_u32 s{sT}, s{sT}, s{sT+1}\ns_mul_i32 s{sT}, s{sT}, 3")
        else:
            b(f"""s_lshr_b32 s{sT}, s97, 5
            s_bfe_u32 s{sT+1}, s97, 0x20003
            s_mul_i32 s{sT+1}, s{sT+1}, {OPT['qrot']}
            s_add_u32 s{sT}, s{sT}, s{sT+1}
            s_sub_u32 s{sT+1}, s{sT}, 9
            s_cselect_b32 s{sT}, s{sT}, s{sT+1}""")
        b(f"""
        s_lshl_b32 s{sXO}, s{sT}, 7
        s_add_u32 s{sXO2}, s{sXO}, 36864
        s_lshl_b32 s{sWOFF}, s{sT}, 19""")

def prologue_b(b):
    lane = T0; t1 = T0 + 1; t2 = T0 + 2; t3 = T0 + 3; g_ = T0 + 4; ihi = T0 + 5; i8 = T0 + 6
    if OPT.get('sstamps'): stamp(b)
    b.ext(x_dma(0, 4)); b.ext(w_dma(0, 4))
    if OPT.get('ord') == 1: b.ext(w_dma(1, 4)); b.ext(x_dma(1, 4))
    if OPT.get('ord') == 2: b.ext(w_dma(1, 4))
    if OPT.get('sstamps'): stamp(b)
    if OPT.get('xw'):
        pf = K2F[OPT.get('xwf', 0)]
        b(f"""s_lshr_b32 s70, s2, 2
        s_mul_i32 s70, s70, 270
        s_mul_i32 s71, s{sWAVE}, 68
        s_add_u32 s70, s70, s71
        s_lshl_b32 s70, s70, 7
        v_lshlrev_b32 v5, 7, v{lane}
        buffer_load_dword v6, v5, s[{SX}:{SX+3}], s70 offen{pf}
        s_and_b32 s70, s2, 3
        s_lshl_b32 s70, s70, 2
        s_add_u32 s70, s70, s{sWAVE}
        s_lshl_b32 s70, s70, 13
        v_lshrrev_b32 v5, 2, v{lane}
        v_lshlrev_b32 v5, 17, v5
        v_and_b32 v7, 3, v{lane}
        v_lshl_add_u32 v5, v7, 7, v5
        buffer_load_dword v6, v5, s[{SW}:{SW+3}], s70 offen{pf}
        s_add_u32 s70, s70, {256*8192}
        buffer_load_dword v6, v5, s[{SW}:{SW+3}], s70 offen{pf}
        s_add_u32 s70, s70, {256*8192}
        buffer_load_dword v6, v5, s[{SW}:{SW+3}], s70 offen{pf}""")
    late_setup(b, "")
    if OPT.get('tlb'):
        for srd in (SK, SV, SWO): b(f"buffer_load_dword v1, off, s[{srd}:{srd+3}], 0 nt")
        if OPT['tlb'] > 1:
            b(f"s_mov_b64 exec, 1\nbuffer_store_dword v1, off, s[{SWT}:{SWT+3}], s{sWB} sc1\ns_mov_b64 exec, -1")
    persist_regs(b)
    b(f"""v_mov_b32 v{VONE}, 1
    s_and_b32 s70, s{sWAVE}, 1
    s_mul_i32 s70, s70, 3072
    s_sub_u32 s71, 3072, s70
    v_add_u32 v{VPW}, s70, v{VLN}
    v_add_u32 v{VPW+1}, s71, v{VLN}
    s_lshr_b32 s70, s{sWAVE}, 1
    s_mul_i32 s70, s70, 3072
    s_sub_u32 s71, 3072, s70
    v_add_u32 v{VPO}, s70, v{VLN}
    v_add_u32 v{VPO+1}, s71, v{VLN}""")
    i16 = T0 + 7; r_ = T0 + 8; c4 = T0 + 9
    b(f"""v_and_b32 v{i16}, 15, v{lane}
    v_lshrrev_b32 v{r_}, 2, v{i16}
    v_and_b32 v{c4}, 3, v{lane}
    v_lshlrev_b32 v{t1}, 7, v{i16}
    v_add_u32 v{t1}, s{sXB}, v{t1}
    v_add_u32 v{t1}, 16384, v{t1}
    v_lshrrev_b32 v{t3}, 1, v{i16}""")
    for s in range(2):
        b(f"v_xor_b32 v{t2}, {4*s}, v{g_}")
        b(f"v_xor_b32 v{t2}, v{t2}, v{t3}")
        b(f"v_lshl_add_u32 v{XA+s}, v{t2}, 4, v{t1}\nv_add_u32 v{XA+2+s}, 65536, v{XA+s}")
    b(f"""v_lshl_add_u32 v{t1}, v{g_}, 3, v{r_}
    v_lshlrev_b32 v{t1}, 7, v{t1}
    v_lshl_add_u32 v{t1}, v{c4}, 4, v{t1}
    v_add_u32 v{t1}, 49152, v{t1}
    v_lshrrev_b32 v{t3}, 1, v{r_}""")
    if OPT.get('wnc'): b(f"v_and_b32 v{t2}, 1, v{g_}\nv_lshl_add_u32 v{t1}, v{t2}, 3, v{t1}")
    for sp in range(2):
        b(f"v_xor_b32 v{t2}, {sp}, v{t3}")
        b(f"v_lshl_add_u32 v{WA+sp}, v{t2}, 6, v{t1}\nv_add_u32 v{WA+2+sp}, 65536, v{WA+sp}")
    if OPT.get('sstamps'): stamp(b)
    if not OPT.get('ord'): b.ext(w_dma(1, 4))
    if OPT.get('ord') != 1: b.ext(x_dma(1, 4))

def wave_code(b, nq, sfx):
    nx = 8 if nq == 4 else 6
    b(f"L_begin{sfx}:")
    if nq == 3:
        b(f"v_mov_b32 v{VHS}, 0\nv_lshlrev_b32 v{VCW}, 3, v{VLN}")
        b(f"buffer_store_dword v{VHS}, v{VCW}, s[{SIN}:{SIN+3}], 0 offen sc1 ; tag=INIT")
        b(f"s_mov_b32 s{sT}, 8192\nbuffer_store_dword v{VHS}, v{VCW}, s[{SIN}:{SIN+3}], s{sT} offen sc1 ; tag=INIT")
        b(f"s_mov_b32 s{sT}, 16384\nbuffer_store_dword v{VHS}, v{VCW}, s[{SIN}:{SIN+3}], s{sT} offen sc1 ; tag=INIT")
    stamp(b, 0)
    if OPT.get('fsq'):
        b(f"s_mov_b32 s{sFQ}, 0\nv_mov_b32 v{QFB}, {QFLAGS}\nv_lshl_add_u32 v{QFA}, s{sWAVE}, 2, v{QFB}")
    b("WAITV ; cover=X0,W0")
    b("s_barrier ; pub=X0,W0")
    b.ext(x_reads(0, nq))
    for T in (0, 1): b.ext(w_reads(0, T))
    b.ext(w_reads(0, 2)[:3])
    b("WAITL W0.0")
    stamp(b, 1)
    for n in range(0, 12): qproj_stage(b, n, nq)
    fill = []; post = []
    for sp in range(4):
        for q in range(nq):
            rs = [128 + 32 * q + 8 * sp + 2 * i_ for i_ in range(4)]
            for r in rs: fill += [f"v_mul_f32 v{r}, s{sC}, v{r}", f"v_mul_f32 v{r+1}, s{sC}, v{r+1}"]
            for r in rs: fill.append(f"v_cvt_pk_bf16_f32 v{r}, v{r}, v{r+1}")
            for i_, r in enumerate(rs): fill.append(f"v_accvgpr_write_b32 a{AQ(q) + 4*sp + i_}, v{r}")
    for n in range(12, 18): qproj_stage(b, n, nq, fill if n >= 16 else None)
    stamp(b, 2)
    conv2 = []
    for q in range(nq):
        for h in range(8):
            r = 128 + 32 * q + 4 * h
            conv2 += [f"v_accvgpr_read_b32 v{4+i_}, a{r+i_}" for i_ in range(4)]
            conv2 += [f"v_mul_f32 v{4+i_}, s{sC}, v{4+i_}" for i_ in range(4)]
            conv2 += ["v_cvt_pk_bf16_f32 v4, v4, v5", "v_cvt_pk_bf16_f32 v6, v6, v7",
                      f"v_accvgpr_write_b32 a{AQ2(q)+2*h}, v4", f"v_accvgpr_write_b32 a{AQ2(q)+2*h+1}, v6"]
    def pre_mfma(): return [qk(q, 0, s_, czero=True) for q in range(nq) for s_ in range(4)]
    def pre_max():
        t = B()
        for q in range(nq):
            s_ = S_ + 8 * q
            t(f"v_max3_f32 v{s_}, v{s_}, v{s_+1}, v{s_+2}")
        for q in range(nq):
            s_ = S_ + 8 * q
            t(f"v_max_f32 v{s_}, v{s_}, v{s_+3}")
        xlane_reduce_multi(t, [S_ + 8 * q for q in range(nq)], [T0 + q for q in range(nq)], "v_max_f32")
        for q in range(nq):
            for r in range(4): t(f"v_sub_f32 v{CI+4*q+r}, 0, v{S_+8*q}")
        return t.L
    def weave(mf, st, per):
        for x in mf:
            b(x)
            for _ in range(per):
                if st: b(st.pop(0))
    def zipper(a_, b_, ra, rb):
        out = []
        while a_ or b_:
            for _ in range(ra):
                if a_: out.append(a_.pop(0))
            for _ in range(rb):
                if b_: out.append(b_.pop(0))
        return out
    b.ext(k_reads(0, 0))
    b.ext(fill)
    b(f"v_and_b32 v4, 3, v0\nv_mov_b32 v5, 0x3f803f80\nv_cmp_eq_u32 vcc, 0, v4")
    for i_ in range(4): b(f"v_cndmask_b32 v{ONES+i_}, 0, v5, vcc")
    b("s_waitcnt lgkmcnt(0)")
    if OPT.get('wts'):
        mv = [f"v_mov_b32 v{192+i_}, v{WOF+i_}" for i_ in range(36)]
        b.ext(mv[:8])
        mv = mv[8:]
        weave(pre_mfma()[:8], mv, 4)
        b.ext(mv); b.ext(pre_mfma()[8:])
    else: b.ext(pre_mfma())
    b.ext(pre_max())
    stamp(b, 3)
    for i_ in range(OPT.get('pause', 0)): b('s_sleep 32')
    if OPT.get('skew'):
        b(f"s_lshr_b32 s{sT}, s97, 3\ns_and_b32 s{sT}, s{sT}, 7\nL_skew{sfx}:\ns_cmp_eq_u32 s{sT}, 0\ns_cbranch_scc1 L_skewd{sfx}\ns_sleep {OPT['skew']}\ns_sub_u32 s{sT}, s{sT}, 1\ns_branch L_skew{sfx}\nL_skewd{sfx}:")
    adv8 = lambda x: x
    def head_start(hd):
        b(f"s_cmp_lg_u32 s{sSAFE}, 0\ns_cbranch_scc1 L_maxpass{sfx}\nL_maxdone{hd}{sfx}:")
        if not LM:
            for q in range(nq): b(f"v_mov_b32 v{LS+q}, 0")
        stamp(b)
    if OPT.get('wtp') == 2 and nq == 3: b("WAITV ; cover=WT\nbuffer_wbl2 sc1 ; tag=WT")
    if OPT.get('pz'): b(f"s_mov_b32 s{sPW}, 99\ns_mov_b32 s{sPZ}, 0")
    if OPT.get('pz') and nq == 3: b(f"v_bfe_u32 v{VPA}, v0, 2, 2\nv_xor_b32 v{VPA}, 3, v{VPA}\nv_lshlrev_b32 v{VPA}, 7, v{VPA}\nv_sub_u32 v{VPA}, v{VPE}, v{VPA}")
    if OPT.get('dw3') and nq == 3:
        b(f"""v_subrev_u32 v{DK2}, 6144, v{DK0}
        v_subrev_u32 v{DK3}, 6144, v{DK1}
        v_xor_b32 v{DKA}, 128, v{DK2}
        v_xor_b32 v{DKB}, 128, v{DK3}
        v_subrev_u32 v{DVA}, 6144, v{DV0}
        v_subrev_u32 v{DVB}, 6144, v{DV1}""")
    head_start(0)
    per = -(-len(conv2) // 8); tot_ = len(conv2)
    for k in range(8):
        ex = []
        if k <= 1 and OPT.get('wts'):
            for i_ in range(8 if OPT.get('fsq') else 9):
                g = 2 + 7 * i_
                if OPT.get('wtl'): g = (38, 44, 50, 56, 62, 70, 74, 78, 84)[i_]
                if g // NS != k: continue
                g %= NS
                if i_ < 8: ex.append((g - 1, f"s_add_u32 s{sT+1}, s{sWB}, {16384*(i_//4)}"))
                else: ex += [(g - 2, f"s_lshl_b32 s{sT+1}, s{sWAVE}, 10"), (g - 1, f"s_add_u32 s{sT+1}, s{sT+1}, 32768")]
                ex.append((g, f"buffer_store_dwordx4 {vr(192+4*i_,4)}, v{VLN}, s[{SWT}:{SWT+3}], s{sT+1} offen offset:{1024*(i_%4) if i_ < 8 else 0}{K2F[OPT.get('wtf', 2)]} ; tag=WT"))
        if OPT.get('fsq'):
            A9 = 192 if nq == 4 else 224
            if k == 1: ex += [(5, f"s_mov_b32 m0, s{sWTS}"), (6, dma(VWX, SWO, "0", 0, fl('nt_wo'), "W9X"))]
            if k == 6: ex += [(3, "WAITV ; cover=W9X"), (4, f"ds_read_b64_tr_b16 {ar(A9,2)}, v{VWE} offset:0"), (5, f"ds_read_b64_tr_b16 {ar(A9+2,2)}, v{VWE} offset:512")]
            if k == 7: ex += [(4, f"s_lshl_b32 s{sT+1}, s{sWAVE}, 10"), (5, f"s_add_u32 s{sT+1}, s{sT+1}, 32768"),
                              (25, f"buffer_store_dwordx4 {ar(A9,4)}, v{VLN}, s[{SWT}:{SWT+3}], s{sT+1} offen sc1 ; tag=WT")]
        if k == 6 and nq == 3:
            ex += [(46, "WAITV ; cover=HS"), (47, f"v_readfirstlane_b32 s{sT}, v{VHS}\ns_cmp_eq_u32 s{sT}, 0\ns_cbranch_scc1 L_hspin\nL_hsok:")]
        cnt_ = per
        if OPT.get('front'): cnt_ = -(-tot_ * {1: (8, 8, 7, 7, 6, 5, 4, 3), 2: (3, 4, 5, 6, 7, 7, 8, 8), 3: (12, 12, 12, 12, 0, 0, 0, 0)}[OPT['front']][k] // 48)
        attn_stage(b, k, nq, ex, fill=[conv2.pop(0) for _ in range(min(cnt_, len(conv2)))])
    b(f"L_atin{sfx}:")
    b(f"s_mov_b32 s{sCNT}, 0")
    b(f".p2align 3\nL_at{sfx}:")
    b("LOOPBEGIN at 3 8")
    for k in range(8, 16):
        ex = []
        if k == 11 and nq == 3 and not OPT.get('pz'):
            ex = [(59, f"""s_xor_b32 s{sT+1}, s{sHEAD}, 1
            s_or_b32 s{sT}, s{sCNT}, s{sT+1}
            s_cbranch_scc0 L_sig
            L_nosig:""")]
        if OPT.get('pz') and nq == 3:
            if k == 11: ex = [(58, f"s_cmp_eq_u32 s{sPW}, 99"), (60, f"s_cbranch_scc1 L_nop3\nbuffer_load_dword v{VCW}, v{VPA}, s[{SCN}:{SCN+3}], 0 offen sc1 ; cond\nL_nop3:")]
            if k == 13: ex = [(BG + 1, f"s_getreg_b32 s{sST}, hwreg(HW_REG_IB_STS)")]
            if k == 15:
                ex = [(BG - 1, f"""v_cmp_gt_u32 vcc, v{VTH}, v{VCW}
                v_mov_b32 v5, {DEC}
                s_and_b32 s{sT}, s{sST}, 15
                s_lshr_b32 s{sT+1}, s{sST}, 30
                s_lshl_b32 s{sT+1}, s{sT+1}, 4
                s_or_b32 s{sT}, s{sT}, s{sT+1}
                s_cmp_ge_u32 s{sT}, {OPT.get('pzt', 0)}
                s_cselect_b32 s{sT}, 1, 0
                s_cmp_eq_u64 vcc, 0
                s_cselect_b32 s{sT}, s{sT}, 0
                v_mov_b32 v4, s{sT}
                ds_write_b32 v5, v4
                s_waitcnt lgkmcnt(0)""")]
        if k == 9 and OPT.get('pz'): b(f"L_at1{sfx}:")
        if k == 15:
            if OPT.get('pz'): ex += [(NS - 4, f"s_add_u32 s{sCNT}, s{sCNT}, 1"), (NS - 2, f"s_cmp_ge_u32 s{sCNT}, s{sPW}")]
            else: ex += [(NS - 6, f"s_add_u32 s{sCNT}, s{sCNT}, 1"), (NS - 4, f"s_add_u32 s{sT}, s{sCNT}, s{sHEAD}"), (NS - 2, f"s_cmp_lt_u32 s{sT}, 3")]
        attn_stage(b, k, nq, ex)
    if OPT.get('pz'): b(f"s_cbranch_scc1 L_pchk{sfx}\nL_pret{sfx}:\ns_add_u32 s{sT}, s{sCNT}, s{sHEAD}\ns_cmp_lt_u32 s{sT}, 3")
    if OPT.get('midgap'):
        b(f"s_cselect_b32 s{sT+1}, 1, 0\ns_lshl_b32 s{sT}, s{sHEAD}, 4\ns_add_u32 s{sT}, s{sT}, s{sCNT}\ns_cmp_eq_u32 s{sT}, {OPT.get('midat', 1)}\ns_cbranch_scc0 L_ng{sfx}")
        for i_ in range(OPT['midgap']): b("s_sleep 16")
        b(f"L_ng{sfx}:\ns_cmp_eq_u32 s{sT+1}, 1")
    b(f"s_cbranch_scc1 L_at{sfx}")
    b("LOOPEND at")
    b(f"L_atx{sfx}:")
    b(f"s_cmp_lg_u32 s{sHEAD}, 0\ns_cbranch_scc1 L_fin{sfx}")

    def lsum(qs):
        t = B()
        if not LM: xlane_reduce_multi(t, [LS + q for q in qs], [T0 + 4 + q for q in qs], "v_add_f32")
        for q in qs:
            src = LA + 4 * q if LM else LS + q
            t(f"v_cmp_ngt_f32 vcc, {LTHR}, v{src}")
            t(f"v_rcp_f32 v{LS+q}, v{src}")
            t(f"s_or_b32 s{sFLAG}, s{sFLAG}, vcc_lo\ns_or_b32 s{sFLAG}, s{sFLAG}, vcc_hi")
        return t.L
    cnt = [0]
    def onorm(q, pk, flag, inplace=False, so=None):
        out = []
        for sp in range(4):
            d = P_ + 4 * (cnt[0] % 2); cnt[0] += 1
            if inplace: d = O_ + 32 * q + 8 * sp
            rs = [O_ + 32 * q + 8 * sp + 2 * i_ for i_ in range(4)]
            for r in rs:
                if pk and OPT.get('pk', 1): out.append(f"v_pk_mul_f32 v[{r}:{r+1}], v[{r}:{r+1}], v[{LS+q-(q%2)}:{LS+q-(q%2)+1}] op_sel:[0,{q%2}] op_sel_hi:[1,{q%2}]")
                else: out += [f"v_mul_f32 v{r}, v{r}, v{LS+q}", f"v_mul_f32 v{r+1}, v{r+1}, v{LS+q}"]
            for i_, r in enumerate(rs): out.append(f"v_cvt_pk_bf16_f32 v{d+i_}, v{r}, v{r+1}")
            if flag is None:
                for i_ in range(4): out.append(f"v_accvgpr_write_b32 a{AST+16*q+4*sp+i_}, v{d+i_}")
                continue
            if so:
                out[-1] += f"\ns_add_u32 s{sT+1}, s{so}, {sp*122880}\nbuffer_store_dwordx4 {vr(d,4)}, v{VO}, s[{SO}:{SO+3}], s{sT+1} offen offset:{1024*q}{flag}"
                continue
            out.append(f"s_add_u32 s{sT}, s{sOO}, {sp*122880}")
            out.append(f"buffer_store_dwordx4 {vr(d,4)}, v{VO}, s[{SO}:{SO+3}], s{sT} offen offset:{1024*q}{flag}")
        return out
    def drain(st, ld=None, every=1):
        slots = []; gaps = [[] for _ in range(18)]
        for q in (2, 3):
            for T in range(8): slots.append(pv(q, T) if q < nq else None)
            slots.append(lsm(q) if (q < nq and LM) else None)
        rem = sorted(sm_items(nq, NS, 2 * NS), key=lambda t: t[0])
        b.ext([sm_text(*k_) for g, k_ in rem if k_[1] == 2 and k_[0] != 'add'])
        crit = sorted([k_ for g, k_ in rem if k_[1] == 3 and k_[0] != 'add'], key=lambda k_: (k_[2], k_[0] == 'cvt'))
        g = 0
        for k_ in crit:
            if k_[0] == 'exp' and gaps[min(g, 6)]: g += 1
            gaps[min(g, 6)].append(sm_text(*k_))
            if k_[0] == 'exp' or len(gaps[min(g, 6)]) == 2: g += 1
        late = [sm_text(*k_) for g_, k_ in rem if k_[0] == 'add']
        for i_, x in enumerate(late): gaps[min(9 + i_ // 2, 16) if nq == 4 else 0].append(x)
        for g in range(18):
            if slots[g] is None: continue
            room = 2 - sum(2 if 'exp' in x else 1 for x in gaps[g])
            while room > 0 and st: gaps[g].append(st.pop(0)); room -= 1
        for i_, s_ in enumerate(slots):
            if s_: b(s_)
            if s_ and ld and (i_ % every == 0 or nq == 3):
                b(ld.pop(0))
                while ld and ld[0].startswith("s_"): b(ld.pop(0))
            b.ext(gaps[i_])
    hi = list(range(2, nq))
    movs = [f"v_accvgpr_mov_b32 a{AQ(q)+i_}, a{AQ2(q)+i_}" for q in range(nq) for i_ in range(16)]
    f0 = None if OPT.get('defer') else K2F[OPT.get('of0', 2)] + ' ; tag=WT'
    if OPT.get('wtp') == 1 and nq == 3: b("buffer_wbl2 sc1 ; tag=WT")
    st = lsum([0, 1]) + onorm(0, False, f0)
    SW2_ = OPT.get('sw2', 0)
    if SW2_ and not OPT.get('noearly'):
        ld = []
        D_ = OPT.get('dist', 5 if OPT.get('fsa') else 6)
        if OPT.get('pair'):
            b(f"s_add_u32 s{sT+1}, s{sKV}, 8192")
            if OPT.get('fsa') or OPT.get('fp'): ld = v_dma(36) + v_dma(37, f"s{sT+1}") + adv2(sT + 1) + [f"s_add_u32 s{sT+1}, s{sKV}, 8192"] + k_dma(38) + k_dma(39, f"s{sT+1}")
            else: ld = k_dma(38) + k_dma(39, f"s{sT+1}") + v_dma(38) + v_dma(39, f"s{sT+1}") + adv2(sT + 1)
        else:
            for t in (32 + D_, 33 + D_): ld += k_dma(t) + v_dma(t) + kv_adv()
        if OPT.get('dw3'):
            ld = (pair_dma3(True, 36, 92) + [f"s_add_u32 s{sKV}, s{sKV}, 16384"] + pair_dma3(False, 38, 92)) if nq == 3 else ["s_nop 0"]
        b(ld.pop(0))
        ld2 = []
        for x in ld: ld2 += [x] if x.startswith('s_') else [x, 'v_nop']
        ld2 = [x for x in ld]
        drain(st, ld2, 2)
        if OPT.get('dw3'): st[:] = ["s_waitcnt vmcnt(24)"] + zipper(st, ld2, 3, 1)
    else: drain(st)
    stamp(b, 4)
    b.ext(zipper(st, lsum(hi), 2, 1))
    b.ext(movs)
    st = onorm(1, False, f0)
    weave(pre_mfma(), st, 3 if nq == 4 else 4)
    b.ext(st)
    rest = []; late_ = []
    for q in hi:
        if SW2_ >= 2: late_ += onorm(q, False, f0, inplace=True, so=sOP)
        else: rest += onorm(q, True, f0)
    b.ext(zipper(rest, pre_max(), 2, 1))
    b.ext(vote_write())
    b(f"s_mov_b32 s{sOP}, s{sOO}\ns_add_u32 s{sOO}, s{sOO}, {4*122880}\ns_mov_b32 s{sHEAD}, 1")
    if OPT.get('emub'):
        b(f"s_and_b32 s{sT}, s97, 3\ns_cmp_eq_u32 s{sT}, s{sCNT}" if False else "")
        b(f"s_mov_b32 s{sT}, 0\nL_duma{sfx}:")
        for i_ in range(64):
            if (i_ // 2) % 4 >= nq: continue
            b(f"{MF} a[{192+4*(i_//2%16)}:{195+4*(i_//2%16)}], a[{4*(i_%8)}:{4*(i_%8)+3}], a[{32+4*(i_%7)}:{35+4*(i_%7)}], a[{192+4*(i_//2%16)}:{195+4*(i_//2%16)}]")
            if i_ % 2 == 0: b(f"ds_read_b64_tr_b16 v[4:5], v{VA + i_ % 8} offset:{(i_ % 16) * 4096}")
        b(f"s_waitcnt lgkmcnt(0)\ns_barrier\ns_add_u32 s{sT}, s{sT}, 1\ns_cmp_lt_u32 s{sT}, 8\ns_cbranch_scc1 L_duma{sfx}")
    if OPT.get('pz'):
        b(f"""s_and_b32 s{sT}, s97, 7
        s_lshl_b32 s{sT}, s{sT}, 2
        s_lshr_b32 s{sPW}, {OPT.get('pzc', 0x10210210):#x}, s{sT}
        s_and_b32 s{sPW}, s{sPW}, 15
        s_or_b32 s{sT}, s{sIDLE}, s{sSAFE}
        s_cselect_b32 s{sPW}, 0, s{sPW}
        s_cmp_eq_u32 s{sPW}, 0
        s_cselect_b32 s{sPW}, 99, s{sPW}""")
    head_start(1)
    dst = [(q, sp) for q in range(nq) for sp in range(4)] if OPT.get('defer') else []
    for k in range(32, 40):
        ex = []
        for g in (24, 25):
            if dst:
                q, sp = dst.pop(0)
                ex += [(g, f"s_add_u32 s{sT+1}, s{sOP}, {sp*122880}"),
                       (g, f"buffer_store_dwordx4 {ar(AST+16*q+4*sp,4)}, v{VO}, s[{SO}:{SO+3}], s{sT+1} offen offset:{1024*q} sc1 ; tag=WT")]
        if k == 38 and nq == 4 and OPT.get('wbt'):
            ex.append((8, f"s_lshr_b32 s{sT}, s97, 3\ns_lshl_b32 s{sT}, s{sT}, 2\ns_add_u32 s{sT}, s{sT}, s{sWAVE}\ns_cmp_eq_u32 s{sT}, 60\ns_cbranch_scc0 L_nwb\nbuffer_wbl2 sc1 ; cond\nL_nwb:"))
        if k == 39 and nq == 3 and OPT.get('pz'): ex.append((59, "s_branch L_sig\nL_nosig:"))
        attn_stage(b, k, nq, ex, fill=late_ if k == 32 else None)
    b(f"s_branch L_atin{sfx}")
    b("REPLAY at 32 2")
    b(f"L_fin{sfx}:")
    f1 = K2F[OPT.get('of', 0)]
    early = p2_w(0) + p2_o(0) + p2_adv(0) + p2_w(1) + p2_o(1) + p2_adv(1)
    if OPT.get('pre8'): early += (p2_w(2) + p2_o(2))[:8]
    for k in range(56, 64):
        ex = []
        CK = 57 if OPT.get('stg') == 2 else 59
        if k == 56: ex = [(1 if CK == 57 else 6, f"buffer_load_dword v{VCW}, v{VPE}, s[{SCN}:{SCN+3}], 0 offen sc1 ; tag=CW")]
        if k == CK: ex = [(NS - 3, f"WAITV ; cover=CW\nv_cmp_gt_u32 vcc, v{VTH}, v{VCW}\ns_cbranch_vccnz L_espin{sfx}\nL_eok{sfx}:" + ("\nbuffer_inv sc1" if OPT.get('acq') else "") + (f"\ns_cmp_eq_u32 s{sPZ}, 0\ns_cselect_b64 vcc, -1, 0" if OPT.get('pz') else ""))]
        if k == 57 and OPT.get('pz'): b(f"L_t57{sfx}:")
        if k > CK and OPT.get('stg'):
            pos = (3, 5, 7, 11, 17, 23, 31, 34, 37, 40, 54, 57) if k < 62 else (3, 5, 7, 11)
            if CK == 57: pos = (3, 7, 11, 17, 23, 33, 38, 55) if k < 62 else ()
            for g in pos:
                ex.append((g, early.pop(0)))
                while early and early[0].startswith("s_"): ex.append((g + 1, early.pop(0)))
            if k == 61: ex += [(58 + i_, x) for i_, x in enumerate(p2_stage_init())]
            if k >= 62:
                gs = iter((17, 23, 30, 32, 34, 36, 38, 40, 54, 55, 56, 57) if k == 62 else (17, 23, 30, 33, 36, 39, 50, 52, 54, 55, 56, 57))
                g = 15
                if CK == 57: gs = iter((3, 5, 7, 11, 17, 23, 30, 33, 36, 39, 54, 57)); g = 1
                seq_ = p2_stage(k - 62)
                for i_, x in enumerate(seq_):
                    if x.startswith("buffer_"): g = next(gs); ex.append((g, x))
                    elif x.startswith("s_add_u32 m0"): ex.append((g + 1, x))
                    else: ex.append((g + 1, x))
        elif k >= 60:
            for g in ((3, 7, 11, 17, 23, 33, 38, 55) if OPT.get('pre8') else (3, 7, 11, 17, 23, 45 if LM else 44)):
                if OPT.get('pz'):
                    t_ = [early.pop(0) + " condp"]
                    while early and early[0].startswith("s_"): t_.append(early.pop(0))
                    ex.append((g, f"s_cbranch_vccz L_sk{k}_{g}{sfx}\n" + "\n".join(t_) + f"\nL_sk{k}_{g}{sfx}:"))
                    continue
                ex.append((g, early.pop(0)))
                while early and early[0].startswith("s_"): ex.append((g + 1, early.pop(0)))
        attn_stage(b, k, nq, ex)
    assert not early
    p2 = []
    for s_ in (2, 3): p2 += p2_w(s_) + p2_o(s_) + p2_adv(s_)
    if OPT.get('pre8'): p2 = p2[8:]
    st = lsum([0, 1]) + onorm(0, False, f1)
    if OPT.get('stg'): b('s_waitcnt vmcnt(32)')
    drain(st, p2)
    stamp(b, 5)
    body = st + zipper(onorm(1, True, f1), lsum(hi), 2, 1)
    for q in hi: body += onorm(q, True, f1)
    body = [x + " ; tag=OS" if x.startswith("buffer_store") else x for x in body]
    nld = sum(1 for x in p2 if x.startswith("buffer_"))
    per = max(1, len(body) // (nld + 2))
    seq = []
    while body or p2:
        if p2:
            seq.append(p2.pop(0))
            while p2 and p2[0].startswith("s_"): seq.append(p2.pop(0))
        for _ in range(per):
            if body: seq.append(body.pop(0))
    outst = 48 - nld
    for x in seq:
        if x.startswith("buffer_"):
            if outst >= 62: b("s_waitcnt vmcnt(52)"); outst = 52
            outst += 1
        b(x)
    b.ext(vote_write())
    stamp(b)
    if OPT.get('pz'): b(f"s_cmp_eq_u32 s{sPZ}, 1\ns_cbranch_scc1 L_p2p{sfx}\nALTFROM p")
    b(f"L_p2s{sfx}:")
    if OPT.get('stg'):
        b(f"v_add_u32 v{VSB}, s{sSB}, v{VLN}\nv_add_u32 v{VSB+1}, 0x10000, v{VSB}")
        for s_ in range(4): p2_step(b, s_, s_ == 0, 'lds' if s_ < 2 else True, f"WAITV ; cover=P{s_}{',L%d' % (4 + s_) if s_ < 2 else ''} cap=51")
    else:
        for s_ in range(4): p2_step(b, s_, s_ == 0, s_ >= OPT.get('skip2', 0), f"WAITV ; cover=P{s_} cap=51")
    b("WAITV lgkmcnt(0) ; cover=OS")
    b("s_branch L_vote")
    b(f"""L_espin{sfx}:
    s_mov_b32 s{sLATE}, 1
    s_mov_b32 s{SO2+2}, 0
    s_mov_b32 s{SW2+2}, 0
    s_branch L_eok{sfx}""")
    if nq == 3:
        b(f"""L_sig:
        v_mov_b32 v4, {131072+7168}
        ds_read_b128 v[4:7], v4
        s_waitcnt lgkmcnt(0)
        v_or_b32 v4, v4, v5
        v_or3_b32 v4, v4, v6, v7
        v_readfirstlane_b32 s{sT}, v4
        s_mov_b64 exec, 1
        s_cmp_lg_u32 s{sSAFE}, 0
        s_cselect_b32 s{sT}, 0, s{sT}
        s_cbranch_scc1 L_sig1
        buffer_atomic_add v{VONE}, off, s[{SCN}:{SCN+3}], s{sCW} sc1
        L_sig1:
        s_or_b32 s{sT}, s{sT}, s{sSIG}
        s_cbranch_scc1 L_sig2
        s_add_u32 s{sT}, s{sCO}, 16384
        s_mov_b32 s{sSIG}, 1
        buffer_atomic_add v{VONE}, off, s[{SCN}:{SCN+3}], s{sT} sc1
        L_sig2:
        s_mov_b64 exec, -1
        s_branch L_nosig""")
        b(f"""L_hspin:
        s_mov_b32 s{sCNT}, 0
        L_hsp:
        s_sleep 8
        buffer_load_dword v{VHS}, off, s[{SDB}:{SDB+3}], 0 sc1
        s_waitcnt vmcnt(0)
        v_readfirstlane_b32 s{sT}, v{VHS}
        s_add_u32 s{sCNT}, s{sCNT}, 1
        s_lshr_b32 s{sT+1}, s{sCNT}, 17
        s_or_b32 s{sT}, s{sT}, s{sT+1}
        s_cmp_eq_u32 s{sT}, 0
        s_cbranch_scc1 L_hsp
        s_branch L_hsok""")
    for uid in QSPINS:
        b(f"""L_fs{uid}:
        ds_read_b128 {vr(QF,4)}, v{QFB}
        s_waitcnt lgkmcnt(0)
        v_min3_u32 v{QF}, v{QF}, v{QF+1}, v{QF+2}
        v_min_u32 v{QF}, v{QF}, v{QF+3}
        v_cmp_gt_u32 vcc, s{sFQ}, v{QF}
        s_cbranch_vccnz L_fs{uid}
        s_branch L_fr{uid}""")
    QSPINS.clear()
    for uid in SPINS:
        b(f"""L_fs{uid}:
        {"s_sleep %d" % OPT['fss'] if OPT.get('fss') else ""}
        ds_read_b128 {vr(FQ,4)}, v{VFB}
        s_waitcnt lgkmcnt(0)
        v_min3_u32 v{FQ}, v{FQ}, v{FQ+1}, v{FQ+2}
        v_min_u32 v{FQ}, v{FQ}, v{FQ+3}
        v_cmp_gt_u32 vcc, s{sFV}, v{FQ}
        s_cbranch_vccnz L_fs{uid}
        s_branch L_fr{uid}""")
    SPINS.clear()
    if OPT.get('pz'):
        b(f"""L_pchk{sfx}:
        v_mov_b32 v5, {DEC}
        ds_read_b32 v4, v5
        s_waitcnt lgkmcnt(0)
        v_readfirstlane_b32 s{sT}, v4
        s_cmp_eq_u32 s{sT}, 0
        s_cbranch_scc1 L_pret{sfx}
        s_mov_b32 s{sPW}, 99
        s_mov_b32 s{sPZ}, 1""")
        w_, o_, a_ = pz_loads(0, 0)
        ld = w_ + o_ + a_
        drain([], ld)
        b.ext(ld)
        w_, o_, a_ = pz_loads(1, 1)
        b.ext(w_ + o_ + a_)
        b("s_branch L_pz")
        b(f"L_pzr{sfx}:")
        b.ext([x.split(';')[0] for x in k_reads(0, 0)])
        b("s_waitcnt lgkmcnt(0)")
        t_ = B(); attn_stage(t_, 8, nq, resume=True); b.ext([x.split(';')[0] for x in t_.L])
        b(f"s_cmp_eq_u32 s{sCNT}, 1\ns_cbranch_scc1 L_at1{sfx}\ns_branch L_t57{sfx}")
        b(f"ALTBEGIN p\nL_p2p{sfx}:")
        b(f"s_add_u32 s{sT}, s{sXB}, 131072\nv_add_u32 v5, s{sT}, v{VLN}")
        for i_ in range(4): b(f"ds_read_b128 {vr(240+4*i_,4)}, v5 offset:{1024*i_}")
        l0 = p2_w(0) + p2_o(0) + p2_adv(0); l1 = p2_w(1) + p2_o(1) + p2_adv(1)
        for i_ in range(128):
            b(f"v_accvgpr_read_b32 v{112+i_}, a{128+i_}")
            if i_ >= 64 and i_ % 4 == 3 and l0:
                b(l0.pop(0))
                while l0 and l0[0].startswith("s_"): b(l0.pop(0))
        b("WAITV ; cover=P2 cap=40")
        b.ext(l1)
        b("s_waitcnt lgkmcnt(0)")
        for s_ in (2, 3): p2_step(b, s_, False, True, f"WAITV ; cover=P{s_} cap=51")
        b("WAITV lgkmcnt(0) ; cover=OS")
        b("s_branch L_vote\nALTEND p")
    b(f"L_maxpass{sfx}:")
    for q in range(nq): b(f"v_mov_b32 v{T0+8+q}, 0xff800000")
    for s2 in range(4): b(f"v_add_u32 v{T0+12+s2}, 147456, v{KA+s2}")
    b(f"s_lshl_b32 s{sT}, s{sHEAD}, 18\ns_mov_b32 s{sCNT}, 0")
    b(f"L_mp{sfx}:")
    b(f"s_barrier\ns_add_u32 m0, s{sKB}, 147456")
    b(dma(DK0, SK, f"s{sT}", 0, "", "MP")); b(dma(DK1, SK, f"s{sT}", 1024, "", "MP"))
    b("s_waitcnt vmcnt(0)\ns_barrier")
    for kt in range(2):
        for s in range(4):
            b(f"ds_read_b128 {ar(ASP+4*(4*kt+s),4)}, v{T0+12+s} offset:{kt*4096}")
    b("s_waitcnt lgkmcnt(0)")
    for q in range(nq):
        for kt in range(2):
            for s in range(4):
                d = vr(S_ + 8 * q + 4 * kt, 4)
                b(f"{MF} {d}, {ar(ASP+4*(4*kt+s),4)}, {ar(AQ(q)+4*s,4)}, {d if s else '0'}")
    for q in range(nq):
        for e in range(0, 8, 2): b(f"v_max3_f32 v{T0+8+q}, v{T0+8+q}, v{S_+8*q+e}, v{S_+8*q+e+1}")
    b(f"s_add_u32 s{sT}, s{sT}, 8192\ns_add_u32 s{sCNT}, s{sCNT}, 1\ns_cmp_lt_u32 s{sCNT}, 32\ns_cbranch_scc1 L_mp{sfx}")
    b("s_barrier")
    xlane_reduce_multi(b, [T0 + 8 + q for q in range(nq)], [T0 + q for q in range(nq)], "v_max_f32")
    for q in range(nq):
        for r in range(4): b(f"v_sub_f32 v{CI+4*q+r}, 0, v{T0+8+q}")
    b(f"s_cmp_eq_u32 s{sHEAD}, 0\ns_cbranch_scc1 L_maxdone0{sfx}\ns_branch L_maxdone1{sfx}")

FA = [144, 192, 0, 96]
def p2_reg(slot, i):
    if OPT.get('pre8'):
        if slot == 2: return 128 + 4 * i if i < 4 else (240 + 4 * (i - 4) if i < 8 else 4 * (i - 8))
        if slot == 3: return 16 + 4 * i
    if slot == 3: return 48 + 4 * i if i < 4 else 96 + 4 * (i - 4)
    return FA[slot] + 4 * i
def pz_reg(slot, i):
    return ar((0, 64)[slot] + 4 * i, 4) if i < 8 else vr((32, 48)[slot] + 4 * (i - 8), 4)
def pz_acc(t): return ar(128 + 4 * t, 4) if t < 32 else vr(16 + 4 * (t - 32), 4)
def pz_loads(slot, L):
    f = K2F[OPT.get('p2f', 2)]
    w = [f"buffer_load_dwordx4 {pz_reg(slot, i)}, v{VPW + i//3}, s[{SW2}:{SW2+3}], s{sW2} offen offset:{1024*(i%3)}{f}" for i in range(6)]
    o = [f"buffer_load_dwordx4 {pz_reg(slot, 6+i)}, v{VPO + i//3}, s[{SO2}:{SO2+3}], s{sO2} offen offset:{1024*(i%3)}{f}" for i in range(6)]
    return w, o, p2_adv(L % 4)
VPW = 2; VPO = 8
def p2_w(slot): return [f"buffer_load_dwordx4 {ar(p2_reg(slot, i),4)}, v{VPW + i//3}, s[{SW2}:{SW2+3}], s{sW2} offen offset:{1024*(i%3)}{K2F[OPT.get('p2wf', OPT.get('p2f', 2))]} ; tag=P{slot}" for i in range(6)]
def p2_o(slot): return [f"buffer_load_dwordx4 {ar(p2_reg(slot, 6+i),4)}, v{VPO + i//3}, s[{SO2}:{SO2+3}], s{sO2} offen offset:{1024*(i%3)}{K2F[OPT.get('p2f', 2)]} ; tag=P{slot}" for i in range(6)]
def p2_adv(slot):
    m = 5 if slot == 3 else 1
    out = [f"s_add_u32 s{sO2}, s{sO2}, {m*122880}", f"s_add_u32 s{sW2}, s{sW2}, {m*36864}"]
    if slot == 3 and OPT.get('krot'):
        out += ["s_add_u32 s93, s93, 1", "s_and_b32 s93, s93, 3", "s_cselect_b32 s94, 0, 32", "s_mul_i32 s95, s94, 122880",
                f"s_sub_u32 s{sO2}, s{sO2}, s95", "s_mul_i32 s95, s94, 36864", f"s_sub_u32 s{sW2}, s{sW2}, s95"]
    return out
def p2_init():
    if OPT.get('s2t'): return f"s_mul_i32 s{sO2}, s92, {32*122880}\ns_mul_i32 s{sW2}, s92, {32*36864}"
    if not OPT.get('krot'): return f"s_mul_i32 s{sO2}, s{sWAVE}, {32*122880}\ns_mul_i32 s{sW2}, s{sWAVE}, {32*36864}"
    return f"s_lshl_b32 s93, s{sWAVE}, 2\ns_add_u32 s93, s93, s92\ns_mul_i32 s{sO2}, s93, {8*122880}\ns_mul_i32 s{sW2}, s93, {8*36864}\ns_mov_b32 s93, s92"

def p2_stage(i):
    f = K2F[OPT.get('p2f', 2)]; out = []
    for grp, (v_, srd, so) in enumerate(((VPW, SW2, 93), (VPW + 1, SW2, 93), (VPO, SO2, 92), (VPO + 1, SO2, 92))):
        out.append(f"s_add_u32 m0, s{sSB}, {65536 * i + 3072 * grp}")
        out += [f"buffer_load_dwordx4 v{v_}, s[{srd}:{srd+3}], s{so} offen offset:{1024*j}{f} lds ; tag=L{4+i}" for j in range(3)]
    out += ["s_add_u32 s92, s92, 122880", "s_add_u32 s93, s93, 36864"]
    return out
def p2_stage_init():
    return [f"s_mul_i32 s{sSB}, s{sWAVE}, 12288", f"s_mul_i32 s92, s{sWAVE}, {32*122880}", f"s_add_u32 s92, s92, {8*122880}",
            f"s_mul_i32 s93, s{sWAVE}, {32*36864}", f"s_add_u32 s93, s93, {8*36864}"]

def vote_write():
    return [f"v_mov_b32 v4, s{sFLAG}", f"s_lshl_b32 s{sT}, s{sWAVE}, 2", f"s_add_u32 s{sT}, s{sT}, {131072+7168}",
            f"v_mov_b32 v5, s{sT}", "ds_write_b32 v5, v4"]

P2ACC = 112
def p2_acc(q, n): return P2ACC + 4 * (6 * q + n)
def p2_step(b, slot, first, prefetch, wait, order=None, extra=None):
    b(wait)
    order = order or [(q, n) for q in range(6) for n in range(6)]
    slots = []; gaps = [[] for _ in range(36)]
    for q, n in order:
        a_ = vr(p2_acc(q, n), 4)
        slots.append(f"{MF} {a_}, {ar(p2_reg(slot, n),4)}, {ar(p2_reg(slot, 6+q),4)}, {'0' if first else a_}")
    if prefetch:
        o_, w_ = p2_o(slot), p2_w(slot)
        if prefetch == 'lds':
            w_ = [f"ds_read_b128 {ar(p2_reg(slot, i),4)}, v{VSB + slot} offset:{1024*i}" for i in range(6)]
            o_ = [f"ds_read_b128 {ar(p2_reg(slot, 6+i),4)}, v{VSB + slot} offset:{1024*(6+i)}" for i in range(6)]
        for q in range(6): gaps[6 * q + 5].append(o_[q])
        for n in range(6): gaps[30 + n].append(w_[n])
        gaps[35] += p2_adv(slot)
    for g, x in (extra or []): gaps[g].append(x)
    emit_slots(b, slots, gaps)

def phase2(b):
    D = 4
    acc = p2_acc
    def step(slot, first, prefetch, N, order=None, extra=None): p2_step(b, slot, first, prefetch, f"s_waitcnt vmcnt({N})", order, extra)
    b(f"""L_vote:
    s_cmp_eq_u32 s{sLATE}, 2
    s_cbranch_scc1 L_go
    v_mov_b32 v5, {131072+7168}
    s_barrier
    ds_read_b128 v[16:19], v5
    s_waitcnt lgkmcnt(0)
    v_or_b32 v16, v16, v17
    v_or3_b32 v16, v16, v18, v19
    v_readfirstlane_b32 s{sT}, v16
    s_cmp_lg_u32 s{sSAFE}, 0
    s_cselect_b32 s{sT}, 0, s{sT}
    s_cmp_lg_u32 s{sT}, 0
    s_cbranch_scc1 L_redo
    s_cmp_eq_u32 s{sWAVE}, 3
    s_cbranch_scc0 L_nosig2
    s_mov_b64 exec, 1
    buffer_atomic_add v{VONE}, off, s[{SCN}:{SCN+3}], s{sCO} sc1
    s_mov_b64 exec, -1
    L_nosig2:""")
    stamp(b)
    b(f"""s_cmp_eq_u32 s{sIDLE}, 1
    s_cbranch_scc1 L_fini
    s_cmp_eq_u32 s{sLATE}, 1
    s_cbranch_scc1 L_lateld
    L_go:
    s_xor_b32 s70, s{sWAVE}, 1
    s_mul_i32 s70, s70, 27648
    v_add_u32 v16, s70, v{VLN}
    s_xor_b32 s70, s{sWAVE}, 2
    s_mul_i32 s70, s70, 27648
    s_add_u32 s70, s70, 9216
    v_add_u32 v17, s70, v{VLN}
    s_xor_b32 s70, s{sWAVE}, 3
    s_mul_i32 s70, s70, 27648
    s_add_u32 s70, s70, 18432
    v_add_u32 v18, s70, v{VLN}
    s_mul_i32 s70, s{sWAVE}, 27648
    v_add_u32 v19, s70, v{VLN}
    v_and_b32 v20, 15, v0
    v_mul_u32_u24 v20, 112, v20
    v_bfe_u32 v21, v0, 4, 2
    v_lshl_add_u32 v20, v21, 3, v20
    v_add_u32 v20, s70, v20            ; bf16 staging write address: row*96 + g*8
    v_and_b32 v21, 63, v0
    s_mov_b32 s71, 0x2aab""")
    for r in range(5):
        b(f"""v_add_u32 v22, {64*r}, v21
        v_mul_u32_u24 v23, s71, v22
        v_lshrrev_b32 v23, 16, v23
        v_mul_u32_u24 v{42+r}, {2304 - 96}, v23
        v_lshl_add_u32 v{42+r}, v22, 4, v{42+r}
        v_add_u32 v23, v23, v22
        v_lshlrev_b32 v23, 4, v23
        v_add_u32 v{68+r}, s70, v23""")
    b(f"""v_cmp_gt_u32 vcc, 32, v21
    v_mov_b32 v22, 0x7f000000
    v_cndmask_b32 v46, v22, v46, vcc
    s_mov_b32 s88, s{sOUT}
    s_mov_b32 s89, s{sOUT+1}
    s_mov_b32 s90, {8*240*1152*2}
    s_mov_b32 s91, 0x20000
    v_lshlrev_b32 v76, 3, v{VLN}
    v_min_u32 v76, L_fini-L_tail, v76
    v_add_u32 v76, L_tail-attn_kernel, v76
    v_mov_b32 v77, s95
    v_add_co_u32 v76, vcc, s94, v76
    v_addc_co_u32 v77, vcc, 0, v77, vcc
    s_mov_b32 s36, 0
    {f"s_cmp_eq_u32 s{sPZ}, 1" if OPT.get('pz') else ""}
    {"s_cbranch_scc1 L_chk2" if OPT.get('pz') else ""}
    .p2align 3
    L_k2:""")
    for s_ in range(D):
        ex = [(0, f"buffer_load_dword v6, v{VP2}, s[{SCN}:{SCN+3}], 0 offen sc1")] if s_ == 0 else None
        if s_ == 2 and OPT.get('rewt'): ex = [(0, "global_load_dword v78, v[76:77], off")]
        step(s_, False, True, 36, extra=ex)
    b("""s_add_u32 s36, s36, 1
    s_cmp_eq_u32 s36, 2
    s_cbranch_scc1 L_chk
    L_chkd:
    s_cmp_lt_u32 s36, 6
    s_cbranch_scc1 L_k2""")
    b("L_tail:")
    for s_ in range(D - 1): step(s_, False, False, 12 * (D - 1 - s_))
    stamp(b)
    quad = lambda q, n: (q // 3) * 2 + (n // 3)
    oth = [(q, n) for d in (1, 2, 3) for q in range(6) for n in range(6) if quad(q, n) == d]
    mine = [(q, n) for q in range(3) for n in range(3)]
    wr = [(min(i_ + 5, 35), f"ds_write_b128 v{15 + quad(q, n)}, {vr(acc(q, n),4)} offset:{((q % 3) * 3 + n % 3) * 1024}") for i_, (q, n) in enumerate(oth)]
    if OPT.get('stg'): b("s_barrier")
    step(D - 1, False, False, 0, order=oth + mine, extra=wr)
    if OPT.get('rstamps'): stamp(b)
    b("s_waitcnt lgkmcnt(0)\ns_barrier")
    if OPT.get('rstamps'): stamp(b)
    for t in range(9):
        for src in range(3):
            b(f"ds_read_b128 {vr(acc(*oth[3*t+src]),4)}, v19 offset:{src * 9216 + t * 1024}")
    nw = 0
    for t0 in range(0, 9, 3):
        ts = range(t0, t0 + 3)
        b(f"s_waitcnt lgkmcnt({min(15, 3 * (6 - t0) + nw)})")
        for ph in range(3):
            for t in ts:
                r0, r1, r2, m = acc(*oth[3*t]), acc(*oth[3*t+1]), acc(*oth[3*t+2]), acc(*mine[t])
                x_, y_ = ((r0, r1), (m, r2), (m, r0))[ph]
                for r in (0, 2): b(f"v_pk_add_f32 v[{x_+r}:{x_+r+1}], v[{x_+r}:{x_+r+1}], v[{y_+r}:{y_+r+1}]")
        for t in ts:
            m = acc(*mine[t])
            b(f"v_cvt_pk_bf16_f32 v{24+2*t}, v{m}, v{m+1}\nv_cvt_pk_bf16_f32 v{25+2*t}, v{m+2}, v{m+3}")
        for t in ts:
            q, n = mine[t]
            b(f"ds_write_b64 v20, v[{24+2*t}:{25+2*t}] offset:{q * 1792 + n * 32}"); nw += 1
    for r in range(5): b(f"ds_read_b128 {vr(48+4*r,4)}, v{68+r}")
    for r in range(5):
        b(f"s_waitcnt lgkmcnt({4-r})")
        b(f"buffer_store_dwordx4 {vr(48+4*r,4)}, v{42+r}, s[88:91], s{sOUTO} offen{K2F[OPT.get('outf', 0)]}")
    if OPT.get('rstamps'): stamp(b)
    b("L_fini:")
    if OPT.get('fixspan'):
        b(f"""s_waitcnt vmcnt(0)
        L_fix:
        s_memrealtime s[74:75]
        s_waitcnt lgkmcnt(0)
        s_sub_u32 s74, s74, s72
        s_cmp_lt_u32 s74, {OPT['fixspan'] * 100}
        s_cbranch_scc1 L_fix""")
    stamp_dump(b, 0, sWAVE)
    b("s_endpgm")
    if OPT.get('pz'):
        b("L_pz:")
        for j in range(10):
            sl = j % 2
            b(f"s_waitcnt vmcnt({12 if j < 9 else 0})")
            slots = []; gaps = [[] for _ in range(36)]
            for q in range(6):
                for n in range(6):
                    a_ = pz_acc(6 * q + n)
                    slots.append(f"{MF} {a_}, {pz_reg(sl, n)}, {pz_reg(sl, 6+q)}, {'0' if j == 0 else a_}")
            if j < 8:
                w_, o_, ad = pz_loads(sl, j + 2)
                for q in range(6): gaps[6 * q + 5].append(o_[q])
                for n in range(6): gaps[30 + n].append(w_[n])
                gaps[35] += ad
            emit_slots(b, slots, gaps)
        b(f"s_add_u32 s{sT}, s{sXB}, 131072\nv_add_u32 v5, s{sT}, v{VLN}\nv_mov_b32 v{VCW}, v{VTH}")
        for i_ in range(4): b(f"ds_write_b128 v5, {vr(16+4*i_,4)} offset:{1024*i_}")
        b(f"s_cmp_eq_u32 s{sWAVE}, 3\ns_cbranch_scc1 L_pzr3\ns_branch L_pzr4")
        b(f"""L_chk2:
        s_mov_b32 s36, 2
        buffer_load_dword v6, v{VP2}, s[{SCN}:{SCN+3}], 0 offen sc1
        s_waitcnt vmcnt(0)""")
    b(f"""L_chk:
    s_waitcnt vmcnt(48)
    s_{"add" if OPT.get('krot') else "sub"}_u32 s{sO2}, s{sO2}, {(4 if OPT.get('krot') else 28)*122880}
    s_{"add" if OPT.get('krot') else "sub"}_u32 s{sW2}, s{sW2}, {(4 if OPT.get('krot') else 28)*36864}
    v_cmp_gt_u32 vcc, 4, v6
    s_cbranch_vccz L_chkd
    s_mov_b32 s37, 0
    L_poll:
    s_sleep 4
    buffer_load_dword v6, v{VP2}, s[{SCN}:{SCN+3}], 0 offen sc1
    s_add_u32 s37, s37, 1
    s_waitcnt vmcnt(0)
    v_cmp_gt_u32 vcc, 4, v6
    s_cbranch_vccz L_chkd
    s_cmp_lt_u32 s37, 0x20000
    s_cbranch_scc1 L_poll
    s_branch L_chkd
    L_lateld:
    s_mov_b32 s{SO2+2}, s100
    s_mov_b32 s{SW2+2}, s101
    {p2_init()}
    s_mov_b32 s{sLATE}, 2
    s_mov_b32 s37, 0
    L_esp:
    s_sleep 4
    buffer_load_dword v{VCW}, v{VPE}, s[{SCN}:{SCN+3}], 0 offen sc1
    s_add_u32 s37, s37, 1
    s_waitcnt vmcnt(0)
    v_cmp_gt_u32 vcc, v{VTH}, v{VCW}
    s_cbranch_vccz L_espd
    s_cmp_lt_u32 s37, 0x20000
    s_cbranch_scc1 L_esp
    L_espd:
    {"buffer_inv sc1" if OPT.get('acq') else ""}""")
    for s_ in range(4): b.ext(p2_w(s_) + p2_o(s_) + p2_adv(s_))
    if OPT.get('stg'):
        b("s_waitcnt vmcnt(0)"); b.ext(p2_stage_init() + p2_stage(0) + p2_stage(1))
    b(f"""s_waitcnt vmcnt(0)
    s_cmp_eq_u32 s{sWAVE}, 3
    s_cbranch_scc1 L_p2s3
    s_branch L_p2s4
    L_redo:
    s_mov_b32 s{sSAFE}, 1
    s_waitcnt vmcnt(0)
    s_barrier""")
    warm_addr(b)
    prologue_a(b)
    b.ext(x_dma(0, 4)); b.ext(w_dma(0, 4))
    b("s_branch L_tramp")

def kernel1():
    b = B()
    b("attn_kernel:")
    b("s_cmp_lt_u32 s2, 256\ns_cbranch_scc1 L_work\ns_endpgm\nL_work:")
    if OPT['stamps']: b("s_mov_b32 s96, 0\nv_mov_b32 v14, 0\nv_mov_b32 v15, 0")
    stamp(b)
    if OPT.get('fixspan') and not OPT.get('fixat'): b("s_memrealtime s[72:73]\ns_waitcnt lgkmcnt(0)")
    b("s_load_dwordx16 s[48:63], s[0:1], 0\ns_load_dwordx4 s[64:67], s[0:1], 64\ns_load_dwordx2 s[100:101], s[0:1], 96\ns_load_dwordx4 s[76:79], s[0:1], 80")
    b(f"""s_mov_b32 s97, s2
    s_and_b32 s3, s2, 7
    s_lshr_b32 s2, s2, 3""")
    warm_code(b)
    b(f"""v_lshrrev_b32 v1, 6, v0
    s_bfe_u32 s68, s3, {0x10001 if OPT.get('map') else 0x10000}
    s_lshl_b32 s68, s68, 2
    s_and_b32 s69, s2, 3
    s_add_u32 s68, s68, s69        ; b
    v_readfirstlane_b32 s{sWAVE}, v1
    s_bfe_u32 s69, s3, {0x10000 if OPT.get('map') else 0x10001}
    s_lshl_b32 s69, s69, 3
    s_lshr_b32 s70, s2, 2
    s_add_u32 s69, s69, s70        ; hp
    s_lshr_b32 s3, s3, 2           ; blk
    s_lshl_b32 s{sWB}, s{sWAVE}, 12
    s_lshl_b32 s{sXB}, s{sWAVE}, 13
    s_mov_b32 s{sC}, {CSCALE}
    s_mov_b32 s{sC+1}, {CSCALE}
    s_mov_b32 s{sSAFE}, 0
    s_mov_b32 s{sFLAG}, 0""")
    prologue_a(b)
    b(f"""s_cmp_eq_u32 s3, 0
    s_waitcnt lgkmcnt(0)
    s_cselect_b64 s[48:49], s[48:49], s[58:59]
    s_cselect_b64 s[50:51], s[50:51], s[60:61]
    s_cselect_b64 s[52:53], s[52:53], s[62:63]
    s_cselect_b64 s[54:55], s[54:55], s[64:65]
    s_cselect_b64 s[56:57], s[56:57], s[66:67]""")
    if OPT.get('sstamps'): stamp(b)
    b(f"""s_mul_i32 s71, s68, 276480
    s_add_u32 s{SX}, s48, s71
    s_addc_u32 s{SX+1}, s49, 0
    s_mov_b32 s{SX+2}, 276480
    s_mov_b32 s{SX+3}, 0x20000
    s_lshl_b32 s71, s69, 9
    s_add_u32 s{SW}, s54, s71
    s_addc_u32 s{SW+1}, s55, 0
    s_sub_u32 s{SW+2}, 4718592, s71
    s_mov_b32 s{SW+3}, 0x20000""")
    b("L_srdok:")
    prologue_b(b)
    b(f"""s_cmp_eq_u32 s{sWAVE}, 3
    s_cbranch_scc1 L_begin3""")
    wave_code(b, 4, "4")
    b("L_tramp:\ns_branch L_late")
    b(".p2align 6")
    wave_code(b, 3, "3")
    b("L_phase2:")
    phase2(b)
    b("L_end1:\ns_endpgm\nL_codeend:")
    return b.L

def resolve_waits(L):
    out = []
    for i, x in enumerate(L):
        if x.startswith("WAITL"):
            tag = x.split()[1]
            n, T = tag[1:].split('.'); T = int(T)
            dst = set(range(AW + 8 * (T % 4), AW + 8 * (T % 4) + 8))
            cnt = 0; found = False
            for y in reversed(out):
                if y.startswith(("s_waitcnt", "WAITV")) and "lgkmcnt(0)" in y:
                    found = True; cnt = None; break
                if y.startswith("ds_"):
                    I = Ins(y)
                    if any(k == 'a' and r in dst for k, r in I.wr) or (T == 0 and 'need=X' in y):
                        found = True; break
                    cnt += 1
            assert found, x
            if cnt is not None:
                cnt = min(cnt, 15)
                out.append(f"s_waitcnt lgkmcnt({cnt})")
        else: out.append(x)
    return out

def expand_trace(L):
    def shift(line, name, it, step):
        if it == 0: return line
        def rep(m):
            k, n = m.group(1), int(m.group(2))
            if name == 'qp':
                if k == 'W': return f"W{n + step*it}"
                if k == 'X': return f"X{n + step*it//2}"
                return m.group(0)
            if k == 'KV': return f"KV{n + step*it}"
            return m.group(0)
        if ';' not in line: return line
        a, c = line.split(';', 1)
        return a + ';' + re.sub(r'\b(KV|W|X)(\d+)\b', rep, c)
    bodies = {}
    def go(i, stop):
        res = []
        while i < len(L):
            x = L[i]
            if x.startswith("LOOPBEGIN"):
                _, name, cnt, step = x.split(); cnt = int(cnt); step = int(step)
                body, j = go(i + 1, name)
                bodies[name] = (body, cnt, step)
                for it in range(cnt):
                    for y in body:
                        if y == f"LOOPEXIT {name}":
                            if it == cnt - 1: break
                            continue
                        res.append(shift(y, name, it, step))
                i = j + 1; continue
            if x.startswith("REPLAY"):
                _, name, off, cnt = x.split(); cnt = int(cnt); body, _, step = bodies[name]
                for it in range(cnt):
                    for y in body: res.append(shift(shift(y, name, it, step), name, 1, int(off)))
                i += 1; continue
            if x.startswith("LOOPEND") and x.split()[1] == stop: return res, i
            res.append(x); i += 1
        return res, i
    return go(0, None)[0]

STOPS = ("L_maxpass", "L_hspin", "L_espin")
def traces(L):
    tr = expand_trace(L)
    main = []
    for x in tr:
        if x.startswith(STOPS): break
        main.append(x)
    alt = None
    if "ALTFROM p" in main:
        i = tr.index("ALTBEGIN p"); j = tr.index("ALTEND p")
        alt = [x for x in main[:main.index("ALTFROM p")] if 'condp' not in x] + tr[i + 1:j]
    drop = lambda t: [x for x in t if not x.startswith("ALT")]
    return drop(main), drop([x for x in main if 'condp' not in x]), alt

def resolve_vm(L):
    idx = [f"{x} ;#{i}" if x.startswith("WAITV") else x for i, x in enumerate(L)]
    best = {}
    main, lean, alt = traces(idx)
    for which, tr in (("main", main), ("lean", lean), ("alt", alt or [])):
        q = []
        for x in tr:
            c = x.split(';', 1)[1] if ';' in x else ''
            if x.startswith(("buffer_", "global_")):
                if 'cond' in c and 'condp' not in c: continue
                m = re.search(r'tag=(\w+)', c); q.append(m.group(1) if m else 'other')
            elif x.startswith("WAITV"):
                tags = set(re.search(r'cover=([\w,]*)', c).group(1).split(','))
                if which == "lean" and any(t[:1] == 'P' or t == 'OS' for t in tags): continue
                i = int(x.rsplit('#', 1)[1])
                n = 0
                for t in reversed(q):
                    if t in tags: break
                    n += 1
                else: n = 63
                m = re.search(r'cap=(\d+)', c)
                best[i] = min(best.get(i, 63), n, int(m.group(1)) if m else 63)
    out = []
    for i, x in enumerate(L):
        if x.startswith("WAITV"):
            a, c = x.split(';', 1) if ';' in x else (x, '')
            out.append(f"s_waitcnt vmcnt({best[i]}) {a[5:].strip()} ;{c}")
        else: out.append(x)
    return out

def check_protocol(L, label):
    q = []; done = set(); issued = {}; pub = set(); errs = 0
    holder = {}; lastread = {}; lg0 = -1; bar = -1; dq = []; snap = -1; qsnap = None
    for pos, x in enumerate(L):
        cc = x.split(';', 1)[1] if ';' in x else ''
        if 'PUB' in cc: snap = lg0; qsnap = list(q)
        if x.startswith("ds_"): dq.append(pos)
        m = re.search(r'lgkmcnt\((\d+)\)', x) if x.startswith("s_waitcnt") else None
        if m:
            while len(dq) > int(m.group(1)): dq.pop(0)
            lg0 = dq[0] - 1 if dq else pos
        if x.startswith("s_barrier"): bar = lg0
        if 'SYNC' in cc:
            bar = max(bar, snap)
            for t in re.search(r'pub=([\w,]*)', cc).group(1).split(','):
                if qsnap is not None and t in qsnap: print(label, "ERR published before landed", t); errs += 1
        m = re.search(r'need=(\w+)', cc)
        if m and x.startswith("ds_read"):
            lastread[(m.group(1), ('K' if 'b128' in x else 'V') if m.group(1).startswith('KV') else '')] = pos
        m = re.search(r'tag=(\w+) reg=([\w,]+)', cc)
        if m:
            for r in m.group(2).split(','):
                old_ = holder.get(r)
                if old_ and old_ != m.group(1):
                    lr = lastread.get((old_, r[0] if old_.startswith('KV') else ''), -1)
                    private = old_[0] == 'X' and m.group(1)[0] == 'X'
                    if lr > (lg0 if private else bar): print(label, "ERR overwrite", r, old_, x); errs += 1
                holder[r] = m.group(1)
        c = x.split(';', 1)[1] if ';' in x else ''
        if x.startswith("buffer_") or x.startswith("global_"):
            if 'cond' in c and 'condp' not in c: continue
            m = re.search(r'tag=(\w+)', c); q.append(m.group(1) if m else 'other')
        elif x.startswith("s_waitcnt"):
            m = re.search(r'vmcnt\((\d+)\)', x)
            if m:
                n = int(m.group(1))
                while len(q) > n: done.add(q.pop(0))
            m = re.search(r'needtag=(\w+)', c)
            if m and m.group(1) in q: print(label, "ERR needtag", x); errs += 1
        elif x.startswith("s_barrier") or 'SYNC' in c:
            m = re.search(r'pub=([\w,]*)', c)
            if m:
                for t in m.group(1).split(','):
                    if not t: continue
                    if t in q or (t not in done and not (label[:2] == 'w4' and OPT.get('dw3') and t[:2] == 'KV')): print(label, "ERR publish not landed", t, x); errs += 1
                    pub.add(t)
        elif x.startswith("ds_read"):
            m = re.search(r'need=(\w+)', c)
            if m and m.group(1) not in pub and m.group(1) != 'WO': print(label, "ERR read unpublished", x); errs += 1
        assert len(q) <= 63, ("vmcnt overflow", x)
    return errs

def burn(L):
    out = []; on = False; c = 0; k = 0
    for x in L:
        if x == 'BURNON': on = True; c = 0; continue
        if x == 'BURNOFF': on = False; continue
        out.append(x)
        if on and OPT.get('burn'):
            if x.startswith('v_mfma'): c = 0
            elif x.startswith('v_'):
                c += 1
                if c >= OPT['burn']:
                    c = 0; k += 1
                    out.append(f"{MF} v[4:7], a[{32+4*(k%8)}:{35+4*(k%8)}], a[{96+4*(k%7)}:{99+4*(k%7)}], v[4:7]")
    return out

def check_lgkm(L, label):
    dq = []; vq = []; errs = 0; cache = {}
    for x in L:
        t = x.split(';')[0].strip()
        I = cache.get(t)
        if I is None: I = cache[t] = Ins(t)
        if I.kind == 'label': continue
        if I.op == 's_waitcnt':
            m = re.search(r'lgkmcnt\((\d+)\)', t)
            if m:
                while len(dq) > int(m.group(1)): dq.pop(0)
            m = re.search(r'vmcnt\((\d+)\)', t)
            if m:
                while len(vq) > int(m.group(1)): vq.pop(0)
            continue
        use = I.rd | I.srcc | I.wr
        for w in dq + vq:
            if w & use: print(label, "ERR uncovered", x); errs += 1; break
        if I.kind in ('dsr', 'dsw'): dq.append(I.wr)
        if I.kind in ('vload', 'vstore', 'dma') and not ('cond' in x and 'condp' not in x): vq.append(I.wr)
    return errs

def finish(L):
    L = burn(L)
    L = resolve_waits(L)
    return L

def strip_markers(L):
    return [x for x in L if not x.startswith(("LOOPBEGIN", "LOOPEND", "LOOPEXIT", "REPLAY", "ALT"))]

DESC = """.section .rodata,"a"
.p2align 6
.amdhsa_kernel {name}
  .amdhsa_next_free_vgpr {vgpr}
  .amdhsa_next_free_sgpr 102
  .amdhsa_accum_offset 256
  .amdhsa_group_segment_fixed_size 0
  .amdhsa_kernarg_size 104
  .amdhsa_user_sgpr_count 2
  .amdhsa_user_sgpr_kernarg_segment_ptr 1
  .amdhsa_system_sgpr_workgroup_id_x 1
  .amdhsa_float_denorm_mode_32 3
.end_amdhsa_kernel
"""

def build(**kw):
    OPT.update(kw)
    k1 = finish(kernel1())
    i4 = k1.index("L_begin4:"); i3 = k1.index("L_begin3:"); iv = k1.index("L_phase2:")
    ip = k1.index("L_srdok:"); pre = k1[ip:i4]
    k1 = k1[:i4] + resolve_vm(pre + k1[i4:i3])[len(pre):] + resolve_vm(pre + k1[i3:iv])[len(pre):] + k1[iv:]
    e = 0
    for lab, part in (("w4", pre + k1[i4:i3]), ("w3", pre + k1[i3:])):
        main, lean, alt = traces(part)
        e += check_protocol(main, lab) + check_lgkm(main, lab)
        if alt: e += check_protocol(alt, lab + "alt") + check_lgkm(alt, lab + "alt")
    assert e == 0 or OPT.get('nocheck')
    k1 = strip_markers(k1)
    k1, n1, p1 = fix_hazards(k1)
    for p in p1: print("BRANCH HAZARD", p)
    assert not p1
    hdr = open("ref.txt").read().split("; Override")[0]
    KN = NAME + "_kernel"
    k1 = [x.replace("attn_kernel", KN) for x in k1]
    out = hdr
    out += """; Written with my own schedule generator (no compiler output).  One launch, 256 workgroups (one per CU), 4 waves each:
;  1. q-projection of two heads (x and Wq staged by LDS-DMA, 16x16x32 bf16 MFMA), scale log2(e)/sqrt(128) applied in fp32;
;  2. attention for the two heads, K/V streamed through an 8-tile LDS ring (waves hand tiles over with counters in LDS).  The softmax offset is the row maximum over the first
;     the workgroup starts over and uses the true row maximum over all 1024 keys (L_maxpass*).
;     hand it to the output projection, which the same workgroups run as 96x96 tiles (even heads first, odd heads after their hand-off).
; Waves 0-2 own four 16-query tiles (labels *4), wave 3 owns three (labels *3).
"""
    out += ("; @launch kernel=%s grid=(256,1,1) block=(256,1,1) lds=163840\n" % KN) if OPT.get('list') else "; @launch grid=(256,1,1) block=(256,1,1) lds=163840\n"
    out += '.amdgcn_target "amdgcn-amd-amdhsa--gfx950"\n.text\n'
    out += ".globl %s\n.p2align 8\n.type %s,@function\n" % (KN, KN) + "\n".join(k1) + "\n"
    out += DESC.format(name=KN, vgpr=512)
    return out, n1

if __name__ == "__main__":
    kw = {}
    for a in sys.argv[2:]:
        k, v = a.split('='); kw[k] = int(v)
    s, info = build(**kw)
    open(sys.argv[1], "w").write(s)
    print("nops inserted", info, "bytes", len(s))
```
